```python
import torch

def _softmax(x, axis=-1):
    return torch.softmax(x, dim=axis)

def _gelu(x):
    return torch.nn.functional.gelu(x, approximate='tanh')

def _silu(x):
    return torch.nn.functional.silu(x)

def _sigmoid(x):
    return torch.sigmoid(x)

def _layernorm(x, axis=-1, eps=1e-05):
    m = x.mean(dim=axis, keepdim=True)
    v = x.var(dim=axis, keepdim=True, unbiased=False)
    return (x - m) / torch.sqrt(v + eps)

def _scatter_add(tgt, idx, src, axis=0):
    return tgt.clone().index_add_(axis, idx, src)

def _segment_sum(src, seg, n):
    out = torch.zeros((n,) + src.shape[1:], dtype=src.dtype)
    return out.index_add_(0, seg, src)

def _pad(x, pw):
    flat = tuple((v for pair in reversed(pw) for v in pair))
    return torch.nn.functional.pad(x, flat)
kernel_name = 'interleave_layers__memory_aug_recurrent_mem_tr__mixer_s_mlp__prompt'

def setup_inputs():

    _w = lambda a: (lambda t: t.to(torch.bfloat16) if t.is_floating_point() else t)(torch.as_tensor(a))

    def _A_setup():
        B, S, Dm = (1, 2048, 640)
        H, Dh = (32, 192)
        M, seg = (8, 32)
        seg = min(seg, S)
        S = S // seg * seg
        return {'x': _w((lambda *s: torch.randn(*s, dtype=torch.bfloat16) * 0.05)(B, S, Dm)), 'mem0': _w((lambda *s: torch.randn(*s, dtype=torch.bfloat16) * 0.8)(B, M, Dm)), 'Wq': _w((lambda *s: torch.randn(*s, dtype=torch.bfloat16) * 0.8)(Dm, H, Dh) * Dm ** (-0.5)), 'Wk': _w((lambda *s: torch.randn(*s, dtype=torch.bfloat16) * 0.8)(Dm, H, Dh) * Dm ** (-0.5)), 'Wv': _w((lambda *s: torch.randn(*s, dtype=torch.bfloat16) * 0.8)(Dm, H, Dh) * Dm ** (-0.5)), 'Wo': _w((lambda *s: torch.randn(*s, dtype=torch.bfloat16) * 0.8)(H, Dh, Dm) * (H * Dh) ** (-0.5)), 'seg_len': seg}
    _A_in = _A_setup()

    def _B_setup():
        B, S, D, F = (1, 2048, 640, 1536)
        return {'x': _w((lambda *s: torch.randn(*s, dtype=torch.bfloat16) * 0.05)(B, S, D)), 'w1': _w((lambda *s: torch.randn(*s, dtype=torch.bfloat16) * 0.8)(D, D) * D ** (-0.5)), 'w2': _w((lambda *s: torch.randn(*s, dtype=torch.bfloat16) * 0.8)(D, D) * D ** (-0.5)), 'w3': _w((lambda *s: torch.randn(*s, dtype=torch.bfloat16) * 0.8)(D, F) * D ** (-0.5)), 'w4': _w((lambda *s: torch.randn(*s, dtype=torch.bfloat16) * 0.8)(F, D) * F ** (-0.5))}
    _B_in = _B_setup()
    return {'A_x': _A_in['x'], 'A_mem0': _A_in['mem0'], 'A_Wq': _A_in['Wq'], 'A_Wk': _A_in['Wk'], 'A_Wv': _A_in['Wv'], 'A_Wo': _A_in['Wo'], 'A_seg_len': _A_in['seg_len'], 'B_x': _B_in['x'], 'B_w1': _B_in['w1'], 'B_w2': _B_in['w2'], 'B_w3': _B_in['w3'], 'B_w4': _B_in['w4']}

def reference(A_x, A_mem0, A_Wq, A_Wk, A_Wv, A_Wo, A_seg_len, B_x, B_w1, B_w2, B_w3, B_w4):

    def _A_ref(x, mem0, Wq, Wk, Wv, Wo, seg_len):
        B, S, Dm = x.shape
        H, Dh = (Wq.shape[1], Wq.shape[2])
        M = mem0.shape[1]
        scale = Dh ** (-0.5)
        n_seg = S // seg_len
        L = M + seg_len
        idx = torch.arange(L)
        mask = (idx[:, None] < M) | (idx[:, None] >= idx[None, :])
        mem = mem0
        outs = []
        for s in range(n_seg):
            xs = x[:, s * seg_len:(s + 1) * seg_len, :].clone()
            h = torch.concatenate([mem, xs], axis=1)
            q = torch.einsum('btd,dhe->bhte', h, Wq)
            k = torch.einsum('btd,dhe->bhte', h, Wk)
            v = torch.einsum('btd,dhe->bhte', h, Wv)
            scores = torch.einsum('bhqe,bhke->bhqk', q, k) * scale
            scores = torch.where(mask[None, None], scores, -1000000000.0)
            p = _softmax(scores, axis=-1)
            o = torch.einsum('bhqk,bhke->bhqe', p, v)
            o = torch.einsum('bhte,hed->btd', o, Wo)
            mem = o[:, :M, :].clone()
            outs.append(o[:, M:, :])
        return torch.concatenate(outs, axis=1)

    def _B_ref(x, w1, w2, w3, w4):
        B, S, D = x.shape
        h = _gelu(_layernorm(x, axis=-1) @ w1)
        c = D // 4
        g0 = _pad(h[:, :, 0 * c:1 * c], ((0, 0), (1, 0), (0, 0)))[:, :S, :]
        g1 = _pad(h[:, :, 1 * c:2 * c], ((0, 0), (0, 1), (0, 0)))[:, 1:, :]
        g2 = _pad(h[:, :, 2 * c:3 * c], ((0, 0), (2, 0), (0, 0)))[:, :S, :]
        g3 = _pad(h[:, :, 3 * c:], ((0, 0), (0, 2), (0, 0)))[:, 2:, :]
        hs = torch.concatenate([g0, g1, g2, g3], axis=-1) @ w2
        x1 = x + hs
        h2 = _gelu(_layernorm(x1, axis=-1) @ w3) @ w4
        return x1 + h2
    x = A_x
    x = x + _A_ref(_layernorm(x, axis=-1), A_mem0, A_Wq, A_Wk, A_Wv, A_Wo, A_seg_len)
    x = x + _B_ref(_layernorm(x, axis=-1), B_w1, B_w2, B_w3, B_w4)
    x = x + _A_ref(_layernorm(x, axis=-1), A_mem0, A_Wq, A_Wk, A_Wv, A_Wo, A_seg_len)
    x = x + _B_ref(_layernorm(x, axis=-1), B_w1, B_w2, B_w3, B_w4)
    return x
```

```python
import re


def v(i, n=1):
    return f"v{i}" if n == 1 else f"v[{i}:{i + n - 1}]"


def a(i, n=1):
    return f"a{i}" if n == 1 else f"a[{i}:{i + n - 1}]"


def s(i, n=1):
    return f"s{i}" if n == 1 else f"s[{i}:{i + n - 1}]"


_REG = re.compile(r"^(-|abs\(|-abs\()?([vas])(?:(\d+)|\[(\d+):(\d+)\])\)?$")


def regs_of(op):
    op = op.strip()
    if op in ("vcc", "exec"):
        return {(op, 0)}
    if op in ("vcc_lo", "vcc_hi"):
        return {("vcc", 0)}
    if op in ("exec_lo", "exec_hi"):
        return {("exec", 0)}
    if op == "m0":
        return {("m0", 0)}
    m = _REG.match(op)
    if not m:
        return set()
    k = m.group(2)
    if m.group(3) is not None:
        return {(k, int(m.group(3)))}
    return {(k, i) for i in range(int(m.group(4)), int(m.group(5)) + 1)}


TRANS = ("v_exp_f32", "v_log_f32", "v_rcp_f32", "v_rsq_f32", "v_sqrt_f32", "v_sin_f32", "v_cos_f32", "v_rcp_iflag_f32")


class Ins:
    __slots__ = ("text", "mn", "kind", "rd", "wr", "srcC", "ab", "passes", "dpp", "trans", "ws", "storedata", "perm", "rdlane", "lds_dma", "sgpr_rd_const", "dst")

    def __init__(self, text):
        self.text = text
        t = text.split(";")[0].strip()
        parts = t.split(None, 1)
        mn = parts[0]
        self.mn = mn
        rest = parts[1] if len(parts) > 1 else ""
        ops, cur, depth = [], "", 0
        for ch in rest:
            if ch in "[(":
                depth += 1
            if ch in "])":
                depth -= 1
            if ch == "," and depth == 0:
                ops.append(cur.strip())
                cur = ""
            else:
                cur += ch
        if cur.strip():
            ops.append(cur.strip())
        mods = ""
        if ops:
            sp = ops[-1].split(None, 1)
            ops[-1] = sp[0]
            mods = sp[1] if len(sp) > 1 else ""
        self.rd, self.wr = set(), set()
        self.srcC, self.ab, self.dst = set(), set(), set()
        self.passes = 0
        self.dpp = False
        self.trans = False
        self.ws = 1
        self.storedata = set()
        self.perm = False
        self.rdlane = False
        self.lds_dma = False
        R = [regs_of(o) for o in ops]
        if mn == "s_nop":
            self.kind = "nop"
            self.ws = int(ops[0], 0) + 1
        elif mn.startswith("v_smfmac"):
            self.kind = "mfma"
            self.passes = 8 if "32x32" in mn else 4
            self.wr = set(R[0])
            self.dst = set(R[0])
            self.ab = R[1] | R[2] | R[3]
            self.srcC = set(R[0])
            self.rd = self.ab | self.srcC
        elif mn.startswith("v_mfma"):
            self.kind = "mfma"
            self.passes = 8 if "32x32" in mn else 4
            self.wr = set(R[0])
            self.dst = set(R[0])
            self.ab = R[1] | R[2]
            self.srcC = set(R[3])
            self.rd = self.ab | self.srcC
        elif mn.startswith("v_"):
            self.kind = "valu"
            base = mn.replace("_e32", "").replace("_e64", "").replace("_dpp", "").replace("_sdwa", "")
            self.trans = base in TRANS
            self.dpp = "_dpp" in mn or "row_" in mods or "quad_perm" in mods
            if base.startswith("v_permlane") and "swap" in base:
                self.perm = True
                self.rd = R[0] | R[1]
                self.wr = R[0] | R[1]
            elif base.startswith("v_cmp"):
                self.wr = set(R[0])
                for r in R[1:]:
                    self.rd |= r
                if base.startswith("v_cmpx"):
                    self.wr |= {("exec", 0)}
            elif base in ("v_readfirstlane_b32", "v_readlane_b32"):
                self.rdlane = True
                self.wr = set(R[0])
                for r in R[1:]:
                    self.rd |= r
            elif base in ("v_add_co_u32", "v_sub_co_u32", "v_subrev_co_u32", "v_addc_co_u32", "v_subb_co_u32", "v_mad_u64_u32", "v_div_scale_f32"):
                self.wr = R[0] | R[1]
                for r in R[2:]:
                    self.rd |= r
            else:
                self.wr = set(R[0])
                for r in R[1:]:
                    self.rd |= r
                if base in ("v_fmac_f32", "v_dot2c_f32_bf16", "v_writelane_b32", "v_pk_fmac_f16") or self.dpp:
                    self.rd |= R[0]
                if base == "v_cndmask_b32" and len(ops) == 3:
                    self.rd |= {("vcc", 0)}
        elif mn.startswith("buffer_") or mn.startswith("global_"):
            self.kind = "vmem"
            allmods = " " + mods + " "
            self.lds_dma = " lds " in allmods or "_lds_" in mn
            if self.lds_dma:
                for r in R:
                    self.rd |= r
                self.rd |= {("m0", 0)}
            elif "load" in mn:
                self.wr = set(R[0])
                for r in R[1:]:
                    self.rd |= r
            elif "atomic" in mn:
                for r in R:
                    self.rd |= r
                if " sc0 " in allmods:
                    self.wr = set(R[0])
            else:
                for r in R:
                    self.rd |= r
                di = 0 if mn.startswith("buffer_") else 1
                if "x3" in mn or "x4" in mn:
                    self.storedata = set(R[di])
        elif mn.startswith("ds_"):
            self.kind = "ds"
            if "read" in mn or "permute" in mn or "swizzle" in mn:
                self.wr = set(R[0])
                for r in R[1:]:
                    self.rd |= r
            else:
                for r in R:
                    self.rd |= r
        elif mn.startswith("s_"):
            self.kind = "salu"
            if mn.startswith("s_cmp") or mn.startswith("s_cbranch") or mn in ("s_branch", "s_barrier", "s_waitcnt", "s_sleep", "s_setprio", "s_endpgm", "s_bitcmp1_b32", "s_bitcmp0_b32"):
                for r in R:
                    self.rd |= r
            else:
                if R:
                    self.wr = set(R[0])
                for r in R[1:]:
                    self.rd |= r
                if "saveexec" in mn:
                    self.wr |= {("exec", 0)}
        else:
            raise ValueError("unknown instruction: " + text)


def _isvec(rs):
    return {r for r in rs if r[0] in "va"}


def _issgpr(rs):
    return {r for r in rs if r[0] in ("s", "vcc")}


def need(p, c):
    n = 0
    if p.kind == "mfma":
        far = 12 if p.passes == 8 else 8
        if c is None:
            return far
        if c.kind == "mfma":
            if c.ab & p.wr:
                n = max(n, far)
            if c.srcC & p.wr:
                if not (c.srcC == p.wr and c.passes == p.passes):
                    n = max(n, 10 if p.passes == 8 else 6)
            elif c.wr & p.wr:
                n = max(n, far)
        else:
            if (c.rd | c.wr) & p.wr:
                n = max(n, far)
            if c.kind == "valu" and (c.wr & p.srcC):
                n = max(n, 7 if p.passes == 8 else 3)
            if c.kind in ("vmem", "ds") and (c.wr & p.srcC):
                n = max(n, 7 if p.passes == 8 else 3)
        return n
    if p.kind == "valu":
        wv = _isvec(p.wr)
        wsg = _issgpr(p.wr)
        wex = ("exec", 0) in p.wr
        if c is None:
            if wv:
                n = max(n, 2)
            if wsg:
                n = max(n, 5 if any(r[0] == "s" for r in wsg) else 2)
            if wex:
                n = max(n, 5)
            return n
        if c.kind == "mfma" and (c.rd & wv):
            n = max(n, 2)
        if c.kind == "mfma" and wex:
            n = max(n, 4)
        if c.kind == "valu":
            if (c.dpp or c.perm) and (c.rd & wv):
                n = max(n, 2)
            if c.rdlane and (c.rd & wv):
                n = max(n, 1)
            if p.trans and not c.trans and (c.rd & wv):
                n = max(n, 1)
            if p.trans and c.trans and (c.rd & wv):
                n = max(n, 1)
            if "sdwa" in p.mn or "op_sel" in p.text:
                if (c.rd | c.wr) & wv:
                    n = max(n, 1)
            if c.rd & wsg:
                n = max(n, 4 if c.rdlane else 2)
            if wex:
                n = max(n, 5 if c.dpp else 4 if (c.rdlane or c.perm) else 2 if ("exec", 0) in c.rd else 0)
        if c.kind == "vmem" and (c.rd & wsg):
            n = max(n, 5)
        return n
    if p.kind == "salu":
        if ("m0", 0) in p.wr:
            if c is None or ("m0", 0) in c.rd:
                n = max(n, 1)
        return n
    if p.kind == "vmem" and p.storedata:
        if c is None:
            return 2
        if c.wr & p.storedata:
            n = max(n, 2)
        return n
    return n


class Asm:
    def __init__(self):
        self.items = []
        self._lab = 0

    def __call__(self, text):
        for line in text.strip().split("\n"):
            line = line.strip()
            if not line or line.startswith(";"):
                continue
            ins = Ins(line)
            if ins.mn.startswith("s_cbranch") or ins.mn == "s_branch":
                self.items.append(("f", 1))
            self.items.append(("i", ins))

    def label(self, name):
        self.items.append(("f", 0))
        self.items.append(("l", name))

    def nf(self, text):
        self.items.append(("i", Ins(text)))

    def label_nf(self, name):
        self.items.append(("l", name))

    def newlabel(self, stem="L"):
        self._lab += 1
        return f"{stem}_{self._lab}"

    def raw(self, text):
        self.items.append(("r", text))

    def comment(self, text):
        self.items.append(("r", "; " + text))

    def flush(self):
        self.items.append(("f", 0))

    def render(self):
        out = []
        hist = []
        nnop = 0
        for it in self.items:
            if it[0] == "r":
                out.append(it[1])
                continue
            if it[0] == "l":
                out.append(it[1] + ":")
                continue
            c = it[1] if it[0] == "i" else None
            dist = it[1] if it[0] == "f" else 0
            req = 0
            for p in reversed(hist):
                if dist >= 12:
                    break
                n = need(p, c)
                if n - dist > req:
                    req = n - dist
                dist += p.ws
            if req > 0:
                nop = Ins(f"s_nop {req - 1}")
                out.append(nop.text)
                hist.append(nop)
                nnop += 1
            if c is not None:
                out.append(c.text.replace(" offset:0 ", " ").replace(", ", ","))
                hist.append(c)
                if len(hist) > 40:
                    hist = hist[-20:]
        return "\n".join(out) + "\n"

    def count(self):
        return sum(1 for it in self.items if it[0] == "i")
```

```python
from common import *

def gen_chain(A, cfg, nwg):
    LAG = cfg.LAG
    TLAST = 63 + LAG
    WS = s(SRD_WS, 4)
    V_LANE, V_L16, V_L16B, V_L8, V_RED, V_MST, V_MEM0, V_FLG = 0, 1, 2, 3, 4, 5, 6, 7
    V_POIS, V_QKST, V_VST, V_OW = 8, 9, 10, 11
    V_T = 12
    V_VSTG = 19
    V_FV2 = V_T + 5
    V_VM = 20
    V_KEEP = 26
    V_WV = 32
    V_MF = 112
    V_Q, V_K, V_VX = 112, 124, 160
    V_AM = 136
    V_PL, V_PH = 184, 186
    V_KXB, V_VXB = 188, 189
    V_FV = 190
    V_KX = 192
    V_MP = 192
    V_RL = 192
    V_OF = 112
    V_OT = 136
    V_ACC = 240
    V_P = 252
    S_H, S_JJ, S_T, S_XCH, S_QKOFF, S_DEFER = 50, 51, 52, 53, 54, 55
    S_D0, S_ND, S_ISRED, S_PARTW, S_TMP = 56, 57, 58, 59, 60
    S_MQ = 68
    S_ML = 70
    S_MB = 72
    S_XGI = 74
    S_XPW = 75
    S_SRC = 76
    S_FLG = 77
    S_LDSKV = 78
    S_CW, S_U = 79, 80
    S_CS = 81
    S_HOFF = 82
    S_KVRD = 83
    S_T0 = 84
    S_VCK = 86
    S_XGW = 88
    S_MEMB = 89
    S_XCH0 = 90
    S_XPU = 91
    S_FXG = 28
    S_XPU0, S_TAG2 = 4, 5
    LDS_MEM, LDS_O, LDS_KV = (0, 36864, 43008) if cfg.ks else (0, 20480, 26624)
    A1, V_RR, V_RV, V_XW, V_XRD = 112, 160, 240, 184, 187
    if cfg.ks:
        V_MP = 220
    S_XW = 29
    S_OS = 6
    V_OWW = 128
    LDS_OWN = LDS_KV + 98304 - 65536
    V_GB = 112
    T = S_TMP
    CH = 9216

    A.label("ROLE_CHAIN")
    if cfg.timing == 6:
        A("s_mov_b32 s100, s96")
    A(f"s_mul_i32 {s(S_H)}, {s(S_ROLE)}, 43691")
    A(f"s_lshr_b32 {s(S_H)}, {s(S_H)}, 17")
    A(f"s_mul_i32 {s(T)}, {s(S_H)}, 3")
    A(f"s_sub_u32 {s(S_JJ)}, {s(S_ROLE)}, {s(T)}")
    A(f"s_lshr_b32 {s(S_XGI)}, {s(S_H)}, 3")
    A(f"s_lshr_b32 {s(S_CW)}, {s(S_WAVE)}, 1")
    A(f"s_and_b32 {s(S_U)}, {s(S_WAVE)}, 1")
    A(f"v_lshlrev_b32 {v(V_L16)}, 4, {v(V_LANE)}")
    A(f"v_add_u32 {v(V_L16B)}, 0x1000, {v(V_L16)}")
    A(f"v_lshlrev_b32 {v(V_L8)}, 3, {v(V_LANE)}")
    A(f"v_mov_b32 {v(V_POIS)}, -1")
    A(f"s_cmp_eq_u32 {s(S_JJ)}, 0")
    A(f"s_cselect_b32 {s(T)}, 2, 1")
    A(f"s_cselect_b32 {s(T + 1)}, 0, 1")
    A(f"s_mul_i32 {s(S_D0)}, {s(S_JJ)}, 13")
    A(f"s_add_u32 {s(S_D0)}, {s(S_D0)}, {s(T + 1)}")
    A(f"s_mul_i32 {s(T + 1)}, {s(S_WAVE)}, 3")
    A(f"s_add_u32 {s(S_D0)}, {s(S_D0)}, {s(T + 1)}")
    A(f"s_min_u32 {s(T + 1)}, {s(S_WAVE)}, {s(T)}")
    A(f"s_add_u32 {s(S_D0)}, {s(S_D0)}, {s(T + 1)}")
    A(f"s_cmp_lt_u32 {s(S_WAVE)}, {s(T)}")
    A(f"s_cselect_b32 {s(S_ND)}, 4, 3")
    A(f"s_mov_b32 {s(S_MQ)}, 0x00ff00ff")
    A(f"s_mov_b32 {s(S_MQ + 1)}, 0x00ff00ff")
    A(f"s_mov_b32 {s(S_ML)}, -1")
    A(f"s_mov_b32 {s(S_ML + 1)}, 0")
    A(f"s_mov_b32 {s(S_MB)}, 0xff00ff00")
    A(f"s_mov_b32 {s(S_MB + 1)}, 0xff00ff00")
    A(f"s_mov_b32 {s(S_CS)}, 0x3dd53b95")
    g_, c_ = V_T, V_T + 1
    A(f"v_lshrrev_b32 {v(g_)}, 4, {v(V_LANE)}")
    A(f"v_and_b32 {v(c_)}, 15, {v(V_LANE)}")
    A(f"v_lshrrev_b32 {v(V_T + 2)}, 3, {v(c_)}")
    A(f"v_mul_u32_u24 {v(V_QKST)}, {CH}, {v(V_T + 2)}")
    A(f"v_lshl_add_u32 {v(V_QKST)}, {v(g_)}, 8, {v(V_QKST)}")
    A(f"v_and_b32 {v(V_T + 2)}, 7, {v(c_)}")
    A(f"v_lshl_add_u32 {v(V_QKST)}, {v(V_T + 2)}, 4, {v(V_QKST)}")
    A(f"s_mul_i32 {s(S_QKOFF)}, {s(S_CW)}, 3072")
    A(f"s_lshl_b32 {s(T)}, {s(S_JJ)}, 10")
    A(f"s_add_u32 {s(S_QKOFF)}, {s(S_QKOFF)}, {s(T)}")
    A(f"s_lshl_b32 {s(T)}, {s(S_U)}, 7")
    A(f"s_add_u32 {s(S_QKOFF)}, {s(S_QKOFF)}, {s(T)}")
    A(f"v_add_u32 {v(V_QKST)}, {s(S_QKOFF)}, {v(V_QKST)}")
    A(f"s_lshl_b32 {s(T)}, {s(S_JJ)}, 2")
    A(f"s_add_u32 {s(T)}, {s(T)}, {s(S_WAVE)}")
    A(f"s_cmp_ge_u32 {s(T)}, 6")
    A(f"s_cselect_b32 {s(T + 1)}, 1, 0")
    A(f"s_mul_i32 {s(T + 2)}, {s(T + 1)}, 6")
    A(f"s_sub_u32 {s(T)}, {s(T)}, {s(T + 2)}")
    A(f"s_mul_i32 {s(T + 1)}, {s(T + 1)}, 1536")
    A(f"s_add_u32 {s(T + 1)}, {s(T + 1)}, 6144")
    A(f"s_and_b32 {s(T + 2)}, {s(T)}, 1")
    A(f"s_lshl_b32 {s(T + 3)}, {s(T + 2)}, 9")
    A(f"s_lshr_b32 {s(T + 4)}, {s(T)}, 1")
    A(f"s_lshl_b32 {s(T + 4)}, {s(T + 4)}, 3")
    A(f"s_add_u32 {s(T + 3)}, {s(T + 3)}, {s(T + 4)}")
    A(f"s_lshl_b32 {s(T + 4)}, {s(T + 2)}, 8")
    A(f"s_add_u32 {s(T + 4)}, {s(T + 4)}, 1024")
    A(f"s_cmp_lt_u32 {s(T)}, 4")
    A(f"s_cselect_b32 {s(T + 3)}, {s(T + 3)}, {s(T + 4)}")
    A(f"s_cselect_b32 {s(T + 4)}, 4, 3")
    A(f"s_add_u32 {s(T + 1)}, {s(T + 1)}, {s(T + 3)}")
    A(f"v_and_b32 {v(V_T + 2)}, 31, {v(V_LANE)}")
    A(f"v_lshlrev_b32 {v(V_VST)}, {s(T + 4)}, {v(V_T + 2)}")
    A(f"v_lshrrev_b32 {v(V_T + 2)}, 5, {v(V_LANE)}")
    A(f"v_mul_u32_u24 {v(V_T + 2)}, {CH}, {v(V_T + 2)}")
    A(f"v_add3_u32 {v(V_VST)}, {v(V_VST)}, {v(V_T + 2)}, {s(T + 1)}")
    A(f"s_lshl_b32 {s(T)}, {s(S_JJ)}, 2")
    A(f"s_add_u32 {s(T)}, {s(T)}, {s(S_WAVE)}")
    A(f"s_lshl_b32 {s(T)}, {s(T)}, 8")
    A(f"s_add_u32 {s(T)}, {s(T)}, 6144")
    A(f"v_and_b32 {v(V_VSTG)}, 31, {v(V_LANE)}")
    A(f"v_lshlrev_b32 {v(V_VSTG)}, 3, {v(V_VSTG)}")
    A(f"v_add3_u32 {v(V_VSTG)}, {v(V_VSTG)}, {v(V_T + 2)}, {s(T)}")
    A(f"s_mul_i32 {s(T)}, {s(S_U)}, 3072")
    A(f"s_lshl_b32 {s(T + 1)}, {s(S_CW)}, 7")
    A(f"s_add_u32 {s(T)}, {s(T)}, {s(T + 1)}")
    A(f"v_add_u32 {v(V_OW)}, {s(T)}, {v(V_L16)}")
    A(f"s_mul_i32 {s(T)}, {s(S_XGI)}, 24")
    A(f"s_sub_u32 {s(T)}, {s(S_ROLE)}, {s(T)}")
    A(f"s_cmp_lt_u32 {s(T)}, 20")
    A(f"s_cselect_b32 {s(S_ISRED)}, 1, 0")
    A(f"s_min_u32 {s(T)}, {s(T)}, 19")
    A(f"s_mov_b32 {s(T + 5)}, {s(S_WAVE)}")
    A(f"s_lshl_b32 {s(T + 1)}, {s(T)}, 2")
    A(f"s_add_u32 {s(T + 1)}, {s(T + 1)}, {s(T + 5)}")
    XPS = 2 * XP_STEP if cfg.near else XP_STEP
    if cfg.near:
        assert cfg.xpl and cfg.xpr == 4
        A(f"s_lshr_b32 {s(S_XPU)}, {s(T + 1)}, 2")
        A(f"s_lshl_b32 {s(S_XPU)}, {s(S_XPU)}, 14")
        A(f"s_and_b32 {s(S_XPW)}, {s(T + 1)}, 3")
        A(f"s_lshl_b32 {s(S_XPW)}, {s(S_XPW)}, 11")
        A(f"s_add_u32 {s(S_XPU)}, {s(S_XPU)}, {s(S_XPW)}")
    else:
        A(f"s_lshl_b32 {s(S_XPU)}, {s(T + 1)}, {11 if cfg.xpl else 9}")
    A(f"s_add_u32 {s(S_XPU)}, {s(S_XPU)}, {XP}")
    A(f"s_mul_i32 {s(S_XPW)}, {s(S_XGI)}, {512 if cfg.xpl else 40960}")
    A(f"s_mul_i32 {s(S_MEMB)}, {s(S_XGI)}, {CHB_XG}")
    A(f"s_add_u32 {s(S_MEMB)}, {s(S_MEMB)}, {CHB}")
    A(f"v_mul_u32_u24 {v(V_RED)}, 40960, {v(g_)}")
    A(f"v_lshl_add_u32 {v(V_RED)}, {v(c_)}, 4, {v(V_RED)}")
    A(f"s_lshl_b32 {s(T + 2)}, {s(T)}, 11")
    A(f"s_lshl_b32 {s(T + 3)}, {s(T + 5)}, 8")
    A(f"s_add_u32 {s(T + 2)}, {s(T + 2)}, {s(T + 3)}")
    A(f"v_add_u32 {v(V_RED)}, {s(T + 2)}, {v(V_RED)}")
    A(f"s_lshl_b32 {s(T + 2)}, {s(T + 1)}, 8")
    A(f"v_lshlrev_b32 {v(V_MST)}, 4, {v(c_)}")
    A(f"v_lshl_add_u32 {v(V_MST)}, {v(g_)}, 2, {v(V_MST)}")
    A(f"v_add_u32 {v(V_MST)}, {s(T + 2)}, {v(V_MST)}")
    A(f"v_and_b32 {v(V_T + 3)}, 7, {v(V_LANE)}")
    A(f"v_mul_u32_u24 {v(V_T + 3)}, 1280, {v(V_T + 3)}")
    A(f"v_lshrrev_b32 {v(V_T + 2)}, 1, {v(g_)}")
    A(f"v_lshl_add_u32 {v(V_T + 3)}, {v(V_T + 2)}, 5, {v(V_T + 3)}")
    A(f"v_and_b32 {v(V_T + 2)}, 1, {v(g_)}")
    A(f"v_lshl_add_u32 {v(V_T + 3)}, {v(V_T + 2)}, 2, {v(V_T + 3)}")
    A(f"s_lshl_b32 {s(T + 2)}, {s(T)}, 6")
    A(f"s_lshl_b32 {s(T + 3)}, {s(T + 5)}, 3")
    A(f"s_add_u32 {s(T + 3)}, {s(T + 3)}, {s(T + 2)}")
    make_srd(A, SRD_W, P_MEM0, 10240)
    A(f"buffer_load_dword {v(V_MEM0)}, {v(V_T + 3)}, {s(SRD_W, 4)}, {s(T + 3)} offen")
    A(f"v_min_u32 {v(V_FLG)}, 2, {v(V_LANE)}")
    A(f"s_mul_i32 {s(T + 3)}, {s(S_H)}, 3")
    A(f"v_add_u32 {v(V_FLG)}, {s(T + 3)}, {v(V_FLG)}")
    A(f"v_lshlrev_b32 {v(V_FLG)}, 2, {v(V_FLG)}")
    A(f"s_lshl_b32 {s(T + 3)}, {s(S_U)}, 16")
    A(f"v_add_u32 {v(V_FLG)}, {s(T + 3)}, {v(V_FLG)}")
    A(f"s_mul_i32 {s(S_KVRD)}, {s(S_CW)}, 24576")
    A(f"s_add_u32 {s(S_KVRD)}, {s(S_KVRD)}, {LDS_KV}")
    A(f"s_mul_i32 {s(S_HOFF)}, {s(S_H)}, 12288")
    A(f"s_mul_i32 {s(T + 3)}, {s(S_U)}, {QKV_SZ}")
    A(f"s_add_u32 {s(S_HOFF)}, {s(S_HOFF)}, {s(T + 3)}")
    A(f"s_add_u32 {s(S_HOFF)}, {s(S_HOFF)}, {KX}")
    A(f"s_mul_i32 {s(S_XCH0)}, {s(S_H)}, {XCH_HEAD}")
    A(f"s_add_u32 {s(S_XGW)}, {s(S_XCH0)}, {XG}")
    A(f"s_and_b32 {s(T + 2)}, {s(S_H)}, 7")
    A(f"s_mul_i32 {s(S_XCH0)}, {s(T + 2)}, {XCH_HEAD}")
    A(f"s_add_u32 {s(S_XCH0)}, {s(S_XCH0)}, {XCH_OFF}")
    A(f"s_add_u32 {s(S_XCH0)}, {s(S_XCH0)}, {s(S_MEMB)}")
    A(f"s_mul_i32 {s(S_PARTW)}, {s(T + 2)}, 40960")
    A(f"s_lshl_b32 {s(T + 3)}, {s(S_D0)}, 10")
    A(f"s_add_u32 {s(S_PARTW)}, {s(S_PARTW)}, {s(T + 3)}")
    A(f"s_add_u32 {s(S_PARTW)}, {s(S_PARTW)}, {PART_OFF}")
    A(f"s_add_u32 {s(S_PARTW)}, {s(S_PARTW)}, {s(S_MEMB)}")

    def poison_local(slot_reg):
        A(f"s_mul_i32 {s(T)}, {s(slot_reg)}, {XCH_SLOT}")
        A(f"s_add_u32 {s(T)}, {s(T)}, {s(S_XCH0)}")
        A(f"s_mul_i32 {s(T + 2)}, {s(slot_reg)}, {PART_SLOT}")
        A(f"s_add_u32 {s(T + 2)}, {s(T + 2)}, {s(S_PARTW)}")
        A(f"s_sub_u32 {s(T + 1)}, {s(S_ND)}, 1")
        A(f"s_lshl_b32 {s(T + 1)}, {s(T + 1)}, 10")
        A(f"s_add_u32 {s(T + 1)}, {s(T + 1)}, {s(T + 2)}")
        lst = [f"buffer_store_dword {v(V_POIS)}, {v(V_QKST)}, {WS}, {s(T)} offen",
               f"buffer_store_dword {v(V_POIS)}, {v(V_VST)}, {WS}, {s(T)} offen"]
        lst += [f"buffer_store_dword {v(V_POIS)}, {v(V_L16)}, {WS}, {s(T + 2)} offen offset:{i * 1024}" for i in range(3)]
        lst += [f"buffer_store_dword {v(V_POIS)}, {v(V_L16)}, {WS}, {s(T + 1)} offen"]
        lstore(A, lst)

    def xg_store(data, pois_deltas):
        if data:
            A(f"buffer_store_dwordx2 {v(V_KEEP + 4, 2)}, {v(V_VST)}, {WS}, {s(S_XGW)} offen sc1")
        for d in pois_deltas:
            A(f"s_add_u32 {s(T)}, {s(S_XGW)}, {d * XG_STEP}")
            A(f"buffer_store_dword {v(V_POIS)}, {v(V_VST)}, {WS}, {s(T)} offen sc1")
        lab = A.newlabel("xg")
        if data:
            A(f"buffer_store_dwordx4 {v(V_KEEP, 4)}, {v(V_QKST)}, {WS}, {s(S_XGW)} offen sc1")
        for d in pois_deltas:
            A(f"s_add_u32 {s(T)}, {s(S_XGW)}, {d * XG_STEP}")
            A(f"buffer_store_dword {v(V_POIS)}, {v(V_QKST)}, {WS}, {s(T)} offen sc1")
        A.label(lab)

    for t in range(4):
        A(f"s_mov_b32 {s(T + 7)}, {t}")
        poison_local(T + 7)
    A(f"s_lshl_b32 {s(S_FXG)}, {s(S_JJ)}, 2")
    A(f"s_add_u32 {s(S_FXG)}, {s(S_FXG)}, {s(S_WAVE)}")
    A(f"s_lshl_b32 {s(S_FXG)}, {s(S_FXG)}, 2")
    A(f"s_lshl_b32 {s(T)}, {s(S_H)}, 6")
    A(f"s_add_u32 {s(S_FXG)}, {s(S_FXG)}, {s(T)}")
    A(f"s_add_u32 {s(S_FXG)}, {s(S_FXG)}, {FXG}")
    if cfg.xga == 4:
        A(f"s_mov_b32 {s(S_FXG)}, {s(S_XGW)}")
        for i in range(4):
            A(f"v_mov_b32 {v(V_KEEP + i)}, -1")
        for sl in range(16):
            A(f"s_add_u32 {s(T)}, {s(S_XGW)}, {sl * XG_STEP}")
            A(f"buffer_store_dwordx2 {v(V_KEEP, 2)}, {v(V_VSTG)}, {WS}, {s(T)} offen sc1")
            A(f"buffer_store_dwordx4 {v(V_KEEP, 4)}, {v(V_QKST)}, {WS}, {s(T)} offen sc1")
    lab = A.newlabel("nr")
    A(f"s_cmp_eq_u32 {s(S_ISRED)}, 0")
    A(f"s_cbranch_scc1 {lab}")
    A("s_waitcnt vmcnt(0)")
    A(f"v_min_u32 {v(V_MEM0)}, -2, {v(V_MEM0)}")
    A(f"s_add_u32 {s(T + 1)}, {s(S_MEMB)}, {MEM_SLOT}")
    lstore(A, [f"buffer_store_dword {v(V_MEM0)}, {v(V_MST)}, {WS}, {s(S_MEMB)} offen",
               f"buffer_store_dword {v(V_POIS)}, {v(V_MST)}, {WS}, {s(T + 1)} offen"])
    A(f"v_mov_b32 {v(V_T)}, -1")
    A(f"v_mov_b32 {v(V_T + 1)}, -1")
    for t in range(min(cfg.xpr, TLAST)):
        A(f"s_add_u32 {s(T)}, {s(S_XPU)}, {s(S_XPW)}")
        A(f"s_add_u32 {s(T)}, {s(T)}, {t * XPS}")
        A(f"buffer_store_dwordx2 {v(V_T, 2)}, {v(V_L8)}, {WS}, {s(T)} offen sc1")
        if cfg.near:
            A(f"s_add_u32 {s(T)}, {s(T)}, 8192")
            A(f"buffer_store_dwordx2 {v(V_T, 2)}, {v(V_L8)}, {WS}, {s(T)} offen sc1")
    A.label(lab)
    init_barrier_arrive(A, V_T)

    WL = WLoader(A, V_T, T + 3)
    S_ORG_QK, S_ORG_V, S_ORG_O = S_T0, S_T0 + 1, S_T0 + 2
    A(f"s_mul_i32 {s(T)}, {s(S_H)}, 192")
    A(f"s_lshl_b32 {s(T + 1)}, {s(S_JJ)}, 6")
    A(f"s_add_u32 {s(T + 1)}, {s(T + 1)}, {s(T)}")
    A(f"s_lshl_b32 {s(T + 2)}, {s(S_U)}, 5")
    A(f"s_add_u32 {s(S_ORG_QK)}, {s(T + 1)}, {s(T + 2)}")
    A(f"s_lshl_b32 {s(S_ORG_QK)}, {s(S_ORG_QK)}, 1")
    A(f"s_lshl_b32 {s(T + 2)}, {s(S_WAVE)}, 4")
    A(f"s_add_u32 {s(S_ORG_V)}, {s(T + 1)}, {s(T + 2)}")
    A(f"s_lshl_b32 {s(S_ORG_V)}, {s(S_ORG_V)}, 1")
    A(f"s_mul_i32 {s(S_ORG_O)}, {s(T)}, 1280")
    A(f"s_lshl_b32 {s(T + 2)}, {s(S_D0)}, 5")
    A(f"s_add_u32 {s(S_ORG_O)}, {s(S_ORG_O)}, {s(T + 2)}")

    def srd_qk():
        A(f"s_cmp_eq_u32 {s(S_CW)}, 0")
        A(f"s_cselect_b32 {s(SRD_W)}, {s(P_WQ)}, {s(P_WK)}")
        A(f"s_cselect_b32 {s(SRD_W + 1)}, {s(P_WQ + 1)}, {s(P_WK + 1)}")
        A(f"s_mov_b32 {s(SRD_W + 2)}, {640 * 12288}")
        A(f"s_mov_b32 {s(SRD_W + 3)}, 0x20000")

    if not cfg.ks:
        if cfg.rot and cfg.coop:
            st_ = T + 3
            A(f"s_lshl_b32 {s(S_ORG_QK)}, {s(T + 1)}, 1")
            A(f"s_mul_i32 {s(T + 2)}, {s(S_WAVE)}, {160 * 12288}")
            A(f"s_add_u32 {s(S_ORG_QK)}, {s(S_ORG_QK)}, {s(T + 2)}")
            A(f"s_mul_i32 {s(st_)}, {s(S_WAVE)}, 20480")

            def dma_addr(stride):
                A(f"v_lshrrev_b32 {v(V_T + 3)}, 3, {v(V_LANE)}")
                A(f"s_mov_b32 {s(st_ + 1)}, {stride}")
                A(f"v_mul_lo_u32 {v(V_T + 3)}, {v(V_T + 3)}, {s(st_ + 1)}")
                A(f"v_and_b32 {v(V_T + 4)}, 7, {v(V_LANE)}")
                A(f"v_lshl_add_u32 {v(V_T)}, {v(V_T + 4)}, 4, {v(V_T + 3)}")

            def dma_blk(org, stride, j0, nk, ldsoff):
                for j in range(nk):
                    for i in range(4):
                        A(f"s_add_u32 m0, {s(st_)}, {ldsoff + (j * 4 + i) * 1024}")
                        A(f"s_add_u32 {s(st_ + 2)}, {s(org)}, {(32 * (j0 + j) + 8 * i) * stride}")
                        A(f"buffer_load_dwordx4 {v(V_T)}, {s(SRD_W, 4)}, {s(st_ + 2)} offen lds")
            A(f"v_lshrrev_b32 {v(V_T + 5)}, 2, {v(V_LANE)}")
            A(f"v_lshlrev_b32 {v(V_T + 5)}, 7, {v(V_T + 5)}")
            A(f"v_and_b32 {v(V_T + 4)}, 3, {v(V_LANE)}")
            A(f"v_lshl_add_u32 {v(V_T + 5)}, {v(V_T + 4)}, 3, {v(V_T + 5)}")
            cnt = [0]

            def tr(dst, addr, off):
                A(f"ds_read_b64_tr_b16 {dst}, {v(addr)} offset:{off}")
                cnt[0] += 1
                if cnt[0] % 12 == 0:
                    A("s_waitcnt lgkmcnt(4)")

            def grp_addr(q, extra_reg):
                A(f"s_add_u32 {s(T)}, {s(S_WAVE)}, {q}")
                A(f"s_and_b32 {s(T)}, {s(T)}, 3")
                A(f"s_mul_i32 {s(T)}, {s(T)}, 20480")
                A(f"s_add_u32 {s(T)}, {s(T)}, {s(extra_reg)}")
                A(f"v_add_u32 {v(V_T + 1)}, {s(T)}, {v(V_T + 5)}")
            dma_addr(12288)
            make_srd(A, SRD_W, P_WQ, 640 * 12288)
            dma_blk(S_ORG_QK, 12288, 0, 5, 0)
            make_srd(A, SRD_W, P_WK, 640 * 12288)
            dma_blk(S_ORG_QK, 12288, 0, 5, 81920)
            A(f"s_mul_i32 {s(S_ORG_V)}, {s(S_CW)}, 81920")
            A(f"s_lshl_b32 {s(T + 2)}, {s(S_U)}, 6")
            A(f"s_add_u32 {s(S_ORG_V)}, {s(S_ORG_V)}, {s(T + 2)}")
            A("s_waitcnt vmcnt(0)")
            A("s_barrier")
            for q in range(4):
                grp_addr(q, S_ORG_V)
                for j in range(5):
                    for tau in range(2):
                        for hf in range(2):
                            tr(a((tau * 20 + 5 * q + j) * 4 + 2 * hf, 2), V_T + 1, j * 4096 + hf * 2048 + tau * 32)
                A("s_waitcnt lgkmcnt(0)")
            A("s_barrier")
            make_srd(A, SRD_W, P_WV, 640 * 12288)
            dma_blk(S_ORG_QK, 12288, 0, 5, 0)
            dma_addr(1280)
            make_srd(A, SRD_W, P_WO, 6144 * 1280)
            dma_blk(S_ORG_O, 1280, 0, 5, 81920)
            A(f"s_lshl_b32 {s(S_ORG_V)}, {s(S_WAVE)}, 5")
            A("s_waitcnt vmcnt(20)")
            A("s_barrier")
            for q in range(4):
                grp_addr(q, S_ORG_V)
                for j in range(5):
                    for hf in range(2):
                        tr(v(V_WV + (5 * q + j) * 4 + 2 * hf, 2), V_T + 1, j * 4096 + hf * 2048)
                A("s_waitcnt lgkmcnt(0)")
            A("s_barrier")
            dma_blk(S_ORG_O, 1280, 5, 1, 0)
            A(f"v_add_u32 {v(V_T + 1)}, {s(st_)}, {v(V_T + 5)}")
            A(f"v_add_u32 {v(V_T + 2)}, 0x14000, {v(V_T + 1)}")
            A("s_waitcnt vmcnt(4)")
            for j in range(6):
                if j == 5:
                    A("s_waitcnt vmcnt(0)")
                for tau in range(4):
                    for hf in range(2):
                        tr(a(160 + (tau * 6 + j) * 4 + 2 * hf, 2), V_T + 2 if j < 5 else V_T + 1, (j * 4096 if j < 5 else 0) + hf * 2048 + tau * 32)
            A("s_waitcnt lgkmcnt(0)")
        elif cfg.rot:
            for q in range(4):
                A(f"s_add_u32 {s(T + 2)}, {s(S_WAVE)}, {q}")
                A(f"s_and_b32 {s(T + 2)}, {s(T + 2)}, 3")
                A(f"s_mul_i32 {s(T + 2)}, {s(T + 2)}, {160 * 12288}")
                A(f"s_add_u32 {s(92 + q)}, {s(S_ORG_QK)}, {s(T + 2)}")
                A(f"s_add_u32 {s(96 + q)}, {s(S_ORG_V)}, {s(T + 2)}")
            for q in range(4):
                WL.add(srd_qk, 92 + q, 12288, 2, 5, lambda tau, j, q=q: ("a", (tau * 20 + 5 * q + j) * 4), grp="qk")
            for q in range(4):
                WL.add(lambda: make_srd(A, SRD_W, P_WV, 640 * 12288), 96 + q, 12288, 1, 5, lambda tau, j, q=q: ("v", V_WV + (5 * q + j) * 4), grp="v")
        else:
            WL.add(srd_qk, S_ORG_QK, 12288, 2, 20, lambda tau, j: ("a", (tau * 20 + j) * 4))
            WL.add(lambda: make_srd(A, SRD_W, P_WV, 640 * 12288), S_ORG_V, 12288, 1, 20, lambda tau, j: ("v", V_WV + j * 4))
        if not (cfg.rot and cfg.coop):
            WL.add(lambda: make_srd(A, SRD_W, P_WO, 6144 * 1280), S_ORG_O, 1280, 4, 6, lambda tau, j: ("a", 160 + (tau * 6 + j) * 4))
            WL.emit(V_LANE)
    else:
        assert cfg.lead1
        st_ = T + 3
        A(f"s_mul_i32 {s(st_)}, {s(S_WAVE)}, 40960")
        A(f"s_lshl_b32 {s(S_ORG_QK)}, {s(T + 1)}, 1")
        A(f"s_mul_i32 {s(T + 2)}, {s(S_WAVE)}, {160 * 12288}")
        A(f"s_add_u32 {s(S_ORG_QK)}, {s(S_ORG_QK)}, {s(T + 2)}")

        def dma_addr(stride):
            A(f"v_lshrrev_b32 {v(V_T + 3)}, 3, {v(V_LANE)}")
            A(f"s_mov_b32 {s(st_ + 1)}, {stride}")
            A(f"v_mul_lo_u32 {v(V_T + 3)}, {v(V_T + 3)}, {s(st_ + 1)}")
            A(f"v_and_b32 {v(V_T + 4)}, 7, {v(V_LANE)}")
            A(f"v_lshl_add_u32 {v(V_T)}, {v(V_T + 4)}, 4, {v(V_T + 3)}")

        def dma_blk(org, stride, j0, nk, ldsoff):
            for j in range(nk):
                for i in range(4):
                    A(f"s_add_u32 m0, {s(st_)}, {ldsoff + (j * 4 + i) * 1024}")
                    A(f"s_add_u32 {s(st_ + 2)}, {s(org)}, {(32 * (j0 + j) + 8 * i) * stride}")
                    A(f"buffer_load_dwordx4 {v(V_T)}, {s(SRD_W, 4)}, {s(st_ + 2)} offen lds")
        A(f"v_lshrrev_b32 {v(V_T + 5)}, 2, {v(V_LANE)}")
        A(f"v_lshlrev_b32 {v(V_T + 5)}, 7, {v(V_T + 5)}")
        A(f"v_and_b32 {v(V_T + 4)}, 3, {v(V_LANE)}")
        A(f"v_lshl_add_u32 {v(V_T + 5)}, {v(V_T + 4)}, 3, {v(V_T + 5)}")
        A(f"v_add_u32 {v(V_T + 5)}, {s(st_)}, {v(V_T + 5)}")
        cnt = [0]

        def tr(dst, addr, off):
            A(f"ds_read_b64_tr_b16 {dst}, {v(addr)} offset:{off}")
            cnt[0] += 1
            if cnt[0] % 12 == 0:
                A("s_waitcnt lgkmcnt(4)")
        dma_addr(12288)
        make_srd(A, SRD_W, P_WQ, 640 * 12288)
        dma_blk(S_ORG_QK, 12288, 0, 5, 0)
        make_srd(A, SRD_W, P_WK, 640 * 12288)
        dma_blk(S_ORG_QK, 12288, 0, 5, 20480)
        A("s_waitcnt vmcnt(0)")
        for sg in range(4):
            A(f"s_add_u32 {s(T)}, {s(S_WAVE)}, {sg}")
            A(f"s_and_b32 {s(T)}, {s(T)}, 3")
            A(f"s_lshr_b32 {s(T + 1)}, {s(T)}, 1")
            A(f"s_mul_i32 {s(T + 1)}, {s(T + 1)}, 20480")
            A(f"s_and_b32 {s(T)}, {s(T)}, 1")
            A(f"s_lshl_b32 {s(T)}, {s(T)}, 6")
            A(f"s_add_u32 {s(T)}, {s(T)}, {s(T + 1)}")
            A(f"v_add_u32 {v(V_T + 1)}, {s(T)}, {v(V_T + 5)}")
            for j in range(5):
                for tau in range(2):
                    for hf in range(2):
                        tr(a(((sg * 2 + tau) * 5 + j) * 4 + 2 * hf, 2), V_T + 1, j * 4096 + hf * 2048 + tau * 32)
            A("s_waitcnt lgkmcnt(0)")
        make_srd(A, SRD_W, P_WV, 640 * 12288)
        dma_blk(S_ORG_QK, 12288, 0, 5, 0)
        dma_addr(1280)
        make_srd(A, SRD_W, P_WO, 6144 * 1280)
        dma_blk(S_ORG_O, 1280, 0, 5, 20480)
        A("s_waitcnt vmcnt(20)")
        for sg in range(4):
            A(f"s_add_u32 {s(T)}, {s(S_WAVE)}, {sg}")
            A(f"s_and_b32 {s(T)}, {s(T)}, 3")
            A(f"s_lshl_b32 {s(T)}, {s(T)}, 5")
            A(f"v_add_u32 {v(V_T + 1)}, {s(T)}, {v(V_T + 5)}")
            for j in range(5):
                for hf in range(2):
                    tr(v(V_WV + (sg * 5 + j) * 4 + 2 * hf, 2), V_T + 1, j * 4096 + hf * 2048)
            A("s_waitcnt lgkmcnt(0)")
        dma_blk(S_ORG_O, 1280, 5, 1, 0)
        A("s_waitcnt vmcnt(4)")
        for j in range(6):
            if j == 5:
                A("s_waitcnt vmcnt(0)")
            for tau in range(4):
                for hf in range(2):
                    tr(a(160 + (tau * 6 + j) * 4 + 2 * hf, 2), V_T + 5, (20480 + j * 4096 if j < 5 else 0) + hf * 2048 + tau * 32)
        A("s_waitcnt lgkmcnt(0)")
        for sg in range(1, 4):
            A(f"s_add_u32 {s(T)}, {s(S_WAVE)}, {sg}")
            A(f"s_and_b32 {s(T)}, {s(T)}, 3")
            A(f"s_mul_i32 {s(S_XW + sg - 1)}, {s(T)}, 9216")
            A(f"s_add_u32 {s(S_XW + sg - 1)}, {s(S_XW + sg - 1)}, {(sg - 1) * 3072}")
    A("s_barrier")
    init_barrier_wait(A, V_T, nwg, cfg)

    def src_for(tp_reg, S_SRC=S_SRC, S_FLG=S_FLG, S_LDSKV=S_LDSKV):
        L = []
        L.append(f"s_cmp_gt_u32 {s(tp_reg)}, 63")
        L.append(f"s_cselect_b32 {s(T)}, 1, 0")
        L.append(f"s_cmp_ge_u32 {s(tp_reg)}, {LAG}")
        L.append(f"s_cselect_b32 {s(T + 1)}, 1, 0")
        L.append(f"s_cmp_eq_u32 {s(S_CW)}, 0")
        L.append(f"s_cselect_b32 {s(T)}, {s(T)}, {s(T + 1)}")
        L.append(f"s_mul_i32 {s(T + 1)}, {s(T)}, {LAG}")
        L.append(f"s_sub_u32 {s(T + 1)}, {s(tp_reg)}, {s(T + 1)}")
        L.append(f"s_min_u32 {s(T + 1)}, {s(T + 1)}, 63")
        L.append(f"s_mul_i32 {s(S_SRC)}, {s(T + 1)}, {QKV_SEG}")
        L.append(f"s_add_u32 {s(S_SRC)}, {s(S_SRC)}, {s(S_HOFF)}")
        if cfg.lstride:
            L.append(f"s_mul_i32 {s(T + 2)}, {s(T)}, {cfg.lstride}")
            L.append(f"s_add_u32 {s(S_SRC)}, {s(S_SRC)}, {s(T + 2)}")
        L.append(f"s_lshl_b32 {s(T + 2)}, {s(T)}, 6")
        L.append(f"s_add_u32 {s(T + 2)}, {s(T + 2)}, {s(T + 1)}")
        L.append(f"s_lshl_b32 {s(S_FLG)}, {s(T + 2)}, 9")
        L.append(f"s_add_u32 {s(S_FLG)}, {s(S_FLG)}, {flag_row(F_K)}")
        L.append(f"s_and_b32 {s(T + 2)}, {s(tp_reg)}, 1")
        L.append(f"s_mul_i32 {s(S_LDSKV)}, {s(T + 2)}, 49152")
        L.append(f"s_mul_i32 {s(T + 2)}, {s(S_WAVE)}, 12288")
        L.append(f"s_add_u32 {s(S_LDSKV)}, {s(S_LDSKV)}, {s(T + 2)}")
        L.append(f"s_add_u32 {s(S_LDSKV)}, {s(S_LDSKV)}, {LDS_KV}")
        return L

    def flag_spin():
        top = A.newlabel("fl")
        A.label(top)
        A(f"buffer_load_dword {v(V_FV)}, {v(V_FLG)}, {WS}, {s(S_FLG)} offen sc1")
        A("s_waitcnt vmcnt(0)")
        A(f"v_cmp_eq_u32 vcc, 0, {v(V_FV)}")
        poll_tail(A, top, sleep=1)

    def dma_grp(p):
        A(f"s_add_u32 m0, {s(S_LDSKV)}, {p * 4096}")
        A(f"s_add_u32 {s(T + 3)}, {s(S_SRC)}, {p * 4096}")
        for i in range(4):
            A(f"buffer_load_dwordx4 {v(V_L16)}, {WS}, {s(T + 3)} offen offset:{i * 1024} sc1 lds")

    def dma_guarded(p):
        lab = A.newlabel("dg")
        A(f"s_cmp_lg_u32 {s(S_DEFER)}, 0")
        A(f"s_cbranch_scc1 {lab}")
        dma_grp(p)
        A.label(lab)

    stamp = Stamper(A, cfg, 92, 5 if False else 7, on=(cfg.timing == 2 and cfg.mode == 'chain')) if cfg.timing != 3 else RawStamper(A, cfg, 92, S_T, V_T + 6, t0=cfg.rawt0)
    A(f"s_mov_b32 {s(S_T)}, 0")
    for x in src_for(S_T):
        A(x)
    flag_spin()
    for p in range(3):
        dma_grp(p)
    S_SRC2, S_FLG2, S_LDS2 = (32, 33, 34) if cfg.ks else (29, 30, 31)
    L15 = cfg.ks or cfg.l15
    A(f"s_mov_b32 {s(S_XPU0)}, {s(S_XPU)}")
    if cfg.near:
        A(f"v_mov_b32 {v(V_T + 1)}, {192 if cfg.vote else 12}")
        A(f"buffer_load_dword {v(V_T)}, {v(V_T + 1)}, {s(SRD_DBG, 4)}, 0 offen sc1")
        A("s_waitcnt vmcnt(0)")
        A(f"v_readfirstlane_b32 {s(T)}, {v(V_T)}")
        if cfg.vote:
            A(f"s_cmp_gt_i32 {s(T)}, 0")
            A(f"s_cselect_b32 {s(T)}, 0x2000, 0")
        A(f"s_and_b32 {s(T)}, {s(T)}, 0x2000")
        if cfg.near == 2:
            A(f"s_xor_b32 {s(T)}, {s(T)}, 0x2000")
        A(f"s_add_u32 {s(S_XPU0)}, {s(S_XPU0)}, {s(T)}")
    A(f"s_mov_b32 {s(T + 5)}, 1")
    for x in src_for(T + 5):
        A(x)
    A(f"s_mov_b32 {s(S_QKOFF)}, 1")
    if cfg.timing:
        A(f"s_memrealtime {s(S_T0, 2)}")
        if cfg.timing == 6:
            A("s_memtime s[92:93]")
        A("s_waitcnt lgkmcnt(0)")
    stamp.init()

    S_TAG = S_DEFER + 0
    S_DEF = S_QKOFF

    def tagcheck(regs, dst, S_TAG=S_TAG):
        regs = list(regs)
        outs = []
        k = 0
        while len(regs) >= 2:
            A(f"v_bitop3_b32 {v(dst + k)}, {v(regs[0])}, {v(regs[1])}, {s(S_TAG)} bitop3:0x7e")
            outs.append(dst + k)
            regs = regs[2:]
            k += 1
        if regs:
            A(f"v_xor_b32 {v(dst + k)}, {s(S_TAG)}, {v(regs[0])}")
            outs.append(dst + k)
        while len(outs) > 1:
            if len(outs) >= 3:
                A(f"v_or3_b32 {v(outs[0])}, {v(outs[0])}, {v(outs[1])}, {v(outs[2])}")
                outs = [outs[0]] + outs[3:]
            else:
                A(f"v_or_b32 {v(outs[0])}, {v(outs[0])}, {v(outs[1])}")
                outs = [outs[0]]
        A(f"v_and_b32 {v(dst)}, 1, {v(dst)}")

    site = [0]
    if cfg.timing == 5:
        for k in range(5):
            A(f"s_mov_b32 {s(92 + k)}, 0")

    def poll(pieces, kind, tag=None, extra_after=(), sleep=0, rsleep=0, issued=None, skipwait=False, pre=()):
        if sleep:
            A(f"s_sleep {sleep}")
        if issued is None:
            for ld, _ in pieces:
                A(ld)
            for x in extra_after:
                A(x)
            A(f"s_waitcnt vmcnt({len(extra_after)})")
        elif not skipwait:
            A(f"s_waitcnt vmcnt({issued})")
        chk, ok = A.newlabel("chk"), A.newlabel("pok")
        A.label(chk)
        for x in pre:
            A(x)
        allregs = [r for _, rs in pieces for r in rs]
        if kind == "poison":
            maxtree(A, V_T, allregs)
            A(f"v_cmp_eq_u32 vcc, -1, {v(V_T)}")
        else:
            tagcheck(allregs, V_T, tag)
            A(f"v_cmp_ne_u32 vcc, 0, {v(V_T)}")
        A(f"s_cbranch_vccz {ok}")
        if cfg.timing == 5:
            A(f"s_add_u32 {s(92 + site[0] % 5)}, {s(92 + site[0] % 5)}, 1")
            site[0] += 1
        A(f"s_sub_u32 {s(S_SPIN)}, {s(S_SPIN)}, 1")
        A("s_cbranch_scc1 ABORT")
        if rsleep:
            A(f"s_sleep {rsleep}")
        if pre:
            A("s_waitcnt lgkmcnt(0)")
        for ld, rs in pieces:
            sk = A.newlabel("sk")
            if kind == "poison":
                maxtree(A, V_T, rs)
                A(f"v_cmp_eq_u32 vcc, -1, {v(V_T)}")
            else:
                if len(rs) == 1:
                    A(f"v_and_b32 {v(V_T)}, 1, {v(rs[0])}")
                    A(f"v_cmp_ne_u32 vcc, {s(tag)}, {v(V_T)}")
                else:
                    tagcheck(rs, V_T, tag)
                    A(f"v_cmp_ne_u32 vcc, 0, {v(V_T)}")
            A(f"s_cbranch_vccz {sk}")
            A(ld)
            A.label(sk)
        A("s_waitcnt vmcnt(0)")
        A(f"s_branch {chk}")
        A.label(ok)

    def dma_list(lo, hi):
        out = []
        for i in range(lo, hi):
            e = []
            if i % 4 == 0 or i == lo:
                e += [f"s_add_u32 m0, {s(S_LDSKV)}, {(i // 4) * 4096}", f"s_add_u32 {s(T + 3)}, {s(S_SRC)}, {(i // 4) * 4096}"]
            e.append(f"buffer_load_dwordx4 {v(V_L16)}, {WS}, {s(T + 3)} offen offset:{(i % 4) * 1024} sc1 lds")
            out.append(e)
        return out

    def ppoll(pieces, tag, sleep=0, gap=0, depth=2):
        n = len(pieces)
        if sleep:
            A(f"s_sleep {sleep}")
        for d in range(depth - 1):
            for ld, _ in pieces:
                A(ld)
            if gap:
                A(f"s_sleep {gap}")
        top, ok = A.newlabel("pp"), A.newlabel("pok")
        A.label(top)
        for ld, _ in pieces:
            A(ld)
        A(f"s_waitcnt vmcnt({n * (depth - 1)})")
        tagcheck([r for _, rs in pieces for r in rs], V_T, tag)
        A(f"v_cmp_ne_u32 vcc, 0, {v(V_T)}")
        A(f"s_cbranch_vccz {ok}")
        A(f"s_sub_u32 {s(S_SPIN)}, {s(S_SPIN)}, 1")
        A("s_cbranch_scc1 ABORT")
        A(f"s_branch {top}")
        A.label(ok)

    def stage1_ns(LS):
        A(f"s_and_b32 {s(T + 7)}, {s(S_T)}, 3")
        A(f"s_mul_i32 {s(T)}, {s(T + 7)}, {MEM_SLOT}")
        A(f"s_mul_i32 {s(T + 1)}, {s(S_WAVE)}, 5120")
        A(f"s_add_u32 {s(T)}, {s(T)}, {s(T + 1)}")
        A(f"s_add_u32 {s(T + 6)}, {s(T)}, {s(S_MEMB)}")
        A(f"v_add_u32 {v(V_T + 2)}, {s(T + 1)}, {v(V_L16)}")
        if cfg.rot:
            for q in range(1, 4):
                A(f"s_add_u32 {s(T)}, {s(S_WAVE)}, {q}")
                A(f"s_and_b32 {s(T)}, {s(T)}, 3")
                A(f"s_mul_i32 {s(T)}, {s(T)}, 5120")
                A(f"v_add_u32 {v(V_GB + q - 1)}, {s(T)}, {v(V_L16)}")
        if cfg.fe:
            A(f"s_add_u32 {s(T + 5)}, {s(S_T)}, 1")
            for x in src_for(T + 5):
                A(x)
        if cfg.own:
            A(f"v_and_b32 {v(V_OWW)}, 0x37, {v(V_LANE)}")
            A(f"v_lshlrev_b32 {v(V_OWW)}, 4, {v(V_OWW)}")
            A(f"v_bfe_u32 {v(V_OWW + 1)}, {v(V_LANE)}, 3, 1")
            A(f"v_lshl_add_u32 {v(V_OWW)}, {v(V_OWW + 1)}, 11, {v(V_OWW)}")
            A(f"s_lshl_b32 {s(T)}, {s(S_CW)}, 10")
            A(f"s_lshl_b32 {s(T + 1)}, {s(S_U)}, 7")
            A(f"s_add_u32 {s(T)}, {s(T)}, {s(T + 1)}")
            A(f"v_add_u32 {v(V_OWW)}, {s(T)}, {v(V_OWW)}")
            A(f"s_lshl_b32 {s(T)}, {s(S_CW)}, 11")
            A(f"v_add_u32 {v(V_OWW + 1)}, {s(T)}, {v(V_L16)}")
        pc = [(f"buffer_load_dwordx4 {v(V_MP + 4 * i, 4)}, {v(V_L16)}, {WS}, {s(T + 6)} offen offset:{i * 1024} sc1", list(range(V_MP + 4 * i, V_MP + 4 * i + 4))) for i in range(4)]
        pc.append((f"buffer_load_dwordx4 {v(V_MP + 16, 4)}, {v(V_L16B)}, {WS}, {s(T + 6)} offen sc1", list(range(V_MP + 16, V_MP + 20))))
        poll(pc, "poison", sleep=cfg.sl_m, rsleep=cfg.msleep, pre=([f"ds_write_b128 {v(V_T + 2)}, {v(V_MP + 4 * i, 4)} offset:{LDS_MEM + i * 1024}" for i in range(5)] if cfg.m1 else ()))
        if cfg.dbgmem:
            lab = A.newlabel("dm")
            A(f"s_cmp_lg_u32 {s(S_T)}, 0")
            A(f"s_cbranch_scc1 {lab}")
            A(f"s_mul_i32 {s(T)}, {s(S_ROLE)}, 20480")
            A(f"s_add_u32 {s(T)}, {s(T)}, {RAWST + 0x100000}")
            for i in range(4):
                A(f"buffer_store_dwordx4 {v(V_MP + 4 * i, 4)}, {v(V_T + 2)}, {WS}, {s(T)} offen offset:{i * 1024}")
            A(f"s_add_u32 {s(T)}, {s(T)}, 4096")
            A(f"buffer_store_dwordx4 {v(V_MP + 16, 4)}, {v(V_T + 2)}, {WS}, {s(T)} offen")
            A.label(lab)
        for i in range(5):
            if not cfg.m1:
                A(f"ds_write_b128 {v(V_T + 2)}, {v(V_MP + 4 * i, 4)} offset:{LDS_MEM + i * 1024}")
        if cfg.fe:
            A(f"buffer_load_dword {v(V_FV2)}, {v(V_FLG)}, {WS}, {s(S_FLG)} offen sc1")
        stamp(0)
        A(f"s_mul_i32 {s(S_XCH)}, {s(T + 7)}, {XCH_SLOT}")
        A(f"s_add_u32 {s(S_XCH)}, {s(S_XCH)}, {s(S_XCH0)}")
        A(f"s_add_u32 {s(T + 5)}, {s(S_T)}, {1 if cfg.lead1 else 2}")
        A(f"s_lshr_b32 {s(S_TAG)}, {s(S_T)}, 2")
        A(f"s_and_b32 {s(S_TAG)}, {s(S_TAG)}, 1")
        A(f"s_and_b32 {s(S_XPU)}, {s(S_T)}, {cfg.xpr - 1}")
        A(f"s_mul_i32 {s(S_XPU)}, {s(S_XPU)}, {XPS}")
        A(f"s_add_u32 {s(S_XPU)}, {s(S_XPU)}, {s(S_XPU0)}")
        A(f"s_lshr_b32 {s(S_TAG2)}, {s(S_T)}, {cfg.xpr.bit_length() - 1}")
        A(f"s_and_b32 {s(S_TAG2)}, {s(S_TAG2)}, 1")
        if cfg.xga == 4:
            A(f"s_and_b32 {s(S_XGW)}, {s(S_T)}, 15")
            A(f"s_mul_i32 {s(S_XGW)}, {s(S_XGW)}, {XG_STEP}")
            A(f"s_add_u32 {s(S_XGW)}, {s(S_XGW)}, {s(S_FXG)}")
            A(f"s_lshr_b32 s29, {s(S_T)}, 4")
            A(f"s_and_b32 s29, s29, 1")
        lab = A.newlabel("f0")
        A(f"s_cmp_eq_u32 {s(S_T)}, 0")
        A(f"s_cbranch_scc1 {lab}" if cfg.xga in (0, 3) else f"s_branch {lab}")
        A(f"s_mov_b64 exec, 1")
        if cfg.timing == 4:
            A(f"s_memrealtime {s(98, 2)}")
            A("s_waitcnt lgkmcnt(0)")
            A(f"s_or_b32 s98, s98, 1")
            A(f"v_mov_b32 {v(V_T + 6)}, s98")
            A(f"buffer_store_dword {v(V_T + 6)}, {v(V_L16)}, {WS}, {s(S_FXG)} offen sc1")
        else:
            A(f"buffer_store_dword {v(V_POIS)}, {v(V_L16)}, {WS}, {s(S_FXG)} offen sc1")
        A(f"s_mov_b64 exec, -1")
        A(f"s_add_u32 {s(S_FXG)}, {s(S_FXG)}, {FXG_STEP}")
        A.label(lab)
        A("s_waitcnt lgkmcnt(0)")
        A("s_barrier")
        if cfg.rot:
            def frag(sl):
                return v(V_MP + 4 * sl, 4) if sl < 5 else v(V_MF + 4 * sl, 4)

            def rdf(sl):
                A(f"ds_read_b128 {v(V_MF + 4 * sl, 4)}, {v(V_GB + sl // 5 - 1)} offset:{LDS_MEM + (sl % 5) * 1024}")
            for sl in range(5, 13):
                rdf(sl)
            for sl in range(20):
                if sl == 5 and not L15 and not cfg.fe:
                    for x in src_for(T + 5):
                        A(x)
                    A(f"buffer_load_dword {v(V_FV2)}, {v(V_FLG)}, {WS}, {s(S_FLG)} offen sc1")
                if sl >= 5:
                    if sl + 8 < 20:
                        rdf(sl + 8)
                        A("s_waitcnt lgkmcnt(8)")
                    else:
                        A(f"s_waitcnt lgkmcnt({19 - sl})")
                for tau in range(2):
                    c = "0" if sl == 0 else v(V_ACC + 4 * tau, 4)
                    A(f"v_mfma_f32_16x16x32_bf16 {v(V_ACC + 4 * tau, 4)}, {a((tau * 20 + sl) * 4, 4)}, {frag(sl)}, {c}")

            def vmfma(j):
                c = "0" if j == 0 else v(V_ACC + 8, 4)
                A(f"v_mfma_f32_16x16x32_bf16 {v(V_ACC + 8, 4)}, {frag(j)}, {v(V_WV + 4 * j, 4)}, {c}")
        else:
            for j in range(8):
                A(f"ds_read_b128 {v(V_MF + 4 * j, 4)}, {v(V_L16)} offset:{LDS_MEM + j * 1024}")
            if cfg.lead1:
                assert cfg.ntop == 0
                for x in src_for(T + 5):
                    A(x)
                A(f"buffer_load_dword {v(V_FV2)}, {v(V_FLG)}, {WS}, {s(S_FLG)} offen sc1")
            else:
                for x in src_for(T + 5, S_SRC2, S_FLG2, S_LDS2):
                    A(x)
                A(f"buffer_load_dword {v(V_FV2)}, {v(V_FLG)}, {WS}, {s(S_FLG2)} offen sc1")
            dtop = dma_list(0, cfg.ntop)
            pos = {1 + (k * 17) // max(cfg.ntop, 1): k for k in range(cfg.ntop)}
            for j in range(20):
                if j in pos:
                    for e in dtop[pos[j]]:
                        A(e)
                if j + 8 < 20:
                    A(f"ds_read_b128 {v(V_MF + 4 * (j + 8), 4)}, {v(V_L16)} offset:{LDS_MEM + (j + 8) * 1024}")
                    A("s_waitcnt lgkmcnt(8)")
                else:
                    A(f"s_waitcnt lgkmcnt({19 - j})")
                for tau in range(2):
                    c = "0" if j == 0 else v(V_ACC + 4 * tau, 4)
                    A(f"v_mfma_f32_16x16x32_bf16 {v(V_ACC + 4 * tau, 4)}, {a((tau * 20 + j) * 4, 4)}, {v(V_MF + 4 * j, 4)}, {c}")

            def vmfma(j):
                c = "0" if j == 0 else v(V_ACC + 8, 4)
                A(f"v_mfma_f32_16x16x32_bf16 {v(V_ACC + 8, 4)}, {v(V_MF + 4 * j, 4)}, {v(V_WV + 4 * j, 4)}, {c}")
        vmfma(0)
        vmfma(1)
        for i in range(4):
            A(f"v_cvt_pk_bf16_f32 {v(V_KEEP + i)}, {v(V_ACC + 2 * i)}, {v(V_ACC + 2 * i + 1)}")
        A(f"v_and_or_b32 {v(V_KEEP)}, {v(V_KEEP)}, -2, {s(S_TAG)}")
        A(f"buffer_store_dwordx4 {v(V_KEEP, 4)}, {v(V_QKST)}, {WS}, {s(S_XCH)} offen{LS}")
        stamp(1)
        A(f"s_mul_i32 {s(T + 6)}, {s(S_CW)}, {CH}")
        A(f"s_add_u32 {s(T + 6)}, {s(T + 6)}, {s(S_XCH)}")
        A(f"s_mul_i32 {s(T + 5)}, {s(S_U)}, 1536")
        A(f"s_add_u32 {s(T + 5)}, {s(T + 5)}, {s(T + 6)}")
        A(f"s_add_u32 {s(T + 5)}, {s(T + 5)}, 6144")
        A(f"s_add_u32 {s(T + 4)}, {s(T + 6)}, 3072")
        A(f"s_and_b32 {s(T + 2)}, {s(S_T)}, 1")
        A(f"s_mul_i32 {s(T + 2)}, {s(T + 2)}, 49152")
        A(f"s_add_u32 {s(T + 2)}, {s(T + 2)}, {s(S_KVRD)}")
        A(f"v_add_u32 {v(V_T + 3)}, {s(T + 2)}, {v(V_L16)}")
        if not cfg.own:
            pc = []
            for base, sreg in ((V_Q, T + 6), (V_K, T + 4)):
                for j in range(3):
                    pc.append((f"buffer_load_dwordx4 {v(base + 4 * j, 4)}, {v(V_L16)}, {WS}, {s(sreg)} offen offset:{j * 1024} sc1", [base + 4 * j]))
            vl = [f"buffer_load_dwordx4 {v(V_VM, 4)}, {v(V_L16)}, {WS}, {s(T + 5)} offen sc1",
                  f"buffer_load_dwordx2 {v(V_VM + 4, 2)}, {v(V_L8)}, {WS}, {s(T + 5)} offen offset:1024 sc1"]
            kxr = [f"ds_read_b128 {v(V_KX + 4 * i, 4)}, {v(V_T + 3)} offset:{i * 1024}" for i in range(12)]
            for j in range(2, 20):
                vmfma(j)
                if j - 2 < 12:
                    A(kxr[(j - 2 + 5) % 12 if cfg.rot else j - 2])
                if j >= cfg.qe and j - cfg.qe < 6:
                    A(pc[j - cfg.qe][0])
        else:
            assert cfg.rot
            A(f"ds_write_b128 {v(V_OWW)}, {v(V_KEEP, 4)} offset:{LDS_OWN + 65536 - 65536 * 0}" if False else f"v_add_u32 {v(V_OWW)}, 0x10000, {v(V_OWW)}")
            A(f"v_add_u32 {v(V_OWW + 1)}, 0x10000, {v(V_OWW + 1)}")
            A(f"ds_write_b128 {v(V_OWW)}, {v(V_KEEP, 4)} offset:{LDS_OWN}")
            KA = [V_VM, V_VM + 1, V_VM + 2]
            pc = []
            for sl in range(3):
                if sl:
                    A(f"s_add_u32 {s(T)}, {s(S_JJ)}, {sl}")
                    A(f"s_sub_u32 {s(T + 1)}, {s(T)}, 3")
                    A(f"s_cmp_ge_u32 {s(T)}, 3")
                    A(f"s_cselect_b32 {s(T)}, {s(T + 1)}, {s(T)}")
                else:
                    A(f"s_mov_b32 {s(T)}, {s(S_JJ)}")
                A(f"s_lshl_b32 {s(T + 1)}, {s(T)}, 12")
                A(f"v_add_u32 {v(KA[sl])}, {s(T + 1)}, {v(V_T + 3)}")
                if sl:
                    A(f"s_lshl_b32 {s(T)}, {s(T)}, 10")
                    A(f"s_add_u32 {s(S_OS + sl - 1)}, {s(T)}, {s(T + 6)}")
            for base, off in ((V_Q, 0), (V_K, 3072)):
                for sl in (1, 2):
                    pc.append((f"buffer_load_dwordx4 {v(base + 4 * sl, 4)}, {v(V_L16)}, {WS}, {s(S_OS + sl - 1)} offen offset:{off} sc1", [base + 4 * sl]))
            vl = [f"buffer_load_dwordx4 {v(V_VM, 4)}, {v(V_L16)}, {WS}, {s(T + 5)} offen sc1",
                  f"buffer_load_dwordx2 {v(V_VM + 4, 2)}, {v(V_L8)}, {WS}, {s(T + 5)} offen offset:1024 sc1"]
            kxr = [f"ds_read_b128 {v(V_KX + 4 * i, 4)}, {v(KA[i // 4])} offset:{(i % 4) * 1024}" for i in range(12)]
            for j in range(2, 20):
                vmfma(j)
                if j == 3:
                    A("s_waitcnt lgkmcnt(0)")
                    A("s_barrier")
                    A(f"ds_read_b128 {v(V_Q, 4)}, {v(V_OWW + 1)} offset:{LDS_OWN}")
                    A(f"ds_read_b128 {v(V_K, 4)}, {v(V_OWW + 1)} offset:{LDS_OWN + 1024}")
                if 4 <= j < 16:
                    A(kxr[(j - 4 + 5) % 12])
                if j >= cfg.qe and j - cfg.qe < 4:
                    A(pc[j - cfg.qe][0])
            A("s_waitcnt lgkmcnt(3)")
        A(f"s_mul_i32 {s(T + 3)}, {s(S_U)}, 6144")
        A(f"s_add_u32 {s(T + 3)}, {s(T + 3)}, 12288")
        A(f"v_add_u32 {v(V_VXB)}, {s(T + 3)}, {v(V_T + 3)}")
        for i in range(3):
            A(f"ds_read_b128 {v(V_VX + 4 * i, 4)}, {v(V_VXB)} offset:{i * 1024}")
        A(f"v_cvt_pk_bf16_f32 {v(V_KEEP + 4)}, {v(V_ACC + 8)}, {v(V_ACC + 9)}")
        A(f"v_cvt_pk_bf16_f32 {v(V_KEEP + 5)}, {v(V_ACC + 10)}, {v(V_ACC + 11)}")
        A(f"v_and_or_b32 {v(V_KEEP + 4)}, {v(V_KEEP + 4)}, -2, {s(S_TAG)}")
        A(f"buffer_store_dwordx2 {v(V_KEEP + 4, 2)}, {v(V_VST)}, {WS}, {s(S_XCH)} offen{LS}")
        A(f"s_cmp_eq_u32 {s(S_T)}, {TLAST}")
        A("s_cbranch_scc1 CH_DONE")
        A("s_waitcnt lgkmcnt(3)")
        for i in range(3, 6):
            A(f"ds_read_b128 {v(V_VX + 4 * i, 4)}, {v(V_VXB)} offset:{i * 1024}")
        poll(pc, "tag", S_TAG, issued=1)
        if not cfg.m1:
            for x in vl:
                A(x)
        return vl

    def fxg_flag():
        A(f"s_cmp_eq_u32 {s(S_T)}, 0")
        A(f"s_cselect_b32 {s(T)}, 0, -1")
        if cfg.timing == 4:
            A(f"s_memrealtime {s(98, 2)}")
            A("s_waitcnt lgkmcnt(0)")
            A(f"s_or_b32 s98, s98, 1")
            A(f"s_and_b32 {s(T)}, {s(T)}, s98")
        A(f"v_mov_b32 {v(V_T + 4)}, {s(T)}")
        A(f"s_mov_b64 exec, 1")
        A(f"buffer_store_dword {v(V_T + 4)}, {v(V_L16)}, {WS}, {s(S_FXG)} offen sc1")
        A(f"s_mov_b64 exec, -1")
        A(f"s_cmp_eq_u32 {s(S_T)}, 0")
        A(f"s_cselect_b32 {s(T)}, 0, {FXG_STEP}")
        A(f"s_add_u32 {s(S_FXG)}, {s(S_FXG)}, {s(T)}")

    def stage1_ks(LS):
        MF16 = "v_mfma_f32_16x16x32_bf16"
        S_DONE = T + 4
        A(f"s_and_b32 {s(T + 7)}, {s(S_T)}, 3")
        A(f"s_mul_i32 {s(T)}, {s(T + 7)}, {MEM_SLOT}")
        A(f"s_mul_i32 {s(T + 1)}, {s(S_WAVE)}, 5120")
        A(f"s_add_u32 {s(T)}, {s(T)}, {s(T + 1)}")
        A(f"s_add_u32 {s(T + 6)}, {s(T)}, {s(S_MEMB)}")
        for i in range(48):
            A(f"v_mov_b32 {v(A1 + i)}, 0")
        for k in range(3):
            A(f"v_add_u32 {v(V_XW + k)}, {s(S_XW + k)}, {v(V_L16)}")
        A(f"s_mul_i32 {s(T + 1)}, {s(S_WAVE)}, 9216")
        A(f"v_add_u32 {v(V_XRD)}, {s(T + 1)}, {v(V_L16)}")
        A(f"s_mul_i32 {s(S_XCH)}, {s(T + 7)}, {XCH_SLOT}")
        A(f"s_add_u32 {s(S_XCH)}, {s(S_XCH)}, {s(S_XCH0)}")
        A(f"s_lshr_b32 {s(S_TAG)}, {s(S_T)}, 2")
        A(f"s_and_b32 {s(S_TAG)}, {s(S_TAG)}, 1")
        A(f"s_and_b32 {s(S_XPU)}, {s(S_T)}, {cfg.xpr - 1}")
        A(f"s_mul_i32 {s(S_XPU)}, {s(S_XPU)}, {XPS}")
        A(f"s_add_u32 {s(S_XPU)}, {s(S_XPU)}, {s(S_XPU0)}")
        A(f"s_lshr_b32 {s(S_TAG2)}, {s(S_T)}, {cfg.xpr.bit_length() - 1}")
        A(f"s_and_b32 {s(S_TAG2)}, {s(S_TAG2)}, 1")
        A(f"s_mov_b32 {s(S_DONE)}, 0")
        if cfg.sl_m:
            A(f"s_sleep {cfg.sl_m}")
        lds = [f"buffer_load_dwordx4 {v(V_MP + 4 * i, 4)}, {v(V_L16)}, {WS}, {s(T + 6)} offen offset:{i * 1024} sc1" for i in range(4)]
        lds.append(f"buffer_load_dwordx4 {v(V_MP + 16, 4)}, {v(V_L16B)}, {WS}, {s(T + 6)} offen sc1")

        def qk_block(p):
            for sg in (1, 2, 3, 0):
                for tau in range(2):
                    acc = v(A1 + sg * 8 + tau * 4, 4)
                    A(f"{MF16} {acc}, {a(((sg * 2 + tau) * 5 + p) * 4, 4)}, {v(V_MP + 4 * p, 4)}, {acc}")
            for sg in (1, 2, 3, 0):
                acc = v(A1 + 32 + sg * 4, 4)
                A(f"{MF16} {acc}, {v(V_MP + 4 * p, 4)}, {v(V_WV + (sg * 5 + p) * 4, 4)}, {acc}")
        for x in lds:
            A(x)
        top, tail = A.newlabel("kl"), A.newlabel("kt")
        A.label(top)
        A("s_waitcnt vmcnt(0)")
        for p in range(5):
            nx = A.newlabel("kn")
            A(f"s_bitcmp1_b32 {s(S_DONE)}, {p}")
            A.nf(f"s_cbranch_scc1 {nx}")
            A(f"v_max3_u32 {v(V_T)}, {v(V_MP + 4 * p)}, {v(V_MP + 4 * p + 1)}, {v(V_MP + 4 * p + 2)}")
            A(f"v_max_u32 {v(V_T)}, {v(V_T)}, {v(V_MP + 4 * p + 3)}")
            A(f"v_cmp_eq_u32 vcc, -1, {v(V_T)}")
            ok = A.newlabel("ko")
            A.nf(f"s_cbranch_vccz {ok}")
            A(lds[p])
            A.nf(f"s_branch {nx}")
            A.label_nf(ok)
            A(f"s_bitset1_b32 {s(S_DONE)}, {p}")
            qk_block(p)
            A.label_nf(nx)
        A(f"s_cmp_eq_u32 {s(S_DONE)}, 31")
        A.nf(f"s_cbranch_scc1 {tail}")
        A(f"s_sub_u32 {s(S_SPIN)}, {s(S_SPIN)}, 1")
        A.nf("s_cbranch_scc1 ABORT")
        A.nf(f"s_branch {top}")
        A.label_nf(tail)
        stamp(0)
        for sg in range(1, 4):
            for tau in range(2):
                A(f"ds_write_b128 {v(V_XW + sg - 1)}, {v(A1 + sg * 8 + tau * 4, 4)} offset:{tau * 1024}")
        for sg in range(1, 4):
            A(f"ds_write_b128 {v(V_XW + sg - 1)}, {v(A1 + 32 + sg * 4, 4)} offset:2048")
        A(f"s_and_b32 {s(T + 2)}, {s(S_T)}, 1")
        A(f"s_mul_i32 {s(T + 2)}, {s(T + 2)}, 49152")
        A(f"s_add_u32 {s(T + 2)}, {s(T + 2)}, {s(S_KVRD)}")
        A(f"v_add_u32 {v(V_T + 3)}, {s(T + 2)}, {v(V_L16)}")
        A("s_waitcnt lgkmcnt(3)")
        A("s_barrier")
        for k in range(3):
            for tau in range(2):
                A(f"ds_read_b128 {v(V_RR + k * 8 + tau * 4, 4)}, {v(V_XRD)} offset:{k * 3072 + tau * 1024}")
        A(f"s_mul_i32 {s(T + 6)}, {s(S_CW)}, {CH}")
        A(f"s_add_u32 {s(T + 6)}, {s(T + 6)}, {s(S_XCH)}")
        A(f"s_mul_i32 {s(T + 5)}, {s(S_U)}, 1536")
        A(f"s_add_u32 {s(T + 5)}, {s(T + 5)}, {s(T + 6)}")
        A(f"s_add_u32 {s(T + 5)}, {s(T + 5)}, 6144")
        A(f"s_add_u32 {s(T + 4)}, {s(T + 6)}, 3072")
        A("s_waitcnt lgkmcnt(2)")
        for i in range(0, 8, 2):
            A(f"v_pk_add_f32 {v(V_RR + i, 2)}, {v(V_RR + i, 2)}, {v(V_RR + 8 + i, 2)}")
        A("s_waitcnt lgkmcnt(0)")
        A("s_barrier")
        for k in range(3):
            A(f"ds_read_b128 {v(V_RV + 4 * k, 4)}, {v(V_XRD)} offset:{k * 3072 + 2048}")
        for i in range(0, 8, 2):
            A(f"v_pk_add_f32 {v(A1 + i, 2)}, {v(A1 + i, 2)}, {v(V_RR + 16 + i, 2)}")
        for i in range(0, 8, 2):
            A(f"v_pk_add_f32 {v(A1 + i, 2)}, {v(A1 + i, 2)}, {v(V_RR + i, 2)}")
        for i in range(4):
            A(f"v_cvt_pk_bf16_f32 {v(V_KEEP + i)}, {v(A1 + 2 * i)}, {v(A1 + 2 * i + 1)}")
        A(f"v_and_or_b32 {v(V_KEEP)}, {v(V_KEEP)}, -2, {s(S_TAG)}")
        A(f"buffer_store_dwordx4 {v(V_KEEP, 4)}, {v(V_QKST)}, {WS}, {s(S_XCH)} offen{LS}")
        stamp(1)
        for i in range(12):
            A(f"ds_read_b128 {v(V_KX + 4 * i, 4)}, {v(V_T + 3)} offset:{i * 1024}")
        A("s_waitcnt lgkmcnt(12)")
        AV = A1 + 32
        for i in range(0, 4, 2):
            A(f"v_pk_add_f32 {v(V_RV + i, 2)}, {v(V_RV + i, 2)}, {v(V_RV + 4 + i, 2)}")
            A(f"v_pk_add_f32 {v(AV + i, 2)}, {v(AV + i, 2)}, {v(V_RV + 8 + i, 2)}")
        for i in range(0, 4, 2):
            A(f"v_pk_add_f32 {v(AV + i, 2)}, {v(AV + i, 2)}, {v(V_RV + i, 2)}")
        A(f"v_cvt_pk_bf16_f32 {v(V_KEEP + 4)}, {v(AV)}, {v(AV + 1)}")
        A(f"v_cvt_pk_bf16_f32 {v(V_KEEP + 5)}, {v(AV + 2)}, {v(AV + 3)}")
        A(f"v_and_or_b32 {v(V_KEEP + 4)}, {v(V_KEEP + 4)}, -2, {s(S_TAG)}")
        A(f"buffer_store_dwordx2 {v(V_KEEP + 4, 2)}, {v(V_VST)}, {WS}, {s(S_XCH)} offen{LS}")
        A(f"s_mul_i32 {s(T + 3)}, {s(S_U)}, 6144")
        A(f"s_add_u32 {s(T + 3)}, {s(T + 3)}, 12288")
        A(f"v_add_u32 {v(V_VXB)}, {s(T + 3)}, {v(V_T + 3)}")
        A("s_waitcnt lgkmcnt(9)")
        for i in range(6):
            A(f"ds_read_b128 {v(V_VX + 4 * i, 4)}, {v(V_VXB)} offset:{i * 1024}")
        pc = []
        for base, sreg in ((V_Q, T + 6), (V_K, T + 4)):
            for j in range(3):
                pc.append((f"buffer_load_dwordx4 {v(base + 4 * j, 4)}, {v(V_L16)}, {WS}, {s(sreg)} offen offset:{j * 1024} sc1", [base + 4 * j]))
        vl = [f"buffer_load_dwordx4 {v(V_VM, 4)}, {v(V_L16)}, {WS}, {s(T + 5)} offen sc1",
              f"buffer_load_dwordx2 {v(V_VM + 4, 2)}, {v(V_L8)}, {WS}, {s(T + 5)} offen offset:1024 sc1"]
        A(f"s_cmp_eq_u32 {s(S_T)}, {TLAST}")
        A(f"s_cbranch_scc1 CH_DONE2")
        poll(pc, "tag", S_TAG, extra_after=vl, sleep=cfg.sl_q)
        if not cfg.xga:
            fxg_flag()
        return vl

    A_real = A

    def loop(sx, LS):
        class Filt:
            def __call__(self, x):
                if cfg.nodma and x.endswith(" lds"):
                    return
                if cfg.noxg and (f"{s(S_XGW)} offen" in x or f"{s(S_FXG)} offen" in x):
                    return
                A_real(x)

            def __getattr__(self, k):
                return getattr(A_real, k)
        nonlocal A
        A = Filt()
        A.label("CH_LOOP" + sx)
        if cfg.ks:
            vl = stage1_ks(LS)
        else:
            vl = stage1_ns(LS)
        stamp(2)
        A("s_waitcnt lgkmcnt(0)")
        E0, O0, E1, O1 = V_ACC, V_ACC + 4, V_ACC + 8, V_ACC + 12
        datt = dma_list(cfg.ntop, cfg.ntop + cfg.natt)
        if cfg.xga:
            datt = [[f"buffer_store_dwordx2 {v(V_KEEP + 4, 2)}, {v(V_VSTG)}, {WS}, {s(S_XGW)} offen sc1"],
                    [f"buffer_store_dwordx4 {v(V_KEEP, 4)}, {v(V_QKST)}, {WS}, {s(S_XGW)} offen sc1"]] + datt
            if cfg.xga == 4:
                datt[0] = [f"v_and_or_b32 {v(V_KEEP + 4)}, {v(V_KEEP + 4)}, -2, s29"] + datt[0]
                datt[1] = [f"v_and_or_b32 {v(V_KEEP)}, {v(V_KEEP)}, -2, s29"] + datt[1]
        if cfg.m1:
            datt = [list(vl)] + datt
        for jp in range(3):
            for (acc, kxi) in ((E0, (2 * jp) * 2), (O0, (2 * jp + 1) * 2), (E1, (2 * jp) * 2 + 1), (O1, (2 * jp + 1) * 2 + 1)):
                c = "0" if jp == 0 else v(acc, 4)
                A(f"v_mfma_f32_16x16x32_bf16 {v(acc, 4)}, {v(V_KX + 4 * kxi, 4)}, {v(V_Q + 4 * jp, 4)}, {c}")
            c = "0" if jp == 0 else v(V_AM, 4)
            A(f"v_mfma_f32_16x16x32_bf16 {v(V_AM, 4)}, {v(V_K + 4 * jp, 4)}, {v(V_Q + 4 * jp, 4)}, {c}")
            if datt:
                for e in datt.pop(0):
                    A(e)
        ex = datt
        B = []
        X = [V_ACC + i for i in range(4)]
        Z = V_AM
        B.append("MARK")
        for r in range(4):
            B.append(f"v_add_f32_dpp {v(X[r])}, {v(O0 + r)}, {v(E0 + r)} row_ror:8 row_mask:0xf bank_mask:0x3")
        for r in range(4):
            B.append(f"v_add_f32_dpp {v(X[r])}, {v(E1 + r)}, {v(O1 + r)} row_ror:8 row_mask:0xf bank_mask:0xc")
        B.append(f"v_permlane32_swap_b32 {v(Z)}, {v(Z + 1)}")
        B.append(f"v_permlane32_swap_b32 {v(Z + 2)}, {v(Z + 3)}")
        B.append(f"v_max3_f32 {v(V_T)}, {v(X[0])}, {v(X[1])}, {v(X[2])}")
        B.append("MARK")
        B.append(f"v_add_f32_dpp {v(Z)}, {v(Z + 1)}, {v(Z)} row_ror:8 row_mask:0xf bank_mask:0x3")
        B.append(f"v_add_f32_dpp {v(Z)}, {v(Z + 2)}, {v(Z + 3)} row_ror:8 row_mask:0xf bank_mask:0xc")
        B.append(f"v_max3_f32 {v(V_T)}, {v(V_T)}, {v(X[3])}, {v(Z)}")
        B.append(f"v_max_f32_dpp {v(V_T)}, {v(V_T)}, {v(V_T)} row_ror:8 row_mask:0xf bank_mask:0xf")

        def xred(op):
            r, tt = V_T, V_T + 1
            B.append(f"v_mov_b32 {v(tt)}, {v(r)}")
            B.append("MARK")
            B.append(f"v_permlane32_swap_b32 {v(r)}, {v(tt)}")
            B.append(f"{op} {v(r)}, {v(r)}, {v(tt)}")
            B.append(f"v_mov_b32 {v(tt)}, {v(r)}")
            B.append("MARK")
            B.append(f"v_permlane16_swap_b32 {v(r)}, {v(tt)}")
            B.append(f"{op} {v(r)}, {v(r)}, {v(tt)}")
        xred("v_max_f32")
        B.append(f"v_mul_f32 {v(V_T)}, {s(S_CS)}, {v(V_T)}")
        S = X + [Z]
        for r in S:
            B.append(f"v_fma_f32 {v(r)}, {v(r)}, {s(S_CS)}, -{v(V_T)}")
        for r in S:
            B.append(f"v_exp_f32 {v(r)}, {v(r)}")
        B.append("MARK")
        B.append(f"v_add_f32 {v(V_T)}, {v(S[0])}, {v(S[1])}")
        B.append(f"v_add_f32 {v(V_T + 1)}, {v(S[2])}, {v(S[3])}")
        B.append(f"v_add_f32 {v(V_T)}, {v(V_T)}, {v(S[4])}")
        B.append(f"v_add_f32 {v(V_T)}, {v(V_T)}, {v(V_T + 1)}")
        B.append(f"v_add_f32_dpp {v(V_T)}, {v(V_T)}, {v(V_T)} row_ror:8 row_mask:0xf bank_mask:0xf")
        xred("v_add_f32")
        B.append(f"v_rcp_f32 {v(V_T)}, {v(V_T)}")
        B.append("MARK")
        for r in S:
            B.append(f"v_mul_f32 {v(r)}, {v(r)}, {v(V_T)}")
        B.append(f"v_cvt_pk_bf16_f32 {v(V_P)}, {v(X[0])}, {v(X[1])}")
        B.append(f"v_cvt_pk_bf16_f32 {v(V_P + 1)}, {v(X[2])}, {v(X[3])}")
        ZT = V_T + 2 if cfg.m1 else V_T
        B.append(f"v_mov_b32 {v(ZT + 1)}, {v(Z)}")
        B.append(f"v_mov_b32 {v(ZT)}, {v(Z)}")
        B.append(f"v_mov_b32_dpp {v(V_P + 2)}, {v(V_P)} row_ror:8 row_mask:0xf bank_mask:0xf")
        B.append(f"v_mov_b32_dpp {v(V_P + 3)}, {v(V_P + 1)} row_ror:8 row_mask:0xf bank_mask:0xf")
        B.append(f"v_permlane32_swap_b32 {v(ZT)}, {v(ZT + 1)}")
        B.append("MARK")
        if cfg.m1:
            k = B.index(f"v_rcp_f32 {v(V_T)}, {v(V_T)}")
            assert len(ex) <= B[:k].count("MARK")
            B.insert(k + 2 + 5, "VPOLL")
        for x in B:
            if x == "VPOLL":
                poll([(vl[0], [V_VM, V_VM + 2]), (vl[1], [V_VM + 4])], "tag", S_TAG, issued=((2 if cfg.xga else 0) + cfg.natt))
                continue
            if x == "MARK":
                if ex:
                    for e in ex.pop(0):
                        A(e)
            else:
                A(x)
        assert not ex
        if not cfg.m1:
            for i in range(6):
                A(f"v_mfma_f32_16x16x32_bf16 {v(V_OT + 4 * i, 4)}, {v(V_VX + 4 * i, 4)}, {v(V_P, 4)}, 0")
                if i == 0:
                    A(f"v_cvt_pk_bf16_f32 {v(V_T)}, {v(V_T)}, {v(V_T + 1)}")
                if i == 1:
                    A(f"v_mov_b32_dpp {v(V_T + 1)}, {v(V_T)} row_ror:8 row_mask:0xf bank_mask:0xf")
                    A(f"v_cndmask_b32 {v(V_PL)}, 0, {v(V_T)}, {s(S_ML, 2)}")
                if i == 2:
                    A(f"v_cndmask_b32 {v(V_PH)}, {v(V_T)}, 0, {s(S_ML, 2)}")
                    A(f"v_cndmask_b32 {v(V_PL + 1)}, 0, {v(V_T + 1)}, {s(S_ML, 2)}")
                if i == 3:
                    A(f"v_cndmask_b32 {v(V_PH + 1)}, {v(V_T + 1)}, 0, {s(S_ML, 2)}")
            poll([(vl[0], [V_VM, V_VM + 2]), (vl[1], [V_VM + 4])], "tag", S_TAG, issued=((1 if cfg.ks and not cfg.xga else 0) + (2 if cfg.xga else 0) + (0 if cfg.nodma else cfg.natt)))
            for i in range(6):
                A(f"v_mfma_f32_16x16x16_bf16 {v(V_OT + 4 * i, 4)}, {v(V_VM + 2 * (i >> 1), 2)}, {v(V_PH if i & 1 else V_PL, 2)}, {v(V_OT + 4 * i, 4)}")
            A(f"s_mul_i32 {s(T + 6)}, {s(T + 7)}, {PART_SLOT}")
            A(f"s_add_u32 {s(T + 1)}, {s(T + 6)}, {s(S_PARTW)}")
            A(f"s_add_u32 {s(T + 6)}, {s(T + 6)}, {PART_OFF}")
            A(f"s_add_u32 {s(T + 6)}, {s(T + 6)}, {s(S_MEMB)}")
            A(f"s_add_u32 {s(T + 4)}, {s(T + 6)}, {4 * 40960}")
            for i in range(12):
                A(f"v_cvt_pk_bf16_f32 {v(V_OF + i)}, {v(V_OT + 2 * i)}, {v(V_OT + 2 * i + 1)}")
            A(f"s_mov_b64 exec, {s(S_MQ, 2)}")
            for i in range(3):
                A(f"ds_write_b128 {v(V_OW)}, {v(V_OF + 4 * i, 4)} offset:{LDS_O + i * 1024}")
            A("s_mov_b64 exec, -1")
        else:
            for i in range(6):
                A(f"v_mfma_f32_16x16x32_bf16 {v(V_OT + 4 * i, 4)}, {v(V_VX + 4 * i, 4)}, {v(V_P, 4)}, 0")
                if i == 0:
                    A(f"v_cvt_pk_bf16_f32 {v(V_T + 2)}, {v(V_T + 2)}, {v(V_T + 3)}")
                if i == 1:
                    A(f"v_mov_b32_dpp {v(V_T + 3)}, {v(V_T + 2)} row_ror:8 row_mask:0xf bank_mask:0xf")
                    A(f"v_cndmask_b32 {v(V_PL)}, 0, {v(V_T + 2)}, {s(S_ML, 2)}")
                if i == 2:
                    A(f"v_cndmask_b32 {v(V_PH)}, {v(V_T + 2)}, 0, {s(S_ML, 2)}")
                    A(f"v_cndmask_b32 {v(V_PL + 1)}, 0, {v(V_T + 3)}, {s(S_ML, 2)}")
                if i == 3:
                    A(f"v_cndmask_b32 {v(V_PH + 1)}, {v(V_T + 3)}, 0, {s(S_ML, 2)}")
                if i == 4:
                    A(f"s_mul_i32 {s(T + 6)}, {s(T + 7)}, {PART_SLOT}")
                    A(f"s_add_u32 {s(T + 1)}, {s(T + 6)}, {s(S_PARTW)}")
                if i == 5:
                    A(f"s_add_u32 {s(T + 6)}, {s(T + 6)}, {PART_OFF}")
                    A(f"s_add_u32 {s(T + 6)}, {s(T + 6)}, {s(S_MEMB)}")

            def cv(tl):
                for k in range(2):
                    A(f"v_cvt_pk_bf16_f32 {v(V_OF + 2 * tl + k)}, {v(V_OT + 4 * tl + 2 * k)}, {v(V_OT + 4 * tl + 2 * k + 1)}")

            def ow(i):
                A(f"s_mov_b64 exec, {s(S_MQ, 2)}")
                A(f"ds_write_b128 {v(V_OW)}, {v(V_OF + 4 * i, 4)} offset:{LDS_O + i * 1024}")
                A("s_mov_b64 exec, -1")
            for i in range(6):
                A(f"v_mfma_f32_16x16x16_bf16 {v(V_OT + 4 * i, 4)}, {v(V_VM + 2 * (i >> 1), 2)}, {v(V_PH if i & 1 else V_PL, 2)}, {v(V_OT + 4 * i, 4)}")
                if i == 0:
                    A(f"s_add_u32 {s(T + 4)}, {s(T + 6)}, {4 * 40960}")
                if i >= 4:
                    cv(i - 4)
            ow(0)
            cv(2)
            cv(3)
            ow(1)
            cv(4)
            cv(5)
            ow(2)
        A("s_waitcnt lgkmcnt(0)")
        A("s_barrier")
        stamp(3)
        for j in range(6):
            A(f"ds_read_b128 {v(V_OF + 4 * j, 4)}, {v(V_L16)} offset:{LDS_O + j * 1024}")
        if cfg.xga == 2:
            A(f"s_waitcnt vmcnt({cfg.natt})")
            A(f"s_mov_b64 exec, 1")
            if cfg.timing == 4:
                A(f"s_memrealtime {s(98, 2)}")
                A("s_waitcnt lgkmcnt(0)")
                A(f"s_or_b32 s98, s98, 1")
                A(f"v_mov_b32 {v(V_T + 6)}, s98")
                A(f"buffer_store_dword {v(V_T + 6)}, {v(V_L16)}, {WS}, {s(S_FXG)} offen sc1")
            else:
                A(f"buffer_store_dword {v(V_POIS)}, {v(V_L16)}, {WS}, {s(S_FXG)} offen sc1")
            A(f"s_mov_b64 exec, -1")
            A(f"s_add_u32 {s(S_FXG)}, {s(S_FXG)}, {FXG_STEP}")
        for j in range(6):
            A(f"s_waitcnt lgkmcnt({5 - j})")
            for i in range(3):
                c = "0" if j == 0 else v(V_ACC + 4 * i, 4)
                A(f"v_mfma_f32_16x16x32_bf16 {v(V_ACC + 4 * i, 4)}, {a(160 + (i * 6 + j) * 4, 4)}, {v(V_OF + 4 * j, 4)}, {c}")
        l3 = A.newlabel("t3")
        l4 = A.newlabel("t4")
        A(f"s_cmp_eq_u32 {s(S_ND)}, 3")
        A(f"s_cbranch_scc1 {l3}")

        def pstore(i):
            if cfg.xh2 == 2 and i == 3:
                return
            A(f"v_and_or_b32 {v(V_ACC + 4 * i)}, {v(V_ACC + 4 * i)}, -2, {s(S_TAG)}")
            A(f"buffer_store_dwordx4 {v(V_ACC + 4 * i, 4)}, {v(V_L16)}, {WS}, {s(T + 1)} offen offset:{i * 1024}{LS}")
        for j in range(6):
            c = "0" if j == 0 else v(V_ACC + 12, 4)
            A(f"v_mfma_f32_16x16x32_bf16 {v(V_ACC + 12, 4)}, {a(160 + (18 + j) * 4, 4)}, {v(V_OF + 4 * j, 4)}, {c}")
            if j >= 3:
                pstore(j - 3)
        pstore(3)
        A(f"s_branch {l4}")
        A.label(l3)
        for i in range(3):
            pstore(i)
        A.label(l4)
        stamp(4)
        nored = A.newlabel("nored")
        A(f"s_cmp_eq_u32 {s(S_ISRED)}, 0")
        A(f"s_cbranch_scc1 {nored}")
        A(f"s_add_u32 {s(T + 5)}, {s(S_XPU)}, {s(S_XPW)}")
        pc = []
        for m in range(2):
            for tau in range(2):
                pc.append((f"buffer_load_dwordx4 {v(V_RL + 8 * m + 4 * tau, 4)}, {v(V_RED)}, {WS}, {s(T + 6 if m == 0 else T + 4)} offen offset:{tau * 1024} sc1", [V_RL + 8 * m + 4 * tau]))
        if cfg.xh2:
            pc = [pc[0], pc[2]]
        if cfg.pp_r:
            ppoll(pc, S_TAG, sleep=cfg.sl_r, gap=cfg.gap_r, depth=cfg.pp_r)
        else:
            poll(pc, "tag", S_TAG, sleep=cfg.sl_r)
        R = [V_RL + 24 + i for i in range(8)]
        for i in range(0, 8, 2):
            A(f"v_pk_add_f32 {v(R[i], 2)}, {v(V_RL + i, 2)}, {v(V_RL + 8 + i, 2)}")
        for i in range(4):
            A(f"v_permlane32_swap_b32 {v(R[i])}, {v(R[i + 4])}")
        for i in range(4):
            A(f"v_add_f32 {v(R[i])}, {v(R[i])}, {v(R[i + 4])}")
        A(f"v_permlane16_swap_b32 {v(R[0])}, {v(R[2])}")
        A(f"v_permlane16_swap_b32 {v(R[1])}, {v(R[3])}")
        A(f"v_add_f32 {v(R[0])}, {v(R[0])}, {v(R[2])}")
        A(f"v_add_f32 {v(R[1])}, {v(R[1])}, {v(R[3])}")
        A(f"v_and_or_b32 {v(R[0])}, {v(R[0])}, -2, {s(S_TAG2)}")
        A(f"buffer_store_dwordx2 {v(R[0], 2)}, {v(V_L8)}, {WS}, {s(T + 5)} offen sc1")
        stamp(5)
        A.label(nored)
        if not cfg.xga:
            lab = A.newlabel("xq")
            A(f"buffer_store_dwordx2 {v(V_KEEP + 4, 2)}, {v(V_VSTG)}, {WS}, {s(S_XGW)} offen sc1")
            A(f"s_cmp_eq_u32 {s(S_CW)}, 0")
            A(f"s_cbranch_scc1 {lab}")
            A(f"buffer_store_dwordx4 {v(V_KEEP, 4)}, {v(V_QKST)}, {WS}, {s(S_XGW)} offen sc1")
            A.label(lab)
        elif cfg.xga == 1:
            if True:
                lab = A.newlabel("xq")
                A(f"s_cmp_lg_u32 {s(S_ISRED)}, 0")
                A(f"s_cbranch_scc1 {lab}")
                A("s_waitcnt vmcnt(0)")
                A.label(lab)
            A(f"s_mov_b64 exec, 1")
            if cfg.timing == 4:
                A(f"s_memrealtime {s(98, 2)}")
                A("s_waitcnt lgkmcnt(0)")
                A(f"s_or_b32 s98, s98, 1")
                A(f"v_mov_b32 {v(V_T + 6)}, s98")
                A(f"buffer_store_dword {v(V_T + 6)}, {v(V_L16)}, {WS}, {s(S_FXG)} offen sc1")
            else:
                A(f"buffer_store_dword {v(V_POIS)}, {v(V_L16)}, {WS}, {s(S_FXG)} offen sc1")
            A(f"s_mov_b64 exec, -1")
            A(f"s_add_u32 {s(S_FXG)}, {s(S_FXG)}, {FXG_STEP}")
        nodef = A.newlabel("nd")
        if cfg.lead1 and not L15:
            A(f"v_cmp_eq_u32 vcc, 0, {v(V_FV2)}")
            A(f"s_cmp_ge_u32 {s(S_T)}, {TLAST - 1}")
            A(f"s_cbranch_scc1 {nodef}")
            A(f"s_cbranch_vccz {nodef}")
        else:
            A(f"s_cmp_eq_u32 {s(S_DEF)}, 0")
            A(f"s_cbranch_scc1 {nodef}")
        flag_spin()
        for e in dma_list(0, cfg.ntop + cfg.natt):
            for x in e:
                A(x)
        A.label(nodef)
        for e in dma_list(cfg.ntop + cfg.natt, 12):
            for x in e:
                A(x)
        if L15:
            A(f"s_add_u32 {s(T + 6)}, {s(S_T)}, 2")
            for x in src_for(T + 6, S_SRC2, S_FLG2, S_LDS2):
                A(x)
            A(f"buffer_load_dword {v(V_FV2)}, {v(V_FLG)}, {WS}, {s(S_FLG2)} offen sc1")
        nored2 = A.newlabel("nored")
        isred = A.newlabel("isred")
        A(f"s_cmp_lg_u32 {s(S_ISRED)}, 0")
        A(f"s_cbranch_scc1 {isred}")
        if L15:
            A("s_waitcnt vmcnt(0)")
        if cfg.nrs:
            A(f"s_sleep {cfg.nrs}")
        A(f"s_branch {nored2}")
        A.label(isred)
        A(f"s_xor_b32 {s(T)}, {s(T + 7)}, 2")
        A(f"s_mul_i32 {s(T)}, {s(T)}, {MEM_SLOT}")
        A(f"s_add_u32 {s(T)}, {s(T)}, {s(S_MEMB)}")
        A(f"buffer_store_dword {v(V_POIS)}, {v(V_MST)}, {WS}, {s(T)} offen{LS}")
        for r in range(1, 4):
            A(f"s_add_u32 {s(T + r)}, {s(S_XGI)}, {r}")
            A(f"s_and_b32 {s(T + r)}, {s(T + r)}, 3")
            A(f"s_mul_i32 {s(T + r)}, {s(T + r)}, {512 if cfg.xpl else 40960}")
            A(f"s_add_u32 {s(T + r)}, {s(T + r)}, {s(S_XPU)}")
        A(f"s_add_u32 {s(T + 6)}, {s(S_T)}, 1")
        A(f"s_and_b32 {s(T + 6)}, {s(T + 6)}, 3")
        A(f"s_mul_i32 {s(T + 6)}, {s(T + 6)}, {MEM_SLOT}")
        A(f"s_add_u32 {s(T + 6)}, {s(T + 6)}, {s(S_MEMB)}")
        A(f"s_cmp_lt_u32 {s(S_T)}, {LAG}")
        A(f"s_cselect_b64 {s(T + 4, 2)}, {s(S_MB, 2)}, 0")
        if cfg.xsleep:
            A(f"s_sleep {cfg.xsleep}")
        XL = V_RL + 16
        XX = V_RL + 32
        pc = [(f"buffer_load_dwordx2 {v(XL + 2 * x, 2)}, {v(V_L8)}, {WS}, {s(T + x)} offen sc1", [XL + 2 * x]) for x in range(1, 4)]
        if cfg.xat:
            pc = [(f"v_mov_b32 {v(XL + 2 * x)}, 0\nv_mov_b32 {v(XL + 2 * x + 1)}, 0\nbuffer_atomic_add_x2 {v(XL + 2 * x, 2)}, {v(V_L8)}, {WS}, {s(T + x)} offen sc0 sc1", [XL + 2 * x]) for x in range(1, 4)]
            poll(pc, "tag", S_TAG2)
        elif cfg.pp_x:
            ppoll(pc, S_TAG2, gap=cfg.gap_x, depth=cfg.pp_x)
        else:
            poll(pc, "tag", S_TAG2, rsleep=cfg.xrs)
        A(f"v_pk_add_f32 {v(XX, 2)}, {v(R[0], 2)}, {v(XL + 4, 2)}")
        A(f"v_pk_add_f32 {v(XX + 4, 2)}, {v(XL + 2, 2)}, {v(XL + 6, 2)}")
        A(f"v_pk_add_f32 {v(XX, 2)}, {v(XX, 2)}, {v(XX + 4, 2)}")
        A(f"v_cvt_pk_bf16_f32 {v(XX)}, {v(XX)}, {v(XX + 1)}")
        A(f"v_min_u32 {v(XX)}, -2, {v(XX)}")
        A(f"v_cndmask_b32 {v(XX)}, {v(XX)}, {v(V_MEM0)}, {s(T + 4, 2)}")
        A(f"buffer_store_dword {v(XX)}, {v(V_MST)}, {WS}, {s(T + 6)} offen{LS}")
        A.label(nored2)
        if not cfg.lead1 or L15:
            A(f"v_cmp_eq_u32 vcc, 0, {v(V_FV2)}")
            A(f"s_cmp_lg_u64 vcc, 0")
            A(f"s_cselect_b32 {s(S_DEF)}, 1, 0")
            A(f"s_cmp_ge_u32 {s(S_T)}, {TLAST - 2}")
            A(f"s_cselect_b32 {s(S_DEF)}, 0, {s(S_DEF)}")
            A(f"s_mov_b32 {s(S_SRC)}, {s(S_SRC2)}")
            A(f"s_mov_b32 {s(S_FLG)}, {s(S_FLG2)}")
            A(f"s_mov_b32 {s(S_LDSKV)}, {s(S_LDS2)}")
        stamp(6)
        A(f"s_add_u32 {s(S_T)}, {s(S_T)}, 1")
        if cfg.xga != 4:
            A(f"s_add_u32 {s(S_XGW)}, {s(S_XGW)}, {XG_STEP}")
        A(f"s_branch CH_LOOP{sx}")

    A(f"s_cmp_lg_u32 {s(S_MODE)}, 0")
    A("s_cbranch_scc1 CH_LOOP_S")
    loop("_F", "")
    loop("_S", " sc1")
    A = A_real
    if cfg.ks:
        A.label("CH_DONE2")
        if not cfg.xga:
            fxg_flag()
    A.label("CH_DONE")
    if cfg.xga == 4:
        A(f"v_and_or_b32 {v(V_KEEP + 4)}, {v(V_KEEP + 4)}, -2, s29")
        A(f"v_and_or_b32 {v(V_KEEP)}, {v(V_KEEP)}, -2, s29")
    A(f"buffer_store_dwordx2 {v(V_KEEP + 4, 2)}, {v(V_VSTG)}, {WS}, {s(S_XGW)} offen sc1")
    A(f"buffer_store_dwordx4 {v(V_KEEP, 4)}, {v(V_QKST)}, {WS}, {s(S_XGW)} offen sc1")
    if cfg.xga != 4:
        A("s_waitcnt vmcnt(0)")
        A(f"s_mov_b64 exec, 1")
        A(f"buffer_store_dword {v(V_POIS)}, {v(V_L16)}, {WS}, {s(S_FXG)} offen sc1")
        A(f"s_mov_b64 exec, -1")
    stamp.dump(S_ROLE, T, V_T)
    if cfg.timing == 5:
        A(f"s_lshl_b32 {s(T)}, {s(S_ROLE)}, 2")
        A(f"s_add_u32 {s(T)}, {s(T)}, {s(S_WAVE)}")
        A(f"s_lshl_b32 {s(T)}, {s(T)}, 6")
        A(f"s_add_u32 {s(T)}, {s(T)}, 0x100000")
        A("s_mov_b64 exec, 1")
        for k in range(5):
            A(f"v_mov_b32 {v(V_T)}, {s(92 + k)}")
            A(f"buffer_store_dword {v(V_T)}, {v(V_L16)}, {WS}, {s(T)} offen offset:{4 * k}")
        A("s_mov_b64 exec, -1")
    if cfg.timing:
        lab = A.newlabel("tm")
        A(f"s_memrealtime {s(S_T0 + 2, 2)}")
        A("s_waitcnt lgkmcnt(0)")
        A(f"s_cmp_lg_u32 {s(S_ROLE)}, 0")
        A(f"s_cbranch_scc1 {lab}")
        A(f"s_cmp_lg_u32 {s(S_WAVE)}, 0")
        A(f"s_cbranch_scc1 {lab}")
        A(f"s_sub_u32 {s(T)}, {s(S_T0 + 2)}, {s(S_T0)}")
        A(f"v_mov_b32 {v(V_T)}, {s(T)}")
        if cfg.timing == 6:
            A("s_memtime s[94:95]")
            A("s_waitcnt lgkmcnt(0)")
            A(f"s_sub_u32 {s(S_MODE)}, s94, s92")
        A(f"v_mov_b32 {v(V_T + 1)}, {s(S_MODE)}")
        A(f"v_mov_b32 {v(V_T + 2)}, 16")
        A("s_mov_b64 exec, 1")
        A(f"buffer_store_dwordx2 {v(V_T, 2)}, {v(V_T + 2)}, {s(SRD_DBG, 4)}, 0 offen")
        if cfg.timing == 6:
            A(f"s_sub_u32 {s(T)}, {s(S_T0)}, s100")
            A(f"v_mov_b32 {v(V_T)}, {s(T)}")
            A(f"buffer_store_dword {v(V_T)}, {v(V_T + 2)}, {s(SRD_DBG, 4)}, 0 offen offset:8")
        A.label(lab)
    A("s_endpgm")
```

```python
from common import *
from stations import item_of, Capture

WS = s(SRD_WS, 4)
SM = "v_smfmac_f32_16x16x64_bf16"
MF = "v_mfma_f32_16x16x32_bf16"
NONE = -1
DF = ["sc1 ", "", "nt sc1 ", "sc0 sc1 ", "nt ", "sc0 nt sc1 "]

S_N, S_L, S_T, S_NL, S_NT, S_L2, S_T2, S_TAG, S_T1, S_PLA = range(50, 60)
T = 60
S_PXA, S_DPA, S_OIA, S_VMA, S_DOA, S_KSRC, S_KLDS, S_FLG1, S_FLG2, S_DEF = range(68, 78)
S_KP, S_FP, S_KCUR, S_FCUR = 78, 79, 80, 81
S_XB, S_PXR, S_HOFF, S_XGH, S_FXH, S_CS = 82, 83, 84, 85, 86, 87
S_MA, S_MB = 88, 90
S_X, S_J, S_KF, S_NTAG, S_NT1, S_OIH, S_VMH, S_DOH, S_ISV = 28, 29, 30, 31, 32, 33, 34, 35, 36
S_T0 = 38
V_LANE, V_L16, V_IDX = 0, 1, 2
V_T = 12


class Lds:
    def __init__(self, A):
        self.A, self.q = A, []

    def op(self, tag, text):
        self.A(text)
        self.q.append(tag)

    def wait(self, tag):
        if tag not in self.q:
            return
        i = len(self.q) - 1 - self.q[::-1].index(tag)
        n = len(self.q) - 1 - i
        self.A(f"s_waitcnt lgkmcnt({min(n, 15)})")
        if n <= 15:
            self.q = self.q[i + 1:]
        else:
            self.q = self.q[len(self.q) - 15:]

    def drain(self):
        self.A("s_waitcnt lgkmcnt(0)")
        self.q = []


def cost(x):
    if x.startswith("ds_"):
        return 8
    if x.startswith("buffer_"):
        return CFG[0].vmc
    if x.startswith("s_cbranch") or x.startswith("s_branch"):
        return 16
    if x.startswith("v_pk_") or x.split()[0] in ("v_exp_f32", "v_rcp_f32", "v_sqrt_f32", "v_rsq_f32"):
        return 8
    return 4


class Task:
    def __init__(self, rel, items, step=0):
        self.rel, self.items, self.step = rel, list(items), step
        self.vstep, self.after = 0, None


def sched(A, L, seq, tasks, pre=None, budget=12, nvalu=1):
    pre = pre or {}

    def icost(it):
        if isinstance(it, tuple):
            return it[0] if callable(it[1]) else 8
        return sum(cost(y) for y in it.split("\n"))

    def isv(it):
        return 0 if isinstance(it, tuple) else sum(1 for y in it.split("\n") if y.startswith("v_"))

    def emit(it):
        if isinstance(it, tuple):
            if callable(it[1]):
                it[1]()
            else:
                L.op(it[0], it[1])
        else:
            A(it)

    def pending(tag):
        return [t for t in tasks if any(isinstance(i, tuple) and i[0] == tag for i in t.items)]
    over = 0
    for k, (txt, need) in enumerate(seq):
        if k in pre:
            pre[k]()
        for tag in need:
            for t in pending(tag):
                assert t.rel <= k, (tag, k)
                while pending(tag):
                    emit(t.items.pop(0))
                    over += 1
            L.wait(tag)
        A(txt)
        rem, nv = budget, 0
        if k + 1 < len(seq) and any(tag in L.q for tag in seq[k + 1][1]):
            rem -= 4
        full = rem
        for t in tasks:
            while t.items and t.rel <= k and not (t.after and t.after.items):
                it = t.items[0]
                c = icost(it)
                big = isinstance(it, tuple) and callable(it[1]) and c == CFG[0].vmc
                if big and t.vstep and getattr(t, "vrel", 0) > k:
                    break
                if (c <= rem and nv + isv(it) <= nvalu) or (rem == full and rem >= budget - 4 and c > budget) or (budget > 12 and c >= budget - 4 and rem >= budget - 12):
                    emit(t.items.pop(0))
                    rem -= c
                    nv += isv(it)
                    if big and t.vstep:
                        t.vrel = k + t.vstep
                    if t.step and c > 0:
                        t.rel = k + t.step
                else:
                    break
    left = sum(len(t.items) for t in tasks)
    if CFG[0].verbose:
        print("sched: forced", over, "left", left)
    for t in tasks:
        while t.items:
            emit(t.items.pop(0))


def groups(lines):
    grp, cur = [], []
    for x in lines:
        if x.startswith("s_cselect") or x.startswith("s_addc"):
            cur.append(x)
        else:
            if cur:
                grp.append("\n".join(cur))
            cur = [x]
    if cur:
        grp.append("\n".join(cur))
    return grp


def cap(fn):
    c = Capture()
    fn(c)
    out = []
    for x in c.l:
        out += [y for y in x.split("\n") if y.strip()]
    return out


def spin_fail(A, nf=True):
    A(f"s_sub_u32 {s(S_SPIN)}, {s(S_SPIN)}, 1")
    A("s_cbranch_scc1 ABORT")


def doorbell(A, cfg, v_off, s_addr, vd):
    top, ok = A.newlabel("db"), A.newlabel("dbok")
    ld = f"buffer_load_dword {v(vd)}, {v(v_off)}, {WS}, {s(s_addr)} offen sc1"
    if not cfg.dpp2:
        A.label(top)
        A(ld)
        A("s_waitcnt vmcnt(0)")
        A(f"v_cmp_gt_u32 vcc, {s(S_T1)}, {v(vd)}")
        A.nf(f"s_cbranch_vccz {ok}")
        if cfg.dsl:
            A(f"s_sleep {cfg.dsl}")
        spin_fail(A)
        A(f"s_branch {top}")
        A.label_nf(ok)
        return
    ld2 = f"buffer_load_dword {v(vd + 1)}, {v(v_off)}, {WS}, {s(s_addr)} offen sc1"
    A(ld)
    A(f"s_sleep {cfg.dpp2}")
    A.label(top)
    A(ld2)
    A("s_waitcnt vmcnt(1)")
    A(f"v_cmp_gt_u32 vcc, {s(S_T1)}, {v(vd)}")
    A.nf(f"s_cbranch_vccz {ok}")
    A(ld)
    A("s_waitcnt vmcnt(1)")
    A(f"v_cmp_gt_u32 vcc, {s(S_T1)}, {v(vd + 1)}")
    A.nf(f"s_cbranch_vccz {ok}")
    spin_fail(A)
    A(f"s_branch {top}")
    A.label_nf(ok)


def common_setup(A, cfg, shift):
    A(f"s_lshr_b32 {s(S_X)}, {s(S_ROLE)}, {shift}")
    A(f"s_and_b32 {s(S_J)}, {s(S_ROLE)}, {(1 << shift) - 1}")
    A(f"s_mul_i32 {s(S_XB)}, {s(S_X)}, {C2_X}")
    A(f"s_add_u32 {s(S_XB)}, {s(S_XB)}, {C2}")
    A(f"v_lshlrev_b32 {v(V_L16)}, 4, {v(V_LANE)}")
    A(f"v_and_b32 {v(V_T)}, 1, {v(V_LANE)}")
    A(f"v_mul_u32_u24 {v(V_IDX)}, 0xaaaa, {v(V_T)}")
    A(f"v_or_b32 {v(V_IDX)}, 0x4444, {v(V_IDX)}")


def near_half(A, cfg, dst):
    if not cfg.near:
        return
    A(f"v_mov_b32 {v(V_T + 1)}, 192")
    A(f"buffer_load_dword {v(V_T)}, {v(V_T + 1)}, {s(SRD_DBG, 4)}, 0 offen sc1")
    A("s_waitcnt vmcnt(0)")
    A(f"v_readfirstlane_b32 {s(T)}, {v(V_T)}")
    A(f"s_cmp_gt_i32 {s(T)}, 0")
    A(f"s_cselect_b32 {s(T)}, 0x2000, 0")
    if cfg.near == 2:
        A(f"s_xor_b32 {s(T)}, {s(T)}, 0x2000")
    A(f"s_add_u32 {s(dst)}, {s(dst)}, {s(T)}")


def timing_end(A, cfg, stamp, idx_base):
    A(f"s_add_u32 {s(T + 1)}, {s(S_ROLE)}, {idx_base}")
    stamp.dump(T + 1, T, V_T)
    if cfg.timing and idx_base == 0:
        lab = A.newlabel("tm")
        A(f"s_memrealtime {s(S_T0 + 2, 2)}")
        A("s_waitcnt lgkmcnt(0)")
        A(f"s_cmp_lg_u32 {s(S_ROLE)}, 0")
        A(f"s_cbranch_scc1 {lab}")
        A(f"s_cmp_lg_u32 {s(S_WAVE)}, 0")
        A(f"s_cbranch_scc1 {lab}")
        A(f"s_sub_u32 {s(T)}, {s(S_T0 + 2)}, {s(S_T0)}")
        A(f"v_mov_b32 {v(V_T)}, {s(T)}")
        if cfg.timing == 6:
            A("s_memtime s[94:95]")
            A("s_waitcnt lgkmcnt(0)")
            A(f"s_sub_u32 {s(S_MODE)}, s94, s92")
        A(f"v_mov_b32 {v(V_T + 1)}, {s(S_MODE)}")
        A(f"v_mov_b32 {v(V_T + 2)}, 16")
        A("s_mov_b64 exec, 1")
        A(f"buffer_store_dwordx2 {v(V_T, 2)}, {v(V_T + 2)}, {s(SRD_DBG, 4)}, 0 offen")
        if cfg.timing == 6:
            A(f"s_sub_u32 {s(T)}, {s(S_T0)}, s100")
            A(f"v_mov_b32 {v(V_T)}, {s(T)}")
            A(f"buffer_store_dword {v(V_T)}, {v(V_T + 2)}, {s(SRD_DBG, 4)}, 0 offen offset:8")
        A.label(lab)
    A("s_endpgm")


def retry_dump(A, idx_base):
    A(f"s_add_u32 {s(T)}, {s(S_ROLE)}, {idx_base}")
    A(f"s_lshl_b32 {s(T)}, {s(T)}, 2")
    A(f"s_add_u32 {s(T)}, {s(T)}, {s(S_WAVE)}")
    A(f"s_lshl_b32 {s(T)}, {s(T)}, 6")
    A(f"s_add_u32 {s(T)}, {s(T)}, 0x100000")
    A("s_mov_b64 exec, 1")
    for k in range(5):
        A(f"v_mov_b32 {v(V_T)}, {s(92 + k)}")
        A(f"buffer_store_dword {v(V_T)}, {v(V_L16)}, {WS}, {s(T)} offen offset:{4 * k}")
    A("s_mov_b64 exec, -1")


class NoStamp:
    def init(self): pass
    def __call__(self, k): pass
    def dump(self, *a_): pass
    def flush(self): pass


class LightStamp(RawStamper):
    R = [16, 18, 20, 22, 24, 26, 96, 98]

    def __call__(self, k):
        self.A(f"s_memtime {s(self.R[k], 2)}")

    def flush(self):
        A, b = self.A, self.b
        lab = A.newlabel("fs")
        A(f"s_sub_u32 {s(b + 2)}, {s(self.s_t)}, {self.t0}")
        A(f"s_cmp_ge_u32 {s(b + 2)}, 7")
        A(f"s_cbranch_scc1 {lab}")
        A(f"s_lshl_b32 {s(b + 3)}, {s(b + 2)}, 3")
        A(f"s_lshl_b64 exec, 1, {s(b + 3)}")
        A("s_waitcnt lgkmcnt(0)")
        for k in range(8):
            A(f"v_mov_b32 {v(self.vr)}, {s(self.R[k])}")
            A(f"s_lshl_b64 exec, exec, 1")
        A("s_mov_b64 exec, -1")
        A(f"s_cmp_lg_u32 {s(b + 2)}, 0")
        A(f"s_cbranch_scc1 {lab}x")
        self.cal(56)
        A.label(lab + "x")
        A(f"s_sub_u32 {s(b + 2)}, {s(self.s_t)}, {self.t0}")
        A(f"s_cmp_lg_u32 {s(b + 2)}, 6")
        A(f"s_cbranch_scc1 {lab}")
        self.cal(60)
        A.label(lab)


def mk_stamp(A, cfg, vreg):
    return LightStamp(A, cfg, 92, S_N, vreg, t0=cfg.rawt0) if cfg.timing == 3 else NoStamp()


def flag_val(A, cfg, vr):
    if cfg.timing == 4:
        A(f"s_memrealtime {s(98, 2)}")
        A("s_waitcnt lgkmcnt(0)")
        A(f"s_or_b32 s98, s98, 1")
        A(f"v_mov_b32 {v(vr)}, s98")
    else:
        A(f"v_mov_b32 {v(vr)}, 1")


def gen_sv(A, cfg, nwg):
    LAG = cfg.LAG
    V_GB = 3
    V_XW, V_XR, V_OST, V_FLG, V_FV, V_DB = 6, 7, 8, 9, 10, 11
    V_KST, V_BW, V_MW, V_MW2 = 20, 21, 22, 23
    V_ACC = 24
    V_F = 48
    V_KA, V_G4 = 58, 59
    V_A = 60
    V_B = 72
    V_FREE = 88
    V_PL, V_PR = 60, 80
    V_STAMP = 111 if False else 19
    V_L16B = 18
    V_RDY = 58
    V_SY, V_SY3 = 20, 8
    V_KEEP = 100
    V_VS0, V_VS1 = 6, 7
    L_RES, L_KV, L_MEM, L_X = 0, 81920, 131072, 141312

    def wreg(slot, tile):
        idx = slot * 5 + tile
        return ("a", idx * 8) if idx < 32 else ("v", 112 + (idx - 32) * 8)

    def wtxt(slot, tile):
        if tile == 5:
            return v(V_B + 8 * (slot & 1), 8)
        k, r = wreg(slot, tile)
        return a(r, 8) if k == "a" else v(r, 8)

    g_, c_ = V_T + 2, V_T + 3

    def lane_gc():
        A(f"v_lshrrev_b32 {v(g_)}, 4, {v(V_LANE)}")
        A(f"v_and_b32 {v(c_)}, 15, {v(V_LANE)}")

    def sv_setup():
        for q in range(1, 4):
            A(f"s_add_u32 {s(T)}, {s(S_WAVE)}, {q}")
            A(f"s_and_b32 {s(T)}, {s(T)}, 3")
            A(f"s_lshl_b32 {s(T)}, {s(T)}, 11")
            A(f"s_add_u32 {s(T)}, {s(T)}, {L_MEM}")
            A(f"v_add_u32 {v(V_GB + q - 1)}, {s(T)}, {v(V_L16)}")
        A(f"v_add_u32 {v(V_G4)}, {L_MEM + 8192}, {v(V_L16)}")
        A(f"s_lshl_b32 {s(T)}, {s(S_WAVE)}, 11")
        A(f"s_add_u32 {s(T)}, {s(T)}, {L_MEM}")
        A(f"v_add_u32 {v(V_MW)}, {s(T)}, {v(V_L16)}")
        A(f"s_lshr_b32 {s(T)}, {s(S_WAVE)}, 1")
        A(f"s_lshl_b32 {s(T)}, {s(T)}, 10")
        A(f"s_and_b32 {s(T + 1)}, {s(S_WAVE)}, 1")
        A(f"s_lshl_b32 {s(T + 1)}, {s(T + 1)}, 3")
        A(f"s_add_u32 {s(T)}, {s(T)}, {s(T + 1)}")
        A(f"v_add_u32 {v(V_MW2)}, {s(T)}, {v(V_G4)}")
        A(f"s_mul_i32 {s(T)}, {s(S_WAVE)}, 20480")
        A(f"v_add_u32 {v(V_BW)}, {s(T)}, {v(V_L16)}")
        if cfg.pb:
            A(f"v_and_b32 {v(V_DB)}, 7, {v(V_LANE)}")
            A(f"v_lshlrev_b32 {v(V_DB)}, 2, {v(V_DB)}")
            A(f"v_bfe_u32 {v(V_T)}, {v(V_LANE)}, 3, 2")
            A(f"v_lshl_add_u32 {v(V_DB)}, {v(V_T)}, 7, {v(V_DB)}")
        else:
            A(f"v_min_u32 {v(V_DB)}, 7, {v(V_LANE)}")
            A(f"v_lshlrev_b32 {v(V_DB)}, 2, {v(V_DB)}")
        A(f"s_xor_b32 {s(T)}, {s(S_X)}, 1")
        A(f"s_lshl_b32 {s(T)}, {s(T)}, 19")
        A(f"s_lshl_b32 {s(T + 1)}, {s(S_WAVE)}, 14")
        A(f"s_add_u32 {s(S_PXR)}, {s(T)}, {s(T + 1)}")
        A(f"s_add_u32 {s(S_PXR)}, {s(S_PXR)}, {XP}")

    A.label("ROLE_CS")
    if cfg.timing == 6:
        A("s_mov_b32 s100, s96")
    common_setup(A, cfg, 4)
    sv_setup()
    A(f"s_mov_b32 {s(S_ISV)}, 0")
    A(f"s_mov_b32 {s(S_MA)}, 0xcccccccc")
    A(f"s_mov_b32 {s(S_MA + 1)}, 0xcccccccc")
    A(f"s_mov_b32 {s(S_MB)}, 0x33333333")
    A(f"s_mov_b32 {s(S_MB + 1)}, 0x33333333")
    A(f"s_mov_b32 {s(S_CS)}, 0x3dd53b95")
    lane_gc()
    A(f"v_lshrrev_b32 {v(V_T)}, 2, {v(c_)}")
    A(f"v_add_u32 {v(V_T)}, {v(V_T)}, {v(g_)}")
    A(f"v_and_b32 {v(V_T)}, 3, {v(V_T)}")
    A(f"v_lshlrev_b32 {v(V_XW)}, 3, {v(V_T)}")
    A(f"v_lshl_add_u32 {v(V_XW)}, {v(c_)}, 5, {v(V_XW)}")
    A(f"s_mul_i32 {s(T)}, {s(S_WAVE)}, 1536")
    A(f"s_add_u32 {s(T)}, {s(T)}, {L_X}")
    A(f"v_add_u32 {v(V_XW)}, {s(T)}, {v(V_XW)}")
    A(f"v_add_u32 {v(V_T)}, {v(V_LANE)}, {v(g_)}")
    A(f"v_and_b32 {v(V_T)}, 3, {v(V_T)}")
    A(f"v_lshlrev_b32 {v(V_XR)}, 3, {v(V_T)}")
    A(f"v_lshrrev_b32 {v(V_T)}, 2, {v(V_LANE)}")
    A(f"v_lshl_add_u32 {v(V_XR)}, {v(V_T)}, 5, {v(V_XR)}")
    A(f"v_add_u32 {v(V_XR)}, {L_X}, {v(V_XR)}")
    A(f"s_min_u32 {s(T + 2)}, {s(S_WAVE)}, 2")
    A(f"v_lshrrev_b32 {v(V_T)}, 2, {v(c_)}")
    A(f"v_and_b32 {v(V_T + 1)}, 1, {v(c_)}")
    A(f"v_lshl_add_u32 {v(V_T)}, {v(V_T)}, 1, {v(V_T + 1)}")
    A(f"v_bfe_u32 {v(V_T + 1)}, {v(c_)}, 1, 1")
    A(f"v_lshlrev_b32 {v(V_OST)}, 8, {v(g_)}")
    A(f"v_lshl_add_u32 {v(V_OST)}, {v(V_T)}, 5, {v(V_OST)}")
    A(f"v_xor_b32 {v(V_T + 4)}, 1, {v(V_T + 1)}")
    A(f"v_lshl_add_u32 {v(V_OST)}, {v(V_T + 4)}, 4, {v(V_OST)}")
    A(f"v_lshlrev_b32 {v(V_KST)}, 8, {v(g_)}")
    A(f"v_lshl_add_u32 {v(V_KST)}, {v(V_T + 1)}, 7, {v(V_KST)}")
    A(f"v_and_b32 {v(V_T + 4)}, 3, {v(V_T)}")
    A(f"v_lshl_add_u32 {v(V_KST)}, {v(V_T + 4)}, 5, {v(V_KST)}")
    A(f"v_lshrrev_b32 {v(V_T + 4)}, 2, {v(V_T)}")
    A(f"v_lshl_add_u32 {v(V_KST)}, {v(V_T + 4)}, 4, {v(V_KST)}")
    A(f"v_min_u32 {v(V_T)}, 5, {v(V_LANE)}")
    A(f"s_mul_i32 {s(T)}, {s(S_ROLE)}, 3")
    A(f"v_add_u32 {v(V_FLG)}, {s(T)}, {v(V_T)}")
    A(f"v_lshlrev_b32 {v(V_FLG)}, 2, {v(V_FLG)}")
    A(f"v_add_u32 {v(V_T + 1)}, {65536 - 12}, {v(V_FLG)}")
    A(f"v_cmp_lt_u32 vcc, 2, {v(V_T)}")
    A(f"v_cndmask_b32 {v(V_FLG)}, {v(V_FLG)}, {v(V_T + 1)}, vcc")
    A(f"s_mul_i32 {s(S_HOFF)}, {s(S_ROLE)}, 12288")
    A(f"s_add_u32 {s(S_HOFF)}, {s(S_HOFF)}, {KX}")
    A(f"s_mul_i32 {s(T)}, {s(S_J)}, 3072")
    A(f"s_lshl_b32 {s(T + 1)}, {s(T + 2)}, 10")
    A(f"s_add_u32 {s(T)}, {s(T)}, {s(T + 1)}")
    A(f"s_add_u32 {s(T)}, {s(T)}, {s(S_XB)}")
    A(f"s_add_u32 {s(S_OIH)}, {s(T)}, {OI_OFF}")
    A(f"s_add_u32 {s(S_VMH)}, {s(T)}, {VM_OFF}")
    A(f"s_mul_i32 {s(S_XGH)}, {s(S_ROLE)}, {XG2_HEAD}")
    A(f"s_add_u32 {s(S_XGH)}, {s(S_XGH)}, {XG}")
    A(f"s_lshl_b32 {s(S_FXH)}, {s(S_ROLE)}, 5")
    A(f"s_lshl_b32 {s(T + 1)}, {s(T + 2)}, 2")
    A(f"s_add_u32 {s(S_FXH)}, {s(S_FXH)}, {FXG}")
    A(f"s_lshr_b32 {s(T)}, {s(S_J)}, 2")
    A(f"s_lshl_b32 {s(T)}, {s(T)}, 7")
    A(f"s_and_b32 {s(T + 3)}, {s(S_J)}, 3")
    A(f"s_mul_i32 {s(T + 3)}, {s(T + 3)}, 12")
    A(f"s_add_u32 {s(T)}, {s(T)}, {s(T + 3)}")
    A(f"s_add_u32 {s(T)}, {s(T)}, {s(T + 1)}")
    A(f"s_add_u32 {s(T)}, {s(T)}, {s(S_XB)}")
    A(f"s_add_u32 {s(S_DOH)}, {s(T)}, {DO_OFF}")
    lab = A.newlabel("si")
    A(f"s_cmp_eq_u32 {s(S_WAVE)}, 3")
    A(f"s_cbranch_scc1 {lab}")
    A(f"v_mov_b32 {v(V_T)}, -1")
    A(f"v_mov_b32 {v(V_T + 1)}, 0")
    lst = []
    for k in range(8):
        lst.append(f"s_add_u32 {s(T)}, {s(S_OIH)}, {k * 49152}")
        lst.append(f"buffer_store_dword {v(V_T)}, {v(V_L16)}, {WS}, {s(T)} offen")
    lst.append("s_mov_b64 exec, 1")
    lst.append(f"buffer_store_dword {v(V_T + 1)}, {v(V_L16)}, {WS}, {s(S_DOH)} offen")
    lst.append(f"buffer_store_dword {v(V_T + 1)}, {v(V_L16)}, {WS}, {s(S_DOH)} offen offset:512")
    lst.append("s_mov_b64 exec, -1")
    lstore(A, lst)
    A.label(lab)
    V_DA = V_FREE + 16
    S_O0, S_O1 = S_KSRC, S_KLDS
    A(f"s_mul_i32 {s(S_O0)}, {s(S_ROLE)}, 384")
    A(f"s_mov_b32 {s(S_O1)}, {s(S_O0)}")

    def dma_addr(isv):
        for i in range(3):
            A(f"v_add_u32 {v(V_T)}, {64 * i}, {v(V_LANE)}")
            A(f"v_mul_u32_u24 {v(V_T + 1)}, 2731, {v(V_T)}")
            A(f"v_lshrrev_b32 {v(V_T + 1)}, 16, {v(V_T + 1)}")
            A(f"v_mul_u32_u24 {v(V_T + 4)}, 24, {v(V_T + 1)}")
            A(f"v_sub_u32 {v(V_T)}, {v(V_T)}, {v(V_T + 4)}")
            A(f"v_mul_u32_u24 {v(V_DA + i)}, 12288, {v(V_T + 1)}")
            A(f"v_lshl_add_u32 {v(V_DA + i)}, {v(V_T)}, 4, {v(V_DA + i)}")
            if isv:
                A(f"v_mul_u32_u24 {v(V_T + 1)}, 43, {v(V_T)}")
                A(f"v_lshrrev_b32 {v(V_T + 1)}, 8, {v(V_T + 1)}")
                A(f"v_mul_u32_u24 {v(V_T + 1)}, 96, {v(V_T + 1)}")
                A(f"v_add_u32 {v(V_DA + i)}, {v(V_DA + i)}, {v(V_T + 1)}")
    dma_addr(False)
    make_srd(A, SRD_W, P_WQ, 640 * 12288)
    make_srd(A, 52, P_WK, 640 * 12288)
    A("s_branch SV_LOAD")

    A.label("ROLE_CV")
    common_setup(A, cfg, 3)
    sv_setup()
    A(f"s_mov_b32 {s(S_ISV)}, 1")
    for r in (V_OST, V_FLG, V_KST):
        A(f"v_mov_b32 {v(r)}, 0")
    A(f"s_and_b32 {s(T + 2)}, {s(S_WAVE)}, 1")
    A(f"s_lshl_b32 {s(T)}, {s(T + 2)}, 11")
    A(f"v_add_u32 {v(V_VS0)}, {s(T)}, {v(V_L16)}")
    A(f"s_lshl_b32 {s(T)}, {s(T + 2)}, 3")
    A(f"s_add_u32 {s(T)}, {s(T)}, 1024")
    A(f"v_add_u32 {v(V_VS1)}, {s(T)}, {v(V_L16)}")
    A(f"s_lshr_b32 {s(T + 1)}, {s(S_WAVE)}, 1")
    A(f"s_lshl_b32 {s(T)}, {s(S_J)}, 1")
    A(f"s_add_u32 {s(T)}, {s(T)}, {s(T + 1)}")
    A(f"s_mul_i32 {s(T)}, {s(T)}, 3072")
    A(f"s_add_u32 {s(T)}, {s(T)}, {s(S_XB)}")
    A(f"s_add_u32 {s(S_VMH)}, {s(T)}, {VM_OFF}")
    A(f"s_lshl_b32 {s(T)}, {s(S_ROLE)}, 1")
    A(f"s_add_u32 {s(T)}, {s(T)}, {s(T + 1)}")
    A(f"s_mul_i32 {s(S_XGH)}, {s(T)}, {XG2_HEAD}")
    A(f"s_add_u32 {s(S_XGH)}, {s(S_XGH)}, {XG + 3072}")
    A(f"s_lshl_b32 {s(S_FXH)}, {s(T)}, 5")
    A(f"s_lshl_b32 {s(T + 1)}, {s(T + 2)}, 2")
    A(f"s_add_u32 {s(S_FXH)}, {s(S_FXH)}, {s(T + 1)}")
    A(f"s_add_u32 {s(S_FXH)}, {s(S_FXH)}, {FXG + 4}")
    for i in range(4):
        A(f"v_mov_b32 {v(V_T + i)}, -1")
    lst = []
    for k in range(8):
        lst.append(f"s_add_u32 {s(T)}, {s(S_VMH)}, {k * 49152}")
        lst.append(f"buffer_store_dwordx4 {v(V_T, 4)}, {v(V_VS0)}, {WS}, {s(T)} offen")
        lst.append(f"buffer_store_dwordx2 {v(V_T, 2)}, {v(V_VS1)}, {WS}, {s(T)} offen")
    lstore(A, lst)
    A(f"s_mul_i32 {s(S_O0)}, {s(S_ROLE)}, 768")
    A(f"s_add_u32 {s(S_O1)}, {s(S_O0)}, 96")
    dma_addr(True)
    make_srd(A, SRD_W, P_WV, 640 * 12288)
    make_srd(A, 52, P_WV, 640 * 12288)

    A.label("SV_LOAD")
    init_barrier_arrive(A, V_T)
    V_PARK = 24
    V_TR = V_DA + 3
    S_RA, S_RB, S_LW = S_FLG1, S_FLG2, S_DEF
    A(f"s_and_b32 {s(T)}, {s(S_WAVE)}, 1")
    A(f"s_mul_i32 {s(T)}, {s(T)}, {16 * 12288}")
    A(f"s_lshr_b32 {s(T + 1)}, {s(S_WAVE)}, 1")
    A(f"s_mul_i32 {s(S_RA)}, {s(T + 1)}, {32 * 12288}")
    A(f"s_add_u32 {s(S_RA)}, {s(S_RA)}, {s(T)}")
    A(f"s_mul_i32 {s(S_RB)}, {s(T + 1)}, {160 * 12288}")
    A(f"s_add_u32 {s(S_RB)}, {s(S_RB)}, {s(T)}")
    A(f"s_mul_i32 {s(S_LW)}, {s(S_WAVE)}, 6144")
    lane_gc()
    A(f"v_and_b32 {v(V_T)}, 1, {v(g_)}")
    A(f"v_lshlrev_b32 {v(V_T)}, 5, {v(V_T)}")
    A(f"v_lshrrev_b32 {v(V_T + 1)}, 1, {v(g_)}")
    A(f"v_lshl_add_u32 {v(V_T)}, {v(V_T + 1)}, 3, {v(V_T)}")
    A(f"v_bfe_u32 {v(V_T + 1)}, {v(V_LANE)}, 2, 1")
    A(f"v_add_u32 {v(V_T)}, {v(V_T)}, {v(V_T + 1)}")
    A(f"v_bfe_u32 {v(V_T + 1)}, {v(V_LANE)}, 3, 1")
    A(f"v_lshl_add_u32 {v(V_T)}, {v(V_T + 1)}, 2, {v(V_T)}")
    A(f"v_mul_u32_u24 {v(V_TR)}, 384, {v(V_T)}")
    A(f"v_and_b32 {v(V_T + 1)}, 3, {v(V_LANE)}")
    A(f"v_lshl_add_u32 {v(V_TR)}, {v(V_T + 1)}, 3, {v(V_TR)}")
    A(f"s_mul_i32 {s(T)}, {s(S_WAVE)}, 96")
    A(f"v_add_u32 {v(V_TR)}, {s(T)}, {v(V_TR)}")
    stages = [(F, b) for F in range(10) for b in range(2)]
    NB = 6

    def mp0(F):
        return 5 * (F >> 1) + 2 * (F & 1) if F < 8 else (4 if F == 8 else 14)

    def st_dma(k):
        F, b = stages[k]
        A(f"s_add_u32 {s(T)}, {s(S_RA if F < 8 else S_RB)}, {s(S_O1 if b else S_O0)}")
        for i in range(6):
            A(f"s_add_u32 m0, {s(S_LW)}, {(k % NB) * 24576 + i * 1024}")
            A(f"s_add_u32 {s(T + 1)}, {s(T)}, {(32 * mp0(F) + 8 * (i // 3)) * 12288}")
            A(f"buffer_load_dwordx4 {v(V_DA + i % 3)}, {s(52 if b else SRD_W, 4)}, {s(T + 1)} offen lds")

    def st_read(k, slot):
        F, b = stages[k]
        for p in range(3):
            tile = 3 * b + p
            kind, r = wreg(slot, tile) if tile < 5 else ("v", V_PARK + 8 * slot)
            f = a if kind == "a" else v
            for RH in range(2):
                for hh in range(2):
                    A(f"ds_read_b64_tr_b16 {f(r + 4 * RH + 2 * hh, 2)}, {v(V_T)} offset:{(16 * RH + 2 * hh) * 384 + 32 * p}")
    for k in range(NB - 1):
        st_dma(k)
    for k in range(20):
        F, b = stages[k]
        A(f"s_waitcnt vmcnt({6 * min(NB - 2, 19 - k)})")
        A("s_barrier")
        if k + NB - 1 < 20:
            st_dma(k + NB - 1)
        A(f"v_add_u32 {v(V_T)}, {(k % NB) * 24576}, {v(V_TR)}")
        if F < 8:
            done = A.newlabel("ld")
            labs = [A.newlabel("lw") for _ in range(4)]
            for w in range(1, 4):
                A(f"s_cmp_eq_u32 {s(S_WAVE)}, {w}")
                A(f"s_cbranch_scc1 {labs[w]}")
            for w in range(4):
                A.label(labs[w])
                st_read(k, 2 * (((F >> 1) - w) & 3) + (F & 1))
                if w < 3:
                    A(f"s_branch {done}")
            A.label(done)
        else:
            st_read(k, F)
        A("s_waitcnt lgkmcnt(0)")
    A("s_barrier")
    for sl in range(10):
        for hf in range(2):
            A(f"ds_write_b128 {v(V_BW)}, {v(V_PARK + 8 * sl + 4 * hf, 4)} offset:{sl * 2048 + hf * 1024}")
    A("s_waitcnt lgkmcnt(0)")
    A(f"v_add_u32 {v(V_G4)}, {L_MEM + 8192}, {v(V_L16)}")
    A("s_barrier")
    init_barrier_wait(A, V_T, nwg, cfg)
    near_half(A, cfg, S_PXR)

    S_C0, S_C1 = 4, 5
    L_SY = L_X + 6144

    def fe_scalars(A, rl, rt, tag, t1):
        A(f"s_and_b32 {s(T)}, {s(rt)}, 3")
        A(f"s_lshl2_add_u32 {s(T)}, {s(rl)}, {s(T)}")
        A(f"s_lshl_b32 {s(S_PXA)}, {s(T)}, 16")
        A(f"s_add_u32 {s(S_PXA)}, {s(S_PXA)}, {s(S_PXR)}")
        A(f"s_mul_i32 {s(S_PLA)}, {s(T)}, 20480")
        A(f"s_add_u32 {s(S_PLA)}, {s(S_PLA)}, {s(S_PLW)}")
        A(f"s_lshl_b32 {s(S_DPA)}, {s(rl)}, 9")
        A(f"s_add_u32 {s(S_DPA)}, {s(S_DPA)}, {s(S_DPW)}")
        A(f"s_bfe_u32 {s(tag)}, {s(rt)}, 0x10002")
        A(f"s_add_u32 {s(t1)}, {s(rt)}, 1")

    def cur_local(A, isv):
        A(f"s_and_b32 {s(T)}, {s(S_T)}, 3")
        A(f"s_lshl2_add_u32 {s(T)}, {s(S_L)}, {s(T)}")
        A(f"s_mul_i32 {s(T)}, {s(T)}, 49152")
        A(f"s_add_u32 {s(S_VMA)}, {s(T)}, {s(S_VMH)}")
        if not isv:
            A(f"s_add_u32 {s(S_OIA)}, {s(T)}, {s(S_OIH)}")
            A(f"s_lshl_b32 {s(T)}, {s(S_L)}, 9")
            A(f"s_add_u32 {s(S_DOA)}, {s(T)}, {s(S_DOH)}")

    def cur_global(A):
        A(f"s_lshl_b32 {s(T)}, {s(S_L)}, 6")
        A(f"s_add_u32 {s(T)}, {s(T)}, {s(S_T)}")
        A(f"s_mul_i32 {s(S_KP)}, {s(T)}, {XG2_STEP}")
        A(f"s_add_u32 {s(S_KP)}, {s(S_KP)}, {s(S_XGH)}")
        A(f"s_lshl_b32 {s(T)}, {s(T)}, 10")
        A(f"s_add_u32 {s(S_KF)}, {s(T)}, {s(S_FXH)}")

    def kv_src(A, rl, rt):
        A(f"s_mul_i32 {s(S_KSRC)}, {s(rt)}, {QKV_SEG if not cfg.kvhit else 0}")
        A(f"s_add_u32 {s(S_KSRC)}, {s(S_KSRC)}, {s(S_HOFF)}")
        if cfg.lstride:
            A(f"s_mul_i32 {s(T)}, {s(rl)}, {cfg.lstride}")
            A(f"s_add_u32 {s(S_KSRC)}, {s(S_KSRC)}, {s(T)}")

    def flag_row_of(A, dst, rl, rt):
        A(f"s_lshl_b32 {s(dst)}, {s(rl)}, 6")
        A(f"s_add_u32 {s(dst)}, {s(dst)}, {s(rt)}")
        A(f"s_lshl_b32 {s(dst)}, {s(dst)}, 9")
        A(f"s_add_u32 {s(dst)}, {s(dst)}, {flag_row(F_K)}")

    def next_item(A, rl, rt):
        A(f"s_sub_u32 {s(T)}, {s(S_C0)}, {s(S_C1)}")
        A(f"s_cmp_gt_i32 {s(T)}, {LAG}")
        A(f"s_cselect_b32 {s(rl)}, 1, 0")
        A(f"s_cmp_eq_u32 {s(S_C0)}, 64")
        A(f"s_cselect_b32 {s(rl)}, 1, {s(rl)}")
        A(f"s_cmp_eq_u32 {s(rl)}, 0")
        A(f"s_cselect_b32 {s(rt)}, {s(S_C0)}, {s(S_C1)}")
        A(f"s_addc_u32 {s(S_C0)}, {s(S_C0)}, 0")
        A(f"s_add_u32 {s(S_C1)}, {s(S_C1)}, {s(rl)}")

    def kv_dma():
        out = []
        for i in range(24):
            e = []
            if i % 4 == 0:
                e += [f"s_add_u32 m0, {s(S_KLDS)}, {i * 1024}", f"s_add_u32 {s(T + 7)}, {s(S_KSRC)}, {(i % 12) * 1024 + (i // 12) * QKV_SZ}"]
            e.append(f"buffer_load_dwordx4 {v(V_L16)}, {WS}, {s(T + 7)} offen offset:{(i % 4) * 1024} {DF[cfg.dfl]}lds")
            out.append(e)
        return out

    def flag_spin(row):
        top = A.newlabel("fl")
        A.label(top)
        A(f"buffer_load_dword {v(V_T)}, {v(V_FLG)}, {WS}, {s(row)} offen sc1")
        A("s_waitcnt vmcnt(0)")
        A(f"v_cmp_eq_u32 vcc, 0, {v(V_T)}")
        poll_tail(A, top, sleep=1)

    S_PLW, S_DPW = 6, 7
    A(f"s_mul_i32 {s(S_PLW)}, {s(S_WAVE)}, 5120")
    A(f"s_add_u32 {s(S_PLW)}, {s(S_PLW)}, {s(S_XB)}")
    A(f"s_lshl_b32 {s(S_DPW)}, {s(S_WAVE)}, 7" if not cfg.pb else f"s_mov_b32 {s(S_DPW)}, 0")
    A(f"s_add_u32 {s(S_DPW)}, {s(S_DPW)}, {s(S_XB)}")
    A(f"s_add_u32 {s(S_DPW)}, {s(S_DPW)}, {DP_OFF}")
    A(f"v_add_u32 {v(V_L16B)}, 4096, {v(V_L16)}")
    A(f"s_mov_b32 {s(S_N)}, 0")
    A(f"s_mov_b32 {s(S_C0)}, 0")
    A(f"s_mov_b32 {s(S_C1)}, 0")
    A(f"s_mov_b32 {s(S_KP)}, {NONE}")
    A(f"s_mov_b32 {s(S_FP)}, {NONE}")
    A(f"s_mov_b32 {s(S_KF)}, {NONE}")
    next_item(A, S_L, S_T)
    fe_scalars(A, S_L, S_T, S_TAG, S_T1)
    stamp = mk_stamp(A, cfg, V_STAMP)
    A(f"s_cmp_lg_u32 {s(S_ISV)}, 0")
    A("s_cbranch_scc1 CV_START")

    order = [4, 0, 1, 2, 3]

    def pld(base, i, sa):
        return f"buffer_load_dwordx4 {v(base + 4 * i, 4)}, {v(V_L16 if i < 4 else V_L16B)}, {WS}, {s(sa)} offen offset:{(i % 4) * 1024} sc1"

    def front(L, ool, top, fast=None, poller=None):
        again, retry, join = A.newlabel("fa"), A.newlabel("fr"), A.newlabel("fj")
        A.label(top)
        if not fast:
            for i in range(24):
                A(f"v_mov_b32 {v(V_ACC + i)}, 0")
        if not cfg.pb:
            doorbell(A, cfg, V_DB, S_DPA, V_T)
        else:
            if poller == "w0":
                lab = A.newlabel("np")
                A(f"s_cmp_lg_u32 {s(S_WAVE)}, 0")
                A(f"s_cbranch_scc1 {lab}")
            if poller == "me":
                A(f"v_mov_b32 {v(V_T + 2)}, {s(S_N)}")
            if poller:
                doorbell(A, cfg, V_DB, S_DPA, V_T)
            if poller == "w0":
                A.label_nf(lab)
            if poller == "me":
                A(f"ds_write_b32 {v(V_RDY)}, {v(V_T + 2)}")
                for i in order:
                    A(pld(V_PL, i, S_PLA))
            A("s_barrier")
        stamp(0)
        if poller != "me":
            for i in order:
                A(pld(V_PL, i, S_PLA))
        if fast:
            A.nf(f"s_cbranch_vccz {fast}")
            for i in range(24):
                A(f"v_mov_b32 {v(V_ACC + i)}, 0")
        A(f"s_waitcnt vmcnt({cfg.rw})")
        for i in order:
            A(pld(V_PR, i, S_PXA))
        A.label_nf(join)
        stamp(7)
        A.label_nf(again)
        TA = V_T + 4
        for n, i in enumerate(order):
            A(f"s_waitcnt vmcnt({4 - n})")
            A(f"v_pk_add_f32 {v(V_T, 2)}, {v(V_PL + 4 * i, 2)}, {v(V_PR + 4 * i, 2)}")
            A(f"v_pk_add_f32 {v(V_T + 2, 2)}, {v(V_PL + 4 * i + 2, 2)}, {v(V_PR + 4 * i + 2, 2)}")
            A(f"v_bitop3_b32 {v(TA + (1 if n else 0))}, {v(V_PL + 4 * i)}, {v(V_PR + 4 * i)}, {s(S_TAG)} bitop3:0x7e")
            A(f"v_cvt_pk_bf16_f32 {v(V_F + 2 * i)}, {v(V_T)}, {v(V_T + 1)}")
            A(f"v_cvt_pk_bf16_f32 {v(V_F + 2 * i + 1)}, {v(V_T + 2)}, {v(V_T + 3)}")
            if n == 4:
                A(f"v_bitop3_b32 {v(TA)}, {v(TA)}, {v(TA + 1)}, 1 bitop3:0xa8")
            elif n:
                A(f"v_or_b32 {v(TA)}, {v(TA)}, {v(TA + 1)}")
            if n == 4:
                A(f"v_cmp_ne_u32 vcc, 0, {v(TA)}")
            if i == 4:
                A(f"ds_write_b64 {v(V_MW2)}, {v(V_F + 8, 2)}")
            elif i & 1:
                A(f"ds_write_b128 {v(V_MW)}, {v(V_F + 4 * (i >> 1), 4)} offset:{(i >> 1) * 1024}")
        A.nf(f"s_cbranch_vccnz {retry}")
        L.q = ["mw"]
        stamp(1)

        def slow():
            A.label(retry)
            sk = A.newlabel("sk")
            A(f"v_bitop3_b32 {v(V_T)}, {v(V_PL)}, {v(V_PL + 4)}, {s(S_TAG)} bitop3:0x7e")
            A(f"v_bitop3_b32 {v(V_T + 1)}, {v(V_PL + 8)}, {v(V_PL + 12)}, {s(S_TAG)} bitop3:0x7e")
            A(f"v_xor_b32 {v(V_T + 2)}, {s(S_TAG)}, {v(V_PL + 16)}")
            A(f"v_or3_b32 {v(V_T)}, {v(V_T)}, {v(V_T + 1)}, {v(V_T + 2)}")
            A(f"v_and_b32 {v(V_T)}, 1, {v(V_T)}")
            A(f"v_cmp_ne_u32 vcc, 0, {v(V_T)}")
            A.nf(f"s_cbranch_vccz {sk}")
            for i in order:
                A(pld(V_PL, i, S_PLA))
            if cfg.timing == 5:
                A("s_add_u32 s93, s93, 1")
            A.label_nf(sk)
            for i in order:
                A(pld(V_PR, i, S_PXA))
            if cfg.timing == 5:
                A("s_add_u32 s92, s92, 1")
            spin_fail(A)
            A("s_waitcnt lgkmcnt(0)")
            A(f"s_branch {again}")
            if fast:
                A.label(fast)
                for i in order:
                    A(pld(V_PR, i, S_PXA))
                for i in range(24):
                    A(f"v_mov_b32 {v(V_ACC + i)}, 0")
                A(f"s_branch {join}")
        ool.append(slow)

    def afrag(sl):
        return v(V_F + 4 * sl, 4) if sl < 2 else v(V_A + 4 * ((sl - 2) % 3), 4)

    def gemm(L, tasks, tail_order, hi=()):
        sq = [(0, t_) for t_ in range(5)] + [(1, t_) for t_ in range(5)] + [(0, 5), (1, 5)]
        sq += [(sl, t_) for sl in range(2, 8) for t_ in range(6)]
        sq += tail_order

        def rdB(sl):
            return [(("B", sl), f"ds_read_b128 {v(V_B + 8 * (sl & 1) + 4 * hf, 4)}, {v(V_BW)} offset:{sl * 2048 + hf * 1024}") for hf in range(2)]

        def rdA(sl):
            ad = V_GB + sl // 2 - 1 if sl < 8 else V_G4
            return [(("A", sl), f"ds_read_b128 {afrag(sl)}, {v(ad)} offset:{(sl & 1) * 1024}")]
        seq = []
        rd = [Task(cfg.bar1, rdA(2)), Task(0, rdB(0) + rdB(1)), Task(cfg.bar1, rdA(3) + rdA(4))]
        for k, (sl, t_) in enumerate(sq):
            seq.append((f"{SM} {v(V_ACC + 4 * t_, 4)}, {afrag(sl)}, {wtxt(sl, t_)}, {v(V_IDX)}", [("A", sl)] + ([("B", sl)] if t_ == 5 else [])))
            if t_ == 5 and sl + 2 < 10:
                rd.append(Task(k, (rdA(sl + 3) if 2 <= sl < 7 else []) + rdB(sl + 2)))

        def bar():
            L.wait("mw")
            A("s_barrier")
            stamp(5)
        sched(A, L, seq, list(hi) + rd + list(tasks), pre={cfg.bar1: bar})
        stamp(6)

    def pend_window(stores):
        def f1():
            lab = A.newlabel("pf")
            A(f"s_cmp_eq_u32 {s(S_FP)}, {NONE}")
            A.nf(f"s_cbranch_scc1 {lab}")
            flag_val(A, cfg, V_T + 5)
            A("s_mov_b64 exec, 1")
            A(f"buffer_store_dword {v(V_T + 5)}, {v(V_L16)}, {WS}, {s(S_FP)} offen sc1")
            A("s_mov_b64 exec, -1")
            A(f"s_mov_b32 {s(S_FP)}, {NONE}")
            A.label_nf(lab)

        def f2():
            lab = A.newlabel("pk")
            A(f"s_cmp_eq_u32 {s(S_KP)}, {NONE}")
            A.nf(f"s_cbranch_scc1 {lab}")
            for x in stores:
                A(x)
            A(f"s_mov_b32 {s(S_FP)}, {s(S_KF)}")
            A(f"s_mov_b32 {s(S_KP)}, {NONE}")
            A.label_nf(lab)
        return f1, f2

    def advance():
        A(f"s_add_u32 {s(S_N)}, {s(S_N)}, 1")
        A(f"s_mov_b32 {s(S_L)}, {s(S_NL)}")
        A(f"s_mov_b32 {s(S_T)}, {s(S_NT)}")
        A(f"s_mov_b32 {s(S_TAG)}, {s(S_NTAG)}")
        A(f"s_mov_b32 {s(S_T1)}, {s(S_NT1)}")

    def qk_epi(L):
        def items(p):
            q, k = V_ACC + 4 * p, V_ACC + 4 * (3 + p)
            return [f"v_add_f32 {v(q)}, {v(q)}, {v(q + 1)}", f"v_add_f32 {v(q + 2)}, {v(q + 2)}, {v(q + 3)}",
                    f"v_add_f32 {v(k)}, {v(k)}, {v(k + 1)}", f"v_add_f32 {v(k + 2)}, {v(k + 2)}, {v(k + 3)}",
                    f"v_cvt_pk_bf16_f32 {v(k + 1)}, {v(q)}, {v(q + 2)}", f"v_cvt_pk_bf16_f32 {v(k)}, {v(k)}, {v(k + 2)}",
                    ("xw", f"ds_write_b64 {v(V_XW)}, {v(k, 2)} offset:{p * 512}")]
        return [Task(53, items(0)), Task(60, items(1)), Task(60, items(2))]
    qk_tail = []
    for p in range(3):
        qk_tail += [(8, p), (8, 3 + p), (9, p), (9, 3 + p)]

    if cfg.timing == 5:
        for k in range(5):
            A(f"s_mov_b32 {s(92 + k)}, 0")
    A(f"s_cmp_eq_u32 {s(S_WAVE)}, 3")
    A("s_cbranch_scc1 CH_START")
    A(f"s_lshl_b32 {s(T)}, {s(S_WAVE)}, 2")
    A(f"s_add_u32 {s(T)}, {s(T)}, {L_SY}")
    A(f"v_mov_b32 {v(V_SY)}, {s(T)}")
    A(f"v_mov_b32 {v(V_T)}, 0")
    A(f"ds_write_b32 {v(V_SY)}, {v(V_T)}")
    A(f"v_add_u32 {v(V_KA)}, {L_KV + 24576}, {v(V_L16)}")
    A(f"v_mov_b32 {v(V_FLG)}, {L_SY + 12}")
    A(f"s_lshl_b32 {s(S_XGH)}, {s(S_WAVE)}, 12")
    A(f"s_add_u32 {s(S_HOFF)}, {s(S_HOFF)}, {s(S_XGH)}")
    A(f"s_add_u32 {s(S_KLDS)}, {s(S_XGH)}, {L_KV}")
    A(f"s_add_u32 {s(S_FLG1)}, {s(S_KLDS)}, {s(S_KLDS)}")
    A(f"s_add_u32 {s(S_FLG1)}, {s(S_FLG1)}, 24576")
    A("s_mov_b64 vcc, -1")
    A("s_waitcnt lgkmcnt(0)")
    if cfg.timing:
        A(f"s_memrealtime {s(S_T0, 2)}")
        if cfg.timing == 6:
            A("s_memtime s[92:93]")
        A("s_waitcnt lgkmcnt(0)")
    stamp.init()
    KXR = [V_FREE + 4 * i for i in range(6)] + [V_F, V_F + 4] + [V_B + 4 * i for i in range(4)]
    QP = "row_mask:0xf bank_mask:0xf"

    def s_loop(sx, LS):
        L = Lds(A)
        ool = []
        front(L, ool, "CS_LOOP" + sx, "CS_FAST" + sx)
        fill = [f"v_xor_b32 {v(V_KA)}, {L_KV ^ (L_KV + 24576)}, {v(V_KA)}"]
        fill += groups(cap(lambda c: next_item(c, S_NL, S_NT)))
        if cfg.dsh and not cfg.nodma:
            fill += cap(lambda c: kv_src(c, S_NL, S_NT)) + [f"s_sub_u32 {s(S_KLDS)}, {s(S_FLG1)}, {s(S_KLDS)}", f"s_mov_b32 m0, {s(S_KLDS)}"]
            fill += cap(lambda c: cur_local(c, False))
            fill += [f"buffer_load_dwordx4 {v(V_L16)}, {WS}, {s(S_KSRC)} offen offset:{i * 1024} {DF[cfg.dfl]}lds" for i in range(4)]
        else:
            fill += cap(lambda c: cur_local(c, False))
        fill += cap(lambda c: fe_scalars(c, S_NL, S_NT, S_NTAG, S_NT1))
        fill += [f"v_add_u32 {v(V_T + 5)}, {s(S_XGH)}, {v(V_KA)}", f"v_mov_b32 {v(V_T + 4)}, {s(S_T1)}", f"v_mov_b32 {v(V_T + 3)}, 0"]

        def rdK(i):
            return (("K", i), f"ds_read_b128 {v(KXR[i], 4)}, {v(V_KA)} offset:{i * 1024}")
        epi = qk_epi(L)
        gemm(L, [Task(0, fill), Task(14, [rdK(i) for i in range(8)])] + epi[1:], qk_tail, hi=epi[:1])
        skip = A.newlabel("last")
        A(f"s_cmp_eq_u32 {s(S_T)}, 63")
        A.nf(f"s_cbranch_scc1 {skip}")
        L.op(*rdK(8))
        L.op(*rdK(9))
        L.wait("xw")
        A("s_barrier")
        stamp(2)
        X = V_ACC
        S0, S1, SMm = V_A, V_A + 4, V_A + 8
        VX, VM = V_FREE, V_FREE + 16
        PA, PB, PM, TT, O = 24, 28, 32, 34, 36
        DBV = V_FV

        def rdX(j):
            return [(("X", j), f"ds_read_b64_tr_b16 {v(X + 4 * j + 2 * ih, 2)}, {v(V_XR)} offset:{j * 1024 + ih * 512}") for ih in range(2)]
        for j in range(4):
            for it in rdX(j):
                L.op(*it)
        vmld = f"buffer_load_dwordx4 {v(VM, 4)}, {v(V_L16)}, {WS}, {s(S_VMA)} offen sc1"
        dbld = f"buffer_load_dword {v(DBV)}, {v(V_DB)}, {WS}, {s(S_DPA)} offen sc1"
        ring = f"s_mov_b64 exec, 1\nbuffer_store_dword {v(V_T + 4)}, {v(V_L16)}, {WS}, {s(S_DOA)} offen{LS}\ns_mov_b64 exec, -1"
        nst = [0]

        def do_vm():
            A(vmld)
            nst[0] = 0

        def do_ring():
            A(ring)
            nst[0] += 1
        seq = []
        for j in range(6):
            for acc, aop, tg in ((S0, KXR[2 * j], ("K", 2 * j)), (S1, KXR[2 * j + 1], ("K", 2 * j + 1)), (SMm, X + 4 * j, ("X", j))):
                seq.append((f"{MF} {v(acc, 4)}, {v(aop, 4)}, {v(X + 4 * j, 4)}, {'0' if j == 0 else v(acc, 4)}", [("X", j), tg]))
        tk = [Task(0, rdX(4) + [rdK(10), rdK(11)] + rdX(5)),
              Task(6, [("vx", f"ds_read_b128 {v(VX + 4 * i, 4)}, {v(V_T + 5)} offset:{12288 + i * 1024}") for i in range(4)]),
              Task(0, [f"s_mov_b64 vcc, {s(S_MA, 2)}"])]
        if cfg.vmj < 18:
            tk.append(Task(max(cfg.vmj, 9), [(16, do_vm)]))
        if cfg.dbo < 18:
            tk.append(Task(cfg.dbo, [(16, do_ring)]))
        sched(A, L, seq, tk, nvalu=2)

        def mark(k):
            if cfg.vmj == 18 + k:
                do_vm()
            if cfg.dbo == 18 + k:
                do_ring()
        mark(0)
        Y = [S0 + i for i in range(4)]
        Z = SMm
        ZR, ZERO = V_T + 2, V_T + 3
        for i in range(4):
            A(f"v_cndmask_b32_dpp {v(Y[i])}, {v(S1 + i)}, {v(S0 + i)}, vcc quad_perm:[2,3,2,3] {QP}")
        A(f"v_max3_f32 {v(V_T)}, {v(Y[0])}, {v(Y[1])}, {v(Y[2])}")
        A(f"v_cndmask_b32_dpp {v(Z)}, {v(SMm + 1)}, {v(SMm)}, vcc quad_perm:[2,3,2,3] {QP}")
        A(f"v_max3_f32 {v(V_T)}, {v(V_T)}, {v(Y[3])}, {v(Z)}")
        mark(1)
        A(f"v_max_f32_dpp {v(V_T + 1)}, {v(V_T)}, {v(V_T)} quad_perm:[2,3,0,1] {QP}")
        A(f"v_max_f32_dpp {v(V_T)}, {v(V_T)}, {v(V_T)} quad_perm:[2,3,0,1] {QP}")
        A(f"v_permlane32_swap_b32 {v(V_T)}, {v(V_T + 1)}")
        A(f"v_max_f32 {v(S1)}, {v(V_T)}, {v(V_T + 1)}")
        A(f"v_max_f32 {v(V_T)}, {v(V_T)}, {v(V_T + 1)}")
        mark(2)
        A(f"v_permlane16_swap_b32 {v(V_T)}, {v(S1)}")
        A(f"v_max_f32 {v(V_T)}, {v(V_T)}, {v(S1)}")
        A(f"v_mul_f32 {v(V_T)}, {s(S_CS)}, {v(V_T)}")
        S5 = Y + [Z]
        for r in S5:
            A(f"v_fma_f32 {v(r)}, {v(r)}, {s(S_CS)}, -{v(V_T)}")
        for r in S5:
            A(f"v_exp_f32 {v(r)}, {v(r)}")
        mark(3)
        A(f"v_cvt_pk_bf16_f32 {v(TT)}, {v(Y[0])}, {v(Y[1])}")
        A(f"v_cvt_pk_bf16_f32 {v(TT + 1)}, {v(Y[2])}, {v(Y[3])}")
        A(f"v_cndmask_b32 {v(PB + 2)}, {v(TT)}, {v(ZERO)}, vcc")
        A(f"v_cndmask_b32 {v(PB + 3)}, {v(TT + 1)}, {v(ZERO)}, vcc")
        A(f"v_cndmask_b32_dpp {v(PB)}, {v(TT)}, {v(ZERO)}, vcc quad_perm:[2,3,0,1] {QP}")
        A(f"v_cndmask_b32_dpp {v(PB + 1)}, {v(TT + 1)}, {v(ZERO)}, vcc quad_perm:[2,3,0,1] {QP}")
        A(f"s_mov_b64 vcc, {s(S_MB, 2)}")
        L.wait("vx")
        A(f"v_cndmask_b32 {v(PA)}, {v(TT)}, {v(ZERO)}, vcc")
        A(f"{MF} {v(O, 4)}, {v(VX + 4, 4)}, {v(PB, 4)}, 0")
        A(f"v_cndmask_b32 {v(PA + 1)}, {v(TT + 1)}, {v(ZERO)}, vcc")
        A(f"v_cndmask_b32_dpp {v(PA + 2)}, {v(TT)}, {v(ZERO)}, vcc quad_perm:[2,3,0,1] {QP}")
        A(f"{MF} {v(O + 4, 4)}, {v(VX + 12, 4)}, {v(PB, 4)}, 0")
        A(f"v_cndmask_b32_dpp {v(PA + 3)}, {v(TT + 1)}, {v(ZERO)}, vcc quad_perm:[2,3,0,1] {QP}")
        A(f"v_mov_b32_dpp {v(ZR)}, {v(Z)} quad_perm:[2,3,0,1] {QP}")
        A(f"v_add_f32 {v(V_T)}, {v(Y[0])}, {v(Y[1])}")
        A(f"{MF} {v(O, 4)}, {v(VX, 4)}, {v(PA, 4)}, {v(O, 4)}")
        A(f"v_cvt_pk_bf16_f32 {v(PM)}, {v(Z)}, {v(ZR)}")
        A(f"v_cvt_pk_bf16_f32 {v(PM + 1)}, {v(ZR)}, {v(Z)}")
        A(f"{MF} {v(O + 4, 4)}, {v(VX + 8, 4)}, {v(PA, 4)}, {v(O + 4, 4)}")
        A(f"v_cndmask_b32 {v(PM)}, {v(PM)}, {v(ZERO)}, vcc")
        A(f"v_cndmask_b32 {v(PM + 1)}, {v(ZERO)}, {v(PM + 1)}, vcc")
        mark(4)
        A(f"ds_read_b32 {v(DBV)}, {v(V_FLG)}")
        bad, ok = A.newlabel("vb"), A.newlabel("vo")
        A(f"s_waitcnt vmcnt({nst[0]})")
        A(f"v_bitop3_b32 {v(V_T + 5)}, {v(VM)}, {v(VM + 2)}, {s(S_TAG)} bitop3:0x7e")
        A(f"v_add_f32 {v(V_T + 1)}, {v(Y[2])}, {v(Y[3])}")
        A(f"v_and_b32 {v(V_T + 5)}, 1, {v(V_T + 5)}")
        A(f"v_add_f32 {v(V_T)}, {v(V_T)}, {v(Z)}")
        A(f"v_cmp_ne_u32 vcc, 0, {v(V_T + 5)}")
        A(f"v_add_f32 {v(V_T)}, {v(V_T)}, {v(V_T + 1)}")
        A.nf(f"s_cbranch_vccnz {bad}")
        A.label_nf(ok)

        def vslow():
            A.label(bad)
            spin_fail(A)
            if cfg.timing == 5:
                A("s_add_u32 s94, s94, 1")
            A(vmld)
            A("s_waitcnt vmcnt(0)")
            A(f"v_bitop3_b32 {v(V_T + 5)}, {v(VM)}, {v(VM + 2)}, {s(S_TAG)} bitop3:0x7e")
            A(f"v_and_b32 {v(V_T + 5)}, 1, {v(V_T + 5)}")
            A(f"v_cmp_ne_u32 vcc, 0, {v(V_T + 5)}")
            A(f"s_cbranch_vccnz {bad}")
            A(f"s_branch {ok}")
        ool.append(vslow)
        A(f"v_mfma_f32_16x16x16_bf16 {v(O, 4)}, {v(VM, 2)}, {v(PM, 2)}, {v(O, 4)}")
        A(f"v_add_f32_dpp {v(V_T + 1)}, {v(V_T)}, {v(V_T)} quad_perm:[2,3,0,1] {QP}")
        A(f"v_add_f32_dpp {v(V_T)}, {v(V_T)}, {v(V_T)} quad_perm:[2,3,0,1] {QP}")
        A(f"v_mfma_f32_16x16x16_bf16 {v(O + 4, 4)}, {v(VM + 2, 2)}, {v(PM, 2)}, {v(O + 4, 4)}")
        A(f"v_permlane32_swap_b32 {v(V_T)}, {v(V_T + 1)}")
        A(f"v_add_f32 {v(S1)}, {v(V_T)}, {v(V_T + 1)}")
        A(f"v_add_f32 {v(V_T)}, {v(V_T)}, {v(V_T + 1)}")
        A(f"s_add_u32 {s(S_N)}, {s(S_N)}, 1")
        A(f"s_mov_b32 {s(S_L)}, {s(S_NL)}")
        A(f"v_permlane16_swap_b32 {v(V_T)}, {v(S1)}")
        A(f"v_add_f32 {v(V_T)}, {v(V_T)}, {v(S1)}")
        A(f"v_rcp_f32 {v(V_T)}, {v(V_T)}")
        A(f"s_mov_b32 {s(S_T)}, {s(S_NT)}")
        for i in range(0, 8, 2):
            A(f"v_pk_mul_f32 {v(O + i, 2)}, {v(O + i, 2)}, {v(V_T, 2)} op_sel_hi:[1,0]")
        OP = V_F
        for i in range(4):
            A(f"v_cvt_pk_bf16_f32 {v(OP + i)}, {v(O + 2 * i)}, {v(O + 2 * i + 1)}")
        A(f"v_and_or_b32 {v(OP)}, {v(OP)}, -2, {s(S_TAG)}")
        A(f"buffer_store_dwordx4 {v(OP, 4)}, {v(V_OST)}, {WS}, {s(S_OIA)} offen{LS}")
        mark(5)
        stamp(3)
        if cfg.timing == 3:
            A(f"s_sub_u32 {s(S_N)}, {s(S_N)}, 1")
            stamp(4)
            stamp.flush()
            A(f"s_add_u32 {s(S_N)}, {s(S_N)}, 1")
        A(f"s_mov_b32 {s(S_TAG)}, {s(S_NTAG)}")
        A(f"s_mov_b32 {s(S_T1)}, {s(S_NT1)}")
        A("s_waitcnt lgkmcnt(0)")
        A(f"v_cmp_ne_u32 vcc, {s(S_N)}, {v(DBV)}")
        A(f"v_mov_b32 {v(V_T)}, {s(S_N)}")
        A(f"ds_write_b32 {v(V_SY)}, {v(V_T)}")
        A.nf(f"s_branch CS_LOOP{sx}")
        A.label(skip)
        A("s_waitcnt lgkmcnt(0)")
        A("s_barrier")
        advance()
        A("s_mov_b64 vcc, -1")
        A("s_waitcnt vmcnt(0)")
        A(f"v_mov_b32 {v(V_T)}, {s(S_N)}")
        A(f"ds_write_b32 {v(V_SY)}, {v(V_T)}")
        A(f"s_cmp_lt_u32 {s(S_N)}, 128")
        A(f"s_cbranch_scc1 CS_LOOP{sx}")
        A("s_branch CS_DONE")
        for f in ool:
            f()

    A(f"s_cmp_lg_u32 {s(S_MODE)}, 0")
    A("s_cbranch_scc1 CS_LOOP_S")
    s_loop("_F", "")
    s_loop("_S", " sc1")

    A.label("CH_START")
    next_item(A, S_NL, S_NT)
    next_item(A, S_L2, S_T2)
    A(f"s_mov_b32 {s(S_KLDS)}, {L_KV}")
    kv_src(A, S_L, S_T)
    flag_row_of(A, S_FLG1, S_L, S_T)
    flag_spin(S_FLG1)
    for e in kv_dma():
        for x in e:
            A(x)
    A(f"s_mov_b32 {s(S_KLDS)}, {L_KV + 24576}")
    kv_src(A, S_NL, S_NT)
    flag_row_of(A, S_FLG1, S_NL, S_NT)
    flag_row_of(A, S_FLG2, S_L2, S_T2)
    A(f"s_mov_b32 {s(S_DEF)}, 1")
    A(f"v_min_u32 {v(V_SY3)}, 2, {v(V_LANE)}")
    A(f"v_lshlrev_b32 {v(V_SY3)}, 2, {v(V_SY3)}")
    A(f"v_add_u32 {v(V_SY3)}, {L_SY}, {v(V_SY3)}")
    A(f"v_mov_b32 {v(V_RDY)}, {L_SY + 12}")
    stamp.init()
    L = Lds(A)
    ool = []
    front(L, ool, "CH_LOOP", poller="me")
    kstore = [f"buffer_store_dwordx4 {v(V_KEEP + 4 * i, 4)}, {v(V_KST)}, {WS}, {s(S_KP)} offen offset:{i * 1024} sc1" for i in range(3)]
    f1, f2 = pend_window(kstore)
    dm = kv_dma()[12 if cfg.dsh else 0:] if not cfg.nodma else []
    flat = lambda l_: [x for e in l_ for x in (["\n".join(e[:-1])] if len(e) > 1 else []) + [e[-1]]]
    epi = qk_epi(L)
    fl = f"buffer_load_dword {v(V_FV)}, {v(V_FLG)}, {WS}, {s(S_FLG2)} offen sc1"
    gemm(L, [Task(cfg.dma0, [(24, f1), (40, f2), fl]), Task(cfg.dma1, flat(dm[:cfg.ngem]))] + epi[1:], qk_tail, hi=epi[:1])
    L.wait("xw")
    A("s_barrier")
    stamp(2)
    for e in dm[cfg.ngem:]:
        for x in e:
            A(x)
    for j in range(6):
        for ih in range(2):
            A(f"ds_read_b64_tr_b16 {v(V_ACC + 4 * j + 2 * ih, 2)}, {v(V_XR)} offset:{j * 1024 + ih * 512}")
    cur_global(A)
    fe_scalars(A, S_NL, S_NT, S_NTAG, S_NT1)
    A(f"s_mov_b64 vcc, {s(S_MB, 2)}")
    A("s_waitcnt lgkmcnt(0)")
    for jp in range(3):
        for i in range(4):
            A(f"v_cndmask_b32_dpp {v(V_KEEP + 4 * jp + i)}, {v(V_ACC + 8 * jp + 4 + i)}, {v(V_ACC + 8 * jp + i)}, vcc quad_perm:[0,1,0,1] {QP}")
    nxt, nodef, sp = A.newlabel("nx"), A.newlabel("nd"), A.newlabel("sp")
    A(f"s_cmp_ge_u32 {s(S_NT)}, 63")
    A(f"s_cselect_b32 {s(S_DEF)}, 0, {s(S_DEF)}")
    A(f"s_cmp_eq_u32 {s(S_NL)}, {s(S_L)}")
    A(f"s_cselect_b32 {s(T)}, 1, {s(S_DEF)}")
    A(f"s_cmp_eq_u32 {s(T)}, 0")
    A(f"s_cbranch_scc1 {nodef}")
    A.label(sp)
    A(f"ds_read_b32 {v(V_T)}, {v(V_SY3)}")
    A("s_waitcnt lgkmcnt(0)")
    A(f"v_cmp_ge_u32 vcc, {s(S_N)}, {v(V_T)}")
    poll_tail(A, sp, sleep=1)
    A("s_waitcnt vmcnt(0)")
    f1()
    f2()
    A("s_waitcnt vmcnt(0)")
    f1()
    A.label(nxt)
    A(f"s_cmp_eq_u32 {s(S_DEF)}, 0")
    A(f"s_cbranch_scc1 {nodef}")
    flag_spin(S_FLG1)
    for e in kv_dma():
        for x in e:
            A(x)
    A.label(nodef)
    stamp(4)
    stamp.flush()
    advance()
    A(f"s_mov_b32 {s(S_NL)}, {s(S_L2)}")
    A(f"s_mov_b32 {s(S_NT)}, {s(S_T2)}")
    A(f"s_mov_b32 {s(S_FLG1)}, {s(S_FLG2)}")
    next_item(A, S_L2, S_T2)
    flag_row_of(A, S_FLG2, S_L2, S_T2)
    kv_src(A, S_NL, S_NT)
    A(f"s_xor_b32 {s(S_KLDS)}, {s(S_KLDS)}, {L_KV ^ (L_KV + 24576)}")
    A("s_waitcnt vmcnt(0)")
    A(f"v_cmp_eq_u32 vcc, 0, {v(V_FV)}")
    A(f"s_cmp_lg_u64 vcc, 0")
    A(f"s_cselect_b32 {s(S_DEF)}, 1, 0")
    A(f"s_cmp_lt_u32 {s(S_N)}, 128")
    A(f"s_cbranch_scc1 CH_LOOP")
    A("s_branch CS_DONE")
    for f in ool:
        f()
    A.label("CS_DONE")
    if cfg.timing == 5:
        retry_dump(A, 0)
    timing_end(A, cfg, stamp, 0)

    A.label("CV_START")
    if cfg.timing == 5:
        for k in range(5):
            A(f"s_mov_b32 {s(92 + k)}, 0")
    stamp.init()

    def v_loop(sx, LS, u):
        L = Lds(A)
        ool = []
        front(L, ool, "CV_LOOP" + sx, poller=None if u else "w0")
        PK = V_KEEP
        x4, x2 = (PK + 2, PK) if u else (PK, PK + 4)
        xst = [f"buffer_store_dwordx4 {v(x4, 4)}, {v(V_VS0)}, {WS}, {s(S_KP)} offen sc1",
               f"buffer_store_dwordx2 {v(x2, 2)}, {v(V_VS1)}, {WS}, {s(S_KP)} offen sc1"]
        f1, f2 = pend_window(xst)
        tail = []
        for p in range(3):
            tail += [(8, 2 * p), (8, 2 * p + 1), (9, 2 * p), (9, 2 * p + 1)]

        def items(p):
            q, k = V_ACC + 8 * p, V_ACC + 8 * p + 4
            r = [f"v_add_f32 {v(q)}, {v(q)}, {v(q + 1)}", f"v_add_f32 {v(q + 2)}, {v(q + 2)}, {v(q + 3)}",
                 f"v_add_f32 {v(k)}, {v(k)}, {v(k + 1)}", f"v_add_f32 {v(k + 2)}, {v(k + 2)}, {v(k + 3)}",
                 f"v_cvt_pk_bf16_f32 {v(PK + 2 * p)}, {v(q)}, {v(q + 2)}", f"v_cvt_pk_bf16_f32 {v(PK + 2 * p + 1)}, {v(k)}, {v(k + 2)}",
                 f"v_and_or_b32 {v(PK + 2 * p)}, {v(PK + 2 * p)}, -2, {s(S_TAG)}"]
            if p == (2, 0)[u]:
                r.append(f"buffer_store_dwordx2 {v(x2, 2)}, {v(V_VS1)}, {WS}, {s(S_VMA)} offen{LS}")
            if p == (1, 2)[u]:
                r.append(f"buffer_store_dwordx4 {v(x4, 4)}, {v(V_VS0)}, {WS}, {s(S_VMA)} offen{LS}")
            return r
        gemm(L, [Task(cfg.dma0, [(24, f1), (32, f2)]), Task(0, cap(lambda c: cur_local(c, True))), Task(60, items(1)), Task(60, items(2))], tail, hi=[Task(53, items(0))])
        stamp(2)
        if not cfg.pb:
            A("s_barrier")
        cur_global(A)
        next_item(A, S_NL, S_NT)
        fe_scalars(A, S_NL, S_NT, S_NTAG, S_NT1)
        nxt = A.newlabel("nx")
        A(f"s_cmp_lg_u32 {s(S_NL)}, {s(S_L)}")
        A(f"s_cbranch_scc1 {nxt}")
        A("s_waitcnt vmcnt(0)")
        f1()
        f2()
        A("s_waitcnt vmcnt(0)")
        f1()
        A.label(nxt)
        stamp.flush()
        advance()
        A(f"s_cmp_lt_u32 {s(S_N)}, 128")
        A(f"s_cbranch_scc1 CV_LOOP{sx}")
        A("s_branch CV_DONE")
        for f in ool:
            f()

    A(f"s_and_b32 {s(T)}, {s(S_WAVE)}, 1")
    A(f"s_lshl1_add_u32 {s(T)}, {s(S_MODE)}, {s(T)}")
    for k, sx in ((1, "_F1"), (2, "_S0"), (3, "_S1")):
        A(f"s_cmp_eq_u32 {s(T)}, {k}")
        A(f"s_cbranch_scc1 CV_LOOP{sx}")
    v_loop("_F0", "", 0)
    v_loop("_F1", "", 1)
    v_loop("_S0", " sc1", 0)
    v_loop("_S1", " sc1", 1)
    A.label("CV_DONE")
    if cfg.timing == 5:
        retry_dump(A, 32)
    timing_end(A, cfg, stamp, 32)


def gen_cw(A, cfg, nwg):
    LAG = cfg.LAG
    V_DB, V_BW, V_RW0, V_RR0, V_RW, V_RR, V_PS = 3, 4, 5, 6, 7, 8, 9
    V_STAMP = 19
    V_O = 32
    V_ACC = 80
    V_B = 100
    L_RB = 98304
    RBS = 4 * 8 * 352
    S_PLH, S_PXH, S_DPH, S_M40 = S_HOFF, S_PXR, S_XGH, S_MA

    def wreg(f, p):
        idx = f * 4 + p
        return ("a", idx * 8) if idx < 32 else ("v", 128 + (idx - 32) * 8)

    def wtxt(f, p):
        if p == 4:
            return v(V_B + 8 * (f & 1), 8)
        k, r = wreg(f, p)
        return a(r, 8) if k == "a" else v(r, 8)

    A.label("ROLE_CW")
    common_setup(A, cfg, 3)
    g_, c_ = V_T + 2, V_T + 3
    A(f"v_lshrrev_b32 {v(g_)}, 4, {v(V_LANE)}")
    A(f"v_and_b32 {v(c_)}, 15, {v(V_LANE)}")
    A(f"v_min_u32 {v(V_DB)}, 11, {v(c_ if cfg.pw else V_LANE)}")
    A(f"v_lshlrev_b32 {v(V_DB)}, 2, {v(V_DB)}")
    if cfg.pw:
        A(f"v_lshl_add_u32 {v(V_DB)}, {v(g_)}, 7, {v(V_DB)}")
    A(f"s_mul_i32 {s(T)}, {s(S_WAVE)}, 24576")
    A(f"v_add_u32 {v(V_BW)}, {s(T)}, {v(V_L16)}")
    A(f"v_mul_u32_u24 {v(V_RW0)}, 704, {v(g_)}")
    A(f"v_lshl_add_u32 {v(V_RW0)}, {v(c_)}, 2, {v(V_RW0)}")
    A(f"s_mul_i32 {s(T)}, {s(S_WAVE)}, 2816")
    A(f"s_add_u32 {s(T)}, {s(T)}, {L_RB}")
    A(f"v_add_u32 {v(V_RW0)}, {s(T)}, {v(V_RW0)}")
    A(f"v_min_u32 {v(V_T)}, 39, {v(V_LANE)}")
    A(f"s_mul_i32 {s(T)}, {s(S_WAVE)}, 40")
    A(f"v_add_u32 {v(V_T)}, {s(T)}, {v(V_T)}")
    A(f"v_lshlrev_b32 {v(V_PS)}, 4, {v(V_T)}")
    A(f"v_bfe_u32 {v(V_T + 1)}, {v(V_T)}, 1, 3")
    A(f"v_mul_u32_u24 {v(V_RR0)}, 352, {v(V_T + 1)}")
    A(f"v_mul_u32_u24 {v(V_T + 5)}, 1280, {v(V_T + 1)}")
    A(f"v_lshrrev_b32 {v(V_T + 1)}, 4, {v(V_T)}")
    A(f"v_lshl_add_u32 {v(V_RR0)}, {v(V_T + 1)}, 5, {v(V_RR0)}")
    A(f"v_lshl_add_u32 {v(V_T + 5)}, {v(V_T + 1)}, 4, {v(V_T + 5)}")
    A(f"v_and_b32 {v(V_T + 1)}, 1, {v(V_T)}")
    A(f"v_lshl_add_u32 {v(V_RR0)}, {v(V_T + 1)}, 4, {v(V_RR0)}")
    A(f"v_lshl_add_u32 {v(V_T + 5)}, {v(V_T + 1)}, 3, {v(V_T + 5)}")
    A(f"v_add_u32 {v(V_RR0)}, {L_RB}, {v(V_RR0)}")
    A(f"s_mov_b32 {s(S_M40)}, -1")
    A(f"s_mov_b32 {s(S_M40 + 1)}, 0xff")
    make_srd(A, SRD_W, P_MEM0, 10240)
    A(f"s_mul_i32 {s(T)}, {s(S_J)}, 160")
    A(f"buffer_load_dwordx2 {v(V_O, 2)}, {v(V_T + 5)}, {s(SRD_W, 4)}, {s(T)} offen")
    A(f"s_mul_i32 {s(S_PLH)}, {s(S_J)}, 2560")
    A(f"s_add_u32 {s(S_PLH)}, {s(S_PLH)}, {s(S_XB)}")
    A(f"s_lshl_b32 {s(S_PXH)}, {s(S_X)}, 19")
    A(f"s_lshr_b32 {s(T)}, {s(S_J)}, 1")
    A(f"s_lshl_b32 {s(T + 1)}, {s(T)}, 14")
    A(f"s_add_u32 {s(S_PXH)}, {s(S_PXH)}, {s(T + 1)}")
    A(f"s_and_b32 {s(T + 1)}, {s(S_J)}, 1")
    A(f"s_mul_i32 {s(T + 2)}, {s(T + 1)}, 2560")
    A(f"s_add_u32 {s(S_PXH)}, {s(S_PXH)}, {s(T + 2)}")
    A(f"s_add_u32 {s(S_PXH)}, {s(S_PXH)}, {XP}")
    A(f"s_lshl_b32 {s(S_DPH)}, {s(T)}, 7")
    A(f"s_lshl_b32 {s(T + 1)}, {s(T + 1)}, 2")
    A(f"s_add_u32 {s(T + 1)}, {s(T + 1)}, {s(S_WAVE)}")
    A(f"s_lshl_b32 {s(T + 1)}, {s(T + 1)}, 2")
    A(f"s_add_u32 {s(S_DPH)}, {s(S_DPH)}, {s(T + 1)}")
    A(f"s_add_u32 {s(S_DPH)}, {s(S_DPH)}, {s(S_XB)}")
    A(f"s_add_u32 {s(S_DPH)}, {s(S_DPH)}, {DP_OFF}")
    A(f"s_mul_i32 {s(S_OIH)}, {s(S_WAVE)}, 12288")
    A(f"s_add_u32 {s(S_OIH)}, {s(S_OIH)}, {s(S_XB)}")
    A(f"s_add_u32 {s(S_OIH)}, {s(S_OIH)}, {OI_OFF}")
    A(f"s_lshl_b32 {s(S_DOH)}, {s(S_WAVE)}, 7" if not cfg.pw else f"s_mov_b32 {s(S_DOH)}, 0")
    A(f"s_add_u32 {s(S_DOH)}, {s(S_DOH)}, {s(S_XB)}")
    A(f"s_add_u32 {s(S_DOH)}, {s(S_DOH)}, {DO_OFF}")
    A(f"s_cmp_eq_u32 {s(S_X)}, 0")
    A(f"s_cselect_b32 {s(T + 3)}, 0xffff0000, 0")
    A("s_waitcnt vmcnt(0)")
    A(f"v_lshlrev_b32 {v(V_O + 4)}, 16, {v(V_O)}")
    A(f"v_and_b32 {v(V_O + 4)}, {s(T + 3)}, {v(V_O + 4)}")
    A(f"v_and_b32 {v(V_O + 5)}, {s(T + 3)}, {v(V_O)}")
    A(f"v_lshlrev_b32 {v(V_O + 6)}, 16, {v(V_O + 1)}")
    A(f"v_and_b32 {v(V_O + 6)}, {s(T + 3)}, {v(V_O + 6)}")
    A(f"v_and_b32 {v(V_O + 7)}, {s(T + 3)}, {v(V_O + 1)}")
    for i in range(4):
        A(f"v_mov_b32 {v(V_O + 8 + i)}, -1")
    A(f"v_mov_b32 {v(V_O + 12)}, 1")
    A(f"s_mov_b64 exec, {s(S_M40, 2)}")
    lst = []
    for k in range(8):
        d = V_O + 4 if k % 4 == 0 else V_O + 8
        lst.append(f"s_add_u32 {s(T)}, {s(S_PLH)}, {PL_OFF + k * 20480}")
        lst.append(f"buffer_store_dwordx4 {v(d, 4)}, {v(V_PS)}, {WS}, {s(T)} offen")
        for hf in range(2 if cfg.near else 1):
            A(f"s_add_u32 {s(T)}, {s(S_PXH)}, {k * 65536 + hf * 8192}")
            A(f"buffer_store_dwordx4 {v(d, 4)}, {v(V_PS)}, {WS}, {s(T)} offen sc1")
    lst.append("s_mov_b64 exec, 1")
    lst.append(f"buffer_store_dword {v(V_O + 12)}, {v(V_L16)}, {WS}, {s(S_DPH)} offen")
    lst.append(f"buffer_store_dword {v(V_O + 12)}, {v(V_L16)}, {WS}, {s(S_DPH)} offen offset:512")
    lstore(A, lst)
    A("s_mov_b64 exec, -1")
    init_barrier_arrive(A, V_T)

    V_DA, V_TR, V_PARK = 20, 30, 32
    S_ORG, S_LW = S_KSRC, S_KLDS
    make_srd(A, SRD_W, P_WO, 6144 * 1280)
    A(f"s_lshl_b32 {s(T)}, {s(S_X)}, 2")
    A(f"s_add_u32 {s(T)}, {s(T)}, {s(S_WAVE)}")
    A(f"s_mul_i32 {s(S_ORG)}, {s(T)}, {768 * 1280}")
    A(f"s_mul_i32 {s(T)}, {s(S_J)}, 160")
    A(f"s_add_u32 {s(S_ORG)}, {s(S_ORG)}, {s(T)}")
    A(f"s_mul_i32 {s(S_LW)}, {s(S_WAVE)}, 40960")
    for i in range(10):
        A(f"v_add_u32 {v(V_T)}, {64 * i}, {v(V_LANE)}")
        A(f"v_mul_u32_u24 {v(V_T + 1)}, 6554, {v(V_T)}")
        A(f"v_lshrrev_b32 {v(V_T + 1)}, 16, {v(V_T + 1)}")
        A(f"v_mul_u32_u24 {v(V_T + 4)}, 10, {v(V_T + 1)}")
        A(f"v_sub_u32 {v(V_T)}, {v(V_T)}, {v(V_T + 4)}")
        A(f"v_mul_u32_u24 {v(V_DA + i)}, 1280, {v(V_T + 1)}")
        A(f"v_lshl_add_u32 {v(V_DA + i)}, {v(V_T)}, 4, {v(V_DA + i)}")
    A(f"v_lshrrev_b32 {v(g_)}, 4, {v(V_LANE)}")
    A(f"v_and_b32 {v(V_T)}, 1, {v(g_)}")
    A(f"v_lshlrev_b32 {v(V_T)}, 5, {v(V_T)}")
    A(f"v_lshrrev_b32 {v(V_T + 1)}, 1, {v(g_)}")
    A(f"v_lshl_add_u32 {v(V_T)}, {v(V_T + 1)}, 2, {v(V_T)}")
    A(f"v_bfe_u32 {v(V_T + 1)}, {v(V_LANE)}, 2, 1")
    A(f"v_add_u32 {v(V_T)}, {v(V_T)}, {v(V_T + 1)}")
    A(f"v_bfe_u32 {v(V_T + 1)}, {v(V_LANE)}, 3, 1")
    A(f"v_lshl_add_u32 {v(V_T)}, {v(V_T + 1)}, 4, {v(V_T)}")
    A(f"v_mul_u32_u24 {v(V_TR)}, 160, {v(V_T)}")
    A(f"v_and_b32 {v(V_T + 1)}, 3, {v(V_LANE)}")
    A(f"v_lshl_add_u32 {v(V_TR)}, {v(V_T + 1)}, 3, {v(V_TR)}")
    A(f"v_add_u32 {v(V_TR)}, {s(S_LW)}, {v(V_TR)}")

    def w_dma(f):
        A(f"s_add_u32 {s(T + 1)}, {s(S_ORG)}, {f * 64 * 1280}")
        for i in range(10):
            A(f"s_add_u32 m0, {s(S_LW)}, {(f % 4) * 10240 + i * 1024}")
            A(f"buffer_load_dwordx4 {v(V_DA + i)}, {s(SRD_W, 4)}, {s(T + 1)} offen lds")
    for f in range(4):
        w_dma(f)
    for f in range(12):
        A(f"s_waitcnt vmcnt({10 * min(3, 11 - f)})")
        n = 0
        for p in range(5):
            kind, r = wreg(f, p) if p < 4 else ("v", V_PARK + 8 * f)
            fn = a if kind == "a" else v
            for RH in range(2):
                for hh in range(2):
                    A(f"ds_read_b64_tr_b16 {fn(r + 4 * RH + 2 * hh, 2)}, {v(V_TR)} offset:{(f % 4) * 10240 + (8 * RH + 2 * hh) * 160 + 32 * p}")
                    n += 1
                    if n == 12:
                        A("s_waitcnt lgkmcnt(4)")
        A("s_waitcnt lgkmcnt(0)")
        if f + 4 < 12:
            w_dma(f + 4)
    A("s_barrier")
    for f in range(12):
        for hf in range(2):
            A(f"ds_write_b128 {v(V_BW)}, {v(V_PARK + 8 * f + 4 * hf, 4)} offset:{f * 2048 + hf * 1024}")
        if f % 4 == 3:
            A("s_waitcnt lgkmcnt(0)")
    A("s_barrier")
    init_barrier_wait(A, V_T, nwg, cfg)
    near_half(A, cfg, S_PXH)
    A(f"s_mov_b32 {s(S_N)}, 0")
    A(f"s_mov_b32 {s(S_DEF)}, 0")
    stamp = mk_stamp(A, cfg, V_STAMP)
    stamp.init()

    def w_loop(sx, LS):
        L = Lds(A)
        nxt = "CW_NEXT" + sx
        A.label("CW_LOOP" + sx)
        item_of(A, S_N, S_L, S_T, LAG, 0, T)
        A(f"s_cmp_eq_u32 {s(S_T)}, 63")
        A(f"s_cbranch_scc1 {nxt}")
        A(f"s_add_u32 {s(S_T1)}, {s(S_T)}, 1")
        A(f"s_lshl_b32 {s(T + 1)}, {s(S_L)}, 9")
        A(f"s_add_u32 {s(S_DOA)}, {s(T + 1)}, {s(S_DOH)}")
        A(f"s_add_u32 {s(S_DPA)}, {s(T + 1)}, {s(S_DPH)}")
        A(f"s_lshl_b32 {s(T + 1)}, {s(S_L)}, 2")
        A(f"s_and_b32 {s(T)}, {s(S_T)}, 3")
        A(f"s_add_u32 {s(T)}, {s(T)}, {s(T + 1)}")
        A(f"s_mul_i32 {s(S_OIA)}, {s(T)}, 49152")
        A(f"s_add_u32 {s(S_OIA)}, {s(S_OIA)}, {s(S_OIH)}")
        A(f"s_add_u32 {s(S_VMA)}, {s(S_OIA)}, 4096")
        A(f"s_add_u32 {s(S_KCUR)}, {s(S_OIA)}, 8192")
        A(f"s_bfe_u32 {s(S_TAG)}, {s(S_T)}, 0x10002")
        A(f"s_bfe_u32 {s(S_NTAG)}, {s(S_T1)}, 0x10002")
        A(f"s_and_b32 {s(T)}, {s(S_T1)}, 3")
        A(f"s_add_u32 {s(T)}, {s(T)}, {s(T + 1)}")
        A(f"s_mul_i32 {s(S_PLA)}, {s(T)}, 20480")
        A(f"s_add_u32 {s(S_PLA)}, {s(S_PLA)}, {s(S_PLH)}")
        A(f"s_lshl_b32 {s(S_PXA)}, {s(T)}, 16")
        A(f"s_add_u32 {s(S_PXA)}, {s(S_PXA)}, {s(S_PXH)}")
        A(f"s_xor_b32 {s(S_DEF)}, {s(S_DEF)}, {RBS}")
        A(f"v_add_u32 {v(V_RW)}, {s(S_DEF)}, {v(V_RW0)}")
        A(f"v_add_u32 {v(V_RR)}, {s(S_DEF)}, {v(V_RR0)}")
        A(f"s_add_u32 {s(T)}, {s(S_T)}, 2")
        A(f"v_mov_b32 {v(V_T + 4)}, {s(T)}")
        for i in range(20):
            A(f"v_mov_b32 {v(V_ACC + i)}, 0")

        def rdB(f):
            return [(("B", f), f"ds_read_b128 {v(V_B + 8 * (f & 1) + 4 * hf, 4)}, {v(V_BW)} offset:{f * 2048 + hf * 1024}") for hf in range(2)]
        for it in rdB(0) + rdB(1):
            L.op(*it)
        if cfg.pw:
            lab = A.newlabel("np")
            A(f"s_cmp_lg_u32 {s(S_WAVE)}, 0")
            A(f"s_cbranch_scc1 {lab}")
        doorbell(A, cfg, V_DB, S_DOA, V_T)
        if cfg.pw:
            A.label_nf(lab)
            A("s_barrier")
        stamp(0)

        def ld(f):
            return f"buffer_load_dwordx4 {v(V_O + 4 * f, 4)}, {v(V_L16)}, {WS}, {s((S_OIA, S_VMA, S_KCUR)[f // 4])} offen offset:{(f % 4) * 1024} sc1"
        ring = ["s_mov_b64 exec, 1", f"buffer_store_dword {v(V_T + 4)}, {v(V_L16)}, {WS}, {s(S_DPA)} offen{LS}", "s_mov_b64 exec, -1"]
        NP = cfg.wnp
        for f in range(NP):
            A(ld(f))
            if cfg.wsp and f < NP - 1:
                A(f"s_nop {cfg.wsp - 1}")
        stamp(7)
        issued = [NP]
        G = {f: [f] for f in range(cfg.wg1)}
        G.update({f: [f, f + 1] for f in range(cfg.wg1, 12, 2)})

        upto = {}

        def chk(f, top=None):
            last = G[f][-1]

            def w():
                n = issued[0] if top is None else top
                assert n > last, (f, n)
                A(f"s_waitcnt vmcnt({n - 1 - last})")
                if len(G[f]) == 1:
                    A(f"v_and_b32 {v(V_T)}, 1, {v(V_O + 4 * f)}")
                else:
                    A(f"v_bitop3_b32 {v(V_T)}, {v(V_O + 4 * f)}, {v(V_O + 4 * f + 4)}, {s(S_TAG)} bitop3:0x7e")
            if len(G[f]) == 1:
                return [(8, w), f"v_cmp_ne_u32 vcc, {s(S_TAG)}, {v(V_T)}"]
            return [(8, w), f"v_and_b32 {v(V_T)}, 1, {v(V_T)}", f"v_cmp_ne_u32 vcc, 0, {v(V_T)}"]

        def run(items):
            for x in items:
                x[1]() if isinstance(x, tuple) else A(x)

        def ldt(f):
            def go_():
                A(ld(f))
                issued[0] = f + 1
            return (cfg.vmc, go_)
        slow = {f: A.newlabel("ws") for f in G}
        go = {f: A.newlabel("wg") for f in G}
        run(chk(0))
        sq = [(f, p) for f in range(10) for p in range(5)] + [(f, p) for p in range(5) for f in (10, 11)]
        seq, tasks, pre, cks = [], [], {}, {}
        rds = []
        for k, (f, p) in enumerate(sq):
            seq.append((f"{SM} {v(V_ACC + 4 * p, 4)}, {v(V_O + 4 * f, 4)}, {wtxt(f, p)}, {v(V_IDX)}", [("B", f)] if p == 4 else []))
            if p == 0 and f in G:
                def br(f=f):
                    if f in cks:
                        assert not cks[f].items
                    upto[f] = issued[0]
                    A.nf(f"s_cbranch_vccnz {slow[f]}")
                    A.label_nf(go[f])
                    if f in (0, 6, 10):
                        stamp({0: 3, 6: 4, 10: 5}[f])
                pre[k] = br
                if f:
                    cks[f] = Task(k - cfg.wlead - len(chk(f)), chk(f), step=1)
                    tasks.append(cks[f])
                    tasks.append(Task(k - 1, [(12, lambda: None)]))
            if p == 4 and f + 2 < 12:
                rds.append(Task(k, rdB(f + 2)))
        tasks.append(Task(0, [ldt(f) for f in range(NP, 12)], step=cfg.wst))
        tasks += rds

        def items(p):
            q = V_ACC + 4 * p
            return [f"v_add_f32 {v(q)}, {v(q)}, {v(q + 1)}", f"v_add_f32 {v(q + 2)}, {v(q + 2)}, {v(q + 3)}",
                    ("rw", f"ds_write2_b32 {v(V_RW)}, {v(q)}, {v(q + 2)} offset0:{16 * p} offset1:{16 * p + 88}")]
        if cfg.wfd < 10:
            tasks.append(Task(50 + cfg.wfd, ["\n".join(ring)]))
        for p in range(5):
            tasks.append(Task(54 + 2 * p, items(p)))
        sched(A, L, seq, tasks, pre=pre)
        if cfg.wfd == 10:
            for x in ring:
                A(x)
        A("s_waitcnt lgkmcnt(0)")
        A("s_barrier")
        R = V_O
        for w in range(4):
            A(f"ds_read_b128 {v(R + 4 * w, 4)}, {v(V_RR)} offset:{w * 2816}")
        stamp(1)
        if cfg.wfd == 11:
            for x in ring[:2]:
                A(x)
        A(f"s_mov_b64 exec, {s(S_M40, 2)}")
        A("s_waitcnt lgkmcnt(2)")
        A(f"v_pk_add_f32 {v(R, 2)}, {v(R, 2)}, {v(R + 4, 2)}")
        A(f"v_pk_add_f32 {v(R + 2, 2)}, {v(R + 2, 2)}, {v(R + 6, 2)}")
        A("s_waitcnt lgkmcnt(0)")
        A(f"v_pk_add_f32 {v(R + 8, 2)}, {v(R + 8, 2)}, {v(R + 12, 2)}")
        A(f"v_pk_add_f32 {v(R + 10, 2)}, {v(R + 10, 2)}, {v(R + 14, 2)}")
        A(f"v_pk_add_f32 {v(R, 2)}, {v(R, 2)}, {v(R + 8, 2)}")
        A(f"v_pk_add_f32 {v(R + 2, 2)}, {v(R + 2, 2)}, {v(R + 10, 2)}")
        A(f"v_and_or_b32 {v(R)}, {v(R)}, -2, {s(S_NTAG)}")
        st2 = [f"buffer_store_dwordx4 {v(R, 4)}, {v(V_PS)}, {WS}, {s(S_PXA)} offen sc1", f"buffer_store_dwordx4 {v(R, 4)}, {v(V_PS)}, {WS}, {s(S_PLA)} offen{LS}"]
        if cfg.pso:
            st2.reverse()
        A(st2[0])
        if cfg.pso == 2:
            A("s_barrier")
        A(st2[1])
        A("s_mov_b64 exec, -1")
        if cfg.wfd == 12:
            for x in ring:
                A(x)
        stamp(2)
        stamp.flush()
        A.label(nxt)
        A(f"s_add_u32 {s(S_N)}, {s(S_N)}, 1")
        A(f"s_cmp_lt_u32 {s(S_N)}, 128")
        A(f"s_cbranch_scc1 CW_LOOP{sx}")
        A("s_branch CW_DONE")
        for f in G:
            A.label(slow[f])
            for f2 in range(f, upto[f]):
                A(ld(f2))
            spin_fail(A)
            if cfg.timing == 5:
                A(f"s_add_u32 s{92 + min(f, 4)}, s{92 + min(f, 4)}, 1")
            run(chk(f, upto[f]))
            A(f"s_cbranch_vccnz {slow[f]}")
            A(f"s_branch {go[f]}")

    if cfg.timing == 5:
        for k in range(5):
            A(f"s_mov_b32 {s(92 + k)}, 0")
    A(f"s_cmp_lg_u32 {s(S_MODE)}, 0")
    A("s_cbranch_scc1 CW_LOOP_S")
    w_loop("_F", "")
    w_loop("_S", " sc1")
    A.label("CW_DONE")
    if cfg.timing == 5:
        retry_dump(A, 48)
    timing_end(A, cfg, stamp, 48)
```

```python
import sys
from asmlib import Asm, v, a, s

NAME = "interleave_layers__memory_aug_recurrent_mem_tr__mixer_s_mlp__prompt"

WS_BYTES = 268435456
FLAGS = 0
CHB = 0x200000
CHB_XG = 0x200000
MEMR = CHB
MEM_SLOT = 20480
XCH_OFF = 4 * MEM_SLOT
XCH_HEAD = 18432
XCH_SLOT = 8 * XCH_HEAD
PART_OFF = XCH_OFF + 4 * XCH_SLOT
PART_SLOT = 8 * 40960
assert PART_OFF + 4 * PART_SLOT <= CHB_XG
XP = 0xA00000
XP_STEP = 4 * 40960
XG = 0x1700000
XG_HEAD = XCH_HEAD
XG_STEP = 32 * XG_HEAD
MAXSTEP = 84
assert XP + 80 * XP_STEP <= XG
QKV_SEG = 32 * 12288
QKV_SZ = 64 * QKV_SEG
KX = 0x4700000
assert XG + MAXSTEP * XG_STEP <= KX
VX = KX + QKV_SZ
QX = VX + QKV_SZ
OX = QX + QKV_SZ
WOP = OX + QKV_SZ
NKG = 6
WOP_SEG = NKG * 81920
XSEG = 40960
XSEGS = 46080
XIN = WOP + 64 * WOP_SEG
X1B = XIN + 128 * XSEGS
XM = X1B + 128 * XSEGS
YB = XM + 128 * XSEG
ZB = YB + 128 * XSEGS
X0R = ZB + 128 * XSEG
HB = X0R + 64 * XSEG
GB = HB + 2 * 66 * XSEG
GSEG = 98304
WS_END = GB + 128 * GSEG
assert WS_END + 4096 + 256 * 4 * 256 <= WS_BYTES, WS_END

RAWST = WS_END + 4096
F_XIN, F_Q, F_K, F_V, F_O, F_WOP, F_R1, F_H, F_X1, F_G = range(10)
FXG = 0xA8000
FXG_STEP = 32 * 64
assert FXG + MAXSTEP * FXG_STEP <= 0xE0000


C2 = CHB
C2_X = 0x200000
PL_OFF = 0
OI_OFF = 0x28000
VM_OFF = 0x88000
DP_OFF = 0xE8000
DO_OFF = 0xE8400
XG2_HEAD = 6144
XG2_STEP = 32 * XG2_HEAD
assert XG + 128 * XG2_STEP <= KX
FXG2_STEP = 32 * 32
FWOP2 = FXG + 128 * FXG2_STEP
assert FWOP2 + 128 * 640 <= 0xE0000


def flag_row(kind, layer=0, seg=0):
    return FLAGS + ((kind * 2 + layer) * 64 + seg) * 512


P_X, P_MEM0, P_WQ, P_WK, P_WV, P_WO, P_SEG, P_BX, P_W1, P_W2, P_W3, P_W4, P_OUT, P_DBG, P_WS = [16 + 2 * i for i in range(15)]
SRD_W = 4
SRD_WS = 8
SRD_DBG = 12
S_WAVE = 46
S_SPIN = 47
S_ROLE = 48
SPIN_BUDGET = 200000


class Cfg:
    def __init__(self, **kw):
        self.LAG = 9
        self.mode = "full"
        self.lstride = 0
        self.timing = 0
        self.force_fallback = 0
        self.xg_early = 1
        self.xsleep = 0
        self.msleep = 0
        self.prefetch = 1
        self.d0 = 0
        self.xpr = 4
        self.nodma = 0
        self.noxg = 0
        self.sl_m = 0
        self.sl_q = 0
        self.sl_r = 0
        self.qe = 10
        self.lateq2 = 0
        self.lsl = 1
        self.zf = 0
        self.xh2 = 0
        self.fe = 0
        self.xq = 0
        self.xw = 0
        self.xr = 0
        self.vote = 0
        self.allpipe = 0
        self.near = 0
        self.nprobe = 8
        self.xpl = 0
        self.dlt = 0
        self.dly_w = 0
        self.coop = 0
        self.jcw = 0
        self.gpk = 0
        self.r1h = 0
        self.xrs = 0
        self.q3 = 0
        self.wgq = 0
        self.wgp2 = 0
        self.asl = -1
        self.wgp = 0
        self.nrs = 0
        self.fsl = -1
        self.own = 0
        self.l15 = 0
        self.r1e = 0
        self.xat = 0
        self.jc = 0
        self.q2 = 0
        self.q2tail = 8
        self.q2ack = 12
        self.attl = 0
        self.dyn = 0
        self.rot = 0
        self.m1 = 0
        self.xga = 0
        self.ks = 0
        self.late_q = 0
        self.lead1 = 0
        self.dbgmem = 0
        self.s32 = 1
        self.place = 0
        self.rawt0 = 30
        self.late_w = 0
        self.ntop = 4
        self.natt = 4
        self.pp_r = 0
        self.gap_r = 0
        self.pp_x = 0
        self.gap_x = 0
        self.QA = 12
        self.att_sleep = 2
        self.c2 = 0
        self.a2 = 0
        self.g3 = 0
        self.qds = 3
        self.qf1 = 30
        self.qsm = 55
        self.qx = 0
        self.bloc = 0
        self.oloc = 0
        self.touch = 0
        self.ant = 0
        self.kah = 10
        self.kkf = 27
        self.ksp = 8
        self.kxm = 28
        self.ks2 = 36
        self.bf1 = 12
        self.bf1x = 22
        self.bsmx = 26
        self.bsm = 30
        self.bps = 2
        self.r2 = 0
        self.dbo = 20
        self.vmj = 16
        self.vmc = 8
        self.verbose = 0
        self.pso = 2
        self.pb = 1
        self.pw = 1
        self.wg1 = 6
        self.dsh = 1
        self.dfl = 2
        self.kvhit = 0
        self.dma1 = 5
        self.wnp = 5
        self.wsp = 8
        self.wst = 4
        self.wlead = 2
        self.rw = 4
        self.ngem = 24
        self.edb = 0
        self.sw = 67
        self.dma0 = 38
        self.dmas = 5
        self.bar1 = 4
        self.wfd = 10
        self.dsl = 0
        self.dpp2 = 0
        self.spin = SPIN_BUDGET
        self.off = 0
        self.__dict__.update(kw)


def make_srd(A, d, ptr, nbytes):
    A(f"s_mov_b32 {s(d)}, {s(ptr)}")
    A(f"s_mov_b32 {s(d + 1)}, {s(ptr + 1)}")
    A(f"s_mov_b32 {s(d + 2)}, {nbytes}")
    A(f"s_mov_b32 {s(d + 3)}, 0x20000")


def poll_tail(A, top, ok_on="vccz", sleep=0):
    ok = A.newlabel("ok")
    A(f"s_cbranch_vccz {ok}")
    if sleep:
        A(f"s_sleep {sleep}")
    A(f"s_sub_u32 {s(S_SPIN)}, {s(S_SPIN)}, 1")
    A("s_cbranch_scc1 ABORT")
    A(f"s_branch {top}")
    A.label(ok)


class WLoader:
    def __init__(self, A, vtmp, stmp):
        self.A = A
        self.units = []
        self.vt = vtmp
        self.st = stmp
        self.shapes = {}
        self.grp = {}

    def add(self, srd_setup, s_org, row_stride, T, nk, dst, m32=None, grp=None):
        self.units.append((srd_setup, s_org, row_stride, T, nk, dst))
        self.shapes[len(self.units) - 1] = m32
        self.grp[len(self.units) - 1] = grp if grp is not None else len(self.units) - 1

    def emit(self, v_lane):
        A = self.A
        vt, st = self.vt, self.st
        A(f"s_mul_i32 {s(st)}, {s(S_WAVE)}, 40960")
        flat = []
        for ui, u in enumerate(self.units):
            for j in range(u[4]):
                flat.append((ui, j))
        chunks, cur, sz = [], [], 0
        for (ui, j) in flat:
            T = self.units[ui][3]
            if sz + T > 20 or (cur and self.grp[cur[-1][0]] != self.grp[ui]):
                chunks.append(cur)
                cur, sz = [], 0
            cur.append((ui, j))
            sz += T
        if cur:
            chunks.append(cur)
        last_dma_unit = [None]

        def dma(ci):
            ch = chunks[ci]
            half = ci & 1
            ui = ch[0][0]
            srd_setup, s_org, stride, T, nk, dst = self.units[ui]
            if last_dma_unit[0] != self.grp[ui]:
                srd_setup()
                lpr = 2 * T
                sh = {2: 1, 4: 2, 8: 3}[lpr]
                A(f"v_lshrrev_b32 {v(vt + 3)}, {sh}, {v(v_lane)}")
                A(f"s_mov_b32 {s(st + 1)}, {stride}")
                A(f"v_mul_lo_u32 {v(vt + 3)}, {v(vt + 3)}, {s(st + 1)}")
                A(f"v_and_b32 {v(vt + 4)}, {lpr - 1}, {v(v_lane)}")
                A(f"v_lshl_add_u32 {v(vt)}, {v(vt + 4)}, 4, {v(vt + 3)}")
                last_dma_unit[0] = self.grp[ui]
            off = half * 20480
            n = 0
            for (uj, j) in ch:
                s_org = self.units[uj][1]
                for i in range(T):
                    row = 32 * j + i * (32 // T)
                    A(f"s_add_u32 m0, {s(st)}, {off}")
                    A(f"s_add_u32 {s(st + 2)}, {s(s_org)}, {row * stride}")
                    A(f"buffer_load_dwordx4 {v(vt)}, {s(SRD_W, 4)}, {s(st + 2)} offen lds")
                    off += 1024
                    n += 1
            return n

        def trread(ci):
            ch = chunks[ci]
            half = ci & 1
            ui = ch[0][0]
            _, _, stride, T, nk, dst = self.units[ui]
            m32 = self.shapes[ui]
            if m32:
                A(f"v_bfe_u32 {v(vt + 3)}, {v(v_lane)}, 2, 2")
                A(f"v_lshrrev_b32 {v(vt + 4)}, 5, {v(v_lane)}")
                A(f"v_lshl_add_u32 {v(vt + 3)}, {v(vt + 4)}, 2, {v(vt + 3)}")
                A(f"v_mul_u32_u24 {v(vt + 3)}, {T * 32}, {v(vt + 3)}")
                A(f"v_and_b32 {v(vt + 4)}, 1, {v(v_lane)}")
                A(f"v_lshl_add_u32 {v(vt + 3)}, {v(vt + 4)}, 3, {v(vt + 3)}")
                A(f"v_bfe_u32 {v(vt + 4)}, {v(v_lane)}, 1, 1")
                A(f"v_lshl_add_u32 {v(vt + 3)}, {v(vt + 4)}, {5 if m32 == 'perm' else 4}, {v(vt + 3)}")
                A(f"v_bfe_u32 {v(vt + 4)}, {v(v_lane)}, 4, 1")
                A(f"v_lshl_add_u32 {v(vt + 3)}, {v(vt + 4)}, {4 if m32 == 'perm' else 5}, {v(vt + 3)}")
                A(f"v_add_u32 {v(vt + 1)}, {s(st)}, {v(vt + 3)}")
                off = half * 20480
                cnt = 0
                for (_, j) in ch:
                    for tl in range(T // 2):
                        for u in range(2):
                            kind, r = dst(tl, j, u)
                            f = a if kind == "a" else v
                            for hf in range(2):
                                A(f"ds_read_b64_tr_b16 {f(r + 2 * hf, 2)}, {v(vt + 1)} offset:{off + (hf * 16 + u * 8) * T * 32 + tl * 64}")
                                cnt += 1
                                if cnt % 12 == 0:
                                    A("s_waitcnt lgkmcnt(4)")
                    off += T * 1024
                A("s_waitcnt lgkmcnt(0)")
                return
            A(f"v_lshrrev_b32 {v(vt + 3)}, 2, {v(v_lane)}")
            A(f"v_mul_u32_u24 {v(vt + 3)}, {T * 32}, {v(vt + 3)}")
            A(f"v_and_b32 {v(vt + 4)}, 3, {v(v_lane)}")
            A(f"v_lshl_add_u32 {v(vt + 3)}, {v(vt + 4)}, 3, {v(vt + 3)}")
            A(f"v_add_u32 {v(vt + 1)}, {s(st)}, {v(vt + 3)}")
            off = half * 20480
            cnt = 0
            for (uj, j) in ch:
                dst = self.units[uj][5]
                for tau in range(T):
                    d = dst(tau, j)
                    if d is None:
                        continue
                    kind, r = d
                    f = a if kind == "a" else v
                    for hf in range(2):
                        A(f"ds_read_b64_tr_b16 {f(r + 2 * hf, 2)}, {v(vt + 1)} offset:{off + hf * 16 * T * 32 + tau * 32}")
                        cnt += 1
                        if cnt % 12 == 0:
                            A("s_waitcnt lgkmcnt(4)")
                off += T * 1024
            A("s_waitcnt lgkmcnt(0)")

        counts = {}
        counts[0] = dma(0)
        if len(chunks) > 1:
            counts[1] = dma(1)
        for ci in range(len(chunks)):
            nxt = counts.get(ci + 1, 0)
            A(f"s_waitcnt vmcnt({nxt})")
            trread(ci)
            if ci + 2 < len(chunks):
                counts[ci + 2] = dma(ci + 2)


S_MODE = 49
S_ROLEG = 3
S_GID = 100
N_CHAIN = 96
CFG = [None]


def init_barrier_arrive(A, vt):
    tmark(A, CFG[0], 0, vt)
    A("s_waitcnt vmcnt(0)")
    A("s_barrier")
    lab = A.newlabel("arr")
    A(f"s_cmp_lg_u32 {s(S_WAVE)}, 0")
    A(f"s_cbranch_scc1 {lab}")
    A(f"v_mov_b32 {v(vt)}, 1")
    A(f"s_lshl_b32 {s(S_ROLEG)}, {s(S_MODE)}, 2")
    A(f"v_mov_b32 {v(vt + 1)}, {s(S_ROLEG)}")
    A("s_mov_b64 exec, 1")
    A(f"buffer_atomic_add {v(vt)}, {v(vt + 1)}, {s(SRD_DBG, 4)}, 0 offen sc1")
    A("s_mov_b64 exec, -1")
    A.label(lab)


def init_barrier_wait(A, vt, nwg, cfg):
    tmark(A, cfg, 1, vt)
    top = A.newlabel("ibw")
    A(f"s_lshl_b32 {s(S_ROLEG)}, {s(S_MODE)}, 2")
    A(f"v_mov_b32 {v(vt + 1)}, {s(S_ROLEG)}")
    A.label(top)
    A(f"buffer_load_dword {v(vt)}, {v(vt + 1)}, {s(SRD_DBG, 4)}, 0 offen sc1")
    A("s_waitcnt vmcnt(0)")
    A(f"v_cmp_ne_u32 vcc, {nwg}, {v(vt)}")
    poll_tail(A, top, sleep=8)
    ok = A.newlabel("ibok")
    A(f"s_cmp_lg_u32 {s(S_MODE)}, 0")
    A(f"s_cbranch_scc1 {ok}")
    A(f"v_and_b32 {v(vt + 1)}, 7, v0")
    A(f"v_lshlrev_b32 {v(vt + 1)}, 2, {v(vt + 1)}")
    A(f"buffer_load_dword {v(vt)}, {v(vt + 1)}, {s(SRD_DBG, 4)}, 0 offen offset:32 sc1")
    A("s_waitcnt vmcnt(0)")
    A(f"v_cmp_ne_u32 vcc, {1000 if cfg.force_fallback else 32}, {v(vt)}")
    A(f"s_cbranch_vccz {ok}")
    A("s_barrier")
    A(f"s_mov_b32 {s(S_MODE)}, 1")
    A(f"s_mov_b32 {s(S_ROLEG)}, s2")
    A(f"s_load_dwordx16 {s(16, 16)}, s[0:1], 0")
    A(f"s_load_dwordx8 {s(32, 8)}, s[0:1], 64")
    A("s_waitcnt lgkmcnt(0)")
    A("s_branch DISPATCH")
    A.label(ok)
    tmark(A, cfg, 2, vt)


def lstore(A, text):
    l1, l2 = A.newlabel("ls"), A.newlabel("ls")
    if isinstance(text, str):
        text = [text]
    A(f"s_cmp_lg_u32 {s(S_MODE)}, 0")
    A(f"s_cbranch_scc1 {l1}")
    for x in text:
        A(x)
    A(f"s_branch {l2}")
    A.label(l1)
    for x in text:
        A(x + " sc1" if x.startswith("buffer_store") else x)
    A.label(l2)


def maxtree(A, dst, regs):
    regs = list(regs)
    if len(regs) < 6:
        A(f"v_max3_u32 {v(dst)}, {v(regs[0])}, {v(regs[1])}, {v(regs[2])}")
        rest = regs[3:]
        while len(rest) >= 2:
            A(f"v_max3_u32 {v(dst)}, {v(dst)}, {v(rest[0])}, {v(rest[1])}")
            rest = rest[2:]
        if rest:
            A(f"v_max_u32 {v(dst)}, {v(dst)}, {v(rest[0])}")
        return
    A(f"v_max3_u32 {v(dst)}, {v(regs[0])}, {v(regs[1])}, {v(regs[2])}")
    A(f"v_max3_u32 {v(dst + 1)}, {v(regs[3])}, {v(regs[4])}, {v(regs[5])}")
    rest = regs[6:]
    k = 0
    while len(rest) >= 2:
        A(f"v_max3_u32 {v(dst + k)}, {v(dst + k)}, {v(rest[0])}, {v(rest[1])}")
        rest = rest[2:]
        k ^= 1
    if rest:
        A(f"v_max3_u32 {v(dst)}, {v(dst)}, {v(dst + 1)}, {v(rest[0])}")
    else:
        A(f"v_max_u32 {v(dst)}, {v(dst)}, {v(dst + 1)}")


def xreduce(A, op, r, t):
    A(f"v_mov_b32 {v(t)}, {v(r)}")
    A(f"v_permlane32_swap_b32 {v(r)}, {v(t)}")
    A(f"{op} {v(r)}, {v(r)}, {v(t)}")
    A(f"v_mov_b32 {v(t)}, {v(r)}")
    A(f"v_permlane16_swap_b32 {v(r)}, {v(t)}")
    A(f"{op} {v(r)}, {v(r)}, {v(t)}")


class RawStamper:
    def __init__(self, A, cfg, base, s_t, vreg, t0=20):
        self.A, self.b, self.s_t, self.vr, self.t0 = A, base, s_t, vreg, t0

    def cal(self, lane):
        A, b = self.A, self.b
        A(f"s_memrealtime {s(b + 2, 2)}")
        A(f"s_memtime {s(b, 2)}")
        A("s_waitcnt lgkmcnt(0)")
        A(f"s_lshl_b64 exec, 1, {lane}")
        A(f"v_mov_b32 {v(self.vr)}, {s(b)}")
        A(f"s_lshl_b64 exec, 1, {lane + 1}")
        A(f"v_mov_b32 {v(self.vr)}, {s(b + 2)}")
        A("s_mov_b64 exec, -1")

    def init(self):
        self.A(f"v_mov_b32 {v(self.vr)}, 0")
        self.cal(56)

    def __call__(self, k):
        A, b = self.A, self.b
        A(f"s_memtime {s(b, 2)}")
        A(f"s_sub_u32 {s(b + 2)}, {s(self.s_t)}, {self.t0}")
        A(f"s_lshl_b32 {s(b + 3)}, {s(b + 2)}, 3")
        A(f"s_add_u32 {s(b + 3)}, {s(b + 3)}, {k}")
        A(f"s_cmp_lt_u32 {s(b + 2)}, 7")
        A(f"s_cselect_b32 {s(b + 3)}, {s(b + 3)}, 63")
        A(f"s_lshl_b64 exec, 1, {s(b + 3)}")
        A("s_waitcnt lgkmcnt(0)")
        A(f"v_mov_b32 {v(self.vr)}, {s(b)}")
        A("s_mov_b64 exec, -1")

    def dump(self, s_idx, stmp, vt):
        A = self.A
        self.cal(58)
        A(f"s_lshl_b32 {s(stmp)}, {s(s_idx)}, 2")
        A(f"s_add_u32 {s(stmp)}, {s(stmp)}, {s(S_WAVE)}")
        A(f"s_lshl_b32 {s(stmp)}, {s(stmp)}, 8")
        A(f"s_add_u32 {s(stmp)}, {s(stmp)}, {RAWST}")
        A(f"v_lshlrev_b32 {v(vt)}, 2, v0")
        A(f"buffer_store_dword {v(self.vr)}, {v(vt)}, {s(SRD_WS, 4)}, {s(stmp)} offen")


class Stamper:
    def __init__(self, A, cfg, base, n, on=None):
        self.A, self.on, self.b, self.n = A, (cfg.timing == 2 if on is None else on), base, n

    def init(self):
        if self.on:
            self.A(f"s_memrealtime {s(self.b, 2)}")
            self.A("s_waitcnt lgkmcnt(0)")
            self.A(f"s_mov_b32 s101, {s(self.b)}")
            self(0)
            for k in range(self.n):
                self.A(f"s_mov_b32 {s(self.b + 3 + k)}, 0")

    def __call__(self, k):
        if not self.on:
            return
        A, b = self.A, self.b
        A(f"s_memtime {s(b, 2)}")
        A("s_waitcnt lgkmcnt(0)")
        A(f"s_sub_u32 {s(b + 1)}, {s(b)}, {s(b + 2)}")
        A(f"s_add_u32 {s(b + 3 + k)}, {s(b + 3 + k)}, {s(b + 1)}")
        A(f"s_mov_b32 {s(b + 2)}, {s(b)}")

    def dump(self, s_idx, stmp, vt):
        if not self.on:
            return
        A = self.A
        A(f"s_lshl_b32 {s(stmp)}, {s(s_idx)}, 2")
        A(f"s_add_u32 {s(stmp)}, {s(stmp)}, {s(S_WAVE)}")
        A(f"s_lshl_b32 {s(stmp)}, {s(stmp)}, 6")
        A(f"s_add_u32 {s(stmp)}, {s(stmp)}, 0xE0000")
        A(f"v_mov_b32 {v(vt + 2)}, 0")
        A("s_mov_b64 exec, 1")
        for k in range(self.n):
            A(f"v_mov_b32 {v(vt)}, {s(self.b + 3 + k)}")
            A(f"buffer_store_dword {v(vt)}, {v(vt + 2)}, {s(SRD_WS, 4)}, {s(stmp)} offen offset:{4 * k}")
        A(f"v_mov_b32 {v(vt)}, {s(S_SPIN)}")
        A(f"buffer_store_dword {v(vt)}, {v(vt + 2)}, {s(SRD_WS, 4)}, {s(stmp)} offen offset:60")
        A(f"s_memrealtime {s(self.b, 2)}")
        A("s_waitcnt lgkmcnt(0)")
        A(f"s_sub_u32 {s(self.b)}, {s(self.b)}, s101")
        A(f"v_mov_b32 {v(vt)}, {s(self.b)}")
        A(f"buffer_store_dword {v(vt)}, {v(vt + 2)}, {s(SRD_WS, 4)}, {s(stmp)} offen offset:56")
        A("s_mov_b64 exec, -1")


def tmark(A, cfg, k, vt):
    if cfg.timing != 4:
        return
    A("s_memrealtime s[98:99]")
    A(f"s_lshl_b32 s97, {s(S_GID)}, 2")
    A(f"s_add_u32 s97, s97, {s(S_WAVE)}")
    A("s_lshl_b32 s97, s97, 6")
    A(f"s_add_u32 s97, s97, {0x100000 + 4 * k}")
    A("s_waitcnt lgkmcnt(0)")
    A(f"v_mov_b32 {v(vt)}, s98")
    A(f"v_mov_b32 {v(vt + 1)}, 0")
    A("s_mov_b64 exec, 1")
    A(f"buffer_store_dword {v(vt)}, {v(vt + 1)}, {s(SRD_WS, 4)}, s97 offen")
    A("s_mov_b64 exec, -1")
```

```python
from common import *
import struct
import math


def f32(x):
    return "0x%08x" % struct.unpack("<I", struct.pack("<f", x))[0]


WS = s(SRD_WS, 4)
PRE_FLAG = [None]
TSFLAG = [0]
V_LANE, V_L16, V_FO, V_FV, V_LB, V_ONE = 0, 1, 2, 3, 4, 5
V_T = 6
V_P16 = 15
S_I, S_L, S_S, S_NL, S_NS, S_DEF, S_IDX, S_BUF = range(50, 58)
S_C0 = 58
T = 60
S_K = 68
S_FADDR = 82
DUMMY = -1


def item_of(A, i_reg, rl, rs, A0, first, t):
    B = 64 - A0
    A(f"s_sub_u32 {s(t)}, {s(i_reg)}, {A0}")
    A(f"s_lshr_b32 {s(rs)}, {s(t)}, 1")
    A(f"s_and_b32 {s(rl)}, {s(t)}, 1")
    if first:
        A(f"s_xor_b32 {s(rl)}, {s(rl)}, 1")
    A(f"s_cmp_eq_u32 {s(rl)}, 0")
    A(f"s_cselect_b32 {s(t + 1)}, {A0}, 0")
    A(f"s_add_u32 {s(rs)}, {s(rs)}, {s(t + 1)}")
    A(f"s_sub_u32 {s(t + 1)}, {s(t)}, {B}")
    A(f"s_cmp_ge_u32 {s(t)}, {2 * B}")
    A(f"s_cselect_b32 {s(rs)}, {s(t + 1)}, {s(rs)}")
    A(f"s_cselect_b32 {s(rl)}, 1, {s(rl)}")
    A(f"s_cmp_lt_u32 {s(i_reg)}, {A0}")
    A(f"s_cselect_b32 {s(rs)}, {s(i_reg)}, {s(rs)}")
    A(f"s_cselect_b32 {s(rl)}, 0, {s(rl)}")


def p16_setup(A, dst):
    A(f"v_bfe_u32 {v(V_T)}, {v(V_LANE)}, 2, 2")
    A(f"v_lshrrev_b32 {v(V_T + 1)}, 4, {v(V_LANE)}")
    A(f"v_add_u32 {v(V_T + 1)}, {v(V_T)}, {v(V_T + 1)}")
    A(f"v_and_b32 {v(V_T + 1)}, 3, {v(V_T + 1)}")
    A(f"v_and_b32 {v(dst)}, 3, {v(V_LANE)}")
    A(f"v_lshlrev_b32 {v(dst)}, 4, {v(dst)}")
    A(f"v_lshl_add_u32 {v(dst)}, {v(V_T + 1)}, 6, {v(dst)}")
    A(f"v_lshl_add_u32 {v(dst)}, {v(V_T)}, 8, {v(dst)}")


def base_setup(A):
    A(f"v_lshlrev_b32 {v(V_L16)}, 4, {v(V_LANE)}")
    A(f"v_mov_b32 {v(V_ONE)}, 1")
    A(f"s_lshl_b32 {s(S_IDX)}, {s(S_ROLE)}, 2")
    A(f"s_add_u32 {s(S_IDX)}, {s(S_IDX)}, {s(S_WAVE)}")
    p16_setup(A, V_P16)


def zero_flags(A, kind_off_reg_or_const, idx_reg, layers=(0, 1)):
    return


def row_of(A, dst, rl, rs, base):
    A(f"s_lshl_b32 {s(dst)}, {s(rl)}, 6")
    A(f"s_add_u32 {s(dst)}, {s(dst)}, {s(rs)}")
    A(f"s_lshl_b32 {s(dst)}, {s(dst)}, 9")
    A(f"s_add_u32 {s(dst)}, {s(dst)}, {base}")


def flag_addr(A, dst, base, idx_reg=S_IDX, rl=S_L, rs=S_S):
    row_of(A, dst, rl, rs, base)
    A(f"s_lshl_b32 {s(T + 1)}, {s(idx_reg)}, 2")
    A(f"s_add_u32 {s(dst)}, {s(dst)}, {s(T + 1)}")


def set_flag(A, base, idx_reg=S_IDX, rl=S_L, rs=S_S):
    if PRE_FLAG[0]:
        flag_addr(A, S_FADDR, base, idx_reg, rl, rs)
        return
    flag_addr(A, T, base, idx_reg, rl, rs)
    A("s_waitcnt vmcnt(0)")
    flag_store(A, T)


def flag_store(A, T, LS=" sc1"):
    if TSFLAG[0]:
        A(f"s_memrealtime {s(98, 2)}")
        A("s_waitcnt lgkmcnt(0)")
        A(f"s_or_b32 s98, s98, 1")
        A(f"v_mov_b32 {v(V_ONE)}, s98")
    A("s_mov_b64 exec, 1")
    A(f"buffer_store_dword {v(V_ONE)}, {v(V_L16)}, {WS}, {s(T)} offen{LS}")
    A("s_mov_b64 exec, -1")


def flag_block(A, soff_reg, vo=V_FO, vv=V_FV, wide=False, sleep=2):
    if CFG[0].fsl >= 0:
        sleep = CFG[0].fsl
    top = A.newlabel("fb")
    A.label(top)
    if wide:
        A(f"buffer_load_dwordx2 {v(vv, 2)}, {v(vo)}, {WS}, {s(soff_reg)} offen sc1")
        A("s_waitcnt vmcnt(0)")
        A(f"v_min_u32 {v(vv)}, {v(vv)}, {v(vv + 1)}")
    else:
        A(f"buffer_load_dword {v(vv)}, {v(vo)}, {WS}, {s(soff_reg)} offen sc1")
        A("s_waitcnt vmcnt(0)")
    A(f"v_cmp_eq_u32 vcc, 0, {v(vv)}")
    poll_tail(A, top, sleep=sleep)


def flag_block_wg(A, soff_reg, **kw):
    if not CFG[0].wgp:
        flag_block(A, soff_reg, **kw)
        return
    lab = A.newlabel("wp")
    A(f"s_cmp_lg_u32 {s(S_WAVE)}, 0")
    A(f"s_cbranch_scc1 {lab}")
    sv = CFG[0].fsl
    CFG[0].fsl = CFG[0].wgp - 1
    flag_block(A, soff_reg, **kw)
    CFG[0].fsl = sv
    A.label(lab)
    A("s_barrier")


S_SPIN2 = 59


def rdy_init(A, cfg, va, addr):
    A(f"s_mov_b32 {s(S_SPIN2)}, {cfg.spin * 8}")
    A(f"v_mov_b32 {v(va)}, {addr}")
    A(f"v_mov_b32 {v(va + 1)}, 0")
    A(f"ds_write_b32 {v(va)}, {v(va + 1)}")
    A("s_waitcnt lgkmcnt(0)")
    A("s_barrier")


def rdy_set(A, va, plus, tmp):
    A(f"s_add_u32 {s(tmp)}, {s(S_I)}, {plus}")
    A(f"v_mov_b32 {v(va + 1)}, {s(tmp)}")
    A(f"ds_write_b32 {v(va)}, {v(va + 1)}")


def wg_wait(A, cfg, va, soff, tmp, **kw):
    oth, done = A.newlabel("wo"), A.newlabel("wd")
    A(f"s_cmp_lg_u32 {s(S_WAVE)}, 0")
    A(f"s_cbranch_scc1 {oth}")
    sv = cfg.fsl
    cfg.fsl = cfg.wgp - 1
    flag_block(A, soff, **kw)
    cfg.fsl = sv
    rdy_set(A, va, 0, tmp)
    A(f"s_branch {done}")
    A.label(oth)
    A(f"ds_read_b32 {v(va + 1)}, {v(va)}")
    A("s_waitcnt lgkmcnt(0)")
    A(f"v_cmp_gt_u32 vcc, {s(S_I)}, {v(va + 1)}")
    A(f"s_cbranch_vccz {done}")
    A(f"s_sleep {CFG[0].lsl}")
    A(f"s_sub_u32 {s(S_SPIN2)}, {s(S_SPIN2)}, 1")
    A("s_cbranch_scc1 ABORT")
    A(f"s_branch {oth}")
    A.label(done)


def rnd2(A, pk, x0, x1):
    A(f"v_cvt_pk_bf16_f32 {v(pk)}, {v(x0)}, {v(x1)}")
    A(f"v_lshlrev_b32 {v(x0)}, 16, {v(pk)}")
    A(f"v_and_b32 {v(x1)}, 0xffff0000, {v(pk)}")


def rnd1(A, x, tmp):
    A(f"v_cvt_pk_bf16_f32 {v(tmp)}, {v(x)}, {v(x)}")
    A(f"v_lshlrev_b32 {v(x)}, 16, {v(tmp)}")


def finish_stats(A, s1, s2, tmp, keep=None, scaled=False):
    if not scaled:
        A(f"v_mul_f32 {v(s1)}, {f32(1.0 / 640)}, {v(s1)}")
        A(f"v_mul_f32 {v(s2)}, {f32(1.0 / 640)}, {v(s2)}")
        A(f"v_fma_f32 {v(s2)}, -{v(s1)}, {v(s1)}, {v(s2)}")
        A(f"v_max_f32 {v(s2)}, 0, {v(s2)}")
    if keep is not None:
        A(f"v_mov_b32 {v(keep)}, {v(s1)}")
        A(f"v_mov_b32 {v(keep + 1)}, {v(s2)}")
    rnd2(A, tmp, s1, s2)
    A(f"v_add_f32 {v(s2)}, {f32(1e-5)}, {v(s2)}")
    rnd1(A, s2, tmp)
    A(f"v_sqrt_f32 {v(s2)}, {v(s2)}")
    rnd1(A, s2, tmp)
    A(f"v_rcp_f32 {v(s2)}, {v(s2)}")


GELU_C0 = -2.0 * math.sqrt(2.0 / math.pi) * math.log2(math.e)
GELU_C1 = GELU_C0 * 0.044715


def gelu_pack(A, vals, out, tmps, v_c0, s_c1):
    n = len(vals)
    if CFG[0].gpk:
        for i in range(0, n, 2):
            rnd2(A, tmps[n], vals[i], vals[i + 1])
        for i in range(0, n, 2):
            A(f"v_pk_mul_f32 {v(tmps[i], 2)}, {v(vals[i], 2)}, {v(vals[i], 2)}")
        for i in range(0, n, 2):
            A(f"v_pk_fma_f32 {v(tmps[i], 2)}, {v(tmps[i], 2)}, {v(v_c0, 2)}, {v(v_c0, 2)} op_sel:[0,1,0] op_sel_hi:[1,1,0]")
        for i in range(0, n, 2):
            A(f"v_pk_mul_f32 {v(tmps[i], 2)}, {v(tmps[i], 2)}, {v(vals[i], 2)}")
        for i in range(n):
            A(f"v_exp_f32 {v(tmps[i])}, {v(tmps[i])}")
        for i in range(0, n, 2):
            A(f"v_pk_add_f32 {v(tmps[i], 2)}, {v(tmps[i], 2)}, 1.0 op_sel_hi:[1,0]")
        for i in range(n):
            A(f"v_rcp_f32 {v(tmps[i])}, {v(tmps[i])}")
        for i in range(0, n, 2):
            A(f"v_pk_mul_f32 {v(vals[i], 2)}, {v(vals[i], 2)}, {v(tmps[i], 2)}")
        for i in range(0, n, 2):
            A(f"v_cvt_pk_bf16_f32 {v(out + i // 2)}, {v(vals[i])}, {v(vals[i + 1])}")
        return
    for i in range(0, n, 2):
        rnd2(A, tmps[n], vals[i], vals[i + 1])
    for i in range(n):
        A(f"v_mul_f32 {v(tmps[i])}, {v(vals[i])}, {v(vals[i])}")
    for i in range(n):
        A(f"v_fma_f32 {v(tmps[i])}, {v(tmps[i])}, {s(s_c1)}, {v(v_c0)}")
    for i in range(n):
        A(f"v_mul_f32 {v(tmps[i])}, {v(tmps[i])}, {v(vals[i])}")
    for i in range(n):
        A(f"v_exp_f32 {v(tmps[i])}, {v(tmps[i])}")
    for i in range(n):
        A(f"v_add_f32 {v(tmps[i])}, 1.0, {v(tmps[i])}")
    for i in range(n):
        A(f"v_rcp_f32 {v(tmps[i])}, {v(tmps[i])}")
    for i in range(n):
        A(f"v_mul_f32 {v(vals[i])}, {v(vals[i])}, {v(tmps[i])}")
    for i in range(0, n, 2):
        A(f"v_cvt_pk_bf16_f32 {v(out + i // 2)}, {v(vals[i])}, {v(vals[i + 1])}")


def stats_consume(A, v_sa, r, tmp):
    A(f"v_add_u32 {v(tmp)}, 0x800, {v(v_sa)}")
    for i in range(4):
        A(f"ds_read2_b64 {v(r + 4 * i, 4)}, {v(v_sa)} offset0:{64 * i} offset1:{64 * i + 32}")
    A(f"ds_read2_b64 {v(r + 16, 4)}, {v(tmp)} offset0:0 offset1:32")


def stats_reduce(A, r, out, tmp):
    for st in ((0, 10), (2, 12), (4, 14), (6, 16), (8, 18), (0, 2), (4, 6), (0, 4), (0, 8)):
        A(f"v_pk_add_f32 {v(r + st[0], 2)}, {v(r + st[0], 2)}, {v(r + st[1], 2)}")
    for k in range(2):
        A(f"v_mov_b32 {v(r + 2 + k)}, {v(r + k)}")
    for k in range(2):
        A(f"v_permlane16_swap_b32 {v(r + k)}, {v(r + 2 + k)}")
    for k in range(2):
        A(f"v_add_f32 {v(out + k)}, {v(r + k)}, {v(r + 2 + k)}")
    finish_stats(A, out, out + 1, tmp)
    for k in range(2):
        A(f"v_mov_b32 {v(out + 2 + k)}, {v(out + k)}")
    for k in range(2):
        A(f"v_permlane32_swap_b32 {v(out + k)}, {v(out + 2 + k)}")


def stats_produce(A, x0, x1, t, v_addr, soff_reg):
    for k, xs in enumerate((x0, x1)):
        A(f"v_add_f32 {v(t + k)}, {v(xs[0])}, {v(xs[1])}")
        A(f"v_mul_f32 {v(t + 2 + k)}, {v(xs[0])}, {v(xs[0])}")
        for i in range(1, 8):
            if i >= 2:
                A(f"v_add_f32 {v(t + k)}, {v(t + k)}, {v(xs[i])}")
            A(f"v_fmac_f32 {v(t + 2 + k)}, {v(xs[i])}, {v(xs[i])}")
    A(f"v_permlane32_swap_b32 {v(t)}, {v(t + 1)}")
    A(f"v_permlane32_swap_b32 {v(t + 2)}, {v(t + 3)}")
    A(f"v_add_f32 {v(t)}, {v(t)}, {v(t + 1)}")
    A(f"v_add_f32 {v(t + 1)}, {v(t + 2)}, {v(t + 3)}")
    A(f"v_mov_b32 {v(t + 2)}, {v(t)}")
    A(f"v_mov_b32 {v(t + 3)}, {v(t + 1)}")
    A(f"v_permlane16_swap_b32 {v(t)}, {v(t + 2)}")
    A(f"v_permlane16_swap_b32 {v(t + 1)}, {v(t + 3)}")
    A(f"v_add_f32 {v(t)}, {v(t)}, {v(t + 2)}")
    A(f"v_add_f32 {v(t + 1)}, {v(t + 1)}, {v(t + 3)}")
    A("s_mov_b32 exec_lo, 0xffff")
    A("s_mov_b32 exec_hi, 0xffff")
    A(f"buffer_store_dwordx2 {v(t, 2)}, {v(v_addr)}, {WS}, {s(soff_reg)} offen sc1")
    A("s_mov_b64 exec, -1")


class Capture:
    def __init__(self):
        self.l = []

    def __call__(self, x):
        self.l.append(x)

    def groups(self):
        out, cur = [], []
        for x in self.l:
            cur.append(x)
            if x.endswith(" lds"):
                out.append(cur)
                cur = []
        assert not cur
        return out


class Gemm:
    name = ""
    nk = 20
    NT = 2
    swap = False
    bufsz = 40960
    order = "d"
    jchk = 5
    nstores = 2
    pin = False
    fillrate = 3
    V_ACC = 16
    V_FR = 48
    V_X = 80

    def __init__(self, A, cfg, nwg):
        self.A, self.cfg, self.nwg = A, cfg, nwg

    def wreg(self, tau, j):
        idx = tau * self.nk + j
        if idx < 64:
            return ("a", idx * 4)
        return ("v", 256 - (self.NT * self.nk - idx) * 4)

    def wtxt(self, tau, j):
        k, r = self.wreg(tau, j)
        return a(r, 4) if k == "a" else v(r, 4)

    def acc(self, tau, tt):
        return self.V_ACC + (tau * 2 + tt) * 4

    def setup(self): pass
    def init_stores(self): pass
    def weights(self, WL): pass
    def post_weights(self): pass
    def flag_soff(self, dst, rl, rs): pass
    def dma(self, rl, rs, ldsreg): pass
    def early(self): return 0
    def mid(self): return []
    def epilogue(self): pass

    def item(self, i_reg, rl, rs):
        if self.order == "q":
            item_of(self.A, i_reg, rl, rs, self.cfg.QA, 1, T)
        else:
            item_of(self.A, i_reg, rl, rs, self.cfg.LAG + self.cfg.dlt, 0, T)

    def lin_dma(self, src_reg, ldsreg, nb):
        A = self.A
        for b in range(nb):
            if b % 4 == 0:
                A(f"s_add_u32 m0, {s(ldsreg)}, {b * 1024}")
                A(f"s_add_u32 {s(T + 3)}, {s(src_reg)}, {b * 1024}")
            A(f"buffer_load_dwordx4 {v(V_L16)}, {WS}, {s(T + 3)} offen offset:{(b % 4) * 1024} sc1 lds")

    def gen(self):
        A, cfg = self.A, self.cfg
        nm = self.name
        A.label("ROLE_" + nm)
        base_setup(A)
        self.setup()
        self.init_stores()
        init_barrier_arrive(A, V_T)
        late = self.order != "q" and cfg.late_w
        if late:
            init_barrier_wait(A, V_T, self.nwg, cfg)
            A(f"s_sleep {cfg.late_w}")
        WL = WLoader(A, V_T, T + 3)
        self.weights(WL)
        WL.emit(V_LANE)
        self.post_weights()
        A("s_barrier")
        if not late:
            init_barrier_wait(A, V_T, self.nwg, cfg)
        A(f"s_mov_b32 {s(S_I)}, 0")
        A(f"s_mov_b32 {s(S_BUF)}, 0")
        st = self.st = Stamper(A, cfg, 84, 8)
        A(f"s_mov_b32 s83, {s(S_GID)}")
        self.item(S_I, S_L, S_S)
        self.flag_soff(T + 7, S_L, S_S)
        self.flag_block(T + 7)
        self.dma(S_L, S_S, S_BUF)
        st.init()
        A("s_waitcnt vmcnt(0)")
        A(f"s_mov_b32 {s(S_FADDR)}, {DUMMY}")
        A.label(nm + "_LOOP")
        cap0 = Capture()
        self.A = cap0
        cap0(f"s_add_u32 {s(T + 6)}, {s(S_I)}, 1")
        cap0(f"s_min_u32 {s(T + 6)}, {s(T + 6)}, 127")
        self.item(T + 6, S_NL, S_NS)
        self.flag_soff(T + 7, S_NL, S_NS)
        self.flag_load(T + 7)
        self.early()
        self.mid()
        self.A = A
        fill = cap0.l
        A(f"v_add_u32 {v(V_LB)}, {s(S_BUF)}, {v(V_P16 if self.pin else V_L16)}")
        A("s_barrier")
        st(0)
        nk, NT = self.nk, self.NT
        D = 3

        def rd(j):
            for tt in range(2):
                A(f"ds_read_b128 {v(self.V_FR + ((j % 4) * 2 + tt) * 4, 4)}, {v(V_LB)} offset:{(j * 2 + tt) * 1024}")

        def kstep(j, extra=None):
            if j + D < nk:
                rd(j + D)
                A(f"s_waitcnt lgkmcnt({2 * D})")
            else:
                A(f"s_waitcnt lgkmcnt({2 * (nk - 1 - j)})")
            n = 0
            for tau in range(NT):
                for tt in range(2):
                    c = "0" if j == 0 else v(self.acc(tau, tt), 4)
                    fr = v(self.V_FR + ((j % 4) * 2 + tt) * 4, 4)
                    w = self.wtxt(tau, j)
                    x, y = (fr, w) if self.swap else (w, fr)
                    A(f"v_mfma_f32_16x16x32_bf16 {v(self.acc(tau, tt), 4)}, {x}, {y}, {c}")
                    n += 1
                    if extra and n == 1:
                        for e in extra:
                            A(e)
                    if j >= 1:
                        for _ in range(self.fillrate):
                            if fill:
                                A(fill.pop(0))
        self.pre_mfma()
        for j in range(D):
            rd(j)
        jchk = self.jchk
        for j in range(jchk + 1):
            kstep(j)
        while fill:
            A(fill.pop(0))
        nod, join = A.newlabel("nod"), A.newlabel("join")
        A("s_waitcnt vmcnt(0)")
        st(1)
        nof = A.newlabel("nof")
        A(f"s_cmp_eq_u32 {s(S_FADDR)}, {DUMMY}")
        A(f"s_cbranch_scc1 {nof}")
        flag_store(A, S_FADDR)
        A.label(nof)
        self.flag_check()
        A(f"s_mov_b32 {s(S_DEF)}, 1")
        A(f"s_cbranch_vccnz {nod}")
        A(f"s_mov_b32 {s(S_DEF)}, 0")
        A(f"s_xor_b32 {s(T + 6)}, {s(S_BUF)}, {self.bufsz}")
        cap = Capture()
        self.A = cap
        self.dma(S_NL, S_NS, T + 6)
        self.A = A
        groups = cap.groups()
        rem = list(range(jchk + 1, nk))
        per = -(-len(groups) // len(rem))
        for j in rem:
            ex = []
            for _ in range(per):
                if groups:
                    ex += groups.pop(0)
            kstep(j, ex)
        assert not groups
        A(f"s_branch {join}")
        A.label(nod)
        for j in rem:
            kstep(j)
        A.label(join)
        st(3)
        PRE_FLAG[0] = True
        self.epilogue()
        PRE_FLAG[0] = None
        st(4)
        A(f"s_add_u32 {s(S_I)}, {s(S_I)}, 1")
        A(f"s_cmp_eq_u32 {s(S_I)}, 128")
        A(f"s_cbranch_scc1 {nm}_END")
        A(f"s_xor_b32 {s(S_BUF)}, {s(S_BUF)}, {self.bufsz}")
        A(f"s_mov_b32 {s(S_L)}, {s(S_NL)}")
        A(f"s_mov_b32 {s(S_S)}, {s(S_NS)}")
        A(f"s_cmp_eq_u32 {s(S_DEF)}, 0")
        A(f"s_cbranch_scc1 {nm}_OKN")
        A("s_waitcnt vmcnt(0)")
        flag_store(A, S_FADDR)
        A(f"s_mov_b32 {s(S_FADDR)}, {DUMMY}")
        st(5)
        self.flag_soff(T + 7, S_L, S_S)
        self.flag_block(T + 7)
        st(6)
        self.dma(S_L, S_S, S_BUF)
        A("s_waitcnt vmcnt(0)")
        st(7)
        A(f"s_branch {nm}_LOOP")
        A.label(nm + "_OKN")
        A(f"s_waitcnt vmcnt({self.nstores})")
        A(f"s_branch {nm}_LOOP")
        A.label(nm + "_END")
        A("s_waitcnt vmcnt(0)")
        flag_store(A, S_FADDR)
        st.dump(83, T, V_T)
        A("s_endpgm")

    def pre_mfma(self): pass

    def flag_block(self, soff):
        flag_block_wg(self.A, soff)

    def flag_load(self, soff):
        self.A(f"buffer_load_dword {v(V_FV)}, {v(V_FO)}, {WS}, {s(soff)} offen sc1")

    def flag_check(self):
        self.A(f"v_cmp_eq_u32 vcc, 0, {v(V_FV)}")


class FoldMixin:
    def csum(self, dst):
        A = self.A
        ones = self.V_FR
        for i in range(4):
            A(f"v_mov_b32 {v(ones + i)}, 0x3f803f80")
        for j in range(self.nk):
            for tau in range(self.NT):
                c = "0" if j == 0 else v(dst + 4 * tau, 4)
                w = self.wtxt(tau, j)
                x, y = (v(ones, 4), w) if self.swap else (w, v(ones, 4))
                A(f"v_mfma_f32_16x16x32_bf16 {v(dst + 4 * tau, 4)}, {x}, {y}, {c}")

    def sa_setup(self, v_sa0):
        A = self.A
        A(f"v_lshrrev_b32 {v(V_T)}, 4, {v(V_LANE)}")
        A(f"v_and_b32 {v(V_T)}, 1, {v(V_T)}")
        A(f"v_mul_u32_u24 {v(v_sa0)}, 2560, {v(V_T)}")
        A(f"v_lshrrev_b32 {v(V_T)}, 5, {v(V_LANE)}")
        A(f"v_lshl_add_u32 {v(v_sa0)}, {v(V_T)}, 7, {v(v_sa0)}")
        A(f"v_and_b32 {v(V_T)}, 15, {v(V_LANE)}")
        A(f"v_lshl_add_u32 {v(v_sa0)}, {v(V_T)}, 3, {v(v_sa0)}")
        A(f"v_add_u32 {v(v_sa0)}, 0xa000, {v(v_sa0)}")

    def stats_dma(self, src_reg, ldsreg_raw):
        A = self.A
        A(f"s_lshl_b32 {s(T + 2)}, {s(S_WAVE)}, 10")
        A(f"s_add_u32 {s(T + 2)}, {s(T + 2)}, 40960")
        A(f"s_add_u32 m0, {s(ldsreg_raw)}, {s(T + 2)}")
        A(f"s_add_u32 {s(T + 3)}, {s(src_reg)}, {s(T + 2)}")
        A(f"buffer_load_dwordx4 {v(V_L16)}, {WS}, {s(T + 3)} offen sc1 lds")
        A(f"s_add_u32 m0, {s(ldsreg_raw)}, {44 * 1024}")
        A(f"s_add_u32 {s(T + 3)}, {s(src_reg)}, {44 * 1024}")
        A(f"buffer_load_dwordx4 {v(V_L16)}, {WS}, {s(T + 3)} offen sc1 lds")


class QKV(Gemm, FoldMixin):
    NT = 4
    nk = 20
    bufsz = XSEGS
    order = "q"
    fillrate = 2
    pin = True
    jchk = 7
    nstores = 4
    V_CS = 80
    V_SR = 96
    V_ST = 116
    V_SV = 120
    V_SA0, V_SA = 136, 137
    V_PK = 140
    V_SW, V_SRD = 138, 139
    S_TYPE, S_WG, S_OUT, S_FK = S_K, S_K + 1, S_K + 2, S_K + 3

    def __init__(self, A, cfg, nwg, vtype):
        super().__init__(A, cfg, nwg)
        self.swap = vtype
        self.name = "QKVV" if vtype else "QKVQ"

    def setup(self):
        A = self.A
        if self.swap:
            A(f"s_mov_b32 {s(self.S_WG)}, {s(S_IDX)}")
            A(f"s_mov_b32 {s(self.S_OUT)}, {VX}")
            A(f"s_mov_b32 {s(self.S_FK)}, {flag_row(F_V)}")
        else:
            A(f"s_cmp_ge_u32 {s(S_ROLE)}, 24")
            A(f"s_cselect_b32 {s(self.S_TYPE)}, 1, 0")
            A(f"s_mul_i32 {s(T)}, {s(self.S_TYPE)}, 96")
            A(f"s_sub_u32 {s(self.S_WG)}, {s(S_IDX)}, {s(T)}")
            A(f"s_mul_i32 {s(self.S_OUT)}, {s(self.S_TYPE)}, {QX - KX}")
            A(f"s_add_u32 {s(self.S_OUT)}, {s(self.S_OUT)}, {KX}")
            A(f"s_mul_i32 {s(T)}, {s(self.S_TYPE)}, {flag_row(F_K) - flag_row(F_Q)}")
            A(f"s_sub_u32 {s(self.S_FK)}, {flag_row(F_K)}, {s(T)}")
        A(f"s_lshl_b32 {s(T)}, {s(self.S_WG)}, 12")
        A(f"s_add_u32 {s(self.S_OUT)}, {s(self.S_OUT)}, {s(T)}")
        self.sa_setup(self.V_SA0)
        if self.swap:
            A(f"s_lshl_b32 {s(T)}, {s(S_WAVE)}, 8")
            A(f"s_add_u32 {s(T)}, {s(T)}, {2 * self.bufsz}")
            A(f"v_and_b32 {v(V_T)}, 15, {v(V_LANE)}")
            A(f"v_lshlrev_b32 {v(self.V_SW)}, 3, {v(V_T)}")
            A(f"v_add_u32 {v(self.V_SW)}, {s(T)}, {v(self.V_SW)}")
            A(f"v_lshrrev_b32 {v(V_T)}, 4, {v(V_LANE)}")
            A(f"v_lshlrev_b32 {v(self.V_SRD)}, 5, {v(V_T)}")
            A(f"v_add_u32 {v(self.V_SRD)}, {s(T)}, {v(self.V_SRD)}")

    def init_stores(self):
        zero_flags(self.A, s(self.S_FK), self.S_WG)

    def weights(self, WL):
        A = self.A
        A(f"s_lshl_b32 {s(S_C0)}, {s(self.S_WG)}, 7")

        def srd():
            if self.swap:
                make_srd(A, SRD_W, P_WV, 640 * 12288)
            else:
                A(f"s_cmp_eq_u32 {s(self.S_TYPE)}, 0")
                A(f"s_cselect_b32 {s(SRD_W)}, {s(P_WK)}, {s(P_WQ)}")
                A(f"s_cselect_b32 {s(SRD_W + 1)}, {s(P_WK + 1)}, {s(P_WQ + 1)}")
                A(f"s_mov_b32 {s(SRD_W + 2)}, {640 * 12288}")
                A(f"s_mov_b32 {s(SRD_W + 3)}, 0x20000")
        WL.add(srd, S_C0, 12288, 4, 20, self.wreg)

    def post_weights(self):
        self.csum(self.V_CS)

    def flag_soff(self, dst, rl, rs):
        A = self.A
        row_of(A, dst, rl, rs, flag_row(F_XIN))
        A(f"s_lshl_b32 {s(T)}, {s(rl)}, 5")
        A(f"s_add_u32 {s(T)}, {s(T)}, 7")
        A(f"v_min_u32 {v(V_FO)}, {s(T)}, {v(V_LANE)}")
        A(f"v_lshlrev_b32 {v(V_FO)}, 2, {v(V_FO)}")

    def dma(self, rl, rs, ldsreg):
        A = self.A
        A(f"s_lshl_b32 {s(T)}, {s(rl)}, 6")
        A(f"s_add_u32 {s(T)}, {s(T)}, {s(rs)}")
        A(f"s_mul_i32 {s(T)}, {s(T)}, {XSEGS}")
        A(f"s_add_u32 {s(T)}, {s(T)}, {XIN}")
        self.stats_dma(T, ldsreg)
        A(f"s_mul_i32 {s(T + 1)}, {s(S_WAVE)}, 10240")
        A(f"s_add_u32 {s(T)}, {s(T)}, {s(T + 1)}")
        A(f"s_add_u32 {s(T + 1)}, {s(T + 1)}, {s(ldsreg)}")
        self.lin_dma(T, T + 1, 10)

    def pre_mfma(self):
        A = self.A
        A(f"v_add_u32 {v(self.V_SA)}, {s(S_BUF)}, {v(self.V_SA0)}")
        stats_consume(A, self.V_SA, self.V_SR, V_T)

    def mid(self):
        stats_reduce(self.A, self.V_SR, self.V_ST, V_T)

    def epilogue(self):
        A = self.A
        lab = A.newlabel("l0")
        A(f"s_mul_i32 {s(T + 2)}, {s(S_S)}, {QKV_SEG}")
        A(f"s_add_u32 {s(T + 2)}, {s(T + 2)}, {s(self.S_OUT)}")
        A(f"s_cmp_eq_u32 {s(S_L)}, 0")
        A(f"s_cbranch_scc1 {lab}")
        if self.swap:
            A(f"ds_write_b64 {v(self.V_SW)}, {v(self.V_ST, 2)}")
            A(f"ds_write_b64 {v(self.V_SW)}, {v(self.V_ST + 2, 2)} offset:128")
            A("s_waitcnt lgkmcnt(0)")
            for tt in range(2):
                for hf in range(2):
                    A(f"ds_read_b128 {v(self.V_SV + tt * 8 + hf * 4, 4)}, {v(self.V_SRD)} offset:{tt * 128 + hf * 16}")
            A("s_waitcnt lgkmcnt(0)")
            for tau in range(4):
                for tt in range(2):
                    for r in range(4):
                        x = self.acc(tau, tt) + r
                        A(f"v_fma_f32 {v(x)}, -{v(self.V_SV + tt * 8 + 2 * r)}, {v(self.V_CS + 4 * tau)}, {v(x)}")
                for tt in range(2):
                    for r in range(4):
                        x = self.acc(tau, tt) + r
                        A(f"v_mul_f32 {v(x)}, {v(x)}, {v(self.V_SV + tt * 8 + 2 * r + 1)}")
        else:
            for tau in range(4):
                for tt in range(2):
                    for r in range(4):
                        x = self.acc(tau, tt) + r
                        A(f"v_fma_f32 {v(x)}, -{v(self.V_ST + 2 * tt)}, {v(self.V_CS + 4 * tau + r)}, {v(x)}")
                for tt in range(2):
                    for r in range(4):
                        x = self.acc(tau, tt) + r
                        A(f"v_mul_f32 {v(x)}, {v(x)}, {v(self.V_ST + 2 * tt + 1)}")
        A.label(lab)
        for b in range(4):
            if self.swap:
                lo, hi = self.acc(b, 0), self.acc(b, 1)
            else:
                p, tt = b >> 1, b & 1
                lo, hi = self.acc(2 * p, tt), self.acc(2 * p + 1, tt)
            pk = self.V_PK + 4 * b
            A(f"v_cvt_pk_bf16_f32 {v(pk)}, {v(lo)}, {v(lo + 1)}")
            A(f"v_cvt_pk_bf16_f32 {v(pk + 1)}, {v(lo + 2)}, {v(lo + 3)}")
            A(f"v_cvt_pk_bf16_f32 {v(pk + 2)}, {v(hi)}, {v(hi + 1)}")
            A(f"v_cvt_pk_bf16_f32 {v(pk + 3)}, {v(hi + 2)}, {v(hi + 3)}")
            A(f"buffer_store_dwordx4 {v(pk, 4)}, {v(V_L16)}, {WS}, {s(T + 2)} offen offset:{b * 1024} sc1")
        set_flag(A, s(self.S_FK), self.S_WG)


class WO(Gemm):
    name = "WO"
    NT = 2
    nk = 32
    bufsz = 65536
    jchk = 7
    nstores = 4
    S_KG, S_CG, S_OUT = S_K, S_K + 1, S_K + 2
    V_SO = 80

    def setup(self):
        A = self.A
        A(f"s_mul_i32 {s(self.S_KG)}, {s(S_ROLE)}, 52429")
        A(f"s_lshr_b32 {s(self.S_KG)}, {s(self.S_KG)}, 18")
        A(f"s_mul_i32 {s(T)}, {s(self.S_KG)}, 5")
        A(f"s_sub_u32 {s(self.S_CG)}, {s(S_ROLE)}, {s(T)}")
        A(f"s_lshl_b32 {s(T)}, {s(self.S_KG)}, 5")
        A(f"s_mul_i32 {s(T + 1)}, {s(T)}, 43691")
        A(f"s_lshr_b32 {s(T + 1)}, {s(T + 1)}, 18")
        A(f"s_add_u32 {s(T)}, {s(T)}, 31")
        A(f"s_mul_i32 {s(T)}, {s(T)}, 43691")
        A(f"s_lshr_b32 {s(T)}, {s(T)}, 18")
        A(f"v_add_u32 {v(V_FO)}, {s(T + 1)}, {v(V_LANE)}")
        A(f"v_min_u32 {v(V_FO)}, {s(T)}, {v(V_FO)}")
        A(f"v_lshlrev_b32 {v(V_FO)}, 2, {v(V_FO)}")
        A(f"v_and_b32 {v(V_T)}, 15, {v(V_LANE)}")
        A(f"v_lshrrev_b32 {v(V_T + 1)}, 2, {v(V_T)}")
        A(f"v_mul_u32_u24 {v(self.V_SO)}, 10240, {v(V_T + 1)}")
        A(f"v_and_b32 {v(V_T)}, 3, {v(V_LANE)}")
        A(f"v_lshl_add_u32 {v(self.V_SO)}, {v(V_T)}, 4, {v(self.V_SO)}")
        A(f"v_lshrrev_b32 {v(V_T)}, 4, {v(V_LANE)}")
        A(f"v_lshl_add_u32 {v(self.V_SO)}, {v(V_T)}, 6, {v(self.V_SO)}")
        A(f"s_lshl_b32 {s(T)}, {s(self.S_CG)}, 2")
        A(f"s_add_u32 {s(T)}, {s(T)}, {s(S_WAVE)}")
        A(f"s_lshl_b32 {s(S_C0 + 1)}, {s(T)}, 6")
        A(f"s_lshl_b32 {s(T)}, {s(T)}, 9")
        A(f"s_mul_i32 {s(self.S_OUT)}, {s(self.S_KG)}, 81920")
        A(f"s_add_u32 {s(self.S_OUT)}, {s(self.S_OUT)}, {s(T)}")
        A(f"s_add_u32 {s(self.S_OUT)}, {s(self.S_OUT)}, {WOP}")

    def init_stores(self):
        zero_flags(self.A, flag_row(F_WOP), S_IDX)

    def weights(self, WL):
        A = self.A
        A(f"s_mul_i32 {s(S_C0)}, {s(self.S_KG)}, {1024 * 1280}")
        A(f"s_add_u32 {s(S_C0)}, {s(S_C0)}, {s(S_C0 + 1)}")
        WL.add(lambda: make_srd(A, SRD_W, P_WO, 6144 * 1280), S_C0, 1280, 2, 32, self.wreg)

    def flag_soff(self, dst, rl, rs):
        row_of(self.A, dst, rl, rs, flag_row(F_O))

    def dma(self, rl, rs, ldsreg):
        A = self.A
        A(f"s_mul_i32 {s(T)}, {s(rs)}, {QKV_SEG}")
        A(f"s_lshl_b32 {s(T + 1)}, {s(self.S_KG)}, 16")
        A(f"s_add_u32 {s(T)}, {s(T)}, {s(T + 1)}")
        A(f"s_lshl_b32 {s(T + 1)}, {s(S_WAVE)}, 14")
        A(f"s_add_u32 {s(T)}, {s(T)}, {s(T + 1)}")
        A(f"s_add_u32 {s(T)}, {s(T)}, {OX}")
        A(f"s_add_u32 {s(T + 1)}, {s(T + 1)}, {s(ldsreg)}")
        self.lin_dma(T, T + 1, 16)

    def epilogue(self):
        A = self.A
        A(f"s_mul_i32 {s(T + 2)}, {s(S_S)}, {WOP_SEG}")
        A(f"s_add_u32 {s(T + 2)}, {s(T + 2)}, {s(self.S_OUT)}")
        A(f"s_add_u32 {s(T + 3)}, {s(T + 2)}, 40960")
        for tau in range(2):
            for tt in range(2):
                A(f"buffer_store_dwordx4 {v(self.acc(tau, tt), 4)}, {v(self.V_SO)}, {WS}, {s(T + 2 + tt)} offen offset:{tau * 256} sc1")
        set_flag(A, flag_row(F_WOP))


class W1(Gemm):
    name = "W1"
    pin = True
    V_C0, V_PK, V_TM = 80, 84, 96
    S_C1 = S_K

    def setup(self):
        A = self.A
        A(f"v_min_u32 {v(V_FO)}, 31, {v(V_LANE)}")
        A(f"v_lshlrev_b32 {v(V_FO)}, 2, {v(V_FO)}")
        A(f"v_mov_b32 {v(self.V_C0)}, {f32(GELU_C0)}")
        A(f"v_mov_b32 {v(self.V_C0 + 1)}, {f32(GELU_C1)}")
        A(f"s_mov_b32 {s(self.S_C1)}, {f32(GELU_C1)}")

    def init_stores(self):
        A = self.A
        zero_flags(A, flag_row(F_H), S_IDX)
        for i in range(4):
            A(f"v_mov_b32 {v(self.V_PK + i)}, 0")
        A(f"s_lshl_b32 {s(T)}, {s(S_IDX)}, 11")
        for l in range(2):
            for gseg in (0, 65):
                A(f"s_add_u32 {s(T + 1)}, {s(T)}, {HB + (l * 66 + gseg) * XSEG}")
                for tt in range(2):
                    A(f"buffer_store_dwordx4 {v(self.V_PK, 4)}, {v(V_L16)}, {WS}, {s(T + 1)} offen offset:{tt * 1024} sc1")

    def weights(self, WL):
        A = self.A
        A(f"s_lshl_b32 {s(S_C0)}, {s(S_IDX)}, 6")
        WL.add(lambda: make_srd(A, SRD_W, P_W1, 640 * 1280), S_C0, 1280, 2, 20, self.wreg)

    def flag_soff(self, dst, rl, rs):
        row_of(self.A, dst, rl, rs, flag_row(F_R1))

    def dma(self, rl, rs, ldsreg):
        A = self.A
        A(f"s_lshl_b32 {s(T)}, {s(rl)}, 6")
        A(f"s_add_u32 {s(T)}, {s(T)}, {s(rs)}")
        A(f"s_mul_i32 {s(T)}, {s(T)}, {XSEG}")
        A(f"s_mul_i32 {s(T + 1)}, {s(S_WAVE)}, 10240")
        A(f"s_add_u32 {s(T)}, {s(T)}, {s(T + 1)}")
        A(f"s_add_u32 {s(T)}, {s(T)}, {ZB}")
        A(f"s_add_u32 {s(T + 1)}, {s(T + 1)}, {s(ldsreg)}")
        self.lin_dma(T, T + 1, 10)

    def out_base(self):
        A = self.A
        A(f"s_mul_i32 {s(T + 2)}, {s(S_L)}, 66")
        A(f"s_add_u32 {s(T + 2)}, {s(T + 2)}, {s(S_S)}")
        A(f"s_mul_i32 {s(T + 2)}, {s(T + 2)}, {XSEG}")
        A(f"s_lshl_b32 {s(T + 3)}, {s(S_IDX)}, 11")
        A(f"s_add_u32 {s(T + 2)}, {s(T + 2)}, {s(T + 3)}")
        A(f"s_add_u32 {s(T + 2)}, {s(T + 2)}, {HB + XSEG}")
    out_kind = F_H

    def correct(self): pass

    def epilogue(self):
        A = self.A
        self.out_base()
        self.correct()
        vals = []
        for tt in range(2):
            for tau in range(2):
                vals += [self.acc(tau, tt) + r for r in range(4)]
        gelu_pack(A, vals, self.V_PK, [self.V_TM + i for i in range(17)], self.V_C0, self.S_C1)
        for tt in range(2):
            A(f"buffer_store_dwordx4 {v(self.V_PK + 4 * tt, 4)}, {v(V_L16)}, {WS}, {s(T + 2)} offen offset:{tt * 1024} sc1")
        set_flag(A, flag_row(self.out_kind))


class W3(W1, FoldMixin):
    name = "W3"
    pin = False
    jchk = 7
    bufsz = XSEGS
    out_kind = F_G
    V_CS, V_SR, V_ST, V_SA0, V_SA = 116, 124, 144, 148, 149

    def setup(self):
        A = self.A
        A(f"v_min_u32 {v(V_FO)}, 19, {v(V_LANE)}")
        A(f"v_lshlrev_b32 {v(V_FO)}, 2, {v(V_FO)}")
        A(f"v_mov_b32 {v(self.V_C0)}, {f32(GELU_C0)}")
        A(f"s_mov_b32 {s(self.S_C1)}, {f32(GELU_C1)}")
        self.sa_setup(self.V_SA0)

    def init_stores(self):
        zero_flags(self.A, flag_row(F_G), S_IDX)

    def weights(self, WL):
        A = self.A
        A(f"s_lshl_b32 {s(S_C0)}, {s(S_IDX)}, 6")
        WL.add(lambda: make_srd(A, SRD_W, P_W3, 640 * 3072), S_C0, 3072, 2, 20, self.wreg)

    def post_weights(self):
        self.csum(self.V_CS)

    def flag_soff(self, dst, rl, rs):
        row_of(self.A, dst, rl, rs, flag_row(F_X1))

    def dma(self, rl, rs, ldsreg):
        A = self.A
        A(f"s_lshl_b32 {s(T)}, {s(rl)}, 6")
        A(f"s_add_u32 {s(T)}, {s(T)}, {s(rs)}")
        A(f"s_mul_i32 {s(T)}, {s(T)}, {XSEGS}")
        A(f"s_add_u32 {s(T)}, {s(T)}, {X1B}")
        self.stats_dma(T, ldsreg)
        A(f"s_mul_i32 {s(T + 1)}, {s(S_WAVE)}, 10240")
        A(f"s_add_u32 {s(T)}, {s(T)}, {s(T + 1)}")
        A(f"s_add_u32 {s(T + 1)}, {s(T + 1)}, {s(ldsreg)}")
        self.lin_dma(T, T + 1, 10)

    def pre_mfma(self):
        A = self.A
        A(f"v_add_u32 {v(self.V_SA)}, {s(S_BUF)}, {v(self.V_SA0)}")
        stats_consume(A, self.V_SA, self.V_SR, V_T)

    def mid(self):
        stats_reduce(self.A, self.V_SR, self.V_ST, V_T)

    def out_base(self):
        A = self.A
        A(f"s_lshl_b32 {s(T + 2)}, {s(S_L)}, 6")
        A(f"s_add_u32 {s(T + 2)}, {s(T + 2)}, {s(S_S)}")
        A(f"s_mul_i32 {s(T + 2)}, {s(T + 2)}, {GSEG}")
        A(f"s_lshl_b32 {s(T + 3)}, {s(S_IDX)}, 11")
        A(f"s_add_u32 {s(T + 2)}, {s(T + 2)}, {s(T + 3)}")
        A(f"s_add_u32 {s(T + 2)}, {s(T + 2)}, {GB}")

    def correct(self):
        A = self.A
        for tau in range(2):
            for tt in range(2):
                for r in range(4):
                    x = self.acc(tau, tt) + r
                    A(f"v_fma_f32 {v(x)}, -{v(self.V_ST + 2 * tt)}, {v(self.V_CS + 4 * tau + r)}, {v(x)}")
        for tau in range(2):
            for tt in range(2):
                for r in range(4):
                    x = self.acc(tau, tt) + r
                    A(f"v_mul_f32 {v(x)}, {v(x)}, {v(self.V_ST + 2 * tt + 1)}")


def unpack8(A, dst, src):
    for i in range(4):
        A(f"v_lshlrev_b32 {v(dst + 2 * i)}, 16, {v(src + i)}")
        A(f"v_and_b32 {v(dst + 2 * i + 1)}, 0xffff0000, {v(src + i)}")


def stat_addr_setup(A, dst):
    A(f"v_lshrrev_b32 {v(V_T)}, 5, {v(V_LANE)}")
    A(f"v_and_b32 {v(V_T + 1)}, 15, {v(V_LANE)}")
    A(f"v_lshlrev_b32 {v(dst)}, 3, {v(V_T + 1)}")
    A(f"v_lshl_add_u32 {v(dst)}, {v(V_T)}, 7, {v(dst)}")


class W2(Gemm):
    name = "W2"
    nstores = 3
    V_SH = 80
    V_Y = 84
    V_YU = 96
    V_PK = 112
    V_SAD = 82

    def setup(self):
        A = self.A
        A(f"v_min_u32 {v(V_FO)}, 19, {v(V_LANE)}")
        A(f"v_lshlrev_b32 {v(V_FO)}, 2, {v(V_FO)}")
        A(f"s_lshr_b32 {s(T)}, {s(S_WAVE)}, 1")
        A(f"s_add_u32 {s(T)}, {s(T)}, 1")
        A(f"s_sub_u32 {s(T + 1)}, 32, {s(T)}")
        A(f"s_add_u32 {s(T)}, {s(T)}, 32")
        A(f"s_bitcmp1_b32 {s(S_WAVE)}, 0")
        A(f"s_cselect_b32 {s(T)}, {s(T)}, {s(T + 1)}")
        for tt in range(2):
            A(f"v_and_b32 {v(V_T)}, 15, {v(V_LANE)}")
            A(f"v_add_u32 {v(V_T)}, {s(T)}, {v(V_T)}")
            if tt:
                A(f"v_add_u32 {v(V_T)}, 16, {v(V_T)}")
            d = self.V_SH + tt
            A(f"v_lshrrev_b32 {v(V_T + 1)}, 5, {v(V_T)}")
            A(f"v_mul_u32_u24 {v(d)}, {XSEG}, {v(V_T + 1)}")
            A(f"v_bfe_u32 {v(V_T + 1)}, {v(V_T)}, 4, 1")
            A(f"v_lshl_add_u32 {v(d)}, {v(V_T + 1)}, 10, {v(d)}")
            A(f"v_and_b32 {v(V_T + 1)}, 15, {v(V_T)}")
            A(f"v_lshl_add_u32 {v(d)}, {v(V_T + 1)}, 4, {v(d)}")
            A(f"v_lshrrev_b32 {v(V_T + 1)}, 4, {v(V_LANE)}")
            A(f"v_lshl_add_u32 {v(d)}, {v(V_T + 1)}, 8, {v(d)}")
        stat_addr_setup(A, self.V_SAD)

    def init_stores(self):
        zero_flags(self.A, flag_row(F_X1), S_IDX)

    def weights(self, WL):
        A = self.A
        A(f"s_lshl_b32 {s(S_C0)}, {s(S_IDX)}, 6")
        WL.add(lambda: make_srd(A, SRD_W, P_W2, 640 * 1280), S_C0, 1280, 2, 20, self.wreg)

    def flag_soff(self, dst, rl, rs):
        A = self.A
        A(f"s_add_u32 {s(T)}, {s(rs)}, 1")
        A(f"s_min_u32 {s(T)}, {s(T)}, 63")
        row_of(A, dst, rl, T, flag_row(F_H))

    def dma(self, rl, rs, ldsreg):
        A = self.A
        A(f"s_mul_i32 {s(T)}, {s(rl)}, 66")
        A(f"s_add_u32 {s(T)}, {s(T)}, {s(rs)}")
        A(f"s_mul_i32 {s(T)}, {s(T)}, {XSEG}")
        A(f"s_mul_i32 {s(T + 1)}, {s(S_WAVE)}, 10240")
        A(f"s_add_u32 {s(T)}, {s(T)}, {s(T + 1)}")
        A(f"s_add_u32 {s(T)}, {s(T)}, {HB}")
        A(f"s_add_u32 {s(T + 1)}, {s(T + 1)}, {s(ldsreg)}")
        for jl in range(5):
            for tt in range(2):
                A(f"s_add_u32 m0, {s(T + 1)}, {(jl * 2 + tt) * 1024}")
                A(f"s_add_u32 {s(T + 3)}, {s(T)}, {jl * 2048}")
                A(f"buffer_load_dwordx4 {v(self.V_SH + tt)}, {WS}, {s(T + 3)} offen sc1 lds")

    def early(self):
        A = self.A
        A(f"s_lshl_b32 {s(T)}, {s(S_L)}, 6")
        A(f"s_add_u32 {s(T)}, {s(T)}, {s(S_S)}")
        A(f"s_mul_i32 {s(T)}, {s(T)}, {XSEG}")
        A(f"s_lshl_b32 {s(T + 1)}, {s(S_IDX)}, 11")
        A(f"s_add_u32 {s(T)}, {s(T)}, {s(T + 1)}")
        A(f"s_add_u32 {s(T)}, {s(T)}, {YB}")
        for tt in range(2):
            A(f"buffer_load_dwordx4 {v(self.V_Y + 4 * tt, 4)}, {v(V_P16)}, {WS}, {s(T)} offen offset:{tt * 1024} sc1")
        return 2

    def epilogue(self):
        A = self.A
        A(f"s_lshl_b32 {s(T + 2)}, {s(S_L)}, 6")
        A(f"s_add_u32 {s(T + 2)}, {s(T + 2)}, {s(S_S)}")
        A(f"s_mul_i32 {s(T + 2)}, {s(T + 2)}, {XSEGS}")
        A(f"s_add_u32 {s(T + 2)}, {s(T + 2)}, {X1B}")
        A(f"s_lshl_b32 {s(T + 3)}, {s(S_IDX)}, 8")
        A(f"s_add_u32 {s(T + 3)}, {s(T + 3)}, {s(T + 2)}")
        A(f"s_add_u32 {s(T + 3)}, {s(T + 3)}, 40960")
        A(f"s_lshl_b32 {s(T + 4)}, {s(S_IDX)}, 11")
        A(f"s_add_u32 {s(T + 2)}, {s(T + 2)}, {s(T + 4)}")
        xs = []
        for tt in range(2):
            unpack8(A, self.V_YU + 8 * tt, self.V_Y + 4 * tt)
        for tt in range(2):
            vals = [self.acc(0, tt) + r for r in range(4)] + [self.acc(1, tt) + r for r in range(4)]
            for i in range(0, 8, 2):
                rnd2(A, V_T, vals[i], vals[i + 1])
            for i in range(8):
                A(f"v_add_f32 {v(vals[i])}, {v(vals[i])}, {v(self.V_YU + 8 * tt + i)}")
            for i in range(0, 8, 2):
                rnd2(A, self.V_PK + 4 * tt + i // 2, vals[i], vals[i + 1])
            A(f"buffer_store_dwordx4 {v(self.V_PK + 4 * tt, 4)}, {v(V_L16)}, {WS}, {s(T + 2)} offen offset:{tt * 1024} sc1")
            xs.append(vals)
        stats_produce(A, xs[0], xs[1], V_T, self.V_SAD, T + 3)
        set_flag(A, flag_row(F_X1))


def row_helpers(A):
    def lane_reduce(r):
        for k in range(2):
            A(f"v_add_f32_dpp {v(r + k)}, {v(r + k)}, {v(r + k)} row_ror:4 row_mask:0xf bank_mask:0xf")
        for k in range(2):
            A(f"v_add_f32_dpp {v(r + k)}, {v(r + k)}, {v(r + k)} row_ror:8 row_mask:0xf bank_mask:0xf")
        for op in ("v_permlane32_swap_b32", "v_permlane16_swap_b32"):
            for k in range(2):
                A(f"v_mov_b32 {v(r + 2 + k)}, {v(r + k)}")
            for k in range(2):
                A(f"{op} {v(r + k)}, {v(r + 2 + k)}")
            for k in range(2):
                A(f"v_add_f32 {v(r + k)}, {v(r + k)}, {v(r + 2 + k)}")

    def sums(vals, r):
        A(f"v_pk_add_f32 {v(r + 4, 2)}, {v(vals[0], 2)}, {v(vals[2], 2)}")
        A(f"v_pk_mul_f32 {v(r + 2, 2)}, {v(vals[0], 2)}, {v(vals[0], 2)}")
        for i in range(2, len(vals), 2):
            if i >= 4:
                A(f"v_pk_add_f32 {v(r + 4, 2)}, {v(r + 4, 2)}, {v(vals[i], 2)}")
            A(f"v_pk_fma_f32 {v(r + 2, 2)}, {v(vals[i], 2)}, {v(vals[i], 2)}, {v(r + 2, 2)}")
        A(f"v_add_f32 {v(r)}, {v(r + 4)}, {v(r + 5)}")
        A(f"v_add_f32 {v(r + 1)}, {v(r + 2)}, {v(r + 3)}")

    def norm(vals, pks, st):
        for i in range(0, len(vals), 2):
            A(f"v_pk_add_f32 {v(vals[i], 2)}, {v(vals[i], 2)}, {v(st, 2)} op_sel_hi:[1,0] neg_lo:[0,1] neg_hi:[0,1]")
        for i in range(0, len(vals), 2):
            rnd2(A, V_T + (i & 2), vals[i], vals[i + 1])
        for i in range(0, len(vals), 2):
            A(f"v_pk_mul_f32 {v(vals[i], 2)}, {v(vals[i], 2)}, {v(st, 2)} op_sel:[0,1] op_sel_hi:[1,1]")
        for i in range(0, len(vals), 2):
            rnd2(A, pks[i // 2], vals[i], vals[i + 1])

    def store_pair(pk, vaddr, soff, off=0):
        A(f"v_permlane16_swap_b32 {v(pk)}, {v(pk + 2)}")
        A(f"v_permlane16_swap_b32 {v(pk + 1)}, {v(pk + 3)}")
        A(f"buffer_store_dwordx4 {v(pk, 4)}, {v(vaddr)}, {WS}, {s(soff)} offen offset:{off} sc1")

    return lane_reduce, sums, norm, store_pair


def gen_r0(A, cfg, nwg, s_worker, sx, STR=12):
    lane_reduce, sums, norm, store_pair = row_helpers(A)
    V_ST, V_A = 24, 32
    V_RAW, V_RU, V_NP, V_SO1, V_XR = V_A, V_A + 40, V_A + 80, V_A + 100, V_A + 101
    S_Q = S_NL
    A(f"s_and_b32 {s(S_Q)}, {s(s_worker)}, 7")
    A(f"s_lshr_b32 {s(S_NS)}, {s(s_worker)}, 3")
    dq, g_, c_ = V_T, V_T + 1, V_T + 2
    A(f"v_lshrrev_b32 {v(dq)}, 4, {v(V_LANE)}")
    A(f"v_bfe_u32 {v(g_)}, {v(V_LANE)}, 2, 2")
    A(f"v_and_b32 {v(c_)}, 3, {v(V_LANE)}")
    A(f"s_and_b32 {s(T + 1)}, {s(S_Q)}, 3")
    A(f"s_lshl_b32 {s(T)}, {s(S_Q)}, 8")
    A(f"v_lshlrev_b32 {v(V_SO1)}, 11, {v(dq)}")
    A(f"v_lshrrev_b32 {v(V_T + 3)}, 1, {v(dq)}")
    A(f"v_lshlrev_b32 {v(V_SO1)}, 11, {v(V_T + 3)}")
    A(f"v_and_b32 {v(V_T + 3)}, 1, {v(dq)}")
    A(f"v_lshl_add_u32 {v(V_SO1)}, {v(V_T + 3)}, 12, {v(V_SO1)}")
    A(f"v_add_u32 {v(V_T + 3)}, {s(T + 1)}, {v(g_)}")
    A(f"v_and_b32 {v(V_T + 3)}, 3, {v(V_T + 3)}")
    A(f"v_lshl_add_u32 {v(V_SO1)}, {v(V_T + 3)}, 6, {v(V_SO1)}")
    A(f"v_lshl_add_u32 {v(V_SO1)}, {v(c_)}, 4, {v(V_SO1)}")
    A(f"v_add_u32 {v(V_SO1)}, {s(T)}, {v(V_SO1)}")
    A(f"s_lshl_b32 {s(T)}, {s(S_Q)}, 2")
    A(f"v_add_u32 {v(V_T + 3)}, {s(T)}, {v(c_)}")
    A(f"v_mul_u32_u24 {v(V_XR)}, 1280, {v(V_T + 3)}")
    A(f"v_lshl_add_u32 {v(V_XR)}, {v(dq)}, 5, {v(V_XR)}")
    A(f"v_lshl_add_u32 {v(V_XR)}, {v(g_)}, 3, {v(V_XR)}")
    make_srd(A, SRD_W, P_X, 2048 * 1280)
    S_Z = S_DEF
    A(f"s_mov_b32 {s(S_Z)}, 0")

    def load(raw, seg_reg):
        A(f"s_mul_i32 {s(T + 2)}, {s(seg_reg)}, {32 * 1280}")
        for G in range(10):
            A(f"buffer_load_dwordx2 {v(raw + 2 * G, 2)}, {v(V_XR)}, {s(SRD_W, 4)}, {s(T + 2)} offen offset:{G * 128}")

    def body(raw, nxt, first):
        A(f"s_add_u32 {s(T + 6)}, {s(S_NS)}, {STR}")
        A(f"s_min_u32 {s(T + 6)}, {s(T + 6)}, 63")
        load(nxt, T + 6)
        A(f"s_mul_i32 {s(T + 4)}, {s(S_NS)}, {XSEG}")
        A(f"s_add_u32 {s(T + 4)}, {s(T + 4)}, {X0R}")
        A(f"s_mul_i32 {s(T + 5)}, {s(S_NS)}, {XSEGS}")
        A(f"s_add_u32 {s(T + 5)}, {s(T + 5)}, {XIN}")
        A("s_waitcnt vmcnt(10)")
        if not first:
            flag_store(A, S_FADDR)
        for i in range(20):
            A(f"v_lshlrev_b32 {v(V_RU + 2 * i)}, 16, {v(raw + i)}")
            A(f"v_and_b32 {v(V_RU + 2 * i + 1)}, 0xffff0000, {v(raw + i)}")
        vals = [V_RU + i for i in range(40)]
        sums(vals, V_ST)
        lane_reduce(V_ST)
        finish_stats(A, V_ST, V_ST + 1, V_T)
        norm(vals, [V_NP + i for i in range(20)], V_ST)
        for p in range(5):
            A(f"s_add_u32 {s(T + 3)}, {s(T + 5)}, {p * 8192}")
            store_pair(V_NP + 4 * p, V_SO1, T + 3)
        for p in range(5):
            A(f"s_add_u32 {s(T + 3)}, {s(T + 4)}, {p * 8192}")
            store_pair(raw + 4 * p, V_SO1, T + 3)
        flag_addr(A, S_FADDR, flag_row(F_XIN), S_Q, S_Z, S_NS)
        A(f"s_add_u32 {s(S_NS)}, {s(S_NS)}, {STR}")

    RA, RB = V_RAW, V_RAW + 20
    load(RA, S_NS)
    body(RA, RB, True)
    init_barrier_wait(A, V_T, nwg, cfg)
    flag_store(A, S_FADDR)
    body(RB, RA, True)
    A.label("R0_LOOP" + sx)
    body(RA, RB, False)
    A(f"s_cmp_ge_u32 {s(S_NS)}, 64")
    A(f"s_cbranch_scc1 R0_END{sx}")
    body(RB, RA, False)
    A(f"s_cmp_lt_u32 {s(S_NS)}, 64")
    A(f"s_cbranch_scc1 R0_LOOP{sx}")
    A.label("R0_END" + sx)
    A("s_waitcnt vmcnt(0)")
    flag_store(A, S_FADDR)


def gen_w4(A, cfg, nwg):
    V_IN, V_ACC, V_RD, V_XX, V_XU, V_PK = 16, 112, 144, 176, 184, 200
    V_SAD, V_OA, V_LW, V_LR = 204, 205, 206, 207
    S_J, S_TT = S_K, S_K + 1
    SRD_O = 72
    A.label("ROLE_W4")
    base_setup(A)
    if cfg.wgp2:
        A(f"v_min_u32 {v(V_FO)}, 47, {v(V_LANE)}")
    else:
        A(f"v_min_u32 {v(V_FO)}, 11, {v(V_LANE)}")
        A(f"s_mul_i32 {s(T)}, {s(S_WAVE)}, 12")
        A(f"v_add_u32 {v(V_FO)}, {s(T)}, {v(V_FO)}")
    A(f"v_lshlrev_b32 {v(V_FO)}, 2, {v(V_FO)}")
    A(f"s_and_b32 {s(T)}, {s(S_WAVE)}, 1")
    A(f"s_lshl_b32 {s(S_J)}, {s(S_ROLE)}, 1")
    A(f"s_add_u32 {s(S_J)}, {s(S_J)}, {s(T)}")
    A(f"s_lshr_b32 {s(S_TT)}, {s(S_WAVE)}, 1")
    A(f"v_and_b32 {v(V_T)}, 15, {v(V_LANE)}")
    A(f"v_lshlrev_b32 {v(V_SAD)}, 3, {v(V_T)}")
    A(f"s_lshl_b32 {s(T)}, {s(S_TT)}, 4")
    A(f"v_add_u32 {v(V_T)}, {s(T)}, {v(V_T)}")
    A(f"v_mul_u32_u24 {v(V_OA)}, 1280, {v(V_T)}")
    A(f"v_lshrrev_b32 {v(V_T)}, 4, {v(V_LANE)}")
    A(f"v_lshl_add_u32 {v(V_OA)}, {v(V_T)}, 3, {v(V_OA)}")
    A(f"s_lshl_b32 {s(T)}, {s(S_J)}, 6")
    A(f"v_add_u32 {v(V_OA)}, {s(T)}, {v(V_OA)}")
    make_srd(A, SRD_O, P_OUT, 2048 * 1280)
    zero_flags(A, flag_row(F_XIN), S_IDX, layers=(1,))
    init_barrier_arrive(A, V_T)
    if cfg.late_w:
        init_barrier_wait(A, V_T, nwg, cfg)
        for _ in range(cfg.late_w - 1 if cfg.late_w != 9 else 0):
            A("s_sleep 64")
        if cfg.late_w == 9:
            A(f"s_mov_b32 {s(T + 7)}, {flag_row(F_K)}")
            A(f"v_mov_b32 {v(V_T + 4)}, 0")
            flag_block(A, T + 7, vo=V_T + 4)
    for _ in range(cfg.dly_w):
        A("s_sleep 64")
    WL = WLoader(A, V_T, T + 3)
    A(f"s_mul_i32 {s(S_C0)}, {s(S_WAVE)}, {384 * 1280}")
    A(f"s_lshl_b32 {s(T)}, {s(S_ROLE)}, 7")
    A(f"s_add_u32 {s(S_C0)}, {s(S_C0)}, {s(T)}")
    WL.add(lambda: make_srd(A, SRD_W, P_W4, 1536 * 1280), S_C0, 1280, 4, 12, lambda tau, j: ("a", (tau * 12 + j) * 4))
    WL.emit(V_LANE)
    A("s_barrier")
    if not cfg.late_w:
        init_barrier_wait(A, V_T, nwg, cfg)
    def inreg(st_, b):
        if st_ == 0:
            return v(V_IN + 4 * b, 4)
        return a(192 + 4 * b, 4) if b < 16 else v(208 + 4 * (b - 16), 4)
    XXS = (V_XX, 240)
    S_CH = S_K + 2
    A(f"s_lshl_b32 {s(S_CH)}, {s(S_J)}, 1")
    A(f"s_add_u32 {s(S_CH)}, {s(S_CH)}, {s(S_TT)}")
    A(f"s_lshl_b32 {s(S_CH)}, {s(S_CH)}, 10")

    def loads(st_, rl, rs):
        L = []
        L.append(f"s_lshl_b32 {s(T + 6)}, {s(rl)}, 6")
        L.append(f"s_add_u32 {s(T + 6)}, {s(T + 6)}, {s(rs)}")
        L.append(f"s_mul_i32 {s(T + 5)}, {s(T + 6)}, {GSEG}")
        L.append(f"s_mul_i32 {s(T)}, {s(S_WAVE)}, 24576")
        L.append(f"s_add_u32 {s(T + 5)}, {s(T + 5)}, {s(T)}")
        L.append(f"s_add_u32 {s(T + 5)}, {s(T + 5)}, {GB}")
        for b in range(24):
            if b % 4 == 0:
                L.append(f"s_add_u32 {s(T + 3)}, {s(T + 5)}, {b * 1024}")
            L.append(f"buffer_load_dwordx4 {inreg(st_, b)}, {v(V_L16)}, {WS}, {s(T + 3)} offen offset:{(b % 4) * 1024} sc1")
        L.append(f"s_mul_i32 {s(T)}, {s(T + 6)}, {XSEGS}")
        L.append(f"s_add_u32 {s(T)}, {s(T)}, {s(S_CH)}")
        L.append(f"s_add_u32 {s(T)}, {s(T)}, {X1B}")
        L.append(f"buffer_load_dwordx4 {v(XXS[st_], 4)}, {v(V_L16)}, {WS}, {s(T)} offen sc1")
        L.append(f"s_mul_i32 {s(T)}, {s(T + 6)}, {XSEG}")
        L.append(f"s_add_u32 {s(T)}, {s(T)}, {s(S_CH)}")
        L.append(f"s_add_u32 {s(T)}, {s(T)}, {XM}")
        L.append(f"buffer_load_dwordx4 {v(XXS[st_] + 4, 4)}, {v(V_P16)}, {WS}, {s(T)} offen sc1")
        return L

    def acc(tau, tt):
        return V_ACC + (tt * 4 + tau) * 4

    def kstep(st_, j, fill=None, rate=0):
        for tt in range(2):
            for tau in range(4):
                c = "0" if j == 0 else v(acc(tau, tt), 4)
                A(f"v_mfma_f32_16x16x32_bf16 {v(acc(tau, tt), 4)}, {a((tau * 12 + j) * 4, 4)}, {inreg(st_, j * 2 + tt)}, {c}")
                for _ in range(rate):
                    if fill:
                        A(fill.pop(0))

    def body(st_, sx, other):
        A.label("W4_" + sx)
        A(f"s_add_u32 {s(T + 6)}, {s(S_I)}, 1")
        A(f"s_min_u32 {s(T + 6)}, {s(T + 6)}, 127")
        item_of(A, T + 6, S_NL, S_NS, cfg.LAG + cfg.dlt, 0, T)
        row_of(A, T + 7, S_NL, S_NS, flag_row(F_G))
        A(f"buffer_load_dword {v(V_FV)}, {v(V_FO)}, {WS}, {s(T + 7)} offen sc1")
        A(f"v_add_u32 {v(V_LW)}, {s(S_BUF)}, {v(V_LW0)}")
        A(f"v_add_u32 {v(V_LR)}, {s(S_BUF)}, {v(V_LR0)}")
        JC = 5
        for j in range(JC + 1):
            A(f"s_waitcnt vmcnt({25 - 2 * j})")
            kstep(st_, j)
        nof, nod, join = A.newlabel("nof"), A.newlabel("nod"), A.newlabel("join")
        A("s_waitcnt vmcnt(0)")
        A(f"s_cmp_eq_u32 {s(S_FADDR)}, {DUMMY}")
        A(f"s_cbranch_scc1 {nof}")
        flag_store(A, S_FADDR)
        A(f"s_mov_b32 {s(S_FADDR)}, {DUMMY}")
        A.label(nof)
        A(f"v_cmp_eq_u32 vcc, 0, {v(V_FV)}")
        A(f"s_mov_b32 {s(S_DEF)}, 1")
        A(f"s_cbranch_vccnz {nod}")
        A(f"s_mov_b32 {s(S_DEF)}, 0")
        if cfg.wgp2:
            rdy_set(A, 250, 1, T)
        fill = loads(1 - st_, S_NL, S_NS)
        for j in range(JC + 1, 12):
            kstep(st_, j, fill, 1)
        while fill:
            A(fill.pop(0))
        A(f"s_branch {join}")
        A.label(nod)
        for j in range(JC + 1, 12):
            kstep(st_, j)
        A.label(join)
        for d in range(4):
            tt, p = d >> 1, d & 1
            for k in range(2):
                A(f"ds_write_b128 {v(V_LW)}, {v(acc(2 * p + k, tt), 4)} offset:{d * 8192 + k * 1024}")
        unpack8(A, V_XU, XXS[st_])
        unpack8(A, V_XU + 8, XXS[st_] + 4)
        A("s_waitcnt lgkmcnt(0)")
        A("s_barrier")
        for i in range(8):
            A(f"ds_read_b128 {v(V_RD + 4 * i, 4)}, {v(V_LR)} offset:{i * 1024}")
        A("s_waitcnt lgkmcnt(0)")
        for i in range(0, 8, 2):
            A(f"v_pk_add_f32 {v(V_RD + i, 2)}, {v(V_RD + i, 2)}, {v(V_RD + 8 + i, 2)}")
            A(f"v_pk_add_f32 {v(V_RD + 16 + i, 2)}, {v(V_RD + 16 + i, 2)}, {v(V_RD + 24 + i, 2)}")
        for i in range(0, 8, 2):
            A(f"v_pk_add_f32 {v(V_RD + i, 2)}, {v(V_RD + i, 2)}, {v(V_RD + 16 + i, 2)}")
        X = [V_RD + i for i in range(8)]
        for i in range(0, 8, 2):
            rnd2(A, V_T, X[i], X[i + 1])
        for i in range(0, 8, 2):
            A(f"v_pk_add_f32 {v(X[i], 2)}, {v(X[i], 2)}, {v(V_XU + i, 2)}")
        for i in range(0, 8, 2):
            rnd2(A, V_T, X[i], X[i + 1])
        for i in range(0, 8, 2):
            A(f"v_pk_add_f32 {v(X[i], 2)}, {v(X[i], 2)}, {v(V_XU + 8 + i, 2)}")
        for i in range(0, 8, 2):
            rnd2(A, V_PK + i // 2, X[i], X[i + 1])
        l1, l2 = A.newlabel("w4o"), A.newlabel("w4n")
        A(f"s_cmp_lg_u32 {s(S_L)}, 0")
        A(f"s_cbranch_scc1 {l1}")
        A(f"s_mul_i32 {s(T + 2)}, {s(S_S)}, {XSEGS}")
        A(f"s_add_u32 {s(T + 2)}, {s(T + 2)}, {XIN + 64 * XSEGS}")
        A(f"s_add_u32 {s(T + 3)}, {s(T + 2)}, {s(S_CH)}")
        A(f"buffer_store_dwordx4 {v(V_PK, 4)}, {v(V_P16)}, {WS}, {s(T + 3)} offen sc1")
        t = V_T
        A(f"v_add_f32 {v(t)}, {v(X[0])}, {v(X[1])}")
        A(f"v_mul_f32 {v(t + 1)}, {v(X[0])}, {v(X[0])}")
        for i in range(1, 8):
            if i >= 2:
                A(f"v_add_f32 {v(t)}, {v(t)}, {v(X[i])}")
            A(f"v_fmac_f32 {v(t + 1)}, {v(X[i])}, {v(X[i])}")
        for op in ("v_permlane32_swap_b32", "v_permlane16_swap_b32"):
            A(f"v_mov_b32 {v(t + 2)}, {v(t)}")
            A(f"v_mov_b32 {v(t + 3)}, {v(t + 1)}")
            A(f"{op} {v(t)}, {v(t + 2)}")
            A(f"{op} {v(t + 1)}, {v(t + 3)}")
            A(f"v_add_f32 {v(t)}, {v(t)}, {v(t + 2)}")
            A(f"v_add_f32 {v(t + 1)}, {v(t + 1)}, {v(t + 3)}")
        A(f"s_lshl_b32 {s(T + 3)}, {s(S_J)}, 8")
        A(f"s_lshl_b32 {s(T)}, {s(S_TT)}, 7")
        A(f"s_add_u32 {s(T + 3)}, {s(T + 3)}, {s(T)}")
        A(f"s_add_u32 {s(T + 3)}, {s(T + 3)}, {s(T + 2)}")
        A(f"s_add_u32 {s(T + 3)}, {s(T + 3)}, 40960")
        A("s_mov_b64 exec, 0xffff")
        A(f"buffer_store_dwordx2 {v(t, 2)}, {v(V_SAD)}, {WS}, {s(T + 3)} offen sc1")
        A("s_mov_b64 exec, -1")
        A(f"s_mov_b32 {s(T + 6)}, 1")
        flag_addr(A, S_FADDR, flag_row(F_XIN), S_IDX, T + 6, S_S)
        A("s_waitcnt vmcnt(0)")
        flag_store(A, S_FADDR)
        A(f"s_mov_b32 {s(S_FADDR)}, {DUMMY}")
        A(f"s_branch {l2}")
        A.label(l1)
        A(f"s_mul_i32 {s(T + 2)}, {s(S_S)}, {32 * 1280}")
        A(f"buffer_store_dwordx2 {v(V_PK, 2)}, {v(V_OA)}, {s(SRD_O, 4)}, {s(T + 2)} offen")
        A(f"buffer_store_dwordx2 {v(V_PK + 2, 2)}, {v(V_OA)}, {s(SRD_O, 4)}, {s(T + 2)} offen offset:32")
        A("s_waitcnt vmcnt(2)")
        A.label(l2)
        A(f"s_add_u32 {s(S_I)}, {s(S_I)}, 1")
        A(f"s_cmp_eq_u32 {s(S_I)}, 128")
        A("s_cbranch_scc1 W4_END")
        A(f"s_xor_b32 {s(S_BUF)}, {s(S_BUF)}, 0x8000")
        A(f"s_mov_b32 {s(S_L)}, {s(S_NL)}")
        A(f"s_mov_b32 {s(S_S)}, {s(S_NS)}")
        A(f"s_cmp_eq_u32 {s(S_DEF)}, 0")
        A(f"s_cbranch_scc1 W4_{other}")
        row_of(A, T + 7, S_L, S_S, flag_row(F_G))
        if cfg.wgp2:
            wg_wait(A, cfg, 250, T + 7, T)
        else:
            flag_block(A, T + 7, sleep=1)
        for x in loads(1 - st_, S_L, S_S):
            A(x)
        A(f"s_branch W4_{other}")

    V_LW0, V_LR0 = 248, 249
    A(f"s_lshl_b32 {s(T)}, {s(S_WAVE)}, 11")
    A(f"v_add_u32 {v(V_LW0)}, {s(T)}, {v(V_L16)}")
    A(f"s_lshl_b32 {s(T)}, {s(S_WAVE)}, 13")
    A(f"v_add_u32 {v(V_LR0)}, {s(T)}, {v(V_L16)}")
    A(f"s_mov_b32 {s(S_I)}, 0")
    A(f"s_mov_b32 {s(S_BUF)}, 0")
    if cfg.wgp2:
        rdy_init(A, cfg, 250, 65536)
    A(f"s_mov_b32 {s(S_FADDR)}, {DUMMY}")
    item_of(A, S_I, S_L, S_S, cfg.LAG + cfg.dlt, 0, T)
    row_of(A, T + 7, S_L, S_S, flag_row(F_G))
    flag_block(A, T + 7)
    for x in loads(0, S_L, S_S):
        A(x)
    body(0, "A", "B")
    body(1, "B", "A")
    A.label("W4_END")
    if cfg.timing == 6:
        A("s_memrealtime s[98:99]")
        A("s_waitcnt lgkmcnt(0)")
        A("s_sub_u32 s98, s98, s96")
        A(f"v_mov_b32 {v(V_T)}, s98")
        A(f"v_mov_b32 {v(V_T + 1)}, 28")
        A("s_mov_b64 exec, 1")
        A(f"buffer_store_dword {v(V_T)}, {v(V_T + 1)}, {s(SRD_DBG, 4)}, 0 offen")
    A("s_endpgm")


def gen_att(A, cfg, nwg):
    V_Q, V_K, V_V, V_KP, V_VM = 16, 64, 112, 160, 172
    V_SX, V_SM, V_P = 184, 196, 212
    V_FO2, V_L8, V_NINF = 228, 229, 230
    V_PK = 232
    S_H, S_XG, S_FX, S_HO = S_K, S_K + 1, S_K + 2, S_K + 3
    S_MK = 72
    S_ML = 80
    S_SC, S_L2E = 84, 85
    A.label("ROLE_ATT")
    S_PAR = 86
    if cfg.a2 == 1:
        A(f"s_lshr_b32 {s(S_PAR)}, {s(S_ROLE)}, 4")
        A(f"s_and_b32 {s(S_ROLE)}, {s(S_ROLE)}, 15")
    base_setup(A)
    S_FO = 87
    if cfg.a2 == 2:
        A(f"s_mov_b32 {s(S_H)}, {s(S_ROLE)}")
        A(f"s_and_b32 {s(S_L)}, {s(S_WAVE)}, 1")
        A(f"s_lshr_b32 {s(S_PAR)}, {s(S_WAVE)}, 1")
        A(f"s_lshr_b32 {s(S_FO)}, {s(S_H)}, 3")
        A(f"s_lshl_b32 {s(S_FO)}, {s(S_FO)}, 5")
        A(f"s_and_b32 {s(T)}, {s(S_H)}, 7")
        A(f"s_add_u32 {s(S_FO)}, {s(S_FO)}, {s(T)}")
    elif cfg.attl:
        A(f"s_lshr_b32 {s(S_H)}, {s(S_ROLE)}, 1")
        A(f"s_lshl_b32 {s(S_H)}, {s(S_H)}, 2")
        A(f"s_add_u32 {s(S_H)}, {s(S_H)}, {s(S_WAVE)}")
        A(f"s_and_b32 {s(S_L)}, {s(S_ROLE)}, 1")
    else:
        A(f"s_lshr_b32 {s(S_H)}, {s(S_IDX)}, 1")
        A(f"s_and_b32 {s(S_L)}, {s(S_IDX)}, 1")
    A(f"v_lshlrev_b32 {v(V_L8)}, 3, {v(V_LANE)}")
    A(f"v_mov_b32 {v(V_NINF)}, 0xff800000")
    A(f"s_mov_b32 {s(S_ML)}, -1")
    A(f"s_mov_b32 {s(S_ML + 1)}, 0")
    A(f"s_mov_b32 {s(S_SC)}, {f32(192 ** -0.5)}")
    A(f"s_mov_b32 {s(S_L2E)}, {f32(math.log2(math.e))}")
    A(f"v_min_u32 {v(V_T)}, 8, {v(V_LANE)}")
    A(f"v_mul_u32_u24 {v(V_T + 1)}, 86, {v(V_T)}")
    A(f"v_lshrrev_b32 {v(V_T + 1)}, 8, {v(V_T + 1)}")
    A(f"v_mul_u32_u24 {v(V_T + 2)}, 3, {v(V_T + 1)}")
    A(f"v_sub_u32 {v(V_T)}, {v(V_T)}, {v(V_T + 2)}")
    A(f"s_mul_i32 {s(T)}, {s(S_H)}, 3")
    A(f"v_add_u32 {v(V_T)}, {s(T)}, {v(V_T)}")
    A(f"v_lshlrev_b32 {v(V_FO)}, 2, {v(V_T)}")
    A(f"v_lshl_add_u32 {v(V_FO)}, {v(V_T + 1)}, 16, {v(V_FO)}")
    A(f"v_min_u32 {v(V_FO2)}, {2 if cfg.c2 else 11}, {v(V_LANE)}")
    A(f"v_lshlrev_b32 {v(V_FO2)}, 2, {v(V_FO2)}")
    A(f"v_lshrrev_b32 {v(V_T)}, 4, {v(V_LANE)}")
    A(f"v_lshlrev_b32 {v(V_T)}, 2, {v(V_T)}")
    A(f"v_and_b32 {v(V_T + 1)}, 15, {v(V_LANE)}")
    for r in range(4):
        A(f"v_add_u32 {v(V_T + 2)}, {r}, {v(V_T)}")
        A(f"v_cmp_le_u32 {s(S_MK + 2 * r, 2)}, {v(V_T + 2)}, {v(V_T + 1)}")
    A(f"s_mul_i32 {s(S_HO)}, {s(S_H)}, 12288")
    A(f"s_mul_i32 {s(T)}, {s(S_L)}, {cfg.LAG}")
    A(f"s_mul_i32 {s(S_XG)}, {s(T)}, {XG_STEP}")
    A(f"s_mul_i32 {s(T + 1)}, {s(S_H)}, {XG_HEAD}")
    A(f"s_add_u32 {s(S_XG)}, {s(S_XG)}, {s(T + 1)}")
    A(f"s_mul_i32 {s(T + 1)}, {s(S_L)}, 9216")
    A(f"s_add_u32 {s(S_XG)}, {s(S_XG)}, {s(T + 1)}")
    A(f"s_add_u32 {s(S_XG)}, {s(S_XG)}, {XG + 3072}")
    A(f"s_mul_i32 {s(S_FX)}, {s(T)}, {FXG_STEP}")
    A(f"s_lshl_b32 {s(T + 1)}, {s(S_H)}, 6")
    A(f"s_add_u32 {s(S_FX)}, {s(S_FX)}, {s(T + 1)}")
    A(f"s_add_u32 {s(S_FX)}, {s(S_FX)}, {FXG}")
    if cfg.c2:
        A(f"s_mul_i32 {s(S_XG)}, {s(S_L)}, {64 * XG2_STEP}")
        A(f"s_mul_i32 {s(T + 1)}, {s(S_H)}, {XG2_HEAD}")
        A(f"s_add_u32 {s(S_XG)}, {s(S_XG)}, {s(T + 1)}")
        A(f"s_add_u32 {s(S_XG)}, {s(S_XG)}, {XG}")
        A(f"s_mul_i32 {s(S_FX)}, {s(S_L)}, {64 * FXG2_STEP}")
        A(f"s_lshl_b32 {s(T + 1)}, {s(S_H)}, 5")
        A(f"s_add_u32 {s(S_FX)}, {s(S_FX)}, {s(T + 1)}")
        A(f"s_add_u32 {s(S_FX)}, {s(S_FX)}, {FXG}")
    if cfg.xga == 4:
        A(f"s_mul_i32 {s(T + 1)}, {s(T)}, {XG_STEP}")
        A(f"s_sub_u32 {s(S_XG)}, {s(S_XG)}, {s(T + 1)}")
        A(f"s_mov_b32 {s(S_FX)}, {s(T)}")
        A(f"v_min_u32 {v(V_T)}, 17, {v(V_LANE)}")
        A(f"v_lshrrev_b32 {v(V_T + 1)}, 1, {v(V_T)}")
        A(f"v_lshlrev_b32 {v(V_T + 1)}, 10, {v(V_T + 1)}")
        A(f"v_and_b32 {v(V_T + 2)}, 1, {v(V_T)}")
        A(f"v_lshl_add_u32 {v(V_T + 1)}, {v(V_T + 2)}, 7, {v(V_T + 1)}")
        A(f"v_lshlrev_b32 {v(V_T + 2)}, 8, {v(V_T)}")
        A(f"v_add_u32 {v(V_T + 2)}, {3072 - 6 * 256}, {v(V_T + 2)}")
        A(f"v_cmp_gt_u32 vcc, 6, {v(V_T)}")
        A(f"v_cndmask_b32 {v(V_FO2)}, {v(V_T + 2)}, {v(V_T + 1)}, vcc")
    init_barrier_arrive(A, V_T)
    if cfg.a2 == 1:
        A(f"s_cmp_eq_u32 {s(S_PAR)}, 0")
        A("s_cbranch_scc1 ATT_R0")
        init_barrier_wait(A, V_T, nwg, cfg)
        A(f"s_mov_b32 {s(S_S)}, 1")
        A(f"s_add_u32 {s(S_XG)}, {s(S_XG)}, {XG2_STEP}")
        A(f"s_add_u32 {s(S_FX)}, {s(S_FX)}, {FXG2_STEP}")
        A("s_branch ATT_LOOP")
        A.label("ATT_R0")
    if cfg.a2 == 2:
        A(f"s_mov_b32 {s(T + 6)}, {s(S_IDX)}")
        gen_r0(A, cfg, nwg, T + 6, "A", 16)
        A(f"s_mov_b32 {s(S_S)}, {s(S_PAR)}")
        A(f"s_mul_i32 {s(T)}, {s(S_PAR)}, {XG2_STEP}")
        A(f"s_add_u32 {s(S_XG)}, {s(S_XG)}, {s(T)}")
        A(f"s_mul_i32 {s(T)}, {s(S_PAR)}, {FXG2_STEP}")
        A(f"s_add_u32 {s(S_FX)}, {s(S_FX)}, {s(T)}")
    else:
        A(f"s_add_u32 {s(T + 6)}, {s(S_IDX)}, 32")
        gen_r0(A, cfg, nwg, T + 6, "A")
        A(f"s_mov_b32 {s(S_S)}, 0")
    A.label("ATT_LOOP")
    row_of(A, T + 7, S_L, S_S, flag_row(F_Q))
    A(f"s_mul_i32 {s(T + 6)}, {s(S_S)}, {QKV_SEG}")
    A(f"s_add_u32 {s(T + 6)}, {s(T + 6)}, {s(S_HO)}")
    flag_block(A, T + 7, sleep=4)
    for base, buf in ((V_Q, QX), (V_K, KX), (V_V, VX)):
        for b in range(12):
            if b % 4 == 0:
                A(f"s_add_u32 {s(T + 3)}, {s(T + 6)}, {buf + b * 1024}")
            A(f"buffer_load_dwordx4 {v(base + 4 * b, 4)}, {v(V_L16)}, {WS}, {s(T + 3)} offen offset:{(b % 4) * 1024} sc1")
    A("s_waitcnt vmcnt(12)")
    combos = ((0, 0), (1, 0), (1, 1))
    for j in range(6):
        for ci, (qt, kt) in enumerate(combos):
            c = "0" if j == 0 else v(V_SX + 4 * ci, 4)
            A(f"v_mfma_f32_16x16x32_bf16 {v(V_SX + 4 * ci, 4)}, {v(V_K + (j * 2 + kt) * 4, 4)}, {v(V_Q + (j * 2 + qt) * 4, 4)}, {c}")

    def roundscale(vals):
        for i in range(0, len(vals), 2):
            rnd2(A, V_T, vals[i], vals[i + 1])
        for x in vals:
            A(f"v_mul_f32 {v(x)}, {s(S_SC)}, {v(x)}")
        for i in range(0, len(vals), 2):
            rnd2(A, V_T, vals[i], vals[i + 1])
    roundscale([V_SX + i for i in range(12)])
    for ci in (0, 2):
        for r in range(4):
            x = V_SX + 4 * ci + r
            A(f"v_cndmask_b32 {v(x)}, {v(V_NINF)}, {v(x)}, {s(S_MK + 2 * r, 2)}")
    if cfg.xga != 4:
        sv = cfg.fsl
        if cfg.asl >= 0:
            cfg.fsl = cfg.asl
        flag_block(A, S_FX, vo=V_FO2, sleep=cfg.att_sleep)
        cfg.fsl = sv
        for j in range(3):
            A(f"buffer_load_dwordx4 {v(V_KP + 4 * j, 4)}, {v(V_L16)}, {WS}, {s(S_XG)} offen offset:{j * 1024} sc1")
        A(f"s_add_u32 {s(T + 3)}, {s(S_XG)}, 3072")
        if cfg.c2:
            for i in range(3):
                A(f"buffer_load_dwordx4 {v(V_VM + 4 * i, 4)}, {v(V_L16)}, {WS}, {s(T + 3)} offen offset:{i * 1024} sc1")
            A("s_waitcnt vmcnt(3)")
        else:
            for i in range(6):
                A(f"buffer_load_dwordx2 {v(V_VM + 2 * i, 2)}, {v(V_L8)}, {WS}, {s(T + 3)} offen offset:{i * 512} sc1")
            A("s_waitcnt vmcnt(6)")
    else:
        A(f"s_and_b32 {s(T + 4)}, {s(S_FX)}, 15")
        A(f"s_mul_i32 {s(T + 4)}, {s(T + 4)}, {XG_STEP}")
        A(f"s_add_u32 {s(T + 4)}, {s(T + 4)}, {s(S_XG)}")
        A(f"s_add_u32 {s(T + 3)}, {s(T + 4)}, 3072")
        A(f"s_lshr_b32 {s(T + 5)}, {s(S_FX)}, 4")
        A(f"s_and_b32 {s(T + 5)}, {s(T + 5)}, 1")
        top = A.newlabel("xp")
        A.label(top)
        A(f"buffer_load_dword {v(V_FV)}, {v(V_FO2)}, {WS}, {s(T + 4)} offen sc1")
        A("s_waitcnt vmcnt(0)")
        A(f"v_and_b32 {v(V_FV)}, 1, {v(V_FV)}")
        A(f"v_cmp_ne_u32 vcc, {s(T + 5)}, {v(V_FV)}")
        poll_tail(A, top, sleep=cfg.asl)
        for j in range(3):
            A(f"buffer_load_dwordx4 {v(V_KP + 4 * j, 4)}, {v(V_L16)}, {WS}, {s(T + 4)} offen offset:{j * 1024} sc1")
        for i in range(6):
            A(f"buffer_load_dwordx2 {v(V_VM + 2 * i, 2)}, {v(V_L8)}, {WS}, {s(T + 3)} offen offset:{i * 512} sc1")
        A("s_waitcnt vmcnt(0)")
        regs = [V_KP + 4 * j for j in range(3)] + [V_VM + 2 * i for i in range(6)]
        for k in range(4):
            A(f"v_bitop3_b32 {v(V_T + k)}, {v(regs[2 * k])}, {v(regs[2 * k + 1])}, {s(T + 5)} bitop3:0x7e")
        A(f"v_xor_b32 {v(V_T + 4)}, {s(T + 5)}, {v(regs[8])}")
        A(f"v_or3_b32 {v(V_T)}, {v(V_T)}, {v(V_T + 1)}, {v(V_T + 2)}")
        A(f"v_or3_b32 {v(V_T)}, {v(V_T)}, {v(V_T + 3)}, {v(V_T + 4)}")
        A(f"v_and_b32 {v(V_T)}, 1, {v(V_T)}")
        A(f"v_cmp_ne_u32 vcc, 0, {v(V_T)}")
        poll_tail(A, top)
    for jp in range(3):
        for qt in range(2):
            for par in range(2):
                acc = V_SM + (qt * 2 + par) * 4
                c = "0" if jp == 0 else v(acc, 4)
                A(f"v_mfma_f32_16x16x32_bf16 {v(acc, 4)}, {v(V_KP + 4 * jp, 4)}, {v(V_Q + ((2 * jp + par) * 2 + qt) * 4, 4)}, {c}")
    Zs = []
    for qt in range(2):
        E, O = V_SM + qt * 8, V_SM + qt * 8 + 4
        for k in (0, 2):
            A(f"v_permlane32_swap_b32 {v(E + k)}, {v(E + k + 1)}")
            A(f"v_permlane32_swap_b32 {v(O + k)}, {v(O + k + 1)}")
        A(f"v_add_f32 {v(E)}, {v(E)}, {v(O + 1)}")
        A(f"v_add_f32 {v(E + 1)}, {v(E + 2)}, {v(O + 3)}")
        Zs.append([E, E + 1])
    roundscale(Zs[0] + Zs[1])
    for qt in range(2):
        X = [V_SX + i for i in range(4)] if qt == 0 else [V_SX + 4 + i for i in range(8)]
        S = X + Zs[qt]
        m, t2 = V_T + 2 * qt, V_T + 2 * qt + 1
        A(f"v_max3_f32 {v(m)}, {v(S[0])}, {v(S[1])}, {v(S[2])}")
        rest = S[3:]
        while rest:
            if len(rest) >= 2:
                A(f"v_max3_f32 {v(m)}, {v(m)}, {v(rest[0])}, {v(rest[1])}")
                rest = rest[2:]
            else:
                A(f"v_max_f32 {v(m)}, {v(m)}, {v(rest[0])}")
                rest = []
        xreduce(A, "v_max_f32", m, t2)
        A(f"v_mul_f32 {v(m)}, {s(S_L2E)}, {v(m)}")
        for x in S:
            A(f"v_fma_f32 {v(x)}, {v(x)}, {s(S_L2E)}, -{v(m)}")
        for x in S:
            A(f"v_exp_f32 {v(x)}, {v(x)}")
        A(f"v_add_f32 {v(m)}, {v(S[0])}, {v(S[1])}")
        for x in S[2:]:
            A(f"v_add_f32 {v(m)}, {v(m)}, {v(x)}")
        xreduce(A, "v_add_f32", m, t2)
        A(f"v_rcp_f32 {v(m)}, {v(m)}")
        for x in S:
            A(f"v_mul_f32 {v(x)}, {v(x)}, {v(m)}")
        P = V_P + 8 * qt
        A(f"v_cvt_pk_bf16_f32 {v(P)}, {v(X[0])}, {v(X[1])}")
        A(f"v_cvt_pk_bf16_f32 {v(P + 1)}, {v(X[2])}, {v(X[3])}")
        if qt == 0:
            A(f"v_mov_b32 {v(P + 2)}, 0")
            A(f"v_mov_b32 {v(P + 3)}, 0")
        else:
            A(f"v_cvt_pk_bf16_f32 {v(P + 2)}, {v(X[4])}, {v(X[5])}")
            A(f"v_cvt_pk_bf16_f32 {v(P + 3)}, {v(X[6])}, {v(X[7])}")
        Z = Zs[qt]
        if cfg.c2:
            A(f"v_cvt_pk_bf16_f32 {v(P + 4)}, {v(Z[0])}, {v(Z[1])}")
            A(f"v_mov_b32 {v(P + 5)}, 0")
            A(f"v_mov_b32 {v(P + 6)}, 0")
            A(f"v_cvt_pk_bf16_f32 {v(P + 7)}, {v(Z[0])}, {v(Z[1])}")
            continue
        A(f"v_mov_b32 {v(Z[0] + 2)}, {v(Z[0])}")
        A(f"v_mov_b32 {v(Z[0] + 3)}, {v(Z[1])}")
        A(f"v_permlane32_swap_b32 {v(Z[0])}, {v(Z[0] + 2)}")
        A(f"v_permlane32_swap_b32 {v(Z[1])}, {v(Z[0] + 3)}")
        A(f"v_cvt_pk_bf16_f32 {v(Z[0])}, {v(Z[0])}, {v(Z[0] + 2)}")
        A(f"v_cvt_pk_bf16_f32 {v(Z[1])}, {v(Z[1])}, {v(Z[0] + 3)}")
        for k in range(2):
            A(f"v_cndmask_b32 {v(P + 4 + k)}, 0, {v(Z[k])}, {s(S_ML, 2)}")
            A(f"v_cndmask_b32 {v(P + 6 + k)}, {v(Z[k])}, 0, {s(S_ML, 2)}")
    A("s_waitcnt vmcnt(0)")
    A(f"s_add_u32 {s(T + 6)}, {s(T + 6)}, {OX}")
    for qt in range(2):
        O = V_Q if qt == 0 else V_K
        P = V_P + 8 * qt
        for et in range(12):
            A(f"v_mfma_f32_16x16x32_bf16 {v(O + 4 * et, 4)}, {v(V_V + 4 * et, 4)}, {v(P, 4)}, 0")
        for et in range(12):
            A(f"v_mfma_f32_16x16x16_bf16 {v(O + 4 * et, 4)}, {v(V_VM + 2 * (et >> 1), 2)}, {v(P + 4 + 2 * (et & 1), 2)}, {v(O + 4 * et, 4)}")
    def o_out(LS):
        for qt in range(2):
            O = V_Q if qt == 0 else V_K
            for j in range(6):
                pk = V_PK + 4 * (j & 1)
                for i in range(4):
                    A(f"v_cvt_pk_bf16_f32 {v(pk + i)}, {v(O + 8 * j + 2 * i)}, {v(O + 8 * j + 2 * i + 1)}")
                if j % 2 == 0:
                    A(f"s_add_u32 {s(T + 3)}, {s(T + 6)}, {j * 2048 + qt * 1024}")
                A(f"buffer_store_dwordx4 {v(pk, 4)}, {v(V_L16)}, {WS}, {s(T + 3)} offen offset:{(j % 2) * 2048}{LS}")
        flag_addr(A, T, flag_row(F_O), S_FO if cfg.a2 == 2 else S_H)
        A("s_waitcnt vmcnt(0)")
        flag_store(A, T, LS)
    if cfg.oloc:
        A(f"s_cmp_lg_u32 {s(S_MODE)}, 0")
        A("s_cbranch_scc1 ATT_OS")
        o_out("")
        A("s_branch ATT_OJ")
        A.label("ATT_OS")
    o_out(" sc1")
    A.label("ATT_OJ")
    if cfg.xga == 4:
        A(f"s_add_u32 {s(S_FX)}, {s(S_FX)}, 1")
    else:
        A(f"s_add_u32 {s(S_XG)}, {s(S_XG)}, {XG2_STEP * (2 if cfg.a2 else 1) if cfg.c2 else XG_STEP}")
        A(f"s_add_u32 {s(S_FX)}, {s(S_FX)}, {FXG2_STEP * (2 if cfg.a2 else 1) if cfg.c2 else FXG_STEP}")
    A(f"s_add_u32 {s(S_S)}, {s(S_S)}, {2 if cfg.a2 else 1}")
    A(f"s_cmp_lt_u32 {s(S_S)}, 64")
    A("s_cbranch_scc1 ATT_LOOP")
    A("s_endpgm")


def gen_r1(A, cfg, nwg):
    V_XO, V_SO, V_SO3, V_XR, V_LWA, V_LRA, V_FO2 = 16, 17, 18, 19, 20, 21, 22
    V_ST = 24
    V_A = 32
    S_G3, S_KEEP, S_TQ = S_K, S_K + 1, S_K + 2
    HUGE = 0x80000000
    A.label("ROLE_R1")
    S_LAY = 80
    NKG = 4 if cfg.g3 & 16 else 6

    def row_of(A, dst, rl, rs, base):
        if not cfg.g3 & 16:
            return globals()["row_of"](A, dst, rl, rs, base)
        A(f"s_lshl_b32 {s(dst)}, {s(rl)}, 6")
        A(f"s_add_u32 {s(dst)}, {s(dst)}, {s(rs)}")
        A(f"s_mul_i32 {s(dst)}, {s(dst)}, 640")
        A(f"s_add_u32 {s(dst)}, {s(dst)}, {FWOP2}")
    if cfg.r2:
        A(f"s_lshr_b32 {s(S_LAY)}, {s(S_ROLE)}, 3")
        A(f"s_and_b32 {s(S_ROLE)}, {s(S_ROLE)}, 7")

    def item_of(A, i_reg, rl, rs, *a_):
        if not cfg.r2:
            return globals()["item_of"](A, i_reg, rl, rs, *a_)
        A(f"s_mov_b32 {s(rl)}, {s(S_LAY)}")
        A(f"s_sub_u32 {s(rs)}, {s(i_reg)}, 64")
    base_setup(A)
    dq, g_, c_ = V_T, V_T + 1, V_T + 2
    A(f"v_lshrrev_b32 {v(dq)}, 4, {v(V_LANE)}")
    A(f"v_bfe_u32 {v(g_)}, {v(V_LANE)}, 2, 2")
    A(f"v_and_b32 {v(c_)}, 3, {v(V_LANE)}")
    A(f"s_lshr_b32 {s(T)}, {s(S_ROLE)}, 2")
    A(f"s_lshl_b32 {s(S_TQ)}, {s(T)}, 10")
    A(f"s_and_b32 {s(T + 1)}, {s(S_ROLE)}, 3")
    A(f"s_lshl_b32 {s(T)}, {s(T + 1)}, 8")
    A(f"s_add_u32 {s(S_TQ)}, {s(S_TQ)}, {s(T)}")
    A(f"v_lshrrev_b32 {v(V_T + 3)}, 1, {v(dq)}")
    A(f"v_lshlrev_b32 {v(V_SO3)}, 11, {v(V_T + 3)}")
    A(f"v_add_u32 {v(V_T + 3)}, {s(T + 1)}, {v(g_)}")
    A(f"v_and_b32 {v(V_T + 3)}, 3, {v(V_T + 3)}")
    A(f"v_lshl_add_u32 {v(V_SO3)}, {v(V_T + 3)}, 6, {v(V_SO3)}")
    A(f"v_lshl_add_u32 {v(V_SO3)}, {v(c_)}, 4, {v(V_SO3)}")
    A(f"v_add_u32 {v(V_SO3)}, {s(S_TQ)}, {v(V_SO3)}")
    A(f"v_and_b32 {v(V_T + 3)}, 1, {v(dq)}")
    A(f"v_lshl_add_u32 {v(V_XO)}, {v(V_T + 3)}, 3, {v(V_SO3)}")
    A(f"v_lshl_add_u32 {v(V_SO)}, {v(V_T + 3)}, 14, {v(V_SO3)}")
    A(f"s_lshl_b32 {s(T)}, {s(S_ROLE)}, 2")
    A(f"v_add_u32 {v(V_T + 3)}, {s(T)}, {v(c_)}")
    A(f"v_mul_u32_u24 {v(V_XR)}, 1280, {v(V_T + 3)}")
    A(f"v_lshl_add_u32 {v(V_XR)}, {v(dq)}, 5, {v(V_XR)}")
    A(f"v_lshl_add_u32 {v(V_XR)}, {v(g_)}, 3, {v(V_XR)}")
    A(f"v_lshlrev_b32 {v(V_LRA)}, 5, {v(c_)}")
    A(f"s_lshl_b32 {s(T)}, {s(S_WAVE)}, 3")
    A(f"v_add_u32 {v(V_LWA)}, {s(T)}, {v(V_LRA)}")
    A(f"v_min_u32 {v(V_FO)}, {39 if cfg.g3 & 16 else 59}, {v(V_LANE)}")
    A(f"v_lshlrev_b32 {v(V_FO)}, 3, {v(V_FO)}")
    if cfg.g3 & 16:
        A(f"s_lshr_b32 {s(T)}, {s(S_ROLE)}, 2")
        A(f"s_mul_i32 {s(T)}, {s(T)}, 320")
        A(f"v_add_u32 {v(V_FO)}, {s(T)}, {v(V_FO)}")
    A(f"s_cmp_lt_u32 {s(S_WAVE)}, 2")
    A(f"s_cselect_b32 {s(S_G3)}, 0, {HUGE}")
    A(f"s_cselect_b32 {s(S_KEEP)}, 1.0, 0")
    init_barrier_arrive(A, V_T)

    lane_reduce, sums, norm, store_pair = row_helpers(A)
    if cfg.a2 == 2:
        init_barrier_wait(A, V_T, nwg, cfg)
    else:
        if cfg.r2:
            A(f"s_cmp_eq_u32 {s(S_LAY)}, 0")
            A("s_cbranch_scc1 R1_R0")
            init_barrier_wait(A, V_T, nwg, cfg)
            A("s_branch R1_GO")
            A.label("R1_R0")
        A(f"s_mov_b32 {s(T + 6)}, {s(S_IDX)}")
        gen_r0(A, cfg, nwg, T + 6, "R")
    A.label("R1_GO")
    st = Stamper(A, cfg, 84, 10)
    A(f"s_mov_b32 s83, {s(S_GID)}")
    st.init()

    SETS = (V_A, V_A + 80)
    V_XU = V_A + 160
    V_PM, V_PY, V_PZ = V_A + 172, V_A + 180, V_A + 188
    V_LR = V_A + 196
    V_FW = V_A + 204
    V_RDY = V_A + 206

    def r1_loads(base, rl, rs, A=A, TS=T + 3):
        A(f"s_mul_i32 {s(T + 6)}, {s(rs)}, {WOP_SEG}")
        A(f"s_mul_i32 {s(T)}, {s(S_ROLE)}, 10240")
        A(f"s_add_u32 {s(T + 6)}, {s(T + 6)}, {s(T)}")
        A(f"s_lshl_b32 {s(T)}, {s(S_WAVE)}, 10")
        A(f"s_add_u32 {s(T + 6)}, {s(T + 6)}, {s(T)}")
        A(f"s_add_u32 {s(T + 6)}, {s(T + 6)}, {WOP}")
        A(f"s_mul_i32 {s(T)}, {s(rs)}, {XSEG}")
        A(f"s_add_u32 {s(T)}, {s(T)}, {X0R}")
        A(f"s_mul_i32 {s(T + 1)}, {s(rs)}, {XSEGS}")
        A(f"s_add_u32 {s(T + 1)}, {s(T + 1)}, {XIN + 64 * XSEGS}")
        A(f"s_cmp_eq_u32 {s(rl)}, 0")
        A(f"s_cselect_b32 {s(T + 5)}, {s(T)}, {s(T + 1)}")
        A(f"s_lshl_b32 {s(T)}, {s(S_WAVE)}, 12")
        A(f"s_add_u32 {s(T + 5)}, {s(T + 5)}, {s(T)}")
        if not cfg.r1h:
            for G in range(3):
                A(f"s_add_u32 {s(TS)}, {s(T + 5)}, {G * 16384}")
                if G == 2:
                    A(f"s_add_u32 {s(TS)}, {s(TS)}, {s(S_G3)}")
                A(f"buffer_load_dwordx2 {v(base + 72 + 2 * G, 2)}, {v(V_XO)}, {WS}, {s(TS)} offen sc1")
            for kg in range(NKG):
                for G in range(3):
                    A(f"s_add_u32 {s(TS)}, {s(T + 6)}, {kg * 81920 + G * 4096}")
                    if G == 2:
                        A(f"s_add_u32 {s(TS)}, {s(TS)}, {s(S_G3)}")
                    A(f"buffer_load_dwordx4 {v(base + kg * 12 + G * 4, 4)}, {v(V_L16)}, {WS}, {s(TS)} offen sc1")
        else:
            l2, l3 = A.newlabel("g2"), A.newlabel("g3")
            A(f"s_cmp_lt_u32 {s(S_WAVE)}, 2")
            A(f"s_cbranch_scc1 {l2}")
            for i in range(4):
                A(f"v_mov_b32 {v(base + 8 + i)}, 0")
            A(f"s_branch {l3}")
            A.label(l2)
            A(f"s_add_u32 {s(TS)}, {s(T + 5)}, {2 * 16384}")
            A(f"buffer_load_dwordx2 {v(base + 76, 2)}, {v(V_XO)}, {WS}, {s(TS)} offen sc1")
            for kg in range(NKG):
                A(f"s_add_u32 {s(TS)}, {s(T + 6)}, {kg * 81920 + 2 * 4096}")
                A(f"buffer_load_dwordx4 {v(base + kg * 12 + 8, 4)}, {v(V_L16)}, {WS}, {s(TS)} offen sc1")
            A.label(l3)
            for G in range(2):
                A(f"s_add_u32 {s(TS)}, {s(T + 5)}, {G * 16384}")
                A(f"buffer_load_dwordx2 {v(base + 72 + 2 * G, 2)}, {v(V_XO)}, {WS}, {s(TS)} offen sc1")
            for kg in range(NKG):
                for G in range(2):
                    A(f"s_add_u32 {s(TS)}, {s(T + 6)}, {kg * 81920 + G * 4096}")
                    A(f"buffer_load_dwordx4 {v(base + kg * 12 + G * 4, 4)}, {v(V_L16)}, {WS}, {s(TS)} offen sc1")

    def pks(b):
        return [b, b + 1, b + 2, b + 3, b + 4, b + 5]

    S_O1, S_O3 = S_K + 3, S_K + 4

    S_YD = S_K + 5

    def emit_out(b, buf):
        A(f"v_mov_b32 {v(b + 6)}, {v(b + 4)}")
        A(f"v_mov_b32 {v(b + 7)}, {v(b + 5)}")
        A(f"s_add_u32 {s(T + 3)}, {s(S_O1)}, {buf}")
        if buf == YB:
            A(f"s_add_u32 {s(T + 3)}, {s(T + 3)}, {s(S_YD)}")
        store_pair(b, V_SO, T + 3)
        A(f"s_add_u32 {s(T + 3)}, {s(S_O3)}, {buf}")
        if buf == YB:
            A(f"s_add_u32 {s(T + 3)}, {s(T + 3)}, {s(S_YD)}")
        store_pair(b + 4, V_SO3, T + 3)

    def r1_full(cur, nxt, sx, other):
        V_PL, V_XX = cur, cur + 72
        X = [V_PL + i for i in range(12)]

        def wg_stats(area):
            sums(X, V_ST)
            lane_reduce(V_ST)
            A(f"ds_write_b64 {v(V_LWA)}, {v(V_ST, 2)} offset:{area}")
            A("s_waitcnt lgkmcnt(0)")
            A("s_barrier")
            A(f"ds_read_b128 {v(V_LR, 4)}, {v(V_LRA)} offset:{area}")
            A(f"ds_read_b128 {v(V_LR + 4, 4)}, {v(V_LRA)} offset:{area + 16}")

        def wg_stats_fin():
            A("s_waitcnt lgkmcnt(0)")
            A(f"v_pk_add_f32 {v(V_LR, 2)}, {v(V_LR, 2)}, {v(V_LR + 2, 2)}")
            A(f"v_pk_add_f32 {v(V_LR + 4, 2)}, {v(V_LR + 4, 2)}, {v(V_LR + 6, 2)}")
            A(f"v_pk_add_f32 {v(V_ST, 2)}, {v(V_LR, 2)}, {v(V_LR + 4, 2)}")
            finish_stats(A, V_ST, V_ST + 1, V_T)

        A.label("R1_" + sx)
        A(f"s_add_u32 {s(T + 6)}, {s(S_I)}, 1")
        A(f"s_min_u32 {s(T + 6)}, {s(T + 6)}, 127")
        item_of(A, T + 6, S_NL, S_NS, cfg.LAG + cfg.dlt, 0, T)
        row_of(A, T + 7, S_NL, S_NS, flag_row(F_WOP))
        if cfg.r1e != 1:
            A(f"buffer_load_dwordx2 {v(V_FW, 2)}, {v(V_FO)}, {WS}, {s(T + 7)} offen sc1")
        A(f"s_lshl_b32 {s(T)}, {s(S_L)}, 6")
        A(f"s_add_u32 {s(T)}, {s(T)}, {s(S_S)}")
        A(f"s_mul_i32 {s(S_O1)}, {s(T)}, {XSEG}")
        A(f"s_mul_i32 {s(S_YD)}, {s(T)}, {XSEGS - XSEG}")
        A(f"s_lshl_b32 {s(T)}, {s(S_WAVE)}, 12")
        A(f"s_add_u32 {s(S_O1)}, {s(S_O1)}, {s(T)}")
        A(f"s_add_u32 {s(S_O3)}, {s(S_O1)}, {8 * 4096}")
        A(f"s_add_u32 {s(S_O3)}, {s(S_O3)}, {s(S_G3)}")
        lp, lj = A.newlabel("r1p"), A.newlabel("r1j")

        def ladder(y):
            PG = 2 if cfg.r1h else 3
            A(f"s_waitcnt vmcnt({PG * NKG + y})")
            for i in range(6):
                A(f"v_lshlrev_b32 {v(V_XU + 2 * i)}, 16, {v(V_XX + i)}")
                A(f"v_and_b32 {v(V_XU + 2 * i + 1)}, 0xffff0000, {v(V_XX + i)}")
            for kg in range(1, NKG):
                A(f"s_waitcnt vmcnt({PG * (NKG - 1 - kg) + y})")
                for i in range(0, 12, 2):
                    A(f"v_pk_add_f32 {v(V_PL + i, 2)}, {v(V_PL + i, 2)}, {v(V_PL + kg * 12 + i, 2)}")
        A(f"s_cmp_eq_u32 {s(S_DEF)}, 0")
        A(f"s_cbranch_scc1 {lp}")
        ladder(0 if cfg.r1e == 1 else 1)
        A(f"s_branch {lj}")
        A.label(lp)
        ladder(cfg.r1e if cfg.r1e else 7)
        A.label(lj)
        st(4)
        for i in range(0, 12, 2):
            rnd2(A, V_T, X[i], X[i + 1])
        for i in range(0, 12, 2):
            A(f"v_pk_add_f32 {v(X[i], 2)}, {v(X[i], 2)}, {v(V_XU + i, 2)}")
        for i in range(0, 12, 2):
            rnd2(A, V_PM + i // 2, X[i], X[i + 1])
        wg_stats(128 if (cfg.zf and sx == "B") else 0)
        if not cfg.r1e:
            nof, nod = A.newlabel("nof"), A.newlabel("nod")
            st(5)
            A("s_waitcnt vmcnt(0)")
            st(6)
            A(f"s_cmp_eq_u32 {s(S_FADDR)}, {DUMMY}")
            A(f"s_cbranch_scc1 {nof}")
            flag_store(A, S_FADDR)
            A.label(nof)
            A(f"v_min_u32 {v(V_FW)}, {v(V_FW)}, {v(V_FW + 1)}")
            A(f"v_cmp_eq_u32 vcc, 0, {v(V_FW)}")
            A(f"s_mov_b32 {s(S_DEF)}, 1")
            A(f"s_cbranch_vccnz {nod}")
            A(f"s_mov_b32 {s(S_DEF)}, 0")
            r1_loads(nxt, S_NL, S_NS)
            A.label(nod)
        if cfg.r1e == 2:
            assert not cfg.r1h
            late = A.newlabel("late")
            A("s_waitcnt vmcnt(0)")
            A(f"v_min_u32 {v(V_FW)}, {v(V_FW)}, {v(V_FW + 1)}")
            A(f"v_cmp_eq_u32 vcc, 0, {v(V_FW)}")
            A(f"s_cbranch_vccnz {late}")
            E = Capture()
            lr, sm, nm_, sp = row_helpers(E)

            def fin(E=E):
                E("s_waitcnt lgkmcnt(0)")
                E(f"v_pk_add_f32 {v(V_LR, 2)}, {v(V_LR, 2)}, {v(V_LR + 2, 2)}")
                E(f"v_pk_add_f32 {v(V_LR + 4, 2)}, {v(V_LR + 4, 2)}, {v(V_LR + 6, 2)}")
                E(f"v_pk_add_f32 {v(V_ST, 2)}, {v(V_LR, 2)}, {v(V_LR + 4, 2)}")
                finish_stats(E, V_ST, V_ST + 1, V_T)

            def out(b, buf, E=E):
                E(f"v_mov_b32 {v(b + 6)}, {v(b + 4)}")
                E(f"v_mov_b32 {v(b + 7)}, {v(b + 5)}")
                E(f"s_add_u32 {s(T + 3)}, {s(S_O1)}, {buf}")
                sp(b, V_SO, T + 3)
                E(f"s_add_u32 {s(T + 3)}, {s(S_O3)}, {buf}")
                sp(b + 4, V_SO3, T + 3)
            fin()
            nm_(X, pks(V_PY), V_ST)
            for i in range(8, 12):
                E(f"v_mul_f32 {v(X[i])}, {s(S_KEEP)}, {v(X[i])}")
            sm(X, V_ST)
            lr(V_ST)
            E(f"ds_write_b64 {v(V_LWA)}, {v(V_ST, 2)} offset:128")
            E("s_waitcnt lgkmcnt(0)")
            E("s_barrier")
            E(f"ds_read_b128 {v(V_LR, 4)}, {v(V_LRA)} offset:128")
            E(f"ds_read_b128 {v(V_LR + 4, 4)}, {v(V_LRA)} offset:144")
            out(V_PM, XM)
            out(V_PY, YB)
            fin()
            nm_(X, pks(V_PZ), V_ST)
            out(V_PZ, ZB)
            Ld = Capture()
            r1_loads(nxt, S_NL, S_NS, Ld, T + 2)
            grp, cur_ = [], []
            for x in Ld.l:
                cur_.append(x)
                if x.startswith("buffer_load"):
                    grp.append(cur_)
                    cur_ = []
            if cfg.wgp2:
                rdy_set(A, V_RDY, 1, T)
            step = max(1, (len(E.l) * 2 // 3) // len(grp))
            for n, x in enumerate(E.l):
                if n % step == 0 and grp:
                    for y in grp.pop(0):
                        A(y)
                A(x)
            assert not grp
            flag_addr(A, S_FADDR, flag_row(F_R1))
            A(f"s_add_u32 {s(S_I)}, {s(S_I)}, 1")
            A(f"s_cmp_eq_u32 {s(S_I)}, 128")
            A("s_cbranch_scc1 R1_END")
            A(f"s_mov_b32 {s(S_L)}, {s(S_NL)}")
            A(f"s_mov_b32 {s(S_S)}, {s(S_NS)}")
            A(f"s_mov_b32 {s(S_DEF)}, 0")
            A("s_waitcnt vmcnt(0)")
            flag_store(A, S_FADDR)
            A(f"s_branch R1_{other}")
            A.label(late)
        if not cfg.zf:
            wg_stats_fin()
            norm(X, pks(V_PY), V_ST)
            for i in range(8, 12):
                A(f"v_mul_f32 {v(X[i])}, {s(S_KEEP)}, {v(X[i])}")
            wg_stats(128)
            if cfg.r1e:
                A(f"buffer_load_dwordx2 {v(V_FW, 2)}, {v(V_FO)}, {WS}, {s(T + 7)} offen sc1")
            emit_out(V_PM, XM)
            emit_out(V_PY, YB)
            wg_stats_fin()
            norm(X, pks(V_PZ), V_ST)
            emit_out(V_PZ, ZB)
        else:
            A(f"buffer_load_dwordx2 {v(V_FW, 2)}, {v(V_FO)}, {WS}, {s(T + 7)} offen sc1")
            emit_out(V_PM, XM)
            A("s_waitcnt lgkmcnt(0)")
            A(f"v_pk_add_f32 {v(V_LR, 2)}, {v(V_LR, 2)}, {v(V_LR + 2, 2)}")
            A(f"v_pk_add_f32 {v(V_LR + 4, 2)}, {v(V_LR + 4, 2)}, {v(V_LR + 6, 2)}")
            A(f"v_pk_add_f32 {v(V_ST, 2)}, {v(V_LR, 2)}, {v(V_LR + 4, 2)}")
            finish_stats(A, V_ST, V_ST + 1, V_T, keep=V_ST + 4)
            norm(X, pks(V_PY), V_ST)
            emit_out(V_PY, YB)
            A(f"v_sub_f32 {v(V_ST + 4)}, {v(V_ST + 4)}, {v(V_ST)}")
            A(f"v_mul_f32 {v(V_ST + 5)}, {v(V_ST + 5)}, {v(V_ST + 1)}")
            A(f"v_mul_f32 {v(V_ST + 4)}, {v(V_ST + 4)}, {v(V_ST + 1)}")
            A(f"v_mul_f32 {v(V_ST + 5)}, {v(V_ST + 5)}, {v(V_ST + 1)}")
            finish_stats(A, V_ST + 4, V_ST + 5, V_T, scaled=True)
            A(f"s_lshl_b32 {s(T)}, {s(S_WAVE)}, 12")
            A(f"s_sub_u32 {s(T + 3)}, {s(S_O1)}, {s(T)}")
            A(f"s_add_u32 {s(T + 3)}, {s(T + 3)}, {s(S_YD)}")
            A(f"s_lshl_b32 {s(T)}, {s(S_ROLE)}, 5")
            A(f"s_add_u32 {s(T + 3)}, {s(T + 3)}, {s(T)}")
            A(f"s_add_u32 {s(T + 3)}, {s(T + 3)}, {YB + 40960}")
            A(f"v_lshlrev_b32 {v(V_T)}, 3, {v(V_LANE)}")
            lz = A.newlabel("zs")
            A(f"s_cmp_lg_u32 {s(S_WAVE)}, 3")
            A(f"s_cbranch_scc1 {lz}")
            A("s_mov_b64 exec, 15")
            A(f"buffer_store_dwordx2 {v(V_ST + 4, 2)}, {v(V_T)}, {WS}, {s(T + 3)} offen sc1")
            A("s_mov_b64 exec, -1")
            A.label(lz)
        flag_addr(A, S_FADDR, flag_row(F_R1))
        st(7)
        A(f"s_add_u32 {s(S_I)}, {s(S_I)}, 1")
        A(f"s_cmp_eq_u32 {s(S_I)}, 128")
        A("s_cbranch_scc1 R1_END")
        A(f"s_mov_b32 {s(S_L)}, {s(S_NL)}")
        A(f"s_mov_b32 {s(S_S)}, {s(S_NS)}")
        if cfg.r1e:
            nrdy = A.newlabel("nr")
            A(f"s_waitcnt vmcnt({4 if cfg.zf else 6})")
            A(f"v_min_u32 {v(V_FW)}, {v(V_FW)}, {v(V_FW + 1)}")
            A(f"v_cmp_eq_u32 vcc, 0, {v(V_FW)}")
            A(f"s_cbranch_vccnz {nrdy}")
            if cfg.wgp2:
                rdy_set(A, V_RDY, 0, T)
            r1_loads(nxt, S_L, S_S)
            A(f"s_waitcnt vmcnt({2 + 2 * NKG if cfg.r1h else 3 + 3 * NKG})")
            flag_store(A, S_FADDR)
            A(f"s_mov_b32 {s(S_DEF)}, 0")
            A(f"s_branch R1_{other}")
            A.label(nrdy)
            A(f"s_mov_b32 {s(S_DEF)}, 1")
        else:
            A(f"s_cmp_eq_u32 {s(S_DEF)}, 0")
            A(f"s_cbranch_scc1 R1_{other}")
        A("s_waitcnt vmcnt(0)")
        flag_store(A, S_FADDR)
        A(f"s_mov_b32 {s(S_FADDR)}, {DUMMY}")
        st(8)
        row_of(A, T + 7, S_L, S_S, flag_row(F_WOP))
        if cfg.wgp2:
            wg_wait(A, cfg, V_RDY, T + 7, T, vv=V_FW, wide=True)
        else:
            flag_block(A, T + 7, vv=V_FW, wide=True, sleep=1)
        st(9)
        r1_loads(nxt, S_L, S_S)
        A(f"s_branch R1_{other}")

    A(f"s_mov_b32 {s(S_I)}, {64 if cfg.r2 else 0}")
    A(f"s_mov_b32 {s(S_DEF)}, 1")
    if cfg.wgp2:
        rdy_init(A, cfg, V_RDY, 1024)
    A(f"s_mov_b32 {s(S_FADDR)}, {DUMMY}")
    if cfg.r1h:
        for b_ in SETS:
            for kg in range(NKG):
                for i in range(4):
                    A(f"v_mov_b32 {v(b_ + kg * 12 + 8 + i)}, 0")
            A(f"v_mov_b32 {v(b_ + 76)}, 0")
            A(f"v_mov_b32 {v(b_ + 77)}, 0")
    item_of(A, S_I, S_L, S_S, cfg.LAG + cfg.dlt, 0, T)
    row_of(A, T + 7, S_L, S_S, flag_row(F_WOP))
    flag_block(A, T + 7, vv=V_FW, wide=True, sleep=1)
    r1_loads(SETS[0], S_L, S_S)
    r1_full(SETS[0], SETS[1], "A", "B")
    r1_full(SETS[1], SETS[0], "B", "A")
    A.label("R1_END")
    A("s_waitcnt vmcnt(0)")
    flag_store(A, S_FADDR)
    st.dump(83, T, V_T)
    A("s_endpgm")
```

```python
from stations32 import *
import stations32 as S32
from chain2 import Lds, Task, sched, groups

HUGE = 0x80000000
S_U, S_UL, S_US, S_UF, S_UN = 32, 33, 34, 35, 36
S_GO, S_NGO, S_EGO, S_FA1 = 37, 38, 39, 59
S_FA2 = S_FADDR


def lines(fn_owner, fn):
    c = fn_owner.capture(fn)
    out = []
    for x in c.l:
        out.append(x)
    return out


def lstore(A, text):
    l1, l2 = A.newlabel("ls"), A.newlabel("ls")
    A(f"s_cmp_lg_u32 {s(S_MODE)}, 0")
    A.nf(f"s_cbranch_scc0 {l1}")
    for x in text:
        A(x + " sc1")
    A.nf(f"s_branch {l2}")
    A.label_nf(l1)
    for x in text:
        A(x)
    A.label_nf(l2)


def loc(A, local, insts):
    if local:
        lstore(A, insts)
    else:
        for x in insts:
            A(x + " sc1" if x.startswith("buffer_store") else x)


def flag_put(A, addr, local=False):
    if TSFLAG[0]:
        A(f"s_memrealtime {s(98, 2)}")
        A("s_waitcnt lgkmcnt(0)")
        A(f"s_or_b32 s98, s98, 1")
        A(f"v_mov_b32 {v(V_ONE)}, s98")
    A("s_mov_b64 exec, 1")
    loc(A, local, [f"buffer_store_dword {v(V_ONE)}, {v(V_L16)}, {WS}, {s(addr)} offen"])
    A("s_mov_b64 exec, -1")


class G3:
    R, D = 8, 7
    local_out = False
    V_IA = 16
    V_OA = 20
    V_RA = 22
    V_FR = 24
    V_ACC = 56
    kd0, kdstep = 1, 2
    kf1 = 10
    ksmp = 0.5
    psleep = 4

    def acc(self, tl):
        return self.V_ACC + (self.aset * self.NT + tl) * 16

    def expose(self):
        return False

    def decode(self, A):
        A(f"s_min_u32 {s(T + 2)}, {s(S_U)}, 127")
        sv = self.A
        self.A = A
        self.item(T + 2, S_UL, S_US)
        self.flag_soff(S_UF, S_UL, S_US)
        self.A = sv

    def w0(self, fn):
        A = self.A
        lab = A.newlabel("w0")
        A(f"s_cmp_lg_u32 {s(S_WAVE)}, 0")
        A.nf(f"s_cbranch_scc1 {lab}")
        fn()
        A.label_nf(lab)

    def sample(self):
        self.w0(lambda: self.A(f"buffer_load_dword {v(V_FV)}, {v(V_FO)}, {WS}, {s(S_UF)} offen sc1"))

    def decide(self):
        A = self.A

        def f():
            A(f"v_cmp_eq_u32 vcc, 0, {v(V_FV)}")
            A(f"s_cmp_eq_u64 vcc, 0")
            A(f"s_cselect_b32 {s(S_UN)}, 0, {HUGE}")
            A(f"s_cmp_lt_u32 {s(S_U)}, 128")
            A(f"s_cselect_b32 {s(S_UN)}, {s(S_UN)}, {HUGE}")
            A(f"v_mov_b32 {v(self.V_RA + 1)}, {s(S_UN)}")
            A(f"ds_write_b32 {v(self.V_RA)}, {v(self.V_RA + 1)}")
        self.w0(f)

    def rd(self, k, b):
        return f"ds_read_b128 {v(self.V_FR + (k % self.R) * 4, 4)}, {v(self.V_IA + 2 * b + (k & 1))} offset:{(k >> 1) * 2048}"

    def dma_lines(self, guard):
        L = lines(self, lambda: self.dma(S_UL, S_US, T + 6 if guard else S_BUF))
        if guard:
            out = [f"s_sub_u32 {s(T + 6)}, {self.bufsz}, {s(S_BUF)}"]
            done = False
            for x in L:
                out.append(x)
                if not done and x.startswith(f"s_mul_i32 {s(T)}, {s(T)}") or (not done and x.startswith(f"s_mul_i32 {s(T)}, {s(S_US)}")):
                    out.append(f"s_add_u32 {s(T)}, {s(T)}, {s(S_GO)}")
                    done = True
            assert done
            L = out
        return L

    def gen(self):
        A, cfg = self.A, self.cfg
        nm = self.name
        A.label("ROLE_" + nm)
        base_setup(A)
        for k in range(2):
            chunk_addr(A, self.V_IA + k, k, self.pin)
            A(f"v_add_u32 {v(self.V_IA + 2 + k)}, {self.bufsz}, {v(self.V_IA + k)}")
            chunk_addr(A, self.V_OA + k, k, False)
        self.setup()
        self.init_stores()
        init_barrier_arrive(A, V_T)
        WL = WLoader(A, V_T, T + 3)
        self.weights(WL)
        WL.emit(V_LANE)
        self.post_weights()
        A("s_barrier")
        init_barrier_wait(A, V_T, self.nwg, cfg)
        A(f"s_mov_b32 {s(S_I)}, 0")
        A(f"s_mov_b32 {s(S_U)}, 0")
        A(f"s_mov_b32 {s(S_BUF)}, 0")
        A(f"s_mov_b32 {s(S_FA1)}, {HUGE}")
        A(f"s_mov_b32 {s(S_FA2)}, {HUGE}")
        A(f"s_mov_b32 {s(S_EGO)}, {HUGE}")
        A(f"v_mov_b32 {v(self.V_RA)}, {2 * self.bufsz + 2048}")
        self.post_barrier()
        st = self.st = Stamper(A, cfg, 84, 8)
        A(f"s_mov_b32 s83, {s(S_GID)}")
        self.decode(A)
        st.init()
        nb = 2 if self.pipe else 1
        for b in range(nb):
            self.body(b, nb)
        A.label(nm + "_END")
        st.dump(83, T, V_T)
        A("s_endpgm")

    def post_barrier(self): pass
    def tail_tasks(self, L, kw): return []

    def swap_bufs(self):
        A = self.A
        A(f"s_sub_u32 {s(S_BUF)}, {self.bufsz}, {s(S_BUF)}")
        if not self.pipe:
            for k in range(2):
                A(f"v_swap_b32 {v(self.V_IA + k)}, {v(self.V_IA + 2 + k)}")

    def body(self, b, nb):
        A, cfg, st = self.A, self.cfg, self.st
        nm, NT, R, D = self.name, self.NT, self.R, self.D
        NS = 2 * self.nk
        o = (b + 1) % nb
        cur, nxt = (b, 1 - b) if self.pipe else (0, 1)
        A.label(f"{nm}_COLD{b}")
        lab = A.newlabel("cp")
        A(f"s_cmp_lg_u32 {s(S_WAVE)}, 0")
        A(f"s_cbranch_scc1 {lab}")
        sv = cfg.fsl
        cfg.fsl = self.psleep
        flag_block(A, S_UF)
        cfg.fsl = sv
        A.label(lab)
        A("s_barrier")
        st(6)
        for x in self.dma_lines(False):
            A(x)
        A.label(f"{nm}_CD{b}")
        A(f"s_mov_b32 {s(S_L)}, {s(S_UL)}")
        A(f"s_mov_b32 {s(S_S)}, {s(S_US)}")
        A(f"s_add_u32 {s(S_U)}, {s(S_U)}, 1")
        self.decode(A)
        self.sample()
        A("s_waitcnt vmcnt(0)")
        flag_put(A, S_FA1, self.local_out)
        A(f"s_mov_b32 {s(S_FA1)}, {HUGE}")
        self.decide()
        A("s_waitcnt lgkmcnt(0)")
        A("s_barrier")
        A(f"ds_read_b32 {v(self.V_RA + 1)}, {v(self.V_RA)}")
        for k in range(D):
            A(self.rd(k, cur))
        A(f"s_waitcnt lgkmcnt({D})")
        A(f"v_readfirstlane_b32 {s(S_GO)}, {v(self.V_RA + 1)}")
        st(7)
        A.label(f"{nm}_B{b}")
        L = Lds(A)
        L.q = [("F", k) for k in range(D)]
        self.aset = b if self.pipe else 0
        seq, rdt = [], []
        kbar = (NS - D) * NT
        for k in range(NS):
            for tl in range(NT):
                c = "0" if k == 0 else v(self.acc(tl), 16)
                fr = v(self.V_FR + (k % R) * 4, 4)
                w = self.wtxt(tl, k)
                x, y = (fr, w) if self.swap else (w, fr)
                need = [("F", k + 1)] if (tl == 0 and k % 2 == 0) else []
                seq.append((f"{MF} {v(self.acc(tl), 16)}, {x}, {y}, {c}", need))
            kk = k + D
            rdt.append(Task(k * NT, [(("F", kk), self.rd(kk % NS, cur if kk < NS else nxt))]))
        nvm = [0]

        def vm(x):
            def f():
                A(x)
                nvm[0] += 1
            return (cfg.vmc, f)

        def wrap(ls):
            out = []
            for x in groups([y for z in ls for y in z.split("\n")]):
                if x.startswith("buffer_"):
                    out.append(vm(x))
                elif x.startswith("ds_"):
                    out.append(("x", x))
                elif x.startswith("@wait"):
                    out.append((4, lambda: L.wait("x")))
                else:
                    out.append(x)
            return out
        early = wrap(lines(self, self.early))
        dl = wrap(self.dma_lines(True))
        tdma = Task(self.kd0, early + dl)
        tdma.vstep = self.kdstep
        dec = Capture()
        dec(f"s_mov_b32 {s(S_NL)}, {s(S_UL)}")
        dec(f"s_mov_b32 {s(S_NS)}, {s(S_US)}")
        dec(f"s_cmp_eq_u32 {s(S_GO)}, 0")
        dec(f"s_addc_u32 {s(S_U)}, {s(S_U)}, 0")
        self.decode(dec)
        tdma.items += wrap(dec.l)
        ksm = int(self.ksmp * NS * NT)

        def smp():
            assert not tdma.items
            self.sample()
        tsm = Task(ksm, [(28, smp)])
        tsm.after = tdma

        def f1():
            A(f"s_waitcnt vmcnt({nvm[0]})")
            flag_put(A, S_FA1, self.local_out)
            A(f"s_mov_b32 {s(S_FA1)}, {HUGE}")
            nvm[0] += 1
        tasks = [Task(self.kf1, [(28, f1)])]
        tepi = []
        if self.pipe:
            self.aset = 1 - b
            tepi += wrap(self.epi_lines(True))
            self.aset = b
        tpre = Task(0, wrap(lines(self, self.pre_mfma)), step=1)
        tasks.append(tpre)

        def wx():
            assert not tpre.items
            L.wait("x")
        tepi += [(4, wx)] + wrap(lines(self, self.mid)) + wrap(lines(self, self.save_item))
        tep = Task(2 if self.pipe else 12, tepi)
        kw = kbar - (3 if NT == 2 else 4) * NT

        def wpoint():
            assert not tdma.items and not tsm.items, (nm, len(tdma.items))
            assert not any(isinstance(i, tuple) and i[0] == cfg.vmc for i in tep.items), nm
            A("s_waitcnt vmcnt(0)")
            self.decide()

        def bar():
            assert not any(isinstance(i, tuple) for i in tep.items), (nm, len(tep.items))
            A(f"s_waitcnt lgkmcnt({min(len(L.q), 2)})")
            L.q = L.q[-2:]
            A("s_barrier")
            L.op("dw", f"ds_read_b32 {v(self.V_RA + 1)}, {v(self.V_RA)}")

        def f2():
            flag_put(A, S_FA2, self.local_out)
            A(f"s_mov_b32 {s(S_FA2)}, {HUGE}")

        def rdw():
            L.wait("dw")
            A(f"v_readfirstlane_b32 {s(S_NGO)}, {v(self.V_RA + 1)}")
        tail = []
        if self.pipe:
            tail.append(Task(kw, [(20, f2)]))
        tail.append(Task(kbar + 3 * NT, [(8, rdw)]))
        tail += self.tail_tasks(wrap, kw)
        sched(A, L, seq, rdt + tasks + [tdma, tsm, tep] + tail, pre={kw: wpoint, kbar: bar}, budget=24, nvalu=6)
        st(3)
        nf_, now = A.newlabel("nf"), A.newlabel("now")
        A(f"s_cmp_lg_u32 {s(S_GO)}, 0")
        A.nf(f"s_cbranch_scc1 {nf_}")

        def step():
            A(f"s_add_u32 {s(S_I)}, {s(S_I)}, 1")
            self.swap_bufs()
            A(f"s_mov_b32 {s(S_L)}, {s(S_NL)}")
            A(f"s_mov_b32 {s(S_S)}, {s(S_NS)}")
            A(f"s_mov_b32 {s(S_GO)}, {s(S_NGO)}")
        if self.pipe:
            if self.expose():
                A.nf(f"s_cbranch_scc1 {now}")
            A(f"s_mov_b32 {s(S_EGO)}, 0")
            step()
            A.nf(f"s_branch {nm}_B{o}")
        A.label(now)
        ntail = A.newlabel("nt")
        A(f"s_mov_b32 {s(S_DEF)}, 0")
        A(f"s_branch {ntail}")
        A.label(nf_)
        A(f"s_mov_b32 {s(S_DEF)}, 2")
        A(f"s_cmp_lg_u32 {s(S_NGO)}, 0")
        A(f"s_cbranch_scc1 {ntail}")
        A(f"s_mov_b32 {s(S_DEF)}, 1")
        A(f"s_mov_b32 {s(S_GO)}, 0")
        for x in self.dma_lines(True):
            A(x)
        A.label(ntail)
        if self.pipe:
            A(f"s_mov_b32 {s(S_EGO)}, 0")
        self.emit_epi()
        A(f"s_mov_b32 {s(S_FA1)}, {s(S_FA2)}")
        A(f"s_mov_b32 {s(S_FA2)}, {HUGE}")
        A(f"s_mov_b32 {s(S_EGO)}, {HUGE}")
        st(4)
        step()
        A(f"s_cmp_eq_u32 {s(S_DEF)}, 0")
        A(f"s_cbranch_scc1 {nm}_B{o}")
        A(f"s_cmp_eq_u32 {s(S_DEF)}, 1")
        A(f"s_cbranch_scc1 {nm}_CD{o}")
        A("s_waitcnt vmcnt(0)")
        flag_put(A, S_FA1, self.local_out)
        A(f"s_mov_b32 {s(S_FA1)}, {HUGE}")
        st(5)
        A(f"s_cmp_eq_u32 {s(S_I)}, 128")
        A(f"s_cbranch_scc1 {nm}_END")
        A(f"s_branch {nm}_COLD{o}")

    def epi_lines(self, guarded):
        PRE_FLAG[0] = True
        cap = self.capture(self.epilogue)
        PRE_FLAG[0] = None
        return cap.l

    def emit_epi(self):
        A = self.A
        run = []
        for x in self.epi_lines(False):
            if self.local_out and x.startswith("buffer_store"):
                run.append(x.replace(" sc1", ""))
                continue
            if run:
                lstore(A, run)
                run = []
            A(x)
        if run:
            lstore(A, run)


class QKV3(G3, QKV32):
    V_CS = 120
    V_SV = 124
    V_SR = 156
    V_ST = 176
    V_PK = 180
    V_SA0, V_SA, V_SW, V_SRD = 188, 189, 190, 191
    V_FO0, V_FO1, V_DC = 12, 13, 14
    kd0, kdstep, kf1, ksmp = 1, 3, 30, 0.55
    psleep = 7
    D = 5

    def __init__(self, A, cfg, nwg, vtype):
        QKV32.__init__(self, A, cfg, nwg, vtype)
        self.psleep = cfg.wgp - 1
        self.kdstep, self.kf1, self.ksmp = cfg.qds, cfg.qf1, cfg.qsm / 100.0

    def expose(self):
        A, cfg = self.A, self.cfg
        A(f"s_cmp_lt_u32 {s(S_I)}, 2")
        if cfg.qx:
            A(f"s_cselect_b32 {s(T)}, 1, {s(S_L)}")
            if cfg.qx == 2 and not self.swap:
                A(f"s_andn2_b32 {s(T)}, {s(T)}, {s(self.S_TYPE)}")
            A(f"s_cmp_lg_u32 {s(T)}, 0")
        return True

    def save_item(self):
        A = self.A
        A(f"s_mov_b32 {s(self.S_EL)}, {s(S_L)}")
        A(f"s_mov_b32 {s(self.S_ES)}, {s(S_S)}")
        if self.swap:
            A(f"ds_write_b64 {v(self.V_SW)}, {v(self.V_ST, 2)}")
            for i in range(4):
                for hf in range(2):
                    A(f"ds_read_b128 {v(self.V_SV + i * 8 + hf * 4, 4)}, {v(self.V_SRD)} offset:{i * 64 + hf * 16}")

    def post_barrier(self):
        A = self.A
        A(f"s_mov_b32 {s(self.S_EL)}, 0")
        A(f"s_mov_b32 {s(self.S_ES)}, 0")

    def epi_lines(self, guarded):
        L = G3.epi_lines(self, guarded)
        out = []
        for x in L:
            out.append(x)
            if x.startswith(f"s_mul_i32 {s(self.E)},"):
                out.append(f"s_add_u32 {s(self.E)}, {s(self.E)}, {s(S_EGO)}")
        out.append(f"s_add_u32 {s(S_FADDR)}, {s(S_FADDR)}, {s(S_EGO)}")
        return out


class B3(G3):
    kchk, kdstep, ksm2 = 12, 2, 30
    local_in = False

    def tune(self, cfg):
        self.local_out = bool(cfg.bloc)
        self.local_in = bool(cfg.bloc)
        self.kchk = cfg.bf1
        self.ksm2 = cfg.bsm
        self.psleep = cfg.bps

    def post_barrier(self):
        A = self.A
        A(f"v_mov_b32 {v(self.V_RA + 1)}, 0")
        A(f"ds_write_b32 {v(self.V_RA)}, {v(self.V_RA + 1)}")
        A(f"s_mov_b32 {s(S_EGO)}, {self.cfg.spin * 8}")
        A("s_waitcnt lgkmcnt(0)")
        A("s_barrier")

    def ready(self):
        if self.local_in:
            return []
        return [f"s_add_u32 {s(T + 5)}, {s(S_U)}, 1", f"s_or_b32 {s(T + 5)}, {s(T + 5)}, {s(S_GO)}", f"v_mov_b32 {v(self.V_RA + 1)}, {s(T + 5)}",
                f"ds_max_i32 {v(self.V_RA)}, {v(self.V_RA + 1)}"]

    def check(self):
        return [f"v_cmp_eq_u32 vcc, 0, {v(V_FV)}", f"s_cmp_eq_u64 vcc, 0\ns_cselect_b32 {s(S_GO)}, 0, {HUGE}",
                f"s_cmp_lt_u32 {s(S_U)}, 128\ns_cselect_b32 {s(S_GO)}, {s(S_GO)}, {HUGE}"]

    def body(self, b, nb):
        A, cfg, st = self.A, self.cfg, self.st
        nm, NT, R, D = self.name, self.NT, self.R, self.D
        NS = 2 * self.nk
        smp = f"buffer_load_dword {v(V_FV)}, {v(V_FO)}, {WS}, {s(S_UF)} offen sc1"
        self.swap_bufs()
        A(f"s_mov_b32 {s(S_I)}, -1")
        A.label(f"{nm}_COLD")
        sv = cfg.fsl
        cfg.fsl = self.psleep
        A(f"s_mov_b32 {s(S_GO)}, 0")
        if self.local_in:
            flag_block(A, S_UF)
        else:
            oth, done = A.newlabel("wo"), A.newlabel("wd")
            A(f"s_cmp_lg_u32 {s(S_WAVE)}, 0")
            A(f"s_cbranch_scc1 {oth}")
            flag_block(A, S_UF)
            for x in self.ready():
                A(x)
            A(f"s_branch {done}")
            A.label(oth)
            A(f"ds_read_b32 {v(self.V_RA + 1)}, {v(self.V_RA)}")
            A("s_waitcnt lgkmcnt(0)")
            A(f"v_cmp_ge_u32 vcc, {s(S_U)}, {v(self.V_RA + 1)}")
            A(f"s_cbranch_vccz {done}")
            A(f"s_sleep 1")
            A(f"s_sub_u32 {s(S_EGO)}, {s(S_EGO)}, 1")
            A("s_cbranch_scc1 ABORT")
            A(f"s_branch {oth}")
            A.label(done)
        cfg.fsl = sv
        st(6)
        for x in self.dma_lines(True):
            A(x)
        A(f"s_mov_b32 {s(S_DEF)}, 1")
        A.label(f"{nm}_NEXT")
        A(f"s_add_u32 {s(S_I)}, {s(S_I)}, 1")
        self.swap_bufs()
        A(f"s_mov_b32 {s(S_L)}, {s(S_UL)}")
        A(f"s_mov_b32 {s(S_S)}, {s(S_US)}")
        A(f"s_add_u32 {s(S_U)}, {s(S_U)}, 1")
        self.decode(A)
        lab = A.newlabel("wv")
        A(f"s_waitcnt vmcnt({self.nstores})")
        A(f"s_cmp_eq_u32 {s(S_DEF)}, 0")
        A(f"s_cbranch_scc1 {lab}")
        A("s_waitcnt vmcnt(0)")
        A.label(lab)
        st(7)
        A("s_barrier")
        L = Lds(A)
        for k in range(D):
            L.op(("F", k), self.rd(k, 0))
        A(smp)
        st(0)
        seq, rdt = [], []
        for k in range(NS):
            for tl in range(NT):
                c = "0" if k == 0 else v(self.acc(tl), 16)
                fr = v(self.V_FR + (k % R) * 4, 4)
                w = self.wtxt(tl, k)
                x, y = (fr, w) if self.swap else (w, fr)
                need = [("F", k) if k < 2 else ("F", k + 1)] if (tl == 0 and (k % 2 == 0 or k < 2)) else []
                seq.append((f"{MF} {v(self.acc(tl), 16)}, {x}, {y}, {c}", need))
            if k + D < NS:
                rdt.append(Task(k * NT, [(("F", k + D), self.rd(k + D, 0))]))
        nvm = [0]

        def vm(x):
            def f():
                A(x)
                nvm[0] += 1
            return (cfg.vmc, f)

        def wrap(ls):
            out = []
            for x in groups([y for z in ls for y in z.split("\n")]):
                out.append(vm(x) if x.startswith("buffer_") else ("x", x) if x.startswith("ds_") else x)
            return out
        tearly = Task(0, wrap(lines(self, self.early)))
        tpre = Task(0, wrap(lines(self, self.pre_mfma)), step=1)

        def f1():
            assert not tearly.items
            A(f"s_waitcnt vmcnt({nvm[0]})")
            flag_put(A, S_FA1, self.local_out)
            A(f"s_mov_b32 {s(S_FA1)}, {HUGE}")
            nvm[0] = 0
        tdma = Task(self.kchk, [(28, f1)] + self.check() + wrap(self.ready()) + wrap(self.dma_lines(True)))
        tdma.vstep = self.kdstep

        def wx():
            assert not tpre.items
            L.wait("x")
        tmid = Task(10, [(4, wx)] + wrap(lines(self, self.mid)))
        after = [None]

        def smp2():
            A(smp)
            after[0] = nvm[0]
        tsm = Task(self.ksm2, [(cfg.vmc + 1, smp2)])
        sched(A, L, seq, rdt + [tpre, tearly, tsm, tdma, tmid], budget=24, nvalu=6)
        st(3)
        ep = A.newlabel("ep")
        A(f"s_mov_b32 {s(S_DEF)}, 0")
        A(f"s_cmp_eq_u32 {s(S_GO)}, 0")
        A.nf(f"s_cbranch_scc1 {ep}")
        A("s_waitcnt vmcnt(0)")
        for x in self.check():
            A(x)
        A(f"s_cmp_lg_u32 {s(S_GO)}, 0")
        A.nf(f"s_cbranch_scc1 {ep}")
        for x in self.ready() + self.dma_lines(True):
            A(x)
        A.label_nf(ep)
        A("s_nop 7")
        self.late(nvm[0] + 2)
        self.emit_epi()
        A(f"s_mov_b32 {s(S_FA1)}, {s(S_FA2)}")
        st(4)
        A(f"s_cmp_eq_u32 {s(S_GO)}, 0")
        A(f"s_cbranch_scc1 {nm}_NEXT")
        A("s_waitcnt vmcnt(0)")
        flag_put(A, S_FA1, self.local_out)
        A(f"s_mov_b32 {s(S_FA1)}, {HUGE}")
        st(5)
        A(f"s_cmp_lt_u32 {s(S_U)}, 128")
        A(f"s_cbranch_scc1 {nm}_COLD")

    def late(self, n): pass


class W1_3(B3, W1_32):
    def __init__(self, A, cfg, nwg):
        W1_32.__init__(self, A, cfg, nwg)
        self.tune(cfg)
        self.local_in = False
        self.psleep = cfg.wgp - 1
        self.kchk, self.kdstep, self.ksm2 = cfg.bf1x, 1, cfg.bsmx


class W3_3(B3, W3_32):
    def __init__(self, A, cfg, nwg):
        W3_32.__init__(self, A, cfg, nwg)
        self.tune(cfg)


class W2_3(B3, W2_32):
    def __init__(self, A, cfg, nwg):
        W2_32.__init__(self, A, cfg, nwg)
        self.tune(cfg)

    def mid(self): pass

    def late(self, n):
        self.A(f"s_waitcnt vmcnt({n})")
        W2_32.mid(self)


class WO_3(G3, WO32):
    def __init__(self, A, cfg, nwg):
        WO32.__init__(self, A, cfg, nwg)
        self.kd0, self.kdstep, self.kf1, self.ksmp, self.psleep = 0, 2, 24, 0.6, cfg.wgp - 1


class Vm:
    def __init__(self, A, q=()):
        self.A, self.q = A, list(q)

    def op(self, tag, text):
        self.A(text)
        self.q.append(tag)

    def wait(self, tag):
        if tag not in self.q:
            return
        i = len(self.q) - 1 - self.q[::-1].index(tag)
        self.A(f"s_waitcnt vmcnt({len(self.q) - 1 - i})")
        self.q = self.q[i + 1:]


def gen_ks(A, cfg, nwg, wo):
    nm = "WO" if wo else "W4"
    V_IN, V_ACC, V_RD, V_XX, V_XU, V_PK = 16, 112, 144, 176, 184, 200
    V_SAD, V_OA, V_LW, V_LR, V_CA = 204, 205, 206, 207, 208
    S_J, S_TT, S_CH, S_INW, S_CB, S_NB, S_OUT, S_FW = range(S_K, S_K + 8)
    SRD_O = 76
    AH = cfg.kah
    local_in = bool(cfg.oloc if wo else cfg.bloc)
    A.label("ROLE_" + nm)
    base_setup(A)
    for k in range(2):
        chunk_addr(A, V_CA + k, k, False)
    if wo:
        S_KG, S_CG = T + 4, T + 5
        A(f"s_mul_i32 {s(S_KG)}, {s(S_ROLE)}, 6554")
        A(f"s_lshr_b32 {s(S_KG)}, {s(S_KG)}, 16")
        A(f"s_mul_i32 {s(T)}, {s(S_KG)}, 10")
        A(f"s_sub_u32 {s(S_CG)}, {s(S_ROLE)}, {s(T)}")
        A(f"v_min_u32 {v(V_FO)}, 1, {v(V_LANE)}")
        A(f"s_lshl_b32 {s(T)}, {s(S_KG)}, 4")
        A(f"s_add_u32 {s(T)}, {s(T)}, {s(S_WAVE)}")
        A(f"s_lshl_b32 {s(T)}, {s(T)}, 1")
    else:
        S_CG = S_ROLE
        A(f"v_min_u32 {v(V_FO)}, 11, {v(V_LANE)}")
        A(f"s_mul_i32 {s(T)}, {s(S_WAVE)}, 12")
    A(f"v_add_u32 {v(V_FO)}, {s(T)}, {v(V_FO)}")
    A(f"v_lshlrev_b32 {v(V_FO)}, 2, {v(V_FO)}")
    A(f"s_and_b32 {s(T)}, {s(S_WAVE)}, 1")
    A(f"s_lshl_b32 {s(S_J)}, {s(S_CG)}, 1")
    A(f"s_add_u32 {s(S_J)}, {s(S_J)}, {s(T)}")
    A(f"s_lshr_b32 {s(S_TT)}, {s(S_WAVE)}, 1")
    A(f"s_mul_i32 {s(S_INW)}, {s(S_WAVE)}, 24576")
    A(f"s_mul_i32 {s(S_C0)}, {s(S_WAVE)}, {384 * 1280}")
    A(f"s_lshl_b32 {s(T + 1)}, {s(S_CG)}, 7")
    A(f"s_add_u32 {s(S_C0)}, {s(S_C0)}, {s(T + 1)}")
    if wo:
        A(f"s_mul_i32 {s(T + 1)}, {s(S_KG)}, {1536 * 1280}")
        A(f"s_add_u32 {s(S_C0)}, {s(S_C0)}, {s(T + 1)}")
        A(f"s_mul_i32 {s(T + 1)}, {s(S_KG)}, 98304")
        A(f"s_add_u32 {s(S_INW)}, {s(S_INW)}, {s(T + 1)}")
        A(f"s_add_u32 {s(S_INW)}, {s(S_INW)}, {OX}")
        A(f"v_bfe_u32 {v(V_T)}, {v(V_LANE)}, 2, 2")
        A(f"v_mul_u32_u24 {v(V_OA)}, 10240, {v(V_T)}")
        A(f"v_and_b32 {v(V_T)}, 3, {v(V_LANE)}")
        A(f"v_lshl_add_u32 {v(V_OA)}, {v(V_T)}, 4, {v(V_OA)}")
        A(f"v_lshrrev_b32 {v(V_T)}, 4, {v(V_LANE)}")
        A(f"v_lshl_add_u32 {v(V_OA)}, {v(V_T)}, 6, {v(V_OA)}")
        A(f"s_mul_i32 {s(S_OUT)}, {s(S_KG)}, 81920")
        A(f"s_mul_i32 {s(T + 1)}, {s(S_TT)}, 40960")
        A(f"s_add_u32 {s(S_OUT)}, {s(S_OUT)}, {s(T + 1)}")
        A(f"s_lshl_b32 {s(T + 1)}, {s(S_J)}, 9")
        A(f"s_add_u32 {s(S_OUT)}, {s(S_OUT)}, {s(T + 1)}")
        A(f"s_add_u32 {s(S_OUT)}, {s(S_OUT)}, {WOP}")
        A(f"s_lshl1_add_u32 {s(S_FW)}, {s(S_ROLE)}, {s(T)}")
        A(f"s_lshl_b32 {s(S_FW)}, {s(S_FW)}, 2")
        A(f"s_mul_i32 {s(T + 1)}, {s(S_TT)}, 320")
        A(f"s_add_u32 {s(S_FW)}, {s(S_FW)}, {s(T + 1)}")
        A(f"s_add_u32 {s(S_FW)}, {s(S_FW)}, {FWOP2}")
    else:
        A(f"s_add_u32 {s(S_INW)}, {s(S_INW)}, {GB}")
        A(f"v_and_b32 {v(V_T)}, 15, {v(V_LANE)}")
        A(f"v_lshlrev_b32 {v(V_SAD)}, 3, {v(V_T)}")
        A(f"s_lshl_b32 {s(T)}, {s(S_TT)}, 4")
        A(f"v_add_u32 {v(V_T)}, {s(T)}, {v(V_T)}")
        A(f"v_mul_u32_u24 {v(V_OA)}, 1280, {v(V_T)}")
        A(f"v_lshrrev_b32 {v(V_T)}, 4, {v(V_LANE)}")
        A(f"v_lshl_add_u32 {v(V_OA)}, {v(V_T)}, 3, {v(V_OA)}")
        A(f"s_lshl_b32 {s(T)}, {s(S_J)}, 6")
        A(f"v_add_u32 {v(V_OA)}, {s(T)}, {v(V_OA)}")
        make_srd(A, SRD_O, P_OUT, 2048 * 1280)
        A(f"s_lshl_b32 {s(S_CH)}, {s(S_J)}, 1")
        A(f"s_add_u32 {s(S_CH)}, {s(S_CH)}, {s(S_TT)}")
        A(f"s_lshl_b32 {s(S_CH)}, {s(S_CH)}, 10")
    A(f"v_bfe_u32 {v(V_T)}, {v(V_LANE)}, 4, 1")
    A(f"v_lshlrev_b32 {v(V_LW)}, 14, {v(V_T)}")
    A(f"v_lshrrev_b32 {v(V_T)}, 5, {v(V_LANE)}")
    A(f"v_lshl_add_u32 {v(V_LW)}, {v(V_T)}, 8, {v(V_LW)}")
    A(f"v_and_b32 {v(V_T)}, 15, {v(V_LANE)}")
    A(f"v_lshl_add_u32 {v(V_LW)}, {v(V_T)}, 4, {v(V_LW)}")
    A(f"s_lshl_b32 {s(T)}, {s(S_WAVE)}, 11")
    A(f"v_add_u32 {v(V_LW)}, {s(T)}, {v(V_LW)}")
    A(f"s_lshl_b32 {s(T)}, {s(S_WAVE)}, 13")
    A(f"v_add_u32 {v(V_LR)}, {s(T)}, {v(V_L16)}")
    init_barrier_arrive(A, V_T)
    WL = WLoader(A, V_T, T + 3)
    WL.add(lambda: make_srd(A, SRD_W, P_WO if wo else P_W4, (6144 if wo else 1536) * 1280), S_C0, 1280, 4, 12,
           lambda tl, j, u: ("a", ((tl * 12 + j) * 2 + u) * 4), "perm")
    WL.emit(V_LANE)
    A("s_barrier")
    init_barrier_wait(A, V_T, nwg, cfg)
    st = Stamper(A, cfg, 84, 8)
    A(f"s_mov_b32 s83, {s(S_GID)}")

    def decode(A):
        A(f"s_min_u32 {s(T + 2)}, {s(S_U)}, 127")
        item_of(A, T + 2, S_UL, S_US, cfg.LAG + cfg.dlt, 0, T)
        row_of(A, S_UF, S_UL, S_US, flag_row(F_O if wo else F_G))
        if wo:
            A(f"s_mul_i32 {s(S_NB)}, {s(S_US)}, {QKV_SEG}")
        else:
            A(f"s_lshl_b32 {s(T)}, {s(S_UL)}, 6")
            A(f"s_add_u32 {s(T)}, {s(T)}, {s(S_US)}")
            A(f"s_mul_i32 {s(S_NB)}, {s(T)}, {GSEG}")
        A(f"s_add_u32 {s(S_NB)}, {s(S_NB)}, {s(S_INW)}")

    def ld(k, base, first=False):
        r = []
        if k % 4 == 0 or first:
            r.append(f"s_add_u32 {s(T + 3)}, {s(base)}, {(k // 4) * 4096}")
        r.append(f"buffer_load_dwordx4 {v(V_IN + 4 * k, 4)}, {v(V_CA + (k & 1))}, {WS}, {s(T + 3)} offen offset:{((k >> 1) & 1) * 2048} sc1")
        return r
    smp = f"buffer_load_dword {v(V_FV)}, {v(V_FO)}, {WS}, {s(S_UF)} offen sc1"
    check = [f"v_cmp_eq_u32 vcc, 0, {v(V_FV)}", f"s_cmp_eq_u64 vcc, 0\ns_cselect_b32 {s(S_GO)}, 0, {HUGE}",
             f"s_cmp_lt_u32 {s(S_U)}, 128\ns_cselect_b32 {s(S_GO)}, {s(S_GO)}, {HUGE}"]
    A(f"s_mov_b32 {s(S_U)}, 0")
    A(f"s_mov_b32 {s(S_FA1)}, {HUGE}")
    decode(A)
    st.init()
    A.label(nm + "_COLD")
    sv = cfg.fsl
    cfg.fsl = cfg.bps if local_in else cfg.wgp - 1
    flag_block(A, S_UF)
    cfg.fsl = sv
    st(6)
    for k in range(AH):
        for x in ld(k, S_NB):
            A(x)
        if cfg.ksp and k < AH - 1:
            A(f"s_nop {cfg.ksp - 1}")
    A.label(nm + "_NEXT")
    A(f"s_mov_b32 {s(S_L)}, {s(S_UL)}")
    A(f"s_mov_b32 {s(S_S)}, {s(S_US)}")
    A(f"s_mov_b32 {s(S_CB)}, {s(S_NB)}")
    A(f"s_add_u32 {s(S_U)}, {s(S_U)}, 1")
    L = Lds(A)
    V = Vm(A, [("I", k) for k in range(AH)])
    seq, pre, tasks = [], {}, []
    S_NG = T + 7

    def vm(tag, x):
        return (cfg.vmc, lambda: V.op(tag, x))
    for k in range(24):
        pre[2 * k] = (lambda k=k: V.wait(("I", k)))
        for tl in range(2):
            c = "0" if k == 0 else v(V_ACC + 16 * tl, 16)
            seq.append((f"{MF} {v(V_ACC + 16 * tl, 16)}, {a((tl * 24 + k) * 4, 4)}, {v(V_IN + 4 * k, 4)}, {c}", []))
    dec = Capture()
    decode(dec)
    tdec = Task(0, groups(dec.l) + [vm("S", smp)])
    tchk = Task(2 * (24 - AH) - 3, [(4, lambda: V.wait("S"))] + check + [f"s_add_u32 {s(S_NG)}, {s(S_NB)}, {s(S_GO)}"])
    tchk.after = tdec
    for k in range(24):
        kk = k + AH
        ls = ld(kk, S_CB, k == 0) if kk < 24 else ld(kk - 24, S_NG)
        t = Task(2 * k, ls[:-1] + [vm(("I", kk), ls[-1])])
        if kk >= 24:
            t.after = tchk
        tasks.append(t)

    def f1():
        assert ("I", AH) not in V.q
        flag_put(A, S_FA1)
        V.q.append("f")
        A(f"s_mov_b32 {s(S_FA1)}, {HUGE}")
    tasks.append(Task(max(2 * AH, cfg.kkf), [(20, f1)]))
    tasks += [tdec, tchk]
    misc = [f"v_xor_b32 {v(V_LW)}, 0x8000, {v(V_LW)}", f"v_xor_b32 {v(V_LR)}, 0x8000, {v(V_LR)}"]
    E = T + 4
    if wo:
        misc += [f"s_mul_i32 {s(E)}, {s(S_S)}, {WOP_SEG}", f"s_add_u32 {s(E)}, {s(E)}, {s(S_OUT)}",
                 f"s_lshl_b32 {s(E + 1)}, {s(S_L)}, 6", f"s_add_u32 {s(E + 1)}, {s(E + 1)}, {s(S_S)}", f"s_mul_i32 {s(E + 1)}, {s(E + 1)}, 640",
                 f"s_add_u32 {s(S_FA2)}, {s(E + 1)}, {s(S_FW)}"]
    else:
        misc += [f"s_lshl_b32 {s(E)}, {s(S_L)}, 6", f"s_add_u32 {s(E)}, {s(E)}, {s(S_S)}",
                 f"s_mul_i32 {s(E + 1)}, {s(E)}, {XSEGS}", f"s_add_u32 {s(E + 1)}, {s(E + 1)}, {s(S_CH)}", f"s_add_u32 {s(E + 1)}, {s(E + 1)}, {X1B}",
                 vm("X", f"buffer_load_dwordx4 {v(V_XX, 4)}, {v(V_L16)}, {WS}, {s(E + 1)} offen sc1"),
                 f"s_mul_i32 {s(E + 1)}, {s(E)}, {XSEG}", f"s_add_u32 {s(E + 1)}, {s(E + 1)}, {s(S_CH)}", f"s_add_u32 {s(E + 1)}, {s(E + 1)}, {XM}"]
        tasks.append(Task(cfg.kxm, [vm("X", f"buffer_load_dwordx4 {v(V_XX + 4, 4)}, {v(V_P16)}, {WS}, {s(E + 1)} offen sc1")]))
    tm = Task(1, misc)
    if not wo:
        tasks[-1].after = tm
    tasks.append(tm)
    tasks.append(Task(cfg.ks2, [vm("S2", smp)]))
    tasks[-1].after = tchk
    sched(A, L, seq, tasks, pre=pre, budget=24, nvalu=6)
    st(3)
    ep = A.newlabel("ep")
    A(f"s_cmp_eq_u32 {s(S_GO)}, 0")
    A.nf(f"s_cbranch_scc1 {ep}")
    A("s_waitcnt vmcnt(0)")
    for x in check:
        A(x)
    A(f"s_cmp_lg_u32 {s(S_GO)}, 0")
    A.nf(f"s_cbranch_scc1 {ep}")
    for k in range(AH):
        for x in ld(k, S_NB):
            A(x)
    A.label_nf(ep)
    A("s_nop 7")
    for tl in range(2):
        if tl:
            A("s_nop 0")
        for k in range(2):
            for pc in range(2):
                A(f"ds_write_b128 {v(V_LW)}, {v(V_ACC + 16 * tl + 8 * k + 4 * pc, 4)} offset:{tl * 8192 + pc * 1024 + k * 512}")
    if not wo:
        V.wait("X")
        unpack8(A, V_XU, V_XX)
        unpack8(A, V_XU + 8, V_XX + 4)
    A("s_waitcnt lgkmcnt(0)")
    A("s_barrier")
    for i in range(8):
        A(f"ds_read_b128 {v(V_RD + 4 * i, 4)}, {v(V_LR)} offset:{i * 1024}")
    A("s_waitcnt lgkmcnt(4)")
    for i in range(0, 8, 2):
        A(f"v_pk_add_f32 {v(V_RD + i, 2)}, {v(V_RD + i, 2)}, {v(V_RD + 8 + i, 2)}")
    A("s_waitcnt lgkmcnt(0)")
    for i in range(0, 8, 2):
        A(f"v_pk_add_f32 {v(V_RD + 16 + i, 2)}, {v(V_RD + 16 + i, 2)}, {v(V_RD + 24 + i, 2)}")
    for i in range(0, 8, 2):
        A(f"v_pk_add_f32 {v(V_RD + i, 2)}, {v(V_RD + i, 2)}, {v(V_RD + 16 + i, 2)}")
    if wo:
        for k in range(2):
            A(f"buffer_store_dwordx4 {v(V_RD + 4 * k, 4)}, {v(V_OA)}, {WS}, {s(E)} offen offset:{k * 256} sc1")
        A(f"s_mov_b32 {s(S_FA1)}, {s(S_FA2)}")
    else:
        X = [V_RD + i for i in range(8)]
        for i in range(0, 8, 2):
            rnd2(A, V_T, X[i], X[i + 1])
        for i in range(0, 8, 2):
            A(f"v_pk_add_f32 {v(X[i], 2)}, {v(X[i], 2)}, {v(V_XU + i, 2)}")
        for i in range(0, 8, 2):
            rnd2(A, V_T, X[i], X[i + 1])
        for i in range(0, 8, 2):
            A(f"v_pk_add_f32 {v(X[i], 2)}, {v(X[i], 2)}, {v(V_XU + 8 + i, 2)}")
        for i in range(0, 8, 2):
            rnd2(A, V_PK + i // 2, X[i], X[i + 1])
        l1, l2 = A.newlabel("w4o"), A.newlabel("w4n")
        A(f"s_cmp_lg_u32 {s(S_L)}, 0")
        A(f"s_cbranch_scc1 {l1}")
        A(f"s_mul_i32 {s(T + 2)}, {s(S_S)}, {XSEGS}")
        A(f"s_add_u32 {s(T + 2)}, {s(T + 2)}, {XIN + 64 * XSEGS}")
        A(f"s_add_u32 {s(T + 3)}, {s(T + 2)}, {s(S_CH)}")
        A(f"buffer_store_dwordx4 {v(V_PK, 4)}, {v(V_P16)}, {WS}, {s(T + 3)} offen sc1")
        t = V_T
        A(f"v_add_f32 {v(t)}, {v(X[0])}, {v(X[1])}")
        A(f"v_mul_f32 {v(t + 1)}, {v(X[0])}, {v(X[0])}")
        for i in range(1, 8):
            if i >= 2:
                A(f"v_add_f32 {v(t)}, {v(t)}, {v(X[i])}")
            A(f"v_fmac_f32 {v(t + 1)}, {v(X[i])}, {v(X[i])}")
        for op in ("v_permlane32_swap_b32", "v_permlane16_swap_b32"):
            A(f"v_mov_b32 {v(t + 2)}, {v(t)}")
            A(f"v_mov_b32 {v(t + 3)}, {v(t + 1)}")
            A(f"{op} {v(t)}, {v(t + 2)}")
            A(f"{op} {v(t + 1)}, {v(t + 3)}")
            A(f"v_add_f32 {v(t)}, {v(t)}, {v(t + 2)}")
            A(f"v_add_f32 {v(t + 1)}, {v(t + 1)}, {v(t + 3)}")
        A(f"s_lshl_b32 {s(T + 3)}, {s(S_J)}, 8")
        A(f"s_lshl_b32 {s(T)}, {s(S_TT)}, 7")
        A(f"s_add_u32 {s(T + 3)}, {s(T + 3)}, {s(T)}")
        A(f"s_add_u32 {s(T + 3)}, {s(T + 3)}, {s(T + 2)}")
        A(f"s_add_u32 {s(T + 3)}, {s(T + 3)}, 40960")
        A("s_mov_b64 exec, 0xffff")
        A(f"buffer_store_dwordx2 {v(t, 2)}, {v(V_SAD)}, {WS}, {s(T + 3)} offen sc1")
        A("s_mov_b64 exec, -1")
        A(f"s_mov_b32 {s(T + 6)}, 1")
        flag_addr(A, S_FA1, flag_row(F_XIN), S_IDX, T + 6, S_S)
        A(f"s_branch {l2}")
        A.label(l1)
        A(f"s_mul_i32 {s(T + 2)}, {s(S_S)}, {32 * 1280}")
        A(f"buffer_store_dwordx2 {v(V_PK, 2)}, {v(V_OA)}, {s(SRD_O, 4)}, {s(T + 2)} offen")
        A(f"buffer_store_dwordx2 {v(V_PK + 2, 2)}, {v(V_OA)}, {s(SRD_O, 4)}, {s(T + 2)} offen offset:32")
        A.label(l2)
    st(4)
    A(f"s_cmp_eq_u32 {s(S_GO)}, 0")
    A(f"s_cbranch_scc1 {nm}_NEXT")
    A("s_waitcnt vmcnt(0)")
    flag_put(A, S_FA1)
    A(f"s_mov_b32 {s(S_FA1)}, {HUGE}")
    st(5)
    A(f"s_cmp_lt_u32 {s(S_U)}, 128")
    A(f"s_cbranch_scc1 {nm}_COLD")
    st.dump(83, T, V_T)
    if cfg.timing == 6 and not wo:
        A("s_memrealtime s[98:99]")
        A("s_waitcnt lgkmcnt(0)")
        A("s_sub_u32 s98, s98, s96")
        A(f"v_mov_b32 {v(V_T)}, s98")
        A(f"v_mov_b32 {v(V_T + 1)}, 28")
        A("s_mov_b64 exec, 1")
        A(f"buffer_store_dword {v(V_T)}, {v(V_T + 1)}, {s(SRD_DBG, 4)}, 0 offen")
    A("s_endpgm")
```

```python
from stations import *

MF = "v_mfma_f32_32x32x16_bf16"
S_DID = 81
S_SPIN2 = 59


def chunk_addr(A, dst, k, perm):
    A(f"v_lshrrev_b32 {v(V_T)}, 5, {v(V_LANE)}")
    if k:
        A(f"v_add_u32 {v(V_T)}, 2, {v(V_T)}")
    A(f"v_bfe_u32 {v(V_T + 1)}, {v(V_LANE)}, 4, 1")
    A(f"v_lshlrev_b32 {v(dst)}, 10, {v(V_T + 1)}")
    if perm:
        A(f"v_bfe_u32 {v(V_T + 1)}, {v(V_LANE)}, 2, 2")
        A(f"v_lshl_add_u32 {v(dst)}, {v(V_T + 1)}, 8, {v(dst)}")
        A(f"v_add_u32 {v(V_T)}, {v(V_T)}, {v(V_T + 1)}")
        A(f"v_and_b32 {v(V_T)}, 3, {v(V_T)}")
        A(f"v_lshl_add_u32 {v(dst)}, {v(V_T)}, 6, {v(dst)}")
        A(f"v_and_b32 {v(V_T)}, 3, {v(V_LANE)}")
        A(f"v_lshl_add_u32 {v(dst)}, {v(V_T)}, 4, {v(dst)}")
    else:
        A(f"v_lshl_add_u32 {v(dst)}, {v(V_T)}, 8, {v(dst)}")
        A(f"v_and_b32 {v(V_T)}, 15, {v(V_LANE)}")
        A(f"v_lshl_add_u32 {v(dst)}, {v(V_T)}, 4, {v(dst)}")


class Gemm32:
    name = ""
    nk = 20
    NT = 1
    swap = False
    bufsz = 40960
    order = "d"
    jchk = 12
    nstores = 2
    pin = False
    wperm = True
    pipe = False
    prompt = False
    fillrate = 4
    V_IA0, V_IA = 16, 18
    V_OA = 20
    V_FR = 24
    V_ACC = 48
    V_X = 112

    def __init__(self, A, cfg, nwg):
        self.A, self.cfg, self.nwg = A, cfg, nwg
        self.aset = 0
        if cfg.jc and not self.pipe:
            self.jchk = cfg.jc if self.nk == 20 else (cfg.jcw or cfg.jc + 14)

    def wreg(self, tl, j, u):
        idx = (tl * self.nk + j) * 2 + u
        if idx < 64:
            return ("a", idx * 4)
        return ("v", 256 - (self.NT * self.nk * 2 - idx) * 4)

    def wtxt(self, tl, k):
        kd, r = self.wreg(tl, k >> 1, k & 1)
        return a(r, 4) if kd == "a" else v(r, 4)

    def acc(self, tl):
        return self.V_ACC + (self.aset * self.NT + tl) * 16

    def setup(self): pass
    def init_stores(self): pass
    def post_weights(self): pass
    def early(self): pass
    def pre_mfma(self): pass
    def mid(self): pass

    def item(self, i_reg, rl, rs):
        if self.order == "q":
            item_of(self.A, i_reg, rl, rs, self.cfg.QA, 1, T)
        else:
            item_of(self.A, i_reg, rl, rs, self.cfg.LAG + self.cfg.dlt, 0, T)

    lin_dma = Gemm.lin_dma
    flag_block = Gemm.flag_block
    flag_load = Gemm.flag_load
    flag_check = Gemm.flag_check

    V_RA = 22

    def rdy_set(self, plus):
        if not self.cfg.wgp:
            return
        A = self.A
        A(f"s_add_u32 {s(T + 5)}, {s(S_I)}, {plus}")
        A(f"v_mov_b32 {v(self.V_RA + 1)}, {s(T + 5)}")
        A(f"ds_write_b32 {v(self.V_RA)}, {v(self.V_RA + 1)}")

    def wait_input(self):
        A, cfg = self.A, self.cfg
        if not cfg.wgp:
            self.flag_soff(T + 7, S_L, S_S)
            flag_block(A, T + 7)
            return
        oth, done = A.newlabel("wo"), A.newlabel("wd")
        A(f"s_cmp_lg_u32 {s(S_WAVE)}, 0")
        A(f"s_cbranch_scc1 {oth}")
        self.flag_soff(T + 7, S_L, S_S)
        sv = cfg.fsl
        cfg.fsl = cfg.wgp - 1
        flag_block(A, T + 7)
        cfg.fsl = sv
        self.rdy_set(0)
        A(f"s_branch {done}")
        A.label(oth)
        A(f"ds_read_b32 {v(self.V_RA + 1)}, {v(self.V_RA)}")
        A("s_waitcnt lgkmcnt(0)")
        A(f"v_cmp_gt_u32 vcc, {s(S_I)}, {v(self.V_RA + 1)}")
        A(f"s_cbranch_vccz {done}")
        A(f"s_sleep {CFG[0].lsl}")
        A(f"s_sub_u32 {s(S_SPIN2)}, {s(S_SPIN2)}, 1")
        A("s_cbranch_scc1 ABORT")
        A(f"s_branch {oth}")
        A.label(done)

    def capture(self, fn):
        cap = Capture()
        A = self.A
        self.A = cap
        fn()
        self.A = A
        return cap

    def gen(self):
        A, cfg = self.A, self.cfg
        nm = self.name
        A.label("ROLE_" + nm)
        base_setup(A)
        for k in range(2):
            chunk_addr(A, self.V_IA0 + k, k, self.pin)
            chunk_addr(A, self.V_OA + k, k, False)
        self.setup()
        self.init_stores()
        init_barrier_arrive(A, V_T)
        late = self.order != "q" and cfg.late_w
        if late:
            init_barrier_wait(A, V_T, self.nwg, cfg)
            for _ in range(cfg.late_w - 1 if cfg.late_w != 9 else 0):
                A("s_sleep 64")
        if self.order != "q":
            for _ in range(cfg.dly_w):
                A("s_sleep 64")
        if self.name == "QKVQ" and cfg.lateq2:
            lab = A.newlabel("lq")
            A(f"s_cmp_eq_u32 {s(self.S_TYPE)}, 0")
            A(f"s_cbranch_scc1 {lab}")
            init_barrier_wait(A, V_T, self.nwg, cfg)
            A.label(lab)
        if late and cfg.late_w == 9:
            A(f"s_mov_b32 {s(T + 7)}, {flag_row(F_K if self.name != 'WO' else F_XIN)}")
            A(f"v_mov_b32 {v(V_T + 4)}, 0")
            flag_block(A, T + 7, vo=V_T + 4)
        if self.name == "QKVQ" and cfg.late_q:
            lab = A.newlabel("lq")
            A(f"s_cmp_eq_u32 {s(self.S_TYPE)}, 0")
            A(f"s_cbranch_scc1 {lab}")
            for _ in range(cfg.late_q):
                A("s_sleep 64")
            A.label(lab)
        WL = WLoader(A, V_T, T + 3)
        self.weights(WL)
        WL.emit(V_LANE)
        self.post_weights()
        A("s_barrier")
        if not late:
            init_barrier_wait(A, V_T, self.nwg, cfg)
        A(f"s_mov_b32 {s(S_I)}, 0")
        A(f"s_mov_b32 {s(S_BUF)}, 0")
        A(f"s_mov_b32 {s(S_SPIN2)}, {cfg.spin * 8}")
        A(f"v_mov_b32 {v(self.V_RA)}, {2 * self.bufsz + 2048}")
        A(f"v_mov_b32 {v(self.V_RA + 1)}, 0")
        A(f"ds_write_b32 {v(self.V_RA)}, {v(self.V_RA + 1)}")
        st = self.st = Stamper(A, cfg, 84, 8)
        A(f"s_mov_b32 s83, {s(S_GID)}")
        self.item(S_I, S_L, S_S)
        if self.order == "q" and cfg.dyn:
            A(f"s_mov_b32 {s(self.S_N0)}, 1")
            A(f"s_mov_b32 {s(self.S_N1)}, 0")
        self.flag_soff(T + 7, S_L, S_S)
        flag_block(A, T + 7)
        self.dma(S_L, S_S, S_BUF)
        st.init()
        A("s_waitcnt vmcnt(0)")
        A(f"s_mov_b32 {s(S_FADDR)}, {DUMMY}")
        if self.pipe and cfg.q3:
            self.ahead(1)
        nbody = 2 if self.pipe else 1
        A(f"s_branch {nm}_B0")
        for b in range(nbody):
            self.body(b, nbody)
        A.label(nm + "_END")
        A("s_waitcnt vmcnt(0)")
        flag_store(A, S_FADDR)
        st.dump(83, T, V_T)
        A("s_endpgm")

    def epi_capture(self):
        PRE_FLAG[0] = True
        cap = self.capture(self.epilogue)
        PRE_FLAG[0] = None
        return cap.l

    def body(self, b, nbody):
        A, cfg, st = self.A, self.cfg, self.st
        nm = self.name
        me, oth = f"{nm}_B{b}", f"{nm}_B{(b + 1) % nbody}"
        NS = 2 * self.nk
        D = 5

        def rd(k):
            A(f"ds_read_b128 {v(self.V_FR + (k % 6) * 4, 4)}, {v(self.V_IA + (k & 1))} offset:{(k >> 1) * 2048}")

        def kstep(k, fill, rate, extra=None):
            if k + D < NS:
                rd(k + D)
                A(f"s_waitcnt lgkmcnt({D})")
            else:
                A(f"s_waitcnt lgkmcnt({NS - 1 - k})")
            for tl in range(self.NT):
                skip = (cfg.xq and self.order == "q" and 20 <= k < 20 + cfg.xq) or (cfg.xw and self.name == "WO" and 30 <= k < 30 + cfg.xw)
                c = "0" if k == 0 else v(self.acc(tl), 16)
                fr = v(self.V_FR + (k % 6) * 4, 4)
                w = self.wtxt(tl, k)
                x, y = (fr, w) if self.swap else (w, fr)
                A(f"{MF} {v(self.acc(tl), 16)}, {x}, {y}, {c}" if not skip else "s_nop 0")
                if extra and tl == 0:
                    for e in extra:
                        A(e)
                if k >= 1:
                    for _ in range(rate):
                        if fill:
                            A(fill.pop(0))

        dyn = self.order == "q" and cfg.dyn

        def nextwork():
            cap = self.A
            if dyn:
                self.dyn_flags()
                return
            cap(f"s_add_u32 {s(T + 6)}, {s(S_I)}, 1")
            cap(f"s_min_u32 {s(T + 6)}, {s(T + 6)}, 127")
            self.item(T + 6, S_NL, S_NS)
            self.flag_soff(T + 7, S_NL, S_NS)
            self.flag_load(T + 7)
            self.early()

        def head(pending):
            for k in range(2):
                A(f"v_add_u32 {v(self.V_IA + k)}, {s(S_BUF)}, {v(self.V_IA0 + k)}")
            fill = self.capture(nextwork).l
            if pending:
                self.aset = 1 - b
                fill += self.epi_capture()
            self.aset = b if self.pipe else 0
            A("s_barrier")
            st(0)
            self.pre_mfma()
            for k in range(D):
                rd(k)
            for k in range(self.jchk + 1):
                kstep(k, fill, self.fillrate)
            while fill:
                A(fill.pop(0))
            A(f"s_waitcnt vmcnt({self.nstores if pending else 0})")

        def pend_flag():
            nof = A.newlabel("nof")
            A(f"s_mov_b32 {s(S_DID)}, 0")
            A(f"s_cmp_eq_u32 {s(S_FADDR)}, {DUMMY}")
            A(f"s_cbranch_scc1 {nof}")
            flag_store(A, S_FADDR)
            A(f"s_mov_b32 {s(S_FADDR)}, {DUMMY}")
            A(f"s_mov_b32 {s(S_DID)}, 1")
            A.label(nof)

        if not (self.pipe and cfg.q2):
            jmid = A.newlabel("mid")
            if self.pipe:
                A.label(me + "P")
                head(True)
                A(f"s_branch {jmid}")
            A.label(me)
            head(False)
            A.label(jmid)
            mid = self.capture(self.mid).l
            nod, join = A.newlabel("nod"), A.newlabel("join")
            st(1)
            if not self.pipe:
                pend_flag()
            if dyn:
                self.dyn_decide()
                A(f"s_cmp_lg_u32 {s(S_DEF)}, 0")
                A(f"s_cbranch_scc1 {nod}")
            else:
                self.flag_check()
                A(f"s_mov_b32 {s(S_DEF)}, 1")
                A(f"s_cbranch_vccnz {nod}")
                A(f"s_mov_b32 {s(S_DEF)}, 0")
                self.rdy_set(1)
            A(f"s_xor_b32 {s(T + 6)}, {s(S_BUF)}, {self.bufsz}")
            groups = self.capture(lambda: self.dma(S_NL, S_NS, T + 6)).groups()
            ndma = len(groups)
            rem = list(range(self.jchk + 1, NS))
            per = 1 if len(rem) >= ndma else -(-ndma // len(rem))
            m1 = list(mid)
            for k in rem:
                ex = []
                for _ in range(per):
                    if groups:
                        ex += groups.pop(0)
                kstep(k, m1, 3, ex)
                if self.pipe and k == self.jflag:
                    assert not groups
                    A(f"s_waitcnt vmcnt({ndma})")
                    pend_flag()
            assert not groups and not m1
            A(f"s_branch {join}")
            A.label(nod)
            m2 = list(mid)
            for k in rem:
                kstep(k, m2, 3)
                if self.pipe and k == self.jflag - 4:
                    A(f"s_waitcnt vmcnt(0)")
                    pend_flag()
            assert not m2
        else:
            S_PEND = 80
            J1 = cfg.q2
            p1 = A.newlabel("p1")
            A.label(me + "P")
            A(f"s_mov_b32 {s(S_PEND)}, 1")
            A(f"s_branch {p1}")
            A.label(me)
            A(f"s_mov_b32 {s(S_PEND)}, 0")
            A.label(p1)
            self.aset = b
            for k in range(2):
                A(f"v_add_u32 {v(self.V_IA + k)}, {s(S_BUF)}, {v(self.V_IA0 + k)}")
            if cfg.q3:
                A(f"s_mov_b32 {s(S_NL)}, s32")
                A(f"s_mov_b32 {s(S_NS)}, s33")
                A(f"v_min_u32 {v(V_FO)}, s35, {v(V_LANE)}")
                A(f"v_lshlrev_b32 {v(V_FO)}, 2, {v(V_FO)}")
                A(f"buffer_load_dword {v(V_FV)}, {v(V_FO)}, {WS}, s34 offen sc1")
            for x in (self.capture(nextwork).l if not cfg.q3 else []):
                if cfg.wgq and x.startswith("buffer_load"):
                    lw = A.newlabel("w0")
                    A(f"s_cmp_lg_u32 {s(S_WAVE)}, 0")
                    A(f"s_cbranch_scc1 {lw}")
                    A(x)
                    A.label(lw)
                else:
                    A(x)
            A("s_barrier")
            st(0)
            self.pre_mfma()
            for k in range(D):
                rd(k)
            for k in range(J1 + 1):
                kstep(k, [], 0)
                if cfg.wgq and k == J1 - 3:
                    lw = A.newlabel("w0")
                    A(f"s_cmp_lg_u32 {s(S_WAVE)}, 0")
                    A.nf(f"s_cbranch_scc1 {lw}")
                    A("s_waitcnt vmcnt(0)")
                    self.flag_check()
                    A.nf(f"s_cbranch_vccnz {lw}")
                    self.rdy_set(1)
                    A.label_nf(lw)
                if cfg.wgq and k == J1 - 1:
                    A(f"ds_read_b32 {v(V_FV)}, {v(self.V_RA)}")
            if not cfg.wgq:
                A("s_waitcnt vmcnt(0)")
            else:
                A("s_waitcnt lgkmcnt(1)")
            st(1)
            join = A.newlabel("join")
            labs = {(d, pn): A.newlabel("v") for d in (0, 1) for pn in (0, 1)}
            if dyn:
                self.dyn_decide()
                A(f"s_cmp_lg_u32 {s(S_DEF)}, 0")
                A(f"s_cselect_b64 vcc, -1, 0")
            elif cfg.wgq:
                A(f"v_cmp_ge_u32 vcc, {s(S_I)}, {v(V_FV)}")
            else:
                self.flag_check()
            A(f"s_mov_b32 {s(S_DID)}, 0")
            A(f"s_xor_b32 {s(T + 6)}, {s(S_BUF)}, {self.bufsz}")
            A(f"s_cmp_lg_u32 {s(S_PEND)}, 0")
            A.nf(f"s_cbranch_vccnz {labs[(0, 0)]}X")
            A(f"s_mov_b32 {s(S_DEF)}, 0")
            A.nf(f"s_cbranch_scc1 {labs[(1, 1)]}")
            A.nf(f"s_branch {labs[(1, 0)]}")
            A.label_nf(labs[(0, 0)] + "X")
            A(f"s_mov_b32 {s(S_DEF)}, 1")
            A.nf(f"s_cbranch_scc1 {labs[(0, 1)]}")
            rem = list(range(J1 + 1, NS))
            for (d, pn) in ((0, 0), (0, 1), (1, 0), (1, 1)):
                A.label_nf(labs[(d, pn)])
                if d and not cfg.wgq:
                    self.rdy_set(1)
                fill = []
                if pn:
                    self.aset = 1 - b
                    fill += self.epi_capture()
                    self.aset = b
                fill += self.capture(self.mid).l
                if cfg.q3:
                    fill += ["\n".join(self.capture(lambda: self.ahead(2)).l)]
                groups = self.capture(lambda: self.dma(S_NL, S_NS, T + 6)).groups() if d else []
                ndma = len(groups)
                span = len(rem) - cfg.q2tail
                at = {rem[(i * span) // ndma]: i for i in range(ndma)} if d else {}
                after_store = None
                flagged = not pn
                ndone = 0
                for k in rem:
                    if cfg.q3 and not pn and k == rem[cfg.q3]:
                        nof = A.newlabel("nof")
                        A(f"s_cmp_eq_u32 {s(S_FADDR)}, {DUMMY}")
                        A.nf(f"s_cbranch_scc1 {nof}")
                        A(f"s_waitcnt vmcnt({ndone})")
                        flag_store(A, S_FADDR)
                        A(f"s_mov_b32 {s(S_FADDR)}, {DUMMY}")
                        A.label_nf(nof)
                    if k in at:
                        ndone += 1
                    ex = groups[at[k]] if k in at else None
                    nst0 = sum(1 for x in fill if x.startswith("buffer_store"))
                    kstep(k, fill, self.fillrate, ex)
                    nst1 = sum(1 for x in fill if x.startswith("buffer_store"))
                    if after_store is not None and ex:
                        after_store[1] += 1
                    if pn and after_store is None and nst0 > 0 and nst1 == 0:
                        after_store = [k, 0]
                    if not flagged and after_store and k >= after_store[0] + cfg.q2ack and not any("s82" in x for x in fill):
                        A(f"s_waitcnt vmcnt({after_store[1]})")
                        flag_store(A, S_FADDR)
                        A(f"s_mov_b32 {s(S_FADDR)}, {DUMMY}")
                        if all(kk <= k for kk in at):
                            A(f"s_mov_b32 {s(S_DID)}, 1")
                        flagged = True
                assert not fill and flagged, (len(fill), flagged)
                if (d, pn) != (1, 1):
                    A(f"s_branch {join}")
        A.label(join)
        st(3)
        if self.pipe:
            now = A.newlabel("now")
            A(f"s_cmp_lg_u32 {s(S_DEF)}, 0")
            A(f"s_cbranch_scc1 {now}")
            if cfg.allpipe:
                A(f"s_cmp_eq_u32 {s(S_I)}, 127")
            else:
                A(f"s_cmp_lg_u32 {s(S_L)}, 0")
            A(f"s_cbranch_scc1 {now}")
            A(f"s_cmp_lt_u32 {s(S_I)}, 2")
            A(f"s_cbranch_scc1 {now}")
            self.save_item()
            A(f"s_add_u32 {s(S_I)}, {s(S_I)}, 1")
            A(f"s_xor_b32 {s(S_BUF)}, {s(S_BUF)}, {self.bufsz}")
            A(f"s_mov_b32 {s(S_L)}, {s(S_NL)}")
            A(f"s_mov_b32 {s(S_S)}, {s(S_NS)}")
            A("s_waitcnt vmcnt(1)")
            A(f"s_cmp_lg_u32 {s(S_DID)}, 0")
            A(f"s_cbranch_scc1 {oth}P")
            A("s_waitcnt vmcnt(0)")
            A(f"s_branch {oth}P")
            A.label(now)
            self.save_item()
        for x in self.epi_capture():
            A(x)
        st(4)
        A(f"s_add_u32 {s(S_I)}, {s(S_I)}, 1")
        A(f"s_cmp_eq_u32 {s(S_I)}, 128")
        A(f"s_cbranch_scc1 {nm}_END")
        A(f"s_xor_b32 {s(S_BUF)}, {s(S_BUF)}, {self.bufsz}")
        A(f"s_mov_b32 {s(S_L)}, {s(S_NL)}")
        A(f"s_mov_b32 {s(S_S)}, {s(S_NS)}")
        okn = A.newlabel("okn")
        A(f"s_cmp_eq_u32 {s(S_DEF)}, 0")
        A(f"s_cbranch_scc1 {okn}")
        A("s_waitcnt vmcnt(0)")
        flag_store(A, S_FADDR)
        A(f"s_mov_b32 {s(S_FADDR)}, {DUMMY}")
        st(5)
        self.wait_input()
        st(6)
        self.dma(S_L, S_S, S_BUF)
        A("s_waitcnt vmcnt(0)")
        st(7)
        A(f"s_branch {oth}")
        A.label(okn)
        if self.prompt or (self.pipe and cfg.q2 and not cfg.q3):
            A("s_waitcnt vmcnt(0)")
            flag_store(A, S_FADDR)
            A(f"s_mov_b32 {s(S_FADDR)}, {DUMMY}")
        else:
            A(f"s_waitcnt vmcnt({self.nstores})")
        A(f"s_branch {oth}")

    def save_item(self): pass

    def csum(self, dst):
        A = self.A
        ones = self.V_FR
        for i in range(4):
            A(f"v_mov_b32 {v(ones + i)}, 0x3f803f80")
        for k in range(2 * self.nk):
            for tl in range(self.NT):
                c = "0" if k == 0 else v(dst + 16 * tl, 16)
                w = self.wtxt(tl, k)
                x, y = (v(ones, 4), w) if self.swap else (w, v(ones, 4))
                A(f"{MF} {v(dst + 16 * tl, 16)}, {x}, {y}, {c}")

    def sa_setup(self, d):
        A = self.A
        A(f"v_lshrrev_b32 {v(V_T)}, 5, {v(V_LANE)}")
        A(f"v_mul_u32_u24 {v(d)}, 2560, {v(V_T)}")
        A(f"v_and_b32 {v(V_T)}, 31, {v(V_LANE)}")
        A(f"v_lshl_add_u32 {v(d)}, {v(V_T)}, 3, {v(d)}")
        A(f"v_add_u32 {v(d)}, 0xa000, {v(d)}")

    stats_dma = FoldMixin.stats_dma

    def stats_red(self, r, out, tmp):
        A = self.A
        for stp in ((0, 10), (2, 12), (4, 14), (6, 16), (8, 18), (0, 2), (4, 6), (0, 4), (0, 8)):
            for k in range(2):
                A(f"v_add_f32 {v(r + stp[0] + k)}, {v(r + stp[0] + k)}, {v(r + stp[1] + k)}")
        for k in range(2):
            A(f"v_mov_b32 {v(r + 2 + k)}, {v(r + k)}")
        for k in range(2):
            A(f"v_permlane32_swap_b32 {v(r + k)}, {v(r + 2 + k)}")
        for k in range(2):
            A(f"v_add_f32 {v(out + k)}, {v(r + k)}, {v(r + 2 + k)}")
        finish_stats(A, out, out + 1, tmp)

    def pack_store(self, x, pk, soff, off, vaddr):
        A = self.A
        for i in range(4):
            A(f"v_cvt_pk_bf16_f32 {v(pk + i)}, {v(x[2 * i])}, {v(x[2 * i + 1])}")
        A(f"buffer_store_dwordx4 {v(pk, 4)}, {v(vaddr)}, {WS}, {s(soff)} offen offset:{off} sc1")


class QKV32(Gemm32):
    NT = 2
    bufsz = XSEGS
    order = "q"
    pin = True
    pipe = True
    jchk = 20
    jflag = 34
    nstores = 4
    fillrate = 3
    V_CS = 112
    V_SV = 116
    V_SR = 148
    V_ST = 168
    V_PK = 172
    V_SA0, V_SA, V_SW, V_SRD = 180, 181, 182, 183
    S_TYPE, S_WG, S_OUT, S_FK = S_K, S_K + 1, S_K + 2, S_K + 3
    S_EL, S_ES = S_K + 4, S_K + 5
    E = S_K + 6

    def __init__(self, A, cfg, nwg, vtype):
        super().__init__(A, cfg, nwg)
        self.swap = vtype
        self.name = "QKVV" if vtype else "QKVQ"

    def setup(self):
        A = self.A
        if self.swap:
            A(f"s_mov_b32 {s(self.S_WG)}, {s(S_IDX)}")
            A(f"s_mov_b32 {s(self.S_OUT)}, {VX}")
            A(f"s_mov_b32 {s(self.S_FK)}, {flag_row(F_V)}")
        else:
            A(f"s_cmp_ge_u32 {s(S_ROLE)}, 24")
            A(f"s_cselect_b32 {s(self.S_TYPE)}, 1, 0")
            A(f"s_mul_i32 {s(T)}, {s(self.S_TYPE)}, 96")
            A(f"s_sub_u32 {s(self.S_WG)}, {s(S_IDX)}, {s(T)}")
            A(f"s_mul_i32 {s(self.S_OUT)}, {s(self.S_TYPE)}, {QX - KX}")
            A(f"s_add_u32 {s(self.S_OUT)}, {s(self.S_OUT)}, {KX}")
            A(f"s_mul_i32 {s(T)}, {s(self.S_TYPE)}, {flag_row(F_K) - flag_row(F_Q)}")
            A(f"s_sub_u32 {s(self.S_FK)}, {flag_row(F_K)}, {s(T)}")
        A(f"s_lshl_b32 {s(T)}, {s(self.S_WG)}, 12")
        A(f"s_add_u32 {s(self.S_OUT)}, {s(self.S_OUT)}, {s(T)}")
        self.sa_setup(self.V_SA0)
        A(f"v_min_u32 {v(self.V_FO0)}, 7, {v(V_LANE)}")
        A(f"v_lshlrev_b32 {v(self.V_FO0)}, 2, {v(self.V_FO0)}")
        A(f"v_min_u32 {v(self.V_FO1)}, 39, {v(V_LANE)}")
        A(f"v_lshlrev_b32 {v(self.V_FO1)}, 2, {v(self.V_FO1)}")
        A(f"v_mov_b32 {v(self.V_DC)}, {2 * self.bufsz + 1024}")
        if self.swap:
            A(f"s_lshl_b32 {s(T)}, {s(S_WAVE)}, 8")
            A(f"s_add_u32 {s(T)}, {s(T)}, {2 * self.bufsz}")
            A(f"v_and_b32 {v(V_T)}, 31, {v(V_LANE)}")
            A(f"v_lshlrev_b32 {v(self.V_SW)}, 3, {v(V_T)}")
            A(f"v_add_u32 {v(self.V_SW)}, {s(T)}, {v(self.V_SW)}")
            A(f"v_lshrrev_b32 {v(V_T)}, 5, {v(V_LANE)}")
            A(f"v_lshlrev_b32 {v(self.V_SRD)}, 5, {v(V_T)}")
            A(f"v_add_u32 {v(self.V_SRD)}, {s(T)}, {v(self.V_SRD)}")

    def weights(self, WL):
        A = self.A
        A(f"s_lshl_b32 {s(S_C0)}, {s(self.S_WG)}, 7")

        def srd():
            if self.swap:
                make_srd(A, SRD_W, P_WV, 640 * 12288)
            else:
                A(f"s_cmp_eq_u32 {s(self.S_TYPE)}, 0")
                A(f"s_cselect_b32 {s(SRD_W)}, {s(P_WK)}, {s(P_WQ)}")
                A(f"s_cselect_b32 {s(SRD_W + 1)}, {s(P_WK + 1)}, {s(P_WQ + 1)}")
                A(f"s_mov_b32 {s(SRD_W + 2)}, {640 * 12288}")
                A(f"s_mov_b32 {s(SRD_W + 3)}, 0x20000")
        WL.add(srd, S_C0, 12288, 4, 20, self.wreg, "nat" if self.swap else "perm")

    def post_weights(self):
        A = self.A
        if self.swap:
            self.csum(self.V_ACC)
            A(f"v_mov_b32 {v(self.V_CS)}, {v(self.V_ACC)}")
            A(f"v_mov_b32 {v(self.V_CS + 1)}, {v(self.V_ACC + 16)}")
        else:
            self.csum(self.V_CS)

    flag_soff = QKV.flag_soff
    dma = QKV.dma
    S_N0, S_N1 = 78, 79
    V_F0, V_FO0, V_FO1, V_DC = 176 + 8, 185, 186, 187

    def ahead(self, d):
        A = self.A
        A(f"s_add_u32 s36, {s(S_I)}, {d}")
        A(f"s_min_u32 s36, s36, 127")
        item_of(A, 36, 32, 33, self.cfg.QA, 1, 37)
        row_of(A, 34, 32, 33, flag_row(F_XIN))
        A(f"s_lshl_b32 s35, s32, 5")
        A(f"s_add_u32 s35, s35, 7")

    def dyn_flags(self):
        A = self.A
        A(f"s_min_u32 {s(T)}, {s(self.S_N1)}, 63")
        A(f"s_lshl_b32 {s(T)}, {s(T)}, 9")
        A(f"s_add_u32 {s(T)}, {s(T)}, {flag_row(F_XIN, 1)}")
        A(f"buffer_load_dword {v(V_FV)}, {v(self.V_FO1)}, {WS}, {s(T)} offen sc1")
        A(f"s_min_u32 {s(T)}, {s(self.S_N0)}, 63")
        A(f"s_lshl_b32 {s(T)}, {s(T)}, 9")
        A(f"s_add_u32 {s(T)}, {s(T)}, {flag_row(F_XIN, 0)}")
        A(f"buffer_load_dword {v(self.V_F0)}, {v(self.V_FO0)}, {WS}, {s(T)} offen sc1")

    def dyn_decide(self):
        A = self.A
        A(f"v_cmp_eq_u32 vcc, 0, {v(V_FV)}")
        A(f"s_cmp_eq_u64 vcc, 0")
        A(f"s_cselect_b32 {s(T)}, 1, 0")
        A(f"v_cmp_eq_u32 vcc, 0, {v(self.V_F0)}")
        A(f"s_cmp_eq_u64 vcc, 0")
        A(f"s_cselect_b32 {s(T + 1)}, 2, 0")
        A(f"s_or_b32 {s(T)}, {s(T)}, {s(T + 1)}")
        A(f"v_mov_b32 {v(V_T + 4)}, {s(T)}")
        A(f"s_cmp_eq_u32 {s(S_WAVE)}, 0")
        A(f"s_cselect_b64 exec, 1, 0")
        A(f"ds_write_b32 {v(self.V_DC)}, {v(V_T + 4)}")
        A("s_mov_b64 exec, -1")
        A("s_waitcnt lgkmcnt(0)")
        A("s_barrier")
        A(f"ds_read_b32 {v(V_T + 4)}, {v(self.V_DC)}")
        A("s_waitcnt lgkmcnt(0)")
        A(f"v_readfirstlane_b32 {s(T)}, {v(V_T + 4)}")
        A(f"s_cmp_lt_u32 {s(self.S_N1)}, 64")
        A(f"s_cselect_b32 {s(T + 1)}, 1, 0")
        A(f"s_cmp_lt_u32 {s(self.S_N0)}, 64")
        A(f"s_cselect_b32 {s(T + 2)}, 2, 0")
        A(f"s_or_b32 {s(T + 1)}, {s(T + 1)}, {s(T + 2)}")
        A(f"s_and_b32 {s(T)}, {s(T)}, {s(T + 1)}")
        A(f"s_cmp_eq_u32 {s(T + 2)}, 0")
        A(f"s_cselect_b32 {s(S_NL)}, 1, 0")
        A(f"s_bitcmp1_b32 {s(T)}, 0")
        A(f"s_cselect_b32 {s(S_NL)}, 1, {s(S_NL)}")
        A(f"s_cmp_eq_u32 {s(T)}, 0")
        A(f"s_cselect_b32 {s(S_DEF)}, 1, 0")
        A(f"s_cmp_eq_u32 {s(S_NL)}, 0")
        A(f"s_cselect_b32 {s(S_NS)}, {s(self.S_N0)}, {s(self.S_N1)}")
        A(f"s_cselect_b32 {s(T)}, 1, 0")
        A(f"s_add_u32 {s(self.S_N0)}, {s(self.S_N0)}, {s(T)}")
        A(f"s_add_u32 {s(self.S_N1)}, {s(self.S_N1)}, {s(S_NL)}")
        A(f"s_min_u32 {s(S_NS)}, {s(S_NS)}, 63")

    def pre_mfma(self):
        A = self.A
        A(f"v_add_u32 {v(self.V_SA)}, {s(S_BUF)}, {v(self.V_SA0)}")
        stats_consume(A, self.V_SA, self.V_SR, V_T + 2)

    def mid(self):
        A = self.A
        self.stats_red(self.V_SR, self.V_ST, V_T + 2)
        A(f"s_cmp_eq_u32 {s(S_L)}, 0\ns_cselect_b64 {s(self.E + 2, 2)}, -1, 0")
        A(f"v_cndmask_b32 {v(self.V_ST)}, {v(self.V_ST)}, 0, {s(self.E + 2, 2)}")
        A(f"v_cndmask_b32 {v(self.V_ST + 1)}, {v(self.V_ST + 1)}, 1.0, {s(self.E + 2, 2)}")

    def save_item(self):
        A = self.A
        A(f"s_mov_b32 {s(self.S_EL)}, {s(S_L)}")
        A(f"s_mov_b32 {s(self.S_ES)}, {s(S_S)}")
        if self.swap:
            A(f"ds_write_b64 {v(self.V_SW)}, {v(self.V_ST, 2)}")
            A("s_waitcnt lgkmcnt(0)")
            for i in range(4):
                for hf in range(2):
                    A(f"ds_read_b128 {v(self.V_SV + i * 8 + hf * 4, 4)}, {v(self.V_SRD)} offset:{i * 64 + hf * 16}")
            A("s_waitcnt lgkmcnt(0)")

    def epilogue(self):
        A = self.A
        E = self.E
        A(f"s_mul_i32 {s(E)}, {s(self.S_ES)}, {QKV_SEG}")
        A(f"s_add_u32 {s(E)}, {s(E)}, {s(self.S_OUT)}")
        for tl in range(2):
            for k in range(2):
                ii = (k, k + 2) if self.swap else (2 * k, 2 * k + 1)
                xs = []
                for i in ii:
                    for r in range(4):
                        x = self.acc(tl) + 4 * i + r
                        xs.append(x)
                        if self.swap:
                            A(f"v_fma_f32 {v(x)}, -{v(self.V_SV + i * 8 + 2 * r)}, {v(self.V_CS + tl)}, {v(x)}")
                        else:
                            A(f"v_fma_f32 {v(x)}, -{v(self.V_ST)}, {v(self.V_CS + 16 * tl + 4 * i + r)}, {v(x)}")
                for n, i in enumerate(ii):
                    for r in range(4):
                        x = xs[4 * n + r]
                        A(f"v_mul_f32 {v(x)}, {v(x)}, {v(self.V_SV + i * 8 + 2 * r + 1) if self.swap else v(self.V_ST + 1)}")
                self.pack_store(xs, self.V_PK + 4 * k, E, tl * 2048, self.V_OA + k)
        row_of(A, S_FADDR, self.S_EL, self.S_ES, s(self.S_FK))
        A(f"s_lshl_b32 {s(E + 1)}, {s(self.S_WG)}, 2")
        A(f"s_add_u32 {s(S_FADDR)}, {s(S_FADDR)}, {s(E + 1)}")


class WO32(Gemm32):
    name = "WO"
    nk = 32
    bufsz = 65536
    jchk = 20
    nstores = 4
    S_KG, S_CG, S_OUT = S_K, S_K + 1, S_K + 2
    V_SO = 112

    def setup(self):
        A = self.A
        A(f"s_mul_i32 {s(self.S_KG)}, {s(S_ROLE)}, 52429")
        A(f"s_lshr_b32 {s(self.S_KG)}, {s(self.S_KG)}, 18")
        A(f"s_mul_i32 {s(T)}, {s(self.S_KG)}, 5")
        A(f"s_sub_u32 {s(self.S_CG)}, {s(S_ROLE)}, {s(T)}")
        A(f"s_lshl_b32 {s(T)}, {s(self.S_KG)}, 5")
        A(f"s_mul_i32 {s(T + 1)}, {s(T)}, 43691")
        A(f"s_lshr_b32 {s(T + 1)}, {s(T + 1)}, 18")
        A(f"s_add_u32 {s(T)}, {s(T)}, 31")
        A(f"s_mul_i32 {s(T)}, {s(T)}, 43691")
        A(f"s_lshr_b32 {s(T)}, {s(T)}, 18")
        A(f"v_add_u32 {v(V_FO)}, {s(T + 1)}, {v(V_LANE)}")
        A(f"v_min_u32 {v(V_FO)}, {s(T)}, {v(V_FO)}")
        A(f"v_lshlrev_b32 {v(V_FO)}, 2, {v(V_FO)}")
        A(f"v_bfe_u32 {v(V_T)}, {v(V_LANE)}, 2, 3")
        A(f"v_mul_u32_u24 {v(self.V_SO)}, 10240, {v(V_T)}")
        A(f"v_and_b32 {v(V_T)}, 3, {v(V_LANE)}")
        A(f"v_lshl_add_u32 {v(self.V_SO)}, {v(V_T)}, 4, {v(self.V_SO)}")
        A(f"v_lshrrev_b32 {v(V_T)}, 5, {v(V_LANE)}")
        A(f"v_lshl_add_u32 {v(self.V_SO)}, {v(V_T)}, 6, {v(self.V_SO)}")
        A(f"s_lshl_b32 {s(T)}, {s(self.S_CG)}, 2")
        A(f"s_add_u32 {s(T)}, {s(T)}, {s(S_WAVE)}")
        A(f"s_lshl_b32 {s(S_C0 + 1)}, {s(T)}, 6")
        A(f"s_lshl_b32 {s(T)}, {s(T)}, 9")
        A(f"s_mul_i32 {s(self.S_OUT)}, {s(self.S_KG)}, 81920")
        A(f"s_add_u32 {s(self.S_OUT)}, {s(self.S_OUT)}, {s(T)}")
        A(f"s_add_u32 {s(self.S_OUT)}, {s(self.S_OUT)}, {WOP}")

    def weights(self, WL):
        A = self.A
        A(f"s_mul_i32 {s(S_C0)}, {s(self.S_KG)}, {1024 * 1280}")
        A(f"s_add_u32 {s(S_C0)}, {s(S_C0)}, {s(S_C0 + 1)}")
        WL.add(lambda: make_srd(A, SRD_W, P_WO, 6144 * 1280), S_C0, 1280, 2, 32, self.wreg, "nat")

    flag_soff = WO.flag_soff
    dma = WO.dma

    def epilogue(self):
        A = self.A
        A(f"s_mul_i32 {s(T + 2)}, {s(S_S)}, {WOP_SEG}")
        A(f"s_add_u32 {s(T + 2)}, {s(T + 2)}, {s(self.S_OUT)}")
        for i in range(4):
            A(f"buffer_store_dwordx4 {v(self.acc(0) + 4 * i, 4)}, {v(self.V_SO)}, {WS}, {s(T + 2)} offen offset:{i * 128} sc1")
        set_flag(A, flag_row(F_WOP))


class W1_32(Gemm32):
    name = "W1"
    pin = True
    V_C0, V_PK, V_TM = 112, 116, 124
    S_C1 = S_K
    out_kind = F_H
    setup = W1.setup
    init_stores = W1.init_stores
    flag_soff = W1.flag_soff
    out_base = W1.out_base

    def weights(self, WL):
        A = self.A
        A(f"s_lshl_b32 {s(S_C0)}, {s(S_IDX)}, 6")
        WL.add(lambda: make_srd(A, SRD_W, P_W1, 640 * 1280), S_C0, 1280, 2, 20, self.wreg, "perm")

    V_CS, V_ST, V_SA0, V_SA = 144, 180, 182, 183

    def __init__(self, A, cfg, nwg):
        if cfg.zf:
            self.bufsz = XSEGS
        super().__init__(A, cfg, nwg)

    def post_weights(self):
        if self.cfg.zf:
            A = self.A
            self.csum(self.V_CS)
            A(f"v_and_b32 {v(self.V_SA0)}, 31, {v(V_LANE)}")
            A(f"v_lshlrev_b32 {v(self.V_SA0)}, 3, {v(self.V_SA0)}")
            A(f"v_add_u32 {v(self.V_SA0)}, 0xa000, {v(self.V_SA0)}")

    def dma(self, rl, rs, ldsreg):
        if not self.cfg.zf:
            return W1.dma(self, rl, rs, ldsreg)
        A = self.A
        A(f"s_lshl_b32 {s(T)}, {s(rl)}, 6")
        A(f"s_add_u32 {s(T)}, {s(T)}, {s(rs)}")
        A(f"s_mul_i32 {s(T)}, {s(T)}, {XSEGS}")
        A(f"s_add_u32 {s(T)}, {s(T)}, {YB}")
        A(f"s_add_u32 m0, {s(ldsreg)}, 40960")
        A(f"s_add_u32 {s(T + 3)}, {s(T)}, 40960")
        A(f"buffer_load_dwordx4 {v(V_L16)}, {WS}, {s(T + 3)} offen sc1 lds")
        A(f"s_mul_i32 {s(T + 1)}, {s(S_WAVE)}, 10240")
        A(f"s_add_u32 {s(T)}, {s(T)}, {s(T + 1)}")
        A(f"s_add_u32 {s(T + 1)}, {s(T + 1)}, {s(ldsreg)}")
        self.lin_dma(T, T + 1, 10)

    def pre_mfma(self):
        if self.cfg.zf:
            A = self.A
            A(f"v_add_u32 {v(self.V_SA)}, {s(S_BUF)}, {v(self.V_SA0)}")
            A(f"ds_read_b64 {v(self.V_ST, 2)}, {v(self.V_SA)}")

    def correct(self):
        if self.cfg.zf:
            W3_32.correct(self)

    def epilogue(self):
        A = self.A
        self.out_base()
        self.correct()
        vals = [self.acc(0) + i for i in range(16)]
        gelu_pack(A, vals, self.V_PK, [self.V_TM + i for i in range(17)], self.V_C0, self.S_C1)
        for k in range(2):
            A(f"buffer_store_dwordx4 {v(self.V_PK + 4 * k, 4)}, {v(self.V_OA + k)}, {WS}, {s(T + 2)} offen sc1")
        set_flag(A, flag_row(self.out_kind))


class W3_32(W1_32):
    name = "W3"
    pin = False
    bufsz = XSEGS
    out_kind = F_G
    V_CS, V_SR, V_ST, V_SA0, V_SA = 144, 160, 180, 182, 183
    flag_soff = W3.flag_soff
    dma = W3.dma
    out_base = W3.out_base

    def setup(self):
        A = self.A
        A(f"v_min_u32 {v(V_FO)}, 19, {v(V_LANE)}")
        A(f"v_lshlrev_b32 {v(V_FO)}, 2, {v(V_FO)}")
        A(f"v_mov_b32 {v(self.V_C0)}, {f32(GELU_C0)}")
        A(f"v_mov_b32 {v(self.V_C0 + 1)}, {f32(GELU_C1)}")
        A(f"s_mov_b32 {s(self.S_C1)}, {f32(GELU_C1)}")
        self.sa_setup(self.V_SA0)

    def init_stores(self): pass

    def weights(self, WL):
        A = self.A
        A(f"s_lshl_b32 {s(S_C0)}, {s(S_IDX)}, 6")
        WL.add(lambda: make_srd(A, SRD_W, P_W3, 640 * 3072), S_C0, 3072, 2, 20, self.wreg, "perm")

    def post_weights(self):
        self.csum(self.V_CS)

    def pre_mfma(self):
        A = self.A
        A(f"v_add_u32 {v(self.V_SA)}, {s(S_BUF)}, {v(self.V_SA0)}")
        stats_consume(A, self.V_SA, self.V_SR, V_T + 2)

    def mid(self):
        self.stats_red(self.V_SR, self.V_ST, V_T + 2)

    def correct(self):
        A = self.A
        if self.cfg.gpk:
            for i in range(0, 16, 2):
                x = self.acc(0) + i
                A(f"v_pk_fma_f32 {v(x, 2)}, {v(self.V_CS + i, 2)}, {v(self.V_ST, 2)}, {v(x, 2)} op_sel_hi:[1,0,1] neg_lo:[0,1,0] neg_hi:[0,1,0]")
            for i in range(0, 16, 2):
                x = self.acc(0) + i
                A(f"v_pk_mul_f32 {v(x, 2)}, {v(x, 2)}, {v(self.V_ST, 2)} op_sel:[0,1] op_sel_hi:[1,1]")
            return
        for i in range(16):
            x = self.acc(0) + i
            A(f"v_fma_f32 {v(x)}, -{v(self.V_ST)}, {v(self.V_CS + i)}, {v(x)}")
        for i in range(16):
            x = self.acc(0) + i
            A(f"v_mul_f32 {v(x)}, {v(x)}, {v(self.V_ST + 1)}")


class W2_32(Gemm32):
    name = "W2"
    nstores = 3
    V_SH, V_SAD, V_YA = 112, 114, 116
    V_Y, V_YU, V_PK = 120, 128, 144
    flag_soff = W2.flag_soff
    dma = W2.dma

    def setup(self):
        A = self.A
        W2.setup(self)
        A(f"v_and_b32 {v(self.V_SAD)}, 31, {v(V_LANE)}")
        A(f"v_lshlrev_b32 {v(self.V_SAD)}, 3, {v(self.V_SAD)}")
        for k in range(2):
            chunk_addr(A, self.V_YA + k, k, True)

    def weights(self, WL):
        A = self.A
        A(f"s_lshl_b32 {s(S_C0)}, {s(S_IDX)}, 6")
        WL.add(lambda: make_srd(A, SRD_W, P_W2, 640 * 1280), S_C0, 1280, 2, 20, self.wreg, "perm")

    def early(self):
        A = self.A
        A(f"s_lshl_b32 {s(T)}, {s(S_L)}, 6")
        A(f"s_add_u32 {s(T)}, {s(T)}, {s(S_S)}")
        A(f"s_mul_i32 {s(T)}, {s(T)}, {XSEGS}")
        A(f"s_lshl_b32 {s(T + 1)}, {s(S_IDX)}, 11")
        A(f"s_add_u32 {s(T)}, {s(T)}, {s(T + 1)}")
        A(f"s_add_u32 {s(T)}, {s(T)}, {YB}")
        for k in range(2):
            A(f"buffer_load_dwordx4 {v(self.V_Y + 4 * k, 4)}, {v(self.V_YA + k)}, {WS}, {s(T)} offen sc1")

    def mid(self):
        unpack8(self.A, self.V_YU, self.V_Y)
        unpack8(self.A, self.V_YU + 8, self.V_Y + 4)

    def epilogue(self):
        A = self.A
        A(f"s_lshl_b32 {s(T + 2)}, {s(S_L)}, 6")
        A(f"s_add_u32 {s(T + 2)}, {s(T + 2)}, {s(S_S)}")
        A(f"s_mul_i32 {s(T + 2)}, {s(T + 2)}, {XSEGS}")
        A(f"s_add_u32 {s(T + 2)}, {s(T + 2)}, {X1B}")
        A(f"s_lshl_b32 {s(T + 3)}, {s(S_IDX)}, 8")
        A(f"s_add_u32 {s(T + 3)}, {s(T + 3)}, {s(T + 2)}")
        A(f"s_add_u32 {s(T + 3)}, {s(T + 3)}, 40960")
        A(f"s_lshl_b32 {s(T + 4)}, {s(S_IDX)}, 11")
        A(f"s_add_u32 {s(T + 2)}, {s(T + 2)}, {s(T + 4)}")
        X = [self.acc(0) + i for i in range(16)]
        for i in range(0, 16, 2):
            rnd2(A, V_T, X[i], X[i + 1])
        for i in range(0, 16, 2):
            A(f"v_pk_add_f32 {v(X[i], 2)}, {v(X[i], 2)}, {v(self.V_YU + i, 2)}")
        for i in range(0, 16, 2):
            rnd2(A, self.V_PK + i // 2, X[i], X[i + 1])
        for k in range(2):
            A(f"buffer_store_dwordx4 {v(self.V_PK + 4 * k, 4)}, {v(self.V_OA + k)}, {WS}, {s(T + 2)} offen sc1")
        t = V_T
        A(f"v_pk_add_f32 {v(t, 2)}, {v(X[0], 2)}, {v(X[2], 2)}")
        A(f"v_pk_mul_f32 {v(t + 2, 2)}, {v(X[0], 2)}, {v(X[0], 2)}")
        for i in range(2, 16, 2):
            if i >= 4:
                A(f"v_pk_add_f32 {v(t, 2)}, {v(t, 2)}, {v(X[i], 2)}")
            A(f"v_pk_fma_f32 {v(t + 2, 2)}, {v(X[i], 2)}, {v(X[i], 2)}, {v(t + 2, 2)}")
        A(f"v_add_f32 {v(t)}, {v(t)}, {v(t + 1)}")
        A(f"v_add_f32 {v(t + 1)}, {v(t + 2)}, {v(t + 3)}")
        A(f"v_mov_b32 {v(t + 2)}, {v(t)}")
        A(f"v_mov_b32 {v(t + 3)}, {v(t + 1)}")
        A(f"v_permlane32_swap_b32 {v(t)}, {v(t + 2)}")
        A(f"v_permlane32_swap_b32 {v(t + 1)}, {v(t + 3)}")
        A(f"v_pk_add_f32 {v(t, 2)}, {v(t, 2)}, {v(t + 2, 2)}")
        A("s_mov_b32 exec_hi, 0")
        A(f"buffer_store_dwordx2 {v(t, 2)}, {v(self.V_SAD)}, {WS}, {s(T + 3)} offen sc1")
        A("s_mov_b32 exec_hi, -1")
        set_flag(A, flag_row(F_X1))
```

```python
import os
from common import *
from chain import gen_chain
import stations as ST
import stations32 as S32
import chain2 as C2M
import stations3 as S3


def gen_idle(A, cfg, nwg, name):
    A.label("ROLE_" + name)
    init_barrier_arrive(A, 12)
    init_barrier_wait(A, 12, nwg, cfg)
    A("s_endpgm")


PLACE = [
    [("CHAIN", 24), ("W4", 8)],
    [("CHAIN", 24), ("W4", 2), ("W1", 5), ("W3", 1)],
    [("CHAIN", 24), ("W3", 8)],
    [("CHAIN", 24), ("W3", 3), ("W2", 5)],
    [("WO", 10), ("ATT", 4), ("R1", 2), ("QKVQ", 11), ("QKVV", 5)],
    [("WO", 10), ("ATT", 4), ("R1", 2), ("QKVQ", 11), ("QKVV", 5)],
    [("WO", 5), ("ATT", 4), ("R1", 2), ("QKVQ", 13), ("QKVV", 7), ("SPARE", 1)],
    [("WO", 5), ("ATT", 4), ("R1", 2), ("QKVQ", 13), ("QKVV", 7), ("SPARE", 1)],
]
PLACES = {
    22: [
        [("CS", 16), ("CV", 8), ("CW", 8)],
        [("CS", 16), ("CV", 8), ("CW", 8)],
        [("W4", 10), ("W1", 5), ("W3", 12), ("W2", 5)],
        [("QKVQ", 8), ("QKVV", 8), ("R1", 16)],
        [("WO", 10), ("ATT", 8), ("QKVQ", 10), ("QKVV", 4)],
        [("WO", 10), ("ATT", 8), ("QKVQ", 10), ("QKVV", 4)],
        [("WO", 10), ("ATT", 8), ("QKVQ", 10), ("QKVV", 4)],
        [("WO", 10), ("ATT", 8), ("QKVQ", 10), ("QKVV", 4)],
    ],
    21: [
        [("CS", 16), ("CV", 8), ("CW", 8)],
        [("CS", 16), ("CV", 8), ("CW", 8)],
        [("W4", 10), ("W1", 5), ("W3", 12), ("W2", 5)],
        [("QKVQ", 12), ("QKVV", 4), ("ATT", 8), ("R1", 4), ("SPARE", 4)],
        [("WO", 10), ("ATT", 6), ("R1", 3), ("QKVQ", 8), ("QKVV", 4), ("SPARE", 1)],
        [("WO", 10), ("ATT", 6), ("R1", 3), ("QKVQ", 8), ("QKVV", 4), ("SPARE", 1)],
        [("WO", 5), ("ATT", 6), ("R1", 3), ("QKVQ", 10), ("QKVV", 6), ("SPARE", 2)],
        [("WO", 5), ("ATT", 6), ("R1", 3), ("QKVQ", 10), ("QKVV", 6), ("SPARE", 2)],
    ],
    20: [
        [("CS", 16), ("CV", 8), ("CW", 8)],
        [("CS", 16), ("CV", 8), ("CW", 8)],
        [("W4", 10), ("W1", 5), ("W3", 12), ("W2", 5)],
        [("QKVQ", 16), ("SPARE", 16)],
        [("WO", 10), ("ATT", 4), ("R1", 2), ("QKVQ", 7), ("QKVV", 5), ("SPARE", 4)],
        [("WO", 10), ("ATT", 4), ("R1", 2), ("QKVQ", 7), ("QKVV", 5), ("SPARE", 4)],
        [("WO", 5), ("ATT", 4), ("R1", 2), ("QKVQ", 9), ("QKVV", 7), ("SPARE", 5)],
        [("WO", 5), ("ATT", 4), ("R1", 2), ("QKVQ", 9), ("QKVV", 7), ("SPARE", 5)],
    ],
    16: [
        [("CHAIN", 24), ("W4", 8)],
        [("CHAIN", 24), ("W4", 2), ("W1", 5), ("W3", 1)],
        [("CHAIN", 24), ("QKVV", 8)],
        [("CHAIN", 24), ("QKVV", 8)],
        [("WO", 10), ("ATT", 4), ("R1", 2), ("QKVQ", 10), ("QKVV", 2), ("W3", 4)],
        [("WO", 10), ("ATT", 4), ("R1", 2), ("QKVQ", 10), ("QKVV", 2), ("W3", 4)],
        [("WO", 5), ("ATT", 4), ("R1", 2), ("QKVQ", 14), ("QKVV", 2), ("W3", 3), ("SPARE", 2)],
        [("WO", 5), ("ATT", 4), ("R1", 2), ("QKVQ", 14), ("QKVV", 2), ("W2", 5)],
    ],
    17: [
        [("CHAIN", 24), ("W4", 8)],
        [("CHAIN", 24), ("W4", 2), ("W1", 5), ("W3", 1)],
        [("CHAIN", 24), ("QKVQ", 8)],
        [("CHAIN", 24), ("QKVQ", 8)],
        [("WO", 8), ("ATT", 4), ("R1", 2), ("QKVQ", 8), ("QKVV", 6), ("W3", 4)],
        [("WO", 7), ("ATT", 4), ("R1", 2), ("QKVQ", 8), ("QKVV", 6), ("W3", 4), ("SPARE", 1)],
        [("WO", 8), ("ATT", 4), ("R1", 2), ("QKVQ", 8), ("QKVV", 6), ("W3", 3), ("SPARE", 1)],
        [("WO", 7), ("ATT", 4), ("R1", 2), ("QKVQ", 8), ("QKVV", 6), ("W2", 5)],
    ],
    18: [
        [("CHAIN", 24), ("W4", 8)],
        [("CHAIN", 24), ("W4", 2), ("WO", 5), ("W3", 1)],
        [("CHAIN", 24), ("QKVQ", 8)],
        [("CHAIN", 24), ("QKVQ", 8)],
        [("WO", 10), ("ATT", 4), ("R1", 2), ("QKVQ", 7), ("QKVV", 5), ("W3", 4)],
        [("WO", 5), ("ATT", 4), ("R1", 2), ("QKVQ", 7), ("QKVV", 5), ("W3", 4), ("W1", 5)],
        [("WO", 5), ("ATT", 4), ("R1", 2), ("QKVQ", 9), ("QKVV", 7), ("W3", 3), ("SPARE", 2)],
        [("WO", 5), ("ATT", 4), ("R1", 2), ("QKVQ", 9), ("QKVV", 7), ("W2", 5)],
    ],
    13: [
        [("CHAIN", 24), ("QKVQ", 8)],
        [("CHAIN", 24), ("QKVQ", 8)],
        [("CHAIN", 24), ("QKVQ", 8)],
        [("CHAIN", 24), ("QKVQ", 8)],
        [("WO", 10), ("ATT", 4), ("R1", 2), ("QKVQ", 3), ("QKVV", 5), ("W3", 3), ("W4", 3), ("W1", 2)],
        [("WO", 10), ("ATT", 4), ("R1", 2), ("QKVQ", 3), ("QKVV", 5), ("W3", 3), ("W4", 3), ("W1", 2)],
        [("WO", 5), ("ATT", 4), ("R1", 2), ("QKVQ", 5), ("QKVV", 7), ("W3", 3), ("W4", 2), ("W1", 1), ("W2", 2), ("SPARE", 1)],
        [("WO", 5), ("ATT", 4), ("R1", 2), ("QKVQ", 5), ("QKVV", 7), ("W3", 3), ("W4", 2), ("W2", 3), ("SPARE", 1)],
    ],
    14: [
        [("CHAIN", 24), ("W4", 5), ("QKVV", 3)],
        [("CHAIN", 24), ("W4", 5), ("QKVV", 3)],
        [("CHAIN", 24), ("QKVV", 8)],
        [("CHAIN", 24), ("QKVV", 8)],
        [("WO", 10), ("ATT", 4), ("R1", 2), ("QKVQ", 11), ("W1", 5)],
        [("WO", 10), ("ATT", 4), ("R1", 2), ("QKVQ", 11), ("W2", 5)],
        [("WO", 5), ("ATT", 4), ("R1", 2), ("QKVQ", 13), ("QKVV", 1), ("W3", 6), ("SPARE", 1)],
        [("WO", 5), ("ATT", 4), ("R1", 2), ("QKVQ", 13), ("QKVV", 1), ("W3", 6), ("SPARE", 1)],
    ],
    15: [
        [("CHAIN", 24), ("W4", 8)],
        [("CHAIN", 24), ("W4", 2), ("QKVQ", 6)],
        [("CHAIN", 24), ("QKVQ", 8)],
        [("CHAIN", 24), ("QKVQ", 8)],
        [("WO", 8), ("ATT", 4), ("R1", 2), ("QKVQ", 7), ("QKVV", 6), ("W1", 5)],
        [("WO", 7), ("ATT", 4), ("R1", 2), ("QKVQ", 7), ("QKVV", 6), ("W3", 6)],
        [("WO", 8), ("ATT", 4), ("R1", 2), ("QKVQ", 6), ("QKVV", 6), ("W2", 5), ("SPARE", 1)],
        [("WO", 7), ("ATT", 4), ("R1", 2), ("QKVQ", 6), ("QKVV", 6), ("W3", 6), ("SPARE", 1)],
    ],
    10: [
        [("CHAIN", 24), ("W4", 8)],
        [("CHAIN", 24), ("W4", 2), ("W1", 5), ("W3", 1)],
        [("CHAIN", 24), ("QKVQ", 8)],
        [("CHAIN", 24), ("QKVQ", 8)],
        [("WO", 10), ("ATT", 4), ("R1", 2), ("QKVQ", 7), ("QKVV", 5), ("W3", 4)],
        [("WO", 10), ("ATT", 4), ("R1", 2), ("QKVQ", 7), ("QKVV", 5), ("W3", 4)],
        [("WO", 5), ("ATT", 4), ("R1", 2), ("QKVQ", 9), ("QKVV", 7), ("W3", 3), ("SPARE", 2)],
        [("WO", 5), ("ATT", 4), ("R1", 2), ("QKVQ", 9), ("QKVV", 7), ("W2", 5)],
    ],
    11: [
        [("CHAIN", 24), ("W4", 6), ("QKVV", 2)],
        [("CHAIN", 24), ("W4", 4), ("W1", 2), ("QKVV", 2)],
        [("CHAIN", 24), ("W3", 6), ("QKVV", 2)],
        [("CHAIN", 24), ("W3", 1), ("W2", 5), ("QKVV", 2)],
        [("WO", 10), ("ATT", 4), ("R1", 2), ("QKVQ", 11), ("QKVV", 3), ("W3", 2)],
        [("WO", 10), ("ATT", 4), ("R1", 2), ("QKVQ", 11), ("QKVV", 3), ("W3", 2)],
        [("WO", 5), ("ATT", 4), ("R1", 2), ("QKVQ", 13), ("QKVV", 5), ("W1", 3)],
        [("WO", 5), ("ATT", 4), ("R1", 2), ("QKVQ", 13), ("QKVV", 5), ("W3", 1), ("SPARE", 2)],
    ],
    12: [
        [("CHAIN", 24), ("W4", 8)],
        [("CHAIN", 24), ("W4", 2), ("W1", 5), ("W3", 1)],
        [("CHAIN", 24), ("W3", 8)],
        [("CHAIN", 24), ("W3", 3), ("W2", 5)],
        [("WO", 8), ("ATT", 4), ("R1", 2), ("QKVQ", 12), ("QKVV", 6)],
        [("WO", 7), ("ATT", 4), ("R1", 2), ("QKVQ", 12), ("QKVV", 6), ("SPARE", 1)],
        [("WO", 8), ("ATT", 4), ("R1", 2), ("QKVQ", 12), ("QKVV", 6)],
        [("WO", 7), ("ATT", 4), ("R1", 2), ("QKVQ", 12), ("QKVV", 6), ("SPARE", 1)],
    ],
    9: [
        [("CHAIN", 24), ("W4", 8)],
        [("CHAIN", 24), ("W4", 2), ("W1", 5), ("PROBE", 1)],
        [("CHAIN", 24), ("W3", 8)],
        [("CHAIN", 24), ("W3", 3), ("W2", 5)],
        [("WO", 10), ("ATT", 4), ("R1", 2), ("QKVQ", 11), ("QKVV", 5)],
        [("WO", 10), ("ATT", 4), ("R1", 2), ("QKVQ", 11), ("QKVV", 5)],
        [("WO", 5), ("ATT", 4), ("R1", 2), ("QKVQ", 13), ("QKVV", 7), ("W3", 1)],
        [("WO", 5), ("ATT", 4), ("R1", 2), ("QKVQ", 13), ("QKVV", 7), ("SPARE", 1)],
    ],
    6: [
        [("CHAIN", 24), ("W1", 5), ("W3", 3)],
        [("CHAIN", 24), ("W2", 5), ("W3", 3)],
        [("CHAIN", 24), ("W3", 6), ("SPARE", 2)],
        [("CHAIN", 24), ("R1", 8)],
        [("WO", 10), ("ATT", 4), ("W4", 2), ("QKVQ", 11), ("QKVV", 5)],
        [("WO", 10), ("ATT", 4), ("W4", 2), ("QKVQ", 11), ("QKVV", 5)],
        [("WO", 5), ("ATT", 4), ("W4", 3), ("QKVQ", 13), ("QKVV", 7)],
        [("WO", 5), ("ATT", 4), ("W4", 3), ("QKVQ", 13), ("QKVV", 7)],
    ],
    7: [
        [("CHAIN", 24), ("W1", 5), ("W4", 3)],
        [("CHAIN", 24), ("W2", 5), ("W4", 3)],
        [("CHAIN", 24), ("W3", 4), ("W4", 2), ("SPARE", 2)],
        [("CHAIN", 24), ("W3", 6), ("W4", 2)],
        [("WO", 10), ("ATT", 4), ("R1", 2), ("QKVQ", 11), ("QKVV", 5)],
        [("WO", 10), ("ATT", 4), ("R1", 2), ("QKVQ", 11), ("QKVV", 5)],
        [("WO", 5), ("ATT", 4), ("R1", 2), ("QKVQ", 13), ("QKVV", 7), ("W3", 1)],
        [("WO", 5), ("ATT", 4), ("R1", 2), ("QKVQ", 13), ("QKVV", 7), ("W3", 1)],
    ],
    8: [
        [("CHAIN", 24), ("ATT", 4), ("R1", 2), ("W1", 2)],
        [("CHAIN", 24), ("ATT", 4), ("R1", 2), ("W1", 2)],
        [("CHAIN", 24), ("ATT", 4), ("R1", 2), ("W1", 1), ("SPARE", 1)],
        [("CHAIN", 24), ("ATT", 4), ("R1", 2), ("W2", 1), ("SPARE", 1)],
        [("WO", 10), ("W4", 3), ("W3", 3), ("QKVQ", 11), ("QKVV", 5)],
        [("WO", 10), ("W4", 3), ("W3", 3), ("QKVQ", 11), ("QKVV", 5)],
        [("WO", 5), ("W4", 2), ("W3", 3), ("W2", 2), ("QKVQ", 13), ("QKVV", 7)],
        [("WO", 5), ("W4", 2), ("W3", 3), ("W2", 2), ("QKVQ", 13), ("QKVV", 7)],
    ],
    3: [
        [("CHAIN", 24), ("R1", 8)],
        [("CHAIN", 24), ("W1", 5), ("SPARE", 2), ("W3", 1)],
        [("CHAIN", 24), ("W2", 5), ("W3", 3)],
        [("CHAIN", 24), ("W3", 8)],
        [("WO", 10), ("ATT", 4), ("QKVQ", 12), ("QKVV", 6)],
        [("WO", 10), ("ATT", 4), ("QKVQ", 12), ("QKVV", 6)],
        [("WO", 5), ("ATT", 4), ("QKVQ", 7), ("QKVV", 6), ("W4", 10)],
        [("WO", 5), ("ATT", 4), ("QKVQ", 17), ("QKVV", 6)],
    ],
    4: [
        [("CHAIN", 24), ("ATT", 8)],
        [("CHAIN", 24), ("ATT", 8)],
        [("CHAIN", 24), ("R1", 8)],
        [("CHAIN", 24), ("W1", 5), ("SPARE", 2), ("W3", 1)],
        [("WO", 10), ("W2", 5), ("QKVQ", 11), ("QKVV", 6)],
        [("WO", 10), ("W3", 5), ("QKVQ", 11), ("QKVV", 6)],
        [("WO", 5), ("QKVQ", 11), ("QKVV", 6), ("W4", 10)],
        [("WO", 5), ("W3", 6), ("QKVQ", 15), ("QKVV", 6)],
    ],
    5: [
        [("CHAIN", 24), ("W4", 5), ("W1", 3)],
        [("CHAIN", 24), ("W4", 5), ("W1", 2), ("SPARE", 1)],
        [("CHAIN", 24), ("W3", 6), ("W2", 2)],
        [("CHAIN", 24), ("W3", 4), ("W2", 3), ("SPARE", 1)],
        [("WO", 10), ("ATT", 4), ("R1", 2), ("QKVQ", 11), ("QKVV", 5)],
        [("WO", 10), ("ATT", 4), ("R1", 2), ("QKVQ", 11), ("QKVV", 5)],
        [("WO", 5), ("ATT", 4), ("R1", 2), ("QKVQ", 13), ("QKVV", 7), ("W3", 1)],
        [("WO", 5), ("ATT", 4), ("R1", 2), ("QKVQ", 13), ("QKVV", 7), ("W3", 1)],
    ],
    1: [
        [("CHAIN", 24), ("W1", 5), ("QKVQ", 3)],
        [("CHAIN", 24), ("W2", 5), ("QKVQ", 3)],
        [("CHAIN", 24), ("W3", 6), ("SPARE", 1), ("QKVQ", 1)],
        [("CHAIN", 24), ("W3", 6), ("SPARE", 1), ("QKVQ", 1)],
        [("WO", 10), ("ATT", 4), ("R1", 2), ("QKVQ", 10), ("QKVV", 6)],
        [("WO", 10), ("ATT", 4), ("R1", 2), ("QKVQ", 10), ("QKVV", 6)],
        [("WO", 5), ("ATT", 4), ("R1", 2), ("QKVQ", 5), ("QKVV", 6), ("W4", 10)],
        [("WO", 5), ("ATT", 4), ("R1", 2), ("QKVQ", 15), ("QKVV", 6)],
    ],
    2: [
        [("CHAIN", 24), ("QKVQ", 8)],
        [("CHAIN", 24), ("QKVQ", 8)],
        [("CHAIN", 24), ("QKVQ", 7), ("SPARE", 1)],
        [("CHAIN", 24), ("QKVQ", 7), ("SPARE", 1)],
        [("WO", 10), ("ATT", 4), ("R1", 2), ("W1", 5), ("W2", 5), ("QKVV", 6)],
        [("WO", 10), ("ATT", 4), ("R1", 2), ("QKVQ", 10), ("QKVV", 6)],
        [("WO", 5), ("ATT", 4), ("R1", 2), ("QKVQ", 5), ("QKVV", 6), ("W4", 10)],
        [("WO", 5), ("ATT", 4), ("R1", 2), ("QKVQ", 3), ("QKVV", 6), ("W3", 12)],
    ],
}
ROLE_BITS = ["CHAIN", "QKVQ", "QKVV", "ATT", "WO", "R1", "W1", "W2", "W3", "W4"]


DOC = """; ---------------------------------------------------------------------------------------------
; ---------------------------------------------------------------------------------------------
"""


def gen_probe(A, cfg, nwg):
    A.label("ROLE_PROBE")
    lab = A.newlabel("pb")
    A(f"s_cmp_lg_u32 {s(S_WAVE)}, 0")
    A(f"s_cbranch_scc1 {lab}")
    A("s_mov_b64 exec, 1")
    A("v_mov_b32 v12, 0")
    A("s_mov_b32 s50, -1")
    A("s_mov_b32 s51, -1")
    A("s_mov_b32 s52, 0")
    A.label("PROBE_LOOP")
    A("s_and_b32 s53, s52, 7")
    A("s_lshl_b32 s53, s53, 14")
    A(f"s_add_u32 s53, s53, {XP + 0x140000}")
    for par in range(2):
        if par:
            A("s_add_u32 s53, s53, 0x2000")
        A("s_memtime s[54:55]")
        A("s_waitcnt lgkmcnt(0)")
        A(f"buffer_store_dword v12, v12, {s(SRD_WS, 4)}, s53 offen sc1")
        A("s_waitcnt vmcnt(0)")
        A(f"buffer_load_dword v13, v12, {s(SRD_WS, 4)}, s53 offen sc1")
        A("s_waitcnt vmcnt(0)")
        A("s_memtime s[56:57]")
        A("s_waitcnt lgkmcnt(0)")
        A("s_sub_u32 s58, s56, s54")
        A(f"s_min_u32 s{50 + par}, s{50 + par}, s58")
    A("s_add_u32 s52, s52, 1")
    A(f"s_cmp_lt_u32 s52, {cfg.nprobe}")
    A("s_cbranch_scc1 PROBE_LOOP")
    A("s_cmp_lt_u32 s51, s50")
    A("s_cselect_b32 s52, 0x2000, 0")
    A("v_mov_b32 v13, s52")
    A("v_mov_b32 v12, 12")
    A(f"buffer_store_dword v13, v12, {s(SRD_DBG, 4)}, 0 offen sc1")
    if cfg.timing:
        A("v_mov_b32 v13, s50")
        A(f"buffer_store_dword v13, v12, {s(SRD_DBG, 4)}, 0 offen offset:56 sc1")
        A("v_mov_b32 v13, s51")
        A(f"buffer_store_dword v13, v12, {s(SRD_DBG, 4)}, 0 offen offset:60 sc1")
    A("s_mov_b64 exec, -1")
    A.label(lab)
    init_barrier_arrive(A, 12)
    init_barrier_wait(A, 12, nwg, cfg)
    A("s_endpgm")


def gen(cfg):
    A = Asm()
    nwg = 256
    CFG[0] = cfg
    ST.TSFLAG[0] = cfg.timing == 4
    if cfg.mode == "chain":
        cfg.off = 0x3fe
    active = [r for i, r in enumerate(ROLE_BITS) if not (cfg.off >> i) & 1]
    if cfg.c2:
        active = [r for r in active if r != "CHAIN"] + ["CS", "CV", "CW"]
    if cfg.near and not cfg.vote:
        cfg.place = 9
        active.append("PROBE")
    K = NAME + "_kernel"
    head = open(os.path.join(os.path.dirname(os.path.abspath(__file__)), "..", NAME + ".s.ref")).read().split("\n")
    hdr = [l for l in head if l.startswith(";") and "@launch" not in l and "Override" not in l and "grid=ceil" not in l]
    out = "\n".join(hdr) + f"\n; @launch grid=({nwg},1,1) block=(256,1,1) lds=163840\n"
    out += '.amdgcn_target "amdgcn-amd-amdhsa--gfx950"\n.text\n'
    out += DOC
    out += f".globl {K}\n.p2align 8\n.type {K},@function\n{K}:\n"
    A(f"s_cmp_ge_u32 s2, {nwg}")
    A("s_cbranch_scc1 EXIT")
    A(f"s_load_dwordx16 {s(16, 16)}, s[0:1], 0")
    A(f"s_load_dwordx8 {s(32, 8)}, s[0:1], 64")
    A(f"s_load_dwordx4 {s(40, 4)}, s[0:1], 96")
    A(f"s_load_dwordx2 {s(44, 2)}, s[0:1], 112")
    A("v_lshrrev_b32 v1, 6, v0")
    A("v_and_b32 v0, 63, v0")
    A(f"v_readfirstlane_b32 {s(S_WAVE)}, v1")
    A(f"s_mov_b32 {s(S_SPIN)}, {cfg.spin}")
    A(f"s_mov_b32 {s(S_MODE)}, 0")
    if cfg.timing == 6:
        A("s_memrealtime s[96:97]")
    A("s_getreg_b32 s4, hwreg(HW_REG_XCC_ID)")
    A("s_and_b32 s4, s4, 7")
    A("s_waitcnt lgkmcnt(0)")
    make_srd(A, SRD_WS, P_WS, WS_BYTES)
    make_srd(A, SRD_DBG, P_DBG, 256)
    A("v_lshlrev_b32 v1, 4, v0")
    for i in range(4):
        A(f"v_mov_b32 v{4 + i}, 0")
    A("s_lshl_b32 s5, s2, 2")
    A(f"s_add_u32 s5, s5, {s(S_WAVE)}")
    A("s_lshl_b32 s5, s5, 10")
    if cfg.mode != "chain":
        A(f"buffer_store_dwordx4 v[4:7], v1, {s(SRD_WS, 4)}, s5 offen sc1")
    if cfg.near and cfg.vote:
        A("s_cmp_ge_u32 s4, 4")
        A("s_cbranch_scc1 VOTE_DONE")
        A(f"s_cmp_lg_u32 {s(S_WAVE)}, 1")
        A("s_cbranch_scc1 VOTE_DONE")
        if cfg.vote > 1:
            A(f"s_and_b32 s52, s2, {(cfg.vote - 1) << 3}")
            A("s_cbranch_scc1 VOTE_DONE")
        A("s_mov_b64 exec, 1")
        A("v_mov_b32 v12, 0")
        A("s_and_b32 s53, s2, 63")
        A("s_lshl_b32 s53, s53, 7")
        A("s_lshr_b32 s52, s2, 6")
        A("s_mul_i32 s52, s52, 3")
        A(f"s_add_u32 s52, s52, {s(S_WAVE)}")
        A("s_lshl_b32 s52, s52, 14")
        A("s_add_u32 s53, s53, s52")
        A(f"s_add_u32 s53, s53, {XP + 0x140000}")
        A("s_add_u32 s59, s53, 0x2000")
        A(f"buffer_store_dword v12, v12, {s(SRD_WS, 4)}, s53 offen sc1")
        A(f"buffer_store_dword v12, v12, {s(SRD_WS, 4)}, s59 offen sc1")
        A("s_waitcnt vmcnt(0)")
        for par in range(2):
            A("s_memtime s[54:55]")
            A("s_waitcnt lgkmcnt(0)")
            A(f"buffer_load_dword v13, v12, {s(SRD_WS, 4)}, s{59 if par else 53} offen sc1")
            A("s_waitcnt vmcnt(0)")
            A("s_memtime s[56:57]")
            A("s_waitcnt lgkmcnt(0)")
            A(f"s_sub_u32 s{50 + par}, s56, s54")
        A("s_cmp_lt_u32 s51, s50")
        A("s_cselect_b32 s52, 1, -1")
        A("v_mov_b32 v13, s52")
        A("v_mov_b32 v12, 192")
        A(f"buffer_atomic_add v13, v12, {s(SRD_DBG, 4)}, 0 offen sc1")
        A("s_mov_b64 exec, -1")
        A.label("VOTE_DONE")
    A("v_mov_b32 v2, 0")
    A(f"s_cmp_lg_u32 {s(S_WAVE)}, 0")
    A("s_cbranch_scc1 TK_DONE")
    A("s_mov_b64 exec, 1")
    A("v_mov_b32 v1, 1")
    A("s_lshl_b32 s5, s4, 2")
    A("v_mov_b32 v3, s5")
    A(f"buffer_atomic_add v1, v3, {s(SRD_DBG, 4)}, 0 offen offset:32 sc0 sc1")
    A("s_waitcnt vmcnt(0)")
    A("v_readfirstlane_b32 s5, v1")
    A("s_lshl_b32 s6, s4, 5")
    A("s_add_u32 s6, s6, s5")
    A("s_cmp_lt_u32 s5, 32")
    A("s_cselect_b32 s6, s6, 999")
    A("v_mov_b32 v1, s6")
    A("ds_write_b32 v2, v1")
    A("s_mov_b64 exec, -1")
    A("s_waitcnt lgkmcnt(0)")
    A.label("TK_DONE")
    A("s_barrier")
    A("ds_read_b32 v1, v2")
    A("s_waitcnt lgkmcnt(0)")
    A(f"v_readfirstlane_b32 {s(S_ROLEG)}, v1")
    A("s_barrier")
    if cfg.timing == 4:
        A("s_memrealtime s[98:99]")
        A("s_waitcnt lgkmcnt(0)")
        A("v_mov_b32 v1, s98")
        A("v_mov_b32 v2, 24")
        A(f"s_cmp_lg_u32 {s(S_ROLEG)}, 0")
        A("s_cbranch_scc1 DISPATCH")
        A(f"buffer_store_dword v1, v2, {s(SRD_DBG, 4)}, 0 offen")
    if cfg.c2:
        A("s_branch DISPATCH")
        C2M.gen_sv(A, cfg, nwg)
        C2M.gen_cw(A, cfg, nwg)
    A.label("DISPATCH")
    if cfg.timing:
        A(f"s_mov_b32 {s(S_GID)}, {s(S_ROLEG)}")
    pos = 0
    cnt = {}
    for xcd in PLACES.get(cfg.place, PLACE):
        assert sum(n for _, n in xcd) == 32
        for name, n in xcd:
            b = cnt.get(name, 0)
            cnt[name] = b + n
            A(f"s_sub_u32 {s(S_ROLE)}, {s(S_ROLEG)}, {pos - b}")
            A(f"s_cmp_lt_u32 {s(S_ROLEG)}, {pos + n}")
            A(f"s_cbranch_scc1 ROLE_{name if name in active else 'SPARE'}")
            pos += n
    assert cnt == dict(CHAIN=96, QKVQ=48, QKVV=24, ATT=16, WO=30, R1=8, W1=5, W2=5, W3=12, W4=10, SPARE=2) or cfg.near, cnt
    A("s_branch ROLE_SPARE")
    A.label("EXIT")
    A("s_endpgm")
    A.label("ABORT")
    A("s_mov_b64 exec, 1")
    A("v_mov_b32 v1, s2")
    A("v_add_u32 v1, 0x10000, v1")
    A("v_mov_b32 v2, 8")
    A(f"buffer_store_dword v1, v2, {s(SRD_DBG, 4)}, 0 offen")
    A("s_endpgm")
    gen_idle(A, cfg, nwg, "SPARE")
    gens = dict(CHAIN=lambda: gen_chain(A, cfg, nwg), QKVQ=lambda: S32.QKV32(A, cfg, nwg, False).gen(), QKVV=lambda: S32.QKV32(A, cfg, nwg, True).gen(),
                ATT=lambda: ST.gen_att(A, cfg, nwg), WO=lambda: S32.WO32(A, cfg, nwg).gen(), R1=lambda: ST.gen_r1(A, cfg, nwg),
                W1=lambda: S32.W1_32(A, cfg, nwg).gen(), W2=lambda: S32.W2_32(A, cfg, nwg).gen(), W3=lambda: S32.W3_32(A, cfg, nwg).gen(),
                W4=lambda: ST.gen_w4(A, cfg, nwg), PROBE=lambda: gen_probe(A, cfg, nwg),
                CS=lambda: None, CV=lambda: None, CW=lambda: None)
    if not cfg.s32:
        gens.update(QKVQ=lambda: ST.QKV(A, cfg, nwg, False).gen(), QKVV=lambda: ST.QKV(A, cfg, nwg, True).gen(), WO=lambda: ST.WO(A, cfg, nwg).gen(),
                    W1=lambda: ST.W1(A, cfg, nwg).gen(), W2=lambda: ST.W2(A, cfg, nwg).gen(), W3=lambda: ST.W3(A, cfg, nwg).gen())
    if cfg.g3 & 1:
        gens.update(QKVQ=lambda: S3.QKV3(A, cfg, nwg, False).gen(), QKVV=lambda: S3.QKV3(A, cfg, nwg, True).gen())
    if cfg.g3 & 2:
        gens.update(W1=lambda: S3.W1_3(A, cfg, nwg).gen(), W2=lambda: S3.W2_3(A, cfg, nwg).gen(), W3=lambda: S3.W3_3(A, cfg, nwg).gen())
    if cfg.g3 & 4:
        gens.update(WO=lambda: S3.WO_3(A, cfg, nwg).gen())
    if cfg.g3 & 8:
        gens.update(W4=lambda: S3.gen_ks(A, cfg, nwg, False))
    if cfg.g3 & 16:
        gens.update(WO=lambda: S3.gen_ks(A, cfg, nwg, True))
    for r in active:
        gens[r]()
    out += A.render()
    out += f""".section .rodata,"a"
.p2align 6
.amdhsa_kernel {K}
  .amdhsa_next_free_vgpr 512
  .amdhsa_next_free_sgpr 102
  .amdhsa_accum_offset 256
  .amdhsa_group_segment_fixed_size 0
  .amdhsa_kernarg_size 120
  .amdhsa_user_sgpr_count 2
  .amdhsa_user_sgpr_kernarg_segment_ptr 1
  .amdhsa_system_sgpr_workgroup_id_x 1
.end_amdhsa_kernel
"""
    return out, A.count()


if __name__ == "__main__":
    mode = sys.argv[1] if len(sys.argv) > 1 else "full"
    outp = sys.argv[2] if len(sys.argv) > 2 else "/code/" + NAME + ".s"
    kw = {}
    for arg in sys.argv[3:]:
        k, val = arg.split("=")
        kw[k] = int(val)
    if mode == "chain":
        kw.setdefault("timing", 1)
        cfg = Cfg(mode="chain", lstride=2 * QKV_SZ, **kw)
    else:
        cfg = Cfg(mode=mode, **kw)
    txt, n = gen(cfg)
    open(outp, "w").write(txt)
    print("instructions:", n, "bytes:", len(txt))
```

```python
from common import *
from stations import item_of, Capture

WS = s(SRD_WS, 4)
SM = "v_smfmac_f32_16x16x64_bf16"
MF = "v_mfma_f32_16x16x32_bf16"
NONE = -1
DF = ["sc1 ", "", "nt sc1 ", "sc0 sc1 ", "nt ", "sc0 nt sc1 "]

S_N, S_L, S_T, S_NL, S_NT, S_L2, S_T2, S_TAG, S_T1, S_PLA = range(50, 60)
T = 60
S_PXA, S_DPA, S_OIA, S_VMA, S_DOA, S_KSRC, S_KLDS, S_FLG1, S_FLG2, S_DEF = range(68, 78)
S_KP, S_FP, S_KCUR, S_FCUR = 78, 79, 80, 81
S_XB, S_PXR, S_HOFF, S_XGH, S_FXH, S_CS = 82, 83, 84, 85, 86, 87
S_MA, S_MB = 88, 90
S_X, S_J, S_KF, S_NTAG, S_NT1, S_OIH, S_VMH, S_DOH, S_ISV = 28, 29, 30, 31, 32, 33, 34, 35, 36
S_T0 = 38
V_LANE, V_L16, V_IDX = 0, 1, 2
V_T = 12


class Lds:
    def __init__(self, A):
        self.A, self.q = A, []

    def op(self, tag, text):
        self.A(text)
        self.q.append(tag)

    def wait(self, tag):
        if tag not in self.q:
            return
        i = len(self.q) - 1 - self.q[::-1].index(tag)
        n = len(self.q) - 1 - i
        self.A(f"s_waitcnt lgkmcnt({min(n, 15)})")
        if n <= 15:
            self.q = self.q[i + 1:]
        else:
            self.q = self.q[len(self.q) - 15:]

    def drain(self):
        self.A("s_waitcnt lgkmcnt(0)")
        self.q = []


def cost(x):
    if x.startswith("ds_"):
        return 8
    if x.startswith("buffer_"):
        return CFG[0].vmc
    if x.startswith("s_cbranch") or x.startswith("s_branch"):
        return 16
    if x.startswith("v_pk_") or x.split()[0] in ("v_exp_f32", "v_rcp_f32", "v_sqrt_f32", "v_rsq_f32"):
        return 8
    return 4


class Task:
    def __init__(self, rel, items, step=0):
        self.rel, self.items, self.step = rel, list(items), step
        self.vstep, self.after = 0, None


def sched(A, L, seq, tasks, pre=None, budget=12, nvalu=1):
    pre = pre or {}

    def icost(it):
        if isinstance(it, tuple):
            return it[0] if callable(it[1]) else 8
        return sum(cost(y) for y in it.split("\n"))

    def isv(it):
        return 0 if isinstance(it, tuple) else sum(1 for y in it.split("\n") if y.startswith("v_"))

    def emit(it):
        if isinstance(it, tuple):
            if callable(it[1]):
                it[1]()
            else:
                L.op(it[0], it[1])
        else:
            A(it)

    def pending(tag):
        return [t for t in tasks if any(isinstance(i, tuple) and i[0] == tag for i in t.items)]
    over = 0
    for k, (txt, need) in enumerate(seq):
        if k in pre:
            pre[k]()
        for tag in need:
            for t in pending(tag):
                assert t.rel <= k, (tag, k)
                while pending(tag):
                    emit(t.items.pop(0))
                    over += 1
            L.wait(tag)
        A(txt)
        rem, nv = budget, 0
        if k + 1 < len(seq) and any(tag in L.q for tag in seq[k + 1][1]):
            rem -= 4
        full = rem
        for t in tasks:
            while t.items and t.rel <= k and not (t.after and t.after.items):
                it = t.items[0]
                c = icost(it)
                big = isinstance(it, tuple) and callable(it[1]) and c == CFG[0].vmc
                if big and t.vstep and getattr(t, "vrel", 0) > k:
                    break
                if (c <= rem and nv + isv(it) <= nvalu) or (rem == full and rem >= budget - 4 and c > budget) or (budget > 12 and c >= budget - 4 and rem >= budget - 12):
                    emit(t.items.pop(0))
                    rem -= c
                    nv += isv(it)
                    if big and t.vstep:
                        t.vrel = k + t.vstep
                    if t.step and c > 0:
                        t.rel = k + t.step
                else:
                    break
    left = sum(len(t.items) for t in tasks)
    if CFG[0].verbose:
        print("sched: forced", over, "left", left)
    for t in tasks:
        while t.items:
            emit(t.items.pop(0))


def groups(lines):
    grp, cur = [], []
    for x in lines:
        if x.startswith("s_cselect") or x.startswith("s_addc"):
            cur.append(x)
        else:
            if cur:
                grp.append("\n".join(cur))
            cur = [x]
    if cur:
        grp.append("\n".join(cur))
    return grp


def cap(fn):
    c = Capture()
    fn(c)
    out = []
    for x in c.l:
        out += [y for y in x.split("\n") if y.strip()]
    return out


def spin_fail(A, nf=True):
    A(f"s_sub_u32 {s(S_SPIN)}, {s(S_SPIN)}, 1")
    A("s_cbranch_scc1 ABORT")


def doorbell(A, cfg, v_off, s_addr, vd):
    top, ok = A.newlabel("db"), A.newlabel("dbok")
    ld = f"buffer_load_dword {v(vd)}, {v(v_off)}, {WS}, {s(s_addr)} offen sc1"
    if not cfg.dpp2:
        A.label(top)
        A(ld)
        A("s_waitcnt vmcnt(0)")
        A(f"v_cmp_gt_u32 vcc, {s(S_T1)}, {v(vd)}")
        A.nf(f"s_cbranch_vccz {ok}")
        if cfg.dsl:
            A(f"s_sleep {cfg.dsl}")
        spin_fail(A)
        A(f"s_branch {top}")
        A.label_nf(ok)
        return
    ld2 = f"buffer_load_dword {v(vd + 1)}, {v(v_off)}, {WS}, {s(s_addr)} offen sc1"
    A(ld)
    A(f"s_sleep {cfg.dpp2}")
    A.label(top)
    A(ld2)
    A("s_waitcnt vmcnt(1)")
    A(f"v_cmp_gt_u32 vcc, {s(S_T1)}, {v(vd)}")
    A.nf(f"s_cbranch_vccz {ok}")
    A(ld)
    A("s_waitcnt vmcnt(1)")
    A(f"v_cmp_gt_u32 vcc, {s(S_T1)}, {v(vd + 1)}")
    A.nf(f"s_cbranch_vccz {ok}")
    spin_fail(A)
    A(f"s_branch {top}")
    A.label_nf(ok)


def common_setup(A, cfg, shift):
    A(f"s_lshr_b32 {s(S_X)}, {s(S_ROLE)}, {shift}")
    A(f"s_and_b32 {s(S_J)}, {s(S_ROLE)}, {(1 << shift) - 1}")
    A(f"s_mul_i32 {s(S_XB)}, {s(S_X)}, {C2_X}")
    A(f"s_add_u32 {s(S_XB)}, {s(S_XB)}, {C2}")
    A(f"v_lshlrev_b32 {v(V_L16)}, 4, {v(V_LANE)}")
    A(f"v_and_b32 {v(V_T)}, 1, {v(V_LANE)}")
    A(f"v_mul_u32_u24 {v(V_IDX)}, 0xaaaa, {v(V_T)}")
    A(f"v_or_b32 {v(V_IDX)}, 0x4444, {v(V_IDX)}")


def near_half(A, cfg, dst):
    if not cfg.near:
        return
    A(f"v_mov_b32 {v(V_T + 1)}, 192")
    A(f"buffer_load_dword {v(V_T)}, {v(V_T + 1)}, {s(SRD_DBG, 4)}, 0 offen sc1")
    A("s_waitcnt vmcnt(0)")
    A(f"v_readfirstlane_b32 {s(T)}, {v(V_T)}")
    A(f"s_cmp_gt_i32 {s(T)}, 0")
    A(f"s_cselect_b32 {s(T)}, 0x2000, 0")
    if cfg.near == 2:
        A(f"s_xor_b32 {s(T)}, {s(T)}, 0x2000")
    A(f"s_add_u32 {s(dst)}, {s(dst)}, {s(T)}")


def timing_end(A, cfg, stamp, idx_base):
    A(f"s_add_u32 {s(T + 1)}, {s(S_ROLE)}, {idx_base}")
    stamp.dump(T + 1, T, V_T)
    if cfg.timing and idx_base == 0:
        lab = A.newlabel("tm")
        A(f"s_memrealtime {s(S_T0 + 2, 2)}")
        A("s_waitcnt lgkmcnt(0)")
        A(f"s_cmp_lg_u32 {s(S_ROLE)}, 0")
        A(f"s_cbranch_scc1 {lab}")
        A(f"s_cmp_lg_u32 {s(S_WAVE)}, 0")
        A(f"s_cbranch_scc1 {lab}")
        A(f"s_sub_u32 {s(T)}, {s(S_T0 + 2)}, {s(S_T0)}")
        A(f"v_mov_b32 {v(V_T)}, {s(T)}")
        if cfg.timing == 6:
            A("s_memtime s[94:95]")
            A("s_waitcnt lgkmcnt(0)")
            A(f"s_sub_u32 {s(S_MODE)}, s94, s92")
        A(f"v_mov_b32 {v(V_T + 1)}, {s(S_MODE)}")
        A(f"v_mov_b32 {v(V_T + 2)}, 16")
        A("s_mov_b64 exec, 1")
        A(f"buffer_store_dwordx2 {v(V_T, 2)}, {v(V_T + 2)}, {s(SRD_DBG, 4)}, 0 offen")
        if cfg.timing == 6:
            A(f"s_sub_u32 {s(T)}, {s(S_T0)}, s100")
            A(f"v_mov_b32 {v(V_T)}, {s(T)}")
            A(f"buffer_store_dword {v(V_T)}, {v(V_T + 2)}, {s(SRD_DBG, 4)}, 0 offen offset:8")
        A.label(lab)
    A("s_endpgm")


def retry_dump(A, idx_base):
    A(f"s_add_u32 {s(T)}, {s(S_ROLE)}, {idx_base}")
    A(f"s_lshl_b32 {s(T)}, {s(T)}, 2")
    A(f"s_add_u32 {s(T)}, {s(T)}, {s(S_WAVE)}")
    A(f"s_lshl_b32 {s(T)}, {s(T)}, 6")
    A(f"s_add_u32 {s(T)}, {s(T)}, 0x100000")
    A("s_mov_b64 exec, 1")
    for k in range(5):
        A(f"v_mov_b32 {v(V_T)}, {s(92 + k)}")
        A(f"buffer_store_dword {v(V_T)}, {v(V_L16)}, {WS}, {s(T)} offen offset:{4 * k}")
    A("s_mov_b64 exec, -1")


class NoStamp:
    def init(self): pass
    def __call__(self, k): pass
    def dump(self, *a_): pass
    def flush(self): pass


class LightStamp(RawStamper):
    R = [16, 18, 20, 22, 24, 26, 96, 98]

    def __call__(self, k):
        self.A(f"s_memtime {s(self.R[k], 2)}")

    def flush(self):
        A, b = self.A, self.b
        lab = A.newlabel("fs")
        A(f"s_sub_u32 {s(b + 2)}, {s(self.s_t)}, {self.t0}")
        A(f"s_cmp_ge_u32 {s(b + 2)}, 7")
        A(f"s_cbranch_scc1 {lab}")
        A(f"s_lshl_b32 {s(b + 3)}, {s(b + 2)}, 3")
        A(f"s_lshl_b64 exec, 1, {s(b + 3)}")
        A("s_waitcnt lgkmcnt(0)")
        for k in range(8):
            A(f"v_mov_b32 {v(self.vr)}, {s(self.R[k])}")
            A(f"s_lshl_b64 exec, exec, 1")
        A("s_mov_b64 exec, -1")
        A(f"s_cmp_lg_u32 {s(b + 2)}, 0")
        A(f"s_cbranch_scc1 {lab}x")
        self.cal(56)
        A.label(lab + "x")
        A(f"s_sub_u32 {s(b + 2)}, {s(self.s_t)}, {self.t0}")
        A(f"s_cmp_lg_u32 {s(b + 2)}, 6")
        A(f"s_cbranch_scc1 {lab}")
        self.cal(60)
        A.label(lab)


def mk_stamp(A, cfg, vreg):
    return LightStamp(A, cfg, 92, S_N, vreg, t0=cfg.rawt0) if cfg.timing == 3 else NoStamp()


def flag_val(A, cfg, vr):
    if cfg.timing == 4:
        A(f"s_memrealtime {s(98, 2)}")
        A("s_waitcnt lgkmcnt(0)")
        A(f"s_or_b32 s98, s98, 1")
        A(f"v_mov_b32 {v(vr)}, s98")
    else:
        A(f"v_mov_b32 {v(vr)}, 1")


def gen_sv(A, cfg, nwg):
    LAG = cfg.LAG
    V_GB = 3
    V_XW, V_XR, V_OST, V_FLG, V_FV, V_DB = 6, 7, 8, 9, 10, 11
    V_KST, V_BW, V_MW, V_MW2 = 20, 21, 22, 23
    V_ACC = 24
    V_F = 48
    V_KA, V_G4 = 58, 59
    V_A = 60
    V_B = 72
    V_FREE = 88
    V_PL, V_PR = 60, 80
    V_STAMP = 111 if False else 19
    V_L16B = 18
    V_RDY = 58
    V_SY, V_SY3 = 20, 8
    V_KEEP = 100
    V_VS0, V_VS1 = 6, 7
    L_RES, L_KV, L_MEM, L_X = 0, 81920, 131072, 141312

    def wreg(slot, tile):
        idx = slot * 5 + tile
        return ("a", idx * 8) if idx < 32 else ("v", 112 + (idx - 32) * 8)

    def wtxt(slot, tile):
        if tile == 5:
            return v(V_B + 8 * (slot & 1), 8)
        k, r = wreg(slot, tile)
        return a(r, 8) if k == "a" else v(r, 8)

    g_, c_ = V_T + 2, V_T + 3

    def lane_gc():
        A(f"v_lshrrev_b32 {v(g_)}, 4, {v(V_LANE)}")
        A(f"v_and_b32 {v(c_)}, 15, {v(V_LANE)}")

    def sv_setup():
        for q in range(1, 4):
            A(f"s_add_u32 {s(T)}, {s(S_WAVE)}, {q}")
            A(f"s_and_b32 {s(T)}, {s(T)}, 3")
            A(f"s_lshl_b32 {s(T)}, {s(T)}, 11")
            A(f"s_add_u32 {s(T)}, {s(T)}, {L_MEM}")
            A(f"v_add_u32 {v(V_GB + q - 1)}, {s(T)}, {v(V_L16)}")
        A(f"v_add_u32 {v(V_G4)}, {L_MEM + 8192}, {v(V_L16)}")
        A(f"s_lshl_b32 {s(T)}, {s(S_WAVE)}, 11")
        A(f"s_add_u32 {s(T)}, {s(T)}, {L_MEM}")
        A(f"v_add_u32 {v(V_MW)}, {s(T)}, {v(V_L16)}")
        A(f"s_lshr_b32 {s(T)}, {s(S_WAVE)}, 1")
        A(f"s_lshl_b32 {s(T)}, {s(T)}, 10")
        A(f"s_and_b32 {s(T + 1)}, {s(S_WAVE)}, 1")
        A(f"s_lshl_b32 {s(T + 1)}, {s(T + 1)}, 3")
        A(f"s_add_u32 {s(T)}, {s(T)}, {s(T + 1)}")
        A(f"v_add_u32 {v(V_MW2)}, {s(T)}, {v(V_G4)}")
        A(f"s_mul_i32 {s(T)}, {s(S_WAVE)}, 20480")
        A(f"v_add_u32 {v(V_BW)}, {s(T)}, {v(V_L16)}")
        if cfg.pb:
            A(f"v_and_b32 {v(V_DB)}, 7, {v(V_LANE)}")
            A(f"v_lshlrev_b32 {v(V_DB)}, 2, {v(V_DB)}")
            A(f"v_bfe_u32 {v(V_T)}, {v(V_LANE)}, 3, 2")
            A(f"v_lshl_add_u32 {v(V_DB)}, {v(V_T)}, 7, {v(V_DB)}")
        else:
            A(f"v_min_u32 {v(V_DB)}, 7, {v(V_LANE)}")
            A(f"v_lshlrev_b32 {v(V_DB)}, 2, {v(V_DB)}")
        A(f"s_xor_b32 {s(T)}, {s(S_X)}, 1")
        A(f"s_lshl_b32 {s(T)}, {s(T)}, 19")
        A(f"s_lshl_b32 {s(T + 1)}, {s(S_WAVE)}, 14")
        A(f"s_add_u32 {s(S_PXR)}, {s(T)}, {s(T + 1)}")
        A(f"s_add_u32 {s(S_PXR)}, {s(S_PXR)}, {XP}")

    A.label("ROLE_CS")
    if cfg.timing == 6:
        A("s_mov_b32 s100, s96")
    common_setup(A, cfg, 4)
    sv_setup()
    A(f"s_mov_b32 {s(S_ISV)}, 0")
    A(f"s_mov_b32 {s(S_MA)}, 0xcccccccc")
    A(f"s_mov_b32 {s(S_MA + 1)}, 0xcccccccc")
    A(f"s_mov_b32 {s(S_MB)}, 0x33333333")
    A(f"s_mov_b32 {s(S_MB + 1)}, 0x33333333")
    A(f"s_mov_b32 {s(S_CS)}, 0x3dd53b95")
    lane_gc()
    A(f"v_lshrrev_b32 {v(V_T)}, 2, {v(c_)}")
    A(f"v_add_u32 {v(V_T)}, {v(V_T)}, {v(g_)}")
    A(f"v_and_b32 {v(V_T)}, 3, {v(V_T)}")
    A(f"v_lshlrev_b32 {v(V_XW)}, 3, {v(V_T)}")
    A(f"v_lshl_add_u32 {v(V_XW)}, {v(c_)}, 5, {v(V_XW)}")
    A(f"s_mul_i32 {s(T)}, {s(S_WAVE)}, 1536")
    A(f"s_add_u32 {s(T)}, {s(T)}, {L_X}")
    A(f"v_add_u32 {v(V_XW)}, {s(T)}, {v(V_XW)}")
    A(f"v_add_u32 {v(V_T)}, {v(V_LANE)}, {v(g_)}")
    A(f"v_and_b32 {v(V_T)}, 3, {v(V_T)}")
    A(f"v_lshlrev_b32 {v(V_XR)}, 3, {v(V_T)}")
    A(f"v_lshrrev_b32 {v(V_T)}, 2, {v(V_LANE)}")
    A(f"v_lshl_add_u32 {v(V_XR)}, {v(V_T)}, 5, {v(V_XR)}")
    A(f"v_add_u32 {v(V_XR)}, {L_X}, {v(V_XR)}")
    A(f"s_min_u32 {s(T + 2)}, {s(S_WAVE)}, 2")
    A(f"v_lshrrev_b32 {v(V_T)}, 2, {v(c_)}")
    A(f"v_and_b32 {v(V_T + 1)}, 1, {v(c_)}")
    A(f"v_lshl_add_u32 {v(V_T)}, {v(V_T)}, 1, {v(V_T + 1)}")
    A(f"v_bfe_u32 {v(V_T + 1)}, {v(c_)}, 1, 1")
    A(f"v_lshlrev_b32 {v(V_OST)}, 8, {v(g_)}")
    A(f"v_lshl_add_u32 {v(V_OST)}, {v(V_T)}, 5, {v(V_OST)}")
    A(f"v_xor_b32 {v(V_T + 4)}, 1, {v(V_T + 1)}")
    A(f"v_lshl_add_u32 {v(V_OST)}, {v(V_T + 4)}, 4, {v(V_OST)}")
    A(f"v_lshlrev_b32 {v(V_KST)}, 8, {v(g_)}")
    A(f"v_lshl_add_u32 {v(V_KST)}, {v(V_T + 1)}, 7, {v(V_KST)}")
    A(f"v_and_b32 {v(V_T + 4)}, 3, {v(V_T)}")
    A(f"v_lshl_add_u32 {v(V_KST)}, {v(V_T + 4)}, 5, {v(V_KST)}")
    A(f"v_lshrrev_b32 {v(V_T + 4)}, 2, {v(V_T)}")
    A(f"v_lshl_add_u32 {v(V_KST)}, {v(V_T + 4)}, 4, {v(V_KST)}")
    A(f"v_min_u32 {v(V_T)}, 5, {v(V_LANE)}")
    A(f"s_mul_i32 {s(T)}, {s(S_ROLE)}, 3")
    A(f"v_add_u32 {v(V_FLG)}, {s(T)}, {v(V_T)}")
    A(f"v_lshlrev_b32 {v(V_FLG)}, 2, {v(V_FLG)}")
    A(f"v_add_u32 {v(V_T + 1)}, {65536 - 12}, {v(V_FLG)}")
    A(f"v_cmp_lt_u32 vcc, 2, {v(V_T)}")
    A(f"v_cndmask_b32 {v(V_FLG)}, {v(V_FLG)}, {v(V_T + 1)}, vcc")
    A(f"s_mul_i32 {s(S_HOFF)}, {s(S_ROLE)}, 12288")
    A(f"s_add_u32 {s(S_HOFF)}, {s(S_HOFF)}, {KX}")
    A(f"s_mul_i32 {s(T)}, {s(S_J)}, 3072")
    A(f"s_lshl_b32 {s(T + 1)}, {s(T + 2)}, 10")
    A(f"s_add_u32 {s(T)}, {s(T)}, {s(T + 1)}")
    A(f"s_add_u32 {s(T)}, {s(T)}, {s(S_XB)}")
    A(f"s_add_u32 {s(S_OIH)}, {s(T)}, {OI_OFF}")
    A(f"s_add_u32 {s(S_VMH)}, {s(T)}, {VM_OFF}")
    A(f"s_mul_i32 {s(S_XGH)}, {s(S_ROLE)}, {XG2_HEAD}")
    A(f"s_add_u32 {s(S_XGH)}, {s(S_XGH)}, {XG}")
    A(f"s_lshl_b32 {s(S_FXH)}, {s(S_ROLE)}, 5")
    A(f"s_lshl_b32 {s(T + 1)}, {s(T + 2)}, 2")
    A(f"s_add_u32 {s(S_FXH)}, {s(S_FXH)}, {FXG}")
    A(f"s_lshr_b32 {s(T)}, {s(S_J)}, 2")
    A(f"s_lshl_b32 {s(T)}, {s(T)}, 7")
    A(f"s_and_b32 {s(T + 3)}, {s(S_J)}, 3")
    A(f"s_mul_i32 {s(T + 3)}, {s(T + 3)}, 12")
    A(f"s_add_u32 {s(T)}, {s(T)}, {s(T + 3)}")
    A(f"s_add_u32 {s(T)}, {s(T)}, {s(T + 1)}")
    A(f"s_add_u32 {s(T)}, {s(T)}, {s(S_XB)}")
    A(f"s_add_u32 {s(S_DOH)}, {s(T)}, {DO_OFF}")
    lab = A.newlabel("si")
    A(f"s_cmp_eq_u32 {s(S_WAVE)}, 3")
    A(f"s_cbranch_scc1 {lab}")
    A(f"v_mov_b32 {v(V_T)}, -1")
    A(f"v_mov_b32 {v(V_T + 1)}, 0")
    lst = []
    for k in range(8):
        lst.append(f"s_add_u32 {s(T)}, {s(S_OIH)}, {k * 49152}")
        lst.append(f"buffer_store_dword {v(V_T)}, {v(V_L16)}, {WS}, {s(T)} offen")
        lst.append(f"buffer_load_dword {v(V_ACC)}, {v(V_L16)}, {WS}, {s(T)} offen sc1")
    lst.append("s_mov_b64 exec, 1")
    lst.append(f"buffer_store_dword {v(V_T + 1)}, {v(V_L16)}, {WS}, {s(S_DOH)} offen")
    lst.append(f"buffer_store_dword {v(V_T + 1)}, {v(V_L16)}, {WS}, {s(S_DOH)} offen offset:512")
    lst.append("s_mov_b64 exec, -1")
    lstore(A, lst)
    A.label(lab)
    V_DA = V_FREE + 16
    S_O0, S_O1 = S_KSRC, S_KLDS
    A(f"s_mul_i32 {s(S_O0)}, {s(S_ROLE)}, 384")
    A(f"s_mov_b32 {s(S_O1)}, {s(S_O0)}")

    def dma_addr(isv):
        for i in range(3):
            A(f"v_add_u32 {v(V_T)}, {64 * i}, {v(V_LANE)}")
            A(f"v_mul_u32_u24 {v(V_T + 1)}, 2731, {v(V_T)}")
            A(f"v_lshrrev_b32 {v(V_T + 1)}, 16, {v(V_T + 1)}")
            A(f"v_mul_u32_u24 {v(V_T + 4)}, 24, {v(V_T + 1)}")
            A(f"v_sub_u32 {v(V_T)}, {v(V_T)}, {v(V_T + 4)}")
            A(f"v_mul_u32_u24 {v(V_DA + i)}, 12288, {v(V_T + 1)}")
            A(f"v_lshl_add_u32 {v(V_DA + i)}, {v(V_T)}, 4, {v(V_DA + i)}")
            if isv:
                A(f"v_mul_u32_u24 {v(V_T + 1)}, 43, {v(V_T)}")
                A(f"v_lshrrev_b32 {v(V_T + 1)}, 8, {v(V_T + 1)}")
                A(f"v_mul_u32_u24 {v(V_T + 1)}, 96, {v(V_T + 1)}")
                A(f"v_add_u32 {v(V_DA + i)}, {v(V_DA + i)}, {v(V_T + 1)}")
    dma_addr(False)
    make_srd(A, SRD_W, P_WQ, 640 * 12288)
    make_srd(A, 52, P_WK, 640 * 12288)
    A("s_branch SV_LOAD")

    A.label("ROLE_CV")
    common_setup(A, cfg, 3)
    sv_setup()
    A(f"s_mov_b32 {s(S_ISV)}, 1")
    for r in (V_OST, V_FLG, V_KST):
        A(f"v_mov_b32 {v(r)}, 0")
    A(f"s_and_b32 {s(T + 2)}, {s(S_WAVE)}, 1")
    A(f"s_lshl_b32 {s(T)}, {s(T + 2)}, 11")
    A(f"v_add_u32 {v(V_VS0)}, {s(T)}, {v(V_L16)}")
    A(f"s_lshl_b32 {s(T)}, {s(T + 2)}, 3")
    A(f"s_add_u32 {s(T)}, {s(T)}, 1024")
    A(f"v_add_u32 {v(V_VS1)}, {s(T)}, {v(V_L16)}")
    A(f"s_lshr_b32 {s(T + 1)}, {s(S_WAVE)}, 1")
    A(f"s_lshl_b32 {s(T)}, {s(S_J)}, 1")
    A(f"s_add_u32 {s(T)}, {s(T)}, {s(T + 1)}")
    A(f"s_mul_i32 {s(T)}, {s(T)}, 3072")
    A(f"s_add_u32 {s(T)}, {s(T)}, {s(S_XB)}")
    A(f"s_add_u32 {s(S_VMH)}, {s(T)}, {VM_OFF}")
    A(f"s_lshl_b32 {s(T)}, {s(S_ROLE)}, 1")
    A(f"s_add_u32 {s(T)}, {s(T)}, {s(T + 1)}")
    A(f"s_mul_i32 {s(S_XGH)}, {s(T)}, {XG2_HEAD}")
    A(f"s_add_u32 {s(S_XGH)}, {s(S_XGH)}, {XG + 3072}")
    A(f"s_lshl_b32 {s(S_FXH)}, {s(T)}, 5")
    A(f"s_lshl_b32 {s(T + 1)}, {s(T + 2)}, 2")
    A(f"s_add_u32 {s(S_FXH)}, {s(S_FXH)}, {s(T + 1)}")
    A(f"s_add_u32 {s(S_FXH)}, {s(S_FXH)}, {FXG + 4}")
    for i in range(4):
        A(f"v_mov_b32 {v(V_T + i)}, -1")
    lst = []
    for k in range(8):
        lst.append(f"s_add_u32 {s(T)}, {s(S_VMH)}, {k * 49152}")
        lst.append(f"buffer_store_dwordx4 {v(V_T, 4)}, {v(V_VS0)}, {WS}, {s(T)} offen")
        lst.append(f"buffer_store_dwordx2 {v(V_T, 2)}, {v(V_VS1)}, {WS}, {s(T)} offen")
        lst.append(f"buffer_load_dword {v(V_ACC)}, {v(V_VS0)}, {WS}, {s(T)} offen sc1")
        lst.append(f"buffer_load_dword {v(V_ACC)}, {v(V_VS1)}, {WS}, {s(T)} offen sc1")
    lstore(A, lst)
    A(f"s_mul_i32 {s(S_O0)}, {s(S_ROLE)}, 768")
    A(f"s_add_u32 {s(S_O1)}, {s(S_O0)}, 96")
    dma_addr(True)
    make_srd(A, SRD_W, P_WV, 640 * 12288)
    make_srd(A, 52, P_WV, 640 * 12288)

    A.label("SV_LOAD")
    init_barrier_arrive(A, V_T)
    V_PARK = 24
    V_TR = V_DA + 3
    S_RA, S_RB, S_LW = S_FLG1, S_FLG2, S_DEF
    A(f"s_and_b32 {s(T)}, {s(S_WAVE)}, 1")
    A(f"s_mul_i32 {s(T)}, {s(T)}, {16 * 12288}")
    A(f"s_lshr_b32 {s(T + 1)}, {s(S_WAVE)}, 1")
    A(f"s_mul_i32 {s(S_RA)}, {s(T + 1)}, {32 * 12288}")
    A(f"s_add_u32 {s(S_RA)}, {s(S_RA)}, {s(T)}")
    A(f"s_mul_i32 {s(S_RB)}, {s(T + 1)}, {160 * 12288}")
    A(f"s_add_u32 {s(S_RB)}, {s(S_RB)}, {s(T)}")
    A(f"s_mul_i32 {s(S_LW)}, {s(S_WAVE)}, 6144")
    lane_gc()
    A(f"v_and_b32 {v(V_T)}, 1, {v(g_)}")
    A(f"v_lshlrev_b32 {v(V_T)}, 5, {v(V_T)}")
    A(f"v_lshrrev_b32 {v(V_T + 1)}, 1, {v(g_)}")
    A(f"v_lshl_add_u32 {v(V_T)}, {v(V_T + 1)}, 3, {v(V_T)}")
    A(f"v_bfe_u32 {v(V_T + 1)}, {v(V_LANE)}, 2, 1")
    A(f"v_add_u32 {v(V_T)}, {v(V_T)}, {v(V_T + 1)}")
    A(f"v_bfe_u32 {v(V_T + 1)}, {v(V_LANE)}, 3, 1")
    A(f"v_lshl_add_u32 {v(V_T)}, {v(V_T + 1)}, 2, {v(V_T)}")
    A(f"v_mul_u32_u24 {v(V_TR)}, 384, {v(V_T)}")
    A(f"v_and_b32 {v(V_T + 1)}, 3, {v(V_LANE)}")
    A(f"v_lshl_add_u32 {v(V_TR)}, {v(V_T + 1)}, 3, {v(V_TR)}")
    A(f"s_mul_i32 {s(T)}, {s(S_WAVE)}, 96")
    A(f"v_add_u32 {v(V_TR)}, {s(T)}, {v(V_TR)}")
    stages = [(F, b) for F in range(10) for b in range(2)]
    NB = 6

    def mp0(F):
        return 5 * (F >> 1) + 2 * (F & 1) if F < 8 else (4 if F == 8 else 14)

    def st_dma(k):
        F, b = stages[k]
        A(f"s_add_u32 {s(T)}, {s(S_RA if F < 8 else S_RB)}, {s(S_O1 if b else S_O0)}")
        for i in range(6):
            A(f"s_add_u32 m0, {s(S_LW)}, {(k % NB) * 24576 + i * 1024}")
            A(f"s_add_u32 {s(T + 1)}, {s(T)}, {(32 * mp0(F) + 8 * (i // 3)) * 12288}")
            A(f"buffer_load_dwordx4 {v(V_DA + i % 3)}, {s(52 if b else SRD_W, 4)}, {s(T + 1)} offen lds")

    def st_read(k, slot):
        F, b = stages[k]
        for p in range(3):
            tile = 3 * b + p
            kind, r = wreg(slot, tile) if tile < 5 else ("v", V_PARK + 8 * slot)
            f = a if kind == "a" else v
            for RH in range(2):
                for hh in range(2):
                    A(f"ds_read_b64_tr_b16 {f(r + 4 * RH + 2 * hh, 2)}, {v(V_T)} offset:{(16 * RH + 2 * hh) * 384 + 32 * p}")
    for k in range(NB - 1):
        st_dma(k)
    for k in range(20):
        F, b = stages[k]
        A(f"s_waitcnt vmcnt({6 * min(NB - 2, 19 - k)})")
        A("s_barrier")
        if k + NB - 1 < 20:
            st_dma(k + NB - 1)
        A(f"v_add_u32 {v(V_T)}, {(k % NB) * 24576}, {v(V_TR)}")
        if F < 8:
            done = A.newlabel("ld")
            labs = [A.newlabel("lw") for _ in range(4)]
            for w in range(1, 4):
                A(f"s_cmp_eq_u32 {s(S_WAVE)}, {w}")
                A(f"s_cbranch_scc1 {labs[w]}")
            for w in range(4):
                A.label(labs[w])
                st_read(k, 2 * (((F >> 1) - w) & 3) + (F & 1))
                if w < 3:
                    A(f"s_branch {done}")
            A.label(done)
        else:
            st_read(k, F)
        A("s_waitcnt lgkmcnt(0)")
    A("s_barrier")
    for sl in range(10):
        for hf in range(2):
            A(f"ds_write_b128 {v(V_BW)}, {v(V_PARK + 8 * sl + 4 * hf, 4)} offset:{sl * 2048 + hf * 1024}")
    A("s_waitcnt lgkmcnt(0)")
    A(f"v_add_u32 {v(V_G4)}, {L_MEM + 8192}, {v(V_L16)}")
    A("s_barrier")
    init_barrier_wait(A, V_T, nwg, cfg)
    near_half(A, cfg, S_PXR)

    S_C0, S_C1 = 4, 5
    L_SY = L_X + 6144

    def fe_scalars(A, rl, rt, tag, t1):
        A(f"s_and_b32 {s(T)}, {s(rt)}, 3")
        A(f"s_lshl2_add_u32 {s(T)}, {s(rl)}, {s(T)}")
        A(f"s_lshl_b32 {s(S_PXA)}, {s(T)}, 16")
        A(f"s_add_u32 {s(S_PXA)}, {s(S_PXA)}, {s(S_PXR)}")
        A(f"s_mul_i32 {s(S_PLA)}, {s(T)}, 20480")
        A(f"s_add_u32 {s(S_PLA)}, {s(S_PLA)}, {s(S_PLW)}")
        A(f"s_lshl_b32 {s(S_DPA)}, {s(rl)}, 9")
        A(f"s_add_u32 {s(S_DPA)}, {s(S_DPA)}, {s(S_DPW)}")
        A(f"s_bfe_u32 {s(tag)}, {s(rt)}, 0x10002")
        A(f"s_add_u32 {s(t1)}, {s(rt)}, 1")

    def cur_local(A, isv):
        A(f"s_and_b32 {s(T)}, {s(S_T)}, 3")
        A(f"s_lshl2_add_u32 {s(T)}, {s(S_L)}, {s(T)}")
        A(f"s_mul_i32 {s(T)}, {s(T)}, 49152")
        A(f"s_add_u32 {s(S_VMA)}, {s(T)}, {s(S_VMH)}")
        if not isv:
            A(f"s_add_u32 {s(S_OIA)}, {s(T)}, {s(S_OIH)}")
            A(f"s_lshl_b32 {s(T)}, {s(S_L)}, 9")
            A(f"s_add_u32 {s(S_DOA)}, {s(T)}, {s(S_DOH)}")

    def cur_global(A):
        A(f"s_lshl_b32 {s(T)}, {s(S_L)}, 6")
        A(f"s_add_u32 {s(T)}, {s(T)}, {s(S_T)}")
        A(f"s_mul_i32 {s(S_KP)}, {s(T)}, {XG2_STEP}")
        A(f"s_add_u32 {s(S_KP)}, {s(S_KP)}, {s(S_XGH)}")
        A(f"s_lshl_b32 {s(T)}, {s(T)}, 10")
        A(f"s_add_u32 {s(S_KF)}, {s(T)}, {s(S_FXH)}")

    def kv_src(A, rl, rt):
        A(f"s_mul_i32 {s(S_KSRC)}, {s(rt)}, {QKV_SEG if not cfg.kvhit else 0}")
        A(f"s_add_u32 {s(S_KSRC)}, {s(S_KSRC)}, {s(S_HOFF)}")
        if cfg.lstride:
            A(f"s_mul_i32 {s(T)}, {s(rl)}, {cfg.lstride}")
            A(f"s_add_u32 {s(S_KSRC)}, {s(S_KSRC)}, {s(T)}")

    def flag_row_of(A, dst, rl, rt):
        A(f"s_lshl_b32 {s(dst)}, {s(rl)}, 6")
        A(f"s_add_u32 {s(dst)}, {s(dst)}, {s(rt)}")
        A(f"s_lshl_b32 {s(dst)}, {s(dst)}, 9")
        A(f"s_add_u32 {s(dst)}, {s(dst)}, {flag_row(F_K)}")

    def next_item(A, rl, rt):
        A(f"s_sub_u32 {s(T)}, {s(S_C0)}, {s(S_C1)}")
        A(f"s_cmp_gt_i32 {s(T)}, {LAG}")
        A(f"s_cselect_b32 {s(rl)}, 1, 0")
        A(f"s_cmp_eq_u32 {s(S_C0)}, 64")
        A(f"s_cselect_b32 {s(rl)}, 1, {s(rl)}")
        A(f"s_cmp_eq_u32 {s(rl)}, 0")
        A(f"s_cselect_b32 {s(rt)}, {s(S_C0)}, {s(S_C1)}")
        A(f"s_addc_u32 {s(S_C0)}, {s(S_C0)}, 0")
        A(f"s_add_u32 {s(S_C1)}, {s(S_C1)}, {s(rl)}")

    def kv_dma():
        out = []
        for i in range(24):
            e = []
            if i % 4 == 0:
                e += [f"s_add_u32 m0, {s(S_KLDS)}, {i * 1024}", f"s_add_u32 {s(T + 7)}, {s(S_KSRC)}, {(i % 12) * 1024 + (i // 12) * QKV_SZ}"]
            e.append(f"buffer_load_dwordx4 {v(V_L16)}, {WS}, {s(T + 7)} offen offset:{(i % 4) * 1024} {DF[cfg.dfl]}lds")
            out.append(e)
        return out

    def flag_spin(row):
        top = A.newlabel("fl")
        A.label(top)
        A(f"buffer_load_dword {v(V_T)}, {v(V_FLG)}, {WS}, {s(row)} offen sc1")
        A("s_waitcnt vmcnt(0)")
        A(f"v_cmp_eq_u32 vcc, 0, {v(V_T)}")
        poll_tail(A, top, sleep=1)

    S_PLW, S_DPW = 6, 7
    A(f"s_mul_i32 {s(S_PLW)}, {s(S_WAVE)}, 5120")
    A(f"s_add_u32 {s(S_PLW)}, {s(S_PLW)}, {s(S_XB)}")
    A(f"s_lshl_b32 {s(S_DPW)}, {s(S_WAVE)}, 7" if not cfg.pb else f"s_mov_b32 {s(S_DPW)}, 0")
    A(f"s_add_u32 {s(S_DPW)}, {s(S_DPW)}, {s(S_XB)}")
    A(f"s_add_u32 {s(S_DPW)}, {s(S_DPW)}, {DP_OFF}")
    A(f"v_add_u32 {v(V_L16B)}, 4096, {v(V_L16)}")
    A(f"s_mov_b32 {s(S_N)}, 0")
    A(f"s_mov_b32 {s(S_C0)}, 0")
    A(f"s_mov_b32 {s(S_C1)}, 0")
    A(f"s_mov_b32 {s(S_KP)}, {NONE}")
    A(f"s_mov_b32 {s(S_FP)}, {NONE}")
    A(f"s_mov_b32 {s(S_KF)}, {NONE}")
    next_item(A, S_L, S_T)
    fe_scalars(A, S_L, S_T, S_TAG, S_T1)
    stamp = mk_stamp(A, cfg, V_STAMP)
    A(f"s_cmp_lg_u32 {s(S_ISV)}, 0")
    A("s_cbranch_scc1 CV_START")

    order = [4, 0, 1, 2, 3]

    def pld(base, i, sa):
        return f"buffer_load_dwordx4 {v(base + 4 * i, 4)}, {v(V_L16 if i < 4 else V_L16B)}, {WS}, {s(sa)} offen offset:{(i % 4) * 1024} sc1"

    def front(L, ool, top, fast=None, poller=None):
        again, retry, join = A.newlabel("fa"), A.newlabel("fr"), A.newlabel("fj")
        A.label(top)
        if not fast:
            for i in range(24):
                A(f"v_mov_b32 {v(V_ACC + i)}, 0")
        if not cfg.pb:
            doorbell(A, cfg, V_DB, S_DPA, V_T)
        else:
            if poller == "w0":
                lab = A.newlabel("np")
                A(f"s_cmp_lg_u32 {s(S_WAVE)}, 0")
                A(f"s_cbranch_scc1 {lab}")
            if poller == "me":
                A(f"v_mov_b32 {v(V_T + 2)}, {s(S_N)}")
            if poller:
                doorbell(A, cfg, V_DB, S_DPA, V_T)
            if poller == "w0":
                A.label_nf(lab)
            if poller == "me":
                A(f"ds_write_b32 {v(V_RDY)}, {v(V_T + 2)}")
                for i in order:
                    A(pld(V_PL, i, S_PLA))
            A("s_barrier")
        stamp(0)
        if poller != "me":
            for i in order:
                A(pld(V_PL, i, S_PLA))
        if fast:
            A.nf(f"s_cbranch_vccz {fast}")
            for i in range(24):
                A(f"v_mov_b32 {v(V_ACC + i)}, 0")
        A(f"s_waitcnt vmcnt({cfg.rw})")
        for i in order:
            A(pld(V_PR, i, S_PXA))
        A.label_nf(join)
        stamp(7)
        A.label_nf(again)
        TA = V_T + 4
        for n, i in enumerate(order):
            A(f"s_waitcnt vmcnt({4 - n})")
            A(f"v_pk_add_f32 {v(V_T, 2)}, {v(V_PL + 4 * i, 2)}, {v(V_PR + 4 * i, 2)}")
            A(f"v_pk_add_f32 {v(V_T + 2, 2)}, {v(V_PL + 4 * i + 2, 2)}, {v(V_PR + 4 * i + 2, 2)}")
            A(f"v_bitop3_b32 {v(TA + (1 if n else 0))}, {v(V_PL + 4 * i)}, {v(V_PR + 4 * i)}, {s(S_TAG)} bitop3:0x7e")
            A(f"v_cvt_pk_bf16_f32 {v(V_F + 2 * i)}, {v(V_T)}, {v(V_T + 1)}")
            A(f"v_cvt_pk_bf16_f32 {v(V_F + 2 * i + 1)}, {v(V_T + 2)}, {v(V_T + 3)}")
            if n == 4:
                A(f"v_bitop3_b32 {v(TA)}, {v(TA)}, {v(TA + 1)}, 1 bitop3:0xa8")
            elif n:
                A(f"v_or_b32 {v(TA)}, {v(TA)}, {v(TA + 1)}")
            if n == 4:
                A(f"v_cmp_ne_u32 vcc, 0, {v(TA)}")
            if i == 4:
                A(f"ds_write_b64 {v(V_MW2)}, {v(V_F + 8, 2)}")
            elif i & 1:
                A(f"ds_write_b128 {v(V_MW)}, {v(V_F + 4 * (i >> 1), 4)} offset:{(i >> 1) * 1024}")
        A.nf(f"s_cbranch_vccnz {retry}")
        L.q = ["mw"]
        stamp(1)

        def slow():
            A.label(retry)
            sk = A.newlabel("sk")
            A(f"v_bitop3_b32 {v(V_T)}, {v(V_PL)}, {v(V_PL + 4)}, {s(S_TAG)} bitop3:0x7e")
            A(f"v_bitop3_b32 {v(V_T + 1)}, {v(V_PL + 8)}, {v(V_PL + 12)}, {s(S_TAG)} bitop3:0x7e")
            A(f"v_xor_b32 {v(V_T + 2)}, {s(S_TAG)}, {v(V_PL + 16)}")
            A(f"v_or3_b32 {v(V_T)}, {v(V_T)}, {v(V_T + 1)}, {v(V_T + 2)}")
            A(f"v_and_b32 {v(V_T)}, 1, {v(V_T)}")
            A(f"v_cmp_ne_u32 vcc, 0, {v(V_T)}")
            A.nf(f"s_cbranch_vccz {sk}")
            for i in order:
                A(pld(V_PL, i, S_PLA))
            if cfg.timing == 5:
                A("s_add_u32 s93, s93, 1")
            A.label_nf(sk)
            for i in order:
                A(pld(V_PR, i, S_PXA))
            if cfg.timing == 5:
                A("s_add_u32 s92, s92, 1")
            spin_fail(A)
            A("s_waitcnt lgkmcnt(0)")
            A(f"s_branch {again}")
            if fast:
                A.label(fast)
                for i in order:
                    A(pld(V_PR, i, S_PXA))
                for i in range(24):
                    A(f"v_mov_b32 {v(V_ACC + i)}, 0")
                A(f"s_branch {join}")
        ool.append(slow)

    def afrag(sl):
        return v(V_F + 4 * sl, 4) if sl < 2 else v(V_A + 4 * ((sl - 2) % 3), 4)

    def gemm(L, tasks, tail_order, hi=()):
        sq = [(0, t_) for t_ in range(5)] + [(1, t_) for t_ in range(5)] + [(0, 5), (1, 5)]
        sq += [(sl, t_) for sl in range(2, 8) for t_ in range(6)]
        sq += tail_order

        def rdB(sl):
            return [(("B", sl), f"ds_read_b128 {v(V_B + 8 * (sl & 1) + 4 * hf, 4)}, {v(V_BW)} offset:{sl * 2048 + hf * 1024}") for hf in range(2)]

        def rdA(sl):
            ad = V_GB + sl // 2 - 1 if sl < 8 else V_G4
            return [(("A", sl), f"ds_read_b128 {afrag(sl)}, {v(ad)} offset:{(sl & 1) * 1024}")]
        seq = []
        rd = [Task(cfg.bar1, rdA(2)), Task(0, rdB(0) + rdB(1)), Task(cfg.bar1, rdA(3) + rdA(4))]
        for k, (sl, t_) in enumerate(sq):
            seq.append((f"{SM} {v(V_ACC + 4 * t_, 4)}, {afrag(sl)}, {wtxt(sl, t_)}, {v(V_IDX)}", [("A", sl)] + ([("B", sl)] if t_ == 5 else [])))
            if t_ == 5 and sl + 2 < 10:
                rd.append(Task(k, (rdA(sl + 3) if 2 <= sl < 7 else []) + rdB(sl + 2)))

        def bar():
            L.wait("mw")
            A("s_barrier")
            stamp(5)
        sched(A, L, seq, list(hi) + rd + list(tasks), pre={cfg.bar1: bar})
        stamp(6)

    def pend_window(stores):
        def f1():
            lab = A.newlabel("pf")
            A(f"s_cmp_eq_u32 {s(S_FP)}, {NONE}")
            A.nf(f"s_cbranch_scc1 {lab}")
            flag_val(A, cfg, V_T + 5)
            A("s_mov_b64 exec, 1")
            A(f"buffer_store_dword {v(V_T + 5)}, {v(V_L16)}, {WS}, {s(S_FP)} offen sc1")
            A("s_mov_b64 exec, -1")
            A(f"s_mov_b32 {s(S_FP)}, {NONE}")
            A.label_nf(lab)

        def f2():
            lab = A.newlabel("pk")
            A(f"s_cmp_eq_u32 {s(S_KP)}, {NONE}")
            A.nf(f"s_cbranch_scc1 {lab}")
            for x in stores:
                A(x)
            A(f"s_mov_b32 {s(S_FP)}, {s(S_KF)}")
            A(f"s_mov_b32 {s(S_KP)}, {NONE}")
            A.label_nf(lab)
        return f1, f2

    def advance():
        A(f"s_add_u32 {s(S_N)}, {s(S_N)}, 1")
        A(f"s_mov_b32 {s(S_L)}, {s(S_NL)}")
        A(f"s_mov_b32 {s(S_T)}, {s(S_NT)}")
        A(f"s_mov_b32 {s(S_TAG)}, {s(S_NTAG)}")
        A(f"s_mov_b32 {s(S_T1)}, {s(S_NT1)}")

    def qk_epi(L):
        def items(p):
            q, k = V_ACC + 4 * p, V_ACC + 4 * (3 + p)
            return [f"v_add_f32 {v(q)}, {v(q)}, {v(q + 1)}", f"v_add_f32 {v(q + 2)}, {v(q + 2)}, {v(q + 3)}",
                    f"v_add_f32 {v(k)}, {v(k)}, {v(k + 1)}", f"v_add_f32 {v(k + 2)}, {v(k + 2)}, {v(k + 3)}",
                    f"v_cvt_pk_bf16_f32 {v(k + 1)}, {v(q)}, {v(q + 2)}", f"v_cvt_pk_bf16_f32 {v(k)}, {v(k)}, {v(k + 2)}",
                    ("xw", f"ds_write_b64 {v(V_XW)}, {v(k, 2)} offset:{p * 512}")]
        return [Task(53, items(0)), Task(60, items(1)), Task(60, items(2))]
    qk_tail = []
    for p in range(3):
        qk_tail += [(8, p), (8, 3 + p), (9, p), (9, 3 + p)]

    if cfg.timing == 5:
        for k in range(5):
            A(f"s_mov_b32 {s(92 + k)}, 0")
    A(f"s_cmp_eq_u32 {s(S_WAVE)}, 3")
    A("s_cbranch_scc1 CH_START")
    A(f"s_lshl_b32 {s(T)}, {s(S_WAVE)}, 2")
    A(f"s_add_u32 {s(T)}, {s(T)}, {L_SY}")
    A(f"v_mov_b32 {v(V_SY)}, {s(T)}")
    A(f"v_mov_b32 {v(V_T)}, 0")
    A(f"ds_write_b32 {v(V_SY)}, {v(V_T)}")
    A(f"v_add_u32 {v(V_KA)}, {L_KV + 24576}, {v(V_L16)}")
    A(f"v_mov_b32 {v(V_FLG)}, {L_SY + 12}")
    A(f"s_lshl_b32 {s(S_XGH)}, {s(S_WAVE)}, 12")
    A(f"s_add_u32 {s(S_HOFF)}, {s(S_HOFF)}, {s(S_XGH)}")
    A(f"s_add_u32 {s(S_KLDS)}, {s(S_XGH)}, {L_KV}")
    A(f"s_add_u32 {s(S_FLG1)}, {s(S_KLDS)}, {s(S_KLDS)}")
    A(f"s_add_u32 {s(S_FLG1)}, {s(S_FLG1)}, 24576")
    A("s_mov_b64 vcc, -1")
    A("s_waitcnt lgkmcnt(0)")
    if cfg.timing:
        A(f"s_memrealtime {s(S_T0, 2)}")
        if cfg.timing == 6:
            A("s_memtime s[92:93]")
        A("s_waitcnt lgkmcnt(0)")
    stamp.init()
    KXR = [V_FREE + 4 * i for i in range(6)] + [V_F, V_F + 4] + [V_B + 4 * i for i in range(4)]
    QP = "row_mask:0xf bank_mask:0xf"

    def s_loop(sx, LS):
        L = Lds(A)
        ool = []
        front(L, ool, "CS_LOOP" + sx, "CS_FAST" + sx)
        fill = [f"v_xor_b32 {v(V_KA)}, {L_KV ^ (L_KV + 24576)}, {v(V_KA)}"]
        fill += groups(cap(lambda c: next_item(c, S_NL, S_NT)))
        if cfg.dsh and not cfg.nodma:
            fill += cap(lambda c: kv_src(c, S_NL, S_NT)) + [f"s_sub_u32 {s(S_KLDS)}, {s(S_FLG1)}, {s(S_KLDS)}", f"s_mov_b32 m0, {s(S_KLDS)}"]
            fill += cap(lambda c: cur_local(c, False))
            fill += [f"buffer_load_dwordx4 {v(V_L16)}, {WS}, {s(S_KSRC)} offen offset:{i * 1024} {DF[cfg.dfl]}lds" for i in range(4)]
        else:
            fill += cap(lambda c: cur_local(c, False))
        fill += cap(lambda c: fe_scalars(c, S_NL, S_NT, S_NTAG, S_NT1))
        fill += [f"v_add_u32 {v(V_T + 5)}, {s(S_XGH)}, {v(V_KA)}", f"v_mov_b32 {v(V_T + 4)}, {s(S_T1)}", f"v_mov_b32 {v(V_T + 3)}, 0"]

        def rdK(i):
            return (("K", i), f"ds_read_b128 {v(KXR[i], 4)}, {v(V_KA)} offset:{i * 1024}")
        epi = qk_epi(L)
        gemm(L, [Task(0, fill), Task(14, [rdK(i) for i in range(8)])] + epi[1:], qk_tail, hi=epi[:1])
        skip = A.newlabel("last")
        A(f"s_cmp_eq_u32 {s(S_T)}, 63")
        A.nf(f"s_cbranch_scc1 {skip}")
        L.op(*rdK(8))
        L.op(*rdK(9))
        L.wait("xw")
        A("s_barrier")
        stamp(2)
        X = V_ACC
        S0, S1, SMm = V_A, V_A + 4, V_A + 8
        VX, VM = V_FREE, V_FREE + 16
        PA, PB, PM, TT, O = 24, 28, 32, 34, 36
        DBV = V_FV

        def rdX(j):
            return [(("X", j), f"ds_read_b64_tr_b16 {v(X + 4 * j + 2 * ih, 2)}, {v(V_XR)} offset:{j * 1024 + ih * 512}") for ih in range(2)]
        for j in range(4):
            for it in rdX(j):
                L.op(*it)
        vmld = f"buffer_load_dwordx4 {v(VM, 4)}, {v(V_L16)}, {WS}, {s(S_VMA)} offen sc1"
        dbld = f"buffer_load_dword {v(DBV)}, {v(V_DB)}, {WS}, {s(S_DPA)} offen sc1"
        ring = f"s_mov_b64 exec, 1\nbuffer_store_dword {v(V_T + 4)}, {v(V_L16)}, {WS}, {s(S_DOA)} offen{LS}\ns_mov_b64 exec, -1"
        nst = [0]

        def do_vm():
            A(vmld)
            nst[0] = 0

        def do_ring():
            A(ring)
            nst[0] += 1
        seq = []
        for j in range(6):
            for acc, aop, tg in ((S0, KXR[2 * j], ("K", 2 * j)), (S1, KXR[2 * j + 1], ("K", 2 * j + 1)), (SMm, X + 4 * j, ("X", j))):
                seq.append((f"{MF} {v(acc, 4)}, {v(aop, 4)}, {v(X + 4 * j, 4)}, {'0' if j == 0 else v(acc, 4)}", [("X", j), tg]))
        tk = [Task(0, rdX(4) + [rdK(10), rdK(11)] + rdX(5)),
              Task(6, [("vx", f"ds_read_b128 {v(VX + 4 * i, 4)}, {v(V_T + 5)} offset:{12288 + i * 1024}") for i in range(4)]),
              Task(0, [f"s_mov_b64 vcc, {s(S_MA, 2)}"])]
        if cfg.vmj < 18:
            tk.append(Task(max(cfg.vmj, 9), [(16, do_vm)]))
        if cfg.dbo < 18:
            tk.append(Task(cfg.dbo, [(16, do_ring)]))
        sched(A, L, seq, tk, nvalu=2)

        def mark(k):
            if cfg.vmj == 18 + k:
                do_vm()
            if cfg.dbo == 18 + k:
                do_ring()
        mark(0)
        Y = [S0 + i for i in range(4)]
        Z = SMm
        ZR, ZERO = V_T + 2, V_T + 3
        for i in range(4):
            A(f"v_cndmask_b32_dpp {v(Y[i])}, {v(S1 + i)}, {v(S0 + i)}, vcc quad_perm:[2,3,2,3] {QP}")
        A(f"v_max3_f32 {v(V_T)}, {v(Y[0])}, {v(Y[1])}, {v(Y[2])}")
        A(f"v_cndmask_b32_dpp {v(Z)}, {v(SMm + 1)}, {v(SMm)}, vcc quad_perm:[2,3,2,3] {QP}")
        A(f"v_max3_f32 {v(V_T)}, {v(V_T)}, {v(Y[3])}, {v(Z)}")
        mark(1)
        A(f"v_max_f32_dpp {v(V_T + 1)}, {v(V_T)}, {v(V_T)} quad_perm:[2,3,0,1] {QP}")
        A(f"v_max_f32_dpp {v(V_T)}, {v(V_T)}, {v(V_T)} quad_perm:[2,3,0,1] {QP}")
        A(f"v_permlane32_swap_b32 {v(V_T)}, {v(V_T + 1)}")
        A(f"v_max_f32 {v(S1)}, {v(V_T)}, {v(V_T + 1)}")
        A(f"v_max_f32 {v(V_T)}, {v(V_T)}, {v(V_T + 1)}")
        mark(2)
        A(f"v_permlane16_swap_b32 {v(V_T)}, {v(S1)}")
        A(f"v_max_f32 {v(V_T)}, {v(V_T)}, {v(S1)}")
        A(f"v_mul_f32 {v(V_T)}, {s(S_CS)}, {v(V_T)}")
        S5 = Y + [Z]
        for r in S5:
            A(f"v_fma_f32 {v(r)}, {v(r)}, {s(S_CS)}, -{v(V_T)}")
        for r in S5:
            A(f"v_exp_f32 {v(r)}, {v(r)}")
        mark(3)
        A(f"v_cvt_pk_bf16_f32 {v(TT)}, {v(Y[0])}, {v(Y[1])}")
        A(f"v_cvt_pk_bf16_f32 {v(TT + 1)}, {v(Y[2])}, {v(Y[3])}")
        A(f"v_cndmask_b32 {v(PB + 2)}, {v(TT)}, {v(ZERO)}, vcc")
        A(f"v_cndmask_b32 {v(PB + 3)}, {v(TT + 1)}, {v(ZERO)}, vcc")
        A(f"v_cndmask_b32_dpp {v(PB)}, {v(TT)}, {v(ZERO)}, vcc quad_perm:[2,3,0,1] {QP}")
        A(f"v_cndmask_b32_dpp {v(PB + 1)}, {v(TT + 1)}, {v(ZERO)}, vcc quad_perm:[2,3,0,1] {QP}")
        A(f"s_mov_b64 vcc, {s(S_MB, 2)}")
        L.wait("vx")
        A(f"v_cndmask_b32 {v(PA)}, {v(TT)}, {v(ZERO)}, vcc")
        A(f"{MF} {v(O, 4)}, {v(VX + 4, 4)}, {v(PB, 4)}, 0")
        A(f"v_cndmask_b32 {v(PA + 1)}, {v(TT + 1)}, {v(ZERO)}, vcc")
        A(f"v_cndmask_b32_dpp {v(PA + 2)}, {v(TT)}, {v(ZERO)}, vcc quad_perm:[2,3,0,1] {QP}")
        A(f"{MF} {v(O + 4, 4)}, {v(VX + 12, 4)}, {v(PB, 4)}, 0")
        A(f"v_cndmask_b32_dpp {v(PA + 3)}, {v(TT + 1)}, {v(ZERO)}, vcc quad_perm:[2,3,0,1] {QP}")
        A(f"v_mov_b32_dpp {v(ZR)}, {v(Z)} quad_perm:[2,3,0,1] {QP}")
        A(f"v_add_f32 {v(V_T)}, {v(Y[0])}, {v(Y[1])}")
        A(f"{MF} {v(O, 4)}, {v(VX, 4)}, {v(PA, 4)}, {v(O, 4)}")
        A(f"v_cvt_pk_bf16_f32 {v(PM)}, {v(Z)}, {v(ZR)}")
        A(f"v_cvt_pk_bf16_f32 {v(PM + 1)}, {v(ZR)}, {v(Z)}")
        A(f"{MF} {v(O + 4, 4)}, {v(VX + 8, 4)}, {v(PA, 4)}, {v(O + 4, 4)}")
        A(f"v_cndmask_b32 {v(PM)}, {v(PM)}, {v(ZERO)}, vcc")
        A(f"v_cndmask_b32 {v(PM + 1)}, {v(ZERO)}, {v(PM + 1)}, vcc")
        mark(4)
        A(f"ds_read_b32 {v(DBV)}, {v(V_FLG)}")
        bad, ok = A.newlabel("vb"), A.newlabel("vo")
        A(f"s_waitcnt vmcnt({nst[0]})")
        A(f"v_bitop3_b32 {v(V_T + 5)}, {v(VM)}, {v(VM + 2)}, {s(S_TAG)} bitop3:0x7e")
        A(f"v_add_f32 {v(V_T + 1)}, {v(Y[2])}, {v(Y[3])}")
        A(f"v_and_b32 {v(V_T + 5)}, 1, {v(V_T + 5)}")
        A(f"v_add_f32 {v(V_T)}, {v(V_T)}, {v(Z)}")
        A(f"v_cmp_ne_u32 vcc, 0, {v(V_T + 5)}")
        A(f"v_add_f32 {v(V_T)}, {v(V_T)}, {v(V_T + 1)}")
        A.nf(f"s_cbranch_vccnz {bad}")
        A.label_nf(ok)

        def vslow():
            A.label(bad)
            spin_fail(A)
            if cfg.timing == 5:
                A("s_add_u32 s94, s94, 1")
            A(vmld)
            A("s_waitcnt vmcnt(0)")
            A(f"v_bitop3_b32 {v(V_T + 5)}, {v(VM)}, {v(VM + 2)}, {s(S_TAG)} bitop3:0x7e")
            A(f"v_and_b32 {v(V_T + 5)}, 1, {v(V_T + 5)}")
            A(f"v_cmp_ne_u32 vcc, 0, {v(V_T + 5)}")
            A(f"s_cbranch_vccnz {bad}")
            A(f"s_branch {ok}")
        ool.append(vslow)
        A(f"v_mfma_f32_16x16x16_bf16 {v(O, 4)}, {v(VM, 2)}, {v(PM, 2)}, {v(O, 4)}")
        A(f"v_add_f32_dpp {v(V_T + 1)}, {v(V_T)}, {v(V_T)} quad_perm:[2,3,0,1] {QP}")
        A(f"v_add_f32_dpp {v(V_T)}, {v(V_T)}, {v(V_T)} quad_perm:[2,3,0,1] {QP}")
        A(f"v_mfma_f32_16x16x16_bf16 {v(O + 4, 4)}, {v(VM + 2, 2)}, {v(PM, 2)}, {v(O + 4, 4)}")
        A(f"v_permlane32_swap_b32 {v(V_T)}, {v(V_T + 1)}")
        A(f"v_add_f32 {v(S1)}, {v(V_T)}, {v(V_T + 1)}")
        A(f"v_add_f32 {v(V_T)}, {v(V_T)}, {v(V_T + 1)}")
        A(f"s_add_u32 {s(S_N)}, {s(S_N)}, 1")
        A(f"s_mov_b32 {s(S_L)}, {s(S_NL)}")
        A(f"v_permlane16_swap_b32 {v(V_T)}, {v(S1)}")
        A(f"v_add_f32 {v(V_T)}, {v(V_T)}, {v(S1)}")
        A(f"v_rcp_f32 {v(V_T)}, {v(V_T)}")
        A(f"s_mov_b32 {s(S_T)}, {s(S_NT)}")
        for i in range(0, 8, 2):
            A(f"v_pk_mul_f32 {v(O + i, 2)}, {v(O + i, 2)}, {v(V_T, 2)} op_sel_hi:[1,0]")
        OP = V_F
        for i in range(4):
            A(f"v_cvt_pk_bf16_f32 {v(OP + i)}, {v(O + 2 * i)}, {v(O + 2 * i + 1)}")
        A(f"v_and_or_b32 {v(OP)}, {v(OP)}, -2, {s(S_TAG)}")
        A(f"buffer_store_dwordx4 {v(OP, 4)}, {v(V_OST)}, {WS}, {s(S_OIA)} offen{LS}")
        mark(5)
        stamp(3)
        if cfg.timing == 3:
            A(f"s_sub_u32 {s(S_N)}, {s(S_N)}, 1")
            stamp(4)
            stamp.flush()
            A(f"s_add_u32 {s(S_N)}, {s(S_N)}, 1")
        A(f"s_mov_b32 {s(S_TAG)}, {s(S_NTAG)}")
        A(f"s_mov_b32 {s(S_T1)}, {s(S_NT1)}")
        A("s_waitcnt lgkmcnt(0)")
        A(f"v_cmp_ne_u32 vcc, {s(S_N)}, {v(DBV)}")
        A(f"v_mov_b32 {v(V_T)}, {s(S_N)}")
        A(f"ds_write_b32 {v(V_SY)}, {v(V_T)}")
        A.nf(f"s_branch CS_LOOP{sx}")
        A.label(skip)
        A("s_waitcnt lgkmcnt(0)")
        A("s_barrier")
        advance()
        A("s_mov_b64 vcc, -1")
        A("s_waitcnt vmcnt(0)")
        A(f"v_mov_b32 {v(V_T)}, {s(S_N)}")
        A(f"ds_write_b32 {v(V_SY)}, {v(V_T)}")
        A(f"s_cmp_lt_u32 {s(S_N)}, 128")
        A(f"s_cbranch_scc1 CS_LOOP{sx}")
        A("s_branch CS_DONE")
        for f in ool:
            f()

    A(f"s_cmp_lg_u32 {s(S_MODE)}, 0")
    A("s_cbranch_scc1 CS_LOOP_S")
    s_loop("_F", "")
    s_loop("_S", " sc1")

    A.label("CH_START")
    next_item(A, S_NL, S_NT)
    next_item(A, S_L2, S_T2)
    A(f"s_mov_b32 {s(S_KLDS)}, {L_KV}")
    kv_src(A, S_L, S_T)
    flag_row_of(A, S_FLG1, S_L, S_T)
    flag_spin(S_FLG1)
    for e in kv_dma():
        for x in e:
            A(x)
    A(f"s_mov_b32 {s(S_KLDS)}, {L_KV + 24576}")
    kv_src(A, S_NL, S_NT)
    flag_row_of(A, S_FLG1, S_NL, S_NT)
    flag_row_of(A, S_FLG2, S_L2, S_T2)
    A(f"s_mov_b32 {s(S_DEF)}, 1")
    A(f"v_min_u32 {v(V_SY3)}, 2, {v(V_LANE)}")
    A(f"v_lshlrev_b32 {v(V_SY3)}, 2, {v(V_SY3)}")
    A(f"v_add_u32 {v(V_SY3)}, {L_SY}, {v(V_SY3)}")
    A(f"v_mov_b32 {v(V_RDY)}, {L_SY + 12}")
    stamp.init()
    L = Lds(A)
    ool = []
    front(L, ool, "CH_LOOP", poller="me")
    kstore = [f"buffer_store_dwordx4 {v(V_KEEP + 4 * i, 4)}, {v(V_KST)}, {WS}, {s(S_KP)} offen offset:{i * 1024} sc1" for i in range(3)]
    f1, f2 = pend_window(kstore)
    dm = kv_dma()[12 if cfg.dsh else 0:] if not cfg.nodma else []
    flat = lambda l_: [x for e in l_ for x in (["\n".join(e[:-1])] if len(e) > 1 else []) + [e[-1]]]
    epi = qk_epi(L)
    fl = f"buffer_load_dword {v(V_FV)}, {v(V_FLG)}, {WS}, {s(S_FLG2)} offen sc1"
    gemm(L, [Task(cfg.dma0, [(24, f1), (40, f2), fl]), Task(cfg.dma1, flat(dm[:cfg.ngem]))] + epi[1:], qk_tail, hi=epi[:1])
    L.wait("xw")
    A("s_barrier")
    stamp(2)
    for e in dm[cfg.ngem:]:
        for x in e:
            A(x)
    for j in range(6):
        for ih in range(2):
            A(f"ds_read_b64_tr_b16 {v(V_ACC + 4 * j + 2 * ih, 2)}, {v(V_XR)} offset:{j * 1024 + ih * 512}")
    cur_global(A)
    fe_scalars(A, S_NL, S_NT, S_NTAG, S_NT1)
    A(f"s_mov_b64 vcc, {s(S_MB, 2)}")
    A("s_waitcnt lgkmcnt(0)")
    for jp in range(3):
        for i in range(4):
            A(f"v_cndmask_b32_dpp {v(V_KEEP + 4 * jp + i)}, {v(V_ACC + 8 * jp + 4 + i)}, {v(V_ACC + 8 * jp + i)}, vcc quad_perm:[0,1,0,1] {QP}")
    nxt, nodef, sp = A.newlabel("nx"), A.newlabel("nd"), A.newlabel("sp")
    A(f"s_cmp_ge_u32 {s(S_NT)}, 63")
    A(f"s_cselect_b32 {s(S_DEF)}, 0, {s(S_DEF)}")
    A(f"s_cmp_eq_u32 {s(S_NL)}, {s(S_L)}")
    A(f"s_cselect_b32 {s(T)}, 1, {s(S_DEF)}")
    A(f"s_cmp_eq_u32 {s(T)}, 0")
    A(f"s_cbranch_scc1 {nodef}")
    A.label(sp)
    A(f"ds_read_b32 {v(V_T)}, {v(V_SY3)}")
    A("s_waitcnt lgkmcnt(0)")
    A(f"v_cmp_ge_u32 vcc, {s(S_N)}, {v(V_T)}")
    poll_tail(A, sp, sleep=1)
    A("s_waitcnt vmcnt(0)")
    f1()
    f2()
    A("s_waitcnt vmcnt(0)")
    f1()
    A.label(nxt)
    A(f"s_cmp_eq_u32 {s(S_DEF)}, 0")
    A(f"s_cbranch_scc1 {nodef}")
    flag_spin(S_FLG1)
    for e in kv_dma():
        for x in e:
            A(x)
    A.label(nodef)
    stamp(4)
    stamp.flush()
    advance()
    A(f"s_mov_b32 {s(S_NL)}, {s(S_L2)}")
    A(f"s_mov_b32 {s(S_NT)}, {s(S_T2)}")
    A(f"s_mov_b32 {s(S_FLG1)}, {s(S_FLG2)}")
    next_item(A, S_L2, S_T2)
    flag_row_of(A, S_FLG2, S_L2, S_T2)
    kv_src(A, S_NL, S_NT)
    A(f"s_xor_b32 {s(S_KLDS)}, {s(S_KLDS)}, {L_KV ^ (L_KV + 24576)}")
    A("s_waitcnt vmcnt(0)")
    A(f"v_cmp_eq_u32 vcc, 0, {v(V_FV)}")
    A(f"s_cmp_lg_u64 vcc, 0")
    A(f"s_cselect_b32 {s(S_DEF)}, 1, 0")
    A(f"s_cmp_lt_u32 {s(S_N)}, 128")
    A(f"s_cbranch_scc1 CH_LOOP")
    A("s_branch CS_DONE")
    for f in ool:
        f()
    A.label("CS_DONE")
    if cfg.timing == 5:
        retry_dump(A, 0)
    timing_end(A, cfg, stamp, 0)

    A.label("CV_START")
    if cfg.timing == 5:
        for k in range(5):
            A(f"s_mov_b32 {s(92 + k)}, 0")
    stamp.init()

    def v_loop(sx, LS, u):
        L = Lds(A)
        ool = []
        front(L, ool, "CV_LOOP" + sx, poller=None if u else "w0")
        PK = V_KEEP
        x4, x2 = (PK + 2, PK) if u else (PK, PK + 4)
        xst = [f"buffer_store_dwordx4 {v(x4, 4)}, {v(V_VS0)}, {WS}, {s(S_KP)} offen sc1",
               f"buffer_store_dwordx2 {v(x2, 2)}, {v(V_VS1)}, {WS}, {s(S_KP)} offen sc1"]
        f1, f2 = pend_window(xst)
        tail = []
        for p in range(3):
            tail += [(8, 2 * p), (8, 2 * p + 1), (9, 2 * p), (9, 2 * p + 1)]

        def items(p):
            q, k = V_ACC + 8 * p, V_ACC + 8 * p + 4
            r = [f"v_add_f32 {v(q)}, {v(q)}, {v(q + 1)}", f"v_add_f32 {v(q + 2)}, {v(q + 2)}, {v(q + 3)}",
                 f"v_add_f32 {v(k)}, {v(k)}, {v(k + 1)}", f"v_add_f32 {v(k + 2)}, {v(k + 2)}, {v(k + 3)}",
                 f"v_cvt_pk_bf16_f32 {v(PK + 2 * p)}, {v(q)}, {v(q + 2)}", f"v_cvt_pk_bf16_f32 {v(PK + 2 * p + 1)}, {v(k)}, {v(k + 2)}",
                 f"v_and_or_b32 {v(PK + 2 * p)}, {v(PK + 2 * p)}, -2, {s(S_TAG)}"]
            if p == (2, 0)[u]:
                r.append(f"buffer_store_dwordx2 {v(x2, 2)}, {v(V_VS1)}, {WS}, {s(S_VMA)} offen{LS}")
            if p == (1, 2)[u]:
                r.append(f"buffer_store_dwordx4 {v(x4, 4)}, {v(V_VS0)}, {WS}, {s(S_VMA)} offen{LS}")
            return r
        gemm(L, [Task(cfg.dma0, [(24, f1), (32, f2)]), Task(0, cap(lambda c: cur_local(c, True))), Task(60, items(1)), Task(60, items(2))], tail, hi=[Task(53, items(0))])
        stamp(2)
        if not cfg.pb:
            A("s_barrier")
        cur_global(A)
        next_item(A, S_NL, S_NT)
        fe_scalars(A, S_NL, S_NT, S_NTAG, S_NT1)
        nxt = A.newlabel("nx")
        A(f"s_cmp_lg_u32 {s(S_NL)}, {s(S_L)}")
        A(f"s_cbranch_scc1 {nxt}")
        A("s_waitcnt vmcnt(0)")
        f1()
        f2()
        A("s_waitcnt vmcnt(0)")
        f1()
        A.label(nxt)
        stamp.flush()
        advance()
        A(f"s_cmp_lt_u32 {s(S_N)}, 128")
        A(f"s_cbranch_scc1 CV_LOOP{sx}")
        A("s_branch CV_DONE")
        for f in ool:
            f()

    A(f"s_and_b32 {s(T)}, {s(S_WAVE)}, 1")
    A(f"s_lshl1_add_u32 {s(T)}, {s(S_MODE)}, {s(T)}")
    for k, sx in ((1, "_F1"), (2, "_S0"), (3, "_S1")):
        A(f"s_cmp_eq_u32 {s(T)}, {k}")
        A(f"s_cbranch_scc1 CV_LOOP{sx}")
    v_loop("_F0", "", 0)
    v_loop("_F1", "", 1)
    v_loop("_S0", " sc1", 0)
    v_loop("_S1", " sc1", 1)
    A.label("CV_DONE")
    if cfg.timing == 5:
        retry_dump(A, 32)
    timing_end(A, cfg, stamp, 32)


def gen_cw(A, cfg, nwg):
    LAG = cfg.LAG
    V_DB, V_BW, V_RW0, V_RR0, V_RW, V_RR, V_PS = 3, 4, 5, 6, 7, 8, 9
    V_STAMP = 19
    V_O = 32
    V_ACC = 80
    V_B = 100
    L_RB = 98304
    RBS = 4 * 8 * 352
    S_PLH, S_PXH, S_DPH, S_M40 = S_HOFF, S_PXR, S_XGH, S_MA

    def wreg(f, p):
        idx = f * 4 + p
        return ("a", idx * 8) if idx < 32 else ("v", 128 + (idx - 32) * 8)

    def wtxt(f, p):
        if p == 4:
            return v(V_B + 8 * (f & 1), 8)
        k, r = wreg(f, p)
        return a(r, 8) if k == "a" else v(r, 8)

    A.label("ROLE_CW")
    common_setup(A, cfg, 3)
    g_, c_ = V_T + 2, V_T + 3
    A(f"v_lshrrev_b32 {v(g_)}, 4, {v(V_LANE)}")
    A(f"v_and_b32 {v(c_)}, 15, {v(V_LANE)}")
    A(f"v_min_u32 {v(V_DB)}, 11, {v(c_ if cfg.pw else V_LANE)}")
    A(f"v_lshlrev_b32 {v(V_DB)}, 2, {v(V_DB)}")
    if cfg.pw:
        A(f"v_lshl_add_u32 {v(V_DB)}, {v(g_)}, 7, {v(V_DB)}")
    A(f"s_mul_i32 {s(T)}, {s(S_WAVE)}, 24576")
    A(f"v_add_u32 {v(V_BW)}, {s(T)}, {v(V_L16)}")
    A(f"v_mul_u32_u24 {v(V_RW0)}, 704, {v(g_)}")
    A(f"v_lshl_add_u32 {v(V_RW0)}, {v(c_)}, 2, {v(V_RW0)}")
    A(f"s_mul_i32 {s(T)}, {s(S_WAVE)}, 2816")
    A(f"s_add_u32 {s(T)}, {s(T)}, {L_RB}")
    A(f"v_add_u32 {v(V_RW0)}, {s(T)}, {v(V_RW0)}")
    A(f"v_min_u32 {v(V_T)}, 39, {v(V_LANE)}")
    A(f"s_mul_i32 {s(T)}, {s(S_WAVE)}, 40")
    A(f"v_add_u32 {v(V_T)}, {s(T)}, {v(V_T)}")
    A(f"v_lshlrev_b32 {v(V_PS)}, 4, {v(V_T)}")
    A(f"v_bfe_u32 {v(V_T + 1)}, {v(V_T)}, 1, 3")
    A(f"v_mul_u32_u24 {v(V_RR0)}, 352, {v(V_T + 1)}")
    A(f"v_mul_u32_u24 {v(V_T + 5)}, 1280, {v(V_T + 1)}")
    A(f"v_lshrrev_b32 {v(V_T + 1)}, 4, {v(V_T)}")
    A(f"v_lshl_add_u32 {v(V_RR0)}, {v(V_T + 1)}, 5, {v(V_RR0)}")
    A(f"v_lshl_add_u32 {v(V_T + 5)}, {v(V_T + 1)}, 4, {v(V_T + 5)}")
    A(f"v_and_b32 {v(V_T + 1)}, 1, {v(V_T)}")
    A(f"v_lshl_add_u32 {v(V_RR0)}, {v(V_T + 1)}, 4, {v(V_RR0)}")
    A(f"v_lshl_add_u32 {v(V_T + 5)}, {v(V_T + 1)}, 3, {v(V_T + 5)}")
    A(f"v_add_u32 {v(V_RR0)}, {L_RB}, {v(V_RR0)}")
    A(f"s_mov_b32 {s(S_M40)}, -1")
    A(f"s_mov_b32 {s(S_M40 + 1)}, 0xff")
    make_srd(A, SRD_W, P_MEM0, 10240)
    A(f"s_mul_i32 {s(T)}, {s(S_J)}, 160")
    A(f"buffer_load_dwordx2 {v(V_O, 2)}, {v(V_T + 5)}, {s(SRD_W, 4)}, {s(T)} offen")
    A(f"s_mul_i32 {s(S_PLH)}, {s(S_J)}, 2560")
    A(f"s_add_u32 {s(S_PLH)}, {s(S_PLH)}, {s(S_XB)}")
    A(f"s_lshl_b32 {s(S_PXH)}, {s(S_X)}, 19")
    A(f"s_lshr_b32 {s(T)}, {s(S_J)}, 1")
    A(f"s_lshl_b32 {s(T + 1)}, {s(T)}, 14")
    A(f"s_add_u32 {s(S_PXH)}, {s(S_PXH)}, {s(T + 1)}")
    A(f"s_and_b32 {s(T + 1)}, {s(S_J)}, 1")
    A(f"s_mul_i32 {s(T + 2)}, {s(T + 1)}, 2560")
    A(f"s_add_u32 {s(S_PXH)}, {s(S_PXH)}, {s(T + 2)}")
    A(f"s_add_u32 {s(S_PXH)}, {s(S_PXH)}, {XP}")
    A(f"s_lshl_b32 {s(S_DPH)}, {s(T)}, 7")
    A(f"s_lshl_b32 {s(T + 1)}, {s(T + 1)}, 2")
    A(f"s_add_u32 {s(T + 1)}, {s(T + 1)}, {s(S_WAVE)}")
    A(f"s_lshl_b32 {s(T + 1)}, {s(T + 1)}, 2")
    A(f"s_add_u32 {s(S_DPH)}, {s(S_DPH)}, {s(T + 1)}")
    A(f"s_add_u32 {s(S_DPH)}, {s(S_DPH)}, {s(S_XB)}")
    A(f"s_add_u32 {s(S_DPH)}, {s(S_DPH)}, {DP_OFF}")
    A(f"s_mul_i32 {s(S_OIH)}, {s(S_WAVE)}, 12288")
    A(f"s_add_u32 {s(S_OIH)}, {s(S_OIH)}, {s(S_XB)}")
    A(f"s_add_u32 {s(S_OIH)}, {s(S_OIH)}, {OI_OFF}")
    A(f"s_lshl_b32 {s(S_DOH)}, {s(S_WAVE)}, 7" if not cfg.pw else f"s_mov_b32 {s(S_DOH)}, 0")
    A(f"s_add_u32 {s(S_DOH)}, {s(S_DOH)}, {s(S_XB)}")
    A(f"s_add_u32 {s(S_DOH)}, {s(S_DOH)}, {DO_OFF}")
    A(f"s_cmp_eq_u32 {s(S_X)}, 0")
    A(f"s_cselect_b32 {s(T + 3)}, 0xffff0000, 0")
    A("s_waitcnt vmcnt(0)")
    A(f"v_lshlrev_b32 {v(V_O + 4)}, 16, {v(V_O)}")
    A(f"v_and_b32 {v(V_O + 4)}, {s(T + 3)}, {v(V_O + 4)}")
    A(f"v_and_b32 {v(V_O + 5)}, {s(T + 3)}, {v(V_O)}")
    A(f"v_lshlrev_b32 {v(V_O + 6)}, 16, {v(V_O + 1)}")
    A(f"v_and_b32 {v(V_O + 6)}, {s(T + 3)}, {v(V_O + 6)}")
    A(f"v_and_b32 {v(V_O + 7)}, {s(T + 3)}, {v(V_O + 1)}")
    for i in range(4):
        A(f"v_mov_b32 {v(V_O + 8 + i)}, -1")
    A(f"v_mov_b32 {v(V_O + 12)}, 1")
    A(f"s_mov_b64 exec, {s(S_M40, 2)}")
    lst = []
    for k in range(8):
        d = V_O + 4 if k % 4 == 0 else V_O + 8
        lst.append(f"s_add_u32 {s(T)}, {s(S_PLH)}, {PL_OFF + k * 20480}")
        lst.append(f"buffer_store_dwordx4 {v(d, 4)}, {v(V_PS)}, {WS}, {s(T)} offen")
        lst.append(f"buffer_load_dword {v(V_O + 13)}, {v(V_PS)}, {WS}, {s(T)} offen sc1")
        for hf in range(2 if cfg.near else 1):
            A(f"s_add_u32 {s(T)}, {s(S_PXH)}, {k * 65536 + hf * 8192}")
            A(f"buffer_store_dwordx4 {v(d, 4)}, {v(V_PS)}, {WS}, {s(T)} offen sc1")
    lst.append("s_mov_b64 exec, 1")
    lst.append(f"buffer_store_dword {v(V_O + 12)}, {v(V_L16)}, {WS}, {s(S_DPH)} offen")
    lst.append(f"buffer_store_dword {v(V_O + 12)}, {v(V_L16)}, {WS}, {s(S_DPH)} offen offset:512")
    lstore(A, lst)
    A("s_mov_b64 exec, -1")
    init_barrier_arrive(A, V_T)

    V_DA, V_TR, V_PARK = 20, 30, 32
    S_ORG, S_LW = S_KSRC, S_KLDS
    make_srd(A, SRD_W, P_WO, 6144 * 1280)
    A(f"s_lshl_b32 {s(T)}, {s(S_X)}, 2")
    A(f"s_add_u32 {s(T)}, {s(T)}, {s(S_WAVE)}")
    A(f"s_mul_i32 {s(S_ORG)}, {s(T)}, {768 * 1280}")
    A(f"s_mul_i32 {s(T)}, {s(S_J)}, 160")
    A(f"s_add_u32 {s(S_ORG)}, {s(S_ORG)}, {s(T)}")
    A(f"s_mul_i32 {s(S_LW)}, {s(S_WAVE)}, 40960")
    for i in range(10):
        A(f"v_add_u32 {v(V_T)}, {64 * i}, {v(V_LANE)}")
        A(f"v_mul_u32_u24 {v(V_T + 1)}, 6554, {v(V_T)}")
        A(f"v_lshrrev_b32 {v(V_T + 1)}, 16, {v(V_T + 1)}")
        A(f"v_mul_u32_u24 {v(V_T + 4)}, 10, {v(V_T + 1)}")
        A(f"v_sub_u32 {v(V_T)}, {v(V_T)}, {v(V_T + 4)}")
        A(f"v_mul_u32_u24 {v(V_DA + i)}, 1280, {v(V_T + 1)}")
        A(f"v_lshl_add_u32 {v(V_DA + i)}, {v(V_T)}, 4, {v(V_DA + i)}")
    A(f"v_lshrrev_b32 {v(g_)}, 4, {v(V_LANE)}")
    A(f"v_and_b32 {v(V_T)}, 1, {v(g_)}")
    A(f"v_lshlrev_b32 {v(V_T)}, 5, {v(V_T)}")
    A(f"v_lshrrev_b32 {v(V_T + 1)}, 1, {v(g_)}")
    A(f"v_lshl_add_u32 {v(V_T)}, {v(V_T + 1)}, 2, {v(V_T)}")
    A(f"v_bfe_u32 {v(V_T + 1)}, {v(V_LANE)}, 2, 1")
    A(f"v_add_u32 {v(V_T)}, {v(V_T)}, {v(V_T + 1)}")
    A(f"v_bfe_u32 {v(V_T + 1)}, {v(V_LANE)}, 3, 1")
    A(f"v_lshl_add_u32 {v(V_T)}, {v(V_T + 1)}, 4, {v(V_T)}")
    A(f"v_mul_u32_u24 {v(V_TR)}, 160, {v(V_T)}")
    A(f"v_and_b32 {v(V_T + 1)}, 3, {v(V_LANE)}")
    A(f"v_lshl_add_u32 {v(V_TR)}, {v(V_T + 1)}, 3, {v(V_TR)}")
    A(f"v_add_u32 {v(V_TR)}, {s(S_LW)}, {v(V_TR)}")

    def w_dma(f):
        A(f"s_add_u32 {s(T + 1)}, {s(S_ORG)}, {f * 64 * 1280}")
        for i in range(10):
            A(f"s_add_u32 m0, {s(S_LW)}, {(f % 4) * 10240 + i * 1024}")
            A(f"buffer_load_dwordx4 {v(V_DA + i)}, {s(SRD_W, 4)}, {s(T + 1)} offen lds")
    for f in range(4):
        w_dma(f)
    for f in range(12):
        A(f"s_waitcnt vmcnt({10 * min(3, 11 - f)})")
        n = 0
        for p in range(5):
            kind, r = wreg(f, p) if p < 4 else ("v", V_PARK + 8 * f)
            fn = a if kind == "a" else v
            for RH in range(2):
                for hh in range(2):
                    A(f"ds_read_b64_tr_b16 {fn(r + 4 * RH + 2 * hh, 2)}, {v(V_TR)} offset:{(f % 4) * 10240 + (8 * RH + 2 * hh) * 160 + 32 * p}")
                    n += 1
                    if n == 12:
                        A("s_waitcnt lgkmcnt(4)")
        A("s_waitcnt lgkmcnt(0)")
        if f + 4 < 12:
            w_dma(f + 4)
    A("s_barrier")
    for f in range(12):
        for hf in range(2):
            A(f"ds_write_b128 {v(V_BW)}, {v(V_PARK + 8 * f + 4 * hf, 4)} offset:{f * 2048 + hf * 1024}")
        if f % 4 == 3:
            A("s_waitcnt lgkmcnt(0)")
    A("s_barrier")
    init_barrier_wait(A, V_T, nwg, cfg)
    near_half(A, cfg, S_PXH)
    A(f"s_mov_b32 {s(S_N)}, 0")
    A(f"s_mov_b32 {s(S_DEF)}, 0")
    stamp = mk_stamp(A, cfg, V_STAMP)
    stamp.init()

    def w_loop(sx, LS):
        L = Lds(A)
        nxt = "CW_NEXT" + sx
        A.label("CW_LOOP" + sx)
        item_of(A, S_N, S_L, S_T, LAG, 0, T)
        A(f"s_cmp_eq_u32 {s(S_T)}, 63")
        A(f"s_cbranch_scc1 {nxt}")
        A(f"s_add_u32 {s(S_T1)}, {s(S_T)}, 1")
        A(f"s_lshl_b32 {s(T + 1)}, {s(S_L)}, 9")
        A(f"s_add_u32 {s(S_DOA)}, {s(T + 1)}, {s(S_DOH)}")
        A(f"s_add_u32 {s(S_DPA)}, {s(T + 1)}, {s(S_DPH)}")
        A(f"s_lshl_b32 {s(T + 1)}, {s(S_L)}, 2")
        A(f"s_and_b32 {s(T)}, {s(S_T)}, 3")
        A(f"s_add_u32 {s(T)}, {s(T)}, {s(T + 1)}")
        A(f"s_mul_i32 {s(S_OIA)}, {s(T)}, 49152")
        A(f"s_add_u32 {s(S_OIA)}, {s(S_OIA)}, {s(S_OIH)}")
        A(f"s_add_u32 {s(S_VMA)}, {s(S_OIA)}, 4096")
        A(f"s_add_u32 {s(S_KCUR)}, {s(S_OIA)}, 8192")
        A(f"s_bfe_u32 {s(S_TAG)}, {s(S_T)}, 0x10002")
        A(f"s_bfe_u32 {s(S_NTAG)}, {s(S_T1)}, 0x10002")
        A(f"s_and_b32 {s(T)}, {s(S_T1)}, 3")
        A(f"s_add_u32 {s(T)}, {s(T)}, {s(T + 1)}")
        A(f"s_mul_i32 {s(S_PLA)}, {s(T)}, 20480")
        A(f"s_add_u32 {s(S_PLA)}, {s(S_PLA)}, {s(S_PLH)}")
        A(f"s_lshl_b32 {s(S_PXA)}, {s(T)}, 16")
        A(f"s_add_u32 {s(S_PXA)}, {s(S_PXA)}, {s(S_PXH)}")
        A(f"s_xor_b32 {s(S_DEF)}, {s(S_DEF)}, {RBS}")
        A(f"v_add_u32 {v(V_RW)}, {s(S_DEF)}, {v(V_RW0)}")
        A(f"v_add_u32 {v(V_RR)}, {s(S_DEF)}, {v(V_RR0)}")
        A(f"s_add_u32 {s(T)}, {s(S_T)}, 2")
        A(f"v_mov_b32 {v(V_T + 4)}, {s(T)}")
        for i in range(20):
            A(f"v_mov_b32 {v(V_ACC + i)}, 0")

        def rdB(f):
            return [(("B", f), f"ds_read_b128 {v(V_B + 8 * (f & 1) + 4 * hf, 4)}, {v(V_BW)} offset:{f * 2048 + hf * 1024}") for hf in range(2)]
        for it in rdB(0) + rdB(1):
            L.op(*it)
        if cfg.pw:
            lab = A.newlabel("np")
            A(f"s_cmp_lg_u32 {s(S_WAVE)}, 0")
            A(f"s_cbranch_scc1 {lab}")
        doorbell(A, cfg, V_DB, S_DOA, V_T)
        if cfg.pw:
            A.label_nf(lab)
            A("s_barrier")
        stamp(0)

        def ld(f):
            return f"buffer_load_dwordx4 {v(V_O + 4 * f, 4)}, {v(V_L16)}, {WS}, {s((S_OIA, S_VMA, S_KCUR)[f // 4])} offen offset:{(f % 4) * 1024} sc1"
        ring = ["s_mov_b64 exec, 1", f"buffer_store_dword {v(V_T + 4)}, {v(V_L16)}, {WS}, {s(S_DPA)} offen{LS}", "s_mov_b64 exec, -1"]
        NP = cfg.wnp
        for f in range(NP):
            A(ld(f))
            if cfg.wsp and f < NP - 1:
                A(f"s_nop {cfg.wsp - 1}")
        stamp(7)
        issued = [NP]
        G = {f: [f] for f in range(cfg.wg1)}
        G.update({f: [f, f + 1] for f in range(cfg.wg1, 12, 2)})

        upto = {}

        def chk(f, top=None):
            last = G[f][-1]

            def w():
                n = issued[0] if top is None else top
                assert n > last, (f, n)
                A(f"s_waitcnt vmcnt({n - 1 - last})")
                if len(G[f]) == 1:
                    A(f"v_and_b32 {v(V_T)}, 1, {v(V_O + 4 * f)}")
                else:
                    A(f"v_bitop3_b32 {v(V_T)}, {v(V_O + 4 * f)}, {v(V_O + 4 * f + 4)}, {s(S_TAG)} bitop3:0x7e")
            if len(G[f]) == 1:
                return [(8, w), f"v_cmp_ne_u32 vcc, {s(S_TAG)}, {v(V_T)}"]
            return [(8, w), f"v_and_b32 {v(V_T)}, 1, {v(V_T)}", f"v_cmp_ne_u32 vcc, 0, {v(V_T)}"]

        def run(items):
            for x in items:
                x[1]() if isinstance(x, tuple) else A(x)

        def ldt(f):
            def go_():
                A(ld(f))
                issued[0] = f + 1
            return (cfg.vmc, go_)
        slow = {f: A.newlabel("ws") for f in G}
        go = {f: A.newlabel("wg") for f in G}
        run(chk(0))
        sq = [(f, p) for f in range(10) for p in range(5)] + [(f, p) for p in range(5) for f in (10, 11)]
        seq, tasks, pre, cks = [], [], {}, {}
        rds = []
        for k, (f, p) in enumerate(sq):
            seq.append((f"{SM} {v(V_ACC + 4 * p, 4)}, {v(V_O + 4 * f, 4)}, {wtxt(f, p)}, {v(V_IDX)}", [("B", f)] if p == 4 else []))
            if p == 0 and f in G:
                def br(f=f):
                    if f in cks:
                        assert not cks[f].items
                    upto[f] = issued[0]
                    A.nf(f"s_cbranch_vccnz {slow[f]}")
                    A.label_nf(go[f])
                    if f in (0, 6, 10):
                        stamp({0: 3, 6: 4, 10: 5}[f])
                pre[k] = br
                if f:
                    cks[f] = Task(k - cfg.wlead - len(chk(f)), chk(f), step=1)
                    tasks.append(cks[f])
                    tasks.append(Task(k - 1, [(12, lambda: None)]))
            if p == 4 and f + 2 < 12:
                rds.append(Task(k, rdB(f + 2)))
        tasks.append(Task(0, [ldt(f) for f in range(NP, 12)], step=cfg.wst))
        tasks += rds

        def items(p):
            q = V_ACC + 4 * p
            return [f"v_add_f32 {v(q)}, {v(q)}, {v(q + 1)}", f"v_add_f32 {v(q + 2)}, {v(q + 2)}, {v(q + 3)}",
                    ("rw", f"ds_write2_b32 {v(V_RW)}, {v(q)}, {v(q + 2)} offset0:{16 * p} offset1:{16 * p + 88}")]
        if cfg.wfd < 10:
            tasks.append(Task(50 + cfg.wfd, ["\n".join(ring)]))
        for p in range(5):
            tasks.append(Task(54 + 2 * p, items(p)))
        sched(A, L, seq, tasks, pre=pre)
        if cfg.wfd == 10:
            for x in ring:
                A(x)
        A("s_waitcnt lgkmcnt(0)")
        A("s_barrier")
        R = V_O
        for w in range(4):
            A(f"ds_read_b128 {v(R + 4 * w, 4)}, {v(V_RR)} offset:{w * 2816}")
        stamp(1)
        if cfg.wfd == 11:
            for x in ring[:2]:
                A(x)
        A(f"s_mov_b64 exec, {s(S_M40, 2)}")
        A("s_waitcnt lgkmcnt(2)")
        A(f"v_pk_add_f32 {v(R, 2)}, {v(R, 2)}, {v(R + 4, 2)}")
        A(f"v_pk_add_f32 {v(R + 2, 2)}, {v(R + 2, 2)}, {v(R + 6, 2)}")
        A("s_waitcnt lgkmcnt(0)")
        A(f"v_pk_add_f32 {v(R + 8, 2)}, {v(R + 8, 2)}, {v(R + 12, 2)}")
        A(f"v_pk_add_f32 {v(R + 10, 2)}, {v(R + 10, 2)}, {v(R + 14, 2)}")
        A(f"v_pk_add_f32 {v(R, 2)}, {v(R, 2)}, {v(R + 8, 2)}")
        A(f"v_pk_add_f32 {v(R + 2, 2)}, {v(R + 2, 2)}, {v(R + 10, 2)}")
        A(f"v_and_or_b32 {v(R)}, {v(R)}, -2, {s(S_NTAG)}")
        st2 = [f"buffer_store_dwordx4 {v(R, 4)}, {v(V_PS)}, {WS}, {s(S_PXA)} offen sc1", f"buffer_store_dwordx4 {v(R, 4)}, {v(V_PS)}, {WS}, {s(S_PLA)} offen{LS}"]
        if cfg.pso:
            st2.reverse()
        A(st2[0])
        if cfg.pso == 2:
            A("s_barrier")
        A(st2[1])
        A("s_mov_b64 exec, -1")
        if cfg.wfd == 12:
            for x in ring:
                A(x)
        stamp(2)
        stamp.flush()
        A.label(nxt)
        A(f"s_add_u32 {s(S_N)}, {s(S_N)}, 1")
        A(f"s_cmp_lt_u32 {s(S_N)}, 128")
        A(f"s_cbranch_scc1 CW_LOOP{sx}")
        A("s_branch CW_DONE")
        for f in G:
            A.label(slow[f])
            for f2 in range(f, upto[f]):
                A(ld(f2))
            spin_fail(A)
            if cfg.timing == 5:
                A(f"s_add_u32 s{92 + min(f, 4)}, s{92 + min(f, 4)}, 1")
            run(chk(f, upto[f]))
            A(f"s_cbranch_vccnz {slow[f]}")
            A(f"s_branch {go[f]}")

    if cfg.timing == 5:
        for k in range(5):
            A(f"s_mov_b32 {s(92 + k)}, 0")
    A(f"s_cmp_lg_u32 {s(S_MODE)}, 0")
    A("s_cbranch_scc1 CW_LOOP_S")
    w_loop("_F", "")
    w_loop("_S", " sc1")
    A.label("CW_DONE")
    if cfg.timing == 5:
        retry_dump(A, 48)
    timing_end(A, cfg, stamp, 48)
```

```python
from common import *
import struct
import math


def f32(x):
    return "0x%08x" % struct.unpack("<I", struct.pack("<f", x))[0]


WS = s(SRD_WS, 4)
PRE_FLAG = [None]
TSFLAG = [0]
V_LANE, V_L16, V_FO, V_FV, V_LB, V_ONE = 0, 1, 2, 3, 4, 5
V_T = 6
V_P16 = 15
S_I, S_L, S_S, S_NL, S_NS, S_DEF, S_IDX, S_BUF = range(50, 58)
S_C0 = 58
T = 60
S_K = 68
S_FADDR = 82
DUMMY = -1


def item_of(A, i_reg, rl, rs, A0, first, t):
    B = 64 - A0
    A(f"s_sub_u32 {s(t)}, {s(i_reg)}, {A0}")
    A(f"s_lshr_b32 {s(rs)}, {s(t)}, 1")
    A(f"s_and_b32 {s(rl)}, {s(t)}, 1")
    if first:
        A(f"s_xor_b32 {s(rl)}, {s(rl)}, 1")
    A(f"s_cmp_eq_u32 {s(rl)}, 0")
    A(f"s_cselect_b32 {s(t + 1)}, {A0}, 0")
    A(f"s_add_u32 {s(rs)}, {s(rs)}, {s(t + 1)}")
    A(f"s_sub_u32 {s(t + 1)}, {s(t)}, {B}")
    A(f"s_cmp_ge_u32 {s(t)}, {2 * B}")
    A(f"s_cselect_b32 {s(rs)}, {s(t + 1)}, {s(rs)}")
    A(f"s_cselect_b32 {s(rl)}, 1, {s(rl)}")
    A(f"s_cmp_lt_u32 {s(i_reg)}, {A0}")
    A(f"s_cselect_b32 {s(rs)}, {s(i_reg)}, {s(rs)}")
    A(f"s_cselect_b32 {s(rl)}, 0, {s(rl)}")


def p16_setup(A, dst):
    A(f"v_bfe_u32 {v(V_T)}, {v(V_LANE)}, 2, 2")
    A(f"v_lshrrev_b32 {v(V_T + 1)}, 4, {v(V_LANE)}")
    A(f"v_add_u32 {v(V_T + 1)}, {v(V_T)}, {v(V_T + 1)}")
    A(f"v_and_b32 {v(V_T + 1)}, 3, {v(V_T + 1)}")
    A(f"v_and_b32 {v(dst)}, 3, {v(V_LANE)}")
    A(f"v_lshlrev_b32 {v(dst)}, 4, {v(dst)}")
    A(f"v_lshl_add_u32 {v(dst)}, {v(V_T + 1)}, 6, {v(dst)}")
    A(f"v_lshl_add_u32 {v(dst)}, {v(V_T)}, 8, {v(dst)}")


def base_setup(A):
    A(f"v_lshlrev_b32 {v(V_L16)}, 4, {v(V_LANE)}")
    A(f"v_mov_b32 {v(V_ONE)}, 1")
    A(f"s_lshl_b32 {s(S_IDX)}, {s(S_ROLE)}, 2")
    A(f"s_add_u32 {s(S_IDX)}, {s(S_IDX)}, {s(S_WAVE)}")
    p16_setup(A, V_P16)


def zero_flags(A, kind_off_reg_or_const, idx_reg, layers=(0, 1)):
    return


def row_of(A, dst, rl, rs, base):
    A(f"s_lshl_b32 {s(dst)}, {s(rl)}, 6")
    A(f"s_add_u32 {s(dst)}, {s(dst)}, {s(rs)}")
    A(f"s_lshl_b32 {s(dst)}, {s(dst)}, 9")
    A(f"s_add_u32 {s(dst)}, {s(dst)}, {base}")


def flag_addr(A, dst, base, idx_reg=S_IDX, rl=S_L, rs=S_S):
    row_of(A, dst, rl, rs, base)
    A(f"s_lshl_b32 {s(T + 1)}, {s(idx_reg)}, 2")
    A(f"s_add_u32 {s(dst)}, {s(dst)}, {s(T + 1)}")


def set_flag(A, base, idx_reg=S_IDX, rl=S_L, rs=S_S):
    if PRE_FLAG[0]:
        flag_addr(A, S_FADDR, base, idx_reg, rl, rs)
        return
    flag_addr(A, T, base, idx_reg, rl, rs)
    A("s_waitcnt vmcnt(0)")
    flag_store(A, T)


def flag_store(A, T, LS=" sc1"):
    if TSFLAG[0]:
        A(f"s_memrealtime {s(98, 2)}")
        A("s_waitcnt lgkmcnt(0)")
        A(f"s_or_b32 s98, s98, 1")
        A(f"v_mov_b32 {v(V_ONE)}, s98")
    A("s_mov_b64 exec, 1")
    A(f"buffer_store_dword {v(V_ONE)}, {v(V_L16)}, {WS}, {s(T)} offen{LS}")
    A("s_mov_b64 exec, -1")


def flag_block(A, soff_reg, vo=V_FO, vv=V_FV, wide=False, sleep=2):
    if CFG[0].fsl >= 0:
        sleep = CFG[0].fsl
    top = A.newlabel("fb")
    A.label(top)
    if wide:
        A(f"buffer_load_dwordx2 {v(vv, 2)}, {v(vo)}, {WS}, {s(soff_reg)} offen sc1")
        A("s_waitcnt vmcnt(0)")
        A(f"v_min_u32 {v(vv)}, {v(vv)}, {v(vv + 1)}")
    else:
        A(f"buffer_load_dword {v(vv)}, {v(vo)}, {WS}, {s(soff_reg)} offen sc1")
        A("s_waitcnt vmcnt(0)")
    A(f"v_cmp_eq_u32 vcc, 0, {v(vv)}")
    poll_tail(A, top, sleep=sleep)


def flag_block_wg(A, soff_reg, **kw):
    if not CFG[0].wgp:
        flag_block(A, soff_reg, **kw)
        return
    lab = A.newlabel("wp")
    A(f"s_cmp_lg_u32 {s(S_WAVE)}, 0")
    A(f"s_cbranch_scc1 {lab}")
    sv = CFG[0].fsl
    CFG[0].fsl = CFG[0].wgp - 1
    flag_block(A, soff_reg, **kw)
    CFG[0].fsl = sv
    A.label(lab)
    A("s_barrier")


S_SPIN2 = 59


def rdy_init(A, cfg, va, addr):
    A(f"s_mov_b32 {s(S_SPIN2)}, {cfg.spin * 8}")
    A(f"v_mov_b32 {v(va)}, {addr}")
    A(f"v_mov_b32 {v(va + 1)}, 0")
    A(f"ds_write_b32 {v(va)}, {v(va + 1)}")
    A("s_waitcnt lgkmcnt(0)")
    A("s_barrier")


def rdy_set(A, va, plus, tmp):
    A(f"s_add_u32 {s(tmp)}, {s(S_I)}, {plus}")
    A(f"v_mov_b32 {v(va + 1)}, {s(tmp)}")
    A(f"ds_write_b32 {v(va)}, {v(va + 1)}")


def wg_wait(A, cfg, va, soff, tmp, **kw):
    oth, done = A.newlabel("wo"), A.newlabel("wd")
    A(f"s_cmp_lg_u32 {s(S_WAVE)}, 0")
    A(f"s_cbranch_scc1 {oth}")
    sv = cfg.fsl
    cfg.fsl = cfg.wgp - 1
    flag_block(A, soff, **kw)
    cfg.fsl = sv
    rdy_set(A, va, 0, tmp)
    A(f"s_branch {done}")
    A.label(oth)
    A(f"ds_read_b32 {v(va + 1)}, {v(va)}")
    A("s_waitcnt lgkmcnt(0)")
    A(f"v_cmp_gt_u32 vcc, {s(S_I)}, {v(va + 1)}")
    A(f"s_cbranch_vccz {done}")
    A(f"s_sleep {CFG[0].lsl}")
    A(f"s_sub_u32 {s(S_SPIN2)}, {s(S_SPIN2)}, 1")
    A("s_cbranch_scc1 ABORT")
    A(f"s_branch {oth}")
    A.label(done)


def rnd2(A, pk, x0, x1):
    A(f"v_cvt_pk_bf16_f32 {v(pk)}, {v(x0)}, {v(x1)}")
    A(f"v_lshlrev_b32 {v(x0)}, 16, {v(pk)}")
    A(f"v_and_b32 {v(x1)}, 0xffff0000, {v(pk)}")


def rnd1(A, x, tmp):
    A(f"v_cvt_pk_bf16_f32 {v(tmp)}, {v(x)}, {v(x)}")
    A(f"v_lshlrev_b32 {v(x)}, 16, {v(tmp)}")


def finish_stats(A, s1, s2, tmp, keep=None, scaled=False):
    if not scaled:
        A(f"v_mul_f32 {v(s1)}, {f32(1.0 / 640)}, {v(s1)}")
        A(f"v_mul_f32 {v(s2)}, {f32(1.0 / 640)}, {v(s2)}")
        A(f"v_fma_f32 {v(s2)}, -{v(s1)}, {v(s1)}, {v(s2)}")
        A(f"v_max_f32 {v(s2)}, 0, {v(s2)}")
    if keep is not None:
        A(f"v_mov_b32 {v(keep)}, {v(s1)}")
        A(f"v_mov_b32 {v(keep + 1)}, {v(s2)}")
    rnd2(A, tmp, s1, s2)
    A(f"v_add_f32 {v(s2)}, {f32(1e-5)}, {v(s2)}")
    rnd1(A, s2, tmp)
    A(f"v_sqrt_f32 {v(s2)}, {v(s2)}")
    rnd1(A, s2, tmp)
    A(f"v_rcp_f32 {v(s2)}, {v(s2)}")


GELU_C0 = -2.0 * math.sqrt(2.0 / math.pi) * math.log2(math.e)
GELU_C1 = GELU_C0 * 0.044715


def gelu_pack(A, vals, out, tmps, v_c0, s_c1):
    n = len(vals)
    if CFG[0].gpk:
        for i in range(0, n, 2):
            rnd2(A, tmps[n], vals[i], vals[i + 1])
        for i in range(0, n, 2):
            A(f"v_pk_mul_f32 {v(tmps[i], 2)}, {v(vals[i], 2)}, {v(vals[i], 2)}")
        for i in range(0, n, 2):
            A(f"v_pk_fma_f32 {v(tmps[i], 2)}, {v(tmps[i], 2)}, {v(v_c0, 2)}, {v(v_c0, 2)} op_sel:[0,1,0] op_sel_hi:[1,1,0]")
        for i in range(0, n, 2):
            A(f"v_pk_mul_f32 {v(tmps[i], 2)}, {v(tmps[i], 2)}, {v(vals[i], 2)}")
        for i in range(n):
            A(f"v_exp_f32 {v(tmps[i])}, {v(tmps[i])}")
        for i in range(0, n, 2):
            A(f"v_pk_add_f32 {v(tmps[i], 2)}, {v(tmps[i], 2)}, 1.0 op_sel_hi:[1,0]")
        for i in range(n):
            A(f"v_rcp_f32 {v(tmps[i])}, {v(tmps[i])}")
        for i in range(0, n, 2):
            A(f"v_pk_mul_f32 {v(vals[i], 2)}, {v(vals[i], 2)}, {v(tmps[i], 2)}")
        for i in range(0, n, 2):
            A(f"v_cvt_pk_bf16_f32 {v(out + i // 2)}, {v(vals[i])}, {v(vals[i + 1])}")
        return
    for i in range(0, n, 2):
        rnd2(A, tmps[n], vals[i], vals[i + 1])
    for i in range(n):
        A(f"v_mul_f32 {v(tmps[i])}, {v(vals[i])}, {v(vals[i])}")
    for i in range(n):
        A(f"v_fma_f32 {v(tmps[i])}, {v(tmps[i])}, {s(s_c1)}, {v(v_c0)}")
    for i in range(n):
        A(f"v_mul_f32 {v(tmps[i])}, {v(tmps[i])}, {v(vals[i])}")
    for i in range(n):
        A(f"v_exp_f32 {v(tmps[i])}, {v(tmps[i])}")
    for i in range(n):
        A(f"v_add_f32 {v(tmps[i])}, 1.0, {v(tmps[i])}")
    for i in range(n):
        A(f"v_rcp_f32 {v(tmps[i])}, {v(tmps[i])}")
    for i in range(n):
        A(f"v_mul_f32 {v(vals[i])}, {v(vals[i])}, {v(tmps[i])}")
    for i in range(0, n, 2):
        A(f"v_cvt_pk_bf16_f32 {v(out + i // 2)}, {v(vals[i])}, {v(vals[i + 1])}")


def stats_consume(A, v_sa, r, tmp):
    A(f"v_add_u32 {v(tmp)}, 0x800, {v(v_sa)}")
    for i in range(4):
        A(f"ds_read2_b64 {v(r + 4 * i, 4)}, {v(v_sa)} offset0:{64 * i} offset1:{64 * i + 32}")
    A(f"ds_read2_b64 {v(r + 16, 4)}, {v(tmp)} offset0:0 offset1:32")


def stats_reduce(A, r, out, tmp):
    for st in ((0, 10), (2, 12), (4, 14), (6, 16), (8, 18), (0, 2), (4, 6), (0, 4), (0, 8)):
        A(f"v_pk_add_f32 {v(r + st[0], 2)}, {v(r + st[0], 2)}, {v(r + st[1], 2)}")
    for k in range(2):
        A(f"v_mov_b32 {v(r + 2 + k)}, {v(r + k)}")
    for k in range(2):
        A(f"v_permlane16_swap_b32 {v(r + k)}, {v(r + 2 + k)}")
    for k in range(2):
        A(f"v_add_f32 {v(out + k)}, {v(r + k)}, {v(r + 2 + k)}")
    finish_stats(A, out, out + 1, tmp)
    for k in range(2):
        A(f"v_mov_b32 {v(out + 2 + k)}, {v(out + k)}")
    for k in range(2):
        A(f"v_permlane32_swap_b32 {v(out + k)}, {v(out + 2 + k)}")


def stats_produce(A, x0, x1, t, v_addr, soff_reg):
    for k, xs in enumerate((x0, x1)):
        A(f"v_add_f32 {v(t + k)}, {v(xs[0])}, {v(xs[1])}")
        A(f"v_mul_f32 {v(t + 2 + k)}, {v(xs[0])}, {v(xs[0])}")
        for i in range(1, 8):
            if i >= 2:
                A(f"v_add_f32 {v(t + k)}, {v(t + k)}, {v(xs[i])}")
            A(f"v_fmac_f32 {v(t + 2 + k)}, {v(xs[i])}, {v(xs[i])}")
    A(f"v_permlane32_swap_b32 {v(t)}, {v(t + 1)}")
    A(f"v_permlane32_swap_b32 {v(t + 2)}, {v(t + 3)}")
    A(f"v_add_f32 {v(t)}, {v(t)}, {v(t + 1)}")
    A(f"v_add_f32 {v(t + 1)}, {v(t + 2)}, {v(t + 3)}")
    A(f"v_mov_b32 {v(t + 2)}, {v(t)}")
    A(f"v_mov_b32 {v(t + 3)}, {v(t + 1)}")
    A(f"v_permlane16_swap_b32 {v(t)}, {v(t + 2)}")
    A(f"v_permlane16_swap_b32 {v(t + 1)}, {v(t + 3)}")
    A(f"v_add_f32 {v(t)}, {v(t)}, {v(t + 2)}")
    A(f"v_add_f32 {v(t + 1)}, {v(t + 1)}, {v(t + 3)}")
    A("s_mov_b32 exec_lo, 0xffff")
    A("s_mov_b32 exec_hi, 0xffff")
    A(f"buffer_store_dwordx2 {v(t, 2)}, {v(v_addr)}, {WS}, {s(soff_reg)} offen sc1")
    A("s_mov_b64 exec, -1")


class Capture:
    def __init__(self):
        self.l = []

    def __call__(self, x):
        self.l.append(x)

    def groups(self):
        out, cur = [], []
        for x in self.l:
            cur.append(x)
            if x.endswith(" lds"):
                out.append(cur)
                cur = []
        assert not cur
        return out


class Gemm:
    name = ""
    nk = 20
    NT = 2
    swap = False
    bufsz = 40960
    order = "d"
    jchk = 5
    nstores = 2
    pin = False
    fillrate = 3
    V_ACC = 16
    V_FR = 48
    V_X = 80

    def __init__(self, A, cfg, nwg):
        self.A, self.cfg, self.nwg = A, cfg, nwg

    def wreg(self, tau, j):
        idx = tau * self.nk + j
        if idx < 64:
            return ("a", idx * 4)
        return ("v", 256 - (self.NT * self.nk - idx) * 4)

    def wtxt(self, tau, j):
        k, r = self.wreg(tau, j)
        return a(r, 4) if k == "a" else v(r, 4)

    def acc(self, tau, tt):
        return self.V_ACC + (tau * 2 + tt) * 4

    def setup(self): pass
    def init_stores(self): pass
    def weights(self, WL): pass
    def post_weights(self): pass
    def flag_soff(self, dst, rl, rs): pass
    def dma(self, rl, rs, ldsreg): pass
    def early(self): return 0
    def mid(self): return []
    def epilogue(self): pass

    def item(self, i_reg, rl, rs):
        if self.order == "q":
            item_of(self.A, i_reg, rl, rs, self.cfg.QA, 1, T)
        else:
            item_of(self.A, i_reg, rl, rs, self.cfg.LAG + self.cfg.dlt, 0, T)

    def lin_dma(self, src_reg, ldsreg, nb):
        A = self.A
        for b in range(nb):
            if b % 4 == 0:
                A(f"s_add_u32 m0, {s(ldsreg)}, {b * 1024}")
                A(f"s_add_u32 {s(T + 3)}, {s(src_reg)}, {b * 1024}")
            A(f"buffer_load_dwordx4 {v(V_L16)}, {WS}, {s(T + 3)} offen offset:{(b % 4) * 1024} sc1 lds")

    def gen(self):
        A, cfg = self.A, self.cfg
        nm = self.name
        A.label("ROLE_" + nm)
        base_setup(A)
        self.setup()
        self.init_stores()
        init_barrier_arrive(A, V_T)
        late = self.order != "q" and cfg.late_w
        if late:
            init_barrier_wait(A, V_T, self.nwg, cfg)
            A(f"s_sleep {cfg.late_w}")
        WL = WLoader(A, V_T, T + 3)
        self.weights(WL)
        WL.emit(V_LANE)
        self.post_weights()
        A("s_barrier")
        if not late:
            init_barrier_wait(A, V_T, self.nwg, cfg)
        A(f"s_mov_b32 {s(S_I)}, 0")
        A(f"s_mov_b32 {s(S_BUF)}, 0")
        st = self.st = Stamper(A, cfg, 84, 8)
        A(f"s_mov_b32 s83, {s(S_GID)}")
        self.item(S_I, S_L, S_S)
        self.flag_soff(T + 7, S_L, S_S)
        self.flag_block(T + 7)
        self.dma(S_L, S_S, S_BUF)
        st.init()
        A("s_waitcnt vmcnt(0)")
        A(f"s_mov_b32 {s(S_FADDR)}, {DUMMY}")
        A.label(nm + "_LOOP")
        cap0 = Capture()
        self.A = cap0
        cap0(f"s_add_u32 {s(T + 6)}, {s(S_I)}, 1")
        cap0(f"s_min_u32 {s(T + 6)}, {s(T + 6)}, 127")
        self.item(T + 6, S_NL, S_NS)
        self.flag_soff(T + 7, S_NL, S_NS)
        self.flag_load(T + 7)
        self.early()
        self.mid()
        self.A = A
        fill = cap0.l
        A(f"v_add_u32 {v(V_LB)}, {s(S_BUF)}, {v(V_P16 if self.pin else V_L16)}")
        A("s_barrier")
        st(0)
        nk, NT = self.nk, self.NT
        D = 3

        def rd(j):
            for tt in range(2):
                A(f"ds_read_b128 {v(self.V_FR + ((j % 4) * 2 + tt) * 4, 4)}, {v(V_LB)} offset:{(j * 2 + tt) * 1024}")

        def kstep(j, extra=None):
            if j + D < nk:
                rd(j + D)
                A(f"s_waitcnt lgkmcnt({2 * D})")
            else:
                A(f"s_waitcnt lgkmcnt({2 * (nk - 1 - j)})")
            n = 0
            for tau in range(NT):
                for tt in range(2):
                    c = "0" if j == 0 else v(self.acc(tau, tt), 4)
                    fr = v(self.V_FR + ((j % 4) * 2 + tt) * 4, 4)
                    w = self.wtxt(tau, j)
                    x, y = (fr, w) if self.swap else (w, fr)
                    A(f"v_mfma_f32_16x16x32_bf16 {v(self.acc(tau, tt), 4)}, {x}, {y}, {c}")
                    n += 1
                    if extra and n == 1:
                        for e in extra:
                            A(e)
                    if j >= 1:
                        for _ in range(self.fillrate):
                            if fill:
                                A(fill.pop(0))
        self.pre_mfma()
        for j in range(D):
            rd(j)
        jchk = self.jchk
        for j in range(jchk + 1):
            kstep(j)
        while fill:
            A(fill.pop(0))
        nod, join = A.newlabel("nod"), A.newlabel("join")
        A("s_waitcnt vmcnt(0)")
        st(1)
        nof = A.newlabel("nof")
        A(f"s_cmp_eq_u32 {s(S_FADDR)}, {DUMMY}")
        A(f"s_cbranch_scc1 {nof}")
        flag_store(A, S_FADDR)
        A.label(nof)
        self.flag_check()
        A(f"s_mov_b32 {s(S_DEF)}, 1")
        A(f"s_cbranch_vccnz {nod}")
        A(f"s_mov_b32 {s(S_DEF)}, 0")
        A(f"s_xor_b32 {s(T + 6)}, {s(S_BUF)}, {self.bufsz}")
        cap = Capture()
        self.A = cap
        self.dma(S_NL, S_NS, T + 6)
        self.A = A
        groups = cap.groups()
        rem = list(range(jchk + 1, nk))
        per = -(-len(groups) // len(rem))
        for j in rem:
            ex = []
            for _ in range(per):
                if groups:
                    ex += groups.pop(0)
            kstep(j, ex)
        assert not groups
        A(f"s_branch {join}")
        A.label(nod)
        for j in rem:
            kstep(j)
        A.label(join)
        st(3)
        PRE_FLAG[0] = True
        self.epilogue()
        PRE_FLAG[0] = None
        st(4)
        A(f"s_add_u32 {s(S_I)}, {s(S_I)}, 1")
        A(f"s_cmp_eq_u32 {s(S_I)}, 128")
        A(f"s_cbranch_scc1 {nm}_END")
        A(f"s_xor_b32 {s(S_BUF)}, {s(S_BUF)}, {self.bufsz}")
        A(f"s_mov_b32 {s(S_L)}, {s(S_NL)}")
        A(f"s_mov_b32 {s(S_S)}, {s(S_NS)}")
        A(f"s_cmp_eq_u32 {s(S_DEF)}, 0")
        A(f"s_cbranch_scc1 {nm}_OKN")
        A("s_waitcnt vmcnt(0)")
        flag_store(A, S_FADDR)
        A(f"s_mov_b32 {s(S_FADDR)}, {DUMMY}")
        st(5)
        self.flag_soff(T + 7, S_L, S_S)
        self.flag_block(T + 7)
        st(6)
        self.dma(S_L, S_S, S_BUF)
        A("s_waitcnt vmcnt(0)")
        st(7)
        A(f"s_branch {nm}_LOOP")
        A.label(nm + "_OKN")
        A(f"s_waitcnt vmcnt({self.nstores})")
        A(f"s_branch {nm}_LOOP")
        A.label(nm + "_END")
        A("s_waitcnt vmcnt(0)")
        flag_store(A, S_FADDR)
        st.dump(83, T, V_T)
        A("s_endpgm")

    def pre_mfma(self): pass

    def flag_block(self, soff):
        flag_block_wg(self.A, soff)

    def flag_load(self, soff):
        self.A(f"buffer_load_dword {v(V_FV)}, {v(V_FO)}, {WS}, {s(soff)} offen sc1")

    def flag_check(self):
        self.A(f"v_cmp_eq_u32 vcc, 0, {v(V_FV)}")


class FoldMixin:
    def csum(self, dst):
        A = self.A
        ones = self.V_FR
        for i in range(4):
            A(f"v_mov_b32 {v(ones + i)}, 0x3f803f80")
        for j in range(self.nk):
            for tau in range(self.NT):
                c = "0" if j == 0 else v(dst + 4 * tau, 4)
                w = self.wtxt(tau, j)
                x, y = (v(ones, 4), w) if self.swap else (w, v(ones, 4))
                A(f"v_mfma_f32_16x16x32_bf16 {v(dst + 4 * tau, 4)}, {x}, {y}, {c}")

    def sa_setup(self, v_sa0):
        A = self.A
        A(f"v_lshrrev_b32 {v(V_T)}, 4, {v(V_LANE)}")
        A(f"v_and_b32 {v(V_T)}, 1, {v(V_T)}")
        A(f"v_mul_u32_u24 {v(v_sa0)}, 2560, {v(V_T)}")
        A(f"v_lshrrev_b32 {v(V_T)}, 5, {v(V_LANE)}")
        A(f"v_lshl_add_u32 {v(v_sa0)}, {v(V_T)}, 7, {v(v_sa0)}")
        A(f"v_and_b32 {v(V_T)}, 15, {v(V_LANE)}")
        A(f"v_lshl_add_u32 {v(v_sa0)}, {v(V_T)}, 3, {v(v_sa0)}")
        A(f"v_add_u32 {v(v_sa0)}, 0xa000, {v(v_sa0)}")

    def stats_dma(self, src_reg, ldsreg_raw):
        A = self.A
        A(f"s_lshl_b32 {s(T + 2)}, {s(S_WAVE)}, 10")
        A(f"s_add_u32 {s(T + 2)}, {s(T + 2)}, 40960")
        A(f"s_add_u32 m0, {s(ldsreg_raw)}, {s(T + 2)}")
        A(f"s_add_u32 {s(T + 3)}, {s(src_reg)}, {s(T + 2)}")
        A(f"buffer_load_dwordx4 {v(V_L16)}, {WS}, {s(T + 3)} offen sc1 lds")
        A(f"s_add_u32 m0, {s(ldsreg_raw)}, {44 * 1024}")
        A(f"s_add_u32 {s(T + 3)}, {s(src_reg)}, {44 * 1024}")
        A(f"buffer_load_dwordx4 {v(V_L16)}, {WS}, {s(T + 3)} offen sc1 lds")


class QKV(Gemm, FoldMixin):
    NT = 4
    nk = 20
    bufsz = XSEGS
    order = "q"
    fillrate = 2
    pin = True
    jchk = 7
    nstores = 4
    V_CS = 80
    V_SR = 96
    V_ST = 116
    V_SV = 120
    V_SA0, V_SA = 136, 137
    V_PK = 140
    V_SW, V_SRD = 138, 139
    S_TYPE, S_WG, S_OUT, S_FK = S_K, S_K + 1, S_K + 2, S_K + 3

    def __init__(self, A, cfg, nwg, vtype):
        super().__init__(A, cfg, nwg)
        self.swap = vtype
        self.name = "QKVV" if vtype else "QKVQ"

    def setup(self):
        A = self.A
        if self.swap:
            A(f"s_mov_b32 {s(self.S_WG)}, {s(S_IDX)}")
            A(f"s_mov_b32 {s(self.S_OUT)}, {VX}")
            A(f"s_mov_b32 {s(self.S_FK)}, {flag_row(F_V)}")
        else:
            A(f"s_cmp_ge_u32 {s(S_ROLE)}, 24")
            A(f"s_cselect_b32 {s(self.S_TYPE)}, 1, 0")
            A(f"s_mul_i32 {s(T)}, {s(self.S_TYPE)}, 96")
            A(f"s_sub_u32 {s(self.S_WG)}, {s(S_IDX)}, {s(T)}")
            A(f"s_mul_i32 {s(self.S_OUT)}, {s(self.S_TYPE)}, {QX - KX}")
            A(f"s_add_u32 {s(self.S_OUT)}, {s(self.S_OUT)}, {KX}")
            A(f"s_mul_i32 {s(T)}, {s(self.S_TYPE)}, {flag_row(F_K) - flag_row(F_Q)}")
            A(f"s_sub_u32 {s(self.S_FK)}, {flag_row(F_K)}, {s(T)}")
        A(f"s_lshl_b32 {s(T)}, {s(self.S_WG)}, 12")
        A(f"s_add_u32 {s(self.S_OUT)}, {s(self.S_OUT)}, {s(T)}")
        self.sa_setup(self.V_SA0)
        if self.swap:
            A(f"s_lshl_b32 {s(T)}, {s(S_WAVE)}, 8")
            A(f"s_add_u32 {s(T)}, {s(T)}, {2 * self.bufsz}")
            A(f"v_and_b32 {v(V_T)}, 15, {v(V_LANE)}")
            A(f"v_lshlrev_b32 {v(self.V_SW)}, 3, {v(V_T)}")
            A(f"v_add_u32 {v(self.V_SW)}, {s(T)}, {v(self.V_SW)}")
            A(f"v_lshrrev_b32 {v(V_T)}, 4, {v(V_LANE)}")
            A(f"v_lshlrev_b32 {v(self.V_SRD)}, 5, {v(V_T)}")
            A(f"v_add_u32 {v(self.V_SRD)}, {s(T)}, {v(self.V_SRD)}")

    def init_stores(self):
        zero_flags(self.A, s(self.S_FK), self.S_WG)

    def weights(self, WL):
        A = self.A
        A(f"s_lshl_b32 {s(S_C0)}, {s(self.S_WG)}, 7")

        def srd():
            if self.swap:
                make_srd(A, SRD_W, P_WV, 640 * 12288)
            else:
                A(f"s_cmp_eq_u32 {s(self.S_TYPE)}, 0")
                A(f"s_cselect_b32 {s(SRD_W)}, {s(P_WK)}, {s(P_WQ)}")
                A(f"s_cselect_b32 {s(SRD_W + 1)}, {s(P_WK + 1)}, {s(P_WQ + 1)}")
                A(f"s_mov_b32 {s(SRD_W + 2)}, {640 * 12288}")
                A(f"s_mov_b32 {s(SRD_W + 3)}, 0x20000")
        WL.add(srd, S_C0, 12288, 4, 20, self.wreg)

    def post_weights(self):
        self.csum(self.V_CS)

    def flag_soff(self, dst, rl, rs):
        A = self.A
        row_of(A, dst, rl, rs, flag_row(F_XIN))
        A(f"s_lshl_b32 {s(T)}, {s(rl)}, 5")
        A(f"s_add_u32 {s(T)}, {s(T)}, 7")
        A(f"v_min_u32 {v(V_FO)}, {s(T)}, {v(V_LANE)}")
        A(f"v_lshlrev_b32 {v(V_FO)}, 2, {v(V_FO)}")

    def dma(self, rl, rs, ldsreg):
        A = self.A
        A(f"s_lshl_b32 {s(T)}, {s(rl)}, 6")
        A(f"s_add_u32 {s(T)}, {s(T)}, {s(rs)}")
        A(f"s_mul_i32 {s(T)}, {s(T)}, {XSEGS}")
        A(f"s_add_u32 {s(T)}, {s(T)}, {XIN}")
        self.stats_dma(T, ldsreg)
        A(f"s_mul_i32 {s(T + 1)}, {s(S_WAVE)}, 10240")
        A(f"s_add_u32 {s(T)}, {s(T)}, {s(T + 1)}")
        A(f"s_add_u32 {s(T + 1)}, {s(T + 1)}, {s(ldsreg)}")
        self.lin_dma(T, T + 1, 10)

    def pre_mfma(self):
        A = self.A
        A(f"v_add_u32 {v(self.V_SA)}, {s(S_BUF)}, {v(self.V_SA0)}")
        stats_consume(A, self.V_SA, self.V_SR, V_T)

    def mid(self):
        stats_reduce(self.A, self.V_SR, self.V_ST, V_T)

    def epilogue(self):
        A = self.A
        lab = A.newlabel("l0")
        A(f"s_mul_i32 {s(T + 2)}, {s(S_S)}, {QKV_SEG}")
        A(f"s_add_u32 {s(T + 2)}, {s(T + 2)}, {s(self.S_OUT)}")
        A(f"s_cmp_eq_u32 {s(S_L)}, 0")
        A(f"s_cbranch_scc1 {lab}")
        if self.swap:
            A(f"ds_write_b64 {v(self.V_SW)}, {v(self.V_ST, 2)}")
            A(f"ds_write_b64 {v(self.V_SW)}, {v(self.V_ST + 2, 2)} offset:128")
            A("s_waitcnt lgkmcnt(0)")
            for tt in range(2):
                for hf in range(2):
                    A(f"ds_read_b128 {v(self.V_SV + tt * 8 + hf * 4, 4)}, {v(self.V_SRD)} offset:{tt * 128 + hf * 16}")
            A("s_waitcnt lgkmcnt(0)")
            for tau in range(4):
                for tt in range(2):
                    for r in range(4):
                        x = self.acc(tau, tt) + r
                        A(f"v_fma_f32 {v(x)}, -{v(self.V_SV + tt * 8 + 2 * r)}, {v(self.V_CS + 4 * tau)}, {v(x)}")
                for tt in range(2):
                    for r in range(4):
                        x = self.acc(tau, tt) + r
                        A(f"v_mul_f32 {v(x)}, {v(x)}, {v(self.V_SV + tt * 8 + 2 * r + 1)}")
        else:
            for tau in range(4):
                for tt in range(2):
                    for r in range(4):
                        x = self.acc(tau, tt) + r
                        A(f"v_fma_f32 {v(x)}, -{v(self.V_ST + 2 * tt)}, {v(self.V_CS + 4 * tau + r)}, {v(x)}")
                for tt in range(2):
                    for r in range(4):
                        x = self.acc(tau, tt) + r
                        A(f"v_mul_f32 {v(x)}, {v(x)}, {v(self.V_ST + 2 * tt + 1)}")
        A.label(lab)
        for b in range(4):
            if self.swap:
                lo, hi = self.acc(b, 0), self.acc(b, 1)
            else:
                p, tt = b >> 1, b & 1
                lo, hi = self.acc(2 * p, tt), self.acc(2 * p + 1, tt)
            pk = self.V_PK + 4 * b
            A(f"v_cvt_pk_bf16_f32 {v(pk)}, {v(lo)}, {v(lo + 1)}")
            A(f"v_cvt_pk_bf16_f32 {v(pk + 1)}, {v(lo + 2)}, {v(lo + 3)}")
            A(f"v_cvt_pk_bf16_f32 {v(pk + 2)}, {v(hi)}, {v(hi + 1)}")
            A(f"v_cvt_pk_bf16_f32 {v(pk + 3)}, {v(hi + 2)}, {v(hi + 3)}")
            A(f"buffer_store_dwordx4 {v(pk, 4)}, {v(V_L16)}, {WS}, {s(T + 2)} offen offset:{b * 1024} sc1")
        set_flag(A, s(self.S_FK), self.S_WG)


class WO(Gemm):
    name = "WO"
    NT = 2
    nk = 32
    bufsz = 65536
    jchk = 7
    nstores = 4
    S_KG, S_CG, S_OUT = S_K, S_K + 1, S_K + 2
    V_SO = 80

    def setup(self):
        A = self.A
        A(f"s_mul_i32 {s(self.S_KG)}, {s(S_ROLE)}, 52429")
        A(f"s_lshr_b32 {s(self.S_KG)}, {s(self.S_KG)}, 18")
        A(f"s_mul_i32 {s(T)}, {s(self.S_KG)}, 5")
        A(f"s_sub_u32 {s(self.S_CG)}, {s(S_ROLE)}, {s(T)}")
        A(f"s_lshl_b32 {s(T)}, {s(self.S_KG)}, 5")
        A(f"s_mul_i32 {s(T + 1)}, {s(T)}, 43691")
        A(f"s_lshr_b32 {s(T + 1)}, {s(T + 1)}, 18")
        A(f"s_add_u32 {s(T)}, {s(T)}, 31")
        A(f"s_mul_i32 {s(T)}, {s(T)}, 43691")
        A(f"s_lshr_b32 {s(T)}, {s(T)}, 18")
        A(f"v_add_u32 {v(V_FO)}, {s(T + 1)}, {v(V_LANE)}")
        A(f"v_min_u32 {v(V_FO)}, {s(T)}, {v(V_FO)}")
        A(f"v_lshlrev_b32 {v(V_FO)}, 2, {v(V_FO)}")
        A(f"v_and_b32 {v(V_T)}, 15, {v(V_LANE)}")
        A(f"v_lshrrev_b32 {v(V_T + 1)}, 2, {v(V_T)}")
        A(f"v_mul_u32_u24 {v(self.V_SO)}, 10240, {v(V_T + 1)}")
        A(f"v_and_b32 {v(V_T)}, 3, {v(V_LANE)}")
        A(f"v_lshl_add_u32 {v(self.V_SO)}, {v(V_T)}, 4, {v(self.V_SO)}")
        A(f"v_lshrrev_b32 {v(V_T)}, 4, {v(V_LANE)}")
        A(f"v_lshl_add_u32 {v(self.V_SO)}, {v(V_T)}, 6, {v(self.V_SO)}")
        A(f"s_lshl_b32 {s(T)}, {s(self.S_CG)}, 2")
        A(f"s_add_u32 {s(T)}, {s(T)}, {s(S_WAVE)}")
        A(f"s_lshl_b32 {s(S_C0 + 1)}, {s(T)}, 6")
        A(f"s_lshl_b32 {s(T)}, {s(T)}, 9")
        A(f"s_mul_i32 {s(self.S_OUT)}, {s(self.S_KG)}, 81920")
        A(f"s_add_u32 {s(self.S_OUT)}, {s(self.S_OUT)}, {s(T)}")
        A(f"s_add_u32 {s(self.S_OUT)}, {s(self.S_OUT)}, {WOP}")

    def init_stores(self):
        zero_flags(self.A, flag_row(F_WOP), S_IDX)

    def weights(self, WL):
        A = self.A
        A(f"s_mul_i32 {s(S_C0)}, {s(self.S_KG)}, {1024 * 1280}")
        A(f"s_add_u32 {s(S_C0)}, {s(S_C0)}, {s(S_C0 + 1)}")
        WL.add(lambda: make_srd(A, SRD_W, P_WO, 6144 * 1280), S_C0, 1280, 2, 32, self.wreg)

    def flag_soff(self, dst, rl, rs):
        row_of(self.A, dst, rl, rs, flag_row(F_O))

    def dma(self, rl, rs, ldsreg):
        A = self.A
        A(f"s_mul_i32 {s(T)}, {s(rs)}, {QKV_SEG}")
        A(f"s_lshl_b32 {s(T + 1)}, {s(self.S_KG)}, 16")
        A(f"s_add_u32 {s(T)}, {s(T)}, {s(T + 1)}")
        A(f"s_lshl_b32 {s(T + 1)}, {s(S_WAVE)}, 14")
        A(f"s_add_u32 {s(T)}, {s(T)}, {s(T + 1)}")
        A(f"s_add_u32 {s(T)}, {s(T)}, {OX}")
        A(f"s_add_u32 {s(T + 1)}, {s(T + 1)}, {s(ldsreg)}")
        self.lin_dma(T, T + 1, 16)

    def epilogue(self):
        A = self.A
        A(f"s_mul_i32 {s(T + 2)}, {s(S_S)}, {WOP_SEG}")
        A(f"s_add_u32 {s(T + 2)}, {s(T + 2)}, {s(self.S_OUT)}")
        A(f"s_add_u32 {s(T + 3)}, {s(T + 2)}, 40960")
        for tau in range(2):
            for tt in range(2):
                A(f"buffer_store_dwordx4 {v(self.acc(tau, tt), 4)}, {v(self.V_SO)}, {WS}, {s(T + 2 + tt)} offen offset:{tau * 256} sc1")
        set_flag(A, flag_row(F_WOP))


class W1(Gemm):
    name = "W1"
    pin = True
    V_C0, V_PK, V_TM = 80, 84, 96
    S_C1 = S_K

    def setup(self):
        A = self.A
        A(f"v_min_u32 {v(V_FO)}, 31, {v(V_LANE)}")
        A(f"v_lshlrev_b32 {v(V_FO)}, 2, {v(V_FO)}")
        A(f"v_mov_b32 {v(self.V_C0)}, {f32(GELU_C0)}")
        A(f"v_mov_b32 {v(self.V_C0 + 1)}, {f32(GELU_C1)}")
        A(f"s_mov_b32 {s(self.S_C1)}, {f32(GELU_C1)}")

    def init_stores(self):
        A = self.A
        zero_flags(A, flag_row(F_H), S_IDX)
        for i in range(4):
            A(f"v_mov_b32 {v(self.V_PK + i)}, 0")
        A(f"s_lshl_b32 {s(T)}, {s(S_IDX)}, 11")
        for l in range(2):
            for gseg in (0, 65):
                A(f"s_add_u32 {s(T + 1)}, {s(T)}, {HB + (l * 66 + gseg) * XSEG}")
                for tt in range(2):
                    A(f"buffer_store_dwordx4 {v(self.V_PK, 4)}, {v(V_L16)}, {WS}, {s(T + 1)} offen offset:{tt * 1024} sc1")

    def weights(self, WL):
        A = self.A
        A(f"s_lshl_b32 {s(S_C0)}, {s(S_IDX)}, 6")
        WL.add(lambda: make_srd(A, SRD_W, P_W1, 640 * 1280), S_C0, 1280, 2, 20, self.wreg)

    def flag_soff(self, dst, rl, rs):
        row_of(self.A, dst, rl, rs, flag_row(F_R1))

    def dma(self, rl, rs, ldsreg):
        A = self.A
        A(f"s_lshl_b32 {s(T)}, {s(rl)}, 6")
        A(f"s_add_u32 {s(T)}, {s(T)}, {s(rs)}")
        A(f"s_mul_i32 {s(T)}, {s(T)}, {XSEG}")
        A(f"s_mul_i32 {s(T + 1)}, {s(S_WAVE)}, 10240")
        A(f"s_add_u32 {s(T)}, {s(T)}, {s(T + 1)}")
        A(f"s_add_u32 {s(T)}, {s(T)}, {ZB}")
        A(f"s_add_u32 {s(T + 1)}, {s(T + 1)}, {s(ldsreg)}")
        self.lin_dma(T, T + 1, 10)

    def out_base(self):
        A = self.A
        A(f"s_mul_i32 {s(T + 2)}, {s(S_L)}, 66")
        A(f"s_add_u32 {s(T + 2)}, {s(T + 2)}, {s(S_S)}")
        A(f"s_mul_i32 {s(T + 2)}, {s(T + 2)}, {XSEG}")
        A(f"s_lshl_b32 {s(T + 3)}, {s(S_IDX)}, 11")
        A(f"s_add_u32 {s(T + 2)}, {s(T + 2)}, {s(T + 3)}")
        A(f"s_add_u32 {s(T + 2)}, {s(T + 2)}, {HB + XSEG}")
    out_kind = F_H

    def correct(self): pass

    def epilogue(self):
        A = self.A
        self.out_base()
        self.correct()
        vals = []
        for tt in range(2):
            for tau in range(2):
                vals += [self.acc(tau, tt) + r for r in range(4)]
        gelu_pack(A, vals, self.V_PK, [self.V_TM + i for i in range(17)], self.V_C0, self.S_C1)
        for tt in range(2):
            A(f"buffer_store_dwordx4 {v(self.V_PK + 4 * tt, 4)}, {v(V_L16)}, {WS}, {s(T + 2)} offen offset:{tt * 1024} sc1")
        set_flag(A, flag_row(self.out_kind))


class W3(W1, FoldMixin):
    name = "W3"
    pin = False
    jchk = 7
    bufsz = XSEGS
    out_kind = F_G
    V_CS, V_SR, V_ST, V_SA0, V_SA = 116, 124, 144, 148, 149

    def setup(self):
        A = self.A
        A(f"v_min_u32 {v(V_FO)}, 19, {v(V_LANE)}")
        A(f"v_lshlrev_b32 {v(V_FO)}, 2, {v(V_FO)}")
        A(f"v_mov_b32 {v(self.V_C0)}, {f32(GELU_C0)}")
        A(f"s_mov_b32 {s(self.S_C1)}, {f32(GELU_C1)}")
        self.sa_setup(self.V_SA0)

    def init_stores(self):
        zero_flags(self.A, flag_row(F_G), S_IDX)

    def weights(self, WL):
        A = self.A
        A(f"s_lshl_b32 {s(S_C0)}, {s(S_IDX)}, 6")
        WL.add(lambda: make_srd(A, SRD_W, P_W3, 640 * 3072), S_C0, 3072, 2, 20, self.wreg)

    def post_weights(self):
        self.csum(self.V_CS)

    def flag_soff(self, dst, rl, rs):
        row_of(self.A, dst, rl, rs, flag_row(F_X1))

    def dma(self, rl, rs, ldsreg):
        A = self.A
        A(f"s_lshl_b32 {s(T)}, {s(rl)}, 6")
        A(f"s_add_u32 {s(T)}, {s(T)}, {s(rs)}")
        A(f"s_mul_i32 {s(T)}, {s(T)}, {XSEGS}")
        A(f"s_add_u32 {s(T)}, {s(T)}, {X1B}")
        self.stats_dma(T, ldsreg)
        A(f"s_mul_i32 {s(T + 1)}, {s(S_WAVE)}, 10240")
        A(f"s_add_u32 {s(T)}, {s(T)}, {s(T + 1)}")
        A(f"s_add_u32 {s(T + 1)}, {s(T + 1)}, {s(ldsreg)}")
        self.lin_dma(T, T + 1, 10)

    def pre_mfma(self):
        A = self.A
        A(f"v_add_u32 {v(self.V_SA)}, {s(S_BUF)}, {v(self.V_SA0)}")
        stats_consume(A, self.V_SA, self.V_SR, V_T)

    def mid(self):
        stats_reduce(self.A, self.V_SR, self.V_ST, V_T)

    def out_base(self):
        A = self.A
        A(f"s_lshl_b32 {s(T + 2)}, {s(S_L)}, 6")
        A(f"s_add_u32 {s(T + 2)}, {s(T + 2)}, {s(S_S)}")
        A(f"s_mul_i32 {s(T + 2)}, {s(T + 2)}, {GSEG}")
        A(f"s_lshl_b32 {s(T + 3)}, {s(S_IDX)}, 11")
        A(f"s_add_u32 {s(T + 2)}, {s(T + 2)}, {s(T + 3)}")
        A(f"s_add_u32 {s(T + 2)}, {s(T + 2)}, {GB}")

    def correct(self):
        A = self.A
        for tau in range(2):
            for tt in range(2):
                for r in range(4):
                    x = self.acc(tau, tt) + r
                    A(f"v_fma_f32 {v(x)}, -{v(self.V_ST + 2 * tt)}, {v(self.V_CS + 4 * tau + r)}, {v(x)}")
        for tau in range(2):
            for tt in range(2):
                for r in range(4):
                    x = self.acc(tau, tt) + r
                    A(f"v_mul_f32 {v(x)}, {v(x)}, {v(self.V_ST + 2 * tt + 1)}")


def unpack8(A, dst, src):
    for i in range(4):
        A(f"v_lshlrev_b32 {v(dst + 2 * i)}, 16, {v(src + i)}")
        A(f"v_and_b32 {v(dst + 2 * i + 1)}, 0xffff0000, {v(src + i)}")


def stat_addr_setup(A, dst):
    A(f"v_lshrrev_b32 {v(V_T)}, 5, {v(V_LANE)}")
    A(f"v_and_b32 {v(V_T + 1)}, 15, {v(V_LANE)}")
    A(f"v_lshlrev_b32 {v(dst)}, 3, {v(V_T + 1)}")
    A(f"v_lshl_add_u32 {v(dst)}, {v(V_T)}, 7, {v(dst)}")


class W2(Gemm):
    name = "W2"
    nstores = 3
    V_SH = 80
    V_Y = 84
    V_YU = 96
    V_PK = 112
    V_SAD = 82

    def setup(self):
        A = self.A
        A(f"v_min_u32 {v(V_FO)}, 19, {v(V_LANE)}")
        A(f"v_lshlrev_b32 {v(V_FO)}, 2, {v(V_FO)}")
        A(f"s_lshr_b32 {s(T)}, {s(S_WAVE)}, 1")
        A(f"s_add_u32 {s(T)}, {s(T)}, 1")
        A(f"s_sub_u32 {s(T + 1)}, 32, {s(T)}")
        A(f"s_add_u32 {s(T)}, {s(T)}, 32")
        A(f"s_bitcmp1_b32 {s(S_WAVE)}, 0")
        A(f"s_cselect_b32 {s(T)}, {s(T)}, {s(T + 1)}")
        for tt in range(2):
            A(f"v_and_b32 {v(V_T)}, 15, {v(V_LANE)}")
            A(f"v_add_u32 {v(V_T)}, {s(T)}, {v(V_T)}")
            if tt:
                A(f"v_add_u32 {v(V_T)}, 16, {v(V_T)}")
            d = self.V_SH + tt
            A(f"v_lshrrev_b32 {v(V_T + 1)}, 5, {v(V_T)}")
            A(f"v_mul_u32_u24 {v(d)}, {XSEG}, {v(V_T + 1)}")
            A(f"v_bfe_u32 {v(V_T + 1)}, {v(V_T)}, 4, 1")
            A(f"v_lshl_add_u32 {v(d)}, {v(V_T + 1)}, 10, {v(d)}")
            A(f"v_and_b32 {v(V_T + 1)}, 15, {v(V_T)}")
            A(f"v_lshl_add_u32 {v(d)}, {v(V_T + 1)}, 4, {v(d)}")
            A(f"v_lshrrev_b32 {v(V_T + 1)}, 4, {v(V_LANE)}")
            A(f"v_lshl_add_u32 {v(d)}, {v(V_T + 1)}, 8, {v(d)}")
        stat_addr_setup(A, self.V_SAD)

    def init_stores(self):
        zero_flags(self.A, flag_row(F_X1), S_IDX)

    def weights(self, WL):
        A = self.A
        A(f"s_lshl_b32 {s(S_C0)}, {s(S_IDX)}, 6")
        WL.add(lambda: make_srd(A, SRD_W, P_W2, 640 * 1280), S_C0, 1280, 2, 20, self.wreg)

    def flag_soff(self, dst, rl, rs):
        A = self.A
        A(f"s_add_u32 {s(T)}, {s(rs)}, 1")
        A(f"s_min_u32 {s(T)}, {s(T)}, 63")
        row_of(A, dst, rl, T, flag_row(F_H))

    def dma(self, rl, rs, ldsreg):
        A = self.A
        A(f"s_mul_i32 {s(T)}, {s(rl)}, 66")
        A(f"s_add_u32 {s(T)}, {s(T)}, {s(rs)}")
        A(f"s_mul_i32 {s(T)}, {s(T)}, {XSEG}")
        A(f"s_mul_i32 {s(T + 1)}, {s(S_WAVE)}, 10240")
        A(f"s_add_u32 {s(T)}, {s(T)}, {s(T + 1)}")
        A(f"s_add_u32 {s(T)}, {s(T)}, {HB}")
        A(f"s_add_u32 {s(T + 1)}, {s(T + 1)}, {s(ldsreg)}")
        for jl in range(5):
            for tt in range(2):
                A(f"s_add_u32 m0, {s(T + 1)}, {(jl * 2 + tt) * 1024}")
                A(f"s_add_u32 {s(T + 3)}, {s(T)}, {jl * 2048}")
                A(f"buffer_load_dwordx4 {v(self.V_SH + tt)}, {WS}, {s(T + 3)} offen sc1 lds")

    def early(self):
        A = self.A
        A(f"s_lshl_b32 {s(T)}, {s(S_L)}, 6")
        A(f"s_add_u32 {s(T)}, {s(T)}, {s(S_S)}")
        A(f"s_mul_i32 {s(T)}, {s(T)}, {XSEG}")
        A(f"s_lshl_b32 {s(T + 1)}, {s(S_IDX)}, 11")
        A(f"s_add_u32 {s(T)}, {s(T)}, {s(T + 1)}")
        A(f"s_add_u32 {s(T)}, {s(T)}, {YB}")
        for tt in range(2):
            A(f"buffer_load_dwordx4 {v(self.V_Y + 4 * tt, 4)}, {v(V_P16)}, {WS}, {s(T)} offen offset:{tt * 1024} sc1")
        return 2

    def epilogue(self):
        A = self.A
        A(f"s_lshl_b32 {s(T + 2)}, {s(S_L)}, 6")
        A(f"s_add_u32 {s(T + 2)}, {s(T + 2)}, {s(S_S)}")
        A(f"s_mul_i32 {s(T + 2)}, {s(T + 2)}, {XSEGS}")
        A(f"s_add_u32 {s(T + 2)}, {s(T + 2)}, {X1B}")
        A(f"s_lshl_b32 {s(T + 3)}, {s(S_IDX)}, 8")
        A(f"s_add_u32 {s(T + 3)}, {s(T + 3)}, {s(T + 2)}")
        A(f"s_add_u32 {s(T + 3)}, {s(T + 3)}, 40960")
        A(f"s_lshl_b32 {s(T + 4)}, {s(S_IDX)}, 11")
        A(f"s_add_u32 {s(T + 2)}, {s(T + 2)}, {s(T + 4)}")
        xs = []
        for tt in range(2):
            unpack8(A, self.V_YU + 8 * tt, self.V_Y + 4 * tt)
        for tt in range(2):
            vals = [self.acc(0, tt) + r for r in range(4)] + [self.acc(1, tt) + r for r in range(4)]
            for i in range(0, 8, 2):
                rnd2(A, V_T, vals[i], vals[i + 1])
            for i in range(8):
                A(f"v_add_f32 {v(vals[i])}, {v(vals[i])}, {v(self.V_YU + 8 * tt + i)}")
            for i in range(0, 8, 2):
                rnd2(A, self.V_PK + 4 * tt + i // 2, vals[i], vals[i + 1])
            A(f"buffer_store_dwordx4 {v(self.V_PK + 4 * tt, 4)}, {v(V_L16)}, {WS}, {s(T + 2)} offen offset:{tt * 1024} sc1")
            xs.append(vals)
        stats_produce(A, xs[0], xs[1], V_T, self.V_SAD, T + 3)
        set_flag(A, flag_row(F_X1))


def row_helpers(A):
    def lane_reduce(r):
        for k in range(2):
            A(f"v_add_f32_dpp {v(r + k)}, {v(r + k)}, {v(r + k)} row_ror:4 row_mask:0xf bank_mask:0xf")
        for k in range(2):
            A(f"v_add_f32_dpp {v(r + k)}, {v(r + k)}, {v(r + k)} row_ror:8 row_mask:0xf bank_mask:0xf")
        for op in ("v_permlane32_swap_b32", "v_permlane16_swap_b32"):
            for k in range(2):
                A(f"v_mov_b32 {v(r + 2 + k)}, {v(r + k)}")
            for k in range(2):
                A(f"{op} {v(r + k)}, {v(r + 2 + k)}")
            for k in range(2):
                A(f"v_add_f32 {v(r + k)}, {v(r + k)}, {v(r + 2 + k)}")

    def sums(vals, r):
        A(f"v_pk_add_f32 {v(r + 4, 2)}, {v(vals[0], 2)}, {v(vals[2], 2)}")
        A(f"v_pk_mul_f32 {v(r + 2, 2)}, {v(vals[0], 2)}, {v(vals[0], 2)}")
        for i in range(2, len(vals), 2):
            if i >= 4:
                A(f"v_pk_add_f32 {v(r + 4, 2)}, {v(r + 4, 2)}, {v(vals[i], 2)}")
            A(f"v_pk_fma_f32 {v(r + 2, 2)}, {v(vals[i], 2)}, {v(vals[i], 2)}, {v(r + 2, 2)}")
        A(f"v_add_f32 {v(r)}, {v(r + 4)}, {v(r + 5)}")
        A(f"v_add_f32 {v(r + 1)}, {v(r + 2)}, {v(r + 3)}")

    def norm(vals, pks, st):
        for i in range(0, len(vals), 2):
            A(f"v_pk_add_f32 {v(vals[i], 2)}, {v(vals[i], 2)}, {v(st, 2)} op_sel_hi:[1,0] neg_lo:[0,1] neg_hi:[0,1]")
        for i in range(0, len(vals), 2):
            rnd2(A, V_T + (i & 2), vals[i], vals[i + 1])
        for i in range(0, len(vals), 2):
            A(f"v_pk_mul_f32 {v(vals[i], 2)}, {v(vals[i], 2)}, {v(st, 2)} op_sel:[0,1] op_sel_hi:[1,1]")
        for i in range(0, len(vals), 2):
            rnd2(A, pks[i // 2], vals[i], vals[i + 1])

    def store_pair(pk, vaddr, soff, off=0):
        A(f"v_permlane16_swap_b32 {v(pk)}, {v(pk + 2)}")
        A(f"v_permlane16_swap_b32 {v(pk + 1)}, {v(pk + 3)}")
        A(f"buffer_store_dwordx4 {v(pk, 4)}, {v(vaddr)}, {WS}, {s(soff)} offen offset:{off} sc1")

    return lane_reduce, sums, norm, store_pair


def gen_r0(A, cfg, nwg, s_worker, sx, STR=12):
    lane_reduce, sums, norm, store_pair = row_helpers(A)
    V_ST, V_A = 24, 32
    V_RAW, V_RU, V_NP, V_SO1, V_XR = V_A, V_A + 40, V_A + 80, V_A + 100, V_A + 101
    S_Q = S_NL
    A(f"s_and_b32 {s(S_Q)}, {s(s_worker)}, 7")
    A(f"s_lshr_b32 {s(S_NS)}, {s(s_worker)}, 3")
    dq, g_, c_ = V_T, V_T + 1, V_T + 2
    A(f"v_lshrrev_b32 {v(dq)}, 4, {v(V_LANE)}")
    A(f"v_bfe_u32 {v(g_)}, {v(V_LANE)}, 2, 2")
    A(f"v_and_b32 {v(c_)}, 3, {v(V_LANE)}")
    A(f"s_and_b32 {s(T + 1)}, {s(S_Q)}, 3")
    A(f"s_lshl_b32 {s(T)}, {s(S_Q)}, 8")
    A(f"v_lshlrev_b32 {v(V_SO1)}, 11, {v(dq)}")
    A(f"v_lshrrev_b32 {v(V_T + 3)}, 1, {v(dq)}")
    A(f"v_lshlrev_b32 {v(V_SO1)}, 11, {v(V_T + 3)}")
    A(f"v_and_b32 {v(V_T + 3)}, 1, {v(dq)}")
    A(f"v_lshl_add_u32 {v(V_SO1)}, {v(V_T + 3)}, 12, {v(V_SO1)}")
    A(f"v_add_u32 {v(V_T + 3)}, {s(T + 1)}, {v(g_)}")
    A(f"v_and_b32 {v(V_T + 3)}, 3, {v(V_T + 3)}")
    A(f"v_lshl_add_u32 {v(V_SO1)}, {v(V_T + 3)}, 6, {v(V_SO1)}")
    A(f"v_lshl_add_u32 {v(V_SO1)}, {v(c_)}, 4, {v(V_SO1)}")
    A(f"v_add_u32 {v(V_SO1)}, {s(T)}, {v(V_SO1)}")
    A(f"s_lshl_b32 {s(T)}, {s(S_Q)}, 2")
    A(f"v_add_u32 {v(V_T + 3)}, {s(T)}, {v(c_)}")
    A(f"v_mul_u32_u24 {v(V_XR)}, 1280, {v(V_T + 3)}")
    A(f"v_lshl_add_u32 {v(V_XR)}, {v(dq)}, 5, {v(V_XR)}")
    A(f"v_lshl_add_u32 {v(V_XR)}, {v(g_)}, 3, {v(V_XR)}")
    make_srd(A, SRD_W, P_X, 2048 * 1280)
    S_Z = S_DEF
    A(f"s_mov_b32 {s(S_Z)}, 0")

    def load(raw, seg_reg):
        A(f"s_mul_i32 {s(T + 2)}, {s(seg_reg)}, {32 * 1280}")
        for G in range(10):
            A(f"buffer_load_dwordx2 {v(raw + 2 * G, 2)}, {v(V_XR)}, {s(SRD_W, 4)}, {s(T + 2)} offen offset:{G * 128}")

    def body(raw, nxt, first):
        A(f"s_add_u32 {s(T + 6)}, {s(S_NS)}, {STR}")
        A(f"s_min_u32 {s(T + 6)}, {s(T + 6)}, 63")
        load(nxt, T + 6)
        A(f"s_mul_i32 {s(T + 4)}, {s(S_NS)}, {XSEG}")
        A(f"s_add_u32 {s(T + 4)}, {s(T + 4)}, {X0R}")
        A(f"s_mul_i32 {s(T + 5)}, {s(S_NS)}, {XSEGS}")
        A(f"s_add_u32 {s(T + 5)}, {s(T + 5)}, {XIN}")
        A("s_waitcnt vmcnt(10)")
        if not first:
            flag_store(A, S_FADDR)
        for i in range(20):
            A(f"v_lshlrev_b32 {v(V_RU + 2 * i)}, 16, {v(raw + i)}")
            A(f"v_and_b32 {v(V_RU + 2 * i + 1)}, 0xffff0000, {v(raw + i)}")
        vals = [V_RU + i for i in range(40)]
        sums(vals, V_ST)
        lane_reduce(V_ST)
        finish_stats(A, V_ST, V_ST + 1, V_T)
        norm(vals, [V_NP + i for i in range(20)], V_ST)
        for p in range(5):
            A(f"s_add_u32 {s(T + 3)}, {s(T + 5)}, {p * 8192}")
            store_pair(V_NP + 4 * p, V_SO1, T + 3)
        for p in range(5):
            A(f"s_add_u32 {s(T + 3)}, {s(T + 4)}, {p * 8192}")
            store_pair(raw + 4 * p, V_SO1, T + 3)
        flag_addr(A, S_FADDR, flag_row(F_XIN), S_Q, S_Z, S_NS)
        A(f"s_add_u32 {s(S_NS)}, {s(S_NS)}, {STR}")

    RA, RB = V_RAW, V_RAW + 20
    load(RA, S_NS)
    body(RA, RB, True)
    init_barrier_wait(A, V_T, nwg, cfg)
    flag_store(A, S_FADDR)
    body(RB, RA, True)
    A.label("R0_LOOP" + sx)
    body(RA, RB, False)
    A(f"s_cmp_ge_u32 {s(S_NS)}, 64")
    A(f"s_cbranch_scc1 R0_END{sx}")
    body(RB, RA, False)
    A(f"s_cmp_lt_u32 {s(S_NS)}, 64")
    A(f"s_cbranch_scc1 R0_LOOP{sx}")
    A.label("R0_END" + sx)
    A("s_waitcnt vmcnt(0)")
    flag_store(A, S_FADDR)


def gen_w4(A, cfg, nwg):
    V_IN, V_ACC, V_RD, V_XX, V_XU, V_PK = 16, 112, 144, 176, 184, 200
    V_SAD, V_OA, V_LW, V_LR = 204, 205, 206, 207
    S_J, S_TT = S_K, S_K + 1
    SRD_O = 72
    A.label("ROLE_W4")
    base_setup(A)
    if cfg.wgp2:
        A(f"v_min_u32 {v(V_FO)}, 47, {v(V_LANE)}")
    else:
        A(f"v_min_u32 {v(V_FO)}, 11, {v(V_LANE)}")
        A(f"s_mul_i32 {s(T)}, {s(S_WAVE)}, 12")
        A(f"v_add_u32 {v(V_FO)}, {s(T)}, {v(V_FO)}")
    A(f"v_lshlrev_b32 {v(V_FO)}, 2, {v(V_FO)}")
    A(f"s_and_b32 {s(T)}, {s(S_WAVE)}, 1")
    A(f"s_lshl_b32 {s(S_J)}, {s(S_ROLE)}, 1")
    A(f"s_add_u32 {s(S_J)}, {s(S_J)}, {s(T)}")
    A(f"s_lshr_b32 {s(S_TT)}, {s(S_WAVE)}, 1")
    A(f"v_and_b32 {v(V_T)}, 15, {v(V_LANE)}")
    A(f"v_lshlrev_b32 {v(V_SAD)}, 3, {v(V_T)}")
    A(f"s_lshl_b32 {s(T)}, {s(S_TT)}, 4")
    A(f"v_add_u32 {v(V_T)}, {s(T)}, {v(V_T)}")
    A(f"v_mul_u32_u24 {v(V_OA)}, 1280, {v(V_T)}")
    A(f"v_lshrrev_b32 {v(V_T)}, 4, {v(V_LANE)}")
    A(f"v_lshl_add_u32 {v(V_OA)}, {v(V_T)}, 3, {v(V_OA)}")
    A(f"s_lshl_b32 {s(T)}, {s(S_J)}, 6")
    A(f"v_add_u32 {v(V_OA)}, {s(T)}, {v(V_OA)}")
    make_srd(A, SRD_O, P_OUT, 2048 * 1280)
    zero_flags(A, flag_row(F_XIN), S_IDX, layers=(1,))
    init_barrier_arrive(A, V_T)
    if cfg.late_w:
        init_barrier_wait(A, V_T, nwg, cfg)
        for _ in range(cfg.late_w - 1 if cfg.late_w != 9 else 0):
            A("s_sleep 64")
        if cfg.late_w == 9:
            A(f"s_mov_b32 {s(T + 7)}, {flag_row(F_K)}")
            A(f"v_mov_b32 {v(V_T + 4)}, 0")
            flag_block(A, T + 7, vo=V_T + 4)
    for _ in range(cfg.dly_w):
        A("s_sleep 64")
    WL = WLoader(A, V_T, T + 3)
    A(f"s_mul_i32 {s(S_C0)}, {s(S_WAVE)}, {384 * 1280}")
    A(f"s_lshl_b32 {s(T)}, {s(S_ROLE)}, 7")
    A(f"s_add_u32 {s(S_C0)}, {s(S_C0)}, {s(T)}")
    WL.add(lambda: make_srd(A, SRD_W, P_W4, 1536 * 1280), S_C0, 1280, 4, 12, lambda tau, j: ("a", (tau * 12 + j) * 4))
    WL.emit(V_LANE)
    A("s_barrier")
    if not cfg.late_w:
        init_barrier_wait(A, V_T, nwg, cfg)
    def inreg(st_, b):
        if st_ == 0:
            return v(V_IN + 4 * b, 4)
        return a(192 + 4 * b, 4) if b < 16 else v(208 + 4 * (b - 16), 4)
    XXS = (V_XX, 240)
    S_CH = S_K + 2
    A(f"s_lshl_b32 {s(S_CH)}, {s(S_J)}, 1")
    A(f"s_add_u32 {s(S_CH)}, {s(S_CH)}, {s(S_TT)}")
    A(f"s_lshl_b32 {s(S_CH)}, {s(S_CH)}, 10")

    def loads(st_, rl, rs):
        L = []
        L.append(f"s_lshl_b32 {s(T + 6)}, {s(rl)}, 6")
        L.append(f"s_add_u32 {s(T + 6)}, {s(T + 6)}, {s(rs)}")
        L.append(f"s_mul_i32 {s(T + 5)}, {s(T + 6)}, {GSEG}")
        L.append(f"s_mul_i32 {s(T)}, {s(S_WAVE)}, 24576")
        L.append(f"s_add_u32 {s(T + 5)}, {s(T + 5)}, {s(T)}")
        L.append(f"s_add_u32 {s(T + 5)}, {s(T + 5)}, {GB}")
        for b in range(24):
            if b % 4 == 0:
                L.append(f"s_add_u32 {s(T + 3)}, {s(T + 5)}, {b * 1024}")
            L.append(f"buffer_load_dwordx4 {inreg(st_, b)}, {v(V_L16)}, {WS}, {s(T + 3)} offen offset:{(b % 4) * 1024} sc1")
        L.append(f"s_mul_i32 {s(T)}, {s(T + 6)}, {XSEGS}")
        L.append(f"s_add_u32 {s(T)}, {s(T)}, {s(S_CH)}")
        L.append(f"s_add_u32 {s(T)}, {s(T)}, {X1B}")
        L.append(f"buffer_load_dwordx4 {v(XXS[st_], 4)}, {v(V_L16)}, {WS}, {s(T)} offen sc1")
        L.append(f"s_mul_i32 {s(T)}, {s(T + 6)}, {XSEG}")
        L.append(f"s_add_u32 {s(T)}, {s(T)}, {s(S_CH)}")
        L.append(f"s_add_u32 {s(T)}, {s(T)}, {XM}")
        L.append(f"buffer_load_dwordx4 {v(XXS[st_] + 4, 4)}, {v(V_P16)}, {WS}, {s(T)} offen sc1")
        return L

    def acc(tau, tt):
        return V_ACC + (tt * 4 + tau) * 4

    def kstep(st_, j, fill=None, rate=0):
        for tt in range(2):
            for tau in range(4):
                c = "0" if j == 0 else v(acc(tau, tt), 4)
                A(f"v_mfma_f32_16x16x32_bf16 {v(acc(tau, tt), 4)}, {a((tau * 12 + j) * 4, 4)}, {inreg(st_, j * 2 + tt)}, {c}")
                for _ in range(rate):
                    if fill:
                        A(fill.pop(0))

    def body(st_, sx, other):
        A.label("W4_" + sx)
        A(f"s_add_u32 {s(T + 6)}, {s(S_I)}, 1")
        A(f"s_min_u32 {s(T + 6)}, {s(T + 6)}, 127")
        item_of(A, T + 6, S_NL, S_NS, cfg.LAG + cfg.dlt, 0, T)
        row_of(A, T + 7, S_NL, S_NS, flag_row(F_G))
        A(f"buffer_load_dword {v(V_FV)}, {v(V_FO)}, {WS}, {s(T + 7)} offen sc1")
        A(f"v_add_u32 {v(V_LW)}, {s(S_BUF)}, {v(V_LW0)}")
        A(f"v_add_u32 {v(V_LR)}, {s(S_BUF)}, {v(V_LR0)}")
        JC = 5
        for j in range(JC + 1):
            A(f"s_waitcnt vmcnt({25 - 2 * j})")
            kstep(st_, j)
        nof, nod, join = A.newlabel("nof"), A.newlabel("nod"), A.newlabel("join")
        A("s_waitcnt vmcnt(0)")
        A(f"s_cmp_eq_u32 {s(S_FADDR)}, {DUMMY}")
        A(f"s_cbranch_scc1 {nof}")
        flag_store(A, S_FADDR)
        A(f"s_mov_b32 {s(S_FADDR)}, {DUMMY}")
        A.label(nof)
        A(f"v_cmp_eq_u32 vcc, 0, {v(V_FV)}")
        A(f"s_mov_b32 {s(S_DEF)}, 1")
        A(f"s_cbranch_vccnz {nod}")
        A(f"s_mov_b32 {s(S_DEF)}, 0")
        if cfg.wgp2:
            rdy_set(A, 250, 1, T)
        fill = loads(1 - st_, S_NL, S_NS)
        for j in range(JC + 1, 12):
            kstep(st_, j, fill, 1)
        while fill:
            A(fill.pop(0))
        A(f"s_branch {join}")
        A.label(nod)
        for j in range(JC + 1, 12):
            kstep(st_, j)
        A.label(join)
        for d in range(4):
            tt, p = d >> 1, d & 1
            for k in range(2):
                A(f"ds_write_b128 {v(V_LW)}, {v(acc(2 * p + k, tt), 4)} offset:{d * 8192 + k * 1024}")
        unpack8(A, V_XU, XXS[st_])
        unpack8(A, V_XU + 8, XXS[st_] + 4)
        A("s_waitcnt lgkmcnt(0)")
        A("s_barrier")
        for i in range(8):
            A(f"ds_read_b128 {v(V_RD + 4 * i, 4)}, {v(V_LR)} offset:{i * 1024}")
        A("s_waitcnt lgkmcnt(0)")
        for i in range(0, 8, 2):
            A(f"v_pk_add_f32 {v(V_RD + i, 2)}, {v(V_RD + i, 2)}, {v(V_RD + 8 + i, 2)}")
            A(f"v_pk_add_f32 {v(V_RD + 16 + i, 2)}, {v(V_RD + 16 + i, 2)}, {v(V_RD + 24 + i, 2)}")
        for i in range(0, 8, 2):
            A(f"v_pk_add_f32 {v(V_RD + i, 2)}, {v(V_RD + i, 2)}, {v(V_RD + 16 + i, 2)}")
        X = [V_RD + i for i in range(8)]
        for i in range(0, 8, 2):
            rnd2(A, V_T, X[i], X[i + 1])
        for i in range(0, 8, 2):
            A(f"v_pk_add_f32 {v(X[i], 2)}, {v(X[i], 2)}, {v(V_XU + i, 2)}")
        for i in range(0, 8, 2):
            rnd2(A, V_T, X[i], X[i + 1])
        for i in range(0, 8, 2):
            A(f"v_pk_add_f32 {v(X[i], 2)}, {v(X[i], 2)}, {v(V_XU + 8 + i, 2)}")
        for i in range(0, 8, 2):
            rnd2(A, V_PK + i // 2, X[i], X[i + 1])
        l1, l2 = A.newlabel("w4o"), A.newlabel("w4n")
        A(f"s_cmp_lg_u32 {s(S_L)}, 0")
        A(f"s_cbranch_scc1 {l1}")
        A(f"s_mul_i32 {s(T + 2)}, {s(S_S)}, {XSEGS}")
        A(f"s_add_u32 {s(T + 2)}, {s(T + 2)}, {XIN + 64 * XSEGS}")
        A(f"s_add_u32 {s(T + 3)}, {s(T + 2)}, {s(S_CH)}")
        A(f"buffer_store_dwordx4 {v(V_PK, 4)}, {v(V_P16)}, {WS}, {s(T + 3)} offen sc1")
        t = V_T
        A(f"v_add_f32 {v(t)}, {v(X[0])}, {v(X[1])}")
        A(f"v_mul_f32 {v(t + 1)}, {v(X[0])}, {v(X[0])}")
        for i in range(1, 8):
            if i >= 2:
                A(f"v_add_f32 {v(t)}, {v(t)}, {v(X[i])}")
            A(f"v_fmac_f32 {v(t + 1)}, {v(X[i])}, {v(X[i])}")
        for op in ("v_permlane32_swap_b32", "v_permlane16_swap_b32"):
            A(f"v_mov_b32 {v(t + 2)}, {v(t)}")
            A(f"v_mov_b32 {v(t + 3)}, {v(t + 1)}")
            A(f"{op} {v(t)}, {v(t + 2)}")
            A(f"{op} {v(t + 1)}, {v(t + 3)}")
            A(f"v_add_f32 {v(t)}, {v(t)}, {v(t + 2)}")
            A(f"v_add_f32 {v(t + 1)}, {v(t + 1)}, {v(t + 3)}")
        A(f"s_lshl_b32 {s(T + 3)}, {s(S_J)}, 8")
        A(f"s_lshl_b32 {s(T)}, {s(S_TT)}, 7")
        A(f"s_add_u32 {s(T + 3)}, {s(T + 3)}, {s(T)}")
        A(f"s_add_u32 {s(T + 3)}, {s(T + 3)}, {s(T + 2)}")
        A(f"s_add_u32 {s(T + 3)}, {s(T + 3)}, 40960")
        A("s_mov_b64 exec, 0xffff")
        A(f"buffer_store_dwordx2 {v(t, 2)}, {v(V_SAD)}, {WS}, {s(T + 3)} offen sc1")
        A("s_mov_b64 exec, -1")
        A(f"s_mov_b32 {s(T + 6)}, 1")
        flag_addr(A, S_FADDR, flag_row(F_XIN), S_IDX, T + 6, S_S)
        A("s_waitcnt vmcnt(0)")
        flag_store(A, S_FADDR)
        A(f"s_mov_b32 {s(S_FADDR)}, {DUMMY}")
        A(f"s_branch {l2}")
        A.label(l1)
        A(f"s_mul_i32 {s(T + 2)}, {s(S_S)}, {32 * 1280}")
        A(f"buffer_store_dwordx2 {v(V_PK, 2)}, {v(V_OA)}, {s(SRD_O, 4)}, {s(T + 2)} offen")
        A(f"buffer_store_dwordx2 {v(V_PK + 2, 2)}, {v(V_OA)}, {s(SRD_O, 4)}, {s(T + 2)} offen offset:32")
        A("s_waitcnt vmcnt(2)")
        A.label(l2)
        A(f"s_add_u32 {s(S_I)}, {s(S_I)}, 1")
        A(f"s_cmp_eq_u32 {s(S_I)}, 128")
        A("s_cbranch_scc1 W4_END")
        A(f"s_xor_b32 {s(S_BUF)}, {s(S_BUF)}, 0x8000")
        A(f"s_mov_b32 {s(S_L)}, {s(S_NL)}")
        A(f"s_mov_b32 {s(S_S)}, {s(S_NS)}")
        A(f"s_cmp_eq_u32 {s(S_DEF)}, 0")
        A(f"s_cbranch_scc1 W4_{other}")
        row_of(A, T + 7, S_L, S_S, flag_row(F_G))
        if cfg.wgp2:
            wg_wait(A, cfg, 250, T + 7, T)
        else:
            flag_block(A, T + 7, sleep=1)
        for x in loads(1 - st_, S_L, S_S):
            A(x)
        A(f"s_branch W4_{other}")

    V_LW0, V_LR0 = 248, 249
    A(f"s_lshl_b32 {s(T)}, {s(S_WAVE)}, 11")
    A(f"v_add_u32 {v(V_LW0)}, {s(T)}, {v(V_L16)}")
    A(f"s_lshl_b32 {s(T)}, {s(S_WAVE)}, 13")
    A(f"v_add_u32 {v(V_LR0)}, {s(T)}, {v(V_L16)}")
    A(f"s_mov_b32 {s(S_I)}, 0")
    A(f"s_mov_b32 {s(S_BUF)}, 0")
    if cfg.wgp2:
        rdy_init(A, cfg, 250, 65536)
    A(f"s_mov_b32 {s(S_FADDR)}, {DUMMY}")
    item_of(A, S_I, S_L, S_S, cfg.LAG + cfg.dlt, 0, T)
    row_of(A, T + 7, S_L, S_S, flag_row(F_G))
    flag_block(A, T + 7)
    for x in loads(0, S_L, S_S):
        A(x)
    body(0, "A", "B")
    body(1, "B", "A")
    A.label("W4_END")
    if cfg.timing == 6:
        A("s_memrealtime s[98:99]")
        A("s_waitcnt lgkmcnt(0)")
        A("s_sub_u32 s98, s98, s96")
        A(f"v_mov_b32 {v(V_T)}, s98")
        A(f"v_mov_b32 {v(V_T + 1)}, 28")
        A("s_mov_b64 exec, 1")
        A(f"buffer_store_dword {v(V_T)}, {v(V_T + 1)}, {s(SRD_DBG, 4)}, 0 offen")
    A("s_endpgm")


def gen_att(A, cfg, nwg):
    V_Q, V_K, V_V, V_KP, V_VM = 16, 64, 112, 160, 172
    V_SX, V_SM, V_P = 184, 196, 212
    V_FO2, V_L8, V_NINF = 228, 229, 230
    V_PK = 232
    S_H, S_XG, S_FX, S_HO = S_K, S_K + 1, S_K + 2, S_K + 3
    S_MK = 72
    S_ML = 80
    S_SC, S_L2E = 84, 85
    A.label("ROLE_ATT")
    S_PAR = 86
    if cfg.a2 == 1:
        A(f"s_lshr_b32 {s(S_PAR)}, {s(S_ROLE)}, 4")
        A(f"s_and_b32 {s(S_ROLE)}, {s(S_ROLE)}, 15")
    base_setup(A)
    S_FO = 87
    if cfg.a2 == 2:
        A(f"s_mov_b32 {s(S_H)}, {s(S_ROLE)}")
        A(f"s_and_b32 {s(S_L)}, {s(S_WAVE)}, 1")
        A(f"s_lshr_b32 {s(S_PAR)}, {s(S_WAVE)}, 1")
        A(f"s_lshr_b32 {s(S_FO)}, {s(S_H)}, 3")
        A(f"s_lshl_b32 {s(S_FO)}, {s(S_FO)}, 5")
        A(f"s_and_b32 {s(T)}, {s(S_H)}, 7")
        A(f"s_add_u32 {s(S_FO)}, {s(S_FO)}, {s(T)}")
    elif cfg.attl:
        A(f"s_lshr_b32 {s(S_H)}, {s(S_ROLE)}, 1")
        A(f"s_lshl_b32 {s(S_H)}, {s(S_H)}, 2")
        A(f"s_add_u32 {s(S_H)}, {s(S_H)}, {s(S_WAVE)}")
        A(f"s_and_b32 {s(S_L)}, {s(S_ROLE)}, 1")
    else:
        A(f"s_lshr_b32 {s(S_H)}, {s(S_IDX)}, 1")
        A(f"s_and_b32 {s(S_L)}, {s(S_IDX)}, 1")
    A(f"v_lshlrev_b32 {v(V_L8)}, 3, {v(V_LANE)}")
    A(f"v_mov_b32 {v(V_NINF)}, 0xff800000")
    A(f"s_mov_b32 {s(S_ML)}, -1")
    A(f"s_mov_b32 {s(S_ML + 1)}, 0")
    A(f"s_mov_b32 {s(S_SC)}, {f32(192 ** -0.5)}")
    A(f"s_mov_b32 {s(S_L2E)}, {f32(math.log2(math.e))}")
    A(f"v_min_u32 {v(V_T)}, 8, {v(V_LANE)}")
    A(f"v_mul_u32_u24 {v(V_T + 1)}, 86, {v(V_T)}")
    A(f"v_lshrrev_b32 {v(V_T + 1)}, 8, {v(V_T + 1)}")
    A(f"v_mul_u32_u24 {v(V_T + 2)}, 3, {v(V_T + 1)}")
    A(f"v_sub_u32 {v(V_T)}, {v(V_T)}, {v(V_T + 2)}")
    A(f"s_mul_i32 {s(T)}, {s(S_H)}, 3")
    A(f"v_add_u32 {v(V_T)}, {s(T)}, {v(V_T)}")
    A(f"v_lshlrev_b32 {v(V_FO)}, 2, {v(V_T)}")
    A(f"v_lshl_add_u32 {v(V_FO)}, {v(V_T + 1)}, 16, {v(V_FO)}")
    A(f"v_min_u32 {v(V_FO2)}, {2 if cfg.c2 else 11}, {v(V_LANE)}")
    A(f"v_lshlrev_b32 {v(V_FO2)}, 2, {v(V_FO2)}")
    A(f"v_lshrrev_b32 {v(V_T)}, 4, {v(V_LANE)}")
    A(f"v_lshlrev_b32 {v(V_T)}, 2, {v(V_T)}")
    A(f"v_and_b32 {v(V_T + 1)}, 15, {v(V_LANE)}")
    for r in range(4):
        A(f"v_add_u32 {v(V_T + 2)}, {r}, {v(V_T)}")
        A(f"v_cmp_le_u32 {s(S_MK + 2 * r, 2)}, {v(V_T + 2)}, {v(V_T + 1)}")
    A(f"s_mul_i32 {s(S_HO)}, {s(S_H)}, 12288")
    A(f"s_mul_i32 {s(T)}, {s(S_L)}, {cfg.LAG}")
    A(f"s_mul_i32 {s(S_XG)}, {s(T)}, {XG_STEP}")
    A(f"s_mul_i32 {s(T + 1)}, {s(S_H)}, {XG_HEAD}")
    A(f"s_add_u32 {s(S_XG)}, {s(S_XG)}, {s(T + 1)}")
    A(f"s_mul_i32 {s(T + 1)}, {s(S_L)}, 9216")
    A(f"s_add_u32 {s(S_XG)}, {s(S_XG)}, {s(T + 1)}")
    A(f"s_add_u32 {s(S_XG)}, {s(S_XG)}, {XG + 3072}")
    A(f"s_mul_i32 {s(S_FX)}, {s(T)}, {FXG_STEP}")
    A(f"s_lshl_b32 {s(T + 1)}, {s(S_H)}, 6")
    A(f"s_add_u32 {s(S_FX)}, {s(S_FX)}, {s(T + 1)}")
    A(f"s_add_u32 {s(S_FX)}, {s(S_FX)}, {FXG}")
    if cfg.c2:
        A(f"s_mul_i32 {s(S_XG)}, {s(S_L)}, {64 * XG2_STEP}")
        A(f"s_mul_i32 {s(T + 1)}, {s(S_H)}, {XG2_HEAD}")
        A(f"s_add_u32 {s(S_XG)}, {s(S_XG)}, {s(T + 1)}")
        A(f"s_add_u32 {s(S_XG)}, {s(S_XG)}, {XG}")
        A(f"s_mul_i32 {s(S_FX)}, {s(S_L)}, {64 * FXG2_STEP}")
        A(f"s_lshl_b32 {s(T + 1)}, {s(S_H)}, 5")
        A(f"s_add_u32 {s(S_FX)}, {s(S_FX)}, {s(T + 1)}")
        A(f"s_add_u32 {s(S_FX)}, {s(S_FX)}, {FXG}")
    if cfg.xga == 4:
        A(f"s_mul_i32 {s(T + 1)}, {s(T)}, {XG_STEP}")
        A(f"s_sub_u32 {s(S_XG)}, {s(S_XG)}, {s(T + 1)}")
        A(f"s_mov_b32 {s(S_FX)}, {s(T)}")
        A(f"v_min_u32 {v(V_T)}, 17, {v(V_LANE)}")
        A(f"v_lshrrev_b32 {v(V_T + 1)}, 1, {v(V_T)}")
        A(f"v_lshlrev_b32 {v(V_T + 1)}, 10, {v(V_T + 1)}")
        A(f"v_and_b32 {v(V_T + 2)}, 1, {v(V_T)}")
        A(f"v_lshl_add_u32 {v(V_T + 1)}, {v(V_T + 2)}, 7, {v(V_T + 1)}")
        A(f"v_lshlrev_b32 {v(V_T + 2)}, 8, {v(V_T)}")
        A(f"v_add_u32 {v(V_T + 2)}, {3072 - 6 * 256}, {v(V_T + 2)}")
        A(f"v_cmp_gt_u32 vcc, 6, {v(V_T)}")
        A(f"v_cndmask_b32 {v(V_FO2)}, {v(V_T + 2)}, {v(V_T + 1)}, vcc")
    init_barrier_arrive(A, V_T)
    if cfg.a2 == 1:
        A(f"s_cmp_eq_u32 {s(S_PAR)}, 0")
        A("s_cbranch_scc1 ATT_R0")
        init_barrier_wait(A, V_T, nwg, cfg)
        A(f"s_mov_b32 {s(S_S)}, 1")
        A(f"s_add_u32 {s(S_XG)}, {s(S_XG)}, {XG2_STEP}")
        A(f"s_add_u32 {s(S_FX)}, {s(S_FX)}, {FXG2_STEP}")
        A("s_branch ATT_LOOP")
        A.label("ATT_R0")
    if cfg.a2 == 2:
        A(f"s_mov_b32 {s(T + 6)}, {s(S_IDX)}")
        gen_r0(A, cfg, nwg, T + 6, "A", 16)
        A(f"s_mov_b32 {s(S_S)}, {s(S_PAR)}")
        A(f"s_mul_i32 {s(T)}, {s(S_PAR)}, {XG2_STEP}")
        A(f"s_add_u32 {s(S_XG)}, {s(S_XG)}, {s(T)}")
        A(f"s_mul_i32 {s(T)}, {s(S_PAR)}, {FXG2_STEP}")
        A(f"s_add_u32 {s(S_FX)}, {s(S_FX)}, {s(T)}")
    else:
        A(f"s_add_u32 {s(T + 6)}, {s(S_IDX)}, 32")
        gen_r0(A, cfg, nwg, T + 6, "A")
        A(f"s_mov_b32 {s(S_S)}, 0")
    A.label("ATT_LOOP")
    row_of(A, T + 7, S_L, S_S, flag_row(F_Q))
    A(f"s_mul_i32 {s(T + 6)}, {s(S_S)}, {QKV_SEG}")
    A(f"s_add_u32 {s(T + 6)}, {s(T + 6)}, {s(S_HO)}")
    flag_block(A, T + 7, sleep=4)
    for base, buf in ((V_Q, QX), (V_K, KX), (V_V, VX)):
        for b in range(12):
            if b % 4 == 0:
                A(f"s_add_u32 {s(T + 3)}, {s(T + 6)}, {buf + b * 1024}")
            A(f"buffer_load_dwordx4 {v(base + 4 * b, 4)}, {v(V_L16)}, {WS}, {s(T + 3)} offen offset:{(b % 4) * 1024} {'nt ' if cfg.ant else ''}sc1")
    if cfg.touch & 1:
        A(f"v_lshlrev_b32 {v(V_PK)}, 7, {v(V_LANE)}")
        A(f"s_add_u32 {s(T + 3)}, {s(T + 6)}, {OX}")
        A(f"buffer_load_dword {v(V_PK + 1)}, {v(V_PK)}, {WS}, {s(T + 3)} offen sc1")
        A(f"s_add_u32 {s(T + 3)}, {s(T + 6)}, {OX + 4096}")
        A(f"buffer_load_dword {v(V_PK + 1)}, {v(V_PK)}, {WS}, {s(T + 3)} offen sc1")
    A(f"s_waitcnt vmcnt({14 if cfg.touch & 1 else 12})")
    combos = ((0, 0), (1, 0), (1, 1))
    for j in range(6):
        for ci, (qt, kt) in enumerate(combos):
            c = "0" if j == 0 else v(V_SX + 4 * ci, 4)
            A(f"v_mfma_f32_16x16x32_bf16 {v(V_SX + 4 * ci, 4)}, {v(V_K + (j * 2 + kt) * 4, 4)}, {v(V_Q + (j * 2 + qt) * 4, 4)}, {c}")

    def roundscale(vals):
        for i in range(0, len(vals), 2):
            rnd2(A, V_T, vals[i], vals[i + 1])
        for x in vals:
            A(f"v_mul_f32 {v(x)}, {s(S_SC)}, {v(x)}")
        for i in range(0, len(vals), 2):
            rnd2(A, V_T, vals[i], vals[i + 1])
    roundscale([V_SX + i for i in range(12)])
    for ci in (0, 2):
        for r in range(4):
            x = V_SX + 4 * ci + r
            A(f"v_cndmask_b32 {v(x)}, {v(V_NINF)}, {v(x)}, {s(S_MK + 2 * r, 2)}")
    if cfg.xga != 4:
        sv = cfg.fsl
        if cfg.asl >= 0:
            cfg.fsl = cfg.asl
        flag_block(A, S_FX, vo=V_FO2, sleep=cfg.att_sleep)
        cfg.fsl = sv
        for j in range(3):
            A(f"buffer_load_dwordx4 {v(V_KP + 4 * j, 4)}, {v(V_L16)}, {WS}, {s(S_XG)} offen offset:{j * 1024} sc1")
        A(f"s_add_u32 {s(T + 3)}, {s(S_XG)}, 3072")
        if cfg.c2:
            for i in range(3):
                A(f"buffer_load_dwordx4 {v(V_VM + 4 * i, 4)}, {v(V_L16)}, {WS}, {s(T + 3)} offen offset:{i * 1024} sc1")
            A("s_waitcnt vmcnt(3)")
        else:
            for i in range(6):
                A(f"buffer_load_dwordx2 {v(V_VM + 2 * i, 2)}, {v(V_L8)}, {WS}, {s(T + 3)} offen offset:{i * 512} sc1")
            A("s_waitcnt vmcnt(6)")
    else:
        A(f"s_and_b32 {s(T + 4)}, {s(S_FX)}, 15")
        A(f"s_mul_i32 {s(T + 4)}, {s(T + 4)}, {XG_STEP}")
        A(f"s_add_u32 {s(T + 4)}, {s(T + 4)}, {s(S_XG)}")
        A(f"s_add_u32 {s(T + 3)}, {s(T + 4)}, 3072")
        A(f"s_lshr_b32 {s(T + 5)}, {s(S_FX)}, 4")
        A(f"s_and_b32 {s(T + 5)}, {s(T + 5)}, 1")
        top = A.newlabel("xp")
        A.label(top)
        A(f"buffer_load_dword {v(V_FV)}, {v(V_FO2)}, {WS}, {s(T + 4)} offen sc1")
        A("s_waitcnt vmcnt(0)")
        A(f"v_and_b32 {v(V_FV)}, 1, {v(V_FV)}")
        A(f"v_cmp_ne_u32 vcc, {s(T + 5)}, {v(V_FV)}")
        poll_tail(A, top, sleep=cfg.asl)
        for j in range(3):
            A(f"buffer_load_dwordx4 {v(V_KP + 4 * j, 4)}, {v(V_L16)}, {WS}, {s(T + 4)} offen offset:{j * 1024} sc1")
        for i in range(6):
            A(f"buffer_load_dwordx2 {v(V_VM + 2 * i, 2)}, {v(V_L8)}, {WS}, {s(T + 3)} offen offset:{i * 512} sc1")
        A("s_waitcnt vmcnt(0)")
        regs = [V_KP + 4 * j for j in range(3)] + [V_VM + 2 * i for i in range(6)]
        for k in range(4):
            A(f"v_bitop3_b32 {v(V_T + k)}, {v(regs[2 * k])}, {v(regs[2 * k + 1])}, {s(T + 5)} bitop3:0x7e")
        A(f"v_xor_b32 {v(V_T + 4)}, {s(T + 5)}, {v(regs[8])}")
        A(f"v_or3_b32 {v(V_T)}, {v(V_T)}, {v(V_T + 1)}, {v(V_T + 2)}")
        A(f"v_or3_b32 {v(V_T)}, {v(V_T)}, {v(V_T + 3)}, {v(V_T + 4)}")
        A(f"v_and_b32 {v(V_T)}, 1, {v(V_T)}")
        A(f"v_cmp_ne_u32 vcc, 0, {v(V_T)}")
        poll_tail(A, top)
    for jp in range(3):
        for qt in range(2):
            for par in range(2):
                acc = V_SM + (qt * 2 + par) * 4
                c = "0" if jp == 0 else v(acc, 4)
                A(f"v_mfma_f32_16x16x32_bf16 {v(acc, 4)}, {v(V_KP + 4 * jp, 4)}, {v(V_Q + ((2 * jp + par) * 2 + qt) * 4, 4)}, {c}")
    Zs = []
    for qt in range(2):
        E, O = V_SM + qt * 8, V_SM + qt * 8 + 4
        for k in (0, 2):
            A(f"v_permlane32_swap_b32 {v(E + k)}, {v(E + k + 1)}")
            A(f"v_permlane32_swap_b32 {v(O + k)}, {v(O + k + 1)}")
        A(f"v_add_f32 {v(E)}, {v(E)}, {v(O + 1)}")
        A(f"v_add_f32 {v(E + 1)}, {v(E + 2)}, {v(O + 3)}")
        Zs.append([E, E + 1])
    roundscale(Zs[0] + Zs[1])
    for qt in range(2):
        X = [V_SX + i for i in range(4)] if qt == 0 else [V_SX + 4 + i for i in range(8)]
        S = X + Zs[qt]
        m, t2 = V_T + 2 * qt, V_T + 2 * qt + 1
        A(f"v_max3_f32 {v(m)}, {v(S[0])}, {v(S[1])}, {v(S[2])}")
        rest = S[3:]
        while rest:
            if len(rest) >= 2:
                A(f"v_max3_f32 {v(m)}, {v(m)}, {v(rest[0])}, {v(rest[1])}")
                rest = rest[2:]
            else:
                A(f"v_max_f32 {v(m)}, {v(m)}, {v(rest[0])}")
                rest = []
        xreduce(A, "v_max_f32", m, t2)
        A(f"v_mul_f32 {v(m)}, {s(S_L2E)}, {v(m)}")
        for x in S:
            A(f"v_fma_f32 {v(x)}, {v(x)}, {s(S_L2E)}, -{v(m)}")
        for x in S:
            A(f"v_exp_f32 {v(x)}, {v(x)}")
        A(f"v_add_f32 {v(m)}, {v(S[0])}, {v(S[1])}")
        for x in S[2:]:
            A(f"v_add_f32 {v(m)}, {v(m)}, {v(x)}")
        xreduce(A, "v_add_f32", m, t2)
        A(f"v_rcp_f32 {v(m)}, {v(m)}")
        for x in S:
            A(f"v_mul_f32 {v(x)}, {v(x)}, {v(m)}")
        P = V_P + 8 * qt
        A(f"v_cvt_pk_bf16_f32 {v(P)}, {v(X[0])}, {v(X[1])}")
        A(f"v_cvt_pk_bf16_f32 {v(P + 1)}, {v(X[2])}, {v(X[3])}")
        if qt == 0:
            A(f"v_mov_b32 {v(P + 2)}, 0")
            A(f"v_mov_b32 {v(P + 3)}, 0")
        else:
            A(f"v_cvt_pk_bf16_f32 {v(P + 2)}, {v(X[4])}, {v(X[5])}")
            A(f"v_cvt_pk_bf16_f32 {v(P + 3)}, {v(X[6])}, {v(X[7])}")
        Z = Zs[qt]
        if cfg.c2:
            A(f"v_cvt_pk_bf16_f32 {v(P + 4)}, {v(Z[0])}, {v(Z[1])}")
            A(f"v_mov_b32 {v(P + 5)}, 0")
            A(f"v_mov_b32 {v(P + 6)}, 0")
            A(f"v_cvt_pk_bf16_f32 {v(P + 7)}, {v(Z[0])}, {v(Z[1])}")
            continue
        A(f"v_mov_b32 {v(Z[0] + 2)}, {v(Z[0])}")
        A(f"v_mov_b32 {v(Z[0] + 3)}, {v(Z[1])}")
        A(f"v_permlane32_swap_b32 {v(Z[0])}, {v(Z[0] + 2)}")
        A(f"v_permlane32_swap_b32 {v(Z[1])}, {v(Z[0] + 3)}")
        A(f"v_cvt_pk_bf16_f32 {v(Z[0])}, {v(Z[0])}, {v(Z[0] + 2)}")
        A(f"v_cvt_pk_bf16_f32 {v(Z[1])}, {v(Z[1])}, {v(Z[0] + 3)}")
        for k in range(2):
            A(f"v_cndmask_b32 {v(P + 4 + k)}, 0, {v(Z[k])}, {s(S_ML, 2)}")
            A(f"v_cndmask_b32 {v(P + 6 + k)}, {v(Z[k])}, 0, {s(S_ML, 2)}")
    A("s_waitcnt vmcnt(0)")
    A(f"s_add_u32 {s(T + 6)}, {s(T + 6)}, {OX}")
    for qt in range(2):
        O = V_Q if qt == 0 else V_K
        P = V_P + 8 * qt
        for et in range(12):
            A(f"v_mfma_f32_16x16x32_bf16 {v(O + 4 * et, 4)}, {v(V_V + 4 * et, 4)}, {v(P, 4)}, 0")
        for et in range(12):
            A(f"v_mfma_f32_16x16x16_bf16 {v(O + 4 * et, 4)}, {v(V_VM + 2 * (et >> 1), 2)}, {v(P + 4 + 2 * (et & 1), 2)}, {v(O + 4 * et, 4)}")
    def o_out(LS):
        for qt in range(2):
            O = V_Q if qt == 0 else V_K
            for j in range(6):
                pk = V_PK + 4 * (j & 1)
                for i in range(4):
                    A(f"v_cvt_pk_bf16_f32 {v(pk + i)}, {v(O + 8 * j + 2 * i)}, {v(O + 8 * j + 2 * i + 1)}")
                if j % 2 == 0:
                    A(f"s_add_u32 {s(T + 3)}, {s(T + 6)}, {j * 2048 + qt * 1024}")
                A(f"buffer_store_dwordx4 {v(pk, 4)}, {v(V_L16)}, {WS}, {s(T + 3)} offen offset:{(j % 2) * 2048}{LS}")
        flag_addr(A, T, flag_row(F_O), S_FO if cfg.a2 == 2 else S_H)
        A("s_waitcnt vmcnt(0)")
        flag_store(A, T, LS)
    if cfg.oloc:
        A(f"s_cmp_lg_u32 {s(S_MODE)}, 0")
        A("s_cbranch_scc1 ATT_OS")
        o_out("")
        A("s_branch ATT_OJ")
        A.label("ATT_OS")
    o_out(" sc1")
    A.label("ATT_OJ")
    if cfg.xga == 4:
        A(f"s_add_u32 {s(S_FX)}, {s(S_FX)}, 1")
    else:
        A(f"s_add_u32 {s(S_XG)}, {s(S_XG)}, {XG2_STEP * (2 if cfg.a2 else 1) if cfg.c2 else XG_STEP}")
        A(f"s_add_u32 {s(S_FX)}, {s(S_FX)}, {FXG2_STEP * (2 if cfg.a2 else 1) if cfg.c2 else FXG_STEP}")
    A(f"s_add_u32 {s(S_S)}, {s(S_S)}, {2 if cfg.a2 else 1}")
    A(f"s_cmp_lt_u32 {s(S_S)}, 64")
    A("s_cbranch_scc1 ATT_LOOP")
    A("s_endpgm")


def gen_r1(A, cfg, nwg):
    V_XO, V_SO, V_SO3, V_XR, V_LWA, V_LRA, V_FO2 = 16, 17, 18, 19, 20, 21, 22
    V_ST = 24
    V_A = 32
    S_G3, S_KEEP, S_TQ = S_K, S_K + 1, S_K + 2
    HUGE = 0x80000000
    A.label("ROLE_R1")
    S_LAY = 80
    NKG = 4 if cfg.g3 & 16 else 6

    def row_of(A, dst, rl, rs, base):
        if not cfg.g3 & 16:
            return globals()["row_of"](A, dst, rl, rs, base)
        A(f"s_lshl_b32 {s(dst)}, {s(rl)}, 6")
        A(f"s_add_u32 {s(dst)}, {s(dst)}, {s(rs)}")
        A(f"s_mul_i32 {s(dst)}, {s(dst)}, 640")
        A(f"s_add_u32 {s(dst)}, {s(dst)}, {FWOP2}")
    if cfg.r2:
        A(f"s_lshr_b32 {s(S_LAY)}, {s(S_ROLE)}, 3")
        A(f"s_and_b32 {s(S_ROLE)}, {s(S_ROLE)}, 7")

    def item_of(A, i_reg, rl, rs, *a_):
        if not cfg.r2:
            return globals()["item_of"](A, i_reg, rl, rs, *a_)
        A(f"s_mov_b32 {s(rl)}, {s(S_LAY)}")
        A(f"s_sub_u32 {s(rs)}, {s(i_reg)}, 64")
    base_setup(A)
    dq, g_, c_ = V_T, V_T + 1, V_T + 2
    A(f"v_lshrrev_b32 {v(dq)}, 4, {v(V_LANE)}")
    A(f"v_bfe_u32 {v(g_)}, {v(V_LANE)}, 2, 2")
    A(f"v_and_b32 {v(c_)}, 3, {v(V_LANE)}")
    A(f"s_lshr_b32 {s(T)}, {s(S_ROLE)}, 2")
    A(f"s_lshl_b32 {s(S_TQ)}, {s(T)}, 10")
    A(f"s_and_b32 {s(T + 1)}, {s(S_ROLE)}, 3")
    A(f"s_lshl_b32 {s(T)}, {s(T + 1)}, 8")
    A(f"s_add_u32 {s(S_TQ)}, {s(S_TQ)}, {s(T)}")
    A(f"v_lshrrev_b32 {v(V_T + 3)}, 1, {v(dq)}")
    A(f"v_lshlrev_b32 {v(V_SO3)}, 11, {v(V_T + 3)}")
    A(f"v_add_u32 {v(V_T + 3)}, {s(T + 1)}, {v(g_)}")
    A(f"v_and_b32 {v(V_T + 3)}, 3, {v(V_T + 3)}")
    A(f"v_lshl_add_u32 {v(V_SO3)}, {v(V_T + 3)}, 6, {v(V_SO3)}")
    A(f"v_lshl_add_u32 {v(V_SO3)}, {v(c_)}, 4, {v(V_SO3)}")
    A(f"v_add_u32 {v(V_SO3)}, {s(S_TQ)}, {v(V_SO3)}")
    A(f"v_and_b32 {v(V_T + 3)}, 1, {v(dq)}")
    A(f"v_lshl_add_u32 {v(V_XO)}, {v(V_T + 3)}, 3, {v(V_SO3)}")
    A(f"v_lshl_add_u32 {v(V_SO)}, {v(V_T + 3)}, 14, {v(V_SO3)}")
    A(f"s_lshl_b32 {s(T)}, {s(S_ROLE)}, 2")
    A(f"v_add_u32 {v(V_T + 3)}, {s(T)}, {v(c_)}")
    A(f"v_mul_u32_u24 {v(V_XR)}, 1280, {v(V_T + 3)}")
    A(f"v_lshl_add_u32 {v(V_XR)}, {v(dq)}, 5, {v(V_XR)}")
    A(f"v_lshl_add_u32 {v(V_XR)}, {v(g_)}, 3, {v(V_XR)}")
    A(f"v_lshlrev_b32 {v(V_LRA)}, 5, {v(c_)}")
    A(f"s_lshl_b32 {s(T)}, {s(S_WAVE)}, 3")
    A(f"v_add_u32 {v(V_LWA)}, {s(T)}, {v(V_LRA)}")
    A(f"v_min_u32 {v(V_FO)}, {39 if cfg.g3 & 16 else 59}, {v(V_LANE)}")
    A(f"v_lshlrev_b32 {v(V_FO)}, 3, {v(V_FO)}")
    if cfg.g3 & 16:
        A(f"s_lshr_b32 {s(T)}, {s(S_ROLE)}, 2")
        A(f"s_mul_i32 {s(T)}, {s(T)}, 320")
        A(f"v_add_u32 {v(V_FO)}, {s(T)}, {v(V_FO)}")
    A(f"s_cmp_lt_u32 {s(S_WAVE)}, 2")
    A(f"s_cselect_b32 {s(S_G3)}, 0, {HUGE}")
    A(f"s_cselect_b32 {s(S_KEEP)}, 1.0, 0")
    init_barrier_arrive(A, V_T)

    lane_reduce, sums, norm, store_pair = row_helpers(A)
    if cfg.a2 == 2:
        init_barrier_wait(A, V_T, nwg, cfg)
    else:
        if cfg.r2:
            A(f"s_cmp_eq_u32 {s(S_LAY)}, 0")
            A("s_cbranch_scc1 R1_R0")
            init_barrier_wait(A, V_T, nwg, cfg)
            A("s_branch R1_GO")
            A.label("R1_R0")
        A(f"s_mov_b32 {s(T + 6)}, {s(S_IDX)}")
        gen_r0(A, cfg, nwg, T + 6, "R")
    A.label("R1_GO")
    st = Stamper(A, cfg, 84, 10)
    A(f"s_mov_b32 s83, {s(S_GID)}")
    st.init()

    SETS = (V_A, V_A + 80)
    V_XU = V_A + 160
    V_PM, V_PY, V_PZ = V_A + 172, V_A + 180, V_A + 188
    V_LR = V_A + 196
    V_FW = V_A + 204
    V_RDY = V_A + 206

    def r1_loads(base, rl, rs, A=A, TS=T + 3):
        A(f"s_mul_i32 {s(T + 6)}, {s(rs)}, {WOP_SEG}")
        A(f"s_mul_i32 {s(T)}, {s(S_ROLE)}, 10240")
        A(f"s_add_u32 {s(T + 6)}, {s(T + 6)}, {s(T)}")
        A(f"s_lshl_b32 {s(T)}, {s(S_WAVE)}, 10")
        A(f"s_add_u32 {s(T + 6)}, {s(T + 6)}, {s(T)}")
        A(f"s_add_u32 {s(T + 6)}, {s(T + 6)}, {WOP}")
        A(f"s_mul_i32 {s(T)}, {s(rs)}, {XSEG}")
        A(f"s_add_u32 {s(T)}, {s(T)}, {X0R}")
        A(f"s_mul_i32 {s(T + 1)}, {s(rs)}, {XSEGS}")
        A(f"s_add_u32 {s(T + 1)}, {s(T + 1)}, {XIN + 64 * XSEGS}")
        A(f"s_cmp_eq_u32 {s(rl)}, 0")
        A(f"s_cselect_b32 {s(T + 5)}, {s(T)}, {s(T + 1)}")
        A(f"s_lshl_b32 {s(T)}, {s(S_WAVE)}, 12")
        A(f"s_add_u32 {s(T + 5)}, {s(T + 5)}, {s(T)}")
        if not cfg.r1h:
            for G in range(3):
                A(f"s_add_u32 {s(TS)}, {s(T + 5)}, {G * 16384}")
                if G == 2:
                    A(f"s_add_u32 {s(TS)}, {s(TS)}, {s(S_G3)}")
                A(f"buffer_load_dwordx2 {v(base + 72 + 2 * G, 2)}, {v(V_XO)}, {WS}, {s(TS)} offen sc1")
            for kg in range(NKG):
                for G in range(3):
                    A(f"s_add_u32 {s(TS)}, {s(T + 6)}, {kg * 81920 + G * 4096}")
                    if G == 2:
                        A(f"s_add_u32 {s(TS)}, {s(TS)}, {s(S_G3)}")
                    A(f"buffer_load_dwordx4 {v(base + kg * 12 + G * 4, 4)}, {v(V_L16)}, {WS}, {s(TS)} offen sc1")
        else:
            l2, l3 = A.newlabel("g2"), A.newlabel("g3")
            A(f"s_cmp_lt_u32 {s(S_WAVE)}, 2")
            A(f"s_cbranch_scc1 {l2}")
            for i in range(4):
                A(f"v_mov_b32 {v(base + 8 + i)}, 0")
            A(f"s_branch {l3}")
            A.label(l2)
            A(f"s_add_u32 {s(TS)}, {s(T + 5)}, {2 * 16384}")
            A(f"buffer_load_dwordx2 {v(base + 76, 2)}, {v(V_XO)}, {WS}, {s(TS)} offen sc1")
            for kg in range(NKG):
                A(f"s_add_u32 {s(TS)}, {s(T + 6)}, {kg * 81920 + 2 * 4096}")
                A(f"buffer_load_dwordx4 {v(base + kg * 12 + 8, 4)}, {v(V_L16)}, {WS}, {s(TS)} offen sc1")
            A.label(l3)
            for G in range(2):
                A(f"s_add_u32 {s(TS)}, {s(T + 5)}, {G * 16384}")
                A(f"buffer_load_dwordx2 {v(base + 72 + 2 * G, 2)}, {v(V_XO)}, {WS}, {s(TS)} offen sc1")
            for kg in range(NKG):
                for G in range(2):
                    A(f"s_add_u32 {s(TS)}, {s(T + 6)}, {kg * 81920 + G * 4096}")
                    A(f"buffer_load_dwordx4 {v(base + kg * 12 + G * 4, 4)}, {v(V_L16)}, {WS}, {s(TS)} offen sc1")

    def pks(b):
        return [b, b + 1, b + 2, b + 3, b + 4, b + 5]

    S_O1, S_O3 = S_K + 3, S_K + 4

    S_YD = S_K + 5

    def emit_out(b, buf):
        A(f"v_mov_b32 {v(b + 6)}, {v(b + 4)}")
        A(f"v_mov_b32 {v(b + 7)}, {v(b + 5)}")
        A(f"s_add_u32 {s(T + 3)}, {s(S_O1)}, {buf}")
        if buf == YB:
            A(f"s_add_u32 {s(T + 3)}, {s(T + 3)}, {s(S_YD)}")
        store_pair(b, V_SO, T + 3)
        A(f"s_add_u32 {s(T + 3)}, {s(S_O3)}, {buf}")
        if buf == YB:
            A(f"s_add_u32 {s(T + 3)}, {s(T + 3)}, {s(S_YD)}")
        store_pair(b + 4, V_SO3, T + 3)

    def r1_full(cur, nxt, sx, other):
        V_PL, V_XX = cur, cur + 72
        X = [V_PL + i for i in range(12)]

        def wg_stats(area):
            sums(X, V_ST)
            lane_reduce(V_ST)
            A(f"ds_write_b64 {v(V_LWA)}, {v(V_ST, 2)} offset:{area}")
            A("s_waitcnt lgkmcnt(0)")
            A("s_barrier")
            A(f"ds_read_b128 {v(V_LR, 4)}, {v(V_LRA)} offset:{area}")
            A(f"ds_read_b128 {v(V_LR + 4, 4)}, {v(V_LRA)} offset:{area + 16}")

        def wg_stats_fin():
            A("s_waitcnt lgkmcnt(0)")
            A(f"v_pk_add_f32 {v(V_LR, 2)}, {v(V_LR, 2)}, {v(V_LR + 2, 2)}")
            A(f"v_pk_add_f32 {v(V_LR + 4, 2)}, {v(V_LR + 4, 2)}, {v(V_LR + 6, 2)}")
            A(f"v_pk_add_f32 {v(V_ST, 2)}, {v(V_LR, 2)}, {v(V_LR + 4, 2)}")
            finish_stats(A, V_ST, V_ST + 1, V_T)

        A.label("R1_" + sx)
        A(f"s_add_u32 {s(T + 6)}, {s(S_I)}, 1")
        A(f"s_min_u32 {s(T + 6)}, {s(T + 6)}, 127")
        item_of(A, T + 6, S_NL, S_NS, cfg.LAG + cfg.dlt, 0, T)
        row_of(A, T + 7, S_NL, S_NS, flag_row(F_WOP))
        if cfg.r1e != 1:
            A(f"buffer_load_dwordx2 {v(V_FW, 2)}, {v(V_FO)}, {WS}, {s(T + 7)} offen sc1")
        A(f"s_lshl_b32 {s(T)}, {s(S_L)}, 6")
        A(f"s_add_u32 {s(T)}, {s(T)}, {s(S_S)}")
        A(f"s_mul_i32 {s(S_O1)}, {s(T)}, {XSEG}")
        A(f"s_mul_i32 {s(S_YD)}, {s(T)}, {XSEGS - XSEG}")
        A(f"s_lshl_b32 {s(T)}, {s(S_WAVE)}, 12")
        A(f"s_add_u32 {s(S_O1)}, {s(S_O1)}, {s(T)}")
        A(f"s_add_u32 {s(S_O3)}, {s(S_O1)}, {8 * 4096}")
        A(f"s_add_u32 {s(S_O3)}, {s(S_O3)}, {s(S_G3)}")
        lp, lj = A.newlabel("r1p"), A.newlabel("r1j")

        def ladder(y):
            PG = 2 if cfg.r1h else 3
            A(f"s_waitcnt vmcnt({PG * NKG + y})")
            for i in range(6):
                A(f"v_lshlrev_b32 {v(V_XU + 2 * i)}, 16, {v(V_XX + i)}")
                A(f"v_and_b32 {v(V_XU + 2 * i + 1)}, 0xffff0000, {v(V_XX + i)}")
            for kg in range(1, NKG):
                A(f"s_waitcnt vmcnt({PG * (NKG - 1 - kg) + y})")
                for i in range(0, 12, 2):
                    A(f"v_pk_add_f32 {v(V_PL + i, 2)}, {v(V_PL + i, 2)}, {v(V_PL + kg * 12 + i, 2)}")
        A(f"s_cmp_eq_u32 {s(S_DEF)}, 0")
        A(f"s_cbranch_scc1 {lp}")
        ladder(0 if cfg.r1e == 1 else 1)
        A(f"s_branch {lj}")
        A.label(lp)
        ladder(cfg.r1e if cfg.r1e else 7)
        A.label(lj)
        st(4)
        for i in range(0, 12, 2):
            rnd2(A, V_T, X[i], X[i + 1])
        for i in range(0, 12, 2):
            A(f"v_pk_add_f32 {v(X[i], 2)}, {v(X[i], 2)}, {v(V_XU + i, 2)}")
        for i in range(0, 12, 2):
            rnd2(A, V_PM + i // 2, X[i], X[i + 1])
        wg_stats(128 if (cfg.zf and sx == "B") else 0)
        if not cfg.r1e:
            nof, nod = A.newlabel("nof"), A.newlabel("nod")
            st(5)
            A("s_waitcnt vmcnt(0)")
            st(6)
            A(f"s_cmp_eq_u32 {s(S_FADDR)}, {DUMMY}")
            A(f"s_cbranch_scc1 {nof}")
            flag_store(A, S_FADDR)
            A.label(nof)
            A(f"v_min_u32 {v(V_FW)}, {v(V_FW)}, {v(V_FW + 1)}")
            A(f"v_cmp_eq_u32 vcc, 0, {v(V_FW)}")
            A(f"s_mov_b32 {s(S_DEF)}, 1")
            A(f"s_cbranch_vccnz {nod}")
            A(f"s_mov_b32 {s(S_DEF)}, 0")
            r1_loads(nxt, S_NL, S_NS)
            A.label(nod)
        if cfg.r1e == 2:
            assert not cfg.r1h
            late = A.newlabel("late")
            A("s_waitcnt vmcnt(0)")
            A(f"v_min_u32 {v(V_FW)}, {v(V_FW)}, {v(V_FW + 1)}")
            A(f"v_cmp_eq_u32 vcc, 0, {v(V_FW)}")
            A(f"s_cbranch_vccnz {late}")
            E = Capture()
            lr, sm, nm_, sp = row_helpers(E)

            def fin(E=E):
                E("s_waitcnt lgkmcnt(0)")
                E(f"v_pk_add_f32 {v(V_LR, 2)}, {v(V_LR, 2)}, {v(V_LR + 2, 2)}")
                E(f"v_pk_add_f32 {v(V_LR + 4, 2)}, {v(V_LR + 4, 2)}, {v(V_LR + 6, 2)}")
                E(f"v_pk_add_f32 {v(V_ST, 2)}, {v(V_LR, 2)}, {v(V_LR + 4, 2)}")
                finish_stats(E, V_ST, V_ST + 1, V_T)

            def out(b, buf, E=E):
                E(f"v_mov_b32 {v(b + 6)}, {v(b + 4)}")
                E(f"v_mov_b32 {v(b + 7)}, {v(b + 5)}")
                E(f"s_add_u32 {s(T + 3)}, {s(S_O1)}, {buf}")
                sp(b, V_SO, T + 3)
                E(f"s_add_u32 {s(T + 3)}, {s(S_O3)}, {buf}")
                sp(b + 4, V_SO3, T + 3)
            fin()
            nm_(X, pks(V_PY), V_ST)
            for i in range(8, 12):
                E(f"v_mul_f32 {v(X[i])}, {s(S_KEEP)}, {v(X[i])}")
            sm(X, V_ST)
            lr(V_ST)
            E(f"ds_write_b64 {v(V_LWA)}, {v(V_ST, 2)} offset:128")
            E("s_waitcnt lgkmcnt(0)")
            E("s_barrier")
            E(f"ds_read_b128 {v(V_LR, 4)}, {v(V_LRA)} offset:128")
            E(f"ds_read_b128 {v(V_LR + 4, 4)}, {v(V_LRA)} offset:144")
            out(V_PM, XM)
            out(V_PY, YB)
            fin()
            nm_(X, pks(V_PZ), V_ST)
            out(V_PZ, ZB)
            Ld = Capture()
            r1_loads(nxt, S_NL, S_NS, Ld, T + 2)
            grp, cur_ = [], []
            for x in Ld.l:
                cur_.append(x)
                if x.startswith("buffer_load"):
                    grp.append(cur_)
                    cur_ = []
            if cfg.wgp2:
                rdy_set(A, V_RDY, 1, T)
            step = max(1, (len(E.l) * 2 // 3) // len(grp))
            for n, x in enumerate(E.l):
                if n % step == 0 and grp:
                    for y in grp.pop(0):
                        A(y)
                A(x)
            assert not grp
            flag_addr(A, S_FADDR, flag_row(F_R1))
            A(f"s_add_u32 {s(S_I)}, {s(S_I)}, 1")
            A(f"s_cmp_eq_u32 {s(S_I)}, 128")
            A("s_cbranch_scc1 R1_END")
            A(f"s_mov_b32 {s(S_L)}, {s(S_NL)}")
            A(f"s_mov_b32 {s(S_S)}, {s(S_NS)}")
            A(f"s_mov_b32 {s(S_DEF)}, 0")
            A("s_waitcnt vmcnt(0)")
            flag_store(A, S_FADDR)
            A(f"s_branch R1_{other}")
            A.label(late)
        if not cfg.zf:
            wg_stats_fin()
            norm(X, pks(V_PY), V_ST)
            for i in range(8, 12):
                A(f"v_mul_f32 {v(X[i])}, {s(S_KEEP)}, {v(X[i])}")
            wg_stats(128)
            if cfg.r1e:
                A(f"buffer_load_dwordx2 {v(V_FW, 2)}, {v(V_FO)}, {WS}, {s(T + 7)} offen sc1")
            emit_out(V_PM, XM)
            emit_out(V_PY, YB)
            wg_stats_fin()
            norm(X, pks(V_PZ), V_ST)
            emit_out(V_PZ, ZB)
        else:
            A(f"buffer_load_dwordx2 {v(V_FW, 2)}, {v(V_FO)}, {WS}, {s(T + 7)} offen sc1")
            emit_out(V_PM, XM)
            A("s_waitcnt lgkmcnt(0)")
            A(f"v_pk_add_f32 {v(V_LR, 2)}, {v(V_LR, 2)}, {v(V_LR + 2, 2)}")
            A(f"v_pk_add_f32 {v(V_LR + 4, 2)}, {v(V_LR + 4, 2)}, {v(V_LR + 6, 2)}")
            A(f"v_pk_add_f32 {v(V_ST, 2)}, {v(V_LR, 2)}, {v(V_LR + 4, 2)}")
            finish_stats(A, V_ST, V_ST + 1, V_T, keep=V_ST + 4)
            norm(X, pks(V_PY), V_ST)
            emit_out(V_PY, YB)
            A(f"v_sub_f32 {v(V_ST + 4)}, {v(V_ST + 4)}, {v(V_ST)}")
            A(f"v_mul_f32 {v(V_ST + 5)}, {v(V_ST + 5)}, {v(V_ST + 1)}")
            A(f"v_mul_f32 {v(V_ST + 4)}, {v(V_ST + 4)}, {v(V_ST + 1)}")
            A(f"v_mul_f32 {v(V_ST + 5)}, {v(V_ST + 5)}, {v(V_ST + 1)}")
            finish_stats(A, V_ST + 4, V_ST + 5, V_T, scaled=True)
            A(f"s_lshl_b32 {s(T)}, {s(S_WAVE)}, 12")
            A(f"s_sub_u32 {s(T + 3)}, {s(S_O1)}, {s(T)}")
            A(f"s_add_u32 {s(T + 3)}, {s(T + 3)}, {s(S_YD)}")
            A(f"s_lshl_b32 {s(T)}, {s(S_ROLE)}, 5")
            A(f"s_add_u32 {s(T + 3)}, {s(T + 3)}, {s(T)}")
            A(f"s_add_u32 {s(T + 3)}, {s(T + 3)}, {YB + 40960}")
            A(f"v_lshlrev_b32 {v(V_T)}, 3, {v(V_LANE)}")
            lz = A.newlabel("zs")
            A(f"s_cmp_lg_u32 {s(S_WAVE)}, 3")
            A(f"s_cbranch_scc1 {lz}")
            A("s_mov_b64 exec, 15")
            A(f"buffer_store_dwordx2 {v(V_ST + 4, 2)}, {v(V_T)}, {WS}, {s(T + 3)} offen sc1")
            A("s_mov_b64 exec, -1")
            A.label(lz)
        flag_addr(A, S_FADDR, flag_row(F_R1))
        st(7)
        A(f"s_add_u32 {s(S_I)}, {s(S_I)}, 1")
        A(f"s_cmp_eq_u32 {s(S_I)}, 128")
        A("s_cbranch_scc1 R1_END")
        A(f"s_mov_b32 {s(S_L)}, {s(S_NL)}")
        A(f"s_mov_b32 {s(S_S)}, {s(S_NS)}")
        if cfg.r1e:
            nrdy = A.newlabel("nr")
            A(f"s_waitcnt vmcnt({4 if cfg.zf else 6})")
            A(f"v_min_u32 {v(V_FW)}, {v(V_FW)}, {v(V_FW + 1)}")
            A(f"v_cmp_eq_u32 vcc, 0, {v(V_FW)}")
            A(f"s_cbranch_vccnz {nrdy}")
            if cfg.wgp2:
                rdy_set(A, V_RDY, 0, T)
            r1_loads(nxt, S_L, S_S)
            A(f"s_waitcnt vmcnt({2 + 2 * NKG if cfg.r1h else 3 + 3 * NKG})")
            flag_store(A, S_FADDR)
            A(f"s_mov_b32 {s(S_DEF)}, 0")
            A(f"s_branch R1_{other}")
            A.label(nrdy)
            A(f"s_mov_b32 {s(S_DEF)}, 1")
        else:
            A(f"s_cmp_eq_u32 {s(S_DEF)}, 0")
            A(f"s_cbranch_scc1 R1_{other}")
        A("s_waitcnt vmcnt(0)")
        flag_store(A, S_FADDR)
        A(f"s_mov_b32 {s(S_FADDR)}, {DUMMY}")
        st(8)
        row_of(A, T + 7, S_L, S_S, flag_row(F_WOP))
        if cfg.wgp2:
            wg_wait(A, cfg, V_RDY, T + 7, T, vv=V_FW, wide=True)
        else:
            flag_block(A, T + 7, vv=V_FW, wide=True, sleep=1)
        st(9)
        r1_loads(nxt, S_L, S_S)
        A(f"s_branch R1_{other}")

    A(f"s_mov_b32 {s(S_I)}, {64 if cfg.r2 else 0}")
    A(f"s_mov_b32 {s(S_DEF)}, 1")
    if cfg.wgp2:
        rdy_init(A, cfg, V_RDY, 1024)
    A(f"s_mov_b32 {s(S_FADDR)}, {DUMMY}")
    if cfg.r1h:
        for b_ in SETS:
            for kg in range(NKG):
                for i in range(4):
                    A(f"v_mov_b32 {v(b_ + kg * 12 + 8 + i)}, 0")
            A(f"v_mov_b32 {v(b_ + 76)}, 0")
            A(f"v_mov_b32 {v(b_ + 77)}, 0")
    item_of(A, S_I, S_L, S_S, cfg.LAG + cfg.dlt, 0, T)
    row_of(A, T + 7, S_L, S_S, flag_row(F_WOP))
    flag_block(A, T + 7, vv=V_FW, wide=True, sleep=1)
    r1_loads(SETS[0], S_L, S_S)
    r1_full(SETS[0], SETS[1], "A", "B")
    r1_full(SETS[1], SETS[0], "B", "A")
    A.label("R1_END")
    A("s_waitcnt vmcnt(0)")
    flag_store(A, S_FADDR)
    st.dump(83, T, V_T)
    A("s_endpgm")
```

```python
from stations32 import *
import stations32 as S32
from chain2 import Lds, Task, sched, groups

HUGE = 0x80000000
S_U, S_UL, S_US, S_UF, S_UN = 32, 33, 34, 35, 36
S_GO, S_NGO, S_EGO, S_FA1 = 37, 38, 39, 59
S_FA2 = S_FADDR


def lines(fn_owner, fn):
    c = fn_owner.capture(fn)
    out = []
    for x in c.l:
        out.append(x)
    return out


def lstore(A, text):
    l1, l2 = A.newlabel("ls"), A.newlabel("ls")
    A(f"s_cmp_lg_u32 {s(S_MODE)}, 0")
    A.nf(f"s_cbranch_scc0 {l1}")
    for x in text:
        A(x + " sc1")
    A.nf(f"s_branch {l2}")
    A.label_nf(l1)
    for x in text:
        A(x)
    A.label_nf(l2)


def loc(A, local, insts):
    if local:
        lstore(A, insts)
    else:
        for x in insts:
            A(x + " sc1" if x.startswith("buffer_store") else x)


def flag_put(A, addr, local=False):
    if TSFLAG[0]:
        A(f"s_memrealtime {s(98, 2)}")
        A("s_waitcnt lgkmcnt(0)")
        A(f"s_or_b32 s98, s98, 1")
        A(f"v_mov_b32 {v(V_ONE)}, s98")
    A("s_mov_b64 exec, 1")
    loc(A, local, [f"buffer_store_dword {v(V_ONE)}, {v(V_L16)}, {WS}, {s(addr)} offen"])
    A("s_mov_b64 exec, -1")


class G3:
    R, D = 8, 7
    local_out = False
    V_IA = 16
    V_OA = 20
    V_RA = 22
    V_FR = 24
    V_ACC = 56
    kd0, kdstep = 1, 2
    kf1 = 10
    ksmp = 0.5
    psleep = 4

    def acc(self, tl):
        return self.V_ACC + (self.aset * self.NT + tl) * 16

    def expose(self):
        return False

    def decode(self, A):
        A(f"s_min_u32 {s(T + 2)}, {s(S_U)}, 127")
        sv = self.A
        self.A = A
        self.item(T + 2, S_UL, S_US)
        self.flag_soff(S_UF, S_UL, S_US)
        self.A = sv

    def w0(self, fn):
        A = self.A
        lab = A.newlabel("w0")
        A(f"s_cmp_lg_u32 {s(S_WAVE)}, 0")
        A.nf(f"s_cbranch_scc1 {lab}")
        fn()
        A.label_nf(lab)

    def sample(self):
        self.w0(lambda: self.A(f"buffer_load_dword {v(V_FV)}, {v(V_FO)}, {WS}, {s(S_UF)} offen sc1"))

    def decide(self):
        A = self.A

        def f():
            A(f"v_cmp_eq_u32 vcc, 0, {v(V_FV)}")
            A(f"s_cmp_eq_u64 vcc, 0")
            A(f"s_cselect_b32 {s(S_UN)}, 0, {HUGE}")
            A(f"s_cmp_lt_u32 {s(S_U)}, 128")
            A(f"s_cselect_b32 {s(S_UN)}, {s(S_UN)}, {HUGE}")
            A(f"v_mov_b32 {v(self.V_RA + 1)}, {s(S_UN)}")
            A(f"ds_write_b32 {v(self.V_RA)}, {v(self.V_RA + 1)}")
        self.w0(f)

    def rd(self, k, b):
        return f"ds_read_b128 {v(self.V_FR + (k % self.R) * 4, 4)}, {v(self.V_IA + 2 * b + (k & 1))} offset:{(k >> 1) * 2048}"

    def dma_lines(self, guard):
        L = lines(self, lambda: self.dma(S_UL, S_US, T + 6 if guard else S_BUF))
        if guard:
            out = [f"s_sub_u32 {s(T + 6)}, {self.bufsz}, {s(S_BUF)}"]
            done = False
            for x in L:
                out.append(x)
                if not done and x.startswith(f"s_mul_i32 {s(T)}, {s(T)}") or (not done and x.startswith(f"s_mul_i32 {s(T)}, {s(S_US)}")):
                    out.append(f"s_add_u32 {s(T)}, {s(T)}, {s(S_GO)}")
                    done = True
            assert done
            L = out
        return L

    def gen(self):
        A, cfg = self.A, self.cfg
        nm = self.name
        A.label("ROLE_" + nm)
        base_setup(A)
        for k in range(2):
            chunk_addr(A, self.V_IA + k, k, self.pin)
            A(f"v_add_u32 {v(self.V_IA + 2 + k)}, {self.bufsz}, {v(self.V_IA + k)}")
            chunk_addr(A, self.V_OA + k, k, False)
        self.setup()
        self.init_stores()
        init_barrier_arrive(A, V_T)
        WL = WLoader(A, V_T, T + 3)
        self.weights(WL)
        WL.emit(V_LANE)
        self.post_weights()
        A("s_barrier")
        init_barrier_wait(A, V_T, self.nwg, cfg)
        A(f"s_mov_b32 {s(S_I)}, 0")
        A(f"s_mov_b32 {s(S_U)}, 0")
        A(f"s_mov_b32 {s(S_BUF)}, 0")
        A(f"s_mov_b32 {s(S_FA1)}, {HUGE}")
        A(f"s_mov_b32 {s(S_FA2)}, {HUGE}")
        A(f"s_mov_b32 {s(S_EGO)}, {HUGE}")
        A(f"v_mov_b32 {v(self.V_RA)}, {2 * self.bufsz + 2048}")
        self.post_barrier()
        st = self.st = Stamper(A, cfg, 84, 8)
        A(f"s_mov_b32 s83, {s(S_GID)}")
        self.decode(A)
        st.init()
        nb = 2 if self.pipe else 1
        for b in range(nb):
            self.body(b, nb)
        A.label(nm + "_END")
        st.dump(83, T, V_T)
        A("s_endpgm")

    def post_barrier(self): pass
    def tail_tasks(self, L, kw): return []

    def swap_bufs(self):
        A = self.A
        A(f"s_sub_u32 {s(S_BUF)}, {self.bufsz}, {s(S_BUF)}")
        if not self.pipe:
            for k in range(2):
                A(f"v_swap_b32 {v(self.V_IA + k)}, {v(self.V_IA + 2 + k)}")

    def body(self, b, nb):
        A, cfg, st = self.A, self.cfg, self.st
        nm, NT, R, D = self.name, self.NT, self.R, self.D
        NS = 2 * self.nk
        o = (b + 1) % nb
        cur, nxt = (b, 1 - b) if self.pipe else (0, 1)
        A.label(f"{nm}_COLD{b}")
        lab = A.newlabel("cp")
        A(f"s_cmp_lg_u32 {s(S_WAVE)}, 0")
        A(f"s_cbranch_scc1 {lab}")
        sv = cfg.fsl
        cfg.fsl = self.psleep
        flag_block(A, S_UF)
        cfg.fsl = sv
        A.label(lab)
        A("s_barrier")
        st(6)
        for x in self.dma_lines(False):
            A(x)
        A.label(f"{nm}_CD{b}")
        A(f"s_mov_b32 {s(S_L)}, {s(S_UL)}")
        A(f"s_mov_b32 {s(S_S)}, {s(S_US)}")
        A(f"s_add_u32 {s(S_U)}, {s(S_U)}, 1")
        self.decode(A)
        self.sample()
        A("s_waitcnt vmcnt(0)")
        flag_put(A, S_FA1, self.local_out)
        A(f"s_mov_b32 {s(S_FA1)}, {HUGE}")
        self.decide()
        A("s_waitcnt lgkmcnt(0)")
        A("s_barrier")
        A(f"ds_read_b32 {v(self.V_RA + 1)}, {v(self.V_RA)}")
        for k in range(D):
            A(self.rd(k, cur))
        A(f"s_waitcnt lgkmcnt({D})")
        A(f"v_readfirstlane_b32 {s(S_GO)}, {v(self.V_RA + 1)}")
        st(7)
        A.label(f"{nm}_B{b}")
        L = Lds(A)
        L.q = [("F", k) for k in range(D)]
        self.aset = b if self.pipe else 0
        seq, rdt = [], []
        kbar = (NS - D) * NT
        for k in range(NS):
            for tl in range(NT):
                c = "0" if k == 0 else v(self.acc(tl), 16)
                fr = v(self.V_FR + (k % R) * 4, 4)
                w = self.wtxt(tl, k)
                x, y = (fr, w) if self.swap else (w, fr)
                need = [("F", k + 1)] if (tl == 0 and k % 2 == 0) else []
                seq.append((f"{MF} {v(self.acc(tl), 16)}, {x}, {y}, {c}", need))
            kk = k + D
            rdt.append(Task(k * NT, [(("F", kk), self.rd(kk % NS, cur if kk < NS else nxt))]))
        nvm = [0]

        def vm(x):
            def f():
                A(x)
                nvm[0] += 1
            return (cfg.vmc, f)

        def wrap(ls):
            out = []
            for x in groups([y for z in ls for y in z.split("\n")]):
                if x.startswith("buffer_"):
                    out.append(vm(x))
                elif x.startswith("ds_"):
                    out.append(("x", x))
                elif x.startswith("@wait"):
                    out.append((4, lambda: L.wait("x")))
                else:
                    out.append(x)
            return out
        early = wrap(lines(self, self.early))
        dl = wrap(self.dma_lines(True))
        tdma = Task(self.kd0, early + dl)
        tdma.vstep = self.kdstep
        dec = Capture()
        dec(f"s_mov_b32 {s(S_NL)}, {s(S_UL)}")
        dec(f"s_mov_b32 {s(S_NS)}, {s(S_US)}")
        dec(f"s_cmp_eq_u32 {s(S_GO)}, 0")
        dec(f"s_addc_u32 {s(S_U)}, {s(S_U)}, 0")
        self.decode(dec)
        tdma.items += wrap(dec.l)
        ksm = int(self.ksmp * NS * NT)

        def smp():
            assert not tdma.items
            self.sample()
        tsm = Task(ksm, [(28, smp)])
        tsm.after = tdma

        def f1():
            A(f"s_waitcnt vmcnt({nvm[0]})")
            flag_put(A, S_FA1, self.local_out)
            A(f"s_mov_b32 {s(S_FA1)}, {HUGE}")
            nvm[0] += 1
        tasks = [Task(self.kf1, [(28, f1)])]
        tepi = []
        if self.pipe:
            self.aset = 1 - b
            tepi += wrap(self.epi_lines(True))
            self.aset = b
        tpre = Task(0, wrap(lines(self, self.pre_mfma)), step=1)
        tasks.append(tpre)

        def wx():
            assert not tpre.items
            L.wait("x")
        tepi += [(4, wx)] + wrap(lines(self, self.mid)) + wrap(lines(self, self.save_item))
        tep = Task(2 if self.pipe else 12, tepi)
        kw = kbar - (3 if NT == 2 else 4) * NT

        def wpoint():
            assert not tdma.items and not tsm.items, (nm, len(tdma.items))
            assert not any(isinstance(i, tuple) and i[0] == cfg.vmc for i in tep.items), nm
            A("s_waitcnt vmcnt(0)")
            self.decide()

        def bar():
            assert not any(isinstance(i, tuple) for i in tep.items), (nm, len(tep.items))
            A(f"s_waitcnt lgkmcnt({min(len(L.q), 2)})")
            L.q = L.q[-2:]
            A("s_barrier")
            L.op("dw", f"ds_read_b32 {v(self.V_RA + 1)}, {v(self.V_RA)}")

        def f2():
            flag_put(A, S_FA2, self.local_out)
            A(f"s_mov_b32 {s(S_FA2)}, {HUGE}")

        def rdw():
            L.wait("dw")
            A(f"v_readfirstlane_b32 {s(S_NGO)}, {v(self.V_RA + 1)}")
        tail = []
        if self.pipe:
            tail.append(Task(kw, [(20, f2)]))
        tail.append(Task(kbar + 3 * NT, [(8, rdw)]))
        tail += self.tail_tasks(wrap, kw)
        sched(A, L, seq, rdt + tasks + [tdma, tsm, tep] + tail, pre={kw: wpoint, kbar: bar}, budget=24, nvalu=6)
        st(3)
        nf_, now = A.newlabel("nf"), A.newlabel("now")
        A(f"s_cmp_lg_u32 {s(S_GO)}, 0")
        A.nf(f"s_cbranch_scc1 {nf_}")

        def step():
            A(f"s_add_u32 {s(S_I)}, {s(S_I)}, 1")
            self.swap_bufs()
            A(f"s_mov_b32 {s(S_L)}, {s(S_NL)}")
            A(f"s_mov_b32 {s(S_S)}, {s(S_NS)}")
            A(f"s_mov_b32 {s(S_GO)}, {s(S_NGO)}")
        if self.pipe:
            if self.expose():
                A.nf(f"s_cbranch_scc1 {now}")
            A(f"s_mov_b32 {s(S_EGO)}, 0")
            step()
            A.nf(f"s_branch {nm}_B{o}")
        A.label(now)
        ntail = A.newlabel("nt")
        A(f"s_mov_b32 {s(S_DEF)}, 0")
        A(f"s_branch {ntail}")
        A.label(nf_)
        A(f"s_mov_b32 {s(S_DEF)}, 2")
        A(f"s_cmp_lg_u32 {s(S_NGO)}, 0")
        A(f"s_cbranch_scc1 {ntail}")
        A(f"s_mov_b32 {s(S_DEF)}, 1")
        A(f"s_mov_b32 {s(S_GO)}, 0")
        for x in self.dma_lines(True):
            A(x)
        A.label(ntail)
        if self.pipe:
            A(f"s_mov_b32 {s(S_EGO)}, 0")
        self.emit_epi()
        A(f"s_mov_b32 {s(S_FA1)}, {s(S_FA2)}")
        A(f"s_mov_b32 {s(S_FA2)}, {HUGE}")
        A(f"s_mov_b32 {s(S_EGO)}, {HUGE}")
        st(4)
        step()
        A(f"s_cmp_eq_u32 {s(S_DEF)}, 0")
        A(f"s_cbranch_scc1 {nm}_B{o}")
        A(f"s_cmp_eq_u32 {s(S_DEF)}, 1")
        A(f"s_cbranch_scc1 {nm}_CD{o}")
        A("s_waitcnt vmcnt(0)")
        flag_put(A, S_FA1, self.local_out)
        A(f"s_mov_b32 {s(S_FA1)}, {HUGE}")
        st(5)
        A(f"s_cmp_eq_u32 {s(S_I)}, 128")
        A(f"s_cbranch_scc1 {nm}_END")
        A(f"s_branch {nm}_COLD{o}")

    def epi_lines(self, guarded):
        PRE_FLAG[0] = True
        cap = self.capture(self.epilogue)
        PRE_FLAG[0] = None
        return cap.l

    def emit_epi(self):
        A = self.A
        run = []
        for x in self.epi_lines(False):
            if self.local_out and x.startswith("buffer_store"):
                run.append(x.replace(" sc1", ""))
                continue
            if run:
                lstore(A, run)
                run = []
            A(x)
        if run:
            lstore(A, run)


class QKV3(G3, QKV32):
    V_CS = 120
    V_SV = 124
    V_SR = 156
    V_ST = 176
    V_PK = 180
    V_SA0, V_SA, V_SW, V_SRD = 188, 189, 190, 191
    V_FO0, V_FO1, V_DC = 12, 13, 14
    kd0, kdstep, kf1, ksmp = 1, 3, 30, 0.55
    psleep = 7
    D = 5

    def __init__(self, A, cfg, nwg, vtype):
        QKV32.__init__(self, A, cfg, nwg, vtype)
        self.psleep = cfg.wgp - 1
        self.kdstep, self.kf1, self.ksmp = cfg.qds, cfg.qf1, cfg.qsm / 100.0

    def expose(self):
        A, cfg = self.A, self.cfg
        A(f"s_cmp_lt_u32 {s(S_I)}, 2")
        if cfg.qx:
            A(f"s_cselect_b32 {s(T)}, 1, {s(S_L)}")
            if cfg.qx == 2 and not self.swap:
                A(f"s_andn2_b32 {s(T)}, {s(T)}, {s(self.S_TYPE)}")
            A(f"s_cmp_lg_u32 {s(T)}, 0")
        return True

    def save_item(self):
        A = self.A
        A(f"s_mov_b32 {s(self.S_EL)}, {s(S_L)}")
        A(f"s_mov_b32 {s(self.S_ES)}, {s(S_S)}")
        if self.swap:
            A(f"ds_write_b64 {v(self.V_SW)}, {v(self.V_ST, 2)}")
            for i in range(4):
                for hf in range(2):
                    A(f"ds_read_b128 {v(self.V_SV + i * 8 + hf * 4, 4)}, {v(self.V_SRD)} offset:{i * 64 + hf * 16}")

    def post_barrier(self):
        A = self.A
        A(f"s_mov_b32 {s(self.S_EL)}, 0")
        A(f"s_mov_b32 {s(self.S_ES)}, 0")

    def epi_lines(self, guarded):
        L = G3.epi_lines(self, guarded)
        out = []
        for x in L:
            out.append(x)
            if x.startswith(f"s_mul_i32 {s(self.E)},"):
                out.append(f"s_add_u32 {s(self.E)}, {s(self.E)}, {s(S_EGO)}")
        out.append(f"s_add_u32 {s(S_FADDR)}, {s(S_FADDR)}, {s(S_EGO)}")
        return out


class B3(G3):
    kchk, kdstep, ksm2 = 12, 2, 30
    local_in = False

    def tune(self, cfg):
        self.local_out = bool(cfg.bloc)
        self.local_in = bool(cfg.bloc)
        self.kchk = cfg.bf1
        self.ksm2 = cfg.bsm
        self.psleep = cfg.bps

    def post_barrier(self):
        A = self.A
        A(f"v_mov_b32 {v(self.V_RA + 1)}, 0")
        A(f"ds_write_b32 {v(self.V_RA)}, {v(self.V_RA + 1)}")
        A(f"s_mov_b32 {s(S_EGO)}, {self.cfg.spin * 8}")
        A(f"v_and_b32 {v(self.V_TA)}, 15, {v(V_LANE)}")
        A(f"v_lshlrev_b32 {v(self.V_TA)}, 7, {v(self.V_TA)}")
        if self.name == "W2":
            A(f"s_mul_i32 {s(T)}, {s(S_IDX)}, {256 - 2048}")
            A(f"s_add_u32 {s(T)}, {s(T)}, 40960")
            A(f"v_and_b32 {v(V_T)}, 128, {v(self.V_TA)}")
            A(f"v_add_u32 {v(V_T)}, {s(T)}, {v(V_T)}")
            A(f"v_cmp_lt_u32 vcc, 15, {v(V_LANE)}")
            A(f"v_cndmask_b32 {v(self.V_TA)}, {v(self.V_TA)}, {v(V_T)}, vcc")
        A("s_waitcnt lgkmcnt(0)")
        A("s_barrier")

    def ready(self):
        if self.local_in:
            return []
        return [f"s_add_u32 {s(T + 5)}, {s(S_U)}, 1", f"s_or_b32 {s(T + 5)}, {s(T + 5)}, {s(S_GO)}", f"v_mov_b32 {v(self.V_RA + 1)}, {s(T + 5)}",
                f"ds_max_i32 {v(self.V_RA)}, {v(self.V_RA + 1)}"]

    def check(self):
        return [f"v_cmp_eq_u32 vcc, 0, {v(V_FV)}", f"s_cmp_eq_u64 vcc, 0\ns_cselect_b32 {s(S_GO)}, 0, {HUGE}",
                f"s_cmp_lt_u32 {s(S_U)}, 128\ns_cselect_b32 {s(S_GO)}, {s(S_GO)}, {HUGE}"]

    def body(self, b, nb):
        A, cfg, st = self.A, self.cfg, self.st
        nm, NT, R, D = self.name, self.NT, self.R, self.D
        NS = 2 * self.nk
        smp = f"buffer_load_dword {v(V_FV)}, {v(V_FO)}, {WS}, {s(S_UF)} offen sc1"
        self.swap_bufs()
        A(f"s_mov_b32 {s(S_I)}, -1")
        A.label(f"{nm}_COLD")
        sv = cfg.fsl
        cfg.fsl = self.psleep
        A(f"s_mov_b32 {s(S_GO)}, 0")
        if self.local_in:
            flag_block(A, S_UF)
        else:
            oth, done = A.newlabel("wo"), A.newlabel("wd")
            A(f"s_cmp_lg_u32 {s(S_WAVE)}, 0")
            A(f"s_cbranch_scc1 {oth}")
            flag_block(A, S_UF)
            for x in self.ready():
                A(x)
            A(f"s_branch {done}")
            A.label(oth)
            A(f"ds_read_b32 {v(self.V_RA + 1)}, {v(self.V_RA)}")
            A("s_waitcnt lgkmcnt(0)")
            A(f"v_cmp_ge_u32 vcc, {s(S_U)}, {v(self.V_RA + 1)}")
            A(f"s_cbranch_vccz {done}")
            A(f"s_sleep 1")
            A(f"s_sub_u32 {s(S_EGO)}, {s(S_EGO)}, 1")
            A("s_cbranch_scc1 ABORT")
            A(f"s_branch {oth}")
            A.label(done)
        cfg.fsl = sv
        st(6)
        for x in self.dma_lines(True):
            A(x)
        A(f"s_mov_b32 {s(S_DEF)}, 1")
        A.label(f"{nm}_NEXT")
        A(f"s_add_u32 {s(S_I)}, {s(S_I)}, 1")
        self.swap_bufs()
        A(f"s_mov_b32 {s(S_L)}, {s(S_UL)}")
        A(f"s_mov_b32 {s(S_S)}, {s(S_US)}")
        A(f"s_add_u32 {s(S_U)}, {s(S_U)}, 1")
        self.decode(A)
        lab = A.newlabel("wv")
        A(f"s_waitcnt vmcnt({self.nstores})")
        A(f"s_cmp_eq_u32 {s(S_DEF)}, 0")
        A(f"s_cbranch_scc1 {lab}")
        A("s_waitcnt vmcnt(0)")
        A.label(lab)
        st(7)
        A("s_barrier")
        L = Lds(A)
        for k in range(D):
            L.op(("F", k), self.rd(k, 0))
        A(smp)
        st(0)
        seq, rdt = [], []
        for k in range(NS):
            for tl in range(NT):
                c = "0" if k == 0 else v(self.acc(tl), 16)
                fr = v(self.V_FR + (k % R) * 4, 4)
                w = self.wtxt(tl, k)
                x, y = (fr, w) if self.swap else (w, fr)
                need = [("F", k) if k < 2 else ("F", k + 1)] if (tl == 0 and (k % 2 == 0 or k < 2)) else []
                seq.append((f"{MF} {v(self.acc(tl), 16)}, {x}, {y}, {c}", need))
            if k + D < NS:
                rdt.append(Task(k * NT, [(("F", k + D), self.rd(k + D, 0))]))
        nvm = [0]

        def vm(x):
            def f():
                A(x)
                nvm[0] += 1
            return (cfg.vmc, f)

        def wrap(ls):
            out = []
            for x in groups([y for z in ls for y in z.split("\n")]):
                out.append(vm(x) if x.startswith("buffer_") else ("x", x) if x.startswith("ds_") else x)
            return out
        tearly = Task(0, wrap(lines(self, self.early)))
        tpre = Task(0, wrap(lines(self, self.pre_mfma)), step=1)

        def f1():
            assert not tearly.items
            A(f"s_waitcnt vmcnt({nvm[0]})")
            flag_put(A, S_FA1, self.local_out)
            A(f"s_mov_b32 {s(S_FA1)}, {HUGE}")
            nvm[0] = 0
        tch = wrap(lines(self, self.touch)) if cfg.touch & 2 else []
        if cfg.touch & 4:
            tearly.items += tch
            tch = []
        tdma = Task(self.kchk, [(28, f1)] + self.check() + tch + wrap(self.ready()) + wrap(self.dma_lines(True)))
        tdma.vstep = self.kdstep

        def wx():
            assert not tpre.items
            L.wait("x")
        tmid = Task(10, [(4, wx)] + wrap(lines(self, self.mid)))
        after = [None]

        def smp2():
            A(smp)
            after[0] = nvm[0]
        tsm = Task(self.ksm2, [(cfg.vmc + 1, smp2)])
        sched(A, L, seq, rdt + [tpre, tearly, tsm, tdma, tmid], budget=24, nvalu=6)
        st(3)
        ep = A.newlabel("ep")
        A(f"s_mov_b32 {s(S_DEF)}, 0")
        A(f"s_cmp_eq_u32 {s(S_GO)}, 0")
        A.nf(f"s_cbranch_scc1 {ep}")
        A("s_waitcnt vmcnt(0)")
        for x in self.check():
            A(x)
        A(f"s_cmp_lg_u32 {s(S_GO)}, 0")
        A.nf(f"s_cbranch_scc1 {ep}")
        for x in self.ready() + self.dma_lines(True):
            A(x)
        A.label_nf(ep)
        A("s_nop 7")
        self.late(nvm[0] + 2)
        self.emit_epi()
        A(f"s_mov_b32 {s(S_FA1)}, {s(S_FA2)}")
        st(4)
        A(f"s_cmp_eq_u32 {s(S_GO)}, 0")
        A(f"s_cbranch_scc1 {nm}_NEXT")
        A("s_waitcnt vmcnt(0)")
        flag_put(A, S_FA1, self.local_out)
        A(f"s_mov_b32 {s(S_FA1)}, {HUGE}")
        st(5)
        A(f"s_cmp_lt_u32 {s(S_U)}, 128")
        A(f"s_cbranch_scc1 {nm}_COLD")

    def late(self, n): pass

    V_TA = 72

    def touch(self):
        A = self.A
        self.out_base()
        A(f"buffer_load_dword {v(self.V_TA + 1)}, {v(self.V_TA)}, {WS}, {s(T + 2)} offen sc1")


class W1_3(B3, W1_32):
    def __init__(self, A, cfg, nwg):
        W1_32.__init__(self, A, cfg, nwg)
        self.tune(cfg)
        self.local_in = False
        self.psleep = cfg.wgp - 1
        self.kchk, self.kdstep, self.ksm2 = cfg.bf1x, 1, cfg.bsmx


class W3_3(B3, W3_32):
    def __init__(self, A, cfg, nwg):
        W3_32.__init__(self, A, cfg, nwg)
        self.tune(cfg)


class W2_3(B3, W2_32):
    def __init__(self, A, cfg, nwg):
        W2_32.__init__(self, A, cfg, nwg)
        self.tune(cfg)

    def mid(self): pass

    def out_base(self):
        A = self.A
        A(f"s_lshl_b32 {s(T + 2)}, {s(S_L)}, 6")
        A(f"s_add_u32 {s(T + 2)}, {s(T + 2)}, {s(S_S)}")
        A(f"s_mul_i32 {s(T + 2)}, {s(T + 2)}, {XSEGS}")
        A(f"s_lshl_b32 {s(T + 3)}, {s(S_IDX)}, 11")
        A(f"s_add_u32 {s(T + 2)}, {s(T + 2)}, {s(T + 3)}")
        A(f"s_add_u32 {s(T + 2)}, {s(T + 2)}, {X1B}")

    def late(self, n):
        self.A(f"s_waitcnt vmcnt({n})")
        W2_32.mid(self)


class WO_3(G3, WO32):
    def __init__(self, A, cfg, nwg):
        WO32.__init__(self, A, cfg, nwg)
        self.kd0, self.kdstep, self.kf1, self.ksmp, self.psleep = 0, 2, 24, 0.6, cfg.wgp - 1


class Vm:
    def __init__(self, A, q=()):
        self.A, self.q = A, list(q)

    def op(self, tag, text):
        self.A(text)
        self.q.append(tag)

    def wait(self, tag):
        if tag not in self.q:
            return
        i = len(self.q) - 1 - self.q[::-1].index(tag)
        self.A(f"s_waitcnt vmcnt({len(self.q) - 1 - i})")
        self.q = self.q[i + 1:]


def gen_ks(A, cfg, nwg, wo):
    nm = "WO" if wo else "W4"
    V_IN, V_ACC, V_RD, V_XX, V_XU, V_PK = 16, 112, 144, 176, 184, 200
    V_SAD, V_OA, V_LW, V_LR, V_CA = 204, 205, 206, 207, 208
    S_J, S_TT, S_CH, S_INW, S_CB, S_NB, S_OUT, S_FW = range(S_K, S_K + 8)
    SRD_O = 76
    AH = cfg.kah
    local_in = bool(cfg.oloc if wo else cfg.bloc)
    A.label("ROLE_" + nm)
    base_setup(A)
    for k in range(2):
        chunk_addr(A, V_CA + k, k, False)
    if wo:
        S_KG, S_CG = T + 4, T + 5
        A(f"s_mul_i32 {s(S_KG)}, {s(S_ROLE)}, 6554")
        A(f"s_lshr_b32 {s(S_KG)}, {s(S_KG)}, 16")
        A(f"s_mul_i32 {s(T)}, {s(S_KG)}, 10")
        A(f"s_sub_u32 {s(S_CG)}, {s(S_ROLE)}, {s(T)}")
        A(f"v_min_u32 {v(V_FO)}, 1, {v(V_LANE)}")
        A(f"s_lshl_b32 {s(T)}, {s(S_KG)}, 4")
        A(f"s_add_u32 {s(T)}, {s(T)}, {s(S_WAVE)}")
        A(f"s_lshl_b32 {s(T)}, {s(T)}, 1")
    else:
        S_CG = S_ROLE
        A(f"v_min_u32 {v(V_FO)}, 11, {v(V_LANE)}")
        A(f"s_mul_i32 {s(T)}, {s(S_WAVE)}, 12")
    A(f"v_add_u32 {v(V_FO)}, {s(T)}, {v(V_FO)}")
    A(f"v_lshlrev_b32 {v(V_FO)}, 2, {v(V_FO)}")
    A(f"s_and_b32 {s(T)}, {s(S_WAVE)}, 1")
    A(f"s_lshl_b32 {s(S_J)}, {s(S_CG)}, 1")
    A(f"s_add_u32 {s(S_J)}, {s(S_J)}, {s(T)}")
    A(f"s_lshr_b32 {s(S_TT)}, {s(S_WAVE)}, 1")
    A(f"s_mul_i32 {s(S_INW)}, {s(S_WAVE)}, 24576")
    A(f"s_mul_i32 {s(S_C0)}, {s(S_WAVE)}, {384 * 1280}")
    A(f"s_lshl_b32 {s(T + 1)}, {s(S_CG)}, 7")
    A(f"s_add_u32 {s(S_C0)}, {s(S_C0)}, {s(T + 1)}")
    if wo:
        A(f"s_mul_i32 {s(T + 1)}, {s(S_KG)}, {1536 * 1280}")
        A(f"s_add_u32 {s(S_C0)}, {s(S_C0)}, {s(T + 1)}")
        A(f"s_mul_i32 {s(T + 1)}, {s(S_KG)}, 98304")
        A(f"s_add_u32 {s(S_INW)}, {s(S_INW)}, {s(T + 1)}")
        A(f"s_add_u32 {s(S_INW)}, {s(S_INW)}, {OX}")
        A(f"v_bfe_u32 {v(V_T)}, {v(V_LANE)}, 2, 2")
        A(f"v_mul_u32_u24 {v(V_OA)}, 10240, {v(V_T)}")
        A(f"v_and_b32 {v(V_T)}, 3, {v(V_LANE)}")
        A(f"v_lshl_add_u32 {v(V_OA)}, {v(V_T)}, 4, {v(V_OA)}")
        A(f"v_lshrrev_b32 {v(V_T)}, 4, {v(V_LANE)}")
        A(f"v_lshl_add_u32 {v(V_OA)}, {v(V_T)}, 6, {v(V_OA)}")
        A(f"s_mul_i32 {s(S_OUT)}, {s(S_KG)}, 81920")
        A(f"s_mul_i32 {s(T + 1)}, {s(S_TT)}, 40960")
        A(f"s_add_u32 {s(S_OUT)}, {s(S_OUT)}, {s(T + 1)}")
        A(f"s_lshl_b32 {s(T + 1)}, {s(S_J)}, 9")
        A(f"s_add_u32 {s(S_OUT)}, {s(S_OUT)}, {s(T + 1)}")
        A(f"s_add_u32 {s(S_OUT)}, {s(S_OUT)}, {WOP}")
        A(f"s_lshl1_add_u32 {s(S_FW)}, {s(S_ROLE)}, {s(T)}")
        A(f"s_lshl_b32 {s(S_FW)}, {s(S_FW)}, 2")
        A(f"s_mul_i32 {s(T + 1)}, {s(S_TT)}, 320")
        A(f"s_add_u32 {s(S_FW)}, {s(S_FW)}, {s(T + 1)}")
        A(f"s_add_u32 {s(S_FW)}, {s(S_FW)}, {FWOP2}")
    else:
        A(f"s_add_u32 {s(S_INW)}, {s(S_INW)}, {GB}")
        A(f"v_and_b32 {v(V_T)}, 15, {v(V_LANE)}")
        A(f"v_lshlrev_b32 {v(V_SAD)}, 3, {v(V_T)}")
        A(f"s_lshl_b32 {s(T)}, {s(S_TT)}, 4")
        A(f"v_add_u32 {v(V_T)}, {s(T)}, {v(V_T)}")
        A(f"v_mul_u32_u24 {v(V_OA)}, 1280, {v(V_T)}")
        A(f"v_lshrrev_b32 {v(V_T)}, 4, {v(V_LANE)}")
        A(f"v_lshl_add_u32 {v(V_OA)}, {v(V_T)}, 3, {v(V_OA)}")
        A(f"s_lshl_b32 {s(T)}, {s(S_J)}, 6")
        A(f"v_add_u32 {v(V_OA)}, {s(T)}, {v(V_OA)}")
        make_srd(A, SRD_O, P_OUT, 2048 * 1280)
        A(f"s_lshl_b32 {s(S_CH)}, {s(S_J)}, 1")
        A(f"s_add_u32 {s(S_CH)}, {s(S_CH)}, {s(S_TT)}")
        A(f"s_lshl_b32 {s(S_CH)}, {s(S_CH)}, 10")
    A(f"v_bfe_u32 {v(V_T)}, {v(V_LANE)}, 4, 1")
    A(f"v_lshlrev_b32 {v(V_LW)}, 14, {v(V_T)}")
    A(f"v_lshrrev_b32 {v(V_T)}, 5, {v(V_LANE)}")
    A(f"v_lshl_add_u32 {v(V_LW)}, {v(V_T)}, 8, {v(V_LW)}")
    A(f"v_and_b32 {v(V_T)}, 15, {v(V_LANE)}")
    A(f"v_lshl_add_u32 {v(V_LW)}, {v(V_T)}, 4, {v(V_LW)}")
    A(f"s_lshl_b32 {s(T)}, {s(S_WAVE)}, 11")
    A(f"v_add_u32 {v(V_LW)}, {s(T)}, {v(V_LW)}")
    A(f"s_lshl_b32 {s(T)}, {s(S_WAVE)}, 13")
    A(f"v_add_u32 {v(V_LR)}, {s(T)}, {v(V_L16)}")
    init_barrier_arrive(A, V_T)
    WL = WLoader(A, V_T, T + 3)
    WL.add(lambda: make_srd(A, SRD_W, P_WO if wo else P_W4, (6144 if wo else 1536) * 1280), S_C0, 1280, 4, 12,
           lambda tl, j, u: ("a", ((tl * 12 + j) * 2 + u) * 4), "perm")
    WL.emit(V_LANE)
    A("s_barrier")
    init_barrier_wait(A, V_T, nwg, cfg)
    st = Stamper(A, cfg, 84, 8)
    A(f"s_mov_b32 s83, {s(S_GID)}")

    def decode(A):
        A(f"s_min_u32 {s(T + 2)}, {s(S_U)}, 127")
        item_of(A, T + 2, S_UL, S_US, cfg.LAG + cfg.dlt, 0, T)
        row_of(A, S_UF, S_UL, S_US, flag_row(F_O if wo else F_G))
        if wo:
            A(f"s_mul_i32 {s(S_NB)}, {s(S_US)}, {QKV_SEG}")
        else:
            A(f"s_lshl_b32 {s(T)}, {s(S_UL)}, 6")
            A(f"s_add_u32 {s(T)}, {s(T)}, {s(S_US)}")
            A(f"s_mul_i32 {s(S_NB)}, {s(T)}, {GSEG}")
        A(f"s_add_u32 {s(S_NB)}, {s(S_NB)}, {s(S_INW)}")

    def ld(k, base, first=False):
        r = []
        if k % 4 == 0 or first:
            r.append(f"s_add_u32 {s(T + 3)}, {s(base)}, {(k // 4) * 4096}")
        r.append(f"buffer_load_dwordx4 {v(V_IN + 4 * k, 4)}, {v(V_CA + (k & 1))}, {WS}, {s(T + 3)} offen offset:{((k >> 1) & 1) * 2048} sc1")
        return r
    smp = f"buffer_load_dword {v(V_FV)}, {v(V_FO)}, {WS}, {s(S_UF)} offen sc1"
    check = [f"v_cmp_eq_u32 vcc, 0, {v(V_FV)}", f"s_cmp_eq_u64 vcc, 0\ns_cselect_b32 {s(S_GO)}, 0, {HUGE}",
             f"s_cmp_lt_u32 {s(S_U)}, 128\ns_cselect_b32 {s(S_GO)}, {s(S_GO)}, {HUGE}"]
    A(f"s_mov_b32 {s(S_U)}, 0")
    A(f"s_mov_b32 {s(S_FA1)}, {HUGE}")
    decode(A)
    st.init()
    A.label(nm + "_COLD")
    sv = cfg.fsl
    cfg.fsl = cfg.bps if local_in else cfg.wgp - 1
    flag_block(A, S_UF)
    cfg.fsl = sv
    st(6)
    for k in range(AH):
        for x in ld(k, S_NB):
            A(x)
        if cfg.ksp and k < AH - 1:
            A(f"s_nop {cfg.ksp - 1}")
    A.label(nm + "_NEXT")
    A(f"s_mov_b32 {s(S_L)}, {s(S_UL)}")
    A(f"s_mov_b32 {s(S_S)}, {s(S_US)}")
    A(f"s_mov_b32 {s(S_CB)}, {s(S_NB)}")
    A(f"s_add_u32 {s(S_U)}, {s(S_U)}, 1")
    L = Lds(A)
    V = Vm(A, [("I", k) for k in range(AH)])
    seq, pre, tasks = [], {}, []
    S_NG = T + 7

    def vm(tag, x):
        return (cfg.vmc, lambda: V.op(tag, x))
    for k in range(24):
        pre[2 * k] = (lambda k=k: V.wait(("I", k)))
        for tl in range(2):
            c = "0" if k == 0 else v(V_ACC + 16 * tl, 16)
            seq.append((f"{MF} {v(V_ACC + 16 * tl, 16)}, {a((tl * 24 + k) * 4, 4)}, {v(V_IN + 4 * k, 4)}, {c}", []))
    dec = Capture()
    decode(dec)
    tdec = Task(0, groups(dec.l) + [vm("S", smp)])
    tchk = Task(2 * (24 - AH) - 3, [(4, lambda: V.wait("S"))] + check + [f"s_add_u32 {s(S_NG)}, {s(S_NB)}, {s(S_GO)}"])
    tchk.after = tdec
    for k in range(24):
        kk = k + AH
        ls = ld(kk, S_CB, k == 0) if kk < 24 else ld(kk - 24, S_NG)
        t = Task(2 * k, ls[:-1] + [vm(("I", kk), ls[-1])])
        if kk >= 24:
            t.after = tchk
        tasks.append(t)

    def f1():
        assert ("I", AH) not in V.q
        flag_put(A, S_FA1)
        V.q.append("f")
        A(f"s_mov_b32 {s(S_FA1)}, {HUGE}")
    tasks.append(Task(max(2 * AH, cfg.kkf), [(20, f1)]))
    tasks += [tdec, tchk]
    misc = [f"v_xor_b32 {v(V_LW)}, 0x8000, {v(V_LW)}", f"v_xor_b32 {v(V_LR)}, 0x8000, {v(V_LR)}"]
    E = T + 4
    if wo:
        misc += [f"s_mul_i32 {s(E)}, {s(S_S)}, {WOP_SEG}", f"s_add_u32 {s(E)}, {s(E)}, {s(S_OUT)}",
                 f"s_lshl_b32 {s(E + 1)}, {s(S_L)}, 6", f"s_add_u32 {s(E + 1)}, {s(E + 1)}, {s(S_S)}", f"s_mul_i32 {s(E + 1)}, {s(E + 1)}, 640",
                 f"s_add_u32 {s(S_FA2)}, {s(E + 1)}, {s(S_FW)}"]
    else:
        misc += [f"s_lshl_b32 {s(E)}, {s(S_L)}, 6", f"s_add_u32 {s(E)}, {s(E)}, {s(S_S)}",
                 f"s_mul_i32 {s(E + 1)}, {s(E)}, {XSEGS}", f"s_add_u32 {s(E + 1)}, {s(E + 1)}, {s(S_CH)}", f"s_add_u32 {s(E + 1)}, {s(E + 1)}, {X1B}",
                 vm("X", f"buffer_load_dwordx4 {v(V_XX, 4)}, {v(V_L16)}, {WS}, {s(E + 1)} offen sc1"),
                 f"s_mul_i32 {s(E + 1)}, {s(E)}, {XSEG}", f"s_add_u32 {s(E + 1)}, {s(E + 1)}, {s(S_CH)}", f"s_add_u32 {s(E + 1)}, {s(E + 1)}, {XM}"]
        tasks.append(Task(cfg.kxm, [vm("X", f"buffer_load_dwordx4 {v(V_XX + 4, 4)}, {v(V_P16)}, {WS}, {s(E + 1)} offen sc1")]))
    tm = Task(1, misc)
    if not wo:
        tasks[-1].after = tm
    tasks.append(tm)
    tasks.append(Task(cfg.ks2, [vm("S2", smp)]))
    tasks[-1].after = tchk
    sched(A, L, seq, tasks, pre=pre, budget=24, nvalu=6)
    st(3)
    ep = A.newlabel("ep")
    A(f"s_cmp_eq_u32 {s(S_GO)}, 0")
    A.nf(f"s_cbranch_scc1 {ep}")
    A("s_waitcnt vmcnt(0)")
    for x in check:
        A(x)
    A(f"s_cmp_lg_u32 {s(S_GO)}, 0")
    A.nf(f"s_cbranch_scc1 {ep}")
    for k in range(AH):
        for x in ld(k, S_NB):
            A(x)
    A.label_nf(ep)
    A("s_nop 7")
    for tl in range(2):
        if tl:
            A("s_nop 0")
        for k in range(2):
            for pc in range(2):
                A(f"ds_write_b128 {v(V_LW)}, {v(V_ACC + 16 * tl + 8 * k + 4 * pc, 4)} offset:{tl * 8192 + pc * 1024 + k * 512}")
    if not wo:
        V.wait("X")
        unpack8(A, V_XU, V_XX)
        unpack8(A, V_XU + 8, V_XX + 4)
    A("s_waitcnt lgkmcnt(0)")
    A("s_barrier")
    for i in range(8):
        A(f"ds_read_b128 {v(V_RD + 4 * i, 4)}, {v(V_LR)} offset:{i * 1024}")
    A("s_waitcnt lgkmcnt(4)")
    for i in range(0, 8, 2):
        A(f"v_pk_add_f32 {v(V_RD + i, 2)}, {v(V_RD + i, 2)}, {v(V_RD + 8 + i, 2)}")
    A("s_waitcnt lgkmcnt(0)")
    for i in range(0, 8, 2):
        A(f"v_pk_add_f32 {v(V_RD + 16 + i, 2)}, {v(V_RD + 16 + i, 2)}, {v(V_RD + 24 + i, 2)}")
    for i in range(0, 8, 2):
        A(f"v_pk_add_f32 {v(V_RD + i, 2)}, {v(V_RD + i, 2)}, {v(V_RD + 16 + i, 2)}")
    if wo:
        for k in range(2):
            A(f"buffer_store_dwordx4 {v(V_RD + 4 * k, 4)}, {v(V_OA)}, {WS}, {s(E)} offen offset:{k * 256} sc1")
        A(f"s_mov_b32 {s(S_FA1)}, {s(S_FA2)}")
    else:
        X = [V_RD + i for i in range(8)]
        for i in range(0, 8, 2):
            rnd2(A, V_T, X[i], X[i + 1])
        for i in range(0, 8, 2):
            A(f"v_pk_add_f32 {v(X[i], 2)}, {v(X[i], 2)}, {v(V_XU + i, 2)}")
        for i in range(0, 8, 2):
            rnd2(A, V_T, X[i], X[i + 1])
        for i in range(0, 8, 2):
            A(f"v_pk_add_f32 {v(X[i], 2)}, {v(X[i], 2)}, {v(V_XU + 8 + i, 2)}")
        for i in range(0, 8, 2):
            rnd2(A, V_PK + i // 2, X[i], X[i + 1])
        l1, l2 = A.newlabel("w4o"), A.newlabel("w4n")
        A(f"s_cmp_lg_u32 {s(S_L)}, 0")
        A(f"s_cbranch_scc1 {l1}")
        A(f"s_mul_i32 {s(T + 2)}, {s(S_S)}, {XSEGS}")
        A(f"s_add_u32 {s(T + 2)}, {s(T + 2)}, {XIN + 64 * XSEGS}")
        A(f"s_add_u32 {s(T + 3)}, {s(T + 2)}, {s(S_CH)}")
        A(f"buffer_store_dwordx4 {v(V_PK, 4)}, {v(V_P16)}, {WS}, {s(T + 3)} offen sc1")
        t = V_T
        A(f"v_add_f32 {v(t)}, {v(X[0])}, {v(X[1])}")
        A(f"v_mul_f32 {v(t + 1)}, {v(X[0])}, {v(X[0])}")
        for i in range(1, 8):
            if i >= 2:
                A(f"v_add_f32 {v(t)}, {v(t)}, {v(X[i])}")
            A(f"v_fmac_f32 {v(t + 1)}, {v(X[i])}, {v(X[i])}")
        for op in ("v_permlane32_swap_b32", "v_permlane16_swap_b32"):
            A(f"v_mov_b32 {v(t + 2)}, {v(t)}")
            A(f"v_mov_b32 {v(t + 3)}, {v(t + 1)}")
            A(f"{op} {v(t)}, {v(t + 2)}")
            A(f"{op} {v(t + 1)}, {v(t + 3)}")
            A(f"v_add_f32 {v(t)}, {v(t)}, {v(t + 2)}")
            A(f"v_add_f32 {v(t + 1)}, {v(t + 1)}, {v(t + 3)}")
        A(f"s_lshl_b32 {s(T + 3)}, {s(S_J)}, 8")
        A(f"s_lshl_b32 {s(T)}, {s(S_TT)}, 7")
        A(f"s_add_u32 {s(T + 3)}, {s(T + 3)}, {s(T)}")
        A(f"s_add_u32 {s(T + 3)}, {s(T + 3)}, {s(T + 2)}")
        A(f"s_add_u32 {s(T + 3)}, {s(T + 3)}, 40960")
        A("s_mov_b64 exec, 0xffff")
        A(f"buffer_store_dwordx2 {v(t, 2)}, {v(V_SAD)}, {WS}, {s(T + 3)} offen sc1")
        A("s_mov_b64 exec, -1")
        A(f"s_mov_b32 {s(T + 6)}, 1")
        flag_addr(A, S_FA1, flag_row(F_XIN), S_IDX, T + 6, S_S)
        A(f"s_branch {l2}")
        A.label(l1)
        A(f"s_mul_i32 {s(T + 2)}, {s(S_S)}, {32 * 1280}")
        A(f"buffer_store_dwordx2 {v(V_PK, 2)}, {v(V_OA)}, {s(SRD_O, 4)}, {s(T + 2)} offen")
        A(f"buffer_store_dwordx2 {v(V_PK + 2, 2)}, {v(V_OA)}, {s(SRD_O, 4)}, {s(T + 2)} offen offset:32")
        A.label(l2)
    st(4)
    A(f"s_cmp_eq_u32 {s(S_GO)}, 0")
    A(f"s_cbranch_scc1 {nm}_NEXT")
    A("s_waitcnt vmcnt(0)")
    flag_put(A, S_FA1)
    A(f"s_mov_b32 {s(S_FA1)}, {HUGE}")
    st(5)
    A(f"s_cmp_lt_u32 {s(S_U)}, 128")
    A(f"s_cbranch_scc1 {nm}_COLD")
    st.dump(83, T, V_T)
    if cfg.timing == 6 and not wo:
        A("s_memrealtime s[98:99]")
        A("s_waitcnt lgkmcnt(0)")
        A("s_sub_u32 s98, s98, s96")
        A(f"v_mov_b32 {v(V_T)}, s98")
        A(f"v_mov_b32 {v(V_T + 1)}, 28")
        A("s_mov_b64 exec, 1")
        A(f"buffer_store_dword {v(V_T)}, {v(V_T + 1)}, {s(SRD_DBG, 4)}, 0 offen")
    A("s_endpgm")
```

```python
import re


def v(i, n=1):
    return f"v{i}" if n == 1 else f"v[{i}:{i + n - 1}]"


def a(i, n=1):
    return f"a{i}" if n == 1 else f"a[{i}:{i + n - 1}]"


def s(i, n=1):
    return f"s{i}" if n == 1 else f"s[{i}:{i + n - 1}]"


_REG = re.compile(r"^(-|abs\(|-abs\()?([vas])(?:(\d+)|\[(\d+):(\d+)\])\)?$")


def regs_of(op):
    op = op.strip()
    if op in ("vcc", "exec"):
        return {(op, 0)}
    if op in ("vcc_lo", "vcc_hi"):
        return {("vcc", 0)}
    if op in ("exec_lo", "exec_hi"):
        return {("exec", 0)}
    if op == "m0":
        return {("m0", 0)}
    m = _REG.match(op)
    if not m:
        return set()
    k = m.group(2)
    if m.group(3) is not None:
        return {(k, int(m.group(3)))}
    return {(k, i) for i in range(int(m.group(4)), int(m.group(5)) + 1)}


TRANS = ("v_exp_f32", "v_log_f32", "v_rcp_f32", "v_rsq_f32", "v_sqrt_f32", "v_sin_f32", "v_cos_f32", "v_rcp_iflag_f32")


class Ins:
    __slots__ = ("text", "mn", "kind", "rd", "wr", "srcC", "ab", "passes", "dpp", "trans", "ws", "storedata", "perm", "rdlane", "lds_dma", "sgpr_rd_const", "dst")

    def __init__(self, text):
        self.text = text
        t = text.split(";")[0].strip()
        parts = t.split(None, 1)
        mn = parts[0]
        self.mn = mn
        rest = parts[1] if len(parts) > 1 else ""
        ops, cur, depth = [], "", 0
        for ch in rest:
            if ch in "[(":
                depth += 1
            if ch in "])":
                depth -= 1
            if ch == "," and depth == 0:
                ops.append(cur.strip())
                cur = ""
            else:
                cur += ch
        if cur.strip():
            ops.append(cur.strip())
        mods = ""
        if ops:
            sp = ops[-1].split(None, 1)
            ops[-1] = sp[0]
            mods = sp[1] if len(sp) > 1 else ""
        self.rd, self.wr = set(), set()
        self.srcC, self.ab, self.dst = set(), set(), set()
        self.passes = 0
        self.dpp = False
        self.trans = False
        self.ws = 1
        self.storedata = set()
        self.perm = False
        self.rdlane = False
        self.lds_dma = False
        R = [regs_of(o) for o in ops]
        if mn == "s_nop":
            self.kind = "nop"
            self.ws = int(ops[0], 0) + 1
        elif mn.startswith("v_smfmac"):
            self.kind = "mfma"
            self.passes = 8 if "32x32" in mn else 4
            self.wr = set(R[0])
            self.dst = set(R[0])
            self.ab = R[1] | R[2] | R[3]
            self.srcC = set(R[0])
            self.rd = self.ab | self.srcC
        elif mn.startswith("v_mfma"):
            self.kind = "mfma"
            self.passes = 8 if "32x32" in mn else 4
            self.wr = set(R[0])
            self.dst = set(R[0])
            self.ab = R[1] | R[2]
            self.srcC = set(R[3])
            self.rd = self.ab | self.srcC
        elif mn.startswith("v_"):
            self.kind = "valu"
            base = mn.replace("_e32", "").replace("_e64", "").replace("_dpp", "").replace("_sdwa", "")
            self.trans = base in TRANS
            self.dpp = "_dpp" in mn or "row_" in mods or "quad_perm" in mods
            if base.startswith("v_permlane") and "swap" in base:
                self.perm = True
                self.rd = R[0] | R[1]
                self.wr = R[0] | R[1]
            elif base.startswith("v_cmp"):
                self.wr = set(R[0])
                for r in R[1:]:
                    self.rd |= r
                if base.startswith("v_cmpx"):
                    self.wr |= {("exec", 0)}
            elif base in ("v_readfirstlane_b32", "v_readlane_b32"):
                self.rdlane = True
                self.wr = set(R[0])
                for r in R[1:]:
                    self.rd |= r
            elif base in ("v_add_co_u32", "v_sub_co_u32", "v_subrev_co_u32", "v_addc_co_u32", "v_subb_co_u32", "v_mad_u64_u32", "v_div_scale_f32"):
                self.wr = R[0] | R[1]
                for r in R[2:]:
                    self.rd |= r
            else:
                self.wr = set(R[0])
                for r in R[1:]:
                    self.rd |= r
                if base in ("v_fmac_f32", "v_dot2c_f32_bf16", "v_writelane_b32", "v_pk_fmac_f16") or self.dpp:
                    self.rd |= R[0]
                if base == "v_cndmask_b32" and len(ops) == 3:
                    self.rd |= {("vcc", 0)}
        elif mn.startswith("buffer_") or mn.startswith("global_"):
            self.kind = "vmem"
            allmods = " " + mods + " "
            self.lds_dma = " lds " in allmods or "_lds_" in mn
            if self.lds_dma:
                for r in R:
                    self.rd |= r
                self.rd |= {("m0", 0)}
            elif "load" in mn:
                self.wr = set(R[0])
                for r in R[1:]:
                    self.rd |= r
            elif "atomic" in mn:
                for r in R:
                    self.rd |= r
                if " sc0 " in allmods:
                    self.wr = set(R[0])
            else:
                for r in R:
                    self.rd |= r
                di = 0 if mn.startswith("buffer_") else 1
                if "x3" in mn or "x4" in mn:
                    self.storedata = set(R[di])
        elif mn.startswith("ds_"):
            self.kind = "ds"
            if "read" in mn or "permute" in mn or "swizzle" in mn:
                self.wr = set(R[0])
                for r in R[1:]:
                    self.rd |= r
            else:
                for r in R:
                    self.rd |= r
        elif mn.startswith("s_"):
            self.kind = "salu"
            if mn.startswith("s_cmp") or mn.startswith("s_cbranch") or mn in ("s_branch", "s_barrier", "s_waitcnt", "s_sleep", "s_setprio", "s_endpgm", "s_bitcmp1_b32", "s_bitcmp0_b32"):
                for r in R:
                    self.rd |= r
            else:
                if R:
                    self.wr = set(R[0])
                for r in R[1:]:
                    self.rd |= r
                if "saveexec" in mn:
                    self.wr |= {("exec", 0)}
        else:
            raise ValueError("unknown instruction: " + text)


def _isvec(rs):
    return {r for r in rs if r[0] in "va"}


def _issgpr(rs):
    return {r for r in rs if r[0] in ("s", "vcc")}


def need(p, c):
    n = 0
    if p.kind == "mfma":
        far = 12 if p.passes == 8 else 8
        if c is None:
            return far
        if c.kind == "mfma":
            if c.ab & p.wr:
                n = max(n, far)
            if c.srcC & p.wr:
                if not (c.srcC == p.wr and c.passes == p.passes):
                    n = max(n, 10 if p.passes == 8 else 6)
            elif c.wr & p.wr:
                n = max(n, far)
        else:
            if (c.rd | c.wr) & p.wr:
                n = max(n, far)
            if c.kind == "valu" and (c.wr & p.srcC):
                n = max(n, 7 if p.passes == 8 else 3)
            if c.kind in ("vmem", "ds") and (c.wr & p.srcC):
                n = max(n, 7 if p.passes == 8 else 3)
        return n
    if p.kind == "valu":
        wv = _isvec(p.wr)
        wsg = _issgpr(p.wr)
        wex = ("exec", 0) in p.wr
        if c is None:
            if wv:
                n = max(n, 3 if p.mn.startswith("v_dot") else 2)
            if wsg:
                n = max(n, 5 if any(r[0] == "s" for r in wsg) else 2)
            if wex:
                n = max(n, 5)
            return n
        if c.kind == "mfma" and (c.rd & wv):
            n = max(n, 2)
        if c.kind == "mfma" and wex:
            n = max(n, 4)
        if p.mn.startswith("v_dot") and ((c.rd | c.wr) & wv) and not (c.mn == p.mn):
            n = max(n, 3)
        if c.kind == "valu":
            if (c.dpp or c.perm) and (c.rd & wv):
                n = max(n, 2)
            if c.rdlane and (c.rd & wv):
                n = max(n, 1)
            if p.trans and not c.trans and (c.rd & wv):
                n = max(n, 1)
            if p.trans and c.trans and (c.rd & wv):
                n = max(n, 1)
            if "sdwa" in p.mn or "op_sel" in p.text:
                if (c.rd | c.wr) & wv:
                    n = max(n, 1)
            if c.rd & wsg:
                n = max(n, 4 if c.rdlane else 2)
            if wex:
                n = max(n, 5 if c.dpp else 4 if (c.rdlane or c.perm) else 2 if ("exec", 0) in c.rd else 0)
        if c.kind == "vmem" and (c.rd & wsg):
            n = max(n, 5)
        return n
    if p.kind == "salu":
        if ("m0", 0) in p.wr:
            if c is None or ("m0", 0) in c.rd:
                n = max(n, 1)
        return n
    if p.kind == "vmem" and p.storedata:
        if c is None:
            return 2
        if c.wr & p.storedata:
            n = max(n, 2)
        return n
    return n


class Asm:
    def __init__(self):
        self.items = []
        self._lab = 0

    def __call__(self, text):
        for line in text.strip().split("\n"):
            line = line.strip()
            if not line or line.startswith(";"):
                continue
            ins = Ins(line)
            if ins.mn.startswith("s_cbranch") or ins.mn == "s_branch":
                self.items.append(("f", 1))
            self.items.append(("i", ins))

    def label(self, name):
        self.items.append(("f", 0))
        self.items.append(("l", name))

    def nf(self, text):
        self.items.append(("i", Ins(text)))

    def label_nf(self, name):
        self.items.append(("l", name))

    def newlabel(self, stem="L"):
        self._lab += 1
        return f"{stem}_{self._lab}"

    def raw(self, text):
        self.items.append(("r", text))

    def comment(self, text):
        self.items.append(("r", "; " + text))

    def flush(self):
        self.items.append(("f", 0))

    def render(self):
        out = []
        hist = []
        nnop = 0
        for it in self.items:
            if it[0] == "r":
                out.append(it[1])
                continue
            if it[0] == "l":
                out.append(it[1] + ":")
                continue
            c = it[1] if it[0] == "i" else None
            dist = it[1] if it[0] == "f" else 0
            req = 0
            for k in range(len(hist) - 1, -1, -1):
                p = hist[k]
                if dist >= 12:
                    break
                n = need(p, c)
                d = dist
                if n > d and p.kind == "mfma":
                    t, tm, pm = 1, 0, p.passes
                    for q in hist[k + 1:]:
                        if q.kind == "mfma":
                            t = max(t, tm + pm - 1)
                            tm, pm = t, q.passes
                        t += q.ws
                    d = max(d, t - 1 + (it[1] if it[0] == "f" else 0))
                if n - d > req:
                    req = n - d
                dist += p.ws
            if req > 0:
                nop = Ins(f"s_nop {req - 1}")
                out.append(nop.text)
                hist.append(nop)
                nnop += 1
            if c is not None:
                out.append(c.text.replace(" offset:0 ", " ").replace(", ", ","))
                hist.append(c)
                if len(hist) > 40:
                    hist = hist[-20:]
        return "\n".join(out) + "\n"

    def count(self):
        return sum(1 for it in self.items if it[0] == "i")
```

```python
from common import *
from stations import item_of, Capture

WS = s(SRD_WS, 4)
SM = "v_smfmac_f32_16x16x64_bf16"
MF = "v_mfma_f32_16x16x32_bf16"
NONE = 0x80000000
DF = ["sc1 ", "", "nt sc1 ", "sc0 sc1 ", "nt ", "sc0 nt sc1 "]

S_N, S_L, S_T, S_NL, S_NT, S_L2, S_T2, S_TAG, S_T1, S_PLA = range(50, 60)
T = 60
S_PXA, S_DPA, S_OIA, S_VMA, S_DOA, S_KSRC, S_KLDS, S_FLG1, S_FLG2, S_DEF = range(68, 78)
S_KP, S_FP, S_KCUR, S_FCUR = 78, 79, 80, 81
S_XB, S_PXR, S_HOFF, S_XGH, S_FXH, S_CS = 82, 83, 84, 85, 86, 87
S_MA, S_MB = 88, 90
S_X, S_J, S_KF, S_NTAG, S_NT1, S_OIH, S_VMH, S_DOH, S_ISV = 28, 29, 30, 31, 32, 33, 34, 35, 36
S_T0 = 38
V_LANE, V_L16, V_IDX = 0, 1, 2
V_T = 12


class Lds:
    def __init__(self, A):
        self.A, self.q = A, []

    def op(self, tag, text):
        self.A(text)
        self.q.append(tag)

    def wait(self, tag):
        if tag not in self.q:
            return
        i = len(self.q) - 1 - self.q[::-1].index(tag)
        n = len(self.q) - 1 - i
        self.A(f"s_waitcnt lgkmcnt({min(n, 15)})")
        if n <= 15:
            self.q = self.q[i + 1:]
        else:
            self.q = self.q[len(self.q) - 15:]

    def drain(self):
        self.A("s_waitcnt lgkmcnt(0)")
        self.q = []


GAP = [0]


def cost(x):
    if x.startswith("ds_"):
        return 8
    if x.startswith("buffer_"):
        return CFG[0].vmc
    if x.startswith("s_cbranch") or x.startswith("s_branch"):
        return 16
    if x.startswith("v_pk_") or x.split()[0] in ("v_exp_f32", "v_rcp_f32", "v_sqrt_f32", "v_rsq_f32"):
        return 8
    return 4


class Task:
    def __init__(self, rel, items, step=0):
        self.rel, self.items, self.step = rel, list(items), step
        self.vstep, self.after = 0, None


def sched(A, L, seq, tasks, pre=None, budget=12, nvalu=1, lim=None):
    pre = pre or {}

    def icost(it):
        if isinstance(it, tuple):
            return it[0] if callable(it[1]) else 8
        return sum(cost(y) for y in it.split("\n"))

    def isv(it):
        return 0 if isinstance(it, tuple) else sum(1 for y in it.split("\n") if y.startswith("v_"))

    def emit(it):
        if isinstance(it, tuple):
            if callable(it[1]):
                it[1]()
            else:
                L.op(it[0], it[1])
        else:
            A(it)

    def pending(tag):
        return [t for t in tasks if any(isinstance(i, tuple) and i[0] == tag for i in t.items)]
    over = 0
    for k, (txt, need) in enumerate(seq):
        if k in pre:
            pre[k]()
        for tag in need:
            for t in pending(tag):
                assert t.rel <= k, (tag, k)
                while pending(tag):
                    emit(t.items.pop(0))
                    over += 1
            L.wait(tag)
        A(txt)
        GAP[0] = k
        if lim:
            budget, nvalu = lim(k)
        rem, nv = budget, 0
        if k + 1 < len(seq) and any(tag in L.q for tag in seq[k + 1][1]):
            rem -= 4
        full = rem
        for t in tasks:
            while t.items and t.rel <= k and not (t.after and t.after.items):
                it = t.items[0]
                c = icost(it)
                big = isinstance(it, tuple) and callable(it[1]) and c == CFG[0].vmc
                if big and t.vstep and getattr(t, "vrel", 0) > k:
                    break
                if (c <= rem and nv + isv(it) <= nvalu) or (rem == full and rem >= budget - 4 and c > budget) or (budget > 16 and c >= budget - 4 and rem >= budget - 12):
                    emit(t.items.pop(0))
                    rem -= c
                    nv += isv(it)
                    if big and t.vstep:
                        t.vrel = k + t.vstep
                    if t.step and c > 0:
                        t.rel = k + t.step
                else:
                    break
    left = sum(len(t.items) for t in tasks)
    if CFG[0].verbose:
        print("sched: forced", over, "left", left)
    for t in tasks:
        while t.items:
            emit(t.items.pop(0))


def groups(lines):
    grp, cur = [], []
    for x in lines:
        if x.startswith("s_cselect") or x.startswith("s_addc"):
            cur.append(x)
        else:
            if cur:
                grp.append("\n".join(cur))
            cur = [x]
    if cur:
        grp.append("\n".join(cur))
    return grp


def cap(fn):
    c = Capture()
    fn(c)
    out = []
    for x in c.l:
        out += [y for y in x.split("\n") if y.strip()]
    return out


def spin_fail(A, nf=True):
    A(f"s_sub_u32 {s(S_SPIN)}, {s(S_SPIN)}, 1")
    A("s_cbranch_scc1 ABORT")


def doorbell(A, cfg, v_off, s_addr, vd):
    top, ok = A.newlabel("db"), A.newlabel("dbok")
    ld = f"buffer_load_dword {v(vd)}, {v(v_off)}, {WS}, {s(s_addr)} offen sc1"
    if not cfg.dpp2:
        A.label(top)
        A(ld)
        A("s_waitcnt vmcnt(0)")
        A(f"v_cmp_gt_u32 vcc, {s(S_T1)}, {v(vd)}")
        A.nf(f"s_cbranch_vccz {ok}")
        if cfg.dsl:
            A(f"s_sleep {cfg.dsl}")
        spin_fail(A)
        A(f"s_branch {top}")
        A.label_nf(ok)
        return
    ld2 = f"buffer_load_dword {v(vd + 1)}, {v(v_off)}, {WS}, {s(s_addr)} offen sc1"
    A(ld)
    A(f"s_sleep {cfg.dpp2}")
    A.label(top)
    A(ld2)
    A("s_waitcnt vmcnt(1)")
    A(f"v_cmp_gt_u32 vcc, {s(S_T1)}, {v(vd)}")
    A.nf(f"s_cbranch_vccz {ok}")
    A(ld)
    A("s_waitcnt vmcnt(1)")
    A(f"v_cmp_gt_u32 vcc, {s(S_T1)}, {v(vd + 1)}")
    A.nf(f"s_cbranch_vccz {ok}")
    spin_fail(A)
    A(f"s_branch {top}")
    A.label_nf(ok)


def common_setup(A, cfg, shift):
    A(f"s_lshr_b32 {s(S_X)}, {s(S_ROLE)}, {shift}")
    A(f"s_and_b32 {s(S_J)}, {s(S_ROLE)}, {(1 << shift) - 1}")
    A(f"s_mul_i32 {s(S_XB)}, {s(S_X)}, {C2_X}")
    A(f"s_add_u32 {s(S_XB)}, {s(S_XB)}, {C2}")
    A(f"v_lshlrev_b32 {v(V_L16)}, 4, {v(V_LANE)}")
    A(f"v_and_b32 {v(V_T)}, 1, {v(V_LANE)}")
    A(f"v_mul_u32_u24 {v(V_IDX)}, 0xaaaa, {v(V_T)}")
    A(f"v_or_b32 {v(V_IDX)}, 0x4444, {v(V_IDX)}")


def near_half(A, cfg, dst):
    if not cfg.near:
        return
    A(f"v_mov_b32 {v(V_T + 1)}, 192")
    A(f"buffer_load_dword {v(V_T)}, {v(V_T + 1)}, {s(SRD_DBG, 4)}, 0 offen sc1")
    A("s_waitcnt vmcnt(0)")
    A(f"v_readfirstlane_b32 {s(T)}, {v(V_T)}")
    A(f"s_cmp_gt_i32 {s(T)}, 0")
    A(f"s_cselect_b32 {s(T)}, 0x2000, 0")
    if cfg.near == 2:
        A(f"s_xor_b32 {s(T)}, {s(T)}, 0x2000")
    A(f"s_add_u32 {s(dst)}, {s(dst)}, {s(T)}")


def timing_end(A, cfg, stamp, idx_base):
    A(f"s_add_u32 {s(T + 1)}, {s(S_ROLE)}, {idx_base}")
    stamp.dump(T + 1, T, V_T)
    if cfg.timing and idx_base == 0:
        lab = A.newlabel("tm")
        A(f"s_memrealtime {s(S_T0 + 2, 2)}")
        A("s_waitcnt lgkmcnt(0)")
        A(f"s_cmp_lg_u32 {s(S_ROLE)}, 0")
        A(f"s_cbranch_scc1 {lab}")
        A(f"s_cmp_lg_u32 {s(S_WAVE)}, 0")
        A(f"s_cbranch_scc1 {lab}")
        A(f"s_sub_u32 {s(T)}, {s(S_T0 + 2)}, {s(S_T0)}")
        A(f"v_mov_b32 {v(V_T)}, {s(T)}")
        if cfg.timing == 6:
            A("s_memtime s[94:95]")
            A("s_waitcnt lgkmcnt(0)")
            A(f"s_sub_u32 {s(S_MODE)}, s94, s92")
        A(f"v_mov_b32 {v(V_T + 1)}, {s(S_MODE)}")
        A(f"v_mov_b32 {v(V_T + 2)}, 16")
        A("s_mov_b64 exec, 1")
        A(f"buffer_store_dwordx2 {v(V_T, 2)}, {v(V_T + 2)}, {s(SRD_DBG, 4)}, 0 offen")
        if cfg.timing == 6:
            A(f"s_sub_u32 {s(T)}, {s(S_T0)}, s100")
            A(f"v_mov_b32 {v(V_T)}, {s(T)}")
            A(f"buffer_store_dword {v(V_T)}, {v(V_T + 2)}, {s(SRD_DBG, 4)}, 0 offen offset:8")
        A.label(lab)
    A("s_endpgm")


def retry_dump(A, idx_base):
    A(f"s_add_u32 {s(T)}, {s(S_ROLE)}, {idx_base}")
    A(f"s_lshl_b32 {s(T)}, {s(T)}, 2")
    A(f"s_add_u32 {s(T)}, {s(T)}, {s(S_WAVE)}")
    A(f"s_lshl_b32 {s(T)}, {s(T)}, 6")
    A(f"s_add_u32 {s(T)}, {s(T)}, 0x100000")
    A("s_mov_b64 exec, 1")
    for k in range(5):
        A(f"v_mov_b32 {v(V_T)}, {s(92 + k)}")
        A(f"buffer_store_dword {v(V_T)}, {v(V_L16)}, {WS}, {s(T)} offen offset:{4 * k}")
    A("s_mov_b64 exec, -1")


class NoStamp:
    def init(self): pass
    def __call__(self, k): pass
    def dump(self, *a_): pass
    def flush(self): pass


class LightStamp(RawStamper):
    R = [16, 18, 20, 22, 24, 26, 96, 98]

    def __call__(self, k):
        self.A(f"s_memtime {s(self.R[k], 2)}")

    def flush(self):
        A, b = self.A, self.b
        lab = A.newlabel("fs")
        A(f"s_sub_u32 {s(b + 2)}, {s(self.s_t)}, {self.t0}")
        A(f"s_cmp_ge_u32 {s(b + 2)}, 7")
        A(f"s_cbranch_scc1 {lab}")
        A(f"s_lshl_b32 {s(b + 3)}, {s(b + 2)}, 3")
        A(f"s_lshl_b64 exec, 1, {s(b + 3)}")
        A("s_waitcnt lgkmcnt(0)")
        for k in range(8):
            A(f"v_mov_b32 {v(self.vr)}, {s(self.R[k])}")
            A(f"s_lshl_b64 exec, exec, 1")
        A("s_mov_b64 exec, -1")
        A(f"s_cmp_lg_u32 {s(b + 2)}, 0")
        A(f"s_cbranch_scc1 {lab}x")
        self.cal(56)
        A.label(lab + "x")
        A(f"s_sub_u32 {s(b + 2)}, {s(self.s_t)}, {self.t0}")
        A(f"s_cmp_lg_u32 {s(b + 2)}, 6")
        A(f"s_cbranch_scc1 {lab}")
        self.cal(60)
        A.label(lab)


def mk_stamp(A, cfg, vreg):
    return LightStamp(A, cfg, 92, S_N, vreg, t0=cfg.rawt0) if cfg.timing == 3 else NoStamp()


def flag_val(A, cfg, vr):
    if cfg.timing == 4:
        A(f"s_memrealtime {s(98, 2)}")
        A("s_waitcnt lgkmcnt(0)")
        A(f"s_or_b32 s98, s98, 1")
        A(f"v_mov_b32 {v(vr)}, s98")
    else:
        A(f"v_mov_b32 {v(vr)}, 1")


def gen_sv(A, cfg, nwg):
    LAG = cfg.LAG
    V_GB = 3
    V_XW, V_XR, V_OST, V_FLG, V_FV, V_DB = 6, 7, 8, 9, 10, 11
    V_KST, V_BW, V_MW, V_MW2 = 20, 21, 22, 23
    V_ACC = 24
    V_F = 48
    V_KA, V_G4 = 58, 59
    V_A = 60
    V_B = 72
    V_FREE = 88
    V_PL, V_PR = 60, 80
    V_STAMP = 111 if False else 19
    V_L16B = 18
    V_RDY = 58
    V_SY, V_SY3 = 20, 8
    V_KEEP = 100
    V_VS0, V_VS1 = 6, 7
    L_RES, L_KV, L_MEM, L_X = 0, 81920, 131072, 141312

    def wreg(slot, tile):
        idx = slot * 5 + tile
        return ("a", idx * 8) if idx < 32 else ("v", 112 + (idx - 32) * 8)

    def wtxt(slot, tile):
        if tile == 5:
            return v(V_B + 8 * (slot & 1), 8)
        k, r = wreg(slot, tile)
        return a(r, 8) if k == "a" else v(r, 8)

    g_, c_ = V_T + 2, V_T + 3

    def lane_gc():
        A(f"v_lshrrev_b32 {v(g_)}, 4, {v(V_LANE)}")
        A(f"v_and_b32 {v(c_)}, 15, {v(V_LANE)}")

    def sv_setup():
        for q in range(1, 4):
            A(f"s_add_u32 {s(T)}, {s(S_WAVE)}, {q}")
            A(f"s_and_b32 {s(T)}, {s(T)}, 3")
            A(f"s_lshl_b32 {s(T)}, {s(T)}, 11")
            A(f"s_add_u32 {s(T)}, {s(T)}, {L_MEM}")
            A(f"v_add_u32 {v(V_GB + q - 1)}, {s(T)}, {v(V_L16)}")
        A(f"v_add_u32 {v(V_G4)}, {L_MEM + 8192}, {v(V_L16)}")
        A(f"s_lshl_b32 {s(T)}, {s(S_WAVE)}, 11")
        A(f"s_add_u32 {s(T)}, {s(T)}, {L_MEM}")
        A(f"v_add_u32 {v(V_MW)}, {s(T)}, {v(V_L16)}")
        A(f"s_lshr_b32 {s(T)}, {s(S_WAVE)}, 1")
        A(f"s_lshl_b32 {s(T)}, {s(T)}, 10")
        A(f"s_and_b32 {s(T + 1)}, {s(S_WAVE)}, 1")
        A(f"s_lshl_b32 {s(T + 1)}, {s(T + 1)}, 3")
        A(f"s_add_u32 {s(T)}, {s(T)}, {s(T + 1)}")
        A(f"v_add_u32 {v(V_MW2)}, {s(T)}, {v(V_G4)}")
        A(f"s_mul_i32 {s(T)}, {s(S_WAVE)}, 20480")
        A(f"v_add_u32 {v(V_BW)}, {s(T)}, {v(V_L16)}")
        if cfg.pb:
            A(f"v_and_b32 {v(V_DB)}, 7, {v(V_LANE)}")
            A(f"v_lshlrev_b32 {v(V_DB)}, 2, {v(V_DB)}")
            A(f"v_bfe_u32 {v(V_T)}, {v(V_LANE)}, 3, 2")
            A(f"v_lshl_add_u32 {v(V_DB)}, {v(V_T)}, 7, {v(V_DB)}")
        else:
            A(f"v_min_u32 {v(V_DB)}, 7, {v(V_LANE)}")
            A(f"v_lshlrev_b32 {v(V_DB)}, 2, {v(V_DB)}")
        A(f"s_xor_b32 {s(T)}, {s(S_X)}, 1")
        A(f"s_lshl_b32 {s(T)}, {s(T)}, 19")
        A(f"s_lshl_b32 {s(T + 1)}, {s(S_WAVE)}, {11 if cfg.h16 else 14}")
        A(f"s_add_u32 {s(S_PXR)}, {s(T)}, {s(T + 1)}")
        A(f"s_add_u32 {s(S_PXR)}, {s(S_PXR)}, {XP}")

    A.label("ROLE_CS")
    if cfg.timing == 6:
        A("s_mov_b32 s100, s96")
    common_setup(A, cfg, 4)
    sv_setup()
    A(f"s_mov_b32 {s(S_ISV)}, 0")
    A(f"s_mov_b32 {s(S_MA)}, 0xcccccccc")
    A(f"s_mov_b32 {s(S_MA + 1)}, 0xcccccccc")
    A(f"s_mov_b32 {s(S_MB)}, 0x33333333")
    A(f"s_mov_b32 {s(S_MB + 1)}, 0x33333333")
    A(f"s_mov_b32 {s(S_CS)}, 0x3dd53b95")
    lane_gc()
    A(f"v_lshrrev_b32 {v(V_T)}, 2, {v(c_)}")
    A(f"v_add_u32 {v(V_T)}, {v(V_T)}, {v(g_)}")
    A(f"v_and_b32 {v(V_T)}, 3, {v(V_T)}")
    A(f"v_lshlrev_b32 {v(V_XW)}, 3, {v(V_T)}")
    A(f"v_lshl_add_u32 {v(V_XW)}, {v(c_)}, 5, {v(V_XW)}")
    A(f"s_mul_i32 {s(T)}, {s(S_WAVE)}, {512 if cfg.s3 == 1 else 1536}")
    A(f"s_add_u32 {s(T)}, {s(T)}, {L_X}")
    A(f"v_add_u32 {v(V_XW)}, {s(T)}, {v(V_XW)}")
    A(f"v_add_u32 {v(V_T)}, {v(V_LANE)}, {v(g_)}")
    A(f"v_and_b32 {v(V_T)}, 3, {v(V_T)}")
    A(f"v_lshlrev_b32 {v(V_XR)}, 3, {v(V_T)}")
    A(f"v_lshrrev_b32 {v(V_T)}, 2, {v(V_LANE)}")
    A(f"v_lshl_add_u32 {v(V_XR)}, {v(V_T)}, 5, {v(V_XR)}")
    A(f"v_add_u32 {v(V_XR)}, {L_X}, {v(V_XR)}")
    A(f"s_min_u32 {s(T + 2)}, {s(S_WAVE)}, 2")
    A(f"v_lshrrev_b32 {v(V_T)}, 2, {v(c_)}")
    A(f"v_and_b32 {v(V_T + 1)}, 1, {v(c_)}")
    A(f"v_lshl_add_u32 {v(V_T)}, {v(V_T)}, 1, {v(V_T + 1)}")
    A(f"v_bfe_u32 {v(V_T + 1)}, {v(c_)}, 1, 1")
    A(f"v_lshlrev_b32 {v(V_OST)}, 8, {v(g_)}")
    A(f"v_lshl_add_u32 {v(V_OST)}, {v(V_T)}, 5, {v(V_OST)}")
    A(f"v_xor_b32 {v(V_T + 4)}, 1, {v(V_T + 1)}")
    A(f"v_lshl_add_u32 {v(V_OST)}, {v(V_T + 4)}, 4, {v(V_OST)}")
    A(f"v_lshlrev_b32 {v(V_KST)}, 8, {v(g_)}")
    A(f"v_lshl_add_u32 {v(V_KST)}, {v(V_T + 1)}, 7, {v(V_KST)}")
    A(f"v_and_b32 {v(V_T + 4)}, 3, {v(V_T)}")
    A(f"v_lshl_add_u32 {v(V_KST)}, {v(V_T + 4)}, 5, {v(V_KST)}")
    A(f"v_lshrrev_b32 {v(V_T + 4)}, 2, {v(V_T)}")
    A(f"v_lshl_add_u32 {v(V_KST)}, {v(V_T + 4)}, 4, {v(V_KST)}")
    A(f"v_min_u32 {v(V_T)}, 5, {v(V_LANE)}")
    A(f"s_mul_i32 {s(T)}, {s(S_ROLE)}, 3")
    A(f"v_add_u32 {v(V_FLG)}, {s(T)}, {v(V_T)}")
    A(f"v_lshlrev_b32 {v(V_FLG)}, 2, {v(V_FLG)}")
    A(f"v_add_u32 {v(V_T + 1)}, {65536 - 12}, {v(V_FLG)}")
    A(f"v_cmp_lt_u32 vcc, 2, {v(V_T)}")
    A(f"v_cndmask_b32 {v(V_FLG)}, {v(V_FLG)}, {v(V_T + 1)}, vcc")
    A(f"s_mul_i32 {s(S_HOFF)}, {s(S_ROLE)}, 12288")
    A(f"s_add_u32 {s(S_HOFF)}, {s(S_HOFF)}, {KX}")
    A(f"s_mul_i32 {s(T)}, {s(S_J)}, 3072")
    A(f"s_lshl_b32 {s(T + 1)}, {s(T + 2)}, 10")
    A(f"s_add_u32 {s(T)}, {s(T)}, {s(T + 1)}")
    A(f"s_add_u32 {s(T)}, {s(T)}, {s(S_XB)}")
    A(f"s_add_u32 {s(S_OIH)}, {s(T)}, {OI_OFF}")
    A(f"s_add_u32 {s(S_VMH)}, {s(T)}, {VM_OFF}")
    A(f"s_mul_i32 {s(S_XGH)}, {s(S_ROLE)}, {XG2_HEAD}")
    A(f"s_add_u32 {s(S_XGH)}, {s(S_XGH)}, {XG}")
    A(f"s_lshl_b32 {s(S_FXH)}, {s(S_ROLE)}, 5")
    A(f"s_lshl_b32 {s(T + 1)}, {s(T + 2)}, 2")
    A(f"s_add_u32 {s(S_FXH)}, {s(S_FXH)}, {FXG}")
    A(f"s_lshr_b32 {s(T)}, {s(S_J)}, 2")
    A(f"s_lshl_b32 {s(T)}, {s(T)}, 7")
    A(f"s_and_b32 {s(T + 3)}, {s(S_J)}, 3")
    A(f"s_mul_i32 {s(T + 3)}, {s(T + 3)}, 12")
    A(f"s_add_u32 {s(T)}, {s(T)}, {s(T + 3)}")
    A(f"s_add_u32 {s(T)}, {s(T)}, {s(T + 1)}")
    A(f"s_add_u32 {s(T)}, {s(T)}, {s(S_XB)}")
    A(f"s_add_u32 {s(S_DOH)}, {s(T)}, {DO_OFF}")
    lab = A.newlabel("si")
    A(f"s_cmp_eq_u32 {s(S_WAVE)}, 3")
    A(f"s_cbranch_scc1 {lab}")
    A(f"v_mov_b32 {v(V_T)}, -1")
    A(f"v_mov_b32 {v(V_T + 1)}, 0")
    lst = []
    for k in range(8):
        lst.append(f"s_add_u32 {s(T)}, {s(S_OIH)}, {k * 49152}")
        lst.append(f"buffer_store_dword {v(V_T)}, {v(V_L16)}, {WS}, {s(T)} offen")
    lst.append("s_mov_b64 exec, 1")
    lst.append(f"buffer_store_dword {v(V_T + 1)}, {v(V_L16)}, {WS}, {s(S_DOH)} offen")
    lst.append(f"buffer_store_dword {v(V_T + 1)}, {v(V_L16)}, {WS}, {s(S_DOH)} offen offset:512")
    lst.append("s_mov_b64 exec, -1")
    lstore(A, lst)
    A.label(lab)
    V_DA = V_FREE + 16
    S_O0, S_O1 = S_KSRC, S_KLDS
    A(f"s_mul_i32 {s(S_O0)}, {s(S_ROLE)}, 384")
    A(f"s_mov_b32 {s(S_O1)}, {s(S_O0)}")

    def dma_addr(isv):
        for i in range(3):
            A(f"v_add_u32 {v(V_T)}, {64 * i}, {v(V_LANE)}")
            A(f"v_mul_u32_u24 {v(V_T + 1)}, 2731, {v(V_T)}")
            A(f"v_lshrrev_b32 {v(V_T + 1)}, 16, {v(V_T + 1)}")
            A(f"v_mul_u32_u24 {v(V_T + 4)}, 24, {v(V_T + 1)}")
            A(f"v_sub_u32 {v(V_T)}, {v(V_T)}, {v(V_T + 4)}")
            A(f"v_mul_u32_u24 {v(V_DA + i)}, 12288, {v(V_T + 1)}")
            A(f"v_lshl_add_u32 {v(V_DA + i)}, {v(V_T)}, 4, {v(V_DA + i)}")
            if not isv and cfg.s3 == 1:
                A(f"v_mul_u32_u24 {v(V_DA + i)}, 12288, {v(V_T + 1)}")
                A(f"v_mul_u32_u24 {v(V_T + 1)}, 43, {v(V_T)}")
                A(f"v_lshrrev_b32 {v(V_T + 1)}, 8, {v(V_T + 1)}")
                A(f"v_lshl_add_u32 {v(V_DA + i)}, {v(V_T + 1)}, 5, {v(V_DA + i)}")
                A(f"v_mul_u32_u24 {v(V_T + 1)}, 6, {v(V_T + 1)}")
                A(f"v_sub_u32 {v(V_T)}, {v(V_T)}, {v(V_T + 1)}")
                A(f"v_and_b32 {v(V_T + 1)}, 1, {v(V_T)}")
                A(f"v_lshl_add_u32 {v(V_DA + i)}, {v(V_T + 1)}, 4, {v(V_DA + i)}")
                A(f"v_bfe_u32 {v(V_T + 1)}, {v(V_T)}, 1, 1")
                A(f"v_lshl_add_u32 {v(V_DA + i)}, {v(V_T + 1)}, 8, {v(V_DA + i)}")
                A(f"v_bfe_u32 {v(V_T + 1)}, {v(V_T)}, 2, 1")
                A(f"v_lshl_add_u32 {v(V_DA + i)}, {v(V_T + 1)}, 7, {v(V_DA + i)}")
            if isv:
                A(f"v_mul_u32_u24 {v(V_T + 1)}, 43, {v(V_T)}")
                A(f"v_lshrrev_b32 {v(V_T + 1)}, 8, {v(V_T + 1)}")
                A(f"v_mul_u32_u24 {v(V_T + 1)}, 96, {v(V_T + 1)}")
                A(f"v_add_u32 {v(V_DA + i)}, {v(V_DA + i)}, {v(V_T + 1)}")
    dma_addr(False)
    make_srd(A, SRD_W, P_WQ, 640 * 12288)
    make_srd(A, 52, P_WK, 640 * 12288)
    A("s_branch SV_LOAD")

    A.label("ROLE_CV")
    common_setup(A, cfg, 3)
    sv_setup()
    A(f"s_mov_b32 {s(S_ISV)}, 1")
    for r in (V_OST, V_FLG, V_KST):
        A(f"v_mov_b32 {v(r)}, 0")
    A(f"s_and_b32 {s(T + 2)}, {s(S_WAVE)}, 1")
    A(f"s_lshl_b32 {s(T)}, {s(T + 2)}, 11")
    A(f"v_add_u32 {v(V_VS0)}, {s(T)}, {v(V_L16)}")
    A(f"s_lshl_b32 {s(T)}, {s(T + 2)}, 3")
    A(f"s_add_u32 {s(T)}, {s(T)}, 1024")
    A(f"v_add_u32 {v(V_VS1)}, {s(T)}, {v(V_L16)}")
    A(f"s_lshr_b32 {s(T + 1)}, {s(S_WAVE)}, 1")
    A(f"s_lshl_b32 {s(T)}, {s(S_J)}, 1")
    A(f"s_add_u32 {s(T)}, {s(T)}, {s(T + 1)}")
    A(f"s_mul_i32 {s(T)}, {s(T)}, 3072")
    A(f"s_add_u32 {s(T)}, {s(T)}, {s(S_XB)}")
    A(f"s_add_u32 {s(S_VMH)}, {s(T)}, {VM_OFF}")
    A(f"s_lshl_b32 {s(T)}, {s(S_ROLE)}, 1")
    A(f"s_add_u32 {s(T)}, {s(T)}, {s(T + 1)}")
    A(f"s_mul_i32 {s(S_XGH)}, {s(T)}, {XG2_HEAD}")
    A(f"s_add_u32 {s(S_XGH)}, {s(S_XGH)}, {XG + 3072}")
    A(f"s_lshl_b32 {s(S_FXH)}, {s(T)}, 5")
    A(f"s_lshl_b32 {s(T + 1)}, {s(T + 2)}, 2")
    A(f"s_add_u32 {s(S_FXH)}, {s(S_FXH)}, {s(T + 1)}")
    A(f"s_add_u32 {s(S_FXH)}, {s(S_FXH)}, {FXG + 4}")
    for i in range(4):
        A(f"v_mov_b32 {v(V_T + i)}, -1")
    lst = []
    for k in range(8):
        lst.append(f"s_add_u32 {s(T)}, {s(S_VMH)}, {k * 49152}")
        lst.append(f"buffer_store_dwordx4 {v(V_T, 4)}, {v(V_VS0)}, {WS}, {s(T)} offen")
        lst.append(f"buffer_store_dwordx2 {v(V_T, 2)}, {v(V_VS1)}, {WS}, {s(T)} offen")
    lstore(A, lst)
    A(f"s_mul_i32 {s(S_O0)}, {s(S_ROLE)}, 768")
    A(f"s_add_u32 {s(S_O1)}, {s(S_O0)}, 96")
    dma_addr(True)
    make_srd(A, SRD_W, P_WV, 640 * 12288)
    make_srd(A, 52, P_WV, 640 * 12288)

    A.label("SV_LOAD")
    init_barrier_arrive(A, V_T)
    V_PARK = 24
    V_TR = V_DA + 3
    S_RA, S_RB, S_LW = S_FLG1, S_FLG2, S_DEF
    A(f"s_and_b32 {s(T)}, {s(S_WAVE)}, 1")
    A(f"s_mul_i32 {s(T)}, {s(T)}, {16 * 12288}")
    A(f"s_lshr_b32 {s(T + 1)}, {s(S_WAVE)}, 1")
    A(f"s_mul_i32 {s(S_RA)}, {s(T + 1)}, {32 * 12288}")
    A(f"s_add_u32 {s(S_RA)}, {s(S_RA)}, {s(T)}")
    A(f"s_mul_i32 {s(S_RB)}, {s(T + 1)}, {(32 if cfg.h16 else 160) * 12288}")
    A(f"s_add_u32 {s(S_RB)}, {s(S_RB)}, {s(T)}")
    A(f"s_mul_i32 {s(S_LW)}, {s(S_WAVE)}, 6144")
    sh = (2, 4, 3) if cfg.h16 else (5, 3, 2)
    lane_gc()
    A(f"v_and_b32 {v(V_T)}, 1, {v(g_)}")
    A(f"v_lshlrev_b32 {v(V_T)}, {sh[0]}, {v(V_T)}")
    A(f"v_lshrrev_b32 {v(V_T + 1)}, 1, {v(g_)}")
    A(f"v_lshl_add_u32 {v(V_T)}, {v(V_T + 1)}, {sh[1]}, {v(V_T)}")
    A(f"v_bfe_u32 {v(V_T + 1)}, {v(V_LANE)}, 2, 1")
    A(f"v_add_u32 {v(V_T)}, {v(V_T)}, {v(V_T + 1)}")
    A(f"v_bfe_u32 {v(V_T + 1)}, {v(V_LANE)}, 3, 1")
    A(f"v_lshl_add_u32 {v(V_T)}, {v(V_T + 1)}, {sh[2]}, {v(V_T)}")
    A(f"v_mul_u32_u24 {v(V_TR)}, 384, {v(V_T)}")
    A(f"v_and_b32 {v(V_T + 1)}, 3, {v(V_LANE)}")
    A(f"v_lshl_add_u32 {v(V_TR)}, {v(V_T + 1)}, 3, {v(V_TR)}")
    A(f"s_mul_i32 {s(T)}, {s(S_WAVE)}, 96")
    A(f"v_add_u32 {v(V_TR)}, {s(T)}, {v(V_TR)}")
    stages = [(F, b) for F in range(10) for b in range(2)]
    NB = 6

    def mp0(F):
        if cfg.h16:
            return 2 * F
        return 5 * (F >> 1) + 2 * (F & 1) if F < 8 else (4 if F == 8 else 14)

    def st_dma(k):
        F, b = stages[k]
        A(f"s_add_u32 {s(T)}, {s(S_RA if F < 8 else S_RB)}, {s(S_O1 if b else S_O0)}")
        for i in range(6):
            A(f"s_add_u32 m0, {s(S_LW)}, {(k % NB) * 24576 + i * 1024}")
            A(f"s_add_u32 {s(T + 1)}, {s(T)}, {(32 * mp0(F) + 8 * (i // 3)) * 12288}")
            A(f"buffer_load_dwordx4 {v(V_DA + i % 3)}, {s(52 if b else SRD_W, 4)}, {s(T + 1)} offen lds")

    def st_read(k, slot):
        F, b = stages[k]
        for p in range(3):
            tile = 3 * b + p
            kind, r = wreg(slot, tile) if tile < 5 else ("v", V_PARK + 8 * slot)
            f = a if kind == "a" else v
            for RH in range(2):
                for hh in range(2):
                    A(f"ds_read_b64_tr_b16 {f(r + 4 * RH + 2 * hh, 2)}, {v(V_T)} offset:{((32 if cfg.h16 else 16) * RH + 2 * hh) * 384 + 32 * p}")
    for k in range(NB - 1):
        st_dma(k)
    for k in range(20):
        F, b = stages[k]
        A(f"s_waitcnt vmcnt({6 * min(NB - 2, 19 - k)})")
        A("s_barrier")
        if k + NB - 1 < 20:
            st_dma(k + NB - 1)
        A(f"v_add_u32 {v(V_T)}, {(k % NB) * 24576}, {v(V_TR)}")
        if F < 8:
            done = A.newlabel("ld")
            labs = [A.newlabel("lw") for _ in range(4)]
            for w in range(1, 4):
                A(f"s_cmp_eq_u32 {s(S_WAVE)}, {w}")
                A(f"s_cbranch_scc1 {labs[w]}")
            for w in range(4):
                A.label(labs[w])
                st_read(k, 2 * (((F >> 1) - w) & 3) + (F & 1))
                if w < 3:
                    A(f"s_branch {done}")
            A.label(done)
        else:
            st_read(k, F)
        A("s_waitcnt lgkmcnt(0)")
    A("s_barrier")
    for sl in range(10):
        for hf in range(2):
            A(f"ds_write_b128 {v(V_BW)}, {v(V_PARK + 8 * sl + 4 * hf, 4)} offset:{sl * 2048 + hf * 1024}")
    A("s_waitcnt lgkmcnt(0)")
    A(f"v_add_u32 {v(V_G4)}, {L_MEM + 8192}, {v(V_L16)}")
    A("s_barrier")
    init_barrier_wait(A, V_T, nwg, cfg)
    near_half(A, cfg, S_PXR)

    S_C0, S_C1 = 4, 5
    L_SY = L_X + 6144

    def fe_scalars(A, rl, rt, tag, t1):
        A(f"s_and_b32 {s(T)}, {s(rt)}, {cfg.cr - 1}")
        A(f"s_lshl2_add_u32 {s(T)}, {s(rl)}, {s(T)}")
        A(f"s_lshl_b32 {s(S_PXA)}, {s(T)}, 16")
        A(f"s_add_u32 {s(S_PXA)}, {s(S_PXA)}, {s(S_PXR)}")
        A(f"s_mul_i32 {s(S_PLA)}, {s(T)}, 20480")
        A(f"s_add_u32 {s(S_PLA)}, {s(S_PLA)}, {s(S_PLW)}")
        A(f"s_lshl_b32 {s(S_DPA)}, {s(rl)}, 9")
        A(f"s_add_u32 {s(S_DPA)}, {s(S_DPA)}, {s(S_DPW)}")
        A(f"s_bfe_u32 {s(tag)}, {s(rt)}, {0x10000 + cfg.cr.bit_length() - 1}")
        A(f"s_add_u32 {s(t1)}, {s(rt)}, 1")

    def cur_local(A, isv):
        A(f"s_and_b32 {s(T)}, {s(S_T)}, {cfg.cr - 1}")
        A(f"s_lshl2_add_u32 {s(T)}, {s(S_L)}, {s(T)}")
        A(f"s_mul_i32 {s(T)}, {s(T)}, 49152")
        A(f"s_add_u32 {s(S_VMA)}, {s(T)}, {s(S_VMH)}")
        if not isv:
            A(f"s_add_u32 {s(S_OIA)}, {s(T)}, {s(S_OIH)}")
            A(f"s_lshl_b32 {s(T)}, {s(S_L)}, 9")
            A(f"s_add_u32 {s(S_DOA)}, {s(T)}, {s(S_DOH)}")

    def cur_global(A):
        A(f"s_lshl_b32 {s(T)}, {s(S_L)}, 6")
        A(f"s_add_u32 {s(T)}, {s(T)}, {s(S_T)}")
        A(f"s_mul_i32 {s(S_KP)}, {s(T)}, {XG2_STEP}")
        A(f"s_add_u32 {s(S_KP)}, {s(S_KP)}, {s(S_XGH)}")
        A(f"s_lshl_b32 {s(T)}, {s(T)}, 10")
        A(f"s_add_u32 {s(S_KF)}, {s(T)}, {s(S_FXH)}")

    def kv_src(A, rl, rt):
        A(f"s_mul_i32 {s(S_KSRC)}, {s(rt)}, {QKV_SEG if not cfg.kvhit else 0}")
        A(f"s_add_u32 {s(S_KSRC)}, {s(S_KSRC)}, {s(S_HOFF)}")
        if cfg.lstride:
            A(f"s_mul_i32 {s(T)}, {s(rl)}, {cfg.lstride}")
            A(f"s_add_u32 {s(S_KSRC)}, {s(S_KSRC)}, {s(T)}")

    def flag_row_of(A, dst, rl, rt):
        A(f"s_lshl_b32 {s(dst)}, {s(rl)}, 6")
        A(f"s_add_u32 {s(dst)}, {s(dst)}, {s(rt)}")
        A(f"s_lshl_b32 {s(dst)}, {s(dst)}, 9")
        A(f"s_add_u32 {s(dst)}, {s(dst)}, {flag_row(F_K)}")

    def next_item(A, rl, rt):
        A(f"s_sub_u32 {s(T)}, {s(S_C0)}, {s(S_C1)}")
        A(f"s_cmp_gt_i32 {s(T)}, {LAG}")
        A(f"s_cselect_b32 {s(rl)}, 1, 0")
        A(f"s_cmp_eq_u32 {s(S_C0)}, 64")
        A(f"s_cselect_b32 {s(rl)}, 1, {s(rl)}")
        A(f"s_cmp_eq_u32 {s(rl)}, 0")
        A(f"s_cselect_b32 {s(rt)}, {s(S_C0)}, {s(S_C1)}")
        A(f"s_addc_u32 {s(S_C0)}, {s(S_C0)}, 0")
        A(f"s_add_u32 {s(S_C1)}, {s(S_C1)}, {s(rl)}")

    def kv_dma():
        out = []
        for i in range(24):
            e = []
            if i % 4 == 0:
                e += [f"s_add_u32 m0, {s(S_KLDS)}, {i * 1024}", f"s_add_u32 {s(T + 7)}, {s(S_KSRC)}, {(i % 12) * 1024 + (i // 12) * QKV_SZ}"]
            e.append(f"buffer_load_dwordx4 {v(V_L16)}, {WS}, {s(T + 7)} offen offset:{(i % 4) * 1024} {DF[cfg.dfl]}lds")
            out.append(e)
        return out

    def flag_spin(row):
        top = A.newlabel("fl")
        A.label(top)
        A(f"buffer_load_dword {v(V_T)}, {v(V_FLG)}, {WS}, {s(row)} offen sc1")
        A("s_waitcnt vmcnt(0)")
        A(f"v_cmp_eq_u32 vcc, 0, {v(V_T)}")
        poll_tail(A, top, sleep=1)

    S_PLW, S_DPW = 6, 7
    S_EARLY = S_KCUR
    S_LO, S_HI = 37, S_FCUR
    A(f"s_mul_i32 {s(S_PLW)}, {s(S_WAVE)}, {2048 if cfg.h16 else 5120}")
    if cfg.h16:
        A(f"v_sub_u32 {v(V_L16B)}, {v(V_MW2)}, {v(V_MW)}")
        A(f"v_add_u32 {v(V_L16B)}, {v(V_L16B)}, {v(V_L16)}")
        A(f"v_add_u32 {v(V_L16B)}, 8192, {v(V_L16B)}")
        A(f"s_mov_b32 {s(S_LO)}, 0x3f80")
        A(f"s_mov_b32 {s(S_HI)}, 0x3f800000")
    A(f"s_add_u32 {s(S_PLW)}, {s(S_PLW)}, {s(S_XB)}")
    A(f"s_lshl_b32 {s(S_DPW)}, {s(S_WAVE)}, 7" if not cfg.pb else f"s_mov_b32 {s(S_DPW)}, 0")
    A(f"s_add_u32 {s(S_DPW)}, {s(S_DPW)}, {s(S_XB)}")
    A(f"s_add_u32 {s(S_DPW)}, {s(S_DPW)}, {DP_OFF}")
    if not cfg.h16:
        A(f"v_add_u32 {v(V_L16B)}, 4096, {v(V_L16)}")
    A(f"s_mov_b32 {s(S_N)}, 0")
    A(f"s_mov_b32 {s(S_C0)}, 0")
    A(f"s_mov_b32 {s(S_C1)}, 0")
    A(f"s_mov_b32 {s(S_KP)}, {NONE}")
    A(f"s_mov_b32 {s(S_FP)}, {NONE}")
    A(f"s_mov_b32 {s(S_KF)}, {NONE}")
    next_item(A, S_L, S_T)
    fe_scalars(A, S_L, S_T, S_TAG, S_T1)
    stamp = mk_stamp(A, cfg, V_STAMP)
    A(f"s_cmp_lg_u32 {s(S_ISV)}, 0")
    A("s_cbranch_scc1 CV_START")

    order = [2, 0, 1] if cfg.h16 else [4, 0, 1, 2, 3]
    NP_ = len(order)

    def pld(base, i, sa):
        if cfg.h16:
            if i == 2:
                return f"buffer_load_dwordx2 {v(base + 8, 2)}, {v(V_L16B)}, {WS}, {s(sa)} offen sc1"
            return f"buffer_load_dwordx4 {v(base + 4 * i, 4)}, {v(V_L16)}, {WS}, {s(sa)} offen offset:{i * 1024} sc1"
        return f"buffer_load_dwordx4 {v(base + 4 * i, 4)}, {v(V_L16 if i < 4 else V_L16B)}, {WS}, {s(sa)} offen offset:{(i % 4) * 1024} sc1"

    def process16(V_PL, V_PR, retry):
        TA = V_T + 4
        U = V_PR
        for n, i in enumerate(order):
            A(f"s_waitcnt vmcnt({5 - n})")
            for k in range(4 * i, 4 * i + (4 if i < 2 else 2)):
                A(f"v_lshlrev_b32 {v(U + 2 * k)}, 16, {v(V_PL + k)}")
                A(f"v_and_b32 {v(U + 2 * k + 1)}, 0xffff0000, {v(V_PL + k)}")
        for n, i in enumerate(order):
            A(f"s_waitcnt vmcnt({2 - n})")
            ks = range(4 * i, 4 * i + (4 if i < 2 else 2))
            for k in ks:
                A(f"v_dot2c_f32_bf16 {v(U + 2 * k)}, {s(S_LO)}, {v(V_PL + 10 + k)}")
                A(f"v_dot2c_f32_bf16 {v(U + 2 * k + 1)}, {s(S_HI)}, {v(V_PL + 10 + k)}")
            A(f"v_bitop3_b32 {v(TA + (1 if n else 0))}, {v(V_PL + 4 * i)}, {v(V_PL + 10 + 4 * i)}, {s(S_TAG)} bitop3:0x7e")
            if n == 2:
                A(f"v_bitop3_b32 {v(TA)}, {v(TA)}, {v(TA + 1)}, 1 bitop3:0xa8")
                A(f"v_cmp_ne_u32 vcc, 0, {v(TA)}")
            elif n:
                A(f"v_or_b32 {v(TA)}, {v(TA)}, {v(TA + 1)}")
            for k in ks:
                A(f"v_cvt_pk_bf16_f32 {v(V_F + k)}, {v(U + 2 * k)}, {v(U + 2 * k + 1)}")
            if i == 2:
                A(f"ds_write_b64 {v(V_MW2)}, {v(V_F + 8, 2)}")
            else:
                A(f"ds_write_b128 {v(V_MW)}, {v(V_F + 4 * i, 4)} offset:{i * 1024}")
        A.nf(f"s_cbranch_vccnz {retry}")

    def process(V_PL, V_PR, wait, retry):
        if cfg.h16:
            return process16(V_PL, V_PR, retry)
        TA = V_T + 4
        for n, i in enumerate(order):
            wait(n)
            A(f"v_pk_add_f32 {v(V_T, 2)}, {v(V_PL + 4 * i, 2)}, {v(V_PR + 4 * i, 2)}")
            A(f"v_pk_add_f32 {v(V_T + 2, 2)}, {v(V_PL + 4 * i + 2, 2)}, {v(V_PR + 4 * i + 2, 2)}")
            A(f"v_bitop3_b32 {v(TA + (1 if n else 0))}, {v(V_PL + 4 * i)}, {v(V_PR + 4 * i)}, {s(S_TAG)} bitop3:0x7e")
            A(f"v_cvt_pk_bf16_f32 {v(V_F + 2 * i)}, {v(V_T)}, {v(V_T + 1)}")
            A(f"v_cvt_pk_bf16_f32 {v(V_F + 2 * i + 1)}, {v(V_T + 2)}, {v(V_T + 3)}")
            if n == 4:
                A(f"v_bitop3_b32 {v(TA)}, {v(TA)}, {v(TA + 1)}, 1 bitop3:0xa8")
            elif n:
                A(f"v_or_b32 {v(TA)}, {v(TA)}, {v(TA + 1)}")
            if n == 4:
                A(f"v_cmp_ne_u32 vcc, 0, {v(TA)}")
            if i == 4:
                A(f"ds_write_b64 {v(V_MW2)}, {v(V_F + 8, 2)}")
            elif i & 1:
                A(f"ds_write_b128 {v(V_MW)}, {v(V_F + 4 * (i >> 1), 4)} offset:{(i >> 1) * 1024}")
        A.nf(f"s_cbranch_vccnz {retry}")

    def kgrab():
        A(f"s_mov_b64 vcc, {s(S_MB, 2)}")
        tmp = (V_F, V_F + 4, V_T)
        for jp in range(3):
            for par in range(2):
                for ih in range(2):
                    A(f"ds_read_b64_tr_b16 {v((V_KEEP + 4 * jp, tmp[jp])[par] + 2 * ih, 2)}, {v(V_XR)} offset:{(2 * jp + par) * 1024 + ih * 512}")
        for jp in range(3):
            A(f"s_waitcnt lgkmcnt({8 - 4 * jp})")
            for i in range(4):
                A(f"v_cndmask_b32_dpp {v(V_KEEP + 4 * jp + i)}, {v(tmp[jp] + i)}, {v(V_KEEP + 4 * jp + i)}, vcc quad_perm:[0,1,0,1] row_mask:0xf bank_mask:0xf")

    def zero_mfma(Z=10):
        A(f"v_mfma_f32_32x32x8_bf16 {v(V_ACC, 16)}, {v(Z, 2)}, {v(Z, 2)}, 0")
        A(f"v_mfma_f32_16x16x16_bf16 {v(V_ACC + 16, 4)}, {v(Z, 2)}, {v(Z, 2)}, 0")
        A(f"v_mfma_f32_16x16x16_bf16 {v(V_ACC + 20, 4)}, {v(Z, 2)}, {v(Z, 2)}, 0")

    def front(L, ool, top, fast=None, poller=None, V_PL=V_PL, V_PR=V_PR, zero=True):
        again, retry, join = A.newlabel("fa"), A.newlabel("fr"), A.newlabel("fj")

        RB = V_PL + 10 if cfg.h16 else V_PR

        def zr():
            for i in range(24 if zero else 0):
                A(f"v_mov_b32 {v(V_ACC + i)}, 0")
        A.label(top)
        if not fast:
            zr()
        if poller == "w0":
            lab = A.newlabel("np")
            A(f"s_cmp_lg_u32 {s(S_WAVE)}, 0")
            A(f"s_cbranch_scc1 {lab}")
        if poller == "me":
            A(f"v_mov_b32 {v(V_T + 2)}, {s(S_N)}")
        if poller:
            doorbell(A, cfg, V_DB, S_DPA, V_T)
        if poller == "w0":
            A.label_nf(lab)
        if poller == "me":
            A(f"ds_write_b32 {v(V_RDY)}, {v(V_T + 2)}")
            for i in order:
                A(pld(V_PL, i, S_PLA))
            if cfg.s3 == 1:
                A(f"s_cmp_eq_u32 {s(S_EARLY)}, 0" if cfg.s3 == 1 else f"s_cmp_lg_u32 {s(S_EARLY)}, {s(S_SPIN)}")
                A.nf(f"s_cbranch_scc0 {join}e")
        A("s_barrier")
        stamp(0)
        if poller != "me":
            for i in order:
                A(pld(V_PL, i, S_PLA))
        if fast and zero:
            A.nf(f"s_cbranch_vccz {fast}")
            zr()
        elif fast:
            A.nf(f"s_cbranch_vccz {join}f")
        A(f"s_waitcnt vmcnt({min(cfg.rw, NP_ - 1)})")
        if cfg.rx:
            A(f"buffer_load_dword {v(V_T)}, {v(V_L16)}, {WS}, {s(S_DPA)} offen sc1" if cfg.rx == 9 else f"s_sleep {cfg.rx}")
        A.label_nf(join + "f")
        for i in order:
            A(pld(RB, i, S_PXA))
        if zero is None:
            zero_mfma()
        if poller == "me" and cfg.w3:
            kgrab()
        A.label_nf(join)
        stamp(7)
        A.label_nf(again)
        process(V_PL, V_PR, lambda n: A(f"s_waitcnt vmcnt({4 - n})"), retry)
        A.label_nf(join + "g")
        L.q = ["mw"]
        stamp(1)

        def slow():
            A.label(retry)
            sk = A.newlabel("sk")
            A(f"v_bitop3_b32 {v(V_T)}, {v(V_PL)}, {v(V_PL + 4)}, {s(S_TAG)} bitop3:0x7e")
            A(f"v_bitop3_b32 {v(V_T + 1)}, {v(V_PL + 8)}, {v(V_PL + (8 if cfg.h16 else 12))}, {s(S_TAG)} bitop3:0x7e")
            A(f"v_xor_b32 {v(V_T + 2)}, {s(S_TAG)}, {v(V_PL + (8 if cfg.h16 else 16))}")
            A(f"v_or3_b32 {v(V_T)}, {v(V_T)}, {v(V_T + 1)}, {v(V_T + 2)}")
            A(f"v_and_b32 {v(V_T)}, 1, {v(V_T)}")
            A(f"v_cmp_ne_u32 vcc, 0, {v(V_T)}")
            A.nf(f"s_cbranch_vccz {sk}")
            for i in order:
                A(pld(V_PL, i, S_PLA))
            if cfg.timing == 5:
                A("s_add_u32 s93, s93, 1")
            A.label_nf(sk)
            for i in order:
                A(pld(RB, i, S_PXA))
            if cfg.timing == 5:
                A("s_add_u32 s92, s92, 1")
            spin_fail(A)
            A("s_waitcnt lgkmcnt(0)")
            A(f"s_branch {again}")
            if fast and zero:
                A.label(fast)
                for i in order:
                    A(pld(RB, i, S_PXA))
                zr()
                A(f"s_branch {join}")
            if poller == "me" and cfg.s3:
                A.label("CH_RUNG")
                A(f"v_mov_b32 {v(V_T + 2)}, {s(S_N)}")
                A(f"ds_write_b32 {v(V_RDY)}, {v(V_T + 2)}")
                for i in order:
                    A(pld(V_PL, i, S_PLA))
                A.label(join + "e")
                for i in order:
                    A(pld(RB, i, S_PXA))
                if cfg.w3:
                    kgrab()
                if cfg.ep:
                    process(V_PL, V_PR, lambda n: A(f"s_waitcnt vmcnt({4 - n})"), join + "m")
                    A("s_barrier")
                    stamp(0)
                    stamp(7)
                    A.nf(f"s_branch {join}g")
                    A.label_nf(join + "m")
                A("s_barrier")
                stamp(0)
                A(f"s_branch {retry if cfg.ep else join}")
        ool.append(slow)
        return retry, join + "g"

    G3I = {}

    def gemm3(L, AR, relA89):
        sq = [(0, t_) for t_ in (0, 3, 2, 1, 4)] + [(1, 0), (1, 3), (0, 5), (1, 2), (1, 1), (1, 5), (1, 4)]
        nl = cfg.nlate
        sq += [(sl, t_) for sl in range(2, 8) for t_ in ((0, 3, 2, 5) if sl >= 10 - nl else (0, 3, 1, 4, 2, 5))]
        sq += [(8, 0), (8, 3), (9, 0), (9, 3), (8, 2), (8, 5), (9, 2), (9, 5)]
        sq += [(sl, t_) for sl in (5, 6, 7, 8, 9, 2, 3, 4) if sl >= 10 - nl for t_ in (1, 4)]
        assert len(sq) == 60
        first = {}
        for k, (sl, t_) in enumerate(sq):
            first.setdefault(sl, k)
            G3I["last", sl] = k
            G3I[sl, t_] = k

        def af(sl):
            return v(V_F + 4 * sl, 4) if sl < 2 else v(AR[sl - 2], 4)

        def rdB(sl):
            return [(("B", sl), f"ds_read_b128 {v(V_B + 8 * (sl & 1) + 4 * hf, 4)}, {v(V_BW)} offset:{sl * 2048 + hf * 1024}") for hf in range(2)]

        def rdA(sl):
            ad = V_GB + sl // 2 - 1 if sl < 8 else V_G4
            return [(("A", sl), f"ds_read_b128 {af(sl)}, {v(ad)} offset:{(sl & 1) * 1024}")]
        seq = []
        rd = [Task(cfg.bar1, rdA(2)), Task(0, rdB(0) + rdB(1))]
        for k, (sl, t_) in enumerate(sq):
            seq.append((f"{SM} {v(V_ACC + 4 * t_, 4)}, {af(sl)}, {wtxt(sl, t_)}, {v(V_IDX)}", [("A", sl)] + ([("B", sl)] if t_ == 5 else [])))
            if t_ == 5 and sl + 2 < 10:
                rd.append(Task(k, rdB(sl + 2)))
        for sl in range(3, 10):
            rd.append(Task(max(cfg.bar1, first[sl] - cfg.alead, relA89 if sl >= 8 else 0), rdA(sl)))

        def items(p):
            q, k = V_ACC + 4 * p, V_ACC + 4 * (3 + p)
            return [f"v_add_f32 {v(q)}, {v(q)}, {v(q + 1)}", f"v_add_f32 {v(q + 2)}, {v(q + 2)}, {v(q + 3)}",
                    f"v_add_f32 {v(k)}, {v(k)}, {v(k + 1)}", f"v_add_f32 {v(k + 2)}, {v(k + 2)}, {v(k + 3)}",
                    f"v_cvt_pk_bf16_f32 {v(k + 1)}, {v(q)}, {v(q + 2)}", f"v_cvt_pk_bf16_f32 {v(k)}, {v(k)}, {v(k + 2)}",
                    (("xw", p), f"ds_write_b64 {v(V_XW)}, {v(k, 2)} offset:{(0, 2, 1)[p] * 2048}")]
        return seq, rd, items

    def bar_after(L, tag, st_=None, tasks=()):
        def f():
            for t in tasks:
                assert not t.items, tag
            L.wait(tag)
            A("s_barrier")
            if st_ is not None:
                stamp(st_)
        return f

    def afrag(sl):
        return v(V_F + 4 * sl, 4) if sl < 2 else v(V_A + 4 * ((sl - 2) % 3), 4)

    def gemm(L, tasks, tail_order, hi=()):
        sq = [(0, t_) for t_ in range(5)] + [(1, t_) for t_ in range(5)] + [(0, 5), (1, 5)]
        sq += [(sl, t_) for sl in range(2, 10 - len(tail_order) // 6) for t_ in range(6)]
        sq += tail_order

        def rdB(sl):
            return [(("B", sl), f"ds_read_b128 {v(V_B + 8 * (sl & 1) + 4 * hf, 4)}, {v(V_BW)} offset:{sl * 2048 + hf * 1024}") for hf in range(2)]

        def rdA(sl):
            ad = V_GB + sl // 2 - 1 if sl < 8 else V_G4
            return [(("A", sl), f"ds_read_b128 {afrag(sl)}, {v(ad)} offset:{(sl & 1) * 1024}")]
        seq = []
        rd = [Task(cfg.bar1, rdA(2)), Task(0, rdB(0) + rdB(1)), Task(cfg.bar1, rdA(3) + rdA(4))]
        for k, (sl, t_) in enumerate(sq):
            seq.append((f"{SM} {v(V_ACC + 4 * t_, 4)}, {afrag(sl)}, {wtxt(sl, t_)}, {v(V_IDX)}", [("A", sl)] + ([("B", sl)] if t_ == 5 else [])))
            if t_ == 5 and sl + 2 < 10:
                rd.append(Task(k, (rdA(sl + 3) if 2 <= sl < 7 else []) + rdB(sl + 2)))

        def bar():
            L.wait("mw")
            A("s_barrier")
            stamp(5)
        sched(A, L, seq, list(hi) + rd + list(tasks), pre={cfg.bar1: bar})
        stamp(6)

    def pend_window(stores):
        def f1():
            lab = A.newlabel("pf")
            A(f"s_cmp_ge_u32 {s(S_FP)}, {NONE}")
            A.nf(f"s_cbranch_scc1 {lab}")
            flag_val(A, cfg, V_T + 5)
            A("s_mov_b64 exec, 1")
            A(f"buffer_store_dword {v(V_T + 5)}, {v(V_L16)}, {WS}, {s(S_FP)} offen sc1")
            A("s_mov_b64 exec, -1")
            A(f"s_mov_b32 {s(S_FP)}, {NONE}")
            A.label_nf(lab)

        def f2():
            lab = A.newlabel("pk")
            A(f"s_cmp_eq_u32 {s(S_KP)}, {NONE}")
            A.nf(f"s_cbranch_scc1 {lab}")
            for x in stores:
                if not cfg.noxg:
                    A(x)
            A(f"s_mov_b32 {s(S_FP)}, {s(S_KF) if not cfg.noxg else NONE}")
            A(f"s_mov_b32 {s(S_KP)}, {NONE}")
            A.label_nf(lab)
        return f1, f2

    def pend_items(stores):
        def fv():
            flag_val(A, cfg, V_T + 5)
        return [(4, fv), f"s_mov_b64 exec, 1\nbuffer_store_dword {v(V_T + 5)}, {v(V_L16)}, {WS}, {s(S_FP)} offen sc1\ns_mov_b64 exec, -1"] + stores + \
            [f"s_and_b32 {s(S_FP)}, {s(S_KP)}, {NONE}", f"s_or_b32 {s(S_FP)}, {s(S_FP)}, {s(S_KF)}", f"s_mov_b32 {s(S_KP)}, {NONE}"]

    def advance():
        A(f"s_add_u32 {s(S_N)}, {s(S_N)}, 1")
        A(f"s_mov_b32 {s(S_L)}, {s(S_NL)}")
        A(f"s_mov_b32 {s(S_T)}, {s(S_NT)}")
        A(f"s_mov_b32 {s(S_TAG)}, {s(S_NTAG)}")
        A(f"s_mov_b32 {s(S_T1)}, {s(S_NT1)}")

    def qk_epi(L):
        def items(p):
            q, k = V_ACC + 4 * p, V_ACC + 4 * (3 + p)
            return [f"v_add_f32 {v(q)}, {v(q)}, {v(q + 1)}", f"v_add_f32 {v(q + 2)}, {v(q + 2)}, {v(q + 3)}",
                    f"v_add_f32 {v(k)}, {v(k)}, {v(k + 1)}", f"v_add_f32 {v(k + 2)}, {v(k + 2)}, {v(k + 3)}",
                    f"v_cvt_pk_bf16_f32 {v(k + 1)}, {v(q)}, {v(q + 2)}", f"v_cvt_pk_bf16_f32 {v(k)}, {v(k)}, {v(k + 2)}",
                    ("xw", f"ds_write_b64 {v(V_XW)}, {v(k, 2)} offset:{p * 512}")]
        if cfg.t3:
            return [Task(cfg.t3, items(0) + items(2)), Task(60, items(1))]
        return [Task(53, items(0)), Task(60, items(1)), Task(60, items(2))]
    qk_tail = []
    for p in range(3):
        qk_tail += [(8, p), (8, 3 + p), (9, p), (9, 3 + p)]
    if cfg.t3:
        qk_tail = [(7, 2), (7, 5), (7, 0), (7, 3), (8, 0), (8, 3), (9, 0), (9, 3), (8, 2), (8, 5), (9, 2), (9, 5),
                   (7, 1), (7, 4), (8, 1), (8, 4), (9, 1), (9, 4)]

    if cfg.timing == 5:
        for k in range(5):
            A(f"s_mov_b32 {s(92 + k)}, 0")
    A(f"s_cmp_eq_u32 {s(S_WAVE)}, 3")
    A("s_cbranch_scc1 CH_START")
    A(f"s_lshl_b32 {s(T)}, {s(S_WAVE)}, 2")
    A(f"s_add_u32 {s(T)}, {s(T)}, {L_SY}")
    A(f"v_mov_b32 {v(V_SY)}, {s(T)}")
    A(f"v_mov_b32 {v(V_T)}, 0")
    A(f"ds_write_b32 {v(V_SY)}, {v(V_T)}")
    A(f"v_add_u32 {v(V_KA)}, {L_KV + 24576}, {v(V_L16)}")
    A(f"v_mov_b32 {v(V_FLG)}, {L_SY + 12}")
    A(f"s_lshl_b32 {s(S_XGH)}, {s(S_WAVE)}, 12")
    A(f"s_add_u32 {s(S_HOFF)}, {s(S_HOFF)}, {s(S_XGH)}")
    A(f"s_add_u32 {s(S_KLDS)}, {s(S_XGH)}, {L_KV}")
    A(f"s_add_u32 {s(S_FLG1)}, {s(S_KLDS)}, {s(S_KLDS)}")
    A(f"s_add_u32 {s(S_FLG1)}, {s(S_FLG1)}, 24576")
    if cfg.ctouch:
        A(f"s_mul_i32 {s(T)}, {s(S_J)}, 3")
        A(f"s_add_u32 {s(T)}, {s(T)}, {s(S_WAVE)}")
        A(f"v_lshlrev_b32 {v(V_T + 1)}, 7, {v(V_LANE)}")
        for k in range(3):
            A(f"s_add_u32 {s(T + 1)}, {s(T)}, {48 * k}")
            A(f"s_min_u32 {s(T + 1)}, {s(T + 1)}, {DP_OFF // 8192 - 1}")
            A(f"s_lshl_b32 {s(T + 1)}, {s(T + 1)}, 13")
            A(f"s_add_u32 {s(T + 1)}, {s(T + 1)}, {s(S_XB)}")
            A(f"buffer_load_dword {v(V_T + 2)}, {v(V_T + 1)}, {WS}, {s(T + 1)} offen sc1")
        A("s_waitcnt vmcnt(0)")
    A("s_mov_b64 vcc, -1")
    A("s_waitcnt lgkmcnt(0)")
    if cfg.timing:
        A(f"s_memrealtime {s(S_T0, 2)}")
        if cfg.timing == 6:
            A("s_memtime s[92:93]")
        A("s_waitcnt lgkmcnt(0)")
    stamp.init()
    KXR = [V_FREE + 4 * i for i in range(6)] + [V_F, V_F + 4] + [V_B + 4 * i for i in range(4)]
    QP = "row_mask:0xf bank_mask:0xf"

    def s_loop(sx, LS):
        L = Lds(A)
        ool = []
        front(L, ool, "CS_LOOP" + sx, "CS_FAST" + sx)
        fill = [f"v_xor_b32 {v(V_KA)}, {L_KV ^ (L_KV + 24576)}, {v(V_KA)}"]
        fill += groups(cap(lambda c: next_item(c, S_NL, S_NT)))
        if cfg.dsh and not cfg.nodma:
            fill += cap(lambda c: kv_src(c, S_NL, S_NT)) + [f"s_sub_u32 {s(S_KLDS)}, {s(S_FLG1)}, {s(S_KLDS)}", f"s_mov_b32 m0, {s(S_KLDS)}"]
            fill += cap(lambda c: cur_local(c, False))
            fill += [f"buffer_load_dwordx4 {v(V_L16)}, {WS}, {s(S_KSRC)} offen offset:{i * 1024} {DF[cfg.dfl]}lds" for i in range(4)]
        else:
            fill += cap(lambda c: cur_local(c, False))
        fill += cap(lambda c: fe_scalars(c, S_NL, S_NT, S_NTAG, S_NT1))
        fill += [f"v_add_u32 {v(V_T + 5)}, {s(S_XGH)}, {v(V_KA)}", f"v_mov_b32 {v(V_T + 4)}, {s(S_T1)}", f"v_mov_b32 {v(V_T + 3)}, 0"]

        def rdK(i):
            return (("K", i), f"ds_read_b128 {v(KXR[i], 4)}, {v(V_KA)} offset:{i * 1024}")
        epi = qk_epi(L)
        gemm(L, [Task(0, fill), Task(14, [rdK(i) for i in range(8)])] + epi[1:], qk_tail, hi=epi[:1])
        skip = A.newlabel("last")
        A(f"s_cmp_eq_u32 {s(S_T)}, 63")
        A.nf(f"s_cbranch_scc1 {skip}")
        L.op(*rdK(8))
        L.op(*rdK(9))
        L.wait("xw")
        A("s_barrier")
        stamp(2)
        X = V_ACC
        S0, S1, SMm = V_A, V_A + 4, V_A + 8
        VX, VM = V_FREE, V_FREE + 16
        PA, PB, PM, TT, O = 24, 28, 32, 34, 36
        DBV = V_FV

        def rdX(j):
            return [(("X", j), f"ds_read_b64_tr_b16 {v(X + 4 * j + 2 * ih, 2)}, {v(V_XR)} offset:{j * 1024 + ih * 512}") for ih in range(2)]
        for j in range(4):
            for it in rdX(j):
                L.op(*it)
        vmld = f"buffer_load_dwordx4 {v(VM, 4)}, {v(V_L16)}, {WS}, {s(S_VMA)} offen sc1"
        dbld = f"buffer_load_dword {v(DBV)}, {v(V_DB)}, {WS}, {s(S_DPA)} offen sc1"
        ring = f"s_mov_b64 exec, 1\nbuffer_store_dword {v(V_T + 4)}, {v(V_L16)}, {WS}, {s(S_DOA)} offen{LS}\ns_mov_b64 exec, -1"
        nst = [0]

        def do_vm():
            A(vmld)
            nst[0] = 0

        def do_ring():
            A(ring)
            nst[0] += 1
        seq = []
        for j in range(6):
            for acc, aop, tg in ((S0, KXR[2 * j], ("K", 2 * j)), (S1, KXR[2 * j + 1], ("K", 2 * j + 1)), (SMm, X + 4 * j, ("X", j))):
                seq.append((f"{MF} {v(acc, 4)}, {v(aop, 4)}, {v(X + 4 * j, 4)}, {'0' if j == 0 else v(acc, 4)}", [("X", j), tg]))
        tk = [Task(0, rdX(4) + [rdK(10), rdK(11)] + rdX(5)),
              Task(6, [("vx", f"ds_read_b128 {v(VX + 4 * i, 4)}, {v(V_T + 5)} offset:{12288 + i * 1024}") for i in range(4)]),
              Task(0, [f"s_mov_b64 vcc, {s(S_MA, 2)}"])]
        if cfg.vmj < 18:
            tk.append(Task(max(cfg.vmj, 9), [(16, do_vm)]))
        if cfg.dbo < 18:
            tk.append(Task(cfg.dbo, [(16, do_ring)]))
        sched(A, L, seq, tk, nvalu=2)

        def mark(k):
            if cfg.vmj == 18 + k:
                do_vm()
            if cfg.dbo == 18 + k:
                do_ring()
        mark(0)
        Y = [S0 + i for i in range(4)]
        Z = SMm
        ZR, ZERO = V_T + 2, V_T + 3
        for i in range(4):
            A(f"v_cndmask_b32_dpp {v(Y[i])}, {v(S1 + i)}, {v(S0 + i)}, vcc quad_perm:[2,3,2,3] {QP}")
        A(f"v_max3_f32 {v(V_T)}, {v(Y[0])}, {v(Y[1])}, {v(Y[2])}")
        A(f"v_cndmask_b32_dpp {v(Z)}, {v(SMm + 1)}, {v(SMm)}, vcc quad_perm:[2,3,2,3] {QP}")
        A(f"v_max3_f32 {v(V_T)}, {v(V_T)}, {v(Y[3])}, {v(Z)}")
        mark(1)
        A(f"v_max_f32_dpp {v(V_T + 1)}, {v(V_T)}, {v(V_T)} quad_perm:[2,3,0,1] {QP}")
        A(f"v_max_f32_dpp {v(V_T)}, {v(V_T)}, {v(V_T)} quad_perm:[2,3,0,1] {QP}")
        A(f"v_permlane32_swap_b32 {v(V_T)}, {v(V_T + 1)}")
        A(f"v_max_f32 {v(S1)}, {v(V_T)}, {v(V_T + 1)}")
        A(f"v_max_f32 {v(V_T)}, {v(V_T)}, {v(V_T + 1)}")
        mark(2)
        A(f"v_permlane16_swap_b32 {v(V_T)}, {v(S1)}")
        A(f"v_max_f32 {v(V_T)}, {v(V_T)}, {v(S1)}")
        A(f"v_mul_f32 {v(V_T)}, {s(S_CS)}, {v(V_T)}")
        S5 = Y + [Z]
        for r in S5:
            A(f"v_fma_f32 {v(r)}, {v(r)}, {s(S_CS)}, -{v(V_T)}")
        for r in S5:
            A(f"v_exp_f32 {v(r)}, {v(r)}")
        mark(3)
        A(f"v_cvt_pk_bf16_f32 {v(TT)}, {v(Y[0])}, {v(Y[1])}")
        A(f"v_cvt_pk_bf16_f32 {v(TT + 1)}, {v(Y[2])}, {v(Y[3])}")
        A(f"v_cndmask_b32 {v(PB + 2)}, {v(TT)}, {v(ZERO)}, vcc")
        A(f"v_cndmask_b32 {v(PB + 3)}, {v(TT + 1)}, {v(ZERO)}, vcc")
        A(f"v_cndmask_b32_dpp {v(PB)}, {v(TT)}, {v(ZERO)}, vcc quad_perm:[2,3,0,1] {QP}")
        A(f"v_cndmask_b32_dpp {v(PB + 1)}, {v(TT + 1)}, {v(ZERO)}, vcc quad_perm:[2,3,0,1] {QP}")
        A(f"s_mov_b64 vcc, {s(S_MB, 2)}")
        L.wait("vx")
        A(f"v_cndmask_b32 {v(PA)}, {v(TT)}, {v(ZERO)}, vcc")
        A(f"{MF} {v(O, 4)}, {v(VX + 4, 4)}, {v(PB, 4)}, 0")
        A(f"v_cndmask_b32 {v(PA + 1)}, {v(TT + 1)}, {v(ZERO)}, vcc")
        A(f"v_cndmask_b32_dpp {v(PA + 2)}, {v(TT)}, {v(ZERO)}, vcc quad_perm:[2,3,0,1] {QP}")
        A(f"{MF} {v(O + 4, 4)}, {v(VX + 12, 4)}, {v(PB, 4)}, 0")
        A(f"v_cndmask_b32_dpp {v(PA + 3)}, {v(TT + 1)}, {v(ZERO)}, vcc quad_perm:[2,3,0,1] {QP}")
        A(f"v_mov_b32_dpp {v(ZR)}, {v(Z)} quad_perm:[2,3,0,1] {QP}")
        A(f"v_add_f32 {v(V_T)}, {v(Y[0])}, {v(Y[1])}")
        A(f"{MF} {v(O, 4)}, {v(VX, 4)}, {v(PA, 4)}, {v(O, 4)}")
        A(f"v_cvt_pk_bf16_f32 {v(PM)}, {v(Z)}, {v(ZR)}")
        A(f"v_cvt_pk_bf16_f32 {v(PM + 1)}, {v(ZR)}, {v(Z)}")
        A(f"{MF} {v(O + 4, 4)}, {v(VX + 8, 4)}, {v(PA, 4)}, {v(O + 4, 4)}")
        A(f"v_cndmask_b32 {v(PM)}, {v(PM)}, {v(ZERO)}, vcc")
        A(f"v_cndmask_b32 {v(PM + 1)}, {v(ZERO)}, {v(PM + 1)}, vcc")
        mark(4)
        A(f"ds_read_b32 {v(DBV)}, {v(V_FLG)}")
        bad, ok = A.newlabel("vb"), A.newlabel("vo")
        A(f"s_waitcnt vmcnt({nst[0]})")
        A(f"v_bitop3_b32 {v(V_T + 5)}, {v(VM)}, {v(VM + 2)}, {s(S_TAG)} bitop3:0x7e")
        A(f"v_add_f32 {v(V_T + 1)}, {v(Y[2])}, {v(Y[3])}")
        A(f"v_and_b32 {v(V_T + 5)}, 1, {v(V_T + 5)}")
        A(f"v_add_f32 {v(V_T)}, {v(V_T)}, {v(Z)}")
        A(f"v_cmp_ne_u32 vcc, 0, {v(V_T + 5)}")
        A(f"v_add_f32 {v(V_T)}, {v(V_T)}, {v(V_T + 1)}")
        A.nf(f"s_cbranch_vccnz {bad}")
        A.label_nf(ok)

        def vslow():
            A.label(bad)
            spin_fail(A)
            if cfg.timing == 5:
                A("s_add_u32 s94, s94, 1")
            A(vmld)
            A("s_waitcnt vmcnt(0)")
            A(f"v_bitop3_b32 {v(V_T + 5)}, {v(VM)}, {v(VM + 2)}, {s(S_TAG)} bitop3:0x7e")
            A(f"v_and_b32 {v(V_T + 5)}, 1, {v(V_T + 5)}")
            A(f"v_cmp_ne_u32 vcc, 0, {v(V_T + 5)}")
            A(f"s_cbranch_vccnz {bad}")
            A(f"s_branch {ok}")
        ool.append(vslow)
        A(f"v_mfma_f32_16x16x16_bf16 {v(O, 4)}, {v(VM, 2)}, {v(PM, 2)}, {v(O, 4)}")
        A(f"v_add_f32_dpp {v(V_T + 1)}, {v(V_T)}, {v(V_T)} quad_perm:[2,3,0,1] {QP}")
        A(f"v_add_f32_dpp {v(V_T)}, {v(V_T)}, {v(V_T)} quad_perm:[2,3,0,1] {QP}")
        A(f"v_mfma_f32_16x16x16_bf16 {v(O + 4, 4)}, {v(VM + 2, 2)}, {v(PM, 2)}, {v(O + 4, 4)}")
        A(f"v_permlane32_swap_b32 {v(V_T)}, {v(V_T + 1)}")
        A(f"v_add_f32 {v(S1)}, {v(V_T)}, {v(V_T + 1)}")
        A(f"v_add_f32 {v(V_T)}, {v(V_T)}, {v(V_T + 1)}")
        A(f"s_add_u32 {s(S_N)}, {s(S_N)}, 1")
        A(f"s_mov_b32 {s(S_L)}, {s(S_NL)}")
        A(f"v_permlane16_swap_b32 {v(V_T)}, {v(S1)}")
        A(f"v_add_f32 {v(V_T)}, {v(V_T)}, {v(S1)}")
        A(f"v_rcp_f32 {v(V_T)}, {v(V_T)}")
        A(f"s_mov_b32 {s(S_T)}, {s(S_NT)}")
        for i in range(0, 8, 2):
            A(f"v_pk_mul_f32 {v(O + i, 2)}, {v(O + i, 2)}, {v(V_T, 2)} op_sel_hi:[1,0]")
        OP = V_F
        for i in range(4):
            A(f"v_cvt_pk_bf16_f32 {v(OP + i)}, {v(O + 2 * i)}, {v(O + 2 * i + 1)}")
        A(f"v_and_or_b32 {v(OP)}, {v(OP)}, -2, {s(S_TAG)}")
        A(f"buffer_store_dwordx4 {v(OP, 4)}, {v(V_OST)}, {WS}, {s(S_OIA)} offen{LS}")
        mark(5)
        stamp(3)
        if cfg.timing == 3:
            A(f"s_sub_u32 {s(S_N)}, {s(S_N)}, 1")
            stamp(4)
            stamp.flush()
            A(f"s_add_u32 {s(S_N)}, {s(S_N)}, 1")
        A(f"s_mov_b32 {s(S_TAG)}, {s(S_NTAG)}")
        A(f"s_mov_b32 {s(S_T1)}, {s(S_NT1)}")
        A("s_waitcnt lgkmcnt(0)")
        A(f"v_cmp_ne_u32 vcc, {s(S_N)}, {v(DBV)}")
        A(f"v_mov_b32 {v(V_T)}, {s(S_N)}")
        A(f"ds_write_b32 {v(V_SY)}, {v(V_T)}")
        A.nf(f"s_branch CS_LOOP{sx}")
        A.label(skip)
        A("s_waitcnt lgkmcnt(0)")
        A("s_barrier")
        advance()
        A("s_mov_b64 vcc, -1")
        A("s_waitcnt vmcnt(0)")
        A(f"v_mov_b32 {v(V_T)}, {s(S_N)}")
        A(f"ds_write_b32 {v(V_SY)}, {v(V_T)}")
        A(f"s_cmp_lt_u32 {s(S_N)}, 128")
        A(f"s_cbranch_scc1 CS_LOOP{sx}")
        A("s_branch CS_DONE")
        for f in ool:
            f()

    def s_loop3(sx, LS, spec=False, other=None):
        from stations3 import Vm
        L = Lds(A)
        ool = []
        PLr, PRr = (92, 72) if cfg.pfs else (72, 92)
        ZERO, DBV = 10, 0
        retry, go = front(L, ool, "CS_LOOP" + sx, "x", V_PL=PLr, V_PR=PRr, zero=None)
        fill = [f"v_xor_b32 {v(V_KA)}, {L_KV ^ (L_KV + 24576)}, {v(V_KA)}"]
        fill += cap(lambda c: next_item(c, S_NL, S_NT))
        if cfg.dsh and not cfg.nodma:
            fill += cap(lambda c: kv_src(c, S_NL, S_NT)) + [f"s_sub_u32 {s(S_KLDS)}, {s(S_FLG1)}, {s(S_KLDS)}", f"s_mov_b32 m0, {s(S_KLDS)}"]
            fill += cap(lambda c: cur_local(c, False))
            fill += [f"buffer_load_dwordx4 {v(V_L16)}, {WS}, {s(S_KSRC)} offen offset:{i * 1024} {DF[cfg.dfl]}lds" for i in range(4)]
            if cfg.dsh == 2:
                fill += [f"s_add_u32 m0, {s(S_KLDS)}, 12288", f"s_add_u32 {s(S_KSRC)}, {s(S_KSRC)}, {QKV_SZ}"]
                fill += [f"buffer_load_dwordx4 {v(V_L16)}, {WS}, {s(S_KSRC)} offen offset:{i * 1024} {DF[cfg.dfl]}lds" for i in range(cfg.dv)]
        else:
            fill += cap(lambda c: cur_local(c, False))
        fill += [f"v_add_u32 {v(V_T + 5)}, {s(S_XGH)}, {v(V_KA)}", f"v_mov_b32 {v(V_T + 4)}, {s(S_T1)}"]
        fill += cap(lambda c: fe_scalars(c, S_NL, S_NT, S_NTAG, S_NT1))
        fill += [f"s_add_u32 {s(S_N)}, {s(S_N)}, 1", f"s_mov_b32 {s(S_L)}, {s(S_NL)}", f"s_mov_b32 {s(S_T)}, {s(S_NT)}", f"s_mov_b32 {s(S_T1)}, {s(S_NT1)}",
                 f"s_mov_b64 vcc, {s(S_MA, 2)}"]
        AR = [60, 64, 68, 88, 92, 96, 100, 104]
        KQ = [48, 52, 108, 72, 76, 80, 84, 88, 92, 96, 100, 104]
        XR = [24, 36, 32, 44, 28, 40]
        S0, S1, SMm = 60, 64, 68
        VX = XR[:4]
        PA, PB, VM, O1, PM, O0, TT, OP = 28, 40, 48, 52, 56, 64, 70, 48
        if cfg.s3 == 1:
            seq, rd, items = gemm3(L, AR, cfg.bar1)
            p1 = G3I[9, 5]
            free = {48: 14, 52: 14, 108: 14, 72: G3I[8, 5] + 1, 76: G3I[8, 5] + 1, 80: p1 + 1, 84: p1 + 1}
            free.update({AR[sl - 2]: G3I["last", sl] + 1 for sl in range(5, 10)})
            KQ = [48, 52] + sorted((r for r in free if r > 52), key=lambda r: free[r])
            KREL = [free[r] for r in KQ]
        else:
            seq = []
            KQ = [48, 52, 88, 92, 96, 100, 104, 108, 72, 76, 80, 84]
            XR = [24, 28, 32, 36, 40, 44]
            VX = XR[:4]
            PA, PB = 40, 44

        def rdK(i):
            return (("K", i), f"ds_read_b128 {v(KQ[i], 4)}, {v(V_KA)} offset:{i * 1024}")

        def rdX(j):
            return [(("X", j), f"ds_read_b64_tr_b16 {v(XR[j] + 2 * ih, 2)}, {v(V_XR)} offset:{j * 1024 + ih * 512}") for ih in range(2)]
        for j in range(6):
            for acc, aop, tg in ((S0, KQ[2 * j], ("K", 2 * j)), (S1, KQ[2 * j + 1], ("K", 2 * j + 1)), (SMm, XR[j], ("X", j))):
                seq.append((f"{MF} {v(acc, 4)}, {v(aop, 4)}, {v(XR[j], 4)}, {'0' if j == 0 else v(acc, 4)}", [("X", j), tg]))
        vmld = f"buffer_load_dwordx4 {v(VM, 4)}, {v(V_L16)}, {WS}, {s(S_VMA)} offen sc1"
        V = Vm(A)

        def do_ring(V):
            A("s_mov_b64 exec, 1")
            V.op("ring", f"buffer_store_dword {v(V_T + 4)}, {v(V_L16)}, {WS}, {s(S_DOA)} offen{LS}")
            A("s_mov_b64 exec, -1")
        if cfg.s3 == 1:
            e0, e2, e1 = Task(p1 - 1, items(0)), Task(p1 + 3, items(2)), Task(61, items(1))
            ka, kb = min(p1 + cfg.b2a, 60), cfg.b2b
            tf = Task(0, fill)
            tk = [e0, e2, e1] + rd + [Task(ka, rdX(0) + rdX(1)), Task(kb, rdX(4) + rdX(5))]
            tk += [Task(KREL[i], [rdK(i)]) for i in range(3, 6)] + [Task(ka, rdX(2))] + [Task(KREL[i], [rdK(i)]) for i in (6, 7)] + [Task(ka, rdX(3))]
            tk += [Task(KREL[i], [rdK(i)]) for i in range(8, 12)]
            if cfg.vmj < 18:
                tk.append(Task(60 + max(cfg.vmj, 1), [(8, lambda: V.op("vm", vmld))]))
            if cfg.dbo < 18:
                tk.append(Task(60 + cfg.dbo, [(16, lambda: do_ring(V))]))
            if cfg.pf == 1:
                tk.append(Task(cfg.krd, [("rdy", f"ds_read_b32 {v(DBV)}, {v(V_FLG)}")]))
            tk += [Task(63 + 3 * i, [("vx", f"ds_read_b128 {v(VX[i], 4)}, {v(V_T + 5)} offset:{12288 + i * 1024}")]) for i in range(4)]
            tk += [Task(cfg.k0 + 4 * i, [rdK(i)]) for i in range(3)] + [tf]

            def lim(k):
                return (16, 2) if p1 - 1 <= k < p1 + 7 else (12, 1) if k < 59 else (12, 2)

            def b2b():
                bar_after(L, ("xw", 1), 2, [e1, tf])()
            sched(A, L, seq, tk, pre={cfg.bar1: bar_after(L, "mw", 5), ka: bar_after(L, ("xw", 2), None, [e0, e2]), kb: b2b, 61: lambda: stamp(6)}, lim=lim)
            pref = A.newlabel("pf")
            if cfg.pf == 1:
                L.wait("rdy")
                A(f"v_readfirstlane_b32 {s(T)}, {v(DBV)}")
                A(f"s_cmp_eq_u32 {s(T)}, {s(S_N)}")
                A.nf(f"s_cbranch_scc1 {pref}")
        else:
            epi = qk_epi(L)
            gemm(L, [Task(cfg.k0, [rdK(i) for i in range(8)], step=cfg.kst), Task(0, fill)] + epi[1:], qk_tail, hi=epi[:1])
            L.op(*rdK(8))
            L.op(*rdK(9))
            L.wait("xw")
            A("s_barrier")
            stamp(2)
            for j in range(4):
                for it in rdX(j):
                    L.op(*it)
            tk = [Task(0, rdX(4) + [rdK(10), rdK(11)] + rdX(5))]
            tk += [Task(3 + 3 * i, [("vx", f"ds_read_b128 {v(VX[i], 4)}, {v(V_T + 5)} offset:{12288 + i * 1024}")]) for i in range(4)]
            if cfg.vmj < 18:
                tk.append(Task(max(cfg.vmj, 1), [(8, lambda: V.op("vm", vmld))]))
            if cfg.dbo < 18:
                tk.append(Task(cfg.dbo, [(16, lambda: do_ring(V))]))
            if spec and cfg.pfs:
                tk.append(Task(cfg.pfs, [(8, lambda n=n: V.op(("P", n), pld(PLr, order[n], S_PLA))) for n in range(5)]))
            sched(A, L, seq, tk, nvalu=2)
        q0, v0 = list(L.q), list(V.q)

        def tail(pre):
            L.q = list(q0)
            V = Vm(A, v0)
            lds_ = [(("P", n), pld(PLr if n < 5 else PRr, order[n % 5], S_PLA if n < 5 else S_PXA)) for n in range(5 if cfg.pfs else 0, 10)] if pre else []

            npf = [0]

            def pf():
                npf[0] += 1
                n = (0 if npf[0] <= cfg.pf0 else -(-len(lds_) // (11 - npf[0])))
                if cfg.pfs:
                    n = 1 if npf[0] in ((1, 2, 7, 9, 10), (1, 2, 3, 4, 5), (2, 6, 7, 9, 10))[cfg.pf0] and lds_ else 0
                for _ in range(n):
                    V.op(*lds_.pop(0))

            def mark(k):
                if cfg.vmj == 18 + k:
                    V.op("vm", vmld)
                if cfg.dbo == 18 + k:
                    do_ring(V)
            xs = (lambda k: stamp(k)) if cfg.tsx else (lambda k: None)
            xs(0)
            mark(0)
            Y = [S0 + i for i in range(4)]
            Z = SMm
            ZR, TM = V_T + 2, V_T + 3
            pf()
            for i in range(4):
                A(f"v_cndmask_b32_dpp {v(Y[i])}, {v(S1 + i)}, {v(S0 + i)}, vcc quad_perm:[2,3,2,3] {QP}")
            A(f"v_max3_f32 {v(V_T)}, {v(Y[0])}, {v(Y[1])}, {v(Y[2])}")
            A(f"v_cndmask_b32_dpp {v(Z)}, {v(SMm + 1)}, {v(SMm)}, vcc quad_perm:[2,3,2,3] {QP}")
            A(f"v_max3_f32 {v(V_T)}, {v(V_T)}, {v(Y[3])}, {v(Z)}")
            mark(1)
            pf()
            A(f"v_max_f32_dpp {v(V_T + 1)}, {v(V_T)}, {v(V_T)} quad_perm:[2,3,0,1] {QP}")
            A(f"v_max_f32_dpp {v(V_T)}, {v(V_T)}, {v(V_T)} quad_perm:[2,3,0,1] {QP}")
            A(f"v_permlane32_swap_b32 {v(V_T)}, {v(V_T + 1)}")
            A(f"v_max_f32 {v(TM)}, {v(V_T)}, {v(V_T + 1)}")
            A(f"v_max_f32 {v(V_T)}, {v(V_T)}, {v(V_T + 1)}")
            mark(2)
            pf()
            A(f"v_permlane16_swap_b32 {v(V_T)}, {v(TM)}")
            A(f"v_max_f32 {v(V_T)}, {v(V_T)}, {v(TM)}")
            A(f"v_mul_f32 {v(V_T)}, {s(S_CS)}, {v(V_T)}")
            S5 = Y + [Z]
            for r in S5:
                A(f"v_fma_f32 {v(r)}, {v(r)}, {s(S_CS)}, -{v(V_T)}")
            pf()
            for r in S5:
                A(f"v_exp_f32 {v(r)}, {v(r)}")
            xs(7)
            mark(3)
            pf()
            A(f"v_cvt_pk_bf16_f32 {v(TT)}, {v(Y[0])}, {v(Y[1])}")
            A(f"v_cvt_pk_bf16_f32 {v(TT + 1)}, {v(Y[2])}, {v(Y[3])}")
            A(f"v_cndmask_b32 {v(PB + 2)}, {v(TT)}, {v(ZERO)}, vcc")
            A(f"v_cndmask_b32 {v(PB + 3)}, {v(TT + 1)}, {v(ZERO)}, vcc")
            A(f"v_cndmask_b32_dpp {v(PB)}, {v(TT)}, {v(ZERO)}, vcc quad_perm:[2,3,0,1] {QP}")
            A(f"v_cndmask_b32_dpp {v(PB + 1)}, {v(TT + 1)}, {v(ZERO)}, vcc quad_perm:[2,3,0,1] {QP}")
            A(f"s_mov_b64 vcc, {s(S_MB, 2)}")
            L.wait("vx")
            pf()
            A(f"v_cndmask_b32 {v(PA)}, {v(TT)}, {v(ZERO)}, vcc")
            A(f"{MF} {v(O0, 4)}, {v(VX[1], 4)}, {v(PB, 4)}, 0")
            A(f"v_cndmask_b32 {v(PA + 1)}, {v(TT + 1)}, {v(ZERO)}, vcc")
            A(f"v_cndmask_b32_dpp {v(PA + 2)}, {v(TT)}, {v(ZERO)}, vcc quad_perm:[2,3,0,1] {QP}")
            A(f"{MF} {v(O1, 4)}, {v(VX[3], 4)}, {v(PB, 4)}, 0")
            A(f"v_cndmask_b32_dpp {v(PA + 3)}, {v(TT + 1)}, {v(ZERO)}, vcc quad_perm:[2,3,0,1] {QP}")
            A(f"v_mov_b32_dpp {v(ZR)}, {v(Z)} quad_perm:[2,3,0,1] {QP}")
            A(f"v_add_f32 {v(V_T)}, {v(Y[0])}, {v(Y[1])}")
            A(f"{MF} {v(O0, 4)}, {v(VX[0], 4)}, {v(PA, 4)}, {v(O0, 4)}")
            pf()
            A(f"v_cvt_pk_bf16_f32 {v(PM)}, {v(Z)}, {v(ZR)}")
            A(f"v_cvt_pk_bf16_f32 {v(PM + 1)}, {v(ZR)}, {v(Z)}")
            A(f"{MF} {v(O1, 4)}, {v(VX[2], 4)}, {v(PA, 4)}, {v(O1, 4)}")
            A(f"v_cndmask_b32 {v(PM)}, {v(PM)}, {v(ZERO)}, vcc")
            A(f"v_cndmask_b32 {v(PM + 1)}, {v(ZERO)}, {v(PM + 1)}, vcc")
            mark(4)
            if (not pre or spec) and cfg.rdp == 0:
                A(f"ds_read_b32 {v(DBV)}, {v(V_FLG)}")
            A(f"v_add_f32 {v(V_T + 1)}, {v(Y[2])}, {v(Y[3])}")
            A(f"v_add_f32 {v(V_T)}, {v(V_T)}, {v(Z)}")
            A(f"v_add_f32 {v(V_T)}, {v(V_T)}, {v(V_T + 1)}")
            bad, ok = A.newlabel("vb"), A.newlabel("vo")
            xs(1)
            V.wait("vm")
            xs(5)
            A(f"v_bitop3_b32 {v(V_T + 5)}, {v(VM)}, {v(VM + 2)}, {s(S_TAG)} bitop3:0x7e")
            A(f"v_add_f32_dpp {v(V_T + 1)}, {v(V_T)}, {v(V_T)} quad_perm:[2,3,0,1] {QP}")
            A(f"v_and_b32 {v(V_T + 5)}, 1, {v(V_T + 5)}")
            A(f"v_add_f32_dpp {v(V_T)}, {v(V_T)}, {v(V_T)} quad_perm:[2,3,0,1] {QP}")
            A(f"v_cmp_ne_u32 vcc, 0, {v(V_T + 5)}")
            pf()
            A.nf(f"s_cbranch_vccnz {bad}")
            A.label_nf(ok)

            def vslow():
                A.label(bad)
                spin_fail(A)
                if cfg.timing == 5:
                    A("s_add_u32 s94, s94, 1")
                A(vmld)
                A("s_waitcnt vmcnt(0)")
                A(f"v_bitop3_b32 {v(V_T + 5)}, {v(VM)}, {v(VM + 2)}, {s(S_TAG)} bitop3:0x7e")
                A(f"v_and_b32 {v(V_T + 5)}, 1, {v(V_T + 5)}")
                A(f"v_cmp_ne_u32 vcc, 0, {v(V_T + 5)}")
                A(f"s_cbranch_vccnz {bad}")
                A(f"s_branch {ok}")
            ool.append(vslow)
            A(f"v_mfma_f32_16x16x16_bf16 {v(O0, 4)}, {v(VM, 2)}, {v(PM, 2)}, {v(O0, 4)}")
            A(f"v_permlane32_swap_b32 {v(V_T)}, {v(V_T + 1)}")
            A(f"v_add_f32 {v(TM)}, {v(V_T)}, {v(V_T + 1)}")
            A(f"v_mfma_f32_16x16x16_bf16 {v(O1, 4)}, {v(VM + 2, 2)}, {v(PM, 2)}, {v(O1, 4)}")
            A(f"v_add_f32 {v(V_T)}, {v(V_T)}, {v(V_T + 1)}")
            pf()
            if (not pre or spec) and cfg.rdp == 1:
                A(f"ds_read_b32 {v(DBV)}, {v(V_FLG)}")
            A(f"v_permlane16_swap_b32 {v(V_T)}, {v(TM)}")
            A(f"v_add_f32 {v(V_T)}, {v(V_T)}, {v(TM)}")
            A(f"v_rcp_f32 {v(V_T)}, {v(V_T)}")
            pf()
            for o_ in (O0, O1):
                for i in range(4):
                    A(f"v_mul_f32 {v(o_ + i)}, {v(o_ + i)}, {v(V_T)}")
            for i in range(4):
                o_ = (O0, O1)[i >> 1] + 2 * (i & 1)
                A(f"v_cvt_pk_bf16_f32 {v(OP + i)}, {v(o_)}, {v(o_ + 1)}")
            A(f"v_and_or_b32 {v(OP)}, {v(OP)}, -2, {s(S_TAG)}")
            assert not lds_
            V.op("o", f"buffer_store_dwordx4 {v(OP, 4)}, {v(V_OST)}, {WS}, {s(S_OIA)} offen{LS}")
            mark(5)
            stamp(3)
            if pre:
                zero_mfma()
            if cfg.timing == 3:
                A(f"s_sub_u32 {s(S_N)}, {s(S_N)}, 1")
                stamp(4)
                stamp.flush()
                A(f"s_add_u32 {s(S_N)}, {s(S_N)}, 1")
            A(f"s_mov_b32 {s(S_TAG)}, {s(S_NTAG)}")
            A(f"v_mov_b32 {v(V_T)}, {s(S_N)}")
            if spec:
                miss = A.newlabel("ms")
                A(f"ds_write_b32 {v(V_SY)}, {v(V_T)}")
                A(f"s_cmp_lt_u32 {s(S_N)}, {127 - LAG}")
                process(PLr, PRr, lambda n: V.wait(("P", 5 + n)), miss)
                A("s_barrier")
                stamp(0)
                stamp(7)
                if cfg.timing == 5:
                    A("s_add_u32 s95, s95, 1")
                    A(f"s_cmp_lt_u32 {s(S_N)}, {127 - LAG}")
                A.nf(f"s_cbranch_scc1 {go}")
                A.nf(f"s_branch {other[1]}")
                A.label_nf(miss)
                A("s_waitcnt lgkmcnt(0)")
                A(f"v_cmp_ne_u32 vcc, {s(S_N)}, {v(DBV)}")
                A.nf(f"s_cbranch_scc1 CS_LOOP{sx}")
                A(f"s_branch {other[0]}")
            elif pre:
                if cfg.timing == 5:
                    A("s_add_u32 s95, s95, 1")
                A(f"ds_write_b32 {v(V_SY)}, {v(V_T)}")
                A("s_barrier")
                stamp(0)
                stamp(7)
                process(PLr, PRr, lambda n: V.wait(("P", 5 + n)), retry)
                A.nf(f"s_branch {go}")
            else:
                A("s_waitcnt lgkmcnt(0)")
                A(f"v_cmp_ne_u32 vcc, {s(S_N)}, {v(DBV)}")
                A(f"ds_write_b32 {v(V_SY)}, {v(V_T)}")
                if other:
                    A(f"s_cmp_eq_u32 {s(S_N)}, {LAG}")
                    A.nf(f"s_cbranch_scc1 {other}")
                A(f"s_cmp_lt_u32 {s(S_N)}, 128")
                A.nf(f"s_cbranch_scc1 CS_LOOP{sx}")
                A("s_branch CS_DONE")
        tail(spec)
        if cfg.pf == 1:
            A.label_nf(pref)
            A("s_nop 3")
            tail(True)
        for f in ool:
            f()
        return "CS_LOOP" + sx, go

    if cfg.s3:
        s_loop = s_loop3
        A("v_mov_b32 v10, 0")
        A("v_mov_b32 v11, 0")
        for i in range(24):
            A(f"v_mov_b32 {v(V_ACC + i)}, 0")
    A(f"s_cmp_lg_u32 {s(S_MODE)}, 0")
    A("s_cbranch_scc1 CS_LOOP_S")
    if cfg.s3 and cfg.pf == 2 and LAG < 63:
        ent = s_loop("_F", "", other="CS_LOOP_D")
        s_loop("_D", "", spec=True, other=ent)
    else:
        s_loop("_F", "")
    s_loop("_S", " sc1")

    A.label("CH_START")
    next_item(A, S_NL, S_NT)
    next_item(A, S_L2, S_T2)
    A(f"s_mov_b32 {s(S_KLDS)}, {L_KV}")
    kv_src(A, S_L, S_T)
    flag_row_of(A, S_FLG1, S_L, S_T)
    flag_spin(S_FLG1)
    for e in kv_dma():
        for x in e:
            A(x)
    A(f"s_mov_b32 {s(S_KLDS)}, {L_KV + 24576}")
    kv_src(A, S_NL, S_NT)
    flag_row_of(A, S_FLG1, S_NL, S_NT)
    flag_row_of(A, S_FLG2, S_L2, S_T2)
    A(f"s_mov_b32 {s(S_DEF)}, 1")
    A(f"v_min_u32 {v(V_SY3)}, 2, {v(V_LANE)}")
    A(f"v_lshlrev_b32 {v(V_SY3)}, 2, {v(V_SY3)}")
    A(f"v_add_u32 {v(V_SY3)}, {L_SY}, {v(V_SY3)}")
    A(f"v_mov_b32 {v(V_RDY)}, {L_SY + 12}")
    A(f"s_mov_b32 {s(S_EARLY)}, 0")
    stamp.init()
    L = Lds(A)
    ool = []
    if cfg.s3 == 2:
        for i in range(24):
            A(f"v_mov_b32 {v(V_ACC + i)}, 0")
    front(L, ool, "CH_LOOP", poller="me", zero=cfg.s3 != 2)
    kstore = [f"buffer_store_dwordx4 {v(V_KEEP + 4 * i, 4)}, {v(V_KST)}, {WS}, {s(S_KP)} offen offset:{i * 1024} sc1" for i in range(3)]
    f1, f2 = pend_window(kstore)
    dm = kv_dma()[12 if cfg.dsh else 0:] if not cfg.nodma else []
    if cfg.dsh == 2 and dm:
        dm = [(dm[i - i % 4][:-1] if i % 4 == cfg.dv else []) + dm[i][-1:] for i in range(12) if i % 4 >= cfg.dv]
    flat = lambda l_: [x for e in l_ for x in (["\n".join(e[:-1])] if len(e) > 1 else []) + [e[-1]]]
    epi = qk_epi(L)
    fl = f"buffer_load_dword {v(V_FV)}, {v(V_FLG)}, {WS}, {s(S_FLG2)} offen sc1"
    if cfg.s3 != 1:
        tfe = Task(0, cap(lambda c: fe_scalars(c, S_NL, S_NT, S_NTAG, S_NT1)) if cfg.s3 else [])
        gemm(L, [Task(cfg.dma0, ([(24, f1), (40, f2)] if not cfg.nb else pend_items(kstore)) + [fl]), Task(cfg.dma1, flat(dm[:cfg.ngem])), tfe] + epi[1:], qk_tail, hi=epi[:1])
        L.wait("xw")
        A("s_barrier")
        stamp(2)
        if cfg.s3:
            A(f"buffer_load_dword {v(V_T + 4)}, {v(V_DB)}, {WS}, {s(S_DPA)} offen sc1")
    else:
        seq, rd, items = gemm3(L, [60, 64, 68, 88, 92, 96, 48, 52], 12)
        p1 = G3I[9, 5]
        e0, e2, e1 = Task(p1 - 1, items(0)), Task(p1 + 3, items(2)), Task(60, items(1))
        tfe = Task(0, cap(lambda c: fe_scalars(c, S_NL, S_NT, S_NTAG, S_NT1)))
        tsm = Task(cfg.ksd, [f"buffer_load_dword {v(V_T + 4)}, {v(V_DB)}, {WS}, {s(S_DPA)} offen sc1"])
        tsm.after = tfe
        sched(A, L, seq, [e0, e2] + rd + [tsm, Task(cfg.dma0, [(24, f1), (40, f2), fl]), Task(cfg.dma1, flat(dm[:cfg.ngem])), tfe, e1],
              pre={cfg.bar1: bar_after(L, "mw", 5), min(p1 + cfg.b2a, 59): bar_after(L, ("xw", 2), None, [e0, e2])},
              lim=lambda k: (16, 2) if p1 - 1 <= k < p1 + 7 else (cfg.hb, 1))
        stamp(6)
        A(f"s_add_u32 {s(T)}, {s(S_N)}, 1")
        A(f"v_mov_b32 {v(V_T + 2)}, {s(T)}")
        bar_after(L, ("xw", 1), 2)()
        lab = A.newlabel("ne")
        A(f"s_mov_b32 {s(S_EARLY)}, 0")
        A("s_waitcnt vmcnt(0)")
        A(f"v_cmp_gt_u32 vcc, {s(S_NT1)}, {v(V_T + 4)}")
        A(f"s_cbranch_vccnz {lab}")
        A(f"ds_write_b32 {v(V_RDY)}, {v(V_T + 2)}")
        A(f"s_mov_b32 {s(S_EARLY)}, 1")
        A.label(lab)
    if cfg.w3:
        slowp, back = A.newlabel("h1"), A.newlabel("h2")
        cur_global(A)
        A(f"s_cmp_ge_u32 {s(S_NT)}, 63")
        A(f"s_cselect_b32 {s(S_DEF)}, 0, {s(S_DEF)}")
        A(f"s_cmp_eq_u32 {s(S_NL)}, {s(S_L)}")
        A(f"s_cselect_b32 {s(T)}, 1, {s(S_DEF)}")
        A(f"s_cmp_eq_u32 {s(T)}, 0")
        A(f"s_cbranch_scc0 {slowp}")
        A.label(back)
        stamp(4)
        stamp.flush()
        advance()
        A(f"s_mov_b32 {s(S_NL)}, {s(S_L2)}")
        A(f"s_mov_b32 {s(S_NT)}, {s(S_T2)}")
        A(f"s_mov_b32 {s(S_FLG1)}, {s(S_FLG2)}")
        next_item(A, S_L2, S_T2)
        flag_row_of(A, S_FLG2, S_L2, S_T2)
        kv_src(A, S_NL, S_NT)
        A(f"s_xor_b32 {s(S_KLDS)}, {s(S_KLDS)}, {L_KV ^ (L_KV + 24576)}")
        for i in range(24):
            A(f"v_mov_b32 {v(V_ACC + i)}, 0")
        A("s_waitcnt vmcnt(0)")
        if cfg.ef:
            f1()
        A(f"v_cmp_eq_u32 vcc, 0, {v(V_FV)}")
        A(f"s_cmp_lg_u64 vcc, 0")
        A(f"s_cselect_b32 {s(S_DEF)}, 1, 0")
        A(f"v_cmp_gt_u32 vcc, {s(S_T1)}, {v(V_T + 4)}")
        A("s_cbranch_vccz CH_RUNG")
        A(f"s_cmp_lt_u32 {s(S_N)}, 128")
        A(f"s_cbranch_scc1 CH_LOOP")
        A("s_branch CS_DONE")
        A.label(slowp)
        kgrab()
        sp = A.newlabel("sp")
        A(f"s_cmp_eq_u32 {s(S_N)}, 127")
        A(f"s_cbranch_scc1 {sp}x")
        A.label(sp)
        A(f"ds_read_b32 {v(V_T)}, {v(V_SY3)}")
        A("s_waitcnt lgkmcnt(0)")
        A(f"v_cmp_ge_u32 vcc, {s(S_N)}, {v(V_T)}")
        poll_tail(A, sp, sleep=1)
        A.label(sp + "x")
        A("s_waitcnt vmcnt(0)")
        f1()
        f2()
        A("s_waitcnt vmcnt(0)")
        f1()
        A(f"s_cmp_eq_u32 {s(S_DEF)}, 0")
        A(f"s_cbranch_scc1 {back}")
        flag_spin(S_FLG1)
        for e in kv_dma():
            for x in e:
                A(x)
        A(f"s_branch {back}")
    else:
        for e in dm[cfg.ngem:]:
            for x in e:
                A(x)
        for j in range(6):
            for ih in range(2):
                A(f"ds_read_b64_tr_b16 {v(V_ACC + 4 * j + 2 * ih, 2)}, {v(V_XR)} offset:{j * 1024 + ih * 512}")
        cur_global(A)
        if not cfg.s3:
            fe_scalars(A, S_NL, S_NT, S_NTAG, S_NT1)
        A(f"s_mov_b64 vcc, {s(S_MB, 2)}")
        A("s_waitcnt lgkmcnt(0)")
        for jp in range(3):
            for i in range(4):
                A(f"v_cndmask_b32_dpp {v(V_KEEP + 4 * jp + i)}, {v(V_ACC + 8 * jp + 4 + i)}, {v(V_ACC + 8 * jp + i)}, vcc quad_perm:[0,1,0,1] {QP}")
        nxt, nodef, sp = A.newlabel("nx"), A.newlabel("nd"), A.newlabel("sp")
        A(f"s_cmp_ge_u32 {s(S_NT)}, 63")
        A(f"s_cselect_b32 {s(S_DEF)}, 0, {s(S_DEF)}")
        A(f"s_cmp_eq_u32 {s(S_NL)}, {s(S_L)}")
        A(f"s_cselect_b32 {s(T)}, 1, {s(S_DEF)}")
        A(f"s_cmp_eq_u32 {s(T)}, 0")
        A(f"s_cbranch_scc1 {nodef}")
        A(f"s_cmp_eq_u32 {s(S_N)}, 127")
        A(f"s_cbranch_scc1 {sp}x")
        A.label(sp)
        A(f"ds_read_b32 {v(V_T)}, {v(V_SY3)}")
        A("s_waitcnt lgkmcnt(0)")
        A(f"v_cmp_ge_u32 vcc, {s(S_N)}, {v(V_T)}")
        poll_tail(A, sp, sleep=1)
        A.label(sp + "x")
        A("s_waitcnt vmcnt(0)")
        f1()
        f2()
        A("s_waitcnt vmcnt(0)")
        f1()
        A.label(nxt)
        A(f"s_cmp_eq_u32 {s(S_DEF)}, 0")
        A(f"s_cbranch_scc1 {nodef}")
        flag_spin(S_FLG1)
        for e in kv_dma():
            for x in e:
                A(x)
        A.label(nodef)
        stamp(4)
        stamp.flush()
        advance()
        A(f"s_mov_b32 {s(S_NL)}, {s(S_L2)}")
        A(f"s_mov_b32 {s(S_NT)}, {s(S_T2)}")
        A(f"s_mov_b32 {s(S_FLG1)}, {s(S_FLG2)}")
        next_item(A, S_L2, S_T2)
        flag_row_of(A, S_FLG2, S_L2, S_T2)
        kv_src(A, S_NL, S_NT)
        A(f"s_xor_b32 {s(S_KLDS)}, {s(S_KLDS)}, {L_KV ^ (L_KV + 24576)}")
        if cfg.s3 == 2:
            for i in range(24):
                A(f"v_mov_b32 {v(V_ACC + i)}, 0")
        A("s_waitcnt vmcnt(0)")
        A(f"v_cmp_eq_u32 vcc, 0, {v(V_FV)}")
        A(f"s_cmp_lg_u64 vcc, 0")
        A(f"s_cselect_b32 {s(S_DEF)}, 1, 0")
        if cfg.s3 == 2:
            A(f"v_cmp_gt_u32 vcc, {s(S_T1)}, {v(V_T + 4)}")
            A("s_cbranch_vccz CH_RUNG")
        A(f"s_cmp_lt_u32 {s(S_N)}, 128")
        A(f"s_cbranch_scc1 CH_LOOP")
        A("s_branch CS_DONE")
    for f in ool:
        f()
    A.label("CS_DONE")
    A(f"v_lshrrev_b32 v0, 4, {v(V_L16)}")
    if cfg.timing == 5:
        retry_dump(A, 0)
    timing_end(A, cfg, stamp, 0)

    A.label("CV_START")
    if cfg.timing == 5:
        for k in range(5):
            A(f"s_mov_b32 {s(92 + k)}, 0")
    stamp.init()

    def v_loop(sx, LS, u):
        L = Lds(A)
        ool = []
        front(L, ool, "CV_LOOP" + sx, poller=None if u else "w0")
        PK = V_KEEP
        x4, x2 = (PK + 2, PK) if u else (PK, PK + 4)
        xst = [f"buffer_store_dwordx4 {v(x4, 4)}, {v(V_VS0)}, {WS}, {s(S_KP)} offen sc1",
               f"buffer_store_dwordx2 {v(x2, 2)}, {v(V_VS1)}, {WS}, {s(S_KP)} offen sc1"]
        f1, f2 = pend_window(xst)
        tail = []
        for p in range(3):
            tail += [(8, 2 * p), (8, 2 * p + 1), (9, 2 * p), (9, 2 * p + 1)]

        def items(p):
            q, k = V_ACC + 8 * p, V_ACC + 8 * p + 4
            r = [f"v_add_f32 {v(q)}, {v(q)}, {v(q + 1)}", f"v_add_f32 {v(q + 2)}, {v(q + 2)}, {v(q + 3)}",
                 f"v_add_f32 {v(k)}, {v(k)}, {v(k + 1)}", f"v_add_f32 {v(k + 2)}, {v(k + 2)}, {v(k + 3)}",
                 f"v_cvt_pk_bf16_f32 {v(PK + 2 * p)}, {v(q)}, {v(q + 2)}", f"v_cvt_pk_bf16_f32 {v(PK + 2 * p + 1)}, {v(k)}, {v(k + 2)}",
                 f"v_and_or_b32 {v(PK + 2 * p)}, {v(PK + 2 * p)}, -2, {s(S_TAG)}"]
            if p == (2, 0)[u]:
                r.append(f"buffer_store_dwordx2 {v(x2, 2)}, {v(V_VS1)}, {WS}, {s(S_VMA)} offen{LS}")
            if p == (1, 2)[u]:
                r.append(f"buffer_store_dwordx4 {v(x4, 4)}, {v(V_VS0)}, {WS}, {s(S_VMA)} offen{LS}")
            return r
        gemm(L, [Task(cfg.dmav, [(24, f1), (32, f2)] if not cfg.nb else pend_items(xst)), Task(0, cap(lambda c: cur_local(c, True))), Task(60, items(1)), Task(60, items(2))], tail, hi=[Task(53, items(0))])
        stamp(2)
        if not cfg.pb:
            A("s_barrier")
        cur_global(A)
        next_item(A, S_NL, S_NT)
        fe_scalars(A, S_NL, S_NT, S_NTAG, S_NT1)
        nxt = A.newlabel("nx")
        if cfg.ef:
            A("s_waitcnt vmcnt(0)")
            f1()
        A(f"s_cmp_lg_u32 {s(S_NL)}, {s(S_L)}")
        A(f"s_cbranch_scc1 {nxt}")
        A("s_waitcnt vmcnt(0)")
        f1()
        f2()
        A("s_waitcnt vmcnt(0)")
        f1()
        A.label(nxt)
        stamp.flush()
        advance()
        A(f"s_cmp_lt_u32 {s(S_N)}, 128")
        A(f"s_cbranch_scc1 CV_LOOP{sx}")
        A("s_branch CV_DONE")
        for f in ool:
            f()

    A(f"s_and_b32 {s(T)}, {s(S_WAVE)}, 1")
    A(f"s_lshl1_add_u32 {s(T)}, {s(S_MODE)}, {s(T)}")
    for k, sx in ((1, "_F1"), (2, "_S0"), (3, "_S1")):
        A(f"s_cmp_eq_u32 {s(T)}, {k}")
        A(f"s_cbranch_scc1 CV_LOOP{sx}")
    v_loop("_F0", "", 0)
    v_loop("_F1", "", 1)
    v_loop("_S0", " sc1", 0)
    v_loop("_S1", " sc1", 1)
    A.label("CV_DONE")
    if cfg.timing == 5:
        retry_dump(A, 32)
    timing_end(A, cfg, stamp, 32)


def gen_cw(A, cfg, nwg):
    LAG = cfg.LAG
    V_DB, V_BW, V_RW0, V_RR0, V_RW, V_RR, V_PS = 3, 4, 5, 6, 7, 8, 9
    V_STAMP = 19
    V_O = 32
    V_ACC = 80
    V_B = 100
    L_RB = 98304
    RBS = 4 * 8 * 352
    S_PLH, S_PXH, S_DPH, S_M40 = S_HOFF, S_PXR, S_XGH, S_MA

    def wreg(f, p):
        idx = f * 4 + p
        return ("a", idx * 8) if idx < 32 else ("v", 128 + (idx - 32) * 8)

    def wtxt(f, p):
        if p == 4:
            return v(V_B + 8 * (f & 1), 8)
        k, r = wreg(f, p)
        return a(r, 8) if k == "a" else v(r, 8)

    A.label("ROLE_CW")
    common_setup(A, cfg, 3)
    g_, c_ = V_T + 2, V_T + 3
    A(f"v_lshrrev_b32 {v(g_)}, 4, {v(V_LANE)}")
    A(f"v_and_b32 {v(c_)}, 15, {v(V_LANE)}")
    A(f"v_min_u32 {v(V_DB)}, 11, {v(c_ if cfg.pw else V_LANE)}")
    A(f"v_lshlrev_b32 {v(V_DB)}, 2, {v(V_DB)}")
    if cfg.pw:
        A(f"v_lshl_add_u32 {v(V_DB)}, {v(g_)}, 7, {v(V_DB)}")
    A(f"s_mul_i32 {s(T)}, {s(S_WAVE)}, 24576")
    A(f"v_add_u32 {v(V_BW)}, {s(T)}, {v(V_L16)}")
    A(f"v_mul_u32_u24 {v(V_RW0)}, 704, {v(g_)}")
    if cfg.h16:
        A(f"v_and_b32 {v(V_T)}, 3, {v(c_)}")
        A(f"v_lshl_add_u32 {v(V_RW0)}, {v(V_T)}, 2, {v(V_RW0)}")
        A(f"v_bfe_u32 {v(V_T)}, {v(c_)}, 2, 1")
        A(f"v_lshl_add_u32 {v(V_RW0)}, {v(V_T)}, 5, {v(V_RW0)}")
        A(f"v_bfe_u32 {v(V_T)}, {v(c_)}, 3, 1")
        A(f"v_lshl_add_u32 {v(V_RW0)}, {v(V_T)}, 4, {v(V_RW0)}")
    else:
        A(f"v_lshl_add_u32 {v(V_RW0)}, {v(c_)}, 2, {v(V_RW0)}")
    A(f"s_mul_i32 {s(T)}, {s(S_WAVE)}, 2816")
    A(f"s_add_u32 {s(T)}, {s(T)}, {L_RB}")
    A(f"v_add_u32 {v(V_RW0)}, {s(T)}, {v(V_RW0)}")
    V_TM = 10
    if cfg.h16:
        A(f"s_mul_i32 {s(T)}, {s(S_WAVE)}, 24")
        A(f"s_min_u32 {s(T)}, {s(T)}, 64")
        A(f"s_cmp_lt_u32 {s(S_WAVE)}, 2")
        A(f"s_cselect_b32 {s(T + 1)}, 23, 15")
        A(f"s_mov_b32 {s(S_M40)}, 0xffff")
        A(f"s_cselect_b32 {s(S_M40)}, 0xffffff, {s(S_M40)}")
        A(f"s_mov_b32 {s(S_M40 + 1)}, 0")
        A(f"v_and_b32 {v(V_T)}, 31, {v(V_LANE)}")
        A(f"v_min_u32 {v(V_T)}, {s(T + 1)}, {v(V_T)}")
        A(f"v_add_u32 {v(V_T)}, {s(T)}, {v(V_T)}")
        A(f"v_lshrrev_b32 {v(V_T + 1)}, 5, {v(V_LANE)}")
        A(f"v_lshl_add_u32 {v(V_T)}, {v(V_T)}, 1, {v(V_T + 1)}")
        A(f"v_bfe_u32 {v(V_T + 1)}, {v(V_T)}, 2, 3")
        A(f"v_mul_u32_u24 {v(V_RR0)}, 352, {v(V_T + 1)}")
        A(f"v_mul_u32_u24 {v(V_T + 5)}, 1280, {v(V_T + 1)}")
        A(f"v_lshrrev_b32 {v(V_T + 1)}, 5, {v(V_T)}")
        A(f"v_lshl_add_u32 {v(V_RR0)}, {v(V_T + 1)}, 6, {v(V_RR0)}")
        A(f"v_lshl_add_u32 {v(V_T + 5)}, {v(V_T + 1)}, 5, {v(V_T + 5)}")
        A(f"v_and_b32 {v(V_T + 1)}, 3, {v(V_T)}")
        A(f"v_lshl_add_u32 {v(V_T + 5)}, {v(V_T + 1)}, 3, {v(V_T + 5)}")
        A(f"v_and_b32 {v(V_T + 1)}, 1, {v(V_T)}")
        A(f"v_lshl_add_u32 {v(V_RR0)}, {v(V_T + 1)}, 5, {v(V_RR0)}")
        A(f"v_bfe_u32 {v(V_T + 1)}, {v(V_T)}, 1, 1")
        A(f"v_lshl_add_u32 {v(V_RR0)}, {v(V_T + 1)}, 4, {v(V_RR0)}")
        A(f"v_add_u32 {v(V_RR0)}, {L_RB}, {v(V_RR0)}")
        A(f"s_mul_i32 {s(T)}, {s(S_J)}, 1280")
        A(f"v_lshlrev_b32 {v(V_PS)}, 3, {v(V_T)}")
        A(f"v_add_u32 {v(V_PS)}, {s(T)}, {v(V_PS)}")
        A(f"v_lshrrev_b32 {v(V_T + 1)}, 13, {v(V_PS)}")
        A(f"v_lshl_add_u32 {v(V_PS)}, {v(V_T + 1)}, 13, {v(V_PS)}")
        A(f"v_xor_b32 {v(V_TM)}, 1, {v(V_T)}")
        A(f"v_or_b32 {v(V_TM)}, {v(V_TM)}, {v(V_T + 1)}")
        A(f"v_and_b32 {v(V_TM)}, 1, {v(V_TM)}")
    else:
        A(f"v_min_u32 {v(V_T)}, 39, {v(V_LANE)}")
        A(f"s_mul_i32 {s(T)}, {s(S_WAVE)}, 40")
        A(f"v_add_u32 {v(V_T)}, {s(T)}, {v(V_T)}")
        A(f"v_lshlrev_b32 {v(V_PS)}, 4, {v(V_T)}")
        A(f"v_bfe_u32 {v(V_T + 1)}, {v(V_T)}, 1, 3")
        A(f"v_mul_u32_u24 {v(V_RR0)}, 352, {v(V_T + 1)}")
        A(f"v_mul_u32_u24 {v(V_T + 5)}, 1280, {v(V_T + 1)}")
        A(f"v_lshrrev_b32 {v(V_T + 1)}, 4, {v(V_T)}")
        A(f"v_lshl_add_u32 {v(V_RR0)}, {v(V_T + 1)}, 5, {v(V_RR0)}")
        A(f"v_lshl_add_u32 {v(V_T + 5)}, {v(V_T + 1)}, 4, {v(V_T + 5)}")
        A(f"v_and_b32 {v(V_T + 1)}, 1, {v(V_T)}")
        A(f"v_lshl_add_u32 {v(V_RR0)}, {v(V_T + 1)}, 4, {v(V_RR0)}")
        A(f"v_lshl_add_u32 {v(V_T + 5)}, {v(V_T + 1)}, 3, {v(V_T + 5)}")
        A(f"v_add_u32 {v(V_RR0)}, {L_RB}, {v(V_RR0)}")
        A(f"s_mov_b32 {s(S_M40)}, -1")
        A(f"s_mov_b32 {s(S_M40 + 1)}, 0xff")
    make_srd(A, SRD_W, P_MEM0, 10240)
    A(f"s_mul_i32 {s(T)}, {s(S_J)}, 160")
    A(f"buffer_load_dwordx2 {v(V_O, 2)}, {v(V_T + 5)}, {s(SRD_W, 4)}, {s(T)} offen")
    A(f"s_mul_i32 {s(S_PLH)}, {s(S_J)}, {0 if cfg.h16 else 2560}")
    A(f"s_add_u32 {s(S_PLH)}, {s(S_PLH)}, {s(S_XB)}")
    A(f"s_lshl_b32 {s(S_PXH)}, {s(S_X)}, 19")
    A(f"s_lshr_b32 {s(T)}, {s(S_J)}, 1")
    if not cfg.h16:
        A(f"s_lshl_b32 {s(T + 1)}, {s(T)}, 14")
        A(f"s_add_u32 {s(S_PXH)}, {s(S_PXH)}, {s(T + 1)}")
    A(f"s_and_b32 {s(T + 1)}, {s(S_J)}, 1")
    A(f"s_mul_i32 {s(T + 2)}, {s(T + 1)}, {0 if cfg.h16 else 2560}")
    A(f"s_add_u32 {s(S_PXH)}, {s(S_PXH)}, {s(T + 2)}")
    A(f"s_add_u32 {s(S_PXH)}, {s(S_PXH)}, {XP}")
    A(f"s_lshl_b32 {s(S_DPH)}, {s(T)}, 7")
    A(f"s_lshl_b32 {s(T + 1)}, {s(T + 1)}, 2")
    A(f"s_add_u32 {s(T + 1)}, {s(T + 1)}, {s(S_WAVE)}")
    A(f"s_lshl_b32 {s(T + 1)}, {s(T + 1)}, 2")
    A(f"s_add_u32 {s(S_DPH)}, {s(S_DPH)}, {s(T + 1)}")
    A(f"s_add_u32 {s(S_DPH)}, {s(S_DPH)}, {s(S_XB)}")
    A(f"s_add_u32 {s(S_DPH)}, {s(S_DPH)}, {DP_OFF}")
    A(f"s_mul_i32 {s(S_OIH)}, {s(S_WAVE)}, 12288")
    A(f"s_add_u32 {s(S_OIH)}, {s(S_OIH)}, {s(S_XB)}")
    A(f"s_add_u32 {s(S_OIH)}, {s(S_OIH)}, {OI_OFF}")
    A(f"s_lshl_b32 {s(S_DOH)}, {s(S_WAVE)}, 7" if not cfg.pw else f"s_mov_b32 {s(S_DOH)}, 0")
    A(f"s_add_u32 {s(S_DOH)}, {s(S_DOH)}, {s(S_XB)}")
    A(f"s_add_u32 {s(S_DOH)}, {s(S_DOH)}, {DO_OFF}")
    A(f"s_cmp_eq_u32 {s(S_X)}, 0")
    A(f"s_cselect_b32 {s(T + 3)}, 0xffff0000, 0")
    A("s_waitcnt vmcnt(0)")
    QPX = "quad_perm:[1,1,3,3] row_mask:0xf bank_mask:0xf"
    if cfg.h16:
        A(f"s_cselect_b64 vcc, -1, 0")
        A(f"v_bfi_b32 {v(V_O + 4)}, {v(V_TM)}, 0, {v(V_O)}")
        A(f"v_lshlrev_b32 {v(V_O + 2)}, 16, {v(V_O)}")
        A(f"v_lshlrev_b32 {v(V_O + 3)}, 16, {v(V_O + 4)}")
        A(f"v_sub_f32 {v(V_O + 2)}, {v(V_O + 2)}, {v(V_O + 3)}")
        A(f"v_lshrrev_b32 {v(V_O + 2)}, 16, {v(V_O + 2)}")
        A(f"v_and_b32 {v(V_O + 2)}, -2, {v(V_O + 2)}")
        A(f"v_cndmask_b32 {v(V_O + 4)}, {v(V_O + 2)}, {v(V_O + 4)}, vcc")
        A(f"v_cndmask_b32 {v(V_O + 5)}, 0, {v(V_O + 1)}, vcc")
        A(f"v_permlane32_swap_b32 {v(V_O + 4)}, {v(V_O + 6)}")
        A(f"v_permlane32_swap_b32 {v(V_O + 5)}, {v(V_O + 7)}")
    else:
        A(f"v_lshlrev_b32 {v(V_O + 4)}, 16, {v(V_O)}")
        A(f"v_and_b32 {v(V_O + 4)}, {s(T + 3)}, {v(V_O + 4)}")
        A(f"v_and_b32 {v(V_O + 5)}, {s(T + 3)}, {v(V_O)}")
        A(f"v_lshlrev_b32 {v(V_O + 6)}, 16, {v(V_O + 1)}")
        A(f"v_and_b32 {v(V_O + 6)}, {s(T + 3)}, {v(V_O + 6)}")
        A(f"v_and_b32 {v(V_O + 7)}, {s(T + 3)}, {v(V_O + 1)}")
    for i in range(4):
        A(f"v_mov_b32 {v(V_O + 8 + i)}, -1")
    A(f"v_mov_b32 {v(V_O + 12)}, 1")
    A(f"s_mov_b64 exec, {s(S_M40, 2)}")
    lst = []
    for k in range(8):
        d = V_O + 4 if k % 4 == 0 else V_O + 8
        lst.append(f"s_add_u32 {s(T)}, {s(S_PLH)}, {PL_OFF + k * 20480}")
        lst.append(f"buffer_store_dwordx4 {v(d, 4)}, {v(V_PS)}, {WS}, {s(T)} offen")
        for hf in range(2 if cfg.near else 1):
            A(f"s_add_u32 {s(T)}, {s(S_PXH)}, {k * 65536 + hf * 8192}")
            A(f"buffer_store_dwordx4 {v(d, 4)}, {v(V_PS)}, {WS}, {s(T)} offen sc1")
    lst.append("s_mov_b64 exec, 1")
    lst.append(f"buffer_store_dword {v(V_O + 12)}, {v(V_L16)}, {WS}, {s(S_DPH)} offen")
    lst.append(f"buffer_store_dword {v(V_O + 12)}, {v(V_L16)}, {WS}, {s(S_DPH)} offen offset:512")
    lstore(A, lst)
    A("s_mov_b64 exec, -1")
    init_barrier_arrive(A, V_T)

    V_DA, V_TR, V_PARK = 20, 30, 32
    S_ORG, S_LW = S_KSRC, S_KLDS
    make_srd(A, SRD_W, P_WO, 6144 * 1280)
    A(f"s_lshl_b32 {s(T)}, {s(S_X)}, 2")
    A(f"s_add_u32 {s(T)}, {s(T)}, {s(S_WAVE)}")
    A(f"s_mul_i32 {s(S_ORG)}, {s(T)}, {768 * 1280}")
    A(f"s_mul_i32 {s(T)}, {s(S_J)}, 160")
    A(f"s_add_u32 {s(S_ORG)}, {s(S_ORG)}, {s(T)}")
    A(f"s_mul_i32 {s(S_LW)}, {s(S_WAVE)}, 40960")
    for i in range(10):
        A(f"v_add_u32 {v(V_T)}, {64 * i}, {v(V_LANE)}")
        A(f"v_mul_u32_u24 {v(V_T + 1)}, 6554, {v(V_T)}")
        A(f"v_lshrrev_b32 {v(V_T + 1)}, 16, {v(V_T + 1)}")
        A(f"v_mul_u32_u24 {v(V_T + 4)}, 10, {v(V_T + 1)}")
        A(f"v_sub_u32 {v(V_T)}, {v(V_T)}, {v(V_T + 4)}")
        A(f"v_mul_u32_u24 {v(V_DA + i)}, 1280, {v(V_T + 1)}")
        A(f"v_lshl_add_u32 {v(V_DA + i)}, {v(V_T)}, 4, {v(V_DA + i)}")
    A(f"v_lshrrev_b32 {v(g_)}, 4, {v(V_LANE)}")
    A(f"v_and_b32 {v(V_T)}, 1, {v(g_)}")
    A(f"v_lshlrev_b32 {v(V_T)}, 5, {v(V_T)}")
    A(f"v_lshrrev_b32 {v(V_T + 1)}, 1, {v(g_)}")
    A(f"v_lshl_add_u32 {v(V_T)}, {v(V_T + 1)}, 2, {v(V_T)}")
    A(f"v_bfe_u32 {v(V_T + 1)}, {v(V_LANE)}, 2, 1")
    A(f"v_add_u32 {v(V_T)}, {v(V_T)}, {v(V_T + 1)}")
    A(f"v_bfe_u32 {v(V_T + 1)}, {v(V_LANE)}, 3, 1")
    A(f"v_lshl_add_u32 {v(V_T)}, {v(V_T + 1)}, 4, {v(V_T)}")
    A(f"v_mul_u32_u24 {v(V_TR)}, 160, {v(V_T)}")
    A(f"v_and_b32 {v(V_T + 1)}, 3, {v(V_LANE)}")
    A(f"v_lshl_add_u32 {v(V_TR)}, {v(V_T + 1)}, 3, {v(V_TR)}")
    A(f"v_add_u32 {v(V_TR)}, {s(S_LW)}, {v(V_TR)}")

    def w_dma(f):
        A(f"s_add_u32 {s(T + 1)}, {s(S_ORG)}, {f * 64 * 1280}")
        for i in range(10):
            A(f"s_add_u32 m0, {s(S_LW)}, {(f % 4) * 10240 + i * 1024}")
            A(f"buffer_load_dwordx4 {v(V_DA + i)}, {s(SRD_W, 4)}, {s(T + 1)} offen lds")
    for f in range(4):
        w_dma(f)
    for f in range(12):
        A(f"s_waitcnt vmcnt({10 * min(3, 11 - f)})")
        n = 0
        for p in range(5):
            kind, r = wreg(f, p) if p < 4 else ("v", V_PARK + 8 * f)
            fn = a if kind == "a" else v
            for RH in range(2):
                for hh in range(2):
                    A(f"ds_read_b64_tr_b16 {fn(r + 4 * RH + 2 * hh, 2)}, {v(V_TR)} offset:{(f % 4) * 10240 + (8 * RH + 2 * hh) * 160 + 32 * p}")
                    n += 1
                    if n == 12:
                        A("s_waitcnt lgkmcnt(4)")
        A("s_waitcnt lgkmcnt(0)")
        if f + 4 < 12:
            w_dma(f + 4)
    A("s_barrier")
    for f in range(12):
        for hf in range(2):
            A(f"ds_write_b128 {v(V_BW)}, {v(V_PARK + 8 * f + 4 * hf, 4)} offset:{f * 2048 + hf * 1024}")
        if f % 4 == 3:
            A("s_waitcnt lgkmcnt(0)")
    A("s_barrier")
    init_barrier_wait(A, V_T, nwg, cfg)
    near_half(A, cfg, S_PXH)
    A(f"s_mov_b32 {s(S_N)}, 0")
    A(f"s_mov_b32 {s(S_DEF)}, 0")
    stamp = mk_stamp(A, cfg, V_STAMP)
    stamp.init()

    def w_loop(sx, LS):
        L = Lds(A)
        nxt = "CW_NEXT" + sx
        A.label("CW_LOOP" + sx)
        item_of(A, S_N, S_L, S_T, LAG, 0, T)
        A(f"s_cmp_eq_u32 {s(S_T)}, 63")
        A(f"s_cbranch_scc1 {nxt}")
        A(f"s_add_u32 {s(S_T1)}, {s(S_T)}, 1")
        A(f"s_lshl_b32 {s(T + 1)}, {s(S_L)}, 9")
        A(f"s_add_u32 {s(S_DOA)}, {s(T + 1)}, {s(S_DOH)}")
        A(f"s_add_u32 {s(S_DPA)}, {s(T + 1)}, {s(S_DPH)}")
        A(f"s_lshl_b32 {s(T + 1)}, {s(S_L)}, 2")
        A(f"s_and_b32 {s(T)}, {s(S_T)}, {cfg.cr - 1}")
        A(f"s_add_u32 {s(T)}, {s(T)}, {s(T + 1)}")
        A(f"s_mul_i32 {s(S_OIA)}, {s(T)}, 49152")
        A(f"s_add_u32 {s(S_OIA)}, {s(S_OIA)}, {s(S_OIH)}")
        A(f"s_add_u32 {s(S_VMA)}, {s(S_OIA)}, 4096")
        A(f"s_add_u32 {s(S_KCUR)}, {s(S_OIA)}, 8192")
        A(f"s_bfe_u32 {s(S_TAG)}, {s(S_T)}, {0x10000 + cfg.cr.bit_length() - 1}")
        A(f"s_bfe_u32 {s(S_NTAG)}, {s(S_T1)}, {0x10000 + cfg.cr.bit_length() - 1}")
        A(f"s_and_b32 {s(T)}, {s(S_T1)}, {cfg.cr - 1}")
        A(f"s_add_u32 {s(T)}, {s(T)}, {s(T + 1)}")
        A(f"s_mul_i32 {s(S_PLA)}, {s(T)}, 20480")
        A(f"s_add_u32 {s(S_PLA)}, {s(S_PLA)}, {s(S_PLH)}")
        A(f"s_lshl_b32 {s(S_PXA)}, {s(T)}, 16")
        A(f"s_add_u32 {s(S_PXA)}, {s(S_PXA)}, {s(S_PXH)}")
        A(f"s_xor_b32 {s(S_DEF)}, {s(S_DEF)}, {RBS}")
        A(f"v_add_u32 {v(V_RW)}, {s(S_DEF)}, {v(V_RW0)}")
        A(f"v_add_u32 {v(V_RR)}, {s(S_DEF)}, {v(V_RR0)}")
        A(f"s_add_u32 {s(T)}, {s(S_T)}, 2")
        A(f"v_mov_b32 {v(V_T + 4)}, {s(T)}")
        for i in range(20):
            A(f"v_mov_b32 {v(V_ACC + i)}, 0")

        def rdB(f):
            return [(("B", f), f"ds_read_b128 {v(V_B + 8 * (f & 1) + 4 * hf, 4)}, {v(V_BW)} offset:{f * 2048 + hf * 1024}") for hf in range(2)]
        for it in rdB(0) + rdB(1):
            L.op(*it)
        if cfg.pw:
            lab = A.newlabel("np")
            A(f"s_cmp_lg_u32 {s(S_WAVE)}, 0")
            A(f"s_cbranch_scc1 {lab}")
        doorbell(A, cfg, V_DB, S_DOA, V_T)
        if cfg.pw:
            A.label_nf(lab)
            A("s_barrier")
        stamp(0)

        def ld(f):
            return f"buffer_load_dwordx4 {v(V_O + 4 * f, 4)}, {v(V_L16)}, {WS}, {s((S_OIA, S_VMA, S_KCUR)[f // 4])} offen offset:{(f % 4) * 1024} sc1"
        ring = ["s_mov_b64 exec, 1", f"buffer_store_dword {v(V_T + 4)}, {v(V_L16)}, {WS}, {s(S_DPA)} offen{LS}", "s_mov_b64 exec, -1"]
        NP = cfg.wnp
        for f in range(NP):
            A(ld(f))
            if cfg.wsp and f < NP - 1:
                A(f"s_nop {cfg.wsp - 1}")
        stamp(7)
        issued = [NP]
        G = {f: [f] for f in range(cfg.wg1)}
        G.update({f: [f, f + 1] for f in range(cfg.wg1, 12, 2)})

        upto = {}

        def chk(f, top=None):
            last = G[f][-1]

            def w():
                n = issued[0] if top is None else top
                assert n > last, (f, n)
                A(f"s_waitcnt vmcnt({n - 1 - last})")
                if len(G[f]) == 1:
                    A(f"v_and_b32 {v(V_T)}, 1, {v(V_O + 4 * f)}")
                else:
                    A(f"v_bitop3_b32 {v(V_T)}, {v(V_O + 4 * f)}, {v(V_O + 4 * f + 4)}, {s(S_TAG)} bitop3:0x7e")
            if len(G[f]) == 1:
                return [(8, w), f"v_cmp_ne_u32 vcc, {s(S_TAG)}, {v(V_T)}"]
            return [(8, w), f"v_and_b32 {v(V_T)}, 1, {v(V_T)}", f"v_cmp_ne_u32 vcc, 0, {v(V_T)}"]

        def run(items):
            for x in items:
                x[1]() if isinstance(x, tuple) else A(x)

        def ldt(f):
            def go_():
                A(ld(f))
                issued[0] = f + 1
            return (cfg.vmc, go_)
        slow = {f: A.newlabel("ws") for f in G}
        go = {f: A.newlabel("wg") for f in G}
        run(chk(0))
        sq = [(f, p) for f in range(10) for p in range(5)] + [(f, p) for p in range(5) for f in (10, 11)]
        seq, tasks, pre, cks = [], [], {}, {}
        rds = []
        for k, (f, p) in enumerate(sq):
            seq.append((f"{SM} {v(V_ACC + 4 * p, 4)}, {v(V_O + 4 * f, 4)}, {wtxt(f, p)}, {v(V_IDX)}", [("B", f)] if p == 4 else []))
            if p == 0 and f in G:
                def br(f=f):
                    if f in cks:
                        assert not cks[f].items
                    upto[f] = issued[0]
                    A.nf(f"s_cbranch_vccnz {slow[f]}")
                    A.label_nf(go[f])
                    if f in (0, 6, 10):
                        stamp({0: 3, 6: 4, 10: 5}[f])
                pre[k] = br
                if f:
                    cks[f] = Task(k - cfg.wlead - len(chk(f)), chk(f), step=1)
                    tasks.append(cks[f])
                    tasks.append(Task(k - 1, [(12, lambda: None)]))
            if p == 4 and f + 2 < 12:
                rds.append(Task(k, rdB(f + 2)))
        tasks.append(Task(0, [ldt(f) for f in range(NP, 12)], step=cfg.wst))
        tasks += rds

        def items(p):
            q = V_ACC + 4 * p
            return [f"v_add_f32 {v(q)}, {v(q)}, {v(q + 1)}", f"v_add_f32 {v(q + 2)}, {v(q + 2)}, {v(q + 3)}",
                    ("rw", f"ds_write2_b32 {v(V_RW)}, {v(q)}, {v(q + 2)} offset0:{16 * p} offset1:{16 * p + 88}")]
        if cfg.wfd < 10:
            tasks.append(Task(50 + cfg.wfd, ["\n".join(ring)]))
        for p in range(5):
            tasks.append(Task(54 + 2 * p, items(p)))
        sched(A, L, seq, tasks, pre=pre)
        if cfg.wfd == 10:
            for x in ring:
                A(x)
        A("s_waitcnt lgkmcnt(0)")
        A("s_barrier")
        R = V_O
        for w in range(4):
            A(f"ds_read_b128 {v(R + 4 * w, 4)}, {v(V_RR)} offset:{w * 2816}")
        stamp(1)
        if cfg.wfd == 11:
            for x in ring[:2]:
                A(x)
        A(f"s_mov_b64 exec, {s(S_M40, 2) if not cfg.h16 else -1}")
        A("s_waitcnt lgkmcnt(2)")
        A(f"v_pk_add_f32 {v(R, 2)}, {v(R, 2)}, {v(R + 4, 2)}")
        A(f"v_pk_add_f32 {v(R + 2, 2)}, {v(R + 2, 2)}, {v(R + 6, 2)}")
        A("s_waitcnt lgkmcnt(0)")
        A(f"v_pk_add_f32 {v(R + 8, 2)}, {v(R + 8, 2)}, {v(R + 12, 2)}")
        A(f"v_pk_add_f32 {v(R + 10, 2)}, {v(R + 10, 2)}, {v(R + 14, 2)}")
        A(f"v_pk_add_f32 {v(R, 2)}, {v(R, 2)}, {v(R + 8, 2)}")
        A(f"v_pk_add_f32 {v(R + 2, 2)}, {v(R + 2, 2)}, {v(R + 10, 2)}")
        if cfg.h16:
            A(f"v_cvt_pk_bf16_f32 {v(R)}, {v(R)}, {v(R + 1)}")
            A(f"v_cvt_pk_bf16_f32 {v(R + 1)}, {v(R + 2)}, {v(R + 3)}")
            A(f"v_bfi_b32 {v(R)}, {v(V_TM)}, {s(S_NTAG)}, {v(R)}")
            A(f"v_permlane32_swap_b32 {v(R + 1)}, {v(R + 3)}")
            A(f"v_permlane32_swap_b32 {v(R)}, {v(R + 2)}")
            A(f"s_mov_b64 exec, {s(S_M40, 2)}")
        else:
            A(f"v_and_or_b32 {v(R)}, {v(R)}, -2, {s(S_NTAG)}")
        st2 = [f"buffer_store_dwordx4 {v(R, 4)}, {v(V_PS)}, {WS}, {s(S_PXA)} offen sc1", f"buffer_store_dwordx4 {v(R, 4)}, {v(V_PS)}, {WS}, {s(S_PLA)} offen{LS}"]
        if cfg.pso:
            st2.reverse()
        A(st2[0])
        if cfg.pso == 2:
            A("s_barrier")
        A(st2[1])
        A("s_mov_b64 exec, -1")
        if cfg.wfd == 12:
            for x in ring:
                A(x)
        stamp(2)
        stamp.flush()
        A.label(nxt)
        A(f"s_add_u32 {s(S_N)}, {s(S_N)}, 1")
        A(f"s_cmp_lt_u32 {s(S_N)}, 128")
        A(f"s_cbranch_scc1 CW_LOOP{sx}")
        A("s_branch CW_DONE")
        for f in G:
            A.label(slow[f])
            for f2 in range(f, upto[f]):
                A(ld(f2))
            spin_fail(A)
            if cfg.timing == 5:
                A(f"s_add_u32 s{92 + min(f, 4)}, s{92 + min(f, 4)}, 1")
            run(chk(f, upto[f]))
            A(f"s_cbranch_vccnz {slow[f]}")
            A(f"s_branch {go[f]}")

    if cfg.timing == 5:
        for k in range(5):
            A(f"s_mov_b32 {s(92 + k)}, 0")
    A(f"s_cmp_lg_u32 {s(S_MODE)}, 0")
    A("s_cbranch_scc1 CW_LOOP_S")
    w_loop("_F", "")
    w_loop("_S", " sc1")
    A.label("CW_DONE")
    if cfg.timing == 5:
        retry_dump(A, 48)
    timing_end(A, cfg, stamp, 48)
```

```python
import sys
from asmlib import Asm, v, a, s

NAME = "interleave_layers__memory_aug_recurrent_mem_tr__mixer_s_mlp__prompt"

WS_BYTES = 268435456
FLAGS = 0
CHB = 0x200000
CHB_XG = 0x200000
MEMR = CHB
MEM_SLOT = 20480
XCH_OFF = 4 * MEM_SLOT
XCH_HEAD = 18432
XCH_SLOT = 8 * XCH_HEAD
PART_OFF = XCH_OFF + 4 * XCH_SLOT
PART_SLOT = 8 * 40960
assert PART_OFF + 4 * PART_SLOT <= CHB_XG
XP = 0xA00000
XP_STEP = 4 * 40960
XG = 0x1700000
XG_HEAD = XCH_HEAD
XG_STEP = 32 * XG_HEAD
MAXSTEP = 84
assert XP + 80 * XP_STEP <= XG
QKV_SEG = 32 * 12288
QKV_SZ = 64 * QKV_SEG
KX = 0x4700000
assert XG + MAXSTEP * XG_STEP <= KX
VX = KX + QKV_SZ
QX = VX + QKV_SZ
OX = QX + QKV_SZ
WOP = OX + QKV_SZ
NKG = 6
WOP_SEG = NKG * 81920
XSEG = 40960
XSEGS = 46080
XIN = WOP + 64 * WOP_SEG
X1B = XIN + 128 * XSEGS
XM = X1B + 128 * XSEGS
YB = XM + 128 * XSEG
ZB = YB + 128 * XSEGS
X0R = ZB + 128 * XSEG
HB = X0R + 64 * XSEG
GB = HB + 2 * 66 * XSEG
GSEG = 98304
WS_END = GB + 128 * GSEG
assert WS_END + 4096 + 256 * 4 * 256 <= WS_BYTES, WS_END

RAWST = WS_END + 4096
F_XIN, F_Q, F_K, F_V, F_O, F_WOP, F_R1, F_H, F_X1, F_G = range(10)
FXG = 0xA8000
FXG_STEP = 32 * 64
assert FXG + MAXSTEP * FXG_STEP <= 0xE0000


C2 = CHB
C2_X = 0x200000
PL_OFF = 0
OI_OFF = 0x28000
VM_OFF = 0x88000
DP_OFF = 0xE8000
DO_OFF = 0xE8400
XG2_HEAD = 6144
XG2_STEP = 32 * XG2_HEAD
assert XG + 128 * XG2_STEP <= KX
FXG2_STEP = 32 * 32
FWOP2 = FXG + 128 * FXG2_STEP
assert FWOP2 + 128 * 640 <= 0xE0000


def flag_row(kind, layer=0, seg=0):
    return FLAGS + ((kind * 2 + layer) * 64 + seg) * 512


P_X, P_MEM0, P_WQ, P_WK, P_WV, P_WO, P_SEG, P_BX, P_W1, P_W2, P_W3, P_W4, P_OUT, P_DBG, P_WS = [16 + 2 * i for i in range(15)]
SRD_W = 4
SRD_WS = 8
SRD_DBG = 12
S_WAVE = 46
S_SPIN = 47
S_ROLE = 48
SPIN_BUDGET = 200000


class Cfg:
    def __init__(self, **kw):
        self.LAG = 9
        self.mode = "full"
        self.lstride = 0
        self.timing = 0
        self.force_fallback = 0
        self.xg_early = 1
        self.xsleep = 0
        self.msleep = 0
        self.prefetch = 1
        self.d0 = 0
        self.xpr = 4
        self.nodma = 0
        self.noxg = 0
        self.sl_m = 0
        self.sl_q = 0
        self.sl_r = 0
        self.qe = 10
        self.lateq2 = 0
        self.lsl = 1
        self.zf = 0
        self.xh2 = 0
        self.fe = 0
        self.xq = 0
        self.xw = 0
        self.xr = 0
        self.vote = 0
        self.allpipe = 0
        self.near = 0
        self.nprobe = 8
        self.xpl = 0
        self.dlt = 0
        self.dly_w = 0
        self.coop = 0
        self.jcw = 0
        self.gpk = 0
        self.r1h = 0
        self.xrs = 0
        self.q3 = 0
        self.wgq = 0
        self.wgp2 = 0
        self.asl = -1
        self.wgp = 0
        self.nrs = 0
        self.fsl = -1
        self.own = 0
        self.l15 = 0
        self.r1e = 0
        self.xat = 0
        self.jc = 0
        self.q2 = 0
        self.q2tail = 8
        self.q2ack = 12
        self.attl = 0
        self.dyn = 0
        self.rot = 0
        self.m1 = 0
        self.xga = 0
        self.ks = 0
        self.late_q = 0
        self.lead1 = 0
        self.dbgmem = 0
        self.s32 = 1
        self.place = 0
        self.rawt0 = 30
        self.late_w = 0
        self.ntop = 4
        self.natt = 4
        self.pp_r = 0
        self.gap_r = 0
        self.pp_x = 0
        self.gap_x = 0
        self.QA = 12
        self.att_sleep = 2
        self.c2 = 0
        self.a2 = 0
        self.g3 = 0
        self.qds = 3
        self.qf1 = 30
        self.qsm = 55
        self.qx = 0
        self.qld = 3
        self.qf2 = 58
        self.qkw = 8
        self.bloc = 0
        self.oloc = 0
        self.touch = 0
        self.ring = 0
        self.bea = 1
        self.w1d = 3
        self.grn = 1
        self.ctouch = 1
        self.ant = 0
        self.aw = 0
        self.asm = 0
        self.kah = 14
        self.kac = 6
        self.lin = 0
        self.kck = 17
        self.ksl = 12
        self.kw0 = 4
        self.kkf = 21
        self.ksp = 8
        self.kxm = 28
        self.ks2 = 38
        self.bf1 = 12
        self.bf1x = 22
        self.bsmx = 10
        self.bsm = 30
        self.bps = 2
        self.r2 = 0
        self.dbo = 20
        self.vmj = 16
        self.vmc = 8
        self.verbose = 0
        self.pso = 2
        self.pb = 1
        self.pw = 1
        self.wg1 = 6
        self.dsh = 1
        self.cr = 4
        self.s3 = 0
        self.pf = 1
        self.b2a = 10
        self.nlate = 8
        self.alead = 8
        self.k0 = 30
        self.hb = 12
        self.tsx = 0
        self.pf0 = 0
        self.pfs = 0
        self.ep = 0
        self.h16 = 0
        self.w3 = 0
        self.nb = 0
        self.ef = 0
        self.t3 = 0
        self.dv = 2
        self.dmav = 5
        self.rdp = 0
        self.rx = 0
        self.kst = 0
        self.b2b = 68
        self.krd = 74
        self.ksd = 50
        self.dfl = 2
        self.kvhit = 0
        self.dma1 = 5
        self.wnp = 5
        self.wsp = 8
        self.wst = 4
        self.wlead = 2
        self.rw = 4
        self.ngem = 24
        self.edb = 0
        self.sw = 67
        self.dma0 = 38
        self.dmas = 5
        self.bar1 = 4
        self.wfd = 10
        self.dsl = 0
        self.dpp2 = 0
        self.spin = SPIN_BUDGET
        self.off = 0
        self.__dict__.update(kw)


def make_srd(A, d, ptr, nbytes):
    A(f"s_mov_b32 {s(d)}, {s(ptr)}")
    A(f"s_mov_b32 {s(d + 1)}, {s(ptr + 1)}")
    A(f"s_mov_b32 {s(d + 2)}, {nbytes}")
    A(f"s_mov_b32 {s(d + 3)}, 0x20000")


def poll_tail(A, top, ok_on="vccz", sleep=0):
    ok = A.newlabel("ok")
    A(f"s_cbranch_vccz {ok}")
    if sleep:
        A(f"s_sleep {sleep}")
    A(f"s_sub_u32 {s(S_SPIN)}, {s(S_SPIN)}, 1")
    A("s_cbranch_scc1 ABORT")
    A(f"s_branch {top}")
    A.label(ok)


class WLoader:
    def __init__(self, A, vtmp, stmp):
        self.A = A
        self.units = []
        self.vt = vtmp
        self.st = stmp
        self.shapes = {}
        self.grp = {}

    def add(self, srd_setup, s_org, row_stride, T, nk, dst, m32=None, grp=None):
        self.units.append((srd_setup, s_org, row_stride, T, nk, dst))
        self.shapes[len(self.units) - 1] = m32
        self.grp[len(self.units) - 1] = grp if grp is not None else len(self.units) - 1

    def emit(self, v_lane):
        A = self.A
        vt, st = self.vt, self.st
        A(f"s_mul_i32 {s(st)}, {s(S_WAVE)}, 40960")
        flat = []
        for ui, u in enumerate(self.units):
            for j in range(u[4]):
                flat.append((ui, j))
        chunks, cur, sz = [], [], 0
        for (ui, j) in flat:
            T = self.units[ui][3]
            if sz + T > 20 or (cur and self.grp[cur[-1][0]] != self.grp[ui]):
                chunks.append(cur)
                cur, sz = [], 0
            cur.append((ui, j))
            sz += T
        if cur:
            chunks.append(cur)
        last_dma_unit = [None]

        def dma(ci):
            ch = chunks[ci]
            half = ci & 1
            ui = ch[0][0]
            srd_setup, s_org, stride, T, nk, dst = self.units[ui]
            if last_dma_unit[0] != self.grp[ui]:
                srd_setup()
                lpr = 2 * T
                sh = {2: 1, 4: 2, 8: 3}[lpr]
                A(f"v_lshrrev_b32 {v(vt + 3)}, {sh}, {v(v_lane)}")
                A(f"s_mov_b32 {s(st + 1)}, {stride}")
                A(f"v_mul_lo_u32 {v(vt + 3)}, {v(vt + 3)}, {s(st + 1)}")
                A(f"v_and_b32 {v(vt + 4)}, {lpr - 1}, {v(v_lane)}")
                A(f"v_lshl_add_u32 {v(vt)}, {v(vt + 4)}, 4, {v(vt + 3)}")
                last_dma_unit[0] = self.grp[ui]
            off = half * 20480
            n = 0
            for (uj, j) in ch:
                s_org = self.units[uj][1]
                for i in range(T):
                    row = 32 * j + i * (32 // T)
                    A(f"s_add_u32 m0, {s(st)}, {off}")
                    A(f"s_add_u32 {s(st + 2)}, {s(s_org)}, {row * stride}")
                    A(f"buffer_load_dwordx4 {v(vt)}, {s(SRD_W, 4)}, {s(st + 2)} offen lds")
                    off += 1024
                    n += 1
            return n

        def trread(ci):
            ch = chunks[ci]
            half = ci & 1
            ui = ch[0][0]
            _, _, stride, T, nk, dst = self.units[ui]
            m32 = self.shapes[ui]
            if m32:
                A(f"v_bfe_u32 {v(vt + 3)}, {v(v_lane)}, 2, 2")
                A(f"v_lshrrev_b32 {v(vt + 4)}, 5, {v(v_lane)}")
                A(f"v_lshl_add_u32 {v(vt + 3)}, {v(vt + 4)}, 2, {v(vt + 3)}")
                A(f"v_mul_u32_u24 {v(vt + 3)}, {T * 32}, {v(vt + 3)}")
                A(f"v_and_b32 {v(vt + 4)}, 1, {v(v_lane)}")
                A(f"v_lshl_add_u32 {v(vt + 3)}, {v(vt + 4)}, 3, {v(vt + 3)}")
                A(f"v_bfe_u32 {v(vt + 4)}, {v(v_lane)}, 1, 1")
                A(f"v_lshl_add_u32 {v(vt + 3)}, {v(vt + 4)}, {5 if m32 == 'perm' else 4}, {v(vt + 3)}")
                A(f"v_bfe_u32 {v(vt + 4)}, {v(v_lane)}, 4, 1")
                A(f"v_lshl_add_u32 {v(vt + 3)}, {v(vt + 4)}, {4 if m32 == 'perm' else 5}, {v(vt + 3)}")
                A(f"v_add_u32 {v(vt + 1)}, {s(st)}, {v(vt + 3)}")
                off = half * 20480
                cnt = 0
                for (_, j) in ch:
                    for tl in range(T // 2):
                        for u in range(2):
                            kind, r = dst(tl, j, u)
                            f = a if kind == "a" else v
                            for hf in range(2):
                                A(f"ds_read_b64_tr_b16 {f(r + 2 * hf, 2)}, {v(vt + 1)} offset:{off + (hf * 16 + u * 8) * T * 32 + tl * 64}")
                                cnt += 1
                                if cnt % 12 == 0:
                                    A("s_waitcnt lgkmcnt(4)")
                    off += T * 1024
                A("s_waitcnt lgkmcnt(0)")
                return
            A(f"v_lshrrev_b32 {v(vt + 3)}, 2, {v(v_lane)}")
            A(f"v_mul_u32_u24 {v(vt + 3)}, {T * 32}, {v(vt + 3)}")
            A(f"v_and_b32 {v(vt + 4)}, 3, {v(v_lane)}")
            A(f"v_lshl_add_u32 {v(vt + 3)}, {v(vt + 4)}, 3, {v(vt + 3)}")
            A(f"v_add_u32 {v(vt + 1)}, {s(st)}, {v(vt + 3)}")
            off = half * 20480
            cnt = 0
            for (uj, j) in ch:
                dst = self.units[uj][5]
                for tau in range(T):
                    d = dst(tau, j)
                    if d is None:
                        continue
                    kind, r = d
                    f = a if kind == "a" else v
                    for hf in range(2):
                        A(f"ds_read_b64_tr_b16 {f(r + 2 * hf, 2)}, {v(vt + 1)} offset:{off + hf * 16 * T * 32 + tau * 32}")
                        cnt += 1
                        if cnt % 12 == 0:
                            A("s_waitcnt lgkmcnt(4)")
                off += T * 1024
            A("s_waitcnt lgkmcnt(0)")

        counts = {}
        counts[0] = dma(0)
        if len(chunks) > 1:
            counts[1] = dma(1)
        for ci in range(len(chunks)):
            nxt = counts.get(ci + 1, 0)
            A(f"s_waitcnt vmcnt({nxt})")
            trread(ci)
            if ci + 2 < len(chunks):
                counts[ci + 2] = dma(ci + 2)


S_MODE = 49
S_ROLEG = 3
S_GID = 100
N_CHAIN = 96
CFG = [None]


def init_barrier_arrive(A, vt):
    tmark(A, CFG[0], 0, vt)
    A("s_waitcnt vmcnt(0)")
    A("s_barrier")
    lab = A.newlabel("arr")
    A(f"s_cmp_lg_u32 {s(S_WAVE)}, 0")
    A(f"s_cbranch_scc1 {lab}")
    A(f"v_mov_b32 {v(vt)}, 1")
    A(f"s_lshl_b32 {s(S_ROLEG)}, {s(S_MODE)}, 2")
    A(f"v_mov_b32 {v(vt + 1)}, {s(S_ROLEG)}")
    A("s_mov_b64 exec, 1")
    A(f"buffer_atomic_add {v(vt)}, {v(vt + 1)}, {s(SRD_DBG, 4)}, 0 offen sc1")
    A("s_mov_b64 exec, -1")
    A.label(lab)


def init_barrier_wait(A, vt, nwg, cfg):
    tmark(A, cfg, 1, vt)
    top = A.newlabel("ibw")
    A(f"s_lshl_b32 {s(S_ROLEG)}, {s(S_MODE)}, 2")
    A(f"v_mov_b32 {v(vt + 1)}, {s(S_ROLEG)}")
    A.label(top)
    A(f"buffer_load_dword {v(vt)}, {v(vt + 1)}, {s(SRD_DBG, 4)}, 0 offen sc1")
    A("s_waitcnt vmcnt(0)")
    A(f"v_cmp_ne_u32 vcc, {nwg}, {v(vt)}")
    poll_tail(A, top, sleep=8)
    ok = A.newlabel("ibok")
    A(f"s_cmp_lg_u32 {s(S_MODE)}, 0")
    A(f"s_cbranch_scc1 {ok}")
    A(f"v_and_b32 {v(vt + 1)}, 7, v0")
    A(f"v_lshlrev_b32 {v(vt + 1)}, 2, {v(vt + 1)}")
    A(f"buffer_load_dword {v(vt)}, {v(vt + 1)}, {s(SRD_DBG, 4)}, 0 offen offset:32 sc1")
    A("s_waitcnt vmcnt(0)")
    A(f"v_cmp_ne_u32 vcc, {1000 if cfg.force_fallback else 32}, {v(vt)}")
    A(f"s_cbranch_vccz {ok}")
    A("s_barrier")
    A(f"s_mov_b32 {s(S_MODE)}, 1")
    A(f"s_mov_b32 {s(S_ROLEG)}, s2")
    A(f"s_load_dwordx16 {s(16, 16)}, s[0:1], 0")
    A(f"s_load_dwordx8 {s(32, 8)}, s[0:1], 64")
    A("s_waitcnt lgkmcnt(0)")
    A("s_branch DISPATCH")
    A.label(ok)
    tmark(A, cfg, 2, vt)


def lstore(A, text):
    l1, l2 = A.newlabel("ls"), A.newlabel("ls")
    if isinstance(text, str):
        text = [text]
    A(f"s_cmp_lg_u32 {s(S_MODE)}, 0")
    A(f"s_cbranch_scc1 {l1}")
    for x in text:
        A(x)
    A(f"s_branch {l2}")
    A.label(l1)
    for x in text:
        A(x + " sc1" if x.startswith("buffer_store") else x)
    A.label(l2)


def maxtree(A, dst, regs):
    regs = list(regs)
    if len(regs) < 6:
        A(f"v_max3_u32 {v(dst)}, {v(regs[0])}, {v(regs[1])}, {v(regs[2])}")
        rest = regs[3:]
        while len(rest) >= 2:
            A(f"v_max3_u32 {v(dst)}, {v(dst)}, {v(rest[0])}, {v(rest[1])}")
            rest = rest[2:]
        if rest:
            A(f"v_max_u32 {v(dst)}, {v(dst)}, {v(rest[0])}")
        return
    A(f"v_max3_u32 {v(dst)}, {v(regs[0])}, {v(regs[1])}, {v(regs[2])}")
    A(f"v_max3_u32 {v(dst + 1)}, {v(regs[3])}, {v(regs[4])}, {v(regs[5])}")
    rest = regs[6:]
    k = 0
    while len(rest) >= 2:
        A(f"v_max3_u32 {v(dst + k)}, {v(dst + k)}, {v(rest[0])}, {v(rest[1])}")
        rest = rest[2:]
        k ^= 1
    if rest:
        A(f"v_max3_u32 {v(dst)}, {v(dst)}, {v(dst + 1)}, {v(rest[0])}")
    else:
        A(f"v_max_u32 {v(dst)}, {v(dst)}, {v(dst + 1)}")


def xreduce(A, op, r, t):
    A(f"v_mov_b32 {v(t)}, {v(r)}")
    A(f"v_permlane32_swap_b32 {v(r)}, {v(t)}")
    A(f"{op} {v(r)}, {v(r)}, {v(t)}")
    A(f"v_mov_b32 {v(t)}, {v(r)}")
    A(f"v_permlane16_swap_b32 {v(r)}, {v(t)}")
    A(f"{op} {v(r)}, {v(r)}, {v(t)}")


class RawStamper:
    def __init__(self, A, cfg, base, s_t, vreg, t0=20):
        self.A, self.b, self.s_t, self.vr, self.t0 = A, base, s_t, vreg, t0

    def cal(self, lane):
        A, b = self.A, self.b
        A(f"s_memrealtime {s(b + 2, 2)}")
        A(f"s_memtime {s(b, 2)}")
        A("s_waitcnt lgkmcnt(0)")
        A(f"s_lshl_b64 exec, 1, {lane}")
        A(f"v_mov_b32 {v(self.vr)}, {s(b)}")
        A(f"s_lshl_b64 exec, 1, {lane + 1}")
        A(f"v_mov_b32 {v(self.vr)}, {s(b + 2)}")
        A("s_mov_b64 exec, -1")

    def init(self):
        self.A(f"v_mov_b32 {v(self.vr)}, 0")
        self.cal(56)

    def __call__(self, k):
        A, b = self.A, self.b
        A(f"s_memtime {s(b, 2)}")
        A(f"s_sub_u32 {s(b + 2)}, {s(self.s_t)}, {self.t0}")
        A(f"s_lshl_b32 {s(b + 3)}, {s(b + 2)}, 3")
        A(f"s_add_u32 {s(b + 3)}, {s(b + 3)}, {k}")
        A(f"s_cmp_lt_u32 {s(b + 2)}, 7")
        A(f"s_cselect_b32 {s(b + 3)}, {s(b + 3)}, 63")
        A(f"s_lshl_b64 exec, 1, {s(b + 3)}")
        A("s_waitcnt lgkmcnt(0)")
        A(f"v_mov_b32 {v(self.vr)}, {s(b)}")
        A("s_mov_b64 exec, -1")

    def dump(self, s_idx, stmp, vt):
        A = self.A
        self.cal(58)
        A(f"s_lshl_b32 {s(stmp)}, {s(s_idx)}, 2")
        A(f"s_add_u32 {s(stmp)}, {s(stmp)}, {s(S_WAVE)}")
        A(f"s_lshl_b32 {s(stmp)}, {s(stmp)}, 8")
        A(f"s_add_u32 {s(stmp)}, {s(stmp)}, {RAWST}")
        A(f"v_lshlrev_b32 {v(vt)}, 2, v0")
        A(f"buffer_store_dword {v(self.vr)}, {v(vt)}, {s(SRD_WS, 4)}, {s(stmp)} offen")


class Stamper:
    def __init__(self, A, cfg, base, n, on=None):
        self.A, self.on, self.b, self.n = A, (cfg.timing == 2 if on is None else on), base, n

    def init(self):
        if self.on:
            self.A(f"s_memrealtime {s(self.b, 2)}")
            self.A("s_waitcnt lgkmcnt(0)")
            self.A(f"s_mov_b32 s101, {s(self.b)}")
            self(0)
            for k in range(self.n):
                self.A(f"s_mov_b32 {s(self.b + 3 + k)}, 0")

    def __call__(self, k):
        if not self.on:
            return
        A, b = self.A, self.b
        A(f"s_memtime {s(b, 2)}")
        A("s_waitcnt lgkmcnt(0)")
        A(f"s_sub_u32 {s(b + 1)}, {s(b)}, {s(b + 2)}")
        A(f"s_add_u32 {s(b + 3 + k)}, {s(b + 3 + k)}, {s(b + 1)}")
        A(f"s_mov_b32 {s(b + 2)}, {s(b)}")

    def dump(self, s_idx, stmp, vt):
        if not self.on:
            return
        A = self.A
        A(f"s_lshl_b32 {s(stmp)}, {s(s_idx)}, 2")
        A(f"s_add_u32 {s(stmp)}, {s(stmp)}, {s(S_WAVE)}")
        A(f"s_lshl_b32 {s(stmp)}, {s(stmp)}, 6")
        A(f"s_add_u32 {s(stmp)}, {s(stmp)}, 0xE0000")
        A(f"v_mov_b32 {v(vt + 2)}, 0")
        A("s_mov_b64 exec, 1")
        for k in range(self.n):
            A(f"v_mov_b32 {v(vt)}, {s(self.b + 3 + k)}")
            A(f"buffer_store_dword {v(vt)}, {v(vt + 2)}, {s(SRD_WS, 4)}, {s(stmp)} offen offset:{4 * k}")
        A(f"v_mov_b32 {v(vt)}, {s(S_SPIN)}")
        A(f"buffer_store_dword {v(vt)}, {v(vt + 2)}, {s(SRD_WS, 4)}, {s(stmp)} offen offset:60")
        A(f"s_memrealtime {s(self.b, 2)}")
        A("s_waitcnt lgkmcnt(0)")
        A(f"s_sub_u32 {s(self.b)}, {s(self.b)}, s101")
        A(f"v_mov_b32 {v(vt)}, {s(self.b)}")
        A(f"buffer_store_dword {v(vt)}, {v(vt + 2)}, {s(SRD_WS, 4)}, {s(stmp)} offen offset:56")
        A("s_mov_b64 exec, -1")


def tmark(A, cfg, k, vt):
    if cfg.timing != 4:
        return
    A("s_memrealtime s[98:99]")
    A(f"s_lshl_b32 s97, {s(S_GID)}, 2")
    A(f"s_add_u32 s97, s97, {s(S_WAVE)}")
    A("s_lshl_b32 s97, s97, 6")
    A(f"s_add_u32 s97, s97, {0x100000 + 4 * k}")
    A("s_waitcnt lgkmcnt(0)")
    A(f"v_mov_b32 {v(vt)}, s98")
    A(f"v_mov_b32 {v(vt + 1)}, 0")
    A("s_mov_b64 exec, 1")
    A(f"buffer_store_dword {v(vt)}, {v(vt + 1)}, {s(SRD_WS, 4)}, s97 offen")
    A("s_mov_b64 exec, -1")
```

```python
from common import *
import struct
import math


def f32(x):
    return "0x%08x" % struct.unpack("<I", struct.pack("<f", x))[0]


WS = s(SRD_WS, 4)
PRE_FLAG = [None]
TSFLAG = [0]
V_LANE, V_L16, V_FO, V_FV, V_LB, V_ONE = 0, 1, 2, 3, 4, 5
V_T = 6
V_P16 = 15
S_I, S_L, S_S, S_NL, S_NS, S_DEF, S_IDX, S_BUF = range(50, 58)
S_C0 = 58
T = 60
S_K = 68
S_FADDR = 82
DUMMY = -1


def item_of(A, i_reg, rl, rs, A0, first, t):
    B = 64 - A0
    A(f"s_sub_u32 {s(t)}, {s(i_reg)}, {A0}")
    A(f"s_lshr_b32 {s(rs)}, {s(t)}, 1")
    A(f"s_and_b32 {s(rl)}, {s(t)}, 1")
    if first:
        A(f"s_xor_b32 {s(rl)}, {s(rl)}, 1")
    A(f"s_cmp_eq_u32 {s(rl)}, 0")
    A(f"s_cselect_b32 {s(t + 1)}, {A0}, 0")
    A(f"s_add_u32 {s(rs)}, {s(rs)}, {s(t + 1)}")
    A(f"s_sub_u32 {s(t + 1)}, {s(t)}, {B}")
    A(f"s_cmp_ge_u32 {s(t)}, {2 * B}")
    A(f"s_cselect_b32 {s(rs)}, {s(t + 1)}, {s(rs)}")
    A(f"s_cselect_b32 {s(rl)}, 1, {s(rl)}")
    A(f"s_cmp_lt_u32 {s(i_reg)}, {A0}")
    A(f"s_cselect_b32 {s(rs)}, {s(i_reg)}, {s(rs)}")
    A(f"s_cselect_b32 {s(rl)}, 0, {s(rl)}")


def p16_setup(A, dst):
    A(f"v_bfe_u32 {v(V_T)}, {v(V_LANE)}, 2, 2")
    A(f"v_lshrrev_b32 {v(V_T + 1)}, 4, {v(V_LANE)}")
    A(f"v_add_u32 {v(V_T + 1)}, {v(V_T)}, {v(V_T + 1)}")
    A(f"v_and_b32 {v(V_T + 1)}, 3, {v(V_T + 1)}")
    A(f"v_and_b32 {v(dst)}, 3, {v(V_LANE)}")
    A(f"v_lshlrev_b32 {v(dst)}, 4, {v(dst)}")
    A(f"v_lshl_add_u32 {v(dst)}, {v(V_T + 1)}, 6, {v(dst)}")
    A(f"v_lshl_add_u32 {v(dst)}, {v(V_T)}, 8, {v(dst)}")


def base_setup(A):
    A(f"v_lshlrev_b32 {v(V_L16)}, 4, {v(V_LANE)}")
    A(f"v_mov_b32 {v(V_ONE)}, 1")
    A(f"s_lshl_b32 {s(S_IDX)}, {s(S_ROLE)}, 2")
    A(f"s_add_u32 {s(S_IDX)}, {s(S_IDX)}, {s(S_WAVE)}")
    p16_setup(A, V_P16)


def zero_flags(A, kind_off_reg_or_const, idx_reg, layers=(0, 1)):
    return


def row_of(A, dst, rl, rs, base):
    A(f"s_lshl_b32 {s(dst)}, {s(rl)}, 6")
    A(f"s_add_u32 {s(dst)}, {s(dst)}, {s(rs)}")
    A(f"s_lshl_b32 {s(dst)}, {s(dst)}, 9")
    A(f"s_add_u32 {s(dst)}, {s(dst)}, {base}")


def flag_addr(A, dst, base, idx_reg=S_IDX, rl=S_L, rs=S_S):
    row_of(A, dst, rl, rs, base)
    A(f"s_lshl_b32 {s(T + 1)}, {s(idx_reg)}, 2")
    A(f"s_add_u32 {s(dst)}, {s(dst)}, {s(T + 1)}")


def set_flag(A, base, idx_reg=S_IDX, rl=S_L, rs=S_S):
    if PRE_FLAG[0]:
        flag_addr(A, S_FADDR, base, idx_reg, rl, rs)
        return
    flag_addr(A, T, base, idx_reg, rl, rs)
    A("s_waitcnt vmcnt(0)")
    flag_store(A, T)


def flag_store(A, T, LS=" sc1"):
    if TSFLAG[0]:
        A(f"s_memrealtime {s(98, 2)}")
        A("s_waitcnt lgkmcnt(0)")
        A(f"s_or_b32 s98, s98, 1")
        A(f"v_mov_b32 {v(V_ONE)}, s98")
    A("s_mov_b64 exec, 1")
    A(f"buffer_store_dword {v(V_ONE)}, {v(V_L16)}, {WS}, {s(T)} offen{LS}")
    A("s_mov_b64 exec, -1")


def flag_block(A, soff_reg, vo=V_FO, vv=V_FV, wide=False, sleep=2):
    if CFG[0].fsl >= 0:
        sleep = CFG[0].fsl
    top = A.newlabel("fb")
    A.label(top)
    if wide:
        A(f"buffer_load_dwordx2 {v(vv, 2)}, {v(vo)}, {WS}, {s(soff_reg)} offen sc1")
        A("s_waitcnt vmcnt(0)")
        A(f"v_min_u32 {v(vv)}, {v(vv)}, {v(vv + 1)}")
    else:
        A(f"buffer_load_dword {v(vv)}, {v(vo)}, {WS}, {s(soff_reg)} offen sc1")
        A("s_waitcnt vmcnt(0)")
    A(f"v_cmp_eq_u32 vcc, 0, {v(vv)}")
    poll_tail(A, top, sleep=sleep)


def flag_block_wg(A, soff_reg, **kw):
    if not CFG[0].wgp:
        flag_block(A, soff_reg, **kw)
        return
    lab = A.newlabel("wp")
    A(f"s_cmp_lg_u32 {s(S_WAVE)}, 0")
    A(f"s_cbranch_scc1 {lab}")
    sv = CFG[0].fsl
    CFG[0].fsl = CFG[0].wgp - 1
    flag_block(A, soff_reg, **kw)
    CFG[0].fsl = sv
    A.label(lab)
    A("s_barrier")


S_SPIN2 = 59


def rdy_init(A, cfg, va, addr):
    A(f"s_mov_b32 {s(S_SPIN2)}, {cfg.spin * 8}")
    A(f"v_mov_b32 {v(va)}, {addr}")
    A(f"v_mov_b32 {v(va + 1)}, 0")
    A(f"ds_write_b32 {v(va)}, {v(va + 1)}")
    A("s_waitcnt lgkmcnt(0)")
    A("s_barrier")


def rdy_set(A, va, plus, tmp):
    A(f"s_add_u32 {s(tmp)}, {s(S_I)}, {plus}")
    A(f"v_mov_b32 {v(va + 1)}, {s(tmp)}")
    A(f"ds_write_b32 {v(va)}, {v(va + 1)}")


def wg_wait(A, cfg, va, soff, tmp, **kw):
    oth, done = A.newlabel("wo"), A.newlabel("wd")
    A(f"s_cmp_lg_u32 {s(S_WAVE)}, 0")
    A(f"s_cbranch_scc1 {oth}")
    sv = cfg.fsl
    cfg.fsl = cfg.wgp - 1
    flag_block(A, soff, **kw)
    cfg.fsl = sv
    rdy_set(A, va, 0, tmp)
    A(f"s_branch {done}")
    A.label(oth)
    A(f"ds_read_b32 {v(va + 1)}, {v(va)}")
    A("s_waitcnt lgkmcnt(0)")
    A(f"v_cmp_gt_u32 vcc, {s(S_I)}, {v(va + 1)}")
    A(f"s_cbranch_vccz {done}")
    A(f"s_sleep {CFG[0].lsl}")
    A(f"s_sub_u32 {s(S_SPIN2)}, {s(S_SPIN2)}, 1")
    A("s_cbranch_scc1 ABORT")
    A(f"s_branch {oth}")
    A.label(done)


def rnd2(A, pk, x0, x1):
    A(f"v_cvt_pk_bf16_f32 {v(pk)}, {v(x0)}, {v(x1)}")
    A(f"v_lshlrev_b32 {v(x0)}, 16, {v(pk)}")
    A(f"v_and_b32 {v(x1)}, 0xffff0000, {v(pk)}")


def rnd1(A, x, tmp):
    A(f"v_cvt_pk_bf16_f32 {v(tmp)}, {v(x)}, {v(x)}")
    A(f"v_lshlrev_b32 {v(x)}, 16, {v(tmp)}")


def finish_stats(A, s1, s2, tmp, keep=None, scaled=False):
    if not scaled:
        A(f"v_mul_f32 {v(s1)}, {f32(1.0 / 640)}, {v(s1)}")
        A(f"v_mul_f32 {v(s2)}, {f32(1.0 / 640)}, {v(s2)}")
        A(f"v_fma_f32 {v(s2)}, -{v(s1)}, {v(s1)}, {v(s2)}")
        A(f"v_max_f32 {v(s2)}, 0, {v(s2)}")
    if keep is not None:
        A(f"v_mov_b32 {v(keep)}, {v(s1)}")
        A(f"v_mov_b32 {v(keep + 1)}, {v(s2)}")
    rnd2(A, tmp, s1, s2)
    A(f"v_add_f32 {v(s2)}, {f32(1e-5)}, {v(s2)}")
    rnd1(A, s2, tmp)
    A(f"v_sqrt_f32 {v(s2)}, {v(s2)}")
    rnd1(A, s2, tmp)
    A(f"v_rcp_f32 {v(s2)}, {v(s2)}")


GELU_C0 = -2.0 * math.sqrt(2.0 / math.pi) * math.log2(math.e)
GELU_C1 = GELU_C0 * 0.044715


def gelu_pack(A, vals, out, tmps, v_c0, s_c1):
    n = len(vals)
    if CFG[0].gpk:
        for i in range(0, n, 2):
            if CFG[0].grn:
                rnd2(A, tmps[n], vals[i], vals[i + 1])
        for i in range(0, n, 2):
            A(f"v_pk_mul_f32 {v(tmps[i], 2)}, {v(vals[i], 2)}, {v(vals[i], 2)}")
        for i in range(0, n, 2):
            A(f"v_pk_fma_f32 {v(tmps[i], 2)}, {v(tmps[i], 2)}, {v(v_c0, 2)}, {v(v_c0, 2)} op_sel:[0,1,0] op_sel_hi:[1,1,0]")
        for i in range(0, n, 2):
            A(f"v_pk_mul_f32 {v(tmps[i], 2)}, {v(tmps[i], 2)}, {v(vals[i], 2)}")
        for i in range(n):
            A(f"v_exp_f32 {v(tmps[i])}, {v(tmps[i])}")
        for i in range(0, n, 2):
            A(f"v_pk_add_f32 {v(tmps[i], 2)}, {v(tmps[i], 2)}, 1.0 op_sel_hi:[1,0]")
        for i in range(n):
            A(f"v_rcp_f32 {v(tmps[i])}, {v(tmps[i])}")
        for i in range(0, n, 2):
            A(f"v_pk_mul_f32 {v(vals[i], 2)}, {v(vals[i], 2)}, {v(tmps[i], 2)}")
        for i in range(0, n, 2):
            A(f"v_cvt_pk_bf16_f32 {v(out + i // 2)}, {v(vals[i])}, {v(vals[i + 1])}")
        return
    for i in range(0, n, 2):
        rnd2(A, tmps[n], vals[i], vals[i + 1])
    for i in range(n):
        A(f"v_mul_f32 {v(tmps[i])}, {v(vals[i])}, {v(vals[i])}")
    for i in range(n):
        A(f"v_fma_f32 {v(tmps[i])}, {v(tmps[i])}, {s(s_c1)}, {v(v_c0)}")
    for i in range(n):
        A(f"v_mul_f32 {v(tmps[i])}, {v(tmps[i])}, {v(vals[i])}")
    for i in range(n):
        A(f"v_exp_f32 {v(tmps[i])}, {v(tmps[i])}")
    for i in range(n):
        A(f"v_add_f32 {v(tmps[i])}, 1.0, {v(tmps[i])}")
    for i in range(n):
        A(f"v_rcp_f32 {v(tmps[i])}, {v(tmps[i])}")
    for i in range(n):
        A(f"v_mul_f32 {v(vals[i])}, {v(vals[i])}, {v(tmps[i])}")
    for i in range(0, n, 2):
        A(f"v_cvt_pk_bf16_f32 {v(out + i // 2)}, {v(vals[i])}, {v(vals[i + 1])}")


def stats_consume(A, v_sa, r, tmp):
    A(f"v_add_u32 {v(tmp)}, 0x800, {v(v_sa)}")
    for i in range(4):
        A(f"ds_read2_b64 {v(r + 4 * i, 4)}, {v(v_sa)} offset0:{64 * i} offset1:{64 * i + 32}")
    A(f"ds_read2_b64 {v(r + 16, 4)}, {v(tmp)} offset0:0 offset1:32")


def stats_reduce(A, r, out, tmp):
    for st in ((0, 10), (2, 12), (4, 14), (6, 16), (8, 18), (0, 2), (4, 6), (0, 4), (0, 8)):
        A(f"v_pk_add_f32 {v(r + st[0], 2)}, {v(r + st[0], 2)}, {v(r + st[1], 2)}")
    for k in range(2):
        A(f"v_mov_b32 {v(r + 2 + k)}, {v(r + k)}")
    for k in range(2):
        A(f"v_permlane16_swap_b32 {v(r + k)}, {v(r + 2 + k)}")
    for k in range(2):
        A(f"v_add_f32 {v(out + k)}, {v(r + k)}, {v(r + 2 + k)}")
    finish_stats(A, out, out + 1, tmp)
    for k in range(2):
        A(f"v_mov_b32 {v(out + 2 + k)}, {v(out + k)}")
    for k in range(2):
        A(f"v_permlane32_swap_b32 {v(out + k)}, {v(out + 2 + k)}")


def stats_produce(A, x0, x1, t, v_addr, soff_reg):
    for k, xs in enumerate((x0, x1)):
        A(f"v_add_f32 {v(t + k)}, {v(xs[0])}, {v(xs[1])}")
        A(f"v_mul_f32 {v(t + 2 + k)}, {v(xs[0])}, {v(xs[0])}")
        for i in range(1, 8):
            if i >= 2:
                A(f"v_add_f32 {v(t + k)}, {v(t + k)}, {v(xs[i])}")
            A(f"v_fmac_f32 {v(t + 2 + k)}, {v(xs[i])}, {v(xs[i])}")
    A(f"v_permlane32_swap_b32 {v(t)}, {v(t + 1)}")
    A(f"v_permlane32_swap_b32 {v(t + 2)}, {v(t + 3)}")
    A(f"v_add_f32 {v(t)}, {v(t)}, {v(t + 1)}")
    A(f"v_add_f32 {v(t + 1)}, {v(t + 2)}, {v(t + 3)}")
    A(f"v_mov_b32 {v(t + 2)}, {v(t)}")
    A(f"v_mov_b32 {v(t + 3)}, {v(t + 1)}")
    A(f"v_permlane16_swap_b32 {v(t)}, {v(t + 2)}")
    A(f"v_permlane16_swap_b32 {v(t + 1)}, {v(t + 3)}")
    A(f"v_add_f32 {v(t)}, {v(t)}, {v(t + 2)}")
    A(f"v_add_f32 {v(t + 1)}, {v(t + 1)}, {v(t + 3)}")
    A("s_mov_b32 exec_lo, 0xffff")
    A("s_mov_b32 exec_hi, 0xffff")
    A(f"buffer_store_dwordx2 {v(t, 2)}, {v(v_addr)}, {WS}, {s(soff_reg)} offen sc1")
    A("s_mov_b64 exec, -1")


class Capture:
    def __init__(self):
        self.l = []

    def __call__(self, x):
        self.l.append(x)

    def groups(self):
        out, cur = [], []
        for x in self.l:
            cur.append(x)
            if x.endswith(" lds"):
                out.append(cur)
                cur = []
        assert not cur
        return out


class Gemm:
    name = ""
    nk = 20
    NT = 2
    swap = False
    bufsz = 40960
    order = "d"
    jchk = 5
    nstores = 2
    pin = False
    fillrate = 3
    V_ACC = 16
    V_FR = 48
    V_X = 80

    def __init__(self, A, cfg, nwg):
        self.A, self.cfg, self.nwg = A, cfg, nwg

    def wreg(self, tau, j):
        idx = tau * self.nk + j
        if idx < 64:
            return ("a", idx * 4)
        return ("v", 256 - (self.NT * self.nk - idx) * 4)

    def wtxt(self, tau, j):
        k, r = self.wreg(tau, j)
        return a(r, 4) if k == "a" else v(r, 4)

    def acc(self, tau, tt):
        return self.V_ACC + (tau * 2 + tt) * 4

    def setup(self): pass
    def init_stores(self): pass
    def weights(self, WL): pass
    def post_weights(self): pass
    def flag_soff(self, dst, rl, rs): pass
    def dma(self, rl, rs, ldsreg): pass
    def early(self): return 0
    def mid(self): return []
    def epilogue(self): pass

    def item(self, i_reg, rl, rs):
        if self.order == "q":
            item_of(self.A, i_reg, rl, rs, self.cfg.QA, 1, T)
        else:
            item_of(self.A, i_reg, rl, rs, self.cfg.LAG + self.cfg.dlt, 0, T)

    def lin_dma(self, src_reg, ldsreg, nb):
        A = self.A
        for b in range(nb):
            if b % 4 == 0:
                A(f"s_add_u32 m0, {s(ldsreg)}, {b * 1024}")
                A(f"s_add_u32 {s(T + 3)}, {s(src_reg)}, {b * 1024}")
            A(f"buffer_load_dwordx4 {v(V_L16)}, {WS}, {s(T + 3)} offen offset:{(b % 4) * 1024} sc1 lds")

    def gen(self):
        A, cfg = self.A, self.cfg
        nm = self.name
        A.label("ROLE_" + nm)
        base_setup(A)
        self.setup()
        self.init_stores()
        init_barrier_arrive(A, V_T)
        late = self.order != "q" and cfg.late_w
        if late:
            init_barrier_wait(A, V_T, self.nwg, cfg)
            A(f"s_sleep {cfg.late_w}")
        WL = WLoader(A, V_T, T + 3)
        self.weights(WL)
        WL.emit(V_LANE)
        self.post_weights()
        A("s_barrier")
        if not late:
            init_barrier_wait(A, V_T, self.nwg, cfg)
        A(f"s_mov_b32 {s(S_I)}, 0")
        A(f"s_mov_b32 {s(S_BUF)}, 0")
        st = self.st = Stamper(A, cfg, 84, 8)
        A(f"s_mov_b32 s83, {s(S_GID)}")
        self.item(S_I, S_L, S_S)
        self.flag_soff(T + 7, S_L, S_S)
        self.flag_block(T + 7)
        self.dma(S_L, S_S, S_BUF)
        st.init()
        A("s_waitcnt vmcnt(0)")
        A(f"s_mov_b32 {s(S_FADDR)}, {DUMMY}")
        A.label(nm + "_LOOP")
        cap0 = Capture()
        self.A = cap0
        cap0(f"s_add_u32 {s(T + 6)}, {s(S_I)}, 1")
        cap0(f"s_min_u32 {s(T + 6)}, {s(T + 6)}, 127")
        self.item(T + 6, S_NL, S_NS)
        self.flag_soff(T + 7, S_NL, S_NS)
        self.flag_load(T + 7)
        self.early()
        self.mid()
        self.A = A
        fill = cap0.l
        A(f"v_add_u32 {v(V_LB)}, {s(S_BUF)}, {v(V_P16 if self.pin else V_L16)}")
        A("s_barrier")
        st(0)
        nk, NT = self.nk, self.NT
        D = 3

        def rd(j):
            for tt in range(2):
                A(f"ds_read_b128 {v(self.V_FR + ((j % 4) * 2 + tt) * 4, 4)}, {v(V_LB)} offset:{(j * 2 + tt) * 1024}")

        def kstep(j, extra=None):
            if j + D < nk:
                rd(j + D)
                A(f"s_waitcnt lgkmcnt({2 * D})")
            else:
                A(f"s_waitcnt lgkmcnt({2 * (nk - 1 - j)})")
            n = 0
            for tau in range(NT):
                for tt in range(2):
                    c = "0" if j == 0 else v(self.acc(tau, tt), 4)
                    fr = v(self.V_FR + ((j % 4) * 2 + tt) * 4, 4)
                    w = self.wtxt(tau, j)
                    x, y = (fr, w) if self.swap else (w, fr)
                    A(f"v_mfma_f32_16x16x32_bf16 {v(self.acc(tau, tt), 4)}, {x}, {y}, {c}")
                    n += 1
                    if extra and n == 1:
                        for e in extra:
                            A(e)
                    if j >= 1:
                        for _ in range(self.fillrate):
                            if fill:
                                A(fill.pop(0))
        self.pre_mfma()
        for j in range(D):
            rd(j)
        jchk = self.jchk
        for j in range(jchk + 1):
            kstep(j)
        while fill:
            A(fill.pop(0))
        nod, join = A.newlabel("nod"), A.newlabel("join")
        A("s_waitcnt vmcnt(0)")
        st(1)
        nof = A.newlabel("nof")
        A(f"s_cmp_eq_u32 {s(S_FADDR)}, {DUMMY}")
        A(f"s_cbranch_scc1 {nof}")
        flag_store(A, S_FADDR)
        A.label(nof)
        self.flag_check()
        A(f"s_mov_b32 {s(S_DEF)}, 1")
        A(f"s_cbranch_vccnz {nod}")
        A(f"s_mov_b32 {s(S_DEF)}, 0")
        A(f"s_xor_b32 {s(T + 6)}, {s(S_BUF)}, {self.bufsz}")
        cap = Capture()
        self.A = cap
        self.dma(S_NL, S_NS, T + 6)
        self.A = A
        groups = cap.groups()
        rem = list(range(jchk + 1, nk))
        per = -(-len(groups) // len(rem))
        for j in rem:
            ex = []
            for _ in range(per):
                if groups:
                    ex += groups.pop(0)
            kstep(j, ex)
        assert not groups
        A(f"s_branch {join}")
        A.label(nod)
        for j in rem:
            kstep(j)
        A.label(join)
        st(3)
        PRE_FLAG[0] = True
        self.epilogue()
        PRE_FLAG[0] = None
        st(4)
        A(f"s_add_u32 {s(S_I)}, {s(S_I)}, 1")
        A(f"s_cmp_eq_u32 {s(S_I)}, 128")
        A(f"s_cbranch_scc1 {nm}_END")
        A(f"s_xor_b32 {s(S_BUF)}, {s(S_BUF)}, {self.bufsz}")
        A(f"s_mov_b32 {s(S_L)}, {s(S_NL)}")
        A(f"s_mov_b32 {s(S_S)}, {s(S_NS)}")
        A(f"s_cmp_eq_u32 {s(S_DEF)}, 0")
        A(f"s_cbranch_scc1 {nm}_OKN")
        A("s_waitcnt vmcnt(0)")
        flag_store(A, S_FADDR)
        A(f"s_mov_b32 {s(S_FADDR)}, {DUMMY}")
        st(5)
        self.flag_soff(T + 7, S_L, S_S)
        self.flag_block(T + 7)
        st(6)
        self.dma(S_L, S_S, S_BUF)
        A("s_waitcnt vmcnt(0)")
        st(7)
        A(f"s_branch {nm}_LOOP")
        A.label(nm + "_OKN")
        A(f"s_waitcnt vmcnt({self.nstores})")
        A(f"s_branch {nm}_LOOP")
        A.label(nm + "_END")
        A("s_waitcnt vmcnt(0)")
        flag_store(A, S_FADDR)
        st.dump(83, T, V_T)
        A("s_endpgm")

    def pre_mfma(self): pass

    def flag_block(self, soff):
        flag_block_wg(self.A, soff)

    def flag_load(self, soff):
        self.A(f"buffer_load_dword {v(V_FV)}, {v(V_FO)}, {WS}, {s(soff)} offen sc1")

    def flag_check(self):
        self.A(f"v_cmp_eq_u32 vcc, 0, {v(V_FV)}")


class FoldMixin:
    def csum(self, dst):
        A = self.A
        ones = self.V_FR
        for i in range(4):
            A(f"v_mov_b32 {v(ones + i)}, 0x3f803f80")
        for j in range(self.nk):
            for tau in range(self.NT):
                c = "0" if j == 0 else v(dst + 4 * tau, 4)
                w = self.wtxt(tau, j)
                x, y = (v(ones, 4), w) if self.swap else (w, v(ones, 4))
                A(f"v_mfma_f32_16x16x32_bf16 {v(dst + 4 * tau, 4)}, {x}, {y}, {c}")

    def sa_setup(self, v_sa0):
        A = self.A
        A(f"v_lshrrev_b32 {v(V_T)}, 4, {v(V_LANE)}")
        A(f"v_and_b32 {v(V_T)}, 1, {v(V_T)}")
        A(f"v_mul_u32_u24 {v(v_sa0)}, 2560, {v(V_T)}")
        A(f"v_lshrrev_b32 {v(V_T)}, 5, {v(V_LANE)}")
        A(f"v_lshl_add_u32 {v(v_sa0)}, {v(V_T)}, 7, {v(v_sa0)}")
        A(f"v_and_b32 {v(V_T)}, 15, {v(V_LANE)}")
        A(f"v_lshl_add_u32 {v(v_sa0)}, {v(V_T)}, 3, {v(v_sa0)}")
        A(f"v_add_u32 {v(v_sa0)}, 0xa000, {v(v_sa0)}")

    def stats_dma(self, src_reg, ldsreg_raw):
        A = self.A
        A(f"s_lshl_b32 {s(T + 2)}, {s(S_WAVE)}, 10")
        A(f"s_add_u32 {s(T + 2)}, {s(T + 2)}, 40960")
        A(f"s_add_u32 m0, {s(ldsreg_raw)}, {s(T + 2)}")
        A(f"s_add_u32 {s(T + 3)}, {s(src_reg)}, {s(T + 2)}")
        A(f"buffer_load_dwordx4 {v(V_L16)}, {WS}, {s(T + 3)} offen sc1 lds")
        A(f"s_add_u32 m0, {s(ldsreg_raw)}, {44 * 1024}")
        A(f"s_add_u32 {s(T + 3)}, {s(src_reg)}, {44 * 1024}")
        A(f"buffer_load_dwordx4 {v(V_L16)}, {WS}, {s(T + 3)} offen sc1 lds")


class QKV(Gemm, FoldMixin):
    NT = 4
    nk = 20
    bufsz = XSEGS
    order = "q"
    fillrate = 2
    pin = True
    jchk = 7
    nstores = 4
    V_CS = 80
    V_SR = 96
    V_ST = 116
    V_SV = 120
    V_SA0, V_SA = 136, 137
    V_PK = 140
    V_SW, V_SRD = 138, 139
    S_TYPE, S_WG, S_OUT, S_FK = S_K, S_K + 1, S_K + 2, S_K + 3

    def __init__(self, A, cfg, nwg, vtype):
        super().__init__(A, cfg, nwg)
        self.swap = vtype
        self.name = "QKVV" if vtype else "QKVQ"

    def setup(self):
        A = self.A
        if self.swap:
            A(f"s_mov_b32 {s(self.S_WG)}, {s(S_IDX)}")
            A(f"s_mov_b32 {s(self.S_OUT)}, {VX}")
            A(f"s_mov_b32 {s(self.S_FK)}, {flag_row(F_V)}")
        else:
            A(f"s_cmp_ge_u32 {s(S_ROLE)}, 24")
            A(f"s_cselect_b32 {s(self.S_TYPE)}, 1, 0")
            A(f"s_mul_i32 {s(T)}, {s(self.S_TYPE)}, 96")
            A(f"s_sub_u32 {s(self.S_WG)}, {s(S_IDX)}, {s(T)}")
            A(f"s_mul_i32 {s(self.S_OUT)}, {s(self.S_TYPE)}, {QX - KX}")
            A(f"s_add_u32 {s(self.S_OUT)}, {s(self.S_OUT)}, {KX}")
            A(f"s_mul_i32 {s(T)}, {s(self.S_TYPE)}, {flag_row(F_K) - flag_row(F_Q)}")
            A(f"s_sub_u32 {s(self.S_FK)}, {flag_row(F_K)}, {s(T)}")
        A(f"s_lshl_b32 {s(T)}, {s(self.S_WG)}, 12")
        A(f"s_add_u32 {s(self.S_OUT)}, {s(self.S_OUT)}, {s(T)}")
        self.sa_setup(self.V_SA0)
        if self.swap:
            A(f"s_lshl_b32 {s(T)}, {s(S_WAVE)}, 8")
            A(f"s_add_u32 {s(T)}, {s(T)}, {2 * self.bufsz}")
            A(f"v_and_b32 {v(V_T)}, 15, {v(V_LANE)}")
            A(f"v_lshlrev_b32 {v(self.V_SW)}, 3, {v(V_T)}")
            A(f"v_add_u32 {v(self.V_SW)}, {s(T)}, {v(self.V_SW)}")
            A(f"v_lshrrev_b32 {v(V_T)}, 4, {v(V_LANE)}")
            A(f"v_lshlrev_b32 {v(self.V_SRD)}, 5, {v(V_T)}")
            A(f"v_add_u32 {v(self.V_SRD)}, {s(T)}, {v(self.V_SRD)}")

    def init_stores(self):
        zero_flags(self.A, s(self.S_FK), self.S_WG)

    def weights(self, WL):
        A = self.A
        A(f"s_lshl_b32 {s(S_C0)}, {s(self.S_WG)}, 7")

        def srd():
            if self.swap:
                make_srd(A, SRD_W, P_WV, 640 * 12288)
            else:
                A(f"s_cmp_eq_u32 {s(self.S_TYPE)}, 0")
                A(f"s_cselect_b32 {s(SRD_W)}, {s(P_WK)}, {s(P_WQ)}")
                A(f"s_cselect_b32 {s(SRD_W + 1)}, {s(P_WK + 1)}, {s(P_WQ + 1)}")
                A(f"s_mov_b32 {s(SRD_W + 2)}, {640 * 12288}")
                A(f"s_mov_b32 {s(SRD_W + 3)}, 0x20000")
        WL.add(srd, S_C0, 12288, 4, 20, self.wreg)

    def post_weights(self):
        self.csum(self.V_CS)

    def flag_soff(self, dst, rl, rs):
        A = self.A
        row_of(A, dst, rl, rs, flag_row(F_XIN))
        A(f"s_lshl_b32 {s(T)}, {s(rl)}, 5")
        A(f"s_add_u32 {s(T)}, {s(T)}, 7")
        A(f"v_min_u32 {v(V_FO)}, {s(T)}, {v(V_LANE)}")
        A(f"v_lshlrev_b32 {v(V_FO)}, 2, {v(V_FO)}")

    def dma(self, rl, rs, ldsreg):
        A = self.A
        A(f"s_lshl_b32 {s(T)}, {s(rl)}, 6")
        A(f"s_add_u32 {s(T)}, {s(T)}, {s(rs)}")
        A(f"s_mul_i32 {s(T)}, {s(T)}, {XSEGS}")
        A(f"s_add_u32 {s(T)}, {s(T)}, {XIN}")
        self.stats_dma(T, ldsreg)
        A(f"s_mul_i32 {s(T + 1)}, {s(S_WAVE)}, 10240")
        A(f"s_add_u32 {s(T)}, {s(T)}, {s(T + 1)}")
        A(f"s_add_u32 {s(T + 1)}, {s(T + 1)}, {s(ldsreg)}")
        self.lin_dma(T, T + 1, 10)

    def pre_mfma(self):
        A = self.A
        A(f"v_add_u32 {v(self.V_SA)}, {s(S_BUF)}, {v(self.V_SA0)}")
        stats_consume(A, self.V_SA, self.V_SR, V_T)

    def mid(self):
        stats_reduce(self.A, self.V_SR, self.V_ST, V_T)

    def epilogue(self):
        A = self.A
        lab = A.newlabel("l0")
        A(f"s_mul_i32 {s(T + 2)}, {s(S_S)}, {QKV_SEG}")
        A(f"s_add_u32 {s(T + 2)}, {s(T + 2)}, {s(self.S_OUT)}")
        A(f"s_cmp_eq_u32 {s(S_L)}, 0")
        A(f"s_cbranch_scc1 {lab}")
        if self.swap:
            A(f"ds_write_b64 {v(self.V_SW)}, {v(self.V_ST, 2)}")
            A(f"ds_write_b64 {v(self.V_SW)}, {v(self.V_ST + 2, 2)} offset:128")
            A("s_waitcnt lgkmcnt(0)")
            for tt in range(2):
                for hf in range(2):
                    A(f"ds_read_b128 {v(self.V_SV + tt * 8 + hf * 4, 4)}, {v(self.V_SRD)} offset:{tt * 128 + hf * 16}")
            A("s_waitcnt lgkmcnt(0)")
            for tau in range(4):
                for tt in range(2):
                    for r in range(4):
                        x = self.acc(tau, tt) + r
                        A(f"v_fma_f32 {v(x)}, -{v(self.V_SV + tt * 8 + 2 * r)}, {v(self.V_CS + 4 * tau)}, {v(x)}")
                for tt in range(2):
                    for r in range(4):
                        x = self.acc(tau, tt) + r
                        A(f"v_mul_f32 {v(x)}, {v(x)}, {v(self.V_SV + tt * 8 + 2 * r + 1)}")
        else:
            for tau in range(4):
                for tt in range(2):
                    for r in range(4):
                        x = self.acc(tau, tt) + r
                        A(f"v_fma_f32 {v(x)}, -{v(self.V_ST + 2 * tt)}, {v(self.V_CS + 4 * tau + r)}, {v(x)}")
                for tt in range(2):
                    for r in range(4):
                        x = self.acc(tau, tt) + r
                        A(f"v_mul_f32 {v(x)}, {v(x)}, {v(self.V_ST + 2 * tt + 1)}")
        A.label(lab)
        for b in range(4):
            if self.swap:
                lo, hi = self.acc(b, 0), self.acc(b, 1)
            else:
                p, tt = b >> 1, b & 1
                lo, hi = self.acc(2 * p, tt), self.acc(2 * p + 1, tt)
            pk = self.V_PK + 4 * b
            A(f"v_cvt_pk_bf16_f32 {v(pk)}, {v(lo)}, {v(lo + 1)}")
            A(f"v_cvt_pk_bf16_f32 {v(pk + 1)}, {v(lo + 2)}, {v(lo + 3)}")
            A(f"v_cvt_pk_bf16_f32 {v(pk + 2)}, {v(hi)}, {v(hi + 1)}")
            A(f"v_cvt_pk_bf16_f32 {v(pk + 3)}, {v(hi + 2)}, {v(hi + 3)}")
            A(f"buffer_store_dwordx4 {v(pk, 4)}, {v(V_L16)}, {WS}, {s(T + 2)} offen offset:{b * 1024} sc1")
        set_flag(A, s(self.S_FK), self.S_WG)


class WO(Gemm):
    name = "WO"
    NT = 2
    nk = 32
    bufsz = 65536
    jchk = 7
    nstores = 4
    S_KG, S_CG, S_OUT = S_K, S_K + 1, S_K + 2
    V_SO = 80

    def setup(self):
        A = self.A
        A(f"s_mul_i32 {s(self.S_KG)}, {s(S_ROLE)}, 52429")
        A(f"s_lshr_b32 {s(self.S_KG)}, {s(self.S_KG)}, 18")
        A(f"s_mul_i32 {s(T)}, {s(self.S_KG)}, 5")
        A(f"s_sub_u32 {s(self.S_CG)}, {s(S_ROLE)}, {s(T)}")
        A(f"s_lshl_b32 {s(T)}, {s(self.S_KG)}, 5")
        A(f"s_mul_i32 {s(T + 1)}, {s(T)}, 43691")
        A(f"s_lshr_b32 {s(T + 1)}, {s(T + 1)}, 18")
        A(f"s_add_u32 {s(T)}, {s(T)}, 31")
        A(f"s_mul_i32 {s(T)}, {s(T)}, 43691")
        A(f"s_lshr_b32 {s(T)}, {s(T)}, 18")
        A(f"v_add_u32 {v(V_FO)}, {s(T + 1)}, {v(V_LANE)}")
        A(f"v_min_u32 {v(V_FO)}, {s(T)}, {v(V_FO)}")
        A(f"v_lshlrev_b32 {v(V_FO)}, 2, {v(V_FO)}")
        A(f"v_and_b32 {v(V_T)}, 15, {v(V_LANE)}")
        A(f"v_lshrrev_b32 {v(V_T + 1)}, 2, {v(V_T)}")
        A(f"v_mul_u32_u24 {v(self.V_SO)}, 10240, {v(V_T + 1)}")
        A(f"v_and_b32 {v(V_T)}, 3, {v(V_LANE)}")
        A(f"v_lshl_add_u32 {v(self.V_SO)}, {v(V_T)}, 4, {v(self.V_SO)}")
        A(f"v_lshrrev_b32 {v(V_T)}, 4, {v(V_LANE)}")
        A(f"v_lshl_add_u32 {v(self.V_SO)}, {v(V_T)}, 6, {v(self.V_SO)}")
        A(f"s_lshl_b32 {s(T)}, {s(self.S_CG)}, 2")
        A(f"s_add_u32 {s(T)}, {s(T)}, {s(S_WAVE)}")
        A(f"s_lshl_b32 {s(S_C0 + 1)}, {s(T)}, 6")
        A(f"s_lshl_b32 {s(T)}, {s(T)}, 9")
        A(f"s_mul_i32 {s(self.S_OUT)}, {s(self.S_KG)}, 81920")
        A(f"s_add_u32 {s(self.S_OUT)}, {s(self.S_OUT)}, {s(T)}")
        A(f"s_add_u32 {s(self.S_OUT)}, {s(self.S_OUT)}, {WOP}")

    def init_stores(self):
        zero_flags(self.A, flag_row(F_WOP), S_IDX)

    def weights(self, WL):
        A = self.A
        A(f"s_mul_i32 {s(S_C0)}, {s(self.S_KG)}, {1024 * 1280}")
        A(f"s_add_u32 {s(S_C0)}, {s(S_C0)}, {s(S_C0 + 1)}")
        WL.add(lambda: make_srd(A, SRD_W, P_WO, 6144 * 1280), S_C0, 1280, 2, 32, self.wreg)

    def flag_soff(self, dst, rl, rs):
        row_of(self.A, dst, rl, rs, flag_row(F_O))

    def dma(self, rl, rs, ldsreg):
        A = self.A
        A(f"s_mul_i32 {s(T)}, {s(rs)}, {QKV_SEG}")
        A(f"s_lshl_b32 {s(T + 1)}, {s(self.S_KG)}, 16")
        A(f"s_add_u32 {s(T)}, {s(T)}, {s(T + 1)}")
        A(f"s_lshl_b32 {s(T + 1)}, {s(S_WAVE)}, 14")
        A(f"s_add_u32 {s(T)}, {s(T)}, {s(T + 1)}")
        A(f"s_add_u32 {s(T)}, {s(T)}, {OX}")
        A(f"s_add_u32 {s(T + 1)}, {s(T + 1)}, {s(ldsreg)}")
        self.lin_dma(T, T + 1, 16)

    def epilogue(self):
        A = self.A
        A(f"s_mul_i32 {s(T + 2)}, {s(S_S)}, {WOP_SEG}")
        A(f"s_add_u32 {s(T + 2)}, {s(T + 2)}, {s(self.S_OUT)}")
        A(f"s_add_u32 {s(T + 3)}, {s(T + 2)}, 40960")
        for tau in range(2):
            for tt in range(2):
                A(f"buffer_store_dwordx4 {v(self.acc(tau, tt), 4)}, {v(self.V_SO)}, {WS}, {s(T + 2 + tt)} offen offset:{tau * 256} sc1")
        set_flag(A, flag_row(F_WOP))


class W1(Gemm):
    name = "W1"
    pin = True
    V_C0, V_PK, V_TM = 80, 84, 96
    S_C1 = S_K

    def setup(self):
        A = self.A
        A(f"v_min_u32 {v(V_FO)}, 31, {v(V_LANE)}")
        A(f"v_lshlrev_b32 {v(V_FO)}, 2, {v(V_FO)}")
        A(f"v_mov_b32 {v(self.V_C0)}, {f32(GELU_C0)}")
        A(f"v_mov_b32 {v(self.V_C0 + 1)}, {f32(GELU_C1)}")
        A(f"s_mov_b32 {s(self.S_C1)}, {f32(GELU_C1)}")

    def init_stores(self):
        A = self.A
        zero_flags(A, flag_row(F_H), S_IDX)
        for i in range(4):
            A(f"v_mov_b32 {v(self.V_PK + i)}, 0")
        A(f"s_lshl_b32 {s(T)}, {s(S_IDX)}, 11")
        for l in range(2):
            for gseg in (0, 65):
                A(f"s_add_u32 {s(T + 1)}, {s(T)}, {HB + (l * 66 + gseg) * XSEG}")
                for tt in range(2):
                    A(f"buffer_store_dwordx4 {v(self.V_PK, 4)}, {v(V_L16)}, {WS}, {s(T + 1)} offen offset:{tt * 1024} sc1")

    def weights(self, WL):
        A = self.A
        A(f"s_lshl_b32 {s(S_C0)}, {s(S_IDX)}, 6")
        WL.add(lambda: make_srd(A, SRD_W, P_W1, 640 * 1280), S_C0, 1280, 2, 20, self.wreg)

    def flag_soff(self, dst, rl, rs):
        row_of(self.A, dst, rl, rs, flag_row(F_R1))

    def dma(self, rl, rs, ldsreg):
        A = self.A
        A(f"s_lshl_b32 {s(T)}, {s(rl)}, 6")
        A(f"s_add_u32 {s(T)}, {s(T)}, {s(rs)}")
        A(f"s_mul_i32 {s(T)}, {s(T)}, {XSEG}")
        A(f"s_mul_i32 {s(T + 1)}, {s(S_WAVE)}, 10240")
        A(f"s_add_u32 {s(T)}, {s(T)}, {s(T + 1)}")
        A(f"s_add_u32 {s(T)}, {s(T)}, {ZB}")
        A(f"s_add_u32 {s(T + 1)}, {s(T + 1)}, {s(ldsreg)}")
        self.lin_dma(T, T + 1, 10)

    def out_base(self):
        A = self.A
        A(f"s_mul_i32 {s(T + 2)}, {s(S_L)}, 66")
        A(f"s_add_u32 {s(T + 2)}, {s(T + 2)}, {s(S_S)}")
        A(f"s_mul_i32 {s(T + 2)}, {s(T + 2)}, {XSEG}")
        A(f"s_lshl_b32 {s(T + 3)}, {s(S_IDX)}, 11")
        A(f"s_add_u32 {s(T + 2)}, {s(T + 2)}, {s(T + 3)}")
        A(f"s_add_u32 {s(T + 2)}, {s(T + 2)}, {HB + XSEG}")
    out_kind = F_H

    def correct(self): pass

    def epilogue(self):
        A = self.A
        self.out_base()
        self.correct()
        vals = []
        for tt in range(2):
            for tau in range(2):
                vals += [self.acc(tau, tt) + r for r in range(4)]
        gelu_pack(A, vals, self.V_PK, [self.V_TM + i for i in range(17)], self.V_C0, self.S_C1)
        for tt in range(2):
            A(f"buffer_store_dwordx4 {v(self.V_PK + 4 * tt, 4)}, {v(V_L16)}, {WS}, {s(T + 2)} offen offset:{tt * 1024} sc1")
        set_flag(A, flag_row(self.out_kind))


class W3(W1, FoldMixin):
    name = "W3"
    pin = False
    jchk = 7
    bufsz = XSEGS
    out_kind = F_G
    V_CS, V_SR, V_ST, V_SA0, V_SA = 116, 124, 144, 148, 149

    def setup(self):
        A = self.A
        A(f"v_min_u32 {v(V_FO)}, 19, {v(V_LANE)}")
        A(f"v_lshlrev_b32 {v(V_FO)}, 2, {v(V_FO)}")
        A(f"v_mov_b32 {v(self.V_C0)}, {f32(GELU_C0)}")
        A(f"s_mov_b32 {s(self.S_C1)}, {f32(GELU_C1)}")
        self.sa_setup(self.V_SA0)

    def init_stores(self):
        zero_flags(self.A, flag_row(F_G), S_IDX)

    def weights(self, WL):
        A = self.A
        A(f"s_lshl_b32 {s(S_C0)}, {s(S_IDX)}, 6")
        WL.add(lambda: make_srd(A, SRD_W, P_W3, 640 * 3072), S_C0, 3072, 2, 20, self.wreg)

    def post_weights(self):
        self.csum(self.V_CS)

    def flag_soff(self, dst, rl, rs):
        row_of(self.A, dst, rl, rs, flag_row(F_X1))

    def dma(self, rl, rs, ldsreg):
        A = self.A
        A(f"s_lshl_b32 {s(T)}, {s(rl)}, 6")
        A(f"s_add_u32 {s(T)}, {s(T)}, {s(rs)}")
        A(f"s_mul_i32 {s(T)}, {s(T)}, {XSEGS}")
        A(f"s_add_u32 {s(T)}, {s(T)}, {X1B}")
        self.stats_dma(T, ldsreg)
        A(f"s_mul_i32 {s(T + 1)}, {s(S_WAVE)}, 10240")
        A(f"s_add_u32 {s(T)}, {s(T)}, {s(T + 1)}")
        A(f"s_add_u32 {s(T + 1)}, {s(T + 1)}, {s(ldsreg)}")
        self.lin_dma(T, T + 1, 10)

    def pre_mfma(self):
        A = self.A
        A(f"v_add_u32 {v(self.V_SA)}, {s(S_BUF)}, {v(self.V_SA0)}")
        stats_consume(A, self.V_SA, self.V_SR, V_T)

    def mid(self):
        stats_reduce(self.A, self.V_SR, self.V_ST, V_T)

    def out_base(self):
        A = self.A
        A(f"s_lshl_b32 {s(T + 2)}, {s(S_L)}, 6")
        A(f"s_add_u32 {s(T + 2)}, {s(T + 2)}, {s(S_S)}")
        A(f"s_mul_i32 {s(T + 2)}, {s(T + 2)}, {GSEG}")
        A(f"s_lshl_b32 {s(T + 3)}, {s(S_IDX)}, 11")
        A(f"s_add_u32 {s(T + 2)}, {s(T + 2)}, {s(T + 3)}")
        A(f"s_add_u32 {s(T + 2)}, {s(T + 2)}, {GB}")

    def correct(self):
        A = self.A
        for tau in range(2):
            for tt in range(2):
                for r in range(4):
                    x = self.acc(tau, tt) + r
                    A(f"v_fma_f32 {v(x)}, -{v(self.V_ST + 2 * tt)}, {v(self.V_CS + 4 * tau + r)}, {v(x)}")
        for tau in range(2):
            for tt in range(2):
                for r in range(4):
                    x = self.acc(tau, tt) + r
                    A(f"v_mul_f32 {v(x)}, {v(x)}, {v(self.V_ST + 2 * tt + 1)}")


def unpack8(A, dst, src):
    for i in range(4):
        A(f"v_lshlrev_b32 {v(dst + 2 * i)}, 16, {v(src + i)}")
        A(f"v_and_b32 {v(dst + 2 * i + 1)}, 0xffff0000, {v(src + i)}")


def stat_addr_setup(A, dst):
    A(f"v_lshrrev_b32 {v(V_T)}, 5, {v(V_LANE)}")
    A(f"v_and_b32 {v(V_T + 1)}, 15, {v(V_LANE)}")
    A(f"v_lshlrev_b32 {v(dst)}, 3, {v(V_T + 1)}")
    A(f"v_lshl_add_u32 {v(dst)}, {v(V_T)}, 7, {v(dst)}")


class W2(Gemm):
    name = "W2"
    nstores = 3
    V_SH = 80
    V_Y = 84
    V_YU = 96
    V_PK = 112
    V_SAD = 82

    def setup(self):
        A = self.A
        A(f"v_min_u32 {v(V_FO)}, 19, {v(V_LANE)}")
        A(f"v_lshlrev_b32 {v(V_FO)}, 2, {v(V_FO)}")
        A(f"s_lshr_b32 {s(T)}, {s(S_WAVE)}, 1")
        A(f"s_add_u32 {s(T)}, {s(T)}, 1")
        A(f"s_sub_u32 {s(T + 1)}, 32, {s(T)}")
        A(f"s_add_u32 {s(T)}, {s(T)}, 32")
        A(f"s_bitcmp1_b32 {s(S_WAVE)}, 0")
        A(f"s_cselect_b32 {s(T)}, {s(T)}, {s(T + 1)}")
        for tt in range(2):
            A(f"v_and_b32 {v(V_T)}, 15, {v(V_LANE)}")
            A(f"v_add_u32 {v(V_T)}, {s(T)}, {v(V_T)}")
            if tt:
                A(f"v_add_u32 {v(V_T)}, 16, {v(V_T)}")
            d = self.V_SH + tt
            A(f"v_lshrrev_b32 {v(V_T + 1)}, 5, {v(V_T)}")
            A(f"v_mul_u32_u24 {v(d)}, {XSEG}, {v(V_T + 1)}")
            A(f"v_bfe_u32 {v(V_T + 1)}, {v(V_T)}, 4, 1")
            A(f"v_lshl_add_u32 {v(d)}, {v(V_T + 1)}, 10, {v(d)}")
            A(f"v_and_b32 {v(V_T + 1)}, 15, {v(V_T)}")
            A(f"v_lshl_add_u32 {v(d)}, {v(V_T + 1)}, 4, {v(d)}")
            A(f"v_lshrrev_b32 {v(V_T + 1)}, 4, {v(V_LANE)}")
            A(f"v_lshl_add_u32 {v(d)}, {v(V_T + 1)}, 8, {v(d)}")
        stat_addr_setup(A, self.V_SAD)

    def init_stores(self):
        zero_flags(self.A, flag_row(F_X1), S_IDX)

    def weights(self, WL):
        A = self.A
        A(f"s_lshl_b32 {s(S_C0)}, {s(S_IDX)}, 6")
        WL.add(lambda: make_srd(A, SRD_W, P_W2, 640 * 1280), S_C0, 1280, 2, 20, self.wreg)

    def flag_soff(self, dst, rl, rs):
        A = self.A
        A(f"s_add_u32 {s(T)}, {s(rs)}, 1")
        A(f"s_min_u32 {s(T)}, {s(T)}, 63")
        row_of(A, dst, rl, T, flag_row(F_H))

    def dma(self, rl, rs, ldsreg):
        A = self.A
        A(f"s_mul_i32 {s(T)}, {s(rl)}, 66")
        A(f"s_add_u32 {s(T)}, {s(T)}, {s(rs)}")
        A(f"s_mul_i32 {s(T)}, {s(T)}, {XSEG}")
        A(f"s_mul_i32 {s(T + 1)}, {s(S_WAVE)}, 10240")
        A(f"s_add_u32 {s(T)}, {s(T)}, {s(T + 1)}")
        A(f"s_add_u32 {s(T)}, {s(T)}, {HB}")
        A(f"s_add_u32 {s(T + 1)}, {s(T + 1)}, {s(ldsreg)}")
        for jl in range(5):
            for tt in range(2):
                A(f"s_add_u32 m0, {s(T + 1)}, {(jl * 2 + tt) * 1024}")
                A(f"s_add_u32 {s(T + 3)}, {s(T)}, {jl * 2048}")
                A(f"buffer_load_dwordx4 {v(self.V_SH + tt)}, {WS}, {s(T + 3)} offen sc1 lds")

    def early(self):
        A = self.A
        A(f"s_lshl_b32 {s(T)}, {s(S_L)}, 6")
        A(f"s_add_u32 {s(T)}, {s(T)}, {s(S_S)}")
        A(f"s_mul_i32 {s(T)}, {s(T)}, {XSEG}")
        A(f"s_lshl_b32 {s(T + 1)}, {s(S_IDX)}, 11")
        A(f"s_add_u32 {s(T)}, {s(T)}, {s(T + 1)}")
        A(f"s_add_u32 {s(T)}, {s(T)}, {YB}")
        for tt in range(2):
            A(f"buffer_load_dwordx4 {v(self.V_Y + 4 * tt, 4)}, {v(V_P16)}, {WS}, {s(T)} offen offset:{tt * 1024} sc1")
        return 2

    def epilogue(self):
        A = self.A
        A(f"s_lshl_b32 {s(T + 2)}, {s(S_L)}, 6")
        A(f"s_add_u32 {s(T + 2)}, {s(T + 2)}, {s(S_S)}")
        A(f"s_mul_i32 {s(T + 2)}, {s(T + 2)}, {XSEGS}")
        A(f"s_add_u32 {s(T + 2)}, {s(T + 2)}, {X1B}")
        A(f"s_lshl_b32 {s(T + 3)}, {s(S_IDX)}, 8")
        A(f"s_add_u32 {s(T + 3)}, {s(T + 3)}, {s(T + 2)}")
        A(f"s_add_u32 {s(T + 3)}, {s(T + 3)}, 40960")
        A(f"s_lshl_b32 {s(T + 4)}, {s(S_IDX)}, 11")
        A(f"s_add_u32 {s(T + 2)}, {s(T + 2)}, {s(T + 4)}")
        xs = []
        for tt in range(2):
            unpack8(A, self.V_YU + 8 * tt, self.V_Y + 4 * tt)
        for tt in range(2):
            vals = [self.acc(0, tt) + r for r in range(4)] + [self.acc(1, tt) + r for r in range(4)]
            for i in range(0, 8, 2):
                rnd2(A, V_T, vals[i], vals[i + 1])
            for i in range(8):
                A(f"v_add_f32 {v(vals[i])}, {v(vals[i])}, {v(self.V_YU + 8 * tt + i)}")
            for i in range(0, 8, 2):
                rnd2(A, self.V_PK + 4 * tt + i // 2, vals[i], vals[i + 1])
            A(f"buffer_store_dwordx4 {v(self.V_PK + 4 * tt, 4)}, {v(V_L16)}, {WS}, {s(T + 2)} offen offset:{tt * 1024} sc1")
            xs.append(vals)
        stats_produce(A, xs[0], xs[1], V_T, self.V_SAD, T + 3)
        set_flag(A, flag_row(F_X1))


def row_helpers(A):
    def lane_reduce(r):
        for k in range(2):
            A(f"v_add_f32_dpp {v(r + k)}, {v(r + k)}, {v(r + k)} row_ror:4 row_mask:0xf bank_mask:0xf")
        for k in range(2):
            A(f"v_add_f32_dpp {v(r + k)}, {v(r + k)}, {v(r + k)} row_ror:8 row_mask:0xf bank_mask:0xf")
        for op in ("v_permlane32_swap_b32", "v_permlane16_swap_b32"):
            for k in range(2):
                A(f"v_mov_b32 {v(r + 2 + k)}, {v(r + k)}")
            for k in range(2):
                A(f"{op} {v(r + k)}, {v(r + 2 + k)}")
            for k in range(2):
                A(f"v_add_f32 {v(r + k)}, {v(r + k)}, {v(r + 2 + k)}")

    def sums(vals, r):
        A(f"v_pk_add_f32 {v(r + 4, 2)}, {v(vals[0], 2)}, {v(vals[2], 2)}")
        A(f"v_pk_mul_f32 {v(r + 2, 2)}, {v(vals[0], 2)}, {v(vals[0], 2)}")
        for i in range(2, len(vals), 2):
            if i >= 4:
                A(f"v_pk_add_f32 {v(r + 4, 2)}, {v(r + 4, 2)}, {v(vals[i], 2)}")
            A(f"v_pk_fma_f32 {v(r + 2, 2)}, {v(vals[i], 2)}, {v(vals[i], 2)}, {v(r + 2, 2)}")
        A(f"v_add_f32 {v(r)}, {v(r + 4)}, {v(r + 5)}")
        A(f"v_add_f32 {v(r + 1)}, {v(r + 2)}, {v(r + 3)}")

    def norm(vals, pks, st):
        for i in range(0, len(vals), 2):
            A(f"v_pk_add_f32 {v(vals[i], 2)}, {v(vals[i], 2)}, {v(st, 2)} op_sel_hi:[1,0] neg_lo:[0,1] neg_hi:[0,1]")
        for i in range(0, len(vals), 2):
            rnd2(A, V_T + (i & 2), vals[i], vals[i + 1])
        for i in range(0, len(vals), 2):
            A(f"v_pk_mul_f32 {v(vals[i], 2)}, {v(vals[i], 2)}, {v(st, 2)} op_sel:[0,1] op_sel_hi:[1,1]")
        for i in range(0, len(vals), 2):
            rnd2(A, pks[i // 2], vals[i], vals[i + 1])

    def store_pair(pk, vaddr, soff, off=0):
        A(f"v_permlane16_swap_b32 {v(pk)}, {v(pk + 2)}")
        A(f"v_permlane16_swap_b32 {v(pk + 1)}, {v(pk + 3)}")
        A(f"buffer_store_dwordx4 {v(pk, 4)}, {v(vaddr)}, {WS}, {s(soff)} offen offset:{off} sc1")

    return lane_reduce, sums, norm, store_pair


def gen_r0(A, cfg, nwg, s_worker, sx, STR=12):
    lane_reduce, sums, norm, store_pair = row_helpers(A)
    V_ST, V_A = 24, 32
    V_RAW, V_RU, V_NP, V_SO1, V_XR = V_A, V_A + 40, V_A + 80, V_A + 100, V_A + 101
    S_Q = S_NL
    A(f"s_and_b32 {s(S_Q)}, {s(s_worker)}, 7")
    A(f"s_lshr_b32 {s(S_NS)}, {s(s_worker)}, 3")
    dq, g_, c_ = V_T, V_T + 1, V_T + 2
    A(f"v_lshrrev_b32 {v(dq)}, 4, {v(V_LANE)}")
    A(f"v_bfe_u32 {v(g_)}, {v(V_LANE)}, 2, 2")
    A(f"v_and_b32 {v(c_)}, 3, {v(V_LANE)}")
    A(f"s_and_b32 {s(T + 1)}, {s(S_Q)}, 3")
    A(f"s_lshl_b32 {s(T)}, {s(S_Q)}, 8")
    A(f"v_lshlrev_b32 {v(V_SO1)}, 11, {v(dq)}")
    A(f"v_lshrrev_b32 {v(V_T + 3)}, 1, {v(dq)}")
    A(f"v_lshlrev_b32 {v(V_SO1)}, 11, {v(V_T + 3)}")
    A(f"v_and_b32 {v(V_T + 3)}, 1, {v(dq)}")
    A(f"v_lshl_add_u32 {v(V_SO1)}, {v(V_T + 3)}, 12, {v(V_SO1)}")
    A(f"v_add_u32 {v(V_T + 3)}, {s(T + 1)}, {v(g_)}")
    A(f"v_and_b32 {v(V_T + 3)}, 3, {v(V_T + 3)}")
    A(f"v_lshl_add_u32 {v(V_SO1)}, {v(V_T + 3)}, 6, {v(V_SO1)}")
    A(f"v_lshl_add_u32 {v(V_SO1)}, {v(c_)}, 4, {v(V_SO1)}")
    A(f"v_add_u32 {v(V_SO1)}, {s(T)}, {v(V_SO1)}")
    A(f"s_lshl_b32 {s(T)}, {s(S_Q)}, 2")
    A(f"v_add_u32 {v(V_T + 3)}, {s(T)}, {v(c_)}")
    A(f"v_mul_u32_u24 {v(V_XR)}, 1280, {v(V_T + 3)}")
    A(f"v_lshl_add_u32 {v(V_XR)}, {v(dq)}, 5, {v(V_XR)}")
    A(f"v_lshl_add_u32 {v(V_XR)}, {v(g_)}, 3, {v(V_XR)}")
    make_srd(A, SRD_W, P_X, 2048 * 1280)
    S_Z = S_DEF
    A(f"s_mov_b32 {s(S_Z)}, 0")

    def load(raw, seg_reg):
        A(f"s_mul_i32 {s(T + 2)}, {s(seg_reg)}, {32 * 1280}")
        for G in range(10):
            A(f"buffer_load_dwordx2 {v(raw + 2 * G, 2)}, {v(V_XR)}, {s(SRD_W, 4)}, {s(T + 2)} offen offset:{G * 128}")

    def body(raw, nxt, first):
        A(f"s_add_u32 {s(T + 6)}, {s(S_NS)}, {STR}")
        A(f"s_min_u32 {s(T + 6)}, {s(T + 6)}, 63")
        load(nxt, T + 6)
        A(f"s_mul_i32 {s(T + 4)}, {s(S_NS)}, {XSEG}")
        A(f"s_add_u32 {s(T + 4)}, {s(T + 4)}, {X0R}")
        A(f"s_mul_i32 {s(T + 5)}, {s(S_NS)}, {XSEGS}")
        A(f"s_add_u32 {s(T + 5)}, {s(T + 5)}, {XIN}")
        A("s_waitcnt vmcnt(10)")
        if not first:
            flag_store(A, S_FADDR)
        for i in range(20):
            A(f"v_lshlrev_b32 {v(V_RU + 2 * i)}, 16, {v(raw + i)}")
            A(f"v_and_b32 {v(V_RU + 2 * i + 1)}, 0xffff0000, {v(raw + i)}")
        vals = [V_RU + i for i in range(40)]
        sums(vals, V_ST)
        lane_reduce(V_ST)
        finish_stats(A, V_ST, V_ST + 1, V_T)
        norm(vals, [V_NP + i for i in range(20)], V_ST)
        for p in range(5):
            A(f"s_add_u32 {s(T + 3)}, {s(T + 5)}, {p * 8192}")
            store_pair(V_NP + 4 * p, V_SO1, T + 3)
        for p in range(5):
            A(f"s_add_u32 {s(T + 3)}, {s(T + 4)}, {p * 8192}")
            store_pair(raw + 4 * p, V_SO1, T + 3)
        flag_addr(A, S_FADDR, flag_row(F_XIN), S_Q, S_Z, S_NS)
        A(f"s_add_u32 {s(S_NS)}, {s(S_NS)}, {STR}")

    RA, RB = V_RAW, V_RAW + 20
    load(RA, S_NS)
    body(RA, RB, True)
    init_barrier_wait(A, V_T, nwg, cfg)
    flag_store(A, S_FADDR)
    body(RB, RA, True)
    A.label("R0_LOOP" + sx)
    body(RA, RB, False)
    A(f"s_cmp_ge_u32 {s(S_NS)}, 64")
    A(f"s_cbranch_scc1 R0_END{sx}")
    body(RB, RA, False)
    A(f"s_cmp_lt_u32 {s(S_NS)}, 64")
    A(f"s_cbranch_scc1 R0_LOOP{sx}")
    A.label("R0_END" + sx)
    A("s_waitcnt vmcnt(0)")
    flag_store(A, S_FADDR)


def gen_w4(A, cfg, nwg):
    V_IN, V_ACC, V_RD, V_XX, V_XU, V_PK = 16, 112, 144, 176, 184, 200
    V_SAD, V_OA, V_LW, V_LR = 204, 205, 206, 207
    S_J, S_TT = S_K, S_K + 1
    SRD_O = 72
    A.label("ROLE_W4")
    base_setup(A)
    if cfg.wgp2:
        A(f"v_min_u32 {v(V_FO)}, 47, {v(V_LANE)}")
    else:
        A(f"v_min_u32 {v(V_FO)}, 11, {v(V_LANE)}")
        A(f"s_mul_i32 {s(T)}, {s(S_WAVE)}, 12")
        A(f"v_add_u32 {v(V_FO)}, {s(T)}, {v(V_FO)}")
    A(f"v_lshlrev_b32 {v(V_FO)}, 2, {v(V_FO)}")
    A(f"s_and_b32 {s(T)}, {s(S_WAVE)}, 1")
    A(f"s_lshl_b32 {s(S_J)}, {s(S_ROLE)}, 1")
    A(f"s_add_u32 {s(S_J)}, {s(S_J)}, {s(T)}")
    A(f"s_lshr_b32 {s(S_TT)}, {s(S_WAVE)}, 1")
    A(f"v_and_b32 {v(V_T)}, 15, {v(V_LANE)}")
    A(f"v_lshlrev_b32 {v(V_SAD)}, 3, {v(V_T)}")
    A(f"s_lshl_b32 {s(T)}, {s(S_TT)}, 4")
    A(f"v_add_u32 {v(V_T)}, {s(T)}, {v(V_T)}")
    A(f"v_mul_u32_u24 {v(V_OA)}, 1280, {v(V_T)}")
    A(f"v_lshrrev_b32 {v(V_T)}, 4, {v(V_LANE)}")
    A(f"v_lshl_add_u32 {v(V_OA)}, {v(V_T)}, 3, {v(V_OA)}")
    A(f"s_lshl_b32 {s(T)}, {s(S_J)}, 6")
    A(f"v_add_u32 {v(V_OA)}, {s(T)}, {v(V_OA)}")
    make_srd(A, SRD_O, P_OUT, 2048 * 1280)
    zero_flags(A, flag_row(F_XIN), S_IDX, layers=(1,))
    init_barrier_arrive(A, V_T)
    if cfg.late_w:
        init_barrier_wait(A, V_T, nwg, cfg)
        for _ in range(cfg.late_w - 1 if cfg.late_w != 9 else 0):
            A("s_sleep 64")
        if cfg.late_w == 9:
            A(f"s_mov_b32 {s(T + 7)}, {flag_row(F_K)}")
            A(f"v_mov_b32 {v(V_T + 4)}, 0")
            flag_block(A, T + 7, vo=V_T + 4)
    for _ in range(cfg.dly_w):
        A("s_sleep 64")
    WL = WLoader(A, V_T, T + 3)
    A(f"s_mul_i32 {s(S_C0)}, {s(S_WAVE)}, {384 * 1280}")
    A(f"s_lshl_b32 {s(T)}, {s(S_ROLE)}, 7")
    A(f"s_add_u32 {s(S_C0)}, {s(S_C0)}, {s(T)}")
    WL.add(lambda: make_srd(A, SRD_W, P_W4, 1536 * 1280), S_C0, 1280, 4, 12, lambda tau, j: ("a", (tau * 12 + j) * 4))
    WL.emit(V_LANE)
    A("s_barrier")
    if not cfg.late_w:
        init_barrier_wait(A, V_T, nwg, cfg)
    def inreg(st_, b):
        if st_ == 0:
            return v(V_IN + 4 * b, 4)
        return a(192 + 4 * b, 4) if b < 16 else v(208 + 4 * (b - 16), 4)
    XXS = (V_XX, 240)
    S_CH = S_K + 2
    A(f"s_lshl_b32 {s(S_CH)}, {s(S_J)}, 1")
    A(f"s_add_u32 {s(S_CH)}, {s(S_CH)}, {s(S_TT)}")
    A(f"s_lshl_b32 {s(S_CH)}, {s(S_CH)}, 10")

    def loads(st_, rl, rs):
        L = []
        L.append(f"s_lshl_b32 {s(T + 6)}, {s(rl)}, 6")
        L.append(f"s_add_u32 {s(T + 6)}, {s(T + 6)}, {s(rs)}")
        L.append(f"s_mul_i32 {s(T + 5)}, {s(T + 6)}, {GSEG}")
        L.append(f"s_mul_i32 {s(T)}, {s(S_WAVE)}, 24576")
        L.append(f"s_add_u32 {s(T + 5)}, {s(T + 5)}, {s(T)}")
        L.append(f"s_add_u32 {s(T + 5)}, {s(T + 5)}, {GB}")
        for b in range(24):
            if b % 4 == 0:
                L.append(f"s_add_u32 {s(T + 3)}, {s(T + 5)}, {b * 1024}")
            L.append(f"buffer_load_dwordx4 {inreg(st_, b)}, {v(V_L16)}, {WS}, {s(T + 3)} offen offset:{(b % 4) * 1024} sc1")
        L.append(f"s_mul_i32 {s(T)}, {s(T + 6)}, {XSEGS}")
        L.append(f"s_add_u32 {s(T)}, {s(T)}, {s(S_CH)}")
        L.append(f"s_add_u32 {s(T)}, {s(T)}, {X1B}")
        L.append(f"buffer_load_dwordx4 {v(XXS[st_], 4)}, {v(V_L16)}, {WS}, {s(T)} offen sc1")
        L.append(f"s_mul_i32 {s(T)}, {s(T + 6)}, {XSEG}")
        L.append(f"s_add_u32 {s(T)}, {s(T)}, {s(S_CH)}")
        L.append(f"s_add_u32 {s(T)}, {s(T)}, {XM}")
        L.append(f"buffer_load_dwordx4 {v(XXS[st_] + 4, 4)}, {v(V_P16)}, {WS}, {s(T)} offen sc1")
        return L

    def acc(tau, tt):
        return V_ACC + (tt * 4 + tau) * 4

    def kstep(st_, j, fill=None, rate=0):
        for tt in range(2):
            for tau in range(4):
                c = "0" if j == 0 else v(acc(tau, tt), 4)
                A(f"v_mfma_f32_16x16x32_bf16 {v(acc(tau, tt), 4)}, {a((tau * 12 + j) * 4, 4)}, {inreg(st_, j * 2 + tt)}, {c}")
                for _ in range(rate):
                    if fill:
                        A(fill.pop(0))

    def body(st_, sx, other):
        A.label("W4_" + sx)
        A(f"s_add_u32 {s(T + 6)}, {s(S_I)}, 1")
        A(f"s_min_u32 {s(T + 6)}, {s(T + 6)}, 127")
        item_of(A, T + 6, S_NL, S_NS, cfg.LAG + cfg.dlt, 0, T)
        row_of(A, T + 7, S_NL, S_NS, flag_row(F_G))
        A(f"buffer_load_dword {v(V_FV)}, {v(V_FO)}, {WS}, {s(T + 7)} offen sc1")
        A(f"v_add_u32 {v(V_LW)}, {s(S_BUF)}, {v(V_LW0)}")
        A(f"v_add_u32 {v(V_LR)}, {s(S_BUF)}, {v(V_LR0)}")
        JC = 5
        for j in range(JC + 1):
            A(f"s_waitcnt vmcnt({25 - 2 * j})")
            kstep(st_, j)
        nof, nod, join = A.newlabel("nof"), A.newlabel("nod"), A.newlabel("join")
        A("s_waitcnt vmcnt(0)")
        A(f"s_cmp_eq_u32 {s(S_FADDR)}, {DUMMY}")
        A(f"s_cbranch_scc1 {nof}")
        flag_store(A, S_FADDR)
        A(f"s_mov_b32 {s(S_FADDR)}, {DUMMY}")
        A.label(nof)
        A(f"v_cmp_eq_u32 vcc, 0, {v(V_FV)}")
        A(f"s_mov_b32 {s(S_DEF)}, 1")
        A(f"s_cbranch_vccnz {nod}")
        A(f"s_mov_b32 {s(S_DEF)}, 0")
        if cfg.wgp2:
            rdy_set(A, 250, 1, T)
        fill = loads(1 - st_, S_NL, S_NS)
        for j in range(JC + 1, 12):
            kstep(st_, j, fill, 1)
        while fill:
            A(fill.pop(0))
        A(f"s_branch {join}")
        A.label(nod)
        for j in range(JC + 1, 12):
            kstep(st_, j)
        A.label(join)
        for d in range(4):
            tt, p = d >> 1, d & 1
            for k in range(2):
                A(f"ds_write_b128 {v(V_LW)}, {v(acc(2 * p + k, tt), 4)} offset:{d * 8192 + k * 1024}")
        unpack8(A, V_XU, XXS[st_])
        unpack8(A, V_XU + 8, XXS[st_] + 4)
        A("s_waitcnt lgkmcnt(0)")
        A("s_barrier")
        for i in range(8):
            A(f"ds_read_b128 {v(V_RD + 4 * i, 4)}, {v(V_LR)} offset:{i * 1024}")
        A("s_waitcnt lgkmcnt(0)")
        for i in range(0, 8, 2):
            A(f"v_pk_add_f32 {v(V_RD + i, 2)}, {v(V_RD + i, 2)}, {v(V_RD + 8 + i, 2)}")
            A(f"v_pk_add_f32 {v(V_RD + 16 + i, 2)}, {v(V_RD + 16 + i, 2)}, {v(V_RD + 24 + i, 2)}")
        for i in range(0, 8, 2):
            A(f"v_pk_add_f32 {v(V_RD + i, 2)}, {v(V_RD + i, 2)}, {v(V_RD + 16 + i, 2)}")
        X = [V_RD + i for i in range(8)]
        for i in range(0, 8, 2):
            rnd2(A, V_T, X[i], X[i + 1])
        for i in range(0, 8, 2):
            A(f"v_pk_add_f32 {v(X[i], 2)}, {v(X[i], 2)}, {v(V_XU + i, 2)}")
        for i in range(0, 8, 2):
            rnd2(A, V_T, X[i], X[i + 1])
        for i in range(0, 8, 2):
            A(f"v_pk_add_f32 {v(X[i], 2)}, {v(X[i], 2)}, {v(V_XU + 8 + i, 2)}")
        for i in range(0, 8, 2):
            rnd2(A, V_PK + i // 2, X[i], X[i + 1])
        l1, l2 = A.newlabel("w4o"), A.newlabel("w4n")
        A(f"s_cmp_lg_u32 {s(S_L)}, 0")
        A(f"s_cbranch_scc1 {l1}")
        A(f"s_mul_i32 {s(T + 2)}, {s(S_S)}, {XSEGS}")
        A(f"s_add_u32 {s(T + 2)}, {s(T + 2)}, {XIN + 64 * XSEGS}")
        A(f"s_add_u32 {s(T + 3)}, {s(T + 2)}, {s(S_CH)}")
        A(f"buffer_store_dwordx4 {v(V_PK, 4)}, {v(V_P16)}, {WS}, {s(T + 3)} offen sc1")
        t = V_T
        A(f"v_add_f32 {v(t)}, {v(X[0])}, {v(X[1])}")
        A(f"v_mul_f32 {v(t + 1)}, {v(X[0])}, {v(X[0])}")
        for i in range(1, 8):
            if i >= 2:
                A(f"v_add_f32 {v(t)}, {v(t)}, {v(X[i])}")
            A(f"v_fmac_f32 {v(t + 1)}, {v(X[i])}, {v(X[i])}")
        for op in ("v_permlane32_swap_b32", "v_permlane16_swap_b32"):
            A(f"v_mov_b32 {v(t + 2)}, {v(t)}")
            A(f"v_mov_b32 {v(t + 3)}, {v(t + 1)}")
            A(f"{op} {v(t)}, {v(t + 2)}")
            A(f"{op} {v(t + 1)}, {v(t + 3)}")
            A(f"v_add_f32 {v(t)}, {v(t)}, {v(t + 2)}")
            A(f"v_add_f32 {v(t + 1)}, {v(t + 1)}, {v(t + 3)}")
        A(f"s_lshl_b32 {s(T + 3)}, {s(S_J)}, 8")
        A(f"s_lshl_b32 {s(T)}, {s(S_TT)}, 7")
        A(f"s_add_u32 {s(T + 3)}, {s(T + 3)}, {s(T)}")
        A(f"s_add_u32 {s(T + 3)}, {s(T + 3)}, {s(T + 2)}")
        A(f"s_add_u32 {s(T + 3)}, {s(T + 3)}, 40960")
        A("s_mov_b64 exec, 0xffff")
        A(f"buffer_store_dwordx2 {v(t, 2)}, {v(V_SAD)}, {WS}, {s(T + 3)} offen sc1")
        A("s_mov_b64 exec, -1")
        A(f"s_mov_b32 {s(T + 6)}, 1")
        flag_addr(A, S_FADDR, flag_row(F_XIN), S_IDX, T + 6, S_S)
        A("s_waitcnt vmcnt(0)")
        flag_store(A, S_FADDR)
        A(f"s_mov_b32 {s(S_FADDR)}, {DUMMY}")
        A(f"s_branch {l2}")
        A.label(l1)
        A(f"s_mul_i32 {s(T + 2)}, {s(S_S)}, {32 * 1280}")
        A(f"buffer_store_dwordx2 {v(V_PK, 2)}, {v(V_OA)}, {s(SRD_O, 4)}, {s(T + 2)} offen")
        A(f"buffer_store_dwordx2 {v(V_PK + 2, 2)}, {v(V_OA)}, {s(SRD_O, 4)}, {s(T + 2)} offen offset:32")
        A("s_waitcnt vmcnt(2)")
        A.label(l2)
        A(f"s_add_u32 {s(S_I)}, {s(S_I)}, 1")
        A(f"s_cmp_eq_u32 {s(S_I)}, 128")
        A("s_cbranch_scc1 W4_END")
        A(f"s_xor_b32 {s(S_BUF)}, {s(S_BUF)}, 0x8000")
        A(f"s_mov_b32 {s(S_L)}, {s(S_NL)}")
        A(f"s_mov_b32 {s(S_S)}, {s(S_NS)}")
        A(f"s_cmp_eq_u32 {s(S_DEF)}, 0")
        A(f"s_cbranch_scc1 W4_{other}")
        row_of(A, T + 7, S_L, S_S, flag_row(F_G))
        if cfg.wgp2:
            wg_wait(A, cfg, 250, T + 7, T)
        else:
            flag_block(A, T + 7, sleep=1)
        for x in loads(1 - st_, S_L, S_S):
            A(x)
        A(f"s_branch W4_{other}")

    V_LW0, V_LR0 = 248, 249
    A(f"s_lshl_b32 {s(T)}, {s(S_WAVE)}, 11")
    A(f"v_add_u32 {v(V_LW0)}, {s(T)}, {v(V_L16)}")
    A(f"s_lshl_b32 {s(T)}, {s(S_WAVE)}, 13")
    A(f"v_add_u32 {v(V_LR0)}, {s(T)}, {v(V_L16)}")
    A(f"s_mov_b32 {s(S_I)}, 0")
    A(f"s_mov_b32 {s(S_BUF)}, 0")
    if cfg.wgp2:
        rdy_init(A, cfg, 250, 65536)
    A(f"s_mov_b32 {s(S_FADDR)}, {DUMMY}")
    item_of(A, S_I, S_L, S_S, cfg.LAG + cfg.dlt, 0, T)
    row_of(A, T + 7, S_L, S_S, flag_row(F_G))
    flag_block(A, T + 7)
    for x in loads(0, S_L, S_S):
        A(x)
    body(0, "A", "B")
    body(1, "B", "A")
    A.label("W4_END")
    if cfg.timing == 6:
        A("s_memrealtime s[98:99]")
        A("s_waitcnt lgkmcnt(0)")
        A("s_sub_u32 s98, s98, s96")
        A(f"v_mov_b32 {v(V_T)}, s98")
        A(f"v_mov_b32 {v(V_T + 1)}, 28")
        A("s_mov_b64 exec, 1")
        A(f"buffer_store_dword {v(V_T)}, {v(V_T + 1)}, {s(SRD_DBG, 4)}, 0 offen")
    A("s_endpgm")


def gen_att(A, cfg, nwg):
    V_Q, V_K, V_V, V_KP, V_VM = 16, 64, 112, 160, 172
    V_SX, V_SM, V_P = 184, 196, 212
    V_FO2, V_L8, V_NINF = 228, 229, 230
    V_PK = 232
    S_H, S_XG, S_FX, S_HO = S_K, S_K + 1, S_K + 2, S_K + 3
    S_MK = 72
    S_ML = 80
    S_SC, S_L2E = 84, 85
    A.label("ROLE_ATT")
    S_PAR = 86
    if cfg.a2 == 1:
        A(f"s_lshr_b32 {s(S_PAR)}, {s(S_ROLE)}, 4")
        A(f"s_and_b32 {s(S_ROLE)}, {s(S_ROLE)}, 15")
    base_setup(A)
    S_FO = 87
    if cfg.a2 == 2:
        A(f"s_mov_b32 {s(S_H)}, {s(S_ROLE)}")
        A(f"s_and_b32 {s(S_L)}, {s(S_WAVE)}, 1")
        A(f"s_lshr_b32 {s(S_PAR)}, {s(S_WAVE)}, 1")
        A(f"s_lshr_b32 {s(S_FO)}, {s(S_H)}, 3")
        A(f"s_lshl_b32 {s(S_FO)}, {s(S_FO)}, 5")
        A(f"s_and_b32 {s(T)}, {s(S_H)}, 7")
        A(f"s_add_u32 {s(S_FO)}, {s(S_FO)}, {s(T)}")
    elif cfg.attl:
        A(f"s_lshr_b32 {s(S_H)}, {s(S_ROLE)}, 1")
        A(f"s_lshl_b32 {s(S_H)}, {s(S_H)}, 2")
        A(f"s_add_u32 {s(S_H)}, {s(S_H)}, {s(S_WAVE)}")
        A(f"s_and_b32 {s(S_L)}, {s(S_ROLE)}, 1")
    else:
        A(f"s_lshr_b32 {s(S_H)}, {s(S_IDX)}, 1")
        A(f"s_and_b32 {s(S_L)}, {s(S_IDX)}, 1")
    A(f"v_lshlrev_b32 {v(V_L8)}, 3, {v(V_LANE)}")
    if cfg.lin:
        A(f"v_and_b32 {v(V_L8)}, 0x300, {v(V_L16)}")
        A(f"v_add_u32 {v(V_L8)}, {v(V_L8)}, {v(V_L16)}")
    A(f"v_mov_b32 {v(V_NINF)}, 0xff800000")
    A(f"s_mov_b32 {s(S_ML)}, -1")
    A(f"s_mov_b32 {s(S_ML + 1)}, 0")
    A(f"s_mov_b32 {s(S_SC)}, {f32(192 ** -0.5)}")
    A(f"s_mov_b32 {s(S_L2E)}, {f32(math.log2(math.e))}")
    A(f"v_min_u32 {v(V_T)}, 8, {v(V_LANE)}")
    A(f"v_mul_u32_u24 {v(V_T + 1)}, 86, {v(V_T)}")
    A(f"v_lshrrev_b32 {v(V_T + 1)}, 8, {v(V_T + 1)}")
    A(f"v_mul_u32_u24 {v(V_T + 2)}, 3, {v(V_T + 1)}")
    A(f"v_sub_u32 {v(V_T)}, {v(V_T)}, {v(V_T + 2)}")
    A(f"s_mul_i32 {s(T)}, {s(S_H)}, 3")
    A(f"v_add_u32 {v(V_T)}, {s(T)}, {v(V_T)}")
    A(f"v_lshlrev_b32 {v(V_FO)}, 2, {v(V_T)}")
    A(f"v_lshl_add_u32 {v(V_FO)}, {v(V_T + 1)}, 16, {v(V_FO)}")
    A(f"v_min_u32 {v(V_FO2)}, {2 if cfg.c2 else 11}, {v(V_LANE)}")
    A(f"v_lshlrev_b32 {v(V_FO2)}, 2, {v(V_FO2)}")
    A(f"v_lshrrev_b32 {v(V_T)}, 4, {v(V_LANE)}")
    A(f"v_lshlrev_b32 {v(V_T)}, 2, {v(V_T)}")
    A(f"v_and_b32 {v(V_T + 1)}, 15, {v(V_LANE)}")
    for r in range(4):
        A(f"v_add_u32 {v(V_T + 2)}, {r}, {v(V_T)}")
        A(f"v_cmp_le_u32 {s(S_MK + 2 * r, 2)}, {v(V_T + 2)}, {v(V_T + 1)}")
    A(f"s_mul_i32 {s(S_HO)}, {s(S_H)}, 12288")
    A(f"s_mul_i32 {s(T)}, {s(S_L)}, {cfg.LAG}")
    A(f"s_mul_i32 {s(S_XG)}, {s(T)}, {XG_STEP}")
    A(f"s_mul_i32 {s(T + 1)}, {s(S_H)}, {XG_HEAD}")
    A(f"s_add_u32 {s(S_XG)}, {s(S_XG)}, {s(T + 1)}")
    A(f"s_mul_i32 {s(T + 1)}, {s(S_L)}, 9216")
    A(f"s_add_u32 {s(S_XG)}, {s(S_XG)}, {s(T + 1)}")
    A(f"s_add_u32 {s(S_XG)}, {s(S_XG)}, {XG + 3072}")
    A(f"s_mul_i32 {s(S_FX)}, {s(T)}, {FXG_STEP}")
    A(f"s_lshl_b32 {s(T + 1)}, {s(S_H)}, 6")
    A(f"s_add_u32 {s(S_FX)}, {s(S_FX)}, {s(T + 1)}")
    A(f"s_add_u32 {s(S_FX)}, {s(S_FX)}, {FXG}")
    if cfg.c2:
        A(f"s_mul_i32 {s(S_XG)}, {s(S_L)}, {64 * XG2_STEP}")
        A(f"s_mul_i32 {s(T + 1)}, {s(S_H)}, {XG2_HEAD}")
        A(f"s_add_u32 {s(S_XG)}, {s(S_XG)}, {s(T + 1)}")
        A(f"s_add_u32 {s(S_XG)}, {s(S_XG)}, {XG}")
        A(f"s_mul_i32 {s(S_FX)}, {s(S_L)}, {64 * FXG2_STEP}")
        A(f"s_lshl_b32 {s(T + 1)}, {s(S_H)}, 5")
        A(f"s_add_u32 {s(S_FX)}, {s(S_FX)}, {s(T + 1)}")
        A(f"s_add_u32 {s(S_FX)}, {s(S_FX)}, {FXG}")
    if cfg.xga == 4:
        A(f"s_mul_i32 {s(T + 1)}, {s(T)}, {XG_STEP}")
        A(f"s_sub_u32 {s(S_XG)}, {s(S_XG)}, {s(T + 1)}")
        A(f"s_mov_b32 {s(S_FX)}, {s(T)}")
        A(f"v_min_u32 {v(V_T)}, 17, {v(V_LANE)}")
        A(f"v_lshrrev_b32 {v(V_T + 1)}, 1, {v(V_T)}")
        A(f"v_lshlrev_b32 {v(V_T + 1)}, 10, {v(V_T + 1)}")
        A(f"v_and_b32 {v(V_T + 2)}, 1, {v(V_T)}")
        A(f"v_lshl_add_u32 {v(V_T + 1)}, {v(V_T + 2)}, 7, {v(V_T + 1)}")
        A(f"v_lshlrev_b32 {v(V_T + 2)}, 8, {v(V_T)}")
        A(f"v_add_u32 {v(V_T + 2)}, {3072 - 6 * 256}, {v(V_T + 2)}")
        A(f"v_cmp_gt_u32 vcc, 6, {v(V_T)}")
        A(f"v_cndmask_b32 {v(V_FO2)}, {v(V_T + 2)}, {v(V_T + 1)}, vcc")
    init_barrier_arrive(A, V_T)
    if cfg.a2 == 1:
        A(f"s_cmp_eq_u32 {s(S_PAR)}, 0")
        A("s_cbranch_scc1 ATT_R0")
        init_barrier_wait(A, V_T, nwg, cfg)
        A(f"s_mov_b32 {s(S_S)}, 1")
        A(f"s_add_u32 {s(S_XG)}, {s(S_XG)}, {XG2_STEP}")
        A(f"s_add_u32 {s(S_FX)}, {s(S_FX)}, {FXG2_STEP}")
        A("s_branch ATT_LOOP")
        A.label("ATT_R0")
    if cfg.a2 == 2:
        A(f"s_mov_b32 {s(T + 6)}, {s(S_IDX)}")
        gen_r0(A, cfg, nwg, T + 6, "A", 16)
        A(f"s_mov_b32 {s(S_S)}, {s(S_PAR)}")
        A(f"s_mul_i32 {s(T)}, {s(S_PAR)}, {XG2_STEP}")
        A(f"s_add_u32 {s(S_XG)}, {s(S_XG)}, {s(T)}")
        A(f"s_mul_i32 {s(T)}, {s(S_PAR)}, {FXG2_STEP}")
        A(f"s_add_u32 {s(S_FX)}, {s(S_FX)}, {s(T)}")
    else:
        A(f"s_add_u32 {s(T + 6)}, {s(S_IDX)}, 32")
        gen_r0(A, cfg, nwg, T + 6, "A")
        A(f"s_mov_b32 {s(S_S)}, 0")
    A(f"v_mov_b32 v231, 0")
    st = Stamper(A, cfg, 88, 8)
    A(f"s_mov_b32 s83, {s(S_GID)}")
    st.init()
    A.label("ATT_LOOP")
    row_of(A, T + 7, S_L, S_S, flag_row(F_Q))
    A(f"s_mul_i32 {s(T + 6)}, {s(S_S)}, {QKV_SEG}")
    A(f"s_add_u32 {s(T + 6)}, {s(T + 6)}, {s(S_HO)}")
    V_FN = 231
    if cfg.asm:
        A(f"v_cmp_eq_u32 vcc, 0, {v(V_FN)}")
        A("s_cbranch_vccz ATT_RDY")
    flag_block(A, T + 7, sleep=4)
    A.label("ATT_RDY")
    st(0)
    nld = 0
    for base, buf in ((V_Q, QX), (V_K, KX), (V_V, VX)):
        for b in range(12):
            if b % 4 == 0:
                A(f"s_add_u32 {s(T + 3)}, {s(T + 6)}, {buf + b * 1024}")
            if cfg.aw and nld >= cfg.aw and nld % 2 == 0:
                A(f"s_waitcnt vmcnt({cfg.aw - 2})")
            A(f"buffer_load_dwordx4 {v(base + 4 * b, 4)}, {v(V_L16)}, {WS}, {s(T + 3)} offen offset:{(b % 4) * 1024} {'nt ' if cfg.ant else ''}sc1")
            nld += 1
    if cfg.touch & 1:
        A(f"v_lshlrev_b32 {v(V_PK)}, 7, {v(V_LANE)}")
        A(f"s_add_u32 {s(T + 3)}, {s(T + 6)}, {OX}")
        A(f"buffer_load_dword {v(V_PK + 1)}, {v(V_PK)}, {WS}, {s(T + 3)} offen sc1")
        A(f"s_add_u32 {s(T + 3)}, {s(T + 6)}, {OX + 4096}")
        A(f"buffer_load_dword {v(V_PK + 1)}, {v(V_PK)}, {WS}, {s(T + 3)} offen sc1")
    A(f"s_waitcnt vmcnt({14 if cfg.touch & 1 else 12})")
    st(1)
    combos = ((0, 0), (1, 0), (1, 1))
    for j in range(6):
        for ci, (qt, kt) in enumerate(combos):
            c = "0" if j == 0 else v(V_SX + 4 * ci, 4)
            A(f"v_mfma_f32_16x16x32_bf16 {v(V_SX + 4 * ci, 4)}, {v(V_K + (j * 2 + kt) * 4, 4)}, {v(V_Q + (j * 2 + qt) * 4, 4)}, {c}")

    def roundscale(vals):
        for i in range(0, len(vals), 2):
            rnd2(A, V_T, vals[i], vals[i + 1])
        for x in vals:
            A(f"v_mul_f32 {v(x)}, {s(S_SC)}, {v(x)}")
        for i in range(0, len(vals), 2):
            rnd2(A, V_T, vals[i], vals[i + 1])
    roundscale([V_SX + i for i in range(12)])
    for ci in (0, 2):
        for r in range(4):
            x = V_SX + 4 * ci + r
            A(f"v_cndmask_b32 {v(x)}, {v(V_NINF)}, {v(x)}, {s(S_MK + 2 * r, 2)}")
    if cfg.xga != 4:
        sv = cfg.fsl
        if cfg.asl >= 0:
            cfg.fsl = cfg.asl
        st(2)
        if cfg.timing == 2:
            A("s_waitcnt vmcnt(0)")
            st(7)
        flag_block(A, S_FX, vo=V_FO2, sleep=cfg.att_sleep)
        st(3)
        cfg.fsl = sv
        for j in range(3):
            A(f"buffer_load_dwordx4 {v(V_KP + 4 * j, 4)}, {v(V_L16)}, {WS}, {s(S_XG)} offen offset:{j * 1024} sc1")
        A(f"s_add_u32 {s(T + 3)}, {s(S_XG)}, 3072")
        if cfg.c2:
            for i in range(3):
                A(f"buffer_load_dwordx4 {v(V_VM + 4 * i, 4)}, {v(V_L16)}, {WS}, {s(T + 3)} offen offset:{i * 1024} sc1")
            if cfg.asm:
                A(f"buffer_load_dword {v(V_FN)}, {v(V_FO)}, {WS}, {s(T + 7)} offen offset:1024 sc1")
            A(f"s_waitcnt vmcnt({4 if cfg.asm else 3})")
        else:
            for i in range(6):
                A(f"buffer_load_dwordx2 {v(V_VM + 2 * i, 2)}, {v(V_L8)}, {WS}, {s(T + 3)} offen offset:{i * 512} sc1")
            A("s_waitcnt vmcnt(6)")
    else:
        A(f"s_and_b32 {s(T + 4)}, {s(S_FX)}, 15")
        A(f"s_mul_i32 {s(T + 4)}, {s(T + 4)}, {XG_STEP}")
        A(f"s_add_u32 {s(T + 4)}, {s(T + 4)}, {s(S_XG)}")
        A(f"s_add_u32 {s(T + 3)}, {s(T + 4)}, 3072")
        A(f"s_lshr_b32 {s(T + 5)}, {s(S_FX)}, 4")
        A(f"s_and_b32 {s(T + 5)}, {s(T + 5)}, 1")
        top = A.newlabel("xp")
        A.label(top)
        A(f"buffer_load_dword {v(V_FV)}, {v(V_FO2)}, {WS}, {s(T + 4)} offen sc1")
        A("s_waitcnt vmcnt(0)")
        A(f"v_and_b32 {v(V_FV)}, 1, {v(V_FV)}")
        A(f"v_cmp_ne_u32 vcc, {s(T + 5)}, {v(V_FV)}")
        poll_tail(A, top, sleep=cfg.asl)
        for j in range(3):
            A(f"buffer_load_dwordx4 {v(V_KP + 4 * j, 4)}, {v(V_L16)}, {WS}, {s(T + 4)} offen offset:{j * 1024} sc1")
        for i in range(6):
            A(f"buffer_load_dwordx2 {v(V_VM + 2 * i, 2)}, {v(V_L8)}, {WS}, {s(T + 3)} offen offset:{i * 512} sc1")
        A("s_waitcnt vmcnt(0)")
        regs = [V_KP + 4 * j for j in range(3)] + [V_VM + 2 * i for i in range(6)]
        for k in range(4):
            A(f"v_bitop3_b32 {v(V_T + k)}, {v(regs[2 * k])}, {v(regs[2 * k + 1])}, {s(T + 5)} bitop3:0x7e")
        A(f"v_xor_b32 {v(V_T + 4)}, {s(T + 5)}, {v(regs[8])}")
        A(f"v_or3_b32 {v(V_T)}, {v(V_T)}, {v(V_T + 1)}, {v(V_T + 2)}")
        A(f"v_or3_b32 {v(V_T)}, {v(V_T)}, {v(V_T + 3)}, {v(V_T + 4)}")
        A(f"v_and_b32 {v(V_T)}, 1, {v(V_T)}")
        A(f"v_cmp_ne_u32 vcc, 0, {v(V_T)}")
        poll_tail(A, top)
    st(4)
    for jp in range(3):
        for qt in range(2):
            for par in range(2):
                acc = V_SM + (qt * 2 + par) * 4
                c = "0" if jp == 0 else v(acc, 4)
                A(f"v_mfma_f32_16x16x32_bf16 {v(acc, 4)}, {v(V_KP + 4 * jp, 4)}, {v(V_Q + ((2 * jp + par) * 2 + qt) * 4, 4)}, {c}")
    Zs = []
    for qt in range(2):
        E, O = V_SM + qt * 8, V_SM + qt * 8 + 4
        for k in (0, 2):
            A(f"v_permlane32_swap_b32 {v(E + k)}, {v(E + k + 1)}")
            A(f"v_permlane32_swap_b32 {v(O + k)}, {v(O + k + 1)}")
        A(f"v_add_f32 {v(E)}, {v(E)}, {v(O + 1)}")
        A(f"v_add_f32 {v(E + 1)}, {v(E + 2)}, {v(O + 3)}")
        Zs.append([E, E + 1])
    roundscale(Zs[0] + Zs[1])
    for qt in range(2):
        X = [V_SX + i for i in range(4)] if qt == 0 else [V_SX + 4 + i for i in range(8)]
        S = X + Zs[qt]
        m, t2 = V_T + 2 * qt, V_T + 2 * qt + 1
        A(f"v_max3_f32 {v(m)}, {v(S[0])}, {v(S[1])}, {v(S[2])}")
        rest = S[3:]
        while rest:
            if len(rest) >= 2:
                A(f"v_max3_f32 {v(m)}, {v(m)}, {v(rest[0])}, {v(rest[1])}")
                rest = rest[2:]
            else:
                A(f"v_max_f32 {v(m)}, {v(m)}, {v(rest[0])}")
                rest = []
        xreduce(A, "v_max_f32", m, t2)
        A(f"v_mul_f32 {v(m)}, {s(S_L2E)}, {v(m)}")
        for x in S:
            A(f"v_fma_f32 {v(x)}, {v(x)}, {s(S_L2E)}, -{v(m)}")
        for x in S:
            A(f"v_exp_f32 {v(x)}, {v(x)}")
        A(f"v_add_f32 {v(m)}, {v(S[0])}, {v(S[1])}")
        for x in S[2:]:
            A(f"v_add_f32 {v(m)}, {v(m)}, {v(x)}")
        xreduce(A, "v_add_f32", m, t2)
        A(f"v_rcp_f32 {v(m)}, {v(m)}")
        for x in S:
            A(f"v_mul_f32 {v(x)}, {v(x)}, {v(m)}")
        P = V_P + 8 * qt
        A(f"v_cvt_pk_bf16_f32 {v(P)}, {v(X[0])}, {v(X[1])}")
        A(f"v_cvt_pk_bf16_f32 {v(P + 1)}, {v(X[2])}, {v(X[3])}")
        if qt == 0:
            A(f"v_mov_b32 {v(P + 2)}, 0")
            A(f"v_mov_b32 {v(P + 3)}, 0")
        else:
            A(f"v_cvt_pk_bf16_f32 {v(P + 2)}, {v(X[4])}, {v(X[5])}")
            A(f"v_cvt_pk_bf16_f32 {v(P + 3)}, {v(X[6])}, {v(X[7])}")
        Z = Zs[qt]
        if cfg.c2:
            A(f"v_cvt_pk_bf16_f32 {v(P + 4)}, {v(Z[0])}, {v(Z[1])}")
            A(f"v_mov_b32 {v(P + 5)}, 0")
            A(f"v_mov_b32 {v(P + 6)}, 0")
            A(f"v_cvt_pk_bf16_f32 {v(P + 7)}, {v(Z[0])}, {v(Z[1])}")
            continue
        A(f"v_mov_b32 {v(Z[0] + 2)}, {v(Z[0])}")
        A(f"v_mov_b32 {v(Z[0] + 3)}, {v(Z[1])}")
        A(f"v_permlane32_swap_b32 {v(Z[0])}, {v(Z[0] + 2)}")
        A(f"v_permlane32_swap_b32 {v(Z[1])}, {v(Z[0] + 3)}")
        A(f"v_cvt_pk_bf16_f32 {v(Z[0])}, {v(Z[0])}, {v(Z[0] + 2)}")
        A(f"v_cvt_pk_bf16_f32 {v(Z[1])}, {v(Z[1])}, {v(Z[0] + 3)}")
        for k in range(2):
            A(f"v_cndmask_b32 {v(P + 4 + k)}, 0, {v(Z[k])}, {s(S_ML, 2)}")
            A(f"v_cndmask_b32 {v(P + 6 + k)}, {v(Z[k])}, 0, {s(S_ML, 2)}")
    A(f"s_waitcnt vmcnt({1 if cfg.asm else 0})")
    A(f"s_add_u32 {s(T + 6)}, {s(T + 6)}, {OX}")
    for qt in range(2):
        O = V_Q if qt == 0 else V_K
        P = V_P + 8 * qt
        for et in range(12):
            A(f"v_mfma_f32_16x16x32_bf16 {v(O + 4 * et, 4)}, {v(V_V + 4 * et, 4)}, {v(P, 4)}, 0")
        for et in range(12):
            A(f"v_mfma_f32_16x16x16_bf16 {v(O + 4 * et, 4)}, {v(V_VM + 2 * (et >> 1), 2)}, {v(P + 4 + 2 * (et & 1), 2)}, {v(O + 4 * et, 4)}")
    def o_out(LS):
        for qt in range(2):
            O = V_Q if qt == 0 else V_K
            for j in range(6):
                pk = V_PK + 4 * (j & 1)
                for i in range(4):
                    A(f"v_cvt_pk_bf16_f32 {v(pk + i)}, {v(O + 8 * j + 2 * i)}, {v(O + 8 * j + 2 * i + 1)}")
                if j % 2 == 0:
                    A(f"s_add_u32 {s(T + 3)}, {s(T + 6)}, {j * 2048 + qt * (256 if cfg.lin else 1024)}")
                A(f"buffer_store_dwordx4 {v(pk, 4)}, {v(V_L8 if cfg.lin else V_L16)}, {WS}, {s(T + 3)} offen offset:{(j % 2) * 2048}{LS}")
        flag_addr(A, T, flag_row(F_O), S_FO if cfg.a2 == 2 else S_H)
        st(5)
        A("s_waitcnt vmcnt(0)")
        flag_store(A, T, LS)
        st(6)
    if cfg.oloc:
        A(f"s_cmp_lg_u32 {s(S_MODE)}, 0")
        A("s_cbranch_scc1 ATT_OS")
        o_out("")
        A("s_branch ATT_OJ")
        A.label("ATT_OS")
    o_out(" sc1")
    A.label("ATT_OJ")
    if cfg.xga == 4:
        A(f"s_add_u32 {s(S_FX)}, {s(S_FX)}, 1")
    else:
        A(f"s_add_u32 {s(S_XG)}, {s(S_XG)}, {XG2_STEP * (2 if cfg.a2 else 1) if cfg.c2 else XG_STEP}")
        A(f"s_add_u32 {s(S_FX)}, {s(S_FX)}, {FXG2_STEP * (2 if cfg.a2 else 1) if cfg.c2 else FXG_STEP}")
    A(f"s_add_u32 {s(S_S)}, {s(S_S)}, {2 if cfg.a2 else 1}")
    A(f"s_cmp_lt_u32 {s(S_S)}, 64")
    A("s_cbranch_scc1 ATT_LOOP")
    st.dump(83, T, V_T)
    A("s_endpgm")


def gen_r1(A, cfg, nwg):
    V_XO, V_SO, V_SO3, V_XR, V_LWA, V_LRA, V_FO2 = 16, 17, 18, 19, 20, 21, 22
    V_ST = 24
    V_A = 32
    S_G3, S_KEEP, S_TQ = S_K, S_K + 1, S_K + 2
    HUGE = 0x80000000
    A.label("ROLE_R1")
    S_LAY = 80
    NKG = 4 if cfg.g3 & 16 else 6

    def row_of(A, dst, rl, rs, base):
        if not cfg.g3 & 16:
            return globals()["row_of"](A, dst, rl, rs, base)
        A(f"s_lshl_b32 {s(dst)}, {s(rl)}, 6")
        A(f"s_add_u32 {s(dst)}, {s(dst)}, {s(rs)}")
        A(f"s_mul_i32 {s(dst)}, {s(dst)}, 640")
        A(f"s_add_u32 {s(dst)}, {s(dst)}, {FWOP2}")
    if cfg.r2:
        A(f"s_lshr_b32 {s(S_LAY)}, {s(S_ROLE)}, 3")
        A(f"s_and_b32 {s(S_ROLE)}, {s(S_ROLE)}, 7")

    def item_of(A, i_reg, rl, rs, *a_):
        if not cfg.r2:
            return globals()["item_of"](A, i_reg, rl, rs, *a_)
        A(f"s_mov_b32 {s(rl)}, {s(S_LAY)}")
        A(f"s_sub_u32 {s(rs)}, {s(i_reg)}, 64")
    base_setup(A)
    dq, g_, c_ = V_T, V_T + 1, V_T + 2
    A(f"v_lshrrev_b32 {v(dq)}, 4, {v(V_LANE)}")
    A(f"v_bfe_u32 {v(g_)}, {v(V_LANE)}, 2, 2")
    A(f"v_and_b32 {v(c_)}, 3, {v(V_LANE)}")
    A(f"s_lshr_b32 {s(T)}, {s(S_ROLE)}, 2")
    A(f"s_lshl_b32 {s(S_TQ)}, {s(T)}, 10")
    A(f"s_and_b32 {s(T + 1)}, {s(S_ROLE)}, 3")
    A(f"s_lshl_b32 {s(T)}, {s(T + 1)}, 8")
    A(f"s_add_u32 {s(S_TQ)}, {s(S_TQ)}, {s(T)}")
    A(f"v_lshrrev_b32 {v(V_T + 3)}, 1, {v(dq)}")
    A(f"v_lshlrev_b32 {v(V_SO3)}, 11, {v(V_T + 3)}")
    A(f"v_add_u32 {v(V_T + 3)}, {s(T + 1)}, {v(g_)}")
    A(f"v_and_b32 {v(V_T + 3)}, 3, {v(V_T + 3)}")
    A(f"v_lshl_add_u32 {v(V_SO3)}, {v(V_T + 3)}, 6, {v(V_SO3)}")
    A(f"v_lshl_add_u32 {v(V_SO3)}, {v(c_)}, 4, {v(V_SO3)}")
    A(f"v_add_u32 {v(V_SO3)}, {s(S_TQ)}, {v(V_SO3)}")
    A(f"v_and_b32 {v(V_T + 3)}, 1, {v(dq)}")
    A(f"v_lshl_add_u32 {v(V_XO)}, {v(V_T + 3)}, 3, {v(V_SO3)}")
    A(f"v_lshl_add_u32 {v(V_SO)}, {v(V_T + 3)}, 14, {v(V_SO3)}")
    A(f"s_lshl_b32 {s(T)}, {s(S_ROLE)}, 2")
    A(f"v_add_u32 {v(V_T + 3)}, {s(T)}, {v(c_)}")
    A(f"v_mul_u32_u24 {v(V_XR)}, 1280, {v(V_T + 3)}")
    A(f"v_lshl_add_u32 {v(V_XR)}, {v(dq)}, 5, {v(V_XR)}")
    A(f"v_lshl_add_u32 {v(V_XR)}, {v(g_)}, 3, {v(V_XR)}")
    A(f"v_lshlrev_b32 {v(V_LRA)}, 5, {v(c_)}")
    A(f"s_lshl_b32 {s(T)}, {s(S_WAVE)}, 3")
    A(f"v_add_u32 {v(V_LWA)}, {s(T)}, {v(V_LRA)}")
    A(f"v_min_u32 {v(V_FO)}, {39 if cfg.g3 & 16 else 59}, {v(V_LANE)}")
    A(f"v_lshlrev_b32 {v(V_FO)}, 3, {v(V_FO)}")
    if cfg.g3 & 16:
        A(f"s_lshr_b32 {s(T)}, {s(S_ROLE)}, 2")
        A(f"s_mul_i32 {s(T)}, {s(T)}, 320")
        A(f"v_add_u32 {v(V_FO)}, {s(T)}, {v(V_FO)}")
    A(f"s_cmp_lt_u32 {s(S_WAVE)}, 2")
    A(f"s_cselect_b32 {s(S_G3)}, 0, {HUGE}")
    A(f"s_cselect_b32 {s(S_KEEP)}, 1.0, 0")
    init_barrier_arrive(A, V_T)

    lane_reduce, sums, norm, store_pair = row_helpers(A)
    if cfg.a2 == 2:
        init_barrier_wait(A, V_T, nwg, cfg)
    else:
        if cfg.r2:
            A(f"s_cmp_eq_u32 {s(S_LAY)}, 0")
            A("s_cbranch_scc1 R1_R0")
            init_barrier_wait(A, V_T, nwg, cfg)
            A("s_branch R1_GO")
            A.label("R1_R0")
        A(f"s_mov_b32 {s(T + 6)}, {s(S_IDX)}")
        gen_r0(A, cfg, nwg, T + 6, "R")
    A.label("R1_GO")
    st = Stamper(A, cfg, 84, 10)
    A(f"s_mov_b32 s83, {s(S_GID)}")
    st.init()

    SETS = (V_A, V_A + 80)
    V_XU = V_A + 160
    V_PM, V_PY, V_PZ = V_A + 172, V_A + 180, V_A + 188
    V_LR = V_A + 196
    V_FW = V_A + 204
    V_RDY = V_A + 206

    def r1_loads(base, rl, rs, A=A, TS=T + 3):
        A(f"s_mul_i32 {s(T + 6)}, {s(rs)}, {WOP_SEG}")
        A(f"s_mul_i32 {s(T)}, {s(S_ROLE)}, 10240")
        A(f"s_add_u32 {s(T + 6)}, {s(T + 6)}, {s(T)}")
        A(f"s_lshl_b32 {s(T)}, {s(S_WAVE)}, 10")
        A(f"s_add_u32 {s(T + 6)}, {s(T + 6)}, {s(T)}")
        A(f"s_add_u32 {s(T + 6)}, {s(T + 6)}, {WOP}")
        A(f"s_mul_i32 {s(T)}, {s(rs)}, {XSEG}")
        A(f"s_add_u32 {s(T)}, {s(T)}, {X0R}")
        A(f"s_mul_i32 {s(T + 1)}, {s(rs)}, {XSEGS}")
        A(f"s_add_u32 {s(T + 1)}, {s(T + 1)}, {XIN + 64 * XSEGS}")
        A(f"s_cmp_eq_u32 {s(rl)}, 0")
        A(f"s_cselect_b32 {s(T + 5)}, {s(T)}, {s(T + 1)}")
        A(f"s_lshl_b32 {s(T)}, {s(S_WAVE)}, 12")
        A(f"s_add_u32 {s(T + 5)}, {s(T + 5)}, {s(T)}")
        if not cfg.r1h:
            for G in range(3):
                A(f"s_add_u32 {s(TS)}, {s(T + 5)}, {G * 16384}")
                if G == 2:
                    A(f"s_add_u32 {s(TS)}, {s(TS)}, {s(S_G3)}")
                A(f"buffer_load_dwordx2 {v(base + 72 + 2 * G, 2)}, {v(V_XO)}, {WS}, {s(TS)} offen sc1")
            for kg in range(NKG):
                for G in range(3):
                    A(f"s_add_u32 {s(TS)}, {s(T + 6)}, {kg * 81920 + G * 4096}")
                    if G == 2:
                        A(f"s_add_u32 {s(TS)}, {s(TS)}, {s(S_G3)}")
                    A(f"buffer_load_dwordx4 {v(base + kg * 12 + G * 4, 4)}, {v(V_L16)}, {WS}, {s(TS)} offen sc1")
        else:
            l2, l3 = A.newlabel("g2"), A.newlabel("g3")
            A(f"s_cmp_lt_u32 {s(S_WAVE)}, 2")
            A(f"s_cbranch_scc1 {l2}")
            for i in range(4):
                A(f"v_mov_b32 {v(base + 8 + i)}, 0")
            A(f"s_branch {l3}")
            A.label(l2)
            A(f"s_add_u32 {s(TS)}, {s(T + 5)}, {2 * 16384}")
            A(f"buffer_load_dwordx2 {v(base + 76, 2)}, {v(V_XO)}, {WS}, {s(TS)} offen sc1")
            for kg in range(NKG):
                A(f"s_add_u32 {s(TS)}, {s(T + 6)}, {kg * 81920 + 2 * 4096}")
                A(f"buffer_load_dwordx4 {v(base + kg * 12 + 8, 4)}, {v(V_L16)}, {WS}, {s(TS)} offen sc1")
            A.label(l3)
            for G in range(2):
                A(f"s_add_u32 {s(TS)}, {s(T + 5)}, {G * 16384}")
                A(f"buffer_load_dwordx2 {v(base + 72 + 2 * G, 2)}, {v(V_XO)}, {WS}, {s(TS)} offen sc1")
            for kg in range(NKG):
                for G in range(2):
                    A(f"s_add_u32 {s(TS)}, {s(T + 6)}, {kg * 81920 + G * 4096}")
                    A(f"buffer_load_dwordx4 {v(base + kg * 12 + G * 4, 4)}, {v(V_L16)}, {WS}, {s(TS)} offen sc1")

    def pks(b):
        return [b, b + 1, b + 2, b + 3, b + 4, b + 5]

    S_O1, S_O3 = S_K + 3, S_K + 4

    S_YD = S_K + 5

    def emit_out(b, buf):
        A(f"v_mov_b32 {v(b + 6)}, {v(b + 4)}")
        A(f"v_mov_b32 {v(b + 7)}, {v(b + 5)}")
        A(f"s_add_u32 {s(T + 3)}, {s(S_O1)}, {buf}")
        if buf == YB:
            A(f"s_add_u32 {s(T + 3)}, {s(T + 3)}, {s(S_YD)}")
        store_pair(b, V_SO, T + 3)
        A(f"s_add_u32 {s(T + 3)}, {s(S_O3)}, {buf}")
        if buf == YB:
            A(f"s_add_u32 {s(T + 3)}, {s(T + 3)}, {s(S_YD)}")
        store_pair(b + 4, V_SO3, T + 3)

    def r1_full(cur, nxt, sx, other):
        V_PL, V_XX = cur, cur + 72
        X = [V_PL + i for i in range(12)]

        def wg_stats(area):
            sums(X, V_ST)
            lane_reduce(V_ST)
            A(f"ds_write_b64 {v(V_LWA)}, {v(V_ST, 2)} offset:{area}")
            A("s_waitcnt lgkmcnt(0)")
            A("s_barrier")
            A(f"ds_read_b128 {v(V_LR, 4)}, {v(V_LRA)} offset:{area}")
            A(f"ds_read_b128 {v(V_LR + 4, 4)}, {v(V_LRA)} offset:{area + 16}")

        def wg_stats_fin():
            A("s_waitcnt lgkmcnt(0)")
            A(f"v_pk_add_f32 {v(V_LR, 2)}, {v(V_LR, 2)}, {v(V_LR + 2, 2)}")
            A(f"v_pk_add_f32 {v(V_LR + 4, 2)}, {v(V_LR + 4, 2)}, {v(V_LR + 6, 2)}")
            A(f"v_pk_add_f32 {v(V_ST, 2)}, {v(V_LR, 2)}, {v(V_LR + 4, 2)}")
            finish_stats(A, V_ST, V_ST + 1, V_T)

        A.label("R1_" + sx)
        A(f"s_add_u32 {s(T + 6)}, {s(S_I)}, 1")
        A(f"s_min_u32 {s(T + 6)}, {s(T + 6)}, 127")
        item_of(A, T + 6, S_NL, S_NS, cfg.LAG + cfg.dlt, 0, T)
        row_of(A, T + 7, S_NL, S_NS, flag_row(F_WOP))
        if cfg.r1e != 1:
            A(f"buffer_load_dwordx2 {v(V_FW, 2)}, {v(V_FO)}, {WS}, {s(T + 7)} offen sc1")
        A(f"s_lshl_b32 {s(T)}, {s(S_L)}, 6")
        A(f"s_add_u32 {s(T)}, {s(T)}, {s(S_S)}")
        A(f"s_mul_i32 {s(S_O1)}, {s(T)}, {XSEG}")
        A(f"s_mul_i32 {s(S_YD)}, {s(T)}, {XSEGS - XSEG}")
        A(f"s_lshl_b32 {s(T)}, {s(S_WAVE)}, 12")
        A(f"s_add_u32 {s(S_O1)}, {s(S_O1)}, {s(T)}")
        A(f"s_add_u32 {s(S_O3)}, {s(S_O1)}, {8 * 4096}")
        A(f"s_add_u32 {s(S_O3)}, {s(S_O3)}, {s(S_G3)}")
        lp, lj = A.newlabel("r1p"), A.newlabel("r1j")

        def ladder(y):
            PG = 2 if cfg.r1h else 3
            A(f"s_waitcnt vmcnt({PG * NKG + y})")
            for i in range(6):
                A(f"v_lshlrev_b32 {v(V_XU + 2 * i)}, 16, {v(V_XX + i)}")
                A(f"v_and_b32 {v(V_XU + 2 * i + 1)}, 0xffff0000, {v(V_XX + i)}")
            for kg in range(1, NKG):
                A(f"s_waitcnt vmcnt({PG * (NKG - 1 - kg) + y})")
                for i in range(0, 12, 2):
                    A(f"v_pk_add_f32 {v(V_PL + i, 2)}, {v(V_PL + i, 2)}, {v(V_PL + kg * 12 + i, 2)}")
        A(f"s_cmp_eq_u32 {s(S_DEF)}, 0")
        A(f"s_cbranch_scc1 {lp}")
        ladder(0 if cfg.r1e == 1 else 1)
        A(f"s_branch {lj}")
        A.label(lp)
        ladder(cfg.r1e if cfg.r1e else 7)
        A.label(lj)
        st(4)
        for i in range(0, 12, 2):
            rnd2(A, V_T, X[i], X[i + 1])
        for i in range(0, 12, 2):
            A(f"v_pk_add_f32 {v(X[i], 2)}, {v(X[i], 2)}, {v(V_XU + i, 2)}")
        for i in range(0, 12, 2):
            rnd2(A, V_PM + i // 2, X[i], X[i + 1])
        wg_stats(128 if (cfg.zf and sx == "B") else 0)
        if not cfg.r1e:
            nof, nod = A.newlabel("nof"), A.newlabel("nod")
            st(5)
            A("s_waitcnt vmcnt(0)")
            st(6)
            A(f"s_cmp_eq_u32 {s(S_FADDR)}, {DUMMY}")
            A(f"s_cbranch_scc1 {nof}")
            flag_store(A, S_FADDR)
            A.label(nof)
            A(f"v_min_u32 {v(V_FW)}, {v(V_FW)}, {v(V_FW + 1)}")
            A(f"v_cmp_eq_u32 vcc, 0, {v(V_FW)}")
            A(f"s_mov_b32 {s(S_DEF)}, 1")
            A(f"s_cbranch_vccnz {nod}")
            A(f"s_mov_b32 {s(S_DEF)}, 0")
            r1_loads(nxt, S_NL, S_NS)
            A.label(nod)
        if cfg.r1e == 2:
            assert not cfg.r1h
            late = A.newlabel("late")
            A("s_waitcnt vmcnt(0)")
            A(f"v_min_u32 {v(V_FW)}, {v(V_FW)}, {v(V_FW + 1)}")
            A(f"v_cmp_eq_u32 vcc, 0, {v(V_FW)}")
            A(f"s_cbranch_vccnz {late}")
            E = Capture()
            lr, sm, nm_, sp = row_helpers(E)

            def fin(E=E):
                E("s_waitcnt lgkmcnt(0)")
                E(f"v_pk_add_f32 {v(V_LR, 2)}, {v(V_LR, 2)}, {v(V_LR + 2, 2)}")
                E(f"v_pk_add_f32 {v(V_LR + 4, 2)}, {v(V_LR + 4, 2)}, {v(V_LR + 6, 2)}")
                E(f"v_pk_add_f32 {v(V_ST, 2)}, {v(V_LR, 2)}, {v(V_LR + 4, 2)}")
                finish_stats(E, V_ST, V_ST + 1, V_T)

            def out(b, buf, E=E):
                E(f"v_mov_b32 {v(b + 6)}, {v(b + 4)}")
                E(f"v_mov_b32 {v(b + 7)}, {v(b + 5)}")
                E(f"s_add_u32 {s(T + 3)}, {s(S_O1)}, {buf}")
                sp(b, V_SO, T + 3)
                E(f"s_add_u32 {s(T + 3)}, {s(S_O3)}, {buf}")
                sp(b + 4, V_SO3, T + 3)
            fin()
            nm_(X, pks(V_PY), V_ST)
            for i in range(8, 12):
                E(f"v_mul_f32 {v(X[i])}, {s(S_KEEP)}, {v(X[i])}")
            sm(X, V_ST)
            lr(V_ST)
            E(f"ds_write_b64 {v(V_LWA)}, {v(V_ST, 2)} offset:128")
            E("s_waitcnt lgkmcnt(0)")
            E("s_barrier")
            E(f"ds_read_b128 {v(V_LR, 4)}, {v(V_LRA)} offset:128")
            E(f"ds_read_b128 {v(V_LR + 4, 4)}, {v(V_LRA)} offset:144")
            out(V_PM, XM)
            out(V_PY, YB)
            fin()
            nm_(X, pks(V_PZ), V_ST)
            out(V_PZ, ZB)
            Ld = Capture()
            r1_loads(nxt, S_NL, S_NS, Ld, T + 2)
            grp, cur_ = [], []
            for x in Ld.l:
                cur_.append(x)
                if x.startswith("buffer_load"):
                    grp.append(cur_)
                    cur_ = []
            if cfg.wgp2:
                rdy_set(A, V_RDY, 1, T)
            step = max(1, (len(E.l) * 2 // 3) // len(grp))
            for n, x in enumerate(E.l):
                if n % step == 0 and grp:
                    for y in grp.pop(0):
                        A(y)
                A(x)
            assert not grp
            flag_addr(A, S_FADDR, flag_row(F_R1))
            A(f"s_add_u32 {s(S_I)}, {s(S_I)}, 1")
            A(f"s_cmp_eq_u32 {s(S_I)}, 128")
            A("s_cbranch_scc1 R1_END")
            A(f"s_mov_b32 {s(S_L)}, {s(S_NL)}")
            A(f"s_mov_b32 {s(S_S)}, {s(S_NS)}")
            A(f"s_mov_b32 {s(S_DEF)}, 0")
            A("s_waitcnt vmcnt(0)")
            flag_store(A, S_FADDR)
            A(f"s_branch R1_{other}")
            A.label(late)
        if not cfg.zf:
            wg_stats_fin()
            norm(X, pks(V_PY), V_ST)
            for i in range(8, 12):
                A(f"v_mul_f32 {v(X[i])}, {s(S_KEEP)}, {v(X[i])}")
            wg_stats(128)
            if cfg.r1e:
                A(f"buffer_load_dwordx2 {v(V_FW, 2)}, {v(V_FO)}, {WS}, {s(T + 7)} offen sc1")
            emit_out(V_PM, XM)
            emit_out(V_PY, YB)
            wg_stats_fin()
            norm(X, pks(V_PZ), V_ST)
            emit_out(V_PZ, ZB)
        else:
            A(f"buffer_load_dwordx2 {v(V_FW, 2)}, {v(V_FO)}, {WS}, {s(T + 7)} offen sc1")
            emit_out(V_PM, XM)
            A("s_waitcnt lgkmcnt(0)")
            A(f"v_pk_add_f32 {v(V_LR, 2)}, {v(V_LR, 2)}, {v(V_LR + 2, 2)}")
            A(f"v_pk_add_f32 {v(V_LR + 4, 2)}, {v(V_LR + 4, 2)}, {v(V_LR + 6, 2)}")
            A(f"v_pk_add_f32 {v(V_ST, 2)}, {v(V_LR, 2)}, {v(V_LR + 4, 2)}")
            finish_stats(A, V_ST, V_ST + 1, V_T, keep=V_ST + 4)
            norm(X, pks(V_PY), V_ST)
            emit_out(V_PY, YB)
            A(f"v_sub_f32 {v(V_ST + 4)}, {v(V_ST + 4)}, {v(V_ST)}")
            A(f"v_mul_f32 {v(V_ST + 5)}, {v(V_ST + 5)}, {v(V_ST + 1)}")
            A(f"v_mul_f32 {v(V_ST + 4)}, {v(V_ST + 4)}, {v(V_ST + 1)}")
            A(f"v_mul_f32 {v(V_ST + 5)}, {v(V_ST + 5)}, {v(V_ST + 1)}")
            finish_stats(A, V_ST + 4, V_ST + 5, V_T, scaled=True)
            A(f"s_lshl_b32 {s(T)}, {s(S_WAVE)}, 12")
            A(f"s_sub_u32 {s(T + 3)}, {s(S_O1)}, {s(T)}")
            A(f"s_add_u32 {s(T + 3)}, {s(T + 3)}, {s(S_YD)}")
            A(f"s_lshl_b32 {s(T)}, {s(S_ROLE)}, 5")
            A(f"s_add_u32 {s(T + 3)}, {s(T + 3)}, {s(T)}")
            A(f"s_add_u32 {s(T + 3)}, {s(T + 3)}, {YB + 40960}")
            A(f"v_lshlrev_b32 {v(V_T)}, 3, {v(V_LANE)}")
            lz = A.newlabel("zs")
            A(f"s_cmp_lg_u32 {s(S_WAVE)}, 3")
            A(f"s_cbranch_scc1 {lz}")
            A("s_mov_b64 exec, 15")
            A(f"buffer_store_dwordx2 {v(V_ST + 4, 2)}, {v(V_T)}, {WS}, {s(T + 3)} offen sc1")
            A("s_mov_b64 exec, -1")
            A.label(lz)
        flag_addr(A, S_FADDR, flag_row(F_R1))
        st(7)
        A(f"s_add_u32 {s(S_I)}, {s(S_I)}, 1")
        A(f"s_cmp_eq_u32 {s(S_I)}, 128")
        A("s_cbranch_scc1 R1_END")
        A(f"s_mov_b32 {s(S_L)}, {s(S_NL)}")
        A(f"s_mov_b32 {s(S_S)}, {s(S_NS)}")
        if cfg.r1e:
            nrdy = A.newlabel("nr")
            A(f"s_waitcnt vmcnt({4 if cfg.zf else 6})")
            A(f"v_min_u32 {v(V_FW)}, {v(V_FW)}, {v(V_FW + 1)}")
            A(f"v_cmp_eq_u32 vcc, 0, {v(V_FW)}")
            A(f"s_cbranch_vccnz {nrdy}")
            if cfg.wgp2:
                rdy_set(A, V_RDY, 0, T)
            r1_loads(nxt, S_L, S_S)
            A(f"s_waitcnt vmcnt({2 + 2 * NKG if cfg.r1h else 3 + 3 * NKG})")
            flag_store(A, S_FADDR)
            A(f"s_mov_b32 {s(S_DEF)}, 0")
            A(f"s_branch R1_{other}")
            A.label(nrdy)
            A(f"s_mov_b32 {s(S_DEF)}, 1")
        else:
            A(f"s_cmp_eq_u32 {s(S_DEF)}, 0")
            A(f"s_cbranch_scc1 R1_{other}")
        A("s_waitcnt vmcnt(0)")
        flag_store(A, S_FADDR)
        A(f"s_mov_b32 {s(S_FADDR)}, {DUMMY}")
        st(8)
        row_of(A, T + 7, S_L, S_S, flag_row(F_WOP))
        if cfg.wgp2:
            wg_wait(A, cfg, V_RDY, T + 7, T, vv=V_FW, wide=True)
        else:
            flag_block(A, T + 7, vv=V_FW, wide=True, sleep=1)
        st(9)
        r1_loads(nxt, S_L, S_S)
        A(f"s_branch R1_{other}")

    A(f"s_mov_b32 {s(S_I)}, {64 if cfg.r2 else 0}")
    A(f"s_mov_b32 {s(S_DEF)}, 1")
    if cfg.wgp2:
        rdy_init(A, cfg, V_RDY, 1024)
    A(f"s_mov_b32 {s(S_FADDR)}, {DUMMY}")
    if cfg.r1h:
        for b_ in SETS:
            for kg in range(NKG):
                for i in range(4):
                    A(f"v_mov_b32 {v(b_ + kg * 12 + 8 + i)}, 0")
            A(f"v_mov_b32 {v(b_ + 76)}, 0")
            A(f"v_mov_b32 {v(b_ + 77)}, 0")
    item_of(A, S_I, S_L, S_S, cfg.LAG + cfg.dlt, 0, T)
    row_of(A, T + 7, S_L, S_S, flag_row(F_WOP))
    flag_block(A, T + 7, vv=V_FW, wide=True, sleep=1)
    r1_loads(SETS[0], S_L, S_S)
    r1_full(SETS[0], SETS[1], "A", "B")
    r1_full(SETS[1], SETS[0], "B", "A")
    A.label("R1_END")
    A("s_waitcnt vmcnt(0)")
    flag_store(A, S_FADDR)
    st.dump(83, T, V_T)
    A("s_endpgm")
```

```python
from stations32 import *
import stations32 as S32
from chain2 import Lds, Task, sched, groups, GAP

HUGE = 0x80000000
S_U, S_UL, S_US, S_UF, S_UN = 32, 33, 34, 35, 36
S_GO, S_NGO, S_EGO, S_FA1 = 37, 38, 39, 59
S_FA2 = S_FADDR
S_BM, S_IM = 76, 78
F_D4 = F_WOP
NH, NX, NG = 8, 8, 4


def lines(fn_owner, fn):
    c = fn_owner.capture(fn)
    out = []
    for x in c.l:
        out.append(x)
    return out


def lstore(A, text):
    l1, l2 = A.newlabel("ls"), A.newlabel("ls")
    A(f"s_cmp_lg_u32 {s(S_MODE)}, 0")
    A.nf(f"s_cbranch_scc0 {l1}")
    for x in text:
        A(x + " sc1")
    A.nf(f"s_branch {l2}")
    A.label_nf(l1)
    for x in text:
        A(x)
    A.label_nf(l2)


def loc(A, local, insts):
    if local:
        lstore(A, insts)
    else:
        for x in insts:
            A(x + " sc1" if x.startswith("buffer_store") else x)


def flag_put(A, addr, local=False):
    if TSFLAG[0]:
        A(f"s_memrealtime {s(98, 2)}")
        A("s_waitcnt lgkmcnt(0)")
        A(f"s_or_b32 s98, s98, 1")
        A(f"v_mov_b32 {v(V_ONE)}, s98")
    A("s_mov_b64 exec, 1")
    loc(A, local, [f"buffer_store_dword {v(V_ONE)}, {v(V_L16)}, {WS}, {s(addr)} offen"])
    A("s_mov_b64 exec, -1")


class G3:
    R, D = 8, 7
    local_out = False
    V_IA = 16
    V_OA = 20
    V_RA = 22
    V_FR = 24
    V_ACC = 56
    kd0, kdstep = 1, 2
    kf1 = 10
    ksmp = 0.5
    psleep = 4

    def acc(self, tl):
        return self.V_ACC + (self.aset * self.NT + tl) * 16

    def expose(self):
        return False

    def decode(self, A):
        A(f"s_min_u32 {s(T + 2)}, {s(S_U)}, 127")
        sv = self.A
        self.A = A
        self.item(T + 2, S_UL, S_US)
        self.flag_soff(S_UF, S_UL, S_US)
        self.A = sv

    def w0(self, fn):
        A = self.A
        lab = A.newlabel("w0")
        A(f"s_cmp_lg_u32 {s(S_WAVE)}, 0")
        A.nf(f"s_cbranch_scc1 {lab}")
        fn()
        A.label_nf(lab)

    def sample(self):
        self.w0(lambda: self.A(f"buffer_load_dword {v(V_FV)}, {v(V_FO)}, {WS}, {s(S_UF)} offen sc1"))

    def decide(self):
        A = self.A

        def f():
            A(f"v_cmp_eq_u32 vcc, 0, {v(V_FV)}")
            A(f"s_cmp_eq_u64 vcc, 0")
            A(f"s_cselect_b32 {s(S_UN)}, 0, {HUGE}")
            A(f"s_cmp_lt_u32 {s(S_U)}, 128")
            A(f"s_cselect_b32 {s(S_UN)}, {s(S_UN)}, {HUGE}")
            A(f"v_mov_b32 {v(self.V_RA + 1)}, {s(S_UN)}")
            A(f"ds_write_b32 {v(self.V_RA)}, {v(self.V_RA + 1)}")
        self.w0(f)

    def rd(self, k, b):
        return f"ds_read_b128 {v(self.V_FR + (k % self.R) * 4, 4)}, {v(self.V_IA + 2 * b + (k & 1))} offset:{(k >> 1) * 2048}"

    def dma_lines(self, guard):
        L = lines(self, lambda: self.dma(S_UL, S_US, T + 6 if guard else S_BUF))
        if guard:
            out = [f"s_sub_u32 {s(T + 6)}, {self.bufsz}, {s(S_BUF)}"]
            done = False
            for x in L:
                out.append(x)
                if not done and x.startswith(f"s_mul_i32 {s(T)}, {s(T)}") or (not done and x.startswith(f"s_mul_i32 {s(T)}, {s(S_US)}")):
                    out.append(f"s_add_u32 {s(T)}, {s(T)}, {s(S_GO)}")
                    done = True
            assert done
            L = out
        return L

    def gen(self):
        A, cfg = self.A, self.cfg
        nm = self.name
        A.label("ROLE_" + nm)
        base_setup(A)
        for k in range(2):
            chunk_addr(A, self.V_IA + k, k, self.pin)
            A(f"v_add_u32 {v(self.V_IA + 2 + k)}, {self.bufsz}, {v(self.V_IA + k)}")
            chunk_addr(A, self.V_OA + k, k, False)
        self.setup()
        self.init_stores()
        init_barrier_arrive(A, V_T)
        WL = WLoader(A, V_T, T + 3)
        self.weights(WL)
        WL.emit(V_LANE)
        self.post_weights()
        A("s_barrier")
        init_barrier_wait(A, V_T, self.nwg, cfg)
        A(f"s_mov_b32 {s(S_I)}, 0")
        A(f"s_mov_b32 {s(S_U)}, 0")
        A(f"s_mov_b32 {s(S_BUF)}, 0")
        A(f"s_mov_b32 {s(S_FA1)}, {HUGE}")
        A(f"s_mov_b32 {s(S_FA2)}, {HUGE}")
        A(f"s_mov_b32 {s(S_EGO)}, {HUGE}")
        A(f"v_mov_b32 {v(self.V_RA)}, {2 * self.bufsz + 2048}")
        self.post_barrier()
        st = self.st = Stamper(A, cfg, 84, 8)
        A(f"s_mov_b32 s83, {s(S_GID)}")
        self.decode(A)
        st.init()
        nb = 2 if self.pipe else 1
        for b in range(nb):
            self.body(b, nb)
        A.label(nm + "_END")
        st.dump(83, T, V_T)
        A("s_endpgm")

    def post_barrier(self): pass
    def tail_tasks(self, L, kw): return []

    def swap_bufs(self):
        A = self.A
        A(f"s_sub_u32 {s(S_BUF)}, {self.bufsz}, {s(S_BUF)}")
        if not self.pipe:
            for k in range(2):
                A(f"v_swap_b32 {v(self.V_IA + k)}, {v(self.V_IA + 2 + k)}")

    def body(self, b, nb):
        A, cfg, st = self.A, self.cfg, self.st
        nm, NT, R, D = self.name, self.NT, self.R, self.D
        NS = 2 * self.nk
        o = (b + 1) % nb
        cur, nxt = (b, 1 - b) if self.pipe else (0, 1)
        A.label(f"{nm}_COLD{b}")
        lab = A.newlabel("cp")
        A(f"s_cmp_lg_u32 {s(S_WAVE)}, 0")
        A(f"s_cbranch_scc1 {lab}")
        sv = cfg.fsl
        cfg.fsl = self.psleep
        flag_block(A, S_UF)
        cfg.fsl = sv
        A.label(lab)
        A("s_barrier")
        st(6)
        for x in self.dma_lines(False):
            A(x)
        A.label(f"{nm}_CD{b}")
        A(f"s_mov_b32 {s(S_L)}, {s(S_UL)}")
        A(f"s_mov_b32 {s(S_S)}, {s(S_US)}")
        A(f"s_add_u32 {s(S_U)}, {s(S_U)}, 1")
        self.decode(A)
        self.sample()
        A("s_waitcnt vmcnt(0)")
        flag_put(A, S_FA1, self.local_out)
        A(f"s_mov_b32 {s(S_FA1)}, {HUGE}")
        self.decide()
        A("s_waitcnt lgkmcnt(0)")
        A("s_barrier")
        A(f"ds_read_b32 {v(self.V_RA + 1)}, {v(self.V_RA)}")
        for k in range(D):
            A(self.rd(k, cur))
        A(f"s_waitcnt lgkmcnt({D})")
        A(f"v_readfirstlane_b32 {s(S_GO)}, {v(self.V_RA + 1)}")
        st(7)
        A.label(f"{nm}_B{b}")
        L = Lds(A)
        L.q = [("F", k) for k in range(D)]
        self.aset = b if self.pipe else 0
        seq, rdt = [], []
        kbar = (NS - D) * NT
        for k in range(NS):
            for tl in range(NT):
                c = "0" if k == 0 else v(self.acc(tl), 16)
                fr = v(self.V_FR + (k % R) * 4, 4)
                w = self.wtxt(tl, k)
                x, y = (fr, w) if self.swap else (w, fr)
                need = [("F", k + 1)] if (tl == 0 and k % 2 == 0) else []
                seq.append((f"{MF} {v(self.acc(tl), 16)}, {x}, {y}, {c}", need))
            kk = k + D
            rdt.append(Task(k * NT, [(("F", kk), self.rd(kk % NS, cur if kk < NS else nxt))]))
        nvm = [0]

        def vm(x):
            def f():
                A(x)
                nvm[0] += 1
            return (cfg.vmc, f)

        def wrap(ls):
            out = []
            for x in groups([y for z in ls for y in z.split("\n")]):
                if x.startswith("buffer_"):
                    out.append(vm(x))
                elif x.startswith("ds_"):
                    out.append(("x", x))
                elif x.startswith("@wait"):
                    out.append((4, lambda: L.wait("x")))
                else:
                    out.append(x)
            return out
        early = wrap(lines(self, self.early))
        dl = wrap(self.dma_lines(True))
        tdma = Task(self.kd0, early + dl)
        tdma.vstep = self.kdstep
        dec = Capture()
        dec(f"s_mov_b32 {s(S_NL)}, {s(S_UL)}")
        dec(f"s_mov_b32 {s(S_NS)}, {s(S_US)}")
        dec(f"s_cmp_eq_u32 {s(S_GO)}, 0")
        dec(f"s_addc_u32 {s(S_U)}, {s(S_U)}, 0")
        self.decode(dec)
        tdma.items += wrap(dec.l)
        ksm = int(self.ksmp * NS * NT)

        def smp():
            assert not tdma.items
            self.sample()
        tsm = Task(ksm, [(28, smp)])
        tsm.after = tdma

        def f1():
            A(f"s_waitcnt vmcnt({nvm[0]})")
            flag_put(A, S_FA1, self.local_out)
            A(f"s_mov_b32 {s(S_FA1)}, {HUGE}")
            nvm[0] += 1
        tasks = [Task(self.kf1, [(28, f1)])]
        tepi = []
        if self.pipe:
            self.aset = 1 - b
            tepi += wrap(self.epi_lines(True))
            self.aset = b
        tpre = Task(0, wrap(lines(self, self.pre_mfma)), step=1)
        tasks.append(tpre)

        def wx():
            assert not tpre.items
            L.wait("x")
        tepi += [(4, wx)] + wrap(lines(self, self.mid)) + wrap(lines(self, self.save_item))
        tep = Task(2 if self.pipe else 12, tepi)
        kw = kbar - (3 if NT == 2 else 4) * NT

        def wpoint():
            assert not tdma.items and not tsm.items, (nm, len(tdma.items))
            assert not any(isinstance(i, tuple) and i[0] == cfg.vmc for i in tep.items), nm
            A("s_waitcnt vmcnt(0)")
            self.decide()

        def bar():
            assert not any(isinstance(i, tuple) for i in tep.items), (nm, len(tep.items))
            A(f"s_waitcnt lgkmcnt({min(len(L.q), 2)})")
            L.q = L.q[-2:]
            A("s_barrier")
            L.op("dw", f"ds_read_b32 {v(self.V_RA + 1)}, {v(self.V_RA)}")

        def f2():
            flag_put(A, S_FA2, self.local_out)
            A(f"s_mov_b32 {s(S_FA2)}, {HUGE}")

        def rdw():
            L.wait("dw")
            A(f"v_readfirstlane_b32 {s(S_NGO)}, {v(self.V_RA + 1)}")
        tail = []
        if self.pipe:
            tail.append(Task(kw, [(20, f2)]))
        tail.append(Task(kbar + 3 * NT, [(8, rdw)]))
        tail += self.tail_tasks(wrap, kw)
        sched(A, L, seq, rdt + tasks + [tdma, tsm, tep] + tail, pre={kw: wpoint, kbar: bar}, budget=24, nvalu=5)
        st(3)
        nf_, now = A.newlabel("nf"), A.newlabel("now")
        A(f"s_cmp_lg_u32 {s(S_GO)}, 0")
        A.nf(f"s_cbranch_scc1 {nf_}")

        def step():
            A(f"s_add_u32 {s(S_I)}, {s(S_I)}, 1")
            self.swap_bufs()
            A(f"s_mov_b32 {s(S_L)}, {s(S_NL)}")
            A(f"s_mov_b32 {s(S_S)}, {s(S_NS)}")
            A(f"s_mov_b32 {s(S_GO)}, {s(S_NGO)}")
        if self.pipe:
            if self.expose():
                A.nf(f"s_cbranch_scc1 {now}")
            A(f"s_mov_b32 {s(S_EGO)}, 0")
            step()
            A.nf(f"s_branch {nm}_B{o}")
        A.label(now)
        ntail = A.newlabel("nt")
        A(f"s_mov_b32 {s(S_DEF)}, 0")
        A(f"s_branch {ntail}")
        A.label(nf_)
        A(f"s_mov_b32 {s(S_DEF)}, 2")
        A(f"s_cmp_lg_u32 {s(S_NGO)}, 0")
        A(f"s_cbranch_scc1 {ntail}")
        A(f"s_mov_b32 {s(S_DEF)}, 1")
        A(f"s_mov_b32 {s(S_GO)}, 0")
        for x in self.dma_lines(True):
            A(x)
        A.label(ntail)
        if self.pipe:
            A(f"s_mov_b32 {s(S_EGO)}, 0")
        self.emit_epi()
        A(f"s_mov_b32 {s(S_FA1)}, {s(S_FA2)}")
        A(f"s_mov_b32 {s(S_FA2)}, {HUGE}")
        A(f"s_mov_b32 {s(S_EGO)}, {HUGE}")
        st(4)
        step()
        A(f"s_cmp_eq_u32 {s(S_DEF)}, 0")
        A(f"s_cbranch_scc1 {nm}_B{o}")
        A(f"s_cmp_eq_u32 {s(S_DEF)}, 1")
        A(f"s_cbranch_scc1 {nm}_CD{o}")
        A("s_waitcnt vmcnt(0)")
        flag_put(A, S_FA1, self.local_out)
        A(f"s_mov_b32 {s(S_FA1)}, {HUGE}")
        st(5)
        A(f"s_cmp_eq_u32 {s(S_I)}, 128")
        A(f"s_cbranch_scc1 {nm}_END")
        A(f"s_branch {nm}_COLD{o}")

    def epi_lines(self, guarded):
        PRE_FLAG[0] = True
        cap = self.capture(self.epilogue)
        PRE_FLAG[0] = None
        return cap.l

    def emit_epi(self):
        A = self.A
        run = []
        for x in self.epi_lines(False):
            if self.local_out and x.startswith("buffer_store"):
                run.append(x.replace(" sc1", ""))
                continue
            if run:
                lstore(A, run)
                run = []
            A(x)
        if run:
            lstore(A, run)


class QKV3(G3, QKV32):
    V_CS = 120
    V_SV = 124
    V_SR = 156
    V_ST = 176
    V_PK = 180
    V_SA0, V_SA, V_SW, V_SRD = 188, 189, 190, 191
    V_FO0, V_FO1, V_DC = 12, 13, 14
    kd0, kdstep, kf1, ksmp = 1, 3, 30, 0.55
    psleep = 7
    D = 5

    def __init__(self, A, cfg, nwg, vtype):
        QKV32.__init__(self, A, cfg, nwg, vtype)
        self.psleep = cfg.wgp - 1
        self.kdstep, self.kf1, self.ksmp = cfg.qds, cfg.qf1, cfg.qsm / 100.0

    def expose(self):
        A, cfg = self.A, self.cfg
        A(f"s_cmp_lt_u32 {s(S_I)}, 2")
        if cfg.qx:
            A(f"s_cselect_b32 {s(T)}, 1, {s(S_L)}")
            if cfg.qx == 2 and not self.swap:
                A(f"s_andn2_b32 {s(T)}, {s(T)}, {s(self.S_TYPE)}")
            A(f"s_cmp_lg_u32 {s(T)}, 0")
        return True

    def save_item(self):
        A = self.A
        A(f"s_mov_b32 {s(self.S_EL)}, {s(S_L)}")
        A(f"s_mov_b32 {s(self.S_ES)}, {s(S_S)}")
        if self.swap:
            A(f"ds_write_b64 {v(self.V_SW)}, {v(self.V_ST, 2)}")
            for i in range(4):
                for hf in range(2):
                    A(f"ds_read_b128 {v(self.V_SV + i * 8 + hf * 4, 4)}, {v(self.V_SRD)} offset:{i * 64 + hf * 16}")

    def post_barrier(self):
        A = self.A
        A(f"s_mov_b32 {s(self.S_EL)}, 0")
        A(f"s_mov_b32 {s(self.S_ES)}, 0")

    def epi_lines(self, guarded):
        L = G3.epi_lines(self, guarded)
        out = []
        for x in L:
            out.append(x)
            if x.startswith(f"s_mul_i32 {s(self.E)},"):
                out.append(f"s_add_u32 {s(self.E)}, {s(self.E)}, {s(S_EGO)}")
        out.append(f"s_add_u32 {s(S_FADDR)}, {s(S_FADDR)}, {s(S_EGO)}")
        return out


class QKV4(QKV3):
    S_N0, S_N1, S_W0, S_EX, S_UF0, S_CND = 78, 79, 40, 80, 41, 42
    V_FO0, V_FO1, V_FV0, V_PW, V_DC = 4, 2, 14, 13, 12

    def post_barrier(self):
        QKV3.post_barrier(self)
        A = self.A
        A(f"s_mov_b32 {s(self.S_N0)}, 0")
        A(f"s_mov_b32 {s(self.S_N1)}, 0")
        A(f"s_cmp_eq_u32 {s(S_WAVE)}, 0")
        A(f"s_cselect_b32 {s(self.S_W0)}, {flag_row(F_XIN)}, {HUGE}")
        A(f"s_lshl_b32 {s(T)}, {s(S_WAVE)}, 3")
        A(f"v_add_u32 {v(self.V_PW)}, {s(T)}, {v(self.V_RA)}")

    def decode(self, A):
        A(f"s_lshl_b32 {s(self.S_UF0)}, {s(self.S_N0)}, 9")
        A(f"s_add_u32 {s(self.S_UF0)}, {s(self.S_UF0)}, {s(self.S_W0)}")
        A(f"s_lshl_b32 {s(S_UF)}, {s(self.S_N1)}, 9")
        A(f"s_add_u32 {s(S_UF)}, {s(S_UF)}, {s(self.S_W0)}")
        A(f"s_add_u32 {s(S_UF)}, {s(S_UF)}, {64 * 512}")

    def smp(self):
        return [f"buffer_load_dword {v(V_FV)}, {v(self.V_FO1)}, {WS}, {s(S_UF)} offen sc1",
                f"buffer_load_dword {v(self.V_FV0)}, {v(self.V_FO0)}, {WS}, {s(self.S_UF0)} offen sc1"]

    def dec(self):
        c = self.cfg
        return [f"v_cmp_eq_u32 vcc, 0, {v(self.V_FV0)}", f"s_cmp_eq_u64 vcc, 0\ns_cselect_b32 {s(S_UN)}, 0, {HUGE}",
                f"v_cmp_eq_u32 vcc, 0, {v(V_FV)}",
                f"s_cmp_lt_u32 {s(self.S_N0)}, 64\ns_cselect_b32 {s(S_UN)}, {s(S_UN)}, {HUGE}",
                f"s_cmp_eq_u64 vcc, 0\ns_cselect_b32 {s(T)}, 1, {s(S_UN)}",
                f"s_cmp_lt_u32 {s(self.S_N1)}, 64\ns_cselect_b32 {s(T)}, {s(T)}, {s(S_UN)}",
                f"s_sub_u32 {s(T + 1)}, {s(self.S_N0)}, {s(self.S_N1)}",
                f"s_or_b32 {s(T + 1)}, {s(T + 1)}, {s(S_UN)}",
                f"s_cmp_lt_u32 {s(T + 1)}, {c.LAG + c.qld}\ns_cselect_b32 {s(S_UN)}, 0, {s(T)}",
                f"v_mov_b32 {v(self.V_RA + 1)}, {s(S_UN)}"]

    def put(self):
        return f"ds_write_b32 {v(self.V_PW)}, {v(self.V_RA + 1)}"

    def take(self):
        return [f"s_and_b32 {s(S_GO)}, {s(S_NGO)}, {HUGE}", f"s_and_b32 {s(S_UL)}, {s(S_NGO)}, 1\ns_cselect_b32 {s(S_US)}, {s(self.S_N1)}, {s(self.S_N0)}"]

    def count(self):
        return [f"s_mov_b32 {s(S_NL)}, {s(S_UL)}", f"s_mov_b32 {s(S_NS)}, {s(S_US)}", f"s_add_u32 {s(self.S_N1)}, {s(self.S_N1)}, {s(S_UL)}",
                f"s_or_b32 {s(T)}, {s(S_GO)}, {s(S_UL)}", f"s_cmp_eq_u32 {s(T)}, 0\ns_addc_u32 {s(self.S_N0)}, {s(self.S_N0)}, 0"]

    def body(self, b, nb):
        if b == 0:
            self.A(f"s_branch {self.name}_COLD0")
            self.main(0)
            self.main(1)
        self.side(b)

    def main(self, b):
        A, cfg, st = self.A, self.cfg, self.st
        nm, NT, R, D = self.name, self.NT, self.R, self.D
        NS = 2 * self.nk
        A.label_nf(f"{nm}_B{b}")
        L = Lds(A)
        L.q = [("F", k) for k in range(D)]
        V = Vm(A)
        self.aset = b
        seq, rdt = [], []
        kbar = (NS - D) * NT
        for k in range(NS):
            for tl in range(NT):
                c = "0" if k == 0 else v(self.acc(tl), 16)
                fr = v(self.V_FR + (k % R) * 4, 4)
                w = self.wtxt(tl, k)
                x, y = (fr, w) if self.swap else (w, fr)
                need = [("F", k + 1)] if (tl == 0 and k % 2 == 0) else []
                seq.append((f"{MF} {v(self.acc(tl), 16)}, {x}, {y}, {c}", need))
            kk = k + D
            rdt.append(Task(k * NT, [(("F", kk), self.rd(kk % NS, b if kk < NS else 1 - b))]))

        def wrap(ls, tag="o"):
            out = []
            for x in ls:
                for y in (groups(x.split("\n")) if "exec" not in x else [x]):
                    if (cfg.xq & 1 and y.startswith("buffer_store")) or (cfg.xq & 2 and y.endswith(" lds")) or (cfg.xq & 4 and tag == "st" and y.startswith("v_")) \
                            or (cfg.xq & 8 and tag == "mid" and not y.startswith("s_")):
                        continue
                    if y.startswith("buffer_"):
                        out.append((cfg.vmc, lambda y=y: V.op(tag, y)))
                    elif y.startswith("ds_"):
                        out.append(("x", y))
                    else:
                        out.append(y)
            return out
        dc = Capture()
        self.decode(dc)
        tdma = Task(self.kd0, wrap(groups(self.dma_lines(True))) + wrap(self.count()) + dc.l)
        tdma.vstep = self.kdstep
        tsm = Task(int(self.ksmp * NS * NT), wrap(self.smp()))
        tsm.after = tdma

        def f1():
            A(f"s_waitcnt vmcnt({len(V.q)})")
            flag_put(A, S_FA1)
            A(f"s_mov_b32 {s(S_FA1)}, {HUGE}")
            V.q.append("f")
        self.aset = 1 - b
        te = Task(3, wrap(self.epi_lines(True), "st"))
        self.aset = b
        tpre = Task(0, wrap(lines(self, self.pre_mfma), "mid"), step=1)

        def wx():
            assert not tpre.items
            L.wait("x")
        tm = Task(0, [(4, wx)] + wrap(lines(self, self.mid), "mid") + wrap(lines(self, self.save_item), "mid"))
        tm.after = te

        def f2():
            V.wait("st")
            flag_put(A, S_FA2)
            A(f"s_mov_b32 {s(S_FA2)}, {HUGE}")
            V.q.append("f")
        tf2 = Task(cfg.qf2, [(28, f2)])
        tf2.after = te
        kw = kbar - cfg.qkw

        def wp():
            assert not tdma.items and not tsm.items
            V.wait("o")

        def putw():
            A(self.put())
            L.q.append("pw")
        tdec = Task(kw, [(4, wp)] + wrap(self.dec()) + [(9, putw)])

        def bar():
            assert not tdec.items and not tm.items and not tf2.items, (len(tdec.items), len(tm.items))
            L.wait("pw")
            A("s_barrier")
            L.op("dw", f"ds_read_b32 {v(self.V_RA + 1)}, {v(self.V_RA)}")

        def rdw():
            L.wait("dw")
            A(f"v_readfirstlane_b32 {s(S_NGO)}, {v(self.V_RA + 1)}")
        fin = [f"s_cmp_lt_u32 {s(S_I)}, 2\ns_cselect_b32 {s(self.S_CND)}, 1, 0", f"s_or_b32 {s(self.S_CND)}, {s(self.S_CND)}, {s(S_GO)}",
               f"s_mov_b32 {s(S_EGO)}, 0", f"s_add_u32 {s(S_I)}, {s(S_I)}, 1", f"s_sub_u32 {s(S_BUF)}, {self.bufsz}, {s(S_BUF)}",
               f"s_mov_b32 {s(S_L)}, {s(S_NL)}", f"s_mov_b32 {s(S_S)}, {s(S_NS)}"]
        tfin = Task(kbar, fin)
        trd = Task(kbar + 4, [(8, rdw)] + self.take() + [f"s_cmp_lg_u32 {s(self.S_CND)}, 0"])
        trd.after = tfin
        sched(A, L, seq, rdt + [Task(self.kf1, [(28, f1)]), tdec, tf2, tpre, tdma, tsm, te, tm, tfin, trd], pre={kbar: bar}, budget=24, nvalu=5)
        if cfg.timing == 2:
            st(3)
            A(f"s_cmp_lg_u32 {s(self.S_CND)}, 0")
        if b == 0:
            A.nf(f"s_cbranch_scc1 {nm}_S0")
        else:
            A.nf(f"s_cbranch_scc0 {nm}_B0")
            A.nf(f"s_branch {nm}_S1")

    def side(self, b):
        A, cfg, st = self.A, self.cfg, self.st
        nm, D = self.name, self.D
        o = 1 - b
        A.label(f"{nm}_S{b}")
        ntail = A.newlabel("nt")
        A(f"s_mov_b32 {s(S_DEF)}, 0")
        A(f"s_cmp_lt_u32 {s(self.S_CND)}, 2")
        A(f"s_cbranch_scc1 {ntail}")
        A(f"s_mov_b32 {s(S_DEF)}, 2")
        A(f"s_cmp_lg_u32 {s(S_GO)}, 0")
        A(f"s_cbranch_scc1 {ntail}")
        A(f"s_mov_b32 {s(S_DEF)}, 1")
        for x in self.dma_lines(False):
            A(x)
        A.label(ntail)
        A("s_nop 4")
        self.aset = b
        self.emit_epi()
        A(f"s_mov_b32 {s(S_FA1)}, {s(S_FA2)}")
        A(f"s_mov_b32 {s(S_FA2)}, {HUGE}")
        A(f"s_mov_b32 {s(S_EGO)}, {HUGE}")
        st(4)
        A(f"s_cmp_eq_u32 {s(S_DEF)}, 0")
        A(f"s_cbranch_scc1 {nm}_B{o}")
        A(f"s_cmp_eq_u32 {s(S_DEF)}, 1")
        A(f"s_cbranch_scc1 {nm}_CD{o}")
        A("s_waitcnt vmcnt(0)")
        flag_put(A, S_FA1)
        A(f"s_mov_b32 {s(S_FA1)}, {HUGE}")
        st(5)
        A(f"s_cmp_eq_u32 {s(S_I)}, 128")
        A(f"s_cbranch_scc1 {nm}_END")
        A(f"s_branch {nm}_COLD{o}")
        A.label(f"{nm}_COLD{b}")
        lab, top = A.newlabel("cp"), A.newlabel("ct")
        A(f"s_cmp_lg_u32 {s(S_WAVE)}, 0")
        A(f"s_cbranch_scc1 {lab}")
        A.label(top)
        for x in self.smp():
            A(x)
        A("s_waitcnt vmcnt(0)")
        for x in self.dec():
            A(x)
        A(f"s_cmp_lt_u32 {s(S_UN)}, 2")
        A(f"s_cbranch_scc1 {top}x")
        A(f"s_sleep {self.psleep}")
        A(f"s_sub_u32 {s(S_SPIN)}, {s(S_SPIN)}, 1")
        A("s_cbranch_scc1 ABORT")
        A(f"s_branch {top}")
        A.label(top + "x")
        A(f"ds_write_b32 {v(self.V_RA)}, {v(self.V_RA + 1)} offset:4")
        A("s_waitcnt lgkmcnt(0)")
        A.label(lab)
        A("s_barrier")
        A(f"ds_read_b32 {v(self.V_RA + 1)}, {v(self.V_RA)} offset:4")
        A("s_waitcnt lgkmcnt(0)")
        A(f"v_readfirstlane_b32 {s(S_NGO)}, {v(self.V_RA + 1)}")
        A(f"s_and_b32 {s(S_NGO)}, {s(S_NGO)}, 1")
        for x in self.take():
            A(x)
        st(6)
        for x in self.dma_lines(False):
            A(x)
        A.label(f"{nm}_CD{b}")
        A(f"s_mov_b32 {s(S_L)}, {s(S_UL)}")
        A(f"s_mov_b32 {s(S_S)}, {s(S_US)}")
        for x in self.count():
            A(x)
        self.decode(A)
        for x in self.smp():
            A(x)
        A("s_waitcnt vmcnt(0)")
        flag_put(A, S_FA1)
        A(f"s_mov_b32 {s(S_FA1)}, {HUGE}")
        for x in self.dec():
            A(x)
        A(self.put())
        A("s_waitcnt lgkmcnt(0)")
        A("s_barrier")
        A(f"ds_read_b32 {v(self.V_RA + 1)}, {v(self.V_RA)}")
        for k in range(D):
            A(self.rd(k, b))
        A(f"s_waitcnt lgkmcnt({D})")
        A(f"v_readfirstlane_b32 {s(S_NGO)}, {v(self.V_RA + 1)}")
        for x in self.take():
            A(x)
        st(7)
        A(f"s_branch {nm}_B{b}")


class B3(G3):
    kchk, kdstep, ksm2 = 12, 2, 30
    local_in = False

    def tune(self, cfg):
        self.local_out = bool(cfg.bloc)
        self.local_in = bool(cfg.bloc)
        self.kchk = cfg.bf1
        self.ksm2 = cfg.bsm
        self.psleep = cfg.bps
        self.early_sample = bool(cfg.bea & 2)

    def post_barrier(self):
        A = self.A
        A(f"v_lshl_add_u32 {v(self.V_RA)}, {v(V_LANE)}, 2, {v(self.V_RA)}")
        A(f"v_mov_b32 {v(self.V_RA + 1)}, 0")
        A(f"ds_write_b32 {v(self.V_RA)}, {v(self.V_RA + 1)}")
        A(f"s_mov_b32 {s(S_EGO)}, {self.cfg.spin * 8}")
        A(f"v_and_b32 {v(self.V_TA)}, 15, {v(V_LANE)}")
        A(f"v_lshlrev_b32 {v(self.V_TA)}, 7, {v(self.V_TA)}")
        if self.name == "W2":
            A(f"s_mul_i32 {s(T)}, {s(S_IDX)}, {256 - 2048}")
            A(f"s_add_u32 {s(T)}, {s(T)}, 40960")
            A(f"v_and_b32 {v(V_T)}, 128, {v(self.V_TA)}")
            A(f"v_add_u32 {v(V_T)}, {s(T)}, {v(V_T)}")
            A(f"v_cmp_lt_u32 vcc, 15, {v(V_LANE)}")
            A(f"v_cndmask_b32 {v(self.V_TA)}, {v(self.V_TA)}, {v(V_T)}, vcc")
        if self.cfg.ring:
            self.ring_setup()
        A("s_waitcnt lgkmcnt(0)")
        A("s_barrier")

    def ready(self):
        if self.local_in:
            return []
        return [f"s_add_u32 {s(T + 5)}, {s(S_U)}, 1", f"s_or_b32 {s(T + 5)}, {s(T + 5)}, {s(S_GO)}", f"v_mov_b32 {v(self.V_RA + 1)}, {s(T + 5)}",
                f"ds_max_i32 {v(self.V_RA)}, {v(self.V_RA + 1)}"]

    def check(self):
        if self.cfg.ring:
            return [f"v_cmp_eq_u32 vcc, 0, {v(V_FV)}", f"s_and_b64 vcc, vcc, {s(S_BM, 2)}\ns_cselect_b32 {s(S_GO)}, {HUGE}, 0",
                    f"s_cmp_lt_u32 {s(S_U)}, 128\ns_cselect_b32 {s(S_GO)}, {s(S_GO)}, {HUGE}"]
        return [f"v_cmp_eq_u32 vcc, 0, {v(V_FV)}", f"s_cmp_eq_u64 vcc, 0\ns_cselect_b32 {s(S_GO)}, 0, {HUGE}",
                f"s_cmp_lt_u32 {s(S_U)}, 128\ns_cselect_b32 {s(S_GO)}, {s(S_GO)}, {HUGE}"]

    def block(self):
        A = self.A
        if not self.cfg.ring:
            return flag_block(A, S_UF)
        top, ok = A.newlabel("fb"), A.newlabel("ok")
        A.label(top)
        A(f"buffer_load_dword {v(V_FV)}, {v(V_FO)}, {WS}, {s(S_UF)} offen sc1")
        A("s_waitcnt vmcnt(0)")
        A(f"v_cmp_eq_u32 vcc, 0, {v(V_FV)}")
        A(f"s_and_b64 vcc, vcc, {s(S_BM, 2)}")
        A(f"s_cbranch_scc0 {ok}")
        if self.psleep:
            A(f"s_sleep {self.psleep}")
        A(f"s_sub_u32 {s(S_SPIN)}, {s(S_SPIN)}, 1")
        A("s_cbranch_scc1 ABORT")
        A(f"s_branch {top}")
        A.label(ok)

    def ring_setup(self):
        A = self.A
        kin, nin, kbp, nbp, dist = self.bp
        lo = min(flag_row(kin), flag_row(kbp) - dist * 512)
        A(f"v_min_u32 {v(V_T)}, {nin + nbp - 1}, {v(V_LANE)}")
        A(f"v_lshlrev_b32 {v(V_T)}, 2, {v(V_T)}")
        A(f"v_add_u32 {v(V_FO)}, {flag_row(kin) - lo}, {v(V_T)}")
        A(f"v_add_u32 {v(V_T + 1)}, {flag_row(kbp) - dist * 512 - lo - 4 * nin}, {v(V_T)}")
        A(f"v_cmp_gt_u32 {s(S_IM, 2)}, {nin}, {v(V_LANE)}")
        A(f"v_cndmask_b32 {v(V_FO)}, {v(V_T + 1)}, {v(V_FO)}, {s(S_IM, 2)}")
        for l in range(2):
            for sl in range(self.nslot):
                A(f"s_mov_b32 {s(S_L)}, {l}")
                A(f"s_mov_b32 {s(S_S)}, {sl}")
                self.touch()
        A("s_waitcnt vmcnt(0)")

    def ring_soff(self, dst, rl, rs):
        A = self.A
        kin, nin, kbp, nbp, dist = self.bp
        row_of(A, dst, rl, rs, min(flag_row(kin), flag_row(kbp) - dist * 512))
        A(f"s_cmp_lt_u32 {s(rs)}, {dist}")
        A(f"s_cselect_b64 {s(S_BM, 2)}, {s(S_IM, 2)}, -1")

    def slot_base(self, dst, rl, rs, n, per, size, base):
        A = self.A
        A(f"s_mul_i32 {s(dst)}, {s(rl)}, {per}")
        A(f"s_and_b32 {s(dst + 1)}, {s(rs)}, {n - 1}")
        A(f"s_add_u32 {s(dst)}, {s(dst)}, {s(dst + 1)}")
        A(f"s_mul_i32 {s(dst)}, {s(dst)}, {size}")
        A(f"s_add_u32 {s(dst)}, {s(dst)}, {base}")

    def kmap(self, k):
        jj = k >> 1
        return 2 * (5 * (jj & 3) + (jj >> 2)) + (k & 1)

    def rd(self, k, b):
        q = self.kmap(k)
        return f"ds_read_b128 {v(self.V_FR + (k % self.R) * 4, 4)}, {v(self.V_IA + 2 * b + (q & 1))} offset:{(q >> 1) * 2048}"

    def split_epi(self):
        import re
        sc, rest = [], []
        for x in self.epi_lines(False):
            for k in range(1, 5):
                x = re.sub(rf"\bs{T + k}\b", f"s{69 + k}", x)
            (sc if x.startswith("s_") and "exec" not in x else rest).append(x)
        return sc, rest

    def body(self, b, nb):
        A, cfg, st = self.A, self.cfg, self.st
        nm, NT, R, D = self.name, self.NT, self.R, self.D
        NS = 2 * self.nk
        S_VL, S_VS, S_VF, S_VM = 40, 41, 42, 80
        smp = f"buffer_load_dword {v(V_FV)}, {v(V_FO)}, {WS}, {s(S_UF)} offen sc1"
        ea = self.early_sample
        N1 = 6

        def decode2(A):
            import re
            c = Capture()
            self.decode(c)
            A(f"s_add_u32 {s(T + 2)}, {s(S_U)}, 1")
            A(f"s_min_u32 {s(T + 2)}, {s(T + 2)}, 127")
            for x in c.l[1:]:
                for p, q in ((S_UL, S_VL), (S_US, S_VS), (S_UF, S_VF)):
                    x = re.sub(rf"\bs{p}\b", f"s{q}", x)
                A(x.replace(f"s_cselect_b64 {s(S_BM, 2)}", f"s_cselect_b64 {s(S_VM, 2)}"))

        def advance(A=A):
            A(f"s_mov_b32 {s(S_UF)}, {s(S_VF)}")
            if ea:
                A(smp)
            A(f"s_mov_b32 {s(S_NL)}, {s(S_UL)}")
            A(f"s_mov_b32 {s(S_NS)}, {s(S_US)}")
            A(f"s_add_u32 {s(S_U)}, {s(S_U)}, 1")
            A(f"s_mov_b32 {s(S_UL)}, {s(S_VL)}")
            A(f"s_mov_b32 {s(S_US)}, {s(S_VS)}")
            A(f"s_mov_b64 {s(S_BM, 2)}, {s(S_VM, 2)}")

        def dma_ordered():
            L_ = self.dma_lines(True)
            k0 = next(n for n, x in enumerate(L_) if "m0" in x or x.startswith(f"s_lshl_b32 {s(T + 2)}, {s(S_WAVE)}"))
            k1 = next(n for n, x in enumerate(L_) if x.startswith(f"s_mul_i32 {s(T + 1)}, {s(S_WAVE)}, 10240"))
            if k0 > k1:
                return L_
            import re
            st_ = [re.sub(rf"\bs{T}\b", f"s{T + 7}", x) for x in L_[k0:k1]]
            return L_[:k0] + [f"s_mov_b32 {s(T + 7)}, {s(T)}"] + L_[k1:] + st_
        DM = dma_ordered()
        nd = sum(1 for x in DM if x.startswith("buffer_"))
        self.swap_bufs()
        decode2(A)
        A.label(f"{nm}_COLD")
        A(f"s_mov_b32 {s(S_GO)}, 0")
        if self.local_in:
            self.block()
        else:
            oth, done = A.newlabel("wo"), A.newlabel("wd")
            A(f"s_cmp_lg_u32 {s(S_WAVE)}, 0")
            A(f"s_cbranch_scc1 {oth}")
            self.block()
            A.label(f"{nm}_COLD2")
            for x in self.ready():
                A(x)
            A(f"s_branch {done}")
            A.label(oth)
            A(f"ds_read_b32 {v(self.V_RA + 1)}, {v(self.V_RA)}")
            A("s_waitcnt lgkmcnt(0)")
            A(f"v_cmp_ge_u32 vcc, {s(S_U)}, {v(self.V_RA + 1)}")
            A(f"s_cbranch_vccz {done}")
            A(f"s_sleep 1")
            A(f"s_sub_u32 {s(S_EGO)}, {s(S_EGO)}, 1")
            A("s_cbranch_scc1 ABORT")
            A(f"s_branch {oth}")
            A.label(done)
        if self.local_in:
            A.label(f"{nm}_COLD2")
        st(6)
        n = 0
        for x in DM:
            A(x)
            if x.startswith("buffer_"):
                n += 1
                if n == N1:
                    A(f"s_waitcnt vmcnt({N1 if not self.local_in else N1 - 1})")
                    flag_put(A, S_FA1, self.local_out)
                    A(f"s_mov_b32 {s(S_FA1)}, {HUGE}")
        advance()
        self.swap_bufs()
        A(f"s_mov_b32 {s(S_L)}, {s(S_NL)}")
        A(f"s_mov_b32 {s(S_S)}, {s(S_NS)}")
        if ea:
            A(f"s_mov_b32 {s(S_GO)}, {HUGE}")
        A(f"s_waitcnt vmcnt({nd - N1 + 1 + (1 if ea else 0)})")
        A(f"s_branch {nm}_GO")
        A.label(f"{nm}_NEXT")
        self.swap_bufs()
        A(f"s_mov_b32 {s(S_L)}, {s(S_NL)}")
        A(f"s_mov_b32 {s(S_S)}, {s(S_NS)}")
        A(f"s_waitcnt vmcnt({self.nstores})")
        if ea:
            for x in self.check():
                A(x)
        A.label(f"{nm}_GO")
        st(7)
        A("s_barrier")
        L = Lds(A)
        for k in range(D):
            L.op(("F", k), self.rd(k, 0))
        if not ea:
            A(smp)
        st(0)
        seq, rdt = [], []
        for k in range(NS):
            c = "0" if k == 0 else v(self.acc(0), 16)
            fr = v(self.V_FR + (k % R) * 4, 4)
            need = [("F", k) if k < 2 else ("F", k + 1)] if (k % 2 == 0 or k < 2) else []
            seq.append((f"{MF} {v(self.acc(0), 16)}, {self.wtxt(0, self.kmap(k))}, {fr}, {c}", need))
            if k + D < NS:
                rdt.append(Task(k, [(("F", k + D), self.rd(k + D, 0))]))
        nvm = [0 if ea else 1]
        kb2 = 4 * N1 - D

        def vm(x):
            def f():
                A(x)
                nvm[0] += 1
            return (cfg.vmc, f)

        def wrap(ls):
            out = []
            for x in groups([y for z in ls for y in z.split("\n")]):
                out.append(vm(x) if x.startswith("buffer_") else ("x", x) if x.startswith("ds_") else x)
            return out
        tearly = Task(0, wrap(lines(self, self.early)))
        tpre = Task(kb2, wrap(lines(self, self.pre_mfma)), step=1)
        nearly = sum(1 for i in tearly.items if isinstance(i, tuple)) + nvm[0]

        def f1():
            assert not tearly.items
            A(f"s_waitcnt vmcnt({nvm[0] - (0 if ea else 1)})")
            flag_put(A, S_FA1, self.local_out)
            A(f"s_mov_b32 {s(S_FA1)}, {HUGE}")
            nvm[0] += 1

        def bar2():
            assert not tf1.items and self.kchk < kb2
            A("s_barrier")
        d2 = Capture()
        decode2(d2)
        tf1 = Task(self.kchk, [(28, f1)])
        if ea:
            tdma = Task(0, wrap(self.ready()) + wrap(DM) + wrap(d2.l))
            tdma.after = tearly
        else:
            tearly.items += wrap(d2.l)
            tdma = Task(self.kchk, self.check() + wrap(self.ready()) + wrap(DM))
            tdma.after = tf1
        tdma.vstep = self.kdstep

        def wx():
            assert not tpre.items
            L.wait("x")
        tmid = Task(kb2 + 9, [(4, wx)] + wrap(lines(self, self.mid)))
        tmid.after = tpre
        esc, erest = self.split_epi()

        at2 = [0]

        def smp2():
            A(smp)
            nvm[0] += 1
            at2[0] = nvm[0]
        tsm = Task(self.ksm2, [(cfg.vmc + 1, smp2)])
        sched(A, L, seq, rdt + [tpre, tearly, tsm, tf1, tdma, tmid, Task(0, esc)], pre={kb2: bar2}, budget=24, nvalu=5)
        st(3)
        ep, nr, sec = A.newlabel("ep"), A.newlabel("nr"), A.newlabel("sec")

        def epi(extra=()):
            extra = list(extra)
            nv = next(n for n, x in enumerate(erest) if x.startswith("buffer_store"))
            every = max(1, (nv - 4) // max(1, len(extra)))
            run = []
            for n, x in enumerate(erest + [""]):
                if x.startswith("buffer_store"):
                    while extra:
                        for y in extra.pop(0):
                            A(y)
                if self.local_out and x.startswith("buffer_store"):
                    run.append(x.replace(" sc1", ""))
                    continue
                if run:
                    lstore(A, run)
                    run = []
                if extra and n % every == 0:
                    for y in extra.pop(0):
                        A(y)
                if x:
                    A(x)
        self.late(nvm[0] - nearly)
        A(f"s_cmp_eq_u32 {s(S_GO)}, 0")
        A.nf(f"s_cbranch_scc0 {sec}")
        if cfg.timing == 2:
            A("s_add_u32 s88, s88, 128")
        advance()
        A("s_nop 2")
        A.label_nf(ep)
        st(2)
        epi()
        A(f"s_mov_b32 {s(S_FA1)}, {s(S_FA2)}")
        st(4)
        A(f"s_cmp_eq_u32 {s(S_GO)}, 0")
        A(f"s_cbranch_scc1 {nm}_NEXT")
        A(f"s_waitcnt vmcnt({self.nstores})")
        for x in self.check():
            A(x)
        A(f"s_cmp_eq_u32 {s(S_GO)}, 0")
        A(f"s_cbranch_scc1 {nm}_COLD2")
        A("s_waitcnt vmcnt(0)")
        flag_put(A, S_FA1, self.local_out)
        A(f"s_mov_b32 {s(S_FA1)}, {HUGE}")
        st(5)
        A(f"s_cmp_lt_u32 {s(S_U)}, 128")
        A(f"s_cbranch_scc1 {nm}_COLD")
        A(f"s_branch {nm}_END")
        A.label_nf(sec)
        A(f"s_waitcnt vmcnt({nvm[0] - at2[0]})")
        for x in self.check():
            A(x)
        A(f"s_cmp_lg_u32 {s(S_GO)}, 0")
        A.nf(f"s_cbranch_scc1 {nr}")
        if cfg.timing == 2:
            A("s_add_u32 s88, s88, 128000")
        st(2)
        grp, cur_ = [], []
        for x in self.ready() + DM:
            cur_.append(x)
            if x.startswith("buffer_"):
                grp.append(cur_)
                cur_ = []
        c_ = Capture()
        advance(c_)
        epi(grp + [c_.l])
        A(f"s_mov_b32 {s(S_FA1)}, {s(S_FA2)}")
        st(4)
        A(f"s_branch {nm}_NEXT")
        A.label_nf(nr)
        A(smp)
        A.nf(f"s_branch {ep}")

    def late(self, n): pass

    V_TA = 72

    def touch(self):
        A = self.A
        self.out_base()
        A(f"buffer_load_dword {v(self.V_TA + 1)}, {v(self.V_TA)}, {WS}, {s(T + 2)} offen sc1")


class W1_3(B3, W1_32):
    bp = (F_R1, 32, F_X1, 20, NH - 1)
    nslot = NH

    def __init__(self, A, cfg, nwg):
        W1_32.__init__(self, A, cfg, nwg)
        self.tune(cfg)
        self.local_in = False
        self.psleep = cfg.wgp - 1
        self.early_sample = bool(cfg.bea & 1)
        if self.early_sample:
            self.ksm2 = cfg.bsmx
            self.kdstep = cfg.w1d
        else:
            self.kchk, self.kdstep, self.ksm2 = cfg.bf1x, 1, 26

    def init_stores(self):
        if not self.cfg.ring:
            return W1_32.init_stores(self)
        A = self.A
        for i in range(4):
            A(f"v_mov_b32 {v(self.V_PK + i)}, 0")
        A(f"s_lshl_b32 {s(T)}, {s(S_IDX)}, 11")
        for l in range(2):
            A(f"s_add_u32 {s(T + 1)}, {s(T)}, {HB + (l * (NH + 1) + NH) * XSEG}")
            for tt in range(2):
                A(f"buffer_store_dwordx4 {v(self.V_PK, 4)}, {v(V_L16)}, {WS}, {s(T + 1)} offen offset:{tt * 1024} sc1")

    def flag_soff(self, dst, rl, rs):
        return self.ring_soff(dst, rl, rs) if self.cfg.ring else W1_32.flag_soff(self, dst, rl, rs)

    def out_base(self):
        if not self.cfg.ring:
            return W1_32.out_base(self)
        self.slot_base(T + 2, S_L, S_S, NH, NH + 1, XSEG, HB)
        self.A(f"s_lshl_b32 {s(T + 3)}, {s(S_IDX)}, 11")
        self.A(f"s_add_u32 {s(T + 2)}, {s(T + 2)}, {s(T + 3)}")


class W3_3(B3, W3_32):
    bp = (F_X1, 20, F_D4, 40, NG)
    nslot = NG

    def __init__(self, A, cfg, nwg):
        W3_32.__init__(self, A, cfg, nwg)
        self.tune(cfg)

    def setup(self):
        W3_32.setup(self)
        if self.cfg.lin:
            self.A(f"v_mov_b32 {v(self.V_OA)}, {v(V_L16)}")
            self.A(f"v_add_u32 {v(self.V_OA + 1)}, 1024, {v(V_L16)}")

    def flag_soff(self, dst, rl, rs):
        return self.ring_soff(dst, rl, rs) if self.cfg.ring else W3_32.flag_soff(self, dst, rl, rs)

    def dma(self, rl, rs, ldsreg):
        if not self.cfg.ring:
            return W3_32.dma(self, rl, rs, ldsreg)
        A = self.A
        self.slot_base(T, rl, rs, NX, NX, XSEGS, X1B)
        self.stats_dma(T, ldsreg)
        A(f"s_mul_i32 {s(T + 1)}, {s(S_WAVE)}, 10240")
        A(f"s_add_u32 {s(T)}, {s(T)}, {s(T + 1)}")
        A(f"s_add_u32 {s(T + 1)}, {s(T + 1)}, {s(ldsreg)}")
        self.lin_dma(T, T + 1, 10)

    def out_base(self):
        if not self.cfg.ring:
            return W3_32.out_base(self)
        self.slot_base(T + 2, S_L, S_S, NG, NG, GSEG, GB)
        self.A(f"s_lshl_b32 {s(T + 3)}, {s(S_IDX)}, 11")
        self.A(f"s_add_u32 {s(T + 2)}, {s(T + 2)}, {s(T + 3)}")


class W2_3(B3, W2_32):
    bp = (F_H, 20, F_D4, 40, NX)
    nslot = NX
    V_SB, V_IO, V_IC = 74, 76, 78
    S_DL = S_K

    def __init__(self, A, cfg, nwg):
        W2_32.__init__(self, A, cfg, nwg)
        self.tune(cfg)

    def setup(self):
        W2_32.setup(self)
        if not self.cfg.ring:
            return
        A = self.A
        for tt in range(2):
            A(f"v_subrev_u32 {v(V_T)}, {XSEG}, {v(self.V_SH + tt)}")
            A(f"v_cmp_gt_u32 vcc, {XSEG}, {v(V_T)}")
            A(f"v_cndmask_b32 {v(self.V_IC + tt)}, 0, 1, vcc")
            A(f"v_xor_b32 {v(self.V_IO + tt)}, 1, {v(self.V_IC + tt)}")
            A(f"v_and_b32 {v(self.V_SB + tt)}, 2047, {v(self.V_SH + tt)}")
        A(f"s_and_b32 {s(self.S_DL)}, {s(S_WAVE)}, 1")
        A(f"s_lshl_b32 {s(self.S_DL)}, {s(self.S_DL)}, 1")
        A(f"s_sub_u32 {s(self.S_DL)}, {s(self.S_DL)}, 1")

    def flag_soff(self, dst, rl, rs):
        if not self.cfg.ring:
            return W2_32.flag_soff(self, dst, rl, rs)
        A = self.A
        A(f"s_add_u32 {s(T)}, {s(rs)}, 1")
        A(f"s_min_u32 {s(T)}, {s(T)}, 63")
        self.ring_soff(dst, rl, T)

    def dma(self, rl, rs, ldsreg):
        if not self.cfg.ring:
            return W2_32.dma(self, rl, rs, ldsreg)
        A = self.A
        A(f"s_add_u32 {s(T + 1)}, {s(rs)}, {s(self.S_DL)}")
        A(f"s_and_b32 {s(T + 2)}, {s(T + 1)}, {NH - 1}")
        A(f"s_cmp_lt_u32 {s(T + 1)}, 64")
        A(f"s_cselect_b32 {s(T + 2)}, {s(T + 2)}, {NH}")
        A(f"s_mul_i32 {s(T + 2)}, {s(T + 2)}, {XSEG}")
        A(f"s_and_b32 {s(T + 1)}, {s(rs)}, {NH - 1}")
        A(f"s_mul_i32 {s(T + 1)}, {s(T + 1)}, {XSEG}")
        for tt in range(2):
            A(f"v_mad_u32_u24 {v(self.V_SH + tt)}, {v(self.V_IO + tt)}, {s(T + 2)}, {v(self.V_SB + tt)}")
            A(f"v_mad_u32_u24 {v(self.V_SH + tt)}, {v(self.V_IC + tt)}, {s(T + 1)}, {v(self.V_SH + tt)}")
        A(f"s_mov_b32 {s(T)}, {s(rl)}")
        A(f"s_mul_i32 {s(T)}, {s(T)}, {(NH + 1) * XSEG}")
        A(f"s_mul_i32 {s(T + 1)}, {s(S_WAVE)}, 10240")
        A(f"s_add_u32 {s(T)}, {s(T)}, {s(T + 1)}")
        A(f"s_add_u32 {s(T)}, {s(T)}, {HB}")
        A(f"s_add_u32 {s(T + 1)}, {s(T + 1)}, {s(ldsreg)}")
        for jl in range(5):
            for tt in range(2):
                A(f"s_add_u32 m0, {s(T + 1)}, {(jl * 2 + tt) * 1024}")
                if tt == 0:
                    A(f"s_add_u32 {s(T + 3)}, {s(T)}, {jl * 2048}")
                A(f"buffer_load_dwordx4 {v(self.V_SH + tt)}, {WS}, {s(T + 3)} offen sc1 lds")

    def mid(self): pass

    def seg_base(self):
        A = self.A
        if self.cfg.ring:
            return self.slot_base(T + 2, S_L, S_S, NX, NX, XSEGS, X1B)
        A(f"s_lshl_b32 {s(T + 2)}, {s(S_L)}, 6")
        A(f"s_add_u32 {s(T + 2)}, {s(T + 2)}, {s(S_S)}")
        A(f"s_mul_i32 {s(T + 2)}, {s(T + 2)}, {XSEGS}")
        A(f"s_add_u32 {s(T + 2)}, {s(T + 2)}, {X1B}")

    def out_base(self):
        self.seg_base()
        self.A(f"s_lshl_b32 {s(T + 3)}, {s(S_IDX)}, 11")
        self.A(f"s_add_u32 {s(T + 2)}, {s(T + 2)}, {s(T + 3)}")

    def epi_lines(self, guarded):
        L = B3.epi_lines(self, guarded)
        return lines(self, self.seg_base) + L[4:]

    def late(self, n):
        self.A(f"s_waitcnt vmcnt({n})")
        W2_32.mid(self)


class WO_3(G3, WO32):
    def __init__(self, A, cfg, nwg):
        WO32.__init__(self, A, cfg, nwg)
        self.kd0, self.kdstep, self.kf1, self.ksmp, self.psleep = 0, 2, 24, 0.6, cfg.wgp - 1


class Vm:
    def __init__(self, A, q=()):
        self.A, self.q = A, list(q)

    def op(self, tag, text):
        self.A(text)
        self.q.append(tag)

    def wait(self, tag):
        if tag not in self.q:
            return
        i = len(self.q) - 1 - self.q[::-1].index(tag)
        self.A(f"s_waitcnt vmcnt({len(self.q) - 1 - i})")
        self.q = self.q[i + 1:]


def gen_ks(A, cfg, nwg, wo):
    nm = "WO" if wo else "W4"
    V_IN, V_ACC, V_RD, V_XX, V_XU, V_PK = 16, 112, 144, 176, 184, 200
    V_SAD, V_OA, V_LW, V_LR, V_CA = 204, 205, 206, 207, 208
    S_J, S_TT, S_CH, S_INW, S_CB, S_NB, S_OUT, S_FW = range(S_K, S_K + 8)
    SRD_O = 76
    assert cfg.ring
    local_in = bool(cfg.oloc if wo else cfg.bloc)
    A.label("ROLE_" + nm)
    base_setup(A)
    for k in range(2):
        chunk_addr(A, V_CA + k, k, False)
    if wo:
        S_KG, S_CG = T + 4, T + 5
        A(f"s_mul_i32 {s(S_KG)}, {s(S_ROLE)}, 6554")
        A(f"s_lshr_b32 {s(S_KG)}, {s(S_KG)}, 16")
        A(f"s_mul_i32 {s(T)}, {s(S_KG)}, 10")
        A(f"s_sub_u32 {s(S_CG)}, {s(S_ROLE)}, {s(T)}")
        A(f"v_min_u32 {v(V_FO)}, 1, {v(V_LANE)}")
        A(f"s_lshl_b32 {s(T)}, {s(S_KG)}, 4")
        A(f"s_add_u32 {s(T)}, {s(T)}, {s(S_WAVE)}")
        A(f"s_lshl_b32 {s(T)}, {s(T)}, 1")
    else:
        S_CG = S_ROLE
        A(f"v_min_u32 {v(V_FO)}, 11, {v(V_LANE)}")
        A(f"s_mul_i32 {s(T)}, {s(S_WAVE)}, 12")
    A(f"v_add_u32 {v(V_FO)}, {s(T)}, {v(V_FO)}")
    A(f"v_lshlrev_b32 {v(V_FO)}, 2, {v(V_FO)}")
    A(f"s_and_b32 {s(T)}, {s(S_WAVE)}, 1")
    A(f"s_lshl_b32 {s(S_J)}, {s(S_CG)}, 1")
    A(f"s_add_u32 {s(S_J)}, {s(S_J)}, {s(T)}")
    A(f"s_lshr_b32 {s(S_TT)}, {s(S_WAVE)}, 1")
    A(f"s_mul_i32 {s(S_INW)}, {s(S_WAVE)}, 24576")
    A(f"s_mul_i32 {s(S_C0)}, {s(S_WAVE)}, {384 * 1280}")
    A(f"s_lshl_b32 {s(T + 1)}, {s(S_CG)}, 7")
    A(f"s_add_u32 {s(S_C0)}, {s(S_C0)}, {s(T + 1)}")
    if wo:
        A(f"s_mul_i32 {s(T + 1)}, {s(S_KG)}, {1536 * 1280}")
        A(f"s_add_u32 {s(S_C0)}, {s(S_C0)}, {s(T + 1)}")
        A(f"s_mul_i32 {s(T + 1)}, {s(S_KG)}, 98304")
        A(f"s_add_u32 {s(S_INW)}, {s(S_INW)}, {s(T + 1)}")
        A(f"s_add_u32 {s(S_INW)}, {s(S_INW)}, {OX}")
        A(f"v_bfe_u32 {v(V_T)}, {v(V_LANE)}, 2, 2")
        A(f"v_mul_u32_u24 {v(V_OA)}, 10240, {v(V_T)}")
        A(f"v_and_b32 {v(V_T)}, 3, {v(V_LANE)}")
        A(f"v_lshl_add_u32 {v(V_OA)}, {v(V_T)}, 4, {v(V_OA)}")
        A(f"v_lshrrev_b32 {v(V_T)}, 4, {v(V_LANE)}")
        A(f"v_lshl_add_u32 {v(V_OA)}, {v(V_T)}, 6, {v(V_OA)}")
        A(f"s_mul_i32 {s(S_OUT)}, {s(S_KG)}, 81920")
        A(f"s_mul_i32 {s(T + 1)}, {s(S_TT)}, 40960")
        A(f"s_add_u32 {s(S_OUT)}, {s(S_OUT)}, {s(T + 1)}")
        A(f"s_lshl_b32 {s(T + 1)}, {s(S_J)}, 9")
        A(f"s_add_u32 {s(S_OUT)}, {s(S_OUT)}, {s(T + 1)}")
        A(f"s_add_u32 {s(S_OUT)}, {s(S_OUT)}, {WOP}")
        A(f"s_lshl1_add_u32 {s(S_FW)}, {s(S_ROLE)}, {s(T)}")
        A(f"s_lshl_b32 {s(S_FW)}, {s(S_FW)}, 2")
        A(f"s_mul_i32 {s(T + 1)}, {s(S_TT)}, 320")
        A(f"s_add_u32 {s(S_FW)}, {s(S_FW)}, {s(T + 1)}")
        A(f"s_add_u32 {s(S_FW)}, {s(S_FW)}, {FWOP2}")
    else:
        A(f"s_add_u32 {s(S_INW)}, {s(S_INW)}, {GB}")
        A(f"v_and_b32 {v(V_T)}, 15, {v(V_LANE)}")
        A(f"v_lshlrev_b32 {v(V_SAD)}, 3, {v(V_T)}")
        A(f"s_lshl_b32 {s(T)}, {s(S_TT)}, 4")
        A(f"v_add_u32 {v(V_T)}, {s(T)}, {v(V_T)}")
        A(f"v_mul_u32_u24 {v(V_OA)}, 1280, {v(V_T)}")
        A(f"v_lshrrev_b32 {v(V_T)}, 4, {v(V_LANE)}")
        A(f"v_lshl_add_u32 {v(V_OA)}, {v(V_T)}, 3, {v(V_OA)}")
        A(f"s_lshl_b32 {s(T)}, {s(S_J)}, 6")
        A(f"v_add_u32 {v(V_OA)}, {s(T)}, {v(V_OA)}")
        make_srd(A, SRD_O, P_OUT, 2048 * 1280)
        A(f"s_lshl_b32 {s(S_CH)}, {s(S_J)}, 1")
        A(f"s_add_u32 {s(S_CH)}, {s(S_CH)}, {s(S_TT)}")
        A(f"s_lshl_b32 {s(S_CH)}, {s(S_CH)}, 10")
    A(f"v_bfe_u32 {v(V_T)}, {v(V_LANE)}, 4, 1")
    A(f"v_lshlrev_b32 {v(V_LW)}, 14, {v(V_T)}")
    A(f"v_lshrrev_b32 {v(V_T)}, 5, {v(V_LANE)}")
    A(f"v_lshl_add_u32 {v(V_LW)}, {v(V_T)}, 8, {v(V_LW)}")
    A(f"v_and_b32 {v(V_T)}, 15, {v(V_LANE)}")
    A(f"v_lshl_add_u32 {v(V_LW)}, {v(V_T)}, 4, {v(V_LW)}")
    A(f"s_lshl_b32 {s(T)}, {s(S_WAVE)}, 11")
    A(f"v_add_u32 {v(V_LW)}, {s(T)}, {v(V_LW)}")
    A(f"s_lshl_b32 {s(T)}, {s(S_WAVE)}, 13")
    A(f"v_add_u32 {v(V_LR)}, {s(T)}, {v(V_L16)}")
    init_barrier_arrive(A, V_T)
    WL = WLoader(A, V_T, T + 3)
    WL.add(lambda: make_srd(A, SRD_W, P_WO if wo else P_W4, (6144 if wo else 1536) * 1280), S_C0, 1280, 4, 12,
           lambda tl, j, u: ("a", ((tl * 12 + j) * 2 + u) * 4), "perm")
    WL.emit(V_LANE)
    A("s_barrier")
    init_barrier_wait(A, V_T, nwg, cfg)
    st = Stamper(A, cfg, 84, 8)
    A(f"s_mov_b32 s83, {s(S_GID)}")

    def decode(A):
        A(f"s_min_u32 {s(T + 2)}, {s(S_U)}, 127")
        item_of(A, T + 2, S_UL, S_US, cfg.LAG + cfg.dlt, 0, T)
        row_of(A, S_UF, S_UL, S_US, flag_row(F_O if wo else F_G))
        if wo:
            A(f"s_mul_i32 {s(S_NB)}, {s(S_US)}, {QKV_SEG}")
        else:
            if cfg.ring:
                A(f"s_and_b32 {s(T)}, {s(S_US)}, {NG - 1}")
                A(f"s_lshl2_add_u32 {s(T)}, {s(S_UL)}, {s(T)}")
            else:
                A(f"s_lshl_b32 {s(T)}, {s(S_UL)}, 6")
                A(f"s_add_u32 {s(T)}, {s(T)}, {s(S_US)}")
            A(f"s_mul_i32 {s(S_NB)}, {s(T)}, {GSEG}")
        A(f"s_add_u32 {s(S_NB)}, {s(S_NB)}, {s(S_INW)}")

    def ld(k, base, first=False):
        r = []
        if k % 4 == 0 or first:
            r.append(f"s_add_u32 {s(T + 3)}, {s(base)}, {(k // 4) * 4096}")
        if cfg.lin:
            r.append(f"buffer_load_dwordx4 {v(V_IN + 4 * k, 4)}, {v(V_L16)}, {WS}, {s(T + 3)} offen offset:{(k & 3) * 1024} sc1")
        else:
            r.append(f"buffer_load_dwordx4 {v(V_IN + 4 * k, 4)}, {v(V_CA + (k & 1))}, {WS}, {s(T + 3)} offen offset:{((k >> 1) & 1) * 2048} sc1")
        return r
    smp = f"buffer_load_dword {v(V_FV)}, {v(V_FO)}, {WS}, {s(S_UF)} offen sc1"
    check = [f"v_cmp_eq_u32 vcc, 0, {v(V_FV)}", f"s_cmp_eq_u64 vcc, 0\ns_cselect_b32 {s(S_GO)}, 0, {HUGE}",
             f"s_cmp_lt_u32 {s(S_U)}, 128\ns_cselect_b32 {s(S_GO)}, {s(S_GO)}, {HUGE}"]
    AC, AW = cfg.kac, cfg.kah
    S_NG, E = T + 7, T + 4
    S_O1, S_O2, S_O3 = 40, 41, 42
    SK = 4

    def wr(tl):
        return [f"ds_write_b128 {v(V_LW)}, {v(V_ACC + 16 * tl + 8 * k + 4 * pc, 4)} offset:{tl * 8192 + pc * 1024 + k * 512}" for k in range(2) for pc in range(2)]

    def body(AH, sx):
        A.label(nm + "_" + sx)
        A(f"s_mov_b32 {s(S_L)}, {s(S_UL)}")
        A(f"s_mov_b32 {s(S_S)}, {s(S_US)}")
        A(f"s_mov_b32 {s(S_CB)}, {s(S_NB)}")
        A(f"s_add_u32 {s(S_U)}, {s(S_U)}, 1")
        L = Lds(A)
        V = Vm(A, [("I", k) for k in range(AH)])
        seq, pre, tasks = [], {}, []

        def vm(tag, x):
            return (cfg.vmc, lambda: V.op(tag, x))
        sq = [(k, tl) for k in range(24 - SK) for tl in range(2)] + [(k, tl) for tl in range(2) for k in range(24 - SK, 24)]
        for n, (k, tl) in enumerate(sq):
            if tl == 0:
                pre[n] = (lambda k=k: V.wait(("I", k)))
            c = "0" if k == 0 else v(V_ACC + 16 * tl, 16)
            seq.append((f"{MF} {v(V_ACC + 16 * tl, 16)}, {a((tl * 24 + k) * 4, 4)}, {v(V_IN + 4 * k, 4)}, {c}", []))
        dec = Capture()
        decode(dec)
        kc = max(2 * (24 - AH) - 3, cfg.kck)
        tdec = Task(0, groups(dec.l))
        tsm = Task(max(0, kc - cfg.ksl), [vm("S", smp)])
        tsm.after = tdec
        tchk = Task(kc, [(4, lambda: V.wait("S"))] + check + [f"s_add_u32 {s(S_NG)}, {s(S_NB)}, {s(S_GO)}"])
        tchk.after = tsm
        tcur = Task(0, [])
        for kk in range(AH, 24):
            ls = ld(kk, S_CB, kk == AH)
            tcur.items += ls[:-1] + [vm(("I", kk), ls[-1])]
        tcur.vstep = 2
        tnx = Task(0, [])
        for kk in range(AH):
            ls = ld(kk, S_NG)

            def nx(kk=kk, x=ls[-1]):
                assert GAP[0] >= sq.index((kk, 1)) and not tcur.items
                V.op(("N", kk), x)
            tnx.items += ls[:-1] + [(cfg.vmc, nx)]
        tnx.vstep = 2 if kc + 1 + 2 * AH <= 48 else 1
        tnx.after = tchk
        assert kc >= 2 * (24 - AH) - 3

        def f1():
            V.wait(("I", AH))
            flag_put(A, S_FA1)
            V.q.append("f")
            A(f"s_mov_b32 {s(S_FA1)}, {HUGE}")
        misc = [f"v_xor_b32 {v(V_LW)}, 0x8000, {v(V_LW)}", f"v_xor_b32 {v(V_LR)}, 0x8000, {v(V_LR)}"]
        late = []
        if wo:
            misc += [f"s_mul_i32 {s(S_O1)}, {s(S_S)}, {WOP_SEG}", f"s_add_u32 {s(S_O1)}, {s(S_O1)}, {s(S_OUT)}",
                     f"s_lshl_b32 {s(E + 1)}, {s(S_L)}, 6", f"s_add_u32 {s(E + 1)}, {s(E + 1)}, {s(S_S)}", f"s_mul_i32 {s(E + 1)}, {s(E + 1)}, 640",
                     f"s_add_u32 {s(S_O3)}, {s(E + 1)}, {s(S_FW)}"]
        else:
            misc += [f"s_lshl_b32 {s(E)}, {s(S_L)}, 6", f"s_add_u32 {s(E)}, {s(E)}, {s(S_S)}",
                     f"s_and_b32 {s(E + 1)}, {s(S_S)}, {NX - 1}", f"s_lshl3_add_u32 {s(E + 1)}, {s(S_L)}, {s(E + 1)}",
                     f"s_mul_i32 {s(E + 1)}, {s(E + 1)}, {XSEGS}", f"s_add_u32 {s(E + 1)}, {s(E + 1)}, {s(S_CH)}", f"s_add_u32 {s(E + 1)}, {s(E + 1)}, {X1B}",
                     vm("X1", f"buffer_load_dwordx4 {v(V_XX, 4)}, {v(V_L16)}, {WS}, {s(E + 1)} offen sc1"),
                     f"s_mul_i32 {s(E + 1)}, {s(E)}, {XSEG}", f"s_add_u32 {s(E + 1)}, {s(E + 1)}, {s(S_CH)}", f"s_add_u32 {s(E + 1)}, {s(E + 1)}, {XM}",
                     f"s_lshl_b32 {s(S_FA2)}, {s(E)}, 9", f"s_lshl2_add_u32 {s(S_FA2)}, {s(S_IDX)}, {s(S_FA2)}",
                     f"s_add_u32 {s(S_O3)}, {s(S_FA2)}, {flag_row(F_XIN, 1)}", f"s_add_u32 {s(S_FA2)}, {s(S_FA2)}, {flag_row(F_D4)}",
                     f"s_mul_i32 {s(S_O2)}, {s(S_S)}, {XSEGS}", f"s_add_u32 {s(S_O2)}, {s(S_O2)}, {XIN + 64 * XSEGS}",
                     f"s_add_u32 {s(S_O1)}, {s(S_O2)}, {s(S_CH)}", f"s_lshr_b32 {s(E)}, {s(S_CH)}, 3", f"s_add_u32 {s(S_O2)}, {s(S_O2)}, {s(E)}",
                     f"s_add_u32 {s(S_O2)}, {s(S_O2)}, 40960",
                     f"s_mul_i32 {s(E)}, {s(S_S)}, {32 * 1280}", f"s_cmp_lg_u32 {s(S_L)}, 0\ns_cselect_b32 {s(S_O1)}, {s(E)}, {s(S_O1)}\ns_cselect_b32 {s(S_O3)}, {HUGE}, {s(S_O3)}"]
            txm = Task(0, [vm("X", f"buffer_load_dwordx4 {v(V_XX + 4, 4)}, {v(V_P16)}, {WS}, {s(E + 1)} offen sc1")])
            cu = Capture()
            unpack8(cu, V_XU, V_XX)
            tx1 = Task(36, [(4, lambda: V.wait("X1"))] + cu.l)
            late = [txm, tx1]
        tm = Task(1, misc)
        gate = Task(0, [(0, lambda: None)])
        gate.after = tm
        if late:
            gate2 = Task(0, [(0, lambda: None)])
            gate2.after = tcur
            late[0].after = gate2
            late[0].rel = 20
            late = [gate2] + late
        ts2 = Task(cfg.ks2, [vm("S2", smp)])
        ts2.after = tchk
        tw0 = Task(45, [("w", x) for x in wr(0)[:cfg.kw0]])
        sched(A, L, seq, [tcur, Task(cfg.kkf if AH == AW else 0, [(24, f1)] if AH == AW else []), tdec, tsm, tchk] + late + [tnx, tm, ts2, tw0], pre=pre, budget=24, nvalu=5)
        st(3)
        ep = A.newlabel("ep")
        for x in wr(0)[cfg.kw0:]:
            A(x)
        A(f"s_mov_b32 {s(S_DEF)}, {AH}")
        A(f"s_cmp_eq_u32 {s(S_GO)}, 0")
        A.nf(f"s_cbranch_scc1 {ep}")
        q_ = list(V.q)
        V.wait("S2")
        V.q = q_
        for x in check:
            A(x)
        A(f"s_mov_b32 {s(S_DEF)}, 0")
        A.label_nf(ep)
        A(f"s_nop {4 + cfg.kw0}")
        for x in wr(1):
            A(x)
        if not wo:
            V.wait("X")
            flag_put(A, S_FA2, local_in)
            unpack8(A, V_XU + 8, V_XX + 4)
        if sx == "C":
            A(f"s_branch {nm}_E")

    A(f"s_mov_b32 {s(S_U)}, 0")
    A(f"s_mov_b32 {s(S_FA1)}, {HUGE}")
    decode(A)
    st.init()
    A.label(nm + "_COLD")
    sv = cfg.fsl
    cfg.fsl = cfg.bps if local_in else cfg.wgp - 1
    flag_block(A, S_UF)
    cfg.fsl = sv
    st(6)
    for k in range(AC):
        for x in ld(k, S_NB):
            A(x)
        if cfg.ksp and k < AC - 1:
            A(f"s_nop {cfg.ksp - 1}")
    body(AC, "C")
    body(AW, "W")
    A.label(nm + "_E")
    e2 = A.newlabel("e2")
    A(f"s_cmp_lg_u32 {s(S_GO)}, 0")
    A(f"s_cbranch_scc1 {e2}")
    A(f"s_cmp_eq_u32 {s(S_DEF)}, {AW}")
    A(f"s_cbranch_scc1 {e2}")
    A(f"s_cmp_eq_u32 {s(S_DEF)}, {AC}")
    A(f"s_cbranch_scc1 {e2}c")
    for k in range(AC):
        for x in ld(k, S_NB):
            A(x)
    A.label(e2 + "c")
    for k in range(AC, AW):
        for x in ld(k, S_NB, k == AC):
            A(x)
    A.label(e2)
    A("s_waitcnt lgkmcnt(0)")
    A("s_barrier")
    for i in range(8):
        A(f"ds_read_b128 {v(V_RD + 4 * i, 4)}, {v(V_LR)} offset:{i * 1024}")
    A("s_waitcnt lgkmcnt(4)")
    for i in range(0, 8, 2):
        A(f"v_pk_add_f32 {v(V_RD + i, 2)}, {v(V_RD + i, 2)}, {v(V_RD + 8 + i, 2)}")
    A("s_waitcnt lgkmcnt(0)")
    for i in range(0, 8, 2):
        A(f"v_pk_add_f32 {v(V_RD + 16 + i, 2)}, {v(V_RD + 16 + i, 2)}, {v(V_RD + 24 + i, 2)}")
    for i in range(0, 8, 2):
        A(f"v_pk_add_f32 {v(V_RD + i, 2)}, {v(V_RD + i, 2)}, {v(V_RD + 16 + i, 2)}")
    if wo:
        for k in range(2):
            A(f"buffer_store_dwordx4 {v(V_RD + 4 * k, 4)}, {v(V_OA)}, {WS}, {s(S_O1)} offen offset:{k * 256} sc1")
    else:
        X = [V_RD + i for i in range(8)]
        for i in range(0, 8, 2):
            rnd2(A, V_T, X[i], X[i + 1])
        for i in range(0, 8, 2):
            A(f"v_pk_add_f32 {v(X[i], 2)}, {v(X[i], 2)}, {v(V_XU + i, 2)}")
        for i in range(0, 8, 2):
            rnd2(A, V_T, X[i], X[i + 1])
        for i in range(0, 8, 2):
            A(f"v_pk_add_f32 {v(X[i], 2)}, {v(X[i], 2)}, {v(V_XU + 8 + i, 2)}")
        for i in range(0, 8, 2):
            A(f"v_cvt_pk_bf16_f32 {v(V_PK + i // 2)}, {v(X[i])}, {v(X[i + 1])}")
        l1, l2 = A.newlabel("w4o"), A.newlabel("w4n")
        A(f"s_cmp_lg_u32 {s(S_L)}, 0")
        A(f"s_cbranch_scc1 {l1}")
        A(f"buffer_store_dwordx4 {v(V_PK, 4)}, {v(V_P16)}, {WS}, {s(S_O1)} offen sc1")
        unpack8(A, V_RD, V_PK)
        t = V_T
        A(f"v_pk_add_f32 {v(t, 2)}, {v(X[0], 2)}, {v(X[2], 2)}")
        A(f"v_pk_mul_f32 {v(t + 2, 2)}, {v(X[0], 2)}, {v(X[0], 2)}")
        for i in range(2, 8, 2):
            if i >= 4:
                A(f"v_pk_add_f32 {v(t, 2)}, {v(t, 2)}, {v(X[i], 2)}")
            A(f"v_pk_fma_f32 {v(t + 2, 2)}, {v(X[i], 2)}, {v(X[i], 2)}, {v(t + 2, 2)}")
        A(f"v_add_f32 {v(t)}, {v(t)}, {v(t + 1)}")
        A(f"v_add_f32 {v(t + 1)}, {v(t + 2)}, {v(t + 3)}")
        A(f"v_permlane32_swap_b32 {v(t)}, {v(t + 1)}")
        A(f"v_add_f32 {v(t)}, {v(t)}, {v(t + 1)}")
        A(f"v_mov_b32 {v(t + 1)}, {v(t)}")
        A(f"v_permlane16_swap_b32 {v(t)}, {v(t + 1)}")
        A(f"v_add_f32 {v(t)}, {v(t)}, {v(t + 1)}")
        A(f"v_mov_b32 {v(t + 1)}, {v(t)}")
        A(f"v_permlane32_swap_b32 {v(t)}, {v(t + 1)}")
        A("s_mov_b64 exec, 0xffff")
        A(f"buffer_store_dwordx2 {v(t, 2)}, {v(V_SAD)}, {WS}, {s(S_O2)} offen sc1")
        A("s_mov_b64 exec, -1")
        A(f"s_branch {l2}")
        A.label(l1)
        A(f"buffer_store_dwordx2 {v(V_PK, 2)}, {v(V_OA)}, {s(SRD_O, 4)}, {s(S_O1)} offen")
        A(f"buffer_store_dwordx2 {v(V_PK + 2, 2)}, {v(V_OA)}, {s(SRD_O, 4)}, {s(S_O1)} offen offset:32")
        A.label(l2)
    A(f"s_mov_b32 {s(S_FA1)}, {s(S_O3)}")
    st(4)
    A(f"s_cmp_eq_u32 {s(S_GO)}, 0")
    A(f"s_cbranch_scc1 {nm}_W")
    A("s_waitcnt vmcnt(0)")
    flag_put(A, S_FA1)
    A(f"s_mov_b32 {s(S_FA1)}, {HUGE}")
    st(5)
    A(f"s_cmp_lt_u32 {s(S_U)}, 128")
    A(f"s_cbranch_scc1 {nm}_COLD")
    st.dump(83, T, V_T)
    if cfg.timing == 6 and not wo:
        A("s_memrealtime s[98:99]")
        A("s_waitcnt lgkmcnt(0)")
        A("s_sub_u32 s98, s98, s96")
        A(f"v_mov_b32 {v(V_T)}, s98")
        A(f"v_mov_b32 {v(V_T + 1)}, 28")
        A("s_mov_b64 exec, 1")
        A(f"buffer_store_dword {v(V_T)}, {v(V_T + 1)}, {s(SRD_DBG, 4)}, 0 offen")
    A("s_endpgm")
```

```python
import os
from common import *
from chain import gen_chain
import stations as ST
import stations32 as S32
import chain2 as C2M
import stations3 as S3


def gen_idle(A, cfg, nwg, name):
    A.label("ROLE_" + name)
    init_barrier_arrive(A, 12)
    init_barrier_wait(A, 12, nwg, cfg)
    A("s_endpgm")


PLACE = [
    [("CHAIN", 24), ("W4", 8)],
    [("CHAIN", 24), ("W4", 2), ("W1", 5), ("W3", 1)],
    [("CHAIN", 24), ("W3", 8)],
    [("CHAIN", 24), ("W3", 3), ("W2", 5)],
    [("WO", 10), ("ATT", 4), ("R1", 2), ("QKVQ", 11), ("QKVV", 5)],
    [("WO", 10), ("ATT", 4), ("R1", 2), ("QKVQ", 11), ("QKVV", 5)],
    [("WO", 5), ("ATT", 4), ("R1", 2), ("QKVQ", 13), ("QKVV", 7), ("SPARE", 1)],
    [("WO", 5), ("ATT", 4), ("R1", 2), ("QKVQ", 13), ("QKVV", 7), ("SPARE", 1)],
]
PLACES = {
    23: [
        [("CS", 16), ("CV", 8), ("CW", 8)],
        [("CS", 16), ("CV", 8), ("CW", 8)],
        [("W4", 10), ("W1", 5), ("W3", 12), ("W2", 5)],
        [("QKVQ", 12), ("QKVV", 8), ("R1", 12)],
        [("WO", 10), ("ATT", 8), ("QKVQ", 9), ("QKVV", 4), ("R1", 1)],
        [("WO", 10), ("ATT", 8), ("QKVQ", 9), ("QKVV", 4), ("R1", 1)],
        [("WO", 10), ("ATT", 8), ("QKVQ", 9), ("QKVV", 4), ("R1", 1)],
        [("WO", 10), ("ATT", 8), ("QKVQ", 9), ("QKVV", 4), ("R1", 1)],
    ],
    22: [
        [("CS", 16), ("CV", 8), ("CW", 8)],
        [("CS", 16), ("CV", 8), ("CW", 8)],
        [("W4", 10), ("W1", 5), ("W3", 12), ("W2", 5)],
        [("QKVQ", 8), ("QKVV", 8), ("R1", 16)],
        [("WO", 10), ("ATT", 8), ("QKVQ", 10), ("QKVV", 4)],
        [("WO", 10), ("ATT", 8), ("QKVQ", 10), ("QKVV", 4)],
        [("WO", 10), ("ATT", 8), ("QKVQ", 10), ("QKVV", 4)],
        [("WO", 10), ("ATT", 8), ("QKVQ", 10), ("QKVV", 4)],
    ],
    21: [
        [("CS", 16), ("CV", 8), ("CW", 8)],
        [("CS", 16), ("CV", 8), ("CW", 8)],
        [("W4", 10), ("W1", 5), ("W3", 12), ("W2", 5)],
        [("QKVQ", 12), ("QKVV", 4), ("ATT", 8), ("R1", 4), ("SPARE", 4)],
        [("WO", 10), ("ATT", 6), ("R1", 3), ("QKVQ", 8), ("QKVV", 4), ("SPARE", 1)],
        [("WO", 10), ("ATT", 6), ("R1", 3), ("QKVQ", 8), ("QKVV", 4), ("SPARE", 1)],
        [("WO", 5), ("ATT", 6), ("R1", 3), ("QKVQ", 10), ("QKVV", 6), ("SPARE", 2)],
        [("WO", 5), ("ATT", 6), ("R1", 3), ("QKVQ", 10), ("QKVV", 6), ("SPARE", 2)],
    ],
    20: [
        [("CS", 16), ("CV", 8), ("CW", 8)],
        [("CS", 16), ("CV", 8), ("CW", 8)],
        [("W4", 10), ("W1", 5), ("W3", 12), ("W2", 5)],
        [("QKVQ", 16), ("SPARE", 16)],
        [("WO", 10), ("ATT", 4), ("R1", 2), ("QKVQ", 7), ("QKVV", 5), ("SPARE", 4)],
        [("WO", 10), ("ATT", 4), ("R1", 2), ("QKVQ", 7), ("QKVV", 5), ("SPARE", 4)],
        [("WO", 5), ("ATT", 4), ("R1", 2), ("QKVQ", 9), ("QKVV", 7), ("SPARE", 5)],
        [("WO", 5), ("ATT", 4), ("R1", 2), ("QKVQ", 9), ("QKVV", 7), ("SPARE", 5)],
    ],
    16: [
        [("CHAIN", 24), ("W4", 8)],
        [("CHAIN", 24), ("W4", 2), ("W1", 5), ("W3", 1)],
        [("CHAIN", 24), ("QKVV", 8)],
        [("CHAIN", 24), ("QKVV", 8)],
        [("WO", 10), ("ATT", 4), ("R1", 2), ("QKVQ", 10), ("QKVV", 2), ("W3", 4)],
        [("WO", 10), ("ATT", 4), ("R1", 2), ("QKVQ", 10), ("QKVV", 2), ("W3", 4)],
        [("WO", 5), ("ATT", 4), ("R1", 2), ("QKVQ", 14), ("QKVV", 2), ("W3", 3), ("SPARE", 2)],
        [("WO", 5), ("ATT", 4), ("R1", 2), ("QKVQ", 14), ("QKVV", 2), ("W2", 5)],
    ],
    17: [
        [("CHAIN", 24), ("W4", 8)],
        [("CHAIN", 24), ("W4", 2), ("W1", 5), ("W3", 1)],
        [("CHAIN", 24), ("QKVQ", 8)],
        [("CHAIN", 24), ("QKVQ", 8)],
        [("WO", 8), ("ATT", 4), ("R1", 2), ("QKVQ", 8), ("QKVV", 6), ("W3", 4)],
        [("WO", 7), ("ATT", 4), ("R1", 2), ("QKVQ", 8), ("QKVV", 6), ("W3", 4), ("SPARE", 1)],
        [("WO", 8), ("ATT", 4), ("R1", 2), ("QKVQ", 8), ("QKVV", 6), ("W3", 3), ("SPARE", 1)],
        [("WO", 7), ("ATT", 4), ("R1", 2), ("QKVQ", 8), ("QKVV", 6), ("W2", 5)],
    ],
    18: [
        [("CHAIN", 24), ("W4", 8)],
        [("CHAIN", 24), ("W4", 2), ("WO", 5), ("W3", 1)],
        [("CHAIN", 24), ("QKVQ", 8)],
        [("CHAIN", 24), ("QKVQ", 8)],
        [("WO", 10), ("ATT", 4), ("R1", 2), ("QKVQ", 7), ("QKVV", 5), ("W3", 4)],
        [("WO", 5), ("ATT", 4), ("R1", 2), ("QKVQ", 7), ("QKVV", 5), ("W3", 4), ("W1", 5)],
        [("WO", 5), ("ATT", 4), ("R1", 2), ("QKVQ", 9), ("QKVV", 7), ("W3", 3), ("SPARE", 2)],
        [("WO", 5), ("ATT", 4), ("R1", 2), ("QKVQ", 9), ("QKVV", 7), ("W2", 5)],
    ],
    13: [
        [("CHAIN", 24), ("QKVQ", 8)],
        [("CHAIN", 24), ("QKVQ", 8)],
        [("CHAIN", 24), ("QKVQ", 8)],
        [("CHAIN", 24), ("QKVQ", 8)],
        [("WO", 10), ("ATT", 4), ("R1", 2), ("QKVQ", 3), ("QKVV", 5), ("W3", 3), ("W4", 3), ("W1", 2)],
        [("WO", 10), ("ATT", 4), ("R1", 2), ("QKVQ", 3), ("QKVV", 5), ("W3", 3), ("W4", 3), ("W1", 2)],
        [("WO", 5), ("ATT", 4), ("R1", 2), ("QKVQ", 5), ("QKVV", 7), ("W3", 3), ("W4", 2), ("W1", 1), ("W2", 2), ("SPARE", 1)],
        [("WO", 5), ("ATT", 4), ("R1", 2), ("QKVQ", 5), ("QKVV", 7), ("W3", 3), ("W4", 2), ("W2", 3), ("SPARE", 1)],
    ],
    14: [
        [("CHAIN", 24), ("W4", 5), ("QKVV", 3)],
        [("CHAIN", 24), ("W4", 5), ("QKVV", 3)],
        [("CHAIN", 24), ("QKVV", 8)],
        [("CHAIN", 24), ("QKVV", 8)],
        [("WO", 10), ("ATT", 4), ("R1", 2), ("QKVQ", 11), ("W1", 5)],
        [("WO", 10), ("ATT", 4), ("R1", 2), ("QKVQ", 11), ("W2", 5)],
        [("WO", 5), ("ATT", 4), ("R1", 2), ("QKVQ", 13), ("QKVV", 1), ("W3", 6), ("SPARE", 1)],
        [("WO", 5), ("ATT", 4), ("R1", 2), ("QKVQ", 13), ("QKVV", 1), ("W3", 6), ("SPARE", 1)],
    ],
    15: [
        [("CHAIN", 24), ("W4", 8)],
        [("CHAIN", 24), ("W4", 2), ("QKVQ", 6)],
        [("CHAIN", 24), ("QKVQ", 8)],
        [("CHAIN", 24), ("QKVQ", 8)],
        [("WO", 8), ("ATT", 4), ("R1", 2), ("QKVQ", 7), ("QKVV", 6), ("W1", 5)],
        [("WO", 7), ("ATT", 4), ("R1", 2), ("QKVQ", 7), ("QKVV", 6), ("W3", 6)],
        [("WO", 8), ("ATT", 4), ("R1", 2), ("QKVQ", 6), ("QKVV", 6), ("W2", 5), ("SPARE", 1)],
        [("WO", 7), ("ATT", 4), ("R1", 2), ("QKVQ", 6), ("QKVV", 6), ("W3", 6), ("SPARE", 1)],
    ],
    10: [
        [("CHAIN", 24), ("W4", 8)],
        [("CHAIN", 24), ("W4", 2), ("W1", 5), ("W3", 1)],
        [("CHAIN", 24), ("QKVQ", 8)],
        [("CHAIN", 24), ("QKVQ", 8)],
        [("WO", 10), ("ATT", 4), ("R1", 2), ("QKVQ", 7), ("QKVV", 5), ("W3", 4)],
        [("WO", 10), ("ATT", 4), ("R1", 2), ("QKVQ", 7), ("QKVV", 5), ("W3", 4)],
        [("WO", 5), ("ATT", 4), ("R1", 2), ("QKVQ", 9), ("QKVV", 7), ("W3", 3), ("SPARE", 2)],
        [("WO", 5), ("ATT", 4), ("R1", 2), ("QKVQ", 9), ("QKVV", 7), ("W2", 5)],
    ],
    11: [
        [("CHAIN", 24), ("W4", 6), ("QKVV", 2)],
        [("CHAIN", 24), ("W4", 4), ("W1", 2), ("QKVV", 2)],
        [("CHAIN", 24), ("W3", 6), ("QKVV", 2)],
        [("CHAIN", 24), ("W3", 1), ("W2", 5), ("QKVV", 2)],
        [("WO", 10), ("ATT", 4), ("R1", 2), ("QKVQ", 11), ("QKVV", 3), ("W3", 2)],
        [("WO", 10), ("ATT", 4), ("R1", 2), ("QKVQ", 11), ("QKVV", 3), ("W3", 2)],
        [("WO", 5), ("ATT", 4), ("R1", 2), ("QKVQ", 13), ("QKVV", 5), ("W1", 3)],
        [("WO", 5), ("ATT", 4), ("R1", 2), ("QKVQ", 13), ("QKVV", 5), ("W3", 1), ("SPARE", 2)],
    ],
    12: [
        [("CHAIN", 24), ("W4", 8)],
        [("CHAIN", 24), ("W4", 2), ("W1", 5), ("W3", 1)],
        [("CHAIN", 24), ("W3", 8)],
        [("CHAIN", 24), ("W3", 3), ("W2", 5)],
        [("WO", 8), ("ATT", 4), ("R1", 2), ("QKVQ", 12), ("QKVV", 6)],
        [("WO", 7), ("ATT", 4), ("R1", 2), ("QKVQ", 12), ("QKVV", 6), ("SPARE", 1)],
        [("WO", 8), ("ATT", 4), ("R1", 2), ("QKVQ", 12), ("QKVV", 6)],
        [("WO", 7), ("ATT", 4), ("R1", 2), ("QKVQ", 12), ("QKVV", 6), ("SPARE", 1)],
    ],
    9: [
        [("CHAIN", 24), ("W4", 8)],
        [("CHAIN", 24), ("W4", 2), ("W1", 5), ("PROBE", 1)],
        [("CHAIN", 24), ("W3", 8)],
        [("CHAIN", 24), ("W3", 3), ("W2", 5)],
        [("WO", 10), ("ATT", 4), ("R1", 2), ("QKVQ", 11), ("QKVV", 5)],
        [("WO", 10), ("ATT", 4), ("R1", 2), ("QKVQ", 11), ("QKVV", 5)],
        [("WO", 5), ("ATT", 4), ("R1", 2), ("QKVQ", 13), ("QKVV", 7), ("W3", 1)],
        [("WO", 5), ("ATT", 4), ("R1", 2), ("QKVQ", 13), ("QKVV", 7), ("SPARE", 1)],
    ],
    6: [
        [("CHAIN", 24), ("W1", 5), ("W3", 3)],
        [("CHAIN", 24), ("W2", 5), ("W3", 3)],
        [("CHAIN", 24), ("W3", 6), ("SPARE", 2)],
        [("CHAIN", 24), ("R1", 8)],
        [("WO", 10), ("ATT", 4), ("W4", 2), ("QKVQ", 11), ("QKVV", 5)],
        [("WO", 10), ("ATT", 4), ("W4", 2), ("QKVQ", 11), ("QKVV", 5)],
        [("WO", 5), ("ATT", 4), ("W4", 3), ("QKVQ", 13), ("QKVV", 7)],
        [("WO", 5), ("ATT", 4), ("W4", 3), ("QKVQ", 13), ("QKVV", 7)],
    ],
    7: [
        [("CHAIN", 24), ("W1", 5), ("W4", 3)],
        [("CHAIN", 24), ("W2", 5), ("W4", 3)],
        [("CHAIN", 24), ("W3", 4), ("W4", 2), ("SPARE", 2)],
        [("CHAIN", 24), ("W3", 6), ("W4", 2)],
        [("WO", 10), ("ATT", 4), ("R1", 2), ("QKVQ", 11), ("QKVV", 5)],
        [("WO", 10), ("ATT", 4), ("R1", 2), ("QKVQ", 11), ("QKVV", 5)],
        [("WO", 5), ("ATT", 4), ("R1", 2), ("QKVQ", 13), ("QKVV", 7), ("W3", 1)],
        [("WO", 5), ("ATT", 4), ("R1", 2), ("QKVQ", 13), ("QKVV", 7), ("W3", 1)],
    ],
    8: [
        [("CHAIN", 24), ("ATT", 4), ("R1", 2), ("W1", 2)],
        [("CHAIN", 24), ("ATT", 4), ("R1", 2), ("W1", 2)],
        [("CHAIN", 24), ("ATT", 4), ("R1", 2), ("W1", 1), ("SPARE", 1)],
        [("CHAIN", 24), ("ATT", 4), ("R1", 2), ("W2", 1), ("SPARE", 1)],
        [("WO", 10), ("W4", 3), ("W3", 3), ("QKVQ", 11), ("QKVV", 5)],
        [("WO", 10), ("W4", 3), ("W3", 3), ("QKVQ", 11), ("QKVV", 5)],
        [("WO", 5), ("W4", 2), ("W3", 3), ("W2", 2), ("QKVQ", 13), ("QKVV", 7)],
        [("WO", 5), ("W4", 2), ("W3", 3), ("W2", 2), ("QKVQ", 13), ("QKVV", 7)],
    ],
    3: [
        [("CHAIN", 24), ("R1", 8)],
        [("CHAIN", 24), ("W1", 5), ("SPARE", 2), ("W3", 1)],
        [("CHAIN", 24), ("W2", 5), ("W3", 3)],
        [("CHAIN", 24), ("W3", 8)],
        [("WO", 10), ("ATT", 4), ("QKVQ", 12), ("QKVV", 6)],
        [("WO", 10), ("ATT", 4), ("QKVQ", 12), ("QKVV", 6)],
        [("WO", 5), ("ATT", 4), ("QKVQ", 7), ("QKVV", 6), ("W4", 10)],
        [("WO", 5), ("ATT", 4), ("QKVQ", 17), ("QKVV", 6)],
    ],
    4: [
        [("CHAIN", 24), ("ATT", 8)],
        [("CHAIN", 24), ("ATT", 8)],
        [("CHAIN", 24), ("R1", 8)],
        [("CHAIN", 24), ("W1", 5), ("SPARE", 2), ("W3", 1)],
        [("WO", 10), ("W2", 5), ("QKVQ", 11), ("QKVV", 6)],
        [("WO", 10), ("W3", 5), ("QKVQ", 11), ("QKVV", 6)],
        [("WO", 5), ("QKVQ", 11), ("QKVV", 6), ("W4", 10)],
        [("WO", 5), ("W3", 6), ("QKVQ", 15), ("QKVV", 6)],
    ],
    5: [
        [("CHAIN", 24), ("W4", 5), ("W1", 3)],
        [("CHAIN", 24), ("W4", 5), ("W1", 2), ("SPARE", 1)],
        [("CHAIN", 24), ("W3", 6), ("W2", 2)],
        [("CHAIN", 24), ("W3", 4), ("W2", 3), ("SPARE", 1)],
        [("WO", 10), ("ATT", 4), ("R1", 2), ("QKVQ", 11), ("QKVV", 5)],
        [("WO", 10), ("ATT", 4), ("R1", 2), ("QKVQ", 11), ("QKVV", 5)],
        [("WO", 5), ("ATT", 4), ("R1", 2), ("QKVQ", 13), ("QKVV", 7), ("W3", 1)],
        [("WO", 5), ("ATT", 4), ("R1", 2), ("QKVQ", 13), ("QKVV", 7), ("W3", 1)],
    ],
    1: [
        [("CHAIN", 24), ("W1", 5), ("QKVQ", 3)],
        [("CHAIN", 24), ("W2", 5), ("QKVQ", 3)],
        [("CHAIN", 24), ("W3", 6), ("SPARE", 1), ("QKVQ", 1)],
        [("CHAIN", 24), ("W3", 6), ("SPARE", 1), ("QKVQ", 1)],
        [("WO", 10), ("ATT", 4), ("R1", 2), ("QKVQ", 10), ("QKVV", 6)],
        [("WO", 10), ("ATT", 4), ("R1", 2), ("QKVQ", 10), ("QKVV", 6)],
        [("WO", 5), ("ATT", 4), ("R1", 2), ("QKVQ", 5), ("QKVV", 6), ("W4", 10)],
        [("WO", 5), ("ATT", 4), ("R1", 2), ("QKVQ", 15), ("QKVV", 6)],
    ],
    2: [
        [("CHAIN", 24), ("QKVQ", 8)],
        [("CHAIN", 24), ("QKVQ", 8)],
        [("CHAIN", 24), ("QKVQ", 7), ("SPARE", 1)],
        [("CHAIN", 24), ("QKVQ", 7), ("SPARE", 1)],
        [("WO", 10), ("ATT", 4), ("R1", 2), ("W1", 5), ("W2", 5), ("QKVV", 6)],
        [("WO", 10), ("ATT", 4), ("R1", 2), ("QKVQ", 10), ("QKVV", 6)],
        [("WO", 5), ("ATT", 4), ("R1", 2), ("QKVQ", 5), ("QKVV", 6), ("W4", 10)],
        [("WO", 5), ("ATT", 4), ("R1", 2), ("QKVQ", 3), ("QKVV", 6), ("W3", 12)],
    ],
}
ROLE_BITS = ["CHAIN", "QKVQ", "QKVV", "ATT", "WO", "R1", "W1", "W2", "W3", "W4"]


DOC = """; ---------------------------------------------------------------------------------------------
; ---------------------------------------------------------------------------------------------
"""


def gen_probe(A, cfg, nwg):
    A.label("ROLE_PROBE")
    lab = A.newlabel("pb")
    A(f"s_cmp_lg_u32 {s(S_WAVE)}, 0")
    A(f"s_cbranch_scc1 {lab}")
    A("s_mov_b64 exec, 1")
    A("v_mov_b32 v12, 0")
    A("s_mov_b32 s50, -1")
    A("s_mov_b32 s51, -1")
    A("s_mov_b32 s52, 0")
    A.label("PROBE_LOOP")
    A("s_and_b32 s53, s52, 7")
    A("s_lshl_b32 s53, s53, 14")
    A(f"s_add_u32 s53, s53, {XP + 0x140000}")
    for par in range(2):
        if par:
            A("s_add_u32 s53, s53, 0x2000")
        A("s_memtime s[54:55]")
        A("s_waitcnt lgkmcnt(0)")
        A(f"buffer_store_dword v12, v12, {s(SRD_WS, 4)}, s53 offen sc1")
        A("s_waitcnt vmcnt(0)")
        A(f"buffer_load_dword v13, v12, {s(SRD_WS, 4)}, s53 offen sc1")
        A("s_waitcnt vmcnt(0)")
        A("s_memtime s[56:57]")
        A("s_waitcnt lgkmcnt(0)")
        A("s_sub_u32 s58, s56, s54")
        A(f"s_min_u32 s{50 + par}, s{50 + par}, s58")
    A("s_add_u32 s52, s52, 1")
    A(f"s_cmp_lt_u32 s52, {cfg.nprobe}")
    A("s_cbranch_scc1 PROBE_LOOP")
    A("s_cmp_lt_u32 s51, s50")
    A("s_cselect_b32 s52, 0x2000, 0")
    A("v_mov_b32 v13, s52")
    A("v_mov_b32 v12, 12")
    A(f"buffer_store_dword v13, v12, {s(SRD_DBG, 4)}, 0 offen sc1")
    if cfg.timing:
        A("v_mov_b32 v13, s50")
        A(f"buffer_store_dword v13, v12, {s(SRD_DBG, 4)}, 0 offen offset:56 sc1")
        A("v_mov_b32 v13, s51")
        A(f"buffer_store_dword v13, v12, {s(SRD_DBG, 4)}, 0 offen offset:60 sc1")
    A("s_mov_b64 exec, -1")
    A.label(lab)
    init_barrier_arrive(A, 12)
    init_barrier_wait(A, 12, nwg, cfg)
    A("s_endpgm")


def gen(cfg):
    A = Asm()
    nwg = 256
    CFG[0] = cfg
    ST.TSFLAG[0] = cfg.timing == 4
    if cfg.mode == "chain":
        cfg.off = 0x3fe
    active = [r for i, r in enumerate(ROLE_BITS) if not (cfg.off >> i) & 1]
    if cfg.c2:
        active = [r for r in active if r != "CHAIN"] + (["CS", "CV", "CW"] if "CHAIN" in active else [])
    if cfg.near and not cfg.vote:
        cfg.place = 9
        active.append("PROBE")
    K = NAME + "_kernel"
    head = open(os.path.join(os.path.dirname(os.path.abspath(__file__)), "..", NAME + ".s.ref")).read().split("\n")
    hdr = [l for l in head if l.startswith(";") and "@launch" not in l and "Override" not in l and "grid=ceil" not in l]
    out = "\n".join(hdr) + f"\n; @launch grid=({nwg},1,1) block=(256,1,1) lds=163840\n"
    out += '.amdgcn_target "amdgcn-amd-amdhsa--gfx950"\n.text\n'
    out += DOC
    out += f".globl {K}\n.p2align 8\n.type {K},@function\n{K}:\n"
    A(f"s_cmp_ge_u32 s2, {nwg}")
    A("s_cbranch_scc1 EXIT")
    A(f"s_load_dwordx16 {s(16, 16)}, s[0:1], 0")
    A(f"s_load_dwordx8 {s(32, 8)}, s[0:1], 64")
    A(f"s_load_dwordx4 {s(40, 4)}, s[0:1], 96")
    A(f"s_load_dwordx2 {s(44, 2)}, s[0:1], 112")
    A("v_lshrrev_b32 v1, 6, v0")
    A("v_and_b32 v0, 63, v0")
    A(f"v_readfirstlane_b32 {s(S_WAVE)}, v1")
    A(f"s_mov_b32 {s(S_SPIN)}, {cfg.spin}")
    A(f"s_mov_b32 {s(S_MODE)}, 0")
    if cfg.timing == 6:
        A("s_memrealtime s[96:97]")
    A("s_getreg_b32 s4, hwreg(HW_REG_XCC_ID)")
    A("s_and_b32 s4, s4, 7")
    A("s_waitcnt lgkmcnt(0)")
    make_srd(A, SRD_WS, P_WS, WS_BYTES)
    make_srd(A, SRD_DBG, P_DBG, 256)
    A("v_lshlrev_b32 v1, 4, v0")
    for i in range(4):
        A(f"v_mov_b32 v{4 + i}, 0")
    A("s_lshl_b32 s5, s2, 2")
    A(f"s_add_u32 s5, s5, {s(S_WAVE)}")
    A("s_lshl_b32 s5, s5, 10")
    if cfg.mode != "chain":
        A(f"buffer_store_dwordx4 v[4:7], v1, {s(SRD_WS, 4)}, s5 offen sc1")
    if cfg.near and cfg.vote and not cfg.vr:
        A("s_cmp_ge_u32 s4, 4")
        A("s_cbranch_scc1 VOTE_DONE")
        A(f"s_cmp_lg_u32 {s(S_WAVE)}, 1")
        A("s_cbranch_scc1 VOTE_DONE")
        if cfg.vote > 1:
            A(f"s_and_b32 s52, s2, {(cfg.vote - 1) << 3}")
            A("s_cbranch_scc1 VOTE_DONE")
        A("s_mov_b64 exec, 1")
        A("v_mov_b32 v12, 0")
        A("s_and_b32 s53, s2, 63")
        A("s_lshl_b32 s53, s53, 7")
        A("s_lshr_b32 s52, s2, 6")
        A("s_mul_i32 s52, s52, 3")
        A(f"s_add_u32 s52, s52, {s(S_WAVE)}")
        A("s_lshl_b32 s52, s52, 14")
        A("s_add_u32 s53, s53, s52")
        A(f"s_add_u32 s53, s53, {XP + 0x140000}")
        A("s_add_u32 s59, s53, 0x2000")
        A(f"buffer_store_dword v12, v12, {s(SRD_WS, 4)}, s53 offen sc1")
        A(f"buffer_store_dword v12, v12, {s(SRD_WS, 4)}, s59 offen sc1")
        A("s_waitcnt vmcnt(0)")
        for par in range(2):
            A("s_memtime s[54:55]")
            A("s_waitcnt lgkmcnt(0)")
            A(f"buffer_load_dword v13, v12, {s(SRD_WS, 4)}, s{59 if par else 53} offen sc1")
            A("s_waitcnt vmcnt(0)")
            A("s_memtime s[56:57]")
            A("s_waitcnt lgkmcnt(0)")
            A(f"s_sub_u32 s{50 + par}, s56, s54")
        A("s_cmp_lt_u32 s51, s50")
        A("s_cselect_b32 s52, 1, -1")
        A("v_mov_b32 v13, s52")
        A("v_mov_b32 v12, 192")
        A(f"buffer_atomic_add v13, v12, {s(SRD_DBG, 4)}, 0 offen sc1")
        A("s_mov_b64 exec, -1")
        A.label("VOTE_DONE")
    A("v_mov_b32 v2, 0")
    A(f"s_cmp_lg_u32 {s(S_WAVE)}, 0")
    A("s_cbranch_scc1 TK_DONE")
    A("s_mov_b64 exec, 1")
    A("v_mov_b32 v1, 1")
    A("s_lshl_b32 s5, s4, 2")
    A("v_mov_b32 v3, s5")
    A(f"buffer_atomic_add v1, v3, {s(SRD_DBG, 4)}, 0 offen offset:32 sc0 sc1")
    A("s_waitcnt vmcnt(0)")
    A("v_readfirstlane_b32 s5, v1")
    A("s_lshl_b32 s6, s4, 5")
    A("s_add_u32 s6, s6, s5")
    A("s_cmp_lt_u32 s5, 32")
    A("s_cselect_b32 s6, s6, 999")
    A("v_mov_b32 v1, s6")
    A("ds_write_b32 v2, v1")
    A("s_mov_b64 exec, -1")
    A("s_waitcnt lgkmcnt(0)")
    A.label("TK_DONE")
    A("s_barrier")
    A("ds_read_b32 v1, v2")
    A("s_waitcnt lgkmcnt(0)")
    A(f"v_readfirstlane_b32 {s(S_ROLEG)}, v1")
    A("s_barrier")
    if cfg.timing == 4:
        A("s_memrealtime s[98:99]")
        A("s_waitcnt lgkmcnt(0)")
        A("v_mov_b32 v1, s98")
        A("v_mov_b32 v2, 24")
        A(f"s_cmp_lg_u32 {s(S_ROLEG)}, 0")
        A("s_cbranch_scc1 DISPATCH")
        A(f"buffer_store_dword v1, v2, {s(SRD_DBG, 4)}, 0 offen")
    if cfg.c2:
        A("s_branch DISPATCH")
        C2M.gen_sv(A, cfg, nwg)
        C2M.gen_cw(A, cfg, nwg)
    A.label("DISPATCH")
    if cfg.timing:
        A(f"s_mov_b32 {s(S_GID)}, {s(S_ROLEG)}")
    pos = 0
    cnt = {}
    for xcd in PLACES.get(cfg.place, PLACE):
        assert sum(n for _, n in xcd) == 32
        for name, n in xcd:
            b = cnt.get(name, 0)
            cnt[name] = b + n
            A(f"s_sub_u32 {s(S_ROLE)}, {s(S_ROLEG)}, {pos - b}")
            A(f"s_cmp_lt_u32 {s(S_ROLEG)}, {pos + n}")
            A(f"s_cbranch_scc1 ROLE_{name if name in active else 'SPARE'}")
            pos += n
    assert cnt == dict(CHAIN=96, QKVQ=48, QKVV=24, ATT=16, WO=30, R1=8, W1=5, W2=5, W3=12, W4=10, SPARE=2) or cfg.near, cnt
    A("s_branch ROLE_SPARE")
    A.label("EXIT")
    A("s_endpgm")
    A.label("ABORT")
    A("s_mov_b64 exec, 1")
    A("v_mov_b32 v1, s2")
    A("v_add_u32 v1, 0x10000, v1")
    A("v_mov_b32 v2, 8")
    A(f"buffer_store_dword v1, v2, {s(SRD_DBG, 4)}, 0 offen")
    A("s_endpgm")
    gen_idle(A, cfg, nwg, "SPARE")
    gens = dict(CHAIN=lambda: gen_chain(A, cfg, nwg), QKVQ=lambda: S32.QKV32(A, cfg, nwg, False).gen(), QKVV=lambda: S32.QKV32(A, cfg, nwg, True).gen(),
                ATT=lambda: ST.gen_att(A, cfg, nwg), WO=lambda: S32.WO32(A, cfg, nwg).gen(), R1=lambda: ST.gen_r1(A, cfg, nwg),
                W1=lambda: S32.W1_32(A, cfg, nwg).gen(), W2=lambda: S32.W2_32(A, cfg, nwg).gen(), W3=lambda: S32.W3_32(A, cfg, nwg).gen(),
                W4=lambda: ST.gen_w4(A, cfg, nwg), PROBE=lambda: gen_probe(A, cfg, nwg),
                CS=lambda: None, CV=lambda: None, CW=lambda: None)
    if not cfg.s32:
        gens.update(QKVQ=lambda: ST.QKV(A, cfg, nwg, False).gen(), QKVV=lambda: ST.QKV(A, cfg, nwg, True).gen(), WO=lambda: ST.WO(A, cfg, nwg).gen(),
                    W1=lambda: ST.W1(A, cfg, nwg).gen(), W2=lambda: ST.W2(A, cfg, nwg).gen(), W3=lambda: ST.W3(A, cfg, nwg).gen())
    if cfg.g3 & 1:
        gens.update(QKVQ=lambda: S3.QKV3(A, cfg, nwg, False).gen(), QKVV=lambda: S3.QKV3(A, cfg, nwg, True).gen())
    if cfg.g3 & 32:
        gens.update(QKVQ=lambda: S3.QKV4(A, cfg, nwg, False).gen(), QKVV=lambda: S3.QKV4(A, cfg, nwg, True).gen())
    if cfg.g3 & 2:
        gens.update(W1=lambda: S3.W1_3(A, cfg, nwg).gen(), W2=lambda: S3.W2_3(A, cfg, nwg).gen(), W3=lambda: S3.W3_3(A, cfg, nwg).gen())
    if cfg.g3 & 4:
        gens.update(WO=lambda: S3.WO_3(A, cfg, nwg).gen())
    if cfg.g3 & 8:
        gens.update(W4=lambda: S3.gen_ks(A, cfg, nwg, False))
    if cfg.g3 & 16:
        gens.update(WO=lambda: S3.gen_ks(A, cfg, nwg, True))
    if cfg.g3 & 64:
        gens.update(WO=lambda: S3.WO5(A, cfg, nwg).gen(), R1=lambda: S3.gen_r3(A, cfg, nwg))
    for r in active:
        gens[r]()
    out += A.render()
    out += f""".section .rodata,"a"
.p2align 6
.amdhsa_kernel {K}
  .amdhsa_next_free_vgpr 512
  .amdhsa_next_free_sgpr 102
  .amdhsa_accum_offset 256
  .amdhsa_group_segment_fixed_size 0
  .amdhsa_kernarg_size 120
  .amdhsa_user_sgpr_count 2
  .amdhsa_user_sgpr_kernarg_segment_ptr 1
  .amdhsa_system_sgpr_workgroup_id_x 1
.end_amdhsa_kernel
"""
    return out, A.count()


if __name__ == "__main__":
    mode = sys.argv[1] if len(sys.argv) > 1 else "full"
    outp = sys.argv[2] if len(sys.argv) > 2 else "/code/" + NAME + ".s"
    kw = {}
    for arg in sys.argv[3:]:
        k, val = arg.split("=")
        kw[k] = int(val)
    if mode == "chain":
        kw.setdefault("timing", 1)
        cfg = Cfg(mode="chain", lstride=2 * QKV_SZ, **kw)
    else:
        cfg = Cfg(mode=mode, **kw)
    txt, n = gen(cfg)
    open(outp, "w").write(txt)
    print("instructions:", n, "bytes:", len(txt))
```

```python
from common import *
from stations import item_of, Capture

WS = s(SRD_WS, 4)
SM = "v_smfmac_f32_16x16x64_bf16"
MF = "v_mfma_f32_16x16x32_bf16"
NONE = 0x80000000
DF = ["sc1 ", "", "nt sc1 ", "sc0 sc1 ", "nt ", "sc0 nt sc1 "]

S_N, S_L, S_T, S_NL, S_NT, S_L2, S_T2, S_TAG, S_T1, S_PLA = range(50, 60)
T = 60
S_PXA, S_DPA, S_OIA, S_VMA, S_DOA, S_KSRC, S_KLDS, S_FLG1, S_FLG2, S_DEF = range(68, 78)
S_KP, S_FP, S_KCUR, S_FCUR = 78, 79, 80, 81
S_XB, S_PXR, S_HOFF, S_XGH, S_FXH, S_CS = 82, 83, 84, 85, 86, 87
S_MA, S_MB = 88, 90
S_X, S_J, S_KF, S_NTAG, S_NT1, S_OIH, S_VMH, S_DOH, S_ISV = 28, 29, 30, 31, 32, 33, 34, 35, 36
S_T0 = 38
V_LANE, V_L16, V_IDX = 0, 1, 2
V_T = 12


class Lds:
    def __init__(self, A):
        self.A, self.q = A, []

    def op(self, tag, text):
        self.A(text)
        self.q.append(tag)

    def wait(self, tag):
        if tag not in self.q:
            return
        i = len(self.q) - 1 - self.q[::-1].index(tag)
        n = len(self.q) - 1 - i
        self.A(f"s_waitcnt lgkmcnt({min(n, 15)})")
        if n <= 15:
            self.q = self.q[i + 1:]
        else:
            self.q = self.q[len(self.q) - 15:]

    def drain(self):
        self.A("s_waitcnt lgkmcnt(0)")
        self.q = []


GAP = [0]


def cost(x):
    if x.startswith("ds_"):
        return 8
    if x.startswith("buffer_"):
        return CFG[0].vmc
    if x.startswith("s_cbranch") or x.startswith("s_branch"):
        return 16
    if x.startswith("v_pk_") or x.split()[0] in ("v_exp_f32", "v_rcp_f32", "v_sqrt_f32", "v_rsq_f32"):
        return 8
    return 4


class Task:
    def __init__(self, rel, items, step=0):
        self.rel, self.items, self.step = rel, list(items), step
        self.vstep, self.after = 0, None


def sched(A, L, seq, tasks, pre=None, budget=12, nvalu=1, lim=None):
    pre = pre or {}

    def icost(it):
        if isinstance(it, tuple):
            return it[0] if callable(it[1]) else 8
        return sum(cost(y) for y in it.split("\n"))

    def isv(it):
        return 0 if isinstance(it, tuple) else sum(1 for y in it.split("\n") if y.startswith("v_"))

    def emit(it):
        if isinstance(it, tuple):
            if callable(it[1]):
                it[1]()
            else:
                L.op(it[0], it[1])
        else:
            A(it)

    def pending(tag):
        return [t for t in tasks if any(isinstance(i, tuple) and i[0] == tag for i in t.items)]
    over = 0
    for k, (txt, need) in enumerate(seq):
        if k in pre:
            pre[k]()
        for tag in need:
            for t in pending(tag):
                assert t.rel <= k, (tag, k)
                while pending(tag):
                    emit(t.items.pop(0))
                    over += 1
            L.wait(tag)
        A(txt)
        GAP[0] = k
        if lim:
            budget, nvalu = lim(k)
        rem, nv = budget, 0
        if k + 1 < len(seq) and any(tag in L.q for tag in seq[k + 1][1]):
            rem -= 4
        full = rem
        for t in tasks:
            while t.items and t.rel <= k and not (t.after and t.after.items):
                it = t.items[0]
                c = icost(it)
                big = isinstance(it, tuple) and callable(it[1]) and c == CFG[0].vmc
                if big and t.vstep and getattr(t, "vrel", 0) > k:
                    break
                if (c <= rem and nv + isv(it) <= nvalu) or (rem == full and rem >= budget - 4 and c > budget) or (budget > 16 and c >= budget - 4 and rem >= budget - 12):
                    emit(t.items.pop(0))
                    rem -= c
                    nv += isv(it)
                    if big and t.vstep:
                        t.vrel = k + t.vstep
                    if t.step and c > 0:
                        t.rel = k + t.step
                else:
                    break
    left = sum(len(t.items) for t in tasks)
    if CFG[0].verbose:
        print("sched: forced", over, "left", left)
    for t in tasks:
        while t.items:
            emit(t.items.pop(0))


def groups(lines):
    grp, cur = [], []
    for x in lines:
        if x.startswith("s_cselect") or x.startswith("s_addc"):
            cur.append(x)
        else:
            if cur:
                grp.append("\n".join(cur))
            cur = [x]
    if cur:
        grp.append("\n".join(cur))
    return grp


def cap(fn):
    c = Capture()
    fn(c)
    out = []
    for x in c.l:
        out += [y for y in x.split("\n") if y.strip()]
    return out


def spin_fail(A, nf=True):
    A(f"s_sub_u32 {s(S_SPIN)}, {s(S_SPIN)}, 1")
    A("s_cbranch_scc1 ABORT")


def doorbell(A, cfg, v_off, s_addr, vd):
    top, ok = A.newlabel("db"), A.newlabel("dbok")
    ld = f"buffer_load_dword {v(vd)}, {v(v_off)}, {WS}, {s(s_addr)} offen sc1"
    if not cfg.dpp2:
        A.label(top)
        A(ld)
        A("s_waitcnt vmcnt(0)")
        A(f"v_cmp_gt_u32 vcc, {s(S_T1)}, {v(vd)}")
        A.nf(f"s_cbranch_vccz {ok}")
        if cfg.dsl:
            A(f"s_sleep {cfg.dsl}")
        spin_fail(A)
        A(f"s_branch {top}")
        A.label_nf(ok)
        return
    ld2 = f"buffer_load_dword {v(vd + 1)}, {v(v_off)}, {WS}, {s(s_addr)} offen sc1"
    A(ld)
    A(f"s_sleep {cfg.dpp2}")
    A.label(top)
    A(ld2)
    A("s_waitcnt vmcnt(1)")
    A(f"v_cmp_gt_u32 vcc, {s(S_T1)}, {v(vd)}")
    A.nf(f"s_cbranch_vccz {ok}")
    A(ld)
    A("s_waitcnt vmcnt(1)")
    A(f"v_cmp_gt_u32 vcc, {s(S_T1)}, {v(vd + 1)}")
    A.nf(f"s_cbranch_vccz {ok}")
    spin_fail(A)
    A(f"s_branch {top}")
    A.label_nf(ok)


def common_setup(A, cfg, shift):
    A(f"s_lshr_b32 {s(S_X)}, {s(S_ROLE)}, {shift}")
    A(f"s_and_b32 {s(S_J)}, {s(S_ROLE)}, {(1 << shift) - 1}")
    A(f"s_mul_i32 {s(S_XB)}, {s(S_X)}, {C2_X}")
    A(f"s_add_u32 {s(S_XB)}, {s(S_XB)}, {C2}")
    A(f"v_lshlrev_b32 {v(V_L16)}, 4, {v(V_LANE)}")
    A(f"v_and_b32 {v(V_T)}, 1, {v(V_LANE)}")
    A(f"v_mul_u32_u24 {v(V_IDX)}, 0xaaaa, {v(V_T)}")
    A(f"v_or_b32 {v(V_IDX)}, 0x4444, {v(V_IDX)}")


def near_half(A, cfg, dst):
    if not cfg.near:
        return
    A(f"v_mov_b32 {v(V_T + 1)}, 192")
    if cfg.vr:
        top, out = A.newlabel("vw"), A.newlabel("vx")
        A(f"s_cmp_lg_u32 {s(S_MODE)}, 0")
        A(f"s_cbranch_scc1 {out}")
        A.label(top)
        A(f"buffer_load_dword {v(V_T)}, {v(V_T + 1)}, {s(SRD_DBG, 4)}, 0 offen sc1")
        A("s_waitcnt vmcnt(0)")
        A(f"v_and_b32 {v(V_T + 2)}, 0xffff, {v(V_T)}")
        A(f"v_cmp_ne_u32 vcc, 64, {v(V_T + 2)}")
        poll_tail(A, top, sleep=4)
        A(f"v_readfirstlane_b32 {s(T)}, {v(V_T)}")
        A(f"s_cmp_gt_u32 {s(T)}, {33 << 16}")
        A(f"s_cselect_b32 {s(T)}, 0x2000, 0")
        if cfg.near == 2:
            A(f"s_xor_b32 {s(T)}, {s(T)}, 0x2000")
        A(f"s_add_u32 {s(dst)}, {s(dst)}, {s(T)}")
        A.label(out)
        return
    A(f"buffer_load_dword {v(V_T)}, {v(V_T + 1)}, {s(SRD_DBG, 4)}, 0 offen sc1")
    A("s_waitcnt vmcnt(0)")
    A(f"v_readfirstlane_b32 {s(T)}, {v(V_T)}")
    A(f"s_cmp_gt_i32 {s(T)}, 0")
    A(f"s_cselect_b32 {s(T)}, 0x2000, 0")
    if cfg.near == 2:
        A(f"s_xor_b32 {s(T)}, {s(T)}, 0x2000")
    A(f"s_add_u32 {s(dst)}, {s(dst)}, {s(T)}")


def timing_end(A, cfg, stamp, idx_base):
    A(f"s_add_u32 {s(T + 1)}, {s(S_ROLE)}, {idx_base}")
    stamp.dump(T + 1, T, V_T)
    if cfg.timing and idx_base == 0:
        lab = A.newlabel("tm")
        A(f"s_memrealtime {s(S_T0 + 2, 2)}")
        A("s_waitcnt lgkmcnt(0)")
        A(f"s_cmp_lg_u32 {s(S_ROLE)}, 0")
        A(f"s_cbranch_scc1 {lab}")
        A(f"s_cmp_lg_u32 {s(S_WAVE)}, 0")
        A(f"s_cbranch_scc1 {lab}")
        A(f"s_sub_u32 {s(T)}, {s(S_T0 + 2)}, {s(S_T0)}")
        A(f"v_mov_b32 {v(V_T)}, {s(T)}")
        if cfg.timing == 6:
            A("s_memtime s[94:95]")
            A("s_waitcnt lgkmcnt(0)")
            A(f"s_sub_u32 {s(S_MODE)}, s94, s92")
        A(f"v_mov_b32 {v(V_T + 1)}, {s(S_MODE)}")
        A(f"v_mov_b32 {v(V_T + 2)}, 16")
        A("s_mov_b64 exec, 1")
        A(f"buffer_store_dwordx2 {v(V_T, 2)}, {v(V_T + 2)}, {s(SRD_DBG, 4)}, 0 offen")
        if cfg.timing == 6:
            A(f"s_sub_u32 {s(T)}, {s(S_T0)}, s100")
            A(f"v_mov_b32 {v(V_T)}, {s(T)}")
            A(f"buffer_store_dword {v(V_T)}, {v(V_T + 2)}, {s(SRD_DBG, 4)}, 0 offen offset:8")
        A.label(lab)
    A("s_endpgm")


def retry_dump(A, idx_base):
    A(f"s_add_u32 {s(T)}, {s(S_ROLE)}, {idx_base}")
    A(f"s_lshl_b32 {s(T)}, {s(T)}, 2")
    A(f"s_add_u32 {s(T)}, {s(T)}, {s(S_WAVE)}")
    A(f"s_lshl_b32 {s(T)}, {s(T)}, 6")
    A(f"s_add_u32 {s(T)}, {s(T)}, 0x100000")
    A("s_mov_b64 exec, 1")
    for k in range(5):
        A(f"v_mov_b32 {v(V_T)}, {s(92 + k)}")
        A(f"buffer_store_dword {v(V_T)}, {v(V_L16)}, {WS}, {s(T)} offen offset:{4 * k}")
    A("s_mov_b64 exec, -1")


class NoStamp:
    def init(self): pass
    def __call__(self, k): pass
    def dump(self, *a_): pass
    def flush(self): pass


class LightStamp(RawStamper):
    R = [16, 18, 20, 22, 24, 26, 96, 98]

    def __call__(self, k):
        self.A(f"s_memtime {s(self.R[k], 2)}")

    def flush(self):
        A, b = self.A, self.b
        lab = A.newlabel("fs")
        A(f"s_sub_u32 {s(b + 2)}, {s(self.s_t)}, {self.t0}")
        A(f"s_cmp_ge_u32 {s(b + 2)}, 7")
        A(f"s_cbranch_scc1 {lab}")
        A(f"s_lshl_b32 {s(b + 3)}, {s(b + 2)}, 3")
        A(f"s_lshl_b64 exec, 1, {s(b + 3)}")
        A("s_waitcnt lgkmcnt(0)")
        for k in range(8):
            A(f"v_mov_b32 {v(self.vr)}, {s(self.R[k])}")
            A(f"s_lshl_b64 exec, exec, 1")
        A("s_mov_b64 exec, -1")
        A(f"s_cmp_lg_u32 {s(b + 2)}, 0")
        A(f"s_cbranch_scc1 {lab}x")
        self.cal(56)
        A.label(lab + "x")
        A(f"s_sub_u32 {s(b + 2)}, {s(self.s_t)}, {self.t0}")
        A(f"s_cmp_lg_u32 {s(b + 2)}, 6")
        A(f"s_cbranch_scc1 {lab}")
        self.cal(60)
        A.label(lab)


def mk_stamp(A, cfg, vreg):
    return LightStamp(A, cfg, 92, S_N, vreg, t0=cfg.rawt0) if cfg.timing == 3 else NoStamp()


def flag_val(A, cfg, vr):
    if cfg.timing == 4:
        A(f"s_memrealtime {s(98, 2)}")
        A("s_waitcnt lgkmcnt(0)")
        A(f"s_or_b32 s98, s98, 1")
        A(f"v_mov_b32 {v(vr)}, s98")
    else:
        A(f"v_mov_b32 {v(vr)}, 1")


def gen_sv(A, cfg, nwg):
    LAG = cfg.LAG
    V_GB = 3
    V_XW, V_XR, V_OST, V_FLG, V_FV, V_DB = 6, 7, 8, 9, 10, 11
    V_KST, V_BW, V_MW, V_MW2 = 20, 21, 22, 23
    V_ACC = 24
    V_F = 48
    V_KA, V_G4 = 58, 59
    V_A = 60
    V_B = 72
    V_FREE = 88
    V_PL, V_PR = 60, 80
    V_STAMP = 111 if False else 19
    V_L16B = 18
    V_RDY = 58
    V_SY, V_SY3 = 20, 8
    V_KEEP = 100
    V_VS0, V_VS1 = 6, 7
    L_RES, L_KV, L_MEM, L_X = 0, 81920, 131072, 141312

    def wreg(slot, tile):
        idx = slot * 5 + tile
        return ("a", idx * 8) if idx < 32 else ("v", 112 + (idx - 32) * 8)

    def wtxt(slot, tile):
        if tile == 5:
            return v(V_B + 8 * (slot & 1), 8)
        k, r = wreg(slot, tile)
        return a(r, 8) if k == "a" else v(r, 8)

    g_, c_ = V_T + 2, V_T + 3

    def lane_gc():
        A(f"v_lshrrev_b32 {v(g_)}, 4, {v(V_LANE)}")
        A(f"v_and_b32 {v(c_)}, 15, {v(V_LANE)}")

    def sv_setup():
        for q in range(1, 4):
            A(f"s_add_u32 {s(T)}, {s(S_WAVE)}, {q}")
            A(f"s_and_b32 {s(T)}, {s(T)}, 3")
            A(f"s_lshl_b32 {s(T)}, {s(T)}, 11")
            A(f"s_add_u32 {s(T)}, {s(T)}, {L_MEM}")
            A(f"v_add_u32 {v(V_GB + q - 1)}, {s(T)}, {v(V_L16)}")
        A(f"v_add_u32 {v(V_G4)}, {L_MEM + 8192}, {v(V_L16)}")
        A(f"s_lshl_b32 {s(T)}, {s(S_WAVE)}, 11")
        A(f"s_add_u32 {s(T)}, {s(T)}, {L_MEM}")
        A(f"v_add_u32 {v(V_MW)}, {s(T)}, {v(V_L16)}")
        A(f"s_lshr_b32 {s(T)}, {s(S_WAVE)}, 1")
        A(f"s_lshl_b32 {s(T)}, {s(T)}, 10")
        A(f"s_and_b32 {s(T + 1)}, {s(S_WAVE)}, 1")
        A(f"s_lshl_b32 {s(T + 1)}, {s(T + 1)}, 3")
        A(f"s_add_u32 {s(T)}, {s(T)}, {s(T + 1)}")
        A(f"v_add_u32 {v(V_MW2)}, {s(T)}, {v(V_G4)}")
        A(f"s_mul_i32 {s(T)}, {s(S_WAVE)}, 20480")
        A(f"v_add_u32 {v(V_BW)}, {s(T)}, {v(V_L16)}")
        if cfg.pb:
            A(f"v_and_b32 {v(V_DB)}, 7, {v(V_LANE)}")
            A(f"v_lshlrev_b32 {v(V_DB)}, 2, {v(V_DB)}")
            A(f"v_bfe_u32 {v(V_T)}, {v(V_LANE)}, 3, 2")
            A(f"v_lshl_add_u32 {v(V_DB)}, {v(V_T)}, 7, {v(V_DB)}")
        else:
            A(f"v_min_u32 {v(V_DB)}, 7, {v(V_LANE)}")
            A(f"v_lshlrev_b32 {v(V_DB)}, 2, {v(V_DB)}")
        A(f"s_xor_b32 {s(T)}, {s(S_X)}, 1")
        A(f"s_lshl_b32 {s(T)}, {s(T)}, 19")
        A(f"s_lshl_b32 {s(T + 1)}, {s(S_WAVE)}, {11 if cfg.h16 else 14}")
        A(f"s_add_u32 {s(S_PXR)}, {s(T)}, {s(T + 1)}")
        A(f"s_add_u32 {s(S_PXR)}, {s(S_PXR)}, {XP}")

    A.label("ROLE_CS")
    if cfg.timing == 6:
        A("s_mov_b32 s100, s96")
    common_setup(A, cfg, 4)
    sv_setup()
    A(f"s_mov_b32 {s(S_ISV)}, 0")
    A(f"s_mov_b32 {s(S_MA)}, 0xcccccccc")
    A(f"s_mov_b32 {s(S_MA + 1)}, 0xcccccccc")
    A(f"s_mov_b32 {s(S_MB)}, 0x33333333")
    A(f"s_mov_b32 {s(S_MB + 1)}, 0x33333333")
    A(f"s_mov_b32 {s(S_CS)}, 0x3dd53b95")
    lane_gc()
    A(f"v_lshrrev_b32 {v(V_T)}, 2, {v(c_)}")
    A(f"v_add_u32 {v(V_T)}, {v(V_T)}, {v(g_)}")
    A(f"v_and_b32 {v(V_T)}, 3, {v(V_T)}")
    A(f"v_lshlrev_b32 {v(V_XW)}, 3, {v(V_T)}")
    A(f"v_lshl_add_u32 {v(V_XW)}, {v(c_)}, 5, {v(V_XW)}")
    A(f"s_mul_i32 {s(T)}, {s(S_WAVE)}, {512 if cfg.s3 == 1 else 1536}")
    A(f"s_add_u32 {s(T)}, {s(T)}, {L_X}")
    A(f"v_add_u32 {v(V_XW)}, {s(T)}, {v(V_XW)}")
    A(f"v_add_u32 {v(V_T)}, {v(V_LANE)}, {v(g_)}")
    A(f"v_and_b32 {v(V_T)}, 3, {v(V_T)}")
    A(f"v_lshlrev_b32 {v(V_XR)}, 3, {v(V_T)}")
    A(f"v_lshrrev_b32 {v(V_T)}, 2, {v(V_LANE)}")
    A(f"v_lshl_add_u32 {v(V_XR)}, {v(V_T)}, 5, {v(V_XR)}")
    A(f"v_add_u32 {v(V_XR)}, {L_X}, {v(V_XR)}")
    A(f"s_min_u32 {s(T + 2)}, {s(S_WAVE)}, 2")
    A(f"v_lshrrev_b32 {v(V_T)}, 2, {v(c_)}")
    A(f"v_and_b32 {v(V_T + 1)}, 1, {v(c_)}")
    A(f"v_lshl_add_u32 {v(V_T)}, {v(V_T)}, 1, {v(V_T + 1)}")
    A(f"v_bfe_u32 {v(V_T + 1)}, {v(c_)}, 1, 1")
    A(f"v_lshlrev_b32 {v(V_OST)}, 8, {v(g_)}")
    A(f"v_lshl_add_u32 {v(V_OST)}, {v(V_T)}, 5, {v(V_OST)}")
    A(f"v_xor_b32 {v(V_T + 4)}, 1, {v(V_T + 1)}")
    A(f"v_lshl_add_u32 {v(V_OST)}, {v(V_T + 4)}, 4, {v(V_OST)}")
    A(f"v_lshlrev_b32 {v(V_KST)}, 8, {v(g_)}")
    A(f"v_lshl_add_u32 {v(V_KST)}, {v(V_T + 1)}, 7, {v(V_KST)}")
    A(f"v_and_b32 {v(V_T + 4)}, 3, {v(V_T)}")
    A(f"v_lshl_add_u32 {v(V_KST)}, {v(V_T + 4)}, 5, {v(V_KST)}")
    A(f"v_lshrrev_b32 {v(V_T + 4)}, 2, {v(V_T)}")
    A(f"v_lshl_add_u32 {v(V_KST)}, {v(V_T + 4)}, 4, {v(V_KST)}")
    A(f"v_min_u32 {v(V_T)}, 5, {v(V_LANE)}")
    A(f"s_mul_i32 {s(T)}, {s(S_ROLE)}, 3")
    A(f"v_add_u32 {v(V_FLG)}, {s(T)}, {v(V_T)}")
    A(f"v_lshlrev_b32 {v(V_FLG)}, 2, {v(V_FLG)}")
    A(f"v_add_u32 {v(V_T + 1)}, {65536 - 12}, {v(V_FLG)}")
    A(f"v_cmp_lt_u32 vcc, 2, {v(V_T)}")
    A(f"v_cndmask_b32 {v(V_FLG)}, {v(V_FLG)}, {v(V_T + 1)}, vcc")
    A(f"s_mul_i32 {s(S_HOFF)}, {s(S_ROLE)}, 12288")
    A(f"s_add_u32 {s(S_HOFF)}, {s(S_HOFF)}, {KX}")
    A(f"s_mul_i32 {s(T)}, {s(S_J)}, 3072")
    A(f"s_lshl_b32 {s(T + 1)}, {s(T + 2)}, 10")
    A(f"s_add_u32 {s(T)}, {s(T)}, {s(T + 1)}")
    A(f"s_add_u32 {s(T)}, {s(T)}, {s(S_XB)}")
    A(f"s_add_u32 {s(S_OIH)}, {s(T)}, {OI_OFF}")
    A(f"s_add_u32 {s(S_VMH)}, {s(T)}, {VM_OFF}")
    A(f"s_mul_i32 {s(S_XGH)}, {s(S_ROLE)}, {XG2_HEAD}")
    A(f"s_add_u32 {s(S_XGH)}, {s(S_XGH)}, {XG}")
    A(f"s_lshl_b32 {s(S_FXH)}, {s(S_ROLE)}, 5")
    A(f"s_lshl_b32 {s(T + 1)}, {s(T + 2)}, 2")
    A(f"s_add_u32 {s(S_FXH)}, {s(S_FXH)}, {FXG}")
    A(f"s_lshr_b32 {s(T)}, {s(S_J)}, 2")
    A(f"s_lshl_b32 {s(T)}, {s(T)}, 7")
    A(f"s_and_b32 {s(T + 3)}, {s(S_J)}, 3")
    A(f"s_mul_i32 {s(T + 3)}, {s(T + 3)}, 12")
    A(f"s_add_u32 {s(T)}, {s(T)}, {s(T + 3)}")
    A(f"s_add_u32 {s(T)}, {s(T)}, {s(T + 1)}")
    A(f"s_add_u32 {s(T)}, {s(T)}, {s(S_XB)}")
    A(f"s_add_u32 {s(S_DOH)}, {s(T)}, {DO_OFF}")
    lab = A.newlabel("si")
    A(f"s_cmp_eq_u32 {s(S_WAVE)}, 3")
    A(f"s_cbranch_scc1 {lab}")
    A(f"v_mov_b32 {v(V_T)}, -1")
    A(f"v_mov_b32 {v(V_T + 1)}, 0")
    lst = []
    for k in range(8):
        lst.append(f"s_add_u32 {s(T)}, {s(S_OIH)}, {k * 49152}")
        lst.append(f"buffer_store_dword {v(V_T)}, {v(V_L16)}, {WS}, {s(T)} offen")
    lst.append("s_mov_b64 exec, 1")
    lst.append(f"buffer_store_dword {v(V_T + 1)}, {v(V_L16)}, {WS}, {s(S_DOH)} offen")
    lst.append(f"buffer_store_dword {v(V_T + 1)}, {v(V_L16)}, {WS}, {s(S_DOH)} offen offset:512")
    lst.append("s_mov_b64 exec, -1")
    lstore(A, lst)
    A.label(lab)
    V_DA = V_FREE + 16
    S_O0, S_O1 = S_KSRC, S_KLDS
    A(f"s_mul_i32 {s(S_O0)}, {s(S_ROLE)}, 384")
    A(f"s_mov_b32 {s(S_O1)}, {s(S_O0)}")

    def dma_addr(isv):
        for i in range(3):
            A(f"v_add_u32 {v(V_T)}, {64 * i}, {v(V_LANE)}")
            A(f"v_mul_u32_u24 {v(V_T + 1)}, 2731, {v(V_T)}")
            A(f"v_lshrrev_b32 {v(V_T + 1)}, 16, {v(V_T + 1)}")
            A(f"v_mul_u32_u24 {v(V_T + 4)}, 24, {v(V_T + 1)}")
            A(f"v_sub_u32 {v(V_T)}, {v(V_T)}, {v(V_T + 4)}")
            A(f"v_mul_u32_u24 {v(V_DA + i)}, 12288, {v(V_T + 1)}")
            A(f"v_lshl_add_u32 {v(V_DA + i)}, {v(V_T)}, 4, {v(V_DA + i)}")
            if not isv and cfg.s3 == 1:
                A(f"v_mul_u32_u24 {v(V_DA + i)}, 12288, {v(V_T + 1)}")
                A(f"v_mul_u32_u24 {v(V_T + 1)}, 43, {v(V_T)}")
                A(f"v_lshrrev_b32 {v(V_T + 1)}, 8, {v(V_T + 1)}")
                A(f"v_lshl_add_u32 {v(V_DA + i)}, {v(V_T + 1)}, 5, {v(V_DA + i)}")
                A(f"v_mul_u32_u24 {v(V_T + 1)}, 6, {v(V_T + 1)}")
                A(f"v_sub_u32 {v(V_T)}, {v(V_T)}, {v(V_T + 1)}")
                A(f"v_and_b32 {v(V_T + 1)}, 1, {v(V_T)}")
                A(f"v_lshl_add_u32 {v(V_DA + i)}, {v(V_T + 1)}, 4, {v(V_DA + i)}")
                A(f"v_bfe_u32 {v(V_T + 1)}, {v(V_T)}, 1, 1")
                A(f"v_lshl_add_u32 {v(V_DA + i)}, {v(V_T + 1)}, 8, {v(V_DA + i)}")
                A(f"v_bfe_u32 {v(V_T + 1)}, {v(V_T)}, 2, 1")
                A(f"v_lshl_add_u32 {v(V_DA + i)}, {v(V_T + 1)}, 7, {v(V_DA + i)}")
            if isv:
                A(f"v_mul_u32_u24 {v(V_T + 1)}, 43, {v(V_T)}")
                A(f"v_lshrrev_b32 {v(V_T + 1)}, 8, {v(V_T + 1)}")
                A(f"v_mul_u32_u24 {v(V_T + 1)}, 96, {v(V_T + 1)}")
                A(f"v_add_u32 {v(V_DA + i)}, {v(V_DA + i)}, {v(V_T + 1)}")
    dma_addr(False)
    make_srd(A, SRD_W, P_WQ, 640 * 12288)
    make_srd(A, 52, P_WK, 640 * 12288)
    A("s_branch SV_LOAD")

    A.label("ROLE_CV")
    common_setup(A, cfg, 3)
    sv_setup()
    A(f"s_mov_b32 {s(S_ISV)}, 1")
    for r in (V_OST, V_FLG, V_KST):
        A(f"v_mov_b32 {v(r)}, 0")
    A(f"s_and_b32 {s(T + 2)}, {s(S_WAVE)}, 1")
    A(f"s_lshl_b32 {s(T)}, {s(T + 2)}, 11")
    A(f"v_add_u32 {v(V_VS0)}, {s(T)}, {v(V_L16)}")
    A(f"s_lshl_b32 {s(T)}, {s(T + 2)}, 3")
    A(f"s_add_u32 {s(T)}, {s(T)}, 1024")
    A(f"v_add_u32 {v(V_VS1)}, {s(T)}, {v(V_L16)}")
    A(f"s_lshr_b32 {s(T + 1)}, {s(S_WAVE)}, 1")
    A(f"s_lshl_b32 {s(T)}, {s(S_J)}, 1")
    A(f"s_add_u32 {s(T)}, {s(T)}, {s(T + 1)}")
    A(f"s_mul_i32 {s(T)}, {s(T)}, 3072")
    A(f"s_add_u32 {s(T)}, {s(T)}, {s(S_XB)}")
    A(f"s_add_u32 {s(S_VMH)}, {s(T)}, {VM_OFF}")
    A(f"s_lshl_b32 {s(T)}, {s(S_ROLE)}, 1")
    A(f"s_add_u32 {s(T)}, {s(T)}, {s(T + 1)}")
    A(f"s_mul_i32 {s(S_XGH)}, {s(T)}, {XG2_HEAD}")
    A(f"s_add_u32 {s(S_XGH)}, {s(S_XGH)}, {XG + 3072}")
    A(f"s_lshl_b32 {s(S_FXH)}, {s(T)}, 5")
    A(f"s_lshl_b32 {s(T + 1)}, {s(T + 2)}, 2")
    A(f"s_add_u32 {s(S_FXH)}, {s(S_FXH)}, {s(T + 1)}")
    A(f"s_add_u32 {s(S_FXH)}, {s(S_FXH)}, {FXG + 4}")
    for i in range(4):
        A(f"v_mov_b32 {v(V_T + i)}, -1")
    lst = []
    for k in range(8):
        lst.append(f"s_add_u32 {s(T)}, {s(S_VMH)}, {k * 49152}")
        lst.append(f"buffer_store_dwordx4 {v(V_T, 4)}, {v(V_VS0)}, {WS}, {s(T)} offen")
        lst.append(f"buffer_store_dwordx2 {v(V_T, 2)}, {v(V_VS1)}, {WS}, {s(T)} offen")
    lstore(A, lst)
    A(f"s_mul_i32 {s(S_O0)}, {s(S_ROLE)}, 768")
    A(f"s_add_u32 {s(S_O1)}, {s(S_O0)}, 96")
    dma_addr(True)
    make_srd(A, SRD_W, P_WV, 640 * 12288)
    make_srd(A, 52, P_WV, 640 * 12288)

    A.label("SV_LOAD")
    init_barrier_arrive(A, V_T)
    V_PARK = 24
    V_TR = V_DA + 3
    S_RA, S_RB, S_LW = S_FLG1, S_FLG2, S_DEF
    A(f"s_and_b32 {s(T)}, {s(S_WAVE)}, 1")
    A(f"s_mul_i32 {s(T)}, {s(T)}, {16 * 12288}")
    A(f"s_lshr_b32 {s(T + 1)}, {s(S_WAVE)}, 1")
    A(f"s_mul_i32 {s(S_RA)}, {s(T + 1)}, {32 * 12288}")
    A(f"s_add_u32 {s(S_RA)}, {s(S_RA)}, {s(T)}")
    A(f"s_mul_i32 {s(S_RB)}, {s(T + 1)}, {(32 if cfg.h16 else 160) * 12288}")
    A(f"s_add_u32 {s(S_RB)}, {s(S_RB)}, {s(T)}")
    A(f"s_mul_i32 {s(S_LW)}, {s(S_WAVE)}, 6144")
    sh = (2, 4, 3) if cfg.h16 else (5, 3, 2)
    lane_gc()
    A(f"v_and_b32 {v(V_T)}, 1, {v(g_)}")
    A(f"v_lshlrev_b32 {v(V_T)}, {sh[0]}, {v(V_T)}")
    A(f"v_lshrrev_b32 {v(V_T + 1)}, 1, {v(g_)}")
    A(f"v_lshl_add_u32 {v(V_T)}, {v(V_T + 1)}, {sh[1]}, {v(V_T)}")
    A(f"v_bfe_u32 {v(V_T + 1)}, {v(V_LANE)}, 2, 1")
    A(f"v_add_u32 {v(V_T)}, {v(V_T)}, {v(V_T + 1)}")
    A(f"v_bfe_u32 {v(V_T + 1)}, {v(V_LANE)}, 3, 1")
    A(f"v_lshl_add_u32 {v(V_T)}, {v(V_T + 1)}, {sh[2]}, {v(V_T)}")
    A(f"v_mul_u32_u24 {v(V_TR)}, 384, {v(V_T)}")
    A(f"v_and_b32 {v(V_T + 1)}, 3, {v(V_LANE)}")
    A(f"v_lshl_add_u32 {v(V_TR)}, {v(V_T + 1)}, 3, {v(V_TR)}")
    A(f"s_mul_i32 {s(T)}, {s(S_WAVE)}, 96")
    A(f"v_add_u32 {v(V_TR)}, {s(T)}, {v(V_TR)}")
    stages = [(F, b) for F in range(10) for b in range(2)]
    NB = 6

    def mp0(F):
        if cfg.h16:
            return 2 * F
        return 5 * (F >> 1) + 2 * (F & 1) if F < 8 else (4 if F == 8 else 14)

    def st_dma(k):
        F, b = stages[k]
        A(f"s_add_u32 {s(T)}, {s(S_RA if F < 8 else S_RB)}, {s(S_O1 if b else S_O0)}")
        for i in range(6):
            A(f"s_add_u32 m0, {s(S_LW)}, {(k % NB) * 24576 + i * 1024}")
            A(f"s_add_u32 {s(T + 1)}, {s(T)}, {(32 * mp0(F) + 8 * (i // 3)) * 12288}")
            A(f"buffer_load_dwordx4 {v(V_DA + i % 3)}, {s(52 if b else SRD_W, 4)}, {s(T + 1)} offen lds")

    def st_read(k, slot):
        F, b = stages[k]
        for p in range(3):
            tile = 3 * b + p
            kind, r = wreg(slot, tile) if tile < 5 else ("v", V_PARK + 8 * slot)
            f = a if kind == "a" else v
            for RH in range(2):
                for hh in range(2):
                    A(f"ds_read_b64_tr_b16 {f(r + 4 * RH + 2 * hh, 2)}, {v(V_T)} offset:{((32 if cfg.h16 else 16) * RH + 2 * hh) * 384 + 32 * p}")
    for k in range(NB - 1):
        st_dma(k)
    for k in range(20):
        F, b = stages[k]
        A(f"s_waitcnt vmcnt({6 * min(NB - 2, 19 - k)})")
        A("s_barrier")
        if k + NB - 1 < 20:
            st_dma(k + NB - 1)
        A(f"v_add_u32 {v(V_T)}, {(k % NB) * 24576}, {v(V_TR)}")
        if F < 8:
            done = A.newlabel("ld")
            labs = [A.newlabel("lw") for _ in range(4)]
            for w in range(1, 4):
                A(f"s_cmp_eq_u32 {s(S_WAVE)}, {w}")
                A(f"s_cbranch_scc1 {labs[w]}")
            for w in range(4):
                A.label(labs[w])
                st_read(k, 2 * (((F >> 1) - w) & 3) + (F & 1))
                if w < 3:
                    A(f"s_branch {done}")
            A.label(done)
        else:
            st_read(k, F)
        A("s_waitcnt lgkmcnt(0)")
    A("s_barrier")
    for sl in range(10):
        for hf in range(2):
            A(f"ds_write_b128 {v(V_BW)}, {v(V_PARK + 8 * sl + 4 * hf, 4)} offset:{sl * 2048 + hf * 1024}")
    A("s_waitcnt lgkmcnt(0)")
    A(f"v_add_u32 {v(V_G4)}, {L_MEM + 8192}, {v(V_L16)}")
    A("s_barrier")
    init_barrier_wait(A, V_T, nwg, cfg)
    near_half(A, cfg, S_PXR)

    S_C0, S_C1 = 4, 5
    L_SY = L_X + 6144

    def fe_scalars(A, rl, rt, tag, t1):
        A(f"s_and_b32 {s(T)}, {s(rt)}, {cfg.cr - 1}")
        A(f"s_lshl2_add_u32 {s(T)}, {s(rl)}, {s(T)}")
        A(f"s_lshl_b32 {s(S_PXA)}, {s(T)}, 16")
        A(f"s_add_u32 {s(S_PXA)}, {s(S_PXA)}, {s(S_PXR)}")
        A(f"s_mul_i32 {s(S_PLA)}, {s(T)}, 20480")
        A(f"s_add_u32 {s(S_PLA)}, {s(S_PLA)}, {s(S_PLW)}")
        A(f"s_lshl_b32 {s(S_DPA)}, {s(rl)}, 9")
        A(f"s_add_u32 {s(S_DPA)}, {s(S_DPA)}, {s(S_DPW)}")
        A(f"s_bfe_u32 {s(tag)}, {s(rt)}, {0x10000 + cfg.cr.bit_length() - 1}")
        A(f"s_add_u32 {s(t1)}, {s(rt)}, 1")

    def cur_local(A, isv):
        A(f"s_and_b32 {s(T)}, {s(S_T)}, {cfg.cr - 1}")
        A(f"s_lshl2_add_u32 {s(T)}, {s(S_L)}, {s(T)}")
        A(f"s_mul_i32 {s(T)}, {s(T)}, 49152")
        A(f"s_add_u32 {s(S_VMA)}, {s(T)}, {s(S_VMH)}")
        if not isv:
            A(f"s_add_u32 {s(S_OIA)}, {s(T)}, {s(S_OIH)}")
            A(f"s_lshl_b32 {s(T)}, {s(S_L)}, 9")
            A(f"s_add_u32 {s(S_DOA)}, {s(T)}, {s(S_DOH)}")

    def cur_global(A):
        A(f"s_lshl_b32 {s(T)}, {s(S_L)}, 6")
        A(f"s_add_u32 {s(T)}, {s(T)}, {s(S_T)}")
        A(f"s_mul_i32 {s(S_KP)}, {s(T)}, {XG2_STEP}")
        A(f"s_add_u32 {s(S_KP)}, {s(S_KP)}, {s(S_XGH)}")
        A(f"s_lshl_b32 {s(T)}, {s(T)}, 10")
        A(f"s_add_u32 {s(S_KF)}, {s(T)}, {s(S_FXH)}")

    def kv_src(A, rl, rt):
        A(f"s_mul_i32 {s(S_KSRC)}, {s(rt)}, {QKV_SEG if not cfg.kvhit else 0}")
        A(f"s_add_u32 {s(S_KSRC)}, {s(S_KSRC)}, {s(S_HOFF)}")
        if cfg.lstride:
            A(f"s_mul_i32 {s(T)}, {s(rl)}, {cfg.lstride}")
            A(f"s_add_u32 {s(S_KSRC)}, {s(S_KSRC)}, {s(T)}")

    def flag_row_of(A, dst, rl, rt):
        A(f"s_lshl_b32 {s(dst)}, {s(rl)}, 6")
        A(f"s_add_u32 {s(dst)}, {s(dst)}, {s(rt)}")
        A(f"s_lshl_b32 {s(dst)}, {s(dst)}, 9")
        A(f"s_add_u32 {s(dst)}, {s(dst)}, {flag_row(F_K)}")

    def next_item(A, rl, rt):
        A(f"s_sub_u32 {s(T)}, {s(S_C0)}, {s(S_C1)}")
        A(f"s_cmp_gt_i32 {s(T)}, {LAG}")
        A(f"s_cselect_b32 {s(rl)}, 1, 0")
        A(f"s_cmp_eq_u32 {s(S_C0)}, 64")
        A(f"s_cselect_b32 {s(rl)}, 1, {s(rl)}")
        A(f"s_cmp_eq_u32 {s(rl)}, 0")
        A(f"s_cselect_b32 {s(rt)}, {s(S_C0)}, {s(S_C1)}")
        A(f"s_addc_u32 {s(S_C0)}, {s(S_C0)}, 0")
        A(f"s_add_u32 {s(S_C1)}, {s(S_C1)}, {s(rl)}")

    def kv_dma():
        out = []
        for i in range(24):
            e = []
            if i % 4 == 0:
                e += [f"s_add_u32 m0, {s(S_KLDS)}, {i * 1024}", f"s_add_u32 {s(T + 7)}, {s(S_KSRC)}, {(i % 12) * 1024 + (i // 12) * QKV_SZ}"]
            e.append(f"buffer_load_dwordx4 {v(V_L16)}, {WS}, {s(T + 7)} offen offset:{(i % 4) * 1024} {DF[cfg.dfl]}lds")
            out.append(e)
        return out

    def flag_spin(row):
        top = A.newlabel("fl")
        A.label(top)
        A(f"buffer_load_dword {v(V_T)}, {v(V_FLG)}, {WS}, {s(row)} offen sc1")
        A("s_waitcnt vmcnt(0)")
        A(f"v_cmp_eq_u32 vcc, 0, {v(V_T)}")
        poll_tail(A, top, sleep=1)

    S_PLW, S_DPW = 6, 7
    S_EARLY = S_KCUR
    S_LO, S_HI = 37, S_FCUR
    A(f"s_mul_i32 {s(S_PLW)}, {s(S_WAVE)}, {2048 if cfg.h16 else 5120}")
    if cfg.h16:
        A(f"v_sub_u32 {v(V_L16B)}, {v(V_MW2)}, {v(V_MW)}")
        A(f"v_add_u32 {v(V_L16B)}, {v(V_L16B)}, {v(V_L16)}")
        A(f"v_add_u32 {v(V_L16B)}, 8192, {v(V_L16B)}")
        A(f"s_mov_b32 {s(S_LO)}, 0x3f80")
        A(f"s_mov_b32 {s(S_HI)}, 0x3f800000")
    A(f"s_add_u32 {s(S_PLW)}, {s(S_PLW)}, {s(S_XB)}")
    A(f"s_lshl_b32 {s(S_DPW)}, {s(S_WAVE)}, 7" if not cfg.pb else f"s_mov_b32 {s(S_DPW)}, 0")
    A(f"s_add_u32 {s(S_DPW)}, {s(S_DPW)}, {s(S_XB)}")
    A(f"s_add_u32 {s(S_DPW)}, {s(S_DPW)}, {DP_OFF}")
    if not cfg.h16:
        A(f"v_add_u32 {v(V_L16B)}, 4096, {v(V_L16)}")
    A(f"s_mov_b32 {s(S_N)}, 0")
    A(f"s_mov_b32 {s(S_C0)}, 0")
    A(f"s_mov_b32 {s(S_C1)}, 0")
    A(f"s_mov_b32 {s(S_KP)}, {NONE}")
    A(f"s_mov_b32 {s(S_FP)}, {NONE}")
    A(f"s_mov_b32 {s(S_KF)}, {NONE}")
    next_item(A, S_L, S_T)
    fe_scalars(A, S_L, S_T, S_TAG, S_T1)
    stamp = mk_stamp(A, cfg, V_STAMP)
    A(f"s_cmp_lg_u32 {s(S_ISV)}, 0")
    A("s_cbranch_scc1 CV_START")

    order = [2, 0, 1] if cfg.h16 else [4, 0, 1, 2, 3]
    NP_ = len(order)

    def pld(base, i, sa):
        if cfg.h16:
            if i == 2:
                return f"buffer_load_dwordx2 {v(base + 8, 2)}, {v(V_L16B)}, {WS}, {s(sa)} offen sc1"
            return f"buffer_load_dwordx4 {v(base + 4 * i, 4)}, {v(V_L16)}, {WS}, {s(sa)} offen offset:{i * 1024} sc1"
        return f"buffer_load_dwordx4 {v(base + 4 * i, 4)}, {v(V_L16 if i < 4 else V_L16B)}, {WS}, {s(sa)} offen offset:{(i % 4) * 1024} sc1"

    def process16(V_PL, V_PR, retry):
        TA = V_T + 4
        U = V_PR
        for n, i in enumerate(order):
            A(f"s_waitcnt vmcnt({5 - n})")
            for k in range(4 * i, 4 * i + (4 if i < 2 else 2)):
                A(f"v_lshlrev_b32 {v(U + 2 * k)}, 16, {v(V_PL + k)}")
                A(f"v_and_b32 {v(U + 2 * k + 1)}, 0xffff0000, {v(V_PL + k)}")
        for n, i in enumerate(order):
            A(f"s_waitcnt vmcnt({2 - n})")
            ks = range(4 * i, 4 * i + (4 if i < 2 else 2))
            for k in ks:
                A(f"v_dot2c_f32_bf16 {v(U + 2 * k)}, {s(S_LO)}, {v(V_PL + 10 + k)}")
                A(f"v_dot2c_f32_bf16 {v(U + 2 * k + 1)}, {s(S_HI)}, {v(V_PL + 10 + k)}")
            A(f"v_bitop3_b32 {v(TA + (1 if n else 0))}, {v(V_PL + 4 * i)}, {v(V_PL + 10 + 4 * i)}, {s(S_TAG)} bitop3:0x7e")
            if n == 2:
                A(f"v_bitop3_b32 {v(TA)}, {v(TA)}, {v(TA + 1)}, 1 bitop3:0xa8")
                A(f"v_cmp_ne_u32 vcc, 0, {v(TA)}")
            elif n:
                A(f"v_or_b32 {v(TA)}, {v(TA)}, {v(TA + 1)}")
            for k in ks:
                A(f"v_cvt_pk_bf16_f32 {v(V_F + k)}, {v(U + 2 * k)}, {v(U + 2 * k + 1)}")
            if i == 2:
                A(f"ds_write_b64 {v(V_MW2)}, {v(V_F + 8, 2)}")
            else:
                A(f"ds_write_b128 {v(V_MW)}, {v(V_F + 4 * i, 4)} offset:{i * 1024}")
        A.nf(f"s_cbranch_vccnz {retry}")

    def process(V_PL, V_PR, wait, retry):
        if cfg.h16:
            return process16(V_PL, V_PR, retry)
        TA = V_T + 4
        for n, i in enumerate(order):
            wait(n)
            A(f"v_pk_add_f32 {v(V_T, 2)}, {v(V_PL + 4 * i, 2)}, {v(V_PR + 4 * i, 2)}")
            A(f"v_pk_add_f32 {v(V_T + 2, 2)}, {v(V_PL + 4 * i + 2, 2)}, {v(V_PR + 4 * i + 2, 2)}")
            A(f"v_bitop3_b32 {v(TA + (1 if n else 0))}, {v(V_PL + 4 * i)}, {v(V_PR + 4 * i)}, {s(S_TAG)} bitop3:0x7e")
            A(f"v_cvt_pk_bf16_f32 {v(V_F + 2 * i)}, {v(V_T)}, {v(V_T + 1)}")
            A(f"v_cvt_pk_bf16_f32 {v(V_F + 2 * i + 1)}, {v(V_T + 2)}, {v(V_T + 3)}")
            if n == 4:
                A(f"v_bitop3_b32 {v(TA)}, {v(TA)}, {v(TA + 1)}, 1 bitop3:0xa8")
            elif n:
                A(f"v_or_b32 {v(TA)}, {v(TA)}, {v(TA + 1)}")
            if n == 4:
                A(f"v_cmp_ne_u32 vcc, 0, {v(TA)}")
            if i == 4:
                A(f"ds_write_b64 {v(V_MW2)}, {v(V_F + 8, 2)}")
            elif i & 1:
                A(f"ds_write_b128 {v(V_MW)}, {v(V_F + 4 * (i >> 1), 4)} offset:{(i >> 1) * 1024}")
        A.nf(f"s_cbranch_vccnz {retry}")

    def kgrab():
        A(f"s_mov_b64 vcc, {s(S_MB, 2)}")
        tmp = (V_F, V_F + 4, V_T)
        for jp in range(3):
            for par in range(2):
                for ih in range(2):
                    A(f"ds_read_b64_tr_b16 {v((V_KEEP + 4 * jp, tmp[jp])[par] + 2 * ih, 2)}, {v(V_XR)} offset:{(2 * jp + par) * 1024 + ih * 512}")
        for jp in range(3):
            A(f"s_waitcnt lgkmcnt({8 - 4 * jp})")
            for i in range(4):
                A(f"v_cndmask_b32_dpp {v(V_KEEP + 4 * jp + i)}, {v(tmp[jp] + i)}, {v(V_KEEP + 4 * jp + i)}, vcc quad_perm:[0,1,0,1] row_mask:0xf bank_mask:0xf")

    def zero_mfma(Z=10):
        A(f"v_mfma_f32_32x32x8_bf16 {v(V_ACC, 16)}, {v(Z, 2)}, {v(Z, 2)}, 0")
        A(f"v_mfma_f32_16x16x16_bf16 {v(V_ACC + 16, 4)}, {v(Z, 2)}, {v(Z, 2)}, 0")
        A(f"v_mfma_f32_16x16x16_bf16 {v(V_ACC + 20, 4)}, {v(Z, 2)}, {v(Z, 2)}, 0")

    def front(L, ool, top, fast=None, poller=None, V_PL=V_PL, V_PR=V_PR, zero=True):
        again, retry, join = A.newlabel("fa"), A.newlabel("fr"), A.newlabel("fj")

        RB = V_PL + 10 if cfg.h16 else V_PR

        def zr():
            for i in range(24 if zero else 0):
                A(f"v_mov_b32 {v(V_ACC + i)}, 0")
        A.label(top)
        if not fast:
            zr()
        if poller == "w0":
            lab = A.newlabel("np")
            A(f"s_cmp_lg_u32 {s(S_WAVE)}, 0")
            A(f"s_cbranch_scc1 {lab}")
        if poller == "me":
            A(f"v_mov_b32 {v(V_T + 2)}, {s(S_N)}")
        if poller:
            doorbell(A, cfg, V_DB, S_DPA, V_T)
        if poller == "w0":
            A.label_nf(lab)
        if poller == "me":
            A(f"ds_write_b32 {v(V_RDY)}, {v(V_T + 2)}")
            for i in order:
                A(pld(V_PL, i, S_PLA))
            if cfg.s3 == 1:
                A(f"s_cmp_eq_u32 {s(S_EARLY)}, 0" if cfg.s3 == 1 else f"s_cmp_lg_u32 {s(S_EARLY)}, {s(S_SPIN)}")
                A.nf(f"s_cbranch_scc0 {join}e")
        A("s_barrier")
        stamp(0)
        if poller != "me":
            for i in order:
                A(pld(V_PL, i, S_PLA))
        if fast and zero:
            A.nf(f"s_cbranch_vccz {fast}")
            zr()
        elif fast:
            A.nf(f"s_cbranch_vccz {join}f")
        A(f"s_waitcnt vmcnt({min(cfg.rw, NP_ - 1)})")
        if cfg.rx:
            A(f"buffer_load_dword {v(V_T)}, {v(V_L16)}, {WS}, {s(S_DPA)} offen sc1" if cfg.rx == 9 else f"s_sleep {cfg.rx}")
        A.label_nf(join + "f")
        for i in order:
            A(pld(RB, i, S_PXA))
        if zero is None:
            zero_mfma()
        if poller == "me" and cfg.w3:
            kgrab()
        A.label_nf(join)
        stamp(7)
        A.label_nf(again)
        process(V_PL, V_PR, lambda n: A(f"s_waitcnt vmcnt({4 - n})"), retry)
        A.label_nf(join + "g")
        L.q = ["mw"]
        stamp(1)

        def slow():
            A.label(retry)
            sk = A.newlabel("sk")
            A(f"v_bitop3_b32 {v(V_T)}, {v(V_PL)}, {v(V_PL + 4)}, {s(S_TAG)} bitop3:0x7e")
            A(f"v_bitop3_b32 {v(V_T + 1)}, {v(V_PL + 8)}, {v(V_PL + (8 if cfg.h16 else 12))}, {s(S_TAG)} bitop3:0x7e")
            A(f"v_xor_b32 {v(V_T + 2)}, {s(S_TAG)}, {v(V_PL + (8 if cfg.h16 else 16))}")
            A(f"v_or3_b32 {v(V_T)}, {v(V_T)}, {v(V_T + 1)}, {v(V_T + 2)}")
            A(f"v_and_b32 {v(V_T)}, 1, {v(V_T)}")
            A(f"v_cmp_ne_u32 vcc, 0, {v(V_T)}")
            A.nf(f"s_cbranch_vccz {sk}")
            for i in order:
                A(pld(V_PL, i, S_PLA))
            if cfg.timing == 5:
                A("s_add_u32 s93, s93, 1")
            A.label_nf(sk)
            for i in order:
                A(pld(RB, i, S_PXA))
            if cfg.timing == 5:
                A("s_add_u32 s92, s92, 1")
            spin_fail(A)
            A("s_waitcnt lgkmcnt(0)")
            A(f"s_branch {again}")
            if fast and zero:
                A.label(fast)
                for i in order:
                    A(pld(RB, i, S_PXA))
                zr()
                A(f"s_branch {join}")
            if poller == "me" and cfg.s3:
                A.label("CH_RUNG")
                A(f"v_mov_b32 {v(V_T + 2)}, {s(S_N)}")
                A(f"ds_write_b32 {v(V_RDY)}, {v(V_T + 2)}")
                for i in order:
                    A(pld(V_PL, i, S_PLA))
                A.label(join + "e")
                for i in order:
                    A(pld(RB, i, S_PXA))
                if cfg.w3:
                    kgrab()
                if cfg.ep:
                    process(V_PL, V_PR, lambda n: A(f"s_waitcnt vmcnt({4 - n})"), join + "m")
                    A("s_barrier")
                    stamp(0)
                    stamp(7)
                    A.nf(f"s_branch {join}g")
                    A.label_nf(join + "m")
                A("s_barrier")
                stamp(0)
                A(f"s_branch {retry if cfg.ep else join}")
        ool.append(slow)
        return retry, join + "g"

    G3I = {}

    def gemm3(L, AR, relA89):
        sq = [(0, t_) for t_ in (0, 3, 2, 1, 4)] + [(1, 0), (1, 3), (0, 5), (1, 2), (1, 1), (1, 5), (1, 4)]
        nl = cfg.nlate
        sq += [(sl, t_) for sl in range(2, 8) for t_ in ((0, 3, 2, 5) if sl >= 10 - nl else (0, 3, 1, 4, 2, 5))]
        sq += [(8, 0), (8, 3), (9, 0), (9, 3), (8, 2), (8, 5), (9, 2), (9, 5)]
        sq += [(sl, t_) for sl in (5, 6, 7, 8, 9, 2, 3, 4) if sl >= 10 - nl for t_ in (1, 4)]
        assert len(sq) == 60
        first = {}
        for k, (sl, t_) in enumerate(sq):
            first.setdefault(sl, k)
            G3I["last", sl] = k
            G3I[sl, t_] = k

        def af(sl):
            return v(V_F + 4 * sl, 4) if sl < 2 else v(AR[sl - 2], 4)

        def rdB(sl):
            return [(("B", sl), f"ds_read_b128 {v(V_B + 8 * (sl & 1) + 4 * hf, 4)}, {v(V_BW)} offset:{sl * 2048 + hf * 1024}") for hf in range(2)]

        def rdA(sl):
            ad = V_GB + sl // 2 - 1 if sl < 8 else V_G4
            return [(("A", sl), f"ds_read_b128 {af(sl)}, {v(ad)} offset:{(sl & 1) * 1024}")]
        seq = []
        rd = [Task(cfg.bar1, rdA(2)), Task(0, rdB(0) + rdB(1))]
        for k, (sl, t_) in enumerate(sq):
            seq.append((f"{SM} {v(V_ACC + 4 * t_, 4)}, {af(sl)}, {wtxt(sl, t_)}, {v(V_IDX)}", [("A", sl)] + ([("B", sl)] if t_ == 5 else [])))
            if t_ == 5 and sl + 2 < 10:
                rd.append(Task(k, rdB(sl + 2)))
        for sl in range(3, 10):
            rd.append(Task(max(cfg.bar1, first[sl] - cfg.alead, relA89 if sl >= 8 else 0), rdA(sl)))

        def items(p):
            q, k = V_ACC + 4 * p, V_ACC + 4 * (3 + p)
            return [f"v_add_f32 {v(q)}, {v(q)}, {v(q + 1)}", f"v_add_f32 {v(q + 2)}, {v(q + 2)}, {v(q + 3)}",
                    f"v_add_f32 {v(k)}, {v(k)}, {v(k + 1)}", f"v_add_f32 {v(k + 2)}, {v(k + 2)}, {v(k + 3)}",
                    f"v_cvt_pk_bf16_f32 {v(k + 1)}, {v(q)}, {v(q + 2)}", f"v_cvt_pk_bf16_f32 {v(k)}, {v(k)}, {v(k + 2)}",
                    (("xw", p), f"ds_write_b64 {v(V_XW)}, {v(k, 2)} offset:{(0, 2, 1)[p] * 2048}")]
        return seq, rd, items

    def bar_after(L, tag, st_=None, tasks=()):
        def f():
            for t in tasks:
                assert not t.items, tag
            L.wait(tag)
            A("s_barrier")
            if st_ is not None:
                stamp(st_)
        return f

    def afrag(sl):
        return v(V_F + 4 * sl, 4) if sl < 2 else v(V_A + 4 * ((sl - 2) % 3), 4)

    def gemm(L, tasks, tail_order, hi=()):
        sq = [(0, t_) for t_ in range(5)] + [(1, t_) for t_ in range(5)] + [(0, 5), (1, 5)]
        sq += [(sl, t_) for sl in range(2, 10 - len(tail_order) // 6) for t_ in range(6)]
        sq += tail_order

        def rdB(sl):
            return [(("B", sl), f"ds_read_b128 {v(V_B + 8 * (sl & 1) + 4 * hf, 4)}, {v(V_BW)} offset:{sl * 2048 + hf * 1024}") for hf in range(2)]

        def rdA(sl):
            ad = V_GB + sl // 2 - 1 if sl < 8 else V_G4
            return [(("A", sl), f"ds_read_b128 {afrag(sl)}, {v(ad)} offset:{(sl & 1) * 1024}")]
        seq = []
        rd = [Task(cfg.bar1, rdA(2)), Task(0, rdB(0) + rdB(1)), Task(cfg.bar1, rdA(3) + rdA(4))]
        for k, (sl, t_) in enumerate(sq):
            seq.append((f"{SM} {v(V_ACC + 4 * t_, 4)}, {afrag(sl)}, {wtxt(sl, t_)}, {v(V_IDX)}", [("A", sl)] + ([("B", sl)] if t_ == 5 else [])))
            if t_ == 5 and sl + 2 < 10:
                rd.append(Task(k, (rdA(sl + 3) if 2 <= sl < 7 else []) + rdB(sl + 2)))

        def bar():
            L.wait("mw")
            A("s_barrier")
            stamp(5)
        sched(A, L, seq, list(hi) + rd + list(tasks), pre={cfg.bar1: bar})
        stamp(6)

    def pend_window(stores):
        def f1():
            lab = A.newlabel("pf")
            A(f"s_cmp_ge_u32 {s(S_FP)}, {NONE}")
            A.nf(f"s_cbranch_scc1 {lab}")
            flag_val(A, cfg, V_T + 5)
            A("s_mov_b64 exec, 1")
            A(f"buffer_store_dword {v(V_T + 5)}, {v(V_L16)}, {WS}, {s(S_FP)} offen sc1")
            A("s_mov_b64 exec, -1")
            A(f"s_mov_b32 {s(S_FP)}, {NONE}")
            A.label_nf(lab)

        def f2():
            lab = A.newlabel("pk")
            A(f"s_cmp_eq_u32 {s(S_KP)}, {NONE}")
            A.nf(f"s_cbranch_scc1 {lab}")
            for x in stores:
                if not cfg.noxg:
                    A(x)
            A(f"s_mov_b32 {s(S_FP)}, {s(S_KF) if not cfg.noxg else NONE}")
            A(f"s_mov_b32 {s(S_KP)}, {NONE}")
            A.label_nf(lab)
        return f1, f2

    def pend_items(stores):
        def fv():
            flag_val(A, cfg, V_T + 5)
        return [(4, fv), f"s_mov_b64 exec, 1\nbuffer_store_dword {v(V_T + 5)}, {v(V_L16)}, {WS}, {s(S_FP)} offen sc1\ns_mov_b64 exec, -1"] + stores + \
            [f"s_and_b32 {s(S_FP)}, {s(S_KP)}, {NONE}", f"s_or_b32 {s(S_FP)}, {s(S_FP)}, {s(S_KF)}", f"s_mov_b32 {s(S_KP)}, {NONE}"]

    def advance():
        A(f"s_add_u32 {s(S_N)}, {s(S_N)}, 1")
        A(f"s_mov_b32 {s(S_L)}, {s(S_NL)}")
        A(f"s_mov_b32 {s(S_T)}, {s(S_NT)}")
        A(f"s_mov_b32 {s(S_TAG)}, {s(S_NTAG)}")
        A(f"s_mov_b32 {s(S_T1)}, {s(S_NT1)}")

    def qk_epi(L):
        def items(p):
            q, k = V_ACC + 4 * p, V_ACC + 4 * (3 + p)
            return [f"v_add_f32 {v(q)}, {v(q)}, {v(q + 1)}", f"v_add_f32 {v(q + 2)}, {v(q + 2)}, {v(q + 3)}",
                    f"v_add_f32 {v(k)}, {v(k)}, {v(k + 1)}", f"v_add_f32 {v(k + 2)}, {v(k + 2)}, {v(k + 3)}",
                    f"v_cvt_pk_bf16_f32 {v(k + 1)}, {v(q)}, {v(q + 2)}", f"v_cvt_pk_bf16_f32 {v(k)}, {v(k)}, {v(k + 2)}",
                    ("xw", f"ds_write_b64 {v(V_XW)}, {v(k, 2)} offset:{p * 512}")]
        if cfg.t3:
            return [Task(cfg.t3, items(0) + items(2)), Task(60, items(1))]
        return [Task(53, items(0)), Task(60, items(1)), Task(60, items(2))]
    qk_tail = []
    for p in range(3):
        qk_tail += [(8, p), (8, 3 + p), (9, p), (9, 3 + p)]
    if cfg.t3:
        qk_tail = [(7, 2), (7, 5), (7, 0), (7, 3), (8, 0), (8, 3), (9, 0), (9, 3), (8, 2), (8, 5), (9, 2), (9, 5),
                   (7, 1), (7, 4), (8, 1), (8, 4), (9, 1), (9, 4)]

    if cfg.timing == 5:
        for k in range(5):
            A(f"s_mov_b32 {s(92 + k)}, 0")
    A(f"s_cmp_eq_u32 {s(S_WAVE)}, 3")
    A("s_cbranch_scc1 CH_START")
    A(f"s_lshl_b32 {s(T)}, {s(S_WAVE)}, 2")
    A(f"s_add_u32 {s(T)}, {s(T)}, {L_SY}")
    A(f"v_mov_b32 {v(V_SY)}, {s(T)}")
    A(f"v_mov_b32 {v(V_T)}, 0")
    A(f"ds_write_b32 {v(V_SY)}, {v(V_T)}")
    A(f"v_add_u32 {v(V_KA)}, {L_KV + 24576}, {v(V_L16)}")
    A(f"v_mov_b32 {v(V_FLG)}, {L_SY + 12}")
    A(f"s_lshl_b32 {s(S_XGH)}, {s(S_WAVE)}, 12")
    A(f"s_add_u32 {s(S_HOFF)}, {s(S_HOFF)}, {s(S_XGH)}")
    A(f"s_add_u32 {s(S_KLDS)}, {s(S_XGH)}, {L_KV}")
    A(f"s_add_u32 {s(S_FLG1)}, {s(S_KLDS)}, {s(S_KLDS)}")
    A(f"s_add_u32 {s(S_FLG1)}, {s(S_FLG1)}, 24576")
    if cfg.ctouch:
        A(f"s_mul_i32 {s(T)}, {s(S_J)}, 3")
        A(f"s_add_u32 {s(T)}, {s(T)}, {s(S_WAVE)}")
        A(f"v_lshlrev_b32 {v(V_T + 1)}, 7, {v(V_LANE)}")
        for k in range(3):
            A(f"s_add_u32 {s(T + 1)}, {s(T)}, {48 * k}")
            A(f"s_min_u32 {s(T + 1)}, {s(T + 1)}, {DP_OFF // 8192 - 1}")
            A(f"s_lshl_b32 {s(T + 1)}, {s(T + 1)}, 13")
            A(f"s_add_u32 {s(T + 1)}, {s(T + 1)}, {s(S_XB)}")
            A(f"buffer_load_dword {v(V_T + 2)}, {v(V_T + 1)}, {WS}, {s(T + 1)} offen sc1")
        A("s_waitcnt vmcnt(0)")
    A("s_mov_b64 vcc, -1")
    A("s_waitcnt lgkmcnt(0)")
    if cfg.timing:
        A(f"s_memrealtime {s(S_T0, 2)}")
        if cfg.timing == 6:
            A("s_memtime s[92:93]")
        A("s_waitcnt lgkmcnt(0)")
    stamp.init()
    KXR = [V_FREE + 4 * i for i in range(6)] + [V_F, V_F + 4] + [V_B + 4 * i for i in range(4)]
    QP = "row_mask:0xf bank_mask:0xf"

    def s_loop(sx, LS):
        L = Lds(A)
        ool = []
        front(L, ool, "CS_LOOP" + sx, "CS_FAST" + sx)
        fill = [f"v_xor_b32 {v(V_KA)}, {L_KV ^ (L_KV + 24576)}, {v(V_KA)}"]
        fill += groups(cap(lambda c: next_item(c, S_NL, S_NT)))
        if cfg.dsh and not cfg.nodma:
            fill += cap(lambda c: kv_src(c, S_NL, S_NT)) + [f"s_sub_u32 {s(S_KLDS)}, {s(S_FLG1)}, {s(S_KLDS)}", f"s_mov_b32 m0, {s(S_KLDS)}"]
            fill += cap(lambda c: cur_local(c, False))
            fill += [f"buffer_load_dwordx4 {v(V_L16)}, {WS}, {s(S_KSRC)} offen offset:{i * 1024} {DF[cfg.dfl]}lds" for i in range(4)]
        else:
            fill += cap(lambda c: cur_local(c, False))
        fill += cap(lambda c: fe_scalars(c, S_NL, S_NT, S_NTAG, S_NT1))
        fill += [f"v_add_u32 {v(V_T + 5)}, {s(S_XGH)}, {v(V_KA)}", f"v_mov_b32 {v(V_T + 4)}, {s(S_T1)}", f"v_mov_b32 {v(V_T + 3)}, 0"]

        def rdK(i):
            return (("K", i), f"ds_read_b128 {v(KXR[i], 4)}, {v(V_KA)} offset:{i * 1024}")
        epi = qk_epi(L)
        gemm(L, [Task(0, fill), Task(14, [rdK(i) for i in range(8)])] + epi[1:], qk_tail, hi=epi[:1])
        skip = A.newlabel("last")
        A(f"s_cmp_eq_u32 {s(S_T)}, 63")
        A.nf(f"s_cbranch_scc1 {skip}")
        L.op(*rdK(8))
        L.op(*rdK(9))
        L.wait("xw")
        A("s_barrier")
        stamp(2)
        X = V_ACC
        S0, S1, SMm = V_A, V_A + 4, V_A + 8
        VX, VM = V_FREE, V_FREE + 16
        PA, PB, PM, TT, O = 24, 28, 32, 34, 36
        DBV = V_FV

        def rdX(j):
            return [(("X", j), f"ds_read_b64_tr_b16 {v(X + 4 * j + 2 * ih, 2)}, {v(V_XR)} offset:{j * 1024 + ih * 512}") for ih in range(2)]
        for j in range(4):
            for it in rdX(j):
                L.op(*it)
        vmld = f"buffer_load_dwordx4 {v(VM, 4)}, {v(V_L16)}, {WS}, {s(S_VMA)} offen sc1"
        dbld = f"buffer_load_dword {v(DBV)}, {v(V_DB)}, {WS}, {s(S_DPA)} offen sc1"
        ring = f"s_mov_b64 exec, 1\nbuffer_store_dword {v(V_T + 4)}, {v(V_L16)}, {WS}, {s(S_DOA)} offen{LS}\ns_mov_b64 exec, -1"
        nst = [0]

        def do_vm():
            A(vmld)
            nst[0] = 0

        def do_ring():
            A(ring)
            nst[0] += 1
        seq = []
        for j in range(6):
            for acc, aop, tg in ((S0, KXR[2 * j], ("K", 2 * j)), (S1, KXR[2 * j + 1], ("K", 2 * j + 1)), (SMm, X + 4 * j, ("X", j))):
                seq.append((f"{MF} {v(acc, 4)}, {v(aop, 4)}, {v(X + 4 * j, 4)}, {'0' if j == 0 else v(acc, 4)}", [("X", j), tg]))
        tk = [Task(0, rdX(4) + [rdK(10), rdK(11)] + rdX(5)),
              Task(6, [("vx", f"ds_read_b128 {v(VX + 4 * i, 4)}, {v(V_T + 5)} offset:{12288 + i * 1024}") for i in range(4)]),
              Task(0, [f"s_mov_b64 vcc, {s(S_MA, 2)}"])]
        if cfg.vmj < 18:
            tk.append(Task(max(cfg.vmj, 9), [(16, do_vm)]))
        if cfg.dbo < 18:
            tk.append(Task(cfg.dbo, [(16, do_ring)]))
        sched(A, L, seq, tk, nvalu=2)

        def mark(k):
            if cfg.vmj == 18 + k:
                do_vm()
            if cfg.dbo == 18 + k:
                do_ring()
        mark(0)
        Y = [S0 + i for i in range(4)]
        Z = SMm
        ZR, ZERO = V_T + 2, V_T + 3
        for i in range(4):
            A(f"v_cndmask_b32_dpp {v(Y[i])}, {v(S1 + i)}, {v(S0 + i)}, vcc quad_perm:[2,3,2,3] {QP}")
        A(f"v_max3_f32 {v(V_T)}, {v(Y[0])}, {v(Y[1])}, {v(Y[2])}")
        A(f"v_cndmask_b32_dpp {v(Z)}, {v(SMm + 1)}, {v(SMm)}, vcc quad_perm:[2,3,2,3] {QP}")
        A(f"v_max3_f32 {v(V_T)}, {v(V_T)}, {v(Y[3])}, {v(Z)}")
        mark(1)
        A(f"v_max_f32_dpp {v(V_T + 1)}, {v(V_T)}, {v(V_T)} quad_perm:[2,3,0,1] {QP}")
        A(f"v_max_f32_dpp {v(V_T)}, {v(V_T)}, {v(V_T)} quad_perm:[2,3,0,1] {QP}")
        A(f"v_permlane32_swap_b32 {v(V_T)}, {v(V_T + 1)}")
        A(f"v_max_f32 {v(S1)}, {v(V_T)}, {v(V_T + 1)}")
        A(f"v_max_f32 {v(V_T)}, {v(V_T)}, {v(V_T + 1)}")
        mark(2)
        A(f"v_permlane16_swap_b32 {v(V_T)}, {v(S1)}")
        A(f"v_max_f32 {v(V_T)}, {v(V_T)}, {v(S1)}")
        A(f"v_mul_f32 {v(V_T)}, {s(S_CS)}, {v(V_T)}")
        S5 = Y + [Z]
        for r in S5:
            A(f"v_fma_f32 {v(r)}, {v(r)}, {s(S_CS)}, -{v(V_T)}")
        for r in S5:
            A(f"v_exp_f32 {v(r)}, {v(r)}")
        mark(3)
        A(f"v_cvt_pk_bf16_f32 {v(TT)}, {v(Y[0])}, {v(Y[1])}")
        A(f"v_cvt_pk_bf16_f32 {v(TT + 1)}, {v(Y[2])}, {v(Y[3])}")
        A(f"v_cndmask_b32 {v(PB + 2)}, {v(TT)}, {v(ZERO)}, vcc")
        A(f"v_cndmask_b32 {v(PB + 3)}, {v(TT + 1)}, {v(ZERO)}, vcc")
        A(f"v_cndmask_b32_dpp {v(PB)}, {v(TT)}, {v(ZERO)}, vcc quad_perm:[2,3,0,1] {QP}")
        A(f"v_cndmask_b32_dpp {v(PB + 1)}, {v(TT + 1)}, {v(ZERO)}, vcc quad_perm:[2,3,0,1] {QP}")
        A(f"s_mov_b64 vcc, {s(S_MB, 2)}")
        L.wait("vx")
        A(f"v_cndmask_b32 {v(PA)}, {v(TT)}, {v(ZERO)}, vcc")
        A(f"{MF} {v(O, 4)}, {v(VX + 4, 4)}, {v(PB, 4)}, 0")
        A(f"v_cndmask_b32 {v(PA + 1)}, {v(TT + 1)}, {v(ZERO)}, vcc")
        A(f"v_cndmask_b32_dpp {v(PA + 2)}, {v(TT)}, {v(ZERO)}, vcc quad_perm:[2,3,0,1] {QP}")
        A(f"{MF} {v(O + 4, 4)}, {v(VX + 12, 4)}, {v(PB, 4)}, 0")
        A(f"v_cndmask_b32_dpp {v(PA + 3)}, {v(TT + 1)}, {v(ZERO)}, vcc quad_perm:[2,3,0,1] {QP}")
        A(f"v_mov_b32_dpp {v(ZR)}, {v(Z)} quad_perm:[2,3,0,1] {QP}")
        A(f"v_add_f32 {v(V_T)}, {v(Y[0])}, {v(Y[1])}")
        A(f"{MF} {v(O, 4)}, {v(VX, 4)}, {v(PA, 4)}, {v(O, 4)}")
        A(f"v_cvt_pk_bf16_f32 {v(PM)}, {v(Z)}, {v(ZR)}")
        A(f"v_cvt_pk_bf16_f32 {v(PM + 1)}, {v(ZR)}, {v(Z)}")
        A(f"{MF} {v(O + 4, 4)}, {v(VX + 8, 4)}, {v(PA, 4)}, {v(O + 4, 4)}")
        A(f"v_cndmask_b32 {v(PM)}, {v(PM)}, {v(ZERO)}, vcc")
        A(f"v_cndmask_b32 {v(PM + 1)}, {v(ZERO)}, {v(PM + 1)}, vcc")
        mark(4)
        A(f"ds_read_b32 {v(DBV)}, {v(V_FLG)}")
        bad, ok = A.newlabel("vb"), A.newlabel("vo")
        A(f"s_waitcnt vmcnt({nst[0]})")
        A(f"v_bitop3_b32 {v(V_T + 5)}, {v(VM)}, {v(VM + 2)}, {s(S_TAG)} bitop3:0x7e")
        A(f"v_add_f32 {v(V_T + 1)}, {v(Y[2])}, {v(Y[3])}")
        A(f"v_and_b32 {v(V_T + 5)}, 1, {v(V_T + 5)}")
        A(f"v_add_f32 {v(V_T)}, {v(V_T)}, {v(Z)}")
        A(f"v_cmp_ne_u32 vcc, 0, {v(V_T + 5)}")
        A(f"v_add_f32 {v(V_T)}, {v(V_T)}, {v(V_T + 1)}")
        A.nf(f"s_cbranch_vccnz {bad}")
        A.label_nf(ok)

        def vslow():
            A.label(bad)
            spin_fail(A)
            if cfg.timing == 5:
                A("s_add_u32 s94, s94, 1")
            A(vmld)
            A("s_waitcnt vmcnt(0)")
            A(f"v_bitop3_b32 {v(V_T + 5)}, {v(VM)}, {v(VM + 2)}, {s(S_TAG)} bitop3:0x7e")
            A(f"v_and_b32 {v(V_T + 5)}, 1, {v(V_T + 5)}")
            A(f"v_cmp_ne_u32 vcc, 0, {v(V_T + 5)}")
            A(f"s_cbranch_vccnz {bad}")
            A(f"s_branch {ok}")
        ool.append(vslow)
        A(f"v_mfma_f32_16x16x16_bf16 {v(O, 4)}, {v(VM, 2)}, {v(PM, 2)}, {v(O, 4)}")
        A(f"v_add_f32_dpp {v(V_T + 1)}, {v(V_T)}, {v(V_T)} quad_perm:[2,3,0,1] {QP}")
        A(f"v_add_f32_dpp {v(V_T)}, {v(V_T)}, {v(V_T)} quad_perm:[2,3,0,1] {QP}")
        A(f"v_mfma_f32_16x16x16_bf16 {v(O + 4, 4)}, {v(VM + 2, 2)}, {v(PM, 2)}, {v(O + 4, 4)}")
        A(f"v_permlane32_swap_b32 {v(V_T)}, {v(V_T + 1)}")
        A(f"v_add_f32 {v(S1)}, {v(V_T)}, {v(V_T + 1)}")
        A(f"v_add_f32 {v(V_T)}, {v(V_T)}, {v(V_T + 1)}")
        A(f"s_add_u32 {s(S_N)}, {s(S_N)}, 1")
        A(f"s_mov_b32 {s(S_L)}, {s(S_NL)}")
        A(f"v_permlane16_swap_b32 {v(V_T)}, {v(S1)}")
        A(f"v_add_f32 {v(V_T)}, {v(V_T)}, {v(S1)}")
        A(f"v_rcp_f32 {v(V_T)}, {v(V_T)}")
        A(f"s_mov_b32 {s(S_T)}, {s(S_NT)}")
        for i in range(0, 8, 2):
            A(f"v_pk_mul_f32 {v(O + i, 2)}, {v(O + i, 2)}, {v(V_T, 2)} op_sel_hi:[1,0]")
        OP = V_F
        for i in range(4):
            A(f"v_cvt_pk_bf16_f32 {v(OP + i)}, {v(O + 2 * i)}, {v(O + 2 * i + 1)}")
        A(f"v_and_or_b32 {v(OP)}, {v(OP)}, -2, {s(S_TAG)}")
        A(f"buffer_store_dwordx4 {v(OP, 4)}, {v(V_OST)}, {WS}, {s(S_OIA)} offen{LS}")
        mark(5)
        stamp(3)
        if cfg.timing == 3:
            A(f"s_sub_u32 {s(S_N)}, {s(S_N)}, 1")
            stamp(4)
            stamp.flush()
            A(f"s_add_u32 {s(S_N)}, {s(S_N)}, 1")
        A(f"s_mov_b32 {s(S_TAG)}, {s(S_NTAG)}")
        A(f"s_mov_b32 {s(S_T1)}, {s(S_NT1)}")
        A("s_waitcnt lgkmcnt(0)")
        A(f"v_cmp_ne_u32 vcc, {s(S_N)}, {v(DBV)}")
        A(f"v_mov_b32 {v(V_T)}, {s(S_N)}")
        A(f"ds_write_b32 {v(V_SY)}, {v(V_T)}")
        A.nf(f"s_branch CS_LOOP{sx}")
        A.label(skip)
        A("s_waitcnt lgkmcnt(0)")
        A("s_barrier")
        advance()
        A("s_mov_b64 vcc, -1")
        A("s_waitcnt vmcnt(0)")
        A(f"v_mov_b32 {v(V_T)}, {s(S_N)}")
        A(f"ds_write_b32 {v(V_SY)}, {v(V_T)}")
        A(f"s_cmp_lt_u32 {s(S_N)}, 128")
        A(f"s_cbranch_scc1 CS_LOOP{sx}")
        A("s_branch CS_DONE")
        for f in ool:
            f()

    def s_loop3(sx, LS, spec=False, other=None):
        from stations3 import Vm
        L = Lds(A)
        ool = []
        PLr, PRr = (92, 72) if cfg.pfs else (72, 92)
        ZERO, DBV = 10, 0
        retry, go = front(L, ool, "CS_LOOP" + sx, "x", V_PL=PLr, V_PR=PRr, zero=None)
        fill = [f"v_xor_b32 {v(V_KA)}, {L_KV ^ (L_KV + 24576)}, {v(V_KA)}"]
        fill += cap(lambda c: next_item(c, S_NL, S_NT))
        if cfg.dsh and not cfg.nodma:
            fill += cap(lambda c: kv_src(c, S_NL, S_NT)) + [f"s_sub_u32 {s(S_KLDS)}, {s(S_FLG1)}, {s(S_KLDS)}", f"s_mov_b32 m0, {s(S_KLDS)}"]
            fill += cap(lambda c: cur_local(c, False))
            fill += [f"buffer_load_dwordx4 {v(V_L16)}, {WS}, {s(S_KSRC)} offen offset:{i * 1024} {DF[cfg.dfl]}lds" for i in range(4)]
            if cfg.dsh == 2:
                fill += [f"s_add_u32 m0, {s(S_KLDS)}, 12288", f"s_add_u32 {s(S_KSRC)}, {s(S_KSRC)}, {QKV_SZ}"]
                fill += [f"buffer_load_dwordx4 {v(V_L16)}, {WS}, {s(S_KSRC)} offen offset:{i * 1024} {DF[cfg.dfl]}lds" for i in range(cfg.dv)]
        else:
            fill += cap(lambda c: cur_local(c, False))
        fill += [f"v_add_u32 {v(V_T + 5)}, {s(S_XGH)}, {v(V_KA)}", f"v_mov_b32 {v(V_T + 4)}, {s(S_T1)}"]
        fill += cap(lambda c: fe_scalars(c, S_NL, S_NT, S_NTAG, S_NT1))
        fill += [f"s_add_u32 {s(S_N)}, {s(S_N)}, 1", f"s_mov_b32 {s(S_L)}, {s(S_NL)}", f"s_mov_b32 {s(S_T)}, {s(S_NT)}", f"s_mov_b32 {s(S_T1)}, {s(S_NT1)}",
                 f"s_mov_b64 vcc, {s(S_MA, 2)}"]
        AR = [60, 64, 68, 88, 92, 96, 100, 104]
        KQ = [48, 52, 108, 72, 76, 80, 84, 88, 92, 96, 100, 104]
        XR = [24, 36, 32, 44, 28, 40]
        S0, S1, SMm = 60, 64, 68
        VX = XR[:4]
        PA, PB, VM, O1, PM, O0, TT, OP = 28, 40, 48, 52, 56, 64, 70, 48
        if cfg.s3 == 1:
            seq, rd, items = gemm3(L, AR, cfg.bar1)
            p1 = G3I[9, 5]
            free = {48: 14, 52: 14, 108: 14, 72: G3I[8, 5] + 1, 76: G3I[8, 5] + 1, 80: p1 + 1, 84: p1 + 1}
            free.update({AR[sl - 2]: G3I["last", sl] + 1 for sl in range(5, 10)})
            KQ = [48, 52] + sorted((r for r in free if r > 52), key=lambda r: free[r])
            KREL = [free[r] for r in KQ]
        else:
            seq = []
            KQ = [48, 52, 88, 92, 96, 100, 104, 108, 72, 76, 80, 84]
            XR = [24, 28, 32, 36, 40, 44]
            VX = XR[:4]
            PA, PB = 40, 44

        def rdK(i):
            return (("K", i), f"ds_read_b128 {v(KQ[i], 4)}, {v(V_KA)} offset:{i * 1024}")

        def rdX(j):
            return [(("X", j), f"ds_read_b64_tr_b16 {v(XR[j] + 2 * ih, 2)}, {v(V_XR)} offset:{j * 1024 + ih * 512}") for ih in range(2)]
        for j in range(6):
            for acc, aop, tg in ((S0, KQ[2 * j], ("K", 2 * j)), (S1, KQ[2 * j + 1], ("K", 2 * j + 1)), (SMm, XR[j], ("X", j))):
                seq.append((f"{MF} {v(acc, 4)}, {v(aop, 4)}, {v(XR[j], 4)}, {'0' if j == 0 else v(acc, 4)}", [("X", j), tg]))
        vmld = f"buffer_load_dwordx4 {v(VM, 4)}, {v(V_L16)}, {WS}, {s(S_VMA)} offen sc1"
        V = Vm(A)

        def do_ring(V):
            A("s_mov_b64 exec, 1")
            V.op("ring", f"buffer_store_dword {v(V_T + 4)}, {v(V_L16)}, {WS}, {s(S_DOA)} offen{LS}")
            A("s_mov_b64 exec, -1")
        if cfg.s3 == 1:
            e0, e2, e1 = Task(p1 - 1, items(0)), Task(p1 + 3, items(2)), Task(61, items(1))
            ka, kb = min(p1 + cfg.b2a, 60), cfg.b2b
            tf = Task(0, fill)
            tk = [e0, e2, e1] + rd + [Task(ka, rdX(0) + rdX(1)), Task(kb, rdX(4) + rdX(5))]
            tk += [Task(KREL[i], [rdK(i)]) for i in range(3, 6)] + [Task(ka, rdX(2))] + [Task(KREL[i], [rdK(i)]) for i in (6, 7)] + [Task(ka, rdX(3))]
            tk += [Task(KREL[i], [rdK(i)]) for i in range(8, 12)]
            if cfg.vmj < 18:
                tk.append(Task(60 + max(cfg.vmj, 1), [(8, lambda: V.op("vm", vmld))]))
            if cfg.dbo < 18:
                tk.append(Task(60 + cfg.dbo, [(16, lambda: do_ring(V))]))
            if cfg.pf == 1:
                tk.append(Task(cfg.krd, [("rdy", f"ds_read_b32 {v(DBV)}, {v(V_FLG)}")]))
            tk += [Task(63 + 3 * i, [("vx", f"ds_read_b128 {v(VX[i], 4)}, {v(V_T + 5)} offset:{12288 + i * 1024}")]) for i in range(4)]
            tk += [Task(cfg.k0 + 4 * i, [rdK(i)]) for i in range(3)] + [tf]

            def lim(k):
                return (16, 2) if p1 - 1 <= k < p1 + 7 else (12, 1) if k < 59 else (12, 2)

            def b2b():
                bar_after(L, ("xw", 1), 2, [e1, tf])()
            sched(A, L, seq, tk, pre={cfg.bar1: bar_after(L, "mw", 5), ka: bar_after(L, ("xw", 2), None, [e0, e2]), kb: b2b, 61: lambda: stamp(6)}, lim=lim)
            pref = A.newlabel("pf")
            if cfg.pf == 1:
                L.wait("rdy")
                A(f"v_readfirstlane_b32 {s(T)}, {v(DBV)}")
                A(f"s_cmp_eq_u32 {s(T)}, {s(S_N)}")
                A.nf(f"s_cbranch_scc1 {pref}")
        else:
            epi = qk_epi(L)
            gemm(L, [Task(cfg.k0, [rdK(i) for i in range(8)], step=cfg.kst), Task(0, fill)] + epi[1:], qk_tail, hi=epi[:1])
            L.op(*rdK(8))
            L.op(*rdK(9))
            L.wait("xw")
            A("s_barrier")
            stamp(2)
            for j in range(4):
                for it in rdX(j):
                    L.op(*it)
            tk = [Task(0, rdX(4) + [rdK(10), rdK(11)] + rdX(5))]
            tk += [Task(3 + 3 * i, [("vx", f"ds_read_b128 {v(VX[i], 4)}, {v(V_T + 5)} offset:{12288 + i * 1024}")]) for i in range(4)]
            if cfg.vmj < 18:
                tk.append(Task(max(cfg.vmj, 1), [(8, lambda: V.op("vm", vmld))]))
            if cfg.dbo < 18:
                tk.append(Task(cfg.dbo, [(16, lambda: do_ring(V))]))
            if spec and cfg.pfs:
                tk.append(Task(cfg.pfs, [(8, lambda n=n: V.op(("P", n), pld(PLr, order[n], S_PLA))) for n in range(5)]))
            sched(A, L, seq, tk, nvalu=2)
        q0, v0 = list(L.q), list(V.q)

        def tail(pre):
            L.q = list(q0)
            V = Vm(A, v0)
            lds_ = [(("P", n), pld(PLr if n < 5 else PRr, order[n % 5], S_PLA if n < 5 else S_PXA)) for n in range(5 if cfg.pfs else 0, 10)] if pre else []

            npf = [0]

            def pf():
                npf[0] += 1
                n = (0 if npf[0] <= cfg.pf0 else -(-len(lds_) // (11 - npf[0])))
                if cfg.pfs:
                    n = 1 if npf[0] in ((1, 2, 7, 9, 10), (1, 2, 3, 4, 5), (2, 6, 7, 9, 10))[cfg.pf0] and lds_ else 0
                for _ in range(n):
                    V.op(*lds_.pop(0))

            def mark(k):
                if cfg.vmj == 18 + k:
                    V.op("vm", vmld)
                if cfg.dbo == 18 + k:
                    do_ring(V)
            xs = (lambda k: stamp(k)) if cfg.tsx else (lambda k: None)
            xs(0)
            mark(0)
            Y = [S0 + i for i in range(4)]
            Z = SMm
            ZR, TM = V_T + 2, V_T + 3
            pf()
            for i in range(4):
                A(f"v_cndmask_b32_dpp {v(Y[i])}, {v(S1 + i)}, {v(S0 + i)}, vcc quad_perm:[2,3,2,3] {QP}")
            A(f"v_max3_f32 {v(V_T)}, {v(Y[0])}, {v(Y[1])}, {v(Y[2])}")
            A(f"v_cndmask_b32_dpp {v(Z)}, {v(SMm + 1)}, {v(SMm)}, vcc quad_perm:[2,3,2,3] {QP}")
            A(f"v_max3_f32 {v(V_T)}, {v(V_T)}, {v(Y[3])}, {v(Z)}")
            mark(1)
            pf()
            A(f"v_max_f32_dpp {v(V_T + 1)}, {v(V_T)}, {v(V_T)} quad_perm:[2,3,0,1] {QP}")
            A(f"v_max_f32_dpp {v(V_T)}, {v(V_T)}, {v(V_T)} quad_perm:[2,3,0,1] {QP}")
            A(f"v_permlane32_swap_b32 {v(V_T)}, {v(V_T + 1)}")
            A(f"v_max_f32 {v(TM)}, {v(V_T)}, {v(V_T + 1)}")
            A(f"v_max_f32 {v(V_T)}, {v(V_T)}, {v(V_T + 1)}")
            mark(2)
            pf()
            A(f"v_permlane16_swap_b32 {v(V_T)}, {v(TM)}")
            A(f"v_max_f32 {v(V_T)}, {v(V_T)}, {v(TM)}")
            A(f"v_mul_f32 {v(V_T)}, {s(S_CS)}, {v(V_T)}")
            S5 = Y + [Z]
            for r in S5:
                A(f"v_fma_f32 {v(r)}, {v(r)}, {s(S_CS)}, -{v(V_T)}")
            pf()
            for r in S5:
                A(f"v_exp_f32 {v(r)}, {v(r)}")
            xs(7)
            mark(3)
            pf()
            A(f"v_cvt_pk_bf16_f32 {v(TT)}, {v(Y[0])}, {v(Y[1])}")
            A(f"v_cvt_pk_bf16_f32 {v(TT + 1)}, {v(Y[2])}, {v(Y[3])}")
            A(f"v_cndmask_b32 {v(PB + 2)}, {v(TT)}, {v(ZERO)}, vcc")
            A(f"v_cndmask_b32 {v(PB + 3)}, {v(TT + 1)}, {v(ZERO)}, vcc")
            A(f"v_cndmask_b32_dpp {v(PB)}, {v(TT)}, {v(ZERO)}, vcc quad_perm:[2,3,0,1] {QP}")
            A(f"v_cndmask_b32_dpp {v(PB + 1)}, {v(TT + 1)}, {v(ZERO)}, vcc quad_perm:[2,3,0,1] {QP}")
            A(f"s_mov_b64 vcc, {s(S_MB, 2)}")
            L.wait("vx")
            pf()
            A(f"v_cndmask_b32 {v(PA)}, {v(TT)}, {v(ZERO)}, vcc")
            A(f"{MF} {v(O0, 4)}, {v(VX[1], 4)}, {v(PB, 4)}, 0")
            A(f"v_cndmask_b32 {v(PA + 1)}, {v(TT + 1)}, {v(ZERO)}, vcc")
            A(f"v_cndmask_b32_dpp {v(PA + 2)}, {v(TT)}, {v(ZERO)}, vcc quad_perm:[2,3,0,1] {QP}")
            A(f"{MF} {v(O1, 4)}, {v(VX[3], 4)}, {v(PB, 4)}, 0")
            A(f"v_cndmask_b32_dpp {v(PA + 3)}, {v(TT + 1)}, {v(ZERO)}, vcc quad_perm:[2,3,0,1] {QP}")
            A(f"v_mov_b32_dpp {v(ZR)}, {v(Z)} quad_perm:[2,3,0,1] {QP}")
            A(f"v_add_f32 {v(V_T)}, {v(Y[0])}, {v(Y[1])}")
            A(f"{MF} {v(O0, 4)}, {v(VX[0], 4)}, {v(PA, 4)}, {v(O0, 4)}")
            pf()
            A(f"v_cvt_pk_bf16_f32 {v(PM)}, {v(Z)}, {v(ZR)}")
            A(f"v_cvt_pk_bf16_f32 {v(PM + 1)}, {v(ZR)}, {v(Z)}")
            A(f"{MF} {v(O1, 4)}, {v(VX[2], 4)}, {v(PA, 4)}, {v(O1, 4)}")
            A(f"v_cndmask_b32 {v(PM)}, {v(PM)}, {v(ZERO)}, vcc")
            A(f"v_cndmask_b32 {v(PM + 1)}, {v(ZERO)}, {v(PM + 1)}, vcc")
            mark(4)
            if (not pre or spec) and cfg.rdp == 0:
                A(f"ds_read_b32 {v(DBV)}, {v(V_FLG)}")
            A(f"v_add_f32 {v(V_T + 1)}, {v(Y[2])}, {v(Y[3])}")
            A(f"v_add_f32 {v(V_T)}, {v(V_T)}, {v(Z)}")
            A(f"v_add_f32 {v(V_T)}, {v(V_T)}, {v(V_T + 1)}")
            bad, ok = A.newlabel("vb"), A.newlabel("vo")
            xs(1)
            V.wait("vm")
            xs(5)
            A(f"v_bitop3_b32 {v(V_T + 5)}, {v(VM)}, {v(VM + 2)}, {s(S_TAG)} bitop3:0x7e")
            A(f"v_add_f32_dpp {v(V_T + 1)}, {v(V_T)}, {v(V_T)} quad_perm:[2,3,0,1] {QP}")
            A(f"v_and_b32 {v(V_T + 5)}, 1, {v(V_T + 5)}")
            A(f"v_add_f32_dpp {v(V_T)}, {v(V_T)}, {v(V_T)} quad_perm:[2,3,0,1] {QP}")
            A(f"v_cmp_ne_u32 vcc, 0, {v(V_T + 5)}")
            pf()
            A.nf(f"s_cbranch_vccnz {bad}")
            A.label_nf(ok)

            def vslow():
                A.label(bad)
                spin_fail(A)
                if cfg.timing == 5:
                    A("s_add_u32 s94, s94, 1")
                A(vmld)
                A("s_waitcnt vmcnt(0)")
                A(f"v_bitop3_b32 {v(V_T + 5)}, {v(VM)}, {v(VM + 2)}, {s(S_TAG)} bitop3:0x7e")
                A(f"v_and_b32 {v(V_T + 5)}, 1, {v(V_T + 5)}")
                A(f"v_cmp_ne_u32 vcc, 0, {v(V_T + 5)}")
                A(f"s_cbranch_vccnz {bad}")
                A(f"s_branch {ok}")
            ool.append(vslow)
            A(f"v_mfma_f32_16x16x16_bf16 {v(O0, 4)}, {v(VM, 2)}, {v(PM, 2)}, {v(O0, 4)}")
            A(f"v_permlane32_swap_b32 {v(V_T)}, {v(V_T + 1)}")
            A(f"v_add_f32 {v(TM)}, {v(V_T)}, {v(V_T + 1)}")
            A(f"v_mfma_f32_16x16x16_bf16 {v(O1, 4)}, {v(VM + 2, 2)}, {v(PM, 2)}, {v(O1, 4)}")
            A(f"v_add_f32 {v(V_T)}, {v(V_T)}, {v(V_T + 1)}")
            pf()
            if (not pre or spec) and cfg.rdp == 1:
                A(f"ds_read_b32 {v(DBV)}, {v(V_FLG)}")
            A(f"v_permlane16_swap_b32 {v(V_T)}, {v(TM)}")
            A(f"v_add_f32 {v(V_T)}, {v(V_T)}, {v(TM)}")
            A(f"v_rcp_f32 {v(V_T)}, {v(V_T)}")
            pf()
            for o_ in (O0, O1):
                for i in range(4):
                    A(f"v_mul_f32 {v(o_ + i)}, {v(o_ + i)}, {v(V_T)}")
            for i in range(4):
                o_ = (O0, O1)[i >> 1] + 2 * (i & 1)
                A(f"v_cvt_pk_bf16_f32 {v(OP + i)}, {v(o_)}, {v(o_ + 1)}")
            A(f"v_and_or_b32 {v(OP)}, {v(OP)}, -2, {s(S_TAG)}")
            assert not lds_
            V.op("o", f"buffer_store_dwordx4 {v(OP, 4)}, {v(V_OST)}, {WS}, {s(S_OIA)} offen{LS}")
            mark(5)
            stamp(3)
            if pre:
                zero_mfma()
            if cfg.timing == 3:
                A(f"s_sub_u32 {s(S_N)}, {s(S_N)}, 1")
                stamp(4)
                stamp.flush()
                A(f"s_add_u32 {s(S_N)}, {s(S_N)}, 1")
            A(f"s_mov_b32 {s(S_TAG)}, {s(S_NTAG)}")
            A(f"v_mov_b32 {v(V_T)}, {s(S_N)}")
            if spec:
                miss = A.newlabel("ms")
                A(f"ds_write_b32 {v(V_SY)}, {v(V_T)}")
                A(f"s_cmp_lt_u32 {s(S_N)}, {127 - LAG}")
                process(PLr, PRr, lambda n: V.wait(("P", 5 + n)), miss)
                A("s_barrier")
                stamp(0)
                stamp(7)
                if cfg.timing == 5:
                    A("s_add_u32 s95, s95, 1")
                    A(f"s_cmp_lt_u32 {s(S_N)}, {127 - LAG}")
                A.nf(f"s_cbranch_scc1 {go}")
                A.nf(f"s_branch {other[1]}")
                A.label_nf(miss)
                A("s_waitcnt lgkmcnt(0)")
                A(f"v_cmp_ne_u32 vcc, {s(S_N)}, {v(DBV)}")
                A.nf(f"s_cbranch_scc1 CS_LOOP{sx}")
                A(f"s_branch {other[0]}")
            elif pre:
                if cfg.timing == 5:
                    A("s_add_u32 s95, s95, 1")
                A(f"ds_write_b32 {v(V_SY)}, {v(V_T)}")
                A("s_barrier")
                stamp(0)
                stamp(7)
                process(PLr, PRr, lambda n: V.wait(("P", 5 + n)), retry)
                A.nf(f"s_branch {go}")
            else:
                A("s_waitcnt lgkmcnt(0)")
                A(f"v_cmp_ne_u32 vcc, {s(S_N)}, {v(DBV)}")
                A(f"ds_write_b32 {v(V_SY)}, {v(V_T)}")
                if other:
                    A(f"s_cmp_eq_u32 {s(S_N)}, {LAG}")
                    A.nf(f"s_cbranch_scc1 {other}")
                A(f"s_cmp_lt_u32 {s(S_N)}, 128")
                A.nf(f"s_cbranch_scc1 CS_LOOP{sx}")
                A("s_branch CS_DONE")
        tail(spec)
        if cfg.pf == 1:
            A.label_nf(pref)
            A("s_nop 3")
            tail(True)
        for f in ool:
            f()
        return "CS_LOOP" + sx, go

    if cfg.s3:
        s_loop = s_loop3
        A("v_mov_b32 v10, 0")
        A("v_mov_b32 v11, 0")
        for i in range(24):
            A(f"v_mov_b32 {v(V_ACC + i)}, 0")
    A(f"s_cmp_lg_u32 {s(S_MODE)}, 0")
    A("s_cbranch_scc1 CS_LOOP_S")
    if cfg.s3 and cfg.pf == 2 and LAG < 63:
        ent = s_loop("_F", "", other="CS_LOOP_D")
        s_loop("_D", "", spec=True, other=ent)
    else:
        s_loop("_F", "")
    s_loop("_S", " sc1")

    A.label("CH_START")
    next_item(A, S_NL, S_NT)
    next_item(A, S_L2, S_T2)
    A(f"s_mov_b32 {s(S_KLDS)}, {L_KV}")
    kv_src(A, S_L, S_T)
    flag_row_of(A, S_FLG1, S_L, S_T)
    flag_spin(S_FLG1)
    for e in kv_dma():
        for x in e:
            A(x)
    A(f"s_mov_b32 {s(S_KLDS)}, {L_KV + 24576}")
    kv_src(A, S_NL, S_NT)
    flag_row_of(A, S_FLG1, S_NL, S_NT)
    flag_row_of(A, S_FLG2, S_L2, S_T2)
    A(f"s_mov_b32 {s(S_DEF)}, 1")
    A(f"v_min_u32 {v(V_SY3)}, 2, {v(V_LANE)}")
    A(f"v_lshlrev_b32 {v(V_SY3)}, 2, {v(V_SY3)}")
    A(f"v_add_u32 {v(V_SY3)}, {L_SY}, {v(V_SY3)}")
    A(f"v_mov_b32 {v(V_RDY)}, {L_SY + 12}")
    A(f"s_mov_b32 {s(S_EARLY)}, 0")
    stamp.init()
    L = Lds(A)
    ool = []
    if cfg.s3 == 2:
        for i in range(24):
            A(f"v_mov_b32 {v(V_ACC + i)}, 0")
    front(L, ool, "CH_LOOP", poller="me", zero=cfg.s3 != 2)
    kstore = [f"buffer_store_dwordx4 {v(V_KEEP + 4 * i, 4)}, {v(V_KST)}, {WS}, {s(S_KP)} offen offset:{i * 1024} sc1" for i in range(3)]
    f1, f2 = pend_window(kstore)
    dm = kv_dma()[12 if cfg.dsh else 0:] if not cfg.nodma else []
    if cfg.dsh == 2 and dm:
        dm = [(dm[i - i % 4][:-1] if i % 4 == cfg.dv else []) + dm[i][-1:] for i in range(12) if i % 4 >= cfg.dv]
    flat = lambda l_: [x for e in l_ for x in (["\n".join(e[:-1])] if len(e) > 1 else []) + [e[-1]]]
    epi = qk_epi(L)
    fl = f"buffer_load_dword {v(V_FV)}, {v(V_FLG)}, {WS}, {s(S_FLG2)} offen sc1"
    if cfg.s3 != 1:
        tfe = Task(0, cap(lambda c: fe_scalars(c, S_NL, S_NT, S_NTAG, S_NT1)) if cfg.s3 else [])
        gemm(L, [Task(cfg.dma0, ([(24, f1), (40, f2)] if not cfg.nb else pend_items(kstore)) + [fl]), Task(cfg.dma1, flat(dm[:cfg.ngem])), tfe] + epi[1:], qk_tail, hi=epi[:1])
        L.wait("xw")
        A("s_barrier")
        stamp(2)
        if cfg.s3:
            A(f"buffer_load_dword {v(V_T + 4)}, {v(V_DB)}, {WS}, {s(S_DPA)} offen sc1")
    else:
        seq, rd, items = gemm3(L, [60, 64, 68, 88, 92, 96, 48, 52], 12)
        p1 = G3I[9, 5]
        e0, e2, e1 = Task(p1 - 1, items(0)), Task(p1 + 3, items(2)), Task(60, items(1))
        tfe = Task(0, cap(lambda c: fe_scalars(c, S_NL, S_NT, S_NTAG, S_NT1)))
        tsm = Task(cfg.ksd, [f"buffer_load_dword {v(V_T + 4)}, {v(V_DB)}, {WS}, {s(S_DPA)} offen sc1"])
        tsm.after = tfe
        sched(A, L, seq, [e0, e2] + rd + [tsm, Task(cfg.dma0, [(24, f1), (40, f2), fl]), Task(cfg.dma1, flat(dm[:cfg.ngem])), tfe, e1],
              pre={cfg.bar1: bar_after(L, "mw", 5), min(p1 + cfg.b2a, 59): bar_after(L, ("xw", 2), None, [e0, e2])},
              lim=lambda k: (16, 2) if p1 - 1 <= k < p1 + 7 else (cfg.hb, 1))
        stamp(6)
        A(f"s_add_u32 {s(T)}, {s(S_N)}, 1")
        A(f"v_mov_b32 {v(V_T + 2)}, {s(T)}")
        bar_after(L, ("xw", 1), 2)()
        lab = A.newlabel("ne")
        A(f"s_mov_b32 {s(S_EARLY)}, 0")
        A("s_waitcnt vmcnt(0)")
        A(f"v_cmp_gt_u32 vcc, {s(S_NT1)}, {v(V_T + 4)}")
        A(f"s_cbranch_vccnz {lab}")
        A(f"ds_write_b32 {v(V_RDY)}, {v(V_T + 2)}")
        A(f"s_mov_b32 {s(S_EARLY)}, 1")
        A.label(lab)
    if cfg.w3:
        slowp, back = A.newlabel("h1"), A.newlabel("h2")
        cur_global(A)
        A(f"s_cmp_ge_u32 {s(S_NT)}, 63")
        A(f"s_cselect_b32 {s(S_DEF)}, 0, {s(S_DEF)}")
        A(f"s_cmp_eq_u32 {s(S_NL)}, {s(S_L)}")
        A(f"s_cselect_b32 {s(T)}, 1, {s(S_DEF)}")
        A(f"s_cmp_eq_u32 {s(T)}, 0")
        A(f"s_cbranch_scc0 {slowp}")
        A.label(back)
        stamp(4)
        stamp.flush()
        advance()
        A(f"s_mov_b32 {s(S_NL)}, {s(S_L2)}")
        A(f"s_mov_b32 {s(S_NT)}, {s(S_T2)}")
        A(f"s_mov_b32 {s(S_FLG1)}, {s(S_FLG2)}")
        next_item(A, S_L2, S_T2)
        flag_row_of(A, S_FLG2, S_L2, S_T2)
        kv_src(A, S_NL, S_NT)
        A(f"s_xor_b32 {s(S_KLDS)}, {s(S_KLDS)}, {L_KV ^ (L_KV + 24576)}")
        for i in range(24):
            A(f"v_mov_b32 {v(V_ACC + i)}, 0")
        A("s_waitcnt vmcnt(0)")
        if cfg.ef:
            f1()
        A(f"v_cmp_eq_u32 vcc, 0, {v(V_FV)}")
        A(f"s_cmp_lg_u64 vcc, 0")
        A(f"s_cselect_b32 {s(S_DEF)}, 1, 0")
        A(f"v_cmp_gt_u32 vcc, {s(S_T1)}, {v(V_T + 4)}")
        A("s_cbranch_vccz CH_RUNG")
        A(f"s_cmp_lt_u32 {s(S_N)}, 128")
        A(f"s_cbranch_scc1 CH_LOOP")
        A("s_branch CS_DONE")
        A.label(slowp)
        kgrab()
        sp = A.newlabel("sp")
        A(f"s_cmp_eq_u32 {s(S_N)}, 127")
        A(f"s_cbranch_scc1 {sp}x")
        A.label(sp)
        A(f"ds_read_b32 {v(V_T)}, {v(V_SY3)}")
        A("s_waitcnt lgkmcnt(0)")
        A(f"v_cmp_ge_u32 vcc, {s(S_N)}, {v(V_T)}")
        poll_tail(A, sp, sleep=1)
        A.label(sp + "x")
        A("s_waitcnt vmcnt(0)")
        f1()
        f2()
        A("s_waitcnt vmcnt(0)")
        f1()
        A(f"s_cmp_eq_u32 {s(S_DEF)}, 0")
        A(f"s_cbranch_scc1 {back}")
        flag_spin(S_FLG1)
        for e in kv_dma():
            for x in e:
                A(x)
        A(f"s_branch {back}")
    else:
        for e in dm[cfg.ngem:]:
            for x in e:
                A(x)
        for j in range(6):
            for ih in range(2):
                A(f"ds_read_b64_tr_b16 {v(V_ACC + 4 * j + 2 * ih, 2)}, {v(V_XR)} offset:{j * 1024 + ih * 512}")
        cur_global(A)
        if not cfg.s3:
            fe_scalars(A, S_NL, S_NT, S_NTAG, S_NT1)
        A(f"s_mov_b64 vcc, {s(S_MB, 2)}")
        A("s_waitcnt lgkmcnt(0)")
        for jp in range(3):
            for i in range(4):
                A(f"v_cndmask_b32_dpp {v(V_KEEP + 4 * jp + i)}, {v(V_ACC + 8 * jp + 4 + i)}, {v(V_ACC + 8 * jp + i)}, vcc quad_perm:[0,1,0,1] {QP}")
        nxt, nodef, sp = A.newlabel("nx"), A.newlabel("nd"), A.newlabel("sp")
        A(f"s_cmp_ge_u32 {s(S_NT)}, 63")
        A(f"s_cselect_b32 {s(S_DEF)}, 0, {s(S_DEF)}")
        A(f"s_cmp_eq_u32 {s(S_NL)}, {s(S_L)}")
        A(f"s_cselect_b32 {s(T)}, 1, {s(S_DEF)}")
        A(f"s_cmp_eq_u32 {s(T)}, 0")
        A(f"s_cbranch_scc1 {nodef}")
        A(f"s_cmp_eq_u32 {s(S_N)}, 127")
        A(f"s_cbranch_scc1 {sp}x")
        A.label(sp)
        A(f"ds_read_b32 {v(V_T)}, {v(V_SY3)}")
        A("s_waitcnt lgkmcnt(0)")
        A(f"v_cmp_ge_u32 vcc, {s(S_N)}, {v(V_T)}")
        poll_tail(A, sp, sleep=1)
        A.label(sp + "x")
        A("s_waitcnt vmcnt(0)")
        f1()
        f2()
        A("s_waitcnt vmcnt(0)")
        f1()
        A.label(nxt)
        A(f"s_cmp_eq_u32 {s(S_DEF)}, 0")
        A(f"s_cbranch_scc1 {nodef}")
        flag_spin(S_FLG1)
        for e in kv_dma():
            for x in e:
                A(x)
        A.label(nodef)
        stamp(4)
        stamp.flush()
        advance()
        A(f"s_mov_b32 {s(S_NL)}, {s(S_L2)}")
        A(f"s_mov_b32 {s(S_NT)}, {s(S_T2)}")
        A(f"s_mov_b32 {s(S_FLG1)}, {s(S_FLG2)}")
        next_item(A, S_L2, S_T2)
        flag_row_of(A, S_FLG2, S_L2, S_T2)
        kv_src(A, S_NL, S_NT)
        A(f"s_xor_b32 {s(S_KLDS)}, {s(S_KLDS)}, {L_KV ^ (L_KV + 24576)}")
        if cfg.s3 == 2:
            for i in range(24):
                A(f"v_mov_b32 {v(V_ACC + i)}, 0")
        A("s_waitcnt vmcnt(0)")
        A(f"v_cmp_eq_u32 vcc, 0, {v(V_FV)}")
        A(f"s_cmp_lg_u64 vcc, 0")
        A(f"s_cselect_b32 {s(S_DEF)}, 1, 0")
        if cfg.s3 == 2:
            A(f"v_cmp_gt_u32 vcc, {s(S_T1)}, {v(V_T + 4)}")
            A("s_cbranch_vccz CH_RUNG")
        A(f"s_cmp_lt_u32 {s(S_N)}, 128")
        A(f"s_cbranch_scc1 CH_LOOP")
        A("s_branch CS_DONE")
    for f in ool:
        f()
    A.label("CS_DONE")
    A(f"v_lshrrev_b32 v0, 4, {v(V_L16)}")
    if cfg.timing == 5:
        retry_dump(A, 0)
    timing_end(A, cfg, stamp, 0)

    A.label("CV_START")
    if cfg.timing == 5:
        for k in range(5):
            A(f"s_mov_b32 {s(92 + k)}, 0")
    stamp.init()

    def v_loop(sx, LS, u):
        L = Lds(A)
        ool = []
        front(L, ool, "CV_LOOP" + sx, poller=None if u else "w0")
        PK = V_KEEP
        x4, x2 = (PK + 2, PK) if u else (PK, PK + 4)
        xst = [f"buffer_store_dwordx4 {v(x4, 4)}, {v(V_VS0)}, {WS}, {s(S_KP)} offen sc1",
               f"buffer_store_dwordx2 {v(x2, 2)}, {v(V_VS1)}, {WS}, {s(S_KP)} offen sc1"]
        f1, f2 = pend_window(xst)
        tail = []
        for p in range(3):
            tail += [(8, 2 * p), (8, 2 * p + 1), (9, 2 * p), (9, 2 * p + 1)]

        def items(p):
            q, k = V_ACC + 8 * p, V_ACC + 8 * p + 4
            r = [f"v_add_f32 {v(q)}, {v(q)}, {v(q + 1)}", f"v_add_f32 {v(q + 2)}, {v(q + 2)}, {v(q + 3)}",
                 f"v_add_f32 {v(k)}, {v(k)}, {v(k + 1)}", f"v_add_f32 {v(k + 2)}, {v(k + 2)}, {v(k + 3)}",
                 f"v_cvt_pk_bf16_f32 {v(PK + 2 * p)}, {v(q)}, {v(q + 2)}", f"v_cvt_pk_bf16_f32 {v(PK + 2 * p + 1)}, {v(k)}, {v(k + 2)}",
                 f"v_and_or_b32 {v(PK + 2 * p)}, {v(PK + 2 * p)}, -2, {s(S_TAG)}"]
            if p == (2, 0)[u]:
                r.append(f"buffer_store_dwordx2 {v(x2, 2)}, {v(V_VS1)}, {WS}, {s(S_VMA)} offen{LS}")
            if p == (1, 2)[u]:
                r.append(f"buffer_store_dwordx4 {v(x4, 4)}, {v(V_VS0)}, {WS}, {s(S_VMA)} offen{LS}")
            return r
        gemm(L, [Task(cfg.dmav, [(24, f1), (32, f2)] if not cfg.nb else pend_items(xst)), Task(0, cap(lambda c: cur_local(c, True))), Task(60, items(1)), Task(60, items(2))], tail, hi=[Task(53, items(0))])
        stamp(2)
        if not cfg.pb:
            A("s_barrier")
        cur_global(A)
        next_item(A, S_NL, S_NT)
        fe_scalars(A, S_NL, S_NT, S_NTAG, S_NT1)
        nxt = A.newlabel("nx")
        if cfg.ef:
            A("s_waitcnt vmcnt(0)")
            f1()
        A(f"s_cmp_lg_u32 {s(S_NL)}, {s(S_L)}")
        A(f"s_cbranch_scc1 {nxt}")
        A("s_waitcnt vmcnt(0)")
        f1()
        f2()
        A("s_waitcnt vmcnt(0)")
        f1()
        A.label(nxt)
        stamp.flush()
        advance()
        A(f"s_cmp_lt_u32 {s(S_N)}, 128")
        A(f"s_cbranch_scc1 CV_LOOP{sx}")
        A("s_branch CV_DONE")
        for f in ool:
            f()

    A(f"s_and_b32 {s(T)}, {s(S_WAVE)}, 1")
    A(f"s_lshl1_add_u32 {s(T)}, {s(S_MODE)}, {s(T)}")
    for k, sx in ((1, "_F1"), (2, "_S0"), (3, "_S1")):
        A(f"s_cmp_eq_u32 {s(T)}, {k}")
        A(f"s_cbranch_scc1 CV_LOOP{sx}")
    v_loop("_F0", "", 0)
    v_loop("_F1", "", 1)
    v_loop("_S0", " sc1", 0)
    v_loop("_S1", " sc1", 1)
    A.label("CV_DONE")
    if cfg.timing == 5:
        retry_dump(A, 32)
    timing_end(A, cfg, stamp, 32)


def gen_cw(A, cfg, nwg):
    LAG = cfg.LAG
    V_DB, V_BW, V_RW0, V_RR0, V_RW, V_RR, V_PS = 3, 4, 5, 6, 7, 8, 9
    V_STAMP = 19
    V_O = 32
    V_ACC = 80
    V_B = 100
    L_RB = 98304
    RBS = 4 * 8 * 352
    S_PLH, S_PXH, S_DPH, S_M40 = S_HOFF, S_PXR, S_XGH, S_MA

    def wreg(f, p):
        idx = f * 4 + p
        return ("a", idx * 8) if idx < 32 else ("v", 128 + (idx - 32) * 8)

    def wtxt(f, p):
        if p == 4:
            return v(V_B + 8 * (f & 1), 8)
        k, r = wreg(f, p)
        return a(r, 8) if k == "a" else v(r, 8)

    A.label("ROLE_CW")
    common_setup(A, cfg, 3)
    g_, c_ = V_T + 2, V_T + 3
    A(f"v_lshrrev_b32 {v(g_)}, 4, {v(V_LANE)}")
    A(f"v_and_b32 {v(c_)}, 15, {v(V_LANE)}")
    A(f"v_min_u32 {v(V_DB)}, 11, {v(c_ if cfg.pw else V_LANE)}")
    A(f"v_lshlrev_b32 {v(V_DB)}, 2, {v(V_DB)}")
    if cfg.pw:
        A(f"v_lshl_add_u32 {v(V_DB)}, {v(g_)}, 7, {v(V_DB)}")
    A(f"s_mul_i32 {s(T)}, {s(S_WAVE)}, 24576")
    A(f"v_add_u32 {v(V_BW)}, {s(T)}, {v(V_L16)}")
    A(f"v_mul_u32_u24 {v(V_RW0)}, 704, {v(g_)}")
    if cfg.h16:
        A(f"v_and_b32 {v(V_T)}, 3, {v(c_)}")
        A(f"v_lshl_add_u32 {v(V_RW0)}, {v(V_T)}, 2, {v(V_RW0)}")
        A(f"v_bfe_u32 {v(V_T)}, {v(c_)}, 2, 1")
        A(f"v_lshl_add_u32 {v(V_RW0)}, {v(V_T)}, 5, {v(V_RW0)}")
        A(f"v_bfe_u32 {v(V_T)}, {v(c_)}, 3, 1")
        A(f"v_lshl_add_u32 {v(V_RW0)}, {v(V_T)}, 4, {v(V_RW0)}")
    else:
        A(f"v_lshl_add_u32 {v(V_RW0)}, {v(c_)}, 2, {v(V_RW0)}")
    A(f"s_mul_i32 {s(T)}, {s(S_WAVE)}, 2816")
    A(f"s_add_u32 {s(T)}, {s(T)}, {L_RB}")
    A(f"v_add_u32 {v(V_RW0)}, {s(T)}, {v(V_RW0)}")
    V_TM = 10
    if cfg.h16:
        A(f"s_mul_i32 {s(T)}, {s(S_WAVE)}, 24")
        A(f"s_min_u32 {s(T)}, {s(T)}, 64")
        A(f"s_cmp_lt_u32 {s(S_WAVE)}, 2")
        A(f"s_cselect_b32 {s(T + 1)}, 23, 15")
        A(f"s_mov_b32 {s(S_M40)}, 0xffff")
        A(f"s_cselect_b32 {s(S_M40)}, 0xffffff, {s(S_M40)}")
        A(f"s_mov_b32 {s(S_M40 + 1)}, 0")
        A(f"v_and_b32 {v(V_T)}, 31, {v(V_LANE)}")
        A(f"v_min_u32 {v(V_T)}, {s(T + 1)}, {v(V_T)}")
        A(f"v_add_u32 {v(V_T)}, {s(T)}, {v(V_T)}")
        A(f"v_lshrrev_b32 {v(V_T + 1)}, 5, {v(V_LANE)}")
        A(f"v_lshl_add_u32 {v(V_T)}, {v(V_T)}, 1, {v(V_T + 1)}")
        A(f"v_bfe_u32 {v(V_T + 1)}, {v(V_T)}, 2, 3")
        A(f"v_mul_u32_u24 {v(V_RR0)}, 352, {v(V_T + 1)}")
        A(f"v_mul_u32_u24 {v(V_T + 5)}, 1280, {v(V_T + 1)}")
        A(f"v_lshrrev_b32 {v(V_T + 1)}, 5, {v(V_T)}")
        A(f"v_lshl_add_u32 {v(V_RR0)}, {v(V_T + 1)}, 6, {v(V_RR0)}")
        A(f"v_lshl_add_u32 {v(V_T + 5)}, {v(V_T + 1)}, 5, {v(V_T + 5)}")
        A(f"v_and_b32 {v(V_T + 1)}, 3, {v(V_T)}")
        A(f"v_lshl_add_u32 {v(V_T + 5)}, {v(V_T + 1)}, 3, {v(V_T + 5)}")
        A(f"v_and_b32 {v(V_T + 1)}, 1, {v(V_T)}")
        A(f"v_lshl_add_u32 {v(V_RR0)}, {v(V_T + 1)}, 5, {v(V_RR0)}")
        A(f"v_bfe_u32 {v(V_T + 1)}, {v(V_T)}, 1, 1")
        A(f"v_lshl_add_u32 {v(V_RR0)}, {v(V_T + 1)}, 4, {v(V_RR0)}")
        A(f"v_add_u32 {v(V_RR0)}, {L_RB}, {v(V_RR0)}")
        A(f"s_mul_i32 {s(T)}, {s(S_J)}, 1280")
        A(f"v_lshlrev_b32 {v(V_PS)}, 3, {v(V_T)}")
        A(f"v_add_u32 {v(V_PS)}, {s(T)}, {v(V_PS)}")
        A(f"v_lshrrev_b32 {v(V_T + 1)}, 13, {v(V_PS)}")
        A(f"v_lshl_add_u32 {v(V_PS)}, {v(V_T + 1)}, 13, {v(V_PS)}")
        A(f"v_xor_b32 {v(V_TM)}, 1, {v(V_T)}")
        A(f"v_or_b32 {v(V_TM)}, {v(V_TM)}, {v(V_T + 1)}")
        A(f"v_and_b32 {v(V_TM)}, 1, {v(V_TM)}")
    else:
        A(f"v_min_u32 {v(V_T)}, 39, {v(V_LANE)}")
        A(f"s_mul_i32 {s(T)}, {s(S_WAVE)}, 40")
        A(f"v_add_u32 {v(V_T)}, {s(T)}, {v(V_T)}")
        A(f"v_lshlrev_b32 {v(V_PS)}, 4, {v(V_T)}")
        A(f"v_bfe_u32 {v(V_T + 1)}, {v(V_T)}, 1, 3")
        A(f"v_mul_u32_u24 {v(V_RR0)}, 352, {v(V_T + 1)}")
        A(f"v_mul_u32_u24 {v(V_T + 5)}, 1280, {v(V_T + 1)}")
        A(f"v_lshrrev_b32 {v(V_T + 1)}, 4, {v(V_T)}")
        A(f"v_lshl_add_u32 {v(V_RR0)}, {v(V_T + 1)}, 5, {v(V_RR0)}")
        A(f"v_lshl_add_u32 {v(V_T + 5)}, {v(V_T + 1)}, 4, {v(V_T + 5)}")
        A(f"v_and_b32 {v(V_T + 1)}, 1, {v(V_T)}")
        A(f"v_lshl_add_u32 {v(V_RR0)}, {v(V_T + 1)}, 4, {v(V_RR0)}")
        A(f"v_lshl_add_u32 {v(V_T + 5)}, {v(V_T + 1)}, 3, {v(V_T + 5)}")
        A(f"v_add_u32 {v(V_RR0)}, {L_RB}, {v(V_RR0)}")
        A(f"s_mov_b32 {s(S_M40)}, -1")
        A(f"s_mov_b32 {s(S_M40 + 1)}, 0xff")
    make_srd(A, SRD_W, P_MEM0, 10240)
    A(f"s_mul_i32 {s(T)}, {s(S_J)}, 160")
    A(f"buffer_load_dwordx2 {v(V_O, 2)}, {v(V_T + 5)}, {s(SRD_W, 4)}, {s(T)} offen")
    A(f"s_mul_i32 {s(S_PLH)}, {s(S_J)}, {0 if cfg.h16 else 2560}")
    A(f"s_add_u32 {s(S_PLH)}, {s(S_PLH)}, {s(S_XB)}")
    A(f"s_lshl_b32 {s(S_PXH)}, {s(S_X)}, 19")
    A(f"s_lshr_b32 {s(T)}, {s(S_J)}, 1")
    if not cfg.h16:
        A(f"s_lshl_b32 {s(T + 1)}, {s(T)}, 14")
        A(f"s_add_u32 {s(S_PXH)}, {s(S_PXH)}, {s(T + 1)}")
    A(f"s_and_b32 {s(T + 1)}, {s(S_J)}, 1")
    A(f"s_mul_i32 {s(T + 2)}, {s(T + 1)}, {0 if cfg.h16 else 2560}")
    A(f"s_add_u32 {s(S_PXH)}, {s(S_PXH)}, {s(T + 2)}")
    A(f"s_add_u32 {s(S_PXH)}, {s(S_PXH)}, {XP}")
    A(f"s_lshl_b32 {s(S_DPH)}, {s(T)}, 7")
    A(f"s_lshl_b32 {s(T + 1)}, {s(T + 1)}, 2")
    A(f"s_add_u32 {s(T + 1)}, {s(T + 1)}, {s(S_WAVE)}")
    A(f"s_lshl_b32 {s(T + 1)}, {s(T + 1)}, 2")
    A(f"s_add_u32 {s(S_DPH)}, {s(S_DPH)}, {s(T + 1)}")
    A(f"s_add_u32 {s(S_DPH)}, {s(S_DPH)}, {s(S_XB)}")
    A(f"s_add_u32 {s(S_DPH)}, {s(S_DPH)}, {DP_OFF}")
    A(f"s_mul_i32 {s(S_OIH)}, {s(S_WAVE)}, 12288")
    A(f"s_add_u32 {s(S_OIH)}, {s(S_OIH)}, {s(S_XB)}")
    A(f"s_add_u32 {s(S_OIH)}, {s(S_OIH)}, {OI_OFF}")
    A(f"s_lshl_b32 {s(S_DOH)}, {s(S_WAVE)}, 7" if not cfg.pw else f"s_mov_b32 {s(S_DOH)}, 0")
    A(f"s_add_u32 {s(S_DOH)}, {s(S_DOH)}, {s(S_XB)}")
    A(f"s_add_u32 {s(S_DOH)}, {s(S_DOH)}, {DO_OFF}")
    A(f"s_cmp_eq_u32 {s(S_X)}, 0")
    A(f"s_cselect_b32 {s(T + 3)}, 0xffff0000, 0")
    A("s_waitcnt vmcnt(0)")
    QPX = "quad_perm:[1,1,3,3] row_mask:0xf bank_mask:0xf"
    if cfg.h16:
        A(f"s_cselect_b64 vcc, -1, 0")
        A(f"v_bfi_b32 {v(V_O + 4)}, {v(V_TM)}, 0, {v(V_O)}")
        A(f"v_lshlrev_b32 {v(V_O + 2)}, 16, {v(V_O)}")
        A(f"v_lshlrev_b32 {v(V_O + 3)}, 16, {v(V_O + 4)}")
        A(f"v_sub_f32 {v(V_O + 2)}, {v(V_O + 2)}, {v(V_O + 3)}")
        A(f"v_lshrrev_b32 {v(V_O + 2)}, 16, {v(V_O + 2)}")
        A(f"v_and_b32 {v(V_O + 2)}, -2, {v(V_O + 2)}")
        A(f"v_cndmask_b32 {v(V_O + 4)}, {v(V_O + 2)}, {v(V_O + 4)}, vcc")
        A(f"v_cndmask_b32 {v(V_O + 5)}, 0, {v(V_O + 1)}, vcc")
        A(f"v_permlane32_swap_b32 {v(V_O + 4)}, {v(V_O + 6)}")
        A(f"v_permlane32_swap_b32 {v(V_O + 5)}, {v(V_O + 7)}")
    else:
        A(f"v_lshlrev_b32 {v(V_O + 4)}, 16, {v(V_O)}")
        A(f"v_and_b32 {v(V_O + 4)}, {s(T + 3)}, {v(V_O + 4)}")
        A(f"v_and_b32 {v(V_O + 5)}, {s(T + 3)}, {v(V_O)}")
        A(f"v_lshlrev_b32 {v(V_O + 6)}, 16, {v(V_O + 1)}")
        A(f"v_and_b32 {v(V_O + 6)}, {s(T + 3)}, {v(V_O + 6)}")
        A(f"v_and_b32 {v(V_O + 7)}, {s(T + 3)}, {v(V_O + 1)}")
    for i in range(4):
        A(f"v_mov_b32 {v(V_O + 8 + i)}, -1")
    A(f"v_mov_b32 {v(V_O + 12)}, 1")
    A(f"s_mov_b64 exec, {s(S_M40, 2)}")
    lst = []
    for k in range(8):
        d = V_O + 4 if k % 4 == 0 else V_O + 8
        lst.append(f"s_add_u32 {s(T)}, {s(S_PLH)}, {PL_OFF + k * 20480}")
        lst.append(f"buffer_store_dwordx4 {v(d, 4)}, {v(V_PS)}, {WS}, {s(T)} offen")
        for hf in range(2 if cfg.near else 1):
            A(f"s_add_u32 {s(T)}, {s(S_PXH)}, {k * 65536 + hf * 8192}")
            A(f"buffer_store_dwordx4 {v(d, 4)}, {v(V_PS)}, {WS}, {s(T)} offen sc1")
    lst.append("s_mov_b64 exec, 1")
    lst.append(f"buffer_store_dword {v(V_O + 12)}, {v(V_L16)}, {WS}, {s(S_DPH)} offen")
    lst.append(f"buffer_store_dword {v(V_O + 12)}, {v(V_L16)}, {WS}, {s(S_DPH)} offen offset:512")
    lstore(A, lst)
    A("s_mov_b64 exec, -1")
    init_barrier_arrive(A, V_T)

    V_DA, V_TR, V_PARK = 20, 30, 32
    S_ORG, S_LW = S_KSRC, S_KLDS
    make_srd(A, SRD_W, P_WO, 6144 * 1280)
    A(f"s_lshl_b32 {s(T)}, {s(S_X)}, 2")
    A(f"s_add_u32 {s(T)}, {s(T)}, {s(S_WAVE)}")
    A(f"s_mul_i32 {s(S_ORG)}, {s(T)}, {768 * 1280}")
    A(f"s_mul_i32 {s(T)}, {s(S_J)}, 160")
    A(f"s_add_u32 {s(S_ORG)}, {s(S_ORG)}, {s(T)}")
    A(f"s_mul_i32 {s(S_LW)}, {s(S_WAVE)}, 40960")
    for i in range(10):
        A(f"v_add_u32 {v(V_T)}, {64 * i}, {v(V_LANE)}")
        A(f"v_mul_u32_u24 {v(V_T + 1)}, 6554, {v(V_T)}")
        A(f"v_lshrrev_b32 {v(V_T + 1)}, 16, {v(V_T + 1)}")
        A(f"v_mul_u32_u24 {v(V_T + 4)}, 10, {v(V_T + 1)}")
        A(f"v_sub_u32 {v(V_T)}, {v(V_T)}, {v(V_T + 4)}")
        A(f"v_mul_u32_u24 {v(V_DA + i)}, 1280, {v(V_T + 1)}")
        A(f"v_lshl_add_u32 {v(V_DA + i)}, {v(V_T)}, 4, {v(V_DA + i)}")
    A(f"v_lshrrev_b32 {v(g_)}, 4, {v(V_LANE)}")
    A(f"v_and_b32 {v(V_T)}, 1, {v(g_)}")
    A(f"v_lshlrev_b32 {v(V_T)}, 5, {v(V_T)}")
    A(f"v_lshrrev_b32 {v(V_T + 1)}, 1, {v(g_)}")
    A(f"v_lshl_add_u32 {v(V_T)}, {v(V_T + 1)}, 2, {v(V_T)}")
    A(f"v_bfe_u32 {v(V_T + 1)}, {v(V_LANE)}, 2, 1")
    A(f"v_add_u32 {v(V_T)}, {v(V_T)}, {v(V_T + 1)}")
    A(f"v_bfe_u32 {v(V_T + 1)}, {v(V_LANE)}, 3, 1")
    A(f"v_lshl_add_u32 {v(V_T)}, {v(V_T + 1)}, 4, {v(V_T)}")
    A(f"v_mul_u32_u24 {v(V_TR)}, 160, {v(V_T)}")
    A(f"v_and_b32 {v(V_T + 1)}, 3, {v(V_LANE)}")
    A(f"v_lshl_add_u32 {v(V_TR)}, {v(V_T + 1)}, 3, {v(V_TR)}")
    A(f"v_add_u32 {v(V_TR)}, {s(S_LW)}, {v(V_TR)}")

    def w_dma(f):
        A(f"s_add_u32 {s(T + 1)}, {s(S_ORG)}, {f * 64 * 1280}")
        for i in range(10):
            A(f"s_add_u32 m0, {s(S_LW)}, {(f % 4) * 10240 + i * 1024}")
            A(f"buffer_load_dwordx4 {v(V_DA + i)}, {s(SRD_W, 4)}, {s(T + 1)} offen lds")
    for f in range(4):
        w_dma(f)
    for f in range(12):
        A(f"s_waitcnt vmcnt({10 * min(3, 11 - f)})")
        n = 0
        for p in range(5):
            kind, r = wreg(f, p) if p < 4 else ("v", V_PARK + 8 * f)
            fn = a if kind == "a" else v
            for RH in range(2):
                for hh in range(2):
                    A(f"ds_read_b64_tr_b16 {fn(r + 4 * RH + 2 * hh, 2)}, {v(V_TR)} offset:{(f % 4) * 10240 + (8 * RH + 2 * hh) * 160 + 32 * p}")
                    n += 1
                    if n == 12:
                        A("s_waitcnt lgkmcnt(4)")
        A("s_waitcnt lgkmcnt(0)")
        if f + 4 < 12:
            w_dma(f + 4)
    A("s_barrier")
    for f in range(12):
        for hf in range(2):
            A(f"ds_write_b128 {v(V_BW)}, {v(V_PARK + 8 * f + 4 * hf, 4)} offset:{f * 2048 + hf * 1024}")
        if f % 4 == 3:
            A("s_waitcnt lgkmcnt(0)")
    A("s_barrier")
    init_barrier_wait(A, V_T, nwg, cfg)
    near_half(A, cfg, S_PXH)
    A(f"s_mov_b32 {s(S_N)}, 0")
    A(f"s_mov_b32 {s(S_DEF)}, 0")
    stamp = mk_stamp(A, cfg, V_STAMP)
    stamp.init()

    def w_loop(sx, LS):
        L = Lds(A)
        nxt = "CW_NEXT" + sx
        A.label("CW_LOOP" + sx)
        item_of(A, S_N, S_L, S_T, LAG, 0, T)
        A(f"s_cmp_eq_u32 {s(S_T)}, 63")
        A(f"s_cbranch_scc1 {nxt}")
        A(f"s_add_u32 {s(S_T1)}, {s(S_T)}, 1")
        A(f"s_lshl_b32 {s(T + 1)}, {s(S_L)}, 9")
        A(f"s_add_u32 {s(S_DOA)}, {s(T + 1)}, {s(S_DOH)}")
        A(f"s_add_u32 {s(S_DPA)}, {s(T + 1)}, {s(S_DPH)}")
        A(f"s_lshl_b32 {s(T + 1)}, {s(S_L)}, 2")
        A(f"s_and_b32 {s(T)}, {s(S_T)}, {cfg.cr - 1}")
        A(f"s_add_u32 {s(T)}, {s(T)}, {s(T + 1)}")
        A(f"s_mul_i32 {s(S_OIA)}, {s(T)}, 49152")
        A(f"s_add_u32 {s(S_OIA)}, {s(S_OIA)}, {s(S_OIH)}")
        A(f"s_add_u32 {s(S_VMA)}, {s(S_OIA)}, 4096")
        A(f"s_add_u32 {s(S_KCUR)}, {s(S_OIA)}, 8192")
        A(f"s_bfe_u32 {s(S_TAG)}, {s(S_T)}, {0x10000 + cfg.cr.bit_length() - 1}")
        A(f"s_bfe_u32 {s(S_NTAG)}, {s(S_T1)}, {0x10000 + cfg.cr.bit_length() - 1}")
        A(f"s_and_b32 {s(T)}, {s(S_T1)}, {cfg.cr - 1}")
        A(f"s_add_u32 {s(T)}, {s(T)}, {s(T + 1)}")
        A(f"s_mul_i32 {s(S_PLA)}, {s(T)}, 20480")
        A(f"s_add_u32 {s(S_PLA)}, {s(S_PLA)}, {s(S_PLH)}")
        A(f"s_lshl_b32 {s(S_PXA)}, {s(T)}, 16")
        A(f"s_add_u32 {s(S_PXA)}, {s(S_PXA)}, {s(S_PXH)}")
        A(f"s_xor_b32 {s(S_DEF)}, {s(S_DEF)}, {RBS}")
        A(f"v_add_u32 {v(V_RW)}, {s(S_DEF)}, {v(V_RW0)}")
        A(f"v_add_u32 {v(V_RR)}, {s(S_DEF)}, {v(V_RR0)}")
        A(f"s_add_u32 {s(T)}, {s(S_T)}, 2")
        A(f"v_mov_b32 {v(V_T + 4)}, {s(T)}")
        for i in range(20):
            A(f"v_mov_b32 {v(V_ACC + i)}, 0")

        def rdB(f):
            return [(("B", f), f"ds_read_b128 {v(V_B + 8 * (f & 1) + 4 * hf, 4)}, {v(V_BW)} offset:{f * 2048 + hf * 1024}") for hf in range(2)]
        for it in rdB(0) + rdB(1):
            L.op(*it)
        if cfg.pw:
            lab = A.newlabel("np")
            A(f"s_cmp_lg_u32 {s(S_WAVE)}, 0")
            A(f"s_cbranch_scc1 {lab}")
        doorbell(A, cfg, V_DB, S_DOA, V_T)
        if cfg.pw:
            A.label_nf(lab)
            A("s_barrier")
        stamp(0)

        def ld(f):
            return f"buffer_load_dwordx4 {v(V_O + 4 * f, 4)}, {v(V_L16)}, {WS}, {s((S_OIA, S_VMA, S_KCUR)[f // 4])} offen offset:{(f % 4) * 1024} sc1"
        ring = ["s_mov_b64 exec, 1", f"buffer_store_dword {v(V_T + 4)}, {v(V_L16)}, {WS}, {s(S_DPA)} offen{LS}", "s_mov_b64 exec, -1"]
        NP = cfg.wnp
        for f in range(NP):
            A(ld(f))
            if cfg.wsp and f < NP - 1:
                A(f"s_nop {cfg.wsp - 1}")
        stamp(7)
        issued = [NP]
        G = {f: [f] for f in range(cfg.wg1)}
        G.update({f: [f, f + 1] for f in range(cfg.wg1, 12, 2)})

        upto = {}

        def chk(f, top=None):
            last = G[f][-1]

            def w():
                n = issued[0] if top is None else top
                assert n > last, (f, n)
                A(f"s_waitcnt vmcnt({n - 1 - last})")
                if len(G[f]) == 1:
                    A(f"v_and_b32 {v(V_T)}, 1, {v(V_O + 4 * f)}")
                else:
                    A(f"v_bitop3_b32 {v(V_T)}, {v(V_O + 4 * f)}, {v(V_O + 4 * f + 4)}, {s(S_TAG)} bitop3:0x7e")
            if len(G[f]) == 1:
                return [(8, w), f"v_cmp_ne_u32 vcc, {s(S_TAG)}, {v(V_T)}"]
            return [(8, w), f"v_and_b32 {v(V_T)}, 1, {v(V_T)}", f"v_cmp_ne_u32 vcc, 0, {v(V_T)}"]

        def run(items):
            for x in items:
                x[1]() if isinstance(x, tuple) else A(x)

        def ldt(f):
            def go_():
                A(ld(f))
                issued[0] = f + 1
            return (cfg.vmc, go_)
        slow = {f: A.newlabel("ws") for f in G}
        go = {f: A.newlabel("wg") for f in G}
        run(chk(0))
        sq = [(f, p) for f in range(10) for p in range(5)] + [(f, p) for p in range(5) for f in (10, 11)]
        seq, tasks, pre, cks = [], [], {}, {}
        rds = []
        for k, (f, p) in enumerate(sq):
            seq.append((f"{SM} {v(V_ACC + 4 * p, 4)}, {v(V_O + 4 * f, 4)}, {wtxt(f, p)}, {v(V_IDX)}", [("B", f)] if p == 4 else []))
            if p == 0 and f in G:
                def br(f=f):
                    if f in cks:
                        assert not cks[f].items
                    upto[f] = issued[0]
                    A.nf(f"s_cbranch_vccnz {slow[f]}")
                    A.label_nf(go[f])
                    if f in (0, 6, 10):
                        stamp({0: 3, 6: 4, 10: 5}[f])
                pre[k] = br
                if f:
                    cks[f] = Task(k - cfg.wlead - len(chk(f)), chk(f), step=1)
                    tasks.append(cks[f])
                    tasks.append(Task(k - 1, [(12, lambda: None)]))
            if p == 4 and f + 2 < 12:
                rds.append(Task(k, rdB(f + 2)))
        tasks.append(Task(0, [ldt(f) for f in range(NP, 12)], step=cfg.wst))
        tasks += rds

        def items(p):
            q = V_ACC + 4 * p
            return [f"v_add_f32 {v(q)}, {v(q)}, {v(q + 1)}", f"v_add_f32 {v(q + 2)}, {v(q + 2)}, {v(q + 3)}",
                    ("rw", f"ds_write2_b32 {v(V_RW)}, {v(q)}, {v(q + 2)} offset0:{16 * p} offset1:{16 * p + 88}")]
        if cfg.wfd < 10:
            tasks.append(Task(50 + cfg.wfd, ["\n".join(ring)]))
        for p in range(5):
            tasks.append(Task(54 + 2 * p, items(p)))
        sched(A, L, seq, tasks, pre=pre)
        if cfg.wfd == 10:
            for x in ring:
                A(x)
        A("s_waitcnt lgkmcnt(0)")
        A("s_barrier")
        R = V_O
        for w in range(4):
            A(f"ds_read_b128 {v(R + 4 * w, 4)}, {v(V_RR)} offset:{w * 2816}")
        stamp(1)
        if cfg.wfd == 11:
            for x in ring[:2]:
                A(x)
        A(f"s_mov_b64 exec, {s(S_M40, 2) if not cfg.h16 else -1}")
        A("s_waitcnt lgkmcnt(2)")
        A(f"v_pk_add_f32 {v(R, 2)}, {v(R, 2)}, {v(R + 4, 2)}")
        A(f"v_pk_add_f32 {v(R + 2, 2)}, {v(R + 2, 2)}, {v(R + 6, 2)}")
        A("s_waitcnt lgkmcnt(0)")
        A(f"v_pk_add_f32 {v(R + 8, 2)}, {v(R + 8, 2)}, {v(R + 12, 2)}")
        A(f"v_pk_add_f32 {v(R + 10, 2)}, {v(R + 10, 2)}, {v(R + 14, 2)}")
        A(f"v_pk_add_f32 {v(R, 2)}, {v(R, 2)}, {v(R + 8, 2)}")
        A(f"v_pk_add_f32 {v(R + 2, 2)}, {v(R + 2, 2)}, {v(R + 10, 2)}")
        if cfg.h16:
            A(f"v_cvt_pk_bf16_f32 {v(R)}, {v(R)}, {v(R + 1)}")
            A(f"v_cvt_pk_bf16_f32 {v(R + 1)}, {v(R + 2)}, {v(R + 3)}")
            A(f"v_bfi_b32 {v(R)}, {v(V_TM)}, {s(S_NTAG)}, {v(R)}")
            A(f"v_permlane32_swap_b32 {v(R + 1)}, {v(R + 3)}")
            A(f"v_permlane32_swap_b32 {v(R)}, {v(R + 2)}")
            A(f"s_mov_b64 exec, {s(S_M40, 2)}")
        else:
            A(f"v_and_or_b32 {v(R)}, {v(R)}, -2, {s(S_NTAG)}")
        st2 = [f"buffer_store_dwordx4 {v(R, 4)}, {v(V_PS)}, {WS}, {s(S_PXA)} offen sc1", f"buffer_store_dwordx4 {v(R, 4)}, {v(V_PS)}, {WS}, {s(S_PLA)} offen{LS}"]
        if cfg.pso:
            st2.reverse()
        A(st2[0])
        if cfg.pso == 2:
            A("s_barrier")
        A(st2[1])
        A("s_mov_b64 exec, -1")
        if cfg.wfd == 12:
            for x in ring:
                A(x)
        stamp(2)
        stamp.flush()
        A.label(nxt)
        A(f"s_add_u32 {s(S_N)}, {s(S_N)}, 1")
        A(f"s_cmp_lt_u32 {s(S_N)}, 128")
        A(f"s_cbranch_scc1 CW_LOOP{sx}")
        A("s_branch CW_DONE")
        for f in G:
            A.label(slow[f])
            for f2 in range(f, upto[f]):
                A(ld(f2))
            spin_fail(A)
            if cfg.timing == 5:
                A(f"s_add_u32 s{92 + min(f, 4)}, s{92 + min(f, 4)}, 1")
            run(chk(f, upto[f]))
            A(f"s_cbranch_vccnz {slow[f]}")
            A(f"s_branch {go[f]}")

    if cfg.timing == 5:
        for k in range(5):
            A(f"s_mov_b32 {s(92 + k)}, 0")
    A(f"s_cmp_lg_u32 {s(S_MODE)}, 0")
    A("s_cbranch_scc1 CW_LOOP_S")
    w_loop("_F", "")
    w_loop("_S", " sc1")
    A.label("CW_DONE")
    if cfg.timing == 5:
        retry_dump(A, 48)
    timing_end(A, cfg, stamp, 48)
```

```python
import sys
from asmlib import Asm, v, a, s

NAME = "interleave_layers__memory_aug_recurrent_mem_tr__mixer_s_mlp__prompt"

WS_BYTES = 268435456
FLAGS = 0
CHB = 0x200000
CHB_XG = 0x200000
MEMR = CHB
MEM_SLOT = 20480
XCH_OFF = 4 * MEM_SLOT
XCH_HEAD = 18432
XCH_SLOT = 8 * XCH_HEAD
PART_OFF = XCH_OFF + 4 * XCH_SLOT
PART_SLOT = 8 * 40960
assert PART_OFF + 4 * PART_SLOT <= CHB_XG
XP = 0xA00000
XP_STEP = 4 * 40960
XG = 0x1700000
XG_HEAD = XCH_HEAD
XG_STEP = 32 * XG_HEAD
MAXSTEP = 84
assert XP + 80 * XP_STEP <= XG
QKV_SEG = 32 * 12288
QKV_SZ = 64 * QKV_SEG
KX = 0x4700000
assert XG + MAXSTEP * XG_STEP <= KX
VX = KX + QKV_SZ
QX = VX + QKV_SZ
OX = QX + QKV_SZ
WOP = OX + QKV_SZ
NKG = 6
WOP_SEG = NKG * 81920
XSEG = 40960
XSEGS = 46080
XIN = WOP + 64 * WOP_SEG
X1B = XIN + 128 * XSEGS
XM = X1B + 128 * XSEGS
YB = XM + 128 * XSEG
ZB = YB + 128 * XSEGS
X0R = ZB + 128 * XSEG
HB = X0R + 64 * XSEG
GB = HB + 2 * 66 * XSEG
GSEG = 98304
WS_END = GB + 128 * GSEG
assert WS_END + 4096 + 256 * 4 * 256 <= WS_BYTES, WS_END

RAWST = WS_END + 4096
F_XIN, F_Q, F_K, F_V, F_O, F_WOP, F_R1, F_H, F_X1, F_G = range(10)
FXG = 0xA8000
FXG_STEP = 32 * 64
assert FXG + MAXSTEP * FXG_STEP <= 0xE0000


C2 = CHB
C2_X = 0x200000
PL_OFF = 0
OI_OFF = 0x28000
VM_OFF = 0x88000
DP_OFF = 0xE8000
DO_OFF = 0xE8400
XG2_HEAD = 6144
XG2_STEP = 32 * XG2_HEAD
assert XG + 128 * XG2_STEP <= KX
FXG2_STEP = 32 * 32
FWOP2 = FXG + 128 * FXG2_STEP
assert FWOP2 + 128 * 640 <= 0xE0000


def flag_row(kind, layer=0, seg=0):
    return FLAGS + ((kind * 2 + layer) * 64 + seg) * 512


P_X, P_MEM0, P_WQ, P_WK, P_WV, P_WO, P_SEG, P_BX, P_W1, P_W2, P_W3, P_W4, P_OUT, P_DBG, P_WS = [16 + 2 * i for i in range(15)]
SRD_W = 4
SRD_WS = 8
SRD_DBG = 12
S_WAVE = 46
S_SPIN = 47
S_ROLE = 48
SPIN_BUDGET = 200000


class Cfg:
    def __init__(self, **kw):
        self.LAG = 9
        self.mode = "full"
        self.lstride = 0
        self.timing = 0
        self.force_fallback = 0
        self.xg_early = 1
        self.xsleep = 0
        self.msleep = 0
        self.prefetch = 1
        self.d0 = 0
        self.xpr = 4
        self.nodma = 0
        self.noxg = 0
        self.sl_m = 0
        self.sl_q = 0
        self.sl_r = 0
        self.qe = 10
        self.lateq2 = 0
        self.lsl = 1
        self.zf = 0
        self.xh2 = 0
        self.fe = 0
        self.xq = 0
        self.xw = 0
        self.xr = 0
        self.vote = 0
        self.allpipe = 0
        self.near = 0
        self.nprobe = 8
        self.xpl = 0
        self.dlt = 0
        self.dly_w = 0
        self.coop = 0
        self.jcw = 0
        self.gpk = 0
        self.r1h = 0
        self.xrs = 0
        self.q3 = 0
        self.wgq = 0
        self.wgp2 = 0
        self.asl = -1
        self.wgp = 0
        self.nrs = 0
        self.fsl = -1
        self.own = 0
        self.l15 = 0
        self.r1e = 0
        self.xat = 0
        self.jc = 0
        self.q2 = 0
        self.q2tail = 8
        self.q2ack = 12
        self.attl = 0
        self.dyn = 0
        self.rot = 0
        self.m1 = 0
        self.xga = 0
        self.ks = 0
        self.late_q = 0
        self.lead1 = 0
        self.dbgmem = 0
        self.s32 = 1
        self.place = 0
        self.rawt0 = 30
        self.late_w = 0
        self.ntop = 4
        self.natt = 4
        self.pp_r = 0
        self.gap_r = 0
        self.pp_x = 0
        self.gap_x = 0
        self.QA = 12
        self.att_sleep = 2
        self.c2 = 0
        self.a2 = 0
        self.g3 = 0
        self.qds = 3
        self.qf1 = 30
        self.qsm = 55
        self.qx = 0
        self.qld = 3
        self.qf2 = 58
        self.qkw = 8
        self.bloc = 0
        self.oloc = 0
        self.touch = 0
        self.ring = 0
        self.bea = 1
        self.w1d = 3
        self.grn = 1
        self.ctouch = 1
        self.ant = 0
        self.aw = 0
        self.asm = 0
        self.kah = 14
        self.kac = 6
        self.lin = 0
        self.xmt = 1
        self.kkc = 12
        self.kck = 17
        self.ksl = 12
        self.kw0 = 4
        self.kkf = 26
        self.ksp = 8
        self.kxm = 28
        self.ks2 = 38
        self.bf1 = 12
        self.bf1x = 22
        self.bsmx = 10
        self.bsm = 30
        self.bps = 2
        self.r2 = 0
        self.dbo = 20
        self.vmj = 16
        self.vmc = 8
        self.verbose = 0
        self.pso = 2
        self.pb = 1
        self.pw = 1
        self.wg1 = 6
        self.dsh = 1
        self.cr = 4
        self.s3 = 0
        self.pf = 1
        self.b2a = 10
        self.nlate = 8
        self.alead = 8
        self.k0 = 30
        self.hb = 12
        self.tsx = 0
        self.pf0 = 0
        self.pfs = 0
        self.ep = 0
        self.h16 = 0
        self.w3 = 0
        self.nb = 0
        self.ef = 0
        self.vr = 0
        self.dl1 = 0
        self.wf1 = 24
        self.deg = 0
        self.arn = 0
        self.wsm = 36
        self.dl4 = 0
        self.t3 = 0
        self.dv = 2
        self.dmav = 5
        self.rdp = 0
        self.rx = 0
        self.kst = 0
        self.b2b = 68
        self.krd = 74
        self.ksd = 50
        self.dfl = 2
        self.kvhit = 0
        self.dma1 = 5
        self.wnp = 5
        self.wsp = 8
        self.wst = 4
        self.wlead = 2
        self.rw = 4
        self.ngem = 24
        self.edb = 0
        self.sw = 67
        self.dma0 = 38
        self.dmas = 5
        self.bar1 = 4
        self.wfd = 10
        self.dsl = 0
        self.dpp2 = 0
        self.spin = SPIN_BUDGET
        self.off = 0
        self.__dict__.update(kw)


def make_srd(A, d, ptr, nbytes):
    A(f"s_mov_b32 {s(d)}, {s(ptr)}")
    A(f"s_mov_b32 {s(d + 1)}, {s(ptr + 1)}")
    A(f"s_mov_b32 {s(d + 2)}, {nbytes}")
    A(f"s_mov_b32 {s(d + 3)}, 0x20000")


def poll_tail(A, top, ok_on="vccz", sleep=0):
    ok = A.newlabel("ok")
    A(f"s_cbranch_vccz {ok}")
    if sleep:
        A(f"s_sleep {sleep}")
    A(f"s_sub_u32 {s(S_SPIN)}, {s(S_SPIN)}, 1")
    A("s_cbranch_scc1 ABORT")
    A(f"s_branch {top}")
    A.label(ok)


class WLoader:
    def __init__(self, A, vtmp, stmp):
        self.A = A
        self.units = []
        self.vt = vtmp
        self.st = stmp
        self.shapes = {}
        self.grp = {}

    def add(self, srd_setup, s_org, row_stride, T, nk, dst, m32=None, grp=None):
        self.units.append((srd_setup, s_org, row_stride, T, nk, dst))
        self.shapes[len(self.units) - 1] = m32
        self.grp[len(self.units) - 1] = grp if grp is not None else len(self.units) - 1

    def emit(self, v_lane):
        A = self.A
        vt, st = self.vt, self.st
        A(f"s_mul_i32 {s(st)}, {s(S_WAVE)}, 40960")
        flat = []
        for ui, u in enumerate(self.units):
            for j in range(u[4]):
                flat.append((ui, j))
        chunks, cur, sz = [], [], 0
        for (ui, j) in flat:
            T = self.units[ui][3]
            if sz + T > 20 or (cur and self.grp[cur[-1][0]] != self.grp[ui]):
                chunks.append(cur)
                cur, sz = [], 0
            cur.append((ui, j))
            sz += T
        if cur:
            chunks.append(cur)
        last_dma_unit = [None]

        def dma(ci):
            ch = chunks[ci]
            half = ci & 1
            ui = ch[0][0]
            srd_setup, s_org, stride, T, nk, dst = self.units[ui]
            if last_dma_unit[0] != self.grp[ui]:
                srd_setup()
                lpr = 2 * T
                sh = {2: 1, 4: 2, 8: 3}[lpr]
                A(f"v_lshrrev_b32 {v(vt + 3)}, {sh}, {v(v_lane)}")
                A(f"s_mov_b32 {s(st + 1)}, {stride}")
                A(f"v_mul_lo_u32 {v(vt + 3)}, {v(vt + 3)}, {s(st + 1)}")
                A(f"v_and_b32 {v(vt + 4)}, {lpr - 1}, {v(v_lane)}")
                A(f"v_lshl_add_u32 {v(vt)}, {v(vt + 4)}, 4, {v(vt + 3)}")
                last_dma_unit[0] = self.grp[ui]
            off = half * 20480
            n = 0
            for (uj, j) in ch:
                s_org = self.units[uj][1]
                for i in range(T):
                    row = 32 * j + i * (32 // T)
                    A(f"s_add_u32 m0, {s(st)}, {off}")
                    A(f"s_add_u32 {s(st + 2)}, {s(s_org)}, {row * stride}")
                    A(f"buffer_load_dwordx4 {v(vt)}, {s(SRD_W, 4)}, {s(st + 2)} offen lds")
                    off += 1024
                    n += 1
            return n

        def trread(ci):
            ch = chunks[ci]
            half = ci & 1
            ui = ch[0][0]
            _, _, stride, T, nk, dst = self.units[ui]
            m32 = self.shapes[ui]
            if m32:
                A(f"v_bfe_u32 {v(vt + 3)}, {v(v_lane)}, 2, 2")
                A(f"v_lshrrev_b32 {v(vt + 4)}, 5, {v(v_lane)}")
                A(f"v_lshl_add_u32 {v(vt + 3)}, {v(vt + 4)}, 2, {v(vt + 3)}")
                A(f"v_mul_u32_u24 {v(vt + 3)}, {T * 32}, {v(vt + 3)}")
                A(f"v_and_b32 {v(vt + 4)}, 1, {v(v_lane)}")
                A(f"v_lshl_add_u32 {v(vt + 3)}, {v(vt + 4)}, 3, {v(vt + 3)}")
                A(f"v_bfe_u32 {v(vt + 4)}, {v(v_lane)}, 1, 1")
                A(f"v_lshl_add_u32 {v(vt + 3)}, {v(vt + 4)}, {5 if m32 == 'perm' else 4}, {v(vt + 3)}")
                A(f"v_bfe_u32 {v(vt + 4)}, {v(v_lane)}, 4, 1")
                A(f"v_lshl_add_u32 {v(vt + 3)}, {v(vt + 4)}, {4 if m32 == 'perm' else 5}, {v(vt + 3)}")
                A(f"v_add_u32 {v(vt + 1)}, {s(st)}, {v(vt + 3)}")
                off = half * 20480
                cnt = 0
                for (_, j) in ch:
                    for tl in range(T // 2):
                        for u in range(2):
                            kind, r = dst(tl, j, u)
                            f = a if kind == "a" else v
                            for hf in range(2):
                                A(f"ds_read_b64_tr_b16 {f(r + 2 * hf, 2)}, {v(vt + 1)} offset:{off + (hf * 16 + u * 8) * T * 32 + tl * 64}")
                                cnt += 1
                                if cnt % 12 == 0:
                                    A("s_waitcnt lgkmcnt(4)")
                    off += T * 1024
                A("s_waitcnt lgkmcnt(0)")
                return
            A(f"v_lshrrev_b32 {v(vt + 3)}, 2, {v(v_lane)}")
            A(f"v_mul_u32_u24 {v(vt + 3)}, {T * 32}, {v(vt + 3)}")
            A(f"v_and_b32 {v(vt + 4)}, 3, {v(v_lane)}")
            A(f"v_lshl_add_u32 {v(vt + 3)}, {v(vt + 4)}, 3, {v(vt + 3)}")
            A(f"v_add_u32 {v(vt + 1)}, {s(st)}, {v(vt + 3)}")
            off = half * 20480
            cnt = 0
            for (uj, j) in ch:
                dst = self.units[uj][5]
                for tau in range(T):
                    d = dst(tau, j)
                    if d is None:
                        continue
                    kind, r = d
                    f = a if kind == "a" else v
                    for hf in range(2):
                        A(f"ds_read_b64_tr_b16 {f(r + 2 * hf, 2)}, {v(vt + 1)} offset:{off + hf * 16 * T * 32 + tau * 32}")
                        cnt += 1
                        if cnt % 12 == 0:
                            A("s_waitcnt lgkmcnt(4)")
                off += T * 1024
            A("s_waitcnt lgkmcnt(0)")

        counts = {}
        counts[0] = dma(0)
        if len(chunks) > 1:
            counts[1] = dma(1)
        for ci in range(len(chunks)):
            nxt = counts.get(ci + 1, 0)
            A(f"s_waitcnt vmcnt({nxt})")
            trread(ci)
            if ci + 2 < len(chunks):
                counts[ci + 2] = dma(ci + 2)


S_MODE = 49
S_ROLEG = 3
S_GID = 100
N_CHAIN = 96
CFG = [None]


def init_barrier_arrive(A, vt):
    tmark(A, CFG[0], 0, vt)
    A("s_waitcnt vmcnt(0)")
    A("s_barrier")
    lab = A.newlabel("arr")
    A(f"s_cmp_lg_u32 {s(S_WAVE)}, 0")
    A(f"s_cbranch_scc1 {lab}")
    A(f"v_mov_b32 {v(vt)}, 1")
    A(f"s_lshl_b32 {s(S_ROLEG)}, {s(S_MODE)}, 2")
    A(f"v_mov_b32 {v(vt + 1)}, {s(S_ROLEG)}")
    A("s_mov_b64 exec, 1")
    A(f"buffer_atomic_add {v(vt)}, {v(vt + 1)}, {s(SRD_DBG, 4)}, 0 offen sc1")
    A("s_mov_b64 exec, -1")
    A.label(lab)


def init_barrier_wait(A, vt, nwg, cfg):
    tmark(A, cfg, 1, vt)
    top = A.newlabel("ibw")
    A(f"s_lshl_b32 {s(S_ROLEG)}, {s(S_MODE)}, 2")
    A(f"v_mov_b32 {v(vt + 1)}, {s(S_ROLEG)}")
    A.label(top)
    A(f"buffer_load_dword {v(vt)}, {v(vt + 1)}, {s(SRD_DBG, 4)}, 0 offen sc1")
    A("s_waitcnt vmcnt(0)")
    A(f"v_cmp_ne_u32 vcc, {nwg}, {v(vt)}")
    poll_tail(A, top, sleep=8)
    ok = A.newlabel("ibok")
    A(f"s_cmp_lg_u32 {s(S_MODE)}, 0")
    A(f"s_cbranch_scc1 {ok}")
    A(f"v_and_b32 {v(vt + 1)}, 7, v0")
    A(f"v_lshlrev_b32 {v(vt + 1)}, 2, {v(vt + 1)}")
    A(f"buffer_load_dword {v(vt)}, {v(vt + 1)}, {s(SRD_DBG, 4)}, 0 offen offset:32 sc1")
    A("s_waitcnt vmcnt(0)")
    A(f"v_cmp_ne_u32 vcc, {1000 if cfg.force_fallback else 32}, {v(vt)}")
    A(f"s_cbranch_vccz {ok}")
    A("s_barrier")
    A(f"s_mov_b32 {s(S_MODE)}, 1")
    A(f"s_mov_b32 {s(S_ROLEG)}, s2")
    A(f"s_load_dwordx16 {s(16, 16)}, s[0:1], 0")
    A(f"s_load_dwordx8 {s(32, 8)}, s[0:1], 64")
    A("s_waitcnt lgkmcnt(0)")
    A("s_branch DISPATCH")
    A.label(ok)
    tmark(A, cfg, 2, vt)


def lstore(A, text):
    l1, l2 = A.newlabel("ls"), A.newlabel("ls")
    if isinstance(text, str):
        text = [text]
    A(f"s_cmp_lg_u32 {s(S_MODE)}, 0")
    A(f"s_cbranch_scc1 {l1}")
    for x in text:
        A(x)
    A(f"s_branch {l2}")
    A.label(l1)
    for x in text:
        A(x + " sc1" if x.startswith("buffer_store") else x)
    A.label(l2)


def maxtree(A, dst, regs):
    regs = list(regs)
    if len(regs) < 6:
        A(f"v_max3_u32 {v(dst)}, {v(regs[0])}, {v(regs[1])}, {v(regs[2])}")
        rest = regs[3:]
        while len(rest) >= 2:
            A(f"v_max3_u32 {v(dst)}, {v(dst)}, {v(rest[0])}, {v(rest[1])}")
            rest = rest[2:]
        if rest:
            A(f"v_max_u32 {v(dst)}, {v(dst)}, {v(rest[0])}")
        return
    A(f"v_max3_u32 {v(dst)}, {v(regs[0])}, {v(regs[1])}, {v(regs[2])}")
    A(f"v_max3_u32 {v(dst + 1)}, {v(regs[3])}, {v(regs[4])}, {v(regs[5])}")
    rest = regs[6:]
    k = 0
    while len(rest) >= 2:
        A(f"v_max3_u32 {v(dst + k)}, {v(dst + k)}, {v(rest[0])}, {v(rest[1])}")
        rest = rest[2:]
        k ^= 1
    if rest:
        A(f"v_max3_u32 {v(dst)}, {v(dst)}, {v(dst + 1)}, {v(rest[0])}")
    else:
        A(f"v_max_u32 {v(dst)}, {v(dst)}, {v(dst + 1)}")


def xreduce(A, op, r, t):
    A(f"v_mov_b32 {v(t)}, {v(r)}")
    A(f"v_permlane32_swap_b32 {v(r)}, {v(t)}")
    A(f"{op} {v(r)}, {v(r)}, {v(t)}")
    A(f"v_mov_b32 {v(t)}, {v(r)}")
    A(f"v_permlane16_swap_b32 {v(r)}, {v(t)}")
    A(f"{op} {v(r)}, {v(r)}, {v(t)}")


class RawStamper:
    def __init__(self, A, cfg, base, s_t, vreg, t0=20):
        self.A, self.b, self.s_t, self.vr, self.t0 = A, base, s_t, vreg, t0

    def cal(self, lane):
        A, b = self.A, self.b
        A(f"s_memrealtime {s(b + 2, 2)}")
        A(f"s_memtime {s(b, 2)}")
        A("s_waitcnt lgkmcnt(0)")
        A(f"s_lshl_b64 exec, 1, {lane}")
        A(f"v_mov_b32 {v(self.vr)}, {s(b)}")
        A(f"s_lshl_b64 exec, 1, {lane + 1}")
        A(f"v_mov_b32 {v(self.vr)}, {s(b + 2)}")
        A("s_mov_b64 exec, -1")

    def init(self):
        self.A(f"v_mov_b32 {v(self.vr)}, 0")
        self.cal(56)

    def __call__(self, k):
        A, b = self.A, self.b
        A(f"s_memtime {s(b, 2)}")
        A(f"s_sub_u32 {s(b + 2)}, {s(self.s_t)}, {self.t0}")
        A(f"s_lshl_b32 {s(b + 3)}, {s(b + 2)}, 3")
        A(f"s_add_u32 {s(b + 3)}, {s(b + 3)}, {k}")
        A(f"s_cmp_lt_u32 {s(b + 2)}, 7")
        A(f"s_cselect_b32 {s(b + 3)}, {s(b + 3)}, 63")
        A(f"s_lshl_b64 exec, 1, {s(b + 3)}")
        A("s_waitcnt lgkmcnt(0)")
        A(f"v_mov_b32 {v(self.vr)}, {s(b)}")
        A("s_mov_b64 exec, -1")

    def dump(self, s_idx, stmp, vt):
        A = self.A
        self.cal(58)
        A(f"s_lshl_b32 {s(stmp)}, {s(s_idx)}, 2")
        A(f"s_add_u32 {s(stmp)}, {s(stmp)}, {s(S_WAVE)}")
        A(f"s_lshl_b32 {s(stmp)}, {s(stmp)}, 8")
        A(f"s_add_u32 {s(stmp)}, {s(stmp)}, {RAWST}")
        A(f"v_lshlrev_b32 {v(vt)}, 2, v0")
        A(f"buffer_store_dword {v(self.vr)}, {v(vt)}, {s(SRD_WS, 4)}, {s(stmp)} offen")


class Stamper:
    def __init__(self, A, cfg, base, n, on=None):
        self.A, self.on, self.b, self.n = A, (cfg.timing == 2 if on is None else on), base, n

    def init(self):
        if self.on:
            self.A(f"s_memrealtime {s(self.b, 2)}")
            self.A("s_waitcnt lgkmcnt(0)")
            self.A(f"s_mov_b32 s101, {s(self.b)}")
            self(0)
            for k in range(self.n):
                self.A(f"s_mov_b32 {s(self.b + 3 + k)}, 0")

    def __call__(self, k):
        if not self.on:
            return
        A, b = self.A, self.b
        A(f"s_memtime {s(b, 2)}")
        A("s_waitcnt lgkmcnt(0)")
        A(f"s_sub_u32 {s(b + 1)}, {s(b)}, {s(b + 2)}")
        A(f"s_add_u32 {s(b + 3 + k)}, {s(b + 3 + k)}, {s(b + 1)}")
        A(f"s_mov_b32 {s(b + 2)}, {s(b)}")

    def dump(self, s_idx, stmp, vt):
        if not self.on:
            return
        A = self.A
        A(f"s_lshl_b32 {s(stmp)}, {s(s_idx)}, 2")
        A(f"s_add_u32 {s(stmp)}, {s(stmp)}, {s(S_WAVE)}")
        A(f"s_lshl_b32 {s(stmp)}, {s(stmp)}, 6")
        A(f"s_add_u32 {s(stmp)}, {s(stmp)}, 0xE0000")
        A(f"v_mov_b32 {v(vt + 2)}, 0")
        A("s_mov_b64 exec, 1")
        for k in range(self.n):
            A(f"v_mov_b32 {v(vt)}, {s(self.b + 3 + k)}")
            A(f"buffer_store_dword {v(vt)}, {v(vt + 2)}, {s(SRD_WS, 4)}, {s(stmp)} offen offset:{4 * k}")
        A(f"v_mov_b32 {v(vt)}, {s(S_SPIN)}")
        A(f"buffer_store_dword {v(vt)}, {v(vt + 2)}, {s(SRD_WS, 4)}, {s(stmp)} offen offset:60")
        A(f"s_memrealtime {s(self.b, 2)}")
        A("s_waitcnt lgkmcnt(0)")
        A(f"s_sub_u32 {s(self.b)}, {s(self.b)}, s101")
        A(f"v_mov_b32 {v(vt)}, {s(self.b)}")
        A(f"buffer_store_dword {v(vt)}, {v(vt + 2)}, {s(SRD_WS, 4)}, {s(stmp)} offen offset:56")
        A("s_mov_b64 exec, -1")


def tmark(A, cfg, k, vt):
    if cfg.timing != 4:
        return
    A("s_memrealtime s[98:99]")
    A(f"s_lshl_b32 s97, {s(S_GID)}, 2")
    A(f"s_add_u32 s97, s97, {s(S_WAVE)}")
    A("s_lshl_b32 s97, s97, 6")
    A(f"s_add_u32 s97, s97, {0x100000 + 4 * k}")
    A("s_waitcnt lgkmcnt(0)")
    A(f"v_mov_b32 {v(vt)}, s98")
    A(f"v_mov_b32 {v(vt + 1)}, 0")
    A("s_mov_b64 exec, 1")
    A(f"buffer_store_dword {v(vt)}, {v(vt + 1)}, {s(SRD_WS, 4)}, s97 offen")
    A("s_mov_b64 exec, -1")
```

```python
from common import *
import struct
import math


def f32(x):
    return "0x%08x" % struct.unpack("<I", struct.pack("<f", x))[0]


WS = s(SRD_WS, 4)
PRE_FLAG = [None]
TSFLAG = [0]
V_LANE, V_L16, V_FO, V_FV, V_LB, V_ONE = 0, 1, 2, 3, 4, 5
V_T = 6
V_P16 = 15
S_I, S_L, S_S, S_NL, S_NS, S_DEF, S_IDX, S_BUF = range(50, 58)
S_C0 = 58
T = 60
S_K = 68
S_FADDR = 82
DUMMY = -1


def item_of(A, i_reg, rl, rs, A0, first, t):
    B = 64 - A0
    A(f"s_sub_u32 {s(t)}, {s(i_reg)}, {A0}")
    A(f"s_lshr_b32 {s(rs)}, {s(t)}, 1")
    A(f"s_and_b32 {s(rl)}, {s(t)}, 1")
    if first:
        A(f"s_xor_b32 {s(rl)}, {s(rl)}, 1")
    A(f"s_cmp_eq_u32 {s(rl)}, 0")
    A(f"s_cselect_b32 {s(t + 1)}, {A0}, 0")
    A(f"s_add_u32 {s(rs)}, {s(rs)}, {s(t + 1)}")
    A(f"s_sub_u32 {s(t + 1)}, {s(t)}, {B}")
    A(f"s_cmp_ge_u32 {s(t)}, {2 * B}")
    A(f"s_cselect_b32 {s(rs)}, {s(t + 1)}, {s(rs)}")
    A(f"s_cselect_b32 {s(rl)}, 1, {s(rl)}")
    A(f"s_cmp_lt_u32 {s(i_reg)}, {A0}")
    A(f"s_cselect_b32 {s(rs)}, {s(i_reg)}, {s(rs)}")
    A(f"s_cselect_b32 {s(rl)}, 0, {s(rl)}")


def p16_setup(A, dst):
    A(f"v_bfe_u32 {v(V_T)}, {v(V_LANE)}, 2, 2")
    A(f"v_lshrrev_b32 {v(V_T + 1)}, 4, {v(V_LANE)}")
    A(f"v_add_u32 {v(V_T + 1)}, {v(V_T)}, {v(V_T + 1)}")
    A(f"v_and_b32 {v(V_T + 1)}, 3, {v(V_T + 1)}")
    A(f"v_and_b32 {v(dst)}, 3, {v(V_LANE)}")
    A(f"v_lshlrev_b32 {v(dst)}, 4, {v(dst)}")
    A(f"v_lshl_add_u32 {v(dst)}, {v(V_T + 1)}, 6, {v(dst)}")
    A(f"v_lshl_add_u32 {v(dst)}, {v(V_T)}, 8, {v(dst)}")


def base_setup(A):
    A(f"v_lshlrev_b32 {v(V_L16)}, 4, {v(V_LANE)}")
    A(f"v_mov_b32 {v(V_ONE)}, 1")
    A(f"s_lshl_b32 {s(S_IDX)}, {s(S_ROLE)}, 2")
    A(f"s_add_u32 {s(S_IDX)}, {s(S_IDX)}, {s(S_WAVE)}")
    p16_setup(A, V_P16)


def zero_flags(A, kind_off_reg_or_const, idx_reg, layers=(0, 1)):
    return


def row_of(A, dst, rl, rs, base):
    A(f"s_lshl_b32 {s(dst)}, {s(rl)}, 6")
    A(f"s_add_u32 {s(dst)}, {s(dst)}, {s(rs)}")
    A(f"s_lshl_b32 {s(dst)}, {s(dst)}, 9")
    A(f"s_add_u32 {s(dst)}, {s(dst)}, {base}")


def flag_addr(A, dst, base, idx_reg=S_IDX, rl=S_L, rs=S_S):
    row_of(A, dst, rl, rs, base)
    A(f"s_lshl_b32 {s(T + 1)}, {s(idx_reg)}, 2")
    A(f"s_add_u32 {s(dst)}, {s(dst)}, {s(T + 1)}")


def set_flag(A, base, idx_reg=S_IDX, rl=S_L, rs=S_S):
    if PRE_FLAG[0]:
        flag_addr(A, S_FADDR, base, idx_reg, rl, rs)
        return
    flag_addr(A, T, base, idx_reg, rl, rs)
    A("s_waitcnt vmcnt(0)")
    flag_store(A, T)


def flag_store(A, T, LS=" sc1"):
    if TSFLAG[0]:
        A(f"s_memrealtime {s(98, 2)}")
        A("s_waitcnt lgkmcnt(0)")
        A(f"s_or_b32 s98, s98, 1")
        A(f"v_mov_b32 {v(V_ONE)}, s98")
    A("s_mov_b64 exec, 1")
    A(f"buffer_store_dword {v(V_ONE)}, {v(V_L16)}, {WS}, {s(T)} offen{LS}")
    A("s_mov_b64 exec, -1")


def flag_block(A, soff_reg, vo=V_FO, vv=V_FV, wide=False, sleep=2):
    if CFG[0].fsl >= 0:
        sleep = CFG[0].fsl
    top = A.newlabel("fb")
    A.label(top)
    if wide:
        A(f"buffer_load_dwordx2 {v(vv, 2)}, {v(vo)}, {WS}, {s(soff_reg)} offen sc1")
        A("s_waitcnt vmcnt(0)")
        A(f"v_min_u32 {v(vv)}, {v(vv)}, {v(vv + 1)}")
    else:
        A(f"buffer_load_dword {v(vv)}, {v(vo)}, {WS}, {s(soff_reg)} offen sc1")
        A("s_waitcnt vmcnt(0)")
    A(f"v_cmp_eq_u32 vcc, 0, {v(vv)}")
    poll_tail(A, top, sleep=sleep)


def flag_block_wg(A, soff_reg, **kw):
    if not CFG[0].wgp:
        flag_block(A, soff_reg, **kw)
        return
    lab = A.newlabel("wp")
    A(f"s_cmp_lg_u32 {s(S_WAVE)}, 0")
    A(f"s_cbranch_scc1 {lab}")
    sv = CFG[0].fsl
    CFG[0].fsl = CFG[0].wgp - 1
    flag_block(A, soff_reg, **kw)
    CFG[0].fsl = sv
    A.label(lab)
    A("s_barrier")


S_SPIN2 = 59


def rdy_init(A, cfg, va, addr):
    A(f"s_mov_b32 {s(S_SPIN2)}, {cfg.spin * 8}")
    A(f"v_mov_b32 {v(va)}, {addr}")
    A(f"v_mov_b32 {v(va + 1)}, 0")
    A(f"ds_write_b32 {v(va)}, {v(va + 1)}")
    A("s_waitcnt lgkmcnt(0)")
    A("s_barrier")


def rdy_set(A, va, plus, tmp):
    A(f"s_add_u32 {s(tmp)}, {s(S_I)}, {plus}")
    A(f"v_mov_b32 {v(va + 1)}, {s(tmp)}")
    A(f"ds_write_b32 {v(va)}, {v(va + 1)}")


def wg_wait(A, cfg, va, soff, tmp, **kw):
    oth, done = A.newlabel("wo"), A.newlabel("wd")
    A(f"s_cmp_lg_u32 {s(S_WAVE)}, 0")
    A(f"s_cbranch_scc1 {oth}")
    sv = cfg.fsl
    cfg.fsl = cfg.wgp - 1
    flag_block(A, soff, **kw)
    cfg.fsl = sv
    rdy_set(A, va, 0, tmp)
    A(f"s_branch {done}")
    A.label(oth)
    A(f"ds_read_b32 {v(va + 1)}, {v(va)}")
    A("s_waitcnt lgkmcnt(0)")
    A(f"v_cmp_gt_u32 vcc, {s(S_I)}, {v(va + 1)}")
    A(f"s_cbranch_vccz {done}")
    A(f"s_sleep {CFG[0].lsl}")
    A(f"s_sub_u32 {s(S_SPIN2)}, {s(S_SPIN2)}, 1")
    A("s_cbranch_scc1 ABORT")
    A(f"s_branch {oth}")
    A.label(done)


def rnd2(A, pk, x0, x1):
    A(f"v_cvt_pk_bf16_f32 {v(pk)}, {v(x0)}, {v(x1)}")
    A(f"v_lshlrev_b32 {v(x0)}, 16, {v(pk)}")
    A(f"v_and_b32 {v(x1)}, 0xffff0000, {v(pk)}")


def rnd1(A, x, tmp):
    A(f"v_cvt_pk_bf16_f32 {v(tmp)}, {v(x)}, {v(x)}")
    A(f"v_lshlrev_b32 {v(x)}, 16, {v(tmp)}")


def finish_stats(A, s1, s2, tmp, keep=None, scaled=False):
    if not scaled:
        A(f"v_mul_f32 {v(s1)}, {f32(1.0 / 640)}, {v(s1)}")
        A(f"v_mul_f32 {v(s2)}, {f32(1.0 / 640)}, {v(s2)}")
        A(f"v_fma_f32 {v(s2)}, -{v(s1)}, {v(s1)}, {v(s2)}")
        A(f"v_max_f32 {v(s2)}, 0, {v(s2)}")
    if keep is not None:
        A(f"v_mov_b32 {v(keep)}, {v(s1)}")
        A(f"v_mov_b32 {v(keep + 1)}, {v(s2)}")
    rnd2(A, tmp, s1, s2)
    A(f"v_add_f32 {v(s2)}, {f32(1e-5)}, {v(s2)}")
    rnd1(A, s2, tmp)
    A(f"v_sqrt_f32 {v(s2)}, {v(s2)}")
    rnd1(A, s2, tmp)
    A(f"v_rcp_f32 {v(s2)}, {v(s2)}")


GELU_C0 = -2.0 * math.sqrt(2.0 / math.pi) * math.log2(math.e)
GELU_C1 = GELU_C0 * 0.044715


def gelu_pack(A, vals, out, tmps, v_c0, s_c1):
    n = len(vals)
    if CFG[0].gpk:
        for i in range(0, n, 2):
            if CFG[0].grn:
                rnd2(A, tmps[n], vals[i], vals[i + 1])
        for i in range(0, n, 2):
            A(f"v_pk_mul_f32 {v(tmps[i], 2)}, {v(vals[i], 2)}, {v(vals[i], 2)}")
        for i in range(0, n, 2):
            A(f"v_pk_fma_f32 {v(tmps[i], 2)}, {v(tmps[i], 2)}, {v(v_c0, 2)}, {v(v_c0, 2)} op_sel:[0,1,0] op_sel_hi:[1,1,0]")
        for i in range(0, n, 2):
            A(f"v_pk_mul_f32 {v(tmps[i], 2)}, {v(tmps[i], 2)}, {v(vals[i], 2)}")
        for i in range(n):
            A(f"v_exp_f32 {v(tmps[i])}, {v(tmps[i])}")
        for i in range(0, n, 2):
            A(f"v_pk_add_f32 {v(tmps[i], 2)}, {v(tmps[i], 2)}, 1.0 op_sel_hi:[1,0]")
        for i in range(n):
            A(f"v_rcp_f32 {v(tmps[i])}, {v(tmps[i])}")
        for i in range(0, n, 2):
            A(f"v_pk_mul_f32 {v(vals[i], 2)}, {v(vals[i], 2)}, {v(tmps[i], 2)}")
        for i in range(0, n, 2):
            A(f"v_cvt_pk_bf16_f32 {v(out + i // 2)}, {v(vals[i])}, {v(vals[i + 1])}")
        return
    for i in range(0, n, 2):
        rnd2(A, tmps[n], vals[i], vals[i + 1])
    for i in range(n):
        A(f"v_mul_f32 {v(tmps[i])}, {v(vals[i])}, {v(vals[i])}")
    for i in range(n):
        A(f"v_fma_f32 {v(tmps[i])}, {v(tmps[i])}, {s(s_c1)}, {v(v_c0)}")
    for i in range(n):
        A(f"v_mul_f32 {v(tmps[i])}, {v(tmps[i])}, {v(vals[i])}")
    for i in range(n):
        A(f"v_exp_f32 {v(tmps[i])}, {v(tmps[i])}")
    for i in range(n):
        A(f"v_add_f32 {v(tmps[i])}, 1.0, {v(tmps[i])}")
    for i in range(n):
        A(f"v_rcp_f32 {v(tmps[i])}, {v(tmps[i])}")
    for i in range(n):
        A(f"v_mul_f32 {v(vals[i])}, {v(vals[i])}, {v(tmps[i])}")
    for i in range(0, n, 2):
        A(f"v_cvt_pk_bf16_f32 {v(out + i // 2)}, {v(vals[i])}, {v(vals[i + 1])}")


def stats_consume(A, v_sa, r, tmp):
    A(f"v_add_u32 {v(tmp)}, 0x800, {v(v_sa)}")
    for i in range(4):
        A(f"ds_read2_b64 {v(r + 4 * i, 4)}, {v(v_sa)} offset0:{64 * i} offset1:{64 * i + 32}")
    A(f"ds_read2_b64 {v(r + 16, 4)}, {v(tmp)} offset0:0 offset1:32")


def stats_reduce(A, r, out, tmp):
    for st in ((0, 10), (2, 12), (4, 14), (6, 16), (8, 18), (0, 2), (4, 6), (0, 4), (0, 8)):
        A(f"v_pk_add_f32 {v(r + st[0], 2)}, {v(r + st[0], 2)}, {v(r + st[1], 2)}")
    for k in range(2):
        A(f"v_mov_b32 {v(r + 2 + k)}, {v(r + k)}")
    for k in range(2):
        A(f"v_permlane16_swap_b32 {v(r + k)}, {v(r + 2 + k)}")
    for k in range(2):
        A(f"v_add_f32 {v(out + k)}, {v(r + k)}, {v(r + 2 + k)}")
    finish_stats(A, out, out + 1, tmp)
    for k in range(2):
        A(f"v_mov_b32 {v(out + 2 + k)}, {v(out + k)}")
    for k in range(2):
        A(f"v_permlane32_swap_b32 {v(out + k)}, {v(out + 2 + k)}")


def stats_produce(A, x0, x1, t, v_addr, soff_reg):
    for k, xs in enumerate((x0, x1)):
        A(f"v_add_f32 {v(t + k)}, {v(xs[0])}, {v(xs[1])}")
        A(f"v_mul_f32 {v(t + 2 + k)}, {v(xs[0])}, {v(xs[0])}")
        for i in range(1, 8):
            if i >= 2:
                A(f"v_add_f32 {v(t + k)}, {v(t + k)}, {v(xs[i])}")
            A(f"v_fmac_f32 {v(t + 2 + k)}, {v(xs[i])}, {v(xs[i])}")
    A(f"v_permlane32_swap_b32 {v(t)}, {v(t + 1)}")
    A(f"v_permlane32_swap_b32 {v(t + 2)}, {v(t + 3)}")
    A(f"v_add_f32 {v(t)}, {v(t)}, {v(t + 1)}")
    A(f"v_add_f32 {v(t + 1)}, {v(t + 2)}, {v(t + 3)}")
    A(f"v_mov_b32 {v(t + 2)}, {v(t)}")
    A(f"v_mov_b32 {v(t + 3)}, {v(t + 1)}")
    A(f"v_permlane16_swap_b32 {v(t)}, {v(t + 2)}")
    A(f"v_permlane16_swap_b32 {v(t + 1)}, {v(t + 3)}")
    A(f"v_add_f32 {v(t)}, {v(t)}, {v(t + 2)}")
    A(f"v_add_f32 {v(t + 1)}, {v(t + 1)}, {v(t + 3)}")
    A("s_mov_b32 exec_lo, 0xffff")
    A("s_mov_b32 exec_hi, 0xffff")
    A(f"buffer_store_dwordx2 {v(t, 2)}, {v(v_addr)}, {WS}, {s(soff_reg)} offen sc1")
    A("s_mov_b64 exec, -1")


class Capture:
    def __init__(self):
        self.l = []

    def __call__(self, x):
        self.l.append(x)

    def groups(self):
        out, cur = [], []
        for x in self.l:
            cur.append(x)
            if x.endswith(" lds"):
                out.append(cur)
                cur = []
        assert not cur
        return out


class Gemm:
    name = ""
    nk = 20
    NT = 2
    swap = False
    bufsz = 40960
    order = "d"
    jchk = 5
    nstores = 2
    pin = False
    fillrate = 3
    V_ACC = 16
    V_FR = 48
    V_X = 80

    def __init__(self, A, cfg, nwg):
        self.A, self.cfg, self.nwg = A, cfg, nwg

    def wreg(self, tau, j):
        idx = tau * self.nk + j
        if idx < 64:
            return ("a", idx * 4)
        return ("v", 256 - (self.NT * self.nk - idx) * 4)

    def wtxt(self, tau, j):
        k, r = self.wreg(tau, j)
        return a(r, 4) if k == "a" else v(r, 4)

    def acc(self, tau, tt):
        return self.V_ACC + (tau * 2 + tt) * 4

    def setup(self): pass
    def init_stores(self): pass
    def weights(self, WL): pass
    def post_weights(self): pass
    def flag_soff(self, dst, rl, rs): pass
    def dma(self, rl, rs, ldsreg): pass
    def early(self): return 0
    def mid(self): return []
    def epilogue(self): pass

    def item(self, i_reg, rl, rs):
        if self.order == "q":
            item_of(self.A, i_reg, rl, rs, self.cfg.QA, 1, T)
        else:
            item_of(self.A, i_reg, rl, rs, self.cfg.LAG + self.cfg.dlt, 0, T)

    def lin_dma(self, src_reg, ldsreg, nb):
        A = self.A
        for b in range(nb):
            if b % 4 == 0:
                A(f"s_add_u32 m0, {s(ldsreg)}, {b * 1024}")
                A(f"s_add_u32 {s(T + 3)}, {s(src_reg)}, {b * 1024}")
            A(f"buffer_load_dwordx4 {v(V_L16)}, {WS}, {s(T + 3)} offen offset:{(b % 4) * 1024} sc1 lds")

    def gen(self):
        A, cfg = self.A, self.cfg
        nm = self.name
        A.label("ROLE_" + nm)
        base_setup(A)
        self.setup()
        self.init_stores()
        init_barrier_arrive(A, V_T)
        late = self.order != "q" and cfg.late_w
        if late:
            init_barrier_wait(A, V_T, self.nwg, cfg)
            A(f"s_sleep {cfg.late_w}")
        WL = WLoader(A, V_T, T + 3)
        self.weights(WL)
        WL.emit(V_LANE)
        self.post_weights()
        A("s_barrier")
        if not late:
            init_barrier_wait(A, V_T, self.nwg, cfg)
        A(f"s_mov_b32 {s(S_I)}, 0")
        A(f"s_mov_b32 {s(S_BUF)}, 0")
        st = self.st = Stamper(A, cfg, 84, 8)
        A(f"s_mov_b32 s83, {s(S_GID)}")
        self.item(S_I, S_L, S_S)
        self.flag_soff(T + 7, S_L, S_S)
        self.flag_block(T + 7)
        self.dma(S_L, S_S, S_BUF)
        st.init()
        A("s_waitcnt vmcnt(0)")
        A(f"s_mov_b32 {s(S_FADDR)}, {DUMMY}")
        A.label(nm + "_LOOP")
        cap0 = Capture()
        self.A = cap0
        cap0(f"s_add_u32 {s(T + 6)}, {s(S_I)}, 1")
        cap0(f"s_min_u32 {s(T + 6)}, {s(T + 6)}, 127")
        self.item(T + 6, S_NL, S_NS)
        self.flag_soff(T + 7, S_NL, S_NS)
        self.flag_load(T + 7)
        self.early()
        self.mid()
        self.A = A
        fill = cap0.l
        A(f"v_add_u32 {v(V_LB)}, {s(S_BUF)}, {v(V_P16 if self.pin else V_L16)}")
        A("s_barrier")
        st(0)
        nk, NT = self.nk, self.NT
        D = 3

        def rd(j):
            for tt in range(2):
                A(f"ds_read_b128 {v(self.V_FR + ((j % 4) * 2 + tt) * 4, 4)}, {v(V_LB)} offset:{(j * 2 + tt) * 1024}")

        def kstep(j, extra=None):
            if j + D < nk:
                rd(j + D)
                A(f"s_waitcnt lgkmcnt({2 * D})")
            else:
                A(f"s_waitcnt lgkmcnt({2 * (nk - 1 - j)})")
            n = 0
            for tau in range(NT):
                for tt in range(2):
                    c = "0" if j == 0 else v(self.acc(tau, tt), 4)
                    fr = v(self.V_FR + ((j % 4) * 2 + tt) * 4, 4)
                    w = self.wtxt(tau, j)
                    x, y = (fr, w) if self.swap else (w, fr)
                    A(f"v_mfma_f32_16x16x32_bf16 {v(self.acc(tau, tt), 4)}, {x}, {y}, {c}")
                    n += 1
                    if extra and n == 1:
                        for e in extra:
                            A(e)
                    if j >= 1:
                        for _ in range(self.fillrate):
                            if fill:
                                A(fill.pop(0))
        self.pre_mfma()
        for j in range(D):
            rd(j)
        jchk = self.jchk
        for j in range(jchk + 1):
            kstep(j)
        while fill:
            A(fill.pop(0))
        nod, join = A.newlabel("nod"), A.newlabel("join")
        A("s_waitcnt vmcnt(0)")
        st(1)
        nof = A.newlabel("nof")
        A(f"s_cmp_eq_u32 {s(S_FADDR)}, {DUMMY}")
        A(f"s_cbranch_scc1 {nof}")
        flag_store(A, S_FADDR)
        A.label(nof)
        self.flag_check()
        A(f"s_mov_b32 {s(S_DEF)}, 1")
        A(f"s_cbranch_vccnz {nod}")
        A(f"s_mov_b32 {s(S_DEF)}, 0")
        A(f"s_xor_b32 {s(T + 6)}, {s(S_BUF)}, {self.bufsz}")
        cap = Capture()
        self.A = cap
        self.dma(S_NL, S_NS, T + 6)
        self.A = A
        groups = cap.groups()
        rem = list(range(jchk + 1, nk))
        per = -(-len(groups) // len(rem))
        for j in rem:
            ex = []
            for _ in range(per):
                if groups:
                    ex += groups.pop(0)
            kstep(j, ex)
        assert not groups
        A(f"s_branch {join}")
        A.label(nod)
        for j in rem:
            kstep(j)
        A.label(join)
        st(3)
        PRE_FLAG[0] = True
        self.epilogue()
        PRE_FLAG[0] = None
        st(4)
        A(f"s_add_u32 {s(S_I)}, {s(S_I)}, 1")
        A(f"s_cmp_eq_u32 {s(S_I)}, 128")
        A(f"s_cbranch_scc1 {nm}_END")
        A(f"s_xor_b32 {s(S_BUF)}, {s(S_BUF)}, {self.bufsz}")
        A(f"s_mov_b32 {s(S_L)}, {s(S_NL)}")
        A(f"s_mov_b32 {s(S_S)}, {s(S_NS)}")
        A(f"s_cmp_eq_u32 {s(S_DEF)}, 0")
        A(f"s_cbranch_scc1 {nm}_OKN")
        A("s_waitcnt vmcnt(0)")
        flag_store(A, S_FADDR)
        A(f"s_mov_b32 {s(S_FADDR)}, {DUMMY}")
        st(5)
        self.flag_soff(T + 7, S_L, S_S)
        self.flag_block(T + 7)
        st(6)
        self.dma(S_L, S_S, S_BUF)
        A("s_waitcnt vmcnt(0)")
        st(7)
        A(f"s_branch {nm}_LOOP")
        A.label(nm + "_OKN")
        A(f"s_waitcnt vmcnt({self.nstores})")
        A(f"s_branch {nm}_LOOP")
        A.label(nm + "_END")
        A("s_waitcnt vmcnt(0)")
        flag_store(A, S_FADDR)
        st.dump(83, T, V_T)
        A("s_endpgm")

    def pre_mfma(self): pass

    def flag_block(self, soff):
        flag_block_wg(self.A, soff)

    def flag_load(self, soff):
        self.A(f"buffer_load_dword {v(V_FV)}, {v(V_FO)}, {WS}, {s(soff)} offen sc1")

    def flag_check(self):
        self.A(f"v_cmp_eq_u32 vcc, 0, {v(V_FV)}")


class FoldMixin:
    def csum(self, dst):
        A = self.A
        ones = self.V_FR
        for i in range(4):
            A(f"v_mov_b32 {v(ones + i)}, 0x3f803f80")
        for j in range(self.nk):
            for tau in range(self.NT):
                c = "0" if j == 0 else v(dst + 4 * tau, 4)
                w = self.wtxt(tau, j)
                x, y = (v(ones, 4), w) if self.swap else (w, v(ones, 4))
                A(f"v_mfma_f32_16x16x32_bf16 {v(dst + 4 * tau, 4)}, {x}, {y}, {c}")

    def sa_setup(self, v_sa0):
        A = self.A
        A(f"v_lshrrev_b32 {v(V_T)}, 4, {v(V_LANE)}")
        A(f"v_and_b32 {v(V_T)}, 1, {v(V_T)}")
        A(f"v_mul_u32_u24 {v(v_sa0)}, 2560, {v(V_T)}")
        A(f"v_lshrrev_b32 {v(V_T)}, 5, {v(V_LANE)}")
        A(f"v_lshl_add_u32 {v(v_sa0)}, {v(V_T)}, 7, {v(v_sa0)}")
        A(f"v_and_b32 {v(V_T)}, 15, {v(V_LANE)}")
        A(f"v_lshl_add_u32 {v(v_sa0)}, {v(V_T)}, 3, {v(v_sa0)}")
        A(f"v_add_u32 {v(v_sa0)}, 0xa000, {v(v_sa0)}")

    def stats_dma(self, src_reg, ldsreg_raw):
        A = self.A
        A(f"s_lshl_b32 {s(T + 2)}, {s(S_WAVE)}, 10")
        A(f"s_add_u32 {s(T + 2)}, {s(T + 2)}, 40960")
        A(f"s_add_u32 m0, {s(ldsreg_raw)}, {s(T + 2)}")
        A(f"s_add_u32 {s(T + 3)}, {s(src_reg)}, {s(T + 2)}")
        A(f"buffer_load_dwordx4 {v(V_L16)}, {WS}, {s(T + 3)} offen sc1 lds")
        A(f"s_add_u32 m0, {s(ldsreg_raw)}, {44 * 1024}")
        A(f"s_add_u32 {s(T + 3)}, {s(src_reg)}, {44 * 1024}")
        A(f"buffer_load_dwordx4 {v(V_L16)}, {WS}, {s(T + 3)} offen sc1 lds")


class QKV(Gemm, FoldMixin):
    NT = 4
    nk = 20
    bufsz = XSEGS
    order = "q"
    fillrate = 2
    pin = True
    jchk = 7
    nstores = 4
    V_CS = 80
    V_SR = 96
    V_ST = 116
    V_SV = 120
    V_SA0, V_SA = 136, 137
    V_PK = 140
    V_SW, V_SRD = 138, 139
    S_TYPE, S_WG, S_OUT, S_FK = S_K, S_K + 1, S_K + 2, S_K + 3

    def __init__(self, A, cfg, nwg, vtype):
        super().__init__(A, cfg, nwg)
        self.swap = vtype
        self.name = "QKVV" if vtype else "QKVQ"

    def setup(self):
        A = self.A
        if self.swap:
            A(f"s_mov_b32 {s(self.S_WG)}, {s(S_IDX)}")
            A(f"s_mov_b32 {s(self.S_OUT)}, {VX}")
            A(f"s_mov_b32 {s(self.S_FK)}, {flag_row(F_V)}")
        else:
            A(f"s_cmp_ge_u32 {s(S_ROLE)}, 24")
            A(f"s_cselect_b32 {s(self.S_TYPE)}, 1, 0")
            A(f"s_mul_i32 {s(T)}, {s(self.S_TYPE)}, 96")
            A(f"s_sub_u32 {s(self.S_WG)}, {s(S_IDX)}, {s(T)}")
            A(f"s_mul_i32 {s(self.S_OUT)}, {s(self.S_TYPE)}, {QX - KX}")
            A(f"s_add_u32 {s(self.S_OUT)}, {s(self.S_OUT)}, {KX}")
            A(f"s_mul_i32 {s(T)}, {s(self.S_TYPE)}, {flag_row(F_K) - flag_row(F_Q)}")
            A(f"s_sub_u32 {s(self.S_FK)}, {flag_row(F_K)}, {s(T)}")
        A(f"s_lshl_b32 {s(T)}, {s(self.S_WG)}, 12")
        A(f"s_add_u32 {s(self.S_OUT)}, {s(self.S_OUT)}, {s(T)}")
        self.sa_setup(self.V_SA0)
        if self.swap:
            A(f"s_lshl_b32 {s(T)}, {s(S_WAVE)}, 8")
            A(f"s_add_u32 {s(T)}, {s(T)}, {2 * self.bufsz}")
            A(f"v_and_b32 {v(V_T)}, 15, {v(V_LANE)}")
            A(f"v_lshlrev_b32 {v(self.V_SW)}, 3, {v(V_T)}")
            A(f"v_add_u32 {v(self.V_SW)}, {s(T)}, {v(self.V_SW)}")
            A(f"v_lshrrev_b32 {v(V_T)}, 4, {v(V_LANE)}")
            A(f"v_lshlrev_b32 {v(self.V_SRD)}, 5, {v(V_T)}")
            A(f"v_add_u32 {v(self.V_SRD)}, {s(T)}, {v(self.V_SRD)}")

    def init_stores(self):
        zero_flags(self.A, s(self.S_FK), self.S_WG)

    def weights(self, WL):
        A = self.A
        A(f"s_lshl_b32 {s(S_C0)}, {s(self.S_WG)}, 7")

        def srd():
            if self.swap:
                make_srd(A, SRD_W, P_WV, 640 * 12288)
            else:
                A(f"s_cmp_eq_u32 {s(self.S_TYPE)}, 0")
                A(f"s_cselect_b32 {s(SRD_W)}, {s(P_WK)}, {s(P_WQ)}")
                A(f"s_cselect_b32 {s(SRD_W + 1)}, {s(P_WK + 1)}, {s(P_WQ + 1)}")
                A(f"s_mov_b32 {s(SRD_W + 2)}, {640 * 12288}")
                A(f"s_mov_b32 {s(SRD_W + 3)}, 0x20000")
        WL.add(srd, S_C0, 12288, 4, 20, self.wreg)

    def post_weights(self):
        self.csum(self.V_CS)

    def flag_soff(self, dst, rl, rs):
        A = self.A
        row_of(A, dst, rl, rs, flag_row(F_XIN))
        A(f"s_lshl_b32 {s(T)}, {s(rl)}, 5")
        A(f"s_add_u32 {s(T)}, {s(T)}, 7")
        A(f"v_min_u32 {v(V_FO)}, {s(T)}, {v(V_LANE)}")
        A(f"v_lshlrev_b32 {v(V_FO)}, 2, {v(V_FO)}")

    def dma(self, rl, rs, ldsreg):
        A = self.A
        A(f"s_lshl_b32 {s(T)}, {s(rl)}, 6")
        A(f"s_add_u32 {s(T)}, {s(T)}, {s(rs)}")
        A(f"s_mul_i32 {s(T)}, {s(T)}, {XSEGS}")
        A(f"s_add_u32 {s(T)}, {s(T)}, {XIN}")
        self.stats_dma(T, ldsreg)
        A(f"s_mul_i32 {s(T + 1)}, {s(S_WAVE)}, 10240")
        A(f"s_add_u32 {s(T)}, {s(T)}, {s(T + 1)}")
        A(f"s_add_u32 {s(T + 1)}, {s(T + 1)}, {s(ldsreg)}")
        self.lin_dma(T, T + 1, 10)

    def pre_mfma(self):
        A = self.A
        A(f"v_add_u32 {v(self.V_SA)}, {s(S_BUF)}, {v(self.V_SA0)}")
        stats_consume(A, self.V_SA, self.V_SR, V_T)

    def mid(self):
        stats_reduce(self.A, self.V_SR, self.V_ST, V_T)

    def epilogue(self):
        A = self.A
        lab = A.newlabel("l0")
        A(f"s_mul_i32 {s(T + 2)}, {s(S_S)}, {QKV_SEG}")
        A(f"s_add_u32 {s(T + 2)}, {s(T + 2)}, {s(self.S_OUT)}")
        A(f"s_cmp_eq_u32 {s(S_L)}, 0")
        A(f"s_cbranch_scc1 {lab}")
        if self.swap:
            A(f"ds_write_b64 {v(self.V_SW)}, {v(self.V_ST, 2)}")
            A(f"ds_write_b64 {v(self.V_SW)}, {v(self.V_ST + 2, 2)} offset:128")
            A("s_waitcnt lgkmcnt(0)")
            for tt in range(2):
                for hf in range(2):
                    A(f"ds_read_b128 {v(self.V_SV + tt * 8 + hf * 4, 4)}, {v(self.V_SRD)} offset:{tt * 128 + hf * 16}")
            A("s_waitcnt lgkmcnt(0)")
            for tau in range(4):
                for tt in range(2):
                    for r in range(4):
                        x = self.acc(tau, tt) + r
                        A(f"v_fma_f32 {v(x)}, -{v(self.V_SV + tt * 8 + 2 * r)}, {v(self.V_CS + 4 * tau)}, {v(x)}")
                for tt in range(2):
                    for r in range(4):
                        x = self.acc(tau, tt) + r
                        A(f"v_mul_f32 {v(x)}, {v(x)}, {v(self.V_SV + tt * 8 + 2 * r + 1)}")
        else:
            for tau in range(4):
                for tt in range(2):
                    for r in range(4):
                        x = self.acc(tau, tt) + r
                        A(f"v_fma_f32 {v(x)}, -{v(self.V_ST + 2 * tt)}, {v(self.V_CS + 4 * tau + r)}, {v(x)}")
                for tt in range(2):
                    for r in range(4):
                        x = self.acc(tau, tt) + r
                        A(f"v_mul_f32 {v(x)}, {v(x)}, {v(self.V_ST + 2 * tt + 1)}")
        A.label(lab)
        for b in range(4):
            if self.swap:
                lo, hi = self.acc(b, 0), self.acc(b, 1)
            else:
                p, tt = b >> 1, b & 1
                lo, hi = self.acc(2 * p, tt), self.acc(2 * p + 1, tt)
            pk = self.V_PK + 4 * b
            A(f"v_cvt_pk_bf16_f32 {v(pk)}, {v(lo)}, {v(lo + 1)}")
            A(f"v_cvt_pk_bf16_f32 {v(pk + 1)}, {v(lo + 2)}, {v(lo + 3)}")
            A(f"v_cvt_pk_bf16_f32 {v(pk + 2)}, {v(hi)}, {v(hi + 1)}")
            A(f"v_cvt_pk_bf16_f32 {v(pk + 3)}, {v(hi + 2)}, {v(hi + 3)}")
            A(f"buffer_store_dwordx4 {v(pk, 4)}, {v(V_L16)}, {WS}, {s(T + 2)} offen offset:{b * 1024} sc1")
        set_flag(A, s(self.S_FK), self.S_WG)


class WO(Gemm):
    name = "WO"
    NT = 2
    nk = 32
    bufsz = 65536
    jchk = 7
    nstores = 4
    S_KG, S_CG, S_OUT = S_K, S_K + 1, S_K + 2
    V_SO = 80

    def setup(self):
        A = self.A
        A(f"s_mul_i32 {s(self.S_KG)}, {s(S_ROLE)}, 52429")
        A(f"s_lshr_b32 {s(self.S_KG)}, {s(self.S_KG)}, 18")
        A(f"s_mul_i32 {s(T)}, {s(self.S_KG)}, 5")
        A(f"s_sub_u32 {s(self.S_CG)}, {s(S_ROLE)}, {s(T)}")
        A(f"s_lshl_b32 {s(T)}, {s(self.S_KG)}, 5")
        A(f"s_mul_i32 {s(T + 1)}, {s(T)}, 43691")
        A(f"s_lshr_b32 {s(T + 1)}, {s(T + 1)}, 18")
        A(f"s_add_u32 {s(T)}, {s(T)}, 31")
        A(f"s_mul_i32 {s(T)}, {s(T)}, 43691")
        A(f"s_lshr_b32 {s(T)}, {s(T)}, 18")
        A(f"v_add_u32 {v(V_FO)}, {s(T + 1)}, {v(V_LANE)}")
        A(f"v_min_u32 {v(V_FO)}, {s(T)}, {v(V_FO)}")
        A(f"v_lshlrev_b32 {v(V_FO)}, 2, {v(V_FO)}")
        A(f"v_and_b32 {v(V_T)}, 15, {v(V_LANE)}")
        A(f"v_lshrrev_b32 {v(V_T + 1)}, 2, {v(V_T)}")
        A(f"v_mul_u32_u24 {v(self.V_SO)}, 10240, {v(V_T + 1)}")
        A(f"v_and_b32 {v(V_T)}, 3, {v(V_LANE)}")
        A(f"v_lshl_add_u32 {v(self.V_SO)}, {v(V_T)}, 4, {v(self.V_SO)}")
        A(f"v_lshrrev_b32 {v(V_T)}, 4, {v(V_LANE)}")
        A(f"v_lshl_add_u32 {v(self.V_SO)}, {v(V_T)}, 6, {v(self.V_SO)}")
        A(f"s_lshl_b32 {s(T)}, {s(self.S_CG)}, 2")
        A(f"s_add_u32 {s(T)}, {s(T)}, {s(S_WAVE)}")
        A(f"s_lshl_b32 {s(S_C0 + 1)}, {s(T)}, 6")
        A(f"s_lshl_b32 {s(T)}, {s(T)}, 9")
        A(f"s_mul_i32 {s(self.S_OUT)}, {s(self.S_KG)}, 81920")
        A(f"s_add_u32 {s(self.S_OUT)}, {s(self.S_OUT)}, {s(T)}")
        A(f"s_add_u32 {s(self.S_OUT)}, {s(self.S_OUT)}, {WOP}")

    def init_stores(self):
        zero_flags(self.A, flag_row(F_WOP), S_IDX)

    def weights(self, WL):
        A = self.A
        A(f"s_mul_i32 {s(S_C0)}, {s(self.S_KG)}, {1024 * 1280}")
        A(f"s_add_u32 {s(S_C0)}, {s(S_C0)}, {s(S_C0 + 1)}")
        WL.add(lambda: make_srd(A, SRD_W, P_WO, 6144 * 1280), S_C0, 1280, 2, 32, self.wreg)

    def flag_soff(self, dst, rl, rs):
        row_of(self.A, dst, rl, rs, flag_row(F_O))

    def dma(self, rl, rs, ldsreg):
        A = self.A
        A(f"s_mul_i32 {s(T)}, {s(rs)}, {QKV_SEG}")
        A(f"s_lshl_b32 {s(T + 1)}, {s(self.S_KG)}, 16")
        A(f"s_add_u32 {s(T)}, {s(T)}, {s(T + 1)}")
        A(f"s_lshl_b32 {s(T + 1)}, {s(S_WAVE)}, 14")
        A(f"s_add_u32 {s(T)}, {s(T)}, {s(T + 1)}")
        A(f"s_add_u32 {s(T)}, {s(T)}, {OX}")
        A(f"s_add_u32 {s(T + 1)}, {s(T + 1)}, {s(ldsreg)}")
        self.lin_dma(T, T + 1, 16)

    def epilogue(self):
        A = self.A
        A(f"s_mul_i32 {s(T + 2)}, {s(S_S)}, {WOP_SEG}")
        A(f"s_add_u32 {s(T + 2)}, {s(T + 2)}, {s(self.S_OUT)}")
        A(f"s_add_u32 {s(T + 3)}, {s(T + 2)}, 40960")
        for tau in range(2):
            for tt in range(2):
                A(f"buffer_store_dwordx4 {v(self.acc(tau, tt), 4)}, {v(self.V_SO)}, {WS}, {s(T + 2 + tt)} offen offset:{tau * 256} sc1")
        set_flag(A, flag_row(F_WOP))


class W1(Gemm):
    name = "W1"
    pin = True
    V_C0, V_PK, V_TM = 80, 84, 96
    S_C1 = S_K

    def setup(self):
        A = self.A
        A(f"v_min_u32 {v(V_FO)}, 31, {v(V_LANE)}")
        A(f"v_lshlrev_b32 {v(V_FO)}, 2, {v(V_FO)}")
        A(f"v_mov_b32 {v(self.V_C0)}, {f32(GELU_C0)}")
        A(f"v_mov_b32 {v(self.V_C0 + 1)}, {f32(GELU_C1)}")
        A(f"s_mov_b32 {s(self.S_C1)}, {f32(GELU_C1)}")

    def init_stores(self):
        A = self.A
        zero_flags(A, flag_row(F_H), S_IDX)
        for i in range(4):
            A(f"v_mov_b32 {v(self.V_PK + i)}, 0")
        A(f"s_lshl_b32 {s(T)}, {s(S_IDX)}, 11")
        for l in range(2):
            for gseg in (0, 65):
                A(f"s_add_u32 {s(T + 1)}, {s(T)}, {HB + (l * 66 + gseg) * XSEG}")
                for tt in range(2):
                    A(f"buffer_store_dwordx4 {v(self.V_PK, 4)}, {v(V_L16)}, {WS}, {s(T + 1)} offen offset:{tt * 1024} sc1")

    def weights(self, WL):
        A = self.A
        A(f"s_lshl_b32 {s(S_C0)}, {s(S_IDX)}, 6")
        WL.add(lambda: make_srd(A, SRD_W, P_W1, 640 * 1280), S_C0, 1280, 2, 20, self.wreg)

    def flag_soff(self, dst, rl, rs):
        row_of(self.A, dst, rl, rs, flag_row(F_R1))

    def dma(self, rl, rs, ldsreg):
        A = self.A
        A(f"s_lshl_b32 {s(T)}, {s(rl)}, 6")
        A(f"s_add_u32 {s(T)}, {s(T)}, {s(rs)}")
        A(f"s_mul_i32 {s(T)}, {s(T)}, {XSEG}")
        A(f"s_mul_i32 {s(T + 1)}, {s(S_WAVE)}, 10240")
        A(f"s_add_u32 {s(T)}, {s(T)}, {s(T + 1)}")
        A(f"s_add_u32 {s(T)}, {s(T)}, {ZB}")
        A(f"s_add_u32 {s(T + 1)}, {s(T + 1)}, {s(ldsreg)}")
        self.lin_dma(T, T + 1, 10)

    def out_base(self):
        A = self.A
        A(f"s_mul_i32 {s(T + 2)}, {s(S_L)}, 66")
        A(f"s_add_u32 {s(T + 2)}, {s(T + 2)}, {s(S_S)}")
        A(f"s_mul_i32 {s(T + 2)}, {s(T + 2)}, {XSEG}")
        A(f"s_lshl_b32 {s(T + 3)}, {s(S_IDX)}, 11")
        A(f"s_add_u32 {s(T + 2)}, {s(T + 2)}, {s(T + 3)}")
        A(f"s_add_u32 {s(T + 2)}, {s(T + 2)}, {HB + XSEG}")
    out_kind = F_H

    def correct(self): pass

    def epilogue(self):
        A = self.A
        self.out_base()
        self.correct()
        vals = []
        for tt in range(2):
            for tau in range(2):
                vals += [self.acc(tau, tt) + r for r in range(4)]
        gelu_pack(A, vals, self.V_PK, [self.V_TM + i for i in range(17)], self.V_C0, self.S_C1)
        for tt in range(2):
            A(f"buffer_store_dwordx4 {v(self.V_PK + 4 * tt, 4)}, {v(V_L16)}, {WS}, {s(T + 2)} offen offset:{tt * 1024} sc1")
        set_flag(A, flag_row(self.out_kind))


class W3(W1, FoldMixin):
    name = "W3"
    pin = False
    jchk = 7
    bufsz = XSEGS
    out_kind = F_G
    V_CS, V_SR, V_ST, V_SA0, V_SA = 116, 124, 144, 148, 149

    def setup(self):
        A = self.A
        A(f"v_min_u32 {v(V_FO)}, 19, {v(V_LANE)}")
        A(f"v_lshlrev_b32 {v(V_FO)}, 2, {v(V_FO)}")
        A(f"v_mov_b32 {v(self.V_C0)}, {f32(GELU_C0)}")
        A(f"s_mov_b32 {s(self.S_C1)}, {f32(GELU_C1)}")
        self.sa_setup(self.V_SA0)

    def init_stores(self):
        zero_flags(self.A, flag_row(F_G), S_IDX)

    def weights(self, WL):
        A = self.A
        A(f"s_lshl_b32 {s(S_C0)}, {s(S_IDX)}, 6")
        WL.add(lambda: make_srd(A, SRD_W, P_W3, 640 * 3072), S_C0, 3072, 2, 20, self.wreg)

    def post_weights(self):
        self.csum(self.V_CS)

    def flag_soff(self, dst, rl, rs):
        row_of(self.A, dst, rl, rs, flag_row(F_X1))

    def dma(self, rl, rs, ldsreg):
        A = self.A
        A(f"s_lshl_b32 {s(T)}, {s(rl)}, 6")
        A(f"s_add_u32 {s(T)}, {s(T)}, {s(rs)}")
        A(f"s_mul_i32 {s(T)}, {s(T)}, {XSEGS}")
        A(f"s_add_u32 {s(T)}, {s(T)}, {X1B}")
        self.stats_dma(T, ldsreg)
        A(f"s_mul_i32 {s(T + 1)}, {s(S_WAVE)}, 10240")
        A(f"s_add_u32 {s(T)}, {s(T)}, {s(T + 1)}")
        A(f"s_add_u32 {s(T + 1)}, {s(T + 1)}, {s(ldsreg)}")
        self.lin_dma(T, T + 1, 10)

    def pre_mfma(self):
        A = self.A
        A(f"v_add_u32 {v(self.V_SA)}, {s(S_BUF)}, {v(self.V_SA0)}")
        stats_consume(A, self.V_SA, self.V_SR, V_T)

    def mid(self):
        stats_reduce(self.A, self.V_SR, self.V_ST, V_T)

    def out_base(self):
        A = self.A
        A(f"s_lshl_b32 {s(T + 2)}, {s(S_L)}, 6")
        A(f"s_add_u32 {s(T + 2)}, {s(T + 2)}, {s(S_S)}")
        A(f"s_mul_i32 {s(T + 2)}, {s(T + 2)}, {GSEG}")
        A(f"s_lshl_b32 {s(T + 3)}, {s(S_IDX)}, 11")
        A(f"s_add_u32 {s(T + 2)}, {s(T + 2)}, {s(T + 3)}")
        A(f"s_add_u32 {s(T + 2)}, {s(T + 2)}, {GB}")

    def correct(self):
        A = self.A
        for tau in range(2):
            for tt in range(2):
                for r in range(4):
                    x = self.acc(tau, tt) + r
                    A(f"v_fma_f32 {v(x)}, -{v(self.V_ST + 2 * tt)}, {v(self.V_CS + 4 * tau + r)}, {v(x)}")
        for tau in range(2):
            for tt in range(2):
                for r in range(4):
                    x = self.acc(tau, tt) + r
                    A(f"v_mul_f32 {v(x)}, {v(x)}, {v(self.V_ST + 2 * tt + 1)}")


def unpack8(A, dst, src):
    for i in range(4):
        A(f"v_lshlrev_b32 {v(dst + 2 * i)}, 16, {v(src + i)}")
        A(f"v_and_b32 {v(dst + 2 * i + 1)}, 0xffff0000, {v(src + i)}")


def stat_addr_setup(A, dst):
    A(f"v_lshrrev_b32 {v(V_T)}, 5, {v(V_LANE)}")
    A(f"v_and_b32 {v(V_T + 1)}, 15, {v(V_LANE)}")
    A(f"v_lshlrev_b32 {v(dst)}, 3, {v(V_T + 1)}")
    A(f"v_lshl_add_u32 {v(dst)}, {v(V_T)}, 7, {v(dst)}")


class W2(Gemm):
    name = "W2"
    nstores = 3
    V_SH = 80
    V_Y = 84
    V_YU = 96
    V_PK = 112
    V_SAD = 82

    def setup(self):
        A = self.A
        A(f"v_min_u32 {v(V_FO)}, 19, {v(V_LANE)}")
        A(f"v_lshlrev_b32 {v(V_FO)}, 2, {v(V_FO)}")
        A(f"s_lshr_b32 {s(T)}, {s(S_WAVE)}, 1")
        A(f"s_add_u32 {s(T)}, {s(T)}, 1")
        A(f"s_sub_u32 {s(T + 1)}, 32, {s(T)}")
        A(f"s_add_u32 {s(T)}, {s(T)}, 32")
        A(f"s_bitcmp1_b32 {s(S_WAVE)}, 0")
        A(f"s_cselect_b32 {s(T)}, {s(T)}, {s(T + 1)}")
        for tt in range(2):
            A(f"v_and_b32 {v(V_T)}, 15, {v(V_LANE)}")
            A(f"v_add_u32 {v(V_T)}, {s(T)}, {v(V_T)}")
            if tt:
                A(f"v_add_u32 {v(V_T)}, 16, {v(V_T)}")
            d = self.V_SH + tt
            A(f"v_lshrrev_b32 {v(V_T + 1)}, 5, {v(V_T)}")
            A(f"v_mul_u32_u24 {v(d)}, {XSEG}, {v(V_T + 1)}")
            A(f"v_bfe_u32 {v(V_T + 1)}, {v(V_T)}, 4, 1")
            A(f"v_lshl_add_u32 {v(d)}, {v(V_T + 1)}, 10, {v(d)}")
            A(f"v_and_b32 {v(V_T + 1)}, 15, {v(V_T)}")
            A(f"v_lshl_add_u32 {v(d)}, {v(V_T + 1)}, 4, {v(d)}")
            A(f"v_lshrrev_b32 {v(V_T + 1)}, 4, {v(V_LANE)}")
            A(f"v_lshl_add_u32 {v(d)}, {v(V_T + 1)}, 8, {v(d)}")
        stat_addr_setup(A, self.V_SAD)

    def init_stores(self):
        zero_flags(self.A, flag_row(F_X1), S_IDX)

    def weights(self, WL):
        A = self.A
        A(f"s_lshl_b32 {s(S_C0)}, {s(S_IDX)}, 6")
        WL.add(lambda: make_srd(A, SRD_W, P_W2, 640 * 1280), S_C0, 1280, 2, 20, self.wreg)

    def flag_soff(self, dst, rl, rs):
        A = self.A
        A(f"s_add_u32 {s(T)}, {s(rs)}, 1")
        A(f"s_min_u32 {s(T)}, {s(T)}, 63")
        row_of(A, dst, rl, T, flag_row(F_H))

    def dma(self, rl, rs, ldsreg):
        A = self.A
        A(f"s_mul_i32 {s(T)}, {s(rl)}, 66")
        A(f"s_add_u32 {s(T)}, {s(T)}, {s(rs)}")
        A(f"s_mul_i32 {s(T)}, {s(T)}, {XSEG}")
        A(f"s_mul_i32 {s(T + 1)}, {s(S_WAVE)}, 10240")
        A(f"s_add_u32 {s(T)}, {s(T)}, {s(T + 1)}")
        A(f"s_add_u32 {s(T)}, {s(T)}, {HB}")
        A(f"s_add_u32 {s(T + 1)}, {s(T + 1)}, {s(ldsreg)}")
        for jl in range(5):
            for tt in range(2):
                A(f"s_add_u32 m0, {s(T + 1)}, {(jl * 2 + tt) * 1024}")
                A(f"s_add_u32 {s(T + 3)}, {s(T)}, {jl * 2048}")
                A(f"buffer_load_dwordx4 {v(self.V_SH + tt)}, {WS}, {s(T + 3)} offen sc1 lds")

    def early(self):
        A = self.A
        A(f"s_lshl_b32 {s(T)}, {s(S_L)}, 6")
        A(f"s_add_u32 {s(T)}, {s(T)}, {s(S_S)}")
        A(f"s_mul_i32 {s(T)}, {s(T)}, {XSEG}")
        A(f"s_lshl_b32 {s(T + 1)}, {s(S_IDX)}, 11")
        A(f"s_add_u32 {s(T)}, {s(T)}, {s(T + 1)}")
        A(f"s_add_u32 {s(T)}, {s(T)}, {YB}")
        for tt in range(2):
            A(f"buffer_load_dwordx4 {v(self.V_Y + 4 * tt, 4)}, {v(V_P16)}, {WS}, {s(T)} offen offset:{tt * 1024} sc1")
        return 2

    def epilogue(self):
        A = self.A
        A(f"s_lshl_b32 {s(T + 2)}, {s(S_L)}, 6")
        A(f"s_add_u32 {s(T + 2)}, {s(T + 2)}, {s(S_S)}")
        A(f"s_mul_i32 {s(T + 2)}, {s(T + 2)}, {XSEGS}")
        A(f"s_add_u32 {s(T + 2)}, {s(T + 2)}, {X1B}")
        A(f"s_lshl_b32 {s(T + 3)}, {s(S_IDX)}, 8")
        A(f"s_add_u32 {s(T + 3)}, {s(T + 3)}, {s(T + 2)}")
        A(f"s_add_u32 {s(T + 3)}, {s(T + 3)}, 40960")
        A(f"s_lshl_b32 {s(T + 4)}, {s(S_IDX)}, 11")
        A(f"s_add_u32 {s(T + 2)}, {s(T + 2)}, {s(T + 4)}")
        xs = []
        for tt in range(2):
            unpack8(A, self.V_YU + 8 * tt, self.V_Y + 4 * tt)
        for tt in range(2):
            vals = [self.acc(0, tt) + r for r in range(4)] + [self.acc(1, tt) + r for r in range(4)]
            for i in range(0, 8, 2):
                rnd2(A, V_T, vals[i], vals[i + 1])
            for i in range(8):
                A(f"v_add_f32 {v(vals[i])}, {v(vals[i])}, {v(self.V_YU + 8 * tt + i)}")
            for i in range(0, 8, 2):
                rnd2(A, self.V_PK + 4 * tt + i // 2, vals[i], vals[i + 1])
            A(f"buffer_store_dwordx4 {v(self.V_PK + 4 * tt, 4)}, {v(V_L16)}, {WS}, {s(T + 2)} offen offset:{tt * 1024} sc1")
            xs.append(vals)
        stats_produce(A, xs[0], xs[1], V_T, self.V_SAD, T + 3)
        set_flag(A, flag_row(F_X1))


def row_helpers(A):
    def lane_reduce(r):
        for k in range(2):
            A(f"v_add_f32_dpp {v(r + k)}, {v(r + k)}, {v(r + k)} row_ror:4 row_mask:0xf bank_mask:0xf")
        for k in range(2):
            A(f"v_add_f32_dpp {v(r + k)}, {v(r + k)}, {v(r + k)} row_ror:8 row_mask:0xf bank_mask:0xf")
        for op in ("v_permlane32_swap_b32", "v_permlane16_swap_b32"):
            for k in range(2):
                A(f"v_mov_b32 {v(r + 2 + k)}, {v(r + k)}")
            for k in range(2):
                A(f"{op} {v(r + k)}, {v(r + 2 + k)}")
            for k in range(2):
                A(f"v_add_f32 {v(r + k)}, {v(r + k)}, {v(r + 2 + k)}")

    def sums(vals, r):
        A(f"v_pk_add_f32 {v(r + 4, 2)}, {v(vals[0], 2)}, {v(vals[2], 2)}")
        A(f"v_pk_mul_f32 {v(r + 2, 2)}, {v(vals[0], 2)}, {v(vals[0], 2)}")
        for i in range(2, len(vals), 2):
            if i >= 4:
                A(f"v_pk_add_f32 {v(r + 4, 2)}, {v(r + 4, 2)}, {v(vals[i], 2)}")
            A(f"v_pk_fma_f32 {v(r + 2, 2)}, {v(vals[i], 2)}, {v(vals[i], 2)}, {v(r + 2, 2)}")
        A(f"v_add_f32 {v(r)}, {v(r + 4)}, {v(r + 5)}")
        A(f"v_add_f32 {v(r + 1)}, {v(r + 2)}, {v(r + 3)}")

    def norm(vals, pks, st):
        for i in range(0, len(vals), 2):
            A(f"v_pk_add_f32 {v(vals[i], 2)}, {v(vals[i], 2)}, {v(st, 2)} op_sel_hi:[1,0] neg_lo:[0,1] neg_hi:[0,1]")
        for i in range(0, len(vals), 2):
            rnd2(A, V_T + (i & 2), vals[i], vals[i + 1])
        for i in range(0, len(vals), 2):
            A(f"v_pk_mul_f32 {v(vals[i], 2)}, {v(vals[i], 2)}, {v(st, 2)} op_sel:[0,1] op_sel_hi:[1,1]")
        for i in range(0, len(vals), 2):
            rnd2(A, pks[i // 2], vals[i], vals[i + 1])

    def store_pair(pk, vaddr, soff, off=0):
        A(f"v_permlane16_swap_b32 {v(pk)}, {v(pk + 2)}")
        A(f"v_permlane16_swap_b32 {v(pk + 1)}, {v(pk + 3)}")
        A(f"buffer_store_dwordx4 {v(pk, 4)}, {v(vaddr)}, {WS}, {s(soff)} offen offset:{off} sc1")

    return lane_reduce, sums, norm, store_pair


def numa_probe(A, cfg, S_LAY):
    if cfg.vr:
        lab = A.newlabel("vr")
        A(f"s_cmp_lg_u32 {s(S_MODE)}, 0")
        A(f"s_cbranch_scc1 {lab}")
        A("s_mov_b64 exec, 1")
        A(f"s_lshl_b32 {s(T)}, {s(S_LAY)}, 5")
        A(f"s_add_u32 {s(T)}, {s(T)}, {s(S_IDX)}")
        A(f"s_and_b32 {s(T + 1)}, {s(T)}, 7")
        A(f"s_lshl_b32 {s(T + 1)}, {s(T + 1)}, 14")
        A(f"s_lshl_b32 {s(T)}, {s(T)}, 7")
        A(f"s_add_u32 {s(T)}, {s(T)}, {s(T + 1)}")
        A(f"s_add_u32 {s(T)}, {s(T)}, {XP + 0x140000}")
        A(f"s_add_u32 {s(T + 1)}, {s(T)}, 0x2000")
        A(f"s_mov_b32 {s(T + 2)}, -1")
        A(f"s_mov_b32 {s(T + 3)}, -1")
        A(f"s_mov_b32 {s(S_I)}, {cfg.vr}")
        A.label(lab + "l")
        A(f"buffer_store_dword {v(V_ONE)}, {v(V_L16)}, {WS}, {s(T)} offen sc1")
        A(f"buffer_store_dword {v(V_ONE)}, {v(V_L16)}, {WS}, {s(T + 1)} offen sc1")
        A("s_waitcnt vmcnt(0)")
        for par in range(2):
            A(f"s_memtime {s(T + 4, 2)}")
            A("s_waitcnt lgkmcnt(0)")
            A(f"buffer_load_dword {v(V_FV)}, {v(V_L16)}, {WS}, {s(T + par)} offen sc1")
            A("s_waitcnt vmcnt(0)")
            A(f"s_memtime {s(T + 6, 2)}")
            A("s_waitcnt lgkmcnt(0)")
            A(f"s_sub_u32 {s(T + 6)}, {s(T + 6)}, {s(T + 4)}")
            A(f"s_min_u32 {s(T + 2 + par)}, {s(T + 2 + par)}, {s(T + 6)}")
        A(f"s_sub_u32 {s(S_I)}, {s(S_I)}, 1")
        A(f"s_cmp_lg_u32 {s(S_I)}, 0")
        A(f"s_cbranch_scc1 {lab}l")
        A(f"s_cmp_lt_u32 {s(T + 3)}, {s(T + 2)}")
        A(f"s_cselect_b32 {s(T)}, 0x10001, 1")
        A(f"v_mov_b32 {v(V_FV)}, {s(T)}")
        A(f"v_mov_b32 {v(V_T)}, 192")
        A(f"buffer_atomic_add {v(V_FV)}, {v(V_T)}, {s(SRD_DBG, 4)}, 0 offen sc1")
        A("s_mov_b64 exec, -1")
        A.label(lab)


def gen_r0(A, cfg, nwg, s_worker, sx, STR=12):
    lane_reduce, sums, norm, store_pair = row_helpers(A)
    V_ST, V_A = 24, 32
    V_RAW, V_RU, V_NP, V_SO1, V_XR = V_A, V_A + 40, V_A + 80, V_A + 100, V_A + 101
    S_Q = S_NL
    A(f"s_and_b32 {s(S_Q)}, {s(s_worker)}, 7")
    A(f"s_lshr_b32 {s(S_NS)}, {s(s_worker)}, 3")
    dq, g_, c_ = V_T, V_T + 1, V_T + 2
    A(f"v_lshrrev_b32 {v(dq)}, 4, {v(V_LANE)}")
    A(f"v_bfe_u32 {v(g_)}, {v(V_LANE)}, 2, 2")
    A(f"v_and_b32 {v(c_)}, 3, {v(V_LANE)}")
    A(f"s_and_b32 {s(T + 1)}, {s(S_Q)}, 3")
    A(f"s_lshl_b32 {s(T)}, {s(S_Q)}, 8")
    A(f"v_lshlrev_b32 {v(V_SO1)}, 11, {v(dq)}")
    A(f"v_lshrrev_b32 {v(V_T + 3)}, 1, {v(dq)}")
    A(f"v_lshlrev_b32 {v(V_SO1)}, 11, {v(V_T + 3)}")
    A(f"v_and_b32 {v(V_T + 3)}, 1, {v(dq)}")
    A(f"v_lshl_add_u32 {v(V_SO1)}, {v(V_T + 3)}, 12, {v(V_SO1)}")
    A(f"v_add_u32 {v(V_T + 3)}, {s(T + 1)}, {v(g_)}")
    A(f"v_and_b32 {v(V_T + 3)}, 3, {v(V_T + 3)}")
    A(f"v_lshl_add_u32 {v(V_SO1)}, {v(V_T + 3)}, 6, {v(V_SO1)}")
    A(f"v_lshl_add_u32 {v(V_SO1)}, {v(c_)}, 4, {v(V_SO1)}")
    A(f"v_add_u32 {v(V_SO1)}, {s(T)}, {v(V_SO1)}")
    A(f"s_lshl_b32 {s(T)}, {s(S_Q)}, 2")
    A(f"v_add_u32 {v(V_T + 3)}, {s(T)}, {v(c_)}")
    A(f"v_mul_u32_u24 {v(V_XR)}, 1280, {v(V_T + 3)}")
    A(f"v_lshl_add_u32 {v(V_XR)}, {v(dq)}, 5, {v(V_XR)}")
    A(f"v_lshl_add_u32 {v(V_XR)}, {v(g_)}, 3, {v(V_XR)}")
    make_srd(A, SRD_W, P_X, 2048 * 1280)
    S_Z = S_DEF
    A(f"s_mov_b32 {s(S_Z)}, 0")

    def load(raw, seg_reg):
        A(f"s_mul_i32 {s(T + 2)}, {s(seg_reg)}, {32 * 1280}")
        for G in range(10):
            A(f"buffer_load_dwordx2 {v(raw + 2 * G, 2)}, {v(V_XR)}, {s(SRD_W, 4)}, {s(T + 2)} offen offset:{G * 128}")

    def body(raw, nxt, first):
        A(f"s_add_u32 {s(T + 6)}, {s(S_NS)}, {STR}")
        A(f"s_min_u32 {s(T + 6)}, {s(T + 6)}, 63")
        load(nxt, T + 6)
        A(f"s_mul_i32 {s(T + 4)}, {s(S_NS)}, {XSEG}")
        A(f"s_add_u32 {s(T + 4)}, {s(T + 4)}, {X0R}")
        A(f"s_mul_i32 {s(T + 5)}, {s(S_NS)}, {XSEGS}")
        A(f"s_add_u32 {s(T + 5)}, {s(T + 5)}, {XIN}")
        A("s_waitcnt vmcnt(10)")
        if not first:
            flag_store(A, S_FADDR)
        for i in range(20):
            A(f"v_lshlrev_b32 {v(V_RU + 2 * i)}, 16, {v(raw + i)}")
            A(f"v_and_b32 {v(V_RU + 2 * i + 1)}, 0xffff0000, {v(raw + i)}")
        vals = [V_RU + i for i in range(40)]
        sums(vals, V_ST)
        lane_reduce(V_ST)
        finish_stats(A, V_ST, V_ST + 1, V_T)
        norm(vals, [V_NP + i for i in range(20)], V_ST)
        for p in range(5):
            A(f"s_add_u32 {s(T + 3)}, {s(T + 5)}, {p * 8192}")
            store_pair(V_NP + 4 * p, V_SO1, T + 3)
        for p in range(5):
            A(f"s_add_u32 {s(T + 3)}, {s(T + 4)}, {p * 8192}")
            store_pair(raw + 4 * p, V_SO1, T + 3)
        flag_addr(A, S_FADDR, flag_row(F_XIN), S_Q, S_Z, S_NS)
        A(f"s_add_u32 {s(S_NS)}, {s(S_NS)}, {STR}")

    RA, RB = V_RAW, V_RAW + 20
    load(RA, S_NS)
    body(RA, RB, True)
    init_barrier_wait(A, V_T, nwg, cfg)
    flag_store(A, S_FADDR)
    body(RB, RA, True)
    A.label("R0_LOOP" + sx)
    body(RA, RB, False)
    A(f"s_cmp_ge_u32 {s(S_NS)}, 64")
    A(f"s_cbranch_scc1 R0_END{sx}")
    body(RB, RA, False)
    A(f"s_cmp_lt_u32 {s(S_NS)}, 64")
    A(f"s_cbranch_scc1 R0_LOOP{sx}")
    A.label("R0_END" + sx)
    A("s_waitcnt vmcnt(0)")
    flag_store(A, S_FADDR)


def gen_w4(A, cfg, nwg):
    V_IN, V_ACC, V_RD, V_XX, V_XU, V_PK = 16, 112, 144, 176, 184, 200
    V_SAD, V_OA, V_LW, V_LR = 204, 205, 206, 207
    S_J, S_TT = S_K, S_K + 1
    SRD_O = 72
    A.label("ROLE_W4")
    base_setup(A)
    if cfg.wgp2:
        A(f"v_min_u32 {v(V_FO)}, 47, {v(V_LANE)}")
    else:
        A(f"v_min_u32 {v(V_FO)}, 11, {v(V_LANE)}")
        A(f"s_mul_i32 {s(T)}, {s(S_WAVE)}, 12")
        A(f"v_add_u32 {v(V_FO)}, {s(T)}, {v(V_FO)}")
    A(f"v_lshlrev_b32 {v(V_FO)}, 2, {v(V_FO)}")
    A(f"s_and_b32 {s(T)}, {s(S_WAVE)}, 1")
    A(f"s_lshl_b32 {s(S_J)}, {s(S_ROLE)}, 1")
    A(f"s_add_u32 {s(S_J)}, {s(S_J)}, {s(T)}")
    A(f"s_lshr_b32 {s(S_TT)}, {s(S_WAVE)}, 1")
    A(f"v_and_b32 {v(V_T)}, 15, {v(V_LANE)}")
    A(f"v_lshlrev_b32 {v(V_SAD)}, 3, {v(V_T)}")
    A(f"s_lshl_b32 {s(T)}, {s(S_TT)}, 4")
    A(f"v_add_u32 {v(V_T)}, {s(T)}, {v(V_T)}")
    A(f"v_mul_u32_u24 {v(V_OA)}, 1280, {v(V_T)}")
    A(f"v_lshrrev_b32 {v(V_T)}, 4, {v(V_LANE)}")
    A(f"v_lshl_add_u32 {v(V_OA)}, {v(V_T)}, 3, {v(V_OA)}")
    A(f"s_lshl_b32 {s(T)}, {s(S_J)}, 6")
    A(f"v_add_u32 {v(V_OA)}, {s(T)}, {v(V_OA)}")
    make_srd(A, SRD_O, P_OUT, 2048 * 1280)
    zero_flags(A, flag_row(F_XIN), S_IDX, layers=(1,))
    init_barrier_arrive(A, V_T)
    if cfg.late_w:
        init_barrier_wait(A, V_T, nwg, cfg)
        for _ in range(cfg.late_w - 1 if cfg.late_w != 9 else 0):
            A("s_sleep 64")
        if cfg.late_w == 9:
            A(f"s_mov_b32 {s(T + 7)}, {flag_row(F_K)}")
            A(f"v_mov_b32 {v(V_T + 4)}, 0")
            flag_block(A, T + 7, vo=V_T + 4)
    for _ in range(cfg.dly_w):
        A("s_sleep 64")
    WL = WLoader(A, V_T, T + 3)
    A(f"s_mul_i32 {s(S_C0)}, {s(S_WAVE)}, {384 * 1280}")
    A(f"s_lshl_b32 {s(T)}, {s(S_ROLE)}, 7")
    A(f"s_add_u32 {s(S_C0)}, {s(S_C0)}, {s(T)}")
    WL.add(lambda: make_srd(A, SRD_W, P_W4, 1536 * 1280), S_C0, 1280, 4, 12, lambda tau, j: ("a", (tau * 12 + j) * 4))
    WL.emit(V_LANE)
    A("s_barrier")
    if not cfg.late_w:
        init_barrier_wait(A, V_T, nwg, cfg)
    def inreg(st_, b):
        if st_ == 0:
            return v(V_IN + 4 * b, 4)
        return a(192 + 4 * b, 4) if b < 16 else v(208 + 4 * (b - 16), 4)
    XXS = (V_XX, 240)
    S_CH = S_K + 2
    A(f"s_lshl_b32 {s(S_CH)}, {s(S_J)}, 1")
    A(f"s_add_u32 {s(S_CH)}, {s(S_CH)}, {s(S_TT)}")
    A(f"s_lshl_b32 {s(S_CH)}, {s(S_CH)}, 10")

    def loads(st_, rl, rs):
        L = []
        L.append(f"s_lshl_b32 {s(T + 6)}, {s(rl)}, 6")
        L.append(f"s_add_u32 {s(T + 6)}, {s(T + 6)}, {s(rs)}")
        L.append(f"s_mul_i32 {s(T + 5)}, {s(T + 6)}, {GSEG}")
        L.append(f"s_mul_i32 {s(T)}, {s(S_WAVE)}, 24576")
        L.append(f"s_add_u32 {s(T + 5)}, {s(T + 5)}, {s(T)}")
        L.append(f"s_add_u32 {s(T + 5)}, {s(T + 5)}, {GB}")
        for b in range(24):
            if b % 4 == 0:
                L.append(f"s_add_u32 {s(T + 3)}, {s(T + 5)}, {b * 1024}")
            L.append(f"buffer_load_dwordx4 {inreg(st_, b)}, {v(V_L16)}, {WS}, {s(T + 3)} offen offset:{(b % 4) * 1024} sc1")
        L.append(f"s_mul_i32 {s(T)}, {s(T + 6)}, {XSEGS}")
        L.append(f"s_add_u32 {s(T)}, {s(T)}, {s(S_CH)}")
        L.append(f"s_add_u32 {s(T)}, {s(T)}, {X1B}")
        L.append(f"buffer_load_dwordx4 {v(XXS[st_], 4)}, {v(V_L16)}, {WS}, {s(T)} offen sc1")
        L.append(f"s_mul_i32 {s(T)}, {s(T + 6)}, {XSEG}")
        L.append(f"s_add_u32 {s(T)}, {s(T)}, {s(S_CH)}")
        L.append(f"s_add_u32 {s(T)}, {s(T)}, {XM}")
        L.append(f"buffer_load_dwordx4 {v(XXS[st_] + 4, 4)}, {v(V_P16)}, {WS}, {s(T)} offen sc1")
        return L

    def acc(tau, tt):
        return V_ACC + (tt * 4 + tau) * 4

    def kstep(st_, j, fill=None, rate=0):
        for tt in range(2):
            for tau in range(4):
                c = "0" if j == 0 else v(acc(tau, tt), 4)
                A(f"v_mfma_f32_16x16x32_bf16 {v(acc(tau, tt), 4)}, {a((tau * 12 + j) * 4, 4)}, {inreg(st_, j * 2 + tt)}, {c}")
                for _ in range(rate):
                    if fill:
                        A(fill.pop(0))

    def body(st_, sx, other):
        A.label("W4_" + sx)
        A(f"s_add_u32 {s(T + 6)}, {s(S_I)}, 1")
        A(f"s_min_u32 {s(T + 6)}, {s(T + 6)}, 127")
        item_of(A, T + 6, S_NL, S_NS, cfg.LAG + cfg.dlt, 0, T)
        row_of(A, T + 7, S_NL, S_NS, flag_row(F_G))
        A(f"buffer_load_dword {v(V_FV)}, {v(V_FO)}, {WS}, {s(T + 7)} offen sc1")
        A(f"v_add_u32 {v(V_LW)}, {s(S_BUF)}, {v(V_LW0)}")
        A(f"v_add_u32 {v(V_LR)}, {s(S_BUF)}, {v(V_LR0)}")
        JC = 5
        for j in range(JC + 1):
            A(f"s_waitcnt vmcnt({25 - 2 * j})")
            kstep(st_, j)
        nof, nod, join = A.newlabel("nof"), A.newlabel("nod"), A.newlabel("join")
        A("s_waitcnt vmcnt(0)")
        A(f"s_cmp_eq_u32 {s(S_FADDR)}, {DUMMY}")
        A(f"s_cbranch_scc1 {nof}")
        flag_store(A, S_FADDR)
        A(f"s_mov_b32 {s(S_FADDR)}, {DUMMY}")
        A.label(nof)
        A(f"v_cmp_eq_u32 vcc, 0, {v(V_FV)}")
        A(f"s_mov_b32 {s(S_DEF)}, 1")
        A(f"s_cbranch_vccnz {nod}")
        A(f"s_mov_b32 {s(S_DEF)}, 0")
        if cfg.wgp2:
            rdy_set(A, 250, 1, T)
        fill = loads(1 - st_, S_NL, S_NS)
        for j in range(JC + 1, 12):
            kstep(st_, j, fill, 1)
        while fill:
            A(fill.pop(0))
        A(f"s_branch {join}")
        A.label(nod)
        for j in range(JC + 1, 12):
            kstep(st_, j)
        A.label(join)
        for d in range(4):
            tt, p = d >> 1, d & 1
            for k in range(2):
                A(f"ds_write_b128 {v(V_LW)}, {v(acc(2 * p + k, tt), 4)} offset:{d * 8192 + k * 1024}")
        unpack8(A, V_XU, XXS[st_])
        unpack8(A, V_XU + 8, XXS[st_] + 4)
        A("s_waitcnt lgkmcnt(0)")
        A("s_barrier")
        for i in range(8):
            A(f"ds_read_b128 {v(V_RD + 4 * i, 4)}, {v(V_LR)} offset:{i * 1024}")
        A("s_waitcnt lgkmcnt(0)")
        for i in range(0, 8, 2):
            A(f"v_pk_add_f32 {v(V_RD + i, 2)}, {v(V_RD + i, 2)}, {v(V_RD + 8 + i, 2)}")
            A(f"v_pk_add_f32 {v(V_RD + 16 + i, 2)}, {v(V_RD + 16 + i, 2)}, {v(V_RD + 24 + i, 2)}")
        for i in range(0, 8, 2):
            A(f"v_pk_add_f32 {v(V_RD + i, 2)}, {v(V_RD + i, 2)}, {v(V_RD + 16 + i, 2)}")
        X = [V_RD + i for i in range(8)]
        for i in range(0, 8, 2):
            rnd2(A, V_T, X[i], X[i + 1])
        for i in range(0, 8, 2):
            A(f"v_pk_add_f32 {v(X[i], 2)}, {v(X[i], 2)}, {v(V_XU + i, 2)}")
        for i in range(0, 8, 2):
            rnd2(A, V_T, X[i], X[i + 1])
        for i in range(0, 8, 2):
            A(f"v_pk_add_f32 {v(X[i], 2)}, {v(X[i], 2)}, {v(V_XU + 8 + i, 2)}")
        for i in range(0, 8, 2):
            rnd2(A, V_PK + i // 2, X[i], X[i + 1])
        l1, l2 = A.newlabel("w4o"), A.newlabel("w4n")
        A(f"s_cmp_lg_u32 {s(S_L)}, 0")
        A(f"s_cbranch_scc1 {l1}")
        A(f"s_mul_i32 {s(T + 2)}, {s(S_S)}, {XSEGS}")
        A(f"s_add_u32 {s(T + 2)}, {s(T + 2)}, {XIN + 64 * XSEGS}")
        A(f"s_add_u32 {s(T + 3)}, {s(T + 2)}, {s(S_CH)}")
        A(f"buffer_store_dwordx4 {v(V_PK, 4)}, {v(V_P16)}, {WS}, {s(T + 3)} offen sc1")
        t = V_T
        A(f"v_add_f32 {v(t)}, {v(X[0])}, {v(X[1])}")
        A(f"v_mul_f32 {v(t + 1)}, {v(X[0])}, {v(X[0])}")
        for i in range(1, 8):
            if i >= 2:
                A(f"v_add_f32 {v(t)}, {v(t)}, {v(X[i])}")
            A(f"v_fmac_f32 {v(t + 1)}, {v(X[i])}, {v(X[i])}")
        for op in ("v_permlane32_swap_b32", "v_permlane16_swap_b32"):
            A(f"v_mov_b32 {v(t + 2)}, {v(t)}")
            A(f"v_mov_b32 {v(t + 3)}, {v(t + 1)}")
            A(f"{op} {v(t)}, {v(t + 2)}")
            A(f"{op} {v(t + 1)}, {v(t + 3)}")
            A(f"v_add_f32 {v(t)}, {v(t)}, {v(t + 2)}")
            A(f"v_add_f32 {v(t + 1)}, {v(t + 1)}, {v(t + 3)}")
        A(f"s_lshl_b32 {s(T + 3)}, {s(S_J)}, 8")
        A(f"s_lshl_b32 {s(T)}, {s(S_TT)}, 7")
        A(f"s_add_u32 {s(T + 3)}, {s(T + 3)}, {s(T)}")
        A(f"s_add_u32 {s(T + 3)}, {s(T + 3)}, {s(T + 2)}")
        A(f"s_add_u32 {s(T + 3)}, {s(T + 3)}, 40960")
        A("s_mov_b64 exec, 0xffff")
        A(f"buffer_store_dwordx2 {v(t, 2)}, {v(V_SAD)}, {WS}, {s(T + 3)} offen sc1")
        A("s_mov_b64 exec, -1")
        A(f"s_mov_b32 {s(T + 6)}, 1")
        flag_addr(A, S_FADDR, flag_row(F_XIN), S_IDX, T + 6, S_S)
        A("s_waitcnt vmcnt(0)")
        flag_store(A, S_FADDR)
        A(f"s_mov_b32 {s(S_FADDR)}, {DUMMY}")
        A(f"s_branch {l2}")
        A.label(l1)
        A(f"s_mul_i32 {s(T + 2)}, {s(S_S)}, {32 * 1280}")
        A(f"buffer_store_dwordx2 {v(V_PK, 2)}, {v(V_OA)}, {s(SRD_O, 4)}, {s(T + 2)} offen")
        A(f"buffer_store_dwordx2 {v(V_PK + 2, 2)}, {v(V_OA)}, {s(SRD_O, 4)}, {s(T + 2)} offen offset:32")
        A("s_waitcnt vmcnt(2)")
        A.label(l2)
        A(f"s_add_u32 {s(S_I)}, {s(S_I)}, 1")
        A(f"s_cmp_eq_u32 {s(S_I)}, 128")
        A("s_cbranch_scc1 W4_END")
        A(f"s_xor_b32 {s(S_BUF)}, {s(S_BUF)}, 0x8000")
        A(f"s_mov_b32 {s(S_L)}, {s(S_NL)}")
        A(f"s_mov_b32 {s(S_S)}, {s(S_NS)}")
        A(f"s_cmp_eq_u32 {s(S_DEF)}, 0")
        A(f"s_cbranch_scc1 W4_{other}")
        row_of(A, T + 7, S_L, S_S, flag_row(F_G))
        if cfg.wgp2:
            wg_wait(A, cfg, 250, T + 7, T)
        else:
            flag_block(A, T + 7, sleep=1)
        for x in loads(1 - st_, S_L, S_S):
            A(x)
        A(f"s_branch W4_{other}")

    V_LW0, V_LR0 = 248, 249
    A(f"s_lshl_b32 {s(T)}, {s(S_WAVE)}, 11")
    A(f"v_add_u32 {v(V_LW0)}, {s(T)}, {v(V_L16)}")
    A(f"s_lshl_b32 {s(T)}, {s(S_WAVE)}, 13")
    A(f"v_add_u32 {v(V_LR0)}, {s(T)}, {v(V_L16)}")
    A(f"s_mov_b32 {s(S_I)}, 0")
    A(f"s_mov_b32 {s(S_BUF)}, 0")
    if cfg.wgp2:
        rdy_init(A, cfg, 250, 65536)
    A(f"s_mov_b32 {s(S_FADDR)}, {DUMMY}")
    item_of(A, S_I, S_L, S_S, cfg.LAG + cfg.dlt, 0, T)
    row_of(A, T + 7, S_L, S_S, flag_row(F_G))
    flag_block(A, T + 7)
    for x in loads(0, S_L, S_S):
        A(x)
    body(0, "A", "B")
    body(1, "B", "A")
    A.label("W4_END")
    if cfg.timing == 6:
        A("s_memrealtime s[98:99]")
        A("s_waitcnt lgkmcnt(0)")
        A("s_sub_u32 s98, s98, s96")
        A(f"v_mov_b32 {v(V_T)}, s98")
        A(f"v_mov_b32 {v(V_T + 1)}, 28")
        A("s_mov_b64 exec, 1")
        A(f"buffer_store_dword {v(V_T)}, {v(V_T + 1)}, {s(SRD_DBG, 4)}, 0 offen")
    A("s_endpgm")


def gen_att(A, cfg, nwg):
    V_Q, V_K, V_V, V_KP, V_VM = 16, 64, 112, 160, 172
    V_SX, V_SM, V_P = 184, 196, 212
    V_FO2, V_L8, V_NINF = 228, 229, 230
    V_PK = 232
    S_H, S_XG, S_FX, S_HO = S_K, S_K + 1, S_K + 2, S_K + 3
    S_MK = 72
    S_ML = 80
    S_SC, S_L2E = 84, 85
    A.label("ROLE_ATT")
    S_PAR = 86
    if cfg.a2 == 1:
        A(f"s_lshr_b32 {s(S_PAR)}, {s(S_ROLE)}, 4")
        A(f"s_and_b32 {s(S_ROLE)}, {s(S_ROLE)}, 15")
    base_setup(A)
    S_FO = 87
    if cfg.a2 == 2:
        A(f"s_mov_b32 {s(S_H)}, {s(S_ROLE)}")
        A(f"s_and_b32 {s(S_L)}, {s(S_WAVE)}, 1")
        A(f"s_lshr_b32 {s(S_PAR)}, {s(S_WAVE)}, 1")
        A(f"s_lshr_b32 {s(S_FO)}, {s(S_H)}, 3")
        A(f"s_lshl_b32 {s(S_FO)}, {s(S_FO)}, 5")
        A(f"s_and_b32 {s(T)}, {s(S_H)}, 7")
        A(f"s_add_u32 {s(S_FO)}, {s(S_FO)}, {s(T)}")
    elif cfg.attl:
        A(f"s_lshr_b32 {s(S_H)}, {s(S_ROLE)}, 1")
        A(f"s_lshl_b32 {s(S_H)}, {s(S_H)}, 2")
        A(f"s_add_u32 {s(S_H)}, {s(S_H)}, {s(S_WAVE)}")
        A(f"s_and_b32 {s(S_L)}, {s(S_ROLE)}, 1")
    else:
        A(f"s_lshr_b32 {s(S_H)}, {s(S_IDX)}, 1")
        A(f"s_and_b32 {s(S_L)}, {s(S_IDX)}, 1")
    A(f"v_lshlrev_b32 {v(V_L8)}, 3, {v(V_LANE)}")
    if cfg.lin:
        A(f"v_and_b32 {v(V_L8)}, 0x300, {v(V_L16)}")
        A(f"v_add_u32 {v(V_L8)}, {v(V_L8)}, {v(V_L16)}")
    A(f"v_mov_b32 {v(V_NINF)}, 0xff800000")
    A(f"s_mov_b32 {s(S_ML)}, -1")
    A(f"s_mov_b32 {s(S_ML + 1)}, 0")
    A(f"s_mov_b32 {s(S_SC)}, {f32(192 ** -0.5)}")
    A(f"s_mov_b32 {s(S_L2E)}, {f32(math.log2(math.e))}")
    A(f"v_min_u32 {v(V_T)}, 8, {v(V_LANE)}")
    A(f"v_mul_u32_u24 {v(V_T + 1)}, 86, {v(V_T)}")
    A(f"v_lshrrev_b32 {v(V_T + 1)}, 8, {v(V_T + 1)}")
    A(f"v_mul_u32_u24 {v(V_T + 2)}, 3, {v(V_T + 1)}")
    A(f"v_sub_u32 {v(V_T)}, {v(V_T)}, {v(V_T + 2)}")
    A(f"s_mul_i32 {s(T)}, {s(S_H)}, 3")
    A(f"v_add_u32 {v(V_T)}, {s(T)}, {v(V_T)}")
    A(f"v_lshlrev_b32 {v(V_FO)}, 2, {v(V_T)}")
    A(f"v_lshl_add_u32 {v(V_FO)}, {v(V_T + 1)}, 16, {v(V_FO)}")
    A(f"v_min_u32 {v(V_FO2)}, {2 if cfg.c2 else 11}, {v(V_LANE)}")
    A(f"v_lshlrev_b32 {v(V_FO2)}, 2, {v(V_FO2)}")
    A(f"v_lshrrev_b32 {v(V_T)}, 4, {v(V_LANE)}")
    A(f"v_lshlrev_b32 {v(V_T)}, 2, {v(V_T)}")
    A(f"v_and_b32 {v(V_T + 1)}, 15, {v(V_LANE)}")
    for r in range(4):
        A(f"v_add_u32 {v(V_T + 2)}, {r}, {v(V_T)}")
        A(f"v_cmp_le_u32 {s(S_MK + 2 * r, 2)}, {v(V_T + 2)}, {v(V_T + 1)}")
    A(f"s_mul_i32 {s(S_HO)}, {s(S_H)}, 12288")
    A(f"s_mul_i32 {s(T)}, {s(S_L)}, {cfg.LAG}")
    A(f"s_mul_i32 {s(S_XG)}, {s(T)}, {XG_STEP}")
    A(f"s_mul_i32 {s(T + 1)}, {s(S_H)}, {XG_HEAD}")
    A(f"s_add_u32 {s(S_XG)}, {s(S_XG)}, {s(T + 1)}")
    A(f"s_mul_i32 {s(T + 1)}, {s(S_L)}, 9216")
    A(f"s_add_u32 {s(S_XG)}, {s(S_XG)}, {s(T + 1)}")
    A(f"s_add_u32 {s(S_XG)}, {s(S_XG)}, {XG + 3072}")
    A(f"s_mul_i32 {s(S_FX)}, {s(T)}, {FXG_STEP}")
    A(f"s_lshl_b32 {s(T + 1)}, {s(S_H)}, 6")
    A(f"s_add_u32 {s(S_FX)}, {s(S_FX)}, {s(T + 1)}")
    A(f"s_add_u32 {s(S_FX)}, {s(S_FX)}, {FXG}")
    if cfg.c2:
        A(f"s_mul_i32 {s(S_XG)}, {s(S_L)}, {64 * XG2_STEP}")
        A(f"s_mul_i32 {s(T + 1)}, {s(S_H)}, {XG2_HEAD}")
        A(f"s_add_u32 {s(S_XG)}, {s(S_XG)}, {s(T + 1)}")
        A(f"s_add_u32 {s(S_XG)}, {s(S_XG)}, {XG}")
        A(f"s_mul_i32 {s(S_FX)}, {s(S_L)}, {64 * FXG2_STEP}")
        A(f"s_lshl_b32 {s(T + 1)}, {s(S_H)}, 5")
        A(f"s_add_u32 {s(S_FX)}, {s(S_FX)}, {s(T + 1)}")
        A(f"s_add_u32 {s(S_FX)}, {s(S_FX)}, {FXG}")
    if cfg.xga == 4:
        A(f"s_mul_i32 {s(T + 1)}, {s(T)}, {XG_STEP}")
        A(f"s_sub_u32 {s(S_XG)}, {s(S_XG)}, {s(T + 1)}")
        A(f"s_mov_b32 {s(S_FX)}, {s(T)}")
        A(f"v_min_u32 {v(V_T)}, 17, {v(V_LANE)}")
        A(f"v_lshrrev_b32 {v(V_T + 1)}, 1, {v(V_T)}")
        A(f"v_lshlrev_b32 {v(V_T + 1)}, 10, {v(V_T + 1)}")
        A(f"v_and_b32 {v(V_T + 2)}, 1, {v(V_T)}")
        A(f"v_lshl_add_u32 {v(V_T + 1)}, {v(V_T + 2)}, 7, {v(V_T + 1)}")
        A(f"v_lshlrev_b32 {v(V_T + 2)}, 8, {v(V_T)}")
        A(f"v_add_u32 {v(V_T + 2)}, {3072 - 6 * 256}, {v(V_T + 2)}")
        A(f"v_cmp_gt_u32 vcc, 6, {v(V_T)}")
        A(f"v_cndmask_b32 {v(V_FO2)}, {v(V_T + 2)}, {v(V_T + 1)}, vcc")
    init_barrier_arrive(A, V_T)
    if cfg.a2 == 1:
        A(f"s_cmp_eq_u32 {s(S_PAR)}, 0")
        A("s_cbranch_scc1 ATT_R0")
        init_barrier_wait(A, V_T, nwg, cfg)
        A(f"s_mov_b32 {s(S_S)}, 1")
        A(f"s_add_u32 {s(S_XG)}, {s(S_XG)}, {XG2_STEP}")
        A(f"s_add_u32 {s(S_FX)}, {s(S_FX)}, {FXG2_STEP}")
        A("s_branch ATT_LOOP")
        A.label("ATT_R0")
    if cfg.a2 == 2:
        A(f"s_mov_b32 {s(T + 6)}, {s(S_IDX)}")
        gen_r0(A, cfg, nwg, T + 6, "A", 16)
        A(f"s_mov_b32 {s(S_S)}, {s(S_PAR)}")
        A(f"s_mul_i32 {s(T)}, {s(S_PAR)}, {XG2_STEP}")
        A(f"s_add_u32 {s(S_XG)}, {s(S_XG)}, {s(T)}")
        A(f"s_mul_i32 {s(T)}, {s(S_PAR)}, {FXG2_STEP}")
        A(f"s_add_u32 {s(S_FX)}, {s(S_FX)}, {s(T)}")
    else:
        A(f"s_add_u32 {s(T + 6)}, {s(S_IDX)}, 32")
        gen_r0(A, cfg, nwg, T + 6, "A")
        A(f"s_mov_b32 {s(S_S)}, 0")
    A(f"v_mov_b32 v231, 0")
    st = Stamper(A, cfg, 88, 8)
    A(f"s_mov_b32 s83, {s(S_GID)}")
    st.init()
    A.label("ATT_LOOP")
    row_of(A, T + 7, S_L, S_S, flag_row(F_Q))
    A(f"s_mul_i32 {s(T + 6)}, {s(S_S)}, {QKV_SEG}")
    A(f"s_add_u32 {s(T + 6)}, {s(T + 6)}, {s(S_HO)}")
    V_FN = 231
    if cfg.asm:
        A(f"v_cmp_eq_u32 vcc, 0, {v(V_FN)}")
        A("s_cbranch_vccz ATT_RDY")
    flag_block(A, T + 7, sleep=4)
    A.label("ATT_RDY")
    st(0)
    nld = 0
    for base, buf in ((V_Q, QX), (V_K, KX), (V_V, VX)):
        for b in range(12):
            if b % 4 == 0:
                A(f"s_add_u32 {s(T + 3)}, {s(T + 6)}, {buf + b * 1024}")
            if cfg.aw and nld >= cfg.aw and nld % 2 == 0:
                A(f"s_waitcnt vmcnt({cfg.aw - 2})")
            A(f"buffer_load_dwordx4 {v(base + 4 * b, 4)}, {v(V_L16)}, {WS}, {s(T + 3)} offen offset:{(b % 4) * 1024} {'nt ' if cfg.ant else ''}sc1")
            nld += 1
    if cfg.touch & 1:
        A(f"v_lshlrev_b32 {v(V_PK)}, 7, {v(V_LANE)}")
        A(f"s_add_u32 {s(T + 3)}, {s(T + 6)}, {OX}")
        A(f"buffer_load_dword {v(V_PK + 1)}, {v(V_PK)}, {WS}, {s(T + 3)} offen sc1")
        A(f"s_add_u32 {s(T + 3)}, {s(T + 6)}, {OX + 4096}")
        A(f"buffer_load_dword {v(V_PK + 1)}, {v(V_PK)}, {WS}, {s(T + 3)} offen sc1")
    A(f"s_waitcnt vmcnt({14 if cfg.touch & 1 else 12})")
    st(1)
    combos = ((0, 0), (1, 0), (1, 1))
    for j in range(6):
        for ci, (qt, kt) in enumerate(combos):
            c = "0" if j == 0 else v(V_SX + 4 * ci, 4)
            A(f"v_mfma_f32_16x16x32_bf16 {v(V_SX + 4 * ci, 4)}, {v(V_K + (j * 2 + kt) * 4, 4)}, {v(V_Q + (j * 2 + qt) * 4, 4)}, {c}")

    def roundscale(vals):
        for i in range(0, len(vals), 2):
            rnd2(A, V_T, vals[i], vals[i + 1])
        for x in vals:
            A(f"v_mul_f32 {v(x)}, {s(S_SC)}, {v(x)}")
        for i in range(0, len(vals), 2):
            rnd2(A, V_T, vals[i], vals[i + 1])
    roundscale([V_SX + i for i in range(12)])
    for ci in (0, 2):
        for r in range(4):
            x = V_SX + 4 * ci + r
            A(f"v_cndmask_b32 {v(x)}, {v(V_NINF)}, {v(x)}, {s(S_MK + 2 * r, 2)}")
    if cfg.xga != 4:
        sv = cfg.fsl
        if cfg.asl >= 0:
            cfg.fsl = cfg.asl
        st(2)
        if cfg.timing == 2:
            A("s_waitcnt vmcnt(0)")
            st(7)
        flag_block(A, S_FX, vo=V_FO2, sleep=cfg.att_sleep)
        st(3)
        cfg.fsl = sv
        for j in range(3):
            A(f"buffer_load_dwordx4 {v(V_KP + 4 * j, 4)}, {v(V_L16)}, {WS}, {s(S_XG)} offen offset:{j * 1024} sc1")
        A(f"s_add_u32 {s(T + 3)}, {s(S_XG)}, 3072")
        if cfg.c2:
            for i in range(3):
                A(f"buffer_load_dwordx4 {v(V_VM + 4 * i, 4)}, {v(V_L16)}, {WS}, {s(T + 3)} offen offset:{i * 1024} sc1")
            if cfg.asm:
                A(f"buffer_load_dword {v(V_FN)}, {v(V_FO)}, {WS}, {s(T + 7)} offen offset:1024 sc1")
            A(f"s_waitcnt vmcnt({4 if cfg.asm else 3})")
        else:
            for i in range(6):
                A(f"buffer_load_dwordx2 {v(V_VM + 2 * i, 2)}, {v(V_L8)}, {WS}, {s(T + 3)} offen offset:{i * 512} sc1")
            A("s_waitcnt vmcnt(6)")
    else:
        A(f"s_and_b32 {s(T + 4)}, {s(S_FX)}, 15")
        A(f"s_mul_i32 {s(T + 4)}, {s(T + 4)}, {XG_STEP}")
        A(f"s_add_u32 {s(T + 4)}, {s(T + 4)}, {s(S_XG)}")
        A(f"s_add_u32 {s(T + 3)}, {s(T + 4)}, 3072")
        A(f"s_lshr_b32 {s(T + 5)}, {s(S_FX)}, 4")
        A(f"s_and_b32 {s(T + 5)}, {s(T + 5)}, 1")
        top = A.newlabel("xp")
        A.label(top)
        A(f"buffer_load_dword {v(V_FV)}, {v(V_FO2)}, {WS}, {s(T + 4)} offen sc1")
        A("s_waitcnt vmcnt(0)")
        A(f"v_and_b32 {v(V_FV)}, 1, {v(V_FV)}")
        A(f"v_cmp_ne_u32 vcc, {s(T + 5)}, {v(V_FV)}")
        poll_tail(A, top, sleep=cfg.asl)
        for j in range(3):
            A(f"buffer_load_dwordx4 {v(V_KP + 4 * j, 4)}, {v(V_L16)}, {WS}, {s(T + 4)} offen offset:{j * 1024} sc1")
        for i in range(6):
            A(f"buffer_load_dwordx2 {v(V_VM + 2 * i, 2)}, {v(V_L8)}, {WS}, {s(T + 3)} offen offset:{i * 512} sc1")
        A("s_waitcnt vmcnt(0)")
        regs = [V_KP + 4 * j for j in range(3)] + [V_VM + 2 * i for i in range(6)]
        for k in range(4):
            A(f"v_bitop3_b32 {v(V_T + k)}, {v(regs[2 * k])}, {v(regs[2 * k + 1])}, {s(T + 5)} bitop3:0x7e")
        A(f"v_xor_b32 {v(V_T + 4)}, {s(T + 5)}, {v(regs[8])}")
        A(f"v_or3_b32 {v(V_T)}, {v(V_T)}, {v(V_T + 1)}, {v(V_T + 2)}")
        A(f"v_or3_b32 {v(V_T)}, {v(V_T)}, {v(V_T + 3)}, {v(V_T + 4)}")
        A(f"v_and_b32 {v(V_T)}, 1, {v(V_T)}")
        A(f"v_cmp_ne_u32 vcc, 0, {v(V_T)}")
        poll_tail(A, top)
    st(4)
    for jp in range(3):
        for qt in range(2):
            for par in range(2):
                acc = V_SM + (qt * 2 + par) * 4
                c = "0" if jp == 0 else v(acc, 4)
                A(f"v_mfma_f32_16x16x32_bf16 {v(acc, 4)}, {v(V_KP + 4 * jp, 4)}, {v(V_Q + ((2 * jp + par) * 2 + qt) * 4, 4)}, {c}")
    Zs = []
    for qt in range(2):
        E, O = V_SM + qt * 8, V_SM + qt * 8 + 4
        for k in (0, 2):
            A(f"v_permlane32_swap_b32 {v(E + k)}, {v(E + k + 1)}")
            A(f"v_permlane32_swap_b32 {v(O + k)}, {v(O + k + 1)}")
        A(f"v_add_f32 {v(E)}, {v(E)}, {v(O + 1)}")
        A(f"v_add_f32 {v(E + 1)}, {v(E + 2)}, {v(O + 3)}")
        Zs.append([E, E + 1])
    roundscale(Zs[0] + Zs[1])
    for qt in range(2):
        X = [V_SX + i for i in range(4)] if qt == 0 else [V_SX + 4 + i for i in range(8)]
        S = X + Zs[qt]
        m, t2 = V_T + 2 * qt, V_T + 2 * qt + 1
        A(f"v_max3_f32 {v(m)}, {v(S[0])}, {v(S[1])}, {v(S[2])}")
        rest = S[3:]
        while rest:
            if len(rest) >= 2:
                A(f"v_max3_f32 {v(m)}, {v(m)}, {v(rest[0])}, {v(rest[1])}")
                rest = rest[2:]
            else:
                A(f"v_max_f32 {v(m)}, {v(m)}, {v(rest[0])}")
                rest = []
        xreduce(A, "v_max_f32", m, t2)
        A(f"v_mul_f32 {v(m)}, {s(S_L2E)}, {v(m)}")
        for x in S:
            A(f"v_fma_f32 {v(x)}, {v(x)}, {s(S_L2E)}, -{v(m)}")
        for x in S:
            A(f"v_exp_f32 {v(x)}, {v(x)}")
        A(f"v_add_f32 {v(m)}, {v(S[0])}, {v(S[1])}")
        for x in S[2:]:
            A(f"v_add_f32 {v(m)}, {v(m)}, {v(x)}")
        xreduce(A, "v_add_f32", m, t2)
        A(f"v_rcp_f32 {v(m)}, {v(m)}")
        for x in S:
            A(f"v_mul_f32 {v(x)}, {v(x)}, {v(m)}")
        P = V_P + 8 * qt
        A(f"v_cvt_pk_bf16_f32 {v(P)}, {v(X[0])}, {v(X[1])}")
        A(f"v_cvt_pk_bf16_f32 {v(P + 1)}, {v(X[2])}, {v(X[3])}")
        if qt == 0:
            A(f"v_mov_b32 {v(P + 2)}, 0")
            A(f"v_mov_b32 {v(P + 3)}, 0")
        else:
            A(f"v_cvt_pk_bf16_f32 {v(P + 2)}, {v(X[4])}, {v(X[5])}")
            A(f"v_cvt_pk_bf16_f32 {v(P + 3)}, {v(X[6])}, {v(X[7])}")
        Z = Zs[qt]
        if cfg.c2:
            A(f"v_cvt_pk_bf16_f32 {v(P + 4)}, {v(Z[0])}, {v(Z[1])}")
            A(f"v_mov_b32 {v(P + 5)}, 0")
            A(f"v_mov_b32 {v(P + 6)}, 0")
            A(f"v_cvt_pk_bf16_f32 {v(P + 7)}, {v(Z[0])}, {v(Z[1])}")
            continue
        A(f"v_mov_b32 {v(Z[0] + 2)}, {v(Z[0])}")
        A(f"v_mov_b32 {v(Z[0] + 3)}, {v(Z[1])}")
        A(f"v_permlane32_swap_b32 {v(Z[0])}, {v(Z[0] + 2)}")
        A(f"v_permlane32_swap_b32 {v(Z[1])}, {v(Z[0] + 3)}")
        A(f"v_cvt_pk_bf16_f32 {v(Z[0])}, {v(Z[0])}, {v(Z[0] + 2)}")
        A(f"v_cvt_pk_bf16_f32 {v(Z[1])}, {v(Z[1])}, {v(Z[0] + 3)}")
        for k in range(2):
            A(f"v_cndmask_b32 {v(P + 4 + k)}, 0, {v(Z[k])}, {s(S_ML, 2)}")
            A(f"v_cndmask_b32 {v(P + 6 + k)}, {v(Z[k])}, 0, {s(S_ML, 2)}")
    A(f"s_waitcnt vmcnt({1 if cfg.asm else 0})")
    A(f"s_add_u32 {s(T + 6)}, {s(T + 6)}, {OX}")
    for qt in range(2):
        O = V_Q if qt == 0 else V_K
        P = V_P + 8 * qt
        for et in range(12):
            A(f"v_mfma_f32_16x16x32_bf16 {v(O + 4 * et, 4)}, {v(V_V + 4 * et, 4)}, {v(P, 4)}, 0")
        for et in range(12):
            A(f"v_mfma_f32_16x16x16_bf16 {v(O + 4 * et, 4)}, {v(V_VM + 2 * (et >> 1), 2)}, {v(P + 4 + 2 * (et & 1), 2)}, {v(O + 4 * et, 4)}")
    def o_out(LS):
        for qt in range(2):
            O = V_Q if qt == 0 else V_K
            for j in range(6):
                pk = V_PK + 4 * (j & 1)
                for i in range(4):
                    A(f"v_cvt_pk_bf16_f32 {v(pk + i)}, {v(O + 8 * j + 2 * i)}, {v(O + 8 * j + 2 * i + 1)}")
                if j % 2 == 0:
                    A(f"s_add_u32 {s(T + 3)}, {s(T + 6)}, {j * 2048 + qt * (256 if cfg.lin else 1024)}")
                A(f"buffer_store_dwordx4 {v(pk, 4)}, {v(V_L8 if cfg.lin else V_L16)}, {WS}, {s(T + 3)} offen offset:{(j % 2) * 2048}{LS}")
        flag_addr(A, T, flag_row(F_O), S_FO if cfg.a2 == 2 else S_H)
        st(5)
        A("s_waitcnt vmcnt(0)")
        flag_store(A, T, LS)
        st(6)
    if cfg.oloc:
        A(f"s_cmp_lg_u32 {s(S_MODE)}, 0")
        A("s_cbranch_scc1 ATT_OS")
        o_out("")
        A("s_branch ATT_OJ")
        A.label("ATT_OS")
    o_out(" sc1")
    A.label("ATT_OJ")
    if cfg.xga == 4:
        A(f"s_add_u32 {s(S_FX)}, {s(S_FX)}, 1")
    else:
        A(f"s_add_u32 {s(S_XG)}, {s(S_XG)}, {XG2_STEP * (2 if cfg.a2 else 1) if cfg.c2 else XG_STEP}")
        A(f"s_add_u32 {s(S_FX)}, {s(S_FX)}, {FXG2_STEP * (2 if cfg.a2 else 1) if cfg.c2 else FXG_STEP}")
    A(f"s_add_u32 {s(S_S)}, {s(S_S)}, {2 if cfg.a2 else 1}")
    A(f"s_cmp_lt_u32 {s(S_S)}, 64")
    A("s_cbranch_scc1 ATT_LOOP")
    st.dump(83, T, V_T)
    A("s_endpgm")


def gen_r1(A, cfg, nwg):
    V_XO, V_SO, V_SO3, V_XR, V_LWA, V_LRA, V_FO2 = 16, 17, 18, 19, 20, 21, 22
    V_ST = 24
    V_A = 32
    S_G3, S_KEEP, S_TQ = S_K, S_K + 1, S_K + 2
    HUGE = 0x80000000
    A.label("ROLE_R1")
    S_LAY = 80
    NKG = 4 if cfg.g3 & 16 else 6

    def row_of(A, dst, rl, rs, base):
        if not cfg.g3 & 16:
            return globals()["row_of"](A, dst, rl, rs, base)
        A(f"s_lshl_b32 {s(dst)}, {s(rl)}, 6")
        A(f"s_add_u32 {s(dst)}, {s(dst)}, {s(rs)}")
        A(f"s_mul_i32 {s(dst)}, {s(dst)}, 640")
        A(f"s_add_u32 {s(dst)}, {s(dst)}, {FWOP2}")
    if cfg.r2:
        A(f"s_lshr_b32 {s(S_LAY)}, {s(S_ROLE)}, 3")
        A(f"s_and_b32 {s(S_ROLE)}, {s(S_ROLE)}, 7")

    def item_of(A, i_reg, rl, rs, *a_):
        if not cfg.r2:
            return globals()["item_of"](A, i_reg, rl, rs, *a_)
        A(f"s_mov_b32 {s(rl)}, {s(S_LAY)}")
        A(f"s_sub_u32 {s(rs)}, {s(i_reg)}, 64")
    base_setup(A)
    dq, g_, c_ = V_T, V_T + 1, V_T + 2
    A(f"v_lshrrev_b32 {v(dq)}, 4, {v(V_LANE)}")
    A(f"v_bfe_u32 {v(g_)}, {v(V_LANE)}, 2, 2")
    A(f"v_and_b32 {v(c_)}, 3, {v(V_LANE)}")
    A(f"s_lshr_b32 {s(T)}, {s(S_ROLE)}, 2")
    A(f"s_lshl_b32 {s(S_TQ)}, {s(T)}, 10")
    A(f"s_and_b32 {s(T + 1)}, {s(S_ROLE)}, 3")
    A(f"s_lshl_b32 {s(T)}, {s(T + 1)}, 8")
    A(f"s_add_u32 {s(S_TQ)}, {s(S_TQ)}, {s(T)}")
    A(f"v_lshrrev_b32 {v(V_T + 3)}, 1, {v(dq)}")
    A(f"v_lshlrev_b32 {v(V_SO3)}, 11, {v(V_T + 3)}")
    A(f"v_add_u32 {v(V_T + 3)}, {s(T + 1)}, {v(g_)}")
    A(f"v_and_b32 {v(V_T + 3)}, 3, {v(V_T + 3)}")
    A(f"v_lshl_add_u32 {v(V_SO3)}, {v(V_T + 3)}, 6, {v(V_SO3)}")
    A(f"v_lshl_add_u32 {v(V_SO3)}, {v(c_)}, 4, {v(V_SO3)}")
    A(f"v_add_u32 {v(V_SO3)}, {s(S_TQ)}, {v(V_SO3)}")
    A(f"v_and_b32 {v(V_T + 3)}, 1, {v(dq)}")
    A(f"v_lshl_add_u32 {v(V_XO)}, {v(V_T + 3)}, 3, {v(V_SO3)}")
    A(f"v_lshl_add_u32 {v(V_SO)}, {v(V_T + 3)}, 14, {v(V_SO3)}")
    A(f"s_lshl_b32 {s(T)}, {s(S_ROLE)}, 2")
    A(f"v_add_u32 {v(V_T + 3)}, {s(T)}, {v(c_)}")
    A(f"v_mul_u32_u24 {v(V_XR)}, 1280, {v(V_T + 3)}")
    A(f"v_lshl_add_u32 {v(V_XR)}, {v(dq)}, 5, {v(V_XR)}")
    A(f"v_lshl_add_u32 {v(V_XR)}, {v(g_)}, 3, {v(V_XR)}")
    A(f"v_lshlrev_b32 {v(V_LRA)}, 5, {v(c_)}")
    A(f"s_lshl_b32 {s(T)}, {s(S_WAVE)}, 3")
    A(f"v_add_u32 {v(V_LWA)}, {s(T)}, {v(V_LRA)}")
    A(f"v_min_u32 {v(V_FO)}, {39 if cfg.g3 & 16 else 59}, {v(V_LANE)}")
    A(f"v_lshlrev_b32 {v(V_FO)}, 3, {v(V_FO)}")
    if cfg.g3 & 16:
        A(f"s_lshr_b32 {s(T)}, {s(S_ROLE)}, 2")
        A(f"s_mul_i32 {s(T)}, {s(T)}, 320")
        A(f"v_add_u32 {v(V_FO)}, {s(T)}, {v(V_FO)}")
    A(f"s_cmp_lt_u32 {s(S_WAVE)}, 2")
    A(f"s_cselect_b32 {s(S_G3)}, 0, {HUGE}")
    A(f"s_cselect_b32 {s(S_KEEP)}, 1.0, 0")
    init_barrier_arrive(A, V_T)

    lane_reduce, sums, norm, store_pair = row_helpers(A)
    if cfg.a2 == 2:
        numa_probe(A, cfg, S_LAY)
        init_barrier_wait(A, V_T, nwg, cfg)
    else:
        if cfg.r2:
            A(f"s_cmp_eq_u32 {s(S_LAY)}, 0")
            A("s_cbranch_scc1 R1_R0")
            init_barrier_wait(A, V_T, nwg, cfg)
            A("s_branch R1_GO")
            A.label("R1_R0")
        A(f"s_mov_b32 {s(T + 6)}, {s(S_IDX)}")
        gen_r0(A, cfg, nwg, T + 6, "R")
    A.label("R1_GO")
    st = Stamper(A, cfg, 84, 10)
    A(f"s_mov_b32 s83, {s(S_GID)}")
    st.init()

    SETS = (V_A, V_A + 80)
    V_XU = V_A + 160
    V_PM, V_PY, V_PZ = V_A + 172, V_A + 180, V_A + 188
    V_LR = V_A + 196
    V_FW = V_A + 204
    V_RDY = V_A + 206

    def r1_loads(base, rl, rs, A=A, TS=T + 3):
        A(f"s_mul_i32 {s(T + 6)}, {s(rs)}, {WOP_SEG}")
        A(f"s_mul_i32 {s(T)}, {s(S_ROLE)}, 10240")
        A(f"s_add_u32 {s(T + 6)}, {s(T + 6)}, {s(T)}")
        A(f"s_lshl_b32 {s(T)}, {s(S_WAVE)}, 10")
        A(f"s_add_u32 {s(T + 6)}, {s(T + 6)}, {s(T)}")
        A(f"s_add_u32 {s(T + 6)}, {s(T + 6)}, {WOP}")
        A(f"s_mul_i32 {s(T)}, {s(rs)}, {XSEG}")
        A(f"s_add_u32 {s(T)}, {s(T)}, {X0R}")
        A(f"s_mul_i32 {s(T + 1)}, {s(rs)}, {XSEGS}")
        A(f"s_add_u32 {s(T + 1)}, {s(T + 1)}, {XIN + 64 * XSEGS}")
        A(f"s_cmp_eq_u32 {s(rl)}, 0")
        A(f"s_cselect_b32 {s(T + 5)}, {s(T)}, {s(T + 1)}")
        A(f"s_lshl_b32 {s(T)}, {s(S_WAVE)}, 12")
        A(f"s_add_u32 {s(T + 5)}, {s(T + 5)}, {s(T)}")
        if not cfg.r1h:
            for G in range(3):
                A(f"s_add_u32 {s(TS)}, {s(T + 5)}, {G * 16384}")
                if G == 2:
                    A(f"s_add_u32 {s(TS)}, {s(TS)}, {s(S_G3)}")
                A(f"buffer_load_dwordx2 {v(base + 72 + 2 * G, 2)}, {v(V_XO)}, {WS}, {s(TS)} offen sc1")
            for kg in range(NKG):
                for G in range(3):
                    A(f"s_add_u32 {s(TS)}, {s(T + 6)}, {kg * 81920 + G * 4096}")
                    if G == 2:
                        A(f"s_add_u32 {s(TS)}, {s(TS)}, {s(S_G3)}")
                    A(f"buffer_load_dwordx4 {v(base + kg * 12 + G * 4, 4)}, {v(V_L16)}, {WS}, {s(TS)} offen sc1")
        else:
            l2, l3 = A.newlabel("g2"), A.newlabel("g3")
            A(f"s_cmp_lt_u32 {s(S_WAVE)}, 2")
            A(f"s_cbranch_scc1 {l2}")
            for i in range(4):
                A(f"v_mov_b32 {v(base + 8 + i)}, 0")
            A(f"s_branch {l3}")
            A.label(l2)
            A(f"s_add_u32 {s(TS)}, {s(T + 5)}, {2 * 16384}")
            A(f"buffer_load_dwordx2 {v(base + 76, 2)}, {v(V_XO)}, {WS}, {s(TS)} offen sc1")
            for kg in range(NKG):
                A(f"s_add_u32 {s(TS)}, {s(T + 6)}, {kg * 81920 + 2 * 4096}")
                A(f"buffer_load_dwordx4 {v(base + kg * 12 + 8, 4)}, {v(V_L16)}, {WS}, {s(TS)} offen sc1")
            A.label(l3)
            for G in range(2):
                A(f"s_add_u32 {s(TS)}, {s(T + 5)}, {G * 16384}")
                A(f"buffer_load_dwordx2 {v(base + 72 + 2 * G, 2)}, {v(V_XO)}, {WS}, {s(TS)} offen sc1")
            for kg in range(NKG):
                for G in range(2):
                    A(f"s_add_u32 {s(TS)}, {s(T + 6)}, {kg * 81920 + G * 4096}")
                    A(f"buffer_load_dwordx4 {v(base + kg * 12 + G * 4, 4)}, {v(V_L16)}, {WS}, {s(TS)} offen sc1")

    def pks(b):
        return [b, b + 1, b + 2, b + 3, b + 4, b + 5]

    S_O1, S_O3 = S_K + 3, S_K + 4

    S_YD = S_K + 5

    def emit_out(b, buf):
        A(f"v_mov_b32 {v(b + 6)}, {v(b + 4)}")
        A(f"v_mov_b32 {v(b + 7)}, {v(b + 5)}")
        A(f"s_add_u32 {s(T + 3)}, {s(S_O1)}, {buf}")
        if buf == YB:
            A(f"s_add_u32 {s(T + 3)}, {s(T + 3)}, {s(S_YD)}")
        store_pair(b, V_SO, T + 3)
        A(f"s_add_u32 {s(T + 3)}, {s(S_O3)}, {buf}")
        if buf == YB:
            A(f"s_add_u32 {s(T + 3)}, {s(T + 3)}, {s(S_YD)}")
        store_pair(b + 4, V_SO3, T + 3)

    def r1_full(cur, nxt, sx, other):
        V_PL, V_XX = cur, cur + 72
        X = [V_PL + i for i in range(12)]

        def wg_stats(area):
            sums(X, V_ST)
            lane_reduce(V_ST)
            A(f"ds_write_b64 {v(V_LWA)}, {v(V_ST, 2)} offset:{area}")
            A("s_waitcnt lgkmcnt(0)")
            A("s_barrier")
            A(f"ds_read_b128 {v(V_LR, 4)}, {v(V_LRA)} offset:{area}")
            A(f"ds_read_b128 {v(V_LR + 4, 4)}, {v(V_LRA)} offset:{area + 16}")

        def wg_stats_fin():
            A("s_waitcnt lgkmcnt(0)")
            A(f"v_pk_add_f32 {v(V_LR, 2)}, {v(V_LR, 2)}, {v(V_LR + 2, 2)}")
            A(f"v_pk_add_f32 {v(V_LR + 4, 2)}, {v(V_LR + 4, 2)}, {v(V_LR + 6, 2)}")
            A(f"v_pk_add_f32 {v(V_ST, 2)}, {v(V_LR, 2)}, {v(V_LR + 4, 2)}")
            finish_stats(A, V_ST, V_ST + 1, V_T)

        A.label("R1_" + sx)
        A(f"s_add_u32 {s(T + 6)}, {s(S_I)}, 1")
        A(f"s_min_u32 {s(T + 6)}, {s(T + 6)}, 127")
        item_of(A, T + 6, S_NL, S_NS, cfg.LAG + cfg.dlt, 0, T)
        row_of(A, T + 7, S_NL, S_NS, flag_row(F_WOP))
        if cfg.r1e != 1:
            A(f"buffer_load_dwordx2 {v(V_FW, 2)}, {v(V_FO)}, {WS}, {s(T + 7)} offen sc1")
        A(f"s_lshl_b32 {s(T)}, {s(S_L)}, 6")
        A(f"s_add_u32 {s(T)}, {s(T)}, {s(S_S)}")
        A(f"s_mul_i32 {s(S_O1)}, {s(T)}, {XSEG}")
        A(f"s_mul_i32 {s(S_YD)}, {s(T)}, {XSEGS - XSEG}")
        A(f"s_lshl_b32 {s(T)}, {s(S_WAVE)}, 12")
        A(f"s_add_u32 {s(S_O1)}, {s(S_O1)}, {s(T)}")
        A(f"s_add_u32 {s(S_O3)}, {s(S_O1)}, {8 * 4096}")
        A(f"s_add_u32 {s(S_O3)}, {s(S_O3)}, {s(S_G3)}")
        lp, lj = A.newlabel("r1p"), A.newlabel("r1j")

        def ladder(y):
            PG = 2 if cfg.r1h else 3
            A(f"s_waitcnt vmcnt({PG * NKG + y})")
            for i in range(6):
                A(f"v_lshlrev_b32 {v(V_XU + 2 * i)}, 16, {v(V_XX + i)}")
                A(f"v_and_b32 {v(V_XU + 2 * i + 1)}, 0xffff0000, {v(V_XX + i)}")
            for kg in range(1, NKG):
                A(f"s_waitcnt vmcnt({PG * (NKG - 1 - kg) + y})")
                for i in range(0, 12, 2):
                    A(f"v_pk_add_f32 {v(V_PL + i, 2)}, {v(V_PL + i, 2)}, {v(V_PL + kg * 12 + i, 2)}")
        A(f"s_cmp_eq_u32 {s(S_DEF)}, 0")
        A(f"s_cbranch_scc1 {lp}")
        ladder(0 if cfg.r1e == 1 else 1)
        A(f"s_branch {lj}")
        A.label(lp)
        ladder(cfg.r1e if cfg.r1e else 7)
        A.label(lj)
        st(4)
        for i in range(0, 12, 2):
            rnd2(A, V_T, X[i], X[i + 1])
        for i in range(0, 12, 2):
            A(f"v_pk_add_f32 {v(X[i], 2)}, {v(X[i], 2)}, {v(V_XU + i, 2)}")
        for i in range(0, 12, 2):
            rnd2(A, V_PM + i // 2, X[i], X[i + 1])
        wg_stats(128 if (cfg.zf and sx == "B") else 0)
        if not cfg.r1e:
            nof, nod = A.newlabel("nof"), A.newlabel("nod")
            st(5)
            A("s_waitcnt vmcnt(0)")
            st(6)
            A(f"s_cmp_eq_u32 {s(S_FADDR)}, {DUMMY}")
            A(f"s_cbranch_scc1 {nof}")
            flag_store(A, S_FADDR)
            A.label(nof)
            A(f"v_min_u32 {v(V_FW)}, {v(V_FW)}, {v(V_FW + 1)}")
            A(f"v_cmp_eq_u32 vcc, 0, {v(V_FW)}")
            A(f"s_mov_b32 {s(S_DEF)}, 1")
            A(f"s_cbranch_vccnz {nod}")
            A(f"s_mov_b32 {s(S_DEF)}, 0")
            r1_loads(nxt, S_NL, S_NS)
            A.label(nod)
        if cfg.r1e == 2:
            assert not cfg.r1h
            late = A.newlabel("late")
            A("s_waitcnt vmcnt(0)")
            A(f"v_min_u32 {v(V_FW)}, {v(V_FW)}, {v(V_FW + 1)}")
            A(f"v_cmp_eq_u32 vcc, 0, {v(V_FW)}")
            A(f"s_cbranch_vccnz {late}")
            E = Capture()
            lr, sm, nm_, sp = row_helpers(E)

            def fin(E=E):
                E("s_waitcnt lgkmcnt(0)")
                E(f"v_pk_add_f32 {v(V_LR, 2)}, {v(V_LR, 2)}, {v(V_LR + 2, 2)}")
                E(f"v_pk_add_f32 {v(V_LR + 4, 2)}, {v(V_LR + 4, 2)}, {v(V_LR + 6, 2)}")
                E(f"v_pk_add_f32 {v(V_ST, 2)}, {v(V_LR, 2)}, {v(V_LR + 4, 2)}")
                finish_stats(E, V_ST, V_ST + 1, V_T)

            def out(b, buf, E=E):
                E(f"v_mov_b32 {v(b + 6)}, {v(b + 4)}")
                E(f"v_mov_b32 {v(b + 7)}, {v(b + 5)}")
                E(f"s_add_u32 {s(T + 3)}, {s(S_O1)}, {buf}")
                sp(b, V_SO, T + 3)
                E(f"s_add_u32 {s(T + 3)}, {s(S_O3)}, {buf}")
                sp(b + 4, V_SO3, T + 3)
            fin()
            nm_(X, pks(V_PY), V_ST)
            for i in range(8, 12):
                E(f"v_mul_f32 {v(X[i])}, {s(S_KEEP)}, {v(X[i])}")
            sm(X, V_ST)
            lr(V_ST)
            E(f"ds_write_b64 {v(V_LWA)}, {v(V_ST, 2)} offset:128")
            E("s_waitcnt lgkmcnt(0)")
            E("s_barrier")
            E(f"ds_read_b128 {v(V_LR, 4)}, {v(V_LRA)} offset:128")
            E(f"ds_read_b128 {v(V_LR + 4, 4)}, {v(V_LRA)} offset:144")
            out(V_PM, XM)
            out(V_PY, YB)
            fin()
            nm_(X, pks(V_PZ), V_ST)
            out(V_PZ, ZB)
            Ld = Capture()
            r1_loads(nxt, S_NL, S_NS, Ld, T + 2)
            grp, cur_ = [], []
            for x in Ld.l:
                cur_.append(x)
                if x.startswith("buffer_load"):
                    grp.append(cur_)
                    cur_ = []
            if cfg.wgp2:
                rdy_set(A, V_RDY, 1, T)
            step = max(1, (len(E.l) * 2 // 3) // len(grp))
            for n, x in enumerate(E.l):
                if n % step == 0 and grp:
                    for y in grp.pop(0):
                        A(y)
                A(x)
            assert not grp
            flag_addr(A, S_FADDR, flag_row(F_R1))
            A(f"s_add_u32 {s(S_I)}, {s(S_I)}, 1")
            A(f"s_cmp_eq_u32 {s(S_I)}, 128")
            A("s_cbranch_scc1 R1_END")
            A(f"s_mov_b32 {s(S_L)}, {s(S_NL)}")
            A(f"s_mov_b32 {s(S_S)}, {s(S_NS)}")
            A(f"s_mov_b32 {s(S_DEF)}, 0")
            A("s_waitcnt vmcnt(0)")
            flag_store(A, S_FADDR)
            A(f"s_branch R1_{other}")
            A.label(late)
        if not cfg.zf:
            wg_stats_fin()
            norm(X, pks(V_PY), V_ST)
            for i in range(8, 12):
                A(f"v_mul_f32 {v(X[i])}, {s(S_KEEP)}, {v(X[i])}")
            wg_stats(128)
            if cfg.r1e:
                A(f"buffer_load_dwordx2 {v(V_FW, 2)}, {v(V_FO)}, {WS}, {s(T + 7)} offen sc1")
            emit_out(V_PM, XM)
            emit_out(V_PY, YB)
            wg_stats_fin()
            norm(X, pks(V_PZ), V_ST)
            emit_out(V_PZ, ZB)
        else:
            A(f"buffer_load_dwordx2 {v(V_FW, 2)}, {v(V_FO)}, {WS}, {s(T + 7)} offen sc1")
            emit_out(V_PM, XM)
            A("s_waitcnt lgkmcnt(0)")
            A(f"v_pk_add_f32 {v(V_LR, 2)}, {v(V_LR, 2)}, {v(V_LR + 2, 2)}")
            A(f"v_pk_add_f32 {v(V_LR + 4, 2)}, {v(V_LR + 4, 2)}, {v(V_LR + 6, 2)}")
            A(f"v_pk_add_f32 {v(V_ST, 2)}, {v(V_LR, 2)}, {v(V_LR + 4, 2)}")
            finish_stats(A, V_ST, V_ST + 1, V_T, keep=V_ST + 4)
            norm(X, pks(V_PY), V_ST)
            emit_out(V_PY, YB)
            A(f"v_sub_f32 {v(V_ST + 4)}, {v(V_ST + 4)}, {v(V_ST)}")
            A(f"v_mul_f32 {v(V_ST + 5)}, {v(V_ST + 5)}, {v(V_ST + 1)}")
            A(f"v_mul_f32 {v(V_ST + 4)}, {v(V_ST + 4)}, {v(V_ST + 1)}")
            A(f"v_mul_f32 {v(V_ST + 5)}, {v(V_ST + 5)}, {v(V_ST + 1)}")
            finish_stats(A, V_ST + 4, V_ST + 5, V_T, scaled=True)
            A(f"s_lshl_b32 {s(T)}, {s(S_WAVE)}, 12")
            A(f"s_sub_u32 {s(T + 3)}, {s(S_O1)}, {s(T)}")
            A(f"s_add_u32 {s(T + 3)}, {s(T + 3)}, {s(S_YD)}")
            A(f"s_lshl_b32 {s(T)}, {s(S_ROLE)}, 5")
            A(f"s_add_u32 {s(T + 3)}, {s(T + 3)}, {s(T)}")
            A(f"s_add_u32 {s(T + 3)}, {s(T + 3)}, {YB + 40960}")
            A(f"v_lshlrev_b32 {v(V_T)}, 3, {v(V_LANE)}")
            lz = A.newlabel("zs")
            A(f"s_cmp_lg_u32 {s(S_WAVE)}, 3")
            A(f"s_cbranch_scc1 {lz}")
            A("s_mov_b64 exec, 15")
            A(f"buffer_store_dwordx2 {v(V_ST + 4, 2)}, {v(V_T)}, {WS}, {s(T + 3)} offen sc1")
            A("s_mov_b64 exec, -1")
            A.label(lz)
        flag_addr(A, S_FADDR, flag_row(F_R1))
        st(7)
        A(f"s_add_u32 {s(S_I)}, {s(S_I)}, 1")
        A(f"s_cmp_eq_u32 {s(S_I)}, 128")
        A("s_cbranch_scc1 R1_END")
        A(f"s_mov_b32 {s(S_L)}, {s(S_NL)}")
        A(f"s_mov_b32 {s(S_S)}, {s(S_NS)}")
        if cfg.r1e:
            nrdy = A.newlabel("nr")
            A(f"s_waitcnt vmcnt({4 if cfg.zf else 6})")
            A(f"v_min_u32 {v(V_FW)}, {v(V_FW)}, {v(V_FW + 1)}")
            A(f"v_cmp_eq_u32 vcc, 0, {v(V_FW)}")
            A(f"s_cbranch_vccnz {nrdy}")
            if cfg.wgp2:
                rdy_set(A, V_RDY, 0, T)
            r1_loads(nxt, S_L, S_S)
            A(f"s_waitcnt vmcnt({2 + 2 * NKG if cfg.r1h else 3 + 3 * NKG})")
            flag_store(A, S_FADDR)
            A(f"s_mov_b32 {s(S_DEF)}, 0")
            A(f"s_branch R1_{other}")
            A.label(nrdy)
            A(f"s_mov_b32 {s(S_DEF)}, 1")
        else:
            A(f"s_cmp_eq_u32 {s(S_DEF)}, 0")
            A(f"s_cbranch_scc1 R1_{other}")
        A("s_waitcnt vmcnt(0)")
        flag_store(A, S_FADDR)
        A(f"s_mov_b32 {s(S_FADDR)}, {DUMMY}")
        st(8)
        row_of(A, T + 7, S_L, S_S, flag_row(F_WOP))
        if cfg.wgp2:
            wg_wait(A, cfg, V_RDY, T + 7, T, vv=V_FW, wide=True)
        else:
            flag_block(A, T + 7, vv=V_FW, wide=True, sleep=1)
        st(9)
        r1_loads(nxt, S_L, S_S)
        A(f"s_branch R1_{other}")

    A(f"s_mov_b32 {s(S_I)}, {64 if cfg.r2 else 0}")
    A(f"s_mov_b32 {s(S_DEF)}, 1")
    if cfg.wgp2:
        rdy_init(A, cfg, V_RDY, 1024)
    A(f"s_mov_b32 {s(S_FADDR)}, {DUMMY}")
    if cfg.r1h:
        for b_ in SETS:
            for kg in range(NKG):
                for i in range(4):
                    A(f"v_mov_b32 {v(b_ + kg * 12 + 8 + i)}, 0")
            A(f"v_mov_b32 {v(b_ + 76)}, 0")
            A(f"v_mov_b32 {v(b_ + 77)}, 0")
    item_of(A, S_I, S_L, S_S, cfg.LAG + cfg.dlt, 0, T)
    row_of(A, T + 7, S_L, S_S, flag_row(F_WOP))
    flag_block(A, T + 7, vv=V_FW, wide=True, sleep=1)
    r1_loads(SETS[0], S_L, S_S)
    r1_full(SETS[0], SETS[1], "A", "B")
    r1_full(SETS[1], SETS[0], "B", "A")
    A.label("R1_END")
    A("s_waitcnt vmcnt(0)")
    flag_store(A, S_FADDR)
    st.dump(83, T, V_T)
    A("s_endpgm")
```

```python
from stations32 import *
import stations32 as S32
from chain2 import Lds, Task, sched, groups, GAP

HUGE = 0x80000000
S_U, S_UL, S_US, S_UF, S_UN = 32, 33, 34, 35, 36
S_GO, S_NGO, S_EGO, S_FA1 = 37, 38, 39, 59
S_FA2 = S_FADDR
S_BM, S_IM = 76, 78
F_D4 = F_WOP
NH, NX, NG = 8, 8, 4


def lines(fn_owner, fn):
    c = fn_owner.capture(fn)
    out = []
    for x in c.l:
        out.append(x)
    return out


def lstore(A, text):
    l1, l2 = A.newlabel("ls"), A.newlabel("ls")
    A(f"s_cmp_lg_u32 {s(S_MODE)}, 0")
    A.nf(f"s_cbranch_scc0 {l1}")
    for x in text:
        A(x + " sc1")
    A.nf(f"s_branch {l2}")
    A.label_nf(l1)
    for x in text:
        A(x)
    A.label_nf(l2)


def loc(A, local, insts):
    if local:
        lstore(A, insts)
    else:
        for x in insts:
            A(x + " sc1" if x.startswith("buffer_store") else x)


def flag_put(A, addr, local=False):
    if TSFLAG[0]:
        A(f"s_memrealtime {s(98, 2)}")
        A("s_waitcnt lgkmcnt(0)")
        A(f"s_or_b32 s98, s98, 1")
        A(f"v_mov_b32 {v(V_ONE)}, s98")
    A("s_mov_b64 exec, 1")
    loc(A, local, [f"buffer_store_dword {v(V_ONE)}, {v(V_L16)}, {WS}, {s(addr)} offen"])
    A("s_mov_b64 exec, -1")


class G3:
    R, D = 8, 7
    local_out = False
    V_IA = 16
    V_OA = 20
    V_RA = 22
    V_FR = 24
    V_ACC = 56
    kd0, kdstep = 1, 2
    kf1 = 10
    ksmp = 0.5
    psleep = 4

    def acc(self, tl):
        return self.V_ACC + (self.aset * self.NT + tl) * 16

    def expose(self):
        return False

    def decode(self, A):
        A(f"s_min_u32 {s(T + 2)}, {s(S_U)}, 127")
        sv = self.A
        self.A = A
        self.item(T + 2, S_UL, S_US)
        self.flag_soff(S_UF, S_UL, S_US)
        self.A = sv

    def w0(self, fn):
        A = self.A
        lab = A.newlabel("w0")
        A(f"s_cmp_lg_u32 {s(S_WAVE)}, 0")
        A.nf(f"s_cbranch_scc1 {lab}")
        fn()
        A.label_nf(lab)

    def sample(self):
        self.w0(lambda: self.A(f"buffer_load_dword {v(V_FV)}, {v(V_FO)}, {WS}, {s(S_UF)} offen sc1"))

    def decide(self):
        A = self.A

        def f():
            A(f"v_cmp_eq_u32 vcc, 0, {v(V_FV)}")
            A(f"s_cmp_eq_u64 vcc, 0")
            A(f"s_cselect_b32 {s(S_UN)}, 0, {HUGE}")
            A(f"s_cmp_lt_u32 {s(S_U)}, 128")
            A(f"s_cselect_b32 {s(S_UN)}, {s(S_UN)}, {HUGE}")
            A(f"v_mov_b32 {v(self.V_RA + 1)}, {s(S_UN)}")
            A(f"ds_write_b32 {v(self.V_RA)}, {v(self.V_RA + 1)}")
        self.w0(f)

    def rd(self, k, b):
        return f"ds_read_b128 {v(self.V_FR + (k % self.R) * 4, 4)}, {v(self.V_IA + 2 * b + (k & 1))} offset:{(k >> 1) * 2048}"

    def dma_lines(self, guard):
        L = lines(self, lambda: self.dma(S_UL, S_US, T + 6 if guard else S_BUF))
        if guard:
            out = [f"s_sub_u32 {s(T + 6)}, {self.bufsz}, {s(S_BUF)}"]
            done = False
            for x in L:
                out.append(x)
                if not done and x.startswith(f"s_mul_i32 {s(T)}, {s(T)}") or (not done and x.startswith(f"s_mul_i32 {s(T)}, {s(S_US)}")):
                    out.append(f"s_add_u32 {s(T)}, {s(T)}, {s(S_GO)}")
                    done = True
            assert done
            L = out
        return L

    def gen(self):
        A, cfg = self.A, self.cfg
        nm = self.name
        A.label("ROLE_" + nm)
        base_setup(A)
        for k in range(2):
            chunk_addr(A, self.V_IA + k, k, self.pin)
            A(f"v_add_u32 {v(self.V_IA + 2 + k)}, {self.bufsz}, {v(self.V_IA + k)}")
            chunk_addr(A, self.V_OA + k, k, False)
        self.setup()
        self.init_stores()
        init_barrier_arrive(A, V_T)
        WL = WLoader(A, V_T, T + 3)
        self.weights(WL)
        WL.emit(V_LANE)
        self.post_weights()
        A("s_barrier")
        init_barrier_wait(A, V_T, self.nwg, cfg)
        A(f"s_mov_b32 {s(S_I)}, 0")
        A(f"s_mov_b32 {s(S_U)}, 0")
        A(f"s_mov_b32 {s(S_BUF)}, 0")
        A(f"s_mov_b32 {s(S_FA1)}, {HUGE}")
        A(f"s_mov_b32 {s(S_FA2)}, {HUGE}")
        A(f"s_mov_b32 {s(S_EGO)}, {HUGE}")
        A(f"v_mov_b32 {v(self.V_RA)}, {2 * self.bufsz + 2048}")
        self.post_barrier()
        st = self.st = Stamper(A, cfg, 84, 8)
        A(f"s_mov_b32 s83, {s(S_GID)}")
        self.decode(A)
        st.init()
        nb = 2 if self.pipe else 1
        for b in range(nb):
            self.body(b, nb)
        A.label(nm + "_END")
        st.dump(83, T, V_T)
        A("s_endpgm")

    def post_barrier(self): pass
    def tail_tasks(self, L, kw): return []

    def swap_bufs(self):
        A = self.A
        A(f"s_sub_u32 {s(S_BUF)}, {self.bufsz}, {s(S_BUF)}")
        if not self.pipe:
            for k in range(2):
                A(f"v_swap_b32 {v(self.V_IA + k)}, {v(self.V_IA + 2 + k)}")

    def body(self, b, nb):
        A, cfg, st = self.A, self.cfg, self.st
        nm, NT, R, D = self.name, self.NT, self.R, self.D
        NS = 2 * self.nk
        o = (b + 1) % nb
        cur, nxt = (b, 1 - b) if self.pipe else (0, 1)
        A.label(f"{nm}_COLD{b}")
        lab = A.newlabel("cp")
        A(f"s_cmp_lg_u32 {s(S_WAVE)}, 0")
        A(f"s_cbranch_scc1 {lab}")
        sv = cfg.fsl
        cfg.fsl = self.psleep
        flag_block(A, S_UF)
        cfg.fsl = sv
        A.label(lab)
        A("s_barrier")
        st(6)
        for x in self.dma_lines(False):
            A(x)
        A.label(f"{nm}_CD{b}")
        A(f"s_mov_b32 {s(S_L)}, {s(S_UL)}")
        A(f"s_mov_b32 {s(S_S)}, {s(S_US)}")
        A(f"s_add_u32 {s(S_U)}, {s(S_U)}, 1")
        self.decode(A)
        self.sample()
        A("s_waitcnt vmcnt(0)")
        flag_put(A, S_FA1, self.local_out)
        A(f"s_mov_b32 {s(S_FA1)}, {HUGE}")
        self.decide()
        A("s_waitcnt lgkmcnt(0)")
        A("s_barrier")
        A(f"ds_read_b32 {v(self.V_RA + 1)}, {v(self.V_RA)}")
        for k in range(D):
            A(self.rd(k, cur))
        A(f"s_waitcnt lgkmcnt({D})")
        A(f"v_readfirstlane_b32 {s(S_GO)}, {v(self.V_RA + 1)}")
        st(7)
        A.label(f"{nm}_B{b}")
        L = Lds(A)
        L.q = [("F", k) for k in range(D)]
        self.aset = b if self.pipe else 0
        seq, rdt = [], []
        kbar = (NS - D) * NT
        for k in range(NS):
            for tl in range(NT):
                c = "0" if k == 0 else v(self.acc(tl), 16)
                fr = v(self.V_FR + (k % R) * 4, 4)
                w = self.wtxt(tl, k)
                x, y = (fr, w) if self.swap else (w, fr)
                need = [("F", k + 1)] if (tl == 0 and k % 2 == 0) else []
                seq.append((f"{MF} {v(self.acc(tl), 16)}, {x}, {y}, {c}", need))
            kk = k + D
            rdt.append(Task(k * NT, [(("F", kk), self.rd(kk % NS, cur if kk < NS else nxt))]))
        nvm = [0]

        def vm(x):
            def f():
                A(x)
                nvm[0] += 1
            return (cfg.vmc, f)

        def wrap(ls):
            out = []
            for x in groups([y for z in ls for y in z.split("\n")]):
                if x.startswith("buffer_"):
                    out.append(vm(x))
                elif x.startswith("ds_"):
                    out.append(("x", x))
                elif x.startswith("@wait"):
                    out.append((4, lambda: L.wait("x")))
                else:
                    out.append(x)
            return out
        early = wrap(lines(self, self.early))
        dl = wrap(self.dma_lines(True))
        tdma = Task(self.kd0, early + dl)
        tdma.vstep = self.kdstep
        dec = Capture()
        dec(f"s_mov_b32 {s(S_NL)}, {s(S_UL)}")
        dec(f"s_mov_b32 {s(S_NS)}, {s(S_US)}")
        dec(f"s_cmp_eq_u32 {s(S_GO)}, 0")
        dec(f"s_addc_u32 {s(S_U)}, {s(S_U)}, 0")
        self.decode(dec)
        tdma.items += wrap(dec.l)
        ksm = int(self.ksmp * NS * NT)

        def smp():
            assert not tdma.items
            self.sample()
        tsm = Task(ksm, [(28, smp)])
        tsm.after = tdma

        def f1():
            A(f"s_waitcnt vmcnt({nvm[0]})")
            flag_put(A, S_FA1, self.local_out)
            A(f"s_mov_b32 {s(S_FA1)}, {HUGE}")
            nvm[0] += 1
        tasks = [Task(self.kf1, [(28, f1)])]
        tepi = []
        if self.pipe:
            self.aset = 1 - b
            tepi += wrap(self.epi_lines(True))
            self.aset = b
        tpre = Task(0, wrap(lines(self, self.pre_mfma)), step=1)
        tasks.append(tpre)

        def wx():
            assert not tpre.items
            L.wait("x")
        tepi += [(4, wx)] + wrap(lines(self, self.mid)) + wrap(lines(self, self.save_item))
        tep = Task(2 if self.pipe else 12, tepi)
        kw = kbar - (3 if NT == 2 else 4) * NT

        def wpoint():
            assert not tdma.items and not tsm.items, (nm, len(tdma.items))
            assert not any(isinstance(i, tuple) and i[0] == cfg.vmc for i in tep.items), nm
            A("s_waitcnt vmcnt(0)")
            self.decide()

        def bar():
            assert not any(isinstance(i, tuple) for i in tep.items), (nm, len(tep.items))
            A(f"s_waitcnt lgkmcnt({min(len(L.q), 2)})")
            L.q = L.q[-2:]
            A("s_barrier")
            L.op("dw", f"ds_read_b32 {v(self.V_RA + 1)}, {v(self.V_RA)}")

        def f2():
            flag_put(A, S_FA2, self.local_out)
            A(f"s_mov_b32 {s(S_FA2)}, {HUGE}")

        def rdw():
            L.wait("dw")
            A(f"v_readfirstlane_b32 {s(S_NGO)}, {v(self.V_RA + 1)}")
        tail = []
        if self.pipe:
            tail.append(Task(kw, [(20, f2)]))
        tail.append(Task(kbar + 3 * NT, [(8, rdw)]))
        tail += self.tail_tasks(wrap, kw)
        sched(A, L, seq, rdt + tasks + [tdma, tsm, tep] + tail, pre={kw: wpoint, kbar: bar}, budget=24, nvalu=5)
        st(3)
        nf_, now = A.newlabel("nf"), A.newlabel("now")
        A(f"s_cmp_lg_u32 {s(S_GO)}, 0")
        A.nf(f"s_cbranch_scc1 {nf_}")

        def step():
            A(f"s_add_u32 {s(S_I)}, {s(S_I)}, 1")
            self.swap_bufs()
            A(f"s_mov_b32 {s(S_L)}, {s(S_NL)}")
            A(f"s_mov_b32 {s(S_S)}, {s(S_NS)}")
            A(f"s_mov_b32 {s(S_GO)}, {s(S_NGO)}")
        if self.pipe:
            if self.expose():
                A.nf(f"s_cbranch_scc1 {now}")
            A(f"s_mov_b32 {s(S_EGO)}, 0")
            step()
            A.nf(f"s_branch {nm}_B{o}")
        A.label(now)
        ntail = A.newlabel("nt")
        A(f"s_mov_b32 {s(S_DEF)}, 0")
        A(f"s_branch {ntail}")
        A.label(nf_)
        A(f"s_mov_b32 {s(S_DEF)}, 2")
        A(f"s_cmp_lg_u32 {s(S_NGO)}, 0")
        A(f"s_cbranch_scc1 {ntail}")
        A(f"s_mov_b32 {s(S_DEF)}, 1")
        A(f"s_mov_b32 {s(S_GO)}, 0")
        for x in self.dma_lines(True):
            A(x)
        A.label(ntail)
        if self.pipe:
            A(f"s_mov_b32 {s(S_EGO)}, 0")
        self.emit_epi()
        A(f"s_mov_b32 {s(S_FA1)}, {s(S_FA2)}")
        A(f"s_mov_b32 {s(S_FA2)}, {HUGE}")
        A(f"s_mov_b32 {s(S_EGO)}, {HUGE}")
        st(4)
        step()
        A(f"s_cmp_eq_u32 {s(S_DEF)}, 0")
        A(f"s_cbranch_scc1 {nm}_B{o}")
        A(f"s_cmp_eq_u32 {s(S_DEF)}, 1")
        A(f"s_cbranch_scc1 {nm}_CD{o}")
        A("s_waitcnt vmcnt(0)")
        flag_put(A, S_FA1, self.local_out)
        A(f"s_mov_b32 {s(S_FA1)}, {HUGE}")
        st(5)
        A(f"s_cmp_eq_u32 {s(S_I)}, 128")
        A(f"s_cbranch_scc1 {nm}_END")
        A(f"s_branch {nm}_COLD{o}")

    def epi_lines(self, guarded):
        PRE_FLAG[0] = True
        cap = self.capture(self.epilogue)
        PRE_FLAG[0] = None
        return cap.l

    def emit_epi(self):
        A = self.A
        run = []
        for x in self.epi_lines(False):
            if self.local_out and x.startswith("buffer_store"):
                run.append(x.replace(" sc1", ""))
                continue
            if run:
                lstore(A, run)
                run = []
            A(x)
        if run:
            lstore(A, run)


class QKV3(G3, QKV32):
    V_CS = 120
    V_SV = 124
    V_SR = 156
    V_ST = 176
    V_PK = 180
    V_SA0, V_SA, V_SW, V_SRD = 188, 189, 190, 191
    V_FO0, V_FO1, V_DC = 12, 13, 14
    kd0, kdstep, kf1, ksmp = 1, 3, 30, 0.55
    psleep = 7
    D = 5

    def __init__(self, A, cfg, nwg, vtype):
        QKV32.__init__(self, A, cfg, nwg, vtype)
        self.psleep = cfg.wgp - 1
        self.kdstep, self.kf1, self.ksmp = cfg.qds, cfg.qf1, cfg.qsm / 100.0

    def expose(self):
        A, cfg = self.A, self.cfg
        A(f"s_cmp_lt_u32 {s(S_I)}, 2")
        if cfg.qx:
            A(f"s_cselect_b32 {s(T)}, 1, {s(S_L)}")
            if cfg.qx == 2 and not self.swap:
                A(f"s_andn2_b32 {s(T)}, {s(T)}, {s(self.S_TYPE)}")
            A(f"s_cmp_lg_u32 {s(T)}, 0")
        return True

    def save_item(self):
        A = self.A
        A(f"s_mov_b32 {s(self.S_EL)}, {s(S_L)}")
        A(f"s_mov_b32 {s(self.S_ES)}, {s(S_S)}")
        if self.swap:
            A(f"ds_write_b64 {v(self.V_SW)}, {v(self.V_ST, 2)}")
            for i in range(4):
                for hf in range(2):
                    A(f"ds_read_b128 {v(self.V_SV + i * 8 + hf * 4, 4)}, {v(self.V_SRD)} offset:{i * 64 + hf * 16}")

    def post_barrier(self):
        A = self.A
        A(f"s_mov_b32 {s(self.S_EL)}, 0")
        A(f"s_mov_b32 {s(self.S_ES)}, 0")

    def epi_lines(self, guarded):
        L = G3.epi_lines(self, guarded)
        out = []
        for x in L:
            out.append(x)
            if x.startswith(f"s_mul_i32 {s(self.E)},"):
                out.append(f"s_add_u32 {s(self.E)}, {s(self.E)}, {s(S_EGO)}")
        out.append(f"s_add_u32 {s(S_FADDR)}, {s(S_FADDR)}, {s(S_EGO)}")
        return out


class QKV4(QKV3):
    S_N0, S_N1, S_W0, S_EX, S_UF0, S_CND = 78, 79, 40, 80, 41, 42
    V_FO0, V_FO1, V_FV0, V_PW, V_DC = 4, 2, 14, 13, 12

    def post_barrier(self):
        QKV3.post_barrier(self)
        A = self.A
        A(f"s_mov_b32 {s(self.S_N0)}, 0")
        A(f"s_mov_b32 {s(self.S_N1)}, 0")
        A(f"s_cmp_eq_u32 {s(S_WAVE)}, 0")
        A(f"s_cselect_b32 {s(self.S_W0)}, {flag_row(F_XIN)}, {HUGE}")
        A(f"s_lshl_b32 {s(T)}, {s(S_WAVE)}, 3")
        A(f"v_add_u32 {v(self.V_PW)}, {s(T)}, {v(self.V_RA)}")

    def decode(self, A):
        A(f"s_lshl_b32 {s(self.S_UF0)}, {s(self.S_N0)}, 9")
        A(f"s_add_u32 {s(self.S_UF0)}, {s(self.S_UF0)}, {s(self.S_W0)}")
        A(f"s_lshl_b32 {s(S_UF)}, {s(self.S_N1)}, 9")
        A(f"s_add_u32 {s(S_UF)}, {s(S_UF)}, {s(self.S_W0)}")
        A(f"s_add_u32 {s(S_UF)}, {s(S_UF)}, {64 * 512}")

    def smp(self):
        return [f"buffer_load_dword {v(V_FV)}, {v(self.V_FO1)}, {WS}, {s(S_UF)} offen sc1",
                f"buffer_load_dword {v(self.V_FV0)}, {v(self.V_FO0)}, {WS}, {s(self.S_UF0)} offen sc1"]

    def dec(self):
        c = self.cfg
        return [f"v_cmp_eq_u32 vcc, 0, {v(self.V_FV0)}", f"s_cmp_eq_u64 vcc, 0\ns_cselect_b32 {s(S_UN)}, 0, {HUGE}",
                f"v_cmp_eq_u32 vcc, 0, {v(V_FV)}",
                f"s_cmp_lt_u32 {s(self.S_N0)}, 64\ns_cselect_b32 {s(S_UN)}, {s(S_UN)}, {HUGE}",
                f"s_cmp_eq_u64 vcc, 0\ns_cselect_b32 {s(T)}, 1, {s(S_UN)}",
                f"s_cmp_lt_u32 {s(self.S_N1)}, 64\ns_cselect_b32 {s(T)}, {s(T)}, {s(S_UN)}",
                f"s_sub_u32 {s(T + 1)}, {s(self.S_N0)}, {s(self.S_N1)}",
                f"s_or_b32 {s(T + 1)}, {s(T + 1)}, {s(S_UN)}",
                f"s_cmp_lt_u32 {s(T + 1)}, {c.LAG + c.qld}\ns_cselect_b32 {s(S_UN)}, 0, {s(T)}",
                f"v_mov_b32 {v(self.V_RA + 1)}, {s(S_UN)}"]

    def put(self):
        return f"ds_write_b32 {v(self.V_PW)}, {v(self.V_RA + 1)}"

    def take(self):
        return [f"s_and_b32 {s(S_GO)}, {s(S_NGO)}, {HUGE}", f"s_and_b32 {s(S_UL)}, {s(S_NGO)}, 1\ns_cselect_b32 {s(S_US)}, {s(self.S_N1)}, {s(self.S_N0)}"]

    def count(self):
        return [f"s_mov_b32 {s(S_NL)}, {s(S_UL)}", f"s_mov_b32 {s(S_NS)}, {s(S_US)}", f"s_add_u32 {s(self.S_N1)}, {s(self.S_N1)}, {s(S_UL)}",
                f"s_or_b32 {s(T)}, {s(S_GO)}, {s(S_UL)}", f"s_cmp_eq_u32 {s(T)}, 0\ns_addc_u32 {s(self.S_N0)}, {s(self.S_N0)}, 0"]

    def body(self, b, nb):
        if b == 0:
            self.A(f"s_branch {self.name}_COLD0")
            self.main(0)
            self.main(1)
        self.side(b)

    def main(self, b):
        A, cfg, st = self.A, self.cfg, self.st
        nm, NT, R, D = self.name, self.NT, self.R, self.D
        NS = 2 * self.nk
        A.label_nf(f"{nm}_B{b}")
        L = Lds(A)
        L.q = [("F", k) for k in range(D)]
        V = Vm(A)
        self.aset = b
        seq, rdt = [], []
        kbar = (NS - D) * NT
        for k in range(NS):
            for tl in range(NT):
                c = "0" if k == 0 else v(self.acc(tl), 16)
                fr = v(self.V_FR + (k % R) * 4, 4)
                w = self.wtxt(tl, k)
                x, y = (fr, w) if self.swap else (w, fr)
                need = [("F", k + 1)] if (tl == 0 and k % 2 == 0) else []
                seq.append((f"{MF} {v(self.acc(tl), 16)}, {x}, {y}, {c}", need))
            kk = k + D
            rdt.append(Task(k * NT, [(("F", kk), self.rd(kk % NS, b if kk < NS else 1 - b))]))

        def wrap(ls, tag="o"):
            out = []
            for x in ls:
                for y in (groups(x.split("\n")) if "exec" not in x else [x]):
                    if (cfg.xq & 1 and y.startswith("buffer_store")) or (cfg.xq & 2 and y.endswith(" lds")) or (cfg.xq & 4 and tag == "st" and y.startswith("v_")) \
                            or (cfg.xq & 8 and tag == "mid" and not y.startswith("s_")):
                        continue
                    if y.startswith("buffer_"):
                        out.append((cfg.vmc, lambda y=y: V.op(tag, y)))
                    elif y.startswith("ds_"):
                        out.append(("x", y))
                    else:
                        out.append(y)
            return out
        dc = Capture()
        self.decode(dc)
        tdma = Task(self.kd0, wrap(groups(self.dma_lines(True))) + wrap(self.count()) + dc.l)
        tdma.vstep = self.kdstep
        tsm = Task(int(self.ksmp * NS * NT), wrap(self.smp()))
        tsm.after = tdma

        def f1():
            A(f"s_waitcnt vmcnt({len(V.q)})")
            flag_put(A, S_FA1)
            A(f"s_mov_b32 {s(S_FA1)}, {HUGE}")
            V.q.append("f")
        self.aset = 1 - b
        te = Task(3, wrap(self.epi_lines(True), "st"))
        self.aset = b
        tpre = Task(0, wrap(lines(self, self.pre_mfma), "mid"), step=1)

        def wx():
            assert not tpre.items
            L.wait("x")
        tm = Task(0, [(4, wx)] + wrap(lines(self, self.mid), "mid") + wrap(lines(self, self.save_item), "mid"))
        tm.after = te

        def f2():
            V.wait("st")
            flag_put(A, S_FA2)
            A(f"s_mov_b32 {s(S_FA2)}, {HUGE}")
            V.q.append("f")
        tf2 = Task(cfg.qf2, [(28, f2)])
        tf2.after = te
        kw = kbar - cfg.qkw

        def wp():
            assert not tdma.items and not tsm.items
            V.wait("o")

        def putw():
            A(self.put())
            L.q.append("pw")
        tdec = Task(kw, [(4, wp)] + wrap(self.dec()) + [(9, putw)])

        def bar():
            assert not tdec.items and not tm.items and not tf2.items, (len(tdec.items), len(tm.items))
            L.wait("pw")
            A("s_barrier")
            L.op("dw", f"ds_read_b32 {v(self.V_RA + 1)}, {v(self.V_RA)}")

        def rdw():
            L.wait("dw")
            A(f"v_readfirstlane_b32 {s(S_NGO)}, {v(self.V_RA + 1)}")
        fin = [f"s_cmp_lt_u32 {s(S_I)}, 2\ns_cselect_b32 {s(self.S_CND)}, 1, 0", f"s_or_b32 {s(self.S_CND)}, {s(self.S_CND)}, {s(S_GO)}",
               f"s_mov_b32 {s(S_EGO)}, 0", f"s_add_u32 {s(S_I)}, {s(S_I)}, 1", f"s_sub_u32 {s(S_BUF)}, {self.bufsz}, {s(S_BUF)}",
               f"s_mov_b32 {s(S_L)}, {s(S_NL)}", f"s_mov_b32 {s(S_S)}, {s(S_NS)}"]
        tfin = Task(kbar, fin)
        trd = Task(kbar + 4, [(8, rdw)] + self.take() + [f"s_cmp_lg_u32 {s(self.S_CND)}, 0"])
        trd.after = tfin
        sched(A, L, seq, rdt + [Task(self.kf1, [(28, f1)]), tdec, tf2, tpre, tdma, tsm, te, tm, tfin, trd], pre={kbar: bar}, budget=24, nvalu=5)
        if cfg.timing == 2:
            st(3)
            A(f"s_cmp_lg_u32 {s(self.S_CND)}, 0")
        if b == 0:
            A.nf(f"s_cbranch_scc1 {nm}_S0")
        else:
            A.nf(f"s_cbranch_scc0 {nm}_B0")
            A.nf(f"s_branch {nm}_S1")

    def side(self, b):
        A, cfg, st = self.A, self.cfg, self.st
        nm, D = self.name, self.D
        o = 1 - b
        A.label(f"{nm}_S{b}")
        ntail = A.newlabel("nt")
        A(f"s_mov_b32 {s(S_DEF)}, 0")
        A(f"s_cmp_lt_u32 {s(self.S_CND)}, 2")
        A(f"s_cbranch_scc1 {ntail}")
        A(f"s_mov_b32 {s(S_DEF)}, 2")
        A(f"s_cmp_lg_u32 {s(S_GO)}, 0")
        A(f"s_cbranch_scc1 {ntail}")
        A(f"s_mov_b32 {s(S_DEF)}, 1")
        for x in self.dma_lines(False):
            A(x)
        A.label(ntail)
        A("s_nop 4")
        self.aset = b
        self.emit_epi()
        A(f"s_mov_b32 {s(S_FA1)}, {s(S_FA2)}")
        A(f"s_mov_b32 {s(S_FA2)}, {HUGE}")
        A(f"s_mov_b32 {s(S_EGO)}, {HUGE}")
        st(4)
        A(f"s_cmp_eq_u32 {s(S_DEF)}, 0")
        A(f"s_cbranch_scc1 {nm}_B{o}")
        A(f"s_cmp_eq_u32 {s(S_DEF)}, 1")
        A(f"s_cbranch_scc1 {nm}_CD{o}")
        A("s_waitcnt vmcnt(0)")
        flag_put(A, S_FA1)
        A(f"s_mov_b32 {s(S_FA1)}, {HUGE}")
        st(5)
        A(f"s_cmp_eq_u32 {s(S_I)}, 128")
        A(f"s_cbranch_scc1 {nm}_END")
        A(f"s_branch {nm}_COLD{o}")
        A.label(f"{nm}_COLD{b}")
        lab, top = A.newlabel("cp"), A.newlabel("ct")
        A(f"s_cmp_lg_u32 {s(S_WAVE)}, 0")
        A(f"s_cbranch_scc1 {lab}")
        A.label(top)
        for x in self.smp():
            A(x)
        A("s_waitcnt vmcnt(0)")
        for x in self.dec():
            A(x)
        A(f"s_cmp_lt_u32 {s(S_UN)}, 2")
        A(f"s_cbranch_scc1 {top}x")
        A(f"s_sleep {self.psleep}")
        A(f"s_sub_u32 {s(S_SPIN)}, {s(S_SPIN)}, 1")
        A("s_cbranch_scc1 ABORT")
        A(f"s_branch {top}")
        A.label(top + "x")
        A(f"ds_write_b32 {v(self.V_RA)}, {v(self.V_RA + 1)} offset:4")
        A("s_waitcnt lgkmcnt(0)")
        A.label(lab)
        A("s_barrier")
        A(f"ds_read_b32 {v(self.V_RA + 1)}, {v(self.V_RA)} offset:4")
        A("s_waitcnt lgkmcnt(0)")
        A(f"v_readfirstlane_b32 {s(S_NGO)}, {v(self.V_RA + 1)}")
        A(f"s_and_b32 {s(S_NGO)}, {s(S_NGO)}, 1")
        for x in self.take():
            A(x)
        st(6)
        for x in self.dma_lines(False):
            A(x)
        A.label(f"{nm}_CD{b}")
        A(f"s_mov_b32 {s(S_L)}, {s(S_UL)}")
        A(f"s_mov_b32 {s(S_S)}, {s(S_US)}")
        for x in self.count():
            A(x)
        self.decode(A)
        for x in self.smp():
            A(x)
        A("s_waitcnt vmcnt(0)")
        flag_put(A, S_FA1)
        A(f"s_mov_b32 {s(S_FA1)}, {HUGE}")
        for x in self.dec():
            A(x)
        A(self.put())
        A("s_waitcnt lgkmcnt(0)")
        A("s_barrier")
        A(f"ds_read_b32 {v(self.V_RA + 1)}, {v(self.V_RA)}")
        for k in range(D):
            A(self.rd(k, b))
        A(f"s_waitcnt lgkmcnt({D})")
        A(f"v_readfirstlane_b32 {s(S_NGO)}, {v(self.V_RA + 1)}")
        for x in self.take():
            A(x)
        st(7)
        A(f"s_branch {nm}_B{b}")


class B3(G3):
    kchk, kdstep, ksm2 = 12, 2, 30
    local_in = False
    N1 = 6

    def item(self, i_reg, rl, rs):
        item_of(self.A, i_reg, rl, rs, self.cfg.LAG + self.cfg.dlt + self.cfg.dl1, 0, T)

    def tune(self, cfg):
        self.local_out = bool(cfg.bloc)
        self.local_in = bool(cfg.bloc)
        self.kchk = cfg.bf1
        self.ksm2 = cfg.bsm
        self.psleep = cfg.bps
        self.early_sample = bool(cfg.bea & 2)

    def post_barrier(self):
        A = self.A
        A(f"v_lshl_add_u32 {v(self.V_RA)}, {v(V_LANE)}, 2, {v(self.V_RA)}")
        A(f"v_mov_b32 {v(self.V_RA + 1)}, 0")
        A(f"ds_write_b32 {v(self.V_RA)}, {v(self.V_RA + 1)}")
        A(f"s_mov_b32 {s(S_EGO)}, {self.cfg.spin * 8}")
        A(f"v_and_b32 {v(self.V_TA)}, 15, {v(V_LANE)}")
        A(f"v_lshlrev_b32 {v(self.V_TA)}, 7, {v(self.V_TA)}")
        if self.name == "W2":
            A(f"s_mul_i32 {s(T)}, {s(S_IDX)}, {256 - 2048}")
            A(f"s_add_u32 {s(T)}, {s(T)}, 40960")
            A(f"v_and_b32 {v(V_T)}, 128, {v(self.V_TA)}")
            A(f"v_add_u32 {v(V_T)}, {s(T)}, {v(V_T)}")
            A(f"v_cmp_lt_u32 vcc, 15, {v(V_LANE)}")
            A(f"v_cndmask_b32 {v(self.V_TA)}, {v(self.V_TA)}, {v(V_T)}, vcc")
        if self.cfg.ring:
            self.ring_setup()
        A("s_waitcnt lgkmcnt(0)")
        A("s_barrier")

    def ready(self):
        if self.local_in:
            return []
        return [f"s_add_u32 {s(T + 5)}, {s(S_U)}, 1", f"s_or_b32 {s(T + 5)}, {s(T + 5)}, {s(S_GO)}", f"v_mov_b32 {v(self.V_RA + 1)}, {s(T + 5)}",
                f"ds_max_i32 {v(self.V_RA)}, {v(self.V_RA + 1)}"]

    def check(self):
        if self.cfg.ring:
            return [f"v_cmp_eq_u32 vcc, 0, {v(V_FV)}", f"s_and_b64 vcc, vcc, {s(S_BM, 2)}\ns_cselect_b32 {s(S_GO)}, {HUGE}, 0",
                    f"s_cmp_lt_u32 {s(S_U)}, 128\ns_cselect_b32 {s(S_GO)}, {s(S_GO)}, {HUGE}"]
        return [f"v_cmp_eq_u32 vcc, 0, {v(V_FV)}", f"s_cmp_eq_u64 vcc, 0\ns_cselect_b32 {s(S_GO)}, 0, {HUGE}",
                f"s_cmp_lt_u32 {s(S_U)}, 128\ns_cselect_b32 {s(S_GO)}, {s(S_GO)}, {HUGE}"]

    def block(self):
        A = self.A
        if not self.cfg.ring:
            return flag_block(A, S_UF)
        top, ok = A.newlabel("fb"), A.newlabel("ok")
        A.label(top)
        A(f"buffer_load_dword {v(V_FV)}, {v(V_FO)}, {WS}, {s(S_UF)} offen sc1")
        A("s_waitcnt vmcnt(0)")
        A(f"v_cmp_eq_u32 vcc, 0, {v(V_FV)}")
        A(f"s_and_b64 vcc, vcc, {s(S_BM, 2)}")
        A(f"s_cbranch_scc0 {ok}")
        if self.psleep:
            A(f"s_sleep {self.psleep}")
        A(f"s_sub_u32 {s(S_SPIN)}, {s(S_SPIN)}, 1")
        A("s_cbranch_scc1 ABORT")
        A(f"s_branch {top}")
        A.label(ok)

    def ring_setup(self):
        A = self.A
        kin, nin, kbp, nbp, dist = self.bp
        lo = min(flag_row(kin), flag_row(kbp) - dist * 512)
        A(f"v_min_u32 {v(V_T)}, {nin + nbp - 1}, {v(V_LANE)}")
        A(f"v_lshlrev_b32 {v(V_T)}, 2, {v(V_T)}")
        A(f"v_add_u32 {v(V_FO)}, {flag_row(kin) - lo}, {v(V_T)}")
        A(f"v_add_u32 {v(V_T + 1)}, {flag_row(kbp) - dist * 512 - lo - 4 * nin}, {v(V_T)}")
        A(f"v_cmp_gt_u32 {s(S_IM, 2)}, {nin}, {v(V_LANE)}")
        A(f"v_cndmask_b32 {v(V_FO)}, {v(V_T + 1)}, {v(V_FO)}, {s(S_IM, 2)}")
        for l in range(2):
            for sl in range(self.nslot):
                A(f"s_mov_b32 {s(S_L)}, {l}")
                A(f"s_mov_b32 {s(S_S)}, {sl}")
                self.touch()
        A("s_waitcnt vmcnt(0)")

    def ring_soff(self, dst, rl, rs):
        A = self.A
        kin, nin, kbp, nbp, dist = self.bp
        row_of(A, dst, rl, rs, min(flag_row(kin), flag_row(kbp) - dist * 512))
        A(f"s_cmp_lt_u32 {s(rs)}, {dist}")
        A(f"s_cselect_b64 {s(S_BM, 2)}, {s(S_IM, 2)}, -1")

    def slot_base(self, dst, rl, rs, n, per, size, base):
        A = self.A
        A(f"s_mul_i32 {s(dst)}, {s(rl)}, {per}")
        A(f"s_and_b32 {s(dst + 1)}, {s(rs)}, {n - 1}")
        A(f"s_add_u32 {s(dst)}, {s(dst)}, {s(dst + 1)}")
        A(f"s_mul_i32 {s(dst)}, {s(dst)}, {size}")
        A(f"s_add_u32 {s(dst)}, {s(dst)}, {base}")

    def kmap(self, k):
        jj = k >> 1
        return 2 * (self.nk // 4 * (jj & 3) + (jj >> 2)) + (k & 1)

    def rd(self, k, b):
        q = self.kmap(k)
        return f"ds_read_b128 {v(self.V_FR + (k % self.R) * 4, 4)}, {v(self.V_IA + 2 * b + (q & 1))} offset:{(q >> 1) * 2048}"

    def split_epi(self):
        import re
        sc, rest = [], []
        for x in self.epi_lines(False):
            for k in range(1, 5):
                x = re.sub(rf"\bs{T + k}\b", f"s{69 + k}", x)
            (sc if x.startswith("s_") and "exec" not in x else rest).append(x)
        return sc, rest

    def body(self, b, nb):
        A, cfg, st = self.A, self.cfg, self.st
        nm, NT, R, D = self.name, self.NT, self.R, self.D
        NS = 2 * self.nk
        S_VL, S_VS, S_VF, S_VM = 40, 41, 42, 80
        smp = f"buffer_load_dword {v(V_FV)}, {v(V_FO)}, {WS}, {s(S_UF)} offen sc1"
        ea = self.early_sample
        N1 = self.N1

        def decode2(A):
            import re
            c = Capture()
            self.decode(c)
            A(f"s_add_u32 {s(T + 2)}, {s(S_U)}, 1")
            A(f"s_min_u32 {s(T + 2)}, {s(T + 2)}, 127")
            for x in c.l[1:]:
                for p, q in ((S_UL, S_VL), (S_US, S_VS), (S_UF, S_VF)):
                    x = re.sub(rf"\bs{p}\b", f"s{q}", x)
                A(x.replace(f"s_cselect_b64 {s(S_BM, 2)}", f"s_cselect_b64 {s(S_VM, 2)}"))

        def advance(A=A):
            A(f"s_mov_b32 {s(S_UF)}, {s(S_VF)}")
            if ea:
                A(smp)
            A(f"s_mov_b32 {s(S_NL)}, {s(S_UL)}")
            A(f"s_mov_b32 {s(S_NS)}, {s(S_US)}")
            A(f"s_add_u32 {s(S_U)}, {s(S_U)}, 1")
            A(f"s_mov_b32 {s(S_UL)}, {s(S_VL)}")
            A(f"s_mov_b32 {s(S_US)}, {s(S_VS)}")
            A(f"s_mov_b64 {s(S_BM, 2)}, {s(S_VM, 2)}")

        def dma_ordered():
            L_ = self.dma_lines(True)
            k0 = next(n for n, x in enumerate(L_) if "m0" in x or x.startswith(f"s_lshl_b32 {s(T + 2)}, {s(S_WAVE)}"))
            k1 = next(n for n, x in enumerate(L_) if x.startswith(f"s_mul_i32 {s(T + 1)}, {s(S_WAVE)}, "))
            if k0 > k1:
                return L_
            import re
            st_ = [re.sub(rf"\bs{T}\b", f"s{T + 7}", x) for x in L_[k0:k1]]
            return L_[:k0] + [f"s_mov_b32 {s(T + 7)}, {s(T)}"] + L_[k1:] + st_
        DM = dma_ordered()
        nd = sum(1 for x in DM if x.startswith("buffer_"))
        self.swap_bufs()
        decode2(A)
        A.label(f"{nm}_COLD")
        A(f"s_mov_b32 {s(S_GO)}, 0")
        if self.local_in:
            self.block()
        else:
            oth, done = A.newlabel("wo"), A.newlabel("wd")
            A(f"s_cmp_lg_u32 {s(S_WAVE)}, 0")
            A(f"s_cbranch_scc1 {oth}")
            self.block()
            A.label(f"{nm}_COLD2")
            for x in self.ready():
                A(x)
            A(f"s_branch {done}")
            A.label(oth)
            A(f"ds_read_b32 {v(self.V_RA + 1)}, {v(self.V_RA)}")
            A("s_waitcnt lgkmcnt(0)")
            A(f"v_cmp_ge_u32 vcc, {s(S_U)}, {v(self.V_RA + 1)}")
            A(f"s_cbranch_vccz {done}")
            A(f"s_sleep 1")
            A(f"s_sub_u32 {s(S_EGO)}, {s(S_EGO)}, 1")
            A("s_cbranch_scc1 ABORT")
            A(f"s_branch {oth}")
            A.label(done)
        if self.local_in:
            A.label(f"{nm}_COLD2")
        st(6)
        n = 0
        for x in DM:
            A(x)
            if x.startswith("buffer_"):
                n += 1
                if n == N1:
                    A(f"s_waitcnt vmcnt({N1 if not self.local_in else N1 - 1})")
                    flag_put(A, S_FA1, self.local_out)
                    A(f"s_mov_b32 {s(S_FA1)}, {HUGE}")
        advance()
        self.swap_bufs()
        A(f"s_mov_b32 {s(S_L)}, {s(S_NL)}")
        A(f"s_mov_b32 {s(S_S)}, {s(S_NS)}")
        if ea:
            A(f"s_mov_b32 {s(S_GO)}, {HUGE}")
        A(f"s_waitcnt vmcnt({nd - N1 + 1 + (1 if ea else 0)})")
        A(f"s_branch {nm}_GO")
        A.label(f"{nm}_NEXT")
        self.swap_bufs()
        A(f"s_mov_b32 {s(S_L)}, {s(S_NL)}")
        A(f"s_mov_b32 {s(S_S)}, {s(S_NS)}")
        A(f"s_waitcnt vmcnt({self.nstores})")
        if ea:
            for x in self.check():
                A(x)
        A.label(f"{nm}_GO")
        st(7)
        A("s_barrier")
        L = Lds(A)
        for k in range(D):
            L.op(("F", k), self.rd(k, 0))
        if not ea:
            A(smp)
        st(0)
        seq, rdt = [], []
        for k in range(NS):
            c = "0" if k == 0 else v(self.acc(0), 16)
            fr = v(self.V_FR + (k % R) * 4, 4)
            need = [("F", k) if k < 2 else ("F", k + 1)] if (k % 2 == 0 or k < 2) else []
            seq.append((f"{MF} {v(self.acc(0), 16)}, {self.wtxt(0, self.kmap(k))}, {fr}, {c}", need))
            if k + D < NS:
                rdt.append(Task(k, [(("F", k + D), self.rd(k + D, 0))]))
        nvm = [0 if ea else 1]
        kb2 = 4 * N1 - D

        def vm(x):
            def f():
                A(x)
                nvm[0] += 1
            return (cfg.vmc, f)

        def wrap(ls):
            out = []
            for x in groups([y for z in ls for y in z.split("\n")]):
                out.append(vm(x) if x.startswith("buffer_") else ("x", x) if x.startswith("ds_") else x)
            return out
        tearly = Task(0, wrap(lines(self, self.early)))
        tpre = Task(kb2, wrap(lines(self, self.pre_mfma)), step=1)
        nearly = sum(1 for i in tearly.items if isinstance(i, tuple)) + nvm[0]

        def f1():
            assert not tearly.items
            A(f"s_waitcnt vmcnt({nvm[0] - (0 if ea else 1)})")
            flag_put(A, S_FA1, self.local_out)
            A(f"s_mov_b32 {s(S_FA1)}, {HUGE}")
            nvm[0] += 1

        def bar2():
            assert not tf1.items and self.kchk < kb2
            A("s_barrier")
        d2 = Capture()
        decode2(d2)
        tf1 = Task(self.kchk, [(28, f1)])
        if ea:
            tdma = Task(0, wrap(self.ready()) + wrap(DM) + wrap(d2.l))
            tdma.after = tearly
        else:
            tearly.items += wrap(d2.l)
            tdma = Task(self.kchk, self.check() + wrap(self.ready()) + wrap(DM))
            tdma.after = tf1
        tdma.vstep = self.kdstep

        def wx():
            assert not tpre.items
            L.wait("x")
        tmid = Task(kb2 + 9, [(4, wx)] + wrap(lines(self, self.mid)))
        tmid.after = tpre
        esc, erest = self.split_epi()

        at2 = [0]

        def smp2():
            A(smp)
            nvm[0] += 1
            at2[0] = nvm[0]
        tsm = Task(self.ksm2, [(cfg.vmc + 1, smp2)])
        sched(A, L, seq, rdt + [tpre, tearly, tsm, tf1, tdma, tmid, Task(0, esc)], pre={kb2: bar2}, budget=24, nvalu=5)
        st(3)
        ep, nr, sec = A.newlabel("ep"), A.newlabel("nr"), A.newlabel("sec")

        def epi(extra=()):
            extra = list(extra)
            nv = next(n for n, x in enumerate(erest) if x.startswith("buffer_store"))
            every = max(1, (nv - 4) // max(1, len(extra)))
            run = []
            for n, x in enumerate(erest + [""]):
                if x.startswith("buffer_store"):
                    while extra:
                        for y in extra.pop(0):
                            A(y)
                if self.local_out and x.startswith("buffer_store"):
                    run.append(x.replace(" sc1", ""))
                    continue
                if run:
                    lstore(A, run)
                    run = []
                if extra and n % every == 0:
                    for y in extra.pop(0):
                        A(y)
                if x:
                    A(x)
        self.late(nvm[0] - nearly)
        A(f"s_cmp_eq_u32 {s(S_GO)}, 0")
        A.nf(f"s_cbranch_scc0 {sec}")
        if cfg.timing == 2:
            A("s_add_u32 s88, s88, 128")
        advance()
        A("s_nop 2")
        A.label_nf(ep)
        st(2)
        epi()
        A(f"s_mov_b32 {s(S_FA1)}, {s(S_FA2)}")
        st(4)
        A(f"s_cmp_eq_u32 {s(S_GO)}, 0")
        A(f"s_cbranch_scc1 {nm}_NEXT")
        A(f"s_waitcnt vmcnt({self.nstores})")
        for x in self.check():
            A(x)
        A(f"s_cmp_eq_u32 {s(S_GO)}, 0")
        A(f"s_cbranch_scc1 {nm}_COLD2")
        A("s_waitcnt vmcnt(0)")
        flag_put(A, S_FA1, self.local_out)
        A(f"s_mov_b32 {s(S_FA1)}, {HUGE}")
        st(5)
        A(f"s_cmp_lt_u32 {s(S_U)}, 128")
        A(f"s_cbranch_scc1 {nm}_COLD")
        A(f"s_branch {nm}_END")
        A.label_nf(sec)
        A(f"s_waitcnt vmcnt({nvm[0] - at2[0]})")
        for x in self.check():
            A(x)
        A(f"s_cmp_lg_u32 {s(S_GO)}, 0")
        A.nf(f"s_cbranch_scc1 {nr}")
        if cfg.timing == 2:
            A("s_add_u32 s88, s88, 128000")
        st(2)
        grp, cur_ = [], []
        for x in self.ready() + DM:
            cur_.append(x)
            if x.startswith("buffer_"):
                grp.append(cur_)
                cur_ = []
        c_ = Capture()
        advance(c_)
        epi(grp + [c_.l])
        A(f"s_mov_b32 {s(S_FA1)}, {s(S_FA2)}")
        st(4)
        A(f"s_branch {nm}_NEXT")
        A.label_nf(nr)
        A(smp)
        A.nf(f"s_branch {ep}")

    def late(self, n): pass

    V_TA = 72

    def touch(self):
        A = self.A
        self.out_base()
        A(f"buffer_load_dword {v(self.V_TA + 1)}, {v(self.V_TA)}, {WS}, {s(T + 2)} offen sc1")


class W1_3(B3, W1_32):
    bp = (F_R1, 32, F_X1, 20, NH - 1)
    nslot = NH

    def __init__(self, A, cfg, nwg):
        W1_32.__init__(self, A, cfg, nwg)
        self.tune(cfg)
        self.local_in = False
        self.psleep = cfg.wgp - 1
        self.early_sample = bool(cfg.bea & 1)
        if self.early_sample:
            self.ksm2 = cfg.bsmx
            self.kdstep = cfg.w1d
        else:
            self.kchk, self.kdstep, self.ksm2 = cfg.bf1x, 1, 26

    def init_stores(self):
        if not self.cfg.ring:
            return W1_32.init_stores(self)
        A = self.A
        for i in range(4):
            A(f"v_mov_b32 {v(self.V_PK + i)}, 0")
        A(f"s_lshl_b32 {s(T)}, {s(S_IDX)}, 11")
        for l in range(2):
            A(f"s_add_u32 {s(T + 1)}, {s(T)}, {HB + (l * (NH + 1) + NH) * XSEG}")
            for tt in range(2):
                A(f"buffer_store_dwordx4 {v(self.V_PK, 4)}, {v(V_L16)}, {WS}, {s(T + 1)} offen offset:{tt * 1024} sc1")

    def flag_soff(self, dst, rl, rs):
        return self.ring_soff(dst, rl, rs) if self.cfg.ring else W1_32.flag_soff(self, dst, rl, rs)

    def early(self):
        if not self.cfg.xmt:
            return
        A = self.A
        A(f"s_lshl_b32 {s(T)}, {s(S_L)}, 6")
        A(f"s_add_u32 {s(T)}, {s(T)}, {s(S_S)}")
        A(f"s_mul_i32 {s(T)}, {s(T)}, {XSEG}")
        A(f"s_lshl_b32 {s(T + 1)}, {s(S_IDX)}, 11")
        A(f"s_add_u32 {s(T)}, {s(T)}, {s(T + 1)}")
        A(f"s_add_u32 {s(T)}, {s(T)}, {XM}")
        A(f"buffer_load_dword {v(self.V_TA + 1)}, {v(self.V_TA)}, {WS}, {s(T)} offen sc1")

    def out_base(self):
        if not self.cfg.ring:
            return W1_32.out_base(self)
        self.slot_base(T + 2, S_L, S_S, NH, NH + 1, XSEG, HB)
        self.A(f"s_lshl_b32 {s(T + 3)}, {s(S_IDX)}, 11")
        self.A(f"s_add_u32 {s(T + 2)}, {s(T + 2)}, {s(T + 3)}")


class W3_3(B3, W3_32):
    bp = (F_X1, 20, F_D4, 40, NG)
    nslot = NG

    def __init__(self, A, cfg, nwg):
        W3_32.__init__(self, A, cfg, nwg)
        self.tune(cfg)

    def setup(self):
        W3_32.setup(self)
        if self.cfg.lin:
            self.A(f"v_mov_b32 {v(self.V_OA)}, {v(V_L16)}")
            self.A(f"v_add_u32 {v(self.V_OA + 1)}, 1024, {v(V_L16)}")

    def flag_soff(self, dst, rl, rs):
        return self.ring_soff(dst, rl, rs) if self.cfg.ring else W3_32.flag_soff(self, dst, rl, rs)

    def dma(self, rl, rs, ldsreg):
        if not self.cfg.ring:
            return W3_32.dma(self, rl, rs, ldsreg)
        A = self.A
        self.slot_base(T, rl, rs, NX, NX, XSEGS, X1B)
        self.stats_dma(T, ldsreg)
        A(f"s_mul_i32 {s(T + 1)}, {s(S_WAVE)}, 10240")
        A(f"s_add_u32 {s(T)}, {s(T)}, {s(T + 1)}")
        A(f"s_add_u32 {s(T + 1)}, {s(T + 1)}, {s(ldsreg)}")
        self.lin_dma(T, T + 1, 10)

    def out_base(self):
        if not self.cfg.ring:
            return W3_32.out_base(self)
        self.slot_base(T + 2, S_L, S_S, NG, NG, GSEG, GB)
        self.A(f"s_lshl_b32 {s(T + 3)}, {s(S_IDX)}, 11")
        self.A(f"s_add_u32 {s(T + 2)}, {s(T + 2)}, {s(T + 3)}")


class W2_3(B3, W2_32):
    bp = (F_H, 20, F_D4, 40, NX)
    nslot = NX
    V_SB, V_IO, V_IC = 74, 76, 78
    S_DL = S_K

    def __init__(self, A, cfg, nwg):
        W2_32.__init__(self, A, cfg, nwg)
        self.tune(cfg)

    def setup(self):
        W2_32.setup(self)
        if not self.cfg.ring:
            return
        A = self.A
        for tt in range(2):
            A(f"v_subrev_u32 {v(V_T)}, {XSEG}, {v(self.V_SH + tt)}")
            A(f"v_cmp_gt_u32 vcc, {XSEG}, {v(V_T)}")
            A(f"v_cndmask_b32 {v(self.V_IC + tt)}, 0, 1, vcc")
            A(f"v_xor_b32 {v(self.V_IO + tt)}, 1, {v(self.V_IC + tt)}")
            A(f"v_and_b32 {v(self.V_SB + tt)}, 2047, {v(self.V_SH + tt)}")
        A(f"s_and_b32 {s(self.S_DL)}, {s(S_WAVE)}, 1")
        A(f"s_lshl_b32 {s(self.S_DL)}, {s(self.S_DL)}, 1")
        A(f"s_sub_u32 {s(self.S_DL)}, {s(self.S_DL)}, 1")

    def flag_soff(self, dst, rl, rs):
        if not self.cfg.ring:
            return W2_32.flag_soff(self, dst, rl, rs)
        A = self.A
        A(f"s_add_u32 {s(T)}, {s(rs)}, 1")
        A(f"s_min_u32 {s(T)}, {s(T)}, 63")
        self.ring_soff(dst, rl, T)

    def dma(self, rl, rs, ldsreg):
        if not self.cfg.ring:
            return W2_32.dma(self, rl, rs, ldsreg)
        A = self.A
        A(f"s_add_u32 {s(T + 1)}, {s(rs)}, {s(self.S_DL)}")
        A(f"s_and_b32 {s(T + 2)}, {s(T + 1)}, {NH - 1}")
        A(f"s_cmp_lt_u32 {s(T + 1)}, 64")
        A(f"s_cselect_b32 {s(T + 2)}, {s(T + 2)}, {NH}")
        A(f"s_mul_i32 {s(T + 2)}, {s(T + 2)}, {XSEG}")
        A(f"s_and_b32 {s(T + 1)}, {s(rs)}, {NH - 1}")
        A(f"s_mul_i32 {s(T + 1)}, {s(T + 1)}, {XSEG}")
        for tt in range(2):
            A(f"v_mad_u32_u24 {v(self.V_SH + tt)}, {v(self.V_IO + tt)}, {s(T + 2)}, {v(self.V_SB + tt)}")
            A(f"v_mad_u32_u24 {v(self.V_SH + tt)}, {v(self.V_IC + tt)}, {s(T + 1)}, {v(self.V_SH + tt)}")
        A(f"s_mov_b32 {s(T)}, {s(rl)}")
        A(f"s_mul_i32 {s(T)}, {s(T)}, {(NH + 1) * XSEG}")
        A(f"s_mul_i32 {s(T + 1)}, {s(S_WAVE)}, 10240")
        A(f"s_add_u32 {s(T)}, {s(T)}, {s(T + 1)}")
        A(f"s_add_u32 {s(T)}, {s(T)}, {HB}")
        A(f"s_add_u32 {s(T + 1)}, {s(T + 1)}, {s(ldsreg)}")
        for jl in range(5):
            for tt in range(2):
                A(f"s_add_u32 m0, {s(T + 1)}, {(jl * 2 + tt) * 1024}")
                if tt == 0:
                    A(f"s_add_u32 {s(T + 3)}, {s(T)}, {jl * 2048}")
                A(f"buffer_load_dwordx4 {v(self.V_SH + tt)}, {WS}, {s(T + 3)} offen sc1 lds")

    def mid(self): pass

    def seg_base(self):
        A = self.A
        if self.cfg.ring:
            return self.slot_base(T + 2, S_L, S_S, NX, NX, XSEGS, X1B)
        A(f"s_lshl_b32 {s(T + 2)}, {s(S_L)}, 6")
        A(f"s_add_u32 {s(T + 2)}, {s(T + 2)}, {s(S_S)}")
        A(f"s_mul_i32 {s(T + 2)}, {s(T + 2)}, {XSEGS}")
        A(f"s_add_u32 {s(T + 2)}, {s(T + 2)}, {X1B}")

    def out_base(self):
        self.seg_base()
        self.A(f"s_lshl_b32 {s(T + 3)}, {s(S_IDX)}, 11")
        self.A(f"s_add_u32 {s(T + 2)}, {s(T + 2)}, {s(T + 3)}")

    def epi_lines(self, guarded):
        L = B3.epi_lines(self, guarded)
        return lines(self, self.seg_base) + L[4:]

    def late(self, n):
        self.A(f"s_waitcnt vmcnt({n})")
        W2_32.mid(self)


class WO5(B3, Gemm32):
    name = "WO"
    nk = 24
    bufsz = 49152
    nstores = 2
    N1 = 8
    S_KG, S_OUT, S_FW = S_K, S_K + 1, 75
    V_PK = 112

    def __init__(self, A, cfg, nwg):
        Gemm32.__init__(self, A, cfg, nwg)
        self.local_out, self.local_in = False, bool(cfg.oloc)
        self.early_sample = True
        self.kchk, self.ksm2, self.psleep, self.kdstep = cfg.wf1, cfg.wsm, cfg.bps, 2

    def item(self, i_reg, rl, rs):
        item_of(self.A, i_reg, rl, rs, self.cfg.LAG + self.cfg.dlt, 0, T)

    def setup(self):
        A = self.A
        for k in range(4):
            A(f"v_add_u32 {v(self.V_IA + k)}, {(k & 1) * 1024 + (k >> 1) * self.bufsz}, {v(V_L16)}")
        A(f"s_mul_i32 {s(self.S_KG)}, {s(S_ROLE)}, 52429")
        A(f"s_lshr_b32 {s(self.S_KG)}, {s(self.S_KG)}, 18")
        A(f"s_mul_i32 {s(T)}, {s(self.S_KG)}, 20")
        A(f"s_sub_u32 {s(T)}, {s(S_IDX)}, {s(T)}")
        A(f"s_lshl2_add_u32 {s(T + 1)}, {s(self.S_KG)}, {s(S_WAVE)}")
        A(f"s_lshr_b32 {s(T + 2)}, {s(T + 1)}, 3")
        A(f"s_mul_i32 {s(T + 2)}, {s(T + 2)}, 24")
        A(f"s_add_u32 {s(T + 1)}, {s(T + 1)}, {s(T + 2)}")
        A(f"s_lshl_b32 {s(T + 1)}, {s(T + 1)}, 2")
        A(f"v_mov_b32 {v(V_FO)}, {s(T + 1)}")
        A(f"v_bfe_u32 {v(V_T)}, {v(V_LANE)}, 2, 3")
        A(f"v_mul_u32_u24 {v(self.V_OA)}, 5120, {v(V_T)}")
        A(f"v_and_b32 {v(V_T)}, 3, {v(V_LANE)}")
        A(f"v_lshl_add_u32 {v(self.V_OA)}, {v(V_T)}, 4, {v(self.V_OA)}")
        A(f"v_lshrrev_b32 {v(V_T)}, 5, {v(V_LANE)}")
        A(f"v_lshl_add_u32 {v(self.V_OA)}, {v(V_T)}, 6, {v(self.V_OA)}")
        A(f"s_mul_i32 {s(S_C0)}, {s(self.S_KG)}, {768 * 1280}")
        A(f"s_lshl_b32 {s(T + 1)}, {s(T)}, 6")
        A(f"s_add_u32 {s(S_C0)}, {s(S_C0)}, {s(T + 1)}")
        A(f"s_mul_i32 {s(self.S_OUT)}, {s(self.S_KG)}, 40960")
        A(f"s_lshl_b32 {s(T)}, {s(T)}, 8")
        A(f"s_add_u32 {s(self.S_OUT)}, {s(self.S_OUT)}, {s(T)}")
        A(f"s_add_u32 {s(self.S_OUT)}, {s(self.S_OUT)}, {WOP}")
        A(f"s_lshl_b32 {s(self.S_FW)}, {s(S_IDX)}, 2")
        A(f"s_add_u32 {s(self.S_FW)}, {s(self.S_FW)}, {FWOP2}")

    def weights(self, WL):
        A = self.A
        WL.add(lambda: make_srd(A, SRD_W, P_WO, 6144 * 1280), S_C0, 1280, 2, 24, self.wreg, "perm")

    def ring_setup(self):
        self.A(f"s_mov_b64 {s(S_BM, 2)}, -1")
        self.A(f"s_mov_b64 s[80:81], -1")

    def flag_soff(self, dst, rl, rs):
        row_of(self.A, dst, rl, rs, flag_row(F_O))

    def dma(self, rl, rs, ldsreg):
        A = self.A
        A(f"s_mul_i32 {s(T)}, {s(rs)}, {QKV_SEG}")
        A(f"s_mul_i32 {s(T + 1)}, {s(self.S_KG)}, 49152")
        A(f"s_add_u32 {s(T)}, {s(T)}, {s(T + 1)}")
        A(f"s_mul_i32 {s(T + 1)}, {s(S_WAVE)}, 12288")
        A(f"s_add_u32 {s(T)}, {s(T)}, {s(T + 1)}")
        A(f"s_add_u32 {s(T)}, {s(T)}, {OX}")
        A(f"s_add_u32 {s(T + 1)}, {s(T + 1)}, {s(ldsreg)}")
        self.lin_dma(T, T + 1, 12)

    def epilogue(self):
        A = self.A
        A(f"s_mul_i32 {s(T + 2)}, {s(S_S)}, {WOP_SEG}")
        A(f"s_add_u32 {s(T + 2)}, {s(T + 2)}, {s(self.S_OUT)}")
        A(f"s_lshl_b32 {s(T + 1)}, {s(S_L)}, 6")
        A(f"s_add_u32 {s(T + 1)}, {s(T + 1)}, {s(S_S)}")
        A(f"s_mul_i32 {s(T + 1)}, {s(T + 1)}, 640")
        A(f"s_add_u32 {s(S_FADDR)}, {s(T + 1)}, {s(self.S_FW)}")
        for i in range(8):
            A(f"v_cvt_pk_bf16_f32 {v(self.V_PK + i)}, {v(self.acc(0) + 2 * i)}, {v(self.acc(0) + 2 * i + 1)}")
        for k in range(2):
            A(f"buffer_store_dwordx4 {v(self.V_PK + 4 * k, 4)}, {v(self.V_OA)}, {WS}, {s(T + 2)} offen offset:{k * 128} sc1")


def gen_r3(A, cfg, nwg):
    V_XA, V_XB, V_XD, V_BA, V_LWA, V_LRA, V_FW = 16, 17, 18, 19, 20, 21, 24
    V_ST = 28
    V_P, V_PB, V_X, V_XX = 36, 68, 76, 80
    V_A, V_B, V_U = 82, 92, 100
    V_PM, V_PY, V_LR = 112, 124, 136
    S_LAY, S_PW, S_XW, S_XS, S_LO, S_HI, S_O1, S_O2 = range(S_K, S_K + 8)
    lane_reduce, sums, norm, _ = row_helpers(A)
    A.label("ROLE_R1")
    A(f"s_lshr_b32 {s(S_LAY)}, {s(S_ROLE)}, 3")
    A(f"s_and_b32 {s(S_ROLE)}, {s(S_ROLE)}, 7")
    base_setup(A)
    dq, g_, c_ = V_T, V_T + 1, V_T + 2
    A(f"v_lshrrev_b32 {v(dq)}, 4, {v(V_LANE)}")
    A(f"v_bfe_u32 {v(g_)}, {v(V_LANE)}, 2, 2")
    A(f"v_and_b32 {v(c_)}, 3, {v(V_LANE)}")
    A(f"v_add_u32 {v(V_T + 3)}, {s(S_ROLE)}, {v(g_)}")
    A(f"v_and_b32 {v(V_T + 3)}, 3, {v(V_T + 3)}")
    A(f"v_lshlrev_b32 {v(V_XB)}, 6, {v(V_T + 3)}")
    A(f"v_lshl_add_u32 {v(V_XB)}, {v(c_)}, 4, {v(V_XB)}")
    A(f"s_lshl_b32 {s(T)}, {s(S_ROLE)}, 8")
    A(f"s_lshl_b32 {s(T + 1)}, {s(S_WAVE)}, 13")
    A(f"s_add_u32 {s(T + 1)}, {s(T + 1)}, {s(T)}")
    A(f"v_lshl_add_u32 {v(V_XA)}, {v(dq)}, 11, {v(V_XB)}")
    A(f"v_add_u32 {v(V_XA)}, {s(T + 1)}, {v(V_XA)}")
    A(f"s_lshl_b32 {s(T + 1)}, {s(S_WAVE)}, 11")
    A(f"s_add_u32 {s(T + 1)}, {s(T + 1)}, {s(T)}")
    A(f"s_add_u32 {s(T + 1)}, {s(T + 1)}, 32768")
    A(f"v_add_u32 {v(V_XB)}, {s(T + 1)}, {v(V_XB)}")
    A(f"v_lshl_add_u32 {v(V_XD)}, {v(dq)}, 2, {v(V_XB)}")
    A(f"v_mul_u32_u24 {v(V_BA)}, 40960, {v(dq)}")
    A(f"v_and_b32 {v(V_T + 3)}, 0xff, {v(V_L16)}")
    A(f"v_add_u32 {v(V_BA)}, {v(V_BA)}, {v(V_T + 3)}")
    A(f"s_mul_i32 {s(T)}, {s(S_WAVE)}, 768")
    A(f"s_sub_u32 {s(T)}, 4096, {s(T)}")
    A(f"v_add_u32 {v(V_BA)}, {s(T)}, {v(V_BA)}")
    A(f"s_mul_i32 {s(S_PW)}, {s(S_ROLE)}, 5120")
    A(f"s_lshl_b32 {s(T)}, {s(S_WAVE)}, 10")
    A(f"s_add_u32 {s(S_PW)}, {s(S_PW)}, {s(T)}")
    A(f"s_add_u32 {s(S_PW)}, {s(S_PW)}, {WOP}")
    A(f"s_cmp_eq_u32 {s(S_LAY)}, 0")
    A(f"s_mov_b32 {s(S_XW)}, {XIN + 64 * XSEGS}")
    A(f"s_cselect_b32 {s(S_XW)}, {X0R}, {s(S_XW)}")
    A(f"s_mov_b32 {s(S_XS)}, {XSEGS}")
    A(f"s_cselect_b32 {s(S_XS)}, {XSEG}, {s(S_XS)}")
    A(f"s_mov_b32 {s(S_LO)}, 0x3f80")
    A(f"s_mov_b32 {s(S_HI)}, 0x3f800000")
    A(f"v_lshlrev_b32 {v(V_LRA)}, 5, {v(c_)}")
    A(f"s_lshl_b32 {s(T)}, {s(S_WAVE)}, 3")
    A(f"v_add_u32 {v(V_LWA)}, {s(T)}, {v(V_LRA)}")
    A(f"v_min_u32 {v(V_FO)}, 39, {v(V_LANE)}")
    A(f"v_lshlrev_b32 {v(V_FO)}, 4, {v(V_FO)}")
    init_barrier_arrive(A, V_T)
    numa_probe(A, cfg, S_LAY)
    init_barrier_wait(A, V_T, nwg, cfg)
    st = Stamper(A, cfg, 84, 10)
    A(f"s_mov_b32 s83, {s(S_GID)}")
    st.init()
    A(f"s_mov_b32 {s(S_L)}, {s(S_LAY)}")
    A(f"s_mov_b32 {s(S_S)}, 0")
    A(f"s_mul_i32 {s(S_UF)}, {s(S_LAY)}, {64 * 640}")
    A(f"s_add_u32 {s(S_UF)}, {s(S_UF)}, {FWOP2}")
    A.label("R1_LOOP")
    A(f"s_mul_i32 {s(T + 6)}, {s(S_S)}, {WOP_SEG}")
    A(f"s_add_u32 {s(T + 6)}, {s(T + 6)}, {s(S_PW)}")
    A(f"s_mul_i32 {s(T + 5)}, {s(S_S)}, {s(S_XS)}")
    A(f"s_add_u32 {s(T + 5)}, {s(T + 5)}, {s(S_XW)}")
    A(f"s_lshl_b32 {s(T)}, {s(S_L)}, 6")
    A(f"s_add_u32 {s(T)}, {s(T)}, {s(S_S)}")
    A(f"s_mul_i32 {s(S_O1)}, {s(T)}, {XSEG}")
    A(f"s_add_u32 {s(S_O1)}, {s(S_O1)}, {XM}")
    A(f"s_mul_i32 {s(S_O2)}, {s(T)}, {XSEGS}")
    A(f"s_add_u32 {s(S_O2)}, {s(S_O2)}, {YB}")
    flag_addr(A, S_FADDR, flag_row(F_R1))
    lab, top = A.newlabel("rp"), A.newlabel("rt")
    A(f"s_cmp_lg_u32 {s(S_WAVE)}, 0")
    A(f"s_cbranch_scc1 {lab}")
    A.label(top)
    A(f"buffer_load_dwordx4 {v(V_FW, 4)}, {v(V_FO)}, {WS}, {s(S_UF)} offen sc1")
    A("s_waitcnt vmcnt(0)")
    A(f"v_min3_u32 {v(V_FW)}, {v(V_FW)}, {v(V_FW + 1)}, {v(V_FW + 2)}")
    A(f"v_min_u32 {v(V_FW)}, {v(V_FW)}, {v(V_FW + 3)}")
    A(f"v_cmp_eq_u32 vcc, 0, {v(V_FW)}")
    poll_tail(A, top, sleep=cfg.wgp - 1)
    A.label(lab)
    A("s_barrier")
    st(9)
    V = Vm(A)
    for m in range(2):
        A(f"s_add_u32 {s(T + 3)}, {s(T + 6)}, {m * 4 * 40960}")
        V.op(("B", m), f"buffer_load_dwordx4 {v(V_PB + 4 * m, 4)}, {v(V_BA)}, {WS}, {s(T + 3)} offen sc1")
    V.op("x", f"buffer_load_dwordx4 {v(V_X, 4)}, {v(V_XA)}, {WS}, {s(T + 5)} offen sc1")
    V.op("x", f"buffer_load_dword {v(V_XX)}, {v(V_XD)}, {WS}, {s(T + 5)} offen sc1")
    for kg in range(8):
        A(f"s_add_u32 {s(T + 3)}, {s(T + 6)}, {kg * 40960}")
        V.op(("P", kg), f"buffer_load_dwordx4 {v(V_P + 4 * kg, 4)}, {v(V_L16)}, {WS}, {s(T + 3)} offen sc1")

    def accum(dst, src):
        for i in range(4):
            A(f"v_dot2c_f32_bf16 {v(dst + 2 * i)}, {s(S_LO)}, {v(src + i)}")
            A(f"v_dot2c_f32_bf16 {v(dst + 2 * i + 1)}, {s(S_HI)}, {v(src + i)}")
    V.wait(("B", 0))
    unpack8(A, V_B, V_PB)
    V.wait(("B", 1))
    accum(V_B, V_PB + 4)
    for i in range(4):
        A(f"v_permlane32_swap_b32 {v(V_B + i)}, {v(V_B + 4 + i)}")
    for i in range(4):
        A(f"v_add_f32 {v(V_B + i)}, {v(V_B + i)}, {v(V_B + 4 + i)}")
    for i in range(2):
        A(f"v_permlane16_swap_b32 {v(V_B + i)}, {v(V_B + 2 + i)}")
    for i in range(2):
        A(f"v_add_f32 {v(V_A + 8 + i)}, {v(V_B + i)}, {v(V_B + 2 + i)}")
    V.wait("x")
    unpack8(A, V_U, V_X)
    A(f"v_lshlrev_b32 {v(V_U + 8)}, 16, {v(V_XX)}")
    A(f"v_and_b32 {v(V_U + 9)}, 0xffff0000, {v(V_XX)}")
    V.wait(("P", 0))
    unpack8(A, V_A, V_P)
    for kg in range(1, 8):
        V.wait(("P", kg))
        accum(V_A, V_P + 4 * kg)
    st(4)
    X = [V_A + i for i in range(10)]
    for i in range(0, 10, 2):
        if cfg.arn:
            rnd2(A, V_T + (i & 2), X[i], X[i + 1])
    for i in range(0, 10, 2):
        A(f"v_pk_add_f32 {v(X[i], 2)}, {v(X[i], 2)}, {v(V_U + i, 2)}")
    for i in range(0, 10, 2):
        rnd2(A, V_PM + i // 2, X[i], X[i + 1])
    sums(X, V_ST)
    lane_reduce(V_ST)
    A(f"ds_write_b64 {v(V_LWA)}, {v(V_ST, 2)}")

    def out(b, soff):
        A(f"buffer_store_dwordx4 {v(b, 4)}, {v(V_XA)}, {WS}, {s(soff)} offen sc1")
        A(f"v_mov_b32 {v(b + 5)}, {v(b + 4)}")
        A(f"v_permlane16_swap_b32 {v(b + 4)}, {v(b + 5)}")
        A(f"v_permlane32_swap_b32 {v(b + 4)}, {v(b + 6)}")
        A(f"v_permlane32_swap_b32 {v(b + 5)}, {v(b + 7)}")
        A("s_mov_b64 exec, 0xffff")
        A(f"buffer_store_dwordx4 {v(b + 4, 4)}, {v(V_XB)}, {WS}, {s(soff)} offen sc1")
        A("s_mov_b64 exec, -1")
    A("s_waitcnt lgkmcnt(0)")
    A("s_barrier")
    A(f"ds_read_b128 {v(V_LR, 4)}, {v(V_LRA)}")
    A(f"ds_read_b128 {v(V_LR + 4, 4)}, {v(V_LRA)} offset:16")
    out(V_PM, S_O1)
    A("s_waitcnt lgkmcnt(0)")
    A(f"v_pk_add_f32 {v(V_LR, 2)}, {v(V_LR, 2)}, {v(V_LR + 2, 2)}")
    A(f"v_pk_add_f32 {v(V_LR + 4, 2)}, {v(V_LR + 4, 2)}, {v(V_LR + 6, 2)}")
    A(f"v_pk_add_f32 {v(V_ST, 2)}, {v(V_LR, 2)}, {v(V_LR + 4, 2)}")
    finish_stats(A, V_ST, V_ST + 1, V_T, keep=V_ST + 4)
    for i in range(0, 10, 2):
        A(f"v_pk_add_f32 {v(X[i], 2)}, {v(X[i], 2)}, {v(V_ST, 2)} op_sel_hi:[1,0] neg_lo:[0,1] neg_hi:[0,1]")
    for i in range(0, 10, 2):
        rnd2(A, V_T + (i & 2), X[i], X[i + 1])
    for i in range(0, 10, 2):
        A(f"v_pk_mul_f32 {v(X[i], 2)}, {v(X[i], 2)}, {v(V_ST, 2)} op_sel:[0,1] op_sel_hi:[1,1]")
    for i in range(0, 10, 2):
        A(f"v_cvt_pk_bf16_f32 {v(V_PY + i // 2)}, {v(X[i])}, {v(X[i + 1])}")
    out(V_PY, S_O2)
    lz = A.newlabel("zs")
    A(f"s_cmp_lg_u32 {s(S_WAVE)}, 3")
    A(f"s_cbranch_scc1 {lz}")
    A(f"v_sub_f32 {v(V_ST + 4)}, {v(V_ST + 4)}, {v(V_ST)}")
    A(f"v_mul_f32 {v(V_ST + 5)}, {v(V_ST + 5)}, {v(V_ST + 1)}")
    A(f"v_mul_f32 {v(V_ST + 4)}, {v(V_ST + 4)}, {v(V_ST + 1)}")
    A(f"v_mul_f32 {v(V_ST + 5)}, {v(V_ST + 5)}, {v(V_ST + 1)}")
    finish_stats(A, V_ST + 4, V_ST + 5, V_T, scaled=True)
    A(f"s_lshl_b32 {s(T)}, {s(S_ROLE)}, 5")
    A(f"s_add_u32 {s(T + 3)}, {s(S_O2)}, {s(T)}")
    A(f"s_add_u32 {s(T + 3)}, {s(T + 3)}, 40960")
    A(f"v_lshlrev_b32 {v(V_T)}, 3, {v(V_LANE)}")
    A("s_mov_b64 exec, 15")
    A(f"buffer_store_dwordx2 {v(V_ST + 4, 2)}, {v(V_T)}, {WS}, {s(T + 3)} offen sc1")
    A("s_mov_b64 exec, -1")
    A.label(lz)
    st(7)
    A(f"s_add_u32 {s(S_S)}, {s(S_S)}, 1")
    A(f"s_add_u32 {s(S_UF)}, {s(S_UF)}, 640")
    A("s_waitcnt vmcnt(0)")
    flag_put(A, S_FADDR)
    st(8)
    A(f"s_cmp_lt_u32 {s(S_S)}, 64")
    A("s_cbranch_scc1 R1_LOOP")
    st.dump(83, T, V_T)
    A("s_endpgm")


class WO_3(G3, WO32):
    def __init__(self, A, cfg, nwg):
        WO32.__init__(self, A, cfg, nwg)
        self.kd0, self.kdstep, self.kf1, self.ksmp, self.psleep = 0, 2, 24, 0.6, cfg.wgp - 1


class Vm:
    def __init__(self, A, q=()):
        self.A, self.q = A, list(q)

    def op(self, tag, text):
        self.A(text)
        self.q.append(tag)

    def wait(self, tag):
        if tag not in self.q:
            return
        i = len(self.q) - 1 - self.q[::-1].index(tag)
        self.A(f"s_waitcnt vmcnt({len(self.q) - 1 - i})")
        self.q = self.q[i + 1:]


def gen_ks(A, cfg, nwg, wo):
    nm = "WO" if wo else "W4"
    V_IN, V_ACC, V_RD, V_XX, V_XU, V_PK = 16, 112, 144, 176, 184, 200
    V_SAD, V_OA, V_LW, V_LR, V_CA = 204, 205, 206, 207, 208
    S_J, S_TT, S_CH, S_INW, S_CB, S_NB, S_OUT, S_FW = range(S_K, S_K + 8)
    SRD_O = 76
    assert cfg.ring
    local_in = bool(cfg.oloc if wo else cfg.bloc)
    A.label("ROLE_" + nm)
    base_setup(A)
    for k in range(2):
        chunk_addr(A, V_CA + k, k, False)
    if wo:
        S_KG, S_CG = T + 4, T + 5
        A(f"s_mul_i32 {s(S_KG)}, {s(S_ROLE)}, 6554")
        A(f"s_lshr_b32 {s(S_KG)}, {s(S_KG)}, 16")
        A(f"s_mul_i32 {s(T)}, {s(S_KG)}, 10")
        A(f"s_sub_u32 {s(S_CG)}, {s(S_ROLE)}, {s(T)}")
        A(f"v_min_u32 {v(V_FO)}, 1, {v(V_LANE)}")
        A(f"s_lshl_b32 {s(T)}, {s(S_KG)}, 4")
        A(f"s_add_u32 {s(T)}, {s(T)}, {s(S_WAVE)}")
        A(f"s_lshl_b32 {s(T)}, {s(T)}, 1")
    else:
        S_CG = S_ROLE
        A(f"v_min_u32 {v(V_FO)}, 11, {v(V_LANE)}")
        A(f"s_mul_i32 {s(T)}, {s(S_WAVE)}, 12")
    A(f"v_add_u32 {v(V_FO)}, {s(T)}, {v(V_FO)}")
    A(f"v_lshlrev_b32 {v(V_FO)}, 2, {v(V_FO)}")
    A(f"s_and_b32 {s(T)}, {s(S_WAVE)}, 1")
    A(f"s_lshl_b32 {s(S_J)}, {s(S_CG)}, 1")
    A(f"s_add_u32 {s(S_J)}, {s(S_J)}, {s(T)}")
    A(f"s_lshr_b32 {s(S_TT)}, {s(S_WAVE)}, 1")
    A(f"s_mul_i32 {s(S_INW)}, {s(S_WAVE)}, 24576")
    A(f"s_mul_i32 {s(S_C0)}, {s(S_WAVE)}, {384 * 1280}")
    A(f"s_lshl_b32 {s(T + 1)}, {s(S_CG)}, 7")
    A(f"s_add_u32 {s(S_C0)}, {s(S_C0)}, {s(T + 1)}")
    if wo:
        A(f"s_mul_i32 {s(T + 1)}, {s(S_KG)}, {1536 * 1280}")
        A(f"s_add_u32 {s(S_C0)}, {s(S_C0)}, {s(T + 1)}")
        A(f"s_mul_i32 {s(T + 1)}, {s(S_KG)}, 98304")
        A(f"s_add_u32 {s(S_INW)}, {s(S_INW)}, {s(T + 1)}")
        A(f"s_add_u32 {s(S_INW)}, {s(S_INW)}, {OX}")
        A(f"v_bfe_u32 {v(V_T)}, {v(V_LANE)}, 2, 2")
        A(f"v_mul_u32_u24 {v(V_OA)}, 10240, {v(V_T)}")
        A(f"v_and_b32 {v(V_T)}, 3, {v(V_LANE)}")
        A(f"v_lshl_add_u32 {v(V_OA)}, {v(V_T)}, 4, {v(V_OA)}")
        A(f"v_lshrrev_b32 {v(V_T)}, 4, {v(V_LANE)}")
        A(f"v_lshl_add_u32 {v(V_OA)}, {v(V_T)}, 6, {v(V_OA)}")
        A(f"s_mul_i32 {s(S_OUT)}, {s(S_KG)}, 81920")
        A(f"s_mul_i32 {s(T + 1)}, {s(S_TT)}, 40960")
        A(f"s_add_u32 {s(S_OUT)}, {s(S_OUT)}, {s(T + 1)}")
        A(f"s_lshl_b32 {s(T + 1)}, {s(S_J)}, 9")
        A(f"s_add_u32 {s(S_OUT)}, {s(S_OUT)}, {s(T + 1)}")
        A(f"s_add_u32 {s(S_OUT)}, {s(S_OUT)}, {WOP}")
        A(f"s_lshl1_add_u32 {s(S_FW)}, {s(S_ROLE)}, {s(T)}")
        A(f"s_lshl_b32 {s(S_FW)}, {s(S_FW)}, 2")
        A(f"s_mul_i32 {s(T + 1)}, {s(S_TT)}, 320")
        A(f"s_add_u32 {s(S_FW)}, {s(S_FW)}, {s(T + 1)}")
        A(f"s_add_u32 {s(S_FW)}, {s(S_FW)}, {FWOP2}")
    else:
        A(f"s_add_u32 {s(S_INW)}, {s(S_INW)}, {GB}")
        A(f"v_and_b32 {v(V_T)}, 15, {v(V_LANE)}")
        A(f"v_lshlrev_b32 {v(V_SAD)}, 3, {v(V_T)}")
        A(f"s_lshl_b32 {s(T)}, {s(S_TT)}, 4")
        A(f"v_add_u32 {v(V_T)}, {s(T)}, {v(V_T)}")
        A(f"v_mul_u32_u24 {v(V_OA)}, 1280, {v(V_T)}")
        A(f"v_lshrrev_b32 {v(V_T)}, 4, {v(V_LANE)}")
        A(f"v_lshl_add_u32 {v(V_OA)}, {v(V_T)}, 3, {v(V_OA)}")
        A(f"s_lshl_b32 {s(T)}, {s(S_J)}, 6")
        A(f"v_add_u32 {v(V_OA)}, {s(T)}, {v(V_OA)}")
        make_srd(A, SRD_O, P_OUT, 2048 * 1280)
        A(f"s_lshl_b32 {s(S_CH)}, {s(S_J)}, 1")
        A(f"s_add_u32 {s(S_CH)}, {s(S_CH)}, {s(S_TT)}")
        A(f"s_lshl_b32 {s(S_CH)}, {s(S_CH)}, 10")
    A(f"v_bfe_u32 {v(V_T)}, {v(V_LANE)}, 4, 1")
    A(f"v_lshlrev_b32 {v(V_LW)}, 14, {v(V_T)}")
    A(f"v_lshrrev_b32 {v(V_T)}, 5, {v(V_LANE)}")
    A(f"v_lshl_add_u32 {v(V_LW)}, {v(V_T)}, 8, {v(V_LW)}")
    A(f"v_and_b32 {v(V_T)}, 15, {v(V_LANE)}")
    A(f"v_lshl_add_u32 {v(V_LW)}, {v(V_T)}, 4, {v(V_LW)}")
    A(f"s_lshl_b32 {s(T)}, {s(S_WAVE)}, 11")
    A(f"v_add_u32 {v(V_LW)}, {s(T)}, {v(V_LW)}")
    A(f"s_lshl_b32 {s(T)}, {s(S_WAVE)}, 13")
    A(f"v_add_u32 {v(V_LR)}, {s(T)}, {v(V_L16)}")
    init_barrier_arrive(A, V_T)
    WL = WLoader(A, V_T, T + 3)
    WL.add(lambda: make_srd(A, SRD_W, P_WO if wo else P_W4, (6144 if wo else 1536) * 1280), S_C0, 1280, 4, 12,
           lambda tl, j, u: ("a", ((tl * 12 + j) * 2 + u) * 4), "perm")
    WL.emit(V_LANE)
    A("s_barrier")
    init_barrier_wait(A, V_T, nwg, cfg)
    st = Stamper(A, cfg, 84, 8)
    A(f"s_mov_b32 s83, {s(S_GID)}")

    def decode(A):
        A(f"s_min_u32 {s(T + 2)}, {s(S_U)}, 127")
        item_of(A, T + 2, S_UL, S_US, cfg.LAG + cfg.dlt + (0 if wo else cfg.dl1 + cfg.dl4), 0, T)
        row_of(A, S_UF, S_UL, S_US, flag_row(F_O if wo else F_G))
        if wo:
            A(f"s_mul_i32 {s(S_NB)}, {s(S_US)}, {QKV_SEG}")
        else:
            if cfg.ring:
                A(f"s_and_b32 {s(T)}, {s(S_US)}, {NG - 1}")
                A(f"s_lshl2_add_u32 {s(T)}, {s(S_UL)}, {s(T)}")
            else:
                A(f"s_lshl_b32 {s(T)}, {s(S_UL)}, 6")
                A(f"s_add_u32 {s(T)}, {s(T)}, {s(S_US)}")
            A(f"s_mul_i32 {s(S_NB)}, {s(T)}, {GSEG}")
        A(f"s_add_u32 {s(S_NB)}, {s(S_NB)}, {s(S_INW)}")

    def ld(k, base, first=False):
        r = []
        if k % 4 == 0 or first:
            r.append(f"s_add_u32 {s(T + 3)}, {s(base)}, {(k // 4) * 4096}")
        if cfg.lin:
            r.append(f"buffer_load_dwordx4 {v(V_IN + 4 * k, 4)}, {v(V_L16)}, {WS}, {s(T + 3)} offen offset:{(k & 3) * 1024} sc1")
        else:
            r.append(f"buffer_load_dwordx4 {v(V_IN + 4 * k, 4)}, {v(V_CA + (k & 1))}, {WS}, {s(T + 3)} offen offset:{((k >> 1) & 1) * 2048} sc1")
        return r
    smp = f"buffer_load_dword {v(V_FV)}, {v(V_FO)}, {WS}, {s(S_UF)} offen sc1"
    check = [f"v_cmp_eq_u32 vcc, 0, {v(V_FV)}", f"s_cmp_eq_u64 vcc, 0\ns_cselect_b32 {s(S_GO)}, 0, {HUGE}",
             f"s_cmp_lt_u32 {s(S_U)}, 128\ns_cselect_b32 {s(S_GO)}, {s(S_GO)}, {HUGE}"]
    AC, AW = cfg.kac, cfg.kah
    S_NG, E = T + 7, T + 4
    S_O1, S_O2, S_O3 = 40, 41, 42
    SK = 4

    def wr(tl):
        return [f"ds_write_b128 {v(V_LW)}, {v(V_ACC + 16 * tl + 8 * k + 4 * pc, 4)} offset:{tl * 8192 + pc * 1024 + k * 512}" for k in range(2) for pc in range(2)]

    S_VL, S_VS, S_VF, S_VB = 28, 29, 30, 31
    import re

    def decode2(A):
        c = Capture()
        decode(c)
        A(f"s_add_u32 {s(T + 2)}, {s(S_U)}, 1")
        A(f"s_min_u32 {s(T + 2)}, {s(T + 2)}, 127")
        for x in c.l[1:]:
            for p, q in ((S_UL, S_VL), (S_US, S_VS), (S_UF, S_VF), (S_NB, S_VB)):
                x = re.sub(rf"\bs{p}\b", f"s{q}", x)
            A(x)

    def shift():
        A(f"s_mov_b32 {s(S_L)}, {s(S_UL)}")
        A(f"s_mov_b32 {s(S_S)}, {s(S_US)}")
        A(f"s_mov_b32 {s(S_CB)}, {s(S_NB)}")
        A(f"s_add_u32 {s(S_U)}, {s(S_U)}, 1")
        A(f"s_mov_b64 {s(S_UL + 1, 2)}, {s(S_VL + 1, 2)}" if False else f"s_mov_b32 {s(S_UL)}, {s(S_VL)}")
        A(f"s_mov_b32 {s(S_US)}, {s(S_VS)}")
        A(f"s_mov_b32 {s(S_UF)}, {s(S_VF)}")
        A(f"s_mov_b32 {s(S_NB)}, {s(S_VB)}")

    sq = [(k, tl) for k in range(24 - SK) for tl in range(2)] + [(k, tl) for tl in range(2) for k in range(24 - SK, 24)]

    def body(AH, kind):
        L = Lds(A)
        V = Vm(A, [("I", k) for k in range(AH)] + (["st", "st"] if kind != "C" else []))
        seq, pre = [], {}

        def vm(tag, x):
            return (cfg.vmc, lambda: V.op(tag, x))
        for n, (k, tl) in enumerate(sq):
            if tl == 0:
                pre[n] = (lambda k=k: V.wait(("I", k)))
            c = "0" if k == 0 else v(V_ACC + 16 * tl, 16)
            seq.append((f"{MF} {v(V_ACC + 16 * tl, 16)}, {a((tl * 24 + k) * 4, 4)}, {v(V_IN + 4 * k, 4)}, {c}", []))
        dec = Capture()
        decode2(dec)
        tdec = Task(0, groups(dec.l))
        tcur = Task(0, [])
        for kk in range(AH, 24):
            ls = ld(kk, S_CB, kk == AH)
            tcur.items += ls[:-1] + [vm(("I", kk), ls[-1])]
        tcur.vstep = 2

        def nxt(off):
            t = Task(0, [])
            for kk in range(AH):
                ls = ld(kk, S_NB)

                def nx(kk=kk, x=ls[-1]):
                    assert GAP[0] + off >= sq.index((kk, 1)) and not tcur.items
                    V.op(("N", kk), x)
                t.items += ls[:-1] + [(cfg.vmc, nx)]
            t.vstep = 2
            t.after = tcur
            return t

        def f1():
            V.wait(("I", AH) if kind == "C" else "st")
            flag_put(A, S_FA1)
            V.q.append("f")
            A(f"s_mov_b32 {s(S_FA1)}, {HUGE}")
        misc = [f"v_xor_b32 {v(V_LW)}, 0x8000, {v(V_LW)}", f"v_xor_b32 {v(V_LR)}, 0x8000, {v(V_LR)}"]
        if wo:
            misc += [f"s_mul_i32 {s(S_O1)}, {s(S_S)}, {WOP_SEG}", f"s_add_u32 {s(S_O1)}, {s(S_O1)}, {s(S_OUT)}",
                     f"s_lshl_b32 {s(E + 1)}, {s(S_L)}, 6", f"s_add_u32 {s(E + 1)}, {s(E + 1)}, {s(S_S)}", f"s_mul_i32 {s(E + 1)}, {s(E + 1)}, 640",
                     f"s_add_u32 {s(S_O3)}, {s(E + 1)}, {s(S_FW)}"]
        else:
            misc += [f"s_lshl_b32 {s(E)}, {s(S_L)}, 6", f"s_add_u32 {s(E)}, {s(E)}, {s(S_S)}",
                     f"s_and_b32 {s(E + 1)}, {s(S_S)}, {NX - 1}", f"s_lshl3_add_u32 {s(E + 1)}, {s(S_L)}, {s(E + 1)}",
                     f"s_mul_i32 {s(E + 1)}, {s(E + 1)}, {XSEGS}", f"s_add_u32 {s(E + 1)}, {s(E + 1)}, {s(S_CH)}", f"s_add_u32 {s(E + 1)}, {s(E + 1)}, {X1B}",
                     vm("X", f"buffer_load_dwordx4 {v(V_XX, 4)}, {v(V_L16)}, {WS}, {s(E + 1)} offen sc1"),
                     f"s_mul_i32 {s(E + 1)}, {s(E)}, {XSEG}", f"s_add_u32 {s(E + 1)}, {s(E + 1)}, {s(S_CH)}", f"s_add_u32 {s(E + 1)}, {s(E + 1)}, {XM}",
                     vm("X", f"buffer_load_dwordx4 {v(V_XX + 4, 4)}, {v(V_P16)}, {WS}, {s(E + 1)} offen sc1"),
                     f"s_lshl_b32 {s(S_FA2)}, {s(E)}, 9", f"s_lshl2_add_u32 {s(S_FA2)}, {s(S_IDX)}, {s(S_FA2)}",
                     f"s_add_u32 {s(S_O3)}, {s(S_FA2)}, {flag_row(F_XIN, 1)}", f"s_add_u32 {s(S_FA2)}, {s(S_FA2)}, {flag_row(F_D4)}",
                     f"s_mul_i32 {s(S_O2)}, {s(S_S)}, {XSEGS}", f"s_add_u32 {s(S_O2)}, {s(S_O2)}, {XIN + 64 * XSEGS}",
                     f"s_add_u32 {s(S_O1)}, {s(S_O2)}, {s(S_CH)}", f"s_lshr_b32 {s(E)}, {s(S_CH)}, 3", f"s_add_u32 {s(S_O2)}, {s(S_O2)}, {s(E)}",
                     f"s_add_u32 {s(S_O2)}, {s(S_O2)}, 40960",
                     f"s_mul_i32 {s(E)}, {s(S_S)}, {32 * 1280}", f"s_cmp_lg_u32 {s(S_L)}, 0\ns_cselect_b32 {s(S_O1)}, {s(E)}, {s(S_O1)}\ns_cselect_b32 {s(S_O3)}, {HUGE}, {s(S_O3)}"]
        tm = Task(0, misc)
        tf = Task(max(cfg.kkf, 2 * (24 - AH)) if kind != "C" else cfg.kkc, [(24, f1)])

        def tail(off):
            r = []
            if not wo:
                cu = Capture()
                unpack8(cu, V_XU, V_XX)
                unpack8(cu, V_XU + 8, V_XX + 4)
                r.append(Task(37 - off, [(4, lambda: V.wait("X"))] + cu.l))

                def d4():
                    assert ("I", 23) not in V.q
                    flag_put(A, S_FA2, local_in)
                    V.q.append("f")
                r.append(Task(44 - off, [(28, d4)]))
            r.append(Task(45 - off, [("w", x) for x in wr(0)]))
            return r

        def second():
            V.wait("S2")
            for x in check:
                A(x)
            A(f"s_cmp_eq_u32 {s(S_GO)}, 0")
            A.nf(f"s_cbranch_scc1 {nm}_E2")
            A.nf(f"s_branch {nm}_E0")
        if kind == "W1":
            sched(A, L, seq, [tcur, tf, nxt(0), tm, tdec] + tail(0), pre=pre, budget=24, nvalu=5)
            st(3)
            A(f"buffer_load_dword {v(V_FV)}, {v(V_FO)}, {WS}, {s(S_VF)} offen sc1")
            A("s_nop 5")
            A.nf(f"s_branch {nm}_E0")
        elif kind == "W0":
            sched(A, L, seq, [tcur, tf, Task(cfg.ks2, [vm("S2", smp)]), tm, tdec] + tail(0), pre=pre, budget=24, nvalu=5)
            st(3)
            second()
        else:
            kc = 2 * (24 - AH)
            tsm = Task(kc - 3 - cfg.ksl, [vm("S", smp)])
            tchk = Task(kc - 3, [(4, lambda: V.wait("S"))] + check + [f"s_cmp_eq_u32 {s(S_GO)}, 0"])
            sched(A, L, seq[:kc], [tcur, tf, tsm, tm, tdec, tchk], pre=pre, budget=24, nvalu=5)
            no = A.newlabel("no")
            A.nf(f"s_cbranch_scc0 {no}")
            pre2 = {n - kc: f for n, f in pre.items() if n >= kc}
            q0 = list(V.q)
            sched(A, L, seq[kc:], [nxt(kc)] + tail(kc), pre=pre2, budget=24, nvalu=5)
            st(3)
            A(f"buffer_load_dword {v(V_FV)}, {v(V_FO)}, {WS}, {s(S_VF)} offen sc1")
            A("s_nop 5")
            A.nf(f"s_branch {nm}_E1")
            A.label_nf(no)
            V.q = q0
            L.q = []
            sched(A, L, seq[kc:], [Task(max(0, cfg.ks2 - kc), [vm("S2", smp)])] + tail(kc), pre=pre2, budget=24, nvalu=5)
            st(3)
            second()

    def epilogue(sx, ks):
        A.label_nf(f"{nm}_{sx}")
        ex = [ld(k, S_NB, k == ks[0]) for k in ks]

        def one(n=1):
            for _ in range(n):
                if ex:
                    for x in ex.pop(0):
                        A(x)
        if ex:
            one()
            A("s_nop 2")
        else:
            A("s_nop 4")
        for n, x in enumerate(wr(1)):
            A(x)
            if n & 1:
                one()
        A("s_waitcnt lgkmcnt(0)")
        A("s_barrier")
        for i in range(8):
            A(f"ds_read_b128 {v(V_RD + 4 * i, 4)}, {v(V_LR)} offset:{i * 1024}")
        one(3 if not wo else 4)
        A("s_waitcnt lgkmcnt(4)")
        for i in range(0, 8, 2):
            A(f"v_pk_add_f32 {v(V_RD + i, 2)}, {v(V_RD + i, 2)}, {v(V_RD + 8 + i, 2)}")
        A("s_waitcnt lgkmcnt(0)")
        for i in range(0, 8, 2):
            A(f"v_pk_add_f32 {v(V_RD + 16 + i, 2)}, {v(V_RD + 16 + i, 2)}, {v(V_RD + 24 + i, 2)}")
        one()
        for i in range(0, 8, 2):
            A(f"v_pk_add_f32 {v(V_RD + i, 2)}, {v(V_RD + i, 2)}, {v(V_RD + 16 + i, 2)}")
        if wo:
            one(24)
            for k in range(2):
                A(f"buffer_store_dwordx4 {v(V_RD + 4 * k, 4)}, {v(V_OA)}, {WS}, {s(S_O1)} offen offset:{k * 256} sc1")
        else:
            X = [V_RD + i for i in range(8)]
            for i in range(0, 8, 2):
                rnd2(A, V_T, X[i], X[i + 1])
            one()
            for i in range(0, 8, 2):
                A(f"v_pk_add_f32 {v(X[i], 2)}, {v(X[i], 2)}, {v(V_XU + i, 2)}")
            for i in range(0, 8, 2):
                rnd2(A, V_T, X[i], X[i + 1])
            one()
            for i in range(0, 8, 2):
                A(f"v_pk_add_f32 {v(X[i], 2)}, {v(X[i], 2)}, {v(V_XU + 8 + i, 2)}")
            for i in range(0, 8, 2):
                A(f"v_cvt_pk_bf16_f32 {v(V_PK + i // 2)}, {v(X[i])}, {v(X[i + 1])}")
            one(24)
            l1, l2 = A.newlabel("w4o"), A.newlabel("w4n")
            A(f"s_cmp_lg_u32 {s(S_L)}, 0")
            A(f"s_cbranch_scc1 {l1}")
            A(f"buffer_store_dwordx4 {v(V_PK, 4)}, {v(V_P16)}, {WS}, {s(S_O1)} offen sc1")
            unpack8(A, V_RD, V_PK)
            t = V_T
            A(f"v_pk_add_f32 {v(t, 2)}, {v(X[0], 2)}, {v(X[2], 2)}")
            A(f"v_pk_mul_f32 {v(t + 2, 2)}, {v(X[0], 2)}, {v(X[0], 2)}")
            for i in range(2, 8, 2):
                if i >= 4:
                    A(f"v_pk_add_f32 {v(t, 2)}, {v(t, 2)}, {v(X[i], 2)}")
                A(f"v_pk_fma_f32 {v(t + 2, 2)}, {v(X[i], 2)}, {v(X[i], 2)}, {v(t + 2, 2)}")
            A(f"v_add_f32 {v(t)}, {v(t)}, {v(t + 1)}")
            A(f"v_add_f32 {v(t + 1)}, {v(t + 2)}, {v(t + 3)}")
            A(f"v_permlane32_swap_b32 {v(t)}, {v(t + 1)}")
            A(f"v_add_f32 {v(t)}, {v(t)}, {v(t + 1)}")
            A(f"v_mov_b32 {v(t + 1)}, {v(t)}")
            A(f"v_permlane16_swap_b32 {v(t)}, {v(t + 1)}")
            A(f"v_add_f32 {v(t)}, {v(t)}, {v(t + 1)}")
            A(f"v_mov_b32 {v(t + 1)}, {v(t)}")
            A(f"v_permlane32_swap_b32 {v(t)}, {v(t + 1)}")
            A("s_mov_b64 exec, 0xffff")
            A(f"buffer_store_dwordx2 {v(t, 2)}, {v(V_SAD)}, {WS}, {s(S_O2)} offen sc1")
            A("s_mov_b64 exec, -1")
            A(f"s_branch {l2}")
            A.label(l1)
            if cfg.deg:
                m = (0xffff << cfg.deg) & 0xffff
                h_ = 1 << (cfg.deg - 1)
                for i in range(4):
                    A(f"v_and_b32 {v(V_PK + i)}, {m * 0x10001}, {v(V_PK + i)}")
                    if cfg.deg > 1:
                        A(f"v_or_b32 {v(V_PK + i)}, {h_ * 0x10001}, {v(V_PK + i)}")
            A(f"buffer_store_dwordx2 {v(V_PK, 2)}, {v(V_OA)}, {s(SRD_O, 4)}, {s(S_O1)} offen")
            A(f"buffer_store_dwordx2 {v(V_PK + 2, 2)}, {v(V_OA)}, {s(SRD_O, 4)}, {s(S_O1)} offen offset:32")
            A.label(l2)
        A(f"s_mov_b32 {s(S_FA1)}, {s(S_O3)}")
        st(4)

    A(f"s_mov_b32 {s(S_U)}, 0")
    A(f"s_mov_b32 {s(S_FA1)}, {HUGE}")
    decode(A)
    decode2(A)
    st.init()
    A.label(nm + "_COLD")
    A(smp)
    A("s_waitcnt vmcnt(1)")
    flag_put(A, S_FA1)
    A(f"s_mov_b32 {s(S_FA1)}, {HUGE}")
    st(5)
    A(f"s_cmp_ge_u32 {s(S_U)}, 128")
    A(f"s_cbranch_scc1 {nm}_END")
    A("s_waitcnt vmcnt(1)")
    A(f"v_cmp_eq_u32 vcc, 0, {v(V_FV)}")
    A(f"s_cbranch_vccz {nm}_RDY")
    sv = cfg.fsl
    cfg.fsl = cfg.bps if local_in else cfg.wgp - 1
    flag_block(A, S_UF)
    cfg.fsl = sv
    A.label(nm + "_RDY")
    st(6)
    for k in range(AC):
        for x in ld(k, S_NB):
            A(x)
        if cfg.ksp and k < AC - 1:
            A(f"s_nop {cfg.ksp - 1}")
    A.label(nm + "_C")
    shift()
    body(AC, "C")
    epilogue("E2", list(range(AC)))
    A(f"s_branch {nm}_C")
    epilogue("E1", list(range(AC, AW)))
    A(f"s_waitcnt vmcnt({AW - AC + 2})")
    A(f"s_branch {nm}_W")
    epilogue("E0", [])
    A(f"s_cmp_lg_u32 {s(S_GO)}, 0")
    A(f"s_cbranch_scc1 {nm}_COLD")
    A("s_waitcnt vmcnt(2)")
    A.label(nm + "_W")
    shift()
    for x in check:
        A(x)
    A(f"s_cmp_lg_u32 {s(S_GO)}, 0")
    A(f"s_cbranch_scc1 {nm}_W0")
    body(AW, "W1")
    A.label(nm + "_W0")
    body(AW, "W0")
    A.label(nm + "_END")
    st.dump(83, T, V_T)
    if cfg.timing == 6 and not wo:
        A("s_memrealtime s[98:99]")
        A("s_waitcnt lgkmcnt(0)")
        A("s_sub_u32 s98, s98, s96")
        A(f"v_mov_b32 {v(V_T)}, s98")
        A(f"v_mov_b32 {v(V_T + 1)}, 28")
        A("s_mov_b64 exec, 1")
        A(f"buffer_store_dword {v(V_T)}, {v(V_T + 1)}, {s(SRD_DBG, 4)}, 0 offen")
    A("s_endpgm")
```

```python
from common import *
from stations import item_of, Capture

WS = s(SRD_WS, 4)
SM = "v_smfmac_f32_16x16x64_bf16"
MF = "v_mfma_f32_16x16x32_bf16"
NONE = 0x80000000
DF = ["sc1 ", "", "nt sc1 ", "sc0 sc1 ", "nt ", "sc0 nt sc1 "]

S_N, S_L, S_T, S_NL, S_NT, S_L2, S_T2, S_TAG, S_T1, S_PLA = range(50, 60)
T = 60
S_PXA, S_DPA, S_OIA, S_VMA, S_DOA, S_KSRC, S_KLDS, S_FLG1, S_FLG2, S_DEF = range(68, 78)
S_KP, S_FP, S_KCUR, S_FCUR = 78, 79, 80, 81
S_XB, S_PXR, S_HOFF, S_XGH, S_FXH, S_CS = 82, 83, 84, 85, 86, 87
S_MA, S_MB = 88, 90
S_X, S_J, S_KF, S_NTAG, S_NT1, S_OIH, S_VMH, S_DOH, S_ISV = 28, 29, 30, 31, 32, 33, 34, 35, 36
S_T0 = 38
V_LANE, V_L16, V_IDX = 0, 1, 2
V_T = 12


class Lds:
    def __init__(self, A):
        self.A, self.q = A, []

    def op(self, tag, text):
        self.A(text)
        self.q.append(tag)

    def wait(self, tag):
        if tag not in self.q:
            return
        i = len(self.q) - 1 - self.q[::-1].index(tag)
        n = len(self.q) - 1 - i
        self.A(f"s_waitcnt lgkmcnt({min(n, 15)})")
        if n <= 15:
            self.q = self.q[i + 1:]
        else:
            self.q = self.q[len(self.q) - 15:]

    def drain(self):
        self.A("s_waitcnt lgkmcnt(0)")
        self.q = []


GAP = [0]


def cost(x):
    if x.startswith("ds_"):
        return 8
    if x.startswith("buffer_"):
        return CFG[0].vmc
    if x.startswith("s_cbranch") or x.startswith("s_branch"):
        return 16
    if x.startswith("v_pk_") or x.split()[0] in ("v_exp_f32", "v_rcp_f32", "v_sqrt_f32", "v_rsq_f32"):
        return 8
    return 4


class Task:
    def __init__(self, rel, items, step=0):
        self.rel, self.items, self.step = rel, list(items), step
        self.vstep, self.after = 0, None


def sched(A, L, seq, tasks, pre=None, budget=12, nvalu=1, lim=None):
    pre = pre or {}

    def icost(it):
        if isinstance(it, tuple):
            return it[0] if callable(it[1]) else 8
        return sum(cost(y) for y in it.split("\n"))

    def isv(it):
        return 0 if isinstance(it, tuple) else sum(1 for y in it.split("\n") if y.startswith("v_"))

    def emit(it):
        if isinstance(it, tuple):
            if callable(it[1]):
                it[1]()
            else:
                L.op(it[0], it[1])
        else:
            A(it)

    def pending(tag):
        return [t for t in tasks if any(isinstance(i, tuple) and i[0] == tag for i in t.items)]
    over = 0
    for k, (txt, need) in enumerate(seq):
        if k in pre:
            pre[k]()
        for tag in need:
            for t in pending(tag):
                assert t.rel <= k, (tag, k)
                while pending(tag):
                    emit(t.items.pop(0))
                    over += 1
            L.wait(tag)
        A(txt)
        GAP[0] = k
        if lim:
            budget, nvalu = lim(k)
        rem, nv = budget, 0
        if k + 1 < len(seq) and any(tag in L.q for tag in seq[k + 1][1]):
            rem -= 4
        full = rem
        for t in tasks:
            while t.items and t.rel <= k and not (t.after and t.after.items):
                it = t.items[0]
                c = icost(it)
                big = isinstance(it, tuple) and callable(it[1]) and c == CFG[0].vmc
                if big and t.vstep and getattr(t, "vrel", 0) > k:
                    break
                if (c <= rem and nv + isv(it) <= nvalu) or (rem == full and rem >= budget - 4 and c > budget) or (budget > 16 and c >= budget - 4 and rem >= budget - 12):
                    emit(t.items.pop(0))
                    rem -= c
                    nv += isv(it)
                    if big and t.vstep:
                        t.vrel = k + t.vstep
                    if t.step and c > 0:
                        t.rel = k + t.step
                else:
                    break
    left = sum(len(t.items) for t in tasks)
    if CFG[0].verbose:
        print("sched: forced", over, "left", left)
    for t in tasks:
        while t.items:
            emit(t.items.pop(0))


def groups(lines):
    grp, cur = [], []
    for x in lines:
        if x.startswith("s_cselect") or x.startswith("s_addc"):
            cur.append(x)
        else:
            if cur:
                grp.append("\n".join(cur))
            cur = [x]
    if cur:
        grp.append("\n".join(cur))
    return grp


def cap(fn):
    c = Capture()
    fn(c)
    out = []
    for x in c.l:
        out += [y for y in x.split("\n") if y.strip()]
    return out


def spin_fail(A, nf=True):
    A(f"s_sub_u32 {s(S_SPIN)}, {s(S_SPIN)}, 1")
    A("s_cbranch_scc1 ABORT")


def doorbell(A, cfg, v_off, s_addr, vd):
    top, ok = A.newlabel("db"), A.newlabel("dbok")
    ld = f"buffer_load_dword {v(vd)}, {v(v_off)}, {WS}, {s(s_addr)} offen sc1"
    if not cfg.dpp2:
        A.label(top)
        A(ld)
        A("s_waitcnt vmcnt(0)")
        A(f"v_cmp_gt_u32 vcc, {s(S_T1)}, {v(vd)}")
        A.nf(f"s_cbranch_vccz {ok}")
        if cfg.dsl:
            A(f"s_sleep {cfg.dsl}")
        spin_fail(A)
        A(f"s_branch {top}")
        A.label_nf(ok)
        return
    ld2 = f"buffer_load_dword {v(vd + 1)}, {v(v_off)}, {WS}, {s(s_addr)} offen sc1"
    A(ld)
    A(f"s_sleep {cfg.dpp2}")
    A.label(top)
    A(ld2)
    A("s_waitcnt vmcnt(1)")
    A(f"v_cmp_gt_u32 vcc, {s(S_T1)}, {v(vd)}")
    A.nf(f"s_cbranch_vccz {ok}")
    A(ld)
    A("s_waitcnt vmcnt(1)")
    A(f"v_cmp_gt_u32 vcc, {s(S_T1)}, {v(vd + 1)}")
    A.nf(f"s_cbranch_vccz {ok}")
    spin_fail(A)
    A(f"s_branch {top}")
    A.label_nf(ok)


def common_setup(A, cfg, shift):
    A(f"s_lshr_b32 {s(S_X)}, {s(S_ROLE)}, {shift}")
    A(f"s_and_b32 {s(S_J)}, {s(S_ROLE)}, {(1 << shift) - 1}")
    A(f"s_mul_i32 {s(S_XB)}, {s(S_X)}, {C2_X}")
    A(f"s_add_u32 {s(S_XB)}, {s(S_XB)}, {C2}")
    A(f"v_lshlrev_b32 {v(V_L16)}, 4, {v(V_LANE)}")
    A(f"v_and_b32 {v(V_T)}, 1, {v(V_LANE)}")
    A(f"v_mul_u32_u24 {v(V_IDX)}, 0xaaaa, {v(V_T)}")
    A(f"v_or_b32 {v(V_IDX)}, 0x4444, {v(V_IDX)}")


def near_half(A, cfg, dst):
    if not cfg.near:
        return
    A(f"v_mov_b32 {v(V_T + 1)}, 192")
    if cfg.vr:
        top, out = A.newlabel("vw"), A.newlabel("vx")
        A(f"s_cmp_lg_u32 {s(S_MODE)}, 0")
        A(f"s_cbranch_scc1 {out}")
        A.label(top)
        A(f"buffer_load_dword {v(V_T)}, {v(V_T + 1)}, {s(SRD_DBG, 4)}, 0 offen sc1")
        A("s_waitcnt vmcnt(0)")
        A(f"v_and_b32 {v(V_T + 2)}, 0xffff, {v(V_T)}")
        A(f"v_cmp_ne_u32 vcc, 64, {v(V_T + 2)}")
        poll_tail(A, top, sleep=4)
        A(f"v_readfirstlane_b32 {s(T)}, {v(V_T)}")
        A(f"s_cmp_gt_u32 {s(T)}, {33 << 16}")
        A(f"s_cselect_b32 {s(T)}, 0x2000, 0")
        if cfg.near == 2:
            A(f"s_xor_b32 {s(T)}, {s(T)}, 0x2000")
        A(f"s_add_u32 {s(dst)}, {s(dst)}, {s(T)}")
        A.label(out)
        return
    A(f"buffer_load_dword {v(V_T)}, {v(V_T + 1)}, {s(SRD_DBG, 4)}, 0 offen sc1")
    A("s_waitcnt vmcnt(0)")
    A(f"v_readfirstlane_b32 {s(T)}, {v(V_T)}")
    A(f"s_cmp_gt_i32 {s(T)}, 0")
    A(f"s_cselect_b32 {s(T)}, 0x2000, 0")
    if cfg.near == 2:
        A(f"s_xor_b32 {s(T)}, {s(T)}, 0x2000")
    A(f"s_add_u32 {s(dst)}, {s(dst)}, {s(T)}")


def timing_end(A, cfg, stamp, idx_base):
    A(f"s_add_u32 {s(T + 1)}, {s(S_ROLE)}, {idx_base}")
    stamp.dump(T + 1, T, V_T)
    if cfg.timing and idx_base == 0:
        lab = A.newlabel("tm")
        A(f"s_memrealtime {s(S_T0 + 2, 2)}")
        A("s_waitcnt lgkmcnt(0)")
        A(f"s_cmp_lg_u32 {s(S_ROLE)}, 0")
        A(f"s_cbranch_scc1 {lab}")
        A(f"s_cmp_lg_u32 {s(S_WAVE)}, 0")
        A(f"s_cbranch_scc1 {lab}")
        A(f"s_sub_u32 {s(T)}, {s(S_T0 + 2)}, {s(S_T0)}")
        A(f"v_mov_b32 {v(V_T)}, {s(T)}")
        if cfg.timing == 6:
            A("s_memtime s[94:95]")
            A("s_waitcnt lgkmcnt(0)")
            A(f"s_sub_u32 {s(S_MODE)}, s94, s92")
        A(f"v_mov_b32 {v(V_T + 1)}, {s(S_MODE)}")
        A(f"v_mov_b32 {v(V_T + 2)}, 16")
        A("s_mov_b64 exec, 1")
        A(f"buffer_store_dwordx2 {v(V_T, 2)}, {v(V_T + 2)}, {s(SRD_DBG, 4)}, 0 offen")
        if cfg.timing == 6:
            A(f"s_sub_u32 {s(T)}, {s(S_T0)}, s100")
            A(f"v_mov_b32 {v(V_T)}, {s(T)}")
            A(f"buffer_store_dword {v(V_T)}, {v(V_T + 2)}, {s(SRD_DBG, 4)}, 0 offen offset:8")
        A.label(lab)
    A("s_endpgm")


def retry_dump(A, idx_base):
    A(f"s_add_u32 {s(T)}, {s(S_ROLE)}, {idx_base}")
    A(f"s_lshl_b32 {s(T)}, {s(T)}, 2")
    A(f"s_add_u32 {s(T)}, {s(T)}, {s(S_WAVE)}")
    A(f"s_lshl_b32 {s(T)}, {s(T)}, 6")
    A(f"s_add_u32 {s(T)}, {s(T)}, 0x100000")
    A("s_mov_b64 exec, 1")
    for k in range(5):
        A(f"v_mov_b32 {v(V_T)}, {s(92 + k)}")
        A(f"buffer_store_dword {v(V_T)}, {v(V_L16)}, {WS}, {s(T)} offen offset:{4 * k}")
    A("s_mov_b64 exec, -1")


class NoStamp:
    def init(self): pass
    def __call__(self, k): pass
    def dump(self, *a_): pass
    def flush(self): pass


class LightStamp(RawStamper):
    R = [16, 18, 20, 22, 24, 26, 96, 98]

    def __call__(self, k):
        self.A(f"s_memtime {s(self.R[k], 2)}")

    def flush(self):
        A, b = self.A, self.b
        lab = A.newlabel("fs")
        A(f"s_sub_u32 {s(b + 2)}, {s(self.s_t)}, {self.t0}")
        A(f"s_cmp_ge_u32 {s(b + 2)}, 7")
        A(f"s_cbranch_scc1 {lab}")
        A(f"s_lshl_b32 {s(b + 3)}, {s(b + 2)}, 3")
        A(f"s_lshl_b64 exec, 1, {s(b + 3)}")
        A("s_waitcnt lgkmcnt(0)")
        for k in range(8):
            A(f"v_mov_b32 {v(self.vr)}, {s(self.R[k])}")
            A(f"s_lshl_b64 exec, exec, 1")
        A("s_mov_b64 exec, -1")
        A(f"s_cmp_lg_u32 {s(b + 2)}, 0")
        A(f"s_cbranch_scc1 {lab}x")
        self.cal(56)
        A.label(lab + "x")
        A(f"s_sub_u32 {s(b + 2)}, {s(self.s_t)}, {self.t0}")
        A(f"s_cmp_lg_u32 {s(b + 2)}, 6")
        A(f"s_cbranch_scc1 {lab}")
        self.cal(60)
        A.label(lab)


def mk_stamp(A, cfg, vreg):
    return LightStamp(A, cfg, 92, S_N, vreg, t0=cfg.rawt0) if cfg.timing == 3 else NoStamp()


def flag_val(A, cfg, vr):
    if cfg.timing == 4:
        A(f"s_memrealtime {s(98, 2)}")
        A("s_waitcnt lgkmcnt(0)")
        A(f"s_or_b32 s98, s98, 1")
        A(f"v_mov_b32 {v(vr)}, s98")
    else:
        A(f"v_mov_b32 {v(vr)}, 1")


def gen_sv(A, cfg, nwg):
    LAG = cfg.LAG
    V_GB = 3
    V_XW, V_XR, V_OST, V_FLG, V_FV, V_DB = 6, 7, 8, 9, 10, 11
    V_KST, V_BW, V_MW, V_MW2 = 20, 21, 22, 23
    V_ACC = 24
    V_F = 48
    V_KA, V_G4 = 58, 59
    V_A = 60
    V_B = 72
    V_FREE = 88
    V_PL, V_PR = 60, 80
    V_STAMP = 111 if False else 19
    V_L16B = 18
    V_RDY = 58
    V_SY, V_SY3 = 20, 8
    V_KEEP = 100
    V_VS0, V_VS1 = 6, 7
    L_RES, L_KV, L_MEM, L_X = 0, 81920, 131072, 141312

    def wreg(slot, tile):
        idx = slot * 5 + tile
        return ("a", idx * 8) if idx < 32 else ("v", 112 + (idx - 32) * 8)

    def wtxt(slot, tile):
        if tile == 5:
            return v(V_B + 8 * (slot & 1), 8)
        k, r = wreg(slot, tile)
        return a(r, 8) if k == "a" else v(r, 8)

    g_, c_ = V_T + 2, V_T + 3

    def lane_gc():
        A(f"v_lshrrev_b32 {v(g_)}, 4, {v(V_LANE)}")
        A(f"v_and_b32 {v(c_)}, 15, {v(V_LANE)}")

    def sv_setup():
        for q in range(1, 4):
            A(f"s_add_u32 {s(T)}, {s(S_WAVE)}, {q}")
            A(f"s_and_b32 {s(T)}, {s(T)}, 3")
            A(f"s_lshl_b32 {s(T)}, {s(T)}, 11")
            A(f"s_add_u32 {s(T)}, {s(T)}, {L_MEM}")
            A(f"v_add_u32 {v(V_GB + q - 1)}, {s(T)}, {v(V_L16)}")
        A(f"v_add_u32 {v(V_G4)}, {L_MEM + 8192}, {v(V_L16)}")
        A(f"s_lshl_b32 {s(T)}, {s(S_WAVE)}, 11")
        A(f"s_add_u32 {s(T)}, {s(T)}, {L_MEM}")
        A(f"v_add_u32 {v(V_MW)}, {s(T)}, {v(V_L16)}")
        A(f"s_lshr_b32 {s(T)}, {s(S_WAVE)}, 1")
        A(f"s_lshl_b32 {s(T)}, {s(T)}, 10")
        A(f"s_and_b32 {s(T + 1)}, {s(S_WAVE)}, 1")
        A(f"s_lshl_b32 {s(T + 1)}, {s(T + 1)}, 3")
        if cfg.h16 != 2:
            A(f"s_add_u32 {s(T)}, {s(T)}, {s(T + 1)}")
        A(f"v_add_u32 {v(V_MW2)}, {s(T)}, {v(V_G4)}")
        A(f"s_mul_i32 {s(T)}, {s(S_WAVE)}, 20480")
        A(f"v_add_u32 {v(V_BW)}, {s(T)}, {v(V_L16)}")
        if cfg.pb:
            A(f"v_and_b32 {v(V_DB)}, 7, {v(V_LANE)}")
            A(f"v_lshlrev_b32 {v(V_DB)}, 2, {v(V_DB)}")
            A(f"v_bfe_u32 {v(V_T)}, {v(V_LANE)}, 3, 2")
            A(f"v_lshl_add_u32 {v(V_DB)}, {v(V_T)}, 7, {v(V_DB)}")
        else:
            A(f"v_min_u32 {v(V_DB)}, 7, {v(V_LANE)}")
            A(f"v_lshlrev_b32 {v(V_DB)}, 2, {v(V_DB)}")
        A(f"s_xor_b32 {s(T)}, {s(S_X)}, 1")
        A(f"s_lshl_b32 {s(T)}, {s(T)}, 19")
        A(f"s_lshl_b32 {s(T + 1)}, {s(S_WAVE)}, {11 if cfg.h16 else 14}")
        A(f"s_add_u32 {s(S_PXR)}, {s(T)}, {s(T + 1)}")
        A(f"s_add_u32 {s(S_PXR)}, {s(S_PXR)}, {XP}")

    A.label("ROLE_CS")
    if cfg.timing == 6:
        A("s_mov_b32 s100, s96")
    common_setup(A, cfg, 4)
    sv_setup()
    A(f"s_mov_b32 {s(S_ISV)}, 0")
    A(f"s_mov_b32 {s(S_MA)}, 0xcccccccc")
    A(f"s_mov_b32 {s(S_MA + 1)}, 0xcccccccc")
    A(f"s_mov_b32 {s(S_MB)}, 0x33333333")
    A(f"s_mov_b32 {s(S_MB + 1)}, 0x33333333")
    A(f"s_mov_b32 {s(S_CS)}, 0x3dd53b95")
    lane_gc()
    A(f"v_lshrrev_b32 {v(V_T)}, 2, {v(c_)}")
    A(f"v_add_u32 {v(V_T)}, {v(V_T)}, {v(g_)}")
    A(f"v_and_b32 {v(V_T)}, 3, {v(V_T)}")
    A(f"v_lshlrev_b32 {v(V_XW)}, 3, {v(V_T)}")
    A(f"v_lshl_add_u32 {v(V_XW)}, {v(c_)}, 5, {v(V_XW)}")
    A(f"s_mul_i32 {s(T)}, {s(S_WAVE)}, {512 if cfg.s3 == 1 else 1536}")
    A(f"s_add_u32 {s(T)}, {s(T)}, {L_X}")
    A(f"v_add_u32 {v(V_XW)}, {s(T)}, {v(V_XW)}")
    A(f"v_add_u32 {v(V_T)}, {v(V_LANE)}, {v(g_)}")
    A(f"v_and_b32 {v(V_T)}, 3, {v(V_T)}")
    A(f"v_lshlrev_b32 {v(V_XR)}, 3, {v(V_T)}")
    A(f"v_lshrrev_b32 {v(V_T)}, 2, {v(V_LANE)}")
    A(f"v_lshl_add_u32 {v(V_XR)}, {v(V_T)}, 5, {v(V_XR)}")
    A(f"v_add_u32 {v(V_XR)}, {L_X}, {v(V_XR)}")
    A(f"s_min_u32 {s(T + 2)}, {s(S_WAVE)}, 2")
    A(f"v_lshrrev_b32 {v(V_T)}, 2, {v(c_)}")
    A(f"v_and_b32 {v(V_T + 1)}, 1, {v(c_)}")
    A(f"v_lshl_add_u32 {v(V_T)}, {v(V_T)}, 1, {v(V_T + 1)}")
    A(f"v_bfe_u32 {v(V_T + 1)}, {v(c_)}, 1, 1")
    A(f"v_lshlrev_b32 {v(V_OST)}, 8, {v(g_)}")
    A(f"v_lshl_add_u32 {v(V_OST)}, {v(V_T)}, 5, {v(V_OST)}")
    A(f"v_xor_b32 {v(V_T + 4)}, 1, {v(V_T + 1)}")
    A(f"v_lshl_add_u32 {v(V_OST)}, {v(V_T + 4)}, 4, {v(V_OST)}")
    A(f"v_lshlrev_b32 {v(V_KST)}, 8, {v(g_)}")
    A(f"v_lshl_add_u32 {v(V_KST)}, {v(V_T + 1)}, 7, {v(V_KST)}")
    A(f"v_and_b32 {v(V_T + 4)}, 3, {v(V_T)}")
    A(f"v_lshl_add_u32 {v(V_KST)}, {v(V_T + 4)}, 5, {v(V_KST)}")
    A(f"v_lshrrev_b32 {v(V_T + 4)}, 2, {v(V_T)}")
    A(f"v_lshl_add_u32 {v(V_KST)}, {v(V_T + 4)}, 4, {v(V_KST)}")
    A(f"v_min_u32 {v(V_T)}, 5, {v(V_LANE)}")
    A(f"s_mul_i32 {s(T)}, {s(S_ROLE)}, 3")
    A(f"v_add_u32 {v(V_FLG)}, {s(T)}, {v(V_T)}")
    A(f"v_lshlrev_b32 {v(V_FLG)}, 2, {v(V_FLG)}")
    A(f"v_add_u32 {v(V_T + 1)}, {65536 - 12}, {v(V_FLG)}")
    A(f"v_cmp_lt_u32 vcc, 2, {v(V_T)}")
    A(f"v_cndmask_b32 {v(V_FLG)}, {v(V_FLG)}, {v(V_T + 1)}, vcc")
    A(f"s_mul_i32 {s(S_HOFF)}, {s(S_ROLE)}, 12288")
    A(f"s_add_u32 {s(S_HOFF)}, {s(S_HOFF)}, {KX}")
    A(f"s_mul_i32 {s(T)}, {s(S_J)}, 3072")
    A(f"s_lshl_b32 {s(T + 1)}, {s(T + 2)}, 10")
    A(f"s_add_u32 {s(T)}, {s(T)}, {s(T + 1)}")
    A(f"s_add_u32 {s(T)}, {s(T)}, {s(S_XB)}")
    A(f"s_add_u32 {s(S_OIH)}, {s(T)}, {OI_OFF}")
    A(f"s_add_u32 {s(S_VMH)}, {s(T)}, {VM_OFF}")
    A(f"s_mul_i32 {s(S_XGH)}, {s(S_ROLE)}, {XG2_HEAD}")
    A(f"s_add_u32 {s(S_XGH)}, {s(S_XGH)}, {XG}")
    A(f"s_lshl_b32 {s(S_FXH)}, {s(S_ROLE)}, 5")
    A(f"s_lshl_b32 {s(T + 1)}, {s(T + 2)}, 2")
    A(f"s_add_u32 {s(S_FXH)}, {s(S_FXH)}, {FXG}")
    A(f"s_lshr_b32 {s(T)}, {s(S_J)}, 2")
    A(f"s_lshl_b32 {s(T)}, {s(T)}, 7")
    A(f"s_and_b32 {s(T + 3)}, {s(S_J)}, 3")
    A(f"s_mul_i32 {s(T + 3)}, {s(T + 3)}, 12")
    A(f"s_add_u32 {s(T)}, {s(T)}, {s(T + 3)}")
    A(f"s_add_u32 {s(T)}, {s(T)}, {s(T + 1)}")
    A(f"s_add_u32 {s(T)}, {s(T)}, {s(S_XB)}")
    A(f"s_add_u32 {s(S_DOH)}, {s(T)}, {DO_OFF}")
    lab = A.newlabel("si")
    A(f"s_cmp_eq_u32 {s(S_WAVE)}, 3")
    A(f"s_cbranch_scc1 {lab}")
    A(f"v_mov_b32 {v(V_T)}, -1")
    A(f"v_mov_b32 {v(V_T + 1)}, 0")
    lst = []
    for k in range(8):
        lst.append(f"s_add_u32 {s(T)}, {s(S_OIH)}, {k * 49152}")
        lst.append(f"buffer_store_dword {v(V_T)}, {v(V_L16)}, {WS}, {s(T)} offen")
    lst.append("s_mov_b64 exec, 1")
    lst.append(f"buffer_store_dword {v(V_T + 1)}, {v(V_L16)}, {WS}, {s(S_DOH)} offen")
    lst.append(f"buffer_store_dword {v(V_T + 1)}, {v(V_L16)}, {WS}, {s(S_DOH)} offen offset:512")
    lst.append("s_mov_b64 exec, -1")
    lstore(A, lst)
    A.label(lab)
    V_DA = V_FREE + 16
    S_O0, S_O1 = S_KSRC, S_KLDS
    A(f"s_mul_i32 {s(S_O0)}, {s(S_ROLE)}, 384")
    A(f"s_mov_b32 {s(S_O1)}, {s(S_O0)}")

    def dma_addr(isv):
        for i in range(3):
            A(f"v_add_u32 {v(V_T)}, {64 * i}, {v(V_LANE)}")
            A(f"v_mul_u32_u24 {v(V_T + 1)}, 2731, {v(V_T)}")
            A(f"v_lshrrev_b32 {v(V_T + 1)}, 16, {v(V_T + 1)}")
            A(f"v_mul_u32_u24 {v(V_T + 4)}, 24, {v(V_T + 1)}")
            A(f"v_sub_u32 {v(V_T)}, {v(V_T)}, {v(V_T + 4)}")
            A(f"v_mul_u32_u24 {v(V_DA + i)}, 12288, {v(V_T + 1)}")
            A(f"v_lshl_add_u32 {v(V_DA + i)}, {v(V_T)}, 4, {v(V_DA + i)}")
            if not isv and cfg.s3 == 1:
                A(f"v_mul_u32_u24 {v(V_DA + i)}, 12288, {v(V_T + 1)}")
                A(f"v_mul_u32_u24 {v(V_T + 1)}, 43, {v(V_T)}")
                A(f"v_lshrrev_b32 {v(V_T + 1)}, 8, {v(V_T + 1)}")
                A(f"v_lshl_add_u32 {v(V_DA + i)}, {v(V_T + 1)}, 5, {v(V_DA + i)}")
                A(f"v_mul_u32_u24 {v(V_T + 1)}, 6, {v(V_T + 1)}")
                A(f"v_sub_u32 {v(V_T)}, {v(V_T)}, {v(V_T + 1)}")
                A(f"v_and_b32 {v(V_T + 1)}, 1, {v(V_T)}")
                A(f"v_lshl_add_u32 {v(V_DA + i)}, {v(V_T + 1)}, 4, {v(V_DA + i)}")
                A(f"v_bfe_u32 {v(V_T + 1)}, {v(V_T)}, 1, 1")
                A(f"v_lshl_add_u32 {v(V_DA + i)}, {v(V_T + 1)}, 8, {v(V_DA + i)}")
                A(f"v_bfe_u32 {v(V_T + 1)}, {v(V_T)}, 2, 1")
                A(f"v_lshl_add_u32 {v(V_DA + i)}, {v(V_T + 1)}, 7, {v(V_DA + i)}")
            if isv:
                A(f"v_mul_u32_u24 {v(V_T + 1)}, 43, {v(V_T)}")
                A(f"v_lshrrev_b32 {v(V_T + 1)}, 8, {v(V_T + 1)}")
                A(f"v_mul_u32_u24 {v(V_T + 1)}, 96, {v(V_T + 1)}")
                A(f"v_add_u32 {v(V_DA + i)}, {v(V_DA + i)}, {v(V_T + 1)}")
    dma_addr(False)
    make_srd(A, SRD_W, P_WQ, 640 * 12288)
    make_srd(A, 52, P_WK, 640 * 12288)
    A("s_branch SV_LOAD")

    A.label("ROLE_CV")
    common_setup(A, cfg, 3)
    sv_setup()
    A(f"s_mov_b32 {s(S_ISV)}, 1")
    for r in (V_OST, V_FLG, V_KST):
        A(f"v_mov_b32 {v(r)}, 0")
    A(f"s_and_b32 {s(T + 2)}, {s(S_WAVE)}, 1")
    A(f"s_lshl_b32 {s(T)}, {s(T + 2)}, 11")
    A(f"v_add_u32 {v(V_VS0)}, {s(T)}, {v(V_L16)}")
    A(f"s_lshl_b32 {s(T)}, {s(T + 2)}, 3")
    A(f"s_add_u32 {s(T)}, {s(T)}, 1024")
    A(f"v_add_u32 {v(V_VS1)}, {s(T)}, {v(V_L16)}")
    A(f"s_lshr_b32 {s(T + 1)}, {s(S_WAVE)}, 1")
    A(f"s_lshl_b32 {s(T)}, {s(S_J)}, 1")
    A(f"s_add_u32 {s(T)}, {s(T)}, {s(T + 1)}")
    A(f"s_mul_i32 {s(T)}, {s(T)}, 3072")
    A(f"s_add_u32 {s(T)}, {s(T)}, {s(S_XB)}")
    A(f"s_add_u32 {s(S_VMH)}, {s(T)}, {VM_OFF}")
    A(f"s_lshl_b32 {s(T)}, {s(S_ROLE)}, 1")
    A(f"s_add_u32 {s(T)}, {s(T)}, {s(T + 1)}")
    A(f"s_mul_i32 {s(S_XGH)}, {s(T)}, {XG2_HEAD}")
    A(f"s_add_u32 {s(S_XGH)}, {s(S_XGH)}, {XG + 3072}")
    A(f"s_lshl_b32 {s(S_FXH)}, {s(T)}, 5")
    A(f"s_lshl_b32 {s(T + 1)}, {s(T + 2)}, 2")
    A(f"s_add_u32 {s(S_FXH)}, {s(S_FXH)}, {s(T + 1)}")
    A(f"s_add_u32 {s(S_FXH)}, {s(S_FXH)}, {FXG + 4}")
    for i in range(4):
        A(f"v_mov_b32 {v(V_T + i)}, -1")
    lst = []
    for k in range(8):
        lst.append(f"s_add_u32 {s(T)}, {s(S_VMH)}, {k * 49152}")
        lst.append(f"buffer_store_dwordx4 {v(V_T, 4)}, {v(V_VS0)}, {WS}, {s(T)} offen")
        lst.append(f"buffer_store_dwordx2 {v(V_T, 2)}, {v(V_VS1)}, {WS}, {s(T)} offen")
    lstore(A, lst)
    A(f"s_mul_i32 {s(S_O0)}, {s(S_ROLE)}, 768")
    A(f"s_add_u32 {s(S_O1)}, {s(S_O0)}, 96")
    dma_addr(True)
    make_srd(A, SRD_W, P_WV, 640 * 12288)
    make_srd(A, 52, P_WV, 640 * 12288)

    A.label("SV_LOAD")
    init_barrier_arrive(A, V_T)
    V_PARK = 24
    V_TR = V_DA + 3
    S_RA, S_RB, S_LW = S_FLG1, S_FLG2, S_DEF
    A(f"s_and_b32 {s(T)}, {s(S_WAVE)}, 1")
    A(f"s_mul_i32 {s(T)}, {s(T)}, {16 * 12288}")
    A(f"s_lshr_b32 {s(T + 1)}, {s(S_WAVE)}, 1")
    A(f"s_mul_i32 {s(S_RA)}, {s(T + 1)}, {32 * 12288}")
    A(f"s_add_u32 {s(S_RA)}, {s(S_RA)}, {s(T)}")
    A(f"s_mul_i32 {s(S_RB)}, {s(T + 1)}, {(32 if cfg.h16 else 160) * 12288}")
    A(f"s_add_u32 {s(S_RB)}, {s(S_RB)}, {s(T)}")
    A(f"s_mul_i32 {s(S_LW)}, {s(S_WAVE)}, 6144")
    sh = (2, 4, 3) if cfg.h16 else (5, 3, 2)
    lane_gc()
    A(f"v_and_b32 {v(V_T)}, 1, {v(g_)}")
    A(f"v_lshlrev_b32 {v(V_T)}, {sh[0]}, {v(V_T)}")
    A(f"v_lshrrev_b32 {v(V_T + 1)}, 1, {v(g_)}")
    A(f"v_lshl_add_u32 {v(V_T)}, {v(V_T + 1)}, {sh[1]}, {v(V_T)}")
    A(f"v_bfe_u32 {v(V_T + 1)}, {v(V_LANE)}, 2, 1")
    A(f"v_add_u32 {v(V_T)}, {v(V_T)}, {v(V_T + 1)}")
    A(f"v_bfe_u32 {v(V_T + 1)}, {v(V_LANE)}, 3, 1")
    A(f"v_lshl_add_u32 {v(V_T)}, {v(V_T + 1)}, {sh[2]}, {v(V_T)}")
    A(f"v_mul_u32_u24 {v(V_TR)}, 384, {v(V_T)}")
    A(f"v_and_b32 {v(V_T + 1)}, 3, {v(V_LANE)}")
    A(f"v_lshl_add_u32 {v(V_TR)}, {v(V_T + 1)}, 3, {v(V_TR)}")
    A(f"s_mul_i32 {s(T)}, {s(S_WAVE)}, 96")
    A(f"v_add_u32 {v(V_TR)}, {s(T)}, {v(V_TR)}")
    stages = [(F, b) for F in range(10) for b in range(2)]
    NB = cfg.lnb

    def mp0(F):
        if cfg.h16:
            return 2 * F
        return 5 * (F >> 1) + 2 * (F & 1) if F < 8 else (4 if F == 8 else 14)

    def st_dma(k):
        F, b = stages[k]
        A(f"s_add_u32 {s(T)}, {s(S_RA if F < 8 else S_RB)}, {s(S_O1 if b else S_O0)}")
        for i in range(6):
            A(f"s_add_u32 m0, {s(S_LW)}, {(k % NB) * 24576 + i * 1024}")
            A(f"s_add_u32 {s(T + 1)}, {s(T)}, {(32 * mp0(F) + 8 * (i // 3)) * 12288}")
            A(f"buffer_load_dwordx4 {v(V_DA + i % 3)}, {s(52 if b else SRD_W, 4)}, {s(T + 1)} offen lds")

    def st_read(k, slot):
        F, b = stages[k]
        for p in range(3):
            tile = 3 * b + p
            kind, r = wreg(slot, tile) if tile < 5 else ("v", V_PARK + 8 * slot)
            f = a if kind == "a" else v
            for RH in range(2):
                for hh in range(2):
                    A(f"ds_read_b64_tr_b16 {f(r + 4 * RH + 2 * hh, 2)}, {v(V_T)} offset:{((32 if cfg.h16 else 16) * RH + 2 * hh) * 384 + 32 * p}")
    for k in range(NB - 1):
        st_dma(k)
    for k in range(20):
        F, b = stages[k]
        A(f"s_waitcnt vmcnt({6 * min(NB - 2, 19 - k)})")
        if cfg.lth and k < 19 - cfg.lth:
            lt = A.newlabel("lt")
            A(f"s_cmp_lg_u32 {s(S_ISV)}, 0")
            A(f"s_cbranch_scc1 {lt}")
            A(f"s_waitcnt vmcnt({6 * max(0, min(NB - 2, 19 - k) - cfg.lth)})")
            A.label(lt)
        A("s_barrier")
        if k + NB - 1 < 20:
            st_dma(k + NB - 1)
        A(f"v_add_u32 {v(V_T)}, {(k % NB) * 24576}, {v(V_TR)}")
        if F < 8:
            done = A.newlabel("ld")
            labs = [A.newlabel("lw") for _ in range(4)]
            for w in range(1, 4):
                A(f"s_cmp_eq_u32 {s(S_WAVE)}, {w}")
                A(f"s_cbranch_scc1 {labs[w]}")
            for w in range(4):
                A.label(labs[w])
                st_read(k, 2 * (((F >> 1) - w) & 3) + (F & 1))
                if w < 3:
                    A(f"s_branch {done}")
            A.label(done)
        else:
            st_read(k, F)
        A("s_waitcnt lgkmcnt(0)")
    A("s_barrier")
    for sl in range(10):
        for hf in range(2):
            A(f"ds_write_b128 {v(V_BW)}, {v(V_PARK + 8 * sl + 4 * hf, 4)} offset:{sl * 2048 + hf * 1024}")
    A("s_waitcnt lgkmcnt(0)")
    A(f"v_add_u32 {v(V_G4)}, {L_MEM + 8192}, {v(V_L16)}")
    A("s_barrier")
    init_barrier_wait(A, V_T, nwg, cfg)
    near_half(A, cfg, S_PXR)

    S_C0, S_C1 = 4, 5
    L_SY = L_X + 6144

    def fe_scalars(A, rl, rt, tag, t1):
        A(f"s_and_b32 {s(T)}, {s(rt)}, {cfg.cr - 1}")
        A(f"s_lshl2_add_u32 {s(T)}, {s(rl)}, {s(T)}")
        A(f"s_lshl_b32 {s(S_PXA)}, {s(T)}, 16")
        A(f"s_add_u32 {s(S_PXA)}, {s(S_PXA)}, {s(S_PXR)}")
        A(f"s_mul_i32 {s(S_PLA)}, {s(T)}, 20480")
        A(f"s_add_u32 {s(S_PLA)}, {s(S_PLA)}, {s(S_PLW)}")
        A(f"s_lshl_b32 {s(S_DPA)}, {s(rl)}, 9")
        A(f"s_add_u32 {s(S_DPA)}, {s(S_DPA)}, {s(S_DPW)}")
        A(f"s_bfe_u32 {s(tag)}, {s(rt)}, {0x10000 + cfg.cr.bit_length() - 1}")
        A(f"s_add_u32 {s(t1)}, {s(rt)}, 1")

    def cur_local(A, isv):
        A(f"s_and_b32 {s(T)}, {s(S_T)}, {cfg.cr - 1}")
        A(f"s_lshl2_add_u32 {s(T)}, {s(S_L)}, {s(T)}")
        A(f"s_mul_i32 {s(T)}, {s(T)}, 49152")
        A(f"s_add_u32 {s(S_VMA)}, {s(T)}, {s(S_VMH)}")
        if not isv:
            A(f"s_add_u32 {s(S_OIA)}, {s(T)}, {s(S_OIH)}")
            A(f"s_lshl_b32 {s(T)}, {s(S_L)}, 9")
            A(f"s_add_u32 {s(S_DOA)}, {s(T)}, {s(S_DOH)}")

    def cur_global(A):
        A(f"s_lshl_b32 {s(T)}, {s(S_L)}, 6")
        A(f"s_add_u32 {s(T)}, {s(T)}, {s(S_T)}")
        A(f"s_mul_i32 {s(S_KP)}, {s(T)}, {XG2_STEP}")
        A(f"s_add_u32 {s(S_KP)}, {s(S_KP)}, {s(S_XGH)}")
        A(f"s_lshl_b32 {s(T)}, {s(T)}, 10")
        A(f"s_add_u32 {s(S_KF)}, {s(T)}, {s(S_FXH)}")

    def kv_src(A, rl, rt):
        A(f"s_mul_i32 {s(S_KSRC)}, {s(rt)}, {QKV_SEG if not cfg.kvhit else 0}")
        A(f"s_add_u32 {s(S_KSRC)}, {s(S_KSRC)}, {s(S_HOFF)}")
        if cfg.lstride:
            A(f"s_mul_i32 {s(T)}, {s(rl)}, {cfg.lstride}")
            A(f"s_add_u32 {s(S_KSRC)}, {s(S_KSRC)}, {s(T)}")

    def flag_row_of(A, dst, rl, rt):
        A(f"s_lshl_b32 {s(dst)}, {s(rl)}, 6")
        A(f"s_add_u32 {s(dst)}, {s(dst)}, {s(rt)}")
        A(f"s_lshl_b32 {s(dst)}, {s(dst)}, 9")
        A(f"s_add_u32 {s(dst)}, {s(dst)}, {flag_row(F_K)}")

    def next_item(A, rl, rt):
        A(f"s_sub_u32 {s(T)}, {s(S_C0)}, {s(S_C1)}")
        A(f"s_cmp_gt_i32 {s(T)}, {LAG}")
        A(f"s_cselect_b32 {s(rl)}, 1, 0")
        A(f"s_cmp_eq_u32 {s(S_C0)}, 64")
        A(f"s_cselect_b32 {s(rl)}, 1, {s(rl)}")
        A(f"s_cmp_eq_u32 {s(rl)}, 0")
        A(f"s_cselect_b32 {s(rt)}, {s(S_C0)}, {s(S_C1)}")
        A(f"s_addc_u32 {s(S_C0)}, {s(S_C0)}, 0")
        A(f"s_add_u32 {s(S_C1)}, {s(S_C1)}, {s(rl)}")

    def kv_dma():
        out = []
        for i in range(24):
            e = []
            if i % 4 == 0:
                e += [f"s_add_u32 m0, {s(S_KLDS)}, {i * 1024}", f"s_add_u32 {s(T + 7)}, {s(S_KSRC)}, {(i % 12) * 1024 + (i // 12) * QKV_SZ}"]
            e.append(f"buffer_load_dwordx4 {v(V_L16)}, {WS}, {s(T + 7)} offen offset:{(i % 4) * 1024} {DF[cfg.dfl]}lds")
            out.append(e)
        return out

    def flag_spin(row):
        top = A.newlabel("fl")
        A.label(top)
        A(f"buffer_load_dword {v(V_T)}, {v(V_FLG)}, {WS}, {s(row)} offen sc1")
        A("s_waitcnt vmcnt(0)")
        A(f"v_cmp_eq_u32 vcc, 0, {v(V_T)}")
        poll_tail(A, top, sleep=1)

    S_PLW, S_DPW = 6, 7
    S_EARLY = S_KCUR
    S_LO, S_HI = 37, S_FCUR
    V_E, V_RAW, V_U = 56, 60, (48, 92, 84)
    SELA, SELB = V_ACC + 16, V_ACC + 20
    A(f"s_mul_i32 {s(S_PLW)}, {s(S_WAVE)}, {2048 if cfg.h16 else 5120}")
    if cfg.h16:
        A(f"v_sub_u32 {v(V_L16B)}, {v(V_MW2)}, {v(V_MW)}")
        A(f"v_add_u32 {v(V_L16B)}, {v(V_L16B)}, {v(V_L16)}")
        A(f"v_add_u32 {v(V_L16B)}, 8192, {v(V_L16B)}")
        A(f"s_mov_b32 {s(S_LO)}, 0x3f80")
        A(f"s_mov_b32 {s(S_HI)}, 0x3f800000")
    if cfg.h16 == 2:
        A(f"v_and_b32 {v(V_T)}, 2, {v(V_LANE)}")
        A(f"v_lshlrev_b32 {v(V_T)}, 3, {v(V_T)}")
        A(f"v_lshlrev_b32 {v(V_T)}, {v(V_T)}, {s(S_LO)}")
        A(f"v_lshrrev_b32 {v(V_T + 1)}, 1, {v(V_LANE)}")
        A(f"v_xor_b32 {v(V_T + 1)}, {v(V_T + 1)}, {v(V_LANE)}")
        A(f"v_and_b32 {v(V_T + 1)}, 8, {v(V_T + 1)}")
        A(f"v_and_b32 {v(V_T + 2)}, 4, {v(V_LANE)}")
        A(f"v_or_b32 {v(V_T + 1)}, {v(V_T + 1)}, {v(V_T + 2)}")
        A(f"v_cmp_eq_u32 vcc, 0, {v(V_T + 1)}")
        A(f"v_cndmask_b32 {v(V_E)}, 0, {v(V_T)}, vcc")
        A(f"v_cmp_eq_u32 vcc, 4, {v(V_T + 1)}")
        A(f"v_cndmask_b32 {v(V_E + 1)}, 0, {v(V_T)}, vcc")
    A(f"s_add_u32 {s(S_PLW)}, {s(S_PLW)}, {s(S_XB)}")
    A(f"s_lshl_b32 {s(S_DPW)}, {s(S_WAVE)}, 7" if not cfg.pb else f"s_mov_b32 {s(S_DPW)}, 0")
    A(f"s_add_u32 {s(S_DPW)}, {s(S_DPW)}, {s(S_XB)}")
    A(f"s_add_u32 {s(S_DPW)}, {s(S_DPW)}, {DP_OFF}")
    if not cfg.h16:
        A(f"v_add_u32 {v(V_L16B)}, 4096, {v(V_L16)}")
    A(f"s_mov_b32 {s(S_N)}, 0")
    A(f"s_mov_b32 {s(S_C0)}, 0")
    A(f"s_mov_b32 {s(S_C1)}, 0")
    A(f"s_mov_b32 {s(S_KP)}, {NONE}")
    A(f"s_mov_b32 {s(S_FP)}, {NONE}")
    A(f"s_mov_b32 {s(S_KF)}, {NONE}")
    next_item(A, S_L, S_T)
    fe_scalars(A, S_L, S_T, S_TAG, S_T1)
    stamp = mk_stamp(A, cfg, V_STAMP)
    A(f"s_cmp_lg_u32 {s(S_ISV)}, 0")
    A("s_cbranch_scc1 CV_START")

    order = [2, 0, 1] if cfg.h16 else [4, 0, 1, 2, 3]
    NP_ = len(order)

    def pld(base, i, sa):
        if cfg.h16 == 2:
            return f"buffer_load_dwordx4 {v(V_RAW + 8 * i + (4 if sa == S_PXA else 0), 4)}, {v(V_L16 if i < 2 else V_L16B)}, {WS}, {s(sa)} offen offset:{(i & 1) * 1024} sc1"
        if cfg.h16:
            if i == 2:
                return f"buffer_load_dwordx2 {v(base + 8, 2)}, {v(V_L16B)}, {WS}, {s(sa)} offen sc1"
            return f"buffer_load_dwordx4 {v(base + 4 * i, 4)}, {v(V_L16)}, {WS}, {s(sa)} offen offset:{i * 1024} sc1"
        return f"buffer_load_dwordx4 {v(base + 4 * i, 4)}, {v(V_L16 if i < 4 else V_L16B)}, {WS}, {s(sa)} offen offset:{(i % 4) * 1024} sc1"

    def sel_build():
        A(f"v_mov_b32 {v(SELA)}, {v(V_E)}")
        A(f"v_mov_b32 {v(SELA + 2)}, {v(V_E + 1)}")
        A(f"v_mov_b32 {v(SELB + 1)}, {v(V_E)}")
        A(f"v_mov_b32 {v(SELB + 3)}, {v(V_E + 1)}")

    def sel_clear():
        if cfg.h16 != 2:
            return []
        return [Task(0, [f"v_mov_b32 {v(r)}, 0" for r in (SELA, SELA + 2, SELB + 1, SELB + 3)])]

    def u_zero():
        for b in V_U:
            for k in range(8):
                A(f"v_mov_b32 {v(b + k)}, 0")

    def process_mm(retry):
        TA = V_T + 4

        def fin(i):
            U = V_U[i]
            d = (V_F, V_F + 4, U)[i]
            for k in range(4):
                q = U + 4 * (k >> 1) + (k & 1)
                A(f"v_cvt_pk_bf16_f32 {v(d + k)}, {v(q)}, {v(q + 2)}")
            A(f"ds_write_b128 {v(V_MW2)}, {v(d, 4)}" if i == 2 else f"ds_write_b128 {v(V_MW)}, {v(d, 4)} offset:{i * 1024}")
        for n, i in enumerate(order):
            A(f"s_waitcnt vmcnt({2 - n})")
            A(f"{SM} {v(V_U[i], 4)}, {v(SELA, 4)}, {v(V_RAW + 8 * i, 8)}, {v(V_IDX)}")
            A(f"v_bitop3_b32 {v(TA + (1 if n else 0))}, {v(V_RAW + 8 * i)}, {v(V_RAW + 8 * i + 4)}, {s(S_TAG)} bitop3:0x7e")
            A(f"{SM} {v(V_U[i] + 4, 4)}, {v(SELB, 4)}, {v(V_RAW + 8 * i, 8)}, {v(V_IDX)}")
            if n == 2:
                A(f"v_bitop3_b32 {v(TA)}, {v(TA)}, {v(TA + 1)}, 1 bitop3:0xa8")
                A(f"v_cmp_ne_u32 vcc, 0, {v(TA)}")
            elif n:
                A(f"v_or_b32 {v(TA)}, {v(TA)}, {v(TA + 1)}")
            if n:
                fin(order[n - 1])
        A.nf(f"s_cbranch_vccnz {retry}")
        fin(order[2])

    def process16(V_PL, V_PR, retry, mid=()):
        TA = V_T + 4
        U = V_PR
        for n, i in enumerate(order):
            A(f"s_waitcnt vmcnt({5 - n})")
            for k in range(4 * i, 4 * i + (4 if i < 2 else 2)):
                A(f"v_lshlrev_b32 {v(U + 2 * k)}, 16, {v(V_PL + k)}")
                A(f"v_and_b32 {v(U + 2 * k + 1)}, 0xffff0000, {v(V_PL + k)}")
        for x in mid:
            A(x)
        nm_ = sum(1 for x in mid if x.startswith("buffer_"))
        for n, i in enumerate(order):
            A(f"s_waitcnt vmcnt({2 - n + nm_})")
            ks = range(4 * i, 4 * i + (4 if i < 2 else 2))
            for k in ks:
                A(f"v_dot2c_f32_bf16 {v(U + 2 * k)}, {s(S_LO)}, {v(V_PL + 10 + k)}")
                A(f"v_dot2c_f32_bf16 {v(U + 2 * k + 1)}, {s(S_HI)}, {v(V_PL + 10 + k)}")
            A(f"v_bitop3_b32 {v(TA + (1 if n else 0))}, {v(V_PL + 4 * i)}, {v(V_PL + 10 + 4 * i)}, {s(S_TAG)} bitop3:0x7e")
            if n == 2:
                A(f"v_bitop3_b32 {v(TA)}, {v(TA)}, {v(TA + 1)}, 1 bitop3:0xa8")
                A(f"v_cmp_ne_u32 vcc, 0, {v(TA)}")
            elif n:
                A(f"v_or_b32 {v(TA)}, {v(TA)}, {v(TA + 1)}")
            for k in ks:
                A(f"v_cvt_pk_bf16_f32 {v(V_F + k)}, {v(U + 2 * k)}, {v(U + 2 * k + 1)}")
            if i == 2:
                A(f"ds_write_b64 {v(V_MW2)}, {v(V_F + 8, 2)}")
            else:
                A(f"ds_write_b128 {v(V_MW)}, {v(V_F + 4 * i, 4)} offset:{i * 1024}")
        A.nf(f"s_cbranch_vccnz {retry}")

    def process(V_PL, V_PR, wait, retry):
        if cfg.h16 == 2:
            return process_mm(retry)
        if cfg.h16:
            return process16(V_PL, V_PR, retry)
        TA = V_T + 4
        for n, i in enumerate(order):
            wait(n)
            A(f"v_pk_add_f32 {v(V_T, 2)}, {v(V_PL + 4 * i, 2)}, {v(V_PR + 4 * i, 2)}")
            A(f"v_pk_add_f32 {v(V_T + 2, 2)}, {v(V_PL + 4 * i + 2, 2)}, {v(V_PR + 4 * i + 2, 2)}")
            A(f"v_bitop3_b32 {v(TA + (1 if n else 0))}, {v(V_PL + 4 * i)}, {v(V_PR + 4 * i)}, {s(S_TAG)} bitop3:0x7e")
            A(f"v_cvt_pk_bf16_f32 {v(V_F + 2 * i)}, {v(V_T)}, {v(V_T + 1)}")
            A(f"v_cvt_pk_bf16_f32 {v(V_F + 2 * i + 1)}, {v(V_T + 2)}, {v(V_T + 3)}")
            if n == 4:
                A(f"v_bitop3_b32 {v(TA)}, {v(TA)}, {v(TA + 1)}, 1 bitop3:0xa8")
            elif n:
                A(f"v_or_b32 {v(TA)}, {v(TA)}, {v(TA + 1)}")
            if n == 4:
                A(f"v_cmp_ne_u32 vcc, 0, {v(TA)}")
            if i == 4:
                A(f"ds_write_b64 {v(V_MW2)}, {v(V_F + 8, 2)}")
            elif i & 1:
                A(f"ds_write_b128 {v(V_MW)}, {v(V_F + 4 * (i >> 1), 4)} offset:{(i >> 1) * 1024}")
        A.nf(f"s_cbranch_vccnz {retry}")

    def kgrab():
        A(f"s_mov_b64 vcc, {s(S_MB, 2)}")
        tmp = (V_F, V_F + 4, V_T)
        for jp in range(3):
            for par in range(2):
                for ih in range(2):
                    A(f"ds_read_b64_tr_b16 {v((V_KEEP + 4 * jp, tmp[jp])[par] + 2 * ih, 2)}, {v(V_XR)} offset:{(2 * jp + par) * 1024 + ih * 512}")
        for jp in range(3):
            A(f"s_waitcnt lgkmcnt({8 - 4 * jp})")
            for i in range(4):
                A(f"v_cndmask_b32_dpp {v(V_KEEP + 4 * jp + i)}, {v(tmp[jp] + i)}, {v(V_KEEP + 4 * jp + i)}, vcc quad_perm:[0,1,0,1] row_mask:0xf bank_mask:0xf")

    def prep(zero, poller):
        if cfg.h16 != 2:
            return
        if zero is None:
            A(f"v_mfma_f32_32x32x8_bf16 {v(84, 16)}, {v(10, 2)}, {v(10, 2)}, 0")
            A(f"v_mfma_f32_16x16x16_bf16 {v(48, 4)}, {v(10, 2)}, {v(10, 2)}, 0")
            A(f"v_mfma_f32_16x16x16_bf16 {v(52, 4)}, {v(10, 2)}, {v(10, 2)}, 0")
        elif poller == "me":
            for k in range(8):
                A(f"v_mov_b32 {v(48 + k)}, 0")
        sel_build()
        A.flush()

    def zero_mfma(Z=10):
        A(f"v_mfma_f32_32x32x8_bf16 {v(V_ACC, 16)}, {v(Z, 2)}, {v(Z, 2)}, 0")
        A(f"v_mfma_f32_16x16x16_bf16 {v(V_ACC + 16, 4)}, {v(Z, 2)}, {v(Z, 2)}, 0")
        A(f"v_mfma_f32_16x16x16_bf16 {v(V_ACC + 20, 4)}, {v(Z, 2)}, {v(Z, 2)}, 0")

    def front(L, ool, top, fast=None, poller=None, V_PL=V_PL, V_PR=V_PR, zero=True, mid=()):
        again, retry, join = A.newlabel("fa"), A.newlabel("fr"), A.newlabel("fj")

        RB = V_PL + 10 if cfg.h16 else V_PR

        def zr():
            for i in range(24 if zero else 0):
                A(f"v_mov_b32 {v(V_ACC + i)}, 0")
        A.label(top)
        if not fast:
            zr()
            if zero and cfg.h16 == 2:
                u_zero()
        if poller == "w0":
            lab = A.newlabel("np")
            A(f"s_cmp_lg_u32 {s(S_WAVE)}, 0")
            A(f"s_cbranch_scc1 {lab}")
        if poller == "me":
            A(f"v_mov_b32 {v(V_T + 2)}, {s(S_N)}")
        if poller:
            doorbell(A, cfg, V_DB, S_DPA, V_T)
        if cfg.m1:
            if poller and cfg.rx:
                A(f"s_sleep {cfg.rx}")
            if poller == "w0":
                A.label_nf(lab)
            if poller == "me":
                A.label_nf("CH_RUNG")
                for i in order:
                    A(pld(V_PL, i, S_PLA))
            A("s_barrier")
            stamp(0)
            if poller != "me":
                for i in order:
                    A(pld(V_PL, i, S_PLA))
            for i in order:
                A(pld(RB, i, S_PXA))
        else:
            if poller == "w0":
                A.label_nf(lab)
            if poller == "me":
                A(f"ds_write_b32 {v(V_RDY)}, {v(V_T + 2)}")
                for i in order:
                    A(pld(V_PL, i, S_PLA))
                if cfg.s3 == 1:
                    A(f"s_cmp_eq_u32 {s(S_EARLY)}, 0" if cfg.s3 == 1 else f"s_cmp_lg_u32 {s(S_EARLY)}, {s(S_SPIN)}")
                    A.nf(f"s_cbranch_scc0 {join}e")
            A("s_barrier")
            stamp(0)
            if poller != "me":
                for i in order:
                    A(pld(V_PL, i, S_PLA))
            if fast and zero:
                A.nf(f"s_cbranch_vccz {fast}")
                zr()
            elif fast:
                A.nf(f"s_cbranch_vccz {join}f")
            A(f"s_waitcnt vmcnt({min(cfg.rw, NP_ - 1)})")
            if cfg.rx:
                A(f"buffer_load_dword {v(V_T)}, {v(V_L16)}, {WS}, {s(S_DPA)} offen sc1" if cfg.rx == 9 else f"s_sleep {cfg.rx}")
            A.label_nf(join + "f")
            for i in order:
                A(pld(RB, i, S_PXA))
        if zero is None:
            zero_mfma()
        if poller == "me" and cfg.w3:
            kgrab()
        prep(zero, poller)
        A.label_nf(join)
        stamp(7)
        if mid:
            process16(V_PL, V_PR, retry, mid)
        else:
            A.label_nf(again)
            process(V_PL, V_PR, lambda n: A(f"s_waitcnt vmcnt({4 - n})"), retry)
        A.label_nf(join + "g")
        L.q = ["mw"]
        stamp(1)

        def slow():
            A.label(retry)
            sk = A.newlabel("sk")
            tg = [V_RAW, V_RAW + 8, V_RAW + 16, V_RAW + 16, V_RAW + 16] if cfg.h16 == 2 else [V_PL + x for x in ((0, 4, 8, 8, 8) if cfg.h16 else (0, 4, 8, 12, 16))]
            A(f"v_bitop3_b32 {v(V_T)}, {v(tg[0])}, {v(tg[1])}, {s(S_TAG)} bitop3:0x7e")
            A(f"v_bitop3_b32 {v(V_T + 1)}, {v(tg[2])}, {v(tg[3])}, {s(S_TAG)} bitop3:0x7e")
            A(f"v_xor_b32 {v(V_T + 2)}, {s(S_TAG)}, {v(tg[4])}")
            A(f"v_or3_b32 {v(V_T)}, {v(V_T)}, {v(V_T + 1)}, {v(V_T + 2)}")
            A(f"v_and_b32 {v(V_T)}, 1, {v(V_T)}")
            A(f"v_cmp_ne_u32 vcc, 0, {v(V_T)}")
            A.nf(f"s_cbranch_vccz {sk}")
            for i in order:
                A(pld(V_PL, i, S_PLA))
            if cfg.timing == 5:
                A("s_add_u32 s93, s93, 1")
            A.label_nf(sk)
            for i in order:
                A(pld(RB, i, S_PXA))
            if cfg.timing == 5:
                A("s_add_u32 s92, s92, 1")
            spin_fail(A)
            A("s_waitcnt lgkmcnt(0)")
            if cfg.h16 == 2:
                u_zero()
            if mid:
                process16(V_PL, V_PR, retry)
                A(f"s_branch {join}g")
            else:
                A(f"s_branch {again}")
            if fast and zero:
                A.label(fast)
                for i in order:
                    A(pld(RB, i, S_PXA))
                zr()
                A(f"s_branch {join}")
            if poller == "me" and cfg.s3 and not cfg.m1:
                A.label("CH_RUNG")
                A(f"v_mov_b32 {v(V_T + 2)}, {s(S_N)}")
                A(f"ds_write_b32 {v(V_RDY)}, {v(V_T + 2)}")
                for i in order:
                    A(pld(V_PL, i, S_PLA))
                A.label(join + "e")
                for i in order:
                    A(pld(RB, i, S_PXA))
                if cfg.w3:
                    kgrab()
                prep(zero, poller)
                if cfg.ep:
                    process(V_PL, V_PR, lambda n: A(f"s_waitcnt vmcnt({4 - n})"), join + "m")
                    A("s_barrier")
                    stamp(0)
                    stamp(7)
                    A.nf(f"s_branch {join}g")
                    A.label_nf(join + "m")
                A("s_barrier")
                stamp(0)
                A(f"s_branch {retry if cfg.ep else join}")
        ool.append(slow)
        return retry, join + "g"

    G3I = {}

    def gemm3(L, AR, relA89):
        sq = [(0, t_) for t_ in (0, 3, 2, 1, 4)] + [(1, 0), (1, 3), (0, 5), (1, 2), (1, 1), (1, 5), (1, 4)]
        nl = cfg.nlate
        sq += [(sl, t_) for sl in range(2, 8) for t_ in ((0, 3, 2, 5) if sl >= 10 - nl else (0, 3, 1, 4, 2, 5))]
        sq += [(8, 0), (8, 3), (9, 0), (9, 3), (8, 2), (8, 5), (9, 2), (9, 5)]
        sq += [(sl, t_) for sl in (5, 6, 7, 8, 9, 2, 3, 4) if sl >= 10 - nl for t_ in (1, 4)]
        assert len(sq) == 60
        first = {}
        for k, (sl, t_) in enumerate(sq):
            first.setdefault(sl, k)
            G3I["last", sl] = k
            G3I[sl, t_] = k

        def af(sl):
            return v(V_F + 4 * sl, 4) if sl < 2 else v(AR[sl - 2], 4)

        def rdB(sl):
            return [(("B", sl), f"ds_read_b128 {v(V_B + 8 * (sl & 1) + 4 * hf, 4)}, {v(V_BW)} offset:{sl * 2048 + hf * 1024}") for hf in range(2)]

        def rdA(sl):
            ad = V_GB + sl // 2 - 1 if sl < 8 else V_G4
            return [(("A", sl), f"ds_read_b128 {af(sl)}, {v(ad)} offset:{(sl & 1) * 1024}")]
        seq = []
        rd = [Task(cfg.bar1, rdA(2)), Task(0, rdB(0) + rdB(1))]
        for k, (sl, t_) in enumerate(sq):
            seq.append((f"{SM} {v(V_ACC + 4 * t_, 4)}, {af(sl)}, {wtxt(sl, t_)}, {v(V_IDX)}", [("A", sl)] + ([("B", sl)] if t_ == 5 else [])))
            if t_ == 5 and sl + 2 < 10:
                rd.append(Task(k, rdB(sl + 2)))
        for sl in range(3, 10):
            rd.append(Task(max(cfg.bar1, first[sl] - cfg.alead, relA89 if sl >= 8 else 0), rdA(sl)))

        def items(p):
            q, k = V_ACC + 4 * p, V_ACC + 4 * (3 + p)
            return [f"v_add_f32 {v(q)}, {v(q)}, {v(q + 1)}", f"v_add_f32 {v(q + 2)}, {v(q + 2)}, {v(q + 3)}",
                    f"v_add_f32 {v(k)}, {v(k)}, {v(k + 1)}", f"v_add_f32 {v(k + 2)}, {v(k + 2)}, {v(k + 3)}",
                    f"v_cvt_pk_bf16_f32 {v(k + 1)}, {v(q)}, {v(q + 2)}", f"v_cvt_pk_bf16_f32 {v(k)}, {v(k)}, {v(k + 2)}",
                    (("xw", p), f"ds_write_b64 {v(V_XW)}, {v(k, 2)} offset:{(0, 2, 1)[p] * 2048}")]
        return seq, rd, items

    def bar_after(L, tag, st_=None, tasks=()):
        def f():
            for t in tasks:
                assert not t.items, tag
            L.wait(tag)
            A("s_barrier")
            if st_ is not None:
                stamp(st_)
        return f

    def afrag(sl):
        return v(V_F + 4 * sl, 4) if sl < 2 else v(V_A + 4 * ((sl - 2) % 3), 4)

    def gemm(L, tasks, tail_order, hi=()):
        sq = [(0, t_) for t_ in range(5)] + [(1, t_) for t_ in range(5)] + [(0, 5), (1, 5)]
        sq += [(sl, t_) for sl in range(2, 10 - len(tail_order) // 6) for t_ in range(6)]
        sq += tail_order

        def rdB(sl):
            return [(("B", sl), f"ds_read_b128 {v(V_B + 8 * (sl & 1) + 4 * hf, 4)}, {v(V_BW)} offset:{sl * 2048 + hf * 1024}") for hf in range(2)]

        def rdA(sl):
            ad = V_GB + sl // 2 - 1 if sl < 8 else V_G4
            return [(("A", sl), f"ds_read_b128 {afrag(sl)}, {v(ad)} offset:{(sl & 1) * 1024}")]
        seq = []
        rd = [Task(cfg.bar1, rdA(2)), Task(0, rdB(0) + rdB(1)), Task(cfg.bar1, rdA(3) + rdA(4))]
        for k, (sl, t_) in enumerate(sq):
            seq.append((f"{SM} {v(V_ACC + 4 * t_, 4)}, {afrag(sl)}, {wtxt(sl, t_)}, {v(V_IDX)}", [("A", sl)] + ([("B", sl)] if t_ == 5 else [])))
            if t_ == 5 and sl + 2 < 10:
                rd.append(Task(k, (rdA(sl + 3) if 2 <= sl < 7 else []) + rdB(sl + 2)))

        def bar():
            L.wait("mw")
            A("s_barrier")
            stamp(5)
        sched(A, L, seq, list(hi) + sel_clear() + rd + list(tasks), pre={cfg.bar1: bar})
        stamp(6)

    def pend_window(stores):
        def f1():
            lab = A.newlabel("pf")
            A(f"s_cmp_ge_u32 {s(S_FP)}, {NONE}")
            A.nf(f"s_cbranch_scc1 {lab}")
            flag_val(A, cfg, V_T + 5)
            A("s_mov_b64 exec, 1")
            A(f"buffer_store_dword {v(V_T + 5)}, {v(V_L16)}, {WS}, {s(S_FP)} offen sc1")
            A("s_mov_b64 exec, -1")
            A(f"s_mov_b32 {s(S_FP)}, {NONE}")
            A.label_nf(lab)

        def f2():
            lab = A.newlabel("pk")
            A(f"s_cmp_eq_u32 {s(S_KP)}, {NONE}")
            A.nf(f"s_cbranch_scc1 {lab}")
            for x in stores:
                if not cfg.noxg:
                    A(x)
            A(f"s_mov_b32 {s(S_FP)}, {s(S_KF) if not cfg.noxg else NONE}")
            A(f"s_mov_b32 {s(S_KP)}, {NONE}")
            A.label_nf(lab)
        return f1, f2

    def pend_items(stores):
        def fv():
            flag_val(A, cfg, V_T + 5)
        return [(4, fv), f"s_mov_b64 exec, 1\nbuffer_store_dword {v(V_T + 5)}, {v(V_L16)}, {WS}, {s(S_FP)} offen sc1\ns_mov_b64 exec, -1"] + stores + \
            [f"s_and_b32 {s(S_FP)}, {s(S_KP)}, {NONE}", f"s_or_b32 {s(S_FP)}, {s(S_FP)}, {s(S_KF)}", f"s_mov_b32 {s(S_KP)}, {NONE}"]

    def advance():
        A(f"s_add_u32 {s(S_N)}, {s(S_N)}, 1")
        A(f"s_mov_b32 {s(S_L)}, {s(S_NL)}")
        A(f"s_mov_b32 {s(S_T)}, {s(S_NT)}")
        A(f"s_mov_b32 {s(S_TAG)}, {s(S_NTAG)}")
        A(f"s_mov_b32 {s(S_T1)}, {s(S_NT1)}")

    def qk_epi(L):
        def items(p):
            q, k = V_ACC + 4 * p, V_ACC + 4 * (3 + p)
            return [f"v_add_f32 {v(q)}, {v(q)}, {v(q + 1)}", f"v_add_f32 {v(q + 2)}, {v(q + 2)}, {v(q + 3)}",
                    f"v_add_f32 {v(k)}, {v(k)}, {v(k + 1)}", f"v_add_f32 {v(k + 2)}, {v(k + 2)}, {v(k + 3)}",
                    f"v_cvt_pk_bf16_f32 {v(k + 1)}, {v(q)}, {v(q + 2)}", f"v_cvt_pk_bf16_f32 {v(k)}, {v(k)}, {v(k + 2)}",
                    ("xw", f"ds_write_b64 {v(V_XW)}, {v(k, 2)} offset:{p * 512}")]
        if cfg.t3:
            return [Task(cfg.t3, items(0) + items(2)), Task(60, items(1))]
        return [Task(53, items(0)), Task(60, items(1)), Task(60, items(2))]
    qk_tail = []
    for p in range(3):
        qk_tail += [(8, p), (8, 3 + p), (9, p), (9, 3 + p)]
    if cfg.t3:
        qk_tail = [(7, 2), (7, 5), (7, 0), (7, 3), (8, 0), (8, 3), (9, 0), (9, 3), (8, 2), (8, 5), (9, 2), (9, 5),
                   (7, 1), (7, 4), (8, 1), (8, 4), (9, 1), (9, 4)]

    if cfg.timing == 5:
        for k in range(5):
            A(f"s_mov_b32 {s(92 + k)}, 0")
    A(f"s_cmp_eq_u32 {s(S_WAVE)}, 3")
    A("s_cbranch_scc1 CH_START")
    A(f"s_lshl_b32 {s(T)}, {s(S_WAVE)}, 2")
    A(f"s_add_u32 {s(T)}, {s(T)}, {L_SY}")
    A(f"v_mov_b32 {v(V_SY)}, {s(T)}")
    A(f"v_mov_b32 {v(V_T)}, 0")
    A(f"ds_write_b32 {v(V_SY)}, {v(V_T)}")
    A(f"v_add_u32 {v(V_KA)}, {L_KV + 24576}, {v(V_L16)}")
    A(f"v_mov_b32 {v(V_FLG)}, {L_SY + 12}")
    A(f"s_lshl_b32 {s(S_XGH)}, {s(S_WAVE)}, 12")
    A(f"s_add_u32 {s(S_HOFF)}, {s(S_HOFF)}, {s(S_XGH)}")
    A(f"s_add_u32 {s(S_KLDS)}, {s(S_XGH)}, {L_KV}")
    A(f"s_add_u32 {s(S_FLG1)}, {s(S_KLDS)}, {s(S_KLDS)}")
    A(f"s_add_u32 {s(S_FLG1)}, {s(S_FLG1)}, 24576")
    if cfg.ctouch:
        A(f"s_mul_i32 {s(T)}, {s(S_J)}, 3")
        A(f"s_add_u32 {s(T)}, {s(T)}, {s(S_WAVE)}")
        A(f"v_lshlrev_b32 {v(V_T + 1)}, 7, {v(V_LANE)}")
        for k in range(3):
            A(f"s_add_u32 {s(T + 1)}, {s(T)}, {48 * k}")
            A(f"s_min_u32 {s(T + 1)}, {s(T + 1)}, {DP_OFF // 8192 - 1}")
            A(f"s_lshl_b32 {s(T + 1)}, {s(T + 1)}, 13")
            A(f"s_add_u32 {s(T + 1)}, {s(T + 1)}, {s(S_XB)}")
            A(f"buffer_load_dword {v(V_T + 2)}, {v(V_T + 1)}, {WS}, {s(T + 1)} offen sc1")
        A("s_waitcnt vmcnt(0)")
    A("s_mov_b64 vcc, -1")
    A("s_waitcnt lgkmcnt(0)")
    if cfg.timing:
        A(f"s_memrealtime {s(S_T0, 2)}")
        if cfg.timing == 6:
            A("s_memtime s[92:93]")
        A("s_waitcnt lgkmcnt(0)")
    stamp.init()
    KXR = [V_FREE + 4 * i for i in range(6)] + [V_F, V_F + 4] + [V_B + 4 * i for i in range(4)]
    QP = "row_mask:0xf bank_mask:0xf"

    def s_loop(sx, LS):
        L = Lds(A)
        ool = []
        front(L, ool, "CS_LOOP" + sx, "CS_FAST" + sx)
        fill = [f"v_xor_b32 {v(V_KA)}, {L_KV ^ (L_KV + 24576)}, {v(V_KA)}"]
        fill += groups(cap(lambda c: next_item(c, S_NL, S_NT)))
        if cfg.dsh and not cfg.nodma:
            fill += cap(lambda c: kv_src(c, S_NL, S_NT)) + [f"s_sub_u32 {s(S_KLDS)}, {s(S_FLG1)}, {s(S_KLDS)}", f"s_mov_b32 m0, {s(S_KLDS)}"]
            fill += cap(lambda c: cur_local(c, False))
            fill += [f"buffer_load_dwordx4 {v(V_L16)}, {WS}, {s(S_KSRC)} offen offset:{i * 1024} {DF[cfg.dfl]}lds" for i in range(4)]
        else:
            fill += cap(lambda c: cur_local(c, False))
        fill += cap(lambda c: fe_scalars(c, S_NL, S_NT, S_NTAG, S_NT1))
        fill += [f"v_add_u32 {v(V_T + 5)}, {s(S_XGH)}, {v(V_KA)}", f"v_mov_b32 {v(V_T + 4)}, {s(S_T1)}", f"v_mov_b32 {v(V_T + 3)}, 0"]

        def rdK(i):
            return (("K", i), f"ds_read_b128 {v(KXR[i], 4)}, {v(V_KA)} offset:{i * 1024}")
        epi = qk_epi(L)
        gemm(L, [Task(0, fill), Task(14, [rdK(i) for i in range(8)])] + epi[1:], qk_tail, hi=epi[:1])
        skip = A.newlabel("last")
        A(f"s_cmp_eq_u32 {s(S_T)}, 63")
        A.nf(f"s_cbranch_scc1 {skip}")
        L.op(*rdK(8))
        L.op(*rdK(9))
        L.wait("xw")
        A("s_barrier")
        stamp(2)
        X = V_ACC
        S0, S1, SMm = V_A, V_A + 4, V_A + 8
        VX, VM = V_FREE, V_FREE + 16
        PA, PB, PM, TT, O = 24, 28, 32, 34, 36
        DBV = V_FV

        def rdX(j):
            return [(("X", j), f"ds_read_b64_tr_b16 {v(X + 4 * j + 2 * ih, 2)}, {v(V_XR)} offset:{j * 1024 + ih * 512}") for ih in range(2)]
        for j in range(4):
            for it in rdX(j):
                L.op(*it)
        vmld = f"buffer_load_dwordx4 {v(VM, 4)}, {v(V_L16)}, {WS}, {s(S_VMA)} offen sc1"
        dbld = f"buffer_load_dword {v(DBV)}, {v(V_DB)}, {WS}, {s(S_DPA)} offen sc1"
        ring = f"s_mov_b64 exec, 1\nbuffer_store_dword {v(V_T + 4)}, {v(V_L16)}, {WS}, {s(S_DOA)} offen{LS}\ns_mov_b64 exec, -1"
        nst = [0]

        def do_vm():
            A(vmld)
            nst[0] = 0

        def do_ring():
            A(ring)
            nst[0] += 1
        seq = []
        for j in range(6):
            for acc, aop, tg in ((S0, KXR[2 * j], ("K", 2 * j)), (S1, KXR[2 * j + 1], ("K", 2 * j + 1)), (SMm, X + 4 * j, ("X", j))):
                seq.append((f"{MF} {v(acc, 4)}, {v(aop, 4)}, {v(X + 4 * j, 4)}, {'0' if j == 0 else v(acc, 4)}", [("X", j), tg]))
        tk = [Task(0, rdX(4) + [rdK(10), rdK(11)] + rdX(5)),
              Task(6, [("vx", f"ds_read_b128 {v(VX + 4 * i, 4)}, {v(V_T + 5)} offset:{12288 + i * 1024}") for i in range(4)]),
              Task(0, [f"s_mov_b64 vcc, {s(S_MA, 2)}"])]
        if cfg.vmj < 18:
            tk.append(Task(max(cfg.vmj, 9), [(16, do_vm)]))
        if cfg.dbo < 18:
            tk.append(Task(cfg.dbo, [(16, do_ring)]))
        sched(A, L, seq, tk, nvalu=2)

        def mark(k):
            if cfg.vmj == 18 + k:
                do_vm()
            if cfg.dbo == 18 + k:
                do_ring()
        mark(0)
        Y = [S0 + i for i in range(4)]
        Z = SMm
        ZR, ZERO = V_T + 2, V_T + 3
        for i in range(4):
            A(f"v_cndmask_b32_dpp {v(Y[i])}, {v(S1 + i)}, {v(S0 + i)}, vcc quad_perm:[2,3,2,3] {QP}")
        A(f"v_max3_f32 {v(V_T)}, {v(Y[0])}, {v(Y[1])}, {v(Y[2])}")
        A(f"v_cndmask_b32_dpp {v(Z)}, {v(SMm + 1)}, {v(SMm)}, vcc quad_perm:[2,3,2,3] {QP}")
        A(f"v_max3_f32 {v(V_T)}, {v(V_T)}, {v(Y[3])}, {v(Z)}")
        mark(1)
        A(f"v_max_f32_dpp {v(V_T + 1)}, {v(V_T)}, {v(V_T)} quad_perm:[2,3,0,1] {QP}")
        A(f"v_max_f32_dpp {v(V_T)}, {v(V_T)}, {v(V_T)} quad_perm:[2,3,0,1] {QP}")
        A(f"v_permlane32_swap_b32 {v(V_T)}, {v(V_T + 1)}")
        A(f"v_max_f32 {v(S1)}, {v(V_T)}, {v(V_T + 1)}")
        A(f"v_max_f32 {v(V_T)}, {v(V_T)}, {v(V_T + 1)}")
        mark(2)
        A(f"v_permlane16_swap_b32 {v(V_T)}, {v(S1)}")
        A(f"v_max_f32 {v(V_T)}, {v(V_T)}, {v(S1)}")
        A(f"v_mul_f32 {v(V_T)}, {s(S_CS)}, {v(V_T)}")
        S5 = Y + [Z]
        for r in S5:
            A(f"v_fma_f32 {v(r)}, {v(r)}, {s(S_CS)}, -{v(V_T)}")
        for r in S5:
            A(f"v_exp_f32 {v(r)}, {v(r)}")
        mark(3)
        A(f"v_cvt_pk_bf16_f32 {v(TT)}, {v(Y[0])}, {v(Y[1])}")
        A(f"v_cvt_pk_bf16_f32 {v(TT + 1)}, {v(Y[2])}, {v(Y[3])}")
        A(f"v_cndmask_b32 {v(PB + 2)}, {v(TT)}, {v(ZERO)}, vcc")
        A(f"v_cndmask_b32 {v(PB + 3)}, {v(TT + 1)}, {v(ZERO)}, vcc")
        A(f"v_cndmask_b32_dpp {v(PB)}, {v(TT)}, {v(ZERO)}, vcc quad_perm:[2,3,0,1] {QP}")
        A(f"v_cndmask_b32_dpp {v(PB + 1)}, {v(TT + 1)}, {v(ZERO)}, vcc quad_perm:[2,3,0,1] {QP}")
        A(f"s_mov_b64 vcc, {s(S_MB, 2)}")
        L.wait("vx")
        A(f"v_cndmask_b32 {v(PA)}, {v(TT)}, {v(ZERO)}, vcc")
        A(f"{MF} {v(O, 4)}, {v(VX + 4, 4)}, {v(PB, 4)}, 0")
        A(f"v_cndmask_b32 {v(PA + 1)}, {v(TT + 1)}, {v(ZERO)}, vcc")
        A(f"v_cndmask_b32_dpp {v(PA + 2)}, {v(TT)}, {v(ZERO)}, vcc quad_perm:[2,3,0,1] {QP}")
        A(f"{MF} {v(O + 4, 4)}, {v(VX + 12, 4)}, {v(PB, 4)}, 0")
        A(f"v_cndmask_b32_dpp {v(PA + 3)}, {v(TT + 1)}, {v(ZERO)}, vcc quad_perm:[2,3,0,1] {QP}")
        A(f"v_mov_b32_dpp {v(ZR)}, {v(Z)} quad_perm:[2,3,0,1] {QP}")
        A(f"v_add_f32 {v(V_T)}, {v(Y[0])}, {v(Y[1])}")
        A(f"{MF} {v(O, 4)}, {v(VX, 4)}, {v(PA, 4)}, {v(O, 4)}")
        A(f"v_cvt_pk_bf16_f32 {v(PM)}, {v(Z)}, {v(ZR)}")
        A(f"v_cvt_pk_bf16_f32 {v(PM + 1)}, {v(ZR)}, {v(Z)}")
        A(f"{MF} {v(O + 4, 4)}, {v(VX + 8, 4)}, {v(PA, 4)}, {v(O + 4, 4)}")
        A(f"v_cndmask_b32 {v(PM)}, {v(PM)}, {v(ZERO)}, vcc")
        A(f"v_cndmask_b32 {v(PM + 1)}, {v(ZERO)}, {v(PM + 1)}, vcc")
        mark(4)
        A(f"ds_read_b32 {v(DBV)}, {v(V_FLG)}")
        bad, ok = A.newlabel("vb"), A.newlabel("vo")
        A(f"s_waitcnt vmcnt({nst[0]})")
        A(f"v_bitop3_b32 {v(V_T + 5)}, {v(VM)}, {v(VM + 2)}, {s(S_TAG)} bitop3:0x7e")
        A(f"v_add_f32 {v(V_T + 1)}, {v(Y[2])}, {v(Y[3])}")
        A(f"v_and_b32 {v(V_T + 5)}, 1, {v(V_T + 5)}")
        A(f"v_add_f32 {v(V_T)}, {v(V_T)}, {v(Z)}")
        A(f"v_cmp_ne_u32 vcc, 0, {v(V_T + 5)}")
        A(f"v_add_f32 {v(V_T)}, {v(V_T)}, {v(V_T + 1)}")
        A.nf(f"s_cbranch_vccnz {bad}")
        A.label_nf(ok)

        def vslow():
            A.label(bad)
            spin_fail(A)
            if cfg.timing == 5:
                A("s_add_u32 s94, s94, 1")
            A(vmld)
            A("s_waitcnt vmcnt(0)")
            A(f"v_bitop3_b32 {v(V_T + 5)}, {v(VM)}, {v(VM + 2)}, {s(S_TAG)} bitop3:0x7e")
            A(f"v_and_b32 {v(V_T + 5)}, 1, {v(V_T + 5)}")
            A(f"v_cmp_ne_u32 vcc, 0, {v(V_T + 5)}")
            A(f"s_cbranch_vccnz {bad}")
            A(f"s_branch {ok}")
        ool.append(vslow)
        A(f"v_mfma_f32_16x16x16_bf16 {v(O, 4)}, {v(VM, 2)}, {v(PM, 2)}, {v(O, 4)}")
        A(f"v_add_f32_dpp {v(V_T + 1)}, {v(V_T)}, {v(V_T)} quad_perm:[2,3,0,1] {QP}")
        A(f"v_add_f32_dpp {v(V_T)}, {v(V_T)}, {v(V_T)} quad_perm:[2,3,0,1] {QP}")
        A(f"v_mfma_f32_16x16x16_bf16 {v(O + 4, 4)}, {v(VM + 2, 2)}, {v(PM, 2)}, {v(O + 4, 4)}")
        A(f"v_permlane32_swap_b32 {v(V_T)}, {v(V_T + 1)}")
        A(f"v_add_f32 {v(S1)}, {v(V_T)}, {v(V_T + 1)}")
        A(f"v_add_f32 {v(V_T)}, {v(V_T)}, {v(V_T + 1)}")
        A(f"s_add_u32 {s(S_N)}, {s(S_N)}, 1")
        A(f"s_mov_b32 {s(S_L)}, {s(S_NL)}")
        A(f"v_permlane16_swap_b32 {v(V_T)}, {v(S1)}")
        A(f"v_add_f32 {v(V_T)}, {v(V_T)}, {v(S1)}")
        A(f"v_rcp_f32 {v(V_T)}, {v(V_T)}")
        A(f"s_mov_b32 {s(S_T)}, {s(S_NT)}")
        for i in range(0, 8, 2):
            A(f"v_pk_mul_f32 {v(O + i, 2)}, {v(O + i, 2)}, {v(V_T, 2)} op_sel_hi:[1,0]")
        OP = V_F
        for i in range(4):
            A(f"v_cvt_pk_bf16_f32 {v(OP + i)}, {v(O + 2 * i)}, {v(O + 2 * i + 1)}")
        A(f"v_and_or_b32 {v(OP)}, {v(OP)}, -2, {s(S_TAG)}")
        A(f"buffer_store_dwordx4 {v(OP, 4)}, {v(V_OST)}, {WS}, {s(S_OIA)} offen{LS}")
        mark(5)
        stamp(3)
        if cfg.timing == 3:
            A(f"s_sub_u32 {s(S_N)}, {s(S_N)}, 1")
            stamp(4)
            stamp.flush()
            A(f"s_add_u32 {s(S_N)}, {s(S_N)}, 1")
        A(f"s_mov_b32 {s(S_TAG)}, {s(S_NTAG)}")
        A(f"s_mov_b32 {s(S_T1)}, {s(S_NT1)}")
        A("s_waitcnt lgkmcnt(0)")
        A(f"v_cmp_ne_u32 vcc, {s(S_N)}, {v(DBV)}")
        A(f"v_mov_b32 {v(V_T)}, {s(S_N)}")
        A(f"ds_write_b32 {v(V_SY)}, {v(V_T)}")
        A.nf(f"s_branch CS_LOOP{sx}")
        A.label(skip)
        A("s_waitcnt lgkmcnt(0)")
        A("s_barrier")
        advance()
        A("s_mov_b64 vcc, -1")
        A("s_waitcnt vmcnt(0)")
        A(f"v_mov_b32 {v(V_T)}, {s(S_N)}")
        A(f"ds_write_b32 {v(V_SY)}, {v(V_T)}")
        A(f"s_cmp_lt_u32 {s(S_N)}, 128")
        A(f"s_cbranch_scc1 CS_LOOP{sx}")
        A("s_branch CS_DONE")
        for f in ool:
            f()

    def s_loop3(sx, LS, spec=False, other=None):
        from stations3 import Vm
        L = Lds(A)
        ool = []
        PLr, PRr = (92, 72) if cfg.pfs else (72, 92)
        ZERO, DBV = 10, 0
        retry, go = front(L, ool, "CS_LOOP" + sx, "x", V_PL=PLr, V_PR=PRr, zero=None)
        fill = [f"v_xor_b32 {v(V_KA)}, {L_KV ^ (L_KV + 24576)}, {v(V_KA)}"]
        fill += cap(lambda c: next_item(c, S_NL, S_NT))
        if cfg.dsh and not cfg.nodma:
            fill += cap(lambda c: kv_src(c, S_NL, S_NT)) + [f"s_sub_u32 {s(S_KLDS)}, {s(S_FLG1)}, {s(S_KLDS)}", f"s_mov_b32 m0, {s(S_KLDS)}"]
            fill += cap(lambda c: cur_local(c, False))
            fill += [f"buffer_load_dwordx4 {v(V_L16)}, {WS}, {s(S_KSRC)} offen offset:{i * 1024} {DF[cfg.dfl]}lds" for i in range(4)]
            if cfg.dsh == 2:
                fill += [f"s_add_u32 m0, {s(S_KLDS)}, 12288", f"s_add_u32 {s(S_KSRC)}, {s(S_KSRC)}, {QKV_SZ}"]
                fill += [f"buffer_load_dwordx4 {v(V_L16)}, {WS}, {s(S_KSRC)} offen offset:{i * 1024} {DF[cfg.dfl]}lds" for i in range(cfg.dv)]
        else:
            fill += cap(lambda c: cur_local(c, False))
        fill += [f"v_add_u32 {v(V_T + 5)}, {s(S_XGH)}, {v(V_KA)}", f"v_mov_b32 {v(V_T + 4)}, {s(S_T1)}"]
        fill += cap(lambda c: fe_scalars(c, S_NL, S_NT, S_NTAG, S_NT1))
        fill += [f"s_add_u32 {s(S_N)}, {s(S_N)}, 1", f"s_mov_b32 {s(S_L)}, {s(S_NL)}", f"s_mov_b32 {s(S_T)}, {s(S_NT)}", f"s_mov_b32 {s(S_T1)}, {s(S_NT1)}",
                 f"s_mov_b64 vcc, {s(S_MA, 2)}"]
        AR = [60, 64, 68, 88, 92, 96, 100, 104]
        KQ = [48, 52, 108, 72, 76, 80, 84, 88, 92, 96, 100, 104]
        XR = [24, 36, 32, 44, 28, 40]
        S0, S1, SMm = 60, 64, 68
        VX = XR[:4]
        PA, PB, VM, O1, PM, O0, TT, OP = 28, 40, 48, 52, 56, 64, 70, 48
        if cfg.s3 == 1:
            seq, rd, items = gemm3(L, AR, cfg.bar1)
            p1 = G3I[9, 5]
            free = {48: 14, 52: 14, 108: 14, 72: G3I[8, 5] + 1, 76: G3I[8, 5] + 1, 80: p1 + 1, 84: p1 + 1}
            free.update({AR[sl - 2]: G3I["last", sl] + 1 for sl in range(5, 10)})
            KQ = [48, 52] + sorted((r for r in free if r > 52), key=lambda r: free[r])
            KREL = [free[r] for r in KQ]
        else:
            seq = []
            KQ = [48, 52, 88, 92, 96, 100, 104, 108, 72, 76, 80, 84]
            XR = [24, 28, 32, 36, 40, 44]
            VX = XR[:4]
            PA, PB = 40, 44
            if cfg.h16 == 2:
                PM = 72

        def rdK(i):
            return (("K", i), f"ds_read_b128 {v(KQ[i], 4)}, {v(V_KA)} offset:{i * 1024}")

        def rdX(j):
            return [(("X", j), f"ds_read_b64_tr_b16 {v(XR[j] + 2 * ih, 2)}, {v(V_XR)} offset:{j * 1024 + ih * 512}") for ih in range(2)]
        for j in range(6):
            for acc, aop, tg in ((S0, KQ[2 * j], ("K", 2 * j)), (S1, KQ[2 * j + 1], ("K", 2 * j + 1)), (SMm, XR[j], ("X", j))):
                seq.append((f"{MF} {v(acc, 4)}, {v(aop, 4)}, {v(XR[j], 4)}, {'0' if j == 0 else v(acc, 4)}", [("X", j), tg]))
        vmld = f"buffer_load_dwordx4 {v(VM, 4)}, {v(V_L16)}, {WS}, {s(S_VMA)} offen sc1"
        V = Vm(A)

        def do_ring(V):
            A("s_mov_b64 exec, 1")
            V.op("ring", f"buffer_store_dword {v(V_T + 4)}, {v(V_L16)}, {WS}, {s(S_DOA)} offen{LS}")
            A("s_mov_b64 exec, -1")
        if cfg.s3 == 1:
            e0, e2, e1 = Task(p1 - 1, items(0)), Task(p1 + 3, items(2)), Task(61, items(1))
            ka, kb = min(p1 + cfg.b2a, 60), cfg.b2b
            tf = Task(0, fill)
            tk = [e0, e2, e1] + rd + [Task(ka, rdX(0) + rdX(1)), Task(kb, rdX(4) + rdX(5))]
            tk += [Task(KREL[i], [rdK(i)]) for i in range(3, 6)] + [Task(ka, rdX(2))] + [Task(KREL[i], [rdK(i)]) for i in (6, 7)] + [Task(ka, rdX(3))]
            tk += [Task(KREL[i], [rdK(i)]) for i in range(8, 12)]
            if cfg.vmj < 18:
                tk.append(Task(60 + max(cfg.vmj, 1), [(8, lambda: V.op("vm", vmld))]))
            if cfg.dbo < 18:
                tk.append(Task(60 + cfg.dbo, [(16, lambda: do_ring(V))]))
            if cfg.pf == 1:
                tk.append(Task(cfg.krd, [("rdy", f"ds_read_b32 {v(DBV)}, {v(V_FLG)}")]))
            tk += [Task(63 + 3 * i, [("vx", f"ds_read_b128 {v(VX[i], 4)}, {v(V_T + 5)} offset:{12288 + i * 1024}")]) for i in range(4)]
            tk += [Task(cfg.k0 + 4 * i, [rdK(i)]) for i in range(3)] + [tf]

            def lim(k):
                return (16, 2) if p1 - 1 <= k < p1 + 7 else (12, 1) if k < 59 else (12, 2)

            def b2b():
                bar_after(L, ("xw", 1), 2, [e1, tf])()
            sched(A, L, seq, tk, pre={cfg.bar1: bar_after(L, "mw", 5), ka: bar_after(L, ("xw", 2), None, [e0, e2]), kb: b2b, 61: lambda: stamp(6)}, lim=lim)
            pref = A.newlabel("pf")
            if cfg.pf == 1:
                L.wait("rdy")
                A(f"v_readfirstlane_b32 {s(T)}, {v(DBV)}")
                A(f"s_cmp_eq_u32 {s(T)}, {s(S_N)}")
                A.nf(f"s_cbranch_scc1 {pref}")
        else:
            epi = qk_epi(L)
            gemm(L, [Task(cfg.k0, [rdK(i) for i in range(8)], step=cfg.kst), Task(0, fill)] + epi[1:], qk_tail, hi=epi[:1])
            L.op(*rdK(8))
            L.op(*rdK(9))
            L.wait("xw")
            A("s_barrier")
            stamp(2)
            for j in range(4):
                for it in rdX(j):
                    L.op(*it)
            tk = [Task(0, rdX(4) + [rdK(10), rdK(11)] + rdX(5))]
            tk += [Task(3 + 3 * i, [("vx", f"ds_read_b128 {v(VX[i], 4)}, {v(V_T + 5)} offset:{12288 + i * 1024}")]) for i in range(4)]
            if cfg.vmj < 18:
                tk.append(Task(max(cfg.vmj, 1), [(8, lambda: V.op("vm", vmld))]))
            if cfg.dbo < 18:
                tk.append(Task(cfg.dbo, [(16, lambda: do_ring(V))]))
            if spec and cfg.pfs:
                tk.append(Task(cfg.pfs, [(8, lambda n=n: V.op(("P", n), pld(PLr, order[n], S_PLA))) for n in range(5)]))
            sched(A, L, seq, tk, nvalu=2)
        q0, v0 = list(L.q), list(V.q)

        def tail(pre):
            L.q = list(q0)
            V = Vm(A, v0)
            lds_ = [(("P", n), pld(PLr if n < 5 else PRr, order[n % 5], S_PLA if n < 5 else S_PXA)) for n in range(5 if cfg.pfs else 0, 10)] if pre else []

            npf = [0]

            def pf():
                npf[0] += 1
                n = (0 if npf[0] <= cfg.pf0 else -(-len(lds_) // (11 - npf[0])))
                if cfg.pfs:
                    n = 1 if npf[0] in ((1, 2, 7, 9, 10), (1, 2, 3, 4, 5), (2, 6, 7, 9, 10))[cfg.pf0] and lds_ else 0
                for _ in range(n):
                    V.op(*lds_.pop(0))

            def mark(k):
                if cfg.vmj == 18 + k:
                    V.op("vm", vmld)
                if cfg.dbo == 18 + k:
                    do_ring(V)
            xs = (lambda k: stamp(k)) if cfg.tsx else (lambda k: None)
            xs(0)
            mark(0)
            Y = [S0 + i for i in range(4)]
            Z = SMm
            ZR, TM = V_T + 2, V_T + 3
            pf()
            for i in range(4):
                A(f"v_cndmask_b32_dpp {v(Y[i])}, {v(S1 + i)}, {v(S0 + i)}, vcc quad_perm:[2,3,2,3] {QP}")
            A(f"v_max3_f32 {v(V_T)}, {v(Y[0])}, {v(Y[1])}, {v(Y[2])}")
            A(f"v_cndmask_b32_dpp {v(Z)}, {v(SMm + 1)}, {v(SMm)}, vcc quad_perm:[2,3,2,3] {QP}")
            A(f"v_max3_f32 {v(V_T)}, {v(V_T)}, {v(Y[3])}, {v(Z)}")
            mark(1)
            pf()
            A(f"v_max_f32_dpp {v(V_T + 1)}, {v(V_T)}, {v(V_T)} quad_perm:[2,3,0,1] {QP}")
            A(f"v_max_f32_dpp {v(V_T)}, {v(V_T)}, {v(V_T)} quad_perm:[2,3,0,1] {QP}")
            A(f"v_permlane32_swap_b32 {v(V_T)}, {v(V_T + 1)}")
            A(f"v_max_f32 {v(TM)}, {v(V_T)}, {v(V_T + 1)}")
            A(f"v_max_f32 {v(V_T)}, {v(V_T)}, {v(V_T + 1)}")
            mark(2)
            pf()
            A(f"v_permlane16_swap_b32 {v(V_T)}, {v(TM)}")
            A(f"v_max_f32 {v(V_T)}, {v(V_T)}, {v(TM)}")
            A(f"v_mul_f32 {v(V_T)}, {s(S_CS)}, {v(V_T)}")
            S5 = Y + [Z]
            for r in S5:
                A(f"v_fma_f32 {v(r)}, {v(r)}, {s(S_CS)}, -{v(V_T)}")
            pf()
            for r in S5:
                A(f"v_exp_f32 {v(r)}, {v(r)}")
            xs(7)
            mark(3)
            pf()
            A(f"v_cvt_pk_bf16_f32 {v(TT)}, {v(Y[0])}, {v(Y[1])}")
            A(f"v_cvt_pk_bf16_f32 {v(TT + 1)}, {v(Y[2])}, {v(Y[3])}")
            A(f"v_cndmask_b32 {v(PB + 2)}, {v(TT)}, {v(ZERO)}, vcc")
            A(f"v_cndmask_b32 {v(PB + 3)}, {v(TT + 1)}, {v(ZERO)}, vcc")
            A(f"v_cndmask_b32_dpp {v(PB)}, {v(TT)}, {v(ZERO)}, vcc quad_perm:[2,3,0,1] {QP}")
            A(f"v_cndmask_b32_dpp {v(PB + 1)}, {v(TT + 1)}, {v(ZERO)}, vcc quad_perm:[2,3,0,1] {QP}")
            A(f"s_mov_b64 vcc, {s(S_MB, 2)}")
            L.wait("vx")
            pf()
            A(f"v_cndmask_b32 {v(PA)}, {v(TT)}, {v(ZERO)}, vcc")
            A(f"{MF} {v(O0, 4)}, {v(VX[1], 4)}, {v(PB, 4)}, 0")
            A(f"v_cndmask_b32 {v(PA + 1)}, {v(TT + 1)}, {v(ZERO)}, vcc")
            A(f"v_cndmask_b32_dpp {v(PA + 2)}, {v(TT)}, {v(ZERO)}, vcc quad_perm:[2,3,0,1] {QP}")
            A(f"{MF} {v(O1, 4)}, {v(VX[3], 4)}, {v(PB, 4)}, 0")
            A(f"v_cndmask_b32_dpp {v(PA + 3)}, {v(TT + 1)}, {v(ZERO)}, vcc quad_perm:[2,3,0,1] {QP}")
            A(f"v_mov_b32_dpp {v(ZR)}, {v(Z)} quad_perm:[2,3,0,1] {QP}")
            A(f"v_add_f32 {v(V_T)}, {v(Y[0])}, {v(Y[1])}")
            A(f"{MF} {v(O0, 4)}, {v(VX[0], 4)}, {v(PA, 4)}, {v(O0, 4)}")
            pf()
            A(f"v_cvt_pk_bf16_f32 {v(PM)}, {v(Z)}, {v(ZR)}")
            A(f"v_cvt_pk_bf16_f32 {v(PM + 1)}, {v(ZR)}, {v(Z)}")
            A(f"{MF} {v(O1, 4)}, {v(VX[2], 4)}, {v(PA, 4)}, {v(O1, 4)}")
            A(f"v_cndmask_b32 {v(PM)}, {v(PM)}, {v(ZERO)}, vcc")
            A(f"v_cndmask_b32 {v(PM + 1)}, {v(ZERO)}, {v(PM + 1)}, vcc")
            mark(4)
            if (not pre or spec) and cfg.rdp == 0 and not cfg.m1:
                A(f"ds_read_b32 {v(DBV)}, {v(V_FLG)}")
            A(f"v_add_f32 {v(V_T + 1)}, {v(Y[2])}, {v(Y[3])}")
            A(f"v_add_f32 {v(V_T)}, {v(V_T)}, {v(Z)}")
            A(f"v_add_f32 {v(V_T)}, {v(V_T)}, {v(V_T + 1)}")
            bad, ok = A.newlabel("vb"), A.newlabel("vo")
            xs(1)
            V.wait("vm")
            xs(5)
            A(f"v_bitop3_b32 {v(V_T + 5)}, {v(VM)}, {v(VM + 2)}, {s(S_TAG)} bitop3:0x7e")
            A(f"v_add_f32_dpp {v(V_T + 1)}, {v(V_T)}, {v(V_T)} quad_perm:[2,3,0,1] {QP}")
            A(f"v_and_b32 {v(V_T + 5)}, 1, {v(V_T + 5)}")
            A(f"v_add_f32_dpp {v(V_T)}, {v(V_T)}, {v(V_T)} quad_perm:[2,3,0,1] {QP}")
            A(f"v_cmp_ne_u32 vcc, 0, {v(V_T + 5)}")
            pf()
            A.nf(f"s_cbranch_vccnz {bad}")
            A.label_nf(ok)

            def vslow():
                A.label(bad)
                spin_fail(A)
                if cfg.timing == 5:
                    A("s_add_u32 s94, s94, 1")
                A(vmld)
                A("s_waitcnt vmcnt(0)")
                A(f"v_bitop3_b32 {v(V_T + 5)}, {v(VM)}, {v(VM + 2)}, {s(S_TAG)} bitop3:0x7e")
                A(f"v_and_b32 {v(V_T + 5)}, 1, {v(V_T + 5)}")
                A(f"v_cmp_ne_u32 vcc, 0, {v(V_T + 5)}")
                A(f"s_cbranch_vccnz {bad}")
                A(f"s_branch {ok}")
            ool.append(vslow)
            A(f"v_mfma_f32_16x16x16_bf16 {v(O0, 4)}, {v(VM, 2)}, {v(PM, 2)}, {v(O0, 4)}")
            A(f"v_permlane32_swap_b32 {v(V_T)}, {v(V_T + 1)}")
            A(f"v_add_f32 {v(TM)}, {v(V_T)}, {v(V_T + 1)}")
            A(f"v_mfma_f32_16x16x16_bf16 {v(O1, 4)}, {v(VM + 2, 2)}, {v(PM, 2)}, {v(O1, 4)}")
            A(f"v_add_f32 {v(V_T)}, {v(V_T)}, {v(V_T + 1)}")
            pf()
            if (not pre or spec) and cfg.rdp == 1:
                A(f"ds_read_b32 {v(DBV)}, {v(V_FLG)}")
            A(f"v_permlane16_swap_b32 {v(V_T)}, {v(TM)}")
            A(f"v_add_f32 {v(V_T)}, {v(V_T)}, {v(TM)}")
            A(f"v_rcp_f32 {v(V_T)}, {v(V_T)}")
            pf()
            for o_ in (O0, O1):
                for i in range(4):
                    A(f"v_mul_f32 {v(o_ + i)}, {v(o_ + i)}, {v(V_T)}")
            for i in range(4):
                o_ = (O0, O1)[i >> 1] + 2 * (i & 1)
                A(f"v_cvt_pk_bf16_f32 {v(OP + i)}, {v(o_)}, {v(o_ + 1)}")
            A(f"v_and_or_b32 {v(OP)}, {v(OP)}, -2, {s(S_TAG)}")
            assert not lds_
            V.op("o", f"buffer_store_dwordx4 {v(OP, 4)}, {v(V_OST)}, {WS}, {s(S_OIA)} offen{LS}")
            mark(5)
            stamp(3)
            if pre:
                zero_mfma()
            if cfg.timing == 3:
                A(f"s_sub_u32 {s(S_N)}, {s(S_N)}, 1")
                stamp(4)
                stamp.flush()
                A(f"s_add_u32 {s(S_N)}, {s(S_N)}, 1")
            A(f"s_mov_b32 {s(S_TAG)}, {s(S_NTAG)}")
            A(f"v_mov_b32 {v(V_T)}, {s(S_N)}")
            if spec:
                miss = A.newlabel("ms")
                A(f"ds_write_b32 {v(V_SY)}, {v(V_T)}")
                A(f"s_cmp_lt_u32 {s(S_N)}, {127 - LAG}")
                process(PLr, PRr, lambda n: V.wait(("P", 5 + n)), miss)
                A("s_barrier")
                stamp(0)
                stamp(7)
                if cfg.timing == 5:
                    A("s_add_u32 s95, s95, 1")
                    A(f"s_cmp_lt_u32 {s(S_N)}, {127 - LAG}")
                A.nf(f"s_cbranch_scc1 {go}")
                A.nf(f"s_branch {other[1]}")
                A.label_nf(miss)
                A("s_waitcnt lgkmcnt(0)")
                A(f"v_cmp_ne_u32 vcc, {s(S_N)}, {v(DBV)}")
                A.nf(f"s_cbranch_scc1 CS_LOOP{sx}")
                A(f"s_branch {other[0]}")
            elif pre:
                if cfg.timing == 5:
                    A("s_add_u32 s95, s95, 1")
                A(f"ds_write_b32 {v(V_SY)}, {v(V_T)}")
                A("s_barrier")
                stamp(0)
                stamp(7)
                process(PLr, PRr, lambda n: V.wait(("P", 5 + n)), retry)
                A.nf(f"s_branch {go}")
            else:
                if not cfg.m1:
                    A("s_waitcnt lgkmcnt(0)")
                    A(f"v_cmp_ne_u32 vcc, {s(S_N)}, {v(DBV)}")
                A(f"ds_write_b32 {v(V_SY)}, {v(V_T)}")
                if other:
                    A(f"s_cmp_eq_u32 {s(S_N)}, {LAG}")
                    A.nf(f"s_cbranch_scc1 {other}")
                A(f"s_cmp_lt_u32 {s(S_N)}, 128")
                A.nf(f"s_cbranch_scc1 CS_LOOP{sx}")
                A("s_branch CS_DONE")
        tail(spec)
        if cfg.pf == 1:
            A.label_nf(pref)
            A("s_nop 3")
            tail(True)
        for f in ool:
            f()
        return "CS_LOOP" + sx, go

    if cfg.s3:
        s_loop = s_loop3
        A("v_mov_b32 v10, 0")
        A("v_mov_b32 v11, 0")
        for i in range(24):
            A(f"v_mov_b32 {v(V_ACC + i)}, 0")
    A(f"s_cmp_lg_u32 {s(S_MODE)}, 0")
    A("s_cbranch_scc1 CS_LOOP_S")
    if cfg.s3 and cfg.pf == 2 and LAG < 63:
        ent = s_loop("_F", "", other="CS_LOOP_D")
        s_loop("_D", "", spec=True, other=ent)
    else:
        s_loop("_F", "")
    s_loop("_S", " sc1")

    A.label("CH_START")
    next_item(A, S_NL, S_NT)
    next_item(A, S_L2, S_T2)
    A(f"s_mov_b32 {s(S_KLDS)}, {L_KV}")
    kv_src(A, S_L, S_T)
    flag_row_of(A, S_FLG1, S_L, S_T)
    flag_spin(S_FLG1)
    for e in kv_dma():
        for x in e:
            A(x)
    A(f"s_mov_b32 {s(S_KLDS)}, {L_KV + 24576}")
    kv_src(A, S_NL, S_NT)
    flag_row_of(A, S_FLG1, S_NL, S_NT)
    flag_row_of(A, S_FLG2, S_L2, S_T2)
    A(f"s_mov_b32 {s(S_DEF)}, 1")
    A(f"v_min_u32 {v(V_SY3)}, 2, {v(V_LANE)}")
    A(f"v_lshlrev_b32 {v(V_SY3)}, 2, {v(V_SY3)}")
    A(f"v_add_u32 {v(V_SY3)}, {L_SY}, {v(V_SY3)}")
    A(f"v_mov_b32 {v(V_RDY)}, {L_SY + 12}")
    A(f"s_mov_b32 {s(S_EARLY)}, 0")
    stamp.init()
    L = Lds(A)
    ool = []
    if cfg.s3 == 2:
        for i in range(24):
            A(f"v_mov_b32 {v(V_ACC + i)}, 0")
    if cfg.h16 == 2:
        u_zero()
    dm0 = kv_dma()[12 if cfg.dsh else 0:][:cfg.dfe] if not cfg.nodma else []
    front(L, ool, "CH_LOOP", poller="me", zero=cfg.s3 != 2, mid=[x for e in dm0 for x in e])
    kstore = [f"buffer_store_dwordx4 {v(V_KEEP + 4 * i, 4)}, {v(V_KST)}, {WS}, {s(S_KP)} offen offset:{i * 1024} sc1" for i in range(3)]
    f1, f2 = pend_window(kstore)
    dm = kv_dma()[12 if cfg.dsh else 0:] if not cfg.nodma else []
    dm = dm[cfg.dfe:]
    if cfg.dsh == 2 and dm:
        dm = [(dm[i - i % 4][:-1] if i % 4 == cfg.dv else []) + dm[i][-1:] for i in range(12) if i % 4 >= cfg.dv]
    flat = lambda l_: [x for e in l_ for x in (["\n".join(e[:-1])] if len(e) > 1 else []) + [e[-1]]]
    epi = qk_epi(L)
    fl = f"buffer_load_dword {v(V_FV)}, {v(V_FLG)}, {WS}, {s(S_FLG2)} offen sc1"
    if cfg.s3 != 1:
        tfe = Task(0, cap(lambda c: fe_scalars(c, S_NL, S_NT, S_NTAG, S_NT1)) if cfg.s3 else [])
        gemm(L, [Task(cfg.dma0, ([(24, f1), (40, f2)] if not cfg.nb else pend_items(kstore)) + [fl]), Task(cfg.dma1, flat(dm[:cfg.ngem])), tfe] + epi[1:], qk_tail, hi=epi[:1])
        L.wait("xw")
        A("s_barrier")
        stamp(2)
        if cfg.s3:
            A(f"buffer_load_dword {v(V_T + 4)}, {v(V_DB)}, {WS}, {s(S_DPA)} offen sc1")
    else:
        seq, rd, items = gemm3(L, [60, 64, 68, 88, 92, 96, 48, 52], 12)
        p1 = G3I[9, 5]
        e0, e2, e1 = Task(p1 - 1, items(0)), Task(p1 + 3, items(2)), Task(60, items(1))
        tfe = Task(0, cap(lambda c: fe_scalars(c, S_NL, S_NT, S_NTAG, S_NT1)))
        tsm = Task(cfg.ksd, [f"buffer_load_dword {v(V_T + 4)}, {v(V_DB)}, {WS}, {s(S_DPA)} offen sc1"])
        tsm.after = tfe
        sched(A, L, seq, [e0, e2] + rd + [tsm, Task(cfg.dma0, [(24, f1), (40, f2), fl]), Task(cfg.dma1, flat(dm[:cfg.ngem])), tfe, e1],
              pre={cfg.bar1: bar_after(L, "mw", 5), min(p1 + cfg.b2a, 59): bar_after(L, ("xw", 2), None, [e0, e2])},
              lim=lambda k: (16, 2) if p1 - 1 <= k < p1 + 7 else (cfg.hb, 1))
        stamp(6)
        A(f"s_add_u32 {s(T)}, {s(S_N)}, 1")
        A(f"v_mov_b32 {v(V_T + 2)}, {s(T)}")
        bar_after(L, ("xw", 1), 2)()
        lab = A.newlabel("ne")
        A(f"s_mov_b32 {s(S_EARLY)}, 0")
        A("s_waitcnt vmcnt(0)")
        A(f"v_cmp_gt_u32 vcc, {s(S_NT1)}, {v(V_T + 4)}")
        A(f"s_cbranch_vccnz {lab}")
        A(f"ds_write_b32 {v(V_RDY)}, {v(V_T + 2)}")
        A(f"s_mov_b32 {s(S_EARLY)}, 1")
        A.label(lab)
    if cfg.w3:
        slowp, back = A.newlabel("h1"), A.newlabel("h2")
        cur_global(A)
        A(f"s_cmp_ge_u32 {s(S_NT)}, 63")
        A(f"s_cselect_b32 {s(S_DEF)}, 0, {s(S_DEF)}")
        A(f"s_cmp_eq_u32 {s(S_NL)}, {s(S_L)}")
        A(f"s_cselect_b32 {s(T)}, 1, {s(S_DEF)}")
        A(f"s_cmp_eq_u32 {s(T)}, 0")
        A(f"s_cbranch_scc0 {slowp}")
        A.label(back)
        stamp(4)
        stamp.flush()
        advance()
        A(f"s_mov_b32 {s(S_NL)}, {s(S_L2)}")
        A(f"s_mov_b32 {s(S_NT)}, {s(S_T2)}")
        A(f"s_mov_b32 {s(S_FLG1)}, {s(S_FLG2)}")
        next_item(A, S_L2, S_T2)
        flag_row_of(A, S_FLG2, S_L2, S_T2)
        kv_src(A, S_NL, S_NT)
        A(f"s_xor_b32 {s(S_KLDS)}, {s(S_KLDS)}, {L_KV ^ (L_KV + 24576)}")
        for i in range(24):
            A(f"v_mov_b32 {v(V_ACC + i)}, 0")
        if cfg.h16 == 2:
            for i in range(16):
                A(f"v_mov_b32 {v(84 + i)}, 0")
        A("s_waitcnt vmcnt(0)")
        if cfg.ef:
            f1()
        A(f"v_cmp_eq_u32 vcc, 0, {v(V_FV)}")
        A(f"s_cmp_lg_u64 vcc, 0")
        A(f"s_cselect_b32 {s(S_DEF)}, 1, 0")
        A(f"v_cmp_gt_u32 vcc, {s(S_T1)}, {v(V_T + 4)}")
        A("s_cbranch_vccz CH_RUNG")
        A(f"s_cmp_lt_u32 {s(S_N)}, 128")
        A(f"s_cbranch_scc1 CH_LOOP")
        A("s_branch CS_DONE")
        A.label(slowp)
        kgrab()
        sp = A.newlabel("sp")
        A(f"s_cmp_eq_u32 {s(S_N)}, 127")
        A(f"s_cbranch_scc1 {sp}x")
        A.label(sp)
        A(f"ds_read_b32 {v(V_T)}, {v(V_SY3)}")
        A("s_waitcnt lgkmcnt(0)")
        A(f"v_cmp_ge_u32 vcc, {s(S_N)}, {v(V_T)}")
        poll_tail(A, sp, sleep=1)
        A.label(sp + "x")
        A("s_waitcnt vmcnt(0)")
        f1()
        f2()
        A("s_waitcnt vmcnt(0)")
        f1()
        A(f"s_cmp_eq_u32 {s(S_DEF)}, 0")
        A(f"s_cbranch_scc1 {back}")
        flag_spin(S_FLG1)
        for e in kv_dma():
            for x in e:
                A(x)
        A(f"s_branch {back}")
    else:
        for e in dm[cfg.ngem:]:
            for x in e:
                A(x)
        for j in range(6):
            for ih in range(2):
                A(f"ds_read_b64_tr_b16 {v(V_ACC + 4 * j + 2 * ih, 2)}, {v(V_XR)} offset:{j * 1024 + ih * 512}")
        cur_global(A)
        if not cfg.s3:
            fe_scalars(A, S_NL, S_NT, S_NTAG, S_NT1)
        A(f"s_mov_b64 vcc, {s(S_MB, 2)}")
        A("s_waitcnt lgkmcnt(0)")
        for jp in range(3):
            for i in range(4):
                A(f"v_cndmask_b32_dpp {v(V_KEEP + 4 * jp + i)}, {v(V_ACC + 8 * jp + 4 + i)}, {v(V_ACC + 8 * jp + i)}, vcc quad_perm:[0,1,0,1] {QP}")
        nxt, nodef, sp = A.newlabel("nx"), A.newlabel("nd"), A.newlabel("sp")
        A(f"s_cmp_ge_u32 {s(S_NT)}, 63")
        A(f"s_cselect_b32 {s(S_DEF)}, 0, {s(S_DEF)}")
        A(f"s_cmp_eq_u32 {s(S_NL)}, {s(S_L)}")
        A(f"s_cselect_b32 {s(T)}, 1, {s(S_DEF)}")
        A(f"s_cmp_eq_u32 {s(T)}, 0")
        A(f"s_cbranch_scc1 {nodef}")
        A(f"s_cmp_eq_u32 {s(S_N)}, 127")
        A(f"s_cbranch_scc1 {sp}x")
        A.label(sp)
        A(f"ds_read_b32 {v(V_T)}, {v(V_SY3)}")
        A("s_waitcnt lgkmcnt(0)")
        A(f"v_cmp_ge_u32 vcc, {s(S_N)}, {v(V_T)}")
        poll_tail(A, sp, sleep=1)
        A.label(sp + "x")
        A("s_waitcnt vmcnt(0)")
        f1()
        f2()
        A("s_waitcnt vmcnt(0)")
        f1()
        A.label(nxt)
        A(f"s_cmp_eq_u32 {s(S_DEF)}, 0")
        A(f"s_cbranch_scc1 {nodef}")
        flag_spin(S_FLG1)
        for e in kv_dma():
            for x in e:
                A(x)
        A.label(nodef)
        stamp(4)
        stamp.flush()
        advance()
        A(f"s_mov_b32 {s(S_NL)}, {s(S_L2)}")
        A(f"s_mov_b32 {s(S_NT)}, {s(S_T2)}")
        A(f"s_mov_b32 {s(S_FLG1)}, {s(S_FLG2)}")
        next_item(A, S_L2, S_T2)
        flag_row_of(A, S_FLG2, S_L2, S_T2)
        kv_src(A, S_NL, S_NT)
        A(f"s_xor_b32 {s(S_KLDS)}, {s(S_KLDS)}, {L_KV ^ (L_KV + 24576)}")
        if cfg.s3 == 2:
            for i in range(24):
                A(f"v_mov_b32 {v(V_ACC + i)}, 0")
        A("s_waitcnt vmcnt(0)")
        A(f"v_cmp_eq_u32 vcc, 0, {v(V_FV)}")
        A(f"s_cmp_lg_u64 vcc, 0")
        A(f"s_cselect_b32 {s(S_DEF)}, 1, 0")
        if cfg.s3 == 2:
            A(f"v_cmp_gt_u32 vcc, {s(S_T1)}, {v(V_T + 4)}")
            A("s_cbranch_vccz CH_RUNG")
        A(f"s_cmp_lt_u32 {s(S_N)}, 128")
        A(f"s_cbranch_scc1 CH_LOOP")
        A("s_branch CS_DONE")
    for f in ool:
        f()
    A.label("CS_DONE")
    A(f"v_lshrrev_b32 v0, 4, {v(V_L16)}")
    if cfg.timing == 5:
        retry_dump(A, 0)
    timing_end(A, cfg, stamp, 0)

    A.label("CV_START")
    if cfg.timing == 5:
        for k in range(5):
            A(f"s_mov_b32 {s(92 + k)}, 0")
    stamp.init()

    def v_loop(sx, LS, u):
        L = Lds(A)
        ool = []
        front(L, ool, "CV_LOOP" + sx, poller=None if u else "w0")
        PK = V_KEEP
        x4, x2 = (PK + 2, PK) if u else (PK, PK + 4)
        xst = [f"buffer_store_dwordx4 {v(x4, 4)}, {v(V_VS0)}, {WS}, {s(S_KP)} offen sc1",
               f"buffer_store_dwordx2 {v(x2, 2)}, {v(V_VS1)}, {WS}, {s(S_KP)} offen sc1"]
        f1, f2 = pend_window(xst)
        tail = []
        for p in range(3):
            tail += [(8, 2 * p), (8, 2 * p + 1), (9, 2 * p), (9, 2 * p + 1)]

        def items(p):
            q, k = V_ACC + 8 * p, V_ACC + 8 * p + 4
            r = [f"v_add_f32 {v(q)}, {v(q)}, {v(q + 1)}", f"v_add_f32 {v(q + 2)}, {v(q + 2)}, {v(q + 3)}",
                 f"v_add_f32 {v(k)}, {v(k)}, {v(k + 1)}", f"v_add_f32 {v(k + 2)}, {v(k + 2)}, {v(k + 3)}",
                 f"v_cvt_pk_bf16_f32 {v(PK + 2 * p)}, {v(q)}, {v(q + 2)}", f"v_cvt_pk_bf16_f32 {v(PK + 2 * p + 1)}, {v(k)}, {v(k + 2)}",
                 f"v_and_or_b32 {v(PK + 2 * p)}, {v(PK + 2 * p)}, -2, {s(S_TAG)}"]
            if p == (2, 0)[u]:
                r.append(f"buffer_store_dwordx2 {v(x2, 2)}, {v(V_VS1)}, {WS}, {s(S_VMA)} offen{LS}")
            if p == (1, 2)[u]:
                r.append(f"buffer_store_dwordx4 {v(x4, 4)}, {v(V_VS0)}, {WS}, {s(S_VMA)} offen{LS}")
            return r
        gemm(L, [Task(cfg.dmav, [(24, f1), (32, f2)] if not cfg.nb else pend_items(xst)), Task(0, cap(lambda c: cur_local(c, True))), Task(60, items(1)), Task(60, items(2))], tail, hi=[Task(53, items(0))])
        stamp(2)
        if not cfg.pb:
            A("s_barrier")
        cur_global(A)
        next_item(A, S_NL, S_NT)
        fe_scalars(A, S_NL, S_NT, S_NTAG, S_NT1)
        nxt = A.newlabel("nx")
        if cfg.ef:
            A("s_waitcnt vmcnt(0)")
            f1()
        A(f"s_cmp_lg_u32 {s(S_NL)}, {s(S_L)}")
        A(f"s_cbranch_scc1 {nxt}")
        A("s_waitcnt vmcnt(0)")
        f1()
        f2()
        A("s_waitcnt vmcnt(0)")
        f1()
        A.label(nxt)
        stamp.flush()
        advance()
        A(f"s_cmp_lt_u32 {s(S_N)}, 128")
        A(f"s_cbranch_scc1 CV_LOOP{sx}")
        A("s_branch CV_DONE")
        for f in ool:
            f()

    A(f"s_and_b32 {s(T)}, {s(S_WAVE)}, 1")
    A(f"s_lshl1_add_u32 {s(T)}, {s(S_MODE)}, {s(T)}")
    for k, sx in ((1, "_F1"), (2, "_S0"), (3, "_S1")):
        A(f"s_cmp_eq_u32 {s(T)}, {k}")
        A(f"s_cbranch_scc1 CV_LOOP{sx}")
    v_loop("_F0", "", 0)
    v_loop("_F1", "", 1)
    v_loop("_S0", " sc1", 0)
    v_loop("_S1", " sc1", 1)
    A.label("CV_DONE")
    if cfg.timing == 5:
        retry_dump(A, 32)
    timing_end(A, cfg, stamp, 32)


def gen_cw(A, cfg, nwg):
    LAG = cfg.LAG
    V_DB, V_BW, V_RW0, V_RR0, V_RW, V_RR, V_PS = 3, 4, 5, 6, 7, 8, 9
    V_STAMP = 19
    V_O = 32
    V_ACC = 80
    V_B = 100
    L_RB = 98304
    RBS = 4 * 8 * 352
    S_PLH, S_PXH, S_DPH, S_M40 = S_HOFF, S_PXR, S_XGH, S_MA

    def wreg(f, p):
        idx = f * 4 + p
        return ("a", idx * 8) if idx < 32 else ("v", 128 + (idx - 32) * 8)

    def wtxt(f, p):
        if p == 4:
            return v(V_B + 8 * (f & 1), 8)
        k, r = wreg(f, p)
        return a(r, 8) if k == "a" else v(r, 8)

    A.label("ROLE_CW")
    common_setup(A, cfg, 3)
    g_, c_ = V_T + 2, V_T + 3
    A(f"v_lshrrev_b32 {v(g_)}, 4, {v(V_LANE)}")
    A(f"v_and_b32 {v(c_)}, 15, {v(V_LANE)}")
    A(f"v_min_u32 {v(V_DB)}, 11, {v(c_ if cfg.pw else V_LANE)}")
    A(f"v_lshlrev_b32 {v(V_DB)}, 2, {v(V_DB)}")
    if cfg.pw:
        A(f"v_lshl_add_u32 {v(V_DB)}, {v(g_)}, 7, {v(V_DB)}")
    A(f"s_mul_i32 {s(T)}, {s(S_WAVE)}, 24576")
    A(f"v_add_u32 {v(V_BW)}, {s(T)}, {v(V_L16)}")
    A(f"v_mul_u32_u24 {v(V_RW0)}, 704, {v(g_)}")
    if cfg.h16:
        A(f"v_and_b32 {v(V_T)}, 3, {v(c_)}")
        A(f"v_lshl_add_u32 {v(V_RW0)}, {v(V_T)}, 2, {v(V_RW0)}")
        A(f"v_bfe_u32 {v(V_T)}, {v(c_)}, 2, 1")
        A(f"v_lshl_add_u32 {v(V_RW0)}, {v(V_T)}, 5, {v(V_RW0)}")
        A(f"v_bfe_u32 {v(V_T)}, {v(c_)}, 3, 1")
        A(f"v_lshl_add_u32 {v(V_RW0)}, {v(V_T)}, 4, {v(V_RW0)}")
    else:
        A(f"v_lshl_add_u32 {v(V_RW0)}, {v(c_)}, 2, {v(V_RW0)}")
    A(f"s_mul_i32 {s(T)}, {s(S_WAVE)}, 2816")
    A(f"s_add_u32 {s(T)}, {s(T)}, {L_RB}")
    A(f"v_add_u32 {v(V_RW0)}, {s(T)}, {v(V_RW0)}")
    V_TM = 10
    if cfg.h16:
        A(f"s_mul_i32 {s(T)}, {s(S_WAVE)}, 24")
        A(f"s_min_u32 {s(T)}, {s(T)}, 64")
        A(f"s_cmp_lt_u32 {s(S_WAVE)}, 2")
        A(f"s_cselect_b32 {s(T + 1)}, 23, 15")
        A(f"s_mov_b32 {s(S_M40)}, 0xffff")
        A(f"s_cselect_b32 {s(S_M40)}, 0xffffff, {s(S_M40)}")
        A(f"s_mov_b32 {s(S_M40 + 1)}, 0")
        A(f"v_and_b32 {v(V_T)}, 31, {v(V_LANE)}")
        A(f"v_min_u32 {v(V_T)}, {s(T + 1)}, {v(V_T)}")
        A(f"v_add_u32 {v(V_T)}, {s(T)}, {v(V_T)}")
        A(f"v_lshrrev_b32 {v(V_T + 1)}, 5, {v(V_LANE)}")
        A(f"v_lshl_add_u32 {v(V_T)}, {v(V_T)}, 1, {v(V_T + 1)}")
        A(f"v_bfe_u32 {v(V_T + 1)}, {v(V_T)}, 2, 3")
        A(f"v_mul_u32_u24 {v(V_RR0)}, 352, {v(V_T + 1)}")
        A(f"v_mul_u32_u24 {v(V_T + 5)}, 1280, {v(V_T + 1)}")
        A(f"v_lshrrev_b32 {v(V_T + 1)}, 5, {v(V_T)}")
        A(f"v_lshl_add_u32 {v(V_RR0)}, {v(V_T + 1)}, 6, {v(V_RR0)}")
        A(f"v_lshl_add_u32 {v(V_T + 5)}, {v(V_T + 1)}, 5, {v(V_T + 5)}")
        A(f"v_and_b32 {v(V_T + 1)}, 3, {v(V_T)}")
        A(f"v_lshl_add_u32 {v(V_T + 5)}, {v(V_T + 1)}, 3, {v(V_T + 5)}")
        A(f"v_and_b32 {v(V_T + 1)}, 1, {v(V_T)}")
        A(f"v_lshl_add_u32 {v(V_RR0)}, {v(V_T + 1)}, 5, {v(V_RR0)}")
        A(f"v_bfe_u32 {v(V_T + 1)}, {v(V_T)}, 1, 1")
        A(f"v_lshl_add_u32 {v(V_RR0)}, {v(V_T + 1)}, 4, {v(V_RR0)}")
        A(f"v_add_u32 {v(V_RR0)}, {L_RB}, {v(V_RR0)}")
        A(f"s_mul_i32 {s(T)}, {s(S_J)}, 1280")
        A(f"v_lshlrev_b32 {v(V_PS)}, 3, {v(V_T)}")
        A(f"v_add_u32 {v(V_PS)}, {s(T)}, {v(V_PS)}")
        A(f"v_lshrrev_b32 {v(V_T + 1)}, 13, {v(V_PS)}")
        A(f"v_lshl_add_u32 {v(V_PS)}, {v(V_T + 1)}, 13, {v(V_PS)}")
        A(f"v_xor_b32 {v(V_TM)}, 1, {v(V_T)}")
        if cfg.h16 != 2:
            A(f"v_or_b32 {v(V_TM)}, {v(V_TM)}, {v(V_T + 1)}")
        A(f"v_and_b32 {v(V_TM)}, 1, {v(V_TM)}")
    else:
        A(f"v_min_u32 {v(V_T)}, 39, {v(V_LANE)}")
        A(f"s_mul_i32 {s(T)}, {s(S_WAVE)}, 40")
        A(f"v_add_u32 {v(V_T)}, {s(T)}, {v(V_T)}")
        A(f"v_lshlrev_b32 {v(V_PS)}, 4, {v(V_T)}")
        A(f"v_bfe_u32 {v(V_T + 1)}, {v(V_T)}, 1, 3")
        A(f"v_mul_u32_u24 {v(V_RR0)}, 352, {v(V_T + 1)}")
        A(f"v_mul_u32_u24 {v(V_T + 5)}, 1280, {v(V_T + 1)}")
        A(f"v_lshrrev_b32 {v(V_T + 1)}, 4, {v(V_T)}")
        A(f"v_lshl_add_u32 {v(V_RR0)}, {v(V_T + 1)}, 5, {v(V_RR0)}")
        A(f"v_lshl_add_u32 {v(V_T + 5)}, {v(V_T + 1)}, 4, {v(V_T + 5)}")
        A(f"v_and_b32 {v(V_T + 1)}, 1, {v(V_T)}")
        A(f"v_lshl_add_u32 {v(V_RR0)}, {v(V_T + 1)}, 4, {v(V_RR0)}")
        A(f"v_lshl_add_u32 {v(V_T + 5)}, {v(V_T + 1)}, 3, {v(V_T + 5)}")
        A(f"v_add_u32 {v(V_RR0)}, {L_RB}, {v(V_RR0)}")
        A(f"s_mov_b32 {s(S_M40)}, -1")
        A(f"s_mov_b32 {s(S_M40 + 1)}, 0xff")
    make_srd(A, SRD_W, P_MEM0, 10240)
    A(f"s_mul_i32 {s(T)}, {s(S_J)}, 160")
    A(f"buffer_load_dwordx2 {v(V_O, 2)}, {v(V_T + 5)}, {s(SRD_W, 4)}, {s(T)} offen")
    A(f"s_mul_i32 {s(S_PLH)}, {s(S_J)}, {0 if cfg.h16 else 2560}")
    A(f"s_add_u32 {s(S_PLH)}, {s(S_PLH)}, {s(S_XB)}")
    A(f"s_lshl_b32 {s(S_PXH)}, {s(S_X)}, 19")
    A(f"s_lshr_b32 {s(T)}, {s(S_J)}, 1")
    if not cfg.h16:
        A(f"s_lshl_b32 {s(T + 1)}, {s(T)}, 14")
        A(f"s_add_u32 {s(S_PXH)}, {s(S_PXH)}, {s(T + 1)}")
    A(f"s_and_b32 {s(T + 1)}, {s(S_J)}, 1")
    A(f"s_mul_i32 {s(T + 2)}, {s(T + 1)}, {0 if cfg.h16 else 2560}")
    A(f"s_add_u32 {s(S_PXH)}, {s(S_PXH)}, {s(T + 2)}")
    A(f"s_add_u32 {s(S_PXH)}, {s(S_PXH)}, {XP}")
    A(f"s_lshl_b32 {s(S_DPH)}, {s(T)}, 7")
    A(f"s_lshl_b32 {s(T + 1)}, {s(T + 1)}, 2")
    A(f"s_add_u32 {s(T + 1)}, {s(T + 1)}, {s(S_WAVE)}")
    A(f"s_lshl_b32 {s(T + 1)}, {s(T + 1)}, 2")
    A(f"s_add_u32 {s(S_DPH)}, {s(S_DPH)}, {s(T + 1)}")
    A(f"s_add_u32 {s(S_DPH)}, {s(S_DPH)}, {s(S_XB)}")
    A(f"s_add_u32 {s(S_DPH)}, {s(S_DPH)}, {DP_OFF}")
    A(f"s_mul_i32 {s(S_OIH)}, {s(S_WAVE)}, 12288")
    A(f"s_add_u32 {s(S_OIH)}, {s(S_OIH)}, {s(S_XB)}")
    A(f"s_add_u32 {s(S_OIH)}, {s(S_OIH)}, {OI_OFF}")
    A(f"s_lshl_b32 {s(S_DOH)}, {s(S_WAVE)}, 7" if not cfg.pw else f"s_mov_b32 {s(S_DOH)}, 0")
    A(f"s_add_u32 {s(S_DOH)}, {s(S_DOH)}, {s(S_XB)}")
    A(f"s_add_u32 {s(S_DOH)}, {s(S_DOH)}, {DO_OFF}")
    A(f"s_cmp_eq_u32 {s(S_X)}, 0")
    A(f"s_cselect_b32 {s(T + 3)}, 0xffff0000, 0")
    A("s_waitcnt vmcnt(0)")
    QPX = "quad_perm:[1,1,3,3] row_mask:0xf bank_mask:0xf"
    if cfg.h16:
        A(f"s_cselect_b64 vcc, -1, 0")
        A(f"v_bfi_b32 {v(V_O + 4)}, {v(V_TM)}, 0, {v(V_O)}")
        A(f"v_lshlrev_b32 {v(V_O + 2)}, 16, {v(V_O)}")
        A(f"v_lshlrev_b32 {v(V_O + 3)}, 16, {v(V_O + 4)}")
        A(f"v_sub_f32 {v(V_O + 2)}, {v(V_O + 2)}, {v(V_O + 3)}")
        A(f"v_lshrrev_b32 {v(V_O + 2)}, 16, {v(V_O + 2)}")
        A(f"v_and_b32 {v(V_O + 2)}, -2, {v(V_O + 2)}")
        A(f"v_cndmask_b32 {v(V_O + 4)}, {v(V_O + 2)}, {v(V_O + 4)}, vcc")
        A(f"v_cndmask_b32 {v(V_O + 5)}, 0, {v(V_O + 1)}, vcc")
        A(f"v_permlane32_swap_b32 {v(V_O + 4)}, {v(V_O + 6)}")
        A(f"v_permlane32_swap_b32 {v(V_O + 5)}, {v(V_O + 7)}")
    else:
        A(f"v_lshlrev_b32 {v(V_O + 4)}, 16, {v(V_O)}")
        A(f"v_and_b32 {v(V_O + 4)}, {s(T + 3)}, {v(V_O + 4)}")
        A(f"v_and_b32 {v(V_O + 5)}, {s(T + 3)}, {v(V_O)}")
        A(f"v_lshlrev_b32 {v(V_O + 6)}, 16, {v(V_O + 1)}")
        A(f"v_and_b32 {v(V_O + 6)}, {s(T + 3)}, {v(V_O + 6)}")
        A(f"v_and_b32 {v(V_O + 7)}, {s(T + 3)}, {v(V_O + 1)}")
    for i in range(4):
        A(f"v_mov_b32 {v(V_O + 8 + i)}, -1")
    A(f"v_mov_b32 {v(V_O + 12)}, 1")
    A(f"s_mov_b64 exec, {s(S_M40, 2)}")
    lst = []
    for k in range(8):
        d = V_O + 4 if k % 4 == 0 else V_O + 8
        lst.append(f"s_add_u32 {s(T)}, {s(S_PLH)}, {PL_OFF + k * 20480}")
        lst.append(f"buffer_store_dwordx4 {v(d, 4)}, {v(V_PS)}, {WS}, {s(T)} offen")
        for hf in range(2 if cfg.near else 1):
            A(f"s_add_u32 {s(T)}, {s(S_PXH)}, {k * 65536 + hf * 8192}")
            A(f"buffer_store_dwordx4 {v(d, 4)}, {v(V_PS)}, {WS}, {s(T)} offen sc1")
    lst.append("s_mov_b64 exec, 1")
    lst.append(f"buffer_store_dword {v(V_O + 12)}, {v(V_L16)}, {WS}, {s(S_DPH)} offen")
    lst.append(f"buffer_store_dword {v(V_O + 12)}, {v(V_L16)}, {WS}, {s(S_DPH)} offen offset:512")
    lstore(A, lst)
    A("s_mov_b64 exec, -1")
    init_barrier_arrive(A, V_T)

    V_DA, V_TR, V_PARK = 20, 30, 32
    S_ORG, S_LW = S_KSRC, S_KLDS
    make_srd(A, SRD_W, P_WO, 6144 * 1280)
    A(f"s_lshl_b32 {s(T)}, {s(S_X)}, 2")
    A(f"s_add_u32 {s(T)}, {s(T)}, {s(S_WAVE)}")
    A(f"s_mul_i32 {s(S_ORG)}, {s(T)}, {768 * 1280}")
    A(f"s_mul_i32 {s(T)}, {s(S_J)}, 160")
    A(f"s_add_u32 {s(S_ORG)}, {s(S_ORG)}, {s(T)}")
    A(f"s_mul_i32 {s(S_LW)}, {s(S_WAVE)}, 40960")
    for i in range(10):
        A(f"v_add_u32 {v(V_T)}, {64 * i}, {v(V_LANE)}")
        A(f"v_mul_u32_u24 {v(V_T + 1)}, 6554, {v(V_T)}")
        A(f"v_lshrrev_b32 {v(V_T + 1)}, 16, {v(V_T + 1)}")
        A(f"v_mul_u32_u24 {v(V_T + 4)}, 10, {v(V_T + 1)}")
        A(f"v_sub_u32 {v(V_T)}, {v(V_T)}, {v(V_T + 4)}")
        A(f"v_mul_u32_u24 {v(V_DA + i)}, 1280, {v(V_T + 1)}")
        A(f"v_lshl_add_u32 {v(V_DA + i)}, {v(V_T)}, 4, {v(V_DA + i)}")
    A(f"v_lshrrev_b32 {v(g_)}, 4, {v(V_LANE)}")
    A(f"v_and_b32 {v(V_T)}, 1, {v(g_)}")
    A(f"v_lshlrev_b32 {v(V_T)}, 5, {v(V_T)}")
    A(f"v_lshrrev_b32 {v(V_T + 1)}, 1, {v(g_)}")
    A(f"v_lshl_add_u32 {v(V_T)}, {v(V_T + 1)}, 2, {v(V_T)}")
    A(f"v_bfe_u32 {v(V_T + 1)}, {v(V_LANE)}, 2, 1")
    A(f"v_add_u32 {v(V_T)}, {v(V_T)}, {v(V_T + 1)}")
    A(f"v_bfe_u32 {v(V_T + 1)}, {v(V_LANE)}, 3, 1")
    A(f"v_lshl_add_u32 {v(V_T)}, {v(V_T + 1)}, 4, {v(V_T)}")
    A(f"v_mul_u32_u24 {v(V_TR)}, 160, {v(V_T)}")
    A(f"v_and_b32 {v(V_T + 1)}, 3, {v(V_LANE)}")
    A(f"v_lshl_add_u32 {v(V_TR)}, {v(V_T + 1)}, 3, {v(V_TR)}")
    A(f"v_add_u32 {v(V_TR)}, {s(S_LW)}, {v(V_TR)}")

    def w_dma(f):
        A(f"s_add_u32 {s(T + 1)}, {s(S_ORG)}, {f * 64 * 1280}")
        for i in range(10):
            A(f"s_add_u32 m0, {s(S_LW)}, {(f % 4) * 10240 + i * 1024}")
            A(f"buffer_load_dwordx4 {v(V_DA + i)}, {s(SRD_W, 4)}, {s(T + 1)} offen lds")
    for f in range(4):
        w_dma(f)
    for f in range(12):
        A(f"s_waitcnt vmcnt({10 * min(3, 11 - f)})")
        n = 0
        for p in range(5):
            kind, r = wreg(f, p) if p < 4 else ("v", V_PARK + 8 * f)
            fn = a if kind == "a" else v
            for RH in range(2):
                for hh in range(2):
                    A(f"ds_read_b64_tr_b16 {fn(r + 4 * RH + 2 * hh, 2)}, {v(V_TR)} offset:{(f % 4) * 10240 + (8 * RH + 2 * hh) * 160 + 32 * p}")
                    n += 1
                    if n == 12:
                        A("s_waitcnt lgkmcnt(4)")
        A("s_waitcnt lgkmcnt(0)")
        if f + 4 < 12:
            w_dma(f + 4)
    A("s_barrier")
    for f in range(12):
        for hf in range(2):
            A(f"ds_write_b128 {v(V_BW)}, {v(V_PARK + 8 * f + 4 * hf, 4)} offset:{f * 2048 + hf * 1024}")
        if f % 4 == 3:
            A("s_waitcnt lgkmcnt(0)")
    A("s_barrier")
    init_barrier_wait(A, V_T, nwg, cfg)
    near_half(A, cfg, S_PXH)
    A(f"s_mov_b32 {s(S_N)}, 0")
    A(f"s_mov_b32 {s(S_DEF)}, 0")
    stamp = mk_stamp(A, cfg, V_STAMP)
    stamp.init()

    def w_loop(sx, LS):
        L = Lds(A)
        nxt = "CW_NEXT" + sx
        A.label("CW_LOOP" + sx)
        item_of(A, S_N, S_L, S_T, LAG, 0, T)
        A(f"s_cmp_eq_u32 {s(S_T)}, 63")
        A(f"s_cbranch_scc1 {nxt}")
        A(f"s_add_u32 {s(S_T1)}, {s(S_T)}, 1")
        A(f"s_lshl_b32 {s(T + 1)}, {s(S_L)}, 9")
        A(f"s_add_u32 {s(S_DOA)}, {s(T + 1)}, {s(S_DOH)}")
        A(f"s_add_u32 {s(S_DPA)}, {s(T + 1)}, {s(S_DPH)}")
        A(f"s_lshl_b32 {s(T + 1)}, {s(S_L)}, 2")
        A(f"s_and_b32 {s(T)}, {s(S_T)}, {cfg.cr - 1}")
        A(f"s_add_u32 {s(T)}, {s(T)}, {s(T + 1)}")
        A(f"s_mul_i32 {s(S_OIA)}, {s(T)}, 49152")
        A(f"s_add_u32 {s(S_OIA)}, {s(S_OIA)}, {s(S_OIH)}")
        A(f"s_add_u32 {s(S_VMA)}, {s(S_OIA)}, 4096")
        A(f"s_add_u32 {s(S_KCUR)}, {s(S_OIA)}, 8192")
        A(f"s_bfe_u32 {s(S_TAG)}, {s(S_T)}, {0x10000 + cfg.cr.bit_length() - 1}")
        A(f"s_bfe_u32 {s(S_NTAG)}, {s(S_T1)}, {0x10000 + cfg.cr.bit_length() - 1}")
        A(f"s_and_b32 {s(T)}, {s(S_T1)}, {cfg.cr - 1}")
        A(f"s_add_u32 {s(T)}, {s(T)}, {s(T + 1)}")
        A(f"s_mul_i32 {s(S_PLA)}, {s(T)}, 20480")
        A(f"s_add_u32 {s(S_PLA)}, {s(S_PLA)}, {s(S_PLH)}")
        A(f"s_lshl_b32 {s(S_PXA)}, {s(T)}, 16")
        A(f"s_add_u32 {s(S_PXA)}, {s(S_PXA)}, {s(S_PXH)}")
        A(f"s_xor_b32 {s(S_DEF)}, {s(S_DEF)}, {RBS}")
        A(f"v_add_u32 {v(V_RW)}, {s(S_DEF)}, {v(V_RW0)}")
        A(f"v_add_u32 {v(V_RR)}, {s(S_DEF)}, {v(V_RR0)}")
        A(f"s_add_u32 {s(T)}, {s(S_T)}, 2")
        A(f"v_mov_b32 {v(V_T + 4)}, {s(T)}")
        if cfg.w2:
            FO = [3 * (n % 4) + n // 4 for n in range(12)]
            BR = [V_B, V_B + 8, 20] + [V_B + 8 * ((n + 1) & 1) for n in range(3, 11)] + [116]

            def rdB(n):
                return [(("B", n), f"ds_read_b128 {v(BR[n] + 4 * hf, 4)}, {v(V_BW)} offset:{FO[n] * 2048 + hf * 1024}") for hf in range(2)]
            lab, redo = A.newlabel("np"), A.newlabel("rd")
            for it in rdB(0) + rdB(1):
                A(it[1])
            A(f"s_cmp_lg_u32 {s(S_WAVE)}, 0")
            A(f"s_cbranch_scc1 {lab}")
            doorbell(A, cfg, V_DB, S_DOA, V_T)
            A.label_nf(lab)
            A("s_barrier")
            stamp(0)
            A.label_nf(redo)

            def ld(n):
                f = FO[n]
                return f"buffer_load_dwordx4 {v(V_O + 4 * n, 4)}, {v(V_L16)}, {WS}, {s((S_OIA, S_VMA, S_KCUR)[f // 4])} offen offset:{(f % 4) * 1024} sc1"
            ring = ["s_mov_b64 exec, 1", f"buffer_store_dword {v(V_T + 4)}, {v(V_L16)}, {WS}, {s(S_DPA)} offen{LS}", "s_mov_b64 exec, -1"]
            NP = cfg.wnp
            sp = [(None, f"v_mov_b32 {v(V_ACC + i)}, 0") for i in range(20)]
            L.q = [it[0] for it in rdB(0) + rdB(1)]
            per = -(-len(sp) // (NP - 1))
            for n in range(NP):
                A(ld(n))
                for tg, x in sp[:per]:
                    L.op(tg, x) if tg else A(x)
                sp = sp[per:]
            stamp(7)
            issued = [NP]
            NC = cfg.wg1
            G = {n: [n] for n in range(NC)}
            upto = {}

            def vw(n, top=None):
                k_ = issued[0] if top is None else top
                assert k_ > n, (n, k_)
                A(f"s_waitcnt vmcnt({k_ - 1 - n})")

            def chk(f, top=None):
                def w():
                    vw(f, top)
                    A(f"v_and_b32 {v(V_T)}, 1, {v(V_O + 4 * f)}")
                return [(8, w), f"v_cmp_ne_u32 vcc, {s(S_TAG)}, {v(V_T)}"]

            def run(items):
                for x in items:
                    x[1]() if isinstance(x, tuple) else A(x)

            def ldt(f):
                def go_():
                    A(ld(f))
                    issued[0] = f + 1
                return (cfg.vmc, go_)
            slow = {f: A.newlabel("ws") for f in G}
            go = {f: A.newlabel("wg") for f in G}
            run(chk(0))
            sq = [(n, p) for n in range(9) for p in range(5)] + [(n, p) for p in range(5) for n in (9, 10, 11)]
            seq, tasks, pre, cks, rds = [], [], {}, {}, []
            for k, (n, p) in enumerate(sq):
                if p == 4:
                    wt = v(BR[n], 8)
                else:
                    wt = wtxt(FO[n], p)
                seq.append((f"{SM} {v(V_ACC + 4 * p, 4)}, {v(V_O + 4 * n, 4)}, {wt}, {v(V_IDX)}", [("B", n)] if p == 4 else []))
                if p == 0 and n in G:
                    def br(f=n):
                        if f in cks:
                            assert not cks[f].items
                        upto[f] = issued[0]
                        A.nf(f"s_cbranch_vccnz {slow[f]}")
                        A.label_nf(go[f])
                        if f == 0:
                            stamp(3)
                    pre[k] = br
                    if n:
                        cks[n] = Task(k - cfg.wlead - 2, chk(n), step=1)
                        tasks.append(cks[n])
                        tasks.append(Task(k - 1, [(12, lambda: None)]))
                elif p == 0 and n < 10:
                    def wv(n=n):
                        vw(n if n < 9 else 11)
                        if n in (6, 9):
                            stamp({6: 4, 9: 5}[n])
                    pre[k] = wv
                    tasks.append(Task(k - 1, [(4, lambda: None)]))
                if p == 4 and n < 9 and n != 2:
                    n2 = n + 3 if n < 2 else n + 2
                    rds.append(Task(max(k, 5 * n2 + 4 - cfg.wbl), rdB(n2)))
            rest = list(range(NC, 12))
            acc = []
            for j in range(0, len(rest), 2):
                x, y = rest[j], rest[min(j + 1, len(rest) - 1)]
                its = [f"v_bitop3_b32 {v(V_T + (2 if j else 1))}, {v(V_O + 4 * x)}, {v(V_O + 4 * y)}, {s(S_TAG)} bitop3:0x7e"]
                if j:
                    its.append(f"v_or_b32 {v(V_T + 1)}, {v(V_T + 1)}, {v(V_T + 2)}")
                acc.append(Task(min(5 * y, 45), its))
                if j:
                    acc[-1].after = acc[-2]
            fin = Task(45, [f"v_and_b32 {v(V_T + 1)}, 1, {v(V_T + 1)}", f"v_cmp_ne_u32 vcc, 0, {v(V_T + 1)}"], step=1)
            fin.after = acc[-1]
            kf = cfg.wkf

            def brf():
                assert not fin.items
                A.nf(f"s_cbranch_vccnz {redo}x")
            pre[kf] = brf
            tasks.append(Task(kf - 1, [(12, lambda: None)]))
            tasks.append(Task(0, [ldt(f) for f in range(NP, 12)], step=cfg.wst))
            tasks += rds + acc + [fin]

            def items(p):
                q = V_ACC + 4 * p
                return [f"v_add_f32 {v(q)}, {v(q)}, {v(q + 1)}", f"v_add_f32 {v(q + 2)}, {v(q + 2)}, {v(q + 3)}",
                        ("rw", f"ds_write2_b32 {v(V_RW)}, {v(q)}, {v(q + 2)} offset0:{16 * p} offset1:{16 * p + 88}")]
            if cfg.wfd < 10:
                tasks.append(Task(max(50 + cfg.wfd, kf), ["\n".join(ring)]))
            for p in range(5):
                tasks.append(Task(50 + 3 * p, items(p)))
            sched(A, L, seq, tasks, pre=pre)
        else:
            for i in range(20):
                A(f"v_mov_b32 {v(V_ACC + i)}, 0")

            def rdB(f):
                return [(("B", f), f"ds_read_b128 {v(V_B + 8 * (f & 1) + 4 * hf, 4)}, {v(V_BW)} offset:{f * 2048 + hf * 1024}") for hf in range(2)]
            for it in rdB(0) + rdB(1):
                L.op(*it)
            if cfg.pw:
                lab = A.newlabel("np")
                A(f"s_cmp_lg_u32 {s(S_WAVE)}, 0")
                A(f"s_cbranch_scc1 {lab}")
            doorbell(A, cfg, V_DB, S_DOA, V_T)
            if cfg.pw:
                A.label_nf(lab)
                A("s_barrier")
            stamp(0)

            def ld(f):
                return f"buffer_load_dwordx4 {v(V_O + 4 * f, 4)}, {v(V_L16)}, {WS}, {s((S_OIA, S_VMA, S_KCUR)[f // 4])} offen offset:{(f % 4) * 1024} sc1"
            ring = ["s_mov_b64 exec, 1", f"buffer_store_dword {v(V_T + 4)}, {v(V_L16)}, {WS}, {s(S_DPA)} offen{LS}", "s_mov_b64 exec, -1"]
            NP = cfg.wnp
            for f in range(NP):
                A(ld(f))
                if cfg.wsp and f < NP - 1:
                    A(f"s_nop {cfg.wsp - 1}")
            stamp(7)
            issued = [NP]
            G = {f: [f] for f in range(cfg.wg1)}
            G.update({f: [f, f + 1] for f in range(cfg.wg1, 12, 2)})

            upto = {}

            def chk(f, top=None):
                last = G[f][-1]

                def w():
                    n = issued[0] if top is None else top
                    assert n > last, (f, n)
                    A(f"s_waitcnt vmcnt({n - 1 - last})")
                    if len(G[f]) == 1:
                        A(f"v_and_b32 {v(V_T)}, 1, {v(V_O + 4 * f)}")
                    else:
                        A(f"v_bitop3_b32 {v(V_T)}, {v(V_O + 4 * f)}, {v(V_O + 4 * f + 4)}, {s(S_TAG)} bitop3:0x7e")
                if len(G[f]) == 1:
                    return [(8, w), f"v_cmp_ne_u32 vcc, {s(S_TAG)}, {v(V_T)}"]
                return [(8, w), f"v_and_b32 {v(V_T)}, 1, {v(V_T)}", f"v_cmp_ne_u32 vcc, 0, {v(V_T)}"]

            def run(items):
                for x in items:
                    x[1]() if isinstance(x, tuple) else A(x)

            def ldt(f):
                def go_():
                    A(ld(f))
                    issued[0] = f + 1
                return (cfg.vmc, go_)
            slow = {f: A.newlabel("ws") for f in G}
            go = {f: A.newlabel("wg") for f in G}
            run(chk(0))
            sq = [(f, p) for f in range(10) for p in range(5)] + [(f, p) for p in range(5) for f in (10, 11)]
            seq, tasks, pre, cks = [], [], {}, {}
            rds = []
            for k, (f, p) in enumerate(sq):
                seq.append((f"{SM} {v(V_ACC + 4 * p, 4)}, {v(V_O + 4 * f, 4)}, {wtxt(f, p)}, {v(V_IDX)}", [("B", f)] if p == 4 else []))
                if p == 0 and f in G:
                    def br(f=f):
                        if f in cks:
                            assert not cks[f].items
                        upto[f] = issued[0]
                        A.nf(f"s_cbranch_vccnz {slow[f]}")
                        A.label_nf(go[f])
                        if f in (0, 6, 10):
                            stamp({0: 3, 6: 4, 10: 5}[f])
                    pre[k] = br
                    if f:
                        cks[f] = Task(k - cfg.wlead - len(chk(f)), chk(f), step=1)
                        tasks.append(cks[f])
                        tasks.append(Task(k - 1, [(12, lambda: None)]))
                if p == 4 and f + 2 < 12:
                    rds.append(Task(k, rdB(f + 2)))
            tasks.append(Task(0, [ldt(f) for f in range(NP, 12)], step=cfg.wst))
            tasks += rds

            def items(p):
                q = V_ACC + 4 * p
                return [f"v_add_f32 {v(q)}, {v(q)}, {v(q + 1)}", f"v_add_f32 {v(q + 2)}, {v(q + 2)}, {v(q + 3)}",
                        ("rw", f"ds_write2_b32 {v(V_RW)}, {v(q)}, {v(q + 2)} offset0:{16 * p} offset1:{16 * p + 88}")]
            if cfg.wfd < 10:
                tasks.append(Task(50 + cfg.wfd, ["\n".join(ring)]))
            for p in range(5):
                tasks.append(Task(54 + 2 * p, items(p)))
            sched(A, L, seq, tasks, pre=pre)
        if cfg.wfd == 10:
            for x in ring:
                A(x)
        A("s_waitcnt lgkmcnt(0)")
        A("s_barrier")
        R = V_O
        for w in range(4):
            A(f"ds_read_b128 {v(R + 4 * w, 4)}, {v(V_RR)} offset:{w * 2816}")
        stamp(1)
        if cfg.wfd == 11:
            for x in ring[:2]:
                A(x)
        A(f"s_mov_b64 exec, {s(S_M40, 2) if not cfg.h16 else -1}")
        A("s_waitcnt lgkmcnt(2)")
        A(f"v_pk_add_f32 {v(R, 2)}, {v(R, 2)}, {v(R + 4, 2)}")
        A(f"v_pk_add_f32 {v(R + 2, 2)}, {v(R + 2, 2)}, {v(R + 6, 2)}")
        A("s_waitcnt lgkmcnt(0)")
        A(f"v_pk_add_f32 {v(R + 8, 2)}, {v(R + 8, 2)}, {v(R + 12, 2)}")
        A(f"v_pk_add_f32 {v(R + 10, 2)}, {v(R + 10, 2)}, {v(R + 14, 2)}")
        A(f"v_pk_add_f32 {v(R, 2)}, {v(R, 2)}, {v(R + 8, 2)}")
        A(f"v_pk_add_f32 {v(R + 2, 2)}, {v(R + 2, 2)}, {v(R + 10, 2)}")
        if cfg.h16:
            A(f"v_cvt_pk_bf16_f32 {v(R)}, {v(R)}, {v(R + 1)}")
            A(f"v_cvt_pk_bf16_f32 {v(R + 1)}, {v(R + 2)}, {v(R + 3)}")
            A(f"v_bfi_b32 {v(R)}, {v(V_TM)}, {s(S_NTAG)}, {v(R)}")
            A(f"v_permlane32_swap_b32 {v(R + 1)}, {v(R + 3)}")
            A(f"v_permlane32_swap_b32 {v(R)}, {v(R + 2)}")
            A(f"s_mov_b64 exec, {s(S_M40, 2)}")
        else:
            A(f"v_and_or_b32 {v(R)}, {v(R)}, -2, {s(S_NTAG)}")
        st2 = [f"buffer_store_dwordx4 {v(R, 4)}, {v(V_PS)}, {WS}, {s(S_PXA)} offen sc1", f"buffer_store_dwordx4 {v(R, 4)}, {v(V_PS)}, {WS}, {s(S_PLA)} offen{LS}"]
        if cfg.pso:
            st2.reverse()
        A(st2[0])
        if cfg.wfd == 13:
            for x in ring[:2]:
                A(x)
            A(f"s_mov_b64 exec, {s(S_M40, 2)}")
        if cfg.pso == 2:
            A("s_barrier")
        A(st2[1])
        stamp(2)
        if cfg.pull:
            A(f"s_xor_b32 {s(T)}, {s(S_PXA)}, {1 << 19}")
            A(f"s_sleep {cfg.pull0}")
            for _ in range(cfg.pull):
                A(f"buffer_load_dword {v(V_T + 5)}, {v(V_PS)}, {WS}, {s(T)} offen sc1")
                A(f"s_sleep {cfg.pull1}")
        A("s_mov_b64 exec, -1")
        if cfg.wfd == 12:
            for x in ring:
                A(x)
        stamp.flush()
        A.label(nxt)
        A(f"s_add_u32 {s(S_N)}, {s(S_N)}, 1")
        A(f"s_cmp_lt_u32 {s(S_N)}, 128")
        A(f"s_cbranch_scc1 CW_LOOP{sx}")
        A("s_branch CW_DONE")
        for f in G:
            A.label(slow[f])
            for f2 in range(f, upto[f]):
                A(ld(f2))
            spin_fail(A)
            if cfg.timing == 5:
                A(f"s_add_u32 s{92 + min(f, 4)}, s{92 + min(f, 4)}, 1")
            run(chk(f, upto[f]))
            A(f"s_cbranch_vccnz {slow[f]}")
            A(f"s_branch {go[f]}")
        if cfg.w2:
            A.label(redo + "x")
            spin_fail(A)
            if cfg.timing == 5:
                A("s_add_u32 s96, s96, 1")
            A("s_waitcnt lgkmcnt(0)")
            A("s_nop 7")
            for it in rdB(0) + rdB(1):
                A(it[1])
            A(f"s_branch {redo}")

    if cfg.w2:
        for n, r in ((2, 20), (11, 116)):
            f = 3 * (n % 4) + n // 4
            for hf in range(2):
                A(f"ds_read_b128 {v(r + 4 * hf, 4)}, {v(V_BW)} offset:{f * 2048 + hf * 1024}")
        A("s_waitcnt lgkmcnt(0)")
    if cfg.timing == 5:
        for k in range(5):
            A(f"s_mov_b32 {s(92 + k)}, 0")
    A(f"s_cmp_lg_u32 {s(S_MODE)}, 0")
    A("s_cbranch_scc1 CW_LOOP_S")
    w_loop("_F", "")
    w_loop("_S", " sc1")
    A.label("CW_DONE")
    if cfg.timing == 5:
        retry_dump(A, 48)
    timing_end(A, cfg, stamp, 48)
```

```python
import sys
from asmlib import Asm, v, a, s

NAME = "interleave_layers__memory_aug_recurrent_mem_tr__mixer_s_mlp__prompt"

WS_BYTES = 268435456
FLAGS = 0
CHB = 0x200000
CHB_XG = 0x200000
MEMR = CHB
MEM_SLOT = 20480
XCH_OFF = 4 * MEM_SLOT
XCH_HEAD = 18432
XCH_SLOT = 8 * XCH_HEAD
PART_OFF = XCH_OFF + 4 * XCH_SLOT
PART_SLOT = 8 * 40960
assert PART_OFF + 4 * PART_SLOT <= CHB_XG
XP = 0xA00000
XP_STEP = 4 * 40960
XG = 0x1700000
XG_HEAD = XCH_HEAD
XG_STEP = 32 * XG_HEAD
MAXSTEP = 84
assert XP + 80 * XP_STEP <= XG
QKV_SEG = 32 * 12288
QKV_SZ = 64 * QKV_SEG
KX = 0x4700000
assert XG + MAXSTEP * XG_STEP <= KX
VX = KX + QKV_SZ
QX = VX + QKV_SZ
OX = QX + QKV_SZ
WOP = OX + QKV_SZ
NKG = 6
WOP_SEG = NKG * 81920
XSEG = 40960
XSEGS = 46080
XIN = WOP + 64 * WOP_SEG
X1B = XIN + 128 * XSEGS
XM = X1B + 128 * XSEGS
YB = XM + 128 * XSEG
ZB = YB + 128 * XSEGS
X0R = ZB + 128 * XSEG
HB = X0R + 64 * XSEG
GB = HB + 2 * 66 * XSEG
GSEG = 98304
WS_END = GB + 128 * GSEG
assert WS_END + 4096 + 256 * 4 * 256 <= WS_BYTES, WS_END

RAWST = WS_END + 4096
F_XIN, F_Q, F_K, F_V, F_O, F_WOP, F_R1, F_H, F_X1, F_G = range(10)
FXG = 0xA8000
FXG_STEP = 32 * 64
assert FXG + MAXSTEP * FXG_STEP <= 0xE0000


C2 = CHB
C2_X = 0x200000
PL_OFF = 0
OI_OFF = 0x28000
VM_OFF = 0x88000
DP_OFF = 0xE8000
DO_OFF = 0xE8400
XG2_HEAD = 6144
XG2_STEP = 32 * XG2_HEAD
assert XG + 128 * XG2_STEP <= KX
FXG2_STEP = 32 * 32
FWOP2 = FXG + 128 * FXG2_STEP
assert FWOP2 + 128 * 640 <= 0xE0000


def flag_row(kind, layer=0, seg=0):
    return FLAGS + ((kind * 2 + layer) * 64 + seg) * 512


P_X, P_MEM0, P_WQ, P_WK, P_WV, P_WO, P_SEG, P_BX, P_W1, P_W2, P_W3, P_W4, P_OUT, P_DBG, P_WS = [16 + 2 * i for i in range(15)]
SRD_W = 4
SRD_WS = 8
SRD_DBG = 12
S_WAVE = 46
S_SPIN = 47
S_ROLE = 48
SPIN_BUDGET = 200000


class Cfg:
    def __init__(self, **kw):
        self.LAG = 9
        self.mode = "full"
        self.lstride = 0
        self.timing = 0
        self.force_fallback = 0
        self.xg_early = 1
        self.xsleep = 0
        self.msleep = 0
        self.prefetch = 1
        self.d0 = 0
        self.xpr = 4
        self.nodma = 0
        self.noxg = 0
        self.sl_m = 0
        self.sl_q = 0
        self.sl_r = 0
        self.qe = 10
        self.lateq2 = 0
        self.lsl = 1
        self.zf = 0
        self.xh2 = 0
        self.fe = 0
        self.xq = 0
        self.xw = 0
        self.xr = 0
        self.vote = 0
        self.allpipe = 0
        self.near = 0
        self.nprobe = 8
        self.xpl = 0
        self.dlt = 0
        self.dly_w = 0
        self.coop = 0
        self.jcw = 0
        self.gpk = 0
        self.r1h = 0
        self.xrs = 0
        self.q3 = 0
        self.wgq = 0
        self.wgp2 = 0
        self.asl = -1
        self.wgp = 0
        self.nrs = 0
        self.fsl = -1
        self.own = 0
        self.l15 = 0
        self.r1e = 0
        self.xat = 0
        self.jc = 0
        self.q2 = 0
        self.q2tail = 8
        self.q2ack = 12
        self.attl = 0
        self.dyn = 0
        self.rot = 0
        self.m1 = 0
        self.xga = 0
        self.ks = 0
        self.late_q = 0
        self.lead1 = 0
        self.dbgmem = 0
        self.s32 = 1
        self.place = 0
        self.rawt0 = 30
        self.late_w = 0
        self.ntop = 4
        self.natt = 4
        self.pp_r = 0
        self.gap_r = 0
        self.pp_x = 0
        self.gap_x = 0
        self.QA = 12
        self.att_sleep = 2
        self.c2 = 0
        self.a2 = 0
        self.g3 = 0
        self.qds = 3
        self.qf1 = 30
        self.qsm = 55
        self.qx = 0
        self.qld = 3
        self.qts = 0
        self.lw = 0
        self.qs0 = 0
        self.qss = 0
        self.qd0 = 1
        self.qf2 = 58
        self.qkw = 8
        self.bloc = 0
        self.oloc = 0
        self.touch = 0
        self.ring = 0
        self.bea = 1
        self.w1d = 3
        self.grn = 1
        self.ctouch = 1
        self.ant = 0
        self.aw = 0
        self.a3 = 0
        self.asm = 0
        self.kah = 14
        self.kac = 6
        self.lin = 0
        self.xmt = 1
        self.kkc = 12
        self.kck = 17
        self.ksl = 12
        self.kw0 = 4
        self.kkf = 26
        self.ksp = 8
        self.kxm = 28
        self.ks2 = 38
        self.bf1 = 12
        self.bf1x = 22
        self.bsmx = 10
        self.bsm = 30
        self.bps = 2
        self.r2 = 0
        self.dbo = 20
        self.vmj = 16
        self.vmc = 8
        self.verbose = 0
        self.pso = 2
        self.pb = 1
        self.pw = 1
        self.wg1 = 6
        self.dsh = 1
        self.cr = 4
        self.s3 = 0
        self.pf = 1
        self.b2a = 10
        self.nlate = 8
        self.alead = 8
        self.k0 = 30
        self.hb = 12
        self.tsx = 0
        self.pf0 = 0
        self.pfs = 0
        self.ep = 0
        self.h16 = 0
        self.w3 = 0
        self.nb = 0
        self.ef = 0
        self.vr = 0
        self.w2 = 0
        self.dfe = 0
        self.lnb = 6
        self.lth = 0
        self.wbl = 9
        self.wkf = 52
        self.pull = 0
        self.pull0 = 4
        self.pull1 = 1
        self.dl1 = 0
        self.wf1 = 24
        self.deg = 0
        self.arn = 0
        self.wsm = 36
        self.dl4 = 0
        self.dl2 = 0
        self.dl3 = 0
        self.qe0 = 0
        self.t3 = 0
        self.dv = 2
        self.dmav = 5
        self.rdp = 0
        self.rx = 0
        self.kst = 0
        self.b2b = 68
        self.krd = 74
        self.ksd = 50
        self.dfl = 2
        self.kvhit = 0
        self.dma1 = 5
        self.wnp = 5
        self.wsp = 8
        self.wst = 4
        self.wlead = 2
        self.rw = 4
        self.ngem = 24
        self.edb = 0
        self.sw = 67
        self.dma0 = 38
        self.dmas = 5
        self.bar1 = 4
        self.wfd = 10
        self.dsl = 0
        self.dpp2 = 0
        self.spin = SPIN_BUDGET
        self.off = 0
        self.__dict__.update(kw)


def make_srd(A, d, ptr, nbytes):
    A(f"s_mov_b32 {s(d)}, {s(ptr)}")
    A(f"s_mov_b32 {s(d + 1)}, {s(ptr + 1)}")
    A(f"s_mov_b32 {s(d + 2)}, {nbytes}")
    A(f"s_mov_b32 {s(d + 3)}, 0x20000")


def poll_tail(A, top, ok_on="vccz", sleep=0):
    ok = A.newlabel("ok")
    A(f"s_cbranch_vccz {ok}")
    if sleep:
        A(f"s_sleep {sleep}")
    A(f"s_sub_u32 {s(S_SPIN)}, {s(S_SPIN)}, 1")
    A("s_cbranch_scc1 ABORT")
    A(f"s_branch {top}")
    A.label(ok)


class WLoader:
    def __init__(self, A, vtmp, stmp):
        self.A = A
        self.units = []
        self.vt = vtmp
        self.st = stmp
        self.shapes = {}
        self.grp = {}

    def add(self, srd_setup, s_org, row_stride, T, nk, dst, m32=None, grp=None):
        self.units.append((srd_setup, s_org, row_stride, T, nk, dst))
        self.shapes[len(self.units) - 1] = m32
        self.grp[len(self.units) - 1] = grp if grp is not None else len(self.units) - 1

    def emit(self, v_lane):
        A = self.A
        vt, st = self.vt, self.st
        A(f"s_mul_i32 {s(st)}, {s(S_WAVE)}, 40960")
        flat = []
        for ui, u in enumerate(self.units):
            for j in range(u[4]):
                flat.append((ui, j))
        chunks, cur, sz = [], [], 0
        for (ui, j) in flat:
            T = self.units[ui][3]
            if sz + T > 20 or (cur and self.grp[cur[-1][0]] != self.grp[ui]):
                chunks.append(cur)
                cur, sz = [], 0
            cur.append((ui, j))
            sz += T
        if cur:
            chunks.append(cur)
        last_dma_unit = [None]

        def dma(ci):
            ch = chunks[ci]
            half = ci & 1
            ui = ch[0][0]
            srd_setup, s_org, stride, T, nk, dst = self.units[ui]
            if last_dma_unit[0] != self.grp[ui]:
                srd_setup()
                lpr = 2 * T
                sh = {2: 1, 4: 2, 8: 3}[lpr]
                A(f"v_lshrrev_b32 {v(vt + 3)}, {sh}, {v(v_lane)}")
                A(f"s_mov_b32 {s(st + 1)}, {stride}")
                A(f"v_mul_lo_u32 {v(vt + 3)}, {v(vt + 3)}, {s(st + 1)}")
                A(f"v_and_b32 {v(vt + 4)}, {lpr - 1}, {v(v_lane)}")
                A(f"v_lshl_add_u32 {v(vt)}, {v(vt + 4)}, 4, {v(vt + 3)}")
                last_dma_unit[0] = self.grp[ui]
            off = half * 20480
            n = 0
            for (uj, j) in ch:
                s_org = self.units[uj][1]
                for i in range(T):
                    row = 32 * j + i * (32 // T)
                    A(f"s_add_u32 m0, {s(st)}, {off}")
                    A(f"s_add_u32 {s(st + 2)}, {s(s_org)}, {row * stride}")
                    A(f"buffer_load_dwordx4 {v(vt)}, {s(SRD_W, 4)}, {s(st + 2)} offen lds")
                    off += 1024
                    n += 1
            return n

        def trread(ci):
            ch = chunks[ci]
            half = ci & 1
            ui = ch[0][0]
            _, _, stride, T, nk, dst = self.units[ui]
            m32 = self.shapes[ui]
            if m32:
                A(f"v_bfe_u32 {v(vt + 3)}, {v(v_lane)}, 2, 2")
                A(f"v_lshrrev_b32 {v(vt + 4)}, 5, {v(v_lane)}")
                A(f"v_lshl_add_u32 {v(vt + 3)}, {v(vt + 4)}, 2, {v(vt + 3)}")
                A(f"v_mul_u32_u24 {v(vt + 3)}, {T * 32}, {v(vt + 3)}")
                A(f"v_and_b32 {v(vt + 4)}, 1, {v(v_lane)}")
                A(f"v_lshl_add_u32 {v(vt + 3)}, {v(vt + 4)}, 3, {v(vt + 3)}")
                A(f"v_bfe_u32 {v(vt + 4)}, {v(v_lane)}, 1, 1")
                A(f"v_lshl_add_u32 {v(vt + 3)}, {v(vt + 4)}, {5 if m32 == 'perm' else 4}, {v(vt + 3)}")
                A(f"v_bfe_u32 {v(vt + 4)}, {v(v_lane)}, 4, 1")
                A(f"v_lshl_add_u32 {v(vt + 3)}, {v(vt + 4)}, {4 if m32 == 'perm' else 5}, {v(vt + 3)}")
                A(f"v_add_u32 {v(vt + 1)}, {s(st)}, {v(vt + 3)}")
                off = half * 20480
                cnt = 0
                for (_, j) in ch:
                    for tl in range(T // 2):
                        for u in range(2):
                            kind, r = dst(tl, j, u)
                            f = a if kind == "a" else v
                            for hf in range(2):
                                A(f"ds_read_b64_tr_b16 {f(r + 2 * hf, 2)}, {v(vt + 1)} offset:{off + (hf * 16 + u * 8) * T * 32 + tl * 64}")
                                cnt += 1
                                if cnt % 12 == 0:
                                    A("s_waitcnt lgkmcnt(4)")
                    off += T * 1024
                A("s_waitcnt lgkmcnt(0)")
                return
            A(f"v_lshrrev_b32 {v(vt + 3)}, 2, {v(v_lane)}")
            A(f"v_mul_u32_u24 {v(vt + 3)}, {T * 32}, {v(vt + 3)}")
            A(f"v_and_b32 {v(vt + 4)}, 3, {v(v_lane)}")
            A(f"v_lshl_add_u32 {v(vt + 3)}, {v(vt + 4)}, 3, {v(vt + 3)}")
            A(f"v_add_u32 {v(vt + 1)}, {s(st)}, {v(vt + 3)}")
            off = half * 20480
            cnt = 0
            for (uj, j) in ch:
                dst = self.units[uj][5]
                for tau in range(T):
                    d = dst(tau, j)
                    if d is None:
                        continue
                    kind, r = d
                    f = a if kind == "a" else v
                    for hf in range(2):
                        A(f"ds_read_b64_tr_b16 {f(r + 2 * hf, 2)}, {v(vt + 1)} offset:{off + hf * 16 * T * 32 + tau * 32}")
                        cnt += 1
                        if cnt % 12 == 0:
                            A("s_waitcnt lgkmcnt(4)")
                off += T * 1024
            A("s_waitcnt lgkmcnt(0)")

        counts = {}
        counts[0] = dma(0)
        if len(chunks) > 1:
            counts[1] = dma(1)
        for ci in range(len(chunks)):
            nxt = counts.get(ci + 1, 0)
            A(f"s_waitcnt vmcnt({nxt})")
            trread(ci)
            if ci + 2 < len(chunks):
                counts[ci + 2] = dma(ci + 2)


S_MODE = 49
S_ROLEG = 3
S_GID = 100
N_CHAIN = 96
CFG = [None]


def init_barrier_arrive(A, vt):
    tmark(A, CFG[0], 0, vt)
    A("s_waitcnt vmcnt(0)")
    A("s_barrier")
    lab = A.newlabel("arr")
    A(f"s_cmp_lg_u32 {s(S_WAVE)}, 0")
    A(f"s_cbranch_scc1 {lab}")
    A(f"v_mov_b32 {v(vt)}, 1")
    A(f"s_lshl_b32 {s(S_ROLEG)}, {s(S_MODE)}, 2")
    A(f"v_mov_b32 {v(vt + 1)}, {s(S_ROLEG)}")
    A("s_mov_b64 exec, 1")
    A(f"buffer_atomic_add {v(vt)}, {v(vt + 1)}, {s(SRD_DBG, 4)}, 0 offen sc1")
    A("s_mov_b64 exec, -1")
    A.label(lab)


def init_barrier_wait(A, vt, nwg, cfg):
    tmark(A, cfg, 1, vt)
    top = A.newlabel("ibw")
    A(f"s_lshl_b32 {s(S_ROLEG)}, {s(S_MODE)}, 2")
    A(f"v_mov_b32 {v(vt + 1)}, {s(S_ROLEG)}")
    A.label(top)
    A(f"buffer_load_dword {v(vt)}, {v(vt + 1)}, {s(SRD_DBG, 4)}, 0 offen sc1")
    A("s_waitcnt vmcnt(0)")
    A(f"v_cmp_ne_u32 vcc, {nwg}, {v(vt)}")
    poll_tail(A, top, sleep=8)
    ok = A.newlabel("ibok")
    A(f"s_cmp_lg_u32 {s(S_MODE)}, 0")
    A(f"s_cbranch_scc1 {ok}")
    A(f"v_and_b32 {v(vt + 1)}, 7, v0")
    A(f"v_lshlrev_b32 {v(vt + 1)}, 2, {v(vt + 1)}")
    A(f"buffer_load_dword {v(vt)}, {v(vt + 1)}, {s(SRD_DBG, 4)}, 0 offen offset:32 sc1")
    A("s_waitcnt vmcnt(0)")
    A(f"v_cmp_ne_u32 vcc, {1000 if cfg.force_fallback else 32}, {v(vt)}")
    A(f"s_cbranch_vccz {ok}")
    A("s_barrier")
    A(f"s_mov_b32 {s(S_MODE)}, 1")
    A(f"s_mov_b32 {s(S_ROLEG)}, s2")
    A(f"s_load_dwordx16 {s(16, 16)}, s[0:1], 0")
    A(f"s_load_dwordx8 {s(32, 8)}, s[0:1], 64")
    A("s_waitcnt lgkmcnt(0)")
    A("s_branch DISPATCH")
    A.label(ok)
    tmark(A, cfg, 2, vt)


def lstore(A, text):
    l1, l2 = A.newlabel("ls"), A.newlabel("ls")
    if isinstance(text, str):
        text = [text]
    A(f"s_cmp_lg_u32 {s(S_MODE)}, 0")
    A(f"s_cbranch_scc1 {l1}")
    for x in text:
        A(x)
    A(f"s_branch {l2}")
    A.label(l1)
    for x in text:
        A(x + " sc1" if x.startswith("buffer_store") else x)
    A.label(l2)


def maxtree(A, dst, regs):
    regs = list(regs)
    if len(regs) < 6:
        A(f"v_max3_u32 {v(dst)}, {v(regs[0])}, {v(regs[1])}, {v(regs[2])}")
        rest = regs[3:]
        while len(rest) >= 2:
            A(f"v_max3_u32 {v(dst)}, {v(dst)}, {v(rest[0])}, {v(rest[1])}")
            rest = rest[2:]
        if rest:
            A(f"v_max_u32 {v(dst)}, {v(dst)}, {v(rest[0])}")
        return
    A(f"v_max3_u32 {v(dst)}, {v(regs[0])}, {v(regs[1])}, {v(regs[2])}")
    A(f"v_max3_u32 {v(dst + 1)}, {v(regs[3])}, {v(regs[4])}, {v(regs[5])}")
    rest = regs[6:]
    k = 0
    while len(rest) >= 2:
        A(f"v_max3_u32 {v(dst + k)}, {v(dst + k)}, {v(rest[0])}, {v(rest[1])}")
        rest = rest[2:]
        k ^= 1
    if rest:
        A(f"v_max3_u32 {v(dst)}, {v(dst)}, {v(dst + 1)}, {v(rest[0])}")
    else:
        A(f"v_max_u32 {v(dst)}, {v(dst)}, {v(dst + 1)}")


def xreduce(A, op, r, t):
    A(f"v_mov_b32 {v(t)}, {v(r)}")
    A(f"v_permlane32_swap_b32 {v(r)}, {v(t)}")
    A(f"{op} {v(r)}, {v(r)}, {v(t)}")
    A(f"v_mov_b32 {v(t)}, {v(r)}")
    A(f"v_permlane16_swap_b32 {v(r)}, {v(t)}")
    A(f"{op} {v(r)}, {v(r)}, {v(t)}")


class RawStamper:
    def __init__(self, A, cfg, base, s_t, vreg, t0=20):
        self.A, self.b, self.s_t, self.vr, self.t0 = A, base, s_t, vreg, t0

    def cal(self, lane):
        A, b = self.A, self.b
        A(f"s_memrealtime {s(b + 2, 2)}")
        A(f"s_memtime {s(b, 2)}")
        A("s_waitcnt lgkmcnt(0)")
        A(f"s_lshl_b64 exec, 1, {lane}")
        A(f"v_mov_b32 {v(self.vr)}, {s(b)}")
        A(f"s_lshl_b64 exec, 1, {lane + 1}")
        A(f"v_mov_b32 {v(self.vr)}, {s(b + 2)}")
        A("s_mov_b64 exec, -1")

    def init(self):
        self.A(f"v_mov_b32 {v(self.vr)}, 0")
        self.cal(56)

    def __call__(self, k):
        A, b = self.A, self.b
        A(f"s_memtime {s(b, 2)}")
        A(f"s_sub_u32 {s(b + 2)}, {s(self.s_t)}, {self.t0}")
        A(f"s_lshl_b32 {s(b + 3)}, {s(b + 2)}, 3")
        A(f"s_add_u32 {s(b + 3)}, {s(b + 3)}, {k}")
        A(f"s_cmp_lt_u32 {s(b + 2)}, 7")
        A(f"s_cselect_b32 {s(b + 3)}, {s(b + 3)}, 63")
        A(f"s_lshl_b64 exec, 1, {s(b + 3)}")
        A("s_waitcnt lgkmcnt(0)")
        A(f"v_mov_b32 {v(self.vr)}, {s(b)}")
        A("s_mov_b64 exec, -1")

    def dump(self, s_idx, stmp, vt):
        A = self.A
        self.cal(58)
        A(f"s_lshl_b32 {s(stmp)}, {s(s_idx)}, 2")
        A(f"s_add_u32 {s(stmp)}, {s(stmp)}, {s(S_WAVE)}")
        A(f"s_lshl_b32 {s(stmp)}, {s(stmp)}, 8")
        A(f"s_add_u32 {s(stmp)}, {s(stmp)}, {RAWST}")
        A(f"v_lshlrev_b32 {v(vt)}, 2, v0")
        A(f"buffer_store_dword {v(self.vr)}, {v(vt)}, {s(SRD_WS, 4)}, {s(stmp)} offen")


class Stamper:
    def __init__(self, A, cfg, base, n, on=None):
        self.A, self.on, self.b, self.n = A, (cfg.timing == 2 if on is None else on), base, n

    def init(self):
        if self.on:
            self.A(f"s_memrealtime {s(self.b, 2)}")
            self.A("s_waitcnt lgkmcnt(0)")
            self.A(f"s_mov_b32 s101, {s(self.b)}")
            self(0)
            for k in range(self.n):
                self.A(f"s_mov_b32 {s(self.b + 3 + k)}, 0")

    def __call__(self, k):
        if not self.on:
            return
        A, b = self.A, self.b
        A(f"s_memtime {s(b, 2)}")
        A("s_waitcnt lgkmcnt(0)")
        A(f"s_sub_u32 {s(b + 1)}, {s(b)}, {s(b + 2)}")
        A(f"s_add_u32 {s(b + 3 + k)}, {s(b + 3 + k)}, {s(b + 1)}")
        A(f"s_mov_b32 {s(b + 2)}, {s(b)}")

    def dump(self, s_idx, stmp, vt):
        if not self.on:
            return
        A = self.A
        A(f"s_lshl_b32 {s(stmp)}, {s(s_idx)}, 2")
        A(f"s_add_u32 {s(stmp)}, {s(stmp)}, {s(S_WAVE)}")
        A(f"s_lshl_b32 {s(stmp)}, {s(stmp)}, 6")
        A(f"s_add_u32 {s(stmp)}, {s(stmp)}, 0xE0000")
        A(f"v_mov_b32 {v(vt + 2)}, 0")
        A("s_mov_b64 exec, 1")
        for k in range(self.n):
            A(f"v_mov_b32 {v(vt)}, {s(self.b + 3 + k)}")
            A(f"buffer_store_dword {v(vt)}, {v(vt + 2)}, {s(SRD_WS, 4)}, {s(stmp)} offen offset:{4 * k}")
        A(f"v_mov_b32 {v(vt)}, {s(S_SPIN)}")
        A(f"buffer_store_dword {v(vt)}, {v(vt + 2)}, {s(SRD_WS, 4)}, {s(stmp)} offen offset:60")
        A(f"s_memrealtime {s(self.b, 2)}")
        A("s_waitcnt lgkmcnt(0)")
        A(f"s_sub_u32 {s(self.b)}, {s(self.b)}, s101")
        A(f"v_mov_b32 {v(vt)}, {s(self.b)}")
        A(f"buffer_store_dword {v(vt)}, {v(vt + 2)}, {s(SRD_WS, 4)}, {s(stmp)} offen offset:56")
        A("s_mov_b64 exec, -1")


def tmark(A, cfg, k, vt):
    if cfg.timing != 4:
        return
    A("s_memrealtime s[98:99]")
    A(f"s_lshl_b32 s97, {s(S_GID)}, 2")
    A(f"s_add_u32 s97, s97, {s(S_WAVE)}")
    A("s_lshl_b32 s97, s97, 6")
    A(f"s_add_u32 s97, s97, {0x100000 + 4 * k}")
    A("s_waitcnt lgkmcnt(0)")
    A(f"v_mov_b32 {v(vt)}, s98")
    A(f"v_mov_b32 {v(vt + 1)}, 0")
    A("s_mov_b64 exec, 1")
    A(f"buffer_store_dword {v(vt)}, {v(vt + 1)}, {s(SRD_WS, 4)}, s97 offen")
    A("s_mov_b64 exec, -1")
```

```python
from common import *
import struct
import math


def f32(x):
    return "0x%08x" % struct.unpack("<I", struct.pack("<f", x))[0]


WS = s(SRD_WS, 4)
PRE_FLAG = [None]
TSFLAG = [0]
V_LANE, V_L16, V_FO, V_FV, V_LB, V_ONE = 0, 1, 2, 3, 4, 5
V_T = 6
V_P16 = 15
S_I, S_L, S_S, S_NL, S_NS, S_DEF, S_IDX, S_BUF = range(50, 58)
S_C0 = 58
T = 60
S_K = 68
S_FADDR = 82
DUMMY = -1


def item_of(A, i_reg, rl, rs, A0, first, t):
    B = 64 - A0
    A(f"s_sub_u32 {s(t)}, {s(i_reg)}, {A0}")
    A(f"s_lshr_b32 {s(rs)}, {s(t)}, 1")
    A(f"s_and_b32 {s(rl)}, {s(t)}, 1")
    if first:
        A(f"s_xor_b32 {s(rl)}, {s(rl)}, 1")
    A(f"s_cmp_eq_u32 {s(rl)}, 0")
    A(f"s_cselect_b32 {s(t + 1)}, {A0}, 0")
    A(f"s_add_u32 {s(rs)}, {s(rs)}, {s(t + 1)}")
    A(f"s_sub_u32 {s(t + 1)}, {s(t)}, {B}")
    A(f"s_cmp_ge_u32 {s(t)}, {2 * B}")
    A(f"s_cselect_b32 {s(rs)}, {s(t + 1)}, {s(rs)}")
    A(f"s_cselect_b32 {s(rl)}, 1, {s(rl)}")
    A(f"s_cmp_lt_u32 {s(i_reg)}, {A0}")
    A(f"s_cselect_b32 {s(rs)}, {s(i_reg)}, {s(rs)}")
    A(f"s_cselect_b32 {s(rl)}, 0, {s(rl)}")


def p16_setup(A, dst):
    A(f"v_bfe_u32 {v(V_T)}, {v(V_LANE)}, 2, 2")
    A(f"v_lshrrev_b32 {v(V_T + 1)}, 4, {v(V_LANE)}")
    A(f"v_add_u32 {v(V_T + 1)}, {v(V_T)}, {v(V_T + 1)}")
    A(f"v_and_b32 {v(V_T + 1)}, 3, {v(V_T + 1)}")
    A(f"v_and_b32 {v(dst)}, 3, {v(V_LANE)}")
    A(f"v_lshlrev_b32 {v(dst)}, 4, {v(dst)}")
    A(f"v_lshl_add_u32 {v(dst)}, {v(V_T + 1)}, 6, {v(dst)}")
    A(f"v_lshl_add_u32 {v(dst)}, {v(V_T)}, 8, {v(dst)}")


def base_setup(A):
    A(f"v_lshlrev_b32 {v(V_L16)}, 4, {v(V_LANE)}")
    A(f"v_mov_b32 {v(V_ONE)}, 1")
    A(f"s_lshl_b32 {s(S_IDX)}, {s(S_ROLE)}, 2")
    A(f"s_add_u32 {s(S_IDX)}, {s(S_IDX)}, {s(S_WAVE)}")
    p16_setup(A, V_P16)


def zero_flags(A, kind_off_reg_or_const, idx_reg, layers=(0, 1)):
    return


def row_of(A, dst, rl, rs, base):
    A(f"s_lshl_b32 {s(dst)}, {s(rl)}, 6")
    A(f"s_add_u32 {s(dst)}, {s(dst)}, {s(rs)}")
    A(f"s_lshl_b32 {s(dst)}, {s(dst)}, 9")
    A(f"s_add_u32 {s(dst)}, {s(dst)}, {base}")


def flag_addr(A, dst, base, idx_reg=S_IDX, rl=S_L, rs=S_S):
    row_of(A, dst, rl, rs, base)
    A(f"s_lshl_b32 {s(T + 1)}, {s(idx_reg)}, 2")
    A(f"s_add_u32 {s(dst)}, {s(dst)}, {s(T + 1)}")


def set_flag(A, base, idx_reg=S_IDX, rl=S_L, rs=S_S):
    if PRE_FLAG[0]:
        flag_addr(A, S_FADDR, base, idx_reg, rl, rs)
        return
    flag_addr(A, T, base, idx_reg, rl, rs)
    A("s_waitcnt vmcnt(0)")
    flag_store(A, T)


def flag_store(A, T, LS=" sc1"):
    if TSFLAG[0]:
        A(f"s_memrealtime {s(98, 2)}")
        A("s_waitcnt lgkmcnt(0)")
        A(f"s_or_b32 s98, s98, 1")
        A(f"v_mov_b32 {v(V_ONE)}, s98")
    A("s_mov_b64 exec, 1")
    A(f"buffer_store_dword {v(V_ONE)}, {v(V_L16)}, {WS}, {s(T)} offen{LS}")
    A("s_mov_b64 exec, -1")


def flag_block(A, soff_reg, vo=V_FO, vv=V_FV, wide=False, sleep=2):
    if CFG[0].fsl >= 0:
        sleep = CFG[0].fsl
    top = A.newlabel("fb")
    A.label(top)
    if wide:
        A(f"buffer_load_dwordx2 {v(vv, 2)}, {v(vo)}, {WS}, {s(soff_reg)} offen sc1")
        A("s_waitcnt vmcnt(0)")
        A(f"v_min_u32 {v(vv)}, {v(vv)}, {v(vv + 1)}")
    else:
        A(f"buffer_load_dword {v(vv)}, {v(vo)}, {WS}, {s(soff_reg)} offen sc1")
        A("s_waitcnt vmcnt(0)")
    A(f"v_cmp_eq_u32 vcc, 0, {v(vv)}")
    poll_tail(A, top, sleep=sleep)


def flag_block_wg(A, soff_reg, **kw):
    if not CFG[0].wgp:
        flag_block(A, soff_reg, **kw)
        return
    lab = A.newlabel("wp")
    A(f"s_cmp_lg_u32 {s(S_WAVE)}, 0")
    A(f"s_cbranch_scc1 {lab}")
    sv = CFG[0].fsl
    CFG[0].fsl = CFG[0].wgp - 1
    flag_block(A, soff_reg, **kw)
    CFG[0].fsl = sv
    A.label(lab)
    A("s_barrier")


S_SPIN2 = 59


def rdy_init(A, cfg, va, addr):
    A(f"s_mov_b32 {s(S_SPIN2)}, {cfg.spin * 8}")
    A(f"v_mov_b32 {v(va)}, {addr}")
    A(f"v_mov_b32 {v(va + 1)}, 0")
    A(f"ds_write_b32 {v(va)}, {v(va + 1)}")
    A("s_waitcnt lgkmcnt(0)")
    A("s_barrier")


def rdy_set(A, va, plus, tmp):
    A(f"s_add_u32 {s(tmp)}, {s(S_I)}, {plus}")
    A(f"v_mov_b32 {v(va + 1)}, {s(tmp)}")
    A(f"ds_write_b32 {v(va)}, {v(va + 1)}")


def wg_wait(A, cfg, va, soff, tmp, **kw):
    oth, done = A.newlabel("wo"), A.newlabel("wd")
    A(f"s_cmp_lg_u32 {s(S_WAVE)}, 0")
    A(f"s_cbranch_scc1 {oth}")
    sv = cfg.fsl
    cfg.fsl = cfg.wgp - 1
    flag_block(A, soff, **kw)
    cfg.fsl = sv
    rdy_set(A, va, 0, tmp)
    A(f"s_branch {done}")
    A.label(oth)
    A(f"ds_read_b32 {v(va + 1)}, {v(va)}")
    A("s_waitcnt lgkmcnt(0)")
    A(f"v_cmp_gt_u32 vcc, {s(S_I)}, {v(va + 1)}")
    A(f"s_cbranch_vccz {done}")
    A(f"s_sleep {CFG[0].lsl}")
    A(f"s_sub_u32 {s(S_SPIN2)}, {s(S_SPIN2)}, 1")
    A("s_cbranch_scc1 ABORT")
    A(f"s_branch {oth}")
    A.label(done)


def rnd2(A, pk, x0, x1):
    A(f"v_cvt_pk_bf16_f32 {v(pk)}, {v(x0)}, {v(x1)}")
    A(f"v_lshlrev_b32 {v(x0)}, 16, {v(pk)}")
    A(f"v_and_b32 {v(x1)}, 0xffff0000, {v(pk)}")


def rnd1(A, x, tmp):
    A(f"v_cvt_pk_bf16_f32 {v(tmp)}, {v(x)}, {v(x)}")
    A(f"v_lshlrev_b32 {v(x)}, 16, {v(tmp)}")


def finish_stats(A, s1, s2, tmp, keep=None, scaled=False):
    if not scaled:
        A(f"v_mul_f32 {v(s1)}, {f32(1.0 / 640)}, {v(s1)}")
        A(f"v_mul_f32 {v(s2)}, {f32(1.0 / 640)}, {v(s2)}")
        A(f"v_fma_f32 {v(s2)}, -{v(s1)}, {v(s1)}, {v(s2)}")
        A(f"v_max_f32 {v(s2)}, 0, {v(s2)}")
    if keep is not None:
        A(f"v_mov_b32 {v(keep)}, {v(s1)}")
        A(f"v_mov_b32 {v(keep + 1)}, {v(s2)}")
    rnd2(A, tmp, s1, s2)
    A(f"v_add_f32 {v(s2)}, {f32(1e-5)}, {v(s2)}")
    rnd1(A, s2, tmp)
    A(f"v_sqrt_f32 {v(s2)}, {v(s2)}")
    rnd1(A, s2, tmp)
    A(f"v_rcp_f32 {v(s2)}, {v(s2)}")


GELU_C0 = -2.0 * math.sqrt(2.0 / math.pi) * math.log2(math.e)
GELU_C1 = GELU_C0 * 0.044715


def gelu_pack(A, vals, out, tmps, v_c0, s_c1):
    n = len(vals)
    if CFG[0].gpk:
        for i in range(0, n, 2):
            if CFG[0].grn:
                rnd2(A, tmps[n], vals[i], vals[i + 1])
        for i in range(0, n, 2):
            A(f"v_pk_mul_f32 {v(tmps[i], 2)}, {v(vals[i], 2)}, {v(vals[i], 2)}")
        for i in range(0, n, 2):
            A(f"v_pk_fma_f32 {v(tmps[i], 2)}, {v(tmps[i], 2)}, {v(v_c0, 2)}, {v(v_c0, 2)} op_sel:[0,1,0] op_sel_hi:[1,1,0]")
        for i in range(0, n, 2):
            A(f"v_pk_mul_f32 {v(tmps[i], 2)}, {v(tmps[i], 2)}, {v(vals[i], 2)}")
        for i in range(n):
            A(f"v_exp_f32 {v(tmps[i])}, {v(tmps[i])}")
        for i in range(0, n, 2):
            A(f"v_pk_add_f32 {v(tmps[i], 2)}, {v(tmps[i], 2)}, 1.0 op_sel_hi:[1,0]")
        for i in range(n):
            A(f"v_rcp_f32 {v(tmps[i])}, {v(tmps[i])}")
        for i in range(0, n, 2):
            A(f"v_pk_mul_f32 {v(vals[i], 2)}, {v(vals[i], 2)}, {v(tmps[i], 2)}")
        for i in range(0, n, 2):
            A(f"v_cvt_pk_bf16_f32 {v(out + i // 2)}, {v(vals[i])}, {v(vals[i + 1])}")
        return
    for i in range(0, n, 2):
        rnd2(A, tmps[n], vals[i], vals[i + 1])
    for i in range(n):
        A(f"v_mul_f32 {v(tmps[i])}, {v(vals[i])}, {v(vals[i])}")
    for i in range(n):
        A(f"v_fma_f32 {v(tmps[i])}, {v(tmps[i])}, {s(s_c1)}, {v(v_c0)}")
    for i in range(n):
        A(f"v_mul_f32 {v(tmps[i])}, {v(tmps[i])}, {v(vals[i])}")
    for i in range(n):
        A(f"v_exp_f32 {v(tmps[i])}, {v(tmps[i])}")
    for i in range(n):
        A(f"v_add_f32 {v(tmps[i])}, 1.0, {v(tmps[i])}")
    for i in range(n):
        A(f"v_rcp_f32 {v(tmps[i])}, {v(tmps[i])}")
    for i in range(n):
        A(f"v_mul_f32 {v(vals[i])}, {v(vals[i])}, {v(tmps[i])}")
    for i in range(0, n, 2):
        A(f"v_cvt_pk_bf16_f32 {v(out + i // 2)}, {v(vals[i])}, {v(vals[i + 1])}")


def stats_consume(A, v_sa, r, tmp):
    A(f"v_add_u32 {v(tmp)}, 0x800, {v(v_sa)}")
    for i in range(4):
        A(f"ds_read2_b64 {v(r + 4 * i, 4)}, {v(v_sa)} offset0:{64 * i} offset1:{64 * i + 32}")
    A(f"ds_read2_b64 {v(r + 16, 4)}, {v(tmp)} offset0:0 offset1:32")


def stats_reduce(A, r, out, tmp):
    for st in ((0, 10), (2, 12), (4, 14), (6, 16), (8, 18), (0, 2), (4, 6), (0, 4), (0, 8)):
        A(f"v_pk_add_f32 {v(r + st[0], 2)}, {v(r + st[0], 2)}, {v(r + st[1], 2)}")
    for k in range(2):
        A(f"v_mov_b32 {v(r + 2 + k)}, {v(r + k)}")
    for k in range(2):
        A(f"v_permlane16_swap_b32 {v(r + k)}, {v(r + 2 + k)}")
    for k in range(2):
        A(f"v_add_f32 {v(out + k)}, {v(r + k)}, {v(r + 2 + k)}")
    finish_stats(A, out, out + 1, tmp)
    for k in range(2):
        A(f"v_mov_b32 {v(out + 2 + k)}, {v(out + k)}")
    for k in range(2):
        A(f"v_permlane32_swap_b32 {v(out + k)}, {v(out + 2 + k)}")


def stats_produce(A, x0, x1, t, v_addr, soff_reg):
    for k, xs in enumerate((x0, x1)):
        A(f"v_add_f32 {v(t + k)}, {v(xs[0])}, {v(xs[1])}")
        A(f"v_mul_f32 {v(t + 2 + k)}, {v(xs[0])}, {v(xs[0])}")
        for i in range(1, 8):
            if i >= 2:
                A(f"v_add_f32 {v(t + k)}, {v(t + k)}, {v(xs[i])}")
            A(f"v_fmac_f32 {v(t + 2 + k)}, {v(xs[i])}, {v(xs[i])}")
    A(f"v_permlane32_swap_b32 {v(t)}, {v(t + 1)}")
    A(f"v_permlane32_swap_b32 {v(t + 2)}, {v(t + 3)}")
    A(f"v_add_f32 {v(t)}, {v(t)}, {v(t + 1)}")
    A(f"v_add_f32 {v(t + 1)}, {v(t + 2)}, {v(t + 3)}")
    A(f"v_mov_b32 {v(t + 2)}, {v(t)}")
    A(f"v_mov_b32 {v(t + 3)}, {v(t + 1)}")
    A(f"v_permlane16_swap_b32 {v(t)}, {v(t + 2)}")
    A(f"v_permlane16_swap_b32 {v(t + 1)}, {v(t + 3)}")
    A(f"v_add_f32 {v(t)}, {v(t)}, {v(t + 2)}")
    A(f"v_add_f32 {v(t + 1)}, {v(t + 1)}, {v(t + 3)}")
    A("s_mov_b32 exec_lo, 0xffff")
    A("s_mov_b32 exec_hi, 0xffff")
    A(f"buffer_store_dwordx2 {v(t, 2)}, {v(v_addr)}, {WS}, {s(soff_reg)} offen sc1")
    A("s_mov_b64 exec, -1")


class Capture:
    def __init__(self):
        self.l = []

    def __call__(self, x):
        self.l.append(x)

    def groups(self):
        out, cur = [], []
        for x in self.l:
            cur.append(x)
            if x.endswith(" lds"):
                out.append(cur)
                cur = []
        assert not cur
        return out


class Gemm:
    name = ""
    nk = 20
    NT = 2
    swap = False
    bufsz = 40960
    order = "d"
    jchk = 5
    nstores = 2
    pin = False
    fillrate = 3
    V_ACC = 16
    V_FR = 48
    V_X = 80

    def __init__(self, A, cfg, nwg):
        self.A, self.cfg, self.nwg = A, cfg, nwg

    def wreg(self, tau, j):
        idx = tau * self.nk + j
        if idx < 64:
            return ("a", idx * 4)
        return ("v", 256 - (self.NT * self.nk - idx) * 4)

    def wtxt(self, tau, j):
        k, r = self.wreg(tau, j)
        return a(r, 4) if k == "a" else v(r, 4)

    def acc(self, tau, tt):
        return self.V_ACC + (tau * 2 + tt) * 4

    def setup(self): pass
    def init_stores(self): pass
    def weights(self, WL): pass
    def post_weights(self): pass
    def flag_soff(self, dst, rl, rs): pass
    def dma(self, rl, rs, ldsreg): pass
    def early(self): return 0
    def mid(self): return []
    def epilogue(self): pass

    def item(self, i_reg, rl, rs):
        if self.order == "q":
            item_of(self.A, i_reg, rl, rs, self.cfg.QA, 1, T)
        else:
            item_of(self.A, i_reg, rl, rs, self.cfg.LAG + self.cfg.dlt, 0, T)

    def lin_dma(self, src_reg, ldsreg, nb):
        A = self.A
        for b in range(nb):
            if b % 4 == 0:
                A(f"s_add_u32 m0, {s(ldsreg)}, {b * 1024}")
                A(f"s_add_u32 {s(T + 3)}, {s(src_reg)}, {b * 1024}")
            A(f"buffer_load_dwordx4 {v(V_L16)}, {WS}, {s(T + 3)} offen offset:{(b % 4) * 1024} sc1 lds")

    def gen(self):
        A, cfg = self.A, self.cfg
        nm = self.name
        A.label("ROLE_" + nm)
        base_setup(A)
        self.setup()
        self.init_stores()
        init_barrier_arrive(A, V_T)
        late = self.order != "q" and cfg.late_w
        if late:
            init_barrier_wait(A, V_T, self.nwg, cfg)
            A(f"s_sleep {cfg.late_w}")
        WL = WLoader(A, V_T, T + 3)
        self.weights(WL)
        WL.emit(V_LANE)
        self.post_weights()
        A("s_barrier")
        if not late:
            init_barrier_wait(A, V_T, self.nwg, cfg)
        A(f"s_mov_b32 {s(S_I)}, 0")
        A(f"s_mov_b32 {s(S_BUF)}, 0")
        st = self.st = Stamper(A, cfg, 84, 8)
        A(f"s_mov_b32 s83, {s(S_GID)}")
        self.item(S_I, S_L, S_S)
        self.flag_soff(T + 7, S_L, S_S)
        self.flag_block(T + 7)
        self.dma(S_L, S_S, S_BUF)
        st.init()
        A("s_waitcnt vmcnt(0)")
        A(f"s_mov_b32 {s(S_FADDR)}, {DUMMY}")
        A.label(nm + "_LOOP")
        cap0 = Capture()
        self.A = cap0
        cap0(f"s_add_u32 {s(T + 6)}, {s(S_I)}, 1")
        cap0(f"s_min_u32 {s(T + 6)}, {s(T + 6)}, 127")
        self.item(T + 6, S_NL, S_NS)
        self.flag_soff(T + 7, S_NL, S_NS)
        self.flag_load(T + 7)
        self.early()
        self.mid()
        self.A = A
        fill = cap0.l
        A(f"v_add_u32 {v(V_LB)}, {s(S_BUF)}, {v(V_P16 if self.pin else V_L16)}")
        A("s_barrier")
        st(0)
        nk, NT = self.nk, self.NT
        D = 3

        def rd(j):
            for tt in range(2):
                A(f"ds_read_b128 {v(self.V_FR + ((j % 4) * 2 + tt) * 4, 4)}, {v(V_LB)} offset:{(j * 2 + tt) * 1024}")

        def kstep(j, extra=None):
            if j + D < nk:
                rd(j + D)
                A(f"s_waitcnt lgkmcnt({2 * D})")
            else:
                A(f"s_waitcnt lgkmcnt({2 * (nk - 1 - j)})")
            n = 0
            for tau in range(NT):
                for tt in range(2):
                    c = "0" if j == 0 else v(self.acc(tau, tt), 4)
                    fr = v(self.V_FR + ((j % 4) * 2 + tt) * 4, 4)
                    w = self.wtxt(tau, j)
                    x, y = (fr, w) if self.swap else (w, fr)
                    A(f"v_mfma_f32_16x16x32_bf16 {v(self.acc(tau, tt), 4)}, {x}, {y}, {c}")
                    n += 1
                    if extra and n == 1:
                        for e in extra:
                            A(e)
                    if j >= 1:
                        for _ in range(self.fillrate):
                            if fill:
                                A(fill.pop(0))
        self.pre_mfma()
        for j in range(D):
            rd(j)
        jchk = self.jchk
        for j in range(jchk + 1):
            kstep(j)
        while fill:
            A(fill.pop(0))
        nod, join = A.newlabel("nod"), A.newlabel("join")
        A("s_waitcnt vmcnt(0)")
        st(1)
        nof = A.newlabel("nof")
        A(f"s_cmp_eq_u32 {s(S_FADDR)}, {DUMMY}")
        A(f"s_cbranch_scc1 {nof}")
        flag_store(A, S_FADDR)
        A.label(nof)
        self.flag_check()
        A(f"s_mov_b32 {s(S_DEF)}, 1")
        A(f"s_cbranch_vccnz {nod}")
        A(f"s_mov_b32 {s(S_DEF)}, 0")
        A(f"s_xor_b32 {s(T + 6)}, {s(S_BUF)}, {self.bufsz}")
        cap = Capture()
        self.A = cap
        self.dma(S_NL, S_NS, T + 6)
        self.A = A
        groups = cap.groups()
        rem = list(range(jchk + 1, nk))
        per = -(-len(groups) // len(rem))
        for j in rem:
            ex = []
            for _ in range(per):
                if groups:
                    ex += groups.pop(0)
            kstep(j, ex)
        assert not groups
        A(f"s_branch {join}")
        A.label(nod)
        for j in rem:
            kstep(j)
        A.label(join)
        st(3)
        PRE_FLAG[0] = True
        self.epilogue()
        PRE_FLAG[0] = None
        st(4)
        A(f"s_add_u32 {s(S_I)}, {s(S_I)}, 1")
        A(f"s_cmp_eq_u32 {s(S_I)}, 128")
        A(f"s_cbranch_scc1 {nm}_END")
        A(f"s_xor_b32 {s(S_BUF)}, {s(S_BUF)}, {self.bufsz}")
        A(f"s_mov_b32 {s(S_L)}, {s(S_NL)}")
        A(f"s_mov_b32 {s(S_S)}, {s(S_NS)}")
        A(f"s_cmp_eq_u32 {s(S_DEF)}, 0")
        A(f"s_cbranch_scc1 {nm}_OKN")
        A("s_waitcnt vmcnt(0)")
        flag_store(A, S_FADDR)
        A(f"s_mov_b32 {s(S_FADDR)}, {DUMMY}")
        st(5)
        self.flag_soff(T + 7, S_L, S_S)
        self.flag_block(T + 7)
        st(6)
        self.dma(S_L, S_S, S_BUF)
        A("s_waitcnt vmcnt(0)")
        st(7)
        A(f"s_branch {nm}_LOOP")
        A.label(nm + "_OKN")
        A(f"s_waitcnt vmcnt({self.nstores})")
        A(f"s_branch {nm}_LOOP")
        A.label(nm + "_END")
        A("s_waitcnt vmcnt(0)")
        flag_store(A, S_FADDR)
        st.dump(83, T, V_T)
        A("s_endpgm")

    def pre_mfma(self): pass

    def flag_block(self, soff):
        flag_block_wg(self.A, soff)

    def flag_load(self, soff):
        self.A(f"buffer_load_dword {v(V_FV)}, {v(V_FO)}, {WS}, {s(soff)} offen sc1")

    def flag_check(self):
        self.A(f"v_cmp_eq_u32 vcc, 0, {v(V_FV)}")


class FoldMixin:
    def csum(self, dst):
        A = self.A
        ones = self.V_FR
        for i in range(4):
            A(f"v_mov_b32 {v(ones + i)}, 0x3f803f80")
        for j in range(self.nk):
            for tau in range(self.NT):
                c = "0" if j == 0 else v(dst + 4 * tau, 4)
                w = self.wtxt(tau, j)
                x, y = (v(ones, 4), w) if self.swap else (w, v(ones, 4))
                A(f"v_mfma_f32_16x16x32_bf16 {v(dst + 4 * tau, 4)}, {x}, {y}, {c}")

    def sa_setup(self, v_sa0):
        A = self.A
        A(f"v_lshrrev_b32 {v(V_T)}, 4, {v(V_LANE)}")
        A(f"v_and_b32 {v(V_T)}, 1, {v(V_T)}")
        A(f"v_mul_u32_u24 {v(v_sa0)}, 2560, {v(V_T)}")
        A(f"v_lshrrev_b32 {v(V_T)}, 5, {v(V_LANE)}")
        A(f"v_lshl_add_u32 {v(v_sa0)}, {v(V_T)}, 7, {v(v_sa0)}")
        A(f"v_and_b32 {v(V_T)}, 15, {v(V_LANE)}")
        A(f"v_lshl_add_u32 {v(v_sa0)}, {v(V_T)}, 3, {v(v_sa0)}")
        A(f"v_add_u32 {v(v_sa0)}, 0xa000, {v(v_sa0)}")

    def stats_dma(self, src_reg, ldsreg_raw):
        A = self.A
        A(f"s_lshl_b32 {s(T + 2)}, {s(S_WAVE)}, 10")
        A(f"s_add_u32 {s(T + 2)}, {s(T + 2)}, 40960")
        A(f"s_add_u32 m0, {s(ldsreg_raw)}, {s(T + 2)}")
        A(f"s_add_u32 {s(T + 3)}, {s(src_reg)}, {s(T + 2)}")
        A(f"buffer_load_dwordx4 {v(V_L16)}, {WS}, {s(T + 3)} offen sc1 lds")
        A(f"s_add_u32 m0, {s(ldsreg_raw)}, {44 * 1024}")
        A(f"s_add_u32 {s(T + 3)}, {s(src_reg)}, {44 * 1024}")
        A(f"buffer_load_dwordx4 {v(V_L16)}, {WS}, {s(T + 3)} offen sc1 lds")


class QKV(Gemm, FoldMixin):
    NT = 4
    nk = 20
    bufsz = XSEGS
    order = "q"
    fillrate = 2
    pin = True
    jchk = 7
    nstores = 4
    V_CS = 80
    V_SR = 96
    V_ST = 116
    V_SV = 120
    V_SA0, V_SA = 136, 137
    V_PK = 140
    V_SW, V_SRD = 138, 139
    S_TYPE, S_WG, S_OUT, S_FK = S_K, S_K + 1, S_K + 2, S_K + 3

    def __init__(self, A, cfg, nwg, vtype):
        super().__init__(A, cfg, nwg)
        self.swap = vtype
        self.name = "QKVV" if vtype else "QKVQ"

    def setup(self):
        A = self.A
        if self.swap:
            A(f"s_mov_b32 {s(self.S_WG)}, {s(S_IDX)}")
            A(f"s_mov_b32 {s(self.S_OUT)}, {VX}")
            A(f"s_mov_b32 {s(self.S_FK)}, {flag_row(F_V)}")
        else:
            A(f"s_cmp_ge_u32 {s(S_ROLE)}, 24")
            A(f"s_cselect_b32 {s(self.S_TYPE)}, 1, 0")
            A(f"s_mul_i32 {s(T)}, {s(self.S_TYPE)}, 96")
            A(f"s_sub_u32 {s(self.S_WG)}, {s(S_IDX)}, {s(T)}")
            A(f"s_mul_i32 {s(self.S_OUT)}, {s(self.S_TYPE)}, {QX - KX}")
            A(f"s_add_u32 {s(self.S_OUT)}, {s(self.S_OUT)}, {KX}")
            A(f"s_mul_i32 {s(T)}, {s(self.S_TYPE)}, {flag_row(F_K) - flag_row(F_Q)}")
            A(f"s_sub_u32 {s(self.S_FK)}, {flag_row(F_K)}, {s(T)}")
        A(f"s_lshl_b32 {s(T)}, {s(self.S_WG)}, 12")
        A(f"s_add_u32 {s(self.S_OUT)}, {s(self.S_OUT)}, {s(T)}")
        self.sa_setup(self.V_SA0)
        if self.swap:
            A(f"s_lshl_b32 {s(T)}, {s(S_WAVE)}, 8")
            A(f"s_add_u32 {s(T)}, {s(T)}, {2 * self.bufsz}")
            A(f"v_and_b32 {v(V_T)}, 15, {v(V_LANE)}")
            A(f"v_lshlrev_b32 {v(self.V_SW)}, 3, {v(V_T)}")
            A(f"v_add_u32 {v(self.V_SW)}, {s(T)}, {v(self.V_SW)}")
            A(f"v_lshrrev_b32 {v(V_T)}, 4, {v(V_LANE)}")
            A(f"v_lshlrev_b32 {v(self.V_SRD)}, 5, {v(V_T)}")
            A(f"v_add_u32 {v(self.V_SRD)}, {s(T)}, {v(self.V_SRD)}")

    def init_stores(self):
        zero_flags(self.A, s(self.S_FK), self.S_WG)

    def weights(self, WL):
        A = self.A
        A(f"s_lshl_b32 {s(S_C0)}, {s(self.S_WG)}, 7")

        def srd():
            if self.swap:
                make_srd(A, SRD_W, P_WV, 640 * 12288)
            else:
                A(f"s_cmp_eq_u32 {s(self.S_TYPE)}, 0")
                A(f"s_cselect_b32 {s(SRD_W)}, {s(P_WK)}, {s(P_WQ)}")
                A(f"s_cselect_b32 {s(SRD_W + 1)}, {s(P_WK + 1)}, {s(P_WQ + 1)}")
                A(f"s_mov_b32 {s(SRD_W + 2)}, {640 * 12288}")
                A(f"s_mov_b32 {s(SRD_W + 3)}, 0x20000")
        WL.add(srd, S_C0, 12288, 4, 20, self.wreg)

    def post_weights(self):
        self.csum(self.V_CS)

    def flag_soff(self, dst, rl, rs):
        A = self.A
        row_of(A, dst, rl, rs, flag_row(F_XIN))
        A(f"s_lshl_b32 {s(T)}, {s(rl)}, 5")
        A(f"s_add_u32 {s(T)}, {s(T)}, 7")
        A(f"v_min_u32 {v(V_FO)}, {s(T)}, {v(V_LANE)}")
        A(f"v_lshlrev_b32 {v(V_FO)}, 2, {v(V_FO)}")

    def dma(self, rl, rs, ldsreg):
        A = self.A
        A(f"s_lshl_b32 {s(T)}, {s(rl)}, 6")
        A(f"s_add_u32 {s(T)}, {s(T)}, {s(rs)}")
        A(f"s_mul_i32 {s(T)}, {s(T)}, {XSEGS}")
        A(f"s_add_u32 {s(T)}, {s(T)}, {XIN}")
        self.stats_dma(T, ldsreg)
        A(f"s_mul_i32 {s(T + 1)}, {s(S_WAVE)}, 10240")
        A(f"s_add_u32 {s(T)}, {s(T)}, {s(T + 1)}")
        A(f"s_add_u32 {s(T + 1)}, {s(T + 1)}, {s(ldsreg)}")
        self.lin_dma(T, T + 1, 10)

    def pre_mfma(self):
        A = self.A
        A(f"v_add_u32 {v(self.V_SA)}, {s(S_BUF)}, {v(self.V_SA0)}")
        stats_consume(A, self.V_SA, self.V_SR, V_T)

    def mid(self):
        stats_reduce(self.A, self.V_SR, self.V_ST, V_T)

    def epilogue(self):
        A = self.A
        lab = A.newlabel("l0")
        A(f"s_mul_i32 {s(T + 2)}, {s(S_S)}, {QKV_SEG}")
        A(f"s_add_u32 {s(T + 2)}, {s(T + 2)}, {s(self.S_OUT)}")
        A(f"s_cmp_eq_u32 {s(S_L)}, 0")
        A(f"s_cbranch_scc1 {lab}")
        if self.swap:
            A(f"ds_write_b64 {v(self.V_SW)}, {v(self.V_ST, 2)}")
            A(f"ds_write_b64 {v(self.V_SW)}, {v(self.V_ST + 2, 2)} offset:128")
            A("s_waitcnt lgkmcnt(0)")
            for tt in range(2):
                for hf in range(2):
                    A(f"ds_read_b128 {v(self.V_SV + tt * 8 + hf * 4, 4)}, {v(self.V_SRD)} offset:{tt * 128 + hf * 16}")
            A("s_waitcnt lgkmcnt(0)")
            for tau in range(4):
                for tt in range(2):
                    for r in range(4):
                        x = self.acc(tau, tt) + r
                        A(f"v_fma_f32 {v(x)}, -{v(self.V_SV + tt * 8 + 2 * r)}, {v(self.V_CS + 4 * tau)}, {v(x)}")
                for tt in range(2):
                    for r in range(4):
                        x = self.acc(tau, tt) + r
                        A(f"v_mul_f32 {v(x)}, {v(x)}, {v(self.V_SV + tt * 8 + 2 * r + 1)}")
        else:
            for tau in range(4):
                for tt in range(2):
                    for r in range(4):
                        x = self.acc(tau, tt) + r
                        A(f"v_fma_f32 {v(x)}, -{v(self.V_ST + 2 * tt)}, {v(self.V_CS + 4 * tau + r)}, {v(x)}")
                for tt in range(2):
                    for r in range(4):
                        x = self.acc(tau, tt) + r
                        A(f"v_mul_f32 {v(x)}, {v(x)}, {v(self.V_ST + 2 * tt + 1)}")
        A.label(lab)
        for b in range(4):
            if self.swap:
                lo, hi = self.acc(b, 0), self.acc(b, 1)
            else:
                p, tt = b >> 1, b & 1
                lo, hi = self.acc(2 * p, tt), self.acc(2 * p + 1, tt)
            pk = self.V_PK + 4 * b
            A(f"v_cvt_pk_bf16_f32 {v(pk)}, {v(lo)}, {v(lo + 1)}")
            A(f"v_cvt_pk_bf16_f32 {v(pk + 1)}, {v(lo + 2)}, {v(lo + 3)}")
            A(f"v_cvt_pk_bf16_f32 {v(pk + 2)}, {v(hi)}, {v(hi + 1)}")
            A(f"v_cvt_pk_bf16_f32 {v(pk + 3)}, {v(hi + 2)}, {v(hi + 3)}")
            A(f"buffer_store_dwordx4 {v(pk, 4)}, {v(V_L16)}, {WS}, {s(T + 2)} offen offset:{b * 1024} sc1")
        set_flag(A, s(self.S_FK), self.S_WG)


class WO(Gemm):
    name = "WO"
    NT = 2
    nk = 32
    bufsz = 65536
    jchk = 7
    nstores = 4
    S_KG, S_CG, S_OUT = S_K, S_K + 1, S_K + 2
    V_SO = 80

    def setup(self):
        A = self.A
        A(f"s_mul_i32 {s(self.S_KG)}, {s(S_ROLE)}, 52429")
        A(f"s_lshr_b32 {s(self.S_KG)}, {s(self.S_KG)}, 18")
        A(f"s_mul_i32 {s(T)}, {s(self.S_KG)}, 5")
        A(f"s_sub_u32 {s(self.S_CG)}, {s(S_ROLE)}, {s(T)}")
        A(f"s_lshl_b32 {s(T)}, {s(self.S_KG)}, 5")
        A(f"s_mul_i32 {s(T + 1)}, {s(T)}, 43691")
        A(f"s_lshr_b32 {s(T + 1)}, {s(T + 1)}, 18")
        A(f"s_add_u32 {s(T)}, {s(T)}, 31")
        A(f"s_mul_i32 {s(T)}, {s(T)}, 43691")
        A(f"s_lshr_b32 {s(T)}, {s(T)}, 18")
        A(f"v_add_u32 {v(V_FO)}, {s(T + 1)}, {v(V_LANE)}")
        A(f"v_min_u32 {v(V_FO)}, {s(T)}, {v(V_FO)}")
        A(f"v_lshlrev_b32 {v(V_FO)}, 2, {v(V_FO)}")
        A(f"v_and_b32 {v(V_T)}, 15, {v(V_LANE)}")
        A(f"v_lshrrev_b32 {v(V_T + 1)}, 2, {v(V_T)}")
        A(f"v_mul_u32_u24 {v(self.V_SO)}, 10240, {v(V_T + 1)}")
        A(f"v_and_b32 {v(V_T)}, 3, {v(V_LANE)}")
        A(f"v_lshl_add_u32 {v(self.V_SO)}, {v(V_T)}, 4, {v(self.V_SO)}")
        A(f"v_lshrrev_b32 {v(V_T)}, 4, {v(V_LANE)}")
        A(f"v_lshl_add_u32 {v(self.V_SO)}, {v(V_T)}, 6, {v(self.V_SO)}")
        A(f"s_lshl_b32 {s(T)}, {s(self.S_CG)}, 2")
        A(f"s_add_u32 {s(T)}, {s(T)}, {s(S_WAVE)}")
        A(f"s_lshl_b32 {s(S_C0 + 1)}, {s(T)}, 6")
        A(f"s_lshl_b32 {s(T)}, {s(T)}, 9")
        A(f"s_mul_i32 {s(self.S_OUT)}, {s(self.S_KG)}, 81920")
        A(f"s_add_u32 {s(self.S_OUT)}, {s(self.S_OUT)}, {s(T)}")
        A(f"s_add_u32 {s(self.S_OUT)}, {s(self.S_OUT)}, {WOP}")

    def init_stores(self):
        zero_flags(self.A, flag_row(F_WOP), S_IDX)

    def weights(self, WL):
        A = self.A
        A(f"s_mul_i32 {s(S_C0)}, {s(self.S_KG)}, {1024 * 1280}")
        A(f"s_add_u32 {s(S_C0)}, {s(S_C0)}, {s(S_C0 + 1)}")
        WL.add(lambda: make_srd(A, SRD_W, P_WO, 6144 * 1280), S_C0, 1280, 2, 32, self.wreg)

    def flag_soff(self, dst, rl, rs):
        row_of(self.A, dst, rl, rs, flag_row(F_O))

    def dma(self, rl, rs, ldsreg):
        A = self.A
        A(f"s_mul_i32 {s(T)}, {s(rs)}, {QKV_SEG}")
        A(f"s_lshl_b32 {s(T + 1)}, {s(self.S_KG)}, 16")
        A(f"s_add_u32 {s(T)}, {s(T)}, {s(T + 1)}")
        A(f"s_lshl_b32 {s(T + 1)}, {s(S_WAVE)}, 14")
        A(f"s_add_u32 {s(T)}, {s(T)}, {s(T + 1)}")
        A(f"s_add_u32 {s(T)}, {s(T)}, {OX}")
        A(f"s_add_u32 {s(T + 1)}, {s(T + 1)}, {s(ldsreg)}")
        self.lin_dma(T, T + 1, 16)

    def epilogue(self):
        A = self.A
        A(f"s_mul_i32 {s(T + 2)}, {s(S_S)}, {WOP_SEG}")
        A(f"s_add_u32 {s(T + 2)}, {s(T + 2)}, {s(self.S_OUT)}")
        A(f"s_add_u32 {s(T + 3)}, {s(T + 2)}, 40960")
        for tau in range(2):
            for tt in range(2):
                A(f"buffer_store_dwordx4 {v(self.acc(tau, tt), 4)}, {v(self.V_SO)}, {WS}, {s(T + 2 + tt)} offen offset:{tau * 256} sc1")
        set_flag(A, flag_row(F_WOP))


class W1(Gemm):
    name = "W1"
    pin = True
    V_C0, V_PK, V_TM = 80, 84, 96
    S_C1 = S_K

    def setup(self):
        A = self.A
        A(f"v_min_u32 {v(V_FO)}, 31, {v(V_LANE)}")
        A(f"v_lshlrev_b32 {v(V_FO)}, 2, {v(V_FO)}")
        A(f"v_mov_b32 {v(self.V_C0)}, {f32(GELU_C0)}")
        A(f"v_mov_b32 {v(self.V_C0 + 1)}, {f32(GELU_C1)}")
        A(f"s_mov_b32 {s(self.S_C1)}, {f32(GELU_C1)}")

    def init_stores(self):
        A = self.A
        zero_flags(A, flag_row(F_H), S_IDX)
        for i in range(4):
            A(f"v_mov_b32 {v(self.V_PK + i)}, 0")
        A(f"s_lshl_b32 {s(T)}, {s(S_IDX)}, 11")
        for l in range(2):
            for gseg in (0, 65):
                A(f"s_add_u32 {s(T + 1)}, {s(T)}, {HB + (l * 66 + gseg) * XSEG}")
                for tt in range(2):
                    A(f"buffer_store_dwordx4 {v(self.V_PK, 4)}, {v(V_L16)}, {WS}, {s(T + 1)} offen offset:{tt * 1024} sc1")

    def weights(self, WL):
        A = self.A
        A(f"s_lshl_b32 {s(S_C0)}, {s(S_IDX)}, 6")
        WL.add(lambda: make_srd(A, SRD_W, P_W1, 640 * 1280), S_C0, 1280, 2, 20, self.wreg)

    def flag_soff(self, dst, rl, rs):
        row_of(self.A, dst, rl, rs, flag_row(F_R1))

    def dma(self, rl, rs, ldsreg):
        A = self.A
        A(f"s_lshl_b32 {s(T)}, {s(rl)}, 6")
        A(f"s_add_u32 {s(T)}, {s(T)}, {s(rs)}")
        A(f"s_mul_i32 {s(T)}, {s(T)}, {XSEG}")
        A(f"s_mul_i32 {s(T + 1)}, {s(S_WAVE)}, 10240")
        A(f"s_add_u32 {s(T)}, {s(T)}, {s(T + 1)}")
        A(f"s_add_u32 {s(T)}, {s(T)}, {ZB}")
        A(f"s_add_u32 {s(T + 1)}, {s(T + 1)}, {s(ldsreg)}")
        self.lin_dma(T, T + 1, 10)

    def out_base(self):
        A = self.A
        A(f"s_mul_i32 {s(T + 2)}, {s(S_L)}, 66")
        A(f"s_add_u32 {s(T + 2)}, {s(T + 2)}, {s(S_S)}")
        A(f"s_mul_i32 {s(T + 2)}, {s(T + 2)}, {XSEG}")
        A(f"s_lshl_b32 {s(T + 3)}, {s(S_IDX)}, 11")
        A(f"s_add_u32 {s(T + 2)}, {s(T + 2)}, {s(T + 3)}")
        A(f"s_add_u32 {s(T + 2)}, {s(T + 2)}, {HB + XSEG}")
    out_kind = F_H

    def correct(self): pass

    def epilogue(self):
        A = self.A
        self.out_base()
        self.correct()
        vals = []
        for tt in range(2):
            for tau in range(2):
                vals += [self.acc(tau, tt) + r for r in range(4)]
        gelu_pack(A, vals, self.V_PK, [self.V_TM + i for i in range(17)], self.V_C0, self.S_C1)
        for tt in range(2):
            A(f"buffer_store_dwordx4 {v(self.V_PK + 4 * tt, 4)}, {v(V_L16)}, {WS}, {s(T + 2)} offen offset:{tt * 1024} sc1")
        set_flag(A, flag_row(self.out_kind))


class W3(W1, FoldMixin):
    name = "W3"
    pin = False
    jchk = 7
    bufsz = XSEGS
    out_kind = F_G
    V_CS, V_SR, V_ST, V_SA0, V_SA = 116, 124, 144, 148, 149

    def setup(self):
        A = self.A
        A(f"v_min_u32 {v(V_FO)}, 19, {v(V_LANE)}")
        A(f"v_lshlrev_b32 {v(V_FO)}, 2, {v(V_FO)}")
        A(f"v_mov_b32 {v(self.V_C0)}, {f32(GELU_C0)}")
        A(f"s_mov_b32 {s(self.S_C1)}, {f32(GELU_C1)}")
        self.sa_setup(self.V_SA0)

    def init_stores(self):
        zero_flags(self.A, flag_row(F_G), S_IDX)

    def weights(self, WL):
        A = self.A
        A(f"s_lshl_b32 {s(S_C0)}, {s(S_IDX)}, 6")
        WL.add(lambda: make_srd(A, SRD_W, P_W3, 640 * 3072), S_C0, 3072, 2, 20, self.wreg)

    def post_weights(self):
        self.csum(self.V_CS)

    def flag_soff(self, dst, rl, rs):
        row_of(self.A, dst, rl, rs, flag_row(F_X1))

    def dma(self, rl, rs, ldsreg):
        A = self.A
        A(f"s_lshl_b32 {s(T)}, {s(rl)}, 6")
        A(f"s_add_u32 {s(T)}, {s(T)}, {s(rs)}")
        A(f"s_mul_i32 {s(T)}, {s(T)}, {XSEGS}")
        A(f"s_add_u32 {s(T)}, {s(T)}, {X1B}")
        self.stats_dma(T, ldsreg)
        A(f"s_mul_i32 {s(T + 1)}, {s(S_WAVE)}, 10240")
        A(f"s_add_u32 {s(T)}, {s(T)}, {s(T + 1)}")
        A(f"s_add_u32 {s(T + 1)}, {s(T + 1)}, {s(ldsreg)}")
        self.lin_dma(T, T + 1, 10)

    def pre_mfma(self):
        A = self.A
        A(f"v_add_u32 {v(self.V_SA)}, {s(S_BUF)}, {v(self.V_SA0)}")
        stats_consume(A, self.V_SA, self.V_SR, V_T)

    def mid(self):
        stats_reduce(self.A, self.V_SR, self.V_ST, V_T)

    def out_base(self):
        A = self.A
        A(f"s_lshl_b32 {s(T + 2)}, {s(S_L)}, 6")
        A(f"s_add_u32 {s(T + 2)}, {s(T + 2)}, {s(S_S)}")
        A(f"s_mul_i32 {s(T + 2)}, {s(T + 2)}, {GSEG}")
        A(f"s_lshl_b32 {s(T + 3)}, {s(S_IDX)}, 11")
        A(f"s_add_u32 {s(T + 2)}, {s(T + 2)}, {s(T + 3)}")
        A(f"s_add_u32 {s(T + 2)}, {s(T + 2)}, {GB}")

    def correct(self):
        A = self.A
        for tau in range(2):
            for tt in range(2):
                for r in range(4):
                    x = self.acc(tau, tt) + r
                    A(f"v_fma_f32 {v(x)}, -{v(self.V_ST + 2 * tt)}, {v(self.V_CS + 4 * tau + r)}, {v(x)}")
        for tau in range(2):
            for tt in range(2):
                for r in range(4):
                    x = self.acc(tau, tt) + r
                    A(f"v_mul_f32 {v(x)}, {v(x)}, {v(self.V_ST + 2 * tt + 1)}")


def unpack8(A, dst, src):
    for i in range(4):
        A(f"v_lshlrev_b32 {v(dst + 2 * i)}, 16, {v(src + i)}")
        A(f"v_and_b32 {v(dst + 2 * i + 1)}, 0xffff0000, {v(src + i)}")


def stat_addr_setup(A, dst):
    A(f"v_lshrrev_b32 {v(V_T)}, 5, {v(V_LANE)}")
    A(f"v_and_b32 {v(V_T + 1)}, 15, {v(V_LANE)}")
    A(f"v_lshlrev_b32 {v(dst)}, 3, {v(V_T + 1)}")
    A(f"v_lshl_add_u32 {v(dst)}, {v(V_T)}, 7, {v(dst)}")


class W2(Gemm):
    name = "W2"
    nstores = 3
    V_SH = 80
    V_Y = 84
    V_YU = 96
    V_PK = 112
    V_SAD = 82

    def setup(self):
        A = self.A
        A(f"v_min_u32 {v(V_FO)}, 19, {v(V_LANE)}")
        A(f"v_lshlrev_b32 {v(V_FO)}, 2, {v(V_FO)}")
        A(f"s_lshr_b32 {s(T)}, {s(S_WAVE)}, 1")
        A(f"s_add_u32 {s(T)}, {s(T)}, 1")
        A(f"s_sub_u32 {s(T + 1)}, 32, {s(T)}")
        A(f"s_add_u32 {s(T)}, {s(T)}, 32")
        A(f"s_bitcmp1_b32 {s(S_WAVE)}, 0")
        A(f"s_cselect_b32 {s(T)}, {s(T)}, {s(T + 1)}")
        for tt in range(2):
            A(f"v_and_b32 {v(V_T)}, 15, {v(V_LANE)}")
            A(f"v_add_u32 {v(V_T)}, {s(T)}, {v(V_T)}")
            if tt:
                A(f"v_add_u32 {v(V_T)}, 16, {v(V_T)}")
            d = self.V_SH + tt
            A(f"v_lshrrev_b32 {v(V_T + 1)}, 5, {v(V_T)}")
            A(f"v_mul_u32_u24 {v(d)}, {XSEG}, {v(V_T + 1)}")
            A(f"v_bfe_u32 {v(V_T + 1)}, {v(V_T)}, 4, 1")
            A(f"v_lshl_add_u32 {v(d)}, {v(V_T + 1)}, 10, {v(d)}")
            A(f"v_and_b32 {v(V_T + 1)}, 15, {v(V_T)}")
            A(f"v_lshl_add_u32 {v(d)}, {v(V_T + 1)}, 4, {v(d)}")
            A(f"v_lshrrev_b32 {v(V_T + 1)}, 4, {v(V_LANE)}")
            A(f"v_lshl_add_u32 {v(d)}, {v(V_T + 1)}, 8, {v(d)}")
        stat_addr_setup(A, self.V_SAD)

    def init_stores(self):
        zero_flags(self.A, flag_row(F_X1), S_IDX)

    def weights(self, WL):
        A = self.A
        A(f"s_lshl_b32 {s(S_C0)}, {s(S_IDX)}, 6")
        WL.add(lambda: make_srd(A, SRD_W, P_W2, 640 * 1280), S_C0, 1280, 2, 20, self.wreg)

    def flag_soff(self, dst, rl, rs):
        A = self.A
        A(f"s_add_u32 {s(T)}, {s(rs)}, 1")
        A(f"s_min_u32 {s(T)}, {s(T)}, 63")
        row_of(A, dst, rl, T, flag_row(F_H))

    def dma(self, rl, rs, ldsreg):
        A = self.A
        A(f"s_mul_i32 {s(T)}, {s(rl)}, 66")
        A(f"s_add_u32 {s(T)}, {s(T)}, {s(rs)}")
        A(f"s_mul_i32 {s(T)}, {s(T)}, {XSEG}")
        A(f"s_mul_i32 {s(T + 1)}, {s(S_WAVE)}, 10240")
        A(f"s_add_u32 {s(T)}, {s(T)}, {s(T + 1)}")
        A(f"s_add_u32 {s(T)}, {s(T)}, {HB}")
        A(f"s_add_u32 {s(T + 1)}, {s(T + 1)}, {s(ldsreg)}")
        for jl in range(5):
            for tt in range(2):
                A(f"s_add_u32 m0, {s(T + 1)}, {(jl * 2 + tt) * 1024}")
                A(f"s_add_u32 {s(T + 3)}, {s(T)}, {jl * 2048}")
                A(f"buffer_load_dwordx4 {v(self.V_SH + tt)}, {WS}, {s(T + 3)} offen sc1 lds")

    def early(self):
        A = self.A
        A(f"s_lshl_b32 {s(T)}, {s(S_L)}, 6")
        A(f"s_add_u32 {s(T)}, {s(T)}, {s(S_S)}")
        A(f"s_mul_i32 {s(T)}, {s(T)}, {XSEG}")
        A(f"s_lshl_b32 {s(T + 1)}, {s(S_IDX)}, 11")
        A(f"s_add_u32 {s(T)}, {s(T)}, {s(T + 1)}")
        A(f"s_add_u32 {s(T)}, {s(T)}, {YB}")
        for tt in range(2):
            A(f"buffer_load_dwordx4 {v(self.V_Y + 4 * tt, 4)}, {v(V_P16)}, {WS}, {s(T)} offen offset:{tt * 1024} sc1")
        return 2

    def epilogue(self):
        A = self.A
        A(f"s_lshl_b32 {s(T + 2)}, {s(S_L)}, 6")
        A(f"s_add_u32 {s(T + 2)}, {s(T + 2)}, {s(S_S)}")
        A(f"s_mul_i32 {s(T + 2)}, {s(T + 2)}, {XSEGS}")
        A(f"s_add_u32 {s(T + 2)}, {s(T + 2)}, {X1B}")
        A(f"s_lshl_b32 {s(T + 3)}, {s(S_IDX)}, 8")
        A(f"s_add_u32 {s(T + 3)}, {s(T + 3)}, {s(T + 2)}")
        A(f"s_add_u32 {s(T + 3)}, {s(T + 3)}, 40960")
        A(f"s_lshl_b32 {s(T + 4)}, {s(S_IDX)}, 11")
        A(f"s_add_u32 {s(T + 2)}, {s(T + 2)}, {s(T + 4)}")
        xs = []
        for tt in range(2):
            unpack8(A, self.V_YU + 8 * tt, self.V_Y + 4 * tt)
        for tt in range(2):
            vals = [self.acc(0, tt) + r for r in range(4)] + [self.acc(1, tt) + r for r in range(4)]
            for i in range(0, 8, 2):
                rnd2(A, V_T, vals[i], vals[i + 1])
            for i in range(8):
                A(f"v_add_f32 {v(vals[i])}, {v(vals[i])}, {v(self.V_YU + 8 * tt + i)}")
            for i in range(0, 8, 2):
                rnd2(A, self.V_PK + 4 * tt + i // 2, vals[i], vals[i + 1])
            A(f"buffer_store_dwordx4 {v(self.V_PK + 4 * tt, 4)}, {v(V_L16)}, {WS}, {s(T + 2)} offen offset:{tt * 1024} sc1")
            xs.append(vals)
        stats_produce(A, xs[0], xs[1], V_T, self.V_SAD, T + 3)
        set_flag(A, flag_row(F_X1))


def row_helpers(A):
    def lane_reduce(r):
        for k in range(2):
            A(f"v_add_f32_dpp {v(r + k)}, {v(r + k)}, {v(r + k)} row_ror:4 row_mask:0xf bank_mask:0xf")
        for k in range(2):
            A(f"v_add_f32_dpp {v(r + k)}, {v(r + k)}, {v(r + k)} row_ror:8 row_mask:0xf bank_mask:0xf")
        for op in ("v_permlane32_swap_b32", "v_permlane16_swap_b32"):
            for k in range(2):
                A(f"v_mov_b32 {v(r + 2 + k)}, {v(r + k)}")
            for k in range(2):
                A(f"{op} {v(r + k)}, {v(r + 2 + k)}")
            for k in range(2):
                A(f"v_add_f32 {v(r + k)}, {v(r + k)}, {v(r + 2 + k)}")

    def sums(vals, r):
        A(f"v_pk_add_f32 {v(r + 4, 2)}, {v(vals[0], 2)}, {v(vals[2], 2)}")
        A(f"v_pk_mul_f32 {v(r + 2, 2)}, {v(vals[0], 2)}, {v(vals[0], 2)}")
        for i in range(2, len(vals), 2):
            if i >= 4:
                A(f"v_pk_add_f32 {v(r + 4, 2)}, {v(r + 4, 2)}, {v(vals[i], 2)}")
            A(f"v_pk_fma_f32 {v(r + 2, 2)}, {v(vals[i], 2)}, {v(vals[i], 2)}, {v(r + 2, 2)}")
        A(f"v_add_f32 {v(r)}, {v(r + 4)}, {v(r + 5)}")
        A(f"v_add_f32 {v(r + 1)}, {v(r + 2)}, {v(r + 3)}")

    def norm(vals, pks, st):
        for i in range(0, len(vals), 2):
            A(f"v_pk_add_f32 {v(vals[i], 2)}, {v(vals[i], 2)}, {v(st, 2)} op_sel_hi:[1,0] neg_lo:[0,1] neg_hi:[0,1]")
        for i in range(0, len(vals), 2):
            rnd2(A, V_T + (i & 2), vals[i], vals[i + 1])
        for i in range(0, len(vals), 2):
            A(f"v_pk_mul_f32 {v(vals[i], 2)}, {v(vals[i], 2)}, {v(st, 2)} op_sel:[0,1] op_sel_hi:[1,1]")
        for i in range(0, len(vals), 2):
            rnd2(A, pks[i // 2], vals[i], vals[i + 1])

    def store_pair(pk, vaddr, soff, off=0):
        A(f"v_permlane16_swap_b32 {v(pk)}, {v(pk + 2)}")
        A(f"v_permlane16_swap_b32 {v(pk + 1)}, {v(pk + 3)}")
        A(f"buffer_store_dwordx4 {v(pk, 4)}, {v(vaddr)}, {WS}, {s(soff)} offen offset:{off} sc1")

    return lane_reduce, sums, norm, store_pair


def numa_probe(A, cfg, S_LAY):
    if cfg.vr:
        lab = A.newlabel("vr")
        A(f"s_cmp_lg_u32 {s(S_MODE)}, 0")
        A(f"s_cbranch_scc1 {lab}")
        A("s_mov_b64 exec, 1")
        A(f"s_lshl_b32 {s(T)}, {s(S_LAY)}, 5")
        A(f"s_add_u32 {s(T)}, {s(T)}, {s(S_IDX)}")
        A(f"s_and_b32 {s(T + 1)}, {s(T)}, 7")
        A(f"s_lshl_b32 {s(T + 1)}, {s(T + 1)}, 14")
        A(f"s_lshl_b32 {s(T)}, {s(T)}, 7")
        A(f"s_add_u32 {s(T)}, {s(T)}, {s(T + 1)}")
        A(f"s_add_u32 {s(T)}, {s(T)}, {XP + 0x140000}")
        A(f"s_add_u32 {s(T + 1)}, {s(T)}, 0x2000")
        A(f"s_mov_b32 {s(T + 2)}, -1")
        A(f"s_mov_b32 {s(T + 3)}, -1")
        A(f"s_mov_b32 {s(S_I)}, {cfg.vr}")
        A.label(lab + "l")
        A(f"buffer_store_dword {v(V_ONE)}, {v(V_L16)}, {WS}, {s(T)} offen sc1")
        A(f"buffer_store_dword {v(V_ONE)}, {v(V_L16)}, {WS}, {s(T + 1)} offen sc1")
        A("s_waitcnt vmcnt(0)")
        for par in range(2):
            A(f"s_memtime {s(T + 4, 2)}")
            A("s_waitcnt lgkmcnt(0)")
            A(f"buffer_load_dword {v(V_FV)}, {v(V_L16)}, {WS}, {s(T + par)} offen sc1")
            A("s_waitcnt vmcnt(0)")
            A(f"s_memtime {s(T + 6, 2)}")
            A("s_waitcnt lgkmcnt(0)")
            A(f"s_sub_u32 {s(T + 6)}, {s(T + 6)}, {s(T + 4)}")
            A(f"s_min_u32 {s(T + 2 + par)}, {s(T + 2 + par)}, {s(T + 6)}")
        A(f"s_sub_u32 {s(S_I)}, {s(S_I)}, 1")
        A(f"s_cmp_lg_u32 {s(S_I)}, 0")
        A(f"s_cbranch_scc1 {lab}l")
        A(f"s_cmp_lt_u32 {s(T + 3)}, {s(T + 2)}")
        A(f"s_cselect_b32 {s(T)}, 0x10001, 1")
        A(f"v_mov_b32 {v(V_FV)}, {s(T)}")
        A(f"v_mov_b32 {v(V_T)}, 192")
        A(f"buffer_atomic_add {v(V_FV)}, {v(V_T)}, {s(SRD_DBG, 4)}, 0 offen sc1")
        A("s_mov_b64 exec, -1")
        A.label(lab)


def gen_r0(A, cfg, nwg, s_worker, sx, STR=12):
    lane_reduce, sums, norm, store_pair = row_helpers(A)
    V_ST, V_A = 24, 32
    V_RAW, V_RU, V_NP, V_SO1, V_XR = V_A, V_A + 40, V_A + 80, V_A + 100, V_A + 101
    S_Q = S_NL
    A(f"s_and_b32 {s(S_Q)}, {s(s_worker)}, 7")
    A(f"s_lshr_b32 {s(S_NS)}, {s(s_worker)}, 3")
    dq, g_, c_ = V_T, V_T + 1, V_T + 2
    A(f"v_lshrrev_b32 {v(dq)}, 4, {v(V_LANE)}")
    A(f"v_bfe_u32 {v(g_)}, {v(V_LANE)}, 2, 2")
    A(f"v_and_b32 {v(c_)}, 3, {v(V_LANE)}")
    A(f"s_and_b32 {s(T + 1)}, {s(S_Q)}, 3")
    A(f"s_lshl_b32 {s(T)}, {s(S_Q)}, 8")
    A(f"v_lshlrev_b32 {v(V_SO1)}, 11, {v(dq)}")
    A(f"v_lshrrev_b32 {v(V_T + 3)}, 1, {v(dq)}")
    A(f"v_lshlrev_b32 {v(V_SO1)}, 11, {v(V_T + 3)}")
    A(f"v_and_b32 {v(V_T + 3)}, 1, {v(dq)}")
    A(f"v_lshl_add_u32 {v(V_SO1)}, {v(V_T + 3)}, 12, {v(V_SO1)}")
    A(f"v_add_u32 {v(V_T + 3)}, {s(T + 1)}, {v(g_)}")
    A(f"v_and_b32 {v(V_T + 3)}, 3, {v(V_T + 3)}")
    A(f"v_lshl_add_u32 {v(V_SO1)}, {v(V_T + 3)}, 6, {v(V_SO1)}")
    A(f"v_lshl_add_u32 {v(V_SO1)}, {v(c_)}, 4, {v(V_SO1)}")
    A(f"v_add_u32 {v(V_SO1)}, {s(T)}, {v(V_SO1)}")
    A(f"s_lshl_b32 {s(T)}, {s(S_Q)}, 2")
    A(f"v_add_u32 {v(V_T + 3)}, {s(T)}, {v(c_)}")
    A(f"v_mul_u32_u24 {v(V_XR)}, 1280, {v(V_T + 3)}")
    A(f"v_lshl_add_u32 {v(V_XR)}, {v(dq)}, 5, {v(V_XR)}")
    A(f"v_lshl_add_u32 {v(V_XR)}, {v(g_)}, 3, {v(V_XR)}")
    make_srd(A, SRD_W, P_X, 2048 * 1280)
    S_Z = S_DEF
    A(f"s_mov_b32 {s(S_Z)}, 0")

    def load(raw, seg_reg):
        A(f"s_mul_i32 {s(T + 2)}, {s(seg_reg)}, {32 * 1280}")
        for G in range(10):
            A(f"buffer_load_dwordx2 {v(raw + 2 * G, 2)}, {v(V_XR)}, {s(SRD_W, 4)}, {s(T + 2)} offen offset:{G * 128}")

    def body(raw, nxt, first):
        A(f"s_add_u32 {s(T + 6)}, {s(S_NS)}, {STR}")
        A(f"s_min_u32 {s(T + 6)}, {s(T + 6)}, 63")
        load(nxt, T + 6)
        A(f"s_mul_i32 {s(T + 4)}, {s(S_NS)}, {XSEG}")
        A(f"s_add_u32 {s(T + 4)}, {s(T + 4)}, {X0R}")
        A(f"s_mul_i32 {s(T + 5)}, {s(S_NS)}, {XSEGS}")
        A(f"s_add_u32 {s(T + 5)}, {s(T + 5)}, {XIN}")
        A("s_waitcnt vmcnt(10)")
        if not first:
            flag_store(A, S_FADDR)
        for i in range(20):
            A(f"v_lshlrev_b32 {v(V_RU + 2 * i)}, 16, {v(raw + i)}")
            A(f"v_and_b32 {v(V_RU + 2 * i + 1)}, 0xffff0000, {v(raw + i)}")
        vals = [V_RU + i for i in range(40)]
        sums(vals, V_ST)
        lane_reduce(V_ST)
        finish_stats(A, V_ST, V_ST + 1, V_T)
        norm(vals, [V_NP + i for i in range(20)], V_ST)
        for p in range(5):
            A(f"s_add_u32 {s(T + 3)}, {s(T + 5)}, {p * 8192}")
            store_pair(V_NP + 4 * p, V_SO1, T + 3)
        for p in range(5):
            A(f"s_add_u32 {s(T + 3)}, {s(T + 4)}, {p * 8192}")
            store_pair(raw + 4 * p, V_SO1, T + 3)
        flag_addr(A, S_FADDR, flag_row(F_XIN), S_Q, S_Z, S_NS)
        A(f"s_add_u32 {s(S_NS)}, {s(S_NS)}, {STR}")

    RA, RB = V_RAW, V_RAW + 20
    load(RA, S_NS)
    body(RA, RB, True)
    init_barrier_wait(A, V_T, nwg, cfg)
    flag_store(A, S_FADDR)
    body(RB, RA, True)
    A.label("R0_LOOP" + sx)
    body(RA, RB, False)
    A(f"s_cmp_ge_u32 {s(S_NS)}, 64")
    A(f"s_cbranch_scc1 R0_END{sx}")
    body(RB, RA, False)
    A(f"s_cmp_lt_u32 {s(S_NS)}, 64")
    A(f"s_cbranch_scc1 R0_LOOP{sx}")
    A.label("R0_END" + sx)
    A("s_waitcnt vmcnt(0)")
    flag_store(A, S_FADDR)


def gen_w4(A, cfg, nwg):
    V_IN, V_ACC, V_RD, V_XX, V_XU, V_PK = 16, 112, 144, 176, 184, 200
    V_SAD, V_OA, V_LW, V_LR = 204, 205, 206, 207
    S_J, S_TT = S_K, S_K + 1
    SRD_O = 72
    A.label("ROLE_W4")
    base_setup(A)
    if cfg.wgp2:
        A(f"v_min_u32 {v(V_FO)}, 47, {v(V_LANE)}")
    else:
        A(f"v_min_u32 {v(V_FO)}, 11, {v(V_LANE)}")
        A(f"s_mul_i32 {s(T)}, {s(S_WAVE)}, 12")
        A(f"v_add_u32 {v(V_FO)}, {s(T)}, {v(V_FO)}")
    A(f"v_lshlrev_b32 {v(V_FO)}, 2, {v(V_FO)}")
    A(f"s_and_b32 {s(T)}, {s(S_WAVE)}, 1")
    A(f"s_lshl_b32 {s(S_J)}, {s(S_ROLE)}, 1")
    A(f"s_add_u32 {s(S_J)}, {s(S_J)}, {s(T)}")
    A(f"s_lshr_b32 {s(S_TT)}, {s(S_WAVE)}, 1")
    A(f"v_and_b32 {v(V_T)}, 15, {v(V_LANE)}")
    A(f"v_lshlrev_b32 {v(V_SAD)}, 3, {v(V_T)}")
    A(f"s_lshl_b32 {s(T)}, {s(S_TT)}, 4")
    A(f"v_add_u32 {v(V_T)}, {s(T)}, {v(V_T)}")
    A(f"v_mul_u32_u24 {v(V_OA)}, 1280, {v(V_T)}")
    A(f"v_lshrrev_b32 {v(V_T)}, 4, {v(V_LANE)}")
    A(f"v_lshl_add_u32 {v(V_OA)}, {v(V_T)}, 3, {v(V_OA)}")
    A(f"s_lshl_b32 {s(T)}, {s(S_J)}, 6")
    A(f"v_add_u32 {v(V_OA)}, {s(T)}, {v(V_OA)}")
    make_srd(A, SRD_O, P_OUT, 2048 * 1280)
    zero_flags(A, flag_row(F_XIN), S_IDX, layers=(1,))
    init_barrier_arrive(A, V_T)
    if cfg.late_w:
        init_barrier_wait(A, V_T, nwg, cfg)
        for _ in range(cfg.late_w - 1 if cfg.late_w != 9 else 0):
            A("s_sleep 64")
        if cfg.late_w == 9:
            A(f"s_mov_b32 {s(T + 7)}, {flag_row(F_K)}")
            A(f"v_mov_b32 {v(V_T + 4)}, 0")
            flag_block(A, T + 7, vo=V_T + 4)
    for _ in range(cfg.dly_w):
        A("s_sleep 64")
    WL = WLoader(A, V_T, T + 3)
    A(f"s_mul_i32 {s(S_C0)}, {s(S_WAVE)}, {384 * 1280}")
    A(f"s_lshl_b32 {s(T)}, {s(S_ROLE)}, 7")
    A(f"s_add_u32 {s(S_C0)}, {s(S_C0)}, {s(T)}")
    WL.add(lambda: make_srd(A, SRD_W, P_W4, 1536 * 1280), S_C0, 1280, 4, 12, lambda tau, j: ("a", (tau * 12 + j) * 4))
    WL.emit(V_LANE)
    A("s_barrier")
    if not cfg.late_w:
        init_barrier_wait(A, V_T, nwg, cfg)
    def inreg(st_, b):
        if st_ == 0:
            return v(V_IN + 4 * b, 4)
        return a(192 + 4 * b, 4) if b < 16 else v(208 + 4 * (b - 16), 4)
    XXS = (V_XX, 240)
    S_CH = S_K + 2
    A(f"s_lshl_b32 {s(S_CH)}, {s(S_J)}, 1")
    A(f"s_add_u32 {s(S_CH)}, {s(S_CH)}, {s(S_TT)}")
    A(f"s_lshl_b32 {s(S_CH)}, {s(S_CH)}, 10")

    def loads(st_, rl, rs):
        L = []
        L.append(f"s_lshl_b32 {s(T + 6)}, {s(rl)}, 6")
        L.append(f"s_add_u32 {s(T + 6)}, {s(T + 6)}, {s(rs)}")
        L.append(f"s_mul_i32 {s(T + 5)}, {s(T + 6)}, {GSEG}")
        L.append(f"s_mul_i32 {s(T)}, {s(S_WAVE)}, 24576")
        L.append(f"s_add_u32 {s(T + 5)}, {s(T + 5)}, {s(T)}")
        L.append(f"s_add_u32 {s(T + 5)}, {s(T + 5)}, {GB}")
        for b in range(24):
            if b % 4 == 0:
                L.append(f"s_add_u32 {s(T + 3)}, {s(T + 5)}, {b * 1024}")
            L.append(f"buffer_load_dwordx4 {inreg(st_, b)}, {v(V_L16)}, {WS}, {s(T + 3)} offen offset:{(b % 4) * 1024} sc1")
        L.append(f"s_mul_i32 {s(T)}, {s(T + 6)}, {XSEGS}")
        L.append(f"s_add_u32 {s(T)}, {s(T)}, {s(S_CH)}")
        L.append(f"s_add_u32 {s(T)}, {s(T)}, {X1B}")
        L.append(f"buffer_load_dwordx4 {v(XXS[st_], 4)}, {v(V_L16)}, {WS}, {s(T)} offen sc1")
        L.append(f"s_mul_i32 {s(T)}, {s(T + 6)}, {XSEG}")
        L.append(f"s_add_u32 {s(T)}, {s(T)}, {s(S_CH)}")
        L.append(f"s_add_u32 {s(T)}, {s(T)}, {XM}")
        L.append(f"buffer_load_dwordx4 {v(XXS[st_] + 4, 4)}, {v(V_P16)}, {WS}, {s(T)} offen sc1")
        return L

    def acc(tau, tt):
        return V_ACC + (tt * 4 + tau) * 4

    def kstep(st_, j, fill=None, rate=0):
        for tt in range(2):
            for tau in range(4):
                c = "0" if j == 0 else v(acc(tau, tt), 4)
                A(f"v_mfma_f32_16x16x32_bf16 {v(acc(tau, tt), 4)}, {a((tau * 12 + j) * 4, 4)}, {inreg(st_, j * 2 + tt)}, {c}")
                for _ in range(rate):
                    if fill:
                        A(fill.pop(0))

    def body(st_, sx, other):
        A.label("W4_" + sx)
        A(f"s_add_u32 {s(T + 6)}, {s(S_I)}, 1")
        A(f"s_min_u32 {s(T + 6)}, {s(T + 6)}, 127")
        item_of(A, T + 6, S_NL, S_NS, cfg.LAG + cfg.dlt, 0, T)
        row_of(A, T + 7, S_NL, S_NS, flag_row(F_G))
        A(f"buffer_load_dword {v(V_FV)}, {v(V_FO)}, {WS}, {s(T + 7)} offen sc1")
        A(f"v_add_u32 {v(V_LW)}, {s(S_BUF)}, {v(V_LW0)}")
        A(f"v_add_u32 {v(V_LR)}, {s(S_BUF)}, {v(V_LR0)}")
        JC = 5
        for j in range(JC + 1):
            A(f"s_waitcnt vmcnt({25 - 2 * j})")
            kstep(st_, j)
        nof, nod, join = A.newlabel("nof"), A.newlabel("nod"), A.newlabel("join")
        A("s_waitcnt vmcnt(0)")
        A(f"s_cmp_eq_u32 {s(S_FADDR)}, {DUMMY}")
        A(f"s_cbranch_scc1 {nof}")
        flag_store(A, S_FADDR)
        A(f"s_mov_b32 {s(S_FADDR)}, {DUMMY}")
        A.label(nof)
        A(f"v_cmp_eq_u32 vcc, 0, {v(V_FV)}")
        A(f"s_mov_b32 {s(S_DEF)}, 1")
        A(f"s_cbranch_vccnz {nod}")
        A(f"s_mov_b32 {s(S_DEF)}, 0")
        if cfg.wgp2:
            rdy_set(A, 250, 1, T)
        fill = loads(1 - st_, S_NL, S_NS)
        for j in range(JC + 1, 12):
            kstep(st_, j, fill, 1)
        while fill:
            A(fill.pop(0))
        A(f"s_branch {join}")
        A.label(nod)
        for j in range(JC + 1, 12):
            kstep(st_, j)
        A.label(join)
        for d in range(4):
            tt, p = d >> 1, d & 1
            for k in range(2):
                A(f"ds_write_b128 {v(V_LW)}, {v(acc(2 * p + k, tt), 4)} offset:{d * 8192 + k * 1024}")
        unpack8(A, V_XU, XXS[st_])
        unpack8(A, V_XU + 8, XXS[st_] + 4)
        A("s_waitcnt lgkmcnt(0)")
        A("s_barrier")
        for i in range(8):
            A(f"ds_read_b128 {v(V_RD + 4 * i, 4)}, {v(V_LR)} offset:{i * 1024}")
        A("s_waitcnt lgkmcnt(0)")
        for i in range(0, 8, 2):
            A(f"v_pk_add_f32 {v(V_RD + i, 2)}, {v(V_RD + i, 2)}, {v(V_RD + 8 + i, 2)}")
            A(f"v_pk_add_f32 {v(V_RD + 16 + i, 2)}, {v(V_RD + 16 + i, 2)}, {v(V_RD + 24 + i, 2)}")
        for i in range(0, 8, 2):
            A(f"v_pk_add_f32 {v(V_RD + i, 2)}, {v(V_RD + i, 2)}, {v(V_RD + 16 + i, 2)}")
        X = [V_RD + i for i in range(8)]
        for i in range(0, 8, 2):
            rnd2(A, V_T, X[i], X[i + 1])
        for i in range(0, 8, 2):
            A(f"v_pk_add_f32 {v(X[i], 2)}, {v(X[i], 2)}, {v(V_XU + i, 2)}")
        for i in range(0, 8, 2):
            rnd2(A, V_T, X[i], X[i + 1])
        for i in range(0, 8, 2):
            A(f"v_pk_add_f32 {v(X[i], 2)}, {v(X[i], 2)}, {v(V_XU + 8 + i, 2)}")
        for i in range(0, 8, 2):
            rnd2(A, V_PK + i // 2, X[i], X[i + 1])
        l1, l2 = A.newlabel("w4o"), A.newlabel("w4n")
        A(f"s_cmp_lg_u32 {s(S_L)}, 0")
        A(f"s_cbranch_scc1 {l1}")
        A(f"s_mul_i32 {s(T + 2)}, {s(S_S)}, {XSEGS}")
        A(f"s_add_u32 {s(T + 2)}, {s(T + 2)}, {XIN + 64 * XSEGS}")
        A(f"s_add_u32 {s(T + 3)}, {s(T + 2)}, {s(S_CH)}")
        A(f"buffer_store_dwordx4 {v(V_PK, 4)}, {v(V_P16)}, {WS}, {s(T + 3)} offen sc1")
        t = V_T
        A(f"v_add_f32 {v(t)}, {v(X[0])}, {v(X[1])}")
        A(f"v_mul_f32 {v(t + 1)}, {v(X[0])}, {v(X[0])}")
        for i in range(1, 8):
            if i >= 2:
                A(f"v_add_f32 {v(t)}, {v(t)}, {v(X[i])}")
            A(f"v_fmac_f32 {v(t + 1)}, {v(X[i])}, {v(X[i])}")
        for op in ("v_permlane32_swap_b32", "v_permlane16_swap_b32"):
            A(f"v_mov_b32 {v(t + 2)}, {v(t)}")
            A(f"v_mov_b32 {v(t + 3)}, {v(t + 1)}")
            A(f"{op} {v(t)}, {v(t + 2)}")
            A(f"{op} {v(t + 1)}, {v(t + 3)}")
            A(f"v_add_f32 {v(t)}, {v(t)}, {v(t + 2)}")
            A(f"v_add_f32 {v(t + 1)}, {v(t + 1)}, {v(t + 3)}")
        A(f"s_lshl_b32 {s(T + 3)}, {s(S_J)}, 8")
        A(f"s_lshl_b32 {s(T)}, {s(S_TT)}, 7")
        A(f"s_add_u32 {s(T + 3)}, {s(T + 3)}, {s(T)}")
        A(f"s_add_u32 {s(T + 3)}, {s(T + 3)}, {s(T + 2)}")
        A(f"s_add_u32 {s(T + 3)}, {s(T + 3)}, 40960")
        A("s_mov_b64 exec, 0xffff")
        A(f"buffer_store_dwordx2 {v(t, 2)}, {v(V_SAD)}, {WS}, {s(T + 3)} offen sc1")
        A("s_mov_b64 exec, -1")
        A(f"s_mov_b32 {s(T + 6)}, 1")
        flag_addr(A, S_FADDR, flag_row(F_XIN), S_IDX, T + 6, S_S)
        A("s_waitcnt vmcnt(0)")
        flag_store(A, S_FADDR)
        A(f"s_mov_b32 {s(S_FADDR)}, {DUMMY}")
        A(f"s_branch {l2}")
        A.label(l1)
        A(f"s_mul_i32 {s(T + 2)}, {s(S_S)}, {32 * 1280}")
        A(f"buffer_store_dwordx2 {v(V_PK, 2)}, {v(V_OA)}, {s(SRD_O, 4)}, {s(T + 2)} offen")
        A(f"buffer_store_dwordx2 {v(V_PK + 2, 2)}, {v(V_OA)}, {s(SRD_O, 4)}, {s(T + 2)} offen offset:32")
        A("s_waitcnt vmcnt(2)")
        A.label(l2)
        A(f"s_add_u32 {s(S_I)}, {s(S_I)}, 1")
        A(f"s_cmp_eq_u32 {s(S_I)}, 128")
        A("s_cbranch_scc1 W4_END")
        A(f"s_xor_b32 {s(S_BUF)}, {s(S_BUF)}, 0x8000")
        A(f"s_mov_b32 {s(S_L)}, {s(S_NL)}")
        A(f"s_mov_b32 {s(S_S)}, {s(S_NS)}")
        A(f"s_cmp_eq_u32 {s(S_DEF)}, 0")
        A(f"s_cbranch_scc1 W4_{other}")
        row_of(A, T + 7, S_L, S_S, flag_row(F_G))
        if cfg.wgp2:
            wg_wait(A, cfg, 250, T + 7, T)
        else:
            flag_block(A, T + 7, sleep=1)
        for x in loads(1 - st_, S_L, S_S):
            A(x)
        A(f"s_branch W4_{other}")

    V_LW0, V_LR0 = 248, 249
    A(f"s_lshl_b32 {s(T)}, {s(S_WAVE)}, 11")
    A(f"v_add_u32 {v(V_LW0)}, {s(T)}, {v(V_L16)}")
    A(f"s_lshl_b32 {s(T)}, {s(S_WAVE)}, 13")
    A(f"v_add_u32 {v(V_LR0)}, {s(T)}, {v(V_L16)}")
    A(f"s_mov_b32 {s(S_I)}, 0")
    A(f"s_mov_b32 {s(S_BUF)}, 0")
    if cfg.wgp2:
        rdy_init(A, cfg, 250, 65536)
    A(f"s_mov_b32 {s(S_FADDR)}, {DUMMY}")
    item_of(A, S_I, S_L, S_S, cfg.LAG + cfg.dlt, 0, T)
    row_of(A, T + 7, S_L, S_S, flag_row(F_G))
    flag_block(A, T + 7)
    for x in loads(0, S_L, S_S):
        A(x)
    body(0, "A", "B")
    body(1, "B", "A")
    A.label("W4_END")
    if cfg.timing == 6:
        A("s_memrealtime s[98:99]")
        A("s_waitcnt lgkmcnt(0)")
        A("s_sub_u32 s98, s98, s96")
        A(f"v_mov_b32 {v(V_T)}, s98")
        A(f"v_mov_b32 {v(V_T + 1)}, 28")
        A("s_mov_b64 exec, 1")
        A(f"buffer_store_dword {v(V_T)}, {v(V_T + 1)}, {s(SRD_DBG, 4)}, 0 offen")
    A("s_endpgm")


def gen_att(A, cfg, nwg):
    V_Q, V_K, V_V, V_KP, V_VM = 16, 64, 112, 160, 172
    V_SX, V_SM, V_P = 184, 196, 212
    V_FO2, V_L8, V_NINF = 228, 229, 230
    V_PK = 232
    S_H, S_XG, S_FX, S_HO = S_K, S_K + 1, S_K + 2, S_K + 3
    S_MK = 72
    S_ML = 80
    S_SC, S_L2E = 84, 85
    A.label("ROLE_ATT")
    S_PAR = 86
    if cfg.a2 == 1:
        A(f"s_lshr_b32 {s(S_PAR)}, {s(S_ROLE)}, 4")
        A(f"s_and_b32 {s(S_ROLE)}, {s(S_ROLE)}, 15")
    base_setup(A)
    S_FO = 87
    if cfg.a2 == 2:
        A(f"s_mov_b32 {s(S_H)}, {s(S_ROLE)}")
        A(f"s_and_b32 {s(S_L)}, {s(S_WAVE)}, 1")
        A(f"s_lshr_b32 {s(S_PAR)}, {s(S_WAVE)}, 1")
        A(f"s_lshr_b32 {s(S_FO)}, {s(S_H)}, 3")
        A(f"s_lshl_b32 {s(S_FO)}, {s(S_FO)}, 5")
        A(f"s_and_b32 {s(T)}, {s(S_H)}, 7")
        A(f"s_add_u32 {s(S_FO)}, {s(S_FO)}, {s(T)}")
    elif cfg.attl:
        A(f"s_lshr_b32 {s(S_H)}, {s(S_ROLE)}, 1")
        A(f"s_lshl_b32 {s(S_H)}, {s(S_H)}, 2")
        A(f"s_add_u32 {s(S_H)}, {s(S_H)}, {s(S_WAVE)}")
        A(f"s_and_b32 {s(S_L)}, {s(S_ROLE)}, 1")
    else:
        A(f"s_lshr_b32 {s(S_H)}, {s(S_IDX)}, 1")
        A(f"s_and_b32 {s(S_L)}, {s(S_IDX)}, 1")
    A(f"v_lshlrev_b32 {v(V_L8)}, 3, {v(V_LANE)}")
    if cfg.lin:
        A(f"v_and_b32 {v(V_L8)}, 0x300, {v(V_L16)}")
        A(f"v_add_u32 {v(V_L8)}, {v(V_L8)}, {v(V_L16)}")
    A(f"v_mov_b32 {v(V_NINF)}, 0xff800000")
    A(f"s_mov_b32 {s(S_ML)}, -1")
    A(f"s_mov_b32 {s(S_ML + 1)}, 0")
    A(f"s_mov_b32 {s(S_SC)}, {f32(192 ** -0.5)}")
    A(f"s_mov_b32 {s(S_L2E)}, {f32(math.log2(math.e))}")
    A(f"v_min_u32 {v(V_T)}, 8, {v(V_LANE)}")
    A(f"v_mul_u32_u24 {v(V_T + 1)}, 86, {v(V_T)}")
    A(f"v_lshrrev_b32 {v(V_T + 1)}, 8, {v(V_T + 1)}")
    A(f"v_mul_u32_u24 {v(V_T + 2)}, 3, {v(V_T + 1)}")
    A(f"v_sub_u32 {v(V_T)}, {v(V_T)}, {v(V_T + 2)}")
    A(f"s_mul_i32 {s(T)}, {s(S_H)}, 3")
    A(f"v_add_u32 {v(V_T)}, {s(T)}, {v(V_T)}")
    A(f"v_lshlrev_b32 {v(V_FO)}, 2, {v(V_T)}")
    A(f"v_lshl_add_u32 {v(V_FO)}, {v(V_T + 1)}, 16, {v(V_FO)}")
    A(f"v_min_u32 {v(V_FO2)}, {2 if cfg.c2 else 11}, {v(V_LANE)}")
    A(f"v_lshlrev_b32 {v(V_FO2)}, 2, {v(V_FO2)}")
    A(f"v_lshrrev_b32 {v(V_T)}, 4, {v(V_LANE)}")
    A(f"v_lshlrev_b32 {v(V_T)}, 2, {v(V_T)}")
    A(f"v_and_b32 {v(V_T + 1)}, 15, {v(V_LANE)}")
    for r in range(4):
        A(f"v_add_u32 {v(V_T + 2)}, {r}, {v(V_T)}")
        A(f"v_cmp_le_u32 {s(S_MK + 2 * r, 2)}, {v(V_T + 2)}, {v(V_T + 1)}")
    A(f"s_mul_i32 {s(S_HO)}, {s(S_H)}, 12288")
    A(f"s_mul_i32 {s(T)}, {s(S_L)}, {cfg.LAG}")
    A(f"s_mul_i32 {s(S_XG)}, {s(T)}, {XG_STEP}")
    A(f"s_mul_i32 {s(T + 1)}, {s(S_H)}, {XG_HEAD}")
    A(f"s_add_u32 {s(S_XG)}, {s(S_XG)}, {s(T + 1)}")
    A(f"s_mul_i32 {s(T + 1)}, {s(S_L)}, 9216")
    A(f"s_add_u32 {s(S_XG)}, {s(S_XG)}, {s(T + 1)}")
    A(f"s_add_u32 {s(S_XG)}, {s(S_XG)}, {XG + 3072}")
    A(f"s_mul_i32 {s(S_FX)}, {s(T)}, {FXG_STEP}")
    A(f"s_lshl_b32 {s(T + 1)}, {s(S_H)}, 6")
    A(f"s_add_u32 {s(S_FX)}, {s(S_FX)}, {s(T + 1)}")
    A(f"s_add_u32 {s(S_FX)}, {s(S_FX)}, {FXG}")
    if cfg.c2:
        A(f"s_mul_i32 {s(S_XG)}, {s(S_L)}, {64 * XG2_STEP}")
        A(f"s_mul_i32 {s(T + 1)}, {s(S_H)}, {XG2_HEAD}")
        A(f"s_add_u32 {s(S_XG)}, {s(S_XG)}, {s(T + 1)}")
        A(f"s_add_u32 {s(S_XG)}, {s(S_XG)}, {XG}")
        A(f"s_mul_i32 {s(S_FX)}, {s(S_L)}, {64 * FXG2_STEP}")
        A(f"s_lshl_b32 {s(T + 1)}, {s(S_H)}, 5")
        A(f"s_add_u32 {s(S_FX)}, {s(S_FX)}, {s(T + 1)}")
        A(f"s_add_u32 {s(S_FX)}, {s(S_FX)}, {FXG}")
    if cfg.xga == 4:
        A(f"s_mul_i32 {s(T + 1)}, {s(T)}, {XG_STEP}")
        A(f"s_sub_u32 {s(S_XG)}, {s(S_XG)}, {s(T + 1)}")
        A(f"s_mov_b32 {s(S_FX)}, {s(T)}")
        A(f"v_min_u32 {v(V_T)}, 17, {v(V_LANE)}")
        A(f"v_lshrrev_b32 {v(V_T + 1)}, 1, {v(V_T)}")
        A(f"v_lshlrev_b32 {v(V_T + 1)}, 10, {v(V_T + 1)}")
        A(f"v_and_b32 {v(V_T + 2)}, 1, {v(V_T)}")
        A(f"v_lshl_add_u32 {v(V_T + 1)}, {v(V_T + 2)}, 7, {v(V_T + 1)}")
        A(f"v_lshlrev_b32 {v(V_T + 2)}, 8, {v(V_T)}")
        A(f"v_add_u32 {v(V_T + 2)}, {3072 - 6 * 256}, {v(V_T + 2)}")
        A(f"v_cmp_gt_u32 vcc, 6, {v(V_T)}")
        A(f"v_cndmask_b32 {v(V_FO2)}, {v(V_T + 2)}, {v(V_T + 1)}, vcc")
    init_barrier_arrive(A, V_T)
    if cfg.a2 == 1:
        A(f"s_cmp_eq_u32 {s(S_PAR)}, 0")
        A("s_cbranch_scc1 ATT_R0")
        init_barrier_wait(A, V_T, nwg, cfg)
        A(f"s_mov_b32 {s(S_S)}, 1")
        A(f"s_add_u32 {s(S_XG)}, {s(S_XG)}, {XG2_STEP}")
        A(f"s_add_u32 {s(S_FX)}, {s(S_FX)}, {FXG2_STEP}")
        A("s_branch ATT_LOOP")
        A.label("ATT_R0")
    if cfg.a2 == 2:
        A(f"s_mov_b32 {s(T + 6)}, {s(S_IDX)}")
        gen_r0(A, cfg, nwg, T + 6, "A", 16)
        A(f"s_mov_b32 {s(S_S)}, {s(S_PAR)}")
        A(f"s_mul_i32 {s(T)}, {s(S_PAR)}, {XG2_STEP}")
        A(f"s_add_u32 {s(S_XG)}, {s(S_XG)}, {s(T)}")
        A(f"s_mul_i32 {s(T)}, {s(S_PAR)}, {FXG2_STEP}")
        A(f"s_add_u32 {s(S_FX)}, {s(S_FX)}, {s(T)}")
    else:
        A(f"s_add_u32 {s(T + 6)}, {s(S_IDX)}, 32")
        gen_r0(A, cfg, nwg, T + 6, "A")
        A(f"s_mov_b32 {s(S_S)}, 0")
    A(f"v_mov_b32 v231, 0")
    st = Stamper(A, cfg, 88, 8)
    A(f"s_mov_b32 s83, {s(S_GID)}")
    st.init()
    A.label("ATT_LOOP")
    row_of(A, T + 7, S_L, S_S, flag_row(F_Q))
    A(f"s_mul_i32 {s(T + 6)}, {s(S_S)}, {QKV_SEG}")
    A(f"s_add_u32 {s(T + 6)}, {s(T + 6)}, {s(S_HO)}")
    V_FN = 231
    if cfg.asm:
        A(f"v_cmp_eq_u32 vcc, 0, {v(V_FN)}")
        A("s_cbranch_vccz ATT_RDY")
    flag_block(A, T + 7, sleep=4)
    A.label("ATT_RDY")
    st(0)
    nld = 0
    for base, buf in ((V_Q, QX), (V_K, KX), (V_V, VX)):
        for b in range(12):
            if b % 4 == 0:
                A(f"s_add_u32 {s(T + 3)}, {s(T + 6)}, {buf + b * 1024}")
            if cfg.aw and nld >= cfg.aw and nld % 2 == 0:
                A(f"s_waitcnt vmcnt({cfg.aw - 2})")
            A(f"buffer_load_dwordx4 {v(base + 4 * b, 4)}, {v(V_L16)}, {WS}, {s(T + 3)} offen offset:{(b % 4) * 1024} {'nt ' if cfg.ant else ''}sc1")
            nld += 1
    if cfg.touch & 1:
        A(f"v_lshlrev_b32 {v(V_PK)}, 7, {v(V_LANE)}")
        A(f"s_add_u32 {s(T + 3)}, {s(T + 6)}, {OX}")
        A(f"buffer_load_dword {v(V_PK + 1)}, {v(V_PK)}, {WS}, {s(T + 3)} offen sc1")
        A(f"s_add_u32 {s(T + 3)}, {s(T + 6)}, {OX + 4096}")
        A(f"buffer_load_dword {v(V_PK + 1)}, {v(V_PK)}, {WS}, {s(T + 3)} offen sc1")
    A(f"s_waitcnt vmcnt({14 if cfg.touch & 1 else 12})")
    st(1)
    combos = ((0, 0), (1, 0), (1, 1))
    for j in range(6):
        for ci, (qt, kt) in enumerate(combos):
            c = "0" if j == 0 else v(V_SX + 4 * ci, 4)
            A(f"v_mfma_f32_16x16x32_bf16 {v(V_SX + 4 * ci, 4)}, {v(V_K + (j * 2 + kt) * 4, 4)}, {v(V_Q + (j * 2 + qt) * 4, 4)}, {c}")

    def roundscale(vals):
        for i in range(0, len(vals), 2):
            rnd2(A, V_T, vals[i], vals[i + 1])
        for x in vals:
            A(f"v_mul_f32 {v(x)}, {s(S_SC)}, {v(x)}")
        for i in range(0, len(vals), 2):
            rnd2(A, V_T, vals[i], vals[i + 1])
    roundscale([V_SX + i for i in range(12)])
    for ci in (0, 2):
        for r in range(4):
            x = V_SX + 4 * ci + r
            A(f"v_cndmask_b32 {v(x)}, {v(V_NINF)}, {v(x)}, {s(S_MK + 2 * r, 2)}")
    V_MX, V_LS, V_W = 240, 242, 244
    XQ = ([V_SX + i for i in range(4)], [V_SX + 4 + i for i in range(8)])

    def weave(fa, fb):
        ca, cb = Capture(), Capture()
        fa(ca)
        fb(cb)
        while ca.l or cb.l:
            if cb.l:
                A(cb.l.pop(0))
            if ca.l:
                A(ca.l.pop(0))
    if cfg.a3:
        def pre(qt):
            def f(A):
                X, m, t2 = XQ[qt], V_MX + qt, V_W + 4 * qt
                A(f"v_max3_f32 {v(m)}, {v(X[0])}, {v(X[1])}, {v(X[2])}")
                for i in range(3, len(X) - 1, 2):
                    A(f"v_max3_f32 {v(m)}, {v(m)}, {v(X[i])}, {v(X[i + 1])}")
                A(f"v_max_f32 {v(m)}, {v(m)}, {v(X[-1])}")
                xreduce(A, "v_max_f32", m, t2)
                A(f"v_mul_f32 {v(t2)}, {s(S_L2E)}, {v(m)}")
                for x in X:
                    A(f"v_fma_f32 {v(x)}, {v(x)}, {s(S_L2E)}, -{v(t2)}")
                for x in X:
                    A(f"v_exp_f32 {v(x)}, {v(x)}")
                A(f"v_add_f32 {v(V_LS + qt)}, {v(X[0])}, {v(X[1])}")
                for x in X[2:]:
                    A(f"v_add_f32 {v(V_LS + qt)}, {v(V_LS + qt)}, {v(x)}")
            return f
        weave(pre(0), pre(1))
        A(f"v_mov_b32 {v(V_P + 3)}, 0")
        A(f"v_mov_b32 {v(V_P + 13)}, 0")
        A(f"v_mov_b32 {v(V_P + 14)}, 0")
        A(f"s_add_u32 {s(T + 6)}, {s(T + 6)}, {OX}")
        flag_addr(A, S_FADDR, flag_row(F_O), S_FO)
    if cfg.xga != 4:
        sv = cfg.fsl
        if cfg.asl >= 0:
            cfg.fsl = cfg.asl
        st(2)
        if cfg.timing == 2:
            A("s_waitcnt vmcnt(0)")
            st(7)
        flag_block(A, S_FX, vo=V_FO2, sleep=cfg.att_sleep)
        st(3)
        cfg.fsl = sv
        for j in range(3):
            A(f"buffer_load_dwordx4 {v(V_KP + 4 * j, 4)}, {v(V_L16)}, {WS}, {s(S_XG)} offen offset:{j * 1024} sc1")
        A(f"s_add_u32 {s(T + 3)}, {s(S_XG)}, 3072")
        if cfg.c2:
            for i in range(3):
                A(f"buffer_load_dwordx4 {v(V_VM + 4 * i, 4)}, {v(V_L16)}, {WS}, {s(T + 3)} offen offset:{i * 1024} sc1")
            if cfg.asm:
                A(f"buffer_load_dword {v(V_FN)}, {v(V_FO)}, {WS}, {s(T + 7)} offen offset:1024 sc1")
            A(f"s_waitcnt vmcnt({4 if cfg.asm else 3})")
        else:
            for i in range(6):
                A(f"buffer_load_dwordx2 {v(V_VM + 2 * i, 2)}, {v(V_L8)}, {WS}, {s(T + 3)} offen offset:{i * 512} sc1")
            A("s_waitcnt vmcnt(6)")
    else:
        A(f"s_and_b32 {s(T + 4)}, {s(S_FX)}, 15")
        A(f"s_mul_i32 {s(T + 4)}, {s(T + 4)}, {XG_STEP}")
        A(f"s_add_u32 {s(T + 4)}, {s(T + 4)}, {s(S_XG)}")
        A(f"s_add_u32 {s(T + 3)}, {s(T + 4)}, 3072")
        A(f"s_lshr_b32 {s(T + 5)}, {s(S_FX)}, 4")
        A(f"s_and_b32 {s(T + 5)}, {s(T + 5)}, 1")
        top = A.newlabel("xp")
        A.label(top)
        A(f"buffer_load_dword {v(V_FV)}, {v(V_FO2)}, {WS}, {s(T + 4)} offen sc1")
        A("s_waitcnt vmcnt(0)")
        A(f"v_and_b32 {v(V_FV)}, 1, {v(V_FV)}")
        A(f"v_cmp_ne_u32 vcc, {s(T + 5)}, {v(V_FV)}")
        poll_tail(A, top, sleep=cfg.asl)
        for j in range(3):
            A(f"buffer_load_dwordx4 {v(V_KP + 4 * j, 4)}, {v(V_L16)}, {WS}, {s(T + 4)} offen offset:{j * 1024} sc1")
        for i in range(6):
            A(f"buffer_load_dwordx2 {v(V_VM + 2 * i, 2)}, {v(V_L8)}, {WS}, {s(T + 3)} offen offset:{i * 512} sc1")
        A("s_waitcnt vmcnt(0)")
        regs = [V_KP + 4 * j for j in range(3)] + [V_VM + 2 * i for i in range(6)]
        for k in range(4):
            A(f"v_bitop3_b32 {v(V_T + k)}, {v(regs[2 * k])}, {v(regs[2 * k + 1])}, {s(T + 5)} bitop3:0x7e")
        A(f"v_xor_b32 {v(V_T + 4)}, {s(T + 5)}, {v(regs[8])}")
        A(f"v_or3_b32 {v(V_T)}, {v(V_T)}, {v(V_T + 1)}, {v(V_T + 2)}")
        A(f"v_or3_b32 {v(V_T)}, {v(V_T)}, {v(V_T + 3)}, {v(V_T + 4)}")
        A(f"v_and_b32 {v(V_T)}, 1, {v(V_T)}")
        A(f"v_cmp_ne_u32 vcc, 0, {v(V_T)}")
        poll_tail(A, top)
    st(4)
    for jp in range(3):
        for qt in range(2):
            for par in range(2):
                acc = V_SM + (qt * 2 + par) * 4
                c = "0" if jp == 0 else v(acc, 4)
                A(f"v_mfma_f32_16x16x32_bf16 {v(acc, 4)}, {v(V_KP + 4 * jp, 4)}, {v(V_Q + ((2 * jp + par) * 2 + qt) * 4, 4)}, {c}")
    if cfg.a3:
        def post(qt):
            def f(A):
                E, O = V_SM + qt * 8, V_SM + qt * 8 + 4
                X, W, P = XQ[qt], V_W + 4 * qt, V_P + 8 * qt
                for k in (0, 2):
                    A(f"v_permlane32_swap_b32 {v(E + k)}, {v(E + k + 1)}")
                    A(f"v_permlane32_swap_b32 {v(O + k)}, {v(O + k + 1)}")
                A(f"v_add_f32 {v(E)}, {v(E)}, {v(O + 1)}")
                A(f"v_add_f32 {v(E + 1)}, {v(E + 2)}, {v(O + 3)}")
                rnd2(A, W, E, E + 1)
                A(f"v_mul_f32 {v(E)}, {s(S_SC)}, {v(E)}")
                A(f"v_mul_f32 {v(E + 1)}, {s(S_SC)}, {v(E + 1)}")
                rnd2(A, W, E, E + 1)
                A(f"v_max3_f32 {v(W)}, {v(E)}, {v(E + 1)}, {v(V_MX + qt)}")
                xreduce(A, "v_max_f32", W, W + 1)
                A(f"v_mul_f32 {v(W)}, {s(S_L2E)}, {v(W)}")
                A(f"v_fma_f32 {v(W + 2)}, {v(V_MX + qt)}, {s(S_L2E)}, -{v(W)}")
                A(f"v_fma_f32 {v(E)}, {v(E)}, {s(S_L2E)}, -{v(W)}")
                A(f"v_fma_f32 {v(E + 1)}, {v(E + 1)}, {s(S_L2E)}, -{v(W)}")
                A(f"v_exp_f32 {v(W + 2)}, {v(W + 2)}")
                A(f"v_exp_f32 {v(E)}, {v(E)}")
                A(f"v_exp_f32 {v(E + 1)}, {v(E + 1)}")
                A(f"v_fma_f32 {v(W)}, {v(W + 2)}, {v(V_LS + qt)}, {v(E)}")
                A(f"v_add_f32 {v(W)}, {v(W)}, {v(E + 1)}")
                xreduce(A, "v_add_f32", W, W + 1)
                A(f"v_rcp_f32 {v(W)}, {v(W)}")
                A(f"v_mul_f32 {v(W + 2)}, {v(W + 2)}, {v(W)}")
                for x in X:
                    A(f"v_mul_f32 {v(x)}, {v(x)}, {v(W + 2)}")
                for i in range(0, len(X), 2):
                    A(f"v_cvt_pk_bf16_f32 {v(P + i // 2)}, {v(X[i])}, {v(X[i + 1])}")
                A(f"v_mul_f32 {v(E)}, {v(E)}, {v(W)}")
                A(f"v_mul_f32 {v(E + 1)}, {v(E + 1)}, {v(W)}")
                if qt == 0:
                    A(f"v_cvt_pk_bf16_f32 {v(P + 2)}, {v(E)}, {v(E + 1)}")
                else:
                    A(f"v_cvt_pk_bf16_f32 {v(P + 4)}, {v(E)}, {v(E + 1)}")
                    A(f"v_cvt_pk_bf16_f32 {v(P + 7)}, {v(E)}, {v(E + 1)}")
            return f
        weave(post(0), post(1))
        A(f"s_waitcnt vmcnt({1 if cfg.asm else 0})")

        def o_out(LS):
            from chain2 import Lds, Task, sched
            seq, tasks = [], []

            def outs(qt, j, n):
                O = V_Q if qt == 0 else V_K
                pk = V_PK + 4 * (n & 1)
                r = [f"v_cvt_pk_bf16_f32 {v(pk + i)}, {v(O + 8 * j + 2 * i)}, {v(O + 8 * j + 2 * i + 1)}" for i in range(4)]
                if j % 2 == 0:
                    r.append(f"s_add_u32 {s(T + 3)}, {s(T + 6)}, {j * 2048 + qt * 256}")
                r.append(f"buffer_store_dwordx4 {v(pk, 4)}, {v(V_L8)}, {WS}, {s(T + 3)} offen offset:{(j % 2) * 2048}{LS}")
                return r
            P = V_P + 8
            prev = None
            for j in range(6):
                for et in (2 * j, 2 * j + 1):
                    seq.append((f"v_mfma_f32_16x16x32_bf16 {v(V_K + 4 * et, 4)}, {v(V_V + 4 * et, 4)}, {v(P, 4)}, 0", []))
                for et in (2 * j, 2 * j + 1):
                    seq.append((f"v_mfma_f32_16x16x16_bf16 {v(V_K + 4 * et, 4)}, {v(V_VM + 2 * j, 2)}, {v(P + 4 + 2 * (et & 1), 2)}, {v(V_K + 4 * et, 4)}", []))
                t = Task(4 * j + 5, outs(1, j, j))
                t.after, prev = prev, t
                tasks.append(t)
            mv = [Task(4 * (et >> 1) + 2, [f"v_mov_b32 {v(V_V + 4 * et + 2)}, {v(V_VM + et)}"]) for et in range(12)]
            pre_ = {}
            for et in range(12):
                seq.append((f"v_mfma_f32_16x16x32_bf16 {v(V_Q + 4 * et, 4)}, {v(V_V + 4 * et, 4)}, {v(V_P, 4)}, 0", []))

                def chk(et=et):
                    assert not mv[et].items
                pre_[24 + et] = chk
                if et & 1:
                    t = Task(24 + et + 2, outs(0, et >> 1, et >> 1))
                    t.after, prev = prev, t
                    tasks.append(t)
            sched(A, Lds(A), seq, mv + tasks, pre=pre_, budget=12, nvalu=2)
            st(5)
            A("s_waitcnt vmcnt(0)")
            flag_store(A, S_FADDR, LS)
            st(6)
    else:
        Zs = []
        for qt in range(2):
            E, O = V_SM + qt * 8, V_SM + qt * 8 + 4
            for k in (0, 2):
                A(f"v_permlane32_swap_b32 {v(E + k)}, {v(E + k + 1)}")
                A(f"v_permlane32_swap_b32 {v(O + k)}, {v(O + k + 1)}")
            A(f"v_add_f32 {v(E)}, {v(E)}, {v(O + 1)}")
            A(f"v_add_f32 {v(E + 1)}, {v(E + 2)}, {v(O + 3)}")
            Zs.append([E, E + 1])
        roundscale(Zs[0] + Zs[1])
        for qt in range(2):
            X = [V_SX + i for i in range(4)] if qt == 0 else [V_SX + 4 + i for i in range(8)]
            S = X + Zs[qt]
            m, t2 = V_T + 2 * qt, V_T + 2 * qt + 1
            A(f"v_max3_f32 {v(m)}, {v(S[0])}, {v(S[1])}, {v(S[2])}")
            rest = S[3:]
            while rest:
                if len(rest) >= 2:
                    A(f"v_max3_f32 {v(m)}, {v(m)}, {v(rest[0])}, {v(rest[1])}")
                    rest = rest[2:]
                else:
                    A(f"v_max_f32 {v(m)}, {v(m)}, {v(rest[0])}")
                    rest = []
            xreduce(A, "v_max_f32", m, t2)
            A(f"v_mul_f32 {v(m)}, {s(S_L2E)}, {v(m)}")
            for x in S:
                A(f"v_fma_f32 {v(x)}, {v(x)}, {s(S_L2E)}, -{v(m)}")
            for x in S:
                A(f"v_exp_f32 {v(x)}, {v(x)}")
            A(f"v_add_f32 {v(m)}, {v(S[0])}, {v(S[1])}")
            for x in S[2:]:
                A(f"v_add_f32 {v(m)}, {v(m)}, {v(x)}")
            xreduce(A, "v_add_f32", m, t2)
            A(f"v_rcp_f32 {v(m)}, {v(m)}")
            for x in S:
                A(f"v_mul_f32 {v(x)}, {v(x)}, {v(m)}")
            P = V_P + 8 * qt
            A(f"v_cvt_pk_bf16_f32 {v(P)}, {v(X[0])}, {v(X[1])}")
            A(f"v_cvt_pk_bf16_f32 {v(P + 1)}, {v(X[2])}, {v(X[3])}")
            if qt == 0:
                A(f"v_mov_b32 {v(P + 2)}, 0")
                A(f"v_mov_b32 {v(P + 3)}, 0")
            else:
                A(f"v_cvt_pk_bf16_f32 {v(P + 2)}, {v(X[4])}, {v(X[5])}")
                A(f"v_cvt_pk_bf16_f32 {v(P + 3)}, {v(X[6])}, {v(X[7])}")
            Z = Zs[qt]
            if cfg.c2:
                A(f"v_cvt_pk_bf16_f32 {v(P + 4)}, {v(Z[0])}, {v(Z[1])}")
                A(f"v_mov_b32 {v(P + 5)}, 0")
                A(f"v_mov_b32 {v(P + 6)}, 0")
                A(f"v_cvt_pk_bf16_f32 {v(P + 7)}, {v(Z[0])}, {v(Z[1])}")
                continue
            A(f"v_mov_b32 {v(Z[0] + 2)}, {v(Z[0])}")
            A(f"v_mov_b32 {v(Z[0] + 3)}, {v(Z[1])}")
            A(f"v_permlane32_swap_b32 {v(Z[0])}, {v(Z[0] + 2)}")
            A(f"v_permlane32_swap_b32 {v(Z[1])}, {v(Z[0] + 3)}")
            A(f"v_cvt_pk_bf16_f32 {v(Z[0])}, {v(Z[0])}, {v(Z[0] + 2)}")
            A(f"v_cvt_pk_bf16_f32 {v(Z[1])}, {v(Z[1])}, {v(Z[0] + 3)}")
            for k in range(2):
                A(f"v_cndmask_b32 {v(P + 4 + k)}, 0, {v(Z[k])}, {s(S_ML, 2)}")
                A(f"v_cndmask_b32 {v(P + 6 + k)}, {v(Z[k])}, 0, {s(S_ML, 2)}")
        A(f"s_waitcnt vmcnt({1 if cfg.asm else 0})")
        A(f"s_add_u32 {s(T + 6)}, {s(T + 6)}, {OX}")
        for qt in range(2):
            O = V_Q if qt == 0 else V_K
            P = V_P + 8 * qt
            for et in range(12):
                A(f"v_mfma_f32_16x16x32_bf16 {v(O + 4 * et, 4)}, {v(V_V + 4 * et, 4)}, {v(P, 4)}, 0")
            for et in range(12):
                A(f"v_mfma_f32_16x16x16_bf16 {v(O + 4 * et, 4)}, {v(V_VM + 2 * (et >> 1), 2)}, {v(P + 4 + 2 * (et & 1), 2)}, {v(O + 4 * et, 4)}")
        def o_out(LS):
            for qt in range(2):
                O = V_Q if qt == 0 else V_K
                for j in range(6):
                    pk = V_PK + 4 * (j & 1)
                    for i in range(4):
                        A(f"v_cvt_pk_bf16_f32 {v(pk + i)}, {v(O + 8 * j + 2 * i)}, {v(O + 8 * j + 2 * i + 1)}")
                    if j % 2 == 0:
                        A(f"s_add_u32 {s(T + 3)}, {s(T + 6)}, {j * 2048 + qt * (256 if cfg.lin else 1024)}")
                    A(f"buffer_store_dwordx4 {v(pk, 4)}, {v(V_L8 if cfg.lin else V_L16)}, {WS}, {s(T + 3)} offen offset:{(j % 2) * 2048}{LS}")
            flag_addr(A, T, flag_row(F_O), S_FO if cfg.a2 == 2 else S_H)
            st(5)
            A("s_waitcnt vmcnt(0)")
            flag_store(A, T, LS)
            st(6)
    if cfg.oloc:
        A(f"s_cmp_lg_u32 {s(S_MODE)}, 0")
        A("s_cbranch_scc1 ATT_OS")
        o_out("")
        A("s_branch ATT_OJ")
        A.label("ATT_OS")
    o_out(" sc1")
    A.label("ATT_OJ")
    if cfg.xga == 4:
        A(f"s_add_u32 {s(S_FX)}, {s(S_FX)}, 1")
    else:
        A(f"s_add_u32 {s(S_XG)}, {s(S_XG)}, {XG2_STEP * (2 if cfg.a2 else 1) if cfg.c2 else XG_STEP}")
        A(f"s_add_u32 {s(S_FX)}, {s(S_FX)}, {FXG2_STEP * (2 if cfg.a2 else 1) if cfg.c2 else FXG_STEP}")
    A(f"s_add_u32 {s(S_S)}, {s(S_S)}, {2 if cfg.a2 else 1}")
    A(f"s_cmp_lt_u32 {s(S_S)}, 64")
    A("s_cbranch_scc1 ATT_LOOP")
    st.dump(83, T, V_T)
    A("s_endpgm")


def gen_r1(A, cfg, nwg):
    V_XO, V_SO, V_SO3, V_XR, V_LWA, V_LRA, V_FO2 = 16, 17, 18, 19, 20, 21, 22
    V_ST = 24
    V_A = 32
    S_G3, S_KEEP, S_TQ = S_K, S_K + 1, S_K + 2
    HUGE = 0x80000000
    A.label("ROLE_R1")
    S_LAY = 80
    NKG = 4 if cfg.g3 & 16 else 6

    def row_of(A, dst, rl, rs, base):
        if not cfg.g3 & 16:
            return globals()["row_of"](A, dst, rl, rs, base)
        A(f"s_lshl_b32 {s(dst)}, {s(rl)}, 6")
        A(f"s_add_u32 {s(dst)}, {s(dst)}, {s(rs)}")
        A(f"s_mul_i32 {s(dst)}, {s(dst)}, 640")
        A(f"s_add_u32 {s(dst)}, {s(dst)}, {FWOP2}")
    if cfg.r2:
        A(f"s_lshr_b32 {s(S_LAY)}, {s(S_ROLE)}, 3")
        A(f"s_and_b32 {s(S_ROLE)}, {s(S_ROLE)}, 7")

    def item_of(A, i_reg, rl, rs, *a_):
        if not cfg.r2:
            return globals()["item_of"](A, i_reg, rl, rs, *a_)
        A(f"s_mov_b32 {s(rl)}, {s(S_LAY)}")
        A(f"s_sub_u32 {s(rs)}, {s(i_reg)}, 64")
    base_setup(A)
    dq, g_, c_ = V_T, V_T + 1, V_T + 2
    A(f"v_lshrrev_b32 {v(dq)}, 4, {v(V_LANE)}")
    A(f"v_bfe_u32 {v(g_)}, {v(V_LANE)}, 2, 2")
    A(f"v_and_b32 {v(c_)}, 3, {v(V_LANE)}")
    A(f"s_lshr_b32 {s(T)}, {s(S_ROLE)}, 2")
    A(f"s_lshl_b32 {s(S_TQ)}, {s(T)}, 10")
    A(f"s_and_b32 {s(T + 1)}, {s(S_ROLE)}, 3")
    A(f"s_lshl_b32 {s(T)}, {s(T + 1)}, 8")
    A(f"s_add_u32 {s(S_TQ)}, {s(S_TQ)}, {s(T)}")
    A(f"v_lshrrev_b32 {v(V_T + 3)}, 1, {v(dq)}")
    A(f"v_lshlrev_b32 {v(V_SO3)}, 11, {v(V_T + 3)}")
    A(f"v_add_u32 {v(V_T + 3)}, {s(T + 1)}, {v(g_)}")
    A(f"v_and_b32 {v(V_T + 3)}, 3, {v(V_T + 3)}")
    A(f"v_lshl_add_u32 {v(V_SO3)}, {v(V_T + 3)}, 6, {v(V_SO3)}")
    A(f"v_lshl_add_u32 {v(V_SO3)}, {v(c_)}, 4, {v(V_SO3)}")
    A(f"v_add_u32 {v(V_SO3)}, {s(S_TQ)}, {v(V_SO3)}")
    A(f"v_and_b32 {v(V_T + 3)}, 1, {v(dq)}")
    A(f"v_lshl_add_u32 {v(V_XO)}, {v(V_T + 3)}, 3, {v(V_SO3)}")
    A(f"v_lshl_add_u32 {v(V_SO)}, {v(V_T + 3)}, 14, {v(V_SO3)}")
    A(f"s_lshl_b32 {s(T)}, {s(S_ROLE)}, 2")
    A(f"v_add_u32 {v(V_T + 3)}, {s(T)}, {v(c_)}")
    A(f"v_mul_u32_u24 {v(V_XR)}, 1280, {v(V_T + 3)}")
    A(f"v_lshl_add_u32 {v(V_XR)}, {v(dq)}, 5, {v(V_XR)}")
    A(f"v_lshl_add_u32 {v(V_XR)}, {v(g_)}, 3, {v(V_XR)}")
    A(f"v_lshlrev_b32 {v(V_LRA)}, 5, {v(c_)}")
    A(f"s_lshl_b32 {s(T)}, {s(S_WAVE)}, 3")
    A(f"v_add_u32 {v(V_LWA)}, {s(T)}, {v(V_LRA)}")
    A(f"v_min_u32 {v(V_FO)}, {39 if cfg.g3 & 16 else 59}, {v(V_LANE)}")
    A(f"v_lshlrev_b32 {v(V_FO)}, 3, {v(V_FO)}")
    if cfg.g3 & 16:
        A(f"s_lshr_b32 {s(T)}, {s(S_ROLE)}, 2")
        A(f"s_mul_i32 {s(T)}, {s(T)}, 320")
        A(f"v_add_u32 {v(V_FO)}, {s(T)}, {v(V_FO)}")
    A(f"s_cmp_lt_u32 {s(S_WAVE)}, 2")
    A(f"s_cselect_b32 {s(S_G3)}, 0, {HUGE}")
    A(f"s_cselect_b32 {s(S_KEEP)}, 1.0, 0")
    init_barrier_arrive(A, V_T)

    lane_reduce, sums, norm, store_pair = row_helpers(A)
    if cfg.a2 == 2:
        numa_probe(A, cfg, S_LAY)
        init_barrier_wait(A, V_T, nwg, cfg)
    else:
        if cfg.r2:
            A(f"s_cmp_eq_u32 {s(S_LAY)}, 0")
            A("s_cbranch_scc1 R1_R0")
            init_barrier_wait(A, V_T, nwg, cfg)
            A("s_branch R1_GO")
            A.label("R1_R0")
        A(f"s_mov_b32 {s(T + 6)}, {s(S_IDX)}")
        gen_r0(A, cfg, nwg, T + 6, "R")
    A.label("R1_GO")
    st = Stamper(A, cfg, 84, 10)
    A(f"s_mov_b32 s83, {s(S_GID)}")
    st.init()

    SETS = (V_A, V_A + 80)
    V_XU = V_A + 160
    V_PM, V_PY, V_PZ = V_A + 172, V_A + 180, V_A + 188
    V_LR = V_A + 196
    V_FW = V_A + 204
    V_RDY = V_A + 206

    def r1_loads(base, rl, rs, A=A, TS=T + 3):
        A(f"s_mul_i32 {s(T + 6)}, {s(rs)}, {WOP_SEG}")
        A(f"s_mul_i32 {s(T)}, {s(S_ROLE)}, 10240")
        A(f"s_add_u32 {s(T + 6)}, {s(T + 6)}, {s(T)}")
        A(f"s_lshl_b32 {s(T)}, {s(S_WAVE)}, 10")
        A(f"s_add_u32 {s(T + 6)}, {s(T + 6)}, {s(T)}")
        A(f"s_add_u32 {s(T + 6)}, {s(T + 6)}, {WOP}")
        A(f"s_mul_i32 {s(T)}, {s(rs)}, {XSEG}")
        A(f"s_add_u32 {s(T)}, {s(T)}, {X0R}")
        A(f"s_mul_i32 {s(T + 1)}, {s(rs)}, {XSEGS}")
        A(f"s_add_u32 {s(T + 1)}, {s(T + 1)}, {XIN + 64 * XSEGS}")
        A(f"s_cmp_eq_u32 {s(rl)}, 0")
        A(f"s_cselect_b32 {s(T + 5)}, {s(T)}, {s(T + 1)}")
        A(f"s_lshl_b32 {s(T)}, {s(S_WAVE)}, 12")
        A(f"s_add_u32 {s(T + 5)}, {s(T + 5)}, {s(T)}")
        if not cfg.r1h:
            for G in range(3):
                A(f"s_add_u32 {s(TS)}, {s(T + 5)}, {G * 16384}")
                if G == 2:
                    A(f"s_add_u32 {s(TS)}, {s(TS)}, {s(S_G3)}")
                A(f"buffer_load_dwordx2 {v(base + 72 + 2 * G, 2)}, {v(V_XO)}, {WS}, {s(TS)} offen sc1")
            for kg in range(NKG):
                for G in range(3):
                    A(f"s_add_u32 {s(TS)}, {s(T + 6)}, {kg * 81920 + G * 4096}")
                    if G == 2:
                        A(f"s_add_u32 {s(TS)}, {s(TS)}, {s(S_G3)}")
                    A(f"buffer_load_dwordx4 {v(base + kg * 12 + G * 4, 4)}, {v(V_L16)}, {WS}, {s(TS)} offen sc1")
        else:
            l2, l3 = A.newlabel("g2"), A.newlabel("g3")
            A(f"s_cmp_lt_u32 {s(S_WAVE)}, 2")
            A(f"s_cbranch_scc1 {l2}")
            for i in range(4):
                A(f"v_mov_b32 {v(base + 8 + i)}, 0")
            A(f"s_branch {l3}")
            A.label(l2)
            A(f"s_add_u32 {s(TS)}, {s(T + 5)}, {2 * 16384}")
            A(f"buffer_load_dwordx2 {v(base + 76, 2)}, {v(V_XO)}, {WS}, {s(TS)} offen sc1")
            for kg in range(NKG):
                A(f"s_add_u32 {s(TS)}, {s(T + 6)}, {kg * 81920 + 2 * 4096}")
                A(f"buffer_load_dwordx4 {v(base + kg * 12 + 8, 4)}, {v(V_L16)}, {WS}, {s(TS)} offen sc1")
            A.label(l3)
            for G in range(2):
                A(f"s_add_u32 {s(TS)}, {s(T + 5)}, {G * 16384}")
                A(f"buffer_load_dwordx2 {v(base + 72 + 2 * G, 2)}, {v(V_XO)}, {WS}, {s(TS)} offen sc1")
            for kg in range(NKG):
                for G in range(2):
                    A(f"s_add_u32 {s(TS)}, {s(T + 6)}, {kg * 81920 + G * 4096}")
                    A(f"buffer_load_dwordx4 {v(base + kg * 12 + G * 4, 4)}, {v(V_L16)}, {WS}, {s(TS)} offen sc1")

    def pks(b):
        return [b, b + 1, b + 2, b + 3, b + 4, b + 5]

    S_O1, S_O3 = S_K + 3, S_K + 4

    S_YD = S_K + 5

    def emit_out(b, buf):
        A(f"v_mov_b32 {v(b + 6)}, {v(b + 4)}")
        A(f"v_mov_b32 {v(b + 7)}, {v(b + 5)}")
        A(f"s_add_u32 {s(T + 3)}, {s(S_O1)}, {buf}")
        if buf == YB:
            A(f"s_add_u32 {s(T + 3)}, {s(T + 3)}, {s(S_YD)}")
        store_pair(b, V_SO, T + 3)
        A(f"s_add_u32 {s(T + 3)}, {s(S_O3)}, {buf}")
        if buf == YB:
            A(f"s_add_u32 {s(T + 3)}, {s(T + 3)}, {s(S_YD)}")
        store_pair(b + 4, V_SO3, T + 3)

    def r1_full(cur, nxt, sx, other):
        V_PL, V_XX = cur, cur + 72
        X = [V_PL + i for i in range(12)]

        def wg_stats(area):
            sums(X, V_ST)
            lane_reduce(V_ST)
            A(f"ds_write_b64 {v(V_LWA)}, {v(V_ST, 2)} offset:{area}")
            A("s_waitcnt lgkmcnt(0)")
            A("s_barrier")
            A(f"ds_read_b128 {v(V_LR, 4)}, {v(V_LRA)} offset:{area}")
            A(f"ds_read_b128 {v(V_LR + 4, 4)}, {v(V_LRA)} offset:{area + 16}")

        def wg_stats_fin():
            A("s_waitcnt lgkmcnt(0)")
            A(f"v_pk_add_f32 {v(V_LR, 2)}, {v(V_LR, 2)}, {v(V_LR + 2, 2)}")
            A(f"v_pk_add_f32 {v(V_LR + 4, 2)}, {v(V_LR + 4, 2)}, {v(V_LR + 6, 2)}")
            A(f"v_pk_add_f32 {v(V_ST, 2)}, {v(V_LR, 2)}, {v(V_LR + 4, 2)}")
            finish_stats(A, V_ST, V_ST + 1, V_T)

        A.label("R1_" + sx)
        A(f"s_add_u32 {s(T + 6)}, {s(S_I)}, 1")
        A(f"s_min_u32 {s(T + 6)}, {s(T + 6)}, 127")
        item_of(A, T + 6, S_NL, S_NS, cfg.LAG + cfg.dlt, 0, T)
        row_of(A, T + 7, S_NL, S_NS, flag_row(F_WOP))
        if cfg.r1e != 1:
            A(f"buffer_load_dwordx2 {v(V_FW, 2)}, {v(V_FO)}, {WS}, {s(T + 7)} offen sc1")
        A(f"s_lshl_b32 {s(T)}, {s(S_L)}, 6")
        A(f"s_add_u32 {s(T)}, {s(T)}, {s(S_S)}")
        A(f"s_mul_i32 {s(S_O1)}, {s(T)}, {XSEG}")
        A(f"s_mul_i32 {s(S_YD)}, {s(T)}, {XSEGS - XSEG}")
        A(f"s_lshl_b32 {s(T)}, {s(S_WAVE)}, 12")
        A(f"s_add_u32 {s(S_O1)}, {s(S_O1)}, {s(T)}")
        A(f"s_add_u32 {s(S_O3)}, {s(S_O1)}, {8 * 4096}")
        A(f"s_add_u32 {s(S_O3)}, {s(S_O3)}, {s(S_G3)}")
        lp, lj = A.newlabel("r1p"), A.newlabel("r1j")

        def ladder(y):
            PG = 2 if cfg.r1h else 3
            A(f"s_waitcnt vmcnt({PG * NKG + y})")
            for i in range(6):
                A(f"v_lshlrev_b32 {v(V_XU + 2 * i)}, 16, {v(V_XX + i)}")
                A(f"v_and_b32 {v(V_XU + 2 * i + 1)}, 0xffff0000, {v(V_XX + i)}")
            for kg in range(1, NKG):
                A(f"s_waitcnt vmcnt({PG * (NKG - 1 - kg) + y})")
                for i in range(0, 12, 2):
                    A(f"v_pk_add_f32 {v(V_PL + i, 2)}, {v(V_PL + i, 2)}, {v(V_PL + kg * 12 + i, 2)}")
        A(f"s_cmp_eq_u32 {s(S_DEF)}, 0")
        A(f"s_cbranch_scc1 {lp}")
        ladder(0 if cfg.r1e == 1 else 1)
        A(f"s_branch {lj}")
        A.label(lp)
        ladder(cfg.r1e if cfg.r1e else 7)
        A.label(lj)
        st(4)
        for i in range(0, 12, 2):
            rnd2(A, V_T, X[i], X[i + 1])
        for i in range(0, 12, 2):
            A(f"v_pk_add_f32 {v(X[i], 2)}, {v(X[i], 2)}, {v(V_XU + i, 2)}")
        for i in range(0, 12, 2):
            rnd2(A, V_PM + i // 2, X[i], X[i + 1])
        wg_stats(128 if (cfg.zf and sx == "B") else 0)
        if not cfg.r1e:
            nof, nod = A.newlabel("nof"), A.newlabel("nod")
            st(5)
            A("s_waitcnt vmcnt(0)")
            st(6)
            A(f"s_cmp_eq_u32 {s(S_FADDR)}, {DUMMY}")
            A(f"s_cbranch_scc1 {nof}")
            flag_store(A, S_FADDR)
            A.label(nof)
            A(f"v_min_u32 {v(V_FW)}, {v(V_FW)}, {v(V_FW + 1)}")
            A(f"v_cmp_eq_u32 vcc, 0, {v(V_FW)}")
            A(f"s_mov_b32 {s(S_DEF)}, 1")
            A(f"s_cbranch_vccnz {nod}")
            A(f"s_mov_b32 {s(S_DEF)}, 0")
            r1_loads(nxt, S_NL, S_NS)
            A.label(nod)
        if cfg.r1e == 2:
            assert not cfg.r1h
            late = A.newlabel("late")
            A("s_waitcnt vmcnt(0)")
            A(f"v_min_u32 {v(V_FW)}, {v(V_FW)}, {v(V_FW + 1)}")
            A(f"v_cmp_eq_u32 vcc, 0, {v(V_FW)}")
            A(f"s_cbranch_vccnz {late}")
            E = Capture()
            lr, sm, nm_, sp = row_helpers(E)

            def fin(E=E):
                E("s_waitcnt lgkmcnt(0)")
                E(f"v_pk_add_f32 {v(V_LR, 2)}, {v(V_LR, 2)}, {v(V_LR + 2, 2)}")
                E(f"v_pk_add_f32 {v(V_LR + 4, 2)}, {v(V_LR + 4, 2)}, {v(V_LR + 6, 2)}")
                E(f"v_pk_add_f32 {v(V_ST, 2)}, {v(V_LR, 2)}, {v(V_LR + 4, 2)}")
                finish_stats(E, V_ST, V_ST + 1, V_T)

            def out(b, buf, E=E):
                E(f"v_mov_b32 {v(b + 6)}, {v(b + 4)}")
                E(f"v_mov_b32 {v(b + 7)}, {v(b + 5)}")
                E(f"s_add_u32 {s(T + 3)}, {s(S_O1)}, {buf}")
                sp(b, V_SO, T + 3)
                E(f"s_add_u32 {s(T + 3)}, {s(S_O3)}, {buf}")
                sp(b + 4, V_SO3, T + 3)
            fin()
            nm_(X, pks(V_PY), V_ST)
            for i in range(8, 12):
                E(f"v_mul_f32 {v(X[i])}, {s(S_KEEP)}, {v(X[i])}")
            sm(X, V_ST)
            lr(V_ST)
            E(f"ds_write_b64 {v(V_LWA)}, {v(V_ST, 2)} offset:128")
            E("s_waitcnt lgkmcnt(0)")
            E("s_barrier")
            E(f"ds_read_b128 {v(V_LR, 4)}, {v(V_LRA)} offset:128")
            E(f"ds_read_b128 {v(V_LR + 4, 4)}, {v(V_LRA)} offset:144")
            out(V_PM, XM)
            out(V_PY, YB)
            fin()
            nm_(X, pks(V_PZ), V_ST)
            out(V_PZ, ZB)
            Ld = Capture()
            r1_loads(nxt, S_NL, S_NS, Ld, T + 2)
            grp, cur_ = [], []
            for x in Ld.l:
                cur_.append(x)
                if x.startswith("buffer_load"):
                    grp.append(cur_)
                    cur_ = []
            if cfg.wgp2:
                rdy_set(A, V_RDY, 1, T)
            step = max(1, (len(E.l) * 2 // 3) // len(grp))
            for n, x in enumerate(E.l):
                if n % step == 0 and grp:
                    for y in grp.pop(0):
                        A(y)
                A(x)
            assert not grp
            flag_addr(A, S_FADDR, flag_row(F_R1))
            A(f"s_add_u32 {s(S_I)}, {s(S_I)}, 1")
            A(f"s_cmp_eq_u32 {s(S_I)}, 128")
            A("s_cbranch_scc1 R1_END")
            A(f"s_mov_b32 {s(S_L)}, {s(S_NL)}")
            A(f"s_mov_b32 {s(S_S)}, {s(S_NS)}")
            A(f"s_mov_b32 {s(S_DEF)}, 0")
            A("s_waitcnt vmcnt(0)")
            flag_store(A, S_FADDR)
            A(f"s_branch R1_{other}")
            A.label(late)
        if not cfg.zf:
            wg_stats_fin()
            norm(X, pks(V_PY), V_ST)
            for i in range(8, 12):
                A(f"v_mul_f32 {v(X[i])}, {s(S_KEEP)}, {v(X[i])}")
            wg_stats(128)
            if cfg.r1e:
                A(f"buffer_load_dwordx2 {v(V_FW, 2)}, {v(V_FO)}, {WS}, {s(T + 7)} offen sc1")
            emit_out(V_PM, XM)
            emit_out(V_PY, YB)
            wg_stats_fin()
            norm(X, pks(V_PZ), V_ST)
            emit_out(V_PZ, ZB)
        else:
            A(f"buffer_load_dwordx2 {v(V_FW, 2)}, {v(V_FO)}, {WS}, {s(T + 7)} offen sc1")
            emit_out(V_PM, XM)
            A("s_waitcnt lgkmcnt(0)")
            A(f"v_pk_add_f32 {v(V_LR, 2)}, {v(V_LR, 2)}, {v(V_LR + 2, 2)}")
            A(f"v_pk_add_f32 {v(V_LR + 4, 2)}, {v(V_LR + 4, 2)}, {v(V_LR + 6, 2)}")
            A(f"v_pk_add_f32 {v(V_ST, 2)}, {v(V_LR, 2)}, {v(V_LR + 4, 2)}")
            finish_stats(A, V_ST, V_ST + 1, V_T, keep=V_ST + 4)
            norm(X, pks(V_PY), V_ST)
            emit_out(V_PY, YB)
            A(f"v_sub_f32 {v(V_ST + 4)}, {v(V_ST + 4)}, {v(V_ST)}")
            A(f"v_mul_f32 {v(V_ST + 5)}, {v(V_ST + 5)}, {v(V_ST + 1)}")
            A(f"v_mul_f32 {v(V_ST + 4)}, {v(V_ST + 4)}, {v(V_ST + 1)}")
            A(f"v_mul_f32 {v(V_ST + 5)}, {v(V_ST + 5)}, {v(V_ST + 1)}")
            finish_stats(A, V_ST + 4, V_ST + 5, V_T, scaled=True)
            A(f"s_lshl_b32 {s(T)}, {s(S_WAVE)}, 12")
            A(f"s_sub_u32 {s(T + 3)}, {s(S_O1)}, {s(T)}")
            A(f"s_add_u32 {s(T + 3)}, {s(T + 3)}, {s(S_YD)}")
            A(f"s_lshl_b32 {s(T)}, {s(S_ROLE)}, 5")
            A(f"s_add_u32 {s(T + 3)}, {s(T + 3)}, {s(T)}")
            A(f"s_add_u32 {s(T + 3)}, {s(T + 3)}, {YB + 40960}")
            A(f"v_lshlrev_b32 {v(V_T)}, 3, {v(V_LANE)}")
            lz = A.newlabel("zs")
            A(f"s_cmp_lg_u32 {s(S_WAVE)}, 3")
            A(f"s_cbranch_scc1 {lz}")
            A("s_mov_b64 exec, 15")
            A(f"buffer_store_dwordx2 {v(V_ST + 4, 2)}, {v(V_T)}, {WS}, {s(T + 3)} offen sc1")
            A("s_mov_b64 exec, -1")
            A.label(lz)
        flag_addr(A, S_FADDR, flag_row(F_R1))
        st(7)
        A(f"s_add_u32 {s(S_I)}, {s(S_I)}, 1")
        A(f"s_cmp_eq_u32 {s(S_I)}, 128")
        A("s_cbranch_scc1 R1_END")
        A(f"s_mov_b32 {s(S_L)}, {s(S_NL)}")
        A(f"s_mov_b32 {s(S_S)}, {s(S_NS)}")
        if cfg.r1e:
            nrdy = A.newlabel("nr")
            A(f"s_waitcnt vmcnt({4 if cfg.zf else 6})")
            A(f"v_min_u32 {v(V_FW)}, {v(V_FW)}, {v(V_FW + 1)}")
            A(f"v_cmp_eq_u32 vcc, 0, {v(V_FW)}")
            A(f"s_cbranch_vccnz {nrdy}")
            if cfg.wgp2:
                rdy_set(A, V_RDY, 0, T)
            r1_loads(nxt, S_L, S_S)
            A(f"s_waitcnt vmcnt({2 + 2 * NKG if cfg.r1h else 3 + 3 * NKG})")
            flag_store(A, S_FADDR)
            A(f"s_mov_b32 {s(S_DEF)}, 0")
            A(f"s_branch R1_{other}")
            A.label(nrdy)
            A(f"s_mov_b32 {s(S_DEF)}, 1")
        else:
            A(f"s_cmp_eq_u32 {s(S_DEF)}, 0")
            A(f"s_cbranch_scc1 R1_{other}")
        A("s_waitcnt vmcnt(0)")
        flag_store(A, S_FADDR)
        A(f"s_mov_b32 {s(S_FADDR)}, {DUMMY}")
        st(8)
        row_of(A, T + 7, S_L, S_S, flag_row(F_WOP))
        if cfg.wgp2:
            wg_wait(A, cfg, V_RDY, T + 7, T, vv=V_FW, wide=True)
        else:
            flag_block(A, T + 7, vv=V_FW, wide=True, sleep=1)
        st(9)
        r1_loads(nxt, S_L, S_S)
        A(f"s_branch R1_{other}")

    A(f"s_mov_b32 {s(S_I)}, {64 if cfg.r2 else 0}")
    A(f"s_mov_b32 {s(S_DEF)}, 1")
    if cfg.wgp2:
        rdy_init(A, cfg, V_RDY, 1024)
    A(f"s_mov_b32 {s(S_FADDR)}, {DUMMY}")
    if cfg.r1h:
        for b_ in SETS:
            for kg in range(NKG):
                for i in range(4):
                    A(f"v_mov_b32 {v(b_ + kg * 12 + 8 + i)}, 0")
            A(f"v_mov_b32 {v(b_ + 76)}, 0")
            A(f"v_mov_b32 {v(b_ + 77)}, 0")
    item_of(A, S_I, S_L, S_S, cfg.LAG + cfg.dlt, 0, T)
    row_of(A, T + 7, S_L, S_S, flag_row(F_WOP))
    flag_block(A, T + 7, vv=V_FW, wide=True, sleep=1)
    r1_loads(SETS[0], S_L, S_S)
    r1_full(SETS[0], SETS[1], "A", "B")
    r1_full(SETS[1], SETS[0], "B", "A")
    A.label("R1_END")
    A("s_waitcnt vmcnt(0)")
    flag_store(A, S_FADDR)
    st.dump(83, T, V_T)
    A("s_endpgm")
```

```python
from stations32 import *
import stations32 as S32
from chain2 import Lds, Task, sched, groups, GAP

HUGE = 0x80000000
S_U, S_UL, S_US, S_UF, S_UN = 32, 33, 34, 35, 36
S_GO, S_NGO, S_EGO, S_FA1 = 37, 38, 39, 59
S_FA2 = S_FADDR
S_BM, S_IM = 76, 78
F_D4 = F_WOP
NH, NX, NG = 8, 8, 4


def lines(fn_owner, fn):
    c = fn_owner.capture(fn)
    out = []
    for x in c.l:
        out.append(x)
    return out


def lstore(A, text):
    l1, l2 = A.newlabel("ls"), A.newlabel("ls")
    A(f"s_cmp_lg_u32 {s(S_MODE)}, 0")
    A.nf(f"s_cbranch_scc0 {l1}")
    for x in text:
        A(x + " sc1")
    A.nf(f"s_branch {l2}")
    A.label_nf(l1)
    for x in text:
        A(x)
    A.label_nf(l2)


def loc(A, local, insts):
    if local:
        lstore(A, insts)
    else:
        for x in insts:
            A(x + " sc1" if x.startswith("buffer_store") else x)


def flag_put(A, addr, local=False):
    if TSFLAG[0]:
        A(f"s_memrealtime {s(98, 2)}")
        A("s_waitcnt lgkmcnt(0)")
        A(f"s_or_b32 s98, s98, 1")
        A(f"v_mov_b32 {v(V_ONE)}, s98")
    A("s_mov_b64 exec, 1")
    loc(A, local, [f"buffer_store_dword {v(V_ONE)}, {v(V_L16)}, {WS}, {s(addr)} offen"])
    A("s_mov_b64 exec, -1")


def wait_first(A, cfg, nwg):
    init_barrier_wait(A, V_T, nwg, cfg)
    if cfg.lw == 2:
        A(f"s_mov_b32 {s(T + 7)}, {flag_row(F_XIN, 0, 63)}")
        A(f"v_mov_b32 {v(V_T + 4)}, 0")
        flag_block(A, T + 7, vo=V_T + 4)


class G3:
    R, D = 8, 7
    local_out = False
    V_IA = 16
    V_OA = 20
    V_RA = 22
    V_FR = 24
    V_ACC = 56
    kd0, kdstep = 1, 2
    kf1 = 10
    ksmp = 0.5
    psleep = 4

    def acc(self, tl):
        return self.V_ACC + (self.aset * self.NT + tl) * 16

    def expose(self):
        return False

    def decode(self, A):
        A(f"s_min_u32 {s(T + 2)}, {s(S_U)}, 127")
        sv = self.A
        self.A = A
        self.item(T + 2, S_UL, S_US)
        self.flag_soff(S_UF, S_UL, S_US)
        self.A = sv

    def w0(self, fn):
        A = self.A
        lab = A.newlabel("w0")
        A(f"s_cmp_lg_u32 {s(S_WAVE)}, 0")
        A.nf(f"s_cbranch_scc1 {lab}")
        fn()
        A.label_nf(lab)

    def sample(self):
        self.w0(lambda: self.A(f"buffer_load_dword {v(V_FV)}, {v(V_FO)}, {WS}, {s(S_UF)} offen sc1"))

    def decide(self):
        A = self.A

        def f():
            A(f"v_cmp_eq_u32 vcc, 0, {v(V_FV)}")
            A(f"s_cmp_eq_u64 vcc, 0")
            A(f"s_cselect_b32 {s(S_UN)}, 0, {HUGE}")
            A(f"s_cmp_lt_u32 {s(S_U)}, 128")
            A(f"s_cselect_b32 {s(S_UN)}, {s(S_UN)}, {HUGE}")
            A(f"v_mov_b32 {v(self.V_RA + 1)}, {s(S_UN)}")
            A(f"ds_write_b32 {v(self.V_RA)}, {v(self.V_RA + 1)}")
        self.w0(f)

    def rd(self, k, b):
        return f"ds_read_b128 {v(self.V_FR + (k % self.R) * 4, 4)}, {v(self.V_IA + 2 * b + (k & 1))} offset:{(k >> 1) * 2048}"

    def dma_lines(self, guard):
        L = lines(self, lambda: self.dma(S_UL, S_US, T + 6 if guard else S_BUF))
        if guard:
            out = [f"s_sub_u32 {s(T + 6)}, {self.bufsz}, {s(S_BUF)}"]
            done = False
            for x in L:
                out.append(x)
                if not done and x.startswith(f"s_mul_i32 {s(T)}, {s(T)}") or (not done and x.startswith(f"s_mul_i32 {s(T)}, {s(S_US)}")):
                    out.append(f"s_add_u32 {s(T)}, {s(T)}, {s(S_GO)}")
                    done = True
            assert done
            L = out
        return L

    def gen(self):
        A, cfg = self.A, self.cfg
        nm = self.name
        A.label("ROLE_" + nm)
        base_setup(A)
        for k in range(2):
            chunk_addr(A, self.V_IA + k, k, self.pin)
            A(f"v_add_u32 {v(self.V_IA + 2 + k)}, {self.bufsz}, {v(self.V_IA + k)}")
            chunk_addr(A, self.V_OA + k, k, False)
        self.setup()
        self.init_stores()
        init_barrier_arrive(A, V_T)
        late = cfg.lw and self.order != "q"
        if late:
            wait_first(A, cfg, self.nwg)
        WL = WLoader(A, V_T, T + 3)
        self.weights(WL)
        WL.emit(V_LANE)
        self.post_weights()
        A("s_barrier")
        if not late:
            init_barrier_wait(A, V_T, self.nwg, cfg)
        A(f"s_mov_b32 {s(S_I)}, 0")
        A(f"s_mov_b32 {s(S_U)}, 0")
        A(f"s_mov_b32 {s(S_BUF)}, 0")
        A(f"s_mov_b32 {s(S_FA1)}, {HUGE}")
        A(f"s_mov_b32 {s(S_FA2)}, {HUGE}")
        A(f"s_mov_b32 {s(S_EGO)}, {HUGE}")
        A(f"v_mov_b32 {v(self.V_RA)}, {2 * self.bufsz + 2048}")
        self.post_barrier()
        st = self.st = Stamper(A, cfg, 84, 8)
        A(f"s_mov_b32 s83, {s(S_GID)}")
        self.decode(A)
        st.init()
        nb = 2 if self.pipe else 1
        for b in range(nb):
            self.body(b, nb)
        A.label(nm + "_END")
        st.dump(83, T, V_T)
        A("s_endpgm")

    def post_barrier(self): pass
    def tail_tasks(self, L, kw): return []

    def swap_bufs(self):
        A = self.A
        A(f"s_sub_u32 {s(S_BUF)}, {self.bufsz}, {s(S_BUF)}")
        if not self.pipe:
            for k in range(2):
                A(f"v_swap_b32 {v(self.V_IA + k)}, {v(self.V_IA + 2 + k)}")

    def body(self, b, nb):
        A, cfg, st = self.A, self.cfg, self.st
        nm, NT, R, D = self.name, self.NT, self.R, self.D
        NS = 2 * self.nk
        o = (b + 1) % nb
        cur, nxt = (b, 1 - b) if self.pipe else (0, 1)
        A.label(f"{nm}_COLD{b}")
        lab = A.newlabel("cp")
        A(f"s_cmp_lg_u32 {s(S_WAVE)}, 0")
        A(f"s_cbranch_scc1 {lab}")
        sv = cfg.fsl
        cfg.fsl = self.psleep
        flag_block(A, S_UF)
        cfg.fsl = sv
        A.label(lab)
        A("s_barrier")
        st(6)
        for x in self.dma_lines(False):
            A(x)
        A.label(f"{nm}_CD{b}")
        A(f"s_mov_b32 {s(S_L)}, {s(S_UL)}")
        A(f"s_mov_b32 {s(S_S)}, {s(S_US)}")
        A(f"s_add_u32 {s(S_U)}, {s(S_U)}, 1")
        self.decode(A)
        self.sample()
        A("s_waitcnt vmcnt(0)")
        flag_put(A, S_FA1, self.local_out)
        A(f"s_mov_b32 {s(S_FA1)}, {HUGE}")
        self.decide()
        A("s_waitcnt lgkmcnt(0)")
        A("s_barrier")
        A(f"ds_read_b32 {v(self.V_RA + 1)}, {v(self.V_RA)}")
        for k in range(D):
            A(self.rd(k, cur))
        A(f"s_waitcnt lgkmcnt({D})")
        A(f"v_readfirstlane_b32 {s(S_GO)}, {v(self.V_RA + 1)}")
        st(7)
        A.label(f"{nm}_B{b}")
        L = Lds(A)
        L.q = [("F", k) for k in range(D)]
        self.aset = b if self.pipe else 0
        seq, rdt = [], []
        kbar = (NS - D) * NT
        for k in range(NS):
            for tl in range(NT):
                c = "0" if k == 0 else v(self.acc(tl), 16)
                fr = v(self.V_FR + (k % R) * 4, 4)
                w = self.wtxt(tl, k)
                x, y = (fr, w) if self.swap else (w, fr)
                need = [("F", k + 1)] if (tl == 0 and k % 2 == 0) else []
                seq.append((f"{MF} {v(self.acc(tl), 16)}, {x}, {y}, {c}", need))
            kk = k + D
            rdt.append(Task(k * NT, [(("F", kk), self.rd(kk % NS, cur if kk < NS else nxt))]))
        nvm = [0]

        def vm(x):
            def f():
                A(x)
                nvm[0] += 1
            return (cfg.vmc, f)

        def wrap(ls):
            out = []
            for x in groups([y for z in ls for y in z.split("\n")]):
                if x.startswith("buffer_"):
                    out.append(vm(x))
                elif x.startswith("ds_"):
                    out.append(("x", x))
                elif x.startswith("@wait"):
                    out.append((4, lambda: L.wait("x")))
                else:
                    out.append(x)
            return out
        early = wrap(lines(self, self.early))
        dl = wrap(self.dma_lines(True))
        tdma = Task(self.kd0, early + dl)
        tdma.vstep = self.kdstep
        dec = Capture()
        dec(f"s_mov_b32 {s(S_NL)}, {s(S_UL)}")
        dec(f"s_mov_b32 {s(S_NS)}, {s(S_US)}")
        dec(f"s_cmp_eq_u32 {s(S_GO)}, 0")
        dec(f"s_addc_u32 {s(S_U)}, {s(S_U)}, 0")
        self.decode(dec)
        tdma.items += wrap(dec.l)
        ksm = int(self.ksmp * NS * NT)

        def smp():
            assert not tdma.items
            self.sample()
        tsm = Task(ksm, [(28, smp)])
        tsm.after = tdma

        def f1():
            A(f"s_waitcnt vmcnt({nvm[0]})")
            flag_put(A, S_FA1, self.local_out)
            A(f"s_mov_b32 {s(S_FA1)}, {HUGE}")
            nvm[0] += 1
        tasks = [Task(self.kf1, [(28, f1)])]
        tepi = []
        if self.pipe:
            self.aset = 1 - b
            tepi += wrap(self.epi_lines(True))
            self.aset = b
        tpre = Task(0, wrap(lines(self, self.pre_mfma)), step=1)
        tasks.append(tpre)

        def wx():
            assert not tpre.items
            L.wait("x")
        tepi += [(4, wx)] + wrap(lines(self, self.mid)) + wrap(lines(self, self.save_item))
        tep = Task(2 if self.pipe else 12, tepi)
        kw = kbar - (3 if NT == 2 else 4) * NT

        def wpoint():
            assert not tdma.items and not tsm.items, (nm, len(tdma.items))
            assert not any(isinstance(i, tuple) and i[0] == cfg.vmc for i in tep.items), nm
            A("s_waitcnt vmcnt(0)")
            self.decide()

        def bar():
            assert not any(isinstance(i, tuple) for i in tep.items), (nm, len(tep.items))
            A(f"s_waitcnt lgkmcnt({min(len(L.q), 2)})")
            L.q = L.q[-2:]
            A("s_barrier")
            L.op("dw", f"ds_read_b32 {v(self.V_RA + 1)}, {v(self.V_RA)}")

        def f2():
            flag_put(A, S_FA2, self.local_out)
            A(f"s_mov_b32 {s(S_FA2)}, {HUGE}")

        def rdw():
            L.wait("dw")
            A(f"v_readfirstlane_b32 {s(S_NGO)}, {v(self.V_RA + 1)}")
        tail = []
        if self.pipe:
            tail.append(Task(kw, [(20, f2)]))
        tail.append(Task(kbar + 3 * NT, [(8, rdw)]))
        tail += self.tail_tasks(wrap, kw)
        sched(A, L, seq, rdt + tasks + [tdma, tsm, tep] + tail, pre={kw: wpoint, kbar: bar}, budget=24, nvalu=5)
        st(3)
        nf_, now = A.newlabel("nf"), A.newlabel("now")
        A(f"s_cmp_lg_u32 {s(S_GO)}, 0")
        A.nf(f"s_cbranch_scc1 {nf_}")

        def step():
            A(f"s_add_u32 {s(S_I)}, {s(S_I)}, 1")
            self.swap_bufs()
            A(f"s_mov_b32 {s(S_L)}, {s(S_NL)}")
            A(f"s_mov_b32 {s(S_S)}, {s(S_NS)}")
            A(f"s_mov_b32 {s(S_GO)}, {s(S_NGO)}")
        if self.pipe:
            if self.expose():
                A.nf(f"s_cbranch_scc1 {now}")
            A(f"s_mov_b32 {s(S_EGO)}, 0")
            step()
            A.nf(f"s_branch {nm}_B{o}")
        A.label(now)
        ntail = A.newlabel("nt")
        A(f"s_mov_b32 {s(S_DEF)}, 0")
        A(f"s_branch {ntail}")
        A.label(nf_)
        A(f"s_mov_b32 {s(S_DEF)}, 2")
        A(f"s_cmp_lg_u32 {s(S_NGO)}, 0")
        A(f"s_cbranch_scc1 {ntail}")
        A(f"s_mov_b32 {s(S_DEF)}, 1")
        A(f"s_mov_b32 {s(S_GO)}, 0")
        for x in self.dma_lines(True):
            A(x)
        A.label(ntail)
        if self.pipe:
            A(f"s_mov_b32 {s(S_EGO)}, 0")
        self.emit_epi()
        A(f"s_mov_b32 {s(S_FA1)}, {s(S_FA2)}")
        A(f"s_mov_b32 {s(S_FA2)}, {HUGE}")
        A(f"s_mov_b32 {s(S_EGO)}, {HUGE}")
        st(4)
        step()
        A(f"s_cmp_eq_u32 {s(S_DEF)}, 0")
        A(f"s_cbranch_scc1 {nm}_B{o}")
        A(f"s_cmp_eq_u32 {s(S_DEF)}, 1")
        A(f"s_cbranch_scc1 {nm}_CD{o}")
        A("s_waitcnt vmcnt(0)")
        flag_put(A, S_FA1, self.local_out)
        A(f"s_mov_b32 {s(S_FA1)}, {HUGE}")
        st(5)
        A(f"s_cmp_eq_u32 {s(S_I)}, 128")
        A(f"s_cbranch_scc1 {nm}_END")
        A(f"s_branch {nm}_COLD{o}")

    def epi_lines(self, guarded):
        PRE_FLAG[0] = True
        cap = self.capture(self.epilogue)
        PRE_FLAG[0] = None
        return cap.l

    def emit_epi(self):
        A = self.A
        run = []
        for x in self.epi_lines(False):
            if self.local_out and x.startswith("buffer_store"):
                run.append(x.replace(" sc1", ""))
                continue
            if run:
                lstore(A, run)
                run = []
            A(x)
        if run:
            lstore(A, run)


class QKV3(G3, QKV32):
    V_CS = 120
    V_SV = 124
    V_SR = 156
    V_ST = 176
    V_PK = 180
    V_SA0, V_SA, V_SW, V_SRD = 188, 189, 190, 191
    V_FO0, V_FO1, V_DC = 12, 13, 14
    kd0, kdstep, kf1, ksmp = 1, 3, 30, 0.55
    psleep = 7
    D = 5

    def __init__(self, A, cfg, nwg, vtype):
        QKV32.__init__(self, A, cfg, nwg, vtype)
        self.psleep = cfg.wgp - 1
        self.kdstep, self.kf1, self.ksmp = cfg.qds, cfg.qf1, cfg.qsm / 100.0

    def expose(self):
        A, cfg = self.A, self.cfg
        A(f"s_cmp_lt_u32 {s(S_I)}, 2")
        if cfg.qx:
            A(f"s_cselect_b32 {s(T)}, 1, {s(S_L)}")
            if cfg.qx == 2 and not self.swap:
                A(f"s_andn2_b32 {s(T)}, {s(T)}, {s(self.S_TYPE)}")
            A(f"s_cmp_lg_u32 {s(T)}, 0")
        return True

    def save_item(self):
        A = self.A
        A(f"s_mov_b32 {s(self.S_EL)}, {s(S_L)}")
        A(f"s_mov_b32 {s(self.S_ES)}, {s(S_S)}")
        if self.swap:
            A(f"ds_write_b64 {v(self.V_SW)}, {v(self.V_ST, 2)}")
            for i in range(4):
                for hf in range(2):
                    A(f"ds_read_b128 {v(self.V_SV + i * 8 + hf * 4, 4)}, {v(self.V_SRD)} offset:{i * 64 + hf * 16}")

    def post_barrier(self):
        A = self.A
        A(f"s_mov_b32 {s(self.S_EL)}, 0")
        A(f"s_mov_b32 {s(self.S_ES)}, 0")

    def epi_lines(self, guarded):
        L = G3.epi_lines(self, guarded)
        out = []
        for x in L:
            out.append(x)
            if x.startswith(f"s_mul_i32 {s(self.E)},"):
                out.append(f"s_add_u32 {s(self.E)}, {s(self.E)}, {s(S_EGO)}")
        out.append(f"s_add_u32 {s(S_FADDR)}, {s(S_FADDR)}, {s(S_EGO)}")
        return out


class QKV4(QKV3):
    S_N0, S_N1, S_W0, S_EX, S_UF0, S_CND = 78, 79, 40, 80, 41, 42
    V_FO0, V_FO1, V_FV0, V_PW, V_DC = 4, 2, 14, 13, 12

    def post_barrier(self):
        QKV3.post_barrier(self)
        A = self.A
        A(f"s_mov_b32 {s(self.S_N0)}, 0")
        A(f"s_mov_b32 {s(self.S_N1)}, 0")
        A(f"s_cmp_eq_u32 {s(S_WAVE)}, 0")
        A(f"s_cselect_b32 {s(self.S_W0)}, {flag_row(F_XIN)}, {HUGE}")
        A(f"s_lshl_b32 {s(T)}, {s(S_WAVE)}, 3")
        A(f"v_add_u32 {v(self.V_PW)}, {s(T)}, {v(self.V_RA)}")

    def decode(self, A):
        A(f"s_lshl_b32 {s(self.S_UF0)}, {s(self.S_N0)}, 9")
        A(f"s_add_u32 {s(self.S_UF0)}, {s(self.S_UF0)}, {s(self.S_W0)}")
        A(f"s_lshl_b32 {s(S_UF)}, {s(self.S_N1)}, 9")
        A(f"s_add_u32 {s(S_UF)}, {s(S_UF)}, {s(self.S_W0)}")
        A(f"s_add_u32 {s(S_UF)}, {s(S_UF)}, {64 * 512}")

    def smp(self):
        return [f"buffer_load_dword {v(V_FV)}, {v(self.V_FO1)}, {WS}, {s(S_UF)} offen sc1",
                f"buffer_load_dword {v(self.V_FV0)}, {v(self.V_FO0)}, {WS}, {s(self.S_UF0)} offen sc1"]

    def dec(self):
        c = self.cfg
        return [f"v_cmp_eq_u32 vcc, 0, {v(self.V_FV0)}", f"s_cmp_eq_u64 vcc, 0\ns_cselect_b32 {s(S_UN)}, 0, {HUGE}",
                f"v_cmp_eq_u32 vcc, 0, {v(V_FV)}",
                f"s_cmp_lt_u32 {s(self.S_N0)}, 64\ns_cselect_b32 {s(S_UN)}, {s(S_UN)}, {HUGE}",
                f"s_cmp_eq_u64 vcc, 0\ns_cselect_b32 {s(T)}, 1, {s(S_UN)}",
                f"s_cmp_lt_u32 {s(self.S_N1)}, 64\ns_cselect_b32 {s(T)}, {s(T)}, {s(S_UN)}",
                f"s_sub_u32 {s(T + 1)}, {s(self.S_N0)}, {s(self.S_N1)}",
                f"s_or_b32 {s(T + 1)}, {s(T + 1)}, {s(S_UN)}",
                f"s_cmp_lt_u32 {s(T + 1)}, {c.LAG + c.qld}\ns_cselect_b32 {s(S_UN)}, 0, {s(T)}",
                f"v_mov_b32 {v(self.V_RA + 1)}, {s(S_UN)}"]

    def put(self):
        return f"ds_write_b32 {v(self.V_PW)}, {v(self.V_RA + 1)}"

    def take(self):
        return [f"s_and_b32 {s(S_GO)}, {s(S_NGO)}, {HUGE}", f"s_and_b32 {s(S_UL)}, {s(S_NGO)}, 1\ns_cselect_b32 {s(S_US)}, {s(self.S_N1)}, {s(self.S_N0)}"]

    def count(self):
        return [f"s_mov_b32 {s(S_NL)}, {s(S_UL)}", f"s_mov_b32 {s(S_NS)}, {s(S_US)}", f"s_add_u32 {s(self.S_N1)}, {s(self.S_N1)}, {s(S_UL)}",
                f"s_or_b32 {s(T)}, {s(S_GO)}, {s(S_UL)}", f"s_cmp_eq_u32 {s(T)}, 0\ns_addc_u32 {s(self.S_N0)}, {s(self.S_N0)}, 0"]

    def pack_store(self, x, pk, soff, off, vaddr):
        QKV3.pack_store(self, x, x[0], soff, off, vaddr)

    def body(self, b, nb):
        if b == 0:
            self.A(f"s_branch {self.name}_COLD0")
            self.main(0)
            self.main(1)
        self.side(b)

    def main(self, b):
        A, cfg, st = self.A, self.cfg, self.st
        nm, NT, R, D = self.name, self.NT, self.R, self.D
        NS = 2 * self.nk
        A.label_nf(f"{nm}_B{b}")
        L = Lds(A)
        L.q = [("F", k) for k in range(D)]
        V = Vm(A)
        self.aset = b
        seq, rdt = [], []
        kbar = (NS - D) * NT
        for k in range(NS):
            for tl in range(NT):
                c = "0" if k == 0 else v(self.acc(tl), 16)
                fr = v(self.V_FR + (k % R) * 4, 4)
                w = self.wtxt(tl, k)
                x, y = (fr, w) if self.swap else (w, fr)
                need = [("F", k + 1)] if (tl == 0 and k % 2 == 0) else []
                seq.append((f"{MF} {v(self.acc(tl), 16)}, {x}, {y}, {c}", need))
            kk = k + D
            rdt.append(Task(k * NT, [(("F", kk), self.rd(kk % NS, b if kk < NS else 1 - b))]))

        def wrap(ls, tag="o"):
            out = []
            for x in ls:
                for y in (groups(x.split("\n")) if "exec" not in x else [x]):
                    if (cfg.xq & 1 and y.startswith("buffer_store")) or (cfg.xq & 2 and y.endswith(" lds")) or (cfg.xq & 4 and tag == "st" and y.startswith("v_")) \
                            or (cfg.xq & 8 and tag == "mid" and not y.startswith("s_")):
                        continue
                    if y.startswith("buffer_"):
                        out.append((cfg.vmc, lambda y=y: V.op(tag, y)))
                    elif y.startswith("ds_"):
                        out.append(("x", y))
                    else:
                        out.append(y)
            return out
        dc = Capture()
        self.decode(dc)
        tdma = Task(cfg.qd0, wrap(groups(self.dma_lines(True))))
        tdma.vstep = self.kdstep
        tcnt = Task(10, wrap([x.replace(s(T), s(T + 5)) for x in self.count()]) + dc.l)
        tsm = Task(int(self.ksmp * NS * NT), wrap(self.smp()))
        tsm.after = tcnt

        def ts(k):
            if cfg.qts:
                A(f"s_memtime {s(16 + 2 * k, 2)}")

        def f1():
            ts(0)
            A(f"s_waitcnt vmcnt({len(V.q)})")
            ts(1)
            flag_put(A, S_FA1)
            A(f"s_mov_b32 {s(S_FA1)}, {HUGE}")
            V.q.append("f")
        self.aset = 1 - b
        te = Task(3, wrap(self.epi_lines(True), "st"))
        tst = []
        for n, it in enumerate(te.items):
            if isinstance(it, tuple):
                t = Task(10 ** 6, [it])
                t.at = cfg.qs0 + cfg.qss * len(tst)
                tst.append(t)
                te.items[n] = (0, lambda t=t: setattr(t, "rel", t.at))
        self.aset = b
        tpre = Task(0, wrap(lines(self, self.pre_mfma), "mid"), step=1)

        def wx():
            assert not tpre.items
            L.wait("x")
        tm = Task(0, [(4, wx)] + wrap(lines(self, self.mid), "mid") + wrap(lines(self, self.save_item), "mid"))
        tm.after = te

        def f2():
            assert not te.items
            ts(2)
            V.wait("st")
            ts(3)
            flag_put(A, S_FA2)
            A(f"s_mov_b32 {s(S_FA2)}, {HUGE}")
            V.q.append("f")
        tf2 = Task(cfg.qf2, [(28, f2)])
        tf2.after = tst[-1] if tst else te
        kw = kbar - cfg.qkw

        def wp():
            assert not tdma.items and not tsm.items
            ts(4)
            V.wait("o")
            ts(5)

        def putw():
            A(self.put())
            L.q.append("pw")
        tdec = Task(kw, [(4, wp)] + wrap(self.dec()) + [(9, putw)])

        def bar():
            assert not tdec.items and not tm.items, (len(tdec.items), len(tm.items))
            L.wait("pw")
            ts(6)
            A("s_barrier")
            ts(7)
            L.op("dw", f"ds_read_b32 {v(self.V_RA + 1)}, {v(self.V_RA)}")

        def rdw():
            L.wait("dw")
            A(f"v_readfirstlane_b32 {s(S_NGO)}, {v(self.V_RA + 1)}")
        fin = [f"s_cmp_lt_u32 {s(S_I)}, 2\ns_cselect_b32 {s(self.S_CND)}, 1, 0",
               f"s_cmp_ge_u32 {s(self.S_N0)}, {64 if cfg.qe0 else 99}\ns_cselect_b32 {s(self.S_CND)}, 1, {s(self.S_CND)}", f"s_or_b32 {s(self.S_CND)}, {s(self.S_CND)}, {s(S_GO)}",
               f"s_mov_b32 {s(S_EGO)}, 0", f"s_add_u32 {s(S_I)}, {s(S_I)}, 1", f"s_sub_u32 {s(S_BUF)}, {self.bufsz}, {s(S_BUF)}",
               f"s_mov_b32 {s(S_L)}, {s(S_NL)}", f"s_mov_b32 {s(S_S)}, {s(S_NS)}"]
        tfin = Task(kbar, fin)
        trd = Task(kbar + 4, [(8, rdw)] + self.take() + [f"s_cmp_lg_u32 {s(self.S_CND)}, 0"])
        trd.after = tfin
        sched(A, L, seq, rdt + [Task(self.kf1, [(28, f1)]), tdec, tf2, tpre] + tst + [tdma, tsm, tcnt, te, tm, tfin, trd], pre={kbar: bar}, budget=24, nvalu=5)
        if cfg.timing == 2:
            if cfg.qts:
                A("s_waitcnt lgkmcnt(0)")
                A("s_sub_u32 s17, s16, s86")
                A("s_add_u32 s87, s87, s17")
                A("s_sub_u32 s17, s18, s16")
                A("s_add_u32 s88, s88, s17")
                A("s_sub_u32 s17, s22, s20")
                A("s_add_u32 s88, s88, s17")
                A("s_sub_u32 s17, s26, s24")
                A("s_add_u32 s89, s89, s17")
                A("s_sub_u32 s17, s30, s28")
                A("s_add_u32 s92, s92, s17")
                A("s_sub_u32 s17, s20, s18")
                A("s_add_u32 s93, s93, s17")
            st(3)
            A(f"s_cmp_lg_u32 {s(self.S_CND)}, 0")
        if b == 0:
            A.nf(f"s_cbranch_scc1 {nm}_S0")
        else:
            A.nf(f"s_cbranch_scc0 {nm}_B0")
            A.nf(f"s_branch {nm}_S1")

    def side(self, b):
        A, cfg, st = self.A, self.cfg, self.st
        nm, D = self.name, self.D
        o = 1 - b
        A.label(f"{nm}_S{b}")
        ntail = A.newlabel("nt")
        A(f"s_mov_b32 {s(S_DEF)}, 0")
        A(f"s_cmp_lt_u32 {s(self.S_CND)}, 2")
        A(f"s_cbranch_scc1 {ntail}")
        A(f"s_mov_b32 {s(S_DEF)}, 2")
        A(f"s_cmp_lg_u32 {s(S_GO)}, 0")
        A(f"s_cbranch_scc1 {ntail}")
        A(f"s_mov_b32 {s(S_DEF)}, 1")
        for x in self.dma_lines(False):
            A(x)
        A.label(ntail)
        A("s_nop 4")
        self.aset = b
        self.emit_epi()
        A(f"s_mov_b32 {s(S_FA1)}, {s(S_FA2)}")
        A(f"s_mov_b32 {s(S_FA2)}, {HUGE}")
        A(f"s_mov_b32 {s(S_EGO)}, {HUGE}")
        st(4)
        A(f"s_cmp_eq_u32 {s(S_DEF)}, 0")
        A(f"s_cbranch_scc1 {nm}_B{o}")
        A(f"s_cmp_eq_u32 {s(S_DEF)}, 1")
        A(f"s_cbranch_scc1 {nm}_CD{o}")
        A("s_waitcnt vmcnt(0)")
        flag_put(A, S_FA1)
        A(f"s_mov_b32 {s(S_FA1)}, {HUGE}")
        st(5)
        A(f"s_cmp_eq_u32 {s(S_I)}, 128")
        A(f"s_cbranch_scc1 {nm}_END")
        A(f"s_branch {nm}_COLD{o}")
        A.label(f"{nm}_COLD{b}")
        lab, top = A.newlabel("cp"), A.newlabel("ct")
        A(f"s_cmp_lg_u32 {s(S_WAVE)}, 0")
        A(f"s_cbranch_scc1 {lab}")
        A.label(top)
        for x in self.smp():
            A(x)
        A("s_waitcnt vmcnt(0)")
        for x in self.dec():
            A(x)
        A(f"s_cmp_lt_u32 {s(S_UN)}, 2")
        A(f"s_cbranch_scc1 {top}x")
        A(f"s_sleep {self.psleep}")
        A(f"s_sub_u32 {s(S_SPIN)}, {s(S_SPIN)}, 1")
        A("s_cbranch_scc1 ABORT")
        A(f"s_branch {top}")
        A.label(top + "x")
        A(f"ds_write_b32 {v(self.V_RA)}, {v(self.V_RA + 1)} offset:4")
        A("s_waitcnt lgkmcnt(0)")
        A.label(lab)
        A("s_barrier")
        A(f"ds_read_b32 {v(self.V_RA + 1)}, {v(self.V_RA)} offset:4")
        A("s_waitcnt lgkmcnt(0)")
        A(f"v_readfirstlane_b32 {s(S_NGO)}, {v(self.V_RA + 1)}")
        A(f"s_and_b32 {s(S_NGO)}, {s(S_NGO)}, 1")
        for x in self.take():
            A(x)
        st(6)
        for x in self.dma_lines(False):
            A(x)
        A.label(f"{nm}_CD{b}")
        A(f"s_mov_b32 {s(S_L)}, {s(S_UL)}")
        A(f"s_mov_b32 {s(S_S)}, {s(S_US)}")
        for x in self.count():
            A(x)
        self.decode(A)
        for x in self.smp():
            A(x)
        A("s_waitcnt vmcnt(0)")
        flag_put(A, S_FA1)
        A(f"s_mov_b32 {s(S_FA1)}, {HUGE}")
        for x in self.dec():
            A(x)
        A(self.put())
        A("s_waitcnt lgkmcnt(0)")
        A("s_barrier")
        A(f"ds_read_b32 {v(self.V_RA + 1)}, {v(self.V_RA)}")
        for k in range(D):
            A(self.rd(k, b))
        A(f"s_waitcnt lgkmcnt({D})")
        A(f"v_readfirstlane_b32 {s(S_NGO)}, {v(self.V_RA + 1)}")
        for x in self.take():
            A(x)
        st(7)
        A(f"s_branch {nm}_B{b}")


class B3(G3):
    kchk, kdstep, ksm2 = 12, 2, 30
    local_in = False
    N1 = 6

    def item(self, i_reg, rl, rs):
        c = self.cfg
        d = c.dlt + c.dl1 + (c.dl2 if self.name != "W1" else 0) + (c.dl3 if self.name == "W3" else 0)
        item_of(self.A, i_reg, rl, rs, c.LAG + d, 0, T)

    def tune(self, cfg):
        self.local_out = bool(cfg.bloc)
        self.local_in = bool(cfg.bloc)
        self.kchk = cfg.bf1
        self.ksm2 = cfg.bsm
        self.psleep = cfg.bps
        self.early_sample = bool(cfg.bea & 2)

    def post_barrier(self):
        A = self.A
        A(f"v_lshl_add_u32 {v(self.V_RA)}, {v(V_LANE)}, 2, {v(self.V_RA)}")
        A(f"v_mov_b32 {v(self.V_RA + 1)}, 0")
        A(f"ds_write_b32 {v(self.V_RA)}, {v(self.V_RA + 1)}")
        A(f"s_mov_b32 {s(S_EGO)}, {self.cfg.spin * 8}")
        A(f"v_and_b32 {v(self.V_TA)}, 15, {v(V_LANE)}")
        A(f"v_lshlrev_b32 {v(self.V_TA)}, 7, {v(self.V_TA)}")
        if self.name == "W2":
            A(f"s_mul_i32 {s(T)}, {s(S_IDX)}, {256 - 2048}")
            A(f"s_add_u32 {s(T)}, {s(T)}, 40960")
            A(f"v_and_b32 {v(V_T)}, 128, {v(self.V_TA)}")
            A(f"v_add_u32 {v(V_T)}, {s(T)}, {v(V_T)}")
            A(f"v_cmp_lt_u32 vcc, 15, {v(V_LANE)}")
            A(f"v_cndmask_b32 {v(self.V_TA)}, {v(self.V_TA)}, {v(V_T)}, vcc")
        if self.cfg.ring:
            self.ring_setup()
        A("s_waitcnt lgkmcnt(0)")
        A("s_barrier")

    def ready(self):
        if self.local_in:
            return []
        return [f"s_add_u32 {s(T + 5)}, {s(S_U)}, 1", f"s_or_b32 {s(T + 5)}, {s(T + 5)}, {s(S_GO)}", f"v_mov_b32 {v(self.V_RA + 1)}, {s(T + 5)}",
                f"ds_max_i32 {v(self.V_RA)}, {v(self.V_RA + 1)}"]

    def check(self):
        if self.cfg.ring:
            return [f"v_cmp_eq_u32 vcc, 0, {v(V_FV)}", f"s_and_b64 vcc, vcc, {s(S_BM, 2)}\ns_cselect_b32 {s(S_GO)}, {HUGE}, 0",
                    f"s_cmp_lt_u32 {s(S_U)}, 128\ns_cselect_b32 {s(S_GO)}, {s(S_GO)}, {HUGE}"]
        return [f"v_cmp_eq_u32 vcc, 0, {v(V_FV)}", f"s_cmp_eq_u64 vcc, 0\ns_cselect_b32 {s(S_GO)}, 0, {HUGE}",
                f"s_cmp_lt_u32 {s(S_U)}, 128\ns_cselect_b32 {s(S_GO)}, {s(S_GO)}, {HUGE}"]

    def block(self):
        A = self.A
        if not self.cfg.ring:
            return flag_block(A, S_UF)
        top, ok = A.newlabel("fb"), A.newlabel("ok")
        A.label(top)
        A(f"buffer_load_dword {v(V_FV)}, {v(V_FO)}, {WS}, {s(S_UF)} offen sc1")
        A("s_waitcnt vmcnt(0)")
        A(f"v_cmp_eq_u32 vcc, 0, {v(V_FV)}")
        A(f"s_and_b64 vcc, vcc, {s(S_BM, 2)}")
        A(f"s_cbranch_scc0 {ok}")
        if self.psleep:
            A(f"s_sleep {self.psleep}")
        A(f"s_sub_u32 {s(S_SPIN)}, {s(S_SPIN)}, 1")
        A("s_cbranch_scc1 ABORT")
        A(f"s_branch {top}")
        A.label(ok)

    def ring_setup(self):
        A = self.A
        kin, nin, kbp, nbp, dist = self.bp
        lo = min(flag_row(kin), flag_row(kbp) - dist * 512)
        A(f"v_min_u32 {v(V_T)}, {nin + nbp - 1}, {v(V_LANE)}")
        A(f"v_lshlrev_b32 {v(V_T)}, 2, {v(V_T)}")
        A(f"v_add_u32 {v(V_FO)}, {flag_row(kin) - lo}, {v(V_T)}")
        A(f"v_add_u32 {v(V_T + 1)}, {flag_row(kbp) - dist * 512 - lo - 4 * nin}, {v(V_T)}")
        A(f"v_cmp_gt_u32 {s(S_IM, 2)}, {nin}, {v(V_LANE)}")
        A(f"v_cndmask_b32 {v(V_FO)}, {v(V_T + 1)}, {v(V_FO)}, {s(S_IM, 2)}")
        for l in range(2):
            for sl in range(self.nslot):
                A(f"s_mov_b32 {s(S_L)}, {l}")
                A(f"s_mov_b32 {s(S_S)}, {sl}")
                self.touch()
        A("s_waitcnt vmcnt(0)")

    def ring_soff(self, dst, rl, rs):
        A = self.A
        kin, nin, kbp, nbp, dist = self.bp
        row_of(A, dst, rl, rs, min(flag_row(kin), flag_row(kbp) - dist * 512))
        A(f"s_cmp_lt_u32 {s(rs)}, {dist}")
        A(f"s_cselect_b64 {s(S_BM, 2)}, {s(S_IM, 2)}, -1")

    def slot_base(self, dst, rl, rs, n, per, size, base):
        A = self.A
        A(f"s_mul_i32 {s(dst)}, {s(rl)}, {per}")
        A(f"s_and_b32 {s(dst + 1)}, {s(rs)}, {n - 1}")
        A(f"s_add_u32 {s(dst)}, {s(dst)}, {s(dst + 1)}")
        A(f"s_mul_i32 {s(dst)}, {s(dst)}, {size}")
        A(f"s_add_u32 {s(dst)}, {s(dst)}, {base}")

    def kmap(self, k):
        jj = k >> 1
        return 2 * (self.nk // 4 * (jj & 3) + (jj >> 2)) + (k & 1)

    def rd(self, k, b):
        q = self.kmap(k)
        return f"ds_read_b128 {v(self.V_FR + (k % self.R) * 4, 4)}, {v(self.V_IA + 2 * b + (q & 1))} offset:{(q >> 1) * 2048}"

    def split_epi(self):
        import re
        sc, rest = [], []
        for x in self.epi_lines(False):
            for k in range(1, 5):
                x = re.sub(rf"\bs{T + k}\b", f"s{69 + k}", x)
            (sc if x.startswith("s_") and "exec" not in x else rest).append(x)
        return sc, rest

    def body(self, b, nb):
        A, cfg, st = self.A, self.cfg, self.st
        nm, NT, R, D = self.name, self.NT, self.R, self.D
        NS = 2 * self.nk
        S_VL, S_VS, S_VF, S_VM = 40, 41, 42, 80
        smp = f"buffer_load_dword {v(V_FV)}, {v(V_FO)}, {WS}, {s(S_UF)} offen sc1"
        ea = self.early_sample
        N1 = self.N1

        def decode2(A):
            import re
            c = Capture()
            self.decode(c)
            A(f"s_add_u32 {s(T + 2)}, {s(S_U)}, 1")
            A(f"s_min_u32 {s(T + 2)}, {s(T + 2)}, 127")
            for x in c.l[1:]:
                for p, q in ((S_UL, S_VL), (S_US, S_VS), (S_UF, S_VF)):
                    x = re.sub(rf"\bs{p}\b", f"s{q}", x)
                A(x.replace(f"s_cselect_b64 {s(S_BM, 2)}", f"s_cselect_b64 {s(S_VM, 2)}"))

        def advance(A=A):
            A(f"s_mov_b32 {s(S_UF)}, {s(S_VF)}")
            if ea:
                A(smp)
            A(f"s_mov_b32 {s(S_NL)}, {s(S_UL)}")
            A(f"s_mov_b32 {s(S_NS)}, {s(S_US)}")
            A(f"s_add_u32 {s(S_U)}, {s(S_U)}, 1")
            A(f"s_mov_b32 {s(S_UL)}, {s(S_VL)}")
            A(f"s_mov_b32 {s(S_US)}, {s(S_VS)}")
            A(f"s_mov_b64 {s(S_BM, 2)}, {s(S_VM, 2)}")

        def dma_ordered():
            L_ = self.dma_lines(True)
            k0 = next(n for n, x in enumerate(L_) if "m0" in x or x.startswith(f"s_lshl_b32 {s(T + 2)}, {s(S_WAVE)}"))
            k1 = next(n for n, x in enumerate(L_) if x.startswith(f"s_mul_i32 {s(T + 1)}, {s(S_WAVE)}, "))
            if k0 > k1:
                return L_
            import re
            st_ = [re.sub(rf"\bs{T}\b", f"s{T + 7}", x) for x in L_[k0:k1]]
            return L_[:k0] + [f"s_mov_b32 {s(T + 7)}, {s(T)}"] + L_[k1:] + st_
        DM = dma_ordered()
        nd = sum(1 for x in DM if x.startswith("buffer_"))
        self.swap_bufs()
        decode2(A)
        A.label(f"{nm}_COLD")
        A(f"s_mov_b32 {s(S_GO)}, 0")
        if self.local_in:
            self.block()
        else:
            oth, done = A.newlabel("wo"), A.newlabel("wd")
            A(f"s_cmp_lg_u32 {s(S_WAVE)}, 0")
            A(f"s_cbranch_scc1 {oth}")
            self.block()
            A.label(f"{nm}_COLD2")
            for x in self.ready():
                A(x)
            A(f"s_branch {done}")
            A.label(oth)
            A(f"ds_read_b32 {v(self.V_RA + 1)}, {v(self.V_RA)}")
            A("s_waitcnt lgkmcnt(0)")
            A(f"v_cmp_ge_u32 vcc, {s(S_U)}, {v(self.V_RA + 1)}")
            A(f"s_cbranch_vccz {done}")
            A(f"s_sleep 1")
            A(f"s_sub_u32 {s(S_EGO)}, {s(S_EGO)}, 1")
            A("s_cbranch_scc1 ABORT")
            A(f"s_branch {oth}")
            A.label(done)
        if self.local_in:
            A.label(f"{nm}_COLD2")
        st(6)
        n = 0
        for x in DM:
            A(x)
            if x.startswith("buffer_"):
                n += 1
                if n == N1:
                    A(f"s_waitcnt vmcnt({N1 if not self.local_in else N1 - 1})")
                    flag_put(A, S_FA1, self.local_out)
                    A(f"s_mov_b32 {s(S_FA1)}, {HUGE}")
        advance()
        self.swap_bufs()
        A(f"s_mov_b32 {s(S_L)}, {s(S_NL)}")
        A(f"s_mov_b32 {s(S_S)}, {s(S_NS)}")
        if ea:
            A(f"s_mov_b32 {s(S_GO)}, {HUGE}")
        A(f"s_waitcnt vmcnt({nd - N1 + 1 + (1 if ea else 0)})")
        A(f"s_branch {nm}_GO")
        A.label(f"{nm}_NEXT")
        self.swap_bufs()
        A(f"s_mov_b32 {s(S_L)}, {s(S_NL)}")
        A(f"s_mov_b32 {s(S_S)}, {s(S_NS)}")
        A(f"s_waitcnt vmcnt({self.nstores})")
        if ea:
            for x in self.check():
                A(x)
        A.label(f"{nm}_GO")
        st(7)
        A("s_barrier")
        L = Lds(A)
        for k in range(D):
            L.op(("F", k), self.rd(k, 0))
        if not ea:
            A(smp)
        st(0)
        seq, rdt = [], []
        for k in range(NS):
            c = "0" if k == 0 else v(self.acc(0), 16)
            fr = v(self.V_FR + (k % R) * 4, 4)
            need = [("F", k) if k < 2 else ("F", k + 1)] if (k % 2 == 0 or k < 2) else []
            seq.append((f"{MF} {v(self.acc(0), 16)}, {self.wtxt(0, self.kmap(k))}, {fr}, {c}", need))
            if k + D < NS:
                rdt.append(Task(k, [(("F", k + D), self.rd(k + D, 0))]))
        nvm = [0 if ea else 1]
        kb2 = 4 * N1 - D

        def vm(x):
            def f():
                A(x)
                nvm[0] += 1
            return (cfg.vmc, f)

        def wrap(ls):
            out = []
            for x in groups([y for z in ls for y in z.split("\n")]):
                out.append(vm(x) if x.startswith("buffer_") else ("x", x) if x.startswith("ds_") else x)
            return out
        tearly = Task(0, wrap(lines(self, self.early)))
        tpre = Task(kb2, wrap(lines(self, self.pre_mfma)), step=1)
        nearly = sum(1 for i in tearly.items if isinstance(i, tuple)) + nvm[0]

        def f1():
            assert not tearly.items
            A(f"s_waitcnt vmcnt({nvm[0] - (0 if ea else 1)})")
            flag_put(A, S_FA1, self.local_out)
            A(f"s_mov_b32 {s(S_FA1)}, {HUGE}")
            nvm[0] += 1

        def bar2():
            assert not tf1.items and self.kchk < kb2
            A("s_barrier")
        d2 = Capture()
        decode2(d2)
        tf1 = Task(self.kchk, [(28, f1)])
        if ea:
            tdma = Task(0, wrap(self.ready()) + wrap(DM) + wrap(d2.l))
            tdma.after = tearly
        else:
            tearly.items += wrap(d2.l)
            tdma = Task(self.kchk, self.check() + wrap(self.ready()) + wrap(DM))
            tdma.after = tf1
        tdma.vstep = self.kdstep

        def wx():
            assert not tpre.items
            L.wait("x")
        tmid = Task(kb2 + 9, [(4, wx)] + wrap(lines(self, self.mid)))
        tmid.after = tpre
        esc, erest = self.split_epi()

        at2 = [0]

        def smp2():
            A(smp)
            nvm[0] += 1
            at2[0] = nvm[0]
        tsm = Task(self.ksm2, [(cfg.vmc + 1, smp2)])
        sched(A, L, seq, rdt + [tpre, tearly, tsm, tf1, tdma, tmid, Task(0, esc)], pre={kb2: bar2}, budget=24, nvalu=5)
        st(3)
        ep, nr, sec = A.newlabel("ep"), A.newlabel("nr"), A.newlabel("sec")

        def epi(extra=()):
            extra = list(extra)
            nv = next(n for n, x in enumerate(erest) if x.startswith("buffer_store"))
            every = max(1, (nv - 4) // max(1, len(extra)))
            run = []
            for n, x in enumerate(erest + [""]):
                if x.startswith("buffer_store"):
                    while extra:
                        for y in extra.pop(0):
                            A(y)
                if self.local_out and x.startswith("buffer_store"):
                    run.append(x.replace(" sc1", ""))
                    continue
                if run:
                    lstore(A, run)
                    run = []
                if extra and n % every == 0:
                    for y in extra.pop(0):
                        A(y)
                if x:
                    A(x)
        self.late(nvm[0] - nearly)
        A(f"s_cmp_eq_u32 {s(S_GO)}, 0")
        A.nf(f"s_cbranch_scc0 {sec}")
        if cfg.timing == 2:
            A("s_add_u32 s88, s88, 128")
        advance()
        A("s_nop 2")
        A.label_nf(ep)
        st(2)
        epi()
        A(f"s_mov_b32 {s(S_FA1)}, {s(S_FA2)}")
        st(4)
        A(f"s_cmp_eq_u32 {s(S_GO)}, 0")
        A(f"s_cbranch_scc1 {nm}_NEXT")
        A(f"s_waitcnt vmcnt({self.nstores})")
        for x in self.check():
            A(x)
        A(f"s_cmp_eq_u32 {s(S_GO)}, 0")
        A(f"s_cbranch_scc1 {nm}_COLD2")
        A("s_waitcnt vmcnt(0)")
        flag_put(A, S_FA1, self.local_out)
        A(f"s_mov_b32 {s(S_FA1)}, {HUGE}")
        st(5)
        A(f"s_cmp_lt_u32 {s(S_U)}, 128")
        A(f"s_cbranch_scc1 {nm}_COLD")
        A(f"s_branch {nm}_END")
        A.label_nf(sec)
        A(f"s_waitcnt vmcnt({nvm[0] - at2[0]})")
        for x in self.check():
            A(x)
        A(f"s_cmp_lg_u32 {s(S_GO)}, 0")
        A.nf(f"s_cbranch_scc1 {nr}")
        if cfg.timing == 2:
            A("s_add_u32 s88, s88, 128000")
        st(2)
        grp, cur_ = [], []
        for x in self.ready() + DM:
            cur_.append(x)
            if x.startswith("buffer_"):
                grp.append(cur_)
                cur_ = []
        c_ = Capture()
        advance(c_)
        epi(grp + [c_.l])
        A(f"s_mov_b32 {s(S_FA1)}, {s(S_FA2)}")
        st(4)
        A(f"s_branch {nm}_NEXT")
        A.label_nf(nr)
        A(smp)
        A.nf(f"s_branch {ep}")

    def late(self, n): pass

    V_TA = 72

    def touch(self):
        A = self.A
        self.out_base()
        A(f"buffer_load_dword {v(self.V_TA + 1)}, {v(self.V_TA)}, {WS}, {s(T + 2)} offen sc1")


class W1_3(B3, W1_32):
    bp = (F_R1, 32, F_X1, 20, NH - 1)
    nslot = NH

    def __init__(self, A, cfg, nwg):
        W1_32.__init__(self, A, cfg, nwg)
        self.tune(cfg)
        self.local_in = False
        self.psleep = cfg.wgp - 1
        self.early_sample = bool(cfg.bea & 1)
        if self.early_sample:
            self.ksm2 = cfg.bsmx
            self.kdstep = cfg.w1d
        else:
            self.kchk, self.kdstep, self.ksm2 = cfg.bf1x, 1, 26

    def init_stores(self):
        if not self.cfg.ring:
            return W1_32.init_stores(self)
        A = self.A
        for i in range(4):
            A(f"v_mov_b32 {v(self.V_PK + i)}, 0")
        A(f"s_lshl_b32 {s(T)}, {s(S_IDX)}, 11")
        for l in range(2):
            A(f"s_add_u32 {s(T + 1)}, {s(T)}, {HB + (l * (NH + 1) + NH) * XSEG}")
            for tt in range(2):
                A(f"buffer_store_dwordx4 {v(self.V_PK, 4)}, {v(V_L16)}, {WS}, {s(T + 1)} offen offset:{tt * 1024} sc1")

    def flag_soff(self, dst, rl, rs):
        return self.ring_soff(dst, rl, rs) if self.cfg.ring else W1_32.flag_soff(self, dst, rl, rs)

    def early(self):
        if not self.cfg.xmt:
            return
        A = self.A
        A(f"s_lshl_b32 {s(T)}, {s(S_L)}, 6")
        A(f"s_add_u32 {s(T)}, {s(T)}, {s(S_S)}")
        A(f"s_mul_i32 {s(T)}, {s(T)}, {XSEG}")
        A(f"s_lshl_b32 {s(T + 1)}, {s(S_IDX)}, 11")
        A(f"s_add_u32 {s(T)}, {s(T)}, {s(T + 1)}")
        A(f"s_add_u32 {s(T)}, {s(T)}, {XM}")
        A(f"buffer_load_dword {v(self.V_TA + 1)}, {v(self.V_TA)}, {WS}, {s(T)} offen sc1")

    def out_base(self):
        if not self.cfg.ring:
            return W1_32.out_base(self)
        self.slot_base(T + 2, S_L, S_S, NH, NH + 1, XSEG, HB)
        self.A(f"s_lshl_b32 {s(T + 3)}, {s(S_IDX)}, 11")
        self.A(f"s_add_u32 {s(T + 2)}, {s(T + 2)}, {s(T + 3)}")


class W3_3(B3, W3_32):
    bp = (F_X1, 20, F_D4, 40, NG)
    nslot = NG

    def __init__(self, A, cfg, nwg):
        W3_32.__init__(self, A, cfg, nwg)
        self.tune(cfg)

    def setup(self):
        W3_32.setup(self)
        if self.cfg.lin:
            self.A(f"v_mov_b32 {v(self.V_OA)}, {v(V_L16)}")
            self.A(f"v_add_u32 {v(self.V_OA + 1)}, 1024, {v(V_L16)}")

    def flag_soff(self, dst, rl, rs):
        return self.ring_soff(dst, rl, rs) if self.cfg.ring else W3_32.flag_soff(self, dst, rl, rs)

    def dma(self, rl, rs, ldsreg):
        if not self.cfg.ring:
            return W3_32.dma(self, rl, rs, ldsreg)
        A = self.A
        self.slot_base(T, rl, rs, NX, NX, XSEGS, X1B)
        self.stats_dma(T, ldsreg)
        A(f"s_mul_i32 {s(T + 1)}, {s(S_WAVE)}, 10240")
        A(f"s_add_u32 {s(T)}, {s(T)}, {s(T + 1)}")
        A(f"s_add_u32 {s(T + 1)}, {s(T + 1)}, {s(ldsreg)}")
        self.lin_dma(T, T + 1, 10)

    def out_base(self):
        if not self.cfg.ring:
            return W3_32.out_base(self)
        self.slot_base(T + 2, S_L, S_S, NG, NG, GSEG, GB)
        self.A(f"s_lshl_b32 {s(T + 3)}, {s(S_IDX)}, 11")
        self.A(f"s_add_u32 {s(T + 2)}, {s(T + 2)}, {s(T + 3)}")


class W2_3(B3, W2_32):
    bp = (F_H, 20, F_D4, 40, NX)
    nslot = NX
    V_SB, V_IO, V_IC = 74, 76, 78
    S_DL = S_K

    def __init__(self, A, cfg, nwg):
        W2_32.__init__(self, A, cfg, nwg)
        self.tune(cfg)

    def setup(self):
        W2_32.setup(self)
        if not self.cfg.ring:
            return
        A = self.A
        for tt in range(2):
            A(f"v_subrev_u32 {v(V_T)}, {XSEG}, {v(self.V_SH + tt)}")
            A(f"v_cmp_gt_u32 vcc, {XSEG}, {v(V_T)}")
            A(f"v_cndmask_b32 {v(self.V_IC + tt)}, 0, 1, vcc")
            A(f"v_xor_b32 {v(self.V_IO + tt)}, 1, {v(self.V_IC + tt)}")
            A(f"v_and_b32 {v(self.V_SB + tt)}, 2047, {v(self.V_SH + tt)}")
        A(f"s_and_b32 {s(self.S_DL)}, {s(S_WAVE)}, 1")
        A(f"s_lshl_b32 {s(self.S_DL)}, {s(self.S_DL)}, 1")
        A(f"s_sub_u32 {s(self.S_DL)}, {s(self.S_DL)}, 1")

    def flag_soff(self, dst, rl, rs):
        if not self.cfg.ring:
            return W2_32.flag_soff(self, dst, rl, rs)
        A = self.A
        A(f"s_add_u32 {s(T)}, {s(rs)}, 1")
        A(f"s_min_u32 {s(T)}, {s(T)}, 63")
        self.ring_soff(dst, rl, T)

    def dma(self, rl, rs, ldsreg):
        if not self.cfg.ring:
            return W2_32.dma(self, rl, rs, ldsreg)
        A = self.A
        A(f"s_add_u32 {s(T + 1)}, {s(rs)}, {s(self.S_DL)}")
        A(f"s_and_b32 {s(T + 2)}, {s(T + 1)}, {NH - 1}")
        A(f"s_cmp_lt_u32 {s(T + 1)}, 64")
        A(f"s_cselect_b32 {s(T + 2)}, {s(T + 2)}, {NH}")
        A(f"s_mul_i32 {s(T + 2)}, {s(T + 2)}, {XSEG}")
        A(f"s_and_b32 {s(T + 1)}, {s(rs)}, {NH - 1}")
        A(f"s_mul_i32 {s(T + 1)}, {s(T + 1)}, {XSEG}")
        for tt in range(2):
            A(f"v_mad_u32_u24 {v(self.V_SH + tt)}, {v(self.V_IO + tt)}, {s(T + 2)}, {v(self.V_SB + tt)}")
            A(f"v_mad_u32_u24 {v(self.V_SH + tt)}, {v(self.V_IC + tt)}, {s(T + 1)}, {v(self.V_SH + tt)}")
        A(f"s_mov_b32 {s(T)}, {s(rl)}")
        A(f"s_mul_i32 {s(T)}, {s(T)}, {(NH + 1) * XSEG}")
        A(f"s_mul_i32 {s(T + 1)}, {s(S_WAVE)}, 10240")
        A(f"s_add_u32 {s(T)}, {s(T)}, {s(T + 1)}")
        A(f"s_add_u32 {s(T)}, {s(T)}, {HB}")
        A(f"s_add_u32 {s(T + 1)}, {s(T + 1)}, {s(ldsreg)}")
        for jl in range(5):
            for tt in range(2):
                A(f"s_add_u32 m0, {s(T + 1)}, {(jl * 2 + tt) * 1024}")
                if tt == 0:
                    A(f"s_add_u32 {s(T + 3)}, {s(T)}, {jl * 2048}")
                A(f"buffer_load_dwordx4 {v(self.V_SH + tt)}, {WS}, {s(T + 3)} offen sc1 lds")

    def mid(self): pass

    def seg_base(self):
        A = self.A
        if self.cfg.ring:
            return self.slot_base(T + 2, S_L, S_S, NX, NX, XSEGS, X1B)
        A(f"s_lshl_b32 {s(T + 2)}, {s(S_L)}, 6")
        A(f"s_add_u32 {s(T + 2)}, {s(T + 2)}, {s(S_S)}")
        A(f"s_mul_i32 {s(T + 2)}, {s(T + 2)}, {XSEGS}")
        A(f"s_add_u32 {s(T + 2)}, {s(T + 2)}, {X1B}")

    def out_base(self):
        self.seg_base()
        self.A(f"s_lshl_b32 {s(T + 3)}, {s(S_IDX)}, 11")
        self.A(f"s_add_u32 {s(T + 2)}, {s(T + 2)}, {s(T + 3)}")

    def epi_lines(self, guarded):
        L = B3.epi_lines(self, guarded)
        return lines(self, self.seg_base) + L[4:]

    def late(self, n):
        self.A(f"s_waitcnt vmcnt({n})")
        W2_32.mid(self)


class WO5(B3, Gemm32):
    name = "WO"
    nk = 24
    bufsz = 49152
    nstores = 2
    N1 = 8
    S_KG, S_OUT, S_FW = S_K, S_K + 1, 75
    V_PK = 112

    def __init__(self, A, cfg, nwg):
        Gemm32.__init__(self, A, cfg, nwg)
        self.local_out, self.local_in = False, bool(cfg.oloc)
        self.early_sample = True
        self.kchk, self.ksm2, self.psleep, self.kdstep = cfg.wf1, cfg.wsm, cfg.bps, 2

    def item(self, i_reg, rl, rs):
        item_of(self.A, i_reg, rl, rs, self.cfg.LAG + self.cfg.dlt, 0, T)

    def setup(self):
        A = self.A
        for k in range(4):
            A(f"v_add_u32 {v(self.V_IA + k)}, {(k & 1) * 1024 + (k >> 1) * self.bufsz}, {v(V_L16)}")
        A(f"s_mul_i32 {s(self.S_KG)}, {s(S_ROLE)}, 52429")
        A(f"s_lshr_b32 {s(self.S_KG)}, {s(self.S_KG)}, 18")
        A(f"s_mul_i32 {s(T)}, {s(self.S_KG)}, 20")
        A(f"s_sub_u32 {s(T)}, {s(S_IDX)}, {s(T)}")
        A(f"s_lshl2_add_u32 {s(T + 1)}, {s(self.S_KG)}, {s(S_WAVE)}")
        A(f"s_lshr_b32 {s(T + 2)}, {s(T + 1)}, 3")
        A(f"s_mul_i32 {s(T + 2)}, {s(T + 2)}, 24")
        A(f"s_add_u32 {s(T + 1)}, {s(T + 1)}, {s(T + 2)}")
        A(f"s_lshl_b32 {s(T + 1)}, {s(T + 1)}, 2")
        A(f"v_mov_b32 {v(V_FO)}, {s(T + 1)}")
        A(f"v_bfe_u32 {v(V_T)}, {v(V_LANE)}, 2, 3")
        A(f"v_mul_u32_u24 {v(self.V_OA)}, 5120, {v(V_T)}")
        A(f"v_and_b32 {v(V_T)}, 3, {v(V_LANE)}")
        A(f"v_lshl_add_u32 {v(self.V_OA)}, {v(V_T)}, 4, {v(self.V_OA)}")
        A(f"v_lshrrev_b32 {v(V_T)}, 5, {v(V_LANE)}")
        A(f"v_lshl_add_u32 {v(self.V_OA)}, {v(V_T)}, 6, {v(self.V_OA)}")
        A(f"s_mul_i32 {s(S_C0)}, {s(self.S_KG)}, {768 * 1280}")
        A(f"s_lshl_b32 {s(T + 1)}, {s(T)}, 6")
        A(f"s_add_u32 {s(S_C0)}, {s(S_C0)}, {s(T + 1)}")
        A(f"s_mul_i32 {s(self.S_OUT)}, {s(self.S_KG)}, 40960")
        A(f"s_lshl_b32 {s(T)}, {s(T)}, 8")
        A(f"s_add_u32 {s(self.S_OUT)}, {s(self.S_OUT)}, {s(T)}")
        A(f"s_add_u32 {s(self.S_OUT)}, {s(self.S_OUT)}, {WOP}")
        A(f"s_lshl_b32 {s(self.S_FW)}, {s(S_IDX)}, 2")
        A(f"s_add_u32 {s(self.S_FW)}, {s(self.S_FW)}, {FWOP2}")

    def weights(self, WL):
        A = self.A
        WL.add(lambda: make_srd(A, SRD_W, P_WO, 6144 * 1280), S_C0, 1280, 2, 24, self.wreg, "perm")

    def ring_setup(self):
        self.A(f"s_mov_b64 {s(S_BM, 2)}, -1")
        self.A(f"s_mov_b64 s[80:81], -1")

    def flag_soff(self, dst, rl, rs):
        row_of(self.A, dst, rl, rs, flag_row(F_O))

    def dma(self, rl, rs, ldsreg):
        A = self.A
        A(f"s_mul_i32 {s(T)}, {s(rs)}, {QKV_SEG}")
        A(f"s_mul_i32 {s(T + 1)}, {s(self.S_KG)}, 49152")
        A(f"s_add_u32 {s(T)}, {s(T)}, {s(T + 1)}")
        A(f"s_mul_i32 {s(T + 1)}, {s(S_WAVE)}, 12288")
        A(f"s_add_u32 {s(T)}, {s(T)}, {s(T + 1)}")
        A(f"s_add_u32 {s(T)}, {s(T)}, {OX}")
        A(f"s_add_u32 {s(T + 1)}, {s(T + 1)}, {s(ldsreg)}")
        self.lin_dma(T, T + 1, 12)

    def epilogue(self):
        A = self.A
        A(f"s_mul_i32 {s(T + 2)}, {s(S_S)}, {WOP_SEG}")
        A(f"s_add_u32 {s(T + 2)}, {s(T + 2)}, {s(self.S_OUT)}")
        A(f"s_lshl_b32 {s(T + 1)}, {s(S_L)}, 6")
        A(f"s_add_u32 {s(T + 1)}, {s(T + 1)}, {s(S_S)}")
        A(f"s_mul_i32 {s(T + 1)}, {s(T + 1)}, 640")
        A(f"s_add_u32 {s(S_FADDR)}, {s(T + 1)}, {s(self.S_FW)}")
        for i in range(8):
            A(f"v_cvt_pk_bf16_f32 {v(self.V_PK + i)}, {v(self.acc(0) + 2 * i)}, {v(self.acc(0) + 2 * i + 1)}")
        for k in range(2):
            A(f"buffer_store_dwordx4 {v(self.V_PK + 4 * k, 4)}, {v(self.V_OA)}, {WS}, {s(T + 2)} offen offset:{k * 128} sc1")


def gen_r3(A, cfg, nwg):
    V_XA, V_XB, V_XD, V_BA, V_LWA, V_LRA, V_FW = 16, 17, 18, 19, 20, 21, 24
    V_ST = 28
    V_P, V_PB, V_X, V_XX = 36, 68, 76, 80
    V_A, V_B, V_U = 82, 92, 100
    V_PM, V_PY, V_LR = 112, 124, 136
    S_LAY, S_PW, S_XW, S_XS, S_LO, S_HI, S_O1, S_O2 = range(S_K, S_K + 8)
    lane_reduce, sums, norm, _ = row_helpers(A)
    A.label("ROLE_R1")
    A(f"s_lshr_b32 {s(S_LAY)}, {s(S_ROLE)}, 3")
    A(f"s_and_b32 {s(S_ROLE)}, {s(S_ROLE)}, 7")
    base_setup(A)
    dq, g_, c_ = V_T, V_T + 1, V_T + 2
    A(f"v_lshrrev_b32 {v(dq)}, 4, {v(V_LANE)}")
    A(f"v_bfe_u32 {v(g_)}, {v(V_LANE)}, 2, 2")
    A(f"v_and_b32 {v(c_)}, 3, {v(V_LANE)}")
    A(f"v_add_u32 {v(V_T + 3)}, {s(S_ROLE)}, {v(g_)}")
    A(f"v_and_b32 {v(V_T + 3)}, 3, {v(V_T + 3)}")
    A(f"v_lshlrev_b32 {v(V_XB)}, 6, {v(V_T + 3)}")
    A(f"v_lshl_add_u32 {v(V_XB)}, {v(c_)}, 4, {v(V_XB)}")
    A(f"s_lshl_b32 {s(T)}, {s(S_ROLE)}, 8")
    A(f"s_lshl_b32 {s(T + 1)}, {s(S_WAVE)}, 13")
    A(f"s_add_u32 {s(T + 1)}, {s(T + 1)}, {s(T)}")
    A(f"v_lshl_add_u32 {v(V_XA)}, {v(dq)}, 11, {v(V_XB)}")
    A(f"v_add_u32 {v(V_XA)}, {s(T + 1)}, {v(V_XA)}")
    A(f"s_lshl_b32 {s(T + 1)}, {s(S_WAVE)}, 11")
    A(f"s_add_u32 {s(T + 1)}, {s(T + 1)}, {s(T)}")
    A(f"s_add_u32 {s(T + 1)}, {s(T + 1)}, 32768")
    A(f"v_add_u32 {v(V_XB)}, {s(T + 1)}, {v(V_XB)}")
    A(f"v_lshl_add_u32 {v(V_XD)}, {v(dq)}, 2, {v(V_XB)}")
    A(f"v_mul_u32_u24 {v(V_BA)}, 40960, {v(dq)}")
    A(f"v_and_b32 {v(V_T + 3)}, 0xff, {v(V_L16)}")
    A(f"v_add_u32 {v(V_BA)}, {v(V_BA)}, {v(V_T + 3)}")
    A(f"s_mul_i32 {s(T)}, {s(S_WAVE)}, 768")
    A(f"s_sub_u32 {s(T)}, 4096, {s(T)}")
    A(f"v_add_u32 {v(V_BA)}, {s(T)}, {v(V_BA)}")
    A(f"s_mul_i32 {s(S_PW)}, {s(S_ROLE)}, 5120")
    A(f"s_lshl_b32 {s(T)}, {s(S_WAVE)}, 10")
    A(f"s_add_u32 {s(S_PW)}, {s(S_PW)}, {s(T)}")
    A(f"s_add_u32 {s(S_PW)}, {s(S_PW)}, {WOP}")
    A(f"s_cmp_eq_u32 {s(S_LAY)}, 0")
    A(f"s_mov_b32 {s(S_XW)}, {XIN + 64 * XSEGS}")
    A(f"s_cselect_b32 {s(S_XW)}, {X0R}, {s(S_XW)}")
    A(f"s_mov_b32 {s(S_XS)}, {XSEGS}")
    A(f"s_cselect_b32 {s(S_XS)}, {XSEG}, {s(S_XS)}")
    A(f"s_mov_b32 {s(S_LO)}, 0x3f80")
    A(f"s_mov_b32 {s(S_HI)}, 0x3f800000")
    A(f"v_lshlrev_b32 {v(V_LRA)}, 5, {v(c_)}")
    A(f"s_lshl_b32 {s(T)}, {s(S_WAVE)}, 3")
    A(f"v_add_u32 {v(V_LWA)}, {s(T)}, {v(V_LRA)}")
    A(f"v_min_u32 {v(V_FO)}, 39, {v(V_LANE)}")
    A(f"v_lshlrev_b32 {v(V_FO)}, 4, {v(V_FO)}")
    init_barrier_arrive(A, V_T)
    numa_probe(A, cfg, S_LAY)
    init_barrier_wait(A, V_T, nwg, cfg)
    st = Stamper(A, cfg, 84, 10)
    A(f"s_mov_b32 s83, {s(S_GID)}")
    st.init()
    A(f"s_mov_b32 {s(S_L)}, {s(S_LAY)}")
    A(f"s_mov_b32 {s(S_S)}, 0")
    A(f"s_mul_i32 {s(S_UF)}, {s(S_LAY)}, {64 * 640}")
    A(f"s_add_u32 {s(S_UF)}, {s(S_UF)}, {FWOP2}")
    A.label("R1_LOOP")
    A(f"s_mul_i32 {s(T + 6)}, {s(S_S)}, {WOP_SEG}")
    A(f"s_add_u32 {s(T + 6)}, {s(T + 6)}, {s(S_PW)}")
    A(f"s_mul_i32 {s(T + 5)}, {s(S_S)}, {s(S_XS)}")
    A(f"s_add_u32 {s(T + 5)}, {s(T + 5)}, {s(S_XW)}")
    A(f"s_lshl_b32 {s(T)}, {s(S_L)}, 6")
    A(f"s_add_u32 {s(T)}, {s(T)}, {s(S_S)}")
    A(f"s_mul_i32 {s(S_O1)}, {s(T)}, {XSEG}")
    A(f"s_add_u32 {s(S_O1)}, {s(S_O1)}, {XM}")
    A(f"s_mul_i32 {s(S_O2)}, {s(T)}, {XSEGS}")
    A(f"s_add_u32 {s(S_O2)}, {s(S_O2)}, {YB}")
    flag_addr(A, S_FADDR, flag_row(F_R1))
    lab, top = A.newlabel("rp"), A.newlabel("rt")
    A(f"s_cmp_lg_u32 {s(S_WAVE)}, 0")
    A(f"s_cbranch_scc1 {lab}")
    A.label(top)
    A(f"buffer_load_dwordx4 {v(V_FW, 4)}, {v(V_FO)}, {WS}, {s(S_UF)} offen sc1")
    A("s_waitcnt vmcnt(0)")
    A(f"v_min3_u32 {v(V_FW)}, {v(V_FW)}, {v(V_FW + 1)}, {v(V_FW + 2)}")
    A(f"v_min_u32 {v(V_FW)}, {v(V_FW)}, {v(V_FW + 3)}")
    A(f"v_cmp_eq_u32 vcc, 0, {v(V_FW)}")
    poll_tail(A, top, sleep=cfg.wgp - 1)
    A.label(lab)
    A("s_barrier")
    st(9)
    V = Vm(A)
    for m in range(2):
        A(f"s_add_u32 {s(T + 3)}, {s(T + 6)}, {m * 4 * 40960}")
        V.op(("B", m), f"buffer_load_dwordx4 {v(V_PB + 4 * m, 4)}, {v(V_BA)}, {WS}, {s(T + 3)} offen sc1")
    V.op("x", f"buffer_load_dwordx4 {v(V_X, 4)}, {v(V_XA)}, {WS}, {s(T + 5)} offen sc1")
    V.op("x", f"buffer_load_dword {v(V_XX)}, {v(V_XD)}, {WS}, {s(T + 5)} offen sc1")
    for kg in range(8):
        A(f"s_add_u32 {s(T + 3)}, {s(T + 6)}, {kg * 40960}")
        V.op(("P", kg), f"buffer_load_dwordx4 {v(V_P + 4 * kg, 4)}, {v(V_L16)}, {WS}, {s(T + 3)} offen sc1")

    def accum(dst, src):
        for i in range(4):
            A(f"v_dot2c_f32_bf16 {v(dst + 2 * i)}, {s(S_LO)}, {v(src + i)}")
            A(f"v_dot2c_f32_bf16 {v(dst + 2 * i + 1)}, {s(S_HI)}, {v(src + i)}")
    V.wait(("B", 0))
    unpack8(A, V_B, V_PB)
    V.wait(("B", 1))
    accum(V_B, V_PB + 4)
    for i in range(4):
        A(f"v_permlane32_swap_b32 {v(V_B + i)}, {v(V_B + 4 + i)}")
    for i in range(4):
        A(f"v_add_f32 {v(V_B + i)}, {v(V_B + i)}, {v(V_B + 4 + i)}")
    for i in range(2):
        A(f"v_permlane16_swap_b32 {v(V_B + i)}, {v(V_B + 2 + i)}")
    for i in range(2):
        A(f"v_add_f32 {v(V_A + 8 + i)}, {v(V_B + i)}, {v(V_B + 2 + i)}")
    V.wait("x")
    unpack8(A, V_U, V_X)
    A(f"v_lshlrev_b32 {v(V_U + 8)}, 16, {v(V_XX)}")
    A(f"v_and_b32 {v(V_U + 9)}, 0xffff0000, {v(V_XX)}")
    V.wait(("P", 0))
    unpack8(A, V_A, V_P)
    for kg in range(1, 8):
        V.wait(("P", kg))
        accum(V_A, V_P + 4 * kg)
    st(4)
    X = [V_A + i for i in range(10)]
    for i in range(0, 10, 2):
        if cfg.arn:
            rnd2(A, V_T + (i & 2), X[i], X[i + 1])
    for i in range(0, 10, 2):
        A(f"v_pk_add_f32 {v(X[i], 2)}, {v(X[i], 2)}, {v(V_U + i, 2)}")
    for i in range(0, 10, 2):
        rnd2(A, V_PM + i // 2, X[i], X[i + 1])
    sums(X, V_ST)
    lane_reduce(V_ST)
    A(f"ds_write_b64 {v(V_LWA)}, {v(V_ST, 2)}")

    def out(b, soff):
        A(f"buffer_store_dwordx4 {v(b, 4)}, {v(V_XA)}, {WS}, {s(soff)} offen sc1")
        A(f"v_mov_b32 {v(b + 5)}, {v(b + 4)}")
        A(f"v_permlane16_swap_b32 {v(b + 4)}, {v(b + 5)}")
        A(f"v_permlane32_swap_b32 {v(b + 4)}, {v(b + 6)}")
        A(f"v_permlane32_swap_b32 {v(b + 5)}, {v(b + 7)}")
        A("s_mov_b64 exec, 0xffff")
        A(f"buffer_store_dwordx4 {v(b + 4, 4)}, {v(V_XB)}, {WS}, {s(soff)} offen sc1")
        A("s_mov_b64 exec, -1")
    A("s_waitcnt lgkmcnt(0)")
    A("s_barrier")
    A(f"ds_read_b128 {v(V_LR, 4)}, {v(V_LRA)}")
    A(f"ds_read_b128 {v(V_LR + 4, 4)}, {v(V_LRA)} offset:16")
    out(V_PM, S_O1)
    A("s_waitcnt lgkmcnt(0)")
    A(f"v_pk_add_f32 {v(V_LR, 2)}, {v(V_LR, 2)}, {v(V_LR + 2, 2)}")
    A(f"v_pk_add_f32 {v(V_LR + 4, 2)}, {v(V_LR + 4, 2)}, {v(V_LR + 6, 2)}")
    A(f"v_pk_add_f32 {v(V_ST, 2)}, {v(V_LR, 2)}, {v(V_LR + 4, 2)}")
    finish_stats(A, V_ST, V_ST + 1, V_T, keep=V_ST + 4)
    for i in range(0, 10, 2):
        A(f"v_pk_add_f32 {v(X[i], 2)}, {v(X[i], 2)}, {v(V_ST, 2)} op_sel_hi:[1,0] neg_lo:[0,1] neg_hi:[0,1]")
    for i in range(0, 10, 2):
        rnd2(A, V_T + (i & 2), X[i], X[i + 1])
    for i in range(0, 10, 2):
        A(f"v_pk_mul_f32 {v(X[i], 2)}, {v(X[i], 2)}, {v(V_ST, 2)} op_sel:[0,1] op_sel_hi:[1,1]")
    for i in range(0, 10, 2):
        A(f"v_cvt_pk_bf16_f32 {v(V_PY + i // 2)}, {v(X[i])}, {v(X[i + 1])}")
    out(V_PY, S_O2)
    lz = A.newlabel("zs")
    A(f"s_cmp_lg_u32 {s(S_WAVE)}, 3")
    A(f"s_cbranch_scc1 {lz}")
    A(f"v_sub_f32 {v(V_ST + 4)}, {v(V_ST + 4)}, {v(V_ST)}")
    A(f"v_mul_f32 {v(V_ST + 5)}, {v(V_ST + 5)}, {v(V_ST + 1)}")
    A(f"v_mul_f32 {v(V_ST + 4)}, {v(V_ST + 4)}, {v(V_ST + 1)}")
    A(f"v_mul_f32 {v(V_ST + 5)}, {v(V_ST + 5)}, {v(V_ST + 1)}")
    finish_stats(A, V_ST + 4, V_ST + 5, V_T, scaled=True)
    A(f"s_lshl_b32 {s(T)}, {s(S_ROLE)}, 5")
    A(f"s_add_u32 {s(T + 3)}, {s(S_O2)}, {s(T)}")
    A(f"s_add_u32 {s(T + 3)}, {s(T + 3)}, 40960")
    A(f"v_lshlrev_b32 {v(V_T)}, 3, {v(V_LANE)}")
    A("s_mov_b64 exec, 15")
    A(f"buffer_store_dwordx2 {v(V_ST + 4, 2)}, {v(V_T)}, {WS}, {s(T + 3)} offen sc1")
    A("s_mov_b64 exec, -1")
    A.label(lz)
    st(7)
    A(f"s_add_u32 {s(S_S)}, {s(S_S)}, 1")
    A(f"s_add_u32 {s(S_UF)}, {s(S_UF)}, 640")
    A("s_waitcnt vmcnt(0)")
    flag_put(A, S_FADDR)
    st(8)
    A(f"s_cmp_lt_u32 {s(S_S)}, 64")
    A("s_cbranch_scc1 R1_LOOP")
    st.dump(83, T, V_T)
    A("s_endpgm")


class WO_3(G3, WO32):
    def __init__(self, A, cfg, nwg):
        WO32.__init__(self, A, cfg, nwg)
        self.kd0, self.kdstep, self.kf1, self.ksmp, self.psleep = 0, 2, 24, 0.6, cfg.wgp - 1


class Vm:
    def __init__(self, A, q=()):
        self.A, self.q = A, list(q)

    def op(self, tag, text):
        self.A(text)
        self.q.append(tag)

    def wait(self, tag):
        if tag not in self.q:
            return
        i = len(self.q) - 1 - self.q[::-1].index(tag)
        self.A(f"s_waitcnt vmcnt({len(self.q) - 1 - i})")
        self.q = self.q[i + 1:]


def gen_ks(A, cfg, nwg, wo):
    nm = "WO" if wo else "W4"
    V_IN, V_ACC, V_RD, V_XX, V_XU, V_PK = 16, 112, 144, 176, 184, 200
    V_SAD, V_OA, V_LW, V_LR, V_CA = 204, 205, 206, 207, 208
    S_J, S_TT, S_CH, S_INW, S_CB, S_NB, S_OUT, S_FW = range(S_K, S_K + 8)
    SRD_O = 76
    assert cfg.ring
    local_in = bool(cfg.oloc if wo else cfg.bloc)
    A.label("ROLE_" + nm)
    base_setup(A)
    for k in range(2):
        chunk_addr(A, V_CA + k, k, False)
    if wo:
        S_KG, S_CG = T + 4, T + 5
        A(f"s_mul_i32 {s(S_KG)}, {s(S_ROLE)}, 6554")
        A(f"s_lshr_b32 {s(S_KG)}, {s(S_KG)}, 16")
        A(f"s_mul_i32 {s(T)}, {s(S_KG)}, 10")
        A(f"s_sub_u32 {s(S_CG)}, {s(S_ROLE)}, {s(T)}")
        A(f"v_min_u32 {v(V_FO)}, 1, {v(V_LANE)}")
        A(f"s_lshl_b32 {s(T)}, {s(S_KG)}, 4")
        A(f"s_add_u32 {s(T)}, {s(T)}, {s(S_WAVE)}")
        A(f"s_lshl_b32 {s(T)}, {s(T)}, 1")
    else:
        S_CG = S_ROLE
        A(f"v_min_u32 {v(V_FO)}, 11, {v(V_LANE)}")
        A(f"s_mul_i32 {s(T)}, {s(S_WAVE)}, 12")
    A(f"v_add_u32 {v(V_FO)}, {s(T)}, {v(V_FO)}")
    A(f"v_lshlrev_b32 {v(V_FO)}, 2, {v(V_FO)}")
    A(f"s_and_b32 {s(T)}, {s(S_WAVE)}, 1")
    A(f"s_lshl_b32 {s(S_J)}, {s(S_CG)}, 1")
    A(f"s_add_u32 {s(S_J)}, {s(S_J)}, {s(T)}")
    A(f"s_lshr_b32 {s(S_TT)}, {s(S_WAVE)}, 1")
    A(f"s_mul_i32 {s(S_INW)}, {s(S_WAVE)}, 24576")
    A(f"s_mul_i32 {s(S_C0)}, {s(S_WAVE)}, {384 * 1280}")
    A(f"s_lshl_b32 {s(T + 1)}, {s(S_CG)}, 7")
    A(f"s_add_u32 {s(S_C0)}, {s(S_C0)}, {s(T + 1)}")
    if wo:
        A(f"s_mul_i32 {s(T + 1)}, {s(S_KG)}, {1536 * 1280}")
        A(f"s_add_u32 {s(S_C0)}, {s(S_C0)}, {s(T + 1)}")
        A(f"s_mul_i32 {s(T + 1)}, {s(S_KG)}, 98304")
        A(f"s_add_u32 {s(S_INW)}, {s(S_INW)}, {s(T + 1)}")
        A(f"s_add_u32 {s(S_INW)}, {s(S_INW)}, {OX}")
        A(f"v_bfe_u32 {v(V_T)}, {v(V_LANE)}, 2, 2")
        A(f"v_mul_u32_u24 {v(V_OA)}, 10240, {v(V_T)}")
        A(f"v_and_b32 {v(V_T)}, 3, {v(V_LANE)}")
        A(f"v_lshl_add_u32 {v(V_OA)}, {v(V_T)}, 4, {v(V_OA)}")
        A(f"v_lshrrev_b32 {v(V_T)}, 4, {v(V_LANE)}")
        A(f"v_lshl_add_u32 {v(V_OA)}, {v(V_T)}, 6, {v(V_OA)}")
        A(f"s_mul_i32 {s(S_OUT)}, {s(S_KG)}, 81920")
        A(f"s_mul_i32 {s(T + 1)}, {s(S_TT)}, 40960")
        A(f"s_add_u32 {s(S_OUT)}, {s(S_OUT)}, {s(T + 1)}")
        A(f"s_lshl_b32 {s(T + 1)}, {s(S_J)}, 9")
        A(f"s_add_u32 {s(S_OUT)}, {s(S_OUT)}, {s(T + 1)}")
        A(f"s_add_u32 {s(S_OUT)}, {s(S_OUT)}, {WOP}")
        A(f"s_lshl1_add_u32 {s(S_FW)}, {s(S_ROLE)}, {s(T)}")
        A(f"s_lshl_b32 {s(S_FW)}, {s(S_FW)}, 2")
        A(f"s_mul_i32 {s(T + 1)}, {s(S_TT)}, 320")
        A(f"s_add_u32 {s(S_FW)}, {s(S_FW)}, {s(T + 1)}")
        A(f"s_add_u32 {s(S_FW)}, {s(S_FW)}, {FWOP2}")
    else:
        A(f"s_add_u32 {s(S_INW)}, {s(S_INW)}, {GB}")
        A(f"v_and_b32 {v(V_T)}, 15, {v(V_LANE)}")
        A(f"v_lshlrev_b32 {v(V_SAD)}, 3, {v(V_T)}")
        A(f"s_lshl_b32 {s(T)}, {s(S_TT)}, 4")
        A(f"v_add_u32 {v(V_T)}, {s(T)}, {v(V_T)}")
        A(f"v_mul_u32_u24 {v(V_OA)}, 1280, {v(V_T)}")
        A(f"v_lshrrev_b32 {v(V_T)}, 4, {v(V_LANE)}")
        A(f"v_lshl_add_u32 {v(V_OA)}, {v(V_T)}, 3, {v(V_OA)}")
        A(f"s_lshl_b32 {s(T)}, {s(S_J)}, 6")
        A(f"v_add_u32 {v(V_OA)}, {s(T)}, {v(V_OA)}")
        make_srd(A, SRD_O, P_OUT, 2048 * 1280)
        A(f"s_lshl_b32 {s(S_CH)}, {s(S_J)}, 1")
        A(f"s_add_u32 {s(S_CH)}, {s(S_CH)}, {s(S_TT)}")
        A(f"s_lshl_b32 {s(S_CH)}, {s(S_CH)}, 10")
    A(f"v_bfe_u32 {v(V_T)}, {v(V_LANE)}, 4, 1")
    A(f"v_lshlrev_b32 {v(V_LW)}, 14, {v(V_T)}")
    A(f"v_lshrrev_b32 {v(V_T)}, 5, {v(V_LANE)}")
    A(f"v_lshl_add_u32 {v(V_LW)}, {v(V_T)}, 8, {v(V_LW)}")
    A(f"v_and_b32 {v(V_T)}, 15, {v(V_LANE)}")
    A(f"v_lshl_add_u32 {v(V_LW)}, {v(V_T)}, 4, {v(V_LW)}")
    A(f"s_lshl_b32 {s(T)}, {s(S_WAVE)}, 11")
    A(f"v_add_u32 {v(V_LW)}, {s(T)}, {v(V_LW)}")
    A(f"s_lshl_b32 {s(T)}, {s(S_WAVE)}, 13")
    A(f"v_add_u32 {v(V_LR)}, {s(T)}, {v(V_L16)}")
    init_barrier_arrive(A, V_T)
    if cfg.lw:
        wait_first(A, cfg, nwg)
    WL = WLoader(A, V_T, T + 3)
    WL.add(lambda: make_srd(A, SRD_W, P_WO if wo else P_W4, (6144 if wo else 1536) * 1280), S_C0, 1280, 4, 12,
           lambda tl, j, u: ("a", ((tl * 12 + j) * 2 + u) * 4), "perm")
    WL.emit(V_LANE)
    A("s_barrier")
    if not cfg.lw:
        init_barrier_wait(A, V_T, nwg, cfg)
    st = Stamper(A, cfg, 84, 8)
    A(f"s_mov_b32 s83, {s(S_GID)}")

    def decode(A):
        A(f"s_min_u32 {s(T + 2)}, {s(S_U)}, 127")
        item_of(A, T + 2, S_UL, S_US, cfg.LAG + cfg.dlt + (0 if wo else cfg.dl1 + cfg.dl2 + cfg.dl3 + cfg.dl4), 0, T)
        row_of(A, S_UF, S_UL, S_US, flag_row(F_O if wo else F_G))
        if wo:
            A(f"s_mul_i32 {s(S_NB)}, {s(S_US)}, {QKV_SEG}")
        else:
            if cfg.ring:
                A(f"s_and_b32 {s(T)}, {s(S_US)}, {NG - 1}")
                A(f"s_lshl2_add_u32 {s(T)}, {s(S_UL)}, {s(T)}")
            else:
                A(f"s_lshl_b32 {s(T)}, {s(S_UL)}, 6")
                A(f"s_add_u32 {s(T)}, {s(T)}, {s(S_US)}")
            A(f"s_mul_i32 {s(S_NB)}, {s(T)}, {GSEG}")
        A(f"s_add_u32 {s(S_NB)}, {s(S_NB)}, {s(S_INW)}")

    def ld(k, base, first=False):
        r = []
        if k % 4 == 0 or first:
            r.append(f"s_add_u32 {s(T + 3)}, {s(base)}, {(k // 4) * 4096}")
        if cfg.lin:
            r.append(f"buffer_load_dwordx4 {v(V_IN + 4 * k, 4)}, {v(V_L16)}, {WS}, {s(T + 3)} offen offset:{(k & 3) * 1024} sc1")
        else:
            r.append(f"buffer_load_dwordx4 {v(V_IN + 4 * k, 4)}, {v(V_CA + (k & 1))}, {WS}, {s(T + 3)} offen offset:{((k >> 1) & 1) * 2048} sc1")
        return r
    smp = f"buffer_load_dword {v(V_FV)}, {v(V_FO)}, {WS}, {s(S_UF)} offen sc1"
    check = [f"v_cmp_eq_u32 vcc, 0, {v(V_FV)}", f"s_cmp_eq_u64 vcc, 0\ns_cselect_b32 {s(S_GO)}, 0, {HUGE}",
             f"s_cmp_lt_u32 {s(S_U)}, 128\ns_cselect_b32 {s(S_GO)}, {s(S_GO)}, {HUGE}"]
    AC, AW = cfg.kac, cfg.kah
    S_NG, E = T + 7, T + 4
    S_O1, S_O2, S_O3 = 40, 41, 42
    SK = 4

    def wr(tl):
        return [f"ds_write_b128 {v(V_LW)}, {v(V_ACC + 16 * tl + 8 * k + 4 * pc, 4)} offset:{tl * 8192 + pc * 1024 + k * 512}" for k in range(2) for pc in range(2)]

    S_VL, S_VS, S_VF, S_VB = 28, 29, 30, 31
    import re

    def decode2(A):
        c = Capture()
        decode(c)
        A(f"s_add_u32 {s(T + 2)}, {s(S_U)}, 1")
        A(f"s_min_u32 {s(T + 2)}, {s(T + 2)}, 127")
        for x in c.l[1:]:
            for p, q in ((S_UL, S_VL), (S_US, S_VS), (S_UF, S_VF), (S_NB, S_VB)):
                x = re.sub(rf"\bs{p}\b", f"s{q}", x)
            A(x)

    def shift():
        A(f"s_mov_b32 {s(S_L)}, {s(S_UL)}")
        A(f"s_mov_b32 {s(S_S)}, {s(S_US)}")
        A(f"s_mov_b32 {s(S_CB)}, {s(S_NB)}")
        A(f"s_add_u32 {s(S_U)}, {s(S_U)}, 1")
        A(f"s_mov_b64 {s(S_UL + 1, 2)}, {s(S_VL + 1, 2)}" if False else f"s_mov_b32 {s(S_UL)}, {s(S_VL)}")
        A(f"s_mov_b32 {s(S_US)}, {s(S_VS)}")
        A(f"s_mov_b32 {s(S_UF)}, {s(S_VF)}")
        A(f"s_mov_b32 {s(S_NB)}, {s(S_VB)}")

    sq = [(k, tl) for k in range(24 - SK) for tl in range(2)] + [(k, tl) for tl in range(2) for k in range(24 - SK, 24)]

    def body(AH, kind):
        L = Lds(A)
        V = Vm(A, [("I", k) for k in range(AH)] + (["st", "st"] if kind != "C" else []))
        seq, pre = [], {}

        def vm(tag, x):
            return (cfg.vmc, lambda: V.op(tag, x))
        for n, (k, tl) in enumerate(sq):
            if tl == 0:
                pre[n] = (lambda k=k: V.wait(("I", k)))
            c = "0" if k == 0 else v(V_ACC + 16 * tl, 16)
            seq.append((f"{MF} {v(V_ACC + 16 * tl, 16)}, {a((tl * 24 + k) * 4, 4)}, {v(V_IN + 4 * k, 4)}, {c}", []))
        dec = Capture()
        decode2(dec)
        tdec = Task(0, groups(dec.l))
        tcur = Task(0, [])
        for kk in range(AH, 24):
            ls = ld(kk, S_CB, kk == AH)
            tcur.items += ls[:-1] + [vm(("I", kk), ls[-1])]
        tcur.vstep = 2

        def nxt(off):
            t = Task(0, [])
            for kk in range(AH):
                ls = ld(kk, S_NB)

                def nx(kk=kk, x=ls[-1]):
                    assert GAP[0] + off >= sq.index((kk, 1)) and not tcur.items
                    V.op(("N", kk), x)
                t.items += ls[:-1] + [(cfg.vmc, nx)]
            t.vstep = 2
            t.after = tcur
            return t

        def f1():
            V.wait(("I", AH) if kind == "C" else "st")
            flag_put(A, S_FA1)
            V.q.append("f")
            A(f"s_mov_b32 {s(S_FA1)}, {HUGE}")
        misc = [f"v_xor_b32 {v(V_LW)}, 0x8000, {v(V_LW)}", f"v_xor_b32 {v(V_LR)}, 0x8000, {v(V_LR)}"]
        if wo:
            misc += [f"s_mul_i32 {s(S_O1)}, {s(S_S)}, {WOP_SEG}", f"s_add_u32 {s(S_O1)}, {s(S_O1)}, {s(S_OUT)}",
                     f"s_lshl_b32 {s(E + 1)}, {s(S_L)}, 6", f"s_add_u32 {s(E + 1)}, {s(E + 1)}, {s(S_S)}", f"s_mul_i32 {s(E + 1)}, {s(E + 1)}, 640",
                     f"s_add_u32 {s(S_O3)}, {s(E + 1)}, {s(S_FW)}"]
        else:
            misc += [f"s_lshl_b32 {s(E)}, {s(S_L)}, 6", f"s_add_u32 {s(E)}, {s(E)}, {s(S_S)}",
                     f"s_and_b32 {s(E + 1)}, {s(S_S)}, {NX - 1}", f"s_lshl3_add_u32 {s(E + 1)}, {s(S_L)}, {s(E + 1)}",
                     f"s_mul_i32 {s(E + 1)}, {s(E + 1)}, {XSEGS}", f"s_add_u32 {s(E + 1)}, {s(E + 1)}, {s(S_CH)}", f"s_add_u32 {s(E + 1)}, {s(E + 1)}, {X1B}",
                     vm("X", f"buffer_load_dwordx4 {v(V_XX, 4)}, {v(V_L16)}, {WS}, {s(E + 1)} offen sc1"),
                     f"s_mul_i32 {s(E + 1)}, {s(E)}, {XSEG}", f"s_add_u32 {s(E + 1)}, {s(E + 1)}, {s(S_CH)}", f"s_add_u32 {s(E + 1)}, {s(E + 1)}, {XM}",
                     vm("X", f"buffer_load_dwordx4 {v(V_XX + 4, 4)}, {v(V_P16)}, {WS}, {s(E + 1)} offen sc1"),
                     f"s_lshl_b32 {s(S_FA2)}, {s(E)}, 9", f"s_lshl2_add_u32 {s(S_FA2)}, {s(S_IDX)}, {s(S_FA2)}",
                     f"s_add_u32 {s(S_O3)}, {s(S_FA2)}, {flag_row(F_XIN, 1)}", f"s_add_u32 {s(S_FA2)}, {s(S_FA2)}, {flag_row(F_D4)}",
                     f"s_mul_i32 {s(S_O2)}, {s(S_S)}, {XSEGS}", f"s_add_u32 {s(S_O2)}, {s(S_O2)}, {XIN + 64 * XSEGS}",
                     f"s_add_u32 {s(S_O1)}, {s(S_O2)}, {s(S_CH)}", f"s_lshr_b32 {s(E)}, {s(S_CH)}, 3", f"s_add_u32 {s(S_O2)}, {s(S_O2)}, {s(E)}",
                     f"s_add_u32 {s(S_O2)}, {s(S_O2)}, 40960",
                     f"s_mul_i32 {s(E)}, {s(S_S)}, {32 * 1280}", f"s_cmp_lg_u32 {s(S_L)}, 0\ns_cselect_b32 {s(S_O1)}, {s(E)}, {s(S_O1)}\ns_cselect_b32 {s(S_O3)}, {HUGE}, {s(S_O3)}"]
        tm = Task(0, misc)
        tf = Task(max(cfg.kkf, 2 * (24 - AH)) if kind != "C" else cfg.kkc, [(24, f1)])

        def tail(off):
            r = []
            if not wo:
                cu = Capture()
                unpack8(cu, V_XU, V_XX)
                unpack8(cu, V_XU + 8, V_XX + 4)
                r.append(Task(37 - off, [(4, lambda: V.wait("X"))] + cu.l))

                def d4():
                    assert ("I", 23) not in V.q
                    flag_put(A, S_FA2, local_in)
                    V.q.append("f")
                r.append(Task(44 - off, [(28, d4)]))
            r.append(Task(45 - off, [("w", x) for x in wr(0)]))
            return r

        def second():
            V.wait("S2")
            for x in check:
                A(x)
            A(f"s_cmp_eq_u32 {s(S_GO)}, 0")
            A.nf(f"s_cbranch_scc1 {nm}_E2")
            A.nf(f"s_branch {nm}_E0")
        if kind == "W1":
            sched(A, L, seq, [tcur, tf, nxt(0), tm, tdec] + tail(0), pre=pre, budget=24, nvalu=5)
            st(3)
            A(f"buffer_load_dword {v(V_FV)}, {v(V_FO)}, {WS}, {s(S_VF)} offen sc1")
            A("s_nop 5")
            A.nf(f"s_branch {nm}_E0")
        elif kind == "W0":
            sched(A, L, seq, [tcur, tf, Task(cfg.ks2, [vm("S2", smp)]), tm, tdec] + tail(0), pre=pre, budget=24, nvalu=5)
            st(3)
            second()
        else:
            kc = 2 * (24 - AH)
            tsm = Task(kc - 3 - cfg.ksl, [vm("S", smp)])
            tchk = Task(kc - 3, [(4, lambda: V.wait("S"))] + check + [f"s_cmp_eq_u32 {s(S_GO)}, 0"])
            sched(A, L, seq[:kc], [tcur, tf, tsm, tm, tdec, tchk], pre=pre, budget=24, nvalu=5)
            no = A.newlabel("no")
            A.nf(f"s_cbranch_scc0 {no}")
            pre2 = {n - kc: f for n, f in pre.items() if n >= kc}
            q0 = list(V.q)
            sched(A, L, seq[kc:], [nxt(kc)] + tail(kc), pre=pre2, budget=24, nvalu=5)
            st(3)
            A(f"buffer_load_dword {v(V_FV)}, {v(V_FO)}, {WS}, {s(S_VF)} offen sc1")
            A("s_nop 5")
            A.nf(f"s_branch {nm}_E1")
            A.label_nf(no)
            V.q = q0
            L.q = []
            sched(A, L, seq[kc:], [Task(max(0, cfg.ks2 - kc), [vm("S2", smp)])] + tail(kc), pre=pre2, budget=24, nvalu=5)
            st(3)
            second()

    def epilogue(sx, ks):
        A.label_nf(f"{nm}_{sx}")
        ex = [ld(k, S_NB, k == ks[0]) for k in ks]

        def one(n=1):
            for _ in range(n):
                if ex:
                    for x in ex.pop(0):
                        A(x)
        if ex:
            one()
            A("s_nop 2")
        else:
            A("s_nop 4")
        for n, x in enumerate(wr(1)):
            A(x)
            if n & 1:
                one()
        A("s_waitcnt lgkmcnt(0)")
        A("s_barrier")
        for i in range(8):
            A(f"ds_read_b128 {v(V_RD + 4 * i, 4)}, {v(V_LR)} offset:{i * 1024}")
        one(3 if not wo else 4)
        A("s_waitcnt lgkmcnt(4)")
        for i in range(0, 8, 2):
            A(f"v_pk_add_f32 {v(V_RD + i, 2)}, {v(V_RD + i, 2)}, {v(V_RD + 8 + i, 2)}")
        A("s_waitcnt lgkmcnt(0)")
        for i in range(0, 8, 2):
            A(f"v_pk_add_f32 {v(V_RD + 16 + i, 2)}, {v(V_RD + 16 + i, 2)}, {v(V_RD + 24 + i, 2)}")
        one()
        for i in range(0, 8, 2):
            A(f"v_pk_add_f32 {v(V_RD + i, 2)}, {v(V_RD + i, 2)}, {v(V_RD + 16 + i, 2)}")
        if wo:
            one(24)
            for k in range(2):
                A(f"buffer_store_dwordx4 {v(V_RD + 4 * k, 4)}, {v(V_OA)}, {WS}, {s(S_O1)} offen offset:{k * 256} sc1")
        else:
            X = [V_RD + i for i in range(8)]
            for i in range(0, 8, 2):
                rnd2(A, V_T, X[i], X[i + 1])
            one()
            for i in range(0, 8, 2):
                A(f"v_pk_add_f32 {v(X[i], 2)}, {v(X[i], 2)}, {v(V_XU + i, 2)}")
            for i in range(0, 8, 2):
                rnd2(A, V_T, X[i], X[i + 1])
            one()
            for i in range(0, 8, 2):
                A(f"v_pk_add_f32 {v(X[i], 2)}, {v(X[i], 2)}, {v(V_XU + 8 + i, 2)}")
            for i in range(0, 8, 2):
                A(f"v_cvt_pk_bf16_f32 {v(V_PK + i // 2)}, {v(X[i])}, {v(X[i + 1])}")
            one(24)
            l1, l2 = A.newlabel("w4o"), A.newlabel("w4n")
            A(f"s_cmp_lg_u32 {s(S_L)}, 0")
            A(f"s_cbranch_scc1 {l1}")
            A(f"buffer_store_dwordx4 {v(V_PK, 4)}, {v(V_P16)}, {WS}, {s(S_O1)} offen sc1")
            unpack8(A, V_RD, V_PK)
            t = V_T
            A(f"v_pk_add_f32 {v(t, 2)}, {v(X[0], 2)}, {v(X[2], 2)}")
            A(f"v_pk_mul_f32 {v(t + 2, 2)}, {v(X[0], 2)}, {v(X[0], 2)}")
            for i in range(2, 8, 2):
                if i >= 4:
                    A(f"v_pk_add_f32 {v(t, 2)}, {v(t, 2)}, {v(X[i], 2)}")
                A(f"v_pk_fma_f32 {v(t + 2, 2)}, {v(X[i], 2)}, {v(X[i], 2)}, {v(t + 2, 2)}")
            A(f"v_add_f32 {v(t)}, {v(t)}, {v(t + 1)}")
            A(f"v_add_f32 {v(t + 1)}, {v(t + 2)}, {v(t + 3)}")
            A(f"v_permlane32_swap_b32 {v(t)}, {v(t + 1)}")
            A(f"v_add_f32 {v(t)}, {v(t)}, {v(t + 1)}")
            A(f"v_mov_b32 {v(t + 1)}, {v(t)}")
            A(f"v_permlane16_swap_b32 {v(t)}, {v(t + 1)}")
            A(f"v_add_f32 {v(t)}, {v(t)}, {v(t + 1)}")
            A(f"v_mov_b32 {v(t + 1)}, {v(t)}")
            A(f"v_permlane32_swap_b32 {v(t)}, {v(t + 1)}")
            A("s_mov_b64 exec, 0xffff")
            A(f"buffer_store_dwordx2 {v(t, 2)}, {v(V_SAD)}, {WS}, {s(S_O2)} offen sc1")
            A("s_mov_b64 exec, -1")
            A(f"s_branch {l2}")
            A.label(l1)
            if cfg.deg:
                m = (0xffff << cfg.deg) & 0xffff
                h_ = 1 << (cfg.deg - 1)
                for i in range(4):
                    A(f"v_and_b32 {v(V_PK + i)}, {m * 0x10001}, {v(V_PK + i)}")
                    if cfg.deg > 1:
                        A(f"v_or_b32 {v(V_PK + i)}, {h_ * 0x10001}, {v(V_PK + i)}")
            A(f"buffer_store_dwordx2 {v(V_PK, 2)}, {v(V_OA)}, {s(SRD_O, 4)}, {s(S_O1)} offen")
            A(f"buffer_store_dwordx2 {v(V_PK + 2, 2)}, {v(V_OA)}, {s(SRD_O, 4)}, {s(S_O1)} offen offset:32")
            A.label(l2)
        A(f"s_mov_b32 {s(S_FA1)}, {s(S_O3)}")
        st(4)

    A(f"s_mov_b32 {s(S_U)}, 0")
    A(f"s_mov_b32 {s(S_FA1)}, {HUGE}")
    decode(A)
    decode2(A)
    st.init()
    A.label(nm + "_COLD")
    A(smp)
    A("s_waitcnt vmcnt(1)")
    flag_put(A, S_FA1)
    A(f"s_mov_b32 {s(S_FA1)}, {HUGE}")
    st(5)
    A(f"s_cmp_ge_u32 {s(S_U)}, 128")
    A(f"s_cbranch_scc1 {nm}_END")
    A("s_waitcnt vmcnt(1)")
    A(f"v_cmp_eq_u32 vcc, 0, {v(V_FV)}")
    A(f"s_cbranch_vccz {nm}_RDY")
    sv = cfg.fsl
    cfg.fsl = cfg.bps if local_in else cfg.wgp - 1
    flag_block(A, S_UF)
    cfg.fsl = sv
    A.label(nm + "_RDY")
    st(6)
    for k in range(AC):
        for x in ld(k, S_NB):
            A(x)
        if cfg.ksp and k < AC - 1:
            A(f"s_nop {cfg.ksp - 1}")
    A.label(nm + "_C")
    shift()
    body(AC, "C")
    epilogue("E2", list(range(AC)))
    A(f"s_branch {nm}_C")
    epilogue("E1", list(range(AC, AW)))
    A(f"s_waitcnt vmcnt({AW - AC + 2})")
    A(f"s_branch {nm}_W")
    epilogue("E0", [])
    A(f"s_cmp_lg_u32 {s(S_GO)}, 0")
    A(f"s_cbranch_scc1 {nm}_COLD")
    A("s_waitcnt vmcnt(2)")
    A.label(nm + "_W")
    shift()
    for x in check:
        A(x)
    A(f"s_cmp_lg_u32 {s(S_GO)}, 0")
    A(f"s_cbranch_scc1 {nm}_W0")
    body(AW, "W1")
    A.label(nm + "_W0")
    body(AW, "W0")
    A.label(nm + "_END")
    st.dump(83, T, V_T)
    if cfg.timing == 6 and not wo:
        A("s_memrealtime s[98:99]")
        A("s_waitcnt lgkmcnt(0)")
        A("s_sub_u32 s98, s98, s96")
        A(f"v_mov_b32 {v(V_T)}, s98")
        A(f"v_mov_b32 {v(V_T + 1)}, 28")
        A("s_mov_b64 exec, 1")
        A(f"buffer_store_dword {v(V_T)}, {v(V_T + 1)}, {s(SRD_DBG, 4)}, 0 offen")
    A("s_endpgm")
```

```python
import os
from common import *
from chain import gen_chain
import stations as ST
import stations32 as S32
import chain2 as C2M
import stations3 as S3


def gen_idle(A, cfg, nwg, name):
    A.label("ROLE_" + name)
    init_barrier_arrive(A, 12)
    init_barrier_wait(A, 12, nwg, cfg)
    A("s_endpgm")


PLACE = [
    [("CHAIN", 24), ("W4", 8)],
    [("CHAIN", 24), ("W4", 2), ("W1", 5), ("W3", 1)],
    [("CHAIN", 24), ("W3", 8)],
    [("CHAIN", 24), ("W3", 3), ("W2", 5)],
    [("WO", 10), ("ATT", 4), ("R1", 2), ("QKVQ", 11), ("QKVV", 5)],
    [("WO", 10), ("ATT", 4), ("R1", 2), ("QKVQ", 11), ("QKVV", 5)],
    [("WO", 5), ("ATT", 4), ("R1", 2), ("QKVQ", 13), ("QKVV", 7), ("SPARE", 1)],
    [("WO", 5), ("ATT", 4), ("R1", 2), ("QKVQ", 13), ("QKVV", 7), ("SPARE", 1)],
]
PLACES = {
    24: [
        [("CW", 8), ("CV", 8), ("CS", 16)],
        [("CW", 8), ("CV", 8), ("CS", 16)],
        [("W1", 5), ("W2", 5), ("W3", 12), ("W4", 10)],
        [("QKVQ", 8), ("QKVV", 8), ("R1", 16)],
        [("QKVV", 4), ("QKVQ", 10), ("ATT", 8), ("WO", 10)],
        [("QKVV", 4), ("QKVQ", 10), ("ATT", 8), ("WO", 10)],
        [("QKVV", 4), ("QKVQ", 10), ("ATT", 8), ("WO", 10)],
        [("QKVV", 4), ("QKVQ", 10), ("ATT", 8), ("WO", 10)],
    ],
    25: [
        [("CS", 16), ("CV", 8), ("CW", 8)],
        [("CS", 16), ("CV", 8), ("CW", 8)],
        [("W1", 5), ("W2", 5), ("W3", 12), ("W4", 10)],
        [("QKVQ", 8), ("QKVV", 8), ("R1", 16)],
        [("QKVV", 4), ("QKVQ", 10), ("ATT", 8), ("WO", 10)],
        [("QKVV", 4), ("QKVQ", 10), ("ATT", 8), ("WO", 10)],
        [("QKVV", 4), ("QKVQ", 10), ("ATT", 8), ("WO", 10)],
        [("QKVV", 4), ("QKVQ", 10), ("ATT", 8), ("WO", 10)],
    ],
    23: [
        [("CS", 16), ("CV", 8), ("CW", 8)],
        [("CS", 16), ("CV", 8), ("CW", 8)],
        [("W4", 10), ("W1", 5), ("W3", 12), ("W2", 5)],
        [("QKVQ", 12), ("QKVV", 8), ("R1", 12)],
        [("WO", 10), ("ATT", 8), ("QKVQ", 9), ("QKVV", 4), ("R1", 1)],
        [("WO", 10), ("ATT", 8), ("QKVQ", 9), ("QKVV", 4), ("R1", 1)],
        [("WO", 10), ("ATT", 8), ("QKVQ", 9), ("QKVV", 4), ("R1", 1)],
        [("WO", 10), ("ATT", 8), ("QKVQ", 9), ("QKVV", 4), ("R1", 1)],
    ],
    22: [
        [("CS", 16), ("CV", 8), ("CW", 8)],
        [("CS", 16), ("CV", 8), ("CW", 8)],
        [("W4", 10), ("W1", 5), ("W3", 12), ("W2", 5)],
        [("QKVQ", 8), ("QKVV", 8), ("R1", 16)],
        [("WO", 10), ("ATT", 8), ("QKVQ", 10), ("QKVV", 4)],
        [("WO", 10), ("ATT", 8), ("QKVQ", 10), ("QKVV", 4)],
        [("WO", 10), ("ATT", 8), ("QKVQ", 10), ("QKVV", 4)],
        [("WO", 10), ("ATT", 8), ("QKVQ", 10), ("QKVV", 4)],
    ],
    21: [
        [("CS", 16), ("CV", 8), ("CW", 8)],
        [("CS", 16), ("CV", 8), ("CW", 8)],
        [("W4", 10), ("W1", 5), ("W3", 12), ("W2", 5)],
        [("QKVQ", 12), ("QKVV", 4), ("ATT", 8), ("R1", 4), ("SPARE", 4)],
        [("WO", 10), ("ATT", 6), ("R1", 3), ("QKVQ", 8), ("QKVV", 4), ("SPARE", 1)],
        [("WO", 10), ("ATT", 6), ("R1", 3), ("QKVQ", 8), ("QKVV", 4), ("SPARE", 1)],
        [("WO", 5), ("ATT", 6), ("R1", 3), ("QKVQ", 10), ("QKVV", 6), ("SPARE", 2)],
        [("WO", 5), ("ATT", 6), ("R1", 3), ("QKVQ", 10), ("QKVV", 6), ("SPARE", 2)],
    ],
    20: [
        [("CS", 16), ("CV", 8), ("CW", 8)],
        [("CS", 16), ("CV", 8), ("CW", 8)],
        [("W4", 10), ("W1", 5), ("W3", 12), ("W2", 5)],
        [("QKVQ", 16), ("SPARE", 16)],
        [("WO", 10), ("ATT", 4), ("R1", 2), ("QKVQ", 7), ("QKVV", 5), ("SPARE", 4)],
        [("WO", 10), ("ATT", 4), ("R1", 2), ("QKVQ", 7), ("QKVV", 5), ("SPARE", 4)],
        [("WO", 5), ("ATT", 4), ("R1", 2), ("QKVQ", 9), ("QKVV", 7), ("SPARE", 5)],
        [("WO", 5), ("ATT", 4), ("R1", 2), ("QKVQ", 9), ("QKVV", 7), ("SPARE", 5)],
    ],
    16: [
        [("CHAIN", 24), ("W4", 8)],
        [("CHAIN", 24), ("W4", 2), ("W1", 5), ("W3", 1)],
        [("CHAIN", 24), ("QKVV", 8)],
        [("CHAIN", 24), ("QKVV", 8)],
        [("WO", 10), ("ATT", 4), ("R1", 2), ("QKVQ", 10), ("QKVV", 2), ("W3", 4)],
        [("WO", 10), ("ATT", 4), ("R1", 2), ("QKVQ", 10), ("QKVV", 2), ("W3", 4)],
        [("WO", 5), ("ATT", 4), ("R1", 2), ("QKVQ", 14), ("QKVV", 2), ("W3", 3), ("SPARE", 2)],
        [("WO", 5), ("ATT", 4), ("R1", 2), ("QKVQ", 14), ("QKVV", 2), ("W2", 5)],
    ],
    17: [
        [("CHAIN", 24), ("W4", 8)],
        [("CHAIN", 24), ("W4", 2), ("W1", 5), ("W3", 1)],
        [("CHAIN", 24), ("QKVQ", 8)],
        [("CHAIN", 24), ("QKVQ", 8)],
        [("WO", 8), ("ATT", 4), ("R1", 2), ("QKVQ", 8), ("QKVV", 6), ("W3", 4)],
        [("WO", 7), ("ATT", 4), ("R1", 2), ("QKVQ", 8), ("QKVV", 6), ("W3", 4), ("SPARE", 1)],
        [("WO", 8), ("ATT", 4), ("R1", 2), ("QKVQ", 8), ("QKVV", 6), ("W3", 3), ("SPARE", 1)],
        [("WO", 7), ("ATT", 4), ("R1", 2), ("QKVQ", 8), ("QKVV", 6), ("W2", 5)],
    ],
    18: [
        [("CHAIN", 24), ("W4", 8)],
        [("CHAIN", 24), ("W4", 2), ("WO", 5), ("W3", 1)],
        [("CHAIN", 24), ("QKVQ", 8)],
        [("CHAIN", 24), ("QKVQ", 8)],
        [("WO", 10), ("ATT", 4), ("R1", 2), ("QKVQ", 7), ("QKVV", 5), ("W3", 4)],
        [("WO", 5), ("ATT", 4), ("R1", 2), ("QKVQ", 7), ("QKVV", 5), ("W3", 4), ("W1", 5)],
        [("WO", 5), ("ATT", 4), ("R1", 2), ("QKVQ", 9), ("QKVV", 7), ("W3", 3), ("SPARE", 2)],
        [("WO", 5), ("ATT", 4), ("R1", 2), ("QKVQ", 9), ("QKVV", 7), ("W2", 5)],
    ],
    13: [
        [("CHAIN", 24), ("QKVQ", 8)],
        [("CHAIN", 24), ("QKVQ", 8)],
        [("CHAIN", 24), ("QKVQ", 8)],
        [("CHAIN", 24), ("QKVQ", 8)],
        [("WO", 10), ("ATT", 4), ("R1", 2), ("QKVQ", 3), ("QKVV", 5), ("W3", 3), ("W4", 3), ("W1", 2)],
        [("WO", 10), ("ATT", 4), ("R1", 2), ("QKVQ", 3), ("QKVV", 5), ("W3", 3), ("W4", 3), ("W1", 2)],
        [("WO", 5), ("ATT", 4), ("R1", 2), ("QKVQ", 5), ("QKVV", 7), ("W3", 3), ("W4", 2), ("W1", 1), ("W2", 2), ("SPARE", 1)],
        [("WO", 5), ("ATT", 4), ("R1", 2), ("QKVQ", 5), ("QKVV", 7), ("W3", 3), ("W4", 2), ("W2", 3), ("SPARE", 1)],
    ],
    14: [
        [("CHAIN", 24), ("W4", 5), ("QKVV", 3)],
        [("CHAIN", 24), ("W4", 5), ("QKVV", 3)],
        [("CHAIN", 24), ("QKVV", 8)],
        [("CHAIN", 24), ("QKVV", 8)],
        [("WO", 10), ("ATT", 4), ("R1", 2), ("QKVQ", 11), ("W1", 5)],
        [("WO", 10), ("ATT", 4), ("R1", 2), ("QKVQ", 11), ("W2", 5)],
        [("WO", 5), ("ATT", 4), ("R1", 2), ("QKVQ", 13), ("QKVV", 1), ("W3", 6), ("SPARE", 1)],
        [("WO", 5), ("ATT", 4), ("R1", 2), ("QKVQ", 13), ("QKVV", 1), ("W3", 6), ("SPARE", 1)],
    ],
    15: [
        [("CHAIN", 24), ("W4", 8)],
        [("CHAIN", 24), ("W4", 2), ("QKVQ", 6)],
        [("CHAIN", 24), ("QKVQ", 8)],
        [("CHAIN", 24), ("QKVQ", 8)],
        [("WO", 8), ("ATT", 4), ("R1", 2), ("QKVQ", 7), ("QKVV", 6), ("W1", 5)],
        [("WO", 7), ("ATT", 4), ("R1", 2), ("QKVQ", 7), ("QKVV", 6), ("W3", 6)],
        [("WO", 8), ("ATT", 4), ("R1", 2), ("QKVQ", 6), ("QKVV", 6), ("W2", 5), ("SPARE", 1)],
        [("WO", 7), ("ATT", 4), ("R1", 2), ("QKVQ", 6), ("QKVV", 6), ("W3", 6), ("SPARE", 1)],
    ],
    10: [
        [("CHAIN", 24), ("W4", 8)],
        [("CHAIN", 24), ("W4", 2), ("W1", 5), ("W3", 1)],
        [("CHAIN", 24), ("QKVQ", 8)],
        [("CHAIN", 24), ("QKVQ", 8)],
        [("WO", 10), ("ATT", 4), ("R1", 2), ("QKVQ", 7), ("QKVV", 5), ("W3", 4)],
        [("WO", 10), ("ATT", 4), ("R1", 2), ("QKVQ", 7), ("QKVV", 5), ("W3", 4)],
        [("WO", 5), ("ATT", 4), ("R1", 2), ("QKVQ", 9), ("QKVV", 7), ("W3", 3), ("SPARE", 2)],
        [("WO", 5), ("ATT", 4), ("R1", 2), ("QKVQ", 9), ("QKVV", 7), ("W2", 5)],
    ],
    11: [
        [("CHAIN", 24), ("W4", 6), ("QKVV", 2)],
        [("CHAIN", 24), ("W4", 4), ("W1", 2), ("QKVV", 2)],
        [("CHAIN", 24), ("W3", 6), ("QKVV", 2)],
        [("CHAIN", 24), ("W3", 1), ("W2", 5), ("QKVV", 2)],
        [("WO", 10), ("ATT", 4), ("R1", 2), ("QKVQ", 11), ("QKVV", 3), ("W3", 2)],
        [("WO", 10), ("ATT", 4), ("R1", 2), ("QKVQ", 11), ("QKVV", 3), ("W3", 2)],
        [("WO", 5), ("ATT", 4), ("R1", 2), ("QKVQ", 13), ("QKVV", 5), ("W1", 3)],
        [("WO", 5), ("ATT", 4), ("R1", 2), ("QKVQ", 13), ("QKVV", 5), ("W3", 1), ("SPARE", 2)],
    ],
    12: [
        [("CHAIN", 24), ("W4", 8)],
        [("CHAIN", 24), ("W4", 2), ("W1", 5), ("W3", 1)],
        [("CHAIN", 24), ("W3", 8)],
        [("CHAIN", 24), ("W3", 3), ("W2", 5)],
        [("WO", 8), ("ATT", 4), ("R1", 2), ("QKVQ", 12), ("QKVV", 6)],
        [("WO", 7), ("ATT", 4), ("R1", 2), ("QKVQ", 12), ("QKVV", 6), ("SPARE", 1)],
        [("WO", 8), ("ATT", 4), ("R1", 2), ("QKVQ", 12), ("QKVV", 6)],
        [("WO", 7), ("ATT", 4), ("R1", 2), ("QKVQ", 12), ("QKVV", 6), ("SPARE", 1)],
    ],
    9: [
        [("CHAIN", 24), ("W4", 8)],
        [("CHAIN", 24), ("W4", 2), ("W1", 5), ("PROBE", 1)],
        [("CHAIN", 24), ("W3", 8)],
        [("CHAIN", 24), ("W3", 3), ("W2", 5)],
        [("WO", 10), ("ATT", 4), ("R1", 2), ("QKVQ", 11), ("QKVV", 5)],
        [("WO", 10), ("ATT", 4), ("R1", 2), ("QKVQ", 11), ("QKVV", 5)],
        [("WO", 5), ("ATT", 4), ("R1", 2), ("QKVQ", 13), ("QKVV", 7), ("W3", 1)],
        [("WO", 5), ("ATT", 4), ("R1", 2), ("QKVQ", 13), ("QKVV", 7), ("SPARE", 1)],
    ],
    6: [
        [("CHAIN", 24), ("W1", 5), ("W3", 3)],
        [("CHAIN", 24), ("W2", 5), ("W3", 3)],
        [("CHAIN", 24), ("W3", 6), ("SPARE", 2)],
        [("CHAIN", 24), ("R1", 8)],
        [("WO", 10), ("ATT", 4), ("W4", 2), ("QKVQ", 11), ("QKVV", 5)],
        [("WO", 10), ("ATT", 4), ("W4", 2), ("QKVQ", 11), ("QKVV", 5)],
        [("WO", 5), ("ATT", 4), ("W4", 3), ("QKVQ", 13), ("QKVV", 7)],
        [("WO", 5), ("ATT", 4), ("W4", 3), ("QKVQ", 13), ("QKVV", 7)],
    ],
    7: [
        [("CHAIN", 24), ("W1", 5), ("W4", 3)],
        [("CHAIN", 24), ("W2", 5), ("W4", 3)],
        [("CHAIN", 24), ("W3", 4), ("W4", 2), ("SPARE", 2)],
        [("CHAIN", 24), ("W3", 6), ("W4", 2)],
        [("WO", 10), ("ATT", 4), ("R1", 2), ("QKVQ", 11), ("QKVV", 5)],
        [("WO", 10), ("ATT", 4), ("R1", 2), ("QKVQ", 11), ("QKVV", 5)],
        [("WO", 5), ("ATT", 4), ("R1", 2), ("QKVQ", 13), ("QKVV", 7), ("W3", 1)],
        [("WO", 5), ("ATT", 4), ("R1", 2), ("QKVQ", 13), ("QKVV", 7), ("W3", 1)],
    ],
    8: [
        [("CHAIN", 24), ("ATT", 4), ("R1", 2), ("W1", 2)],
        [("CHAIN", 24), ("ATT", 4), ("R1", 2), ("W1", 2)],
        [("CHAIN", 24), ("ATT", 4), ("R1", 2), ("W1", 1), ("SPARE", 1)],
        [("CHAIN", 24), ("ATT", 4), ("R1", 2), ("W2", 1), ("SPARE", 1)],
        [("WO", 10), ("W4", 3), ("W3", 3), ("QKVQ", 11), ("QKVV", 5)],
        [("WO", 10), ("W4", 3), ("W3", 3), ("QKVQ", 11), ("QKVV", 5)],
        [("WO", 5), ("W4", 2), ("W3", 3), ("W2", 2), ("QKVQ", 13), ("QKVV", 7)],
        [("WO", 5), ("W4", 2), ("W3", 3), ("W2", 2), ("QKVQ", 13), ("QKVV", 7)],
    ],
    3: [
        [("CHAIN", 24), ("R1", 8)],
        [("CHAIN", 24), ("W1", 5), ("SPARE", 2), ("W3", 1)],
        [("CHAIN", 24), ("W2", 5), ("W3", 3)],
        [("CHAIN", 24), ("W3", 8)],
        [("WO", 10), ("ATT", 4), ("QKVQ", 12), ("QKVV", 6)],
        [("WO", 10), ("ATT", 4), ("QKVQ", 12), ("QKVV", 6)],
        [("WO", 5), ("ATT", 4), ("QKVQ", 7), ("QKVV", 6), ("W4", 10)],
        [("WO", 5), ("ATT", 4), ("QKVQ", 17), ("QKVV", 6)],
    ],
    4: [
        [("CHAIN", 24), ("ATT", 8)],
        [("CHAIN", 24), ("ATT", 8)],
        [("CHAIN", 24), ("R1", 8)],
        [("CHAIN", 24), ("W1", 5), ("SPARE", 2), ("W3", 1)],
        [("WO", 10), ("W2", 5), ("QKVQ", 11), ("QKVV", 6)],
        [("WO", 10), ("W3", 5), ("QKVQ", 11), ("QKVV", 6)],
        [("WO", 5), ("QKVQ", 11), ("QKVV", 6), ("W4", 10)],
        [("WO", 5), ("W3", 6), ("QKVQ", 15), ("QKVV", 6)],
    ],
    5: [
        [("CHAIN", 24), ("W4", 5), ("W1", 3)],
        [("CHAIN", 24), ("W4", 5), ("W1", 2), ("SPARE", 1)],
        [("CHAIN", 24), ("W3", 6), ("W2", 2)],
        [("CHAIN", 24), ("W3", 4), ("W2", 3), ("SPARE", 1)],
        [("WO", 10), ("ATT", 4), ("R1", 2), ("QKVQ", 11), ("QKVV", 5)],
        [("WO", 10), ("ATT", 4), ("R1", 2), ("QKVQ", 11), ("QKVV", 5)],
        [("WO", 5), ("ATT", 4), ("R1", 2), ("QKVQ", 13), ("QKVV", 7), ("W3", 1)],
        [("WO", 5), ("ATT", 4), ("R1", 2), ("QKVQ", 13), ("QKVV", 7), ("W3", 1)],
    ],
    1: [
        [("CHAIN", 24), ("W1", 5), ("QKVQ", 3)],
        [("CHAIN", 24), ("W2", 5), ("QKVQ", 3)],
        [("CHAIN", 24), ("W3", 6), ("SPARE", 1), ("QKVQ", 1)],
        [("CHAIN", 24), ("W3", 6), ("SPARE", 1), ("QKVQ", 1)],
        [("WO", 10), ("ATT", 4), ("R1", 2), ("QKVQ", 10), ("QKVV", 6)],
        [("WO", 10), ("ATT", 4), ("R1", 2), ("QKVQ", 10), ("QKVV", 6)],
        [("WO", 5), ("ATT", 4), ("R1", 2), ("QKVQ", 5), ("QKVV", 6), ("W4", 10)],
        [("WO", 5), ("ATT", 4), ("R1", 2), ("QKVQ", 15), ("QKVV", 6)],
    ],
    2: [
        [("CHAIN", 24), ("QKVQ", 8)],
        [("CHAIN", 24), ("QKVQ", 8)],
        [("CHAIN", 24), ("QKVQ", 7), ("SPARE", 1)],
        [("CHAIN", 24), ("QKVQ", 7), ("SPARE", 1)],
        [("WO", 10), ("ATT", 4), ("R1", 2), ("W1", 5), ("W2", 5), ("QKVV", 6)],
        [("WO", 10), ("ATT", 4), ("R1", 2), ("QKVQ", 10), ("QKVV", 6)],
        [("WO", 5), ("ATT", 4), ("R1", 2), ("QKVQ", 5), ("QKVV", 6), ("W4", 10)],
        [("WO", 5), ("ATT", 4), ("R1", 2), ("QKVQ", 3), ("QKVV", 6), ("W3", 12)],
    ],
}
ROLE_BITS = ["CHAIN", "QKVQ", "QKVV", "ATT", "WO", "R1", "W1", "W2", "W3", "W4"]


DOC = """; ---------------------------------------------------------------------------------------------
; ---------------------------------------------------------------------------------------------
"""


def gen_probe(A, cfg, nwg):
    A.label("ROLE_PROBE")
    lab = A.newlabel("pb")
    A(f"s_cmp_lg_u32 {s(S_WAVE)}, 0")
    A(f"s_cbranch_scc1 {lab}")
    A("s_mov_b64 exec, 1")
    A("v_mov_b32 v12, 0")
    A("s_mov_b32 s50, -1")
    A("s_mov_b32 s51, -1")
    A("s_mov_b32 s52, 0")
    A.label("PROBE_LOOP")
    A("s_and_b32 s53, s52, 7")
    A("s_lshl_b32 s53, s53, 14")
    A(f"s_add_u32 s53, s53, {XP + 0x140000}")
    for par in range(2):
        if par:
            A("s_add_u32 s53, s53, 0x2000")
        A("s_memtime s[54:55]")
        A("s_waitcnt lgkmcnt(0)")
        A(f"buffer_store_dword v12, v12, {s(SRD_WS, 4)}, s53 offen sc1")
        A("s_waitcnt vmcnt(0)")
        A(f"buffer_load_dword v13, v12, {s(SRD_WS, 4)}, s53 offen sc1")
        A("s_waitcnt vmcnt(0)")
        A("s_memtime s[56:57]")
        A("s_waitcnt lgkmcnt(0)")
        A("s_sub_u32 s58, s56, s54")
        A(f"s_min_u32 s{50 + par}, s{50 + par}, s58")
    A("s_add_u32 s52, s52, 1")
    A(f"s_cmp_lt_u32 s52, {cfg.nprobe}")
    A("s_cbranch_scc1 PROBE_LOOP")
    A("s_cmp_lt_u32 s51, s50")
    A("s_cselect_b32 s52, 0x2000, 0")
    A("v_mov_b32 v13, s52")
    A("v_mov_b32 v12, 12")
    A(f"buffer_store_dword v13, v12, {s(SRD_DBG, 4)}, 0 offen sc1")
    if cfg.timing:
        A("v_mov_b32 v13, s50")
        A(f"buffer_store_dword v13, v12, {s(SRD_DBG, 4)}, 0 offen offset:56 sc1")
        A("v_mov_b32 v13, s51")
        A(f"buffer_store_dword v13, v12, {s(SRD_DBG, 4)}, 0 offen offset:60 sc1")
    A("s_mov_b64 exec, -1")
    A.label(lab)
    init_barrier_arrive(A, 12)
    init_barrier_wait(A, 12, nwg, cfg)
    A("s_endpgm")


def gen(cfg):
    A = Asm()
    nwg = 256
    CFG[0] = cfg
    ST.TSFLAG[0] = cfg.timing == 4
    if cfg.mode == "chain":
        cfg.off = 0x3fe
    active = [r for i, r in enumerate(ROLE_BITS) if not (cfg.off >> i) & 1]
    if cfg.c2:
        active = [r for r in active if r != "CHAIN"] + (["CS", "CV", "CW"] if "CHAIN" in active else [])
    if cfg.near and not cfg.vote:
        cfg.place = 9
        active.append("PROBE")
    K = NAME + "_kernel"
    head = open(os.path.join(os.path.dirname(os.path.abspath(__file__)), "..", NAME + ".s.ref")).read().split("\n")
    hdr = [l for l in head if l.startswith(";") and "@launch" not in l and "Override" not in l and "grid=ceil" not in l]
    out = "\n".join(hdr) + f"\n; @launch grid=({nwg},1,1) block=(256,1,1) lds=163840\n"
    out += '.amdgcn_target "amdgcn-amd-amdhsa--gfx950"\n.text\n'
    out += DOC
    out += f".globl {K}\n.p2align 8\n.type {K},@function\n{K}:\n"
    A(f"s_cmp_ge_u32 s2, {nwg}")
    A("s_cbranch_scc1 EXIT")
    A(f"s_load_dwordx16 {s(16, 16)}, s[0:1], 0")
    A(f"s_load_dwordx8 {s(32, 8)}, s[0:1], 64")
    A(f"s_load_dwordx4 {s(40, 4)}, s[0:1], 96")
    A(f"s_load_dwordx2 {s(44, 2)}, s[0:1], 112")
    A("v_lshrrev_b32 v1, 6, v0")
    A("v_and_b32 v0, 63, v0")
    A(f"v_readfirstlane_b32 {s(S_WAVE)}, v1")
    A(f"s_mov_b32 {s(S_SPIN)}, {cfg.spin}")
    A(f"s_mov_b32 {s(S_MODE)}, 0")
    if cfg.timing == 6:
        A("s_memrealtime s[96:97]")
    A("s_getreg_b32 s4, hwreg(HW_REG_XCC_ID)")
    A("s_and_b32 s4, s4, 7")
    A("s_waitcnt lgkmcnt(0)")
    make_srd(A, SRD_WS, P_WS, WS_BYTES)
    make_srd(A, SRD_DBG, P_DBG, 256)
    A("v_lshlrev_b32 v1, 4, v0")
    for i in range(4):
        A(f"v_mov_b32 v{4 + i}, 0")
    A("s_lshl_b32 s5, s2, 2")
    A(f"s_add_u32 s5, s5, {s(S_WAVE)}")
    A("s_lshl_b32 s5, s5, 10")
    if cfg.mode != "chain":
        A(f"buffer_store_dwordx4 v[4:7], v1, {s(SRD_WS, 4)}, s5 offen sc1")
    if cfg.near and cfg.vote and not cfg.vr:
        A("s_cmp_ge_u32 s4, 4")
        A("s_cbranch_scc1 VOTE_DONE")
        A(f"s_cmp_lg_u32 {s(S_WAVE)}, 1")
        A("s_cbranch_scc1 VOTE_DONE")
        if cfg.vote > 1:
            A(f"s_and_b32 s52, s2, {(cfg.vote - 1) << 3}")
            A("s_cbranch_scc1 VOTE_DONE")
        A("s_mov_b64 exec, 1")
        A("v_mov_b32 v12, 0")
        A("s_and_b32 s53, s2, 63")
        A("s_lshl_b32 s53, s53, 7")
        A("s_lshr_b32 s52, s2, 6")
        A("s_mul_i32 s52, s52, 3")
        A(f"s_add_u32 s52, s52, {s(S_WAVE)}")
        A("s_lshl_b32 s52, s52, 14")
        A("s_add_u32 s53, s53, s52")
        A(f"s_add_u32 s53, s53, {XP + 0x140000}")
        A("s_add_u32 s59, s53, 0x2000")
        A(f"buffer_store_dword v12, v12, {s(SRD_WS, 4)}, s53 offen sc1")
        A(f"buffer_store_dword v12, v12, {s(SRD_WS, 4)}, s59 offen sc1")
        A("s_waitcnt vmcnt(0)")
        for par in range(2):
            A("s_memtime s[54:55]")
            A("s_waitcnt lgkmcnt(0)")
            A(f"buffer_load_dword v13, v12, {s(SRD_WS, 4)}, s{59 if par else 53} offen sc1")
            A("s_waitcnt vmcnt(0)")
            A("s_memtime s[56:57]")
            A("s_waitcnt lgkmcnt(0)")
            A(f"s_sub_u32 s{50 + par}, s56, s54")
        A("s_cmp_lt_u32 s51, s50")
        A("s_cselect_b32 s52, 1, -1")
        A("v_mov_b32 v13, s52")
        A("v_mov_b32 v12, 192")
        A(f"buffer_atomic_add v13, v12, {s(SRD_DBG, 4)}, 0 offen sc1")
        A("s_mov_b64 exec, -1")
        A.label("VOTE_DONE")
    A("v_mov_b32 v2, 0")
    A(f"s_cmp_lg_u32 {s(S_WAVE)}, 0")
    A("s_cbranch_scc1 TK_DONE")
    A("s_mov_b64 exec, 1")
    A("v_mov_b32 v1, 1")
    A("s_lshl_b32 s5, s4, 2")
    A("v_mov_b32 v3, s5")
    A(f"buffer_atomic_add v1, v3, {s(SRD_DBG, 4)}, 0 offen offset:32 sc0 sc1")
    A("s_waitcnt vmcnt(0)")
    A("v_readfirstlane_b32 s5, v1")
    A("s_lshl_b32 s6, s4, 5")
    A("s_add_u32 s6, s6, s5")
    A("s_cmp_lt_u32 s5, 32")
    A("s_cselect_b32 s6, s6, 999")
    A("v_mov_b32 v1, s6")
    A("ds_write_b32 v2, v1")
    A("s_mov_b64 exec, -1")
    A("s_waitcnt lgkmcnt(0)")
    A.label("TK_DONE")
    A("s_barrier")
    A("ds_read_b32 v1, v2")
    A("s_waitcnt lgkmcnt(0)")
    A(f"v_readfirstlane_b32 {s(S_ROLEG)}, v1")
    A("s_barrier")
    if cfg.timing == 4:
        A("s_memrealtime s[98:99]")
        A("s_waitcnt lgkmcnt(0)")
        A("v_mov_b32 v1, s98")
        A("v_mov_b32 v2, 24")
        A(f"s_cmp_lg_u32 {s(S_ROLEG)}, 0")
        A("s_cbranch_scc1 DISPATCH")
        A(f"buffer_store_dword v1, v2, {s(SRD_DBG, 4)}, 0 offen")
    if cfg.c2:
        A("s_branch DISPATCH")
        C2M.gen_sv(A, cfg, nwg)
        C2M.gen_cw(A, cfg, nwg)
    A.label("DISPATCH")
    if cfg.timing:
        A(f"s_mov_b32 {s(S_GID)}, {s(S_ROLEG)}")
    pos = 0
    cnt = {}
    for xcd in PLACES.get(cfg.place, PLACE):
        assert sum(n for _, n in xcd) == 32
        for name, n in xcd:
            b = cnt.get(name, 0)
            cnt[name] = b + n
            A(f"s_sub_u32 {s(S_ROLE)}, {s(S_ROLEG)}, {pos - b}")
            A(f"s_cmp_lt_u32 {s(S_ROLEG)}, {pos + n}")
            A(f"s_cbranch_scc1 ROLE_{name if name in active else 'SPARE'}")
            pos += n
    assert cnt == dict(CHAIN=96, QKVQ=48, QKVV=24, ATT=16, WO=30, R1=8, W1=5, W2=5, W3=12, W4=10, SPARE=2) or cfg.near, cnt
    A("s_branch ROLE_SPARE")
    A.label("EXIT")
    A("s_endpgm")
    A.label("ABORT")
    A("s_mov_b64 exec, 1")
    A("v_mov_b32 v1, s2")
    A("v_add_u32 v1, 0x10000, v1")
    A("v_mov_b32 v2, 8")
    A(f"buffer_store_dword v1, v2, {s(SRD_DBG, 4)}, 0 offen")
    A("s_endpgm")
    gen_idle(A, cfg, nwg, "SPARE")
    gens = dict(CHAIN=lambda: gen_chain(A, cfg, nwg), QKVQ=lambda: S32.QKV32(A, cfg, nwg, False).gen(), QKVV=lambda: S32.QKV32(A, cfg, nwg, True).gen(),
                ATT=lambda: ST.gen_att(A, cfg, nwg), WO=lambda: S32.WO32(A, cfg, nwg).gen(), R1=lambda: ST.gen_r1(A, cfg, nwg),
                W1=lambda: S32.W1_32(A, cfg, nwg).gen(), W2=lambda: S32.W2_32(A, cfg, nwg).gen(), W3=lambda: S32.W3_32(A, cfg, nwg).gen(),
                W4=lambda: ST.gen_w4(A, cfg, nwg), PROBE=lambda: gen_probe(A, cfg, nwg),
                CS=lambda: None, CV=lambda: None, CW=lambda: None)
    if not cfg.s32:
        gens.update(QKVQ=lambda: ST.QKV(A, cfg, nwg, False).gen(), QKVV=lambda: ST.QKV(A, cfg, nwg, True).gen(), WO=lambda: ST.WO(A, cfg, nwg).gen(),
                    W1=lambda: ST.W1(A, cfg, nwg).gen(), W2=lambda: ST.W2(A, cfg, nwg).gen(), W3=lambda: ST.W3(A, cfg, nwg).gen())
    if cfg.g3 & 1:
        gens.update(QKVQ=lambda: S3.QKV3(A, cfg, nwg, False).gen(), QKVV=lambda: S3.QKV3(A, cfg, nwg, True).gen())
    if cfg.g3 & 32:
        gens.update(QKVQ=lambda: S3.QKV4(A, cfg, nwg, False).gen(), QKVV=lambda: S3.QKV4(A, cfg, nwg, True).gen())
    if cfg.g3 & 2:
        gens.update(W1=lambda: S3.W1_3(A, cfg, nwg).gen(), W2=lambda: S3.W2_3(A, cfg, nwg).gen(), W3=lambda: S3.W3_3(A, cfg, nwg).gen())
    if cfg.g3 & 4:
        gens.update(WO=lambda: S3.WO_3(A, cfg, nwg).gen())
    if cfg.g3 & 8:
        gens.update(W4=lambda: S3.gen_ks(A, cfg, nwg, False))
    if cfg.g3 & 16:
        gens.update(WO=lambda: S3.gen_ks(A, cfg, nwg, True))
    if cfg.g3 & 64:
        gens.update(WO=lambda: S3.WO5(A, cfg, nwg).gen(), R1=lambda: S3.gen_r3(A, cfg, nwg))
    for r in active:
        gens[r]()
    out += A.render()
    out += f""".section .rodata,"a"
.p2align 6
.amdhsa_kernel {K}
  .amdhsa_next_free_vgpr 512
  .amdhsa_next_free_sgpr 102
  .amdhsa_accum_offset 256
  .amdhsa_group_segment_fixed_size 0
  .amdhsa_kernarg_size 120
  .amdhsa_user_sgpr_count 2
  .amdhsa_user_sgpr_kernarg_segment_ptr 1
  .amdhsa_system_sgpr_workgroup_id_x 1
.end_amdhsa_kernel
"""
    return out, A.count()


if __name__ == "__main__":
    mode = sys.argv[1] if len(sys.argv) > 1 else "full"
    outp = sys.argv[2] if len(sys.argv) > 2 else "/code/" + NAME + ".s"
    kw = {}
    for arg in sys.argv[3:]:
        k, val = arg.split("=")
        kw[k] = int(val)
    if mode == "chain":
        kw.setdefault("timing", 1)
        cfg = Cfg(mode="chain", lstride=2 * QKV_SZ, **kw)
    else:
        cfg = Cfg(mode=mode, **kw)
    txt, n = gen(cfg)
    open(outp, "w").write(txt)
    print("instructions:", n, "bytes:", len(txt))
```

```python
from common import *
from stations import item_of, Capture

WS = s(SRD_WS, 4)
SM = "v_smfmac_f32_16x16x64_bf16"
MF = "v_mfma_f32_16x16x32_bf16"
NONE = 0x80000000
DF = ["sc1 ", "", "nt sc1 ", "sc0 sc1 ", "nt ", "sc0 nt sc1 "]

S_N, S_L, S_T, S_NL, S_NT, S_L2, S_T2, S_TAG, S_T1, S_PLA = range(50, 60)
T = 60
S_PXA, S_DPA, S_OIA, S_VMA, S_DOA, S_KSRC, S_KLDS, S_FLG1, S_FLG2, S_DEF = range(68, 78)
S_KP, S_FP, S_KCUR, S_FCUR = 78, 79, 80, 81
S_XB, S_PXR, S_HOFF, S_XGH, S_FXH, S_CS = 82, 83, 84, 85, 86, 87
S_MA, S_MB = 88, 90
S_X, S_J, S_KF, S_NTAG, S_NT1, S_OIH, S_VMH, S_DOH, S_ISV = 28, 29, 30, 31, 32, 33, 34, 35, 36
S_T0 = 38
V_LANE, V_L16, V_IDX = 0, 1, 2
V_T = 12


class Lds:
    def __init__(self, A):
        self.A, self.q = A, []

    def op(self, tag, text):
        self.A(text)
        self.q.append(tag)

    def wait(self, tag):
        if tag not in self.q:
            return
        i = len(self.q) - 1 - self.q[::-1].index(tag)
        n = len(self.q) - 1 - i
        self.A(f"s_waitcnt lgkmcnt({min(n, 15)})")
        if n <= 15:
            self.q = self.q[i + 1:]
        else:
            self.q = self.q[len(self.q) - 15:]

    def drain(self):
        self.A("s_waitcnt lgkmcnt(0)")
        self.q = []


GAP = [0]


def cost(x):
    if x.startswith("ds_"):
        return 8
    if x.startswith("buffer_"):
        return CFG[0].vmc
    if x.startswith("s_cbranch") or x.startswith("s_branch"):
        return 16
    if x.startswith("v_pk_") or x.split()[0] in ("v_exp_f32", "v_rcp_f32", "v_sqrt_f32", "v_rsq_f32"):
        return 8
    return 4


class Task:
    def __init__(self, rel, items, step=0):
        self.rel, self.items, self.step = rel, list(items), step
        self.vstep, self.after = 0, None


def sched(A, L, seq, tasks, pre=None, budget=12, nvalu=1, lim=None):
    pre = pre or {}

    def icost(it):
        if isinstance(it, tuple):
            return it[0] if callable(it[1]) else 8
        return sum(cost(y) for y in it.split("\n"))

    def isv(it):
        return 0 if isinstance(it, tuple) else sum(1 for y in it.split("\n") if y.startswith("v_"))

    def emit(it):
        if isinstance(it, tuple):
            if callable(it[1]):
                it[1]()
            else:
                L.op(it[0], it[1])
        else:
            A(it)

    def pending(tag):
        return [t for t in tasks if any(isinstance(i, tuple) and i[0] == tag for i in t.items)]
    over = 0
    for k, (txt, need) in enumerate(seq):
        if k in pre:
            pre[k]()
        for tag in need:
            for t in pending(tag):
                assert t.rel <= k, (tag, k)
                while pending(tag):
                    emit(t.items.pop(0))
                    over += 1
            L.wait(tag)
        A(txt)
        GAP[0] = k
        if lim:
            budget, nvalu = lim(k)
        rem, nv = budget, 0
        if k + 1 < len(seq) and any(tag in L.q for tag in seq[k + 1][1]):
            rem -= 4
        full = rem
        for t in tasks:
            while t.items and t.rel <= k and not (t.after and t.after.items):
                it = t.items[0]
                c = icost(it)
                big = isinstance(it, tuple) and callable(it[1]) and c == CFG[0].vmc
                if big and t.vstep and getattr(t, "vrel", 0) > k:
                    break
                if (c <= rem and nv + isv(it) <= nvalu) or (rem == full and rem >= budget - 4 and c > budget) or (budget > 16 and c >= budget - 4 and rem >= budget - 12):
                    emit(t.items.pop(0))
                    rem -= c
                    nv += isv(it)
                    if big and t.vstep:
                        t.vrel = k + t.vstep
                    if t.step and c > 0:
                        t.rel = k + t.step
                else:
                    break
    left = sum(len(t.items) for t in tasks)
    if CFG[0].verbose:
        print("sched: forced", over, "left", left)
    for t in tasks:
        while t.items:
            emit(t.items.pop(0))


def groups(lines):
    grp, cur = [], []
    for x in lines:
        if x.startswith("s_cselect") or x.startswith("s_addc"):
            cur.append(x)
        else:
            if cur:
                grp.append("\n".join(cur))
            cur = [x]
    if cur:
        grp.append("\n".join(cur))
    return grp


def cap(fn):
    c = Capture()
    fn(c)
    out = []
    for x in c.l:
        out += [y for y in x.split("\n") if y.strip()]
    return out


def spin_fail(A, nf=True):
    A(f"s_sub_u32 {s(S_SPIN)}, {s(S_SPIN)}, 1")
    A("s_cbranch_scc1 ABORT")


def doorbell(A, cfg, v_off, s_addr, vd):
    top, ok = A.newlabel("db"), A.newlabel("dbok")
    ld = f"buffer_load_dword {v(vd)}, {v(v_off)}, {WS}, {s(s_addr)} offen sc1"
    if not cfg.dpp2:
        A.label(top)
        A(ld)
        A("s_waitcnt vmcnt(0)")
        A(f"v_cmp_gt_u32 vcc, {s(S_T1)}, {v(vd)}")
        A.nf(f"s_cbranch_vccz {ok}")
        if cfg.dsl:
            A(f"s_sleep {cfg.dsl}")
        spin_fail(A)
        A(f"s_branch {top}")
        A.label_nf(ok)
        return
    ld2 = f"buffer_load_dword {v(vd + 1)}, {v(v_off)}, {WS}, {s(s_addr)} offen sc1"
    A(ld)
    A(f"s_sleep {cfg.dpp2}")
    A.label(top)
    A(ld2)
    A("s_waitcnt vmcnt(1)")
    A(f"v_cmp_gt_u32 vcc, {s(S_T1)}, {v(vd)}")
    A.nf(f"s_cbranch_vccz {ok}")
    A(ld)
    A("s_waitcnt vmcnt(1)")
    A(f"v_cmp_gt_u32 vcc, {s(S_T1)}, {v(vd + 1)}")
    A.nf(f"s_cbranch_vccz {ok}")
    spin_fail(A)
    A(f"s_branch {top}")
    A.label_nf(ok)


def common_setup(A, cfg, shift):
    A(f"s_lshr_b32 {s(S_X)}, {s(S_ROLE)}, {shift}")
    A(f"s_and_b32 {s(S_J)}, {s(S_ROLE)}, {(1 << shift) - 1}")
    A(f"s_mul_i32 {s(S_XB)}, {s(S_X)}, {C2_X}")
    A(f"s_add_u32 {s(S_XB)}, {s(S_XB)}, {C2}")
    A(f"v_lshlrev_b32 {v(V_L16)}, 4, {v(V_LANE)}")
    A(f"v_and_b32 {v(V_T)}, 1, {v(V_LANE)}")
    A(f"v_mul_u32_u24 {v(V_IDX)}, 0xaaaa, {v(V_T)}")
    A(f"v_or_b32 {v(V_IDX)}, 0x4444, {v(V_IDX)}")


def near_half(A, cfg, dst):
    if not cfg.near:
        return
    A(f"v_mov_b32 {v(V_T + 1)}, 192")
    if cfg.vr:
        top, out = A.newlabel("vw"), A.newlabel("vx")
        A(f"s_cmp_lg_u32 {s(S_MODE)}, 0")
        A(f"s_cbranch_scc1 {out}")
        A.label(top)
        A(f"buffer_load_dword {v(V_T)}, {v(V_T + 1)}, {s(SRD_DBG, 4)}, 0 offen sc1")
        A("s_waitcnt vmcnt(0)")
        A(f"v_and_b32 {v(V_T + 2)}, 0xffff, {v(V_T)}")
        A(f"v_cmp_ne_u32 vcc, {cfg.nv}, {v(V_T + 2)}")
        poll_tail(A, top, sleep=4)
        A(f"v_readfirstlane_b32 {s(T)}, {v(V_T)}")
        A(f"s_cmp_gt_u32 {s(T)}, {(cfg.nv // 2 + 1) << 16}")
        A(f"s_cselect_b32 {s(T)}, 0x2000, 0")
        if cfg.near == 2:
            A(f"s_xor_b32 {s(T)}, {s(T)}, 0x2000")
        A(f"s_add_u32 {s(dst)}, {s(dst)}, {s(T)}")
        A.label(out)
        return
    A(f"buffer_load_dword {v(V_T)}, {v(V_T + 1)}, {s(SRD_DBG, 4)}, 0 offen sc1")
    A("s_waitcnt vmcnt(0)")
    A(f"v_readfirstlane_b32 {s(T)}, {v(V_T)}")
    A(f"s_cmp_gt_i32 {s(T)}, 0")
    A(f"s_cselect_b32 {s(T)}, 0x2000, 0")
    if cfg.near == 2:
        A(f"s_xor_b32 {s(T)}, {s(T)}, 0x2000")
    A(f"s_add_u32 {s(dst)}, {s(dst)}, {s(T)}")


def timing_end(A, cfg, stamp, idx_base):
    A(f"s_add_u32 {s(T + 1)}, {s(S_ROLE)}, {idx_base}")
    stamp.dump(T + 1, T, V_T)
    if cfg.timing and idx_base == 0:
        lab = A.newlabel("tm")
        A(f"s_memrealtime {s(S_T0 + 2, 2)}")
        A("s_waitcnt lgkmcnt(0)")
        A(f"s_cmp_lg_u32 {s(S_ROLE)}, 0")
        A(f"s_cbranch_scc1 {lab}")
        A(f"s_cmp_lg_u32 {s(S_WAVE)}, 0")
        A(f"s_cbranch_scc1 {lab}")
        A(f"s_sub_u32 {s(T)}, {s(S_T0 + 2)}, {s(S_T0)}")
        A(f"v_mov_b32 {v(V_T)}, {s(T)}")
        if cfg.timing == 6:
            A("s_memtime s[94:95]")
            A("s_waitcnt lgkmcnt(0)")
            A(f"s_sub_u32 {s(S_MODE)}, s94, s92")
        A(f"v_mov_b32 {v(V_T + 1)}, {s(S_MODE)}")
        A(f"v_mov_b32 {v(V_T + 2)}, 16")
        A("s_mov_b64 exec, 1")
        A(f"buffer_store_dwordx2 {v(V_T, 2)}, {v(V_T + 2)}, {s(SRD_DBG, 4)}, 0 offen")
        if cfg.timing == 6:
            A(f"s_sub_u32 {s(T)}, {s(S_T0)}, s100")
            A(f"v_mov_b32 {v(V_T)}, {s(T)}")
            A(f"buffer_store_dword {v(V_T)}, {v(V_T + 2)}, {s(SRD_DBG, 4)}, 0 offen offset:8")
        A.label(lab)
    A("s_endpgm")


def retry_dump(A, idx_base):
    A(f"s_add_u32 {s(T)}, {s(S_ROLE)}, {idx_base}")
    A(f"s_lshl_b32 {s(T)}, {s(T)}, 2")
    A(f"s_add_u32 {s(T)}, {s(T)}, {s(S_WAVE)}")
    A(f"s_lshl_b32 {s(T)}, {s(T)}, 6")
    A(f"s_add_u32 {s(T)}, {s(T)}, 0x100000")
    A("s_mov_b64 exec, 1")
    for k in range(5):
        A(f"v_mov_b32 {v(V_T)}, {s(92 + k)}")
        A(f"buffer_store_dword {v(V_T)}, {v(V_L16)}, {WS}, {s(T)} offen offset:{4 * k}")
    A("s_mov_b64 exec, -1")


class NoStamp:
    def init(self): pass
    def __call__(self, k): pass
    def dump(self, *a_): pass
    def flush(self): pass


class LightStamp(RawStamper):
    R = [16, 18, 20, 22, 24, 26, 96, 98]

    def __call__(self, k):
        self.A(f"s_memtime {s(self.R[k], 2)}")

    def flush(self):
        A, b = self.A, self.b
        lab = A.newlabel("fs")
        A(f"s_sub_u32 {s(b + 2)}, {s(self.s_t)}, {self.t0}")
        A(f"s_cmp_ge_u32 {s(b + 2)}, 7")
        A(f"s_cbranch_scc1 {lab}")
        A(f"s_lshl_b32 {s(b + 3)}, {s(b + 2)}, 3")
        A(f"s_lshl_b64 exec, 1, {s(b + 3)}")
        A("s_waitcnt lgkmcnt(0)")
        for k in range(8):
            A(f"v_mov_b32 {v(self.vr)}, {s(self.R[k])}")
            A(f"s_lshl_b64 exec, exec, 1")
        A("s_mov_b64 exec, -1")
        A(f"s_cmp_lg_u32 {s(b + 2)}, 0")
        A(f"s_cbranch_scc1 {lab}x")
        self.cal(56)
        A.label(lab + "x")
        A(f"s_sub_u32 {s(b + 2)}, {s(self.s_t)}, {self.t0}")
        A(f"s_cmp_lg_u32 {s(b + 2)}, 6")
        A(f"s_cbranch_scc1 {lab}")
        self.cal(60)
        A.label(lab)


def mk_stamp(A, cfg, vreg):
    return LightStamp(A, cfg, 92, S_N, vreg, t0=cfg.rawt0) if cfg.timing == 3 else NoStamp()


def flag_val(A, cfg, vr):
    if cfg.timing == 4:
        A(f"s_memrealtime {s(98, 2)}")
        A("s_waitcnt lgkmcnt(0)")
        A(f"s_or_b32 s98, s98, 1")
        A(f"v_mov_b32 {v(vr)}, s98")
    else:
        A(f"v_mov_b32 {v(vr)}, 1")


def gen_sv(A, cfg, nwg):
    LAG = cfg.LAG
    V_GB = 3
    V_XW, V_XR, V_OST, V_FLG, V_FV, V_DB = 6, 7, 8, 9, 10, 11
    V_KST, V_BW, V_MW, V_MW2 = 20, 21, 22, 23
    V_ACC = 24
    V_F = 48
    V_KA, V_G4 = 58, 59
    V_A = 60
    V_B = 72
    V_FREE = 88
    V_PL, V_PR = 60, 80
    V_STAMP = 111 if False else 19
    V_L16B = 18
    V_RDY = 58
    V_SY, V_SY3 = 20, 8
    V_KEEP = 100
    V_VS0, V_VS1 = 6, 7
    L_RES, L_KV, L_MEM, L_X = 0, 81920, 131072, 141312

    def wreg(slot, tile):
        idx = slot * 5 + tile
        return ("a", idx * 8) if idx < 32 else ("v", 112 + (idx - 32) * 8)

    def wtxt(slot, tile):
        if tile == 5:
            return v(V_B + 8 * (slot & 1), 8)
        k, r = wreg(slot, tile)
        return a(r, 8) if k == "a" else v(r, 8)

    g_, c_ = V_T + 2, V_T + 3

    def lane_gc():
        A(f"v_lshrrev_b32 {v(g_)}, 4, {v(V_LANE)}")
        A(f"v_and_b32 {v(c_)}, 15, {v(V_LANE)}")

    def sv_setup():
        for q in range(1, 4):
            A(f"s_add_u32 {s(T)}, {s(S_WAVE)}, {q}")
            A(f"s_and_b32 {s(T)}, {s(T)}, 3")
            A(f"s_lshl_b32 {s(T)}, {s(T)}, 11")
            A(f"s_add_u32 {s(T)}, {s(T)}, {L_MEM}")
            A(f"v_add_u32 {v(V_GB + q - 1)}, {s(T)}, {v(V_L16)}")
        A(f"v_add_u32 {v(V_G4)}, {L_MEM + 8192}, {v(V_L16)}")
        A(f"s_lshl_b32 {s(T)}, {s(S_WAVE)}, 11")
        A(f"s_add_u32 {s(T)}, {s(T)}, {L_MEM}")
        A(f"v_add_u32 {v(V_MW)}, {s(T)}, {v(V_L16)}")
        A(f"s_lshr_b32 {s(T)}, {s(S_WAVE)}, 1")
        A(f"s_lshl_b32 {s(T)}, {s(T)}, 10")
        A(f"s_and_b32 {s(T + 1)}, {s(S_WAVE)}, 1")
        A(f"s_lshl_b32 {s(T + 1)}, {s(T + 1)}, 3")
        if cfg.h16 != 2:
            A(f"s_add_u32 {s(T)}, {s(T)}, {s(T + 1)}")
        A(f"v_add_u32 {v(V_MW2)}, {s(T)}, {v(V_G4)}")
        A(f"s_mul_i32 {s(T)}, {s(S_WAVE)}, 20480")
        A(f"v_add_u32 {v(V_BW)}, {s(T)}, {v(V_L16)}")
        if cfg.pb:
            A(f"v_and_b32 {v(V_DB)}, 7, {v(V_LANE)}")
            A(f"v_lshlrev_b32 {v(V_DB)}, 2, {v(V_DB)}")
            A(f"v_bfe_u32 {v(V_T)}, {v(V_LANE)}, 3, 2")
            A(f"v_lshl_add_u32 {v(V_DB)}, {v(V_T)}, 7, {v(V_DB)}")
        else:
            A(f"v_min_u32 {v(V_DB)}, 7, {v(V_LANE)}")
            A(f"v_lshlrev_b32 {v(V_DB)}, 2, {v(V_DB)}")
        A(f"s_xor_b32 {s(T)}, {s(S_X)}, 1")
        A(f"s_lshl_b32 {s(T)}, {s(T)}, 19")
        A(f"s_lshl_b32 {s(T + 1)}, {s(S_WAVE)}, {11 if cfg.h16 else 14}")
        A(f"s_add_u32 {s(S_PXR)}, {s(T)}, {s(T + 1)}")
        A(f"s_add_u32 {s(S_PXR)}, {s(S_PXR)}, {XP}")

    A.label("ROLE_CS")
    if cfg.timing == 6:
        A("s_mov_b32 s100, s96")
    common_setup(A, cfg, 4)
    sv_setup()
    A(f"s_mov_b32 {s(S_ISV)}, 0")
    A(f"s_mov_b32 {s(S_MA)}, 0xcccccccc")
    A(f"s_mov_b32 {s(S_MA + 1)}, 0xcccccccc")
    A(f"s_mov_b32 {s(S_MB)}, 0x33333333")
    A(f"s_mov_b32 {s(S_MB + 1)}, 0x33333333")
    A(f"s_mov_b32 {s(S_CS)}, 0x3dd53b95")
    lane_gc()
    A(f"v_lshrrev_b32 {v(V_T)}, 2, {v(c_)}")
    A(f"v_add_u32 {v(V_T)}, {v(V_T)}, {v(g_)}")
    A(f"v_and_b32 {v(V_T)}, 3, {v(V_T)}")
    A(f"v_lshlrev_b32 {v(V_XW)}, 3, {v(V_T)}")
    A(f"v_lshl_add_u32 {v(V_XW)}, {v(c_)}, 5, {v(V_XW)}")
    A(f"s_mul_i32 {s(T)}, {s(S_WAVE)}, {512 if cfg.s3 == 1 else 1536}")
    A(f"s_add_u32 {s(T)}, {s(T)}, {L_X}")
    A(f"v_add_u32 {v(V_XW)}, {s(T)}, {v(V_XW)}")
    A(f"v_add_u32 {v(V_T)}, {v(V_LANE)}, {v(g_)}")
    A(f"v_and_b32 {v(V_T)}, 3, {v(V_T)}")
    A(f"v_lshlrev_b32 {v(V_XR)}, 3, {v(V_T)}")
    A(f"v_lshrrev_b32 {v(V_T)}, 2, {v(V_LANE)}")
    A(f"v_lshl_add_u32 {v(V_XR)}, {v(V_T)}, 5, {v(V_XR)}")
    A(f"v_add_u32 {v(V_XR)}, {L_X}, {v(V_XR)}")
    A(f"s_min_u32 {s(T + 2)}, {s(S_WAVE)}, 2")
    A(f"v_lshrrev_b32 {v(V_T)}, 2, {v(c_)}")
    A(f"v_and_b32 {v(V_T + 1)}, 1, {v(c_)}")
    A(f"v_lshl_add_u32 {v(V_T)}, {v(V_T)}, 1, {v(V_T + 1)}")
    A(f"v_bfe_u32 {v(V_T + 1)}, {v(c_)}, 1, 1")
    A(f"v_lshlrev_b32 {v(V_OST)}, 8, {v(g_)}")
    A(f"v_lshl_add_u32 {v(V_OST)}, {v(V_T)}, 5, {v(V_OST)}")
    A(f"v_xor_b32 {v(V_T + 4)}, 1, {v(V_T + 1)}")
    A(f"v_lshl_add_u32 {v(V_OST)}, {v(V_T + 4)}, 4, {v(V_OST)}")
    A(f"v_lshlrev_b32 {v(V_KST)}, 8, {v(g_)}")
    A(f"v_lshl_add_u32 {v(V_KST)}, {v(V_T + 1)}, 7, {v(V_KST)}")
    A(f"v_and_b32 {v(V_T + 4)}, 3, {v(V_T)}")
    A(f"v_lshl_add_u32 {v(V_KST)}, {v(V_T + 4)}, 5, {v(V_KST)}")
    A(f"v_lshrrev_b32 {v(V_T + 4)}, 2, {v(V_T)}")
    A(f"v_lshl_add_u32 {v(V_KST)}, {v(V_T + 4)}, 4, {v(V_KST)}")
    A(f"v_min_u32 {v(V_T)}, 5, {v(V_LANE)}")
    A(f"s_mul_i32 {s(T)}, {s(S_ROLE)}, 3")
    A(f"v_add_u32 {v(V_FLG)}, {s(T)}, {v(V_T)}")
    A(f"v_lshlrev_b32 {v(V_FLG)}, 2, {v(V_FLG)}")
    A(f"v_add_u32 {v(V_T + 1)}, {65536 - 12}, {v(V_FLG)}")
    A(f"v_cmp_lt_u32 vcc, 2, {v(V_T)}")
    A(f"v_cndmask_b32 {v(V_FLG)}, {v(V_FLG)}, {v(V_T + 1)}, vcc")
    A(f"s_mul_i32 {s(S_HOFF)}, {s(S_ROLE)}, 12288")
    A(f"s_add_u32 {s(S_HOFF)}, {s(S_HOFF)}, {KX}")
    A(f"s_mul_i32 {s(T)}, {s(S_J)}, 3072")
    A(f"s_lshl_b32 {s(T + 1)}, {s(T + 2)}, 10")
    A(f"s_add_u32 {s(T)}, {s(T)}, {s(T + 1)}")
    A(f"s_add_u32 {s(T)}, {s(T)}, {s(S_XB)}")
    A(f"s_add_u32 {s(S_OIH)}, {s(T)}, {OI_OFF}")
    A(f"s_add_u32 {s(S_VMH)}, {s(T)}, {VM_OFF}")
    A(f"s_mul_i32 {s(S_XGH)}, {s(S_ROLE)}, {XG2_HEAD}")
    A(f"s_add_u32 {s(S_XGH)}, {s(S_XGH)}, {XG}")
    A(f"s_lshl_b32 {s(S_FXH)}, {s(S_ROLE)}, 5")
    A(f"s_lshl_b32 {s(T + 1)}, {s(T + 2)}, 2")
    A(f"s_add_u32 {s(S_FXH)}, {s(S_FXH)}, {FXG}")
    A(f"s_lshr_b32 {s(T)}, {s(S_J)}, 2")
    A(f"s_lshl_b32 {s(T)}, {s(T)}, 7")
    A(f"s_and_b32 {s(T + 3)}, {s(S_J)}, 3")
    A(f"s_mul_i32 {s(T + 3)}, {s(T + 3)}, 12")
    A(f"s_add_u32 {s(T)}, {s(T)}, {s(T + 3)}")
    A(f"s_add_u32 {s(T)}, {s(T)}, {s(T + 1)}")
    A(f"s_add_u32 {s(T)}, {s(T)}, {s(S_XB)}")
    A(f"s_add_u32 {s(S_DOH)}, {s(T)}, {DO_OFF}")
    lab = A.newlabel("si")
    A(f"s_cmp_eq_u32 {s(S_WAVE)}, 3")
    A(f"s_cbranch_scc1 {lab}")
    A(f"v_mov_b32 {v(V_T)}, -1")
    A(f"v_mov_b32 {v(V_T + 1)}, 0")
    lst = []
    for k in range(8):
        lst.append(f"s_add_u32 {s(T)}, {s(S_OIH)}, {k * 49152}")
        lst.append(f"buffer_store_dword {v(V_T)}, {v(V_L16)}, {WS}, {s(T)} offen")
    lst.append("s_mov_b64 exec, 1")
    lst.append(f"buffer_store_dword {v(V_T + 1)}, {v(V_L16)}, {WS}, {s(S_DOH)} offen")
    lst.append(f"buffer_store_dword {v(V_T + 1)}, {v(V_L16)}, {WS}, {s(S_DOH)} offen offset:512")
    lst.append("s_mov_b64 exec, -1")
    lstore(A, lst)
    A.label(lab)
    V_DA = V_FREE + 16
    S_O0, S_O1 = S_KSRC, S_KLDS
    A(f"s_mul_i32 {s(S_O0)}, {s(S_ROLE)}, 384")
    A(f"s_mov_b32 {s(S_O1)}, {s(S_O0)}")

    def dma_addr(isv):
        for i in range(3):
            A(f"v_add_u32 {v(V_T)}, {64 * i}, {v(V_LANE)}")
            A(f"v_mul_u32_u24 {v(V_T + 1)}, 2731, {v(V_T)}")
            A(f"v_lshrrev_b32 {v(V_T + 1)}, 16, {v(V_T + 1)}")
            A(f"v_mul_u32_u24 {v(V_T + 4)}, 24, {v(V_T + 1)}")
            A(f"v_sub_u32 {v(V_T)}, {v(V_T)}, {v(V_T + 4)}")
            A(f"v_mul_u32_u24 {v(V_DA + i)}, 12288, {v(V_T + 1)}")
            A(f"v_lshl_add_u32 {v(V_DA + i)}, {v(V_T)}, 4, {v(V_DA + i)}")
            if not isv and cfg.s3 == 1:
                A(f"v_mul_u32_u24 {v(V_DA + i)}, 12288, {v(V_T + 1)}")
                A(f"v_mul_u32_u24 {v(V_T + 1)}, 43, {v(V_T)}")
                A(f"v_lshrrev_b32 {v(V_T + 1)}, 8, {v(V_T + 1)}")
                A(f"v_lshl_add_u32 {v(V_DA + i)}, {v(V_T + 1)}, 5, {v(V_DA + i)}")
                A(f"v_mul_u32_u24 {v(V_T + 1)}, 6, {v(V_T + 1)}")
                A(f"v_sub_u32 {v(V_T)}, {v(V_T)}, {v(V_T + 1)}")
                A(f"v_and_b32 {v(V_T + 1)}, 1, {v(V_T)}")
                A(f"v_lshl_add_u32 {v(V_DA + i)}, {v(V_T + 1)}, 4, {v(V_DA + i)}")
                A(f"v_bfe_u32 {v(V_T + 1)}, {v(V_T)}, 1, 1")
                A(f"v_lshl_add_u32 {v(V_DA + i)}, {v(V_T + 1)}, 8, {v(V_DA + i)}")
                A(f"v_bfe_u32 {v(V_T + 1)}, {v(V_T)}, 2, 1")
                A(f"v_lshl_add_u32 {v(V_DA + i)}, {v(V_T + 1)}, 7, {v(V_DA + i)}")
            if isv:
                A(f"v_mul_u32_u24 {v(V_T + 1)}, 43, {v(V_T)}")
                A(f"v_lshrrev_b32 {v(V_T + 1)}, 8, {v(V_T + 1)}")
                A(f"v_mul_u32_u24 {v(V_T + 1)}, 96, {v(V_T + 1)}")
                A(f"v_add_u32 {v(V_DA + i)}, {v(V_DA + i)}, {v(V_T + 1)}")
    dma_addr(False)
    make_srd(A, SRD_W, P_WQ, 640 * 12288)
    make_srd(A, 52, P_WK, 640 * 12288)
    A("s_branch SV_LOAD")

    A.label("ROLE_CV")
    common_setup(A, cfg, 3)
    sv_setup()
    A(f"s_mov_b32 {s(S_ISV)}, 1")
    for r in (V_OST, V_FLG, V_KST):
        A(f"v_lshlrev_b32 {v(r)}, 3, {v(V_LANE)}")
    A(f"s_and_b32 {s(T + 2)}, {s(S_WAVE)}, 1")
    A(f"s_lshl_b32 {s(T)}, {s(T + 2)}, 11")
    A(f"v_add_u32 {v(V_VS0)}, {s(T)}, {v(V_L16)}")
    A(f"s_lshl_b32 {s(T)}, {s(T + 2)}, 3")
    A(f"s_add_u32 {s(T)}, {s(T)}, 1024")
    A(f"v_add_u32 {v(V_VS1)}, {s(T)}, {v(V_L16)}")
    A(f"s_lshr_b32 {s(T + 1)}, {s(S_WAVE)}, 1")
    A(f"s_lshl_b32 {s(T)}, {s(S_J)}, 1")
    A(f"s_add_u32 {s(T)}, {s(T)}, {s(T + 1)}")
    A(f"s_mul_i32 {s(T)}, {s(T)}, 3072")
    A(f"s_add_u32 {s(T)}, {s(T)}, {s(S_XB)}")
    A(f"s_add_u32 {s(S_VMH)}, {s(T)}, {VM_OFF}")
    A(f"s_lshl_b32 {s(T)}, {s(S_ROLE)}, 1")
    A(f"s_add_u32 {s(T)}, {s(T)}, {s(T + 1)}")
    A(f"s_mul_i32 {s(S_XGH)}, {s(T)}, {XG2_HEAD}")
    A(f"s_add_u32 {s(S_XGH)}, {s(S_XGH)}, {XG + 3072}")
    A(f"s_lshl_b32 {s(S_FXH)}, {s(T)}, 5")
    A(f"s_lshl_b32 {s(T + 1)}, {s(T + 2)}, 2")
    A(f"s_add_u32 {s(S_FXH)}, {s(S_FXH)}, {s(T + 1)}")
    A(f"s_add_u32 {s(S_FXH)}, {s(S_FXH)}, {FXG + 4}")
    for i in range(4):
        A(f"v_mov_b32 {v(V_T + i)}, -1")
    lst = []
    for k in range(8):
        lst.append(f"s_add_u32 {s(T)}, {s(S_VMH)}, {k * 49152}")
        lst.append(f"buffer_store_dwordx4 {v(V_T, 4)}, {v(V_VS0)}, {WS}, {s(T)} offen")
        lst.append(f"buffer_store_dwordx2 {v(V_T, 2)}, {v(V_VS1)}, {WS}, {s(T)} offen")
    lstore(A, lst)
    A(f"s_mul_i32 {s(S_O0)}, {s(S_ROLE)}, 768")
    A(f"s_add_u32 {s(S_O1)}, {s(S_O0)}, 96")
    dma_addr(True)
    make_srd(A, SRD_W, P_WV, 640 * 12288)
    make_srd(A, 52, P_WV, 640 * 12288)

    A.label("SV_LOAD")
    init_barrier_arrive(A, V_T)
    V_PARK = 24
    V_TR = V_DA + 3
    S_RA, S_RB, S_LW = S_FLG1, S_FLG2, S_DEF
    A(f"s_and_b32 {s(T)}, {s(S_WAVE)}, 1")
    A(f"s_mul_i32 {s(T)}, {s(T)}, {16 * 12288}")
    A(f"s_lshr_b32 {s(T + 1)}, {s(S_WAVE)}, 1")
    A(f"s_mul_i32 {s(S_RA)}, {s(T + 1)}, {32 * 12288}")
    A(f"s_add_u32 {s(S_RA)}, {s(S_RA)}, {s(T)}")
    A(f"s_mul_i32 {s(S_RB)}, {s(T + 1)}, {(32 if cfg.h16 else 160) * 12288}")
    A(f"s_add_u32 {s(S_RB)}, {s(S_RB)}, {s(T)}")
    A(f"s_mul_i32 {s(S_LW)}, {s(S_WAVE)}, 6144")
    sh = (2, 4, 3) if cfg.h16 else (5, 3, 2)
    lane_gc()
    A(f"v_and_b32 {v(V_T)}, 1, {v(g_)}")
    A(f"v_lshlrev_b32 {v(V_T)}, {sh[0]}, {v(V_T)}")
    A(f"v_lshrrev_b32 {v(V_T + 1)}, 1, {v(g_)}")
    A(f"v_lshl_add_u32 {v(V_T)}, {v(V_T + 1)}, {sh[1]}, {v(V_T)}")
    A(f"v_bfe_u32 {v(V_T + 1)}, {v(V_LANE)}, 2, 1")
    A(f"v_add_u32 {v(V_T)}, {v(V_T)}, {v(V_T + 1)}")
    A(f"v_bfe_u32 {v(V_T + 1)}, {v(V_LANE)}, 3, 1")
    A(f"v_lshl_add_u32 {v(V_T)}, {v(V_T + 1)}, {sh[2]}, {v(V_T)}")
    A(f"v_mul_u32_u24 {v(V_TR)}, 384, {v(V_T)}")
    A(f"v_and_b32 {v(V_T + 1)}, 3, {v(V_LANE)}")
    A(f"v_lshl_add_u32 {v(V_TR)}, {v(V_T + 1)}, 3, {v(V_TR)}")
    A(f"s_mul_i32 {s(T)}, {s(S_WAVE)}, 96")
    A(f"v_add_u32 {v(V_TR)}, {s(T)}, {v(V_TR)}")
    stages = [(F, b) for F in range(10) for b in range(2)]
    NB = cfg.lnb

    def mp0(F):
        if cfg.h16:
            return 2 * F
        return 5 * (F >> 1) + 2 * (F & 1) if F < 8 else (4 if F == 8 else 14)

    def st_dma(k):
        F, b = stages[k]
        A(f"s_add_u32 {s(T)}, {s(S_RA if F < 8 else S_RB)}, {s(S_O1 if b else S_O0)}")
        for i in range(6):
            A(f"s_add_u32 m0, {s(S_LW)}, {(k % NB) * 24576 + i * 1024}")
            A(f"s_add_u32 {s(T + 1)}, {s(T)}, {(32 * mp0(F) + 8 * (i // 3)) * 12288}")
            A(f"buffer_load_dwordx4 {v(V_DA + i % 3)}, {s(52 if b else SRD_W, 4)}, {s(T + 1)} offen lds")

    def st_read(k, slot):
        F, b = stages[k]
        for p in range(3):
            tile = 3 * b + p
            kind, r = wreg(slot, tile) if tile < 5 else ("v", V_PARK + 8 * slot)
            f = a if kind == "a" else v
            for RH in range(2):
                for hh in range(2):
                    A(f"ds_read_b64_tr_b16 {f(r + 4 * RH + 2 * hh, 2)}, {v(V_T)} offset:{((32 if cfg.h16 else 16) * RH + 2 * hh) * 384 + 32 * p}")
    for k in range(NB - 1):
        st_dma(k)
    for k in range(20):
        F, b = stages[k]
        A(f"s_waitcnt vmcnt({6 * min(NB - 2, 19 - k)})")
        if cfg.lth and k < 19 - cfg.lth:
            lt = A.newlabel("lt")
            A(f"s_cmp_lg_u32 {s(S_ISV)}, 0")
            A(f"s_cbranch_scc1 {lt}")
            A(f"s_waitcnt vmcnt({6 * max(0, min(NB - 2, 19 - k) - cfg.lth)})")
            A.label(lt)
        A("s_barrier")
        if k + NB - 1 < 20:
            st_dma(k + NB - 1)
        A(f"v_add_u32 {v(V_T)}, {(k % NB) * 24576}, {v(V_TR)}")
        if F < 8:
            done = A.newlabel("ld")
            labs = [A.newlabel("lw") for _ in range(4)]
            for w in range(1, 4):
                A(f"s_cmp_eq_u32 {s(S_WAVE)}, {w}")
                A(f"s_cbranch_scc1 {labs[w]}")
            for w in range(4):
                A.label(labs[w])
                st_read(k, 2 * (((F >> 1) - w) & 3) + (F & 1))
                if w < 3:
                    A(f"s_branch {done}")
            A.label(done)
        else:
            st_read(k, F)
        A("s_waitcnt lgkmcnt(0)")
    A("s_barrier")
    for sl in range(10):
        for hf in range(2):
            A(f"ds_write_b128 {v(V_BW)}, {v(V_PARK + 8 * sl + 4 * hf, 4)} offset:{sl * 2048 + hf * 1024}")
    A("s_waitcnt lgkmcnt(0)")
    A(f"v_add_u32 {v(V_G4)}, {L_MEM + 8192}, {v(V_L16)}")
    A("s_barrier")
    init_barrier_wait(A, V_T, nwg, cfg)
    near_half(A, cfg, S_PXR)
    if cfg.xt == 1 and cfg.mode != "chain":
        top = A.newlabel("xw")
        A(f"s_lshl_b32 {s(T)}, {s(S_MODE)}, 2")
        A(f"v_mov_b32 {v(V_T + 1)}, {s(T)}")
        A.label(top)
        A(f"buffer_load_dword {v(V_T)}, {v(V_T + 1)}, {s(SRD_DBG, 4)}, 0 offen offset:128 sc1")
        A("s_waitcnt vmcnt(0)")
        A(f"v_cmp_ne_u32 vcc, 0x80, {v(V_T)}")
        poll_tail(A, top, sleep=4)

    S_C0, S_C1 = 4, 5
    L_SY = L_X + 6144

    def fe_scalars(A, rl, rt, tag, t1):
        A(f"s_and_b32 {s(T)}, {s(rt)}, {cfg.cr - 1}")
        A(f"s_lshl2_add_u32 {s(T)}, {s(rl)}, {s(T)}")
        A(f"s_lshl_b32 {s(S_PXA)}, {s(T)}, 16")
        A(f"s_add_u32 {s(S_PXA)}, {s(S_PXA)}, {s(S_PXR)}")
        A(f"s_mul_i32 {s(S_PLA)}, {s(T)}, 20480")
        A(f"s_add_u32 {s(S_PLA)}, {s(S_PLA)}, {s(S_PLW)}")
        A(f"s_lshl_b32 {s(S_DPA)}, {s(rl)}, 9")
        A(f"s_add_u32 {s(S_DPA)}, {s(S_DPA)}, {s(S_DPW)}")
        A(f"s_bfe_u32 {s(tag)}, {s(rt)}, {0x10000 + cfg.cr.bit_length() - 1}")
        A(f"s_add_u32 {s(t1)}, {s(rt)}, 1")

    def cur_local(A, isv):
        A(f"s_and_b32 {s(T)}, {s(S_T)}, {cfg.cr - 1}")
        A(f"s_lshl2_add_u32 {s(T)}, {s(S_L)}, {s(T)}")
        A(f"s_mul_i32 {s(T)}, {s(T)}, 49152")
        A(f"s_add_u32 {s(S_VMA)}, {s(T)}, {s(S_VMH)}")
        if not isv:
            A(f"s_add_u32 {s(S_OIA)}, {s(T)}, {s(S_OIH)}")
            A(f"s_lshl_b32 {s(T)}, {s(S_L)}, 9")
            A(f"s_add_u32 {s(S_DOA)}, {s(T)}, {s(S_DOH)}")

    S_XT = S_X

    def cur_global(A):
        if cfg.xt:
            A(f"s_and_b32 {s(T)}, {s(S_T)}, 15")
            A(f"s_lshl4_add_u32 {s(T)}, {s(S_L)}, {s(T)}")
            A(f"s_mul_i32 {s(S_KP)}, {s(T)}, {XG2_STEP}")
            A(f"s_add_u32 {s(S_KP)}, {s(S_KP)}, {s(S_XGH)}")
            A(f"s_bfe_u32 {s(S_XT)}, {s(S_T)}, 0x10004")
            if cfg.timing != 4:
                return
        A(f"s_lshl_b32 {s(T)}, {s(S_L)}, 6")
        A(f"s_add_u32 {s(T)}, {s(T)}, {s(S_T)}")
        if not cfg.xt:
            A(f"s_mul_i32 {s(S_KP)}, {s(T)}, {XG2_STEP}")
            A(f"s_add_u32 {s(S_KP)}, {s(S_KP)}, {s(S_XGH)}")
        A(f"s_lshl_b32 {s(T)}, {s(T)}, 10")
        A(f"s_add_u32 {s(S_KF)}, {s(T)}, {s(S_FXH)}")

    def kv_src(A, rl, rt):
        A(f"s_mul_i32 {s(S_KSRC)}, {s(rt)}, {QKV_SEG if not cfg.kvhit else 0}")
        A(f"s_add_u32 {s(S_KSRC)}, {s(S_KSRC)}, {s(S_HOFF)}")
        if cfg.lstride:
            A(f"s_mul_i32 {s(T)}, {s(rl)}, {cfg.lstride}")
            A(f"s_add_u32 {s(S_KSRC)}, {s(S_KSRC)}, {s(T)}")

    def flag_row_of(A, dst, rl, rt):
        A(f"s_lshl_b32 {s(dst)}, {s(rl)}, 6")
        A(f"s_add_u32 {s(dst)}, {s(dst)}, {s(rt)}")
        A(f"s_lshl_b32 {s(dst)}, {s(dst)}, 9")
        A(f"s_add_u32 {s(dst)}, {s(dst)}, {flag_row(F_K)}")

    def next_item(A, rl, rt):
        A(f"s_sub_u32 {s(T)}, {s(S_C0)}, {s(S_C1)}")
        A(f"s_cmp_gt_i32 {s(T)}, {LAG}")
        A(f"s_cselect_b32 {s(rl)}, 1, 0")
        A(f"s_cmp_eq_u32 {s(S_C0)}, 64")
        A(f"s_cselect_b32 {s(rl)}, 1, {s(rl)}")
        A(f"s_cmp_eq_u32 {s(rl)}, 0")
        A(f"s_cselect_b32 {s(rt)}, {s(S_C0)}, {s(S_C1)}")
        A(f"s_addc_u32 {s(S_C0)}, {s(S_C0)}, 0")
        A(f"s_add_u32 {s(S_C1)}, {s(S_C1)}, {s(rl)}")

    def kv_dma():
        out = []
        for i in range(24):
            e = []
            if i % 4 == 0:
                e += [f"s_add_u32 m0, {s(S_KLDS)}, {i * 1024}", f"s_add_u32 {s(T + 7)}, {s(S_KSRC)}, {(i % 12) * 1024 + (i // 12) * QKV_SZ}"]
            e.append(f"buffer_load_dwordx4 {v(V_L16)}, {WS}, {s(T + 7)} offen offset:{(i % 4) * 1024} {DF[cfg.dfl]}lds")
            out.append(e)
        return out

    def flag_spin(row):
        top = A.newlabel("fl")
        A.label(top)
        A(f"buffer_load_dword {v(V_T)}, {v(V_FLG)}, {WS}, {s(row)} offen sc1")
        A("s_waitcnt vmcnt(0)")
        A(f"v_cmp_eq_u32 vcc, 0, {v(V_T)}")
        poll_tail(A, top, sleep=1)

    S_PLW, S_DPW = 6, 7
    S_EARLY = S_KCUR
    S_LO, S_HI = 37, S_FCUR
    V_E, V_RAW, V_U = 56, 60, (48, 92, 84)
    SELA, SELB = V_ACC + 16, V_ACC + 20
    A(f"s_mul_i32 {s(S_PLW)}, {s(S_WAVE)}, {2048 if cfg.h16 else 5120}")
    if cfg.h16:
        A(f"v_sub_u32 {v(V_L16B)}, {v(V_MW2)}, {v(V_MW)}")
        A(f"v_add_u32 {v(V_L16B)}, {v(V_L16B)}, {v(V_L16)}")
        A(f"v_add_u32 {v(V_L16B)}, 8192, {v(V_L16B)}")
        A(f"s_mov_b32 {s(S_LO)}, 0x3f80")
        A(f"s_mov_b32 {s(S_HI)}, 0x3f800000")
    if cfg.h16 == 2:
        A(f"v_and_b32 {v(V_T)}, 2, {v(V_LANE)}")
        A(f"v_lshlrev_b32 {v(V_T)}, 3, {v(V_T)}")
        A(f"v_lshlrev_b32 {v(V_T)}, {v(V_T)}, {s(S_LO)}")
        A(f"v_lshrrev_b32 {v(V_T + 1)}, 1, {v(V_LANE)}")
        A(f"v_xor_b32 {v(V_T + 1)}, {v(V_T + 1)}, {v(V_LANE)}")
        A(f"v_and_b32 {v(V_T + 1)}, 8, {v(V_T + 1)}")
        A(f"v_and_b32 {v(V_T + 2)}, 4, {v(V_LANE)}")
        A(f"v_or_b32 {v(V_T + 1)}, {v(V_T + 1)}, {v(V_T + 2)}")
        A(f"v_cmp_eq_u32 vcc, 0, {v(V_T + 1)}")
        A(f"v_cndmask_b32 {v(V_E)}, 0, {v(V_T)}, vcc")
        A(f"v_cmp_eq_u32 vcc, 4, {v(V_T + 1)}")
        A(f"v_cndmask_b32 {v(V_E + 1)}, 0, {v(V_T)}, vcc")
    A(f"s_add_u32 {s(S_PLW)}, {s(S_PLW)}, {s(S_XB)}")
    A(f"s_lshl_b32 {s(S_DPW)}, {s(S_WAVE)}, 7" if not cfg.pb else f"s_mov_b32 {s(S_DPW)}, 0")
    A(f"s_add_u32 {s(S_DPW)}, {s(S_DPW)}, {s(S_XB)}")
    A(f"s_add_u32 {s(S_DPW)}, {s(S_DPW)}, {DP_OFF}")
    if not cfg.h16:
        A(f"v_add_u32 {v(V_L16B)}, 4096, {v(V_L16)}")
    A(f"s_mov_b32 {s(S_N)}, 0")
    A(f"s_mov_b32 {s(S_C0)}, 0")
    A(f"s_mov_b32 {s(S_C1)}, 0")
    A(f"s_mov_b32 {s(S_KP)}, {NONE}")
    A(f"s_mov_b32 {s(S_FP)}, {NONE}")
    A(f"s_mov_b32 {s(S_KF)}, {NONE}")
    next_item(A, S_L, S_T)
    fe_scalars(A, S_L, S_T, S_TAG, S_T1)
    stamp = mk_stamp(A, cfg, V_STAMP)
    A(f"s_cmp_lg_u32 {s(S_ISV)}, 0")
    A("s_cbranch_scc1 CV_START")

    order = [2, 0, 1] if cfg.h16 else [4, 0, 1, 2, 3]
    NP_ = len(order)

    def pld(base, i, sa):
        if cfg.h16 == 2:
            return f"buffer_load_dwordx4 {v(V_RAW + 8 * i + (4 if sa == S_PXA else 0), 4)}, {v(V_L16 if i < 2 else V_L16B)}, {WS}, {s(sa)} offen offset:{(i & 1) * 1024} sc1"
        if cfg.h16:
            if i == 2:
                return f"buffer_load_dwordx2 {v(base + 8, 2)}, {v(V_L16B)}, {WS}, {s(sa)} offen sc1"
            return f"buffer_load_dwordx4 {v(base + 4 * i, 4)}, {v(V_L16)}, {WS}, {s(sa)} offen offset:{i * 1024} sc1"
        return f"buffer_load_dwordx4 {v(base + 4 * i, 4)}, {v(V_L16 if i < 4 else V_L16B)}, {WS}, {s(sa)} offen offset:{(i % 4) * 1024} sc1"

    OOL = []

    def sel_build():
        A(f"v_mov_b32 {v(SELA)}, {v(V_E)}")
        A(f"v_mov_b32 {v(SELA + 2)}, {v(V_E + 1)}")
        A(f"v_mov_b32 {v(SELB + 1)}, {v(V_E)}")
        A(f"v_mov_b32 {v(SELB + 3)}, {v(V_E + 1)}")

    def sel_clear():
        if cfg.h16 != 2:
            return []
        return [Task(0, [f"v_mov_b32 {v(r)}, 0" for r in (SELA, SELA + 2, SELB + 1, SELB + 3)])]

    def u_zero():
        for b in V_U:
            for k in range(8):
                A(f"v_mov_b32 {v(b + k)}, 0")

    def process_mm(retry):
        TA = V_T + 4

        def fin(i):
            U = V_U[i]
            d = (V_F, V_F + 4, U)[i]
            for k in range(4):
                q = U + 4 * (k >> 1) + (k & 1)
                A(f"v_cvt_pk_bf16_f32 {v(d + k)}, {v(q)}, {v(q + 2)}")
            A(f"ds_write_b128 {v(V_MW2)}, {v(d, 4)}" if i == 2 else f"ds_write_b128 {v(V_MW)}, {v(d, 4)} offset:{i * 1024}")
        for n, i in enumerate(order):
            A(f"s_waitcnt vmcnt({2 - n})")
            A(f"{SM} {v(V_U[i], 4)}, {v(SELA, 4)}, {v(V_RAW + 8 * i, 8)}, {v(V_IDX)}")
            A(f"v_bitop3_b32 {v(TA + (1 if n else 0))}, {v(V_RAW + 8 * i)}, {v(V_RAW + 8 * i + 4)}, {s(S_TAG)} bitop3:0x7e")
            A(f"{SM} {v(V_U[i] + 4, 4)}, {v(SELB, 4)}, {v(V_RAW + 8 * i, 8)}, {v(V_IDX)}")
            if n == 2:
                A(f"v_bitop3_b32 {v(TA)}, {v(TA)}, {v(TA + 1)}, 1 bitop3:0xa8")
                A(f"v_cmp_ne_u32 vcc, 0, {v(TA)}")
            elif n:
                A(f"v_or_b32 {v(TA)}, {v(TA)}, {v(TA + 1)}")
            if n:
                fin(order[n - 1])
        A.nf(f"s_cbranch_vccnz {retry}")
        fin(order[2])

    def process16(V_PL, V_PR, retry, mid=(), extra=0):
        TA = V_T + 4
        U = V_PR
        for n, i in enumerate(order):
            A(f"s_waitcnt vmcnt({5 - n + extra})")
            for k in range(4 * i, 4 * i + (4 if i < 2 else 2)):
                A(f"v_lshlrev_b32 {v(U + 2 * k)}, 16, {v(V_PL + k)}")
                A(f"v_and_b32 {v(U + 2 * k + 1)}, 0xffff0000, {v(V_PL + k)}")
        for x in mid:
            A(x)
        if cfg.ec:
            assert not mid
            R = V_PL + 10
            A(f"v_bitop3_b32 {v(TA)}, {v(V_PL)}, {v(V_PL + 4)}, {s(S_TAG)} bitop3:0x7e")
            A(f"v_bitop3_b32 {v(TA)}, {v(TA)}, {v(V_PL + 8)}, {s(S_TAG)} bitop3:0xf6")
            lab = A.newlabel("ec")
            A.label_nf(lab)

            def dots(i):
                for k in range(4 * i, 4 * i + (4 if i < 2 else 2)):
                    A(f"v_dot2c_f32_bf16 {v(U + 2 * k)}, {s(S_LO)}, {v(R + k)}")
                    A(f"v_dot2c_f32_bf16 {v(U + 2 * k + 1)}, {s(S_HI)}, {v(R + k)}")

            def outp(i):
                for k in range(4 * i, 4 * i + (4 if i < 2 else 2)):
                    A(f"v_cvt_pk_bf16_f32 {v(V_F + k)}, {v(U + 2 * k)}, {v(U + 2 * k + 1)}")
                A(f"ds_write_b64 {v(V_MW2)}, {v(V_F + 8, 2)}" if i == 2 else f"ds_write_b128 {v(V_MW)}, {v(V_F + 4 * i, 4)} offset:{i * 1024}")
            if cfg.ec >= 2:
                A("s_waitcnt vmcnt(2)")
                dots(2)
                A("s_waitcnt vmcnt(1)")
                A(f"v_bitop3_b32 {v(TA + 1)}, {v(R)}, {v(R + 8)}, {s(S_TAG)} bitop3:0x7e")
                if cfg.ec == 2:
                    dots(0)
                A("s_waitcnt vmcnt(0)")
                A(f"v_bitop3_b32 {v(TA + 1)}, {v(TA + 1)}, {v(R + 4)}, {s(S_TAG)} bitop3:0xf6")
                A(f"v_bitop3_b32 {v(TA + 1)}, {v(TA)}, {v(TA + 1)}, 1 bitop3:0xa8")
                A(f"v_cmp_ne_u32 vcc, 0, {v(TA + 1)}")
                outp(2)
                A.nf(f"s_cbranch_vccnz {lab}r")
                if cfg.ec == 3:
                    dots(0)
                outp(0)
                dots(1)
                outp(1)

                def again2():
                    A.label(lab + "r")
                    for i in order:
                        A(pld(R, i, S_PXA))
                    A(f"v_and_b32 {v(TA + 1)}, 1, {v(TA)}")
                    A(f"v_cmp_ne_u32 vcc, 0, {v(TA + 1)}")
                    A(f"s_cbranch_vccnz {retry}")
                    if cfg.timing == 5:
                        A("s_add_u32 s92, s92, 1")
                    for k in (0, 1, 2, 3, 8, 9):
                        A(f"v_lshlrev_b32 {v(U + 2 * k)}, 16, {v(V_PL + k)}")
                        A(f"v_and_b32 {v(U + 2 * k + 1)}, 0xffff0000, {v(V_PL + k)}")
                    spin_fail(A)
                    A(f"s_branch {lab}")
                OOL.append(again2)
                return
            A("s_waitcnt vmcnt(1)")
            A(f"v_bitop3_b32 {v(TA + 1)}, {v(R)}, {v(R + 8)}, {s(S_TAG)} bitop3:0x7e")
            A("s_waitcnt vmcnt(0)")
            A(f"v_bitop3_b32 {v(TA + 1)}, {v(TA + 1)}, {v(R + 4)}, {s(S_TAG)} bitop3:0xf6")
            A(f"v_bitop3_b32 {v(TA + 1)}, {v(TA)}, {v(TA + 1)}, 1 bitop3:0xa8")
            A(f"v_cmp_ne_u32 vcc, 0, {v(TA + 1)}")
            A.nf(f"s_cbranch_vccnz {lab}r")

            def again():
                A.label(lab + "r")
                for i in order:
                    A(pld(R, i, S_PXA))
                A(f"v_and_b32 {v(TA + 1)}, 1, {v(TA)}")
                A(f"v_cmp_ne_u32 vcc, 0, {v(TA + 1)}")
                A(f"s_cbranch_vccnz {retry}")
                if cfg.timing == 5:
                    A("s_add_u32 s92, s92, 1")
                spin_fail(A)
                A(f"s_branch {lab}")
            OOL.append(again)
            for i in (0, 1, 2):
                ks = range(4 * i, 4 * i + (4 if i < 2 else 2))
                for k in ks:
                    A(f"v_dot2c_f32_bf16 {v(U + 2 * k)}, {s(S_LO)}, {v(R + k)}")
                    A(f"v_dot2c_f32_bf16 {v(U + 2 * k + 1)}, {s(S_HI)}, {v(R + k)}")
                for k in ks:
                    A(f"v_cvt_pk_bf16_f32 {v(V_F + k)}, {v(U + 2 * k)}, {v(U + 2 * k + 1)}")
                if i == 2:
                    A(f"ds_write_b64 {v(V_MW2)}, {v(V_F + 8, 2)}")
                else:
                    A(f"ds_write_b128 {v(V_MW)}, {v(V_F + 4 * i, 4)} offset:{i * 1024}")
            return
        nm_ = sum(1 for x in mid if x.startswith("buffer_"))
        for n, i in enumerate(order):
            A(f"s_waitcnt vmcnt({2 - n + nm_})")
            ks = range(4 * i, 4 * i + (4 if i < 2 else 2))
            for k in ks:
                A(f"v_dot2c_f32_bf16 {v(U + 2 * k)}, {s(S_LO)}, {v(V_PL + 10 + k)}")
                A(f"v_dot2c_f32_bf16 {v(U + 2 * k + 1)}, {s(S_HI)}, {v(V_PL + 10 + k)}")
            A(f"v_bitop3_b32 {v(TA + (1 if n else 0))}, {v(V_PL + 4 * i)}, {v(V_PL + 10 + 4 * i)}, {s(S_TAG)} bitop3:0x7e")
            if n == 2:
                A(f"v_bitop3_b32 {v(TA)}, {v(TA)}, {v(TA + 1)}, 1 bitop3:0xa8")
                A(f"v_cmp_ne_u32 vcc, 0, {v(TA)}")
            elif n:
                A(f"v_or_b32 {v(TA)}, {v(TA)}, {v(TA + 1)}")
            for k in ks:
                A(f"v_cvt_pk_bf16_f32 {v(V_F + k)}, {v(U + 2 * k)}, {v(U + 2 * k + 1)}")
            if i == 2:
                A(f"ds_write_b64 {v(V_MW2)}, {v(V_F + 8, 2)}")
            else:
                A(f"ds_write_b128 {v(V_MW)}, {v(V_F + 4 * i, 4)} offset:{i * 1024}")
        A.nf(f"s_cbranch_vccnz {retry}")

    def process(V_PL, V_PR, wait, retry):
        if cfg.h16 == 2:
            return process_mm(retry)
        if cfg.h16:
            return process16(V_PL, V_PR, retry)
        TA = V_T + 4
        for n, i in enumerate(order):
            wait(n)
            A(f"v_pk_add_f32 {v(V_T, 2)}, {v(V_PL + 4 * i, 2)}, {v(V_PR + 4 * i, 2)}")
            A(f"v_pk_add_f32 {v(V_T + 2, 2)}, {v(V_PL + 4 * i + 2, 2)}, {v(V_PR + 4 * i + 2, 2)}")
            A(f"v_bitop3_b32 {v(TA + (1 if n else 0))}, {v(V_PL + 4 * i)}, {v(V_PR + 4 * i)}, {s(S_TAG)} bitop3:0x7e")
            A(f"v_cvt_pk_bf16_f32 {v(V_F + 2 * i)}, {v(V_T)}, {v(V_T + 1)}")
            A(f"v_cvt_pk_bf16_f32 {v(V_F + 2 * i + 1)}, {v(V_T + 2)}, {v(V_T + 3)}")
            if n == 4:
                A(f"v_bitop3_b32 {v(TA)}, {v(TA)}, {v(TA + 1)}, 1 bitop3:0xa8")
            elif n:
                A(f"v_or_b32 {v(TA)}, {v(TA)}, {v(TA + 1)}")
            if n == 4:
                A(f"v_cmp_ne_u32 vcc, 0, {v(TA)}")
            if i == 4:
                A(f"ds_write_b64 {v(V_MW2)}, {v(V_F + 8, 2)}")
            elif i & 1:
                A(f"ds_write_b128 {v(V_MW)}, {v(V_F + 4 * (i >> 1), 4)} offset:{(i >> 1) * 1024}")
        A.nf(f"s_cbranch_vccnz {retry}")

    def kgrab():
        A(f"s_mov_b64 vcc, {s(S_MB, 2)}")
        tmp = (V_F, V_F + 4, V_T)
        for jp in range(3):
            for par in range(2):
                for ih in range(2):
                    A(f"ds_read_b64_tr_b16 {v((V_KEEP + 4 * jp, tmp[jp])[par] + 2 * ih, 2)}, {v(V_XR)} offset:{(2 * jp + par) * 1024 + ih * 512}")
        for jp in range(3):
            A(f"s_waitcnt lgkmcnt({8 - 4 * jp})")
            for i in range(4):
                A(f"v_cndmask_b32_dpp {v(V_KEEP + 4 * jp + i)}, {v(tmp[jp] + i)}, {v(V_KEEP + 4 * jp + i)}, vcc quad_perm:[0,1,0,1] row_mask:0xf bank_mask:0xf")
            if cfg.xt:
                A(f"v_and_or_b32 {v(V_KEEP + 4 * jp)}, {v(V_KEEP + 4 * jp)}, -2, {s(S_XT)}")

    def prep(zero, poller):
        if cfg.h16 != 2:
            return
        if zero is None:
            A(f"v_mfma_f32_32x32x8_bf16 {v(84, 16)}, {v(10, 2)}, {v(10, 2)}, 0")
            A(f"v_mfma_f32_16x16x16_bf16 {v(48, 4)}, {v(10, 2)}, {v(10, 2)}, 0")
            A(f"v_mfma_f32_16x16x16_bf16 {v(52, 4)}, {v(10, 2)}, {v(10, 2)}, 0")
        elif poller == "me":
            for k in range(8):
                A(f"v_mov_b32 {v(48 + k)}, 0")
        sel_build()
        A.flush()

    def zero_mfma(Z=10):
        A(f"v_mfma_f32_32x32x8_bf16 {v(V_ACC, 16)}, {v(Z, 2)}, {v(Z, 2)}, 0")
        A(f"v_mfma_f32_16x16x16_bf16 {v(V_ACC + 16, 4)}, {v(Z, 2)}, {v(Z, 2)}, 0")
        A(f"v_mfma_f32_16x16x16_bf16 {v(V_ACC + 20, 4)}, {v(Z, 2)}, {v(Z, 2)}, 0")

    def front(L, ool, top, fast=None, poller=None, V_PL=V_PL, V_PR=V_PR, zero=True, mid=()):
        again, retry, join = A.newlabel("fa"), A.newlabel("fr"), A.newlabel("fj")

        RB = V_PL + 10 if cfg.h16 else V_PR

        def zr():
            for i in range(24 if zero else 0):
                A(f"v_mov_b32 {v(V_ACC + i)}, 0")
        A.label(top)
        if not fast:
            zr()
            if zero and cfg.h16 == 2:
                u_zero()
        if poller == "w0":
            lab = A.newlabel("np")
            A(f"s_cmp_lg_u32 {s(S_WAVE)}, 0")
            A(f"s_cbranch_scc1 {lab}")
        if poller == "me":
            A(f"v_mov_b32 {v(V_T + 2)}, {s(S_N)}")
        if poller:
            doorbell(A, cfg, V_DB, S_DPA, V_T)
        if cfg.m1:
            if poller and cfg.rx:
                A(f"s_sleep {cfg.rx}")
            if poller == "w0":
                A.label_nf(lab)
            if poller == "me":
                A.label_nf("CH_RUNG")
                for i in order:
                    A(pld(V_PL, i, S_PLA))
            A("s_barrier")
            stamp(0)
            if poller != "me":
                for i in order:
                    A(pld(V_PL, i, S_PLA))
            for i in order:
                A(pld(RB, i, S_PXA))
        else:
            if poller == "w0":
                A.label_nf(lab)
            if poller == "me":
                A(f"ds_write_b32 {v(V_RDY)}, {v(V_T + 2)}")
                for i in order:
                    A(pld(V_PL, i, S_PLA))
                if cfg.s3 == 1:
                    A(f"s_cmp_eq_u32 {s(S_EARLY)}, 0" if cfg.s3 == 1 else f"s_cmp_lg_u32 {s(S_EARLY)}, {s(S_SPIN)}")
                    A.nf(f"s_cbranch_scc0 {join}e")
            A("s_barrier")
            stamp(0)
            if fast and cfg.lpf:
                A.nf(f"s_cbranch_vccz {join}l")
            if poller != "me":
                for i in order:
                    A(pld(V_PL, i, S_PLA))
            if fast and zero:
                A.nf(f"s_cbranch_vccz {fast}")
                zr()
            elif fast and not cfg.lpf:
                A.nf(f"s_cbranch_vccz {join}f")
            A.label_nf(join + "w")
            A(f"s_waitcnt vmcnt({min(cfg.rw, NP_ - 1)})")
            if cfg.rx:
                A(f"buffer_load_dword {v(V_T)}, {v(V_L16)}, {WS}, {s(S_DPA)} offen sc1" if cfg.rx == 9 else f"s_sleep {cfg.rx}")
            A.label_nf(join + "f")
            for i in order:
                A(pld(RB, i, S_PXA))
        A.label_nf(join + "z")
        if zero is None:
            zero_mfma()
        if poller == "me" and cfg.w3:
            kgrab()
        prep(zero, poller)
        A.label_nf(join)
        stamp(7)
        if mid:
            process16(V_PL, V_PR, retry, mid)
        else:
            A.label_nf(again)
            process(V_PL, V_PR, lambda n: A(f"s_waitcnt vmcnt({4 - n})"), retry)
        A.label_nf(join + "g")
        L.q = ["mw"]
        stamp(1)

        def slow():
            A.label(retry)
            sk = A.newlabel("sk")
            tg = [V_RAW, V_RAW + 8, V_RAW + 16, V_RAW + 16, V_RAW + 16] if cfg.h16 == 2 else [V_PL + x for x in ((0, 4, 8, 8, 8) if cfg.h16 else (0, 4, 8, 12, 16))]
            A(f"v_bitop3_b32 {v(V_T)}, {v(tg[0])}, {v(tg[1])}, {s(S_TAG)} bitop3:0x7e")
            A(f"v_bitop3_b32 {v(V_T + 1)}, {v(tg[2])}, {v(tg[3])}, {s(S_TAG)} bitop3:0x7e")
            A(f"v_xor_b32 {v(V_T + 2)}, {s(S_TAG)}, {v(tg[4])}")
            A(f"v_or3_b32 {v(V_T)}, {v(V_T)}, {v(V_T + 1)}, {v(V_T + 2)}")
            A(f"v_and_b32 {v(V_T)}, 1, {v(V_T)}")
            A(f"v_cmp_ne_u32 vcc, 0, {v(V_T)}")
            A.nf(f"s_cbranch_vccz {sk}")
            for i in order:
                A(pld(V_PL, i, S_PLA))
            if cfg.timing == 5:
                A("s_add_u32 s93, s93, 1")
            A.label_nf(sk)
            for i in order:
                A(pld(RB, i, S_PXA))
            if cfg.timing == 5:
                A("s_add_u32 s92, s92, 1")
            spin_fail(A)
            A("s_waitcnt lgkmcnt(0)")
            if cfg.h16 == 2:
                u_zero()
            if mid:
                process16(V_PL, V_PR, retry)
                A(f"s_branch {join}g")
            else:
                A(f"s_branch {again}")
            if fast and zero:
                A.label(fast)
                for i in order:
                    A(pld(RB, i, S_PXA))
                zr()
                A(f"s_branch {join}")
            if fast and cfg.lpf:
                A.label(join + "l")
                for i in order:
                    A(pld(RB, i, S_PXA))
                zero_mfma()
                stamp(7)
                process16(V_PL, V_PR, retry, extra=1)
                A.nf(f"s_branch {join}g")
            if poller == "me" and cfg.s3 and not cfg.m1:
                A.label("CH_RUNG")
                A(f"v_mov_b32 {v(V_T + 2)}, {s(S_N)}")
                A(f"ds_write_b32 {v(V_RDY)}, {v(V_T + 2)}")
                for i in order:
                    A(pld(V_PL, i, S_PLA))
                A.label(join + "e")
                for i in order:
                    A(pld(RB, i, S_PXA))
                if cfg.w3:
                    kgrab()
                prep(zero, poller)
                if cfg.ep:
                    process(V_PL, V_PR, lambda n: A(f"s_waitcnt vmcnt({4 - n})"), join + "m")
                    A("s_barrier")
                    stamp(0)
                    stamp(7)
                    A.nf(f"s_branch {join}g")
                    A.label_nf(join + "m")
                A("s_barrier")
                stamp(0)
                A(f"s_branch {retry if cfg.ep else join}")
        ool.append(slow)
        ool.extend(OOL)
        OOL.clear()
        return retry, join + "g"

    G3I = {}

    def gemm3(L, AR, relA89):
        sq = [(0, t_) for t_ in (0, 3, 2, 1, 4)] + [(1, 0), (1, 3), (0, 5), (1, 2), (1, 1), (1, 5), (1, 4)]
        nl = cfg.nlate
        sq += [(sl, t_) for sl in range(2, 8) for t_ in ((0, 3, 2, 5) if sl >= 10 - nl else (0, 3, 1, 4, 2, 5))]
        sq += [(8, 0), (8, 3), (9, 0), (9, 3), (8, 2), (8, 5), (9, 2), (9, 5)]
        sq += [(sl, t_) for sl in (5, 6, 7, 8, 9, 2, 3, 4) if sl >= 10 - nl for t_ in (1, 4)]
        assert len(sq) == 60
        first = {}
        for k, (sl, t_) in enumerate(sq):
            first.setdefault(sl, k)
            G3I["last", sl] = k
            G3I[sl, t_] = k

        def af(sl):
            return v(V_F + 4 * sl, 4) if sl < 2 else v(AR[sl - 2], 4)

        def rdB(sl):
            return [(("B", sl), f"ds_read_b128 {v(V_B + 8 * (sl & 1) + 4 * hf, 4)}, {v(V_BW)} offset:{sl * 2048 + hf * 1024}") for hf in range(2)]

        def rdA(sl):
            ad = V_GB + sl // 2 - 1 if sl < 8 else V_G4
            return [(("A", sl), f"ds_read_b128 {af(sl)}, {v(ad)} offset:{(sl & 1) * 1024}")]
        seq = []
        rd = [Task(cfg.bar1, rdA(2)), Task(0, rdB(0) + rdB(1))]
        for k, (sl, t_) in enumerate(sq):
            seq.append((f"{SM} {v(V_ACC + 4 * t_, 4)}, {af(sl)}, {wtxt(sl, t_)}, {v(V_IDX)}", [("A", sl)] + ([("B", sl)] if t_ == 5 else [])))
            if t_ == 5 and sl + 2 < 10:
                rd.append(Task(k, rdB(sl + 2)))
        for sl in range(3, 10):
            rd.append(Task(max(cfg.bar1, first[sl] - cfg.alead, relA89 if sl >= 8 else 0), rdA(sl)))

        def items(p):
            q, k = V_ACC + 4 * p, V_ACC + 4 * (3 + p)
            return [f"v_add_f32 {v(q)}, {v(q)}, {v(q + 1)}", f"v_add_f32 {v(q + 2)}, {v(q + 2)}, {v(q + 3)}",
                    f"v_add_f32 {v(k)}, {v(k)}, {v(k + 1)}", f"v_add_f32 {v(k + 2)}, {v(k + 2)}, {v(k + 3)}",
                    f"v_cvt_pk_bf16_f32 {v(k + 1)}, {v(q)}, {v(q + 2)}", f"v_cvt_pk_bf16_f32 {v(k)}, {v(k)}, {v(k + 2)}",
                    (("xw", p), f"ds_write_b64 {v(V_XW)}, {v(k, 2)} offset:{(0, 2, 1)[p] * 2048}")]
        return seq, rd, items

    def bar_after(L, tag, st_=None, tasks=()):
        def f():
            for t in tasks:
                assert not t.items, tag
            L.wait(tag)
            A("s_barrier")
            if st_ is not None:
                stamp(st_)
        return f

    def afrag(sl):
        return v(V_F + 4 * sl, 4) if sl < 2 else v(V_A + 4 * ((sl - 2) % 3), 4)

    def gemm(L, tasks, tail_order, hi=()):
        sq = [(0, t_) for t_ in range(5)] + [(1, t_) for t_ in range(5)] + [(0, 5), (1, 5)]
        sq += [(sl, t_) for sl in range(2, 10 - len(tail_order) // 6) for t_ in range(6)]
        sq += tail_order

        def rdB(sl):
            return [(("B", sl), f"ds_read_b128 {v(V_B + 8 * (sl & 1) + 4 * hf, 4)}, {v(V_BW)} offset:{sl * 2048 + hf * 1024}") for hf in range(2)]

        def rdA(sl):
            ad = V_GB + sl // 2 - 1 if sl < 8 else V_G4
            return [(("A", sl), f"ds_read_b128 {afrag(sl)}, {v(ad)} offset:{(sl & 1) * 1024}")]
        seq = []
        rd = [Task(cfg.bar1, rdA(2)), Task(0, rdB(0) + rdB(1)), Task(cfg.bar1, rdA(3) + rdA(4))]
        for k, (sl, t_) in enumerate(sq):
            seq.append((f"{SM} {v(V_ACC + 4 * t_, 4)}, {afrag(sl)}, {wtxt(sl, t_)}, {v(V_IDX)}", [("A", sl)] + ([("B", sl)] if t_ == 5 else [])))
            if t_ == 5 and sl + 2 < 10:
                rd.append(Task(k, (rdA(sl + 3) if 2 <= sl < 7 else []) + rdB(sl + 2)))

        def bar():
            L.wait("mw")
            A("s_barrier")
            stamp(5)
        sched(A, L, seq, list(hi) + sel_clear() + rd + list(tasks), pre={cfg.bar1: bar})
        stamp(6)

    def pend_window(stores):
        def f1():
            lab = A.newlabel("pf")
            A(f"s_cmp_ge_u32 {s(S_FP)}, {NONE}")
            A.nf(f"s_cbranch_scc1 {lab}")
            flag_val(A, cfg, V_T + 5)
            A("s_mov_b64 exec, 1")
            A(f"buffer_store_dword {v(V_T + 5)}, {v(V_L16)}, {WS}, {s(S_FP)} offen sc1")
            A("s_mov_b64 exec, -1")
            A(f"s_mov_b32 {s(S_FP)}, {NONE}")
            A.label_nf(lab)

        def f2():
            lab = A.newlabel("pk")
            A(f"s_cmp_eq_u32 {s(S_KP)}, {NONE}")
            A.nf(f"s_cbranch_scc1 {lab}")
            for x in stores:
                if not cfg.noxg:
                    A(x)
            A(f"s_mov_b32 {s(S_FP)}, {s(S_KF) if not cfg.noxg else NONE}")
            A(f"s_mov_b32 {s(S_KP)}, {NONE}")
            A.label_nf(lab)
        return f1, f2

    def pend_items(stores):
        def fv():
            flag_val(A, cfg, V_T + 5)
        if cfg.xt and cfg.timing != 4:
            return stores + [f"s_mov_b32 {s(S_KP)}, {NONE}"]
        return [(4, fv), f"s_mov_b64 exec, 1\nbuffer_store_dword {v(V_T + 5)}, {v(V_L16)}, {WS}, {s(S_FP)} offen sc1\ns_mov_b64 exec, -1"] + stores + \
            [f"s_and_b32 {s(S_FP)}, {s(S_KP)}, {NONE}", f"s_or_b32 {s(S_FP)}, {s(S_FP)}, {s(S_KF)}", f"s_mov_b32 {s(S_KP)}, {NONE}"]

    def pend_same(stores, k0, others):
        n = [0, None]

        def cnt(x):
            def f():
                A(x)
                n[0] += 1
            return (cfg.vmc, f)
        for t in others:
            t.items = [cnt(x) if isinstance(x, str) and x.startswith("buffer_") else x for x in t.items]

        def mark():
            n[1] = n[0]

        def fl():
            A(f"s_waitcnt vmcnt({n[0] - n[1]})")
            A("s_mov_b64 exec, 1")
            A(f"buffer_store_dword {v(V_T + 5)}, {v(V_L16)}, {WS}, {s(S_FP)} offen sc1")
            A("s_mov_b64 exec, -1")
        t1 = Task(k0, stores + [(0, mark), f"s_and_b32 {s(S_FP)}, {s(S_KP)}, {NONE}", f"s_or_b32 {s(S_FP)}, {s(S_FP)}, {s(S_KF)}", f"s_mov_b32 {s(S_KP)}, {NONE}"])
        t2 = Task(cfg.kef, [(4, lambda: flag_val(A, cfg, V_T + 5)), (20, fl), f"s_mov_b32 {s(S_FP)}, {NONE}"])
        t2.after = t1
        return [t1, t2]

    def advance():
        A(f"s_add_u32 {s(S_N)}, {s(S_N)}, 1")
        A(f"s_mov_b32 {s(S_L)}, {s(S_NL)}")
        A(f"s_mov_b32 {s(S_T)}, {s(S_NT)}")
        A(f"s_mov_b32 {s(S_TAG)}, {s(S_NTAG)}")
        A(f"s_mov_b32 {s(S_T1)}, {s(S_NT1)}")

    def qk_epi(L):
        def items(p):
            q, k = V_ACC + 4 * p, V_ACC + 4 * (3 + p)
            return [f"v_add_f32 {v(q)}, {v(q)}, {v(q + 1)}", f"v_add_f32 {v(q + 2)}, {v(q + 2)}, {v(q + 3)}",
                    f"v_add_f32 {v(k)}, {v(k)}, {v(k + 1)}", f"v_add_f32 {v(k + 2)}, {v(k + 2)}, {v(k + 3)}",
                    f"v_cvt_pk_bf16_f32 {v(k + 1)}, {v(q)}, {v(q + 2)}", f"v_cvt_pk_bf16_f32 {v(k)}, {v(k)}, {v(k + 2)}",
                    ("xw", f"ds_write_b64 {v(V_XW)}, {v(k, 2)} offset:{p * 512}")]
        if cfg.t3:
            return [Task(cfg.t3, items(0) + items(2)), Task(60, items(1))]
        return [Task(53, items(0)), Task(60, items(1)), Task(60, items(2))]
    qk_tail = []
    for p in range(3):
        qk_tail += [(8, p), (8, 3 + p), (9, p), (9, 3 + p)]
    if cfg.t3:
        qk_tail = [(7, 2), (7, 5), (7, 0), (7, 3), (8, 0), (8, 3), (9, 0), (9, 3), (8, 2), (8, 5), (9, 2), (9, 5),
                   (7, 1), (7, 4), (8, 1), (8, 4), (9, 1), (9, 4)]

    if cfg.timing == 5:
        for k in range(5):
            A(f"s_mov_b32 {s(92 + k)}, 0")
    A(f"s_cmp_eq_u32 {s(S_WAVE)}, 3")
    A("s_cbranch_scc1 CH_START")
    A(f"s_lshl_b32 {s(T)}, {s(S_WAVE)}, 2")
    A(f"s_add_u32 {s(T)}, {s(T)}, {L_SY}")
    A(f"v_mov_b32 {v(V_SY)}, {s(T)}")
    A(f"v_mov_b32 {v(V_T)}, 0")
    A(f"ds_write_b32 {v(V_SY)}, {v(V_T)}")
    A(f"v_add_u32 {v(V_KA)}, {L_KV + 24576}, {v(V_L16)}")
    A(f"v_mov_b32 {v(V_FLG)}, {L_SY + 12}")
    A(f"s_lshl_b32 {s(S_XGH)}, {s(S_WAVE)}, 12")
    A(f"s_add_u32 {s(S_HOFF)}, {s(S_HOFF)}, {s(S_XGH)}")
    if cfg.cd:
        A(f"s_add_u32 {s(S_HOFF)}, {s(S_HOFF)}, {QKV_SZ}")
    A(f"s_add_u32 {s(S_KLDS)}, {s(S_XGH)}, {L_KV + (12288 if cfg.cd else 0)}")
    A(f"s_add_u32 {s(S_FLG1)}, {s(S_KLDS)}, {s(S_KLDS)}")
    A(f"s_add_u32 {s(S_FLG1)}, {s(S_FLG1)}, 24576")
    if cfg.ctouch:
        A(f"s_mul_i32 {s(T)}, {s(S_J)}, 3")
        A(f"s_add_u32 {s(T)}, {s(T)}, {s(S_WAVE)}")
        A(f"v_lshlrev_b32 {v(V_T + 1)}, 7, {v(V_LANE)}")
        for k in range(3):
            A(f"s_add_u32 {s(T + 1)}, {s(T)}, {48 * k}")
            A(f"s_min_u32 {s(T + 1)}, {s(T + 1)}, {DP_OFF // 8192 - 1}")
            A(f"s_lshl_b32 {s(T + 1)}, {s(T + 1)}, 13")
            A(f"s_add_u32 {s(T + 1)}, {s(T + 1)}, {s(S_XB)}")
            A(f"buffer_load_dword {v(V_T + 2)}, {v(V_T + 1)}, {WS}, {s(T + 1)} offen sc1")
        A("s_waitcnt vmcnt(0)")
    A("s_mov_b64 vcc, -1")
    A("s_waitcnt lgkmcnt(0)")
    if cfg.timing:
        A(f"s_memrealtime {s(S_T0, 2)}")
        if cfg.timing == 6:
            A("s_memtime s[92:93]")
        A("s_waitcnt lgkmcnt(0)")
    stamp.init()
    KXR = [V_FREE + 4 * i for i in range(6)] + [V_F, V_F + 4] + [V_B + 4 * i for i in range(4)]
    QP = "row_mask:0xf bank_mask:0xf"

    def s_loop(sx, LS):
        L = Lds(A)
        ool = []
        front(L, ool, "CS_LOOP" + sx, "CS_FAST" + sx)
        fill = [f"v_xor_b32 {v(V_KA)}, {L_KV ^ (L_KV + 24576)}, {v(V_KA)}"]
        fill += groups(cap(lambda c: next_item(c, S_NL, S_NT)))
        if cfg.dsh and not cfg.nodma:
            fill += cap(lambda c: kv_src(c, S_NL, S_NT)) + [f"s_sub_u32 {s(S_KLDS)}, {s(S_FLG1)}, {s(S_KLDS)}", f"s_mov_b32 m0, {s(S_KLDS)}"]
            fill += cap(lambda c: cur_local(c, False))
            fill += [f"buffer_load_dwordx4 {v(V_L16)}, {WS}, {s(S_KSRC)} offen offset:{i * 1024} {DF[cfg.dfl]}lds" for i in range(4)]
        else:
            fill += cap(lambda c: cur_local(c, False))
        fill += cap(lambda c: fe_scalars(c, S_NL, S_NT, S_NTAG, S_NT1))
        fill += [f"v_add_u32 {v(V_T + 5)}, {s(S_XGH)}, {v(V_KA)}", f"v_mov_b32 {v(V_T + 4)}, {s(S_T1)}", f"v_mov_b32 {v(V_T + 3)}, 0"]

        def rdK(i):
            return (("K", i), f"ds_read_b128 {v(KXR[i], 4)}, {v(V_KA)} offset:{i * 1024}")
        epi = qk_epi(L)
        gemm(L, [Task(0, fill), Task(14, [rdK(i) for i in range(8)])] + epi[1:], qk_tail, hi=epi[:1])
        skip = A.newlabel("last")
        A(f"s_cmp_eq_u32 {s(S_T)}, 63")
        A.nf(f"s_cbranch_scc1 {skip}")
        L.op(*rdK(8))
        L.op(*rdK(9))
        L.wait("xw")
        A("s_barrier")
        stamp(2)
        X = V_ACC
        S0, S1, SMm = V_A, V_A + 4, V_A + 8
        VX, VM = V_FREE, V_FREE + 16
        PA, PB, PM, TT, O = 24, 28, 32, 34, 36
        DBV = V_FV

        def rdX(j):
            return [(("X", j), f"ds_read_b64_tr_b16 {v(X + 4 * j + 2 * ih, 2)}, {v(V_XR)} offset:{j * 1024 + ih * 512}") for ih in range(2)]
        for j in range(4):
            for it in rdX(j):
                L.op(*it)
        vmld = f"buffer_load_dwordx4 {v(VM, 4)}, {v(V_L16)}, {WS}, {s(S_VMA)} offen sc1"
        dbld = f"buffer_load_dword {v(DBV)}, {v(V_DB)}, {WS}, {s(S_DPA)} offen sc1"
        ring = f"s_mov_b64 exec, 1\nbuffer_store_dword {v(V_T + 4)}, {v(V_L16)}, {WS}, {s(S_DOA)} offen{LS}\ns_mov_b64 exec, -1"
        nst = [0]

        def do_vm():
            A(vmld)
            nst[0] = 0

        def do_ring():
            A(ring)
            nst[0] += 1
        seq = []
        for j in range(6):
            for acc, aop, tg in ((S0, KXR[2 * j], ("K", 2 * j)), (S1, KXR[2 * j + 1], ("K", 2 * j + 1)), (SMm, X + 4 * j, ("X", j))):
                seq.append((f"{MF} {v(acc, 4)}, {v(aop, 4)}, {v(X + 4 * j, 4)}, {'0' if j == 0 else v(acc, 4)}", [("X", j), tg]))
        tk = [Task(0, rdX(4) + [rdK(10), rdK(11)] + rdX(5)),
              Task(6, [("vx", f"ds_read_b128 {v(VX + 4 * i, 4)}, {v(V_T + 5)} offset:{12288 + i * 1024}") for i in range(4)]),
              Task(0, [f"s_mov_b64 vcc, {s(S_MA, 2)}"])]
        if cfg.vmj < 18:
            tk.append(Task(max(cfg.vmj, 9), [(16, do_vm)]))
        if cfg.dbo < 18:
            tk.append(Task(cfg.dbo, [(16, do_ring)]))
        sched(A, L, seq, tk, nvalu=2)

        def mark(k):
            if cfg.vmj == 18 + k:
                do_vm()
            if cfg.dbo == 18 + k:
                do_ring()
        mark(0)
        Y = [S0 + i for i in range(4)]
        Z = SMm
        ZR, ZERO = V_T + 2, V_T + 3
        for i in range(4):
            A(f"v_cndmask_b32_dpp {v(Y[i])}, {v(S1 + i)}, {v(S0 + i)}, vcc quad_perm:[2,3,2,3] {QP}")
        A(f"v_max3_f32 {v(V_T)}, {v(Y[0])}, {v(Y[1])}, {v(Y[2])}")
        A(f"v_cndmask_b32_dpp {v(Z)}, {v(SMm + 1)}, {v(SMm)}, vcc quad_perm:[2,3,2,3] {QP}")
        A(f"v_max3_f32 {v(V_T)}, {v(V_T)}, {v(Y[3])}, {v(Z)}")
        mark(1)
        A(f"v_max_f32_dpp {v(V_T + 1)}, {v(V_T)}, {v(V_T)} quad_perm:[2,3,0,1] {QP}")
        A(f"v_max_f32_dpp {v(V_T)}, {v(V_T)}, {v(V_T)} quad_perm:[2,3,0,1] {QP}")
        A(f"v_permlane32_swap_b32 {v(V_T)}, {v(V_T + 1)}")
        A(f"v_max_f32 {v(S1)}, {v(V_T)}, {v(V_T + 1)}")
        A(f"v_max_f32 {v(V_T)}, {v(V_T)}, {v(V_T + 1)}")
        mark(2)
        A(f"v_permlane16_swap_b32 {v(V_T)}, {v(S1)}")
        A(f"v_max_f32 {v(V_T)}, {v(V_T)}, {v(S1)}")
        A(f"v_mul_f32 {v(V_T)}, {s(S_CS)}, {v(V_T)}")
        S5 = Y + [Z]
        for r in S5:
            A(f"v_fma_f32 {v(r)}, {v(r)}, {s(S_CS)}, -{v(V_T)}")
        for r in S5:
            A(f"v_exp_f32 {v(r)}, {v(r)}")
        mark(3)
        A(f"v_cvt_pk_bf16_f32 {v(TT)}, {v(Y[0])}, {v(Y[1])}")
        A(f"v_cvt_pk_bf16_f32 {v(TT + 1)}, {v(Y[2])}, {v(Y[3])}")
        A(f"v_cndmask_b32 {v(PB + 2)}, {v(TT)}, {v(ZERO)}, vcc")
        A(f"v_cndmask_b32 {v(PB + 3)}, {v(TT + 1)}, {v(ZERO)}, vcc")
        A(f"v_cndmask_b32_dpp {v(PB)}, {v(TT)}, {v(ZERO)}, vcc quad_perm:[2,3,0,1] {QP}")
        A(f"v_cndmask_b32_dpp {v(PB + 1)}, {v(TT + 1)}, {v(ZERO)}, vcc quad_perm:[2,3,0,1] {QP}")
        A(f"s_mov_b64 vcc, {s(S_MB, 2)}")
        L.wait("vx")
        A(f"v_cndmask_b32 {v(PA)}, {v(TT)}, {v(ZERO)}, vcc")
        A(f"{MF} {v(O, 4)}, {v(VX + 4, 4)}, {v(PB, 4)}, 0")
        A(f"v_cndmask_b32 {v(PA + 1)}, {v(TT + 1)}, {v(ZERO)}, vcc")
        A(f"v_cndmask_b32_dpp {v(PA + 2)}, {v(TT)}, {v(ZERO)}, vcc quad_perm:[2,3,0,1] {QP}")
        A(f"{MF} {v(O + 4, 4)}, {v(VX + 12, 4)}, {v(PB, 4)}, 0")
        A(f"v_cndmask_b32_dpp {v(PA + 3)}, {v(TT + 1)}, {v(ZERO)}, vcc quad_perm:[2,3,0,1] {QP}")
        A(f"v_mov_b32_dpp {v(ZR)}, {v(Z)} quad_perm:[2,3,0,1] {QP}")
        A(f"v_add_f32 {v(V_T)}, {v(Y[0])}, {v(Y[1])}")
        A(f"{MF} {v(O, 4)}, {v(VX, 4)}, {v(PA, 4)}, {v(O, 4)}")
        A(f"v_cvt_pk_bf16_f32 {v(PM)}, {v(Z)}, {v(ZR)}")
        A(f"v_cvt_pk_bf16_f32 {v(PM + 1)}, {v(ZR)}, {v(Z)}")
        A(f"{MF} {v(O + 4, 4)}, {v(VX + 8, 4)}, {v(PA, 4)}, {v(O + 4, 4)}")
        A(f"v_cndmask_b32 {v(PM)}, {v(PM)}, {v(ZERO)}, vcc")
        A(f"v_cndmask_b32 {v(PM + 1)}, {v(ZERO)}, {v(PM + 1)}, vcc")
        mark(4)
        A(f"ds_read_b32 {v(DBV)}, {v(V_FLG)}")
        bad, ok = A.newlabel("vb"), A.newlabel("vo")
        A(f"s_waitcnt vmcnt({nst[0]})")
        A(f"v_bitop3_b32 {v(V_T + 5)}, {v(VM)}, {v(VM + 2)}, {s(S_TAG)} bitop3:0x7e")
        A(f"v_add_f32 {v(V_T + 1)}, {v(Y[2])}, {v(Y[3])}")
        A(f"v_and_b32 {v(V_T + 5)}, 1, {v(V_T + 5)}")
        A(f"v_add_f32 {v(V_T)}, {v(V_T)}, {v(Z)}")
        A(f"v_cmp_ne_u32 vcc, 0, {v(V_T + 5)}")
        A(f"v_add_f32 {v(V_T)}, {v(V_T)}, {v(V_T + 1)}")
        A.nf(f"s_cbranch_vccnz {bad}")
        A.label_nf(ok)

        def vslow():
            A.label(bad)
            spin_fail(A)
            if cfg.timing == 5:
                A("s_add_u32 s94, s94, 1")
            A(vmld)
            A("s_waitcnt vmcnt(0)")
            A(f"v_bitop3_b32 {v(V_T + 5)}, {v(VM)}, {v(VM + 2)}, {s(S_TAG)} bitop3:0x7e")
            A(f"v_and_b32 {v(V_T + 5)}, 1, {v(V_T + 5)}")
            A(f"v_cmp_ne_u32 vcc, 0, {v(V_T + 5)}")
            A(f"s_cbranch_vccnz {bad}")
            A(f"s_branch {ok}")
        ool.append(vslow)
        A(f"v_mfma_f32_16x16x16_bf16 {v(O, 4)}, {v(VM, 2)}, {v(PM, 2)}, {v(O, 4)}")
        A(f"v_add_f32_dpp {v(V_T + 1)}, {v(V_T)}, {v(V_T)} quad_perm:[2,3,0,1] {QP}")
        A(f"v_add_f32_dpp {v(V_T)}, {v(V_T)}, {v(V_T)} quad_perm:[2,3,0,1] {QP}")
        A(f"v_mfma_f32_16x16x16_bf16 {v(O + 4, 4)}, {v(VM + 2, 2)}, {v(PM, 2)}, {v(O + 4, 4)}")
        A(f"v_permlane32_swap_b32 {v(V_T)}, {v(V_T + 1)}")
        A(f"v_add_f32 {v(S1)}, {v(V_T)}, {v(V_T + 1)}")
        A(f"v_add_f32 {v(V_T)}, {v(V_T)}, {v(V_T + 1)}")
        A(f"s_add_u32 {s(S_N)}, {s(S_N)}, 1")
        A(f"s_mov_b32 {s(S_L)}, {s(S_NL)}")
        A(f"v_permlane16_swap_b32 {v(V_T)}, {v(S1)}")
        A(f"v_add_f32 {v(V_T)}, {v(V_T)}, {v(S1)}")
        A(f"v_rcp_f32 {v(V_T)}, {v(V_T)}")
        A(f"s_mov_b32 {s(S_T)}, {s(S_NT)}")
        for i in range(0, 8, 2):
            A(f"v_pk_mul_f32 {v(O + i, 2)}, {v(O + i, 2)}, {v(V_T, 2)} op_sel_hi:[1,0]")
        OP = V_F
        for i in range(4):
            A(f"v_cvt_pk_bf16_f32 {v(OP + i)}, {v(O + 2 * i)}, {v(O + 2 * i + 1)}")
        A(f"v_and_or_b32 {v(OP)}, {v(OP)}, -2, {s(S_TAG)}")
        A(f"buffer_store_dwordx4 {v(OP, 4)}, {v(V_OST)}, {WS}, {s(S_OIA)} offen{LS}")
        mark(5)
        stamp(3)
        if cfg.timing == 3:
            A(f"s_sub_u32 {s(S_N)}, {s(S_N)}, 1")
            stamp(4)
            stamp.flush()
            A(f"s_add_u32 {s(S_N)}, {s(S_N)}, 1")
        A(f"s_mov_b32 {s(S_TAG)}, {s(S_NTAG)}")
        A(f"s_mov_b32 {s(S_T1)}, {s(S_NT1)}")
        A("s_waitcnt lgkmcnt(0)")
        A(f"v_cmp_ne_u32 vcc, {s(S_N)}, {v(DBV)}")
        A(f"v_mov_b32 {v(V_T)}, {s(S_N)}")
        A(f"ds_write_b32 {v(V_SY)}, {v(V_T)}")
        A.nf(f"s_branch CS_LOOP{sx}")
        A.label(skip)
        A("s_waitcnt lgkmcnt(0)")
        A("s_barrier")
        advance()
        A("s_mov_b64 vcc, -1")
        A("s_waitcnt vmcnt(0)")
        A(f"v_mov_b32 {v(V_T)}, {s(S_N)}")
        A(f"ds_write_b32 {v(V_SY)}, {v(V_T)}")
        A(f"s_cmp_lt_u32 {s(S_N)}, 128")
        A(f"s_cbranch_scc1 CS_LOOP{sx}")
        A("s_branch CS_DONE")
        for f in ool:
            f()

    def s_loop3(sx, LS, spec=False, other=None):
        from stations3 import Vm
        L = Lds(A)
        ool = []
        PLr, PRr = (92, 72) if cfg.pfs else (72, 92)
        ZERO, DBV = 10, 0
        retry, go = front(L, ool, "CS_LOOP" + sx, "x", V_PL=PLr, V_PR=PRr, zero=None)
        fill = [f"v_xor_b32 {v(V_KA)}, {L_KV ^ (L_KV + 24576)}, {v(V_KA)}"]
        fill += cap(lambda c: next_item(c, S_NL, S_NT))
        if cfg.dsh and not cfg.nodma:
            fill += cap(lambda c: kv_src(c, S_NL, S_NT)) + [f"s_sub_u32 {s(S_KLDS)}, {s(S_FLG1)}, {s(S_KLDS)}", f"s_mov_b32 m0, {s(S_KLDS)}"]
            fill += cap(lambda c: cur_local(c, False))
            fill += [f"buffer_load_dwordx4 {v(V_L16)}, {WS}, {s(S_KSRC)} offen offset:{i * 1024} {DF[cfg.dfl]}lds" for i in range(4)]
            if cfg.dsh == 2:
                fill += [f"s_add_u32 m0, {s(S_KLDS)}, 12288", f"s_add_u32 {s(S_KSRC)}, {s(S_KSRC)}, {QKV_SZ}"]
                fill += [f"buffer_load_dwordx4 {v(V_L16)}, {WS}, {s(S_KSRC)} offen offset:{i * 1024} {DF[cfg.dfl]}lds" for i in range(cfg.dv)]
        else:
            fill += cap(lambda c: cur_local(c, False))
        fill += [f"v_add_u32 {v(V_T + 5)}, {s(S_XGH)}, {v(V_KA)}", f"v_mov_b32 {v(V_T + 4)}, {s(S_T1)}"]
        fill += cap(lambda c: fe_scalars(c, S_NL, S_NT, S_NTAG, S_NT1))
        fill += [f"s_add_u32 {s(S_N)}, {s(S_N)}, 1", f"s_mov_b32 {s(S_L)}, {s(S_NL)}", f"s_mov_b32 {s(S_T)}, {s(S_NT)}", f"s_mov_b32 {s(S_T1)}, {s(S_NT1)}",
                 f"s_mov_b64 vcc, {s(S_MA, 2)}", f"s_and_b32 {s(S_FLG2)}, {s(S_N)}, 128"]
        AR = [60, 64, 68, 88, 92, 96, 100, 104]
        KQ = [48, 52, 108, 72, 76, 80, 84, 88, 92, 96, 100, 104]
        XR = [24, 36, 32, 44, 28, 40]
        S0, S1, SMm = 60, 64, 68
        VX = XR[:4]
        PA, PB, VM, O1, PM, O0, TT, OP = 28, 40, 48, 52, 56, 64, 70, 48
        if cfg.s3 == 1:
            seq, rd, items = gemm3(L, AR, cfg.bar1)
            p1 = G3I[9, 5]
            free = {48: 14, 52: 14, 108: 14, 72: G3I[8, 5] + 1, 76: G3I[8, 5] + 1, 80: p1 + 1, 84: p1 + 1}
            free.update({AR[sl - 2]: G3I["last", sl] + 1 for sl in range(5, 10)})
            KQ = [48, 52] + sorted((r for r in free if r > 52), key=lambda r: free[r])
            KREL = [free[r] for r in KQ]
        else:
            seq = []
            KQ = [48, 52, 88, 92, 96, 100, 104, 108, 72, 76, 80, 84]
            XR = [24, 28, 32, 36, 40, 44]
            VX = XR[:4]
            PA, PB = 40, 44
            if cfg.h16 == 2:
                PM = 72

        def rdK(i):
            return (("K", i), f"ds_read_b128 {v(KQ[i], 4)}, {v(V_KA)} offset:{i * 1024}")

        def rdX(j):
            return [(("X", j), f"ds_read_b64_tr_b16 {v(XR[j] + 2 * ih, 2)}, {v(V_XR)} offset:{j * 1024 + ih * 512}") for ih in range(2)]
        for j in range(6):
            for acc, aop, tg in ((S0, KQ[2 * j], ("K", 2 * j)), (S1, KQ[2 * j + 1], ("K", 2 * j + 1)), (SMm, XR[j], ("X", j))):
                seq.append((f"{MF} {v(acc, 4)}, {v(aop, 4)}, {v(XR[j], 4)}, {'0' if j == 0 else v(acc, 4)}", [("X", j), tg]))
        vmld = f"buffer_load_dwordx4 {v(VM, 4)}, {v(V_L16)}, {WS}, {s(S_VMA)} offen sc1"
        V = Vm(A)

        def do_ring(V):
            A("s_mov_b64 exec, 1")
            V.op("ring", f"buffer_store_dword {v(V_T + 4)}, {v(V_L16)}, {WS}, {s(S_DOA)} offen{LS}")
            A("s_mov_b64 exec, -1")
        if cfg.s3 == 1:
            e0, e2, e1 = Task(p1 - 1, items(0)), Task(p1 + 3, items(2)), Task(61, items(1))
            ka, kb = min(p1 + cfg.b2a, 60), cfg.b2b
            tf = Task(0, fill)
            tk = [e0, e2, e1] + rd + [Task(ka, rdX(0) + rdX(1)), Task(kb, rdX(4) + rdX(5))]
            tk += [Task(KREL[i], [rdK(i)]) for i in range(3, 6)] + [Task(ka, rdX(2))] + [Task(KREL[i], [rdK(i)]) for i in (6, 7)] + [Task(ka, rdX(3))]
            tk += [Task(KREL[i], [rdK(i)]) for i in range(8, 12)]
            if cfg.vmj < 18:
                tk.append(Task(60 + max(cfg.vmj, 1), [(8, lambda: V.op("vm", vmld))]))
            if cfg.dbo < 18:
                tk.append(Task(60 + cfg.dbo, [(16, lambda: do_ring(V))]))
            if cfg.pf == 1:
                tk.append(Task(cfg.krd, [("rdy", f"ds_read_b32 {v(DBV)}, {v(V_FLG)}")]))
            tk += [Task(63 + 3 * i, [("vx", f"ds_read_b128 {v(VX[i], 4)}, {v(V_T + 5)} offset:{12288 + i * 1024}")]) for i in range(4)]
            tk += [Task(cfg.k0 + 4 * i, [rdK(i)]) for i in range(3)] + [tf]

            def lim(k):
                return (16, 2) if p1 - 1 <= k < p1 + 7 else (12, 1) if k < 59 else (12, 2)

            def b2b():
                bar_after(L, ("xw", 1), 2, [e1, tf])()
            sched(A, L, seq, tk, pre={cfg.bar1: bar_after(L, "mw", 5), ka: bar_after(L, ("xw", 2), None, [e0, e2]), kb: b2b, 61: lambda: stamp(6)}, lim=lim)
            pref = A.newlabel("pf")
            if cfg.pf == 1:
                L.wait("rdy")
                A(f"v_readfirstlane_b32 {s(T)}, {v(DBV)}")
                A(f"s_cmp_eq_u32 {s(T)}, {s(S_N)}")
                A.nf(f"s_cbranch_scc1 {pref}")
        else:
            epi = qk_epi(L)
            gemm(L, [Task(cfg.k0, [rdK(i) for i in range(8)], step=cfg.kst), Task(0, fill)] + epi[1:], qk_tail, hi=epi[:1])
            L.op(*rdK(8))
            L.op(*rdK(9))
            L.wait("xw")
            A("s_barrier")
            stamp(2)
            for j in range(4):
                for it in rdX(j):
                    L.op(*it)
            tk = [Task(0, rdX(4) + [rdK(10), rdK(11)] + rdX(5))]
            tk += [Task(3 + 3 * i, [("vx", f"ds_read_b128 {v(VX[i], 4)}, {v(V_T + 5)} offset:{12288 + i * 1024}")]) for i in range(4)]
            if cfg.vmj < 18:
                tk.append(Task(max(cfg.vmj, 1), [(8, lambda: V.op("vm", vmld))]))
            if cfg.dbo < 18:
                tk.append(Task(cfg.dbo, [(16, lambda: do_ring(V))]))
            if spec and cfg.pfs:
                tk.append(Task(cfg.pfs, [(8, lambda n=n: V.op(("P", n), pld(PLr, order[n], S_PLA))) for n in range(5)]))
            sched(A, L, seq, tk, nvalu=2)
        q0, v0 = list(L.q), list(V.q)

        def tail(pre):
            L.q = list(q0)
            V = Vm(A, v0)
            lds_ = [(("P", n), pld(PLr if n < 5 else PRr, order[n % 5], S_PLA if n < 5 else S_PXA)) for n in range(5 if cfg.pfs else 0, 10)] if pre else []

            npf = [0]
            if cfg.lpf:
                lds_ = [(("P", n), pld(PLr, order[n], S_PLA)) for n in range(3)]

            def pf():
                npf[0] += 1
                n = (0 if npf[0] <= cfg.pf0 else -(-len(lds_) // (11 - npf[0])))
                if cfg.lpf:
                    n = (1 if npf[0] >= 8 else 0) if cfg.lpf == 1 else (3 if npf[0] == 10 else 0)
                if cfg.pfs:
                    n = 1 if npf[0] in ((1, 2, 7, 9, 10), (1, 2, 3, 4, 5), (2, 6, 7, 9, 10))[cfg.pf0] and lds_ else 0
                for _ in range(n):
                    V.op(*lds_.pop(0))

            def mark(k):
                if cfg.vmj == 18 + k:
                    V.op("vm", vmld)
                if cfg.dbo == 18 + k:
                    do_ring(V)
            xs = (lambda k: stamp(k)) if cfg.tsx else (lambda k: None)
            xs(0)
            mark(0)
            Y = [S0 + i for i in range(4)]
            Z = SMm
            ZR, TM = V_T + 2, V_T + 3
            pf()
            for i in range(4):
                A(f"v_cndmask_b32_dpp {v(Y[i])}, {v(S1 + i)}, {v(S0 + i)}, vcc quad_perm:[2,3,2,3] {QP}")
            A(f"v_max3_f32 {v(V_T)}, {v(Y[0])}, {v(Y[1])}, {v(Y[2])}")
            A(f"v_cndmask_b32_dpp {v(Z)}, {v(SMm + 1)}, {v(SMm)}, vcc quad_perm:[2,3,2,3] {QP}")
            A(f"v_max3_f32 {v(V_T)}, {v(V_T)}, {v(Y[3])}, {v(Z)}")
            mark(1)
            pf()
            A(f"v_max_f32_dpp {v(V_T + 1)}, {v(V_T)}, {v(V_T)} quad_perm:[2,3,0,1] {QP}")
            A(f"v_max_f32_dpp {v(V_T)}, {v(V_T)}, {v(V_T)} quad_perm:[2,3,0,1] {QP}")
            A(f"v_permlane32_swap_b32 {v(V_T)}, {v(V_T + 1)}")
            A(f"v_max_f32 {v(TM)}, {v(V_T)}, {v(V_T + 1)}")
            A(f"v_max_f32 {v(V_T)}, {v(V_T)}, {v(V_T + 1)}")
            mark(2)
            pf()
            A(f"v_permlane16_swap_b32 {v(V_T)}, {v(TM)}")
            A(f"v_max_f32 {v(V_T)}, {v(V_T)}, {v(TM)}")
            A(f"v_mul_f32 {v(V_T)}, {s(S_CS)}, {v(V_T)}")
            S5 = Y + [Z]
            for r in S5:
                A(f"v_fma_f32 {v(r)}, {v(r)}, {s(S_CS)}, -{v(V_T)}")
            pf()
            for r in S5:
                A(f"v_exp_f32 {v(r)}, {v(r)}")
            xs(7)
            mark(3)
            pf()
            A(f"v_cvt_pk_bf16_f32 {v(TT)}, {v(Y[0])}, {v(Y[1])}")
            A(f"v_cvt_pk_bf16_f32 {v(TT + 1)}, {v(Y[2])}, {v(Y[3])}")
            A(f"v_cndmask_b32 {v(PB + 2)}, {v(TT)}, {v(ZERO)}, vcc")
            A(f"v_cndmask_b32 {v(PB + 3)}, {v(TT + 1)}, {v(ZERO)}, vcc")
            A(f"v_cndmask_b32_dpp {v(PB)}, {v(TT)}, {v(ZERO)}, vcc quad_perm:[2,3,0,1] {QP}")
            A(f"v_cndmask_b32_dpp {v(PB + 1)}, {v(TT + 1)}, {v(ZERO)}, vcc quad_perm:[2,3,0,1] {QP}")
            A(f"s_mov_b64 vcc, {s(S_MB, 2)}")
            L.wait("vx")
            pf()
            if cfg.tl:
                assert cfg.dbo <= 21
            A(f"v_cndmask_b32 {v(PA)}, {v(TT)}, {v(ZERO)}, vcc")
            A(f"{MF} {v(O0, 4)}, {v(VX[1], 4)}, {v(PB, 4)}, 0")
            A(f"v_cndmask_b32 {v(PA + 1)}, {v(TT + 1)}, {v(ZERO)}, vcc")
            A(f"v_cndmask_b32_dpp {v(PA + 2)}, {v(TT)}, {v(ZERO)}, vcc quad_perm:[2,3,0,1] {QP}")
            A(f"{MF} {v(O1, 4)}, {v(VX[3], 4)}, {v(PB, 4)}, 0")
            A(f"v_cndmask_b32_dpp {v(PA + 3)}, {v(TT + 1)}, {v(ZERO)}, vcc quad_perm:[2,3,0,1] {QP}")
            A(f"v_mov_b32_dpp {v(ZR)}, {v(Z)} quad_perm:[2,3,0,1] {QP}")
            A(f"v_add_f32 {v(V_T)}, {v(Y[0])}, {v(Y[1])}")
            A(f"{MF} {v(O0, 4)}, {v(VX[0], 4)}, {v(PA, 4)}, {v(O0, 4)}")
            pf()
            A(f"v_cvt_pk_bf16_f32 {v(PM)}, {v(Z)}, {v(ZR)}")
            A(f"v_cvt_pk_bf16_f32 {v(PM + 1)}, {v(ZR)}, {v(Z)}")
            if cfg.tl:
                A(f"v_mov_b32 {v(V_T + 4)}, {s(S_N)}")
            A(f"{MF} {v(O1, 4)}, {v(VX[2], 4)}, {v(PA, 4)}, {v(O1, 4)}")
            A(f"v_cndmask_b32 {v(PM)}, {v(PM)}, {v(ZERO)}, vcc")
            A(f"v_cndmask_b32 {v(PM + 1)}, {v(ZERO)}, {v(PM + 1)}, vcc")
            mark(4)
            if cfg.tl:
                assert not pre and not other and cfg.dbo <= 22
                odd, cont, sk = A.newlabel("od"), A.newlabel("ct"), A.newlabel("sk")

                def finish(tag):
                    for o_ in (O0, O1):
                        for i in (0, 2):
                            A(f"v_pk_mul_f32 {v(o_ + i, 2)}, {v(o_ + i, 2)}, {v(V_T, 2)} op_sel_hi:[1,0]")
                    for i in range(4):
                        o_ = (O0, O1)[i >> 1] + 2 * (i & 1)
                        A(f"v_cvt_pk_bf16_f32 {v(OP + i)}, {v(o_)}, {v(o_ + 1)}")
                    A(f"v_and_or_b32 {v(OP)}, {v(OP)}, -2, {s(tag)}")
                    A(f"buffer_store_dwordx4 {v(OP, 4)}, {v(V_OST)}, {WS}, {s(S_OIA)} offen{LS}")
                A(f"v_add_f32 {v(V_T + 1)}, {v(Y[2])}, {v(Y[3])}")
                A(f"v_add_f32 {v(V_T)}, {v(V_T)}, {v(Z)}")
                V.wait("vm")
                A(f"v_mfma_f32_16x16x16_bf16 {v(O0, 4)}, {v(VM, 2)}, {v(PM, 2)}, {v(O0, 4)}")
                A(f"v_add_f32 {v(V_T)}, {v(V_T)}, {v(V_T + 1)}")
                A(f"v_bitop3_b32 {v(V_T + 5)}, {v(VM)}, {v(VM + 2)}, {s(S_TAG)} bitop3:0x7e")
                A(f"v_mfma_f32_16x16x16_bf16 {v(O1, 4)}, {v(VM + 2, 2)}, {v(PM, 2)}, {v(O1, 4)}")
                A(f"v_add_f32_dpp {v(V_T + 1)}, {v(V_T)}, {v(V_T)} quad_perm:[2,3,0,1] {QP}")
                A(f"v_add_f32_dpp {v(V_T)}, {v(V_T)}, {v(V_T)} quad_perm:[2,3,0,1] {QP}")
                A(f"v_and_b32 {v(V_T + 5)}, 1, {v(V_T + 5)}")
                A(f"v_cmp_ne_u32 vcc, 0, {v(V_T + 5)}")
                A(f"v_permlane32_swap_b32 {v(V_T)}, {v(V_T + 1)}")
                A(f"v_add_f32 {v(TM)}, {v(V_T)}, {v(V_T + 1)}")
                A(f"v_add_f32 {v(V_T)}, {v(V_T)}, {v(V_T + 1)}")
                A(f"s_cmp_lg_u64 vcc, 0")
                A(f"s_cselect_b32 {s(T)}, 1, 0")
                A(f"v_permlane16_swap_b32 {v(V_T)}, {v(TM)}")
                A(f"v_add_f32 {v(V_T)}, {v(V_T)}, {v(TM)}")
                A(f"v_rcp_f32 {v(V_T)}, {v(V_T)}")
                A(f"s_xor_b32 {s(T + 1)}, {s(S_TAG)}, {s(T)}")
                finish(T + 1)
                stamp(3)
                A(f"ds_read_b32 {v(DBV)}, {v(V_FLG)}")
                A(f"ds_write_b32 {v(V_SY)}, {v(V_T + 4)}")
                A(f"s_or_b32 {s(T + 1)}, {s(T)}, {s(S_FLG2)}")
                A.nf(f"s_cbranch_scc1 {odd}")
                A.label_nf(cont)
                if cfg.timing == 3:
                    A(f"s_sub_u32 {s(S_N)}, {s(S_N)}, 1")
                    stamp(4)
                    stamp.flush()
                    A(f"s_add_u32 {s(S_N)}, {s(S_N)}, 1")
                A("s_barrier")
                stamp(0)
                for i in order:
                    A(pld(PLr, i, S_PLA))
                A("s_waitcnt lgkmcnt(0)")
                A(f"v_cmp_ne_u32 vcc, {s(S_N)}, {v(DBV)}")
                A(f"s_mov_b32 {s(S_TAG)}, {s(S_NTAG)}")
                A.nf(f"s_cbranch_vccnz {go[:-1]}w")
                for i in order:
                    A(pld(PLr + 10, i, S_PXA))
                A.nf(f"s_branch {go[:-1]}z")

                def oddp():
                    bad = A.newlabel("vb")
                    A.label(odd)
                    A(f"s_cmp_eq_u32 {s(T)}, 0")
                    A("s_cbranch_scc1 CS_DONE")
                    A.label(bad)
                    spin_fail(A)
                    if cfg.timing == 5:
                        A("s_add_u32 s94, s94, 1")
                    A(vmld)
                    A("s_waitcnt vmcnt(0)")
                    A(f"v_bitop3_b32 {v(V_T + 5)}, {v(VM)}, {v(VM + 2)}, {s(S_TAG)} bitop3:0x7e")
                    A(f"v_and_b32 {v(V_T + 5)}, 1, {v(V_T + 5)}")
                    A(f"v_cmp_ne_u32 vcc, 0, {v(V_T + 5)}")
                    A(f"s_cbranch_vccnz {bad}")
                    A(f"{MF} {v(O0, 4)}, {v(VX[1], 4)}, {v(PB, 4)}, 0")
                    A(f"{MF} {v(O1, 4)}, {v(VX[3], 4)}, {v(PB, 4)}, 0")
                    A(f"{MF} {v(O0, 4)}, {v(VX[0], 4)}, {v(PA, 4)}, {v(O0, 4)}")
                    A(f"{MF} {v(O1, 4)}, {v(VX[2], 4)}, {v(PA, 4)}, {v(O1, 4)}")
                    A(f"v_mfma_f32_16x16x16_bf16 {v(O0, 4)}, {v(VM, 2)}, {v(PM, 2)}, {v(O0, 4)}")
                    A(f"v_mfma_f32_16x16x16_bf16 {v(O1, 4)}, {v(VM + 2, 2)}, {v(PM, 2)}, {v(O1, 4)}")
                    finish(S_TAG)
                    A(f"s_cmp_lg_u32 {s(S_FLG2)}, 0")
                    A("s_cbranch_scc1 CS_DONE")
                    A(f"s_branch {cont}")
                ool.append(oddp)
                return
            if (not pre or spec) and cfg.rdp == 0 and not cfg.m1:
                A(f"ds_read_b32 {v(DBV)}, {v(V_FLG)}")
            A(f"v_add_f32 {v(V_T + 1)}, {v(Y[2])}, {v(Y[3])}")
            A(f"v_add_f32 {v(V_T)}, {v(V_T)}, {v(Z)}")
            A(f"v_add_f32 {v(V_T)}, {v(V_T)}, {v(V_T + 1)}")
            bad, ok = A.newlabel("vb"), A.newlabel("vo")
            xs(1)
            V.wait("vm")
            xs(5)
            A(f"v_bitop3_b32 {v(V_T + 5)}, {v(VM)}, {v(VM + 2)}, {s(S_TAG)} bitop3:0x7e")
            A(f"v_add_f32_dpp {v(V_T + 1)}, {v(V_T)}, {v(V_T)} quad_perm:[2,3,0,1] {QP}")
            A(f"v_and_b32 {v(V_T + 5)}, 1, {v(V_T + 5)}")
            A(f"v_add_f32_dpp {v(V_T)}, {v(V_T)}, {v(V_T)} quad_perm:[2,3,0,1] {QP}")
            A(f"v_cmp_ne_u32 vcc, 0, {v(V_T + 5)}")
            pf()
            A.nf(f"s_cbranch_vccnz {bad}")
            A.label_nf(ok)

            def vslow():
                A.label(bad)
                spin_fail(A)
                if cfg.timing == 5:
                    A("s_add_u32 s94, s94, 1")
                A(vmld)
                A("s_waitcnt vmcnt(0)")
                A(f"v_bitop3_b32 {v(V_T + 5)}, {v(VM)}, {v(VM + 2)}, {s(S_TAG)} bitop3:0x7e")
                A(f"v_and_b32 {v(V_T + 5)}, 1, {v(V_T + 5)}")
                A(f"v_cmp_ne_u32 vcc, 0, {v(V_T + 5)}")
                A(f"s_cbranch_vccnz {bad}")
                A(f"s_branch {ok}")
            ool.append(vslow)
            A(f"v_mfma_f32_16x16x16_bf16 {v(O0, 4)}, {v(VM, 2)}, {v(PM, 2)}, {v(O0, 4)}")
            A(f"v_permlane32_swap_b32 {v(V_T)}, {v(V_T + 1)}")
            A(f"v_add_f32 {v(TM)}, {v(V_T)}, {v(V_T + 1)}")
            A(f"v_mfma_f32_16x16x16_bf16 {v(O1, 4)}, {v(VM + 2, 2)}, {v(PM, 2)}, {v(O1, 4)}")
            A(f"v_add_f32 {v(V_T)}, {v(V_T)}, {v(V_T + 1)}")
            pf()
            if (not pre or spec) and cfg.rdp == 1:
                A(f"ds_read_b32 {v(DBV)}, {v(V_FLG)}")
            A(f"v_permlane16_swap_b32 {v(V_T)}, {v(TM)}")
            A(f"v_add_f32 {v(V_T)}, {v(V_T)}, {v(TM)}")
            A(f"v_rcp_f32 {v(V_T)}, {v(V_T)}")
            if cfg.rdp == 2:
                A(f"ds_read_b32 {v(DBV)}, {v(V_FLG)}")
            pf()
            for o_ in (O0, O1):
                for i in range(4):
                    if not cfg.pkm:
                        A(f"v_mul_f32 {v(o_ + i)}, {v(o_ + i)}, {v(V_T)}")
                    elif i % 2 == 0:
                        A(f"v_pk_mul_f32 {v(o_ + i, 2)}, {v(o_ + i, 2)}, {v(V_T, 2)} op_sel_hi:[1,0]")
            for i in range(4):
                o_ = (O0, O1)[i >> 1] + 2 * (i & 1)
                A(f"v_cvt_pk_bf16_f32 {v(OP + i)}, {v(o_)}, {v(o_ + 1)}")
            A(f"v_and_or_b32 {v(OP)}, {v(OP)}, -2, {s(S_TAG)}")
            assert not lds_
            if cfg.rdp == 3:
                A(f"ds_read_b32 {v(DBV)}, {v(V_FLG)}")
            V.op("o", f"buffer_store_dwordx4 {v(OP, 4)}, {v(V_OST)}, {WS}, {s(S_OIA)} offen{LS}")
            mark(5)
            stamp(3)
            if pre:
                zero_mfma()
            if cfg.timing == 3:
                A(f"s_sub_u32 {s(S_N)}, {s(S_N)}, 1")
                stamp(4)
                stamp.flush()
                A(f"s_add_u32 {s(S_N)}, {s(S_N)}, 1")
            A(f"s_mov_b32 {s(S_TAG)}, {s(S_NTAG)}")
            A(f"v_mov_b32 {v(V_T)}, {s(S_N)}")
            if spec:
                miss = A.newlabel("ms")
                A(f"ds_write_b32 {v(V_SY)}, {v(V_T)}")
                A(f"s_cmp_lt_u32 {s(S_N)}, {127 - LAG}")
                process(PLr, PRr, lambda n: V.wait(("P", 5 + n)), miss)
                A("s_barrier")
                stamp(0)
                stamp(7)
                if cfg.timing == 5:
                    A("s_add_u32 s95, s95, 1")
                    A(f"s_cmp_lt_u32 {s(S_N)}, {127 - LAG}")
                A.nf(f"s_cbranch_scc1 {go}")
                A.nf(f"s_branch {other[1]}")
                A.label_nf(miss)
                A("s_waitcnt lgkmcnt(0)")
                A(f"v_cmp_ne_u32 vcc, {s(S_N)}, {v(DBV)}")
                A.nf(f"s_cbranch_scc1 CS_LOOP{sx}")
                A(f"s_branch {other[0]}")
            elif pre:
                if cfg.timing == 5:
                    A("s_add_u32 s95, s95, 1")
                A(f"ds_write_b32 {v(V_SY)}, {v(V_T)}")
                A("s_barrier")
                stamp(0)
                stamp(7)
                process(PLr, PRr, lambda n: V.wait(("P", 5 + n)), retry)
                A.nf(f"s_branch {go}")
            else:
                if not cfg.m1:
                    A("s_waitcnt lgkmcnt(0)")
                    A(f"v_cmp_ne_u32 vcc, {s(S_N)}, {v(DBV)}")
                A(f"ds_write_b32 {v(V_SY)}, {v(V_T)}")
                if other:
                    A(f"s_cmp_eq_u32 {s(S_N)}, {LAG}")
                    A.nf(f"s_cbranch_scc1 {other}")
                A(f"s_cmp_lt_u32 {s(S_N)}, 128")
                A.nf(f"s_cbranch_scc1 CS_LOOP{sx}")
                A("s_branch CS_DONE")
        tail(spec)
        if cfg.pf == 1:
            A.label_nf(pref)
            A("s_nop 3")
            tail(True)
        for f in ool:
            f()
        return "CS_LOOP" + sx, go

    if cfg.s3:
        s_loop = s_loop3
        A("v_mov_b32 v10, 0")
        A("v_mov_b32 v11, 0")
        for i in range(24):
            A(f"v_mov_b32 {v(V_ACC + i)}, 0")
    A(f"s_cmp_lg_u32 {s(S_MODE)}, 0")
    A("s_cbranch_scc1 CS_LOOP_S")
    if cfg.s3 and cfg.pf == 2 and LAG < 63:
        ent = s_loop("_F", "", other="CS_LOOP_D")
        s_loop("_D", "", spec=True, other=ent)
    else:
        s_loop("_F", "")
    s_loop("_S", " sc1")

    A.label("CH_START")
    next_item(A, S_NL, S_NT)
    next_item(A, S_L2, S_T2)
    A(f"s_mov_b32 {s(S_KLDS)}, {L_KV}")
    kv_src(A, S_L, S_T)
    flag_row_of(A, S_FLG1, S_L, S_T)
    flag_spin(S_FLG1)
    for e in kv_dma():
        for x in e:
            A(x)
    A(f"s_mov_b32 {s(S_KLDS)}, {L_KV + 24576}")
    kv_src(A, S_NL, S_NT)
    flag_row_of(A, S_FLG1, S_NL, S_NT)
    flag_row_of(A, S_FLG2, S_L2, S_T2)
    A(f"s_mov_b32 {s(S_DEF)}, 1")
    A(f"v_min_u32 {v(V_SY3)}, 2, {v(V_LANE)}")
    A(f"v_lshlrev_b32 {v(V_SY3)}, 2, {v(V_SY3)}")
    A(f"v_add_u32 {v(V_SY3)}, {L_SY}, {v(V_SY3)}")
    A(f"v_mov_b32 {v(V_RDY)}, {L_SY + 12}")
    A(f"s_mov_b32 {s(S_EARLY)}, 0")
    A(f"s_mov_b32 {s(S_OIA)}, {NONE}")
    A(f"s_mov_b32 {s(S_VMA)}, 0")
    A(f"s_mov_b32 {s(S_DOA)}, {NONE}")
    stamp.init()
    L = Lds(A)
    ool = []
    if cfg.s3 == 2:
        for i in range(24):
            A(f"v_mov_b32 {v(V_ACC + i)}, 0")
    if cfg.h16 == 2:
        u_zero()
    dm0 = kv_dma()[12 if cfg.dsh else 0:][:cfg.dfe] if not cfg.nodma else []
    front(L, ool, "CH_LOOP", poller="me", zero=cfg.s3 != 2, mid=[x for e in dm0 for x in e])
    kstore = [f"buffer_store_dwordx4 {v(V_KEEP + 4 * i, 4)}, {v(V_L16 if cfg.kl else V_KST)}, {WS}, {s(S_KP)} offen offset:{i * 1024} sc1" for i in range(3)]
    f1, f2 = pend_window(kstore)
    dm = kv_dma()[12 if cfg.dsh else 0:] if not cfg.nodma else []
    dm = dm[cfg.dfe:]
    S_XV, S_XL, S_FS = S_OIA, S_VMA, S_DOA
    if cfg.cd:
        assert cfg.dsh == 1 and cfg.w3 and not cfg.dfe and cfg.ef == 0
        dm = kv_dma()[:12]
    if cfg.dsh == 2 and dm:
        dm = [(dm[i - i % 4][:-1] if i % 4 == cfg.dv else []) + dm[i][-1:] for i in range(12) if i % 4 >= cfg.dv]
    flat = lambda l_: [x for e in l_ for x in (["\n".join(e[:-1])] if len(e) > 1 else []) + [e[-1]]]
    epi = qk_epi(L)
    fl = f"buffer_load_dword {v(V_FV)}, {v(V_FLG)}, {WS}, {s(S_FLG2)} offen sc1"
    if cfg.s3 != 1:
        tfe = Task(0, cap(lambda c: fe_scalars(c, S_NL, S_NT, S_NTAG, S_NT1)) if cfg.s3 else [])
        if cfg.ef == 2:
            td = Task(cfg.dma1, flat(dm[:cfg.ngem]) + [fl])
            gemm(L, pend_same(kstore, cfg.dma0, [td]) + [td, tfe] + epi[1:], qk_tail, hi=epi[:1])
        elif cfg.cd:
            def late_v():
                A(f"s_cmp_lt_u32 {s(S_XV)}, {NONE}")
                A.nf("s_cbranch_scc1 CH_XV")
                A.label_nf("CH_XVB")

            def xv():
                A.label("CH_XV")
                for e in kv_dma()[12:]:
                    for x in e:
                        A(x.replace(s(S_KLDS), s(S_XL)).replace(s(S_KSRC), s(S_XV)))
                A(f"s_mov_b32 {s(S_XV)}, {NONE}")
                A("s_branch CH_XVB")
            ool.append(xv)
            tw = [Task(cfg.dma0, pend_items(kstore) + [fl]), Task(cfg.dma1, flat(dm)), Task(cfg.kfs, [f"buffer_load_dword v0, {v(V_FLG)}, {WS}, {s(S_FS)} offen sc1"])]
            nwin = sum(x.count("buffer_") for t in tw for x in t.items if isinstance(x, str))
            late_v()
            gemm(L, tw + [tfe] + epi[1:], qk_tail, hi=epi[:1])
            A(f"s_waitcnt vmcnt({nwin})")
        else:
            gemm(L, [Task(cfg.dma0, ([(24, f1), (40, f2)] if not cfg.nb else pend_items(kstore)) + [fl]), Task(cfg.dma1, flat(dm[:cfg.ngem])), tfe] + epi[1:], qk_tail, hi=epi[:1])
        L.wait("xw")
        A("s_barrier")
        stamp(2)
        if cfg.s3:
            A(f"buffer_load_dword {v(V_T + 4)}, {v(V_DB)}, {WS}, {s(S_DPA)} offen sc1")
    else:
        seq, rd, items = gemm3(L, [60, 64, 68, 88, 92, 96, 48, 52], 12)
        p1 = G3I[9, 5]
        e0, e2, e1 = Task(p1 - 1, items(0)), Task(p1 + 3, items(2)), Task(60, items(1))
        tfe = Task(0, cap(lambda c: fe_scalars(c, S_NL, S_NT, S_NTAG, S_NT1)))
        tsm = Task(cfg.ksd, [f"buffer_load_dword {v(V_T + 4)}, {v(V_DB)}, {WS}, {s(S_DPA)} offen sc1"])
        tsm.after = tfe
        sched(A, L, seq, [e0, e2] + rd + [tsm, Task(cfg.dma0, [(24, f1), (40, f2), fl]), Task(cfg.dma1, flat(dm[:cfg.ngem])), tfe, e1],
              pre={cfg.bar1: bar_after(L, "mw", 5), min(p1 + cfg.b2a, 59): bar_after(L, ("xw", 2), None, [e0, e2])},
              lim=lambda k: (16, 2) if p1 - 1 <= k < p1 + 7 else (cfg.hb, 1))
        stamp(6)
        A(f"s_add_u32 {s(T)}, {s(S_N)}, 1")
        A(f"v_mov_b32 {v(V_T + 2)}, {s(T)}")
        bar_after(L, ("xw", 1), 2)()
        lab = A.newlabel("ne")
        A(f"s_mov_b32 {s(S_EARLY)}, 0")
        A("s_waitcnt vmcnt(0)")
        A(f"v_cmp_gt_u32 vcc, {s(S_NT1)}, {v(V_T + 4)}")
        A(f"s_cbranch_vccnz {lab}")
        A(f"ds_write_b32 {v(V_RDY)}, {v(V_T + 2)}")
        A(f"s_mov_b32 {s(S_EARLY)}, 1")
        A.label(lab)
    if cfg.w3:
        slowp, back = A.newlabel("h1"), A.newlabel("h2")
        cur_global(A)
        A(f"s_cmp_ge_u32 {s(S_NT)}, 63")
        A(f"s_cselect_b32 {s(S_DEF)}, 0, {s(S_DEF)}")
        A(f"s_cmp_eq_u32 {s(S_NL)}, {s(S_L)}")
        A(f"s_cselect_b32 {s(T)}, 1, {s(S_DEF)}")
        A(f"s_cmp_eq_u32 {s(T)}, 0")
        A(f"s_cbranch_scc0 {slowp}")
        A.label(back)
        stamp(4)
        stamp.flush()
        advance()
        A(f"s_mov_b32 {s(S_NL)}, {s(S_L2)}")
        A(f"s_mov_b32 {s(S_NT)}, {s(S_T2)}")
        A(f"s_mov_b32 {s(S_FLG1)}, {s(S_FLG2)}")
        next_item(A, S_L2, S_T2)
        flag_row_of(A, S_FLG2, S_L2, S_T2)
        kv_src(A, S_NL, S_NT)
        A(f"s_xor_b32 {s(S_KLDS)}, {s(S_KLDS)}, {L_KV ^ (L_KV + 24576)}")
        for i in range(24):
            A(f"v_mov_b32 {v(V_ACC + i)}, 0")
        if cfg.h16 == 2:
            for i in range(16):
                A(f"v_mov_b32 {v(84 + i)}, 0")
        A("s_waitcnt vmcnt(0)")
        if cfg.ef == 1:
            f1()
        A(f"v_cmp_eq_u32 vcc, 0, {v(V_FV)}")
        A(f"s_cmp_lg_u64 vcc, 0")
        A(f"s_cselect_b32 {s(S_DEF)}, 1, 0")
        if cfg.cd:
            A(f"s_cselect_b32 {s(S_FS)}, {s(S_FLG1)}, {NONE}")
        A(f"v_cmp_gt_u32 vcc, {s(S_T1)}, {v(V_T + 4)}")
        A("s_cbranch_vccz CH_RUNG")
        A(f"s_cmp_lt_u32 {s(S_N)}, 128")
        A(f"s_cbranch_scc1 CH_LOOP")
        A("s_branch CS_DONE")
        A.label(slowp)
        if cfg.cd:
            one, rdy = A.newlabel("c1"), A.newlabel("c2")
            A(f"s_cmp_eq_u32 {s(S_NL)}, {s(S_L)}")
            A(f"s_cbranch_scc1 {one}")
            if cfg.timing == 5:
                A("s_add_u32 s96, s96, 4")
            A("s_waitcnt vmcnt(0)")
            A("v_cmp_eq_u32 vcc, 0, v0")
            A(f"s_cbranch_vccz {rdy}")
            flag_spin(S_FLG1)
            A.label(rdy)
            for e in kv_dma()[:12]:
                for x in e:
                    A(x)
            A(f"buffer_load_dword {v(V_T + 4)}, {v(V_DB)}, {WS}, {s(S_DPA)} offen sc1")
            A(f"s_mov_b32 {s(S_XV)}, {s(S_KSRC)}")
            A(f"s_mov_b32 {s(S_XL)}, {s(S_KLDS)}")
            A(f"s_branch {back}")
            A.label(one)
        kgrab()
        sp = A.newlabel("sp")
        A(f"s_cmp_eq_u32 {s(S_N)}, 127")
        A(f"s_cbranch_scc1 {sp}x")
        A.label(sp)
        A(f"ds_read_b32 {v(V_T)}, {v(V_SY3)}")
        A("s_waitcnt lgkmcnt(0)")
        A(f"v_cmp_ge_u32 vcc, {s(S_N)}, {v(V_T)}")
        poll_tail(A, sp, sleep=1)
        A.label(sp + "x")
        A("s_waitcnt vmcnt(0)")
        f1()
        f2()
        A("s_waitcnt vmcnt(0)")
        f1()
        A(f"s_cmp_eq_u32 {s(S_DEF)}, 0")
        A(f"s_cbranch_scc1 {back}")
        if cfg.timing == 5:
            A("s_add_u32 s95, s95, 4")
        flag_spin(S_FLG1)
        for e in kv_dma():
            for x in e:
                A(x)
        A(f"s_branch {back}")
    else:
        for e in dm[cfg.ngem:]:
            for x in e:
                A(x)
        for j in range(6):
            for ih in range(2):
                A(f"ds_read_b64_tr_b16 {v(V_ACC + 4 * j + 2 * ih, 2)}, {v(V_XR)} offset:{j * 1024 + ih * 512}")
        cur_global(A)
        if not cfg.s3:
            fe_scalars(A, S_NL, S_NT, S_NTAG, S_NT1)
        A(f"s_mov_b64 vcc, {s(S_MB, 2)}")
        A("s_waitcnt lgkmcnt(0)")
        for jp in range(3):
            for i in range(4):
                A(f"v_cndmask_b32_dpp {v(V_KEEP + 4 * jp + i)}, {v(V_ACC + 8 * jp + 4 + i)}, {v(V_ACC + 8 * jp + i)}, vcc quad_perm:[0,1,0,1] {QP}")
        nxt, nodef, sp = A.newlabel("nx"), A.newlabel("nd"), A.newlabel("sp")
        A(f"s_cmp_ge_u32 {s(S_NT)}, 63")
        A(f"s_cselect_b32 {s(S_DEF)}, 0, {s(S_DEF)}")
        A(f"s_cmp_eq_u32 {s(S_NL)}, {s(S_L)}")
        A(f"s_cselect_b32 {s(T)}, 1, {s(S_DEF)}")
        A(f"s_cmp_eq_u32 {s(T)}, 0")
        A(f"s_cbranch_scc1 {nodef}")
        A(f"s_cmp_eq_u32 {s(S_N)}, 127")
        A(f"s_cbranch_scc1 {sp}x")
        A.label(sp)
        A(f"ds_read_b32 {v(V_T)}, {v(V_SY3)}")
        A("s_waitcnt lgkmcnt(0)")
        A(f"v_cmp_ge_u32 vcc, {s(S_N)}, {v(V_T)}")
        poll_tail(A, sp, sleep=1)
        A.label(sp + "x")
        A("s_waitcnt vmcnt(0)")
        f1()
        f2()
        A("s_waitcnt vmcnt(0)")
        f1()
        A.label(nxt)
        A(f"s_cmp_eq_u32 {s(S_DEF)}, 0")
        A(f"s_cbranch_scc1 {nodef}")
        flag_spin(S_FLG1)
        for e in kv_dma():
            for x in e:
                A(x)
        A.label(nodef)
        stamp(4)
        stamp.flush()
        advance()
        A(f"s_mov_b32 {s(S_NL)}, {s(S_L2)}")
        A(f"s_mov_b32 {s(S_NT)}, {s(S_T2)}")
        A(f"s_mov_b32 {s(S_FLG1)}, {s(S_FLG2)}")
        next_item(A, S_L2, S_T2)
        flag_row_of(A, S_FLG2, S_L2, S_T2)
        kv_src(A, S_NL, S_NT)
        A(f"s_xor_b32 {s(S_KLDS)}, {s(S_KLDS)}, {L_KV ^ (L_KV + 24576)}")
        if cfg.s3 == 2:
            for i in range(24):
                A(f"v_mov_b32 {v(V_ACC + i)}, 0")
        A("s_waitcnt vmcnt(0)")
        A(f"v_cmp_eq_u32 vcc, 0, {v(V_FV)}")
        A(f"s_cmp_lg_u64 vcc, 0")
        A(f"s_cselect_b32 {s(S_DEF)}, 1, 0")
        if cfg.s3 == 2:
            A(f"v_cmp_gt_u32 vcc, {s(S_T1)}, {v(V_T + 4)}")
            A("s_cbranch_vccz CH_RUNG")
        A(f"s_cmp_lt_u32 {s(S_N)}, 128")
        A(f"s_cbranch_scc1 CH_LOOP")
        A("s_branch CS_DONE")
    for f in ool:
        f()
    A.label("CS_DONE")
    A(f"v_lshrrev_b32 v0, 4, {v(V_L16)}")
    if cfg.timing == 5:
        retry_dump(A, 0)
    timing_end(A, cfg, stamp, 0)

    A.label("CV_START")
    if cfg.timing == 5:
        for k in range(5):
            A(f"s_mov_b32 {s(92 + k)}, 0")
    stamp.init()

    def v_loop(sx, LS, u):
        L = Lds(A)
        ool = []
        front(L, ool, "CV_LOOP" + sx, poller=None if u else "w0")
        PK = V_KEEP
        x4, x2 = (PK + 2, PK) if u else (PK, PK + 4)
        xst = [f"buffer_store_dwordx4 {v(x4, 4)}, {v(V_VS0)}, {WS}, {s(S_KP)} offen sc1",
               f"buffer_store_dwordx2 {v(x2, 2)}, {v(V_VS1)}, {WS}, {s(S_KP)} offen sc1"]
        if cfg.kl:
            xst = [f"buffer_store_dwordx4 {v(PK, 4)}, {v(V_L16)}, {WS}, {s(S_KP)} offen offset:{u * 1536} sc1",
                   f"buffer_store_dwordx2 {v(PK + 4, 2)}, {v(V_OST)}, {WS}, {s(S_KP)} offen offset:{u * 1536 + 1024} sc1"]
        f1, f2 = pend_window(xst)
        tail = []
        for p in range(3):
            tail += [(8, 2 * p), (8, 2 * p + 1), (9, 2 * p), (9, 2 * p + 1)]

        def items(p):
            q, k = V_ACC + 8 * p, V_ACC + 8 * p + 4
            r = [f"v_add_f32 {v(q)}, {v(q)}, {v(q + 1)}", f"v_add_f32 {v(q + 2)}, {v(q + 2)}, {v(q + 3)}",
                 f"v_add_f32 {v(k)}, {v(k)}, {v(k + 1)}", f"v_add_f32 {v(k + 2)}, {v(k + 2)}, {v(k + 3)}",
                 f"v_cvt_pk_bf16_f32 {v(PK + 2 * p)}, {v(q)}, {v(q + 2)}", f"v_cvt_pk_bf16_f32 {v(PK + 2 * p + 1)}, {v(k)}, {v(k + 2)}",
                 f"v_and_or_b32 {v(PK + 2 * p)}, {v(PK + 2 * p)}, -2, {s(S_TAG)}"]
            if p == (2, 0)[u]:
                r.append(f"buffer_store_dwordx2 {v(x2, 2)}, {v(V_VS1)}, {WS}, {s(S_VMA)} offen{LS}")
            if p == (1, 2)[u]:
                r.append(f"buffer_store_dwordx4 {v(x4, 4)}, {v(V_VS0)}, {WS}, {s(S_VMA)} offen{LS}")
            return r
        gemm(L, ([Task(cfg.dmav, [(24, f1), (32, f2)] if not cfg.nb else pend_items(xst))] if cfg.efv != 2 else [Task(cfg.dmav, pend_items([])[:2] + [f"s_mov_b32 {s(S_FP)}, {NONE}"])]) + [Task(0, cap(lambda c: cur_local(c, True))), Task(60, items(1)), Task(60, items(2))], tail, hi=[Task(53, items(0))])
        stamp(2)
        if not cfg.pb:
            A("s_barrier")
        cur_global(A)
        if cfg.xt:
            for r in (PK, PK + 4):
                A(f"v_and_or_b32 {v(r)}, {v(r)}, -2, {s(S_XT)}")
        next_item(A, S_NL, S_NT)
        fe_scalars(A, S_NL, S_NT, S_NTAG, S_NT1)
        nxt = A.newlabel("nx")
        if cfg.efv == 1:
            A("s_waitcnt vmcnt(0)")
            f1()
        if cfg.efv == 2:
            A("s_waitcnt vmcnt(0)")
            f2()
        A(f"s_cmp_lg_u32 {s(S_NL)}, {s(S_L)}")
        A(f"s_cbranch_scc1 {nxt}")
        A("s_waitcnt vmcnt(0)")
        f1()
        f2()
        A("s_waitcnt vmcnt(0)")
        f1()
        A.label(nxt)
        stamp.flush()
        advance()
        A(f"s_cmp_lt_u32 {s(S_N)}, 128")
        A(f"s_cbranch_scc1 CV_LOOP{sx}")
        A("s_branch CV_DONE")
        for f in ool:
            f()

    A(f"s_and_b32 {s(T)}, {s(S_WAVE)}, 1")
    A(f"s_lshl1_add_u32 {s(T)}, {s(S_MODE)}, {s(T)}")
    for k, sx in ((1, "_F1"), (2, "_S0"), (3, "_S1")):
        A(f"s_cmp_eq_u32 {s(T)}, {k}")
        A(f"s_cbranch_scc1 CV_LOOP{sx}")
    v_loop("_F0", "", 0)
    v_loop("_F1", "", 1)
    v_loop("_S0", " sc1", 0)
    v_loop("_S1", " sc1", 1)
    A.label("CV_DONE")
    if cfg.timing == 5:
        retry_dump(A, 32)
    timing_end(A, cfg, stamp, 32)


def gen_cw(A, cfg, nwg):
    LAG = cfg.LAG
    V_DB, V_BW, V_RW0, V_RR0, V_RW, V_RR, V_PS = 3, 4, 5, 6, 7, 8, 9
    V_STAMP = 19
    V_O = 32
    V_ACC = 80
    V_B = 100
    L_RB = 98304
    RBS = 4 * 8 * 352
    S_PLH, S_PXH, S_DPH, S_M40 = S_HOFF, S_PXR, S_XGH, S_MA

    def wreg(f, p):
        idx = f * 4 + p
        return ("a", idx * 8) if idx < 32 else ("v", 128 + (idx - 32) * 8)

    def wtxt(f, p):
        if p == 4:
            return v(V_B + 8 * (f & 1), 8)
        k, r = wreg(f, p)
        return a(r, 8) if k == "a" else v(r, 8)

    A.label("ROLE_CW")
    common_setup(A, cfg, 3)
    g_, c_ = V_T + 2, V_T + 3
    A(f"v_lshrrev_b32 {v(g_)}, 4, {v(V_LANE)}")
    A(f"v_and_b32 {v(c_)}, 15, {v(V_LANE)}")
    A(f"v_min_u32 {v(V_DB)}, 11, {v(c_ if cfg.pw else V_LANE)}")
    A(f"v_lshlrev_b32 {v(V_DB)}, 2, {v(V_DB)}")
    if cfg.pw:
        A(f"v_lshl_add_u32 {v(V_DB)}, {v(g_)}, 7, {v(V_DB)}")
    A(f"s_mul_i32 {s(T)}, {s(S_WAVE)}, 24576")
    A(f"v_add_u32 {v(V_BW)}, {s(T)}, {v(V_L16)}")
    A(f"v_mul_u32_u24 {v(V_RW0)}, 704, {v(g_)}")
    if cfg.h16:
        A(f"v_and_b32 {v(V_T)}, 3, {v(c_)}")
        A(f"v_lshl_add_u32 {v(V_RW0)}, {v(V_T)}, 2, {v(V_RW0)}")
        A(f"v_bfe_u32 {v(V_T)}, {v(c_)}, 2, 1")
        A(f"v_lshl_add_u32 {v(V_RW0)}, {v(V_T)}, 5, {v(V_RW0)}")
        A(f"v_bfe_u32 {v(V_T)}, {v(c_)}, 3, 1")
        A(f"v_lshl_add_u32 {v(V_RW0)}, {v(V_T)}, 4, {v(V_RW0)}")
    else:
        A(f"v_lshl_add_u32 {v(V_RW0)}, {v(c_)}, 2, {v(V_RW0)}")
    A(f"s_mul_i32 {s(T)}, {s(S_WAVE)}, 2816")
    A(f"s_add_u32 {s(T)}, {s(T)}, {L_RB}")
    A(f"v_add_u32 {v(V_RW0)}, {s(T)}, {v(V_RW0)}")
    V_TM = 10
    if cfg.h16:
        A(f"s_mul_i32 {s(T)}, {s(S_WAVE)}, 24")
        A(f"s_min_u32 {s(T)}, {s(T)}, 64")
        A(f"s_cmp_lt_u32 {s(S_WAVE)}, 2")
        A(f"s_cselect_b32 {s(T + 1)}, 23, 15")
        A(f"s_mov_b32 {s(S_M40)}, 0xffff")
        A(f"s_cselect_b32 {s(S_M40)}, 0xffffff, {s(S_M40)}")
        A(f"s_mov_b32 {s(S_M40 + 1)}, 0")
        A(f"v_and_b32 {v(V_T)}, 31, {v(V_LANE)}")
        A(f"v_min_u32 {v(V_T)}, {s(T + 1)}, {v(V_T)}")
        A(f"v_add_u32 {v(V_T)}, {s(T)}, {v(V_T)}")
        A(f"v_lshrrev_b32 {v(V_T + 1)}, 5, {v(V_LANE)}")
        A(f"v_lshl_add_u32 {v(V_T)}, {v(V_T)}, 1, {v(V_T + 1)}")
        A(f"v_bfe_u32 {v(V_T + 1)}, {v(V_T)}, 2, 3")
        A(f"v_mul_u32_u24 {v(V_RR0)}, 352, {v(V_T + 1)}")
        A(f"v_mul_u32_u24 {v(V_T + 5)}, 1280, {v(V_T + 1)}")
        A(f"v_lshrrev_b32 {v(V_T + 1)}, 5, {v(V_T)}")
        A(f"v_lshl_add_u32 {v(V_RR0)}, {v(V_T + 1)}, 6, {v(V_RR0)}")
        A(f"v_lshl_add_u32 {v(V_T + 5)}, {v(V_T + 1)}, 5, {v(V_T + 5)}")
        A(f"v_and_b32 {v(V_T + 1)}, 3, {v(V_T)}")
        A(f"v_lshl_add_u32 {v(V_T + 5)}, {v(V_T + 1)}, 3, {v(V_T + 5)}")
        A(f"v_and_b32 {v(V_T + 1)}, 1, {v(V_T)}")
        A(f"v_lshl_add_u32 {v(V_RR0)}, {v(V_T + 1)}, 5, {v(V_RR0)}")
        A(f"v_bfe_u32 {v(V_T + 1)}, {v(V_T)}, 1, 1")
        A(f"v_lshl_add_u32 {v(V_RR0)}, {v(V_T + 1)}, 4, {v(V_RR0)}")
        A(f"v_add_u32 {v(V_RR0)}, {L_RB}, {v(V_RR0)}")
        A(f"s_mul_i32 {s(T)}, {s(S_J)}, 1280")
        A(f"v_lshlrev_b32 {v(V_PS)}, 3, {v(V_T)}")
        A(f"v_add_u32 {v(V_PS)}, {s(T)}, {v(V_PS)}")
        A(f"v_lshrrev_b32 {v(V_T + 1)}, 13, {v(V_PS)}")
        A(f"v_lshl_add_u32 {v(V_PS)}, {v(V_T + 1)}, 13, {v(V_PS)}")
        A(f"v_xor_b32 {v(V_TM)}, 1, {v(V_T)}")
        if cfg.h16 != 2:
            A(f"v_or_b32 {v(V_TM)}, {v(V_TM)}, {v(V_T + 1)}")
        A(f"v_and_b32 {v(V_TM)}, 1, {v(V_TM)}")
    else:
        A(f"v_min_u32 {v(V_T)}, 39, {v(V_LANE)}")
        A(f"s_mul_i32 {s(T)}, {s(S_WAVE)}, 40")
        A(f"v_add_u32 {v(V_T)}, {s(T)}, {v(V_T)}")
        A(f"v_lshlrev_b32 {v(V_PS)}, 4, {v(V_T)}")
        A(f"v_bfe_u32 {v(V_T + 1)}, {v(V_T)}, 1, 3")
        A(f"v_mul_u32_u24 {v(V_RR0)}, 352, {v(V_T + 1)}")
        A(f"v_mul_u32_u24 {v(V_T + 5)}, 1280, {v(V_T + 1)}")
        A(f"v_lshrrev_b32 {v(V_T + 1)}, 4, {v(V_T)}")
        A(f"v_lshl_add_u32 {v(V_RR0)}, {v(V_T + 1)}, 5, {v(V_RR0)}")
        A(f"v_lshl_add_u32 {v(V_T + 5)}, {v(V_T + 1)}, 4, {v(V_T + 5)}")
        A(f"v_and_b32 {v(V_T + 1)}, 1, {v(V_T)}")
        A(f"v_lshl_add_u32 {v(V_RR0)}, {v(V_T + 1)}, 4, {v(V_RR0)}")
        A(f"v_lshl_add_u32 {v(V_T + 5)}, {v(V_T + 1)}, 3, {v(V_T + 5)}")
        A(f"v_add_u32 {v(V_RR0)}, {L_RB}, {v(V_RR0)}")
        A(f"s_mov_b32 {s(S_M40)}, -1")
        A(f"s_mov_b32 {s(S_M40 + 1)}, 0xff")
    make_srd(A, SRD_W, P_MEM0, 10240)
    A(f"s_mul_i32 {s(T)}, {s(S_J)}, 160")
    A(f"buffer_load_dwordx2 {v(V_O, 2)}, {v(V_T + 5)}, {s(SRD_W, 4)}, {s(T)} offen")
    A(f"s_mul_i32 {s(S_PLH)}, {s(S_J)}, {0 if cfg.h16 else 2560}")
    A(f"s_add_u32 {s(S_PLH)}, {s(S_PLH)}, {s(S_XB)}")
    A(f"s_lshl_b32 {s(S_PXH)}, {s(S_X)}, 19")
    A(f"s_lshr_b32 {s(T)}, {s(S_J)}, 1")
    if not cfg.h16:
        A(f"s_lshl_b32 {s(T + 1)}, {s(T)}, 14")
        A(f"s_add_u32 {s(S_PXH)}, {s(S_PXH)}, {s(T + 1)}")
    A(f"s_and_b32 {s(T + 1)}, {s(S_J)}, 1")
    A(f"s_mul_i32 {s(T + 2)}, {s(T + 1)}, {0 if cfg.h16 else 2560}")
    A(f"s_add_u32 {s(S_PXH)}, {s(S_PXH)}, {s(T + 2)}")
    A(f"s_add_u32 {s(S_PXH)}, {s(S_PXH)}, {XP}")
    A(f"s_lshl_b32 {s(S_DPH)}, {s(T)}, 7")
    A(f"s_lshl_b32 {s(T + 1)}, {s(T + 1)}, 2")
    A(f"s_add_u32 {s(T + 1)}, {s(T + 1)}, {s(S_WAVE)}")
    A(f"s_lshl_b32 {s(T + 1)}, {s(T + 1)}, 2")
    A(f"s_add_u32 {s(S_DPH)}, {s(S_DPH)}, {s(T + 1)}")
    A(f"s_add_u32 {s(S_DPH)}, {s(S_DPH)}, {s(S_XB)}")
    A(f"s_add_u32 {s(S_DPH)}, {s(S_DPH)}, {DP_OFF}")
    A(f"s_mul_i32 {s(S_OIH)}, {s(S_WAVE)}, 12288")
    A(f"s_add_u32 {s(S_OIH)}, {s(S_OIH)}, {s(S_XB)}")
    A(f"s_add_u32 {s(S_OIH)}, {s(S_OIH)}, {OI_OFF}")
    A(f"s_lshl_b32 {s(S_DOH)}, {s(S_WAVE)}, 7" if not cfg.pw else f"s_mov_b32 {s(S_DOH)}, 0")
    A(f"s_add_u32 {s(S_DOH)}, {s(S_DOH)}, {s(S_XB)}")
    A(f"s_add_u32 {s(S_DOH)}, {s(S_DOH)}, {DO_OFF}")
    A(f"s_cmp_eq_u32 {s(S_X)}, 0")
    A(f"s_cselect_b32 {s(T + 3)}, 0xffff0000, 0")
    A("s_waitcnt vmcnt(0)")
    QPX = "quad_perm:[1,1,3,3] row_mask:0xf bank_mask:0xf"
    if cfg.h16:
        A(f"s_cselect_b64 vcc, -1, 0")
        A(f"v_bfi_b32 {v(V_O + 4)}, {v(V_TM)}, 0, {v(V_O)}")
        A(f"v_lshlrev_b32 {v(V_O + 2)}, 16, {v(V_O)}")
        A(f"v_lshlrev_b32 {v(V_O + 3)}, 16, {v(V_O + 4)}")
        A(f"v_sub_f32 {v(V_O + 2)}, {v(V_O + 2)}, {v(V_O + 3)}")
        A(f"v_lshrrev_b32 {v(V_O + 2)}, 16, {v(V_O + 2)}")
        A(f"v_and_b32 {v(V_O + 2)}, -2, {v(V_O + 2)}")
        A(f"v_cndmask_b32 {v(V_O + 4)}, {v(V_O + 2)}, {v(V_O + 4)}, vcc")
        A(f"v_cndmask_b32 {v(V_O + 5)}, 0, {v(V_O + 1)}, vcc")
        A(f"v_permlane32_swap_b32 {v(V_O + 4)}, {v(V_O + 6)}")
        A(f"v_permlane32_swap_b32 {v(V_O + 5)}, {v(V_O + 7)}")
    else:
        A(f"v_lshlrev_b32 {v(V_O + 4)}, 16, {v(V_O)}")
        A(f"v_and_b32 {v(V_O + 4)}, {s(T + 3)}, {v(V_O + 4)}")
        A(f"v_and_b32 {v(V_O + 5)}, {s(T + 3)}, {v(V_O)}")
        A(f"v_lshlrev_b32 {v(V_O + 6)}, 16, {v(V_O + 1)}")
        A(f"v_and_b32 {v(V_O + 6)}, {s(T + 3)}, {v(V_O + 6)}")
        A(f"v_and_b32 {v(V_O + 7)}, {s(T + 3)}, {v(V_O + 1)}")
    for i in range(4):
        A(f"v_mov_b32 {v(V_O + 8 + i)}, -1")
    A(f"v_mov_b32 {v(V_O + 12)}, 1")
    A(f"s_mov_b64 exec, {s(S_M40, 2)}")
    lst = []
    for k in range(8):
        d = V_O + 4 if k % 4 == 0 else V_O + 8
        lst.append(f"s_add_u32 {s(T)}, {s(S_PLH)}, {PL_OFF + k * 20480}")
        lst.append(f"buffer_store_dwordx4 {v(d, 4)}, {v(V_PS)}, {WS}, {s(T)} offen")
        for hf in range(2 if cfg.near else 1):
            A(f"s_add_u32 {s(T)}, {s(S_PXH)}, {k * 65536 + hf * 8192}")
            A(f"buffer_store_dwordx4 {v(d, 4)}, {v(V_PS)}, {WS}, {s(T)} offen sc1")
    lst.append("s_mov_b64 exec, 1")
    lst.append(f"buffer_store_dword {v(V_O + 12)}, {v(V_L16)}, {WS}, {s(S_DPH)} offen")
    lst.append(f"buffer_store_dword {v(V_O + 12)}, {v(V_L16)}, {WS}, {s(S_DPH)} offen offset:512")
    lstore(A, lst)
    A("s_mov_b64 exec, -1")
    init_barrier_arrive(A, V_T)

    V_DA, V_TR, V_PARK = 20, 30, 32
    S_ORG, S_LW = S_KSRC, S_KLDS
    make_srd(A, SRD_W, P_WO, 6144 * 1280)
    A(f"s_lshl_b32 {s(T)}, {s(S_X)}, 2")
    A(f"s_add_u32 {s(T)}, {s(T)}, {s(S_WAVE)}")
    A(f"s_mul_i32 {s(S_ORG)}, {s(T)}, {768 * 1280}")
    A(f"s_mul_i32 {s(T)}, {s(S_J)}, 160")
    A(f"s_add_u32 {s(S_ORG)}, {s(S_ORG)}, {s(T)}")
    A(f"s_mul_i32 {s(S_LW)}, {s(S_WAVE)}, 40960")
    for i in range(10):
        A(f"v_add_u32 {v(V_T)}, {64 * i}, {v(V_LANE)}")
        A(f"v_mul_u32_u24 {v(V_T + 1)}, 6554, {v(V_T)}")
        A(f"v_lshrrev_b32 {v(V_T + 1)}, 16, {v(V_T + 1)}")
        A(f"v_mul_u32_u24 {v(V_T + 4)}, 10, {v(V_T + 1)}")
        A(f"v_sub_u32 {v(V_T)}, {v(V_T)}, {v(V_T + 4)}")
        A(f"v_mul_u32_u24 {v(V_DA + i)}, 1280, {v(V_T + 1)}")
        A(f"v_lshl_add_u32 {v(V_DA + i)}, {v(V_T)}, 4, {v(V_DA + i)}")
    A(f"v_lshrrev_b32 {v(g_)}, 4, {v(V_LANE)}")
    A(f"v_and_b32 {v(V_T)}, 1, {v(g_)}")
    A(f"v_lshlrev_b32 {v(V_T)}, 5, {v(V_T)}")
    A(f"v_lshrrev_b32 {v(V_T + 1)}, 1, {v(g_)}")
    A(f"v_lshl_add_u32 {v(V_T)}, {v(V_T + 1)}, 2, {v(V_T)}")
    A(f"v_bfe_u32 {v(V_T + 1)}, {v(V_LANE)}, 2, 1")
    A(f"v_add_u32 {v(V_T)}, {v(V_T)}, {v(V_T + 1)}")
    A(f"v_bfe_u32 {v(V_T + 1)}, {v(V_LANE)}, 3, 1")
    A(f"v_lshl_add_u32 {v(V_T)}, {v(V_T + 1)}, 4, {v(V_T)}")
    A(f"v_mul_u32_u24 {v(V_TR)}, 160, {v(V_T)}")
    A(f"v_and_b32 {v(V_T + 1)}, 3, {v(V_LANE)}")
    A(f"v_lshl_add_u32 {v(V_TR)}, {v(V_T + 1)}, 3, {v(V_TR)}")
    A(f"v_add_u32 {v(V_TR)}, {s(S_LW)}, {v(V_TR)}")

    def w_dma(f):
        A(f"s_add_u32 {s(T + 1)}, {s(S_ORG)}, {f * 64 * 1280}")
        for i in range(10):
            A(f"s_add_u32 m0, {s(S_LW)}, {(f % 4) * 10240 + i * 1024}")
            A(f"buffer_load_dwordx4 {v(V_DA + i)}, {s(SRD_W, 4)}, {s(T + 1)} offen lds")
    for f in range(4):
        w_dma(f)
    for f in range(12):
        A(f"s_waitcnt vmcnt({10 * min(3, 11 - f)})")
        n = 0
        for p in range(5):
            kind, r = wreg(f, p) if p < 4 else ("v", V_PARK + 8 * f)
            fn = a if kind == "a" else v
            for RH in range(2):
                for hh in range(2):
                    A(f"ds_read_b64_tr_b16 {fn(r + 4 * RH + 2 * hh, 2)}, {v(V_TR)} offset:{(f % 4) * 10240 + (8 * RH + 2 * hh) * 160 + 32 * p}")
                    n += 1
                    if n == 12:
                        A("s_waitcnt lgkmcnt(4)")
        A("s_waitcnt lgkmcnt(0)")
        if f + 4 < 12:
            w_dma(f + 4)
    A("s_barrier")
    for f in range(12):
        for hf in range(2):
            A(f"ds_write_b128 {v(V_BW)}, {v(V_PARK + 8 * f + 4 * hf, 4)} offset:{f * 2048 + hf * 1024}")
        if f % 4 == 3:
            A("s_waitcnt lgkmcnt(0)")
    A("s_barrier")
    init_barrier_wait(A, V_T, nwg, cfg)
    near_half(A, cfg, S_PXH)
    A(f"s_mov_b32 {s(S_N)}, 0")
    A(f"s_mov_b32 {s(S_DEF)}, 0")
    stamp = mk_stamp(A, cfg, V_STAMP)
    stamp.init()

    def w_loop(sx, LS):
        L = Lds(A)
        nxt = "CW_NEXT" + sx
        A.label("CW_LOOP" + sx)
        item_of(A, S_N, S_L, S_T, LAG, 0, T)
        A(f"s_cmp_eq_u32 {s(S_T)}, 63")
        A(f"s_cbranch_scc1 {nxt}")
        A(f"s_add_u32 {s(S_T1)}, {s(S_T)}, 1")
        A(f"s_lshl_b32 {s(T + 1)}, {s(S_L)}, 9")
        A(f"s_add_u32 {s(S_DOA)}, {s(T + 1)}, {s(S_DOH)}")
        A(f"s_add_u32 {s(S_DPA)}, {s(T + 1)}, {s(S_DPH)}")
        A(f"s_lshl_b32 {s(T + 1)}, {s(S_L)}, 2")
        A(f"s_and_b32 {s(T)}, {s(S_T)}, {cfg.cr - 1}")
        A(f"s_add_u32 {s(T)}, {s(T)}, {s(T + 1)}")
        A(f"s_mul_i32 {s(S_OIA)}, {s(T)}, 49152")
        A(f"s_add_u32 {s(S_OIA)}, {s(S_OIA)}, {s(S_OIH)}")
        A(f"s_add_u32 {s(S_VMA)}, {s(S_OIA)}, 4096")
        A(f"s_add_u32 {s(S_KCUR)}, {s(S_OIA)}, 8192")
        A(f"s_bfe_u32 {s(S_TAG)}, {s(S_T)}, {0x10000 + cfg.cr.bit_length() - 1}")
        A(f"s_bfe_u32 {s(S_NTAG)}, {s(S_T1)}, {0x10000 + cfg.cr.bit_length() - 1}")
        A(f"s_and_b32 {s(T)}, {s(S_T1)}, {cfg.cr - 1}")
        A(f"s_add_u32 {s(T)}, {s(T)}, {s(T + 1)}")
        A(f"s_mul_i32 {s(S_PLA)}, {s(T)}, 20480")
        A(f"s_add_u32 {s(S_PLA)}, {s(S_PLA)}, {s(S_PLH)}")
        A(f"s_lshl_b32 {s(S_PXA)}, {s(T)}, 16")
        A(f"s_add_u32 {s(S_PXA)}, {s(S_PXA)}, {s(S_PXH)}")
        A(f"s_xor_b32 {s(S_DEF)}, {s(S_DEF)}, {RBS}")
        A(f"v_add_u32 {v(V_RW)}, {s(S_DEF)}, {v(V_RW0)}")
        A(f"v_add_u32 {v(V_RR)}, {s(S_DEF)}, {v(V_RR0)}")
        A(f"s_add_u32 {s(T)}, {s(S_T)}, 2")
        A(f"v_mov_b32 {v(V_T + 4)}, {s(T)}")
        if cfg.w2:
            FO = [3 * (n % 4) + n // 4 for n in range(12)]
            BR = [V_B, V_B + 8, 20] + [V_B + 8 * ((n + 1) & 1) for n in range(3, 11)] + [116]

            def rdB(n):
                return [(("B", n), f"ds_read_b128 {v(BR[n] + 4 * hf, 4)}, {v(V_BW)} offset:{FO[n] * 2048 + hf * 1024}") for hf in range(2)]
            lab, redo = A.newlabel("np"), A.newlabel("rd")
            for it in rdB(0) + rdB(1):
                A(it[1])
            A(f"s_cmp_lg_u32 {s(S_WAVE)}, 0")
            A(f"s_cbranch_scc1 {lab}")
            doorbell(A, cfg, V_DB, S_DOA, V_T)
            A.label_nf(lab)
            A("s_barrier")
            stamp(0)
            A.label_nf(redo)

            def ld(n):
                f = FO[n]
                return f"buffer_load_dwordx4 {v(V_O + 4 * n, 4)}, {v(V_L16)}, {WS}, {s((S_OIA, S_VMA, S_KCUR)[f // 4])} offen offset:{(f % 4) * 1024} sc1"
            ring = ["s_mov_b64 exec, 1", f"buffer_store_dword {v(V_T + 4)}, {v(V_L16)}, {WS}, {s(S_DPA)} offen{LS}", "s_mov_b64 exec, -1"]
            NP = cfg.wnp
            sp = [(None, f"v_mov_b32 {v(V_ACC + i)}, 0") for i in range(20)]
            L.q = [it[0] for it in rdB(0) + rdB(1)]
            per = -(-len(sp) // (NP - 1))
            for n in range(NP):
                A(ld(n))
                for tg, x in sp[:per]:
                    L.op(tg, x) if tg else A(x)
                sp = sp[per:]
            stamp(7)
            issued = [NP]
            NC = cfg.wg1
            G = {n: [n] for n in range(NC)}
            upto = {}

            def vw(n, top=None):
                k_ = issued[0] if top is None else top
                assert k_ > n, (n, k_)
                A(f"s_waitcnt vmcnt({k_ - 1 - n})")

            def chk(f, top=None):
                def w():
                    vw(f, top)
                    A(f"v_and_b32 {v(V_T)}, 1, {v(V_O + 4 * f)}")
                return [(8, w), f"v_cmp_ne_u32 vcc, {s(S_TAG)}, {v(V_T)}"]

            def run(items):
                for x in items:
                    x[1]() if isinstance(x, tuple) else A(x)

            def ldt(f):
                def go_():
                    A(ld(f))
                    issued[0] = f + 1
                return (cfg.vmc, go_)
            slow = {f: A.newlabel("ws") for f in G}
            go = {f: A.newlabel("wg") for f in G}
            run(chk(0))
            sq = [(n, p) for n in range(9) for p in range(5)] + [(n, p) for p in range(5) for n in (9, 10, 11)]
            seq, tasks, pre, cks, rds = [], [], {}, {}, []
            for k, (n, p) in enumerate(sq):
                if p == 4:
                    wt = v(BR[n], 8)
                else:
                    wt = wtxt(FO[n], p)
                seq.append((f"{SM} {v(V_ACC + 4 * p, 4)}, {v(V_O + 4 * n, 4)}, {wt}, {v(V_IDX)}", [("B", n)] if p == 4 else []))
                if p == 0 and n in G:
                    def br(f=n):
                        if f in cks:
                            assert not cks[f].items
                        upto[f] = issued[0]
                        A.nf(f"s_cbranch_vccnz {slow[f]}")
                        A.label_nf(go[f])
                        if f == 0:
                            stamp(3)
                    pre[k] = br
                    if n:
                        cks[n] = Task(k - cfg.wlead - 2, chk(n), step=1)
                        tasks.append(cks[n])
                        tasks.append(Task(k - 1, [(12, lambda: None)]))
                elif p == 0 and n < 10:
                    def wv(n=n):
                        vw(n if n < 9 else 11)
                        if n in (6, 9):
                            stamp({6: 4, 9: 5}[n])
                    pre[k] = wv
                    tasks.append(Task(k - 1, [(4, lambda: None)]))
                if p == 4 and n < 9 and n != 2:
                    n2 = n + 3 if n < 2 else n + 2
                    rds.append(Task(max(k, 5 * n2 + 4 - cfg.wbl), rdB(n2)))
            rest = list(range(NC, 12))
            acc = []
            for j in range(0, len(rest), 2):
                x, y = rest[j], rest[min(j + 1, len(rest) - 1)]
                its = [f"v_bitop3_b32 {v(V_T + (2 if j else 1))}, {v(V_O + 4 * x)}, {v(V_O + 4 * y)}, {s(S_TAG)} bitop3:0x7e"]
                if j:
                    its.append(f"v_or_b32 {v(V_T + 1)}, {v(V_T + 1)}, {v(V_T + 2)}")
                acc.append(Task(min(5 * y, 45), its))
                if j:
                    acc[-1].after = acc[-2]
            fin = Task(45, [f"v_and_b32 {v(V_T + 1)}, 1, {v(V_T + 1)}", f"v_cmp_ne_u32 vcc, 0, {v(V_T + 1)}"], step=1)
            fin.after = acc[-1]
            kf = cfg.wkf

            def brf():
                assert not fin.items
                A.nf(f"s_cbranch_vccnz {redo}x")
            pre[kf] = brf
            tasks.append(Task(kf - 1, [(12, lambda: None)]))
            tasks.append(Task(0, [ldt(f) for f in range(NP, 12)], step=cfg.wst))
            tasks += rds + acc + [fin]

            def items(p):
                q = V_ACC + 4 * p
                return [f"v_add_f32 {v(q)}, {v(q)}, {v(q + 1)}", f"v_add_f32 {v(q + 2)}, {v(q + 2)}, {v(q + 3)}",
                        ("rw", f"ds_write2_b32 {v(V_RW)}, {v(q)}, {v(q + 2)} offset0:{16 * p} offset1:{16 * p + 88}")]
            if cfg.wfd < 10:
                tasks.append(Task(max(50 + cfg.wfd, kf), ["\n".join(ring)]))
            for p in range(5):
                tasks.append(Task(50 + 3 * p, items(p)))
            sched(A, L, seq, tasks, pre=pre)
        else:
            for i in range(20):
                A(f"v_mov_b32 {v(V_ACC + i)}, 0")

            def rdB(f):
                return [(("B", f), f"ds_read_b128 {v(V_B + 8 * (f & 1) + 4 * hf, 4)}, {v(V_BW)} offset:{f * 2048 + hf * 1024}") for hf in range(2)]
            for it in rdB(0) + rdB(1):
                L.op(*it)
            if cfg.pw:
                lab = A.newlabel("np")
                A(f"s_cmp_lg_u32 {s(S_WAVE)}, 0")
                A(f"s_cbranch_scc1 {lab}")
            doorbell(A, cfg, V_DB, S_DOA, V_T)
            if cfg.pw:
                A.label_nf(lab)
                A("s_barrier")
            stamp(0)

            def ld(f):
                return f"buffer_load_dwordx4 {v(V_O + 4 * f, 4)}, {v(V_L16)}, {WS}, {s((S_OIA, S_VMA, S_KCUR)[f // 4])} offen offset:{(f % 4) * 1024} sc1"
            ring = ["s_mov_b64 exec, 1", f"buffer_store_dword {v(V_T + 4)}, {v(V_L16)}, {WS}, {s(S_DPA)} offen{LS}", "s_mov_b64 exec, -1"]
            NP = cfg.wnp
            for f in range(NP):
                A(ld(f))
                if cfg.wsp and f < NP - 1:
                    A(f"s_nop {cfg.wsp - 1}")
            stamp(7)
            issued = [NP]
            G = {f: [f] for f in range(cfg.wg1)}
            G.update({f: [f, f + 1] for f in range(cfg.wg1, 12, 2)})

            upto = {}

            def chk(f, top=None):
                last = G[f][-1]

                def w():
                    n = issued[0] if top is None else top
                    assert n > last, (f, n)
                    A(f"s_waitcnt vmcnt({n - 1 - last})")
                    if len(G[f]) == 1:
                        A(f"v_and_b32 {v(V_T)}, 1, {v(V_O + 4 * f)}")
                    else:
                        A(f"v_bitop3_b32 {v(V_T)}, {v(V_O + 4 * f)}, {v(V_O + 4 * f + 4)}, {s(S_TAG)} bitop3:0x7e")
                if len(G[f]) == 1:
                    return [(8, w), f"v_cmp_ne_u32 vcc, {s(S_TAG)}, {v(V_T)}"]
                return [(8, w), f"v_and_b32 {v(V_T)}, 1, {v(V_T)}", f"v_cmp_ne_u32 vcc, 0, {v(V_T)}"]

            def run(items):
                for x in items:
                    x[1]() if isinstance(x, tuple) else A(x)

            def ldt(f):
                def go_():
                    A(ld(f))
                    issued[0] = f + 1
                return (cfg.vmc, go_)
            slow = {f: A.newlabel("ws") for f in G}
            go = {f: A.newlabel("wg") for f in G}
            run(chk(0))
            sq = [(f, p) for f in range(10) for p in range(5)] + [(f, p) for p in range(5) for f in (10, 11)]
            seq, tasks, pre, cks = [], [], {}, {}
            rds = []
            for k, (f, p) in enumerate(sq):
                seq.append((f"{SM} {v(V_ACC + 4 * p, 4)}, {v(V_O + 4 * f, 4)}, {wtxt(f, p)}, {v(V_IDX)}", [("B", f)] if p == 4 else []))
                if p == 0 and f in G:
                    def br(f=f):
                        if f in cks:
                            assert not cks[f].items
                        upto[f] = issued[0]
                        A.nf(f"s_cbranch_vccnz {slow[f]}")
                        A.label_nf(go[f])
                        if f in (0, 6, 10):
                            stamp({0: 3, 6: 4, 10: 5}[f])
                    pre[k] = br
                    if f:
                        cks[f] = Task(k - cfg.wlead - len(chk(f)), chk(f), step=1)
                        tasks.append(cks[f])
                        tasks.append(Task(k - 1, [(12, lambda: None)]))
                if p == 4 and f + 2 < 12:
                    rds.append(Task(k, rdB(f + 2)))
            tasks.append(Task(0, [ldt(f) for f in range(NP, 12)], step=cfg.wst))
            tasks += rds

            def items(p):
                q = V_ACC + 4 * p
                return [f"v_add_f32 {v(q)}, {v(q)}, {v(q + 1)}", f"v_add_f32 {v(q + 2)}, {v(q + 2)}, {v(q + 3)}",
                        ("rw", f"ds_write2_b32 {v(V_RW)}, {v(q)}, {v(q + 2)} offset0:{16 * p} offset1:{16 * p + 88}")]
            if cfg.wfd < 10:
                tasks.append(Task(50 + cfg.wfd, ["\n".join(ring)]))
            for p in range(5):
                tasks.append(Task(54 + 2 * p, items(p)))
            sched(A, L, seq, tasks, pre=pre)
        if cfg.wfd == 10:
            for x in ring:
                A(x)
        A("s_waitcnt lgkmcnt(0)")
        A("s_barrier")
        R = V_O
        for w in range(4):
            A(f"ds_read_b128 {v(R + 4 * w, 4)}, {v(V_RR)} offset:{w * 2816}")
        stamp(1)
        if cfg.wfd == 11:
            for x in ring[:2]:
                A(x)
        A(f"s_mov_b64 exec, {s(S_M40, 2) if not cfg.h16 else -1}")
        A("s_waitcnt lgkmcnt(2)")
        A(f"v_pk_add_f32 {v(R, 2)}, {v(R, 2)}, {v(R + 4, 2)}")
        A(f"v_pk_add_f32 {v(R + 2, 2)}, {v(R + 2, 2)}, {v(R + 6, 2)}")
        A("s_waitcnt lgkmcnt(0)")
        A(f"v_pk_add_f32 {v(R + 8, 2)}, {v(R + 8, 2)}, {v(R + 12, 2)}")
        A(f"v_pk_add_f32 {v(R + 10, 2)}, {v(R + 10, 2)}, {v(R + 14, 2)}")
        A(f"v_pk_add_f32 {v(R, 2)}, {v(R, 2)}, {v(R + 8, 2)}")
        A(f"v_pk_add_f32 {v(R + 2, 2)}, {v(R + 2, 2)}, {v(R + 10, 2)}")
        if cfg.h16:
            A(f"v_cvt_pk_bf16_f32 {v(R)}, {v(R)}, {v(R + 1)}")
            A(f"v_cvt_pk_bf16_f32 {v(R + 1)}, {v(R + 2)}, {v(R + 3)}")
            A(f"v_bfi_b32 {v(R)}, {v(V_TM)}, {s(S_NTAG)}, {v(R)}")
            A(f"v_permlane32_swap_b32 {v(R + 1)}, {v(R + 3)}")
            A(f"v_permlane32_swap_b32 {v(R)}, {v(R + 2)}")
            A(f"s_mov_b64 exec, {s(S_M40, 2)}")
        else:
            A(f"v_and_or_b32 {v(R)}, {v(R)}, -2, {s(S_NTAG)}")
        st2 = [f"buffer_store_dwordx4 {v(R, 4)}, {v(V_PS)}, {WS}, {s(S_PXA)} offen sc1", f"buffer_store_dwordx4 {v(R, 4)}, {v(V_PS)}, {WS}, {s(S_PLA)} offen{LS}"]
        if cfg.pso:
            st2.reverse()
        A(st2[0])
        if cfg.wfd == 13:
            for x in ring[:2]:
                A(x)
            A(f"s_mov_b64 exec, {s(S_M40, 2)}")
        if cfg.pso == 2:
            A("s_barrier")
        A(st2[1])
        stamp(2)
        if cfg.pull:
            A(f"s_xor_b32 {s(T)}, {s(S_PXA)}, {1 << 19}")
            A(f"s_sleep {cfg.pull0}")
            for _ in range(cfg.pull):
                A(f"buffer_load_dword {v(V_T + 5)}, {v(V_PS)}, {WS}, {s(T)} offen sc1")
                A(f"s_sleep {cfg.pull1}")
        A("s_mov_b64 exec, -1")
        if cfg.wfd == 12:
            for x in ring:
                A(x)
        stamp.flush()
        A.label(nxt)
        A(f"s_add_u32 {s(S_N)}, {s(S_N)}, 1")
        A(f"s_cmp_lt_u32 {s(S_N)}, 128")
        A(f"s_cbranch_scc1 CW_LOOP{sx}")
        A("s_branch CW_DONE")
        for f in G:
            A.label(slow[f])
            for f2 in range(f, upto[f]):
                A(ld(f2))
            spin_fail(A)
            if cfg.timing == 5:
                A(f"s_add_u32 s{92 + min(f, 4)}, s{92 + min(f, 4)}, 1")
            run(chk(f, upto[f]))
            A(f"s_cbranch_vccnz {slow[f]}")
            A(f"s_branch {go[f]}")
        if cfg.w2:
            A.label(redo + "x")
            spin_fail(A)
            if cfg.timing == 5:
                A("s_add_u32 s96, s96, 1")
            A("s_waitcnt lgkmcnt(0)")
            A("s_nop 7")
            for it in rdB(0) + rdB(1):
                A(it[1])
            A(f"s_branch {redo}")

    if cfg.w2:
        for n, r in ((2, 20), (11, 116)):
            f = 3 * (n % 4) + n // 4
            for hf in range(2):
                A(f"ds_read_b128 {v(r + 4 * hf, 4)}, {v(V_BW)} offset:{f * 2048 + hf * 1024}")
        A("s_waitcnt lgkmcnt(0)")
    if cfg.timing == 5:
        for k in range(5):
            A(f"s_mov_b32 {s(92 + k)}, 0")
    A(f"s_cmp_lg_u32 {s(S_MODE)}, 0")
    A("s_cbranch_scc1 CW_LOOP_S")
    w_loop("_F", "")
    w_loop("_S", " sc1")
    A.label("CW_DONE")
    if cfg.timing == 5:
        retry_dump(A, 48)
    timing_end(A, cfg, stamp, 48)
```

```python
import sys
from asmlib import Asm, v, a, s

NAME = "interleave_layers__memory_aug_recurrent_mem_tr__mixer_s_mlp__prompt"

WS_BYTES = 268435456
FLAGS = 0
CHB = 0x200000
CHB_XG = 0x200000
MEMR = CHB
MEM_SLOT = 20480
XCH_OFF = 4 * MEM_SLOT
XCH_HEAD = 18432
XCH_SLOT = 8 * XCH_HEAD
PART_OFF = XCH_OFF + 4 * XCH_SLOT
PART_SLOT = 8 * 40960
assert PART_OFF + 4 * PART_SLOT <= CHB_XG
XP = 0xA00000
XP_STEP = 4 * 40960
XG = 0x1700000
XG_HEAD = XCH_HEAD
XG_STEP = 32 * XG_HEAD
MAXSTEP = 84
assert XP + 80 * XP_STEP <= XG
QKV_SEG = 32 * 12288
QKV_SZ = 64 * QKV_SEG
KX = 0x4700000
assert XG + MAXSTEP * XG_STEP <= KX
VX = KX + QKV_SZ
QX = VX + QKV_SZ
OX = QX + QKV_SZ
WOP = OX + QKV_SZ
NKG = 6
WOP_SEG = NKG * 81920
XSEG = 40960
XSEGS = 46080
XIN = WOP + 64 * WOP_SEG
X1B = XIN + 128 * XSEGS
XM = X1B + 128 * XSEGS
YB = XM + 128 * XSEG
ZB = YB + 128 * XSEGS
X0R = ZB + 128 * XSEG
HB = X0R + 64 * XSEG
GB = HB + 2 * 66 * XSEG
GSEG = 98304
WS_END = GB + 128 * GSEG
assert WS_END + 4096 + 256 * 4 * 256 <= WS_BYTES, WS_END

RAWST = WS_END + 4096
F_XIN, F_Q, F_K, F_V, F_O, F_WOP, F_R1, F_H, F_X1, F_G = range(10)
FXG = 0xA8000
FXG_STEP = 32 * 64
assert FXG + MAXSTEP * FXG_STEP <= 0xE0000


C2 = CHB
C2_X = 0x200000
PL_OFF = 0
OI_OFF = 0x28000
VM_OFF = 0x88000
DP_OFF = 0xE8000
DO_OFF = 0xE8400
XG2_HEAD = 6144
XG2_STEP = 32 * XG2_HEAD
assert XG + 128 * XG2_STEP <= KX
FXG2_STEP = 32 * 32
FOD = 0xF0000
FWOP2 = FXG + 128 * FXG2_STEP
assert FWOP2 + 128 * 640 <= 0xE0000


def flag_row(kind, layer=0, seg=0):
    return FLAGS + ((kind * 2 + layer) * 64 + seg) * 512


P_X, P_MEM0, P_WQ, P_WK, P_WV, P_WO, P_SEG, P_BX, P_W1, P_W2, P_W3, P_W4, P_OUT, P_DBG, P_WS = [16 + 2 * i for i in range(15)]
SRD_W = 4
SRD_WS = 8
SRD_DBG = 12
S_WAVE = 46
S_SPIN = 47
S_ROLE = 48
SPIN_BUDGET = 200000


class Cfg:
    def __init__(self, **kw):
        self.LAG = 9
        self.mode = "full"
        self.lstride = 0
        self.timing = 0
        self.force_fallback = 0
        self.xg_early = 1
        self.xsleep = 0
        self.msleep = 0
        self.prefetch = 1
        self.d0 = 0
        self.xpr = 4
        self.nodma = 0
        self.noxg = 0
        self.sl_m = 0
        self.sl_q = 0
        self.sl_r = 0
        self.qe = 10
        self.lateq2 = 0
        self.lsl = 1
        self.zf = 0
        self.xh2 = 0
        self.fe = 0
        self.xq = 0
        self.xw = 0
        self.xr = 0
        self.vote = 0
        self.allpipe = 0
        self.near = 0
        self.nprobe = 8
        self.xpl = 0
        self.dlt = 0
        self.dly_w = 0
        self.coop = 0
        self.jcw = 0
        self.gpk = 0
        self.r1h = 0
        self.xrs = 0
        self.q3 = 0
        self.wgq = 0
        self.wgp2 = 0
        self.asl = -1
        self.wgp = 0
        self.nrs = 0
        self.fsl = -1
        self.own = 0
        self.l15 = 0
        self.r1e = 0
        self.xat = 0
        self.jc = 0
        self.q2 = 0
        self.q2tail = 8
        self.q2ack = 12
        self.attl = 0
        self.dyn = 0
        self.rot = 0
        self.m1 = 0
        self.xga = 0
        self.ks = 0
        self.late_q = 0
        self.lead1 = 0
        self.dbgmem = 0
        self.s32 = 1
        self.place = 0
        self.rawt0 = 30
        self.late_w = 0
        self.ntop = 4
        self.natt = 4
        self.pp_r = 0
        self.gap_r = 0
        self.pp_x = 0
        self.gap_x = 0
        self.QA = 12
        self.att_sleep = 2
        self.c2 = 0
        self.a2 = 0
        self.g3 = 0
        self.qds = 3
        self.qf1 = 30
        self.qsm = 55
        self.qx = 0
        self.qld = 3
        self.qts = 0
        self.lw = 0
        self.wpf = 0
        self.qs0 = 0
        self.qss = 0
        self.qd0 = 1
        self.qf2 = 58
        self.qkw = 8
        self.bloc = 0
        self.oloc = 0
        self.touch = 0
        self.ring = 0
        self.bea = 1
        self.w1d = 3
        self.grn = 1
        self.ctouch = 1
        self.ant = 0
        self.aw = 0
        self.a3 = 0
        self.asm = 0
        self.kah = 14
        self.kac = 6
        self.lin = 0
        self.xmt = 1
        self.xml = 0
        self.o4 = 0
        self.w5 = 0
        self.ks3 = 44
        self.kl = 0
        self.sl = 0
        self.ns0 = 0
        self.oring = 0
        self.cs = 0
        self.xt = 0
        self.cd = 0
        self.ec = 0
        self.cso = 0
        self.kfs = 44
        self.qnt = 0
        self.kef = 50
        self.efv = 0
        self.kkc = 12
        self.kck = 17
        self.ksl = 12
        self.kw0 = 4
        self.kkf = 26
        self.ksp = 8
        self.kxm = 28
        self.ks2 = 38
        self.bf1 = 12
        self.bf1x = 22
        self.bsmx = 10
        self.bsm = 30
        self.bps = 2
        self.r2 = 0
        self.dbo = 20
        self.vmj = 16
        self.vmc = 8
        self.verbose = 0
        self.pso = 2
        self.pb = 1
        self.pw = 1
        self.wg1 = 6
        self.dsh = 1
        self.cr = 4
        self.s3 = 0
        self.pf = 1
        self.b2a = 10
        self.nlate = 8
        self.alead = 8
        self.k0 = 30
        self.hb = 12
        self.tsx = 0
        self.pf0 = 0
        self.pfs = 0
        self.ep = 0
        self.h16 = 0
        self.w3 = 0
        self.nb = 0
        self.ef = 0
        self.vr = 0
        self.nv = 32
        self.w2 = 0
        self.dfe = 0
        self.pkm = 0
        self.tl = 0
        self.lpf = 0
        self.lnb = 6
        self.lth = 0
        self.wbl = 9
        self.wkf = 52
        self.pull = 0
        self.pull0 = 4
        self.pull1 = 1
        self.dl1 = 0
        self.wf1 = 24
        self.deg = 0
        self.arn = 0
        self.wsm = 36
        self.dl4 = 0
        self.dl2 = 0
        self.dl3 = 0
        self.qe0 = 0
        self.t3 = 0
        self.dv = 2
        self.dmav = 5
        self.rdp = 0
        self.rx = 0
        self.kst = 0
        self.b2b = 68
        self.krd = 74
        self.ksd = 50
        self.dfl = 2
        self.kvhit = 0
        self.dma1 = 5
        self.wnp = 5
        self.wsp = 8
        self.wst = 4
        self.wlead = 2
        self.rw = 4
        self.ngem = 24
        self.edb = 0
        self.sw = 67
        self.dma0 = 38
        self.dmas = 5
        self.bar1 = 4
        self.wfd = 10
        self.dsl = 0
        self.dpp2 = 0
        self.spin = SPIN_BUDGET
        self.off = 0
        self.__dict__.update(kw)


def make_srd(A, d, ptr, nbytes):
    A(f"s_mov_b32 {s(d)}, {s(ptr)}")
    A(f"s_mov_b32 {s(d + 1)}, {s(ptr + 1)}")
    A(f"s_mov_b32 {s(d + 2)}, {nbytes}")
    A(f"s_mov_b32 {s(d + 3)}, 0x20000")


def poll_tail(A, top, ok_on="vccz", sleep=0):
    ok = A.newlabel("ok")
    A(f"s_cbranch_vccz {ok}")
    if sleep:
        A(f"s_sleep {sleep}")
    A(f"s_sub_u32 {s(S_SPIN)}, {s(S_SPIN)}, 1")
    A("s_cbranch_scc1 ABORT")
    A(f"s_branch {top}")
    A.label(ok)


class WLoader:
    def __init__(self, A, vtmp, stmp):
        self.A = A
        self.units = []
        self.vt = vtmp
        self.st = stmp
        self.shapes = {}
        self.grp = {}

    def add(self, srd_setup, s_org, row_stride, T, nk, dst, m32=None, grp=None):
        self.units.append((srd_setup, s_org, row_stride, T, nk, dst))
        self.shapes[len(self.units) - 1] = m32
        self.grp[len(self.units) - 1] = grp if grp is not None else len(self.units) - 1

    def emit(self, v_lane, after=None):
        A = self.A
        vt, st = self.vt, self.st
        A(f"s_mul_i32 {s(st)}, {s(S_WAVE)}, 40960")
        flat = []
        for ui, u in enumerate(self.units):
            for j in range(u[4]):
                flat.append((ui, j))
        chunks, cur, sz = [], [], 0
        for (ui, j) in flat:
            T = self.units[ui][3]
            if sz + T > 20 or (cur and self.grp[cur[-1][0]] != self.grp[ui]):
                chunks.append(cur)
                cur, sz = [], 0
            cur.append((ui, j))
            sz += T
        if cur:
            chunks.append(cur)
        last_dma_unit = [None]

        def dma(ci):
            ch = chunks[ci]
            half = ci & 1
            ui = ch[0][0]
            srd_setup, s_org, stride, T, nk, dst = self.units[ui]
            if last_dma_unit[0] != self.grp[ui]:
                srd_setup()
                lpr = 2 * T
                sh = {2: 1, 4: 2, 8: 3}[lpr]
                A(f"v_lshrrev_b32 {v(vt + 3)}, {sh}, {v(v_lane)}")
                A(f"s_mov_b32 {s(st + 1)}, {stride}")
                A(f"v_mul_lo_u32 {v(vt + 3)}, {v(vt + 3)}, {s(st + 1)}")
                A(f"v_and_b32 {v(vt + 4)}, {lpr - 1}, {v(v_lane)}")
                A(f"v_lshl_add_u32 {v(vt)}, {v(vt + 4)}, 4, {v(vt + 3)}")
                last_dma_unit[0] = self.grp[ui]
            off = half * 20480
            n = 0
            for (uj, j) in ch:
                s_org = self.units[uj][1]
                for i in range(T):
                    row = 32 * j + i * (32 // T)
                    A(f"s_add_u32 m0, {s(st)}, {off}")
                    A(f"s_add_u32 {s(st + 2)}, {s(s_org)}, {row * stride}")
                    A(f"buffer_load_dwordx4 {v(vt)}, {s(SRD_W, 4)}, {s(st + 2)} offen lds")
                    off += 1024
                    n += 1
            return n

        def trread(ci):
            ch = chunks[ci]
            half = ci & 1
            ui = ch[0][0]
            _, _, stride, T, nk, dst = self.units[ui]
            m32 = self.shapes[ui]
            if m32:
                A(f"v_bfe_u32 {v(vt + 3)}, {v(v_lane)}, 2, 2")
                A(f"v_lshrrev_b32 {v(vt + 4)}, 5, {v(v_lane)}")
                A(f"v_lshl_add_u32 {v(vt + 3)}, {v(vt + 4)}, 2, {v(vt + 3)}")
                A(f"v_mul_u32_u24 {v(vt + 3)}, {T * 32}, {v(vt + 3)}")
                A(f"v_and_b32 {v(vt + 4)}, 1, {v(v_lane)}")
                A(f"v_lshl_add_u32 {v(vt + 3)}, {v(vt + 4)}, 3, {v(vt + 3)}")
                A(f"v_bfe_u32 {v(vt + 4)}, {v(v_lane)}, 1, 1")
                A(f"v_lshl_add_u32 {v(vt + 3)}, {v(vt + 4)}, {5 if m32 == 'perm' else 4}, {v(vt + 3)}")
                A(f"v_bfe_u32 {v(vt + 4)}, {v(v_lane)}, 4, 1")
                A(f"v_lshl_add_u32 {v(vt + 3)}, {v(vt + 4)}, {4 if m32 == 'perm' else 5}, {v(vt + 3)}")
                A(f"v_add_u32 {v(vt + 1)}, {s(st)}, {v(vt + 3)}")
                off = half * 20480
                cnt = 0
                for (_, j) in ch:
                    for tl in range(T // 2):
                        for u in range(2):
                            kind, r = dst(tl, j, u)
                            f = a if kind == "a" else v
                            for hf in range(2):
                                A(f"ds_read_b64_tr_b16 {f(r + 2 * hf, 2)}, {v(vt + 1)} offset:{off + (hf * 16 + u * 8) * T * 32 + tl * 64}")
                                cnt += 1
                                if cnt % 12 == 0:
                                    A("s_waitcnt lgkmcnt(4)")
                    off += T * 1024
                A("s_waitcnt lgkmcnt(0)")
                return
            A(f"v_lshrrev_b32 {v(vt + 3)}, 2, {v(v_lane)}")
            A(f"v_mul_u32_u24 {v(vt + 3)}, {T * 32}, {v(vt + 3)}")
            A(f"v_and_b32 {v(vt + 4)}, 3, {v(v_lane)}")
            A(f"v_lshl_add_u32 {v(vt + 3)}, {v(vt + 4)}, 3, {v(vt + 3)}")
            A(f"v_add_u32 {v(vt + 1)}, {s(st)}, {v(vt + 3)}")
            off = half * 20480
            cnt = 0
            for (uj, j) in ch:
                dst = self.units[uj][5]
                for tau in range(T):
                    d = dst(tau, j)
                    if d is None:
                        continue
                    kind, r = d
                    f = a if kind == "a" else v
                    for hf in range(2):
                        A(f"ds_read_b64_tr_b16 {f(r + 2 * hf, 2)}, {v(vt + 1)} offset:{off + hf * 16 * T * 32 + tau * 32}")
                        cnt += 1
                        if cnt % 12 == 0:
                            A("s_waitcnt lgkmcnt(4)")
                off += T * 1024
            A("s_waitcnt lgkmcnt(0)")

        counts = {}
        counts[0] = dma(0)
        if len(chunks) > 1:
            counts[1] = dma(1)
        for ci in range(len(chunks)):
            nxt = counts.get(ci + 1, 0)
            A(f"s_waitcnt vmcnt({nxt})")
            trread(ci)
            if ci + 2 < len(chunks):
                counts[ci + 2] = dma(ci + 2)
            if after:
                after([j for _, j in chunks[ci]])


S_MODE = 49
S_ROLEG = 3
S_GID = 100
N_CHAIN = 96
CFG = [None]


def init_barrier_arrive(A, vt):
    tmark(A, CFG[0], 0, vt)
    A("s_waitcnt vmcnt(0)")
    A("s_barrier")
    lab = A.newlabel("arr")
    A(f"s_cmp_lg_u32 {s(S_WAVE)}, 0")
    A(f"s_cbranch_scc1 {lab}")
    A(f"v_mov_b32 {v(vt)}, 1")
    A(f"s_lshl_b32 {s(S_ROLEG)}, {s(S_MODE)}, 2")
    A(f"v_mov_b32 {v(vt + 1)}, {s(S_ROLEG)}")
    A("s_mov_b64 exec, 1")
    A(f"buffer_atomic_add {v(vt)}, {v(vt + 1)}, {s(SRD_DBG, 4)}, 0 offen sc1")
    A("s_mov_b64 exec, -1")
    A.label(lab)


def init_barrier_wait(A, vt, nwg, cfg):
    tmark(A, cfg, 1, vt)
    top = A.newlabel("ibw")
    A(f"s_lshl_b32 {s(S_ROLEG)}, {s(S_MODE)}, 2")
    A(f"v_mov_b32 {v(vt + 1)}, {s(S_ROLEG)}")
    A.label(top)
    A(f"buffer_load_dword {v(vt)}, {v(vt + 1)}, {s(SRD_DBG, 4)}, 0 offen sc1")
    A("s_waitcnt vmcnt(0)")
    A(f"v_cmp_ne_u32 vcc, {nwg}, {v(vt)}")
    poll_tail(A, top, sleep=8)
    ok = A.newlabel("ibok")
    A(f"s_cmp_lg_u32 {s(S_MODE)}, 0")
    A(f"s_cbranch_scc1 {ok}")
    A(f"v_and_b32 {v(vt + 1)}, 7, v0")
    A(f"v_lshlrev_b32 {v(vt + 1)}, 2, {v(vt + 1)}")
    A(f"buffer_load_dword {v(vt)}, {v(vt + 1)}, {s(SRD_DBG, 4)}, 0 offen offset:32 sc1")
    A("s_waitcnt vmcnt(0)")
    A(f"v_cmp_ne_u32 vcc, {1000 if cfg.force_fallback else 32}, {v(vt)}")
    A(f"s_cbranch_vccz {ok}")
    A("s_barrier")
    A(f"s_mov_b32 {s(S_MODE)}, 1")
    A(f"s_mov_b32 {s(S_ROLEG)}, s2")
    A(f"s_load_dwordx16 {s(16, 16)}, s[0:1], 0")
    A(f"s_load_dwordx8 {s(32, 8)}, s[0:1], 64")
    A("s_waitcnt lgkmcnt(0)")
    A("s_branch DISPATCH")
    A.label(ok)
    tmark(A, cfg, 2, vt)


def lstore(A, text):
    l1, l2 = A.newlabel("ls"), A.newlabel("ls")
    if isinstance(text, str):
        text = [text]
    A(f"s_cmp_lg_u32 {s(S_MODE)}, 0")
    A(f"s_cbranch_scc1 {l1}")
    for x in text:
        A(x)
    A(f"s_branch {l2}")
    A.label(l1)
    for x in text:
        A(x + " sc1" if x.startswith("buffer_store") else x)
    A.label(l2)


def maxtree(A, dst, regs):
    regs = list(regs)
    if len(regs) < 6:
        A(f"v_max3_u32 {v(dst)}, {v(regs[0])}, {v(regs[1])}, {v(regs[2])}")
        rest = regs[3:]
        while len(rest) >= 2:
            A(f"v_max3_u32 {v(dst)}, {v(dst)}, {v(rest[0])}, {v(rest[1])}")
            rest = rest[2:]
        if rest:
            A(f"v_max_u32 {v(dst)}, {v(dst)}, {v(rest[0])}")
        return
    A(f"v_max3_u32 {v(dst)}, {v(regs[0])}, {v(regs[1])}, {v(regs[2])}")
    A(f"v_max3_u32 {v(dst + 1)}, {v(regs[3])}, {v(regs[4])}, {v(regs[5])}")
    rest = regs[6:]
    k = 0
    while len(rest) >= 2:
        A(f"v_max3_u32 {v(dst + k)}, {v(dst + k)}, {v(rest[0])}, {v(rest[1])}")
        rest = rest[2:]
        k ^= 1
    if rest:
        A(f"v_max3_u32 {v(dst)}, {v(dst)}, {v(dst + 1)}, {v(rest[0])}")
    else:
        A(f"v_max_u32 {v(dst)}, {v(dst)}, {v(dst + 1)}")


def xreduce(A, op, r, t):
    A(f"v_mov_b32 {v(t)}, {v(r)}")
    A(f"v_permlane32_swap_b32 {v(r)}, {v(t)}")
    A(f"{op} {v(r)}, {v(r)}, {v(t)}")
    A(f"v_mov_b32 {v(t)}, {v(r)}")
    A(f"v_permlane16_swap_b32 {v(r)}, {v(t)}")
    A(f"{op} {v(r)}, {v(r)}, {v(t)}")


class RawStamper:
    def __init__(self, A, cfg, base, s_t, vreg, t0=20):
        self.A, self.b, self.s_t, self.vr, self.t0 = A, base, s_t, vreg, t0

    def cal(self, lane):
        A, b = self.A, self.b
        A(f"s_memrealtime {s(b + 2, 2)}")
        A(f"s_memtime {s(b, 2)}")
        A("s_waitcnt lgkmcnt(0)")
        A(f"s_lshl_b64 exec, 1, {lane}")
        A(f"v_mov_b32 {v(self.vr)}, {s(b)}")
        A(f"s_lshl_b64 exec, 1, {lane + 1}")
        A(f"v_mov_b32 {v(self.vr)}, {s(b + 2)}")
        A("s_mov_b64 exec, -1")

    def init(self):
        self.A(f"v_mov_b32 {v(self.vr)}, 0")
        self.cal(56)

    def __call__(self, k):
        A, b = self.A, self.b
        A(f"s_memtime {s(b, 2)}")
        A(f"s_sub_u32 {s(b + 2)}, {s(self.s_t)}, {self.t0}")
        A(f"s_lshl_b32 {s(b + 3)}, {s(b + 2)}, 3")
        A(f"s_add_u32 {s(b + 3)}, {s(b + 3)}, {k}")
        A(f"s_cmp_lt_u32 {s(b + 2)}, 7")
        A(f"s_cselect_b32 {s(b + 3)}, {s(b + 3)}, 63")
        A(f"s_lshl_b64 exec, 1, {s(b + 3)}")
        A("s_waitcnt lgkmcnt(0)")
        A(f"v_mov_b32 {v(self.vr)}, {s(b)}")
        A("s_mov_b64 exec, -1")

    def dump(self, s_idx, stmp, vt):
        A = self.A
        self.cal(58)
        A(f"s_lshl_b32 {s(stmp)}, {s(s_idx)}, 2")
        A(f"s_add_u32 {s(stmp)}, {s(stmp)}, {s(S_WAVE)}")
        A(f"s_lshl_b32 {s(stmp)}, {s(stmp)}, 8")
        A(f"s_add_u32 {s(stmp)}, {s(stmp)}, {RAWST}")
        A(f"v_lshlrev_b32 {v(vt)}, 2, v0")
        A(f"buffer_store_dword {v(self.vr)}, {v(vt)}, {s(SRD_WS, 4)}, {s(stmp)} offen")


class Stamper:
    def __init__(self, A, cfg, base, n, on=None):
        self.A, self.on, self.b, self.n = A, (cfg.timing == 2 if on is None else on), base, n

    def init(self):
        if self.on:
            self.A(f"s_memrealtime {s(self.b, 2)}")
            self.A("s_waitcnt lgkmcnt(0)")
            self.A(f"s_mov_b32 s101, {s(self.b)}")
            self(0)
            for k in range(self.n):
                self.A(f"s_mov_b32 {s(self.b + 3 + k)}, 0")

    def __call__(self, k):
        if not self.on:
            return
        A, b = self.A, self.b
        A(f"s_memtime {s(b, 2)}")
        A("s_waitcnt lgkmcnt(0)")
        A(f"s_sub_u32 {s(b + 1)}, {s(b)}, {s(b + 2)}")
        A(f"s_add_u32 {s(b + 3 + k)}, {s(b + 3 + k)}, {s(b + 1)}")
        A(f"s_mov_b32 {s(b + 2)}, {s(b)}")

    def dump(self, s_idx, stmp, vt):
        if not self.on:
            return
        A = self.A
        A(f"s_lshl_b32 {s(stmp)}, {s(s_idx)}, 2")
        A(f"s_add_u32 {s(stmp)}, {s(stmp)}, {s(S_WAVE)}")
        A(f"s_lshl_b32 {s(stmp)}, {s(stmp)}, 6")
        A(f"s_add_u32 {s(stmp)}, {s(stmp)}, 0xE0000")
        A(f"v_mov_b32 {v(vt + 2)}, 0")
        A("s_mov_b64 exec, 1")
        for k in range(self.n):
            A(f"v_mov_b32 {v(vt)}, {s(self.b + 3 + k)}")
            A(f"buffer_store_dword {v(vt)}, {v(vt + 2)}, {s(SRD_WS, 4)}, {s(stmp)} offen offset:{4 * k}")
        A(f"v_mov_b32 {v(vt)}, {s(S_SPIN)}")
        A(f"buffer_store_dword {v(vt)}, {v(vt + 2)}, {s(SRD_WS, 4)}, {s(stmp)} offen offset:60")
        A(f"s_memrealtime {s(self.b, 2)}")
        A("s_waitcnt lgkmcnt(0)")
        A(f"s_sub_u32 {s(self.b)}, {s(self.b)}, s101")
        A(f"v_mov_b32 {v(vt)}, {s(self.b)}")
        A(f"buffer_store_dword {v(vt)}, {v(vt + 2)}, {s(SRD_WS, 4)}, {s(stmp)} offen offset:56")
        A("s_mov_b64 exec, -1")


def tmark(A, cfg, k, vt):
    if cfg.timing != 4:
        return
    A("s_memrealtime s[98:99]")
    A(f"s_lshl_b32 s97, {s(S_GID)}, 2")
    A(f"s_add_u32 s97, s97, {s(S_WAVE)}")
    A("s_lshl_b32 s97, s97, 6")
    A(f"s_add_u32 s97, s97, {0x100000 + 4 * k}")
    A("s_waitcnt lgkmcnt(0)")
    A(f"v_mov_b32 {v(vt)}, s98")
    A(f"v_mov_b32 {v(vt + 1)}, 0")
    A("s_mov_b64 exec, 1")
    A(f"buffer_store_dword {v(vt)}, {v(vt + 1)}, {s(SRD_WS, 4)}, s97 offen")
    A("s_mov_b64 exec, -1")
```

```python
from common import *
import struct
import math


def f32(x):
    return "0x%08x" % struct.unpack("<I", struct.pack("<f", x))[0]


WS = s(SRD_WS, 4)
PRE_FLAG = [None]
TSFLAG = [0]
V_LANE, V_L16, V_FO, V_FV, V_LB, V_ONE = 0, 1, 2, 3, 4, 5
V_T = 6
V_P16 = 15
S_I, S_L, S_S, S_NL, S_NS, S_DEF, S_IDX, S_BUF = range(50, 58)
S_C0 = 58
T = 60
S_K = 68
S_FADDR = 82
DUMMY = -1


def item_of(A, i_reg, rl, rs, A0, first, t):
    B = 64 - A0
    A(f"s_sub_u32 {s(t)}, {s(i_reg)}, {A0}")
    A(f"s_lshr_b32 {s(rs)}, {s(t)}, 1")
    A(f"s_and_b32 {s(rl)}, {s(t)}, 1")
    if first:
        A(f"s_xor_b32 {s(rl)}, {s(rl)}, 1")
    A(f"s_cmp_eq_u32 {s(rl)}, 0")
    A(f"s_cselect_b32 {s(t + 1)}, {A0}, 0")
    A(f"s_add_u32 {s(rs)}, {s(rs)}, {s(t + 1)}")
    A(f"s_sub_u32 {s(t + 1)}, {s(t)}, {B}")
    A(f"s_cmp_ge_u32 {s(t)}, {2 * B}")
    A(f"s_cselect_b32 {s(rs)}, {s(t + 1)}, {s(rs)}")
    A(f"s_cselect_b32 {s(rl)}, 1, {s(rl)}")
    A(f"s_cmp_lt_u32 {s(i_reg)}, {A0}")
    A(f"s_cselect_b32 {s(rs)}, {s(i_reg)}, {s(rs)}")
    A(f"s_cselect_b32 {s(rl)}, 0, {s(rl)}")


def p16_setup(A, dst):
    A(f"v_bfe_u32 {v(V_T)}, {v(V_LANE)}, 2, 2")
    A(f"v_lshrrev_b32 {v(V_T + 1)}, 4, {v(V_LANE)}")
    A(f"v_add_u32 {v(V_T + 1)}, {v(V_T)}, {v(V_T + 1)}")
    A(f"v_and_b32 {v(V_T + 1)}, 3, {v(V_T + 1)}")
    A(f"v_and_b32 {v(dst)}, 3, {v(V_LANE)}")
    A(f"v_lshlrev_b32 {v(dst)}, 4, {v(dst)}")
    A(f"v_lshl_add_u32 {v(dst)}, {v(V_T + 1)}, 6, {v(dst)}")
    A(f"v_lshl_add_u32 {v(dst)}, {v(V_T)}, 8, {v(dst)}")


def base_setup(A):
    A(f"v_lshlrev_b32 {v(V_L16)}, 4, {v(V_LANE)}")
    A(f"v_mov_b32 {v(V_ONE)}, 1")
    A(f"s_lshl_b32 {s(S_IDX)}, {s(S_ROLE)}, 2")
    A(f"s_add_u32 {s(S_IDX)}, {s(S_IDX)}, {s(S_WAVE)}")
    p16_setup(A, V_P16)


def zero_flags(A, kind_off_reg_or_const, idx_reg, layers=(0, 1)):
    return


def row_of(A, dst, rl, rs, base):
    A(f"s_lshl_b32 {s(dst)}, {s(rl)}, 6")
    A(f"s_add_u32 {s(dst)}, {s(dst)}, {s(rs)}")
    A(f"s_lshl_b32 {s(dst)}, {s(dst)}, 9")
    A(f"s_add_u32 {s(dst)}, {s(dst)}, {base}")


def flag_addr(A, dst, base, idx_reg=S_IDX, rl=S_L, rs=S_S):
    row_of(A, dst, rl, rs, base)
    A(f"s_lshl_b32 {s(T + 1)}, {s(idx_reg)}, 2")
    A(f"s_add_u32 {s(dst)}, {s(dst)}, {s(T + 1)}")


def set_flag(A, base, idx_reg=S_IDX, rl=S_L, rs=S_S):
    if PRE_FLAG[0]:
        flag_addr(A, S_FADDR, base, idx_reg, rl, rs)
        return
    flag_addr(A, T, base, idx_reg, rl, rs)
    A("s_waitcnt vmcnt(0)")
    flag_store(A, T)


def flag_store(A, T, LS=" sc1"):
    if TSFLAG[0]:
        A(f"s_memrealtime {s(98, 2)}")
        A("s_waitcnt lgkmcnt(0)")
        A(f"s_or_b32 s98, s98, 1")
        A(f"v_mov_b32 {v(V_ONE)}, s98")
    A("s_mov_b64 exec, 1")
    A(f"buffer_store_dword {v(V_ONE)}, {v(V_L16)}, {WS}, {s(T)} offen{LS}")
    A("s_mov_b64 exec, -1")


def flag_block(A, soff_reg, vo=V_FO, vv=V_FV, wide=False, sleep=2):
    if CFG[0].fsl >= 0:
        sleep = CFG[0].fsl
    top = A.newlabel("fb")
    A.label(top)
    if wide:
        A(f"buffer_load_dwordx2 {v(vv, 2)}, {v(vo)}, {WS}, {s(soff_reg)} offen sc1")
        A("s_waitcnt vmcnt(0)")
        A(f"v_min_u32 {v(vv)}, {v(vv)}, {v(vv + 1)}")
    else:
        A(f"buffer_load_dword {v(vv)}, {v(vo)}, {WS}, {s(soff_reg)} offen sc1")
        A("s_waitcnt vmcnt(0)")
    A(f"v_cmp_eq_u32 vcc, 0, {v(vv)}")
    poll_tail(A, top, sleep=sleep)


def flag_block_wg(A, soff_reg, **kw):
    if not CFG[0].wgp:
        flag_block(A, soff_reg, **kw)
        return
    lab = A.newlabel("wp")
    A(f"s_cmp_lg_u32 {s(S_WAVE)}, 0")
    A(f"s_cbranch_scc1 {lab}")
    sv = CFG[0].fsl
    CFG[0].fsl = CFG[0].wgp - 1
    flag_block(A, soff_reg, **kw)
    CFG[0].fsl = sv
    A.label(lab)
    A("s_barrier")


S_SPIN2 = 59


def rdy_init(A, cfg, va, addr):
    A(f"s_mov_b32 {s(S_SPIN2)}, {cfg.spin * 8}")
    A(f"v_mov_b32 {v(va)}, {addr}")
    A(f"v_mov_b32 {v(va + 1)}, 0")
    A(f"ds_write_b32 {v(va)}, {v(va + 1)}")
    A("s_waitcnt lgkmcnt(0)")
    A("s_barrier")


def rdy_set(A, va, plus, tmp):
    A(f"s_add_u32 {s(tmp)}, {s(S_I)}, {plus}")
    A(f"v_mov_b32 {v(va + 1)}, {s(tmp)}")
    A(f"ds_write_b32 {v(va)}, {v(va + 1)}")


def wg_wait(A, cfg, va, soff, tmp, **kw):
    oth, done = A.newlabel("wo"), A.newlabel("wd")
    A(f"s_cmp_lg_u32 {s(S_WAVE)}, 0")
    A(f"s_cbranch_scc1 {oth}")
    sv = cfg.fsl
    cfg.fsl = cfg.wgp - 1
    flag_block(A, soff, **kw)
    cfg.fsl = sv
    rdy_set(A, va, 0, tmp)
    A(f"s_branch {done}")
    A.label(oth)
    A(f"ds_read_b32 {v(va + 1)}, {v(va)}")
    A("s_waitcnt lgkmcnt(0)")
    A(f"v_cmp_gt_u32 vcc, {s(S_I)}, {v(va + 1)}")
    A(f"s_cbranch_vccz {done}")
    A(f"s_sleep {CFG[0].lsl}")
    A(f"s_sub_u32 {s(S_SPIN2)}, {s(S_SPIN2)}, 1")
    A("s_cbranch_scc1 ABORT")
    A(f"s_branch {oth}")
    A.label(done)


def rnd2(A, pk, x0, x1):
    A(f"v_cvt_pk_bf16_f32 {v(pk)}, {v(x0)}, {v(x1)}")
    A(f"v_lshlrev_b32 {v(x0)}, 16, {v(pk)}")
    A(f"v_and_b32 {v(x1)}, 0xffff0000, {v(pk)}")


def rnd1(A, x, tmp):
    A(f"v_cvt_pk_bf16_f32 {v(tmp)}, {v(x)}, {v(x)}")
    A(f"v_lshlrev_b32 {v(x)}, 16, {v(tmp)}")


def finish_stats(A, s1, s2, tmp, keep=None, scaled=False):
    if not scaled:
        A(f"v_mul_f32 {v(s1)}, {f32(1.0 / 640)}, {v(s1)}")
        A(f"v_mul_f32 {v(s2)}, {f32(1.0 / 640)}, {v(s2)}")
        A(f"v_fma_f32 {v(s2)}, -{v(s1)}, {v(s1)}, {v(s2)}")
        A(f"v_max_f32 {v(s2)}, 0, {v(s2)}")
    if keep is not None:
        A(f"v_mov_b32 {v(keep)}, {v(s1)}")
        A(f"v_mov_b32 {v(keep + 1)}, {v(s2)}")
    rnd2(A, tmp, s1, s2)
    A(f"v_add_f32 {v(s2)}, {f32(1e-5)}, {v(s2)}")
    rnd1(A, s2, tmp)
    A(f"v_sqrt_f32 {v(s2)}, {v(s2)}")
    rnd1(A, s2, tmp)
    A(f"v_rcp_f32 {v(s2)}, {v(s2)}")


GELU_C0 = -2.0 * math.sqrt(2.0 / math.pi) * math.log2(math.e)
GELU_C1 = GELU_C0 * 0.044715


def gelu_pack(A, vals, out, tmps, v_c0, s_c1):
    n = len(vals)
    if CFG[0].gpk:
        for i in range(0, n, 2):
            if CFG[0].grn:
                rnd2(A, tmps[n], vals[i], vals[i + 1])
        for i in range(0, n, 2):
            A(f"v_pk_mul_f32 {v(tmps[i], 2)}, {v(vals[i], 2)}, {v(vals[i], 2)}")
        for i in range(0, n, 2):
            A(f"v_pk_fma_f32 {v(tmps[i], 2)}, {v(tmps[i], 2)}, {v(v_c0, 2)}, {v(v_c0, 2)} op_sel:[0,1,0] op_sel_hi:[1,1,0]")
        for i in range(0, n, 2):
            A(f"v_pk_mul_f32 {v(tmps[i], 2)}, {v(tmps[i], 2)}, {v(vals[i], 2)}")
        for i in range(n):
            A(f"v_exp_f32 {v(tmps[i])}, {v(tmps[i])}")
        for i in range(0, n, 2):
            A(f"v_pk_add_f32 {v(tmps[i], 2)}, {v(tmps[i], 2)}, 1.0 op_sel_hi:[1,0]")
        for i in range(n):
            A(f"v_rcp_f32 {v(tmps[i])}, {v(tmps[i])}")
        for i in range(0, n, 2):
            A(f"v_pk_mul_f32 {v(vals[i], 2)}, {v(vals[i], 2)}, {v(tmps[i], 2)}")
        for i in range(0, n, 2):
            A(f"v_cvt_pk_bf16_f32 {v(out + i // 2)}, {v(vals[i])}, {v(vals[i + 1])}")
        return
    for i in range(0, n, 2):
        rnd2(A, tmps[n], vals[i], vals[i + 1])
    for i in range(n):
        A(f"v_mul_f32 {v(tmps[i])}, {v(vals[i])}, {v(vals[i])}")
    for i in range(n):
        A(f"v_fma_f32 {v(tmps[i])}, {v(tmps[i])}, {s(s_c1)}, {v(v_c0)}")
    for i in range(n):
        A(f"v_mul_f32 {v(tmps[i])}, {v(tmps[i])}, {v(vals[i])}")
    for i in range(n):
        A(f"v_exp_f32 {v(tmps[i])}, {v(tmps[i])}")
    for i in range(n):
        A(f"v_add_f32 {v(tmps[i])}, 1.0, {v(tmps[i])}")
    for i in range(n):
        A(f"v_rcp_f32 {v(tmps[i])}, {v(tmps[i])}")
    for i in range(n):
        A(f"v_mul_f32 {v(vals[i])}, {v(vals[i])}, {v(tmps[i])}")
    for i in range(0, n, 2):
        A(f"v_cvt_pk_bf16_f32 {v(out + i // 2)}, {v(vals[i])}, {v(vals[i + 1])}")


def stats_consume(A, v_sa, r, tmp):
    A(f"v_add_u32 {v(tmp)}, 0x800, {v(v_sa)}")
    for i in range(4):
        A(f"ds_read2_b64 {v(r + 4 * i, 4)}, {v(v_sa)} offset0:{64 * i} offset1:{64 * i + 32}")
    A(f"ds_read2_b64 {v(r + 16, 4)}, {v(tmp)} offset0:0 offset1:32")


def stats_reduce(A, r, out, tmp):
    for st in ((0, 10), (2, 12), (4, 14), (6, 16), (8, 18), (0, 2), (4, 6), (0, 4), (0, 8)):
        A(f"v_pk_add_f32 {v(r + st[0], 2)}, {v(r + st[0], 2)}, {v(r + st[1], 2)}")
    for k in range(2):
        A(f"v_mov_b32 {v(r + 2 + k)}, {v(r + k)}")
    for k in range(2):
        A(f"v_permlane16_swap_b32 {v(r + k)}, {v(r + 2 + k)}")
    for k in range(2):
        A(f"v_add_f32 {v(out + k)}, {v(r + k)}, {v(r + 2 + k)}")
    finish_stats(A, out, out + 1, tmp)
    for k in range(2):
        A(f"v_mov_b32 {v(out + 2 + k)}, {v(out + k)}")
    for k in range(2):
        A(f"v_permlane32_swap_b32 {v(out + k)}, {v(out + 2 + k)}")


def stats_produce(A, x0, x1, t, v_addr, soff_reg):
    for k, xs in enumerate((x0, x1)):
        A(f"v_add_f32 {v(t + k)}, {v(xs[0])}, {v(xs[1])}")
        A(f"v_mul_f32 {v(t + 2 + k)}, {v(xs[0])}, {v(xs[0])}")
        for i in range(1, 8):
            if i >= 2:
                A(f"v_add_f32 {v(t + k)}, {v(t + k)}, {v(xs[i])}")
            A(f"v_fmac_f32 {v(t + 2 + k)}, {v(xs[i])}, {v(xs[i])}")
    A(f"v_permlane32_swap_b32 {v(t)}, {v(t + 1)}")
    A(f"v_permlane32_swap_b32 {v(t + 2)}, {v(t + 3)}")
    A(f"v_add_f32 {v(t)}, {v(t)}, {v(t + 1)}")
    A(f"v_add_f32 {v(t + 1)}, {v(t + 2)}, {v(t + 3)}")
    A(f"v_mov_b32 {v(t + 2)}, {v(t)}")
    A(f"v_mov_b32 {v(t + 3)}, {v(t + 1)}")
    A(f"v_permlane16_swap_b32 {v(t)}, {v(t + 2)}")
    A(f"v_permlane16_swap_b32 {v(t + 1)}, {v(t + 3)}")
    A(f"v_add_f32 {v(t)}, {v(t)}, {v(t + 2)}")
    A(f"v_add_f32 {v(t + 1)}, {v(t + 1)}, {v(t + 3)}")
    A("s_mov_b32 exec_lo, 0xffff")
    A("s_mov_b32 exec_hi, 0xffff")
    A(f"buffer_store_dwordx2 {v(t, 2)}, {v(v_addr)}, {WS}, {s(soff_reg)} offen sc1")
    A("s_mov_b64 exec, -1")


class Capture:
    def __init__(self):
        self.l = []

    def __call__(self, x):
        self.l.append(x)

    def groups(self):
        out, cur = [], []
        for x in self.l:
            cur.append(x)
            if x.endswith(" lds"):
                out.append(cur)
                cur = []
        assert not cur
        return out


class Gemm:
    name = ""
    nk = 20
    NT = 2
    swap = False
    bufsz = 40960
    order = "d"
    jchk = 5
    nstores = 2
    pin = False
    fillrate = 3
    V_ACC = 16
    V_FR = 48
    V_X = 80

    def __init__(self, A, cfg, nwg):
        self.A, self.cfg, self.nwg = A, cfg, nwg

    def wreg(self, tau, j):
        idx = tau * self.nk + j
        if idx < 64:
            return ("a", idx * 4)
        return ("v", 256 - (self.NT * self.nk - idx) * 4)

    def wtxt(self, tau, j):
        k, r = self.wreg(tau, j)
        return a(r, 4) if k == "a" else v(r, 4)

    def acc(self, tau, tt):
        return self.V_ACC + (tau * 2 + tt) * 4

    def setup(self): pass
    def init_stores(self): pass
    def weights(self, WL): pass
    def post_weights(self): pass
    def flag_soff(self, dst, rl, rs): pass
    def dma(self, rl, rs, ldsreg): pass
    def early(self): return 0
    def mid(self): return []
    def epilogue(self): pass

    def item(self, i_reg, rl, rs):
        if self.order == "q":
            item_of(self.A, i_reg, rl, rs, self.cfg.QA, 1, T)
        else:
            item_of(self.A, i_reg, rl, rs, self.cfg.LAG + self.cfg.dlt, 0, T)

    def lin_dma(self, src_reg, ldsreg, nb):
        A = self.A
        for b in range(nb):
            if b % 4 == 0:
                A(f"s_add_u32 m0, {s(ldsreg)}, {b * 1024}")
                A(f"s_add_u32 {s(T + 3)}, {s(src_reg)}, {b * 1024}")
            A(f"buffer_load_dwordx4 {v(V_L16)}, {WS}, {s(T + 3)} offen offset:{(b % 4) * 1024} sc1 lds")

    def gen(self):
        A, cfg = self.A, self.cfg
        nm = self.name
        A.label("ROLE_" + nm)
        base_setup(A)
        self.setup()
        self.init_stores()
        init_barrier_arrive(A, V_T)
        late = self.order != "q" and cfg.late_w
        if late:
            init_barrier_wait(A, V_T, self.nwg, cfg)
            A(f"s_sleep {cfg.late_w}")
        WL = WLoader(A, V_T, T + 3)
        self.weights(WL)
        WL.emit(V_LANE)
        self.post_weights()
        A("s_barrier")
        if not late:
            init_barrier_wait(A, V_T, self.nwg, cfg)
        A(f"s_mov_b32 {s(S_I)}, 0")
        A(f"s_mov_b32 {s(S_BUF)}, 0")
        st = self.st = Stamper(A, cfg, 84, 8)
        A(f"s_mov_b32 s83, {s(S_GID)}")
        self.item(S_I, S_L, S_S)
        self.flag_soff(T + 7, S_L, S_S)
        self.flag_block(T + 7)
        self.dma(S_L, S_S, S_BUF)
        st.init()
        A("s_waitcnt vmcnt(0)")
        A(f"s_mov_b32 {s(S_FADDR)}, {DUMMY}")
        A.label(nm + "_LOOP")
        cap0 = Capture()
        self.A = cap0
        cap0(f"s_add_u32 {s(T + 6)}, {s(S_I)}, 1")
        cap0(f"s_min_u32 {s(T + 6)}, {s(T + 6)}, 127")
        self.item(T + 6, S_NL, S_NS)
        self.flag_soff(T + 7, S_NL, S_NS)
        self.flag_load(T + 7)
        self.early()
        self.mid()
        self.A = A
        fill = cap0.l
        A(f"v_add_u32 {v(V_LB)}, {s(S_BUF)}, {v(V_P16 if self.pin else V_L16)}")
        A("s_barrier")
        st(0)
        nk, NT = self.nk, self.NT
        D = 3

        def rd(j):
            for tt in range(2):
                A(f"ds_read_b128 {v(self.V_FR + ((j % 4) * 2 + tt) * 4, 4)}, {v(V_LB)} offset:{(j * 2 + tt) * 1024}")

        def kstep(j, extra=None):
            if j + D < nk:
                rd(j + D)
                A(f"s_waitcnt lgkmcnt({2 * D})")
            else:
                A(f"s_waitcnt lgkmcnt({2 * (nk - 1 - j)})")
            n = 0
            for tau in range(NT):
                for tt in range(2):
                    c = "0" if j == 0 else v(self.acc(tau, tt), 4)
                    fr = v(self.V_FR + ((j % 4) * 2 + tt) * 4, 4)
                    w = self.wtxt(tau, j)
                    x, y = (fr, w) if self.swap else (w, fr)
                    A(f"v_mfma_f32_16x16x32_bf16 {v(self.acc(tau, tt), 4)}, {x}, {y}, {c}")
                    n += 1
                    if extra and n == 1:
                        for e in extra:
                            A(e)
                    if j >= 1:
                        for _ in range(self.fillrate):
                            if fill:
                                A(fill.pop(0))
        self.pre_mfma()
        for j in range(D):
            rd(j)
        jchk = self.jchk
        for j in range(jchk + 1):
            kstep(j)
        while fill:
            A(fill.pop(0))
        nod, join = A.newlabel("nod"), A.newlabel("join")
        A("s_waitcnt vmcnt(0)")
        st(1)
        nof = A.newlabel("nof")
        A(f"s_cmp_eq_u32 {s(S_FADDR)}, {DUMMY}")
        A(f"s_cbranch_scc1 {nof}")
        flag_store(A, S_FADDR)
        A.label(nof)
        self.flag_check()
        A(f"s_mov_b32 {s(S_DEF)}, 1")
        A(f"s_cbranch_vccnz {nod}")
        A(f"s_mov_b32 {s(S_DEF)}, 0")
        A(f"s_xor_b32 {s(T + 6)}, {s(S_BUF)}, {self.bufsz}")
        cap = Capture()
        self.A = cap
        self.dma(S_NL, S_NS, T + 6)
        self.A = A
        groups = cap.groups()
        rem = list(range(jchk + 1, nk))
        per = -(-len(groups) // len(rem))
        for j in rem:
            ex = []
            for _ in range(per):
                if groups:
                    ex += groups.pop(0)
            kstep(j, ex)
        assert not groups
        A(f"s_branch {join}")
        A.label(nod)
        for j in rem:
            kstep(j)
        A.label(join)
        st(3)
        PRE_FLAG[0] = True
        self.epilogue()
        PRE_FLAG[0] = None
        st(4)
        A(f"s_add_u32 {s(S_I)}, {s(S_I)}, 1")
        A(f"s_cmp_eq_u32 {s(S_I)}, 128")
        A(f"s_cbranch_scc1 {nm}_END")
        A(f"s_xor_b32 {s(S_BUF)}, {s(S_BUF)}, {self.bufsz}")
        A(f"s_mov_b32 {s(S_L)}, {s(S_NL)}")
        A(f"s_mov_b32 {s(S_S)}, {s(S_NS)}")
        A(f"s_cmp_eq_u32 {s(S_DEF)}, 0")
        A(f"s_cbranch_scc1 {nm}_OKN")
        A("s_waitcnt vmcnt(0)")
        flag_store(A, S_FADDR)
        A(f"s_mov_b32 {s(S_FADDR)}, {DUMMY}")
        st(5)
        self.flag_soff(T + 7, S_L, S_S)
        self.flag_block(T + 7)
        st(6)
        self.dma(S_L, S_S, S_BUF)
        A("s_waitcnt vmcnt(0)")
        st(7)
        A(f"s_branch {nm}_LOOP")
        A.label(nm + "_OKN")
        A(f"s_waitcnt vmcnt({self.nstores})")
        A(f"s_branch {nm}_LOOP")
        A.label(nm + "_END")
        A("s_waitcnt vmcnt(0)")
        flag_store(A, S_FADDR)
        st.dump(83, T, V_T)
        A("s_endpgm")

    def pre_mfma(self): pass

    def flag_block(self, soff):
        flag_block_wg(self.A, soff)

    def flag_load(self, soff):
        self.A(f"buffer_load_dword {v(V_FV)}, {v(V_FO)}, {WS}, {s(soff)} offen sc1")

    def flag_check(self):
        self.A(f"v_cmp_eq_u32 vcc, 0, {v(V_FV)}")


class FoldMixin:
    def csum(self, dst):
        A = self.A
        ones = self.V_FR
        for i in range(4):
            A(f"v_mov_b32 {v(ones + i)}, 0x3f803f80")
        for j in range(self.nk):
            for tau in range(self.NT):
                c = "0" if j == 0 else v(dst + 4 * tau, 4)
                w = self.wtxt(tau, j)
                x, y = (v(ones, 4), w) if self.swap else (w, v(ones, 4))
                A(f"v_mfma_f32_16x16x32_bf16 {v(dst + 4 * tau, 4)}, {x}, {y}, {c}")

    def sa_setup(self, v_sa0):
        A = self.A
        A(f"v_lshrrev_b32 {v(V_T)}, 4, {v(V_LANE)}")
        A(f"v_and_b32 {v(V_T)}, 1, {v(V_T)}")
        A(f"v_mul_u32_u24 {v(v_sa0)}, 2560, {v(V_T)}")
        A(f"v_lshrrev_b32 {v(V_T)}, 5, {v(V_LANE)}")
        A(f"v_lshl_add_u32 {v(v_sa0)}, {v(V_T)}, 7, {v(v_sa0)}")
        A(f"v_and_b32 {v(V_T)}, 15, {v(V_LANE)}")
        A(f"v_lshl_add_u32 {v(v_sa0)}, {v(V_T)}, 3, {v(v_sa0)}")
        A(f"v_add_u32 {v(v_sa0)}, 0xa000, {v(v_sa0)}")

    def stats_dma(self, src_reg, ldsreg_raw):
        A = self.A
        A(f"s_lshl_b32 {s(T + 2)}, {s(S_WAVE)}, 10")
        A(f"s_add_u32 {s(T + 2)}, {s(T + 2)}, 40960")
        A(f"s_add_u32 m0, {s(ldsreg_raw)}, {s(T + 2)}")
        A(f"s_add_u32 {s(T + 3)}, {s(src_reg)}, {s(T + 2)}")
        A(f"buffer_load_dwordx4 {v(V_L16)}, {WS}, {s(T + 3)} offen sc1 lds")
        A(f"s_add_u32 m0, {s(ldsreg_raw)}, {44 * 1024}")
        A(f"s_add_u32 {s(T + 3)}, {s(src_reg)}, {44 * 1024}")
        A(f"buffer_load_dwordx4 {v(V_L16)}, {WS}, {s(T + 3)} offen sc1 lds")


class QKV(Gemm, FoldMixin):
    NT = 4
    nk = 20
    bufsz = XSEGS
    order = "q"
    fillrate = 2
    pin = True
    jchk = 7
    nstores = 4
    V_CS = 80
    V_SR = 96
    V_ST = 116
    V_SV = 120
    V_SA0, V_SA = 136, 137
    V_PK = 140
    V_SW, V_SRD = 138, 139
    S_TYPE, S_WG, S_OUT, S_FK = S_K, S_K + 1, S_K + 2, S_K + 3

    def __init__(self, A, cfg, nwg, vtype):
        super().__init__(A, cfg, nwg)
        self.swap = vtype
        self.name = "QKVV" if vtype else "QKVQ"

    def setup(self):
        A = self.A
        if self.swap:
            A(f"s_mov_b32 {s(self.S_WG)}, {s(S_IDX)}")
            A(f"s_mov_b32 {s(self.S_OUT)}, {VX}")
            A(f"s_mov_b32 {s(self.S_FK)}, {flag_row(F_V)}")
        else:
            A(f"s_cmp_ge_u32 {s(S_ROLE)}, 24")
            A(f"s_cselect_b32 {s(self.S_TYPE)}, 1, 0")
            A(f"s_mul_i32 {s(T)}, {s(self.S_TYPE)}, 96")
            A(f"s_sub_u32 {s(self.S_WG)}, {s(S_IDX)}, {s(T)}")
            A(f"s_mul_i32 {s(self.S_OUT)}, {s(self.S_TYPE)}, {QX - KX}")
            A(f"s_add_u32 {s(self.S_OUT)}, {s(self.S_OUT)}, {KX}")
            A(f"s_mul_i32 {s(T)}, {s(self.S_TYPE)}, {flag_row(F_K) - flag_row(F_Q)}")
            A(f"s_sub_u32 {s(self.S_FK)}, {flag_row(F_K)}, {s(T)}")
        A(f"s_lshl_b32 {s(T)}, {s(self.S_WG)}, 12")
        A(f"s_add_u32 {s(self.S_OUT)}, {s(self.S_OUT)}, {s(T)}")
        self.sa_setup(self.V_SA0)
        if self.swap:
            A(f"s_lshl_b32 {s(T)}, {s(S_WAVE)}, 8")
            A(f"s_add_u32 {s(T)}, {s(T)}, {2 * self.bufsz}")
            A(f"v_and_b32 {v(V_T)}, 15, {v(V_LANE)}")
            A(f"v_lshlrev_b32 {v(self.V_SW)}, 3, {v(V_T)}")
            A(f"v_add_u32 {v(self.V_SW)}, {s(T)}, {v(self.V_SW)}")
            A(f"v_lshrrev_b32 {v(V_T)}, 4, {v(V_LANE)}")
            A(f"v_lshlrev_b32 {v(self.V_SRD)}, 5, {v(V_T)}")
            A(f"v_add_u32 {v(self.V_SRD)}, {s(T)}, {v(self.V_SRD)}")

    def init_stores(self):
        zero_flags(self.A, s(self.S_FK), self.S_WG)

    def weights(self, WL):
        A = self.A
        A(f"s_lshl_b32 {s(S_C0)}, {s(self.S_WG)}, 7")

        def srd():
            if self.swap:
                make_srd(A, SRD_W, P_WV, 640 * 12288)
            else:
                A(f"s_cmp_eq_u32 {s(self.S_TYPE)}, 0")
                A(f"s_cselect_b32 {s(SRD_W)}, {s(P_WK)}, {s(P_WQ)}")
                A(f"s_cselect_b32 {s(SRD_W + 1)}, {s(P_WK + 1)}, {s(P_WQ + 1)}")
                A(f"s_mov_b32 {s(SRD_W + 2)}, {640 * 12288}")
                A(f"s_mov_b32 {s(SRD_W + 3)}, 0x20000")
        WL.add(srd, S_C0, 12288, 4, 20, self.wreg)

    def post_weights(self):
        self.csum(self.V_CS)

    def flag_soff(self, dst, rl, rs):
        A = self.A
        row_of(A, dst, rl, rs, flag_row(F_XIN))
        A(f"s_lshl_b32 {s(T)}, {s(rl)}, 5")
        A(f"s_add_u32 {s(T)}, {s(T)}, 7")
        A(f"v_min_u32 {v(V_FO)}, {s(T)}, {v(V_LANE)}")
        A(f"v_lshlrev_b32 {v(V_FO)}, 2, {v(V_FO)}")

    def dma(self, rl, rs, ldsreg):
        A = self.A
        A(f"s_lshl_b32 {s(T)}, {s(rl)}, 6")
        A(f"s_add_u32 {s(T)}, {s(T)}, {s(rs)}")
        A(f"s_mul_i32 {s(T)}, {s(T)}, {XSEGS}")
        A(f"s_add_u32 {s(T)}, {s(T)}, {XIN}")
        self.stats_dma(T, ldsreg)
        A(f"s_mul_i32 {s(T + 1)}, {s(S_WAVE)}, 10240")
        A(f"s_add_u32 {s(T)}, {s(T)}, {s(T + 1)}")
        A(f"s_add_u32 {s(T + 1)}, {s(T + 1)}, {s(ldsreg)}")
        self.lin_dma(T, T + 1, 10)

    def pre_mfma(self):
        A = self.A
        A(f"v_add_u32 {v(self.V_SA)}, {s(S_BUF)}, {v(self.V_SA0)}")
        stats_consume(A, self.V_SA, self.V_SR, V_T)

    def mid(self):
        stats_reduce(self.A, self.V_SR, self.V_ST, V_T)

    def epilogue(self):
        A = self.A
        lab = A.newlabel("l0")
        A(f"s_mul_i32 {s(T + 2)}, {s(S_S)}, {QKV_SEG}")
        A(f"s_add_u32 {s(T + 2)}, {s(T + 2)}, {s(self.S_OUT)}")
        A(f"s_cmp_eq_u32 {s(S_L)}, 0")
        A(f"s_cbranch_scc1 {lab}")
        if self.swap:
            A(f"ds_write_b64 {v(self.V_SW)}, {v(self.V_ST, 2)}")
            A(f"ds_write_b64 {v(self.V_SW)}, {v(self.V_ST + 2, 2)} offset:128")
            A("s_waitcnt lgkmcnt(0)")
            for tt in range(2):
                for hf in range(2):
                    A(f"ds_read_b128 {v(self.V_SV + tt * 8 + hf * 4, 4)}, {v(self.V_SRD)} offset:{tt * 128 + hf * 16}")
            A("s_waitcnt lgkmcnt(0)")
            for tau in range(4):
                for tt in range(2):
                    for r in range(4):
                        x = self.acc(tau, tt) + r
                        A(f"v_fma_f32 {v(x)}, -{v(self.V_SV + tt * 8 + 2 * r)}, {v(self.V_CS + 4 * tau)}, {v(x)}")
                for tt in range(2):
                    for r in range(4):
                        x = self.acc(tau, tt) + r
                        A(f"v_mul_f32 {v(x)}, {v(x)}, {v(self.V_SV + tt * 8 + 2 * r + 1)}")
        else:
            for tau in range(4):
                for tt in range(2):
                    for r in range(4):
                        x = self.acc(tau, tt) + r
                        A(f"v_fma_f32 {v(x)}, -{v(self.V_ST + 2 * tt)}, {v(self.V_CS + 4 * tau + r)}, {v(x)}")
                for tt in range(2):
                    for r in range(4):
                        x = self.acc(tau, tt) + r
                        A(f"v_mul_f32 {v(x)}, {v(x)}, {v(self.V_ST + 2 * tt + 1)}")
        A.label(lab)
        for b in range(4):
            if self.swap:
                lo, hi = self.acc(b, 0), self.acc(b, 1)
            else:
                p, tt = b >> 1, b & 1
                lo, hi = self.acc(2 * p, tt), self.acc(2 * p + 1, tt)
            pk = self.V_PK + 4 * b
            A(f"v_cvt_pk_bf16_f32 {v(pk)}, {v(lo)}, {v(lo + 1)}")
            A(f"v_cvt_pk_bf16_f32 {v(pk + 1)}, {v(lo + 2)}, {v(lo + 3)}")
            A(f"v_cvt_pk_bf16_f32 {v(pk + 2)}, {v(hi)}, {v(hi + 1)}")
            A(f"v_cvt_pk_bf16_f32 {v(pk + 3)}, {v(hi + 2)}, {v(hi + 3)}")
            A(f"buffer_store_dwordx4 {v(pk, 4)}, {v(V_L16)}, {WS}, {s(T + 2)} offen offset:{b * 1024} sc1")
        set_flag(A, s(self.S_FK), self.S_WG)


class WO(Gemm):
    name = "WO"
    NT = 2
    nk = 32
    bufsz = 65536
    jchk = 7
    nstores = 4
    S_KG, S_CG, S_OUT = S_K, S_K + 1, S_K + 2
    V_SO = 80

    def setup(self):
        A = self.A
        A(f"s_mul_i32 {s(self.S_KG)}, {s(S_ROLE)}, 52429")
        A(f"s_lshr_b32 {s(self.S_KG)}, {s(self.S_KG)}, 18")
        A(f"s_mul_i32 {s(T)}, {s(self.S_KG)}, 5")
        A(f"s_sub_u32 {s(self.S_CG)}, {s(S_ROLE)}, {s(T)}")
        A(f"s_lshl_b32 {s(T)}, {s(self.S_KG)}, 5")
        A(f"s_mul_i32 {s(T + 1)}, {s(T)}, 43691")
        A(f"s_lshr_b32 {s(T + 1)}, {s(T + 1)}, 18")
        A(f"s_add_u32 {s(T)}, {s(T)}, 31")
        A(f"s_mul_i32 {s(T)}, {s(T)}, 43691")
        A(f"s_lshr_b32 {s(T)}, {s(T)}, 18")
        A(f"v_add_u32 {v(V_FO)}, {s(T + 1)}, {v(V_LANE)}")
        A(f"v_min_u32 {v(V_FO)}, {s(T)}, {v(V_FO)}")
        A(f"v_lshlrev_b32 {v(V_FO)}, 2, {v(V_FO)}")
        A(f"v_and_b32 {v(V_T)}, 15, {v(V_LANE)}")
        A(f"v_lshrrev_b32 {v(V_T + 1)}, 2, {v(V_T)}")
        A(f"v_mul_u32_u24 {v(self.V_SO)}, 10240, {v(V_T + 1)}")
        A(f"v_and_b32 {v(V_T)}, 3, {v(V_LANE)}")
        A(f"v_lshl_add_u32 {v(self.V_SO)}, {v(V_T)}, 4, {v(self.V_SO)}")
        A(f"v_lshrrev_b32 {v(V_T)}, 4, {v(V_LANE)}")
        A(f"v_lshl_add_u32 {v(self.V_SO)}, {v(V_T)}, 6, {v(self.V_SO)}")
        A(f"s_lshl_b32 {s(T)}, {s(self.S_CG)}, 2")
        A(f"s_add_u32 {s(T)}, {s(T)}, {s(S_WAVE)}")
        A(f"s_lshl_b32 {s(S_C0 + 1)}, {s(T)}, 6")
        A(f"s_lshl_b32 {s(T)}, {s(T)}, 9")
        A(f"s_mul_i32 {s(self.S_OUT)}, {s(self.S_KG)}, 81920")
        A(f"s_add_u32 {s(self.S_OUT)}, {s(self.S_OUT)}, {s(T)}")
        A(f"s_add_u32 {s(self.S_OUT)}, {s(self.S_OUT)}, {WOP}")

    def init_stores(self):
        zero_flags(self.A, flag_row(F_WOP), S_IDX)

    def weights(self, WL):
        A = self.A
        A(f"s_mul_i32 {s(S_C0)}, {s(self.S_KG)}, {1024 * 1280}")
        A(f"s_add_u32 {s(S_C0)}, {s(S_C0)}, {s(S_C0 + 1)}")
        WL.add(lambda: make_srd(A, SRD_W, P_WO, 6144 * 1280), S_C0, 1280, 2, 32, self.wreg)

    def flag_soff(self, dst, rl, rs):
        row_of(self.A, dst, rl, rs, flag_row(F_O))

    def dma(self, rl, rs, ldsreg):
        A = self.A
        A(f"s_mul_i32 {s(T)}, {s(rs)}, {QKV_SEG}")
        A(f"s_lshl_b32 {s(T + 1)}, {s(self.S_KG)}, 16")
        A(f"s_add_u32 {s(T)}, {s(T)}, {s(T + 1)}")
        A(f"s_lshl_b32 {s(T + 1)}, {s(S_WAVE)}, 14")
        A(f"s_add_u32 {s(T)}, {s(T)}, {s(T + 1)}")
        A(f"s_add_u32 {s(T)}, {s(T)}, {OX}")
        A(f"s_add_u32 {s(T + 1)}, {s(T + 1)}, {s(ldsreg)}")
        self.lin_dma(T, T + 1, 16)

    def epilogue(self):
        A = self.A
        A(f"s_mul_i32 {s(T + 2)}, {s(S_S)}, {WOP_SEG}")
        A(f"s_add_u32 {s(T + 2)}, {s(T + 2)}, {s(self.S_OUT)}")
        A(f"s_add_u32 {s(T + 3)}, {s(T + 2)}, 40960")
        for tau in range(2):
            for tt in range(2):
                A(f"buffer_store_dwordx4 {v(self.acc(tau, tt), 4)}, {v(self.V_SO)}, {WS}, {s(T + 2 + tt)} offen offset:{tau * 256} sc1")
        set_flag(A, flag_row(F_WOP))


class W1(Gemm):
    name = "W1"
    pin = True
    V_C0, V_PK, V_TM = 80, 84, 96
    S_C1 = S_K

    def setup(self):
        A = self.A
        A(f"v_min_u32 {v(V_FO)}, 31, {v(V_LANE)}")
        A(f"v_lshlrev_b32 {v(V_FO)}, 2, {v(V_FO)}")
        A(f"v_mov_b32 {v(self.V_C0)}, {f32(GELU_C0)}")
        A(f"v_mov_b32 {v(self.V_C0 + 1)}, {f32(GELU_C1)}")
        A(f"s_mov_b32 {s(self.S_C1)}, {f32(GELU_C1)}")

    def init_stores(self):
        A = self.A
        zero_flags(A, flag_row(F_H), S_IDX)
        for i in range(4):
            A(f"v_mov_b32 {v(self.V_PK + i)}, 0")
        A(f"s_lshl_b32 {s(T)}, {s(S_IDX)}, 11")
        for l in range(2):
            for gseg in (0, 65):
                A(f"s_add_u32 {s(T + 1)}, {s(T)}, {HB + (l * 66 + gseg) * XSEG}")
                for tt in range(2):
                    A(f"buffer_store_dwordx4 {v(self.V_PK, 4)}, {v(V_L16)}, {WS}, {s(T + 1)} offen offset:{tt * 1024} sc1")

    def weights(self, WL):
        A = self.A
        A(f"s_lshl_b32 {s(S_C0)}, {s(S_IDX)}, 6")
        WL.add(lambda: make_srd(A, SRD_W, P_W1, 640 * 1280), S_C0, 1280, 2, 20, self.wreg)

    def flag_soff(self, dst, rl, rs):
        row_of(self.A, dst, rl, rs, flag_row(F_R1))

    def dma(self, rl, rs, ldsreg):
        A = self.A
        A(f"s_lshl_b32 {s(T)}, {s(rl)}, 6")
        A(f"s_add_u32 {s(T)}, {s(T)}, {s(rs)}")
        A(f"s_mul_i32 {s(T)}, {s(T)}, {XSEG}")
        A(f"s_mul_i32 {s(T + 1)}, {s(S_WAVE)}, 10240")
        A(f"s_add_u32 {s(T)}, {s(T)}, {s(T + 1)}")
        A(f"s_add_u32 {s(T)}, {s(T)}, {ZB}")
        A(f"s_add_u32 {s(T + 1)}, {s(T + 1)}, {s(ldsreg)}")
        self.lin_dma(T, T + 1, 10)

    def out_base(self):
        A = self.A
        A(f"s_mul_i32 {s(T + 2)}, {s(S_L)}, 66")
        A(f"s_add_u32 {s(T + 2)}, {s(T + 2)}, {s(S_S)}")
        A(f"s_mul_i32 {s(T + 2)}, {s(T + 2)}, {XSEG}")
        A(f"s_lshl_b32 {s(T + 3)}, {s(S_IDX)}, 11")
        A(f"s_add_u32 {s(T + 2)}, {s(T + 2)}, {s(T + 3)}")
        A(f"s_add_u32 {s(T + 2)}, {s(T + 2)}, {HB + XSEG}")
    out_kind = F_H

    def correct(self): pass

    def epilogue(self):
        A = self.A
        self.out_base()
        self.correct()
        vals = []
        for tt in range(2):
            for tau in range(2):
                vals += [self.acc(tau, tt) + r for r in range(4)]
        gelu_pack(A, vals, self.V_PK, [self.V_TM + i for i in range(17)], self.V_C0, self.S_C1)
        for tt in range(2):
            A(f"buffer_store_dwordx4 {v(self.V_PK + 4 * tt, 4)}, {v(V_L16)}, {WS}, {s(T + 2)} offen offset:{tt * 1024} sc1")
        set_flag(A, flag_row(self.out_kind))


class W3(W1, FoldMixin):
    name = "W3"
    pin = False
    jchk = 7
    bufsz = XSEGS
    out_kind = F_G
    V_CS, V_SR, V_ST, V_SA0, V_SA = 116, 124, 144, 148, 149

    def setup(self):
        A = self.A
        A(f"v_min_u32 {v(V_FO)}, 19, {v(V_LANE)}")
        A(f"v_lshlrev_b32 {v(V_FO)}, 2, {v(V_FO)}")
        A(f"v_mov_b32 {v(self.V_C0)}, {f32(GELU_C0)}")
        A(f"s_mov_b32 {s(self.S_C1)}, {f32(GELU_C1)}")
        self.sa_setup(self.V_SA0)

    def init_stores(self):
        zero_flags(self.A, flag_row(F_G), S_IDX)

    def weights(self, WL):
        A = self.A
        A(f"s_lshl_b32 {s(S_C0)}, {s(S_IDX)}, 6")
        WL.add(lambda: make_srd(A, SRD_W, P_W3, 640 * 3072), S_C0, 3072, 2, 20, self.wreg)

    def post_weights(self):
        self.csum(self.V_CS)

    def flag_soff(self, dst, rl, rs):
        row_of(self.A, dst, rl, rs, flag_row(F_X1))

    def dma(self, rl, rs, ldsreg):
        A = self.A
        A(f"s_lshl_b32 {s(T)}, {s(rl)}, 6")
        A(f"s_add_u32 {s(T)}, {s(T)}, {s(rs)}")
        A(f"s_mul_i32 {s(T)}, {s(T)}, {XSEGS}")
        A(f"s_add_u32 {s(T)}, {s(T)}, {X1B}")
        self.stats_dma(T, ldsreg)
        A(f"s_mul_i32 {s(T + 1)}, {s(S_WAVE)}, 10240")
        A(f"s_add_u32 {s(T)}, {s(T)}, {s(T + 1)}")
        A(f"s_add_u32 {s(T + 1)}, {s(T + 1)}, {s(ldsreg)}")
        self.lin_dma(T, T + 1, 10)

    def pre_mfma(self):
        A = self.A
        A(f"v_add_u32 {v(self.V_SA)}, {s(S_BUF)}, {v(self.V_SA0)}")
        stats_consume(A, self.V_SA, self.V_SR, V_T)

    def mid(self):
        stats_reduce(self.A, self.V_SR, self.V_ST, V_T)

    def out_base(self):
        A = self.A
        A(f"s_lshl_b32 {s(T + 2)}, {s(S_L)}, 6")
        A(f"s_add_u32 {s(T + 2)}, {s(T + 2)}, {s(S_S)}")
        A(f"s_mul_i32 {s(T + 2)}, {s(T + 2)}, {GSEG}")
        A(f"s_lshl_b32 {s(T + 3)}, {s(S_IDX)}, 11")
        A(f"s_add_u32 {s(T + 2)}, {s(T + 2)}, {s(T + 3)}")
        A(f"s_add_u32 {s(T + 2)}, {s(T + 2)}, {GB}")

    def correct(self):
        A = self.A
        for tau in range(2):
            for tt in range(2):
                for r in range(4):
                    x = self.acc(tau, tt) + r
                    A(f"v_fma_f32 {v(x)}, -{v(self.V_ST + 2 * tt)}, {v(self.V_CS + 4 * tau + r)}, {v(x)}")
        for tau in range(2):
            for tt in range(2):
                for r in range(4):
                    x = self.acc(tau, tt) + r
                    A(f"v_mul_f32 {v(x)}, {v(x)}, {v(self.V_ST + 2 * tt + 1)}")


def unpack8(A, dst, src):
    for i in range(4):
        A(f"v_lshlrev_b32 {v(dst + 2 * i)}, 16, {v(src + i)}")
        A(f"v_and_b32 {v(dst + 2 * i + 1)}, 0xffff0000, {v(src + i)}")


def stat_addr_setup(A, dst):
    A(f"v_lshrrev_b32 {v(V_T)}, 5, {v(V_LANE)}")
    A(f"v_and_b32 {v(V_T + 1)}, 15, {v(V_LANE)}")
    A(f"v_lshlrev_b32 {v(dst)}, 3, {v(V_T + 1)}")
    A(f"v_lshl_add_u32 {v(dst)}, {v(V_T)}, 7, {v(dst)}")


class W2(Gemm):
    name = "W2"
    nstores = 3
    V_SH = 80
    V_Y = 84
    V_YU = 96
    V_PK = 112
    V_SAD = 82

    def setup(self):
        A = self.A
        A(f"v_min_u32 {v(V_FO)}, 19, {v(V_LANE)}")
        A(f"v_lshlrev_b32 {v(V_FO)}, 2, {v(V_FO)}")
        A(f"s_lshr_b32 {s(T)}, {s(S_WAVE)}, 1")
        A(f"s_add_u32 {s(T)}, {s(T)}, 1")
        A(f"s_sub_u32 {s(T + 1)}, 32, {s(T)}")
        A(f"s_add_u32 {s(T)}, {s(T)}, 32")
        A(f"s_bitcmp1_b32 {s(S_WAVE)}, 0")
        A(f"s_cselect_b32 {s(T)}, {s(T)}, {s(T + 1)}")
        for tt in range(2):
            A(f"v_and_b32 {v(V_T)}, 15, {v(V_LANE)}")
            A(f"v_add_u32 {v(V_T)}, {s(T)}, {v(V_T)}")
            if tt:
                A(f"v_add_u32 {v(V_T)}, 16, {v(V_T)}")
            d = self.V_SH + tt
            A(f"v_lshrrev_b32 {v(V_T + 1)}, 5, {v(V_T)}")
            A(f"v_mul_u32_u24 {v(d)}, {XSEG}, {v(V_T + 1)}")
            A(f"v_bfe_u32 {v(V_T + 1)}, {v(V_T)}, 4, 1")
            A(f"v_lshl_add_u32 {v(d)}, {v(V_T + 1)}, 10, {v(d)}")
            A(f"v_and_b32 {v(V_T + 1)}, 15, {v(V_T)}")
            A(f"v_lshl_add_u32 {v(d)}, {v(V_T + 1)}, 4, {v(d)}")
            A(f"v_lshrrev_b32 {v(V_T + 1)}, 4, {v(V_LANE)}")
            A(f"v_lshl_add_u32 {v(d)}, {v(V_T + 1)}, 8, {v(d)}")
        stat_addr_setup(A, self.V_SAD)

    def init_stores(self):
        zero_flags(self.A, flag_row(F_X1), S_IDX)

    def weights(self, WL):
        A = self.A
        A(f"s_lshl_b32 {s(S_C0)}, {s(S_IDX)}, 6")
        WL.add(lambda: make_srd(A, SRD_W, P_W2, 640 * 1280), S_C0, 1280, 2, 20, self.wreg)

    def flag_soff(self, dst, rl, rs):
        A = self.A
        A(f"s_add_u32 {s(T)}, {s(rs)}, 1")
        A(f"s_min_u32 {s(T)}, {s(T)}, 63")
        row_of(A, dst, rl, T, flag_row(F_H))

    def dma(self, rl, rs, ldsreg):
        A = self.A
        A(f"s_mul_i32 {s(T)}, {s(rl)}, 66")
        A(f"s_add_u32 {s(T)}, {s(T)}, {s(rs)}")
        A(f"s_mul_i32 {s(T)}, {s(T)}, {XSEG}")
        A(f"s_mul_i32 {s(T + 1)}, {s(S_WAVE)}, 10240")
        A(f"s_add_u32 {s(T)}, {s(T)}, {s(T + 1)}")
        A(f"s_add_u32 {s(T)}, {s(T)}, {HB}")
        A(f"s_add_u32 {s(T + 1)}, {s(T + 1)}, {s(ldsreg)}")
        for jl in range(5):
            for tt in range(2):
                A(f"s_add_u32 m0, {s(T + 1)}, {(jl * 2 + tt) * 1024}")
                A(f"s_add_u32 {s(T + 3)}, {s(T)}, {jl * 2048}")
                A(f"buffer_load_dwordx4 {v(self.V_SH + tt)}, {WS}, {s(T + 3)} offen sc1 lds")

    def early(self):
        A = self.A
        A(f"s_lshl_b32 {s(T)}, {s(S_L)}, 6")
        A(f"s_add_u32 {s(T)}, {s(T)}, {s(S_S)}")
        A(f"s_mul_i32 {s(T)}, {s(T)}, {XSEG}")
        A(f"s_lshl_b32 {s(T + 1)}, {s(S_IDX)}, 11")
        A(f"s_add_u32 {s(T)}, {s(T)}, {s(T + 1)}")
        A(f"s_add_u32 {s(T)}, {s(T)}, {YB}")
        for tt in range(2):
            A(f"buffer_load_dwordx4 {v(self.V_Y + 4 * tt, 4)}, {v(V_P16)}, {WS}, {s(T)} offen offset:{tt * 1024} sc1")
        return 2

    def epilogue(self):
        A = self.A
        A(f"s_lshl_b32 {s(T + 2)}, {s(S_L)}, 6")
        A(f"s_add_u32 {s(T + 2)}, {s(T + 2)}, {s(S_S)}")
        A(f"s_mul_i32 {s(T + 2)}, {s(T + 2)}, {XSEGS}")
        A(f"s_add_u32 {s(T + 2)}, {s(T + 2)}, {X1B}")
        A(f"s_lshl_b32 {s(T + 3)}, {s(S_IDX)}, 8")
        A(f"s_add_u32 {s(T + 3)}, {s(T + 3)}, {s(T + 2)}")
        A(f"s_add_u32 {s(T + 3)}, {s(T + 3)}, 40960")
        A(f"s_lshl_b32 {s(T + 4)}, {s(S_IDX)}, 11")
        A(f"s_add_u32 {s(T + 2)}, {s(T + 2)}, {s(T + 4)}")
        xs = []
        for tt in range(2):
            unpack8(A, self.V_YU + 8 * tt, self.V_Y + 4 * tt)
        for tt in range(2):
            vals = [self.acc(0, tt) + r for r in range(4)] + [self.acc(1, tt) + r for r in range(4)]
            for i in range(0, 8, 2):
                rnd2(A, V_T, vals[i], vals[i + 1])
            for i in range(8):
                A(f"v_add_f32 {v(vals[i])}, {v(vals[i])}, {v(self.V_YU + 8 * tt + i)}")
            for i in range(0, 8, 2):
                rnd2(A, self.V_PK + 4 * tt + i // 2, vals[i], vals[i + 1])
            A(f"buffer_store_dwordx4 {v(self.V_PK + 4 * tt, 4)}, {v(V_L16)}, {WS}, {s(T + 2)} offen offset:{tt * 1024} sc1")
            xs.append(vals)
        stats_produce(A, xs[0], xs[1], V_T, self.V_SAD, T + 3)
        set_flag(A, flag_row(F_X1))


def row_helpers(A):
    def lane_reduce(r):
        for k in range(2):
            A(f"v_add_f32_dpp {v(r + k)}, {v(r + k)}, {v(r + k)} row_ror:4 row_mask:0xf bank_mask:0xf")
        for k in range(2):
            A(f"v_add_f32_dpp {v(r + k)}, {v(r + k)}, {v(r + k)} row_ror:8 row_mask:0xf bank_mask:0xf")
        for op in ("v_permlane32_swap_b32", "v_permlane16_swap_b32"):
            for k in range(2):
                A(f"v_mov_b32 {v(r + 2 + k)}, {v(r + k)}")
            for k in range(2):
                A(f"{op} {v(r + k)}, {v(r + 2 + k)}")
            for k in range(2):
                A(f"v_add_f32 {v(r + k)}, {v(r + k)}, {v(r + 2 + k)}")

    def sums(vals, r):
        A(f"v_pk_add_f32 {v(r + 4, 2)}, {v(vals[0], 2)}, {v(vals[2], 2)}")
        A(f"v_pk_mul_f32 {v(r + 2, 2)}, {v(vals[0], 2)}, {v(vals[0], 2)}")
        for i in range(2, len(vals), 2):
            if i >= 4:
                A(f"v_pk_add_f32 {v(r + 4, 2)}, {v(r + 4, 2)}, {v(vals[i], 2)}")
            A(f"v_pk_fma_f32 {v(r + 2, 2)}, {v(vals[i], 2)}, {v(vals[i], 2)}, {v(r + 2, 2)}")
        A(f"v_add_f32 {v(r)}, {v(r + 4)}, {v(r + 5)}")
        A(f"v_add_f32 {v(r + 1)}, {v(r + 2)}, {v(r + 3)}")

    def norm(vals, pks, st):
        for i in range(0, len(vals), 2):
            A(f"v_pk_add_f32 {v(vals[i], 2)}, {v(vals[i], 2)}, {v(st, 2)} op_sel_hi:[1,0] neg_lo:[0,1] neg_hi:[0,1]")
        for i in range(0, len(vals), 2):
            rnd2(A, V_T + (i & 2), vals[i], vals[i + 1])
        for i in range(0, len(vals), 2):
            A(f"v_pk_mul_f32 {v(vals[i], 2)}, {v(vals[i], 2)}, {v(st, 2)} op_sel:[0,1] op_sel_hi:[1,1]")
        for i in range(0, len(vals), 2):
            rnd2(A, pks[i // 2], vals[i], vals[i + 1])

    def store_pair(pk, vaddr, soff, off=0):
        A(f"v_permlane16_swap_b32 {v(pk)}, {v(pk + 2)}")
        A(f"v_permlane16_swap_b32 {v(pk + 1)}, {v(pk + 3)}")
        A(f"buffer_store_dwordx4 {v(pk, 4)}, {v(vaddr)}, {WS}, {s(soff)} offen offset:{off} sc1")

    return lane_reduce, sums, norm, store_pair


def numa_probe(A, cfg, S_LAY):
    if cfg.vr:
        lab = A.newlabel("vr")
        A(f"s_cmp_lg_u32 {s(S_MODE)}, 0")
        A(f"s_cbranch_scc1 {lab}")
        A(f"s_lshl_b32 {s(T)}, {s(S_LAY)}, 5")
        A(f"s_add_u32 {s(T)}, {s(T)}, {s(S_IDX)}")
        A(f"s_cmp_ge_u32 {s(T)}, {cfg.nv}")
        A(f"s_cbranch_scc1 {lab}")
        A("s_mov_b64 exec, 1")
        A(f"s_and_b32 {s(T + 1)}, {s(T)}, 7")
        A(f"s_lshl_b32 {s(T + 1)}, {s(T + 1)}, 14")
        A(f"s_lshl_b32 {s(T)}, {s(T)}, 7")
        A(f"s_add_u32 {s(T)}, {s(T)}, {s(T + 1)}")
        A(f"s_add_u32 {s(T)}, {s(T)}, {XP + 0x140000}")
        A(f"s_add_u32 {s(T + 1)}, {s(T)}, 0x2000")
        A(f"s_mov_b32 {s(T + 2)}, -1")
        A(f"s_mov_b32 {s(T + 3)}, -1")
        A(f"s_mov_b32 {s(S_I)}, {cfg.vr}")
        A.label(lab + "l")
        A(f"buffer_store_dword {v(V_ONE)}, {v(V_L16)}, {WS}, {s(T)} offen sc1")
        A(f"buffer_store_dword {v(V_ONE)}, {v(V_L16)}, {WS}, {s(T + 1)} offen sc1")
        A("s_waitcnt vmcnt(0)")
        for par in range(2):
            A(f"s_memtime {s(T + 4, 2)}")
            A("s_waitcnt lgkmcnt(0)")
            A(f"buffer_load_dword {v(V_FV)}, {v(V_L16)}, {WS}, {s(T + par)} offen sc1")
            A("s_waitcnt vmcnt(0)")
            A(f"s_memtime {s(T + 6, 2)}")
            A("s_waitcnt lgkmcnt(0)")
            A(f"s_sub_u32 {s(T + 6)}, {s(T + 6)}, {s(T + 4)}")
            A(f"s_min_u32 {s(T + 2 + par)}, {s(T + 2 + par)}, {s(T + 6)}")
        A(f"s_sub_u32 {s(S_I)}, {s(S_I)}, 1")
        A(f"s_cmp_lg_u32 {s(S_I)}, 0")
        A(f"s_cbranch_scc1 {lab}l")
        A(f"s_cmp_lt_u32 {s(T + 3)}, {s(T + 2)}")
        A(f"s_cselect_b32 {s(T)}, 0x10001, 1")
        A(f"v_mov_b32 {v(V_FV)}, {s(T)}")
        A(f"v_mov_b32 {v(V_T)}, 192")
        A(f"buffer_atomic_add {v(V_FV)}, {v(V_T)}, {s(SRD_DBG, 4)}, 0 offen sc1")
        A("s_mov_b64 exec, -1")
        A.label(lab)


def gen_r0(A, cfg, nwg, s_worker, sx, STR=12):
    lane_reduce, sums, norm, store_pair = row_helpers(A)
    V_ST, V_A = 24, 32
    V_RAW, V_RU, V_NP, V_SO1, V_XR = V_A, V_A + 40, V_A + 80, V_A + 100, V_A + 101
    S_Q = S_NL
    A(f"s_and_b32 {s(S_Q)}, {s(s_worker)}, 7")
    A(f"s_lshr_b32 {s(S_NS)}, {s(s_worker)}, 3")
    dq, g_, c_ = V_T, V_T + 1, V_T + 2
    A(f"v_lshrrev_b32 {v(dq)}, 4, {v(V_LANE)}")
    A(f"v_bfe_u32 {v(g_)}, {v(V_LANE)}, 2, 2")
    A(f"v_and_b32 {v(c_)}, 3, {v(V_LANE)}")
    A(f"s_and_b32 {s(T + 1)}, {s(S_Q)}, 3")
    A(f"s_lshl_b32 {s(T)}, {s(S_Q)}, 8")
    A(f"v_lshlrev_b32 {v(V_SO1)}, 11, {v(dq)}")
    A(f"v_lshrrev_b32 {v(V_T + 3)}, 1, {v(dq)}")
    A(f"v_lshlrev_b32 {v(V_SO1)}, 11, {v(V_T + 3)}")
    A(f"v_and_b32 {v(V_T + 3)}, 1, {v(dq)}")
    A(f"v_lshl_add_u32 {v(V_SO1)}, {v(V_T + 3)}, 12, {v(V_SO1)}")
    A(f"v_add_u32 {v(V_T + 3)}, {s(T + 1)}, {v(g_)}")
    A(f"v_and_b32 {v(V_T + 3)}, 3, {v(V_T + 3)}")
    A(f"v_lshl_add_u32 {v(V_SO1)}, {v(V_T + 3)}, 6, {v(V_SO1)}")
    A(f"v_lshl_add_u32 {v(V_SO1)}, {v(c_)}, 4, {v(V_SO1)}")
    A(f"v_add_u32 {v(V_SO1)}, {s(T)}, {v(V_SO1)}")
    A(f"s_lshl_b32 {s(T)}, {s(S_Q)}, 2")
    A(f"v_add_u32 {v(V_T + 3)}, {s(T)}, {v(c_)}")
    A(f"v_mul_u32_u24 {v(V_XR)}, 1280, {v(V_T + 3)}")
    A(f"v_lshl_add_u32 {v(V_XR)}, {v(dq)}, 5, {v(V_XR)}")
    A(f"v_lshl_add_u32 {v(V_XR)}, {v(g_)}, 3, {v(V_XR)}")
    make_srd(A, SRD_W, P_X, 2048 * 1280)
    S_Z = S_DEF
    A(f"s_mov_b32 {s(S_Z)}, 0")

    def load(raw, seg_reg):
        A(f"s_mul_i32 {s(T + 2)}, {s(seg_reg)}, {32 * 1280}")
        for G in range(10):
            A(f"buffer_load_dwordx2 {v(raw + 2 * G, 2)}, {v(V_XR)}, {s(SRD_W, 4)}, {s(T + 2)} offen offset:{G * 128}")

    def body(raw, nxt, first):
        A(f"s_add_u32 {s(T + 6)}, {s(S_NS)}, {STR}")
        A(f"s_min_u32 {s(T + 6)}, {s(T + 6)}, 63")
        load(nxt, T + 6)
        A(f"s_mul_i32 {s(T + 4)}, {s(S_NS)}, {XSEG}")
        A(f"s_add_u32 {s(T + 4)}, {s(T + 4)}, {X0R}")
        A(f"s_mul_i32 {s(T + 5)}, {s(S_NS)}, {XSEGS}")
        A(f"s_add_u32 {s(T + 5)}, {s(T + 5)}, {XIN}")
        A("s_waitcnt vmcnt(10)")
        if not first:
            flag_store(A, S_FADDR)
        for i in range(20):
            A(f"v_lshlrev_b32 {v(V_RU + 2 * i)}, 16, {v(raw + i)}")
            A(f"v_and_b32 {v(V_RU + 2 * i + 1)}, 0xffff0000, {v(raw + i)}")
        vals = [V_RU + i for i in range(40)]
        sums(vals, V_ST)
        lane_reduce(V_ST)
        finish_stats(A, V_ST, V_ST + 1, V_T)
        norm(vals, [V_NP + i for i in range(20)], V_ST)
        for p in range(5):
            A(f"s_add_u32 {s(T + 3)}, {s(T + 5)}, {p * 8192}")
            store_pair(V_NP + 4 * p, V_SO1, T + 3)
        for p in range(5):
            A(f"s_add_u32 {s(T + 3)}, {s(T + 4)}, {p * 8192}")
            store_pair(raw + 4 * p, V_SO1, T + 3)
        flag_addr(A, S_FADDR, flag_row(F_XIN), S_Q, S_Z, S_NS)
        A(f"s_add_u32 {s(S_NS)}, {s(S_NS)}, {STR}")

    RA, RB = V_RAW, V_RAW + 20
    load(RA, S_NS)
    body(RA, RB, True)
    init_barrier_wait(A, V_T, nwg, cfg)
    flag_store(A, S_FADDR)
    body(RB, RA, True)
    A.label("R0_LOOP" + sx)
    body(RA, RB, False)
    A(f"s_cmp_ge_u32 {s(S_NS)}, 64")
    A(f"s_cbranch_scc1 R0_END{sx}")
    body(RB, RA, False)
    A(f"s_cmp_lt_u32 {s(S_NS)}, 64")
    A(f"s_cbranch_scc1 R0_LOOP{sx}")
    A.label("R0_END" + sx)
    A("s_waitcnt vmcnt(0)")
    flag_store(A, S_FADDR)


def gen_w4(A, cfg, nwg):
    V_IN, V_ACC, V_RD, V_XX, V_XU, V_PK = 16, 112, 144, 176, 184, 200
    V_SAD, V_OA, V_LW, V_LR = 204, 205, 206, 207
    S_J, S_TT = S_K, S_K + 1
    SRD_O = 72
    A.label("ROLE_W4")
    base_setup(A)
    if cfg.wgp2:
        A(f"v_min_u32 {v(V_FO)}, 47, {v(V_LANE)}")
    else:
        A(f"v_min_u32 {v(V_FO)}, 11, {v(V_LANE)}")
        A(f"s_mul_i32 {s(T)}, {s(S_WAVE)}, 12")
        A(f"v_add_u32 {v(V_FO)}, {s(T)}, {v(V_FO)}")
    A(f"v_lshlrev_b32 {v(V_FO)}, 2, {v(V_FO)}")
    A(f"s_and_b32 {s(T)}, {s(S_WAVE)}, 1")
    A(f"s_lshl_b32 {s(S_J)}, {s(S_ROLE)}, 1")
    A(f"s_add_u32 {s(S_J)}, {s(S_J)}, {s(T)}")
    A(f"s_lshr_b32 {s(S_TT)}, {s(S_WAVE)}, 1")
    A(f"v_and_b32 {v(V_T)}, 15, {v(V_LANE)}")
    A(f"v_lshlrev_b32 {v(V_SAD)}, 3, {v(V_T)}")
    A(f"s_lshl_b32 {s(T)}, {s(S_TT)}, 4")
    A(f"v_add_u32 {v(V_T)}, {s(T)}, {v(V_T)}")
    A(f"v_mul_u32_u24 {v(V_OA)}, 1280, {v(V_T)}")
    A(f"v_lshrrev_b32 {v(V_T)}, 4, {v(V_LANE)}")
    A(f"v_lshl_add_u32 {v(V_OA)}, {v(V_T)}, 3, {v(V_OA)}")
    A(f"s_lshl_b32 {s(T)}, {s(S_J)}, 6")
    A(f"v_add_u32 {v(V_OA)}, {s(T)}, {v(V_OA)}")
    make_srd(A, SRD_O, P_OUT, 2048 * 1280)
    zero_flags(A, flag_row(F_XIN), S_IDX, layers=(1,))
    init_barrier_arrive(A, V_T)
    if cfg.late_w:
        init_barrier_wait(A, V_T, nwg, cfg)
        for _ in range(cfg.late_w - 1 if cfg.late_w != 9 else 0):
            A("s_sleep 64")
        if cfg.late_w == 9:
            A(f"s_mov_b32 {s(T + 7)}, {flag_row(F_K)}")
            A(f"v_mov_b32 {v(V_T + 4)}, 0")
            flag_block(A, T + 7, vo=V_T + 4)
    for _ in range(cfg.dly_w):
        A("s_sleep 64")
    WL = WLoader(A, V_T, T + 3)
    A(f"s_mul_i32 {s(S_C0)}, {s(S_WAVE)}, {384 * 1280}")
    A(f"s_lshl_b32 {s(T)}, {s(S_ROLE)}, 7")
    A(f"s_add_u32 {s(S_C0)}, {s(S_C0)}, {s(T)}")
    WL.add(lambda: make_srd(A, SRD_W, P_W4, 1536 * 1280), S_C0, 1280, 4, 12, lambda tau, j: ("a", (tau * 12 + j) * 4))
    WL.emit(V_LANE)
    A("s_barrier")
    if not cfg.late_w:
        init_barrier_wait(A, V_T, nwg, cfg)
    def inreg(st_, b):
        if st_ == 0:
            return v(V_IN + 4 * b, 4)
        return a(192 + 4 * b, 4) if b < 16 else v(208 + 4 * (b - 16), 4)
    XXS = (V_XX, 240)
    S_CH = S_K + 2
    A(f"s_lshl_b32 {s(S_CH)}, {s(S_J)}, 1")
    A(f"s_add_u32 {s(S_CH)}, {s(S_CH)}, {s(S_TT)}")
    A(f"s_lshl_b32 {s(S_CH)}, {s(S_CH)}, 10")

    def loads(st_, rl, rs):
        L = []
        L.append(f"s_lshl_b32 {s(T + 6)}, {s(rl)}, 6")
        L.append(f"s_add_u32 {s(T + 6)}, {s(T + 6)}, {s(rs)}")
        L.append(f"s_mul_i32 {s(T + 5)}, {s(T + 6)}, {GSEG}")
        L.append(f"s_mul_i32 {s(T)}, {s(S_WAVE)}, 24576")
        L.append(f"s_add_u32 {s(T + 5)}, {s(T + 5)}, {s(T)}")
        L.append(f"s_add_u32 {s(T + 5)}, {s(T + 5)}, {GB}")
        for b in range(24):
            if b % 4 == 0:
                L.append(f"s_add_u32 {s(T + 3)}, {s(T + 5)}, {b * 1024}")
            L.append(f"buffer_load_dwordx4 {inreg(st_, b)}, {v(V_L16)}, {WS}, {s(T + 3)} offen offset:{(b % 4) * 1024} sc1")
        L.append(f"s_mul_i32 {s(T)}, {s(T + 6)}, {XSEGS}")
        L.append(f"s_add_u32 {s(T)}, {s(T)}, {s(S_CH)}")
        L.append(f"s_add_u32 {s(T)}, {s(T)}, {X1B}")
        L.append(f"buffer_load_dwordx4 {v(XXS[st_], 4)}, {v(V_L16)}, {WS}, {s(T)} offen sc1")
        L.append(f"s_mul_i32 {s(T)}, {s(T + 6)}, {XSEG}")
        L.append(f"s_add_u32 {s(T)}, {s(T)}, {s(S_CH)}")
        L.append(f"s_add_u32 {s(T)}, {s(T)}, {XM}")
        L.append(f"buffer_load_dwordx4 {v(XXS[st_] + 4, 4)}, {v(V_P16)}, {WS}, {s(T)} offen sc1")
        return L

    def acc(tau, tt):
        return V_ACC + (tt * 4 + tau) * 4

    def kstep(st_, j, fill=None, rate=0):
        for tt in range(2):
            for tau in range(4):
                c = "0" if j == 0 else v(acc(tau, tt), 4)
                A(f"v_mfma_f32_16x16x32_bf16 {v(acc(tau, tt), 4)}, {a((tau * 12 + j) * 4, 4)}, {inreg(st_, j * 2 + tt)}, {c}")
                for _ in range(rate):
                    if fill:
                        A(fill.pop(0))

    def body(st_, sx, other):
        A.label("W4_" + sx)
        A(f"s_add_u32 {s(T + 6)}, {s(S_I)}, 1")
        A(f"s_min_u32 {s(T + 6)}, {s(T + 6)}, 127")
        item_of(A, T + 6, S_NL, S_NS, cfg.LAG + cfg.dlt, 0, T)
        row_of(A, T + 7, S_NL, S_NS, flag_row(F_G))
        A(f"buffer_load_dword {v(V_FV)}, {v(V_FO)}, {WS}, {s(T + 7)} offen sc1")
        A(f"v_add_u32 {v(V_LW)}, {s(S_BUF)}, {v(V_LW0)}")
        A(f"v_add_u32 {v(V_LR)}, {s(S_BUF)}, {v(V_LR0)}")
        JC = 5
        for j in range(JC + 1):
            A(f"s_waitcnt vmcnt({25 - 2 * j})")
            kstep(st_, j)
        nof, nod, join = A.newlabel("nof"), A.newlabel("nod"), A.newlabel("join")
        A("s_waitcnt vmcnt(0)")
        A(f"s_cmp_eq_u32 {s(S_FADDR)}, {DUMMY}")
        A(f"s_cbranch_scc1 {nof}")
        flag_store(A, S_FADDR)
        A(f"s_mov_b32 {s(S_FADDR)}, {DUMMY}")
        A.label(nof)
        A(f"v_cmp_eq_u32 vcc, 0, {v(V_FV)}")
        A(f"s_mov_b32 {s(S_DEF)}, 1")
        A(f"s_cbranch_vccnz {nod}")
        A(f"s_mov_b32 {s(S_DEF)}, 0")
        if cfg.wgp2:
            rdy_set(A, 250, 1, T)
        fill = loads(1 - st_, S_NL, S_NS)
        for j in range(JC + 1, 12):
            kstep(st_, j, fill, 1)
        while fill:
            A(fill.pop(0))
        A(f"s_branch {join}")
        A.label(nod)
        for j in range(JC + 1, 12):
            kstep(st_, j)
        A.label(join)
        for d in range(4):
            tt, p = d >> 1, d & 1
            for k in range(2):
                A(f"ds_write_b128 {v(V_LW)}, {v(acc(2 * p + k, tt), 4)} offset:{d * 8192 + k * 1024}")
        unpack8(A, V_XU, XXS[st_])
        unpack8(A, V_XU + 8, XXS[st_] + 4)
        A("s_waitcnt lgkmcnt(0)")
        A("s_barrier")
        for i in range(8):
            A(f"ds_read_b128 {v(V_RD + 4 * i, 4)}, {v(V_LR)} offset:{i * 1024}")
        A("s_waitcnt lgkmcnt(0)")
        for i in range(0, 8, 2):
            A(f"v_pk_add_f32 {v(V_RD + i, 2)}, {v(V_RD + i, 2)}, {v(V_RD + 8 + i, 2)}")
            A(f"v_pk_add_f32 {v(V_RD + 16 + i, 2)}, {v(V_RD + 16 + i, 2)}, {v(V_RD + 24 + i, 2)}")
        for i in range(0, 8, 2):
            A(f"v_pk_add_f32 {v(V_RD + i, 2)}, {v(V_RD + i, 2)}, {v(V_RD + 16 + i, 2)}")
        X = [V_RD + i for i in range(8)]
        for i in range(0, 8, 2):
            rnd2(A, V_T, X[i], X[i + 1])
        for i in range(0, 8, 2):
            A(f"v_pk_add_f32 {v(X[i], 2)}, {v(X[i], 2)}, {v(V_XU + i, 2)}")
        for i in range(0, 8, 2):
            rnd2(A, V_T, X[i], X[i + 1])
        for i in range(0, 8, 2):
            A(f"v_pk_add_f32 {v(X[i], 2)}, {v(X[i], 2)}, {v(V_XU + 8 + i, 2)}")
        for i in range(0, 8, 2):
            rnd2(A, V_PK + i // 2, X[i], X[i + 1])
        l1, l2 = A.newlabel("w4o"), A.newlabel("w4n")
        A(f"s_cmp_lg_u32 {s(S_L)}, 0")
        A(f"s_cbranch_scc1 {l1}")
        A(f"s_mul_i32 {s(T + 2)}, {s(S_S)}, {XSEGS}")
        A(f"s_add_u32 {s(T + 2)}, {s(T + 2)}, {XIN + 64 * XSEGS}")
        A(f"s_add_u32 {s(T + 3)}, {s(T + 2)}, {s(S_CH)}")
        A(f"buffer_store_dwordx4 {v(V_PK, 4)}, {v(V_P16)}, {WS}, {s(T + 3)} offen sc1")
        t = V_T
        A(f"v_add_f32 {v(t)}, {v(X[0])}, {v(X[1])}")
        A(f"v_mul_f32 {v(t + 1)}, {v(X[0])}, {v(X[0])}")
        for i in range(1, 8):
            if i >= 2:
                A(f"v_add_f32 {v(t)}, {v(t)}, {v(X[i])}")
            A(f"v_fmac_f32 {v(t + 1)}, {v(X[i])}, {v(X[i])}")
        for op in ("v_permlane32_swap_b32", "v_permlane16_swap_b32"):
            A(f"v_mov_b32 {v(t + 2)}, {v(t)}")
            A(f"v_mov_b32 {v(t + 3)}, {v(t + 1)}")
            A(f"{op} {v(t)}, {v(t + 2)}")
            A(f"{op} {v(t + 1)}, {v(t + 3)}")
            A(f"v_add_f32 {v(t)}, {v(t)}, {v(t + 2)}")
            A(f"v_add_f32 {v(t + 1)}, {v(t + 1)}, {v(t + 3)}")
        A(f"s_lshl_b32 {s(T + 3)}, {s(S_J)}, 8")
        A(f"s_lshl_b32 {s(T)}, {s(S_TT)}, 7")
        A(f"s_add_u32 {s(T + 3)}, {s(T + 3)}, {s(T)}")
        A(f"s_add_u32 {s(T + 3)}, {s(T + 3)}, {s(T + 2)}")
        A(f"s_add_u32 {s(T + 3)}, {s(T + 3)}, 40960")
        A("s_mov_b64 exec, 0xffff")
        A(f"buffer_store_dwordx2 {v(t, 2)}, {v(V_SAD)}, {WS}, {s(T + 3)} offen sc1")
        A("s_mov_b64 exec, -1")
        A(f"s_mov_b32 {s(T + 6)}, 1")
        flag_addr(A, S_FADDR, flag_row(F_XIN), S_IDX, T + 6, S_S)
        A("s_waitcnt vmcnt(0)")
        flag_store(A, S_FADDR)
        A(f"s_mov_b32 {s(S_FADDR)}, {DUMMY}")
        A(f"s_branch {l2}")
        A.label(l1)
        A(f"s_mul_i32 {s(T + 2)}, {s(S_S)}, {32 * 1280}")
        A(f"buffer_store_dwordx2 {v(V_PK, 2)}, {v(V_OA)}, {s(SRD_O, 4)}, {s(T + 2)} offen")
        A(f"buffer_store_dwordx2 {v(V_PK + 2, 2)}, {v(V_OA)}, {s(SRD_O, 4)}, {s(T + 2)} offen offset:32")
        A("s_waitcnt vmcnt(2)")
        A.label(l2)
        A(f"s_add_u32 {s(S_I)}, {s(S_I)}, 1")
        A(f"s_cmp_eq_u32 {s(S_I)}, 128")
        A("s_cbranch_scc1 W4_END")
        A(f"s_xor_b32 {s(S_BUF)}, {s(S_BUF)}, 0x8000")
        A(f"s_mov_b32 {s(S_L)}, {s(S_NL)}")
        A(f"s_mov_b32 {s(S_S)}, {s(S_NS)}")
        A(f"s_cmp_eq_u32 {s(S_DEF)}, 0")
        A(f"s_cbranch_scc1 W4_{other}")
        row_of(A, T + 7, S_L, S_S, flag_row(F_G))
        if cfg.wgp2:
            wg_wait(A, cfg, 250, T + 7, T)
        else:
            flag_block(A, T + 7, sleep=1)
        for x in loads(1 - st_, S_L, S_S):
            A(x)
        A(f"s_branch W4_{other}")

    V_LW0, V_LR0 = 248, 249
    A(f"s_lshl_b32 {s(T)}, {s(S_WAVE)}, 11")
    A(f"v_add_u32 {v(V_LW0)}, {s(T)}, {v(V_L16)}")
    A(f"s_lshl_b32 {s(T)}, {s(S_WAVE)}, 13")
    A(f"v_add_u32 {v(V_LR0)}, {s(T)}, {v(V_L16)}")
    A(f"s_mov_b32 {s(S_I)}, 0")
    A(f"s_mov_b32 {s(S_BUF)}, 0")
    if cfg.wgp2:
        rdy_init(A, cfg, 250, 65536)
    A(f"s_mov_b32 {s(S_FADDR)}, {DUMMY}")
    item_of(A, S_I, S_L, S_S, cfg.LAG + cfg.dlt, 0, T)
    row_of(A, T + 7, S_L, S_S, flag_row(F_G))
    flag_block(A, T + 7)
    for x in loads(0, S_L, S_S):
        A(x)
    body(0, "A", "B")
    body(1, "B", "A")
    A.label("W4_END")
    if cfg.timing == 6:
        A("s_memrealtime s[98:99]")
        A("s_waitcnt lgkmcnt(0)")
        A("s_sub_u32 s98, s98, s96")
        A(f"v_mov_b32 {v(V_T)}, s98")
        A(f"v_mov_b32 {v(V_T + 1)}, 28")
        A("s_mov_b64 exec, 1")
        A(f"buffer_store_dword {v(V_T)}, {v(V_T + 1)}, {s(SRD_DBG, 4)}, 0 offen")
    A("s_endpgm")


def gen_att(A, cfg, nwg):
    V_Q, V_K, V_V, V_KP, V_VM = 16, 64, 112, 160, 172
    V_SX, V_SM, V_P = 184, 196, 212
    V_FO2, V_L8, V_NINF = 228, 229, 230
    V_PK = 232
    S_H, S_XG, S_FX, S_HO = S_K, S_K + 1, S_K + 2, S_K + 3
    S_MK = 72
    S_ML = 80
    S_SC, S_L2E = 84, 85
    A.label("ROLE_ATT")
    S_PAR = 86
    if cfg.a2 == 1:
        A(f"s_lshr_b32 {s(S_PAR)}, {s(S_ROLE)}, 4")
        A(f"s_and_b32 {s(S_ROLE)}, {s(S_ROLE)}, 15")
    base_setup(A)
    S_FO = 87
    if cfg.a2 == 2:
        A(f"s_mov_b32 {s(S_H)}, {s(S_ROLE)}")
        A(f"s_and_b32 {s(S_L)}, {s(S_WAVE)}, 1")
        A(f"s_lshr_b32 {s(S_PAR)}, {s(S_WAVE)}, 1")
        A(f"s_lshr_b32 {s(S_FO)}, {s(S_H)}, 3")
        A(f"s_lshl_b32 {s(S_FO)}, {s(S_FO)}, 5")
        A(f"s_and_b32 {s(T)}, {s(S_H)}, 7")
        A(f"s_add_u32 {s(S_FO)}, {s(S_FO)}, {s(T)}")
    elif cfg.attl:
        A(f"s_lshr_b32 {s(S_H)}, {s(S_ROLE)}, 1")
        A(f"s_lshl_b32 {s(S_H)}, {s(S_H)}, 2")
        A(f"s_add_u32 {s(S_H)}, {s(S_H)}, {s(S_WAVE)}")
        A(f"s_and_b32 {s(S_L)}, {s(S_ROLE)}, 1")
    else:
        A(f"s_lshr_b32 {s(S_H)}, {s(S_IDX)}, 1")
        A(f"s_and_b32 {s(S_L)}, {s(S_IDX)}, 1")
    A(f"v_lshlrev_b32 {v(V_L8)}, 3, {v(V_LANE)}")
    if cfg.lin:
        A(f"v_and_b32 {v(V_L8)}, 0x300, {v(V_L16)}")
        A(f"v_add_u32 {v(V_L8)}, {v(V_L8)}, {v(V_L16)}")
    A(f"v_mov_b32 {v(V_NINF)}, 0xff800000")
    A(f"s_mov_b32 {s(S_ML)}, -1")
    A(f"s_mov_b32 {s(S_ML + 1)}, 0")
    A(f"s_mov_b32 {s(S_SC)}, {f32(192 ** -0.5)}")
    A(f"s_mov_b32 {s(S_L2E)}, {f32(math.log2(math.e))}")
    A(f"v_min_u32 {v(V_T)}, 8, {v(V_LANE)}")
    A(f"v_mul_u32_u24 {v(V_T + 1)}, 86, {v(V_T)}")
    A(f"v_lshrrev_b32 {v(V_T + 1)}, 8, {v(V_T + 1)}")
    A(f"v_mul_u32_u24 {v(V_T + 2)}, 3, {v(V_T + 1)}")
    A(f"v_sub_u32 {v(V_T)}, {v(V_T)}, {v(V_T + 2)}")
    A(f"s_mul_i32 {s(T)}, {s(S_H)}, 3")
    A(f"v_add_u32 {v(V_T)}, {s(T)}, {v(V_T)}")
    A(f"v_lshlrev_b32 {v(V_FO)}, 2, {v(V_T)}")
    A(f"v_lshl_add_u32 {v(V_FO)}, {v(V_T + 1)}, 16, {v(V_FO)}")
    A(f"v_min_u32 {v(V_FO2)}, {2 if cfg.c2 else 11}, {v(V_LANE)}")
    A(f"v_lshlrev_b32 {v(V_FO2)}, 2, {v(V_FO2)}")
    A(f"v_lshrrev_b32 {v(V_T)}, 4, {v(V_LANE)}")
    A(f"v_lshlrev_b32 {v(V_T)}, 2, {v(V_T)}")
    A(f"v_and_b32 {v(V_T + 1)}, 15, {v(V_LANE)}")
    for r in range(4):
        A(f"v_add_u32 {v(V_T + 2)}, {r}, {v(V_T)}")
        A(f"v_cmp_le_u32 {s(S_MK + 2 * r, 2)}, {v(V_T + 2)}, {v(V_T + 1)}")
    A(f"s_mul_i32 {s(S_HO)}, {s(S_H)}, 12288")
    A(f"s_mul_i32 {s(T)}, {s(S_L)}, {cfg.LAG}")
    A(f"s_mul_i32 {s(S_XG)}, {s(T)}, {XG_STEP}")
    A(f"s_mul_i32 {s(T + 1)}, {s(S_H)}, {XG_HEAD}")
    A(f"s_add_u32 {s(S_XG)}, {s(S_XG)}, {s(T + 1)}")
    A(f"s_mul_i32 {s(T + 1)}, {s(S_L)}, 9216")
    A(f"s_add_u32 {s(S_XG)}, {s(S_XG)}, {s(T + 1)}")
    A(f"s_add_u32 {s(S_XG)}, {s(S_XG)}, {XG + 3072}")
    A(f"s_mul_i32 {s(S_FX)}, {s(T)}, {FXG_STEP}")
    A(f"s_lshl_b32 {s(T + 1)}, {s(S_H)}, 6")
    A(f"s_add_u32 {s(S_FX)}, {s(S_FX)}, {s(T + 1)}")
    A(f"s_add_u32 {s(S_FX)}, {s(S_FX)}, {FXG}")
    if cfg.c2:
        A(f"s_mul_i32 {s(S_XG)}, {s(S_L)}, {(16 if cfg.xt else 64) * XG2_STEP}")
        A(f"s_mul_i32 {s(T + 1)}, {s(S_H)}, {XG2_HEAD}")
        A(f"s_add_u32 {s(S_XG)}, {s(S_XG)}, {s(T + 1)}")
        A(f"s_add_u32 {s(S_XG)}, {s(S_XG)}, {XG}")
        A(f"s_mul_i32 {s(S_FX)}, {s(S_L)}, {64 * FXG2_STEP}")
        A(f"s_lshl_b32 {s(T + 1)}, {s(S_H)}, 5")
        A(f"s_add_u32 {s(S_FX)}, {s(S_FX)}, {s(T + 1)}")
        A(f"s_add_u32 {s(S_FX)}, {s(S_FX)}, {FXG}")
    if cfg.xga == 4:
        A(f"s_mul_i32 {s(T + 1)}, {s(T)}, {XG_STEP}")
        A(f"s_sub_u32 {s(S_XG)}, {s(S_XG)}, {s(T + 1)}")
        A(f"s_mov_b32 {s(S_FX)}, {s(T)}")
        A(f"v_min_u32 {v(V_T)}, 17, {v(V_LANE)}")
        A(f"v_lshrrev_b32 {v(V_T + 1)}, 1, {v(V_T)}")
        A(f"v_lshlrev_b32 {v(V_T + 1)}, 10, {v(V_T + 1)}")
        A(f"v_and_b32 {v(V_T + 2)}, 1, {v(V_T)}")
        A(f"v_lshl_add_u32 {v(V_T + 1)}, {v(V_T + 2)}, 7, {v(V_T + 1)}")
        A(f"v_lshlrev_b32 {v(V_T + 2)}, 8, {v(V_T)}")
        A(f"v_add_u32 {v(V_T + 2)}, {3072 - 6 * 256}, {v(V_T + 2)}")
        A(f"v_cmp_gt_u32 vcc, 6, {v(V_T)}")
        A(f"v_cndmask_b32 {v(V_FO2)}, {v(V_T + 2)}, {v(V_T + 1)}, vcc")
    init_barrier_arrive(A, V_T)
    if cfg.a2 == 1:
        A(f"s_cmp_eq_u32 {s(S_PAR)}, 0")
        A("s_cbranch_scc1 ATT_R0")
        init_barrier_wait(A, V_T, nwg, cfg)
        A(f"s_mov_b32 {s(S_S)}, 1")
        A(f"s_add_u32 {s(S_XG)}, {s(S_XG)}, {XG2_STEP}")
        A(f"s_add_u32 {s(S_FX)}, {s(S_FX)}, {FXG2_STEP}")
        A("s_branch ATT_LOOP")
        A.label("ATT_R0")
    if cfg.a2 == 2:
        A(f"s_mov_b32 {s(T + 6)}, {s(S_IDX)}")
        gen_r0(A, cfg, nwg, T + 6, "A", 16)
        A(f"s_mov_b32 {s(S_S)}, {s(S_PAR)}")
        A(f"s_mul_i32 {s(T)}, {s(S_PAR)}, {XG2_STEP}")
        A(f"s_add_u32 {s(S_XG)}, {s(S_XG)}, {s(T)}")
        A(f"s_mul_i32 {s(T)}, {s(S_PAR)}, {FXG2_STEP}")
        A(f"s_add_u32 {s(S_FX)}, {s(S_FX)}, {s(T)}")
    else:
        A(f"s_add_u32 {s(T + 6)}, {s(S_IDX)}, 32")
        gen_r0(A, cfg, nwg, T + 6, "A")
        A(f"s_mov_b32 {s(S_S)}, 0")
    S_XB = S_FX
    if cfg.xt == 2:
        A(f"s_mov_b32 {s(S_XB)}, {s(S_XG)}")
    if cfg.xt == 1:
        for i in range(4):
            A(f"v_mov_b32 {v(V_PK + i)}, -1")
        for k in range(8):
            for b in range(6):
                if b % 4 == 0:
                    A(f"s_add_u32 {s(T + 3)}, {s(S_XG)}, {2 * k * XG2_STEP + b * 1024}")
                A(f"buffer_store_dwordx4 {v(V_PK, 4)}, {v(V_L16)}, {WS}, {s(T + 3)} offen offset:{(b % 4) * 1024} sc1")
        A(f"s_lshl_b32 {s(T)}, {s(S_MODE)}, 2")
        A(f"v_mov_b32 {v(V_T + 1)}, {s(T)}")
        A(f"v_mov_b32 {v(V_T)}, 1")
        A("s_waitcnt vmcnt(0)")
        A("s_mov_b64 exec, 1")
        A(f"buffer_atomic_add {v(V_T)}, {v(V_T + 1)}, {s(SRD_DBG, 4)}, 0 offen offset:128 sc1")
        A("s_mov_b64 exec, -1")
        A(f"s_mov_b32 {s(S_XB)}, {s(S_XG)}")
    A(f"v_mov_b32 v231, 0")
    st = Stamper(A, cfg, 88, 8)
    A(f"s_mov_b32 s83, {s(S_GID)}")
    st.init()
    A.label("ATT_LOOP")
    row_of(A, T + 7, S_L, S_S, flag_row(F_Q))
    A(f"s_mul_i32 {s(T + 6)}, {s(S_S)}, {QKV_SEG}")
    A(f"s_add_u32 {s(T + 6)}, {s(T + 6)}, {s(S_HO)}")
    V_FN = 231
    if cfg.asm:
        A(f"v_cmp_eq_u32 vcc, 0, {v(V_FN)}")
        A("s_cbranch_vccz ATT_RDY")
    flag_block(A, T + 7, sleep=4)
    A.label("ATT_RDY")
    st(0)
    nld = 0
    for base, buf in ((V_Q, QX), (V_K, KX), (V_V, VX)):
        for b in range(12):
            if b % 4 == 0:
                A(f"s_add_u32 {s(T + 3)}, {s(T + 6)}, {buf + b * 1024}")
            if cfg.aw and nld >= cfg.aw and nld % 2 == 0:
                A(f"s_waitcnt vmcnt({cfg.aw - 2})")
            A(f"buffer_load_dwordx4 {v(base + 4 * b, 4)}, {v(V_L16)}, {WS}, {s(T + 3)} offen offset:{(b % 4) * 1024} {'nt ' if cfg.ant or (cfg.qnt and buf == QX) else ''}sc1")
            nld += 1
    if cfg.oring:
        A(f"s_and_b32 {s(T + 6)}, {s(S_S)}, 3")
        A(f"s_lshl2_add_u32 {s(T + 6)}, {s(S_L)}, {s(T + 6)}")
        A(f"s_mul_i32 {s(T + 6)}, {s(T + 6)}, {QKV_SEG}")
        A(f"s_add_u32 {s(T + 6)}, {s(T + 6)}, {s(S_HO)}")
    if cfg.touch & 1:
        A(f"v_lshlrev_b32 {v(V_PK)}, 7, {v(V_LANE)}")
        A(f"s_add_u32 {s(T + 3)}, {s(T + 6)}, {OX}")
        A(f"buffer_load_dword {v(V_PK + 1)}, {v(V_PK)}, {WS}, {s(T + 3)} offen sc1")
        A(f"s_add_u32 {s(T + 3)}, {s(T + 6)}, {OX + 4096}")
        A(f"buffer_load_dword {v(V_PK + 1)}, {v(V_PK)}, {WS}, {s(T + 3)} offen sc1")
    A(f"s_waitcnt vmcnt({14 if cfg.touch & 1 else 12})")
    st(1)
    combos = ((0, 0), (1, 0), (1, 1))
    for j in range(6):
        for ci, (qt, kt) in enumerate(combos):
            c = "0" if j == 0 else v(V_SX + 4 * ci, 4)
            A(f"v_mfma_f32_16x16x32_bf16 {v(V_SX + 4 * ci, 4)}, {v(V_K + (j * 2 + kt) * 4, 4)}, {v(V_Q + (j * 2 + qt) * 4, 4)}, {c}")

    def roundscale(vals):
        for i in range(0, len(vals), 2):
            rnd2(A, V_T, vals[i], vals[i + 1])
        for x in vals:
            A(f"v_mul_f32 {v(x)}, {s(S_SC)}, {v(x)}")
        for i in range(0, len(vals), 2):
            rnd2(A, V_T, vals[i], vals[i + 1])
    roundscale([V_SX + i for i in range(12)])
    for ci in (0, 2):
        for r in range(4):
            x = V_SX + 4 * ci + r
            A(f"v_cndmask_b32 {v(x)}, {v(V_NINF)}, {v(x)}, {s(S_MK + 2 * r, 2)}")
    V_MX, V_LS, V_W = 240, 242, 244
    XQ = ([V_SX + i for i in range(4)], [V_SX + 4 + i for i in range(8)])

    def weave(fa, fb):
        ca, cb = Capture(), Capture()
        fa(ca)
        fb(cb)
        while ca.l or cb.l:
            if cb.l:
                A(cb.l.pop(0))
            if ca.l:
                A(ca.l.pop(0))
    if cfg.a3:
        def pre(qt):
            def f(A):
                X, m, t2 = XQ[qt], V_MX + qt, V_W + 4 * qt
                A(f"v_max3_f32 {v(m)}, {v(X[0])}, {v(X[1])}, {v(X[2])}")
                for i in range(3, len(X) - 1, 2):
                    A(f"v_max3_f32 {v(m)}, {v(m)}, {v(X[i])}, {v(X[i + 1])}")
                A(f"v_max_f32 {v(m)}, {v(m)}, {v(X[-1])}")
                xreduce(A, "v_max_f32", m, t2)
                A(f"v_mul_f32 {v(t2)}, {s(S_L2E)}, {v(m)}")
                for x in X:
                    A(f"v_fma_f32 {v(x)}, {v(x)}, {s(S_L2E)}, -{v(t2)}")
                for x in X:
                    A(f"v_exp_f32 {v(x)}, {v(x)}")
                A(f"v_add_f32 {v(V_LS + qt)}, {v(X[0])}, {v(X[1])}")
                for x in X[2:]:
                    A(f"v_add_f32 {v(V_LS + qt)}, {v(V_LS + qt)}, {v(x)}")
            return f
        weave(pre(0), pre(1))
        A(f"v_mov_b32 {v(V_P + 3)}, 0")
        A(f"v_mov_b32 {v(V_P + 13)}, 0")
        A(f"v_mov_b32 {v(V_P + 14)}, 0")
        A(f"s_add_u32 {s(T + 6)}, {s(T + 6)}, {OX}")
        flag_addr(A, S_FADDR, flag_row(F_O), S_FO)
        if cfg.oring:
            top = A.newlabel("ob")
            A(f"s_lshl_b32 {s(T + 5)}, {s(S_L)}, 5")
            A(f"s_add_u32 {s(T + 5)}, {s(T + 5)}, {s(S_H)}")
            A(f"s_lshl_b32 {s(T + 5)}, {s(T + 5)}, 5")
            A(f"s_add_u32 {s(T + 5)}, {s(T + 5)}, {FOD}")
            A(f"s_sub_u32 {s(T + 4)}, {s(S_S)}, 3")
            A(f"v_min_u32 {v(V_W)}, 4, {v(V_LANE)}")
            A(f"v_lshlrev_b32 {v(V_W)}, 2, {v(V_W)}")
            A.label(top)
            A(f"buffer_load_dword {v(V_FV)}, {v(V_W)}, {WS}, {s(T + 5)} offen sc1")
            A("s_waitcnt vmcnt(0)")
            A(f"v_cmp_gt_i32 vcc, {s(T + 4)}, {v(V_FV)}")
            poll_tail(A, top, sleep=2)
    if cfg.xga != 4:
        sv = cfg.fsl
        if cfg.asl >= 0:
            cfg.fsl = cfg.asl
        st(2)
        if cfg.timing == 2:
            A("s_waitcnt vmcnt(0)")
            st(7)
        if cfg.xt:
            S_XT = T + 5
            top = A.newlabel("xk")
            A(f"s_and_b32 {s(S_XG)}, {s(S_S)}, 14")
            A(f"s_mul_i32 {s(S_XG)}, {s(S_XG)}, {XG2_STEP}")
            A(f"s_add_u32 {s(S_XG)}, {s(S_XG)}, {s(S_XB)}")
            A(f"s_bfe_u32 {s(S_XT)}, {s(S_S)}, 0x10004")
            A.label(top)
            for j in range(3):
                A(f"buffer_load_dwordx4 {v(V_KP + 4 * j, 4)}, {v(V_L16)}, {WS}, {s(S_XG)} offen offset:{j * 1024} sc1")
            A("s_waitcnt vmcnt(0)")
            A(f"v_bitop3_b32 {v(V_FV)}, {v(V_KP)}, {v(V_KP + 4)}, {s(S_XT)} bitop3:0x7e")
            A(f"v_xor_b32 {v(V_W)}, {s(S_XT)}, {v(V_KP + 8)}")
            A(f"v_bitop3_b32 {v(V_FV)}, {v(V_FV)}, {v(V_W)}, 1 bitop3:0xa8")
            A(f"v_cmp_ne_u32 vcc, 0, {v(V_FV)}")
            poll_tail(A, top, sleep=cfg.asl)
            st(3)
            cfg.fsl = sv
        else:
            flag_block(A, S_FX, vo=V_FO2, sleep=cfg.att_sleep)
            st(3)
            cfg.fsl = sv
            for j in range(3):
                A(f"buffer_load_dwordx4 {v(V_KP + 4 * j, 4)}, {v(V_L16)}, {WS}, {s(S_XG)} offen offset:{j * 1024} sc1")
        A(f"s_add_u32 {s(T + 3)}, {s(S_XG)}, 3072")
        if cfg.c2:
            if cfg.kl:
                A(f"v_lshlrev_b32 {v(V_FV)}, 3, {v(V_LANE)}")
                for u in range(2):
                    A(f"buffer_load_dwordx4 {v(V_VM + 6 * u, 4)}, {v(V_L16)}, {WS}, {s(T + 3)} offen offset:{u * 1536} sc1")
                    A(f"buffer_load_dwordx2 {v(V_VM + 6 * u + 4, 2)}, {v(V_FV)}, {WS}, {s(T + 3)} offen offset:{u * 1536 + 1024} sc1")
            else:
                for i in range(3):
                    A(f"buffer_load_dwordx4 {v(V_VM + 4 * i, 4)}, {v(V_L16)}, {WS}, {s(T + 3)} offen offset:{i * 1024} sc1")
            if cfg.asm:
                A(f"buffer_load_dword {v(V_FN)}, {v(V_FO)}, {WS}, {s(T + 7)} offen offset:1024 sc1")
            A(f"s_waitcnt vmcnt({(4 if cfg.asm else 3) + (1 if cfg.kl else 0)})")
        else:
            for i in range(6):
                A(f"buffer_load_dwordx2 {v(V_VM + 2 * i, 2)}, {v(V_L8)}, {WS}, {s(T + 3)} offen offset:{i * 512} sc1")
            A("s_waitcnt vmcnt(6)")
    else:
        A(f"s_and_b32 {s(T + 4)}, {s(S_FX)}, 15")
        A(f"s_mul_i32 {s(T + 4)}, {s(T + 4)}, {XG_STEP}")
        A(f"s_add_u32 {s(T + 4)}, {s(T + 4)}, {s(S_XG)}")
        A(f"s_add_u32 {s(T + 3)}, {s(T + 4)}, 3072")
        A(f"s_lshr_b32 {s(T + 5)}, {s(S_FX)}, 4")
        A(f"s_and_b32 {s(T + 5)}, {s(T + 5)}, 1")
        top = A.newlabel("xp")
        A.label(top)
        A(f"buffer_load_dword {v(V_FV)}, {v(V_FO2)}, {WS}, {s(T + 4)} offen sc1")
        A("s_waitcnt vmcnt(0)")
        A(f"v_and_b32 {v(V_FV)}, 1, {v(V_FV)}")
        A(f"v_cmp_ne_u32 vcc, {s(T + 5)}, {v(V_FV)}")
        poll_tail(A, top, sleep=cfg.asl)
        for j in range(3):
            A(f"buffer_load_dwordx4 {v(V_KP + 4 * j, 4)}, {v(V_L16)}, {WS}, {s(T + 4)} offen offset:{j * 1024} sc1")
        for i in range(6):
            A(f"buffer_load_dwordx2 {v(V_VM + 2 * i, 2)}, {v(V_L8)}, {WS}, {s(T + 3)} offen offset:{i * 512} sc1")
        A("s_waitcnt vmcnt(0)")
        regs = [V_KP + 4 * j for j in range(3)] + [V_VM + 2 * i for i in range(6)]
        for k in range(4):
            A(f"v_bitop3_b32 {v(V_T + k)}, {v(regs[2 * k])}, {v(regs[2 * k + 1])}, {s(T + 5)} bitop3:0x7e")
        A(f"v_xor_b32 {v(V_T + 4)}, {s(T + 5)}, {v(regs[8])}")
        A(f"v_or3_b32 {v(V_T)}, {v(V_T)}, {v(V_T + 1)}, {v(V_T + 2)}")
        A(f"v_or3_b32 {v(V_T)}, {v(V_T)}, {v(V_T + 3)}, {v(V_T + 4)}")
        A(f"v_and_b32 {v(V_T)}, 1, {v(V_T)}")
        A(f"v_cmp_ne_u32 vcc, 0, {v(V_T)}")
        poll_tail(A, top)
    st(4)
    for jp in range(3):
        for qt in range(2):
            for par in range(2):
                acc = V_SM + (qt * 2 + par) * 4
                c = "0" if jp == 0 else v(acc, 4)
                A(f"v_mfma_f32_16x16x32_bf16 {v(acc, 4)}, {v(V_KP + 4 * jp, 4)}, {v(V_Q + ((2 * jp + par) * 2 + qt) * 4, 4)}, {c}")
    if cfg.a3:
        def post(qt):
            def f(A):
                E, O = V_SM + qt * 8, V_SM + qt * 8 + 4
                X, W, P = XQ[qt], V_W + 4 * qt, V_P + 8 * qt
                if cfg.kl:
                    A(f"v_add_f32 {v(E)}, {v(E)}, {v(O + 2)}")
                    A(f"v_add_f32 {v(E + 1)}, {v(E + 1)}, {v(O + 3)}")
                else:
                    for k in (0, 2):
                        A(f"v_permlane32_swap_b32 {v(E + k)}, {v(E + k + 1)}")
                        A(f"v_permlane32_swap_b32 {v(O + k)}, {v(O + k + 1)}")
                    A(f"v_add_f32 {v(E)}, {v(E)}, {v(O + 1)}")
                    A(f"v_add_f32 {v(E + 1)}, {v(E + 2)}, {v(O + 3)}")
                rnd2(A, W, E, E + 1)
                A(f"v_mul_f32 {v(E)}, {s(S_SC)}, {v(E)}")
                A(f"v_mul_f32 {v(E + 1)}, {s(S_SC)}, {v(E + 1)}")
                rnd2(A, W, E, E + 1)
                A(f"v_max3_f32 {v(W)}, {v(E)}, {v(E + 1)}, {v(V_MX + qt)}")
                xreduce(A, "v_max_f32", W, W + 1)
                A(f"v_mul_f32 {v(W)}, {s(S_L2E)}, {v(W)}")
                A(f"v_fma_f32 {v(W + 2)}, {v(V_MX + qt)}, {s(S_L2E)}, -{v(W)}")
                A(f"v_fma_f32 {v(E)}, {v(E)}, {s(S_L2E)}, -{v(W)}")
                A(f"v_fma_f32 {v(E + 1)}, {v(E + 1)}, {s(S_L2E)}, -{v(W)}")
                A(f"v_exp_f32 {v(W + 2)}, {v(W + 2)}")
                A(f"v_exp_f32 {v(E)}, {v(E)}")
                A(f"v_exp_f32 {v(E + 1)}, {v(E + 1)}")
                A(f"v_fma_f32 {v(W)}, {v(W + 2)}, {v(V_LS + qt)}, {v(E)}")
                A(f"v_add_f32 {v(W)}, {v(W)}, {v(E + 1)}")
                xreduce(A, "v_add_f32", W, W + 1)
                A(f"v_rcp_f32 {v(W)}, {v(W)}")
                A(f"v_mul_f32 {v(W + 2)}, {v(W + 2)}, {v(W)}")
                for x in X:
                    A(f"v_mul_f32 {v(x)}, {v(x)}, {v(W + 2)}")
                for i in range(0, len(X), 2):
                    A(f"v_cvt_pk_bf16_f32 {v(P + i // 2)}, {v(X[i])}, {v(X[i + 1])}")
                A(f"v_mul_f32 {v(E)}, {v(E)}, {v(W)}")
                A(f"v_mul_f32 {v(E + 1)}, {v(E + 1)}, {v(W)}")
                if qt == 0:
                    A(f"v_cvt_pk_bf16_f32 {v(P + 2)}, {v(E)}, {v(E + 1)}")
                else:
                    A(f"v_cvt_pk_bf16_f32 {v(P + 4)}, {v(E)}, {v(E + 1)}")
                    A(f"v_cvt_pk_bf16_f32 {v(P + 7)}, {v(E)}, {v(E + 1)}")
            return f
        weave(post(0), post(1))
        A(f"s_waitcnt vmcnt({1 if cfg.asm else 0})")
        if cfg.xt:
            top, ok = A.newlabel("xv"), A.newlabel("xo")
            A.label(top)
            A(f"v_bitop3_b32 {v(V_W)}, {v(V_VM)}, {v(V_VM + 4)}, {s(S_XT)} bitop3:0x7e")
            A(f"v_bitop3_b32 {v(V_W + 1)}, {v(V_VM + 6)}, {v(V_VM + 10)}, {s(S_XT)} bitop3:0x7e")
            A(f"v_bitop3_b32 {v(V_W)}, {v(V_W)}, {v(V_W + 1)}, 1 bitop3:0xa8")
            A(f"v_cmp_ne_u32 vcc, 0, {v(V_W)}")
            A(f"s_cbranch_vccz {ok}")
            A(f"s_sub_u32 {s(S_SPIN)}, {s(S_SPIN)}, 1")
            A("s_cbranch_scc1 ABORT")
            for u in range(2):
                A(f"buffer_load_dwordx4 {v(V_VM + 6 * u, 4)}, {v(V_L16)}, {WS}, {s(T + 3)} offen offset:{u * 1536} sc1")
                A(f"buffer_load_dwordx2 {v(V_VM + 6 * u + 4, 2)}, {v(V_FV)}, {WS}, {s(T + 3)} offen offset:{u * 1536 + 1024} sc1")
            A("s_waitcnt vmcnt(0)")
            A(f"s_branch {top}")
            A.label(ok)

        def o_out(LS):
            from chain2 import Lds, Task, sched
            seq, tasks = [], []

            def outs(qt, j, n):
                O = V_Q if qt == 0 else V_K
                pk = V_PK + 4 * (n & 1)
                r = [f"v_cvt_pk_bf16_f32 {v(pk + i)}, {v(O + 8 * j + 2 * i)}, {v(O + 8 * j + 2 * i + 1)}" for i in range(4)]
                if j % 2 == 0:
                    r.append(f"s_add_u32 {s(T + 3)}, {s(T + 6)}, {j * 2048 + qt * 256}")
                r.append(f"buffer_store_dwordx4 {v(pk, 4)}, {v(V_L8)}, {WS}, {s(T + 3)} offen offset:{(j % 2) * 2048}{LS}")
                return r
            P = V_P + 8
            prev = None
            for j in range(6):
                for et in (2 * j, 2 * j + 1):
                    seq.append((f"v_mfma_f32_16x16x32_bf16 {v(V_K + 4 * et, 4)}, {v(V_V + 4 * et, 4)}, {v(P, 4)}, 0", []))
                for et in (2 * j, 2 * j + 1):
                    seq.append((f"v_mfma_f32_16x16x16_bf16 {v(V_K + 4 * et, 4)}, {v(V_VM + 2 * j, 2)}, {v(P + 4 + 2 * (et & 1), 2)}, {v(V_K + 4 * et, 4)}", []))
                t = Task(4 * j + 5, outs(1, j, j))
                t.after, prev = prev, t
                tasks.append(t)
            mv = [Task(4 * (et >> 1) + 2, [f"v_mov_b32 {v(V_V + 4 * et + 2)}, {v(V_VM + et)}"]) for et in range(12)]
            pre_ = {}
            for et in range(12):
                seq.append((f"v_mfma_f32_16x16x32_bf16 {v(V_Q + 4 * et, 4)}, {v(V_V + 4 * et, 4)}, {v(V_P, 4)}, 0", []))

                def chk(et=et):
                    assert not mv[et].items
                pre_[24 + et] = chk
                if et & 1:
                    t = Task(24 + et + 2, outs(0, et >> 1, et >> 1))
                    t.after, prev = prev, t
                    tasks.append(t)
            sched(A, Lds(A), seq, mv + tasks, pre=pre_, budget=12, nvalu=2)
            st(5)
            A("s_waitcnt vmcnt(0)")
            flag_store(A, S_FADDR, LS)
            st(6)
    else:
        Zs = []
        for qt in range(2):
            E, O = V_SM + qt * 8, V_SM + qt * 8 + 4
            for k in (0, 2):
                A(f"v_permlane32_swap_b32 {v(E + k)}, {v(E + k + 1)}")
                A(f"v_permlane32_swap_b32 {v(O + k)}, {v(O + k + 1)}")
            A(f"v_add_f32 {v(E)}, {v(E)}, {v(O + 1)}")
            A(f"v_add_f32 {v(E + 1)}, {v(E + 2)}, {v(O + 3)}")
            Zs.append([E, E + 1])
        roundscale(Zs[0] + Zs[1])
        for qt in range(2):
            X = [V_SX + i for i in range(4)] if qt == 0 else [V_SX + 4 + i for i in range(8)]
            S = X + Zs[qt]
            m, t2 = V_T + 2 * qt, V_T + 2 * qt + 1
            A(f"v_max3_f32 {v(m)}, {v(S[0])}, {v(S[1])}, {v(S[2])}")
            rest = S[3:]
            while rest:
                if len(rest) >= 2:
                    A(f"v_max3_f32 {v(m)}, {v(m)}, {v(rest[0])}, {v(rest[1])}")
                    rest = rest[2:]
                else:
                    A(f"v_max_f32 {v(m)}, {v(m)}, {v(rest[0])}")
                    rest = []
            xreduce(A, "v_max_f32", m, t2)
            A(f"v_mul_f32 {v(m)}, {s(S_L2E)}, {v(m)}")
            for x in S:
                A(f"v_fma_f32 {v(x)}, {v(x)}, {s(S_L2E)}, -{v(m)}")
            for x in S:
                A(f"v_exp_f32 {v(x)}, {v(x)}")
            A(f"v_add_f32 {v(m)}, {v(S[0])}, {v(S[1])}")
            for x in S[2:]:
                A(f"v_add_f32 {v(m)}, {v(m)}, {v(x)}")
            xreduce(A, "v_add_f32", m, t2)
            A(f"v_rcp_f32 {v(m)}, {v(m)}")
            for x in S:
                A(f"v_mul_f32 {v(x)}, {v(x)}, {v(m)}")
            P = V_P + 8 * qt
            A(f"v_cvt_pk_bf16_f32 {v(P)}, {v(X[0])}, {v(X[1])}")
            A(f"v_cvt_pk_bf16_f32 {v(P + 1)}, {v(X[2])}, {v(X[3])}")
            if qt == 0:
                A(f"v_mov_b32 {v(P + 2)}, 0")
                A(f"v_mov_b32 {v(P + 3)}, 0")
            else:
                A(f"v_cvt_pk_bf16_f32 {v(P + 2)}, {v(X[4])}, {v(X[5])}")
                A(f"v_cvt_pk_bf16_f32 {v(P + 3)}, {v(X[6])}, {v(X[7])}")
            Z = Zs[qt]
            if cfg.c2:
                A(f"v_cvt_pk_bf16_f32 {v(P + 4)}, {v(Z[0])}, {v(Z[1])}")
                A(f"v_mov_b32 {v(P + 5)}, 0")
                A(f"v_mov_b32 {v(P + 6)}, 0")
                A(f"v_cvt_pk_bf16_f32 {v(P + 7)}, {v(Z[0])}, {v(Z[1])}")
                continue
            A(f"v_mov_b32 {v(Z[0] + 2)}, {v(Z[0])}")
            A(f"v_mov_b32 {v(Z[0] + 3)}, {v(Z[1])}")
            A(f"v_permlane32_swap_b32 {v(Z[0])}, {v(Z[0] + 2)}")
            A(f"v_permlane32_swap_b32 {v(Z[1])}, {v(Z[0] + 3)}")
            A(f"v_cvt_pk_bf16_f32 {v(Z[0])}, {v(Z[0])}, {v(Z[0] + 2)}")
            A(f"v_cvt_pk_bf16_f32 {v(Z[1])}, {v(Z[1])}, {v(Z[0] + 3)}")
            for k in range(2):
                A(f"v_cndmask_b32 {v(P + 4 + k)}, 0, {v(Z[k])}, {s(S_ML, 2)}")
                A(f"v_cndmask_b32 {v(P + 6 + k)}, {v(Z[k])}, 0, {s(S_ML, 2)}")
        A(f"s_waitcnt vmcnt({1 if cfg.asm else 0})")
        A(f"s_add_u32 {s(T + 6)}, {s(T + 6)}, {OX}")
        for qt in range(2):
            O = V_Q if qt == 0 else V_K
            P = V_P + 8 * qt
            for et in range(12):
                A(f"v_mfma_f32_16x16x32_bf16 {v(O + 4 * et, 4)}, {v(V_V + 4 * et, 4)}, {v(P, 4)}, 0")
            for et in range(12):
                A(f"v_mfma_f32_16x16x16_bf16 {v(O + 4 * et, 4)}, {v(V_VM + 2 * (et >> 1), 2)}, {v(P + 4 + 2 * (et & 1), 2)}, {v(O + 4 * et, 4)}")
        def o_out(LS):
            for qt in range(2):
                O = V_Q if qt == 0 else V_K
                for j in range(6):
                    pk = V_PK + 4 * (j & 1)
                    for i in range(4):
                        A(f"v_cvt_pk_bf16_f32 {v(pk + i)}, {v(O + 8 * j + 2 * i)}, {v(O + 8 * j + 2 * i + 1)}")
                    if j % 2 == 0:
                        A(f"s_add_u32 {s(T + 3)}, {s(T + 6)}, {j * 2048 + qt * (256 if cfg.lin else 1024)}")
                    A(f"buffer_store_dwordx4 {v(pk, 4)}, {v(V_L8 if cfg.lin else V_L16)}, {WS}, {s(T + 3)} offen offset:{(j % 2) * 2048}{LS}")
            flag_addr(A, T, flag_row(F_O), S_FO if cfg.a2 == 2 else S_H)
            st(5)
            A("s_waitcnt vmcnt(0)")
            flag_store(A, T, LS)
            st(6)
    if cfg.oloc:
        A(f"s_cmp_lg_u32 {s(S_MODE)}, 0")
        A("s_cbranch_scc1 ATT_OS")
        o_out("")
        A("s_branch ATT_OJ")
        A.label("ATT_OS")
    o_out(" sc1")
    A.label("ATT_OJ")
    if cfg.xga == 4:
        A(f"s_add_u32 {s(S_FX)}, {s(S_FX)}, 1")
    elif not cfg.xt:
        A(f"s_add_u32 {s(S_XG)}, {s(S_XG)}, {XG2_STEP * (2 if cfg.a2 else 1) if cfg.c2 else XG_STEP}")
        A(f"s_add_u32 {s(S_FX)}, {s(S_FX)}, {FXG2_STEP * (2 if cfg.a2 else 1) if cfg.c2 else FXG_STEP}")
    A(f"s_add_u32 {s(S_S)}, {s(S_S)}, {2 if cfg.a2 else 1}")
    A(f"s_cmp_lt_u32 {s(S_S)}, 64")
    A("s_cbranch_scc1 ATT_LOOP")
    st.dump(83, T, V_T)
    A("s_endpgm")


def gen_r1(A, cfg, nwg):
    V_XO, V_SO, V_SO3, V_XR, V_LWA, V_LRA, V_FO2 = 16, 17, 18, 19, 20, 21, 22
    V_ST = 24
    V_A = 32
    S_G3, S_KEEP, S_TQ = S_K, S_K + 1, S_K + 2
    HUGE = 0x80000000
    A.label("ROLE_R1")
    S_LAY = 80
    NKG = 4 if cfg.g3 & 16 else 6

    def row_of(A, dst, rl, rs, base):
        if not cfg.g3 & 16:
            return globals()["row_of"](A, dst, rl, rs, base)
        A(f"s_lshl_b32 {s(dst)}, {s(rl)}, 6")
        A(f"s_add_u32 {s(dst)}, {s(dst)}, {s(rs)}")
        A(f"s_mul_i32 {s(dst)}, {s(dst)}, 640")
        A(f"s_add_u32 {s(dst)}, {s(dst)}, {FWOP2}")
    if cfg.r2:
        A(f"s_lshr_b32 {s(S_LAY)}, {s(S_ROLE)}, 3")
        A(f"s_and_b32 {s(S_ROLE)}, {s(S_ROLE)}, 7")

    def item_of(A, i_reg, rl, rs, *a_):
        if not cfg.r2:
            return globals()["item_of"](A, i_reg, rl, rs, *a_)
        A(f"s_mov_b32 {s(rl)}, {s(S_LAY)}")
        A(f"s_sub_u32 {s(rs)}, {s(i_reg)}, 64")
    base_setup(A)
    dq, g_, c_ = V_T, V_T + 1, V_T + 2
    A(f"v_lshrrev_b32 {v(dq)}, 4, {v(V_LANE)}")
    A(f"v_bfe_u32 {v(g_)}, {v(V_LANE)}, 2, 2")
    A(f"v_and_b32 {v(c_)}, 3, {v(V_LANE)}")
    A(f"s_lshr_b32 {s(T)}, {s(S_ROLE)}, 2")
    A(f"s_lshl_b32 {s(S_TQ)}, {s(T)}, 10")
    A(f"s_and_b32 {s(T + 1)}, {s(S_ROLE)}, 3")
    A(f"s_lshl_b32 {s(T)}, {s(T + 1)}, 8")
    A(f"s_add_u32 {s(S_TQ)}, {s(S_TQ)}, {s(T)}")
    A(f"v_lshrrev_b32 {v(V_T + 3)}, 1, {v(dq)}")
    A(f"v_lshlrev_b32 {v(V_SO3)}, 11, {v(V_T + 3)}")
    A(f"v_add_u32 {v(V_T + 3)}, {s(T + 1)}, {v(g_)}")
    A(f"v_and_b32 {v(V_T + 3)}, 3, {v(V_T + 3)}")
    A(f"v_lshl_add_u32 {v(V_SO3)}, {v(V_T + 3)}, 6, {v(V_SO3)}")
    A(f"v_lshl_add_u32 {v(V_SO3)}, {v(c_)}, 4, {v(V_SO3)}")
    A(f"v_add_u32 {v(V_SO3)}, {s(S_TQ)}, {v(V_SO3)}")
    A(f"v_and_b32 {v(V_T + 3)}, 1, {v(dq)}")
    A(f"v_lshl_add_u32 {v(V_XO)}, {v(V_T + 3)}, 3, {v(V_SO3)}")
    A(f"v_lshl_add_u32 {v(V_SO)}, {v(V_T + 3)}, 14, {v(V_SO3)}")
    A(f"s_lshl_b32 {s(T)}, {s(S_ROLE)}, 2")
    A(f"v_add_u32 {v(V_T + 3)}, {s(T)}, {v(c_)}")
    A(f"v_mul_u32_u24 {v(V_XR)}, 1280, {v(V_T + 3)}")
    A(f"v_lshl_add_u32 {v(V_XR)}, {v(dq)}, 5, {v(V_XR)}")
    A(f"v_lshl_add_u32 {v(V_XR)}, {v(g_)}, 3, {v(V_XR)}")
    A(f"v_lshlrev_b32 {v(V_LRA)}, 5, {v(c_)}")
    A(f"s_lshl_b32 {s(T)}, {s(S_WAVE)}, 3")
    A(f"v_add_u32 {v(V_LWA)}, {s(T)}, {v(V_LRA)}")
    A(f"v_min_u32 {v(V_FO)}, {39 if cfg.g3 & 16 else 59}, {v(V_LANE)}")
    A(f"v_lshlrev_b32 {v(V_FO)}, 3, {v(V_FO)}")
    if cfg.g3 & 16:
        A(f"s_lshr_b32 {s(T)}, {s(S_ROLE)}, 2")
        A(f"s_mul_i32 {s(T)}, {s(T)}, 320")
        A(f"v_add_u32 {v(V_FO)}, {s(T)}, {v(V_FO)}")
    A(f"s_cmp_lt_u32 {s(S_WAVE)}, 2")
    A(f"s_cselect_b32 {s(S_G3)}, 0, {HUGE}")
    A(f"s_cselect_b32 {s(S_KEEP)}, 1.0, 0")
    init_barrier_arrive(A, V_T)

    lane_reduce, sums, norm, store_pair = row_helpers(A)
    if cfg.a2 == 2:
        numa_probe(A, cfg, S_LAY)
        init_barrier_wait(A, V_T, nwg, cfg)
    else:
        if cfg.r2:
            A(f"s_cmp_eq_u32 {s(S_LAY)}, 0")
            A("s_cbranch_scc1 R1_R0")
            init_barrier_wait(A, V_T, nwg, cfg)
            A("s_branch R1_GO")
            A.label("R1_R0")
        A(f"s_mov_b32 {s(T + 6)}, {s(S_IDX)}")
        gen_r0(A, cfg, nwg, T + 6, "R")
    A.label("R1_GO")
    st = Stamper(A, cfg, 84, 10)
    A(f"s_mov_b32 s83, {s(S_GID)}")
    st.init()

    SETS = (V_A, V_A + 80)
    V_XU = V_A + 160
    V_PM, V_PY, V_PZ = V_A + 172, V_A + 180, V_A + 188
    V_LR = V_A + 196
    V_FW = V_A + 204
    V_RDY = V_A + 206

    def r1_loads(base, rl, rs, A=A, TS=T + 3):
        A(f"s_mul_i32 {s(T + 6)}, {s(rs)}, {WOP_SEG}")
        A(f"s_mul_i32 {s(T)}, {s(S_ROLE)}, 10240")
        A(f"s_add_u32 {s(T + 6)}, {s(T + 6)}, {s(T)}")
        A(f"s_lshl_b32 {s(T)}, {s(S_WAVE)}, 10")
        A(f"s_add_u32 {s(T + 6)}, {s(T + 6)}, {s(T)}")
        A(f"s_add_u32 {s(T + 6)}, {s(T + 6)}, {WOP}")
        A(f"s_mul_i32 {s(T)}, {s(rs)}, {XSEG}")
        A(f"s_add_u32 {s(T)}, {s(T)}, {X0R}")
        A(f"s_mul_i32 {s(T + 1)}, {s(rs)}, {XSEGS}")
        A(f"s_add_u32 {s(T + 1)}, {s(T + 1)}, {XIN + 64 * XSEGS}")
        A(f"s_cmp_eq_u32 {s(rl)}, 0")
        A(f"s_cselect_b32 {s(T + 5)}, {s(T)}, {s(T + 1)}")
        A(f"s_lshl_b32 {s(T)}, {s(S_WAVE)}, 12")
        A(f"s_add_u32 {s(T + 5)}, {s(T + 5)}, {s(T)}")
        if not cfg.r1h:
            for G in range(3):
                A(f"s_add_u32 {s(TS)}, {s(T + 5)}, {G * 16384}")
                if G == 2:
                    A(f"s_add_u32 {s(TS)}, {s(TS)}, {s(S_G3)}")
                A(f"buffer_load_dwordx2 {v(base + 72 + 2 * G, 2)}, {v(V_XO)}, {WS}, {s(TS)} offen sc1")
            for kg in range(NKG):
                for G in range(3):
                    A(f"s_add_u32 {s(TS)}, {s(T + 6)}, {kg * 81920 + G * 4096}")
                    if G == 2:
                        A(f"s_add_u32 {s(TS)}, {s(TS)}, {s(S_G3)}")
                    A(f"buffer_load_dwordx4 {v(base + kg * 12 + G * 4, 4)}, {v(V_L16)}, {WS}, {s(TS)} offen sc1")
        else:
            l2, l3 = A.newlabel("g2"), A.newlabel("g3")
            A(f"s_cmp_lt_u32 {s(S_WAVE)}, 2")
            A(f"s_cbranch_scc1 {l2}")
            for i in range(4):
                A(f"v_mov_b32 {v(base + 8 + i)}, 0")
            A(f"s_branch {l3}")
            A.label(l2)
            A(f"s_add_u32 {s(TS)}, {s(T + 5)}, {2 * 16384}")
            A(f"buffer_load_dwordx2 {v(base + 76, 2)}, {v(V_XO)}, {WS}, {s(TS)} offen sc1")
            for kg in range(NKG):
                A(f"s_add_u32 {s(TS)}, {s(T + 6)}, {kg * 81920 + 2 * 4096}")
                A(f"buffer_load_dwordx4 {v(base + kg * 12 + 8, 4)}, {v(V_L16)}, {WS}, {s(TS)} offen sc1")
            A.label(l3)
            for G in range(2):
                A(f"s_add_u32 {s(TS)}, {s(T + 5)}, {G * 16384}")
                A(f"buffer_load_dwordx2 {v(base + 72 + 2 * G, 2)}, {v(V_XO)}, {WS}, {s(TS)} offen sc1")
            for kg in range(NKG):
                for G in range(2):
                    A(f"s_add_u32 {s(TS)}, {s(T + 6)}, {kg * 81920 + G * 4096}")
                    A(f"buffer_load_dwordx4 {v(base + kg * 12 + G * 4, 4)}, {v(V_L16)}, {WS}, {s(TS)} offen sc1")

    def pks(b):
        return [b, b + 1, b + 2, b + 3, b + 4, b + 5]

    S_O1, S_O3 = S_K + 3, S_K + 4

    S_YD = S_K + 5

    def emit_out(b, buf):
        A(f"v_mov_b32 {v(b + 6)}, {v(b + 4)}")
        A(f"v_mov_b32 {v(b + 7)}, {v(b + 5)}")
        A(f"s_add_u32 {s(T + 3)}, {s(S_O1)}, {buf}")
        if buf == YB:
            A(f"s_add_u32 {s(T + 3)}, {s(T + 3)}, {s(S_YD)}")
        store_pair(b, V_SO, T + 3)
        A(f"s_add_u32 {s(T + 3)}, {s(S_O3)}, {buf}")
        if buf == YB:
            A(f"s_add_u32 {s(T + 3)}, {s(T + 3)}, {s(S_YD)}")
        store_pair(b + 4, V_SO3, T + 3)

    def r1_full(cur, nxt, sx, other):
        V_PL, V_XX = cur, cur + 72
        X = [V_PL + i for i in range(12)]

        def wg_stats(area):
            sums(X, V_ST)
            lane_reduce(V_ST)
            A(f"ds_write_b64 {v(V_LWA)}, {v(V_ST, 2)} offset:{area}")
            A("s_waitcnt lgkmcnt(0)")
            A("s_barrier")
            A(f"ds_read_b128 {v(V_LR, 4)}, {v(V_LRA)} offset:{area}")
            A(f"ds_read_b128 {v(V_LR + 4, 4)}, {v(V_LRA)} offset:{area + 16}")

        def wg_stats_fin():
            A("s_waitcnt lgkmcnt(0)")
            A(f"v_pk_add_f32 {v(V_LR, 2)}, {v(V_LR, 2)}, {v(V_LR + 2, 2)}")
            A(f"v_pk_add_f32 {v(V_LR + 4, 2)}, {v(V_LR + 4, 2)}, {v(V_LR + 6, 2)}")
            A(f"v_pk_add_f32 {v(V_ST, 2)}, {v(V_LR, 2)}, {v(V_LR + 4, 2)}")
            finish_stats(A, V_ST, V_ST + 1, V_T)

        A.label("R1_" + sx)
        A(f"s_add_u32 {s(T + 6)}, {s(S_I)}, 1")
        A(f"s_min_u32 {s(T + 6)}, {s(T + 6)}, 127")
        item_of(A, T + 6, S_NL, S_NS, cfg.LAG + cfg.dlt, 0, T)
        row_of(A, T + 7, S_NL, S_NS, flag_row(F_WOP))
        if cfg.r1e != 1:
            A(f"buffer_load_dwordx2 {v(V_FW, 2)}, {v(V_FO)}, {WS}, {s(T + 7)} offen sc1")
        A(f"s_lshl_b32 {s(T)}, {s(S_L)}, 6")
        A(f"s_add_u32 {s(T)}, {s(T)}, {s(S_S)}")
        A(f"s_mul_i32 {s(S_O1)}, {s(T)}, {XSEG}")
        A(f"s_mul_i32 {s(S_YD)}, {s(T)}, {XSEGS - XSEG}")
        A(f"s_lshl_b32 {s(T)}, {s(S_WAVE)}, 12")
        A(f"s_add_u32 {s(S_O1)}, {s(S_O1)}, {s(T)}")
        A(f"s_add_u32 {s(S_O3)}, {s(S_O1)}, {8 * 4096}")
        A(f"s_add_u32 {s(S_O3)}, {s(S_O3)}, {s(S_G3)}")
        lp, lj = A.newlabel("r1p"), A.newlabel("r1j")

        def ladder(y):
            PG = 2 if cfg.r1h else 3
            A(f"s_waitcnt vmcnt({PG * NKG + y})")
            for i in range(6):
                A(f"v_lshlrev_b32 {v(V_XU + 2 * i)}, 16, {v(V_XX + i)}")
                A(f"v_and_b32 {v(V_XU + 2 * i + 1)}, 0xffff0000, {v(V_XX + i)}")
            for kg in range(1, NKG):
                A(f"s_waitcnt vmcnt({PG * (NKG - 1 - kg) + y})")
                for i in range(0, 12, 2):
                    A(f"v_pk_add_f32 {v(V_PL + i, 2)}, {v(V_PL + i, 2)}, {v(V_PL + kg * 12 + i, 2)}")
        A(f"s_cmp_eq_u32 {s(S_DEF)}, 0")
        A(f"s_cbranch_scc1 {lp}")
        ladder(0 if cfg.r1e == 1 else 1)
        A(f"s_branch {lj}")
        A.label(lp)
        ladder(cfg.r1e if cfg.r1e else 7)
        A.label(lj)
        st(4)
        for i in range(0, 12, 2):
            rnd2(A, V_T, X[i], X[i + 1])
        for i in range(0, 12, 2):
            A(f"v_pk_add_f32 {v(X[i], 2)}, {v(X[i], 2)}, {v(V_XU + i, 2)}")
        for i in range(0, 12, 2):
            rnd2(A, V_PM + i // 2, X[i], X[i + 1])
        wg_stats(128 if (cfg.zf and sx == "B") else 0)
        if not cfg.r1e:
            nof, nod = A.newlabel("nof"), A.newlabel("nod")
            st(5)
            A("s_waitcnt vmcnt(0)")
            st(6)
            A(f"s_cmp_eq_u32 {s(S_FADDR)}, {DUMMY}")
            A(f"s_cbranch_scc1 {nof}")
            flag_store(A, S_FADDR)
            A.label(nof)
            A(f"v_min_u32 {v(V_FW)}, {v(V_FW)}, {v(V_FW + 1)}")
            A(f"v_cmp_eq_u32 vcc, 0, {v(V_FW)}")
            A(f"s_mov_b32 {s(S_DEF)}, 1")
            A(f"s_cbranch_vccnz {nod}")
            A(f"s_mov_b32 {s(S_DEF)}, 0")
            r1_loads(nxt, S_NL, S_NS)
            A.label(nod)
        if cfg.r1e == 2:
            assert not cfg.r1h
            late = A.newlabel("late")
            A("s_waitcnt vmcnt(0)")
            A(f"v_min_u32 {v(V_FW)}, {v(V_FW)}, {v(V_FW + 1)}")
            A(f"v_cmp_eq_u32 vcc, 0, {v(V_FW)}")
            A(f"s_cbranch_vccnz {late}")
            E = Capture()
            lr, sm, nm_, sp = row_helpers(E)

            def fin(E=E):
                E("s_waitcnt lgkmcnt(0)")
                E(f"v_pk_add_f32 {v(V_LR, 2)}, {v(V_LR, 2)}, {v(V_LR + 2, 2)}")
                E(f"v_pk_add_f32 {v(V_LR + 4, 2)}, {v(V_LR + 4, 2)}, {v(V_LR + 6, 2)}")
                E(f"v_pk_add_f32 {v(V_ST, 2)}, {v(V_LR, 2)}, {v(V_LR + 4, 2)}")
                finish_stats(E, V_ST, V_ST + 1, V_T)

            def out(b, buf, E=E):
                E(f"v_mov_b32 {v(b + 6)}, {v(b + 4)}")
                E(f"v_mov_b32 {v(b + 7)}, {v(b + 5)}")
                E(f"s_add_u32 {s(T + 3)}, {s(S_O1)}, {buf}")
                sp(b, V_SO, T + 3)
                E(f"s_add_u32 {s(T + 3)}, {s(S_O3)}, {buf}")
                sp(b + 4, V_SO3, T + 3)
            fin()
            nm_(X, pks(V_PY), V_ST)
            for i in range(8, 12):
                E(f"v_mul_f32 {v(X[i])}, {s(S_KEEP)}, {v(X[i])}")
            sm(X, V_ST)
            lr(V_ST)
            E(f"ds_write_b64 {v(V_LWA)}, {v(V_ST, 2)} offset:128")
            E("s_waitcnt lgkmcnt(0)")
            E("s_barrier")
            E(f"ds_read_b128 {v(V_LR, 4)}, {v(V_LRA)} offset:128")
            E(f"ds_read_b128 {v(V_LR + 4, 4)}, {v(V_LRA)} offset:144")
            out(V_PM, XM)
            out(V_PY, YB)
            fin()
            nm_(X, pks(V_PZ), V_ST)
            out(V_PZ, ZB)
            Ld = Capture()
            r1_loads(nxt, S_NL, S_NS, Ld, T + 2)
            grp, cur_ = [], []
            for x in Ld.l:
                cur_.append(x)
                if x.startswith("buffer_load"):
                    grp.append(cur_)
                    cur_ = []
            if cfg.wgp2:
                rdy_set(A, V_RDY, 1, T)
            step = max(1, (len(E.l) * 2 // 3) // len(grp))
            for n, x in enumerate(E.l):
                if n % step == 0 and grp:
                    for y in grp.pop(0):
                        A(y)
                A(x)
            assert not grp
            flag_addr(A, S_FADDR, flag_row(F_R1))
            A(f"s_add_u32 {s(S_I)}, {s(S_I)}, 1")
            A(f"s_cmp_eq_u32 {s(S_I)}, 128")
            A("s_cbranch_scc1 R1_END")
            A(f"s_mov_b32 {s(S_L)}, {s(S_NL)}")
            A(f"s_mov_b32 {s(S_S)}, {s(S_NS)}")
            A(f"s_mov_b32 {s(S_DEF)}, 0")
            A("s_waitcnt vmcnt(0)")
            flag_store(A, S_FADDR)
            A(f"s_branch R1_{other}")
            A.label(late)
        if not cfg.zf:
            wg_stats_fin()
            norm(X, pks(V_PY), V_ST)
            for i in range(8, 12):
                A(f"v_mul_f32 {v(X[i])}, {s(S_KEEP)}, {v(X[i])}")
            wg_stats(128)
            if cfg.r1e:
                A(f"buffer_load_dwordx2 {v(V_FW, 2)}, {v(V_FO)}, {WS}, {s(T + 7)} offen sc1")
            emit_out(V_PM, XM)
            emit_out(V_PY, YB)
            wg_stats_fin()
            norm(X, pks(V_PZ), V_ST)
            emit_out(V_PZ, ZB)
        else:
            A(f"buffer_load_dwordx2 {v(V_FW, 2)}, {v(V_FO)}, {WS}, {s(T + 7)} offen sc1")
            emit_out(V_PM, XM)
            A("s_waitcnt lgkmcnt(0)")
            A(f"v_pk_add_f32 {v(V_LR, 2)}, {v(V_LR, 2)}, {v(V_LR + 2, 2)}")
            A(f"v_pk_add_f32 {v(V_LR + 4, 2)}, {v(V_LR + 4, 2)}, {v(V_LR + 6, 2)}")
            A(f"v_pk_add_f32 {v(V_ST, 2)}, {v(V_LR, 2)}, {v(V_LR + 4, 2)}")
            finish_stats(A, V_ST, V_ST + 1, V_T, keep=V_ST + 4)
            norm(X, pks(V_PY), V_ST)
            emit_out(V_PY, YB)
            A(f"v_sub_f32 {v(V_ST + 4)}, {v(V_ST + 4)}, {v(V_ST)}")
            A(f"v_mul_f32 {v(V_ST + 5)}, {v(V_ST + 5)}, {v(V_ST + 1)}")
            A(f"v_mul_f32 {v(V_ST + 4)}, {v(V_ST + 4)}, {v(V_ST + 1)}")
            A(f"v_mul_f32 {v(V_ST + 5)}, {v(V_ST + 5)}, {v(V_ST + 1)}")
            finish_stats(A, V_ST + 4, V_ST + 5, V_T, scaled=True)
            A(f"s_lshl_b32 {s(T)}, {s(S_WAVE)}, 12")
            A(f"s_sub_u32 {s(T + 3)}, {s(S_O1)}, {s(T)}")
            A(f"s_add_u32 {s(T + 3)}, {s(T + 3)}, {s(S_YD)}")
            A(f"s_lshl_b32 {s(T)}, {s(S_ROLE)}, 5")
            A(f"s_add_u32 {s(T + 3)}, {s(T + 3)}, {s(T)}")
            A(f"s_add_u32 {s(T + 3)}, {s(T + 3)}, {YB + 40960}")
            A(f"v_lshlrev_b32 {v(V_T)}, 3, {v(V_LANE)}")
            lz = A.newlabel("zs")
            A(f"s_cmp_lg_u32 {s(S_WAVE)}, 3")
            A(f"s_cbranch_scc1 {lz}")
            A("s_mov_b64 exec, 15")
            A(f"buffer_store_dwordx2 {v(V_ST + 4, 2)}, {v(V_T)}, {WS}, {s(T + 3)} offen sc1")
            A("s_mov_b64 exec, -1")
            A.label(lz)
        flag_addr(A, S_FADDR, flag_row(F_R1))
        st(7)
        A(f"s_add_u32 {s(S_I)}, {s(S_I)}, 1")
        A(f"s_cmp_eq_u32 {s(S_I)}, 128")
        A("s_cbranch_scc1 R1_END")
        A(f"s_mov_b32 {s(S_L)}, {s(S_NL)}")
        A(f"s_mov_b32 {s(S_S)}, {s(S_NS)}")
        if cfg.r1e:
            nrdy = A.newlabel("nr")
            A(f"s_waitcnt vmcnt({4 if cfg.zf else 6})")
            A(f"v_min_u32 {v(V_FW)}, {v(V_FW)}, {v(V_FW + 1)}")
            A(f"v_cmp_eq_u32 vcc, 0, {v(V_FW)}")
            A(f"s_cbranch_vccnz {nrdy}")
            if cfg.wgp2:
                rdy_set(A, V_RDY, 0, T)
            r1_loads(nxt, S_L, S_S)
            A(f"s_waitcnt vmcnt({2 + 2 * NKG if cfg.r1h else 3 + 3 * NKG})")
            flag_store(A, S_FADDR)
            A(f"s_mov_b32 {s(S_DEF)}, 0")
            A(f"s_branch R1_{other}")
            A.label(nrdy)
            A(f"s_mov_b32 {s(S_DEF)}, 1")
        else:
            A(f"s_cmp_eq_u32 {s(S_DEF)}, 0")
            A(f"s_cbranch_scc1 R1_{other}")
        A("s_waitcnt vmcnt(0)")
        flag_store(A, S_FADDR)
        A(f"s_mov_b32 {s(S_FADDR)}, {DUMMY}")
        st(8)
        row_of(A, T + 7, S_L, S_S, flag_row(F_WOP))
        if cfg.wgp2:
            wg_wait(A, cfg, V_RDY, T + 7, T, vv=V_FW, wide=True)
        else:
            flag_block(A, T + 7, vv=V_FW, wide=True, sleep=1)
        st(9)
        r1_loads(nxt, S_L, S_S)
        A(f"s_branch R1_{other}")

    A(f"s_mov_b32 {s(S_I)}, {64 if cfg.r2 else 0}")
    A(f"s_mov_b32 {s(S_DEF)}, 1")
    if cfg.wgp2:
        rdy_init(A, cfg, V_RDY, 1024)
    A(f"s_mov_b32 {s(S_FADDR)}, {DUMMY}")
    if cfg.r1h:
        for b_ in SETS:
            for kg in range(NKG):
                for i in range(4):
                    A(f"v_mov_b32 {v(b_ + kg * 12 + 8 + i)}, 0")
            A(f"v_mov_b32 {v(b_ + 76)}, 0")
            A(f"v_mov_b32 {v(b_ + 77)}, 0")
    item_of(A, S_I, S_L, S_S, cfg.LAG + cfg.dlt, 0, T)
    row_of(A, T + 7, S_L, S_S, flag_row(F_WOP))
    flag_block(A, T + 7, vv=V_FW, wide=True, sleep=1)
    r1_loads(SETS[0], S_L, S_S)
    r1_full(SETS[0], SETS[1], "A", "B")
    r1_full(SETS[1], SETS[0], "B", "A")
    A.label("R1_END")
    A("s_waitcnt vmcnt(0)")
    flag_store(A, S_FADDR)
    st.dump(83, T, V_T)
    A("s_endpgm")
```

```python
from stations32 import *
import stations32 as S32
from chain2 import Lds, Task, sched, groups, GAP

HUGE = 0x80000000
S_U, S_UL, S_US, S_UF, S_UN = 32, 33, 34, 35, 36
S_GO, S_NGO, S_EGO, S_FA1 = 37, 38, 39, 59
S_FA2 = S_FADDR
S_BM, S_IM = 76, 78
F_D4 = F_WOP
NH, NX, NG = 8, 8, 4


def lines(fn_owner, fn):
    c = fn_owner.capture(fn)
    out = []
    for x in c.l:
        out.append(x)
    return out


def lstore(A, text):
    l1, l2 = A.newlabel("ls"), A.newlabel("ls")
    A(f"s_cmp_lg_u32 {s(S_MODE)}, 0")
    A.nf(f"s_cbranch_scc0 {l1}")
    for x in text:
        A(x + " sc1")
    A.nf(f"s_branch {l2}")
    A.label_nf(l1)
    for x in text:
        A(x)
    A.label_nf(l2)


def loc(A, local, insts):
    if local:
        lstore(A, insts)
    else:
        for x in insts:
            A(x + " sc1" if x.startswith("buffer_store") else x)


def flag_put(A, addr, local=False):
    if TSFLAG[0]:
        A(f"s_memrealtime {s(98, 2)}")
        A("s_waitcnt lgkmcnt(0)")
        A(f"s_or_b32 s98, s98, 1")
        A(f"v_mov_b32 {v(V_ONE)}, s98")
    A("s_mov_b64 exec, 1")
    loc(A, local, [f"buffer_store_dword {v(V_ONE)}, {v(V_L16)}, {WS}, {s(addr)} offen"])
    A("s_mov_b64 exec, -1")


def mark_ring(A, cfg, base):
    if cfg.xt != 2:
        return
    for i in range(4):
        A(f"v_mov_b32 {v(24 + i)}, -1")
    A(f"s_add_u32 {s(T)}, {s(S_ROLE)}, {base}")
    A(f"s_lshl2_add_u32 {s(T)}, {s(T)}, {s(S_WAVE)}")
    A(f"s_mul_i32 {s(T)}, {s(T)}, {22 * 1024}")
    assert 288 * 22 * 1024 >= 32 * XG2_STEP
    for b in range(22):
        if b % 4 == 0:
            A(f"s_add_u32 {s(T + 1)}, {s(T)}, {XG + b * 1024}")
        A(f"buffer_store_dwordx4 {v(24, 4)}, {v(V_L16)}, {WS}, {s(T + 1)} offen offset:{(b % 4) * 1024} sc1")


def wait_first(A, cfg, nwg, base):
    if cfg.wpf:
        A(f"v_lshlrev_b32 {v(V_T + 4)}, 7, {v(V_LANE)}")
        A(f"s_add_u32 {s(T)}, {s(S_ROLE)}, {base}")
        A(f"s_lshl2_add_u32 {s(T)}, {s(T)}, {s(S_WAVE)}")
        A(f"s_lshl_b32 {s(T)}, {s(T)}, 13")
        for bit, ptr in ((1, P_WO), (2, P_WV), (4, P_WK), (8, P_WQ)):
            if cfg.wpf & bit:
                make_srd(A, SRD_W, ptr, 640 * 12288)
                for k in range(4):
                    A(f"s_add_u32 {s(T + 1)}, {s(T)}, {k * 288 * 8192}")
                    A(f"buffer_load_dword {v(V_T + 5)}, {v(V_T + 4)}, {s(SRD_W, 4)}, {s(T + 1)} offen")
    init_barrier_wait(A, V_T, nwg, cfg)
    if cfg.lw == 2:
        A(f"s_mov_b32 {s(T + 7)}, {flag_row(F_XIN, 0, 63)}")
        A(f"v_mov_b32 {v(V_T + 4)}, 0")
        flag_block(A, T + 7, vo=V_T + 4)


class G3:
    R, D = 8, 7
    local_out = False
    V_IA = 16
    V_OA = 20
    V_RA = 22
    V_FR = 24
    V_ACC = 56
    kd0, kdstep = 1, 2
    kf1 = 10
    ksmp = 0.5
    psleep = 4

    def acc(self, tl):
        return self.V_ACC + (self.aset * self.NT + tl) * 16

    def expose(self):
        return False

    def decode(self, A):
        A(f"s_min_u32 {s(T + 2)}, {s(S_U)}, 127")
        sv = self.A
        self.A = A
        self.item(T + 2, S_UL, S_US)
        self.flag_soff(S_UF, S_UL, S_US)
        self.A = sv

    def w0(self, fn):
        A = self.A
        lab = A.newlabel("w0")
        A(f"s_cmp_lg_u32 {s(S_WAVE)}, 0")
        A.nf(f"s_cbranch_scc1 {lab}")
        fn()
        A.label_nf(lab)

    def sample(self):
        self.w0(lambda: self.A(f"buffer_load_dword {v(V_FV)}, {v(V_FO)}, {WS}, {s(S_UF)} offen sc1"))

    def decide(self):
        A = self.A

        def f():
            A(f"v_cmp_eq_u32 vcc, 0, {v(V_FV)}")
            A(f"s_cmp_eq_u64 vcc, 0")
            A(f"s_cselect_b32 {s(S_UN)}, 0, {HUGE}")
            A(f"s_cmp_lt_u32 {s(S_U)}, 128")
            A(f"s_cselect_b32 {s(S_UN)}, {s(S_UN)}, {HUGE}")
            A(f"v_mov_b32 {v(self.V_RA + 1)}, {s(S_UN)}")
            A(f"ds_write_b32 {v(self.V_RA)}, {v(self.V_RA + 1)}")
        self.w0(f)

    def rd(self, k, b):
        return f"ds_read_b128 {v(self.V_FR + (k % self.R) * 4, 4)}, {v(self.V_IA + 2 * b + (k & 1))} offset:{(k >> 1) * 2048}"

    def dma_lines(self, guard):
        L = lines(self, lambda: self.dma(S_UL, S_US, T + 6 if guard else S_BUF))
        if guard:
            out = [f"s_sub_u32 {s(T + 6)}, {self.bufsz}, {s(S_BUF)}"]
            done = False
            for x in L:
                out.append(x)
                if not done and x.startswith(f"s_mul_i32 {s(T)}, {s(T)}") or (not done and x.startswith(f"s_mul_i32 {s(T)}, {s(S_US)}")):
                    out.append(f"s_add_u32 {s(T)}, {s(T)}, {s(S_GO)}")
                    done = True
            assert done
            L = out
        return L

    def gen(self):
        A, cfg = self.A, self.cfg
        nm = self.name
        A.label("ROLE_" + nm)
        base_setup(A)
        for k in range(2):
            chunk_addr(A, self.V_IA + k, k, self.pin)
            A(f"v_add_u32 {v(self.V_IA + 2 + k)}, {self.bufsz}, {v(self.V_IA + k)}")
            chunk_addr(A, self.V_OA + k, k, False)
        self.setup()
        self.init_stores()
        if self.order != "q":
            mark_ring(A, cfg, dict(W1=0, W2=5, W3=10, WO=32)[self.name])
        init_barrier_arrive(A, V_T)
        late = cfg.lw and self.order != "q"
        if late:
            wait_first(A, cfg, self.nwg, dict(W1=0, W2=5, W3=10, WO=32)[self.name])
        WL = WLoader(A, V_T, T + 3)
        self.weights(WL)
        WL.emit(V_LANE, self.while_loading())
        self.post_weights()
        A("s_barrier")
        if not late:
            init_barrier_wait(A, V_T, self.nwg, cfg)
        A(f"s_mov_b32 {s(S_I)}, 0")
        A(f"s_mov_b32 {s(S_U)}, 0")
        A(f"s_mov_b32 {s(S_BUF)}, 0")
        A(f"s_mov_b32 {s(S_FA1)}, {HUGE}")
        A(f"s_mov_b32 {s(S_FA2)}, {HUGE}")
        A(f"s_mov_b32 {s(S_EGO)}, {HUGE}")
        A(f"v_mov_b32 {v(self.V_RA)}, {2 * self.bufsz + 2048}")
        self.post_barrier()
        st = self.st = Stamper(A, cfg, 84, 8)
        A(f"s_mov_b32 s83, {s(S_GID)}")
        self.decode(A)
        st.init()
        nb = 2 if self.pipe else 1
        for b in range(nb):
            self.body(b, nb)
        A.label(nm + "_END")
        st.dump(83, T, V_T)
        A("s_endpgm")

    def post_barrier(self): pass
    def while_loading(self): return None
    def tail_tasks(self, L, kw): return []

    def swap_bufs(self):
        A = self.A
        A(f"s_sub_u32 {s(S_BUF)}, {self.bufsz}, {s(S_BUF)}")
        if not self.pipe:
            for k in range(2):
                A(f"v_swap_b32 {v(self.V_IA + k)}, {v(self.V_IA + 2 + k)}")

    def body(self, b, nb):
        A, cfg, st = self.A, self.cfg, self.st
        nm, NT, R, D = self.name, self.NT, self.R, self.D
        NS = 2 * self.nk
        o = (b + 1) % nb
        cur, nxt = (b, 1 - b) if self.pipe else (0, 1)
        A.label(f"{nm}_COLD{b}")
        lab = A.newlabel("cp")
        A(f"s_cmp_lg_u32 {s(S_WAVE)}, 0")
        A(f"s_cbranch_scc1 {lab}")
        sv = cfg.fsl
        cfg.fsl = self.psleep
        flag_block(A, S_UF)
        cfg.fsl = sv
        A.label(lab)
        A("s_barrier")
        st(6)
        for x in self.dma_lines(False):
            A(x)
        A.label(f"{nm}_CD{b}")
        A(f"s_mov_b32 {s(S_L)}, {s(S_UL)}")
        A(f"s_mov_b32 {s(S_S)}, {s(S_US)}")
        A(f"s_add_u32 {s(S_U)}, {s(S_U)}, 1")
        self.decode(A)
        self.sample()
        A("s_waitcnt vmcnt(0)")
        flag_put(A, S_FA1, self.local_out)
        A(f"s_mov_b32 {s(S_FA1)}, {HUGE}")
        self.decide()
        A("s_waitcnt lgkmcnt(0)")
        A("s_barrier")
        A(f"ds_read_b32 {v(self.V_RA + 1)}, {v(self.V_RA)}")
        for k in range(D):
            A(self.rd(k, cur))
        A(f"s_waitcnt lgkmcnt({D})")
        A(f"v_readfirstlane_b32 {s(S_GO)}, {v(self.V_RA + 1)}")
        st(7)
        A.label(f"{nm}_B{b}")
        L = Lds(A)
        L.q = [("F", k) for k in range(D)]
        self.aset = b if self.pipe else 0
        seq, rdt = [], []
        kbar = (NS - D) * NT
        for k in range(NS):
            for tl in range(NT):
                c = "0" if k == 0 else v(self.acc(tl), 16)
                fr = v(self.V_FR + (k % R) * 4, 4)
                w = self.wtxt(tl, k)
                x, y = (fr, w) if self.swap else (w, fr)
                need = [("F", k + 1)] if (tl == 0 and k % 2 == 0) else []
                seq.append((f"{MF} {v(self.acc(tl), 16)}, {x}, {y}, {c}", need))
            kk = k + D
            rdt.append(Task(k * NT, [(("F", kk), self.rd(kk % NS, cur if kk < NS else nxt))]))
        nvm = [0]

        def vm(x):
            def f():
                A(x)
                nvm[0] += 1
            return (cfg.vmc, f)

        def wrap(ls):
            out = []
            for x in groups([y for z in ls for y in z.split("\n")]):
                if x.startswith("buffer_"):
                    out.append(vm(x))
                elif x.startswith("ds_"):
                    out.append(("x", x))
                elif x.startswith("@wait"):
                    out.append((4, lambda: L.wait("x")))
                else:
                    out.append(x)
            return out
        early = wrap(lines(self, self.early))
        dl = wrap(self.dma_lines(True))
        tdma = Task(self.kd0, early + dl)
        tdma.vstep = self.kdstep
        dec = Capture()
        dec(f"s_mov_b32 {s(S_NL)}, {s(S_UL)}")
        dec(f"s_mov_b32 {s(S_NS)}, {s(S_US)}")
        dec(f"s_cmp_eq_u32 {s(S_GO)}, 0")
        dec(f"s_addc_u32 {s(S_U)}, {s(S_U)}, 0")
        self.decode(dec)
        tdma.items += wrap(dec.l)
        ksm = int(self.ksmp * NS * NT)

        def smp():
            assert not tdma.items
            self.sample()
        tsm = Task(ksm, [(28, smp)])
        tsm.after = tdma

        def f1():
            A(f"s_waitcnt vmcnt({nvm[0]})")
            flag_put(A, S_FA1, self.local_out)
            A(f"s_mov_b32 {s(S_FA1)}, {HUGE}")
            nvm[0] += 1
        tasks = [Task(self.kf1, [(28, f1)])]
        tepi = []
        if self.pipe:
            self.aset = 1 - b
            tepi += wrap(self.epi_lines(True))
            self.aset = b
        tpre = Task(0, wrap(lines(self, self.pre_mfma)), step=1)
        tasks.append(tpre)

        def wx():
            assert not tpre.items
            L.wait("x")
        tepi += [(4, wx)] + wrap(lines(self, self.mid)) + wrap(lines(self, self.save_item))
        tep = Task(2 if self.pipe else 12, tepi)
        kw = kbar - (3 if NT == 2 else 4) * NT

        def wpoint():
            assert not tdma.items and not tsm.items, (nm, len(tdma.items))
            assert not any(isinstance(i, tuple) and i[0] == cfg.vmc for i in tep.items), nm
            A("s_waitcnt vmcnt(0)")
            self.decide()

        def bar():
            assert not any(isinstance(i, tuple) for i in tep.items), (nm, len(tep.items))
            A(f"s_waitcnt lgkmcnt({min(len(L.q), 2)})")
            L.q = L.q[-2:]
            A("s_barrier")
            L.op("dw", f"ds_read_b32 {v(self.V_RA + 1)}, {v(self.V_RA)}")

        def f2():
            flag_put(A, S_FA2, self.local_out)
            A(f"s_mov_b32 {s(S_FA2)}, {HUGE}")

        def rdw():
            L.wait("dw")
            A(f"v_readfirstlane_b32 {s(S_NGO)}, {v(self.V_RA + 1)}")
        tail = []
        if self.pipe:
            tail.append(Task(kw, [(20, f2)]))
        tail.append(Task(kbar + 3 * NT, [(8, rdw)]))
        tail += self.tail_tasks(wrap, kw)
        sched(A, L, seq, rdt + tasks + [tdma, tsm, tep] + tail, pre={kw: wpoint, kbar: bar}, budget=24, nvalu=5)
        st(3)
        nf_, now = A.newlabel("nf"), A.newlabel("now")
        A(f"s_cmp_lg_u32 {s(S_GO)}, 0")
        A.nf(f"s_cbranch_scc1 {nf_}")

        def step():
            A(f"s_add_u32 {s(S_I)}, {s(S_I)}, 1")
            self.swap_bufs()
            A(f"s_mov_b32 {s(S_L)}, {s(S_NL)}")
            A(f"s_mov_b32 {s(S_S)}, {s(S_NS)}")
            A(f"s_mov_b32 {s(S_GO)}, {s(S_NGO)}")
        if self.pipe:
            if self.expose():
                A.nf(f"s_cbranch_scc1 {now}")
            A(f"s_mov_b32 {s(S_EGO)}, 0")
            step()
            A.nf(f"s_branch {nm}_B{o}")
        A.label(now)
        ntail = A.newlabel("nt")
        A(f"s_mov_b32 {s(S_DEF)}, 0")
        A(f"s_branch {ntail}")
        A.label(nf_)
        A(f"s_mov_b32 {s(S_DEF)}, 2")
        A(f"s_cmp_lg_u32 {s(S_NGO)}, 0")
        A(f"s_cbranch_scc1 {ntail}")
        A(f"s_mov_b32 {s(S_DEF)}, 1")
        A(f"s_mov_b32 {s(S_GO)}, 0")
        for x in self.dma_lines(True):
            A(x)
        A.label(ntail)
        if self.pipe:
            A(f"s_mov_b32 {s(S_EGO)}, 0")
        self.emit_epi()
        A(f"s_mov_b32 {s(S_FA1)}, {s(S_FA2)}")
        A(f"s_mov_b32 {s(S_FA2)}, {HUGE}")
        A(f"s_mov_b32 {s(S_EGO)}, {HUGE}")
        st(4)
        step()
        A(f"s_cmp_eq_u32 {s(S_DEF)}, 0")
        A(f"s_cbranch_scc1 {nm}_B{o}")
        A(f"s_cmp_eq_u32 {s(S_DEF)}, 1")
        A(f"s_cbranch_scc1 {nm}_CD{o}")
        A("s_waitcnt vmcnt(0)")
        flag_put(A, S_FA1, self.local_out)
        A(f"s_mov_b32 {s(S_FA1)}, {HUGE}")
        st(5)
        A(f"s_cmp_eq_u32 {s(S_I)}, 128")
        A(f"s_cbranch_scc1 {nm}_END")
        A(f"s_branch {nm}_COLD{o}")

    def epi_lines(self, guarded):
        PRE_FLAG[0] = True
        cap = self.capture(self.epilogue)
        PRE_FLAG[0] = None
        return cap.l

    def emit_epi(self):
        A = self.A
        run = []
        for x in self.epi_lines(False):
            if self.local_out and x.startswith("buffer_store"):
                run.append(x.replace(" sc1", ""))
                continue
            if run:
                lstore(A, run)
                run = []
            A(x)
        if run:
            lstore(A, run)


class QKV3(G3, QKV32):
    V_CS = 120
    V_SV = 124
    V_SR = 156
    V_ST = 176
    V_PK = 180
    V_SA0, V_SA, V_SW, V_SRD = 188, 189, 190, 191
    V_FO0, V_FO1, V_DC = 12, 13, 14
    kd0, kdstep, kf1, ksmp = 1, 3, 30, 0.55
    psleep = 7
    D = 5

    def __init__(self, A, cfg, nwg, vtype):
        QKV32.__init__(self, A, cfg, nwg, vtype)
        self.psleep = cfg.wgp - 1
        self.kdstep, self.kf1, self.ksmp = cfg.qds, cfg.qf1, cfg.qsm / 100.0

    def expose(self):
        A, cfg = self.A, self.cfg
        A(f"s_cmp_lt_u32 {s(S_I)}, 2")
        if cfg.qx:
            A(f"s_cselect_b32 {s(T)}, 1, {s(S_L)}")
            if cfg.qx == 2 and not self.swap:
                A(f"s_andn2_b32 {s(T)}, {s(T)}, {s(self.S_TYPE)}")
            A(f"s_cmp_lg_u32 {s(T)}, 0")
        return True

    def save_item(self):
        A = self.A
        A(f"s_mov_b32 {s(self.S_EL)}, {s(S_L)}")
        A(f"s_mov_b32 {s(self.S_ES)}, {s(S_S)}")
        if self.swap:
            A(f"ds_write_b64 {v(self.V_SW)}, {v(self.V_ST, 2)}")
            for i in range(4):
                for hf in range(2):
                    A(f"ds_read_b128 {v(self.V_SV + i * 8 + hf * 4, 4)}, {v(self.V_SRD)} offset:{i * 64 + hf * 16}")

    def post_barrier(self):
        A = self.A
        A(f"s_mov_b32 {s(self.S_EL)}, 0")
        A(f"s_mov_b32 {s(self.S_ES)}, 0")

    def epi_lines(self, guarded):
        L = G3.epi_lines(self, guarded)
        out = []
        for x in L:
            out.append(x)
            if x.startswith(f"s_mul_i32 {s(self.E)},"):
                out.append(f"s_add_u32 {s(self.E)}, {s(self.E)}, {s(S_EGO)}")
        out.append(f"s_add_u32 {s(S_FADDR)}, {s(S_FADDR)}, {s(S_EGO)}")
        return out


class QKV4(QKV3):
    S_N0, S_N1, S_W0, S_EX, S_UF0, S_CND = 78, 79, 40, 80, 41, 42
    V_FO0, V_FO1, V_FV0, V_PW, V_DC = 4, 2, 14, 13, 12

    def post_barrier(self):
        QKV3.post_barrier(self)
        A = self.A
        A(f"s_mov_b32 {s(self.S_N0)}, 0")
        A(f"s_mov_b32 {s(self.S_N1)}, 0")
        A(f"s_cmp_eq_u32 {s(S_WAVE)}, 0")
        A(f"s_cselect_b32 {s(self.S_W0)}, {flag_row(F_XIN)}, {HUGE}")
        A(f"s_lshl_b32 {s(T)}, {s(S_WAVE)}, 3")
        A(f"v_add_u32 {v(self.V_PW)}, {s(T)}, {v(self.V_RA)}")

    def decode(self, A):
        A(f"s_lshl_b32 {s(self.S_UF0)}, {s(self.S_N0)}, 9")
        A(f"s_add_u32 {s(self.S_UF0)}, {s(self.S_UF0)}, {s(self.S_W0)}")
        A(f"s_lshl_b32 {s(S_UF)}, {s(self.S_N1)}, 9")
        A(f"s_add_u32 {s(S_UF)}, {s(S_UF)}, {s(self.S_W0)}")
        A(f"s_add_u32 {s(S_UF)}, {s(S_UF)}, {64 * 512}")

    def smp(self):
        return [f"buffer_load_dword {v(V_FV)}, {v(self.V_FO1)}, {WS}, {s(S_UF)} offen sc1",
                f"buffer_load_dword {v(self.V_FV0)}, {v(self.V_FO0)}, {WS}, {s(self.S_UF0)} offen sc1"]

    def dec(self):
        c = self.cfg
        return [f"v_cmp_eq_u32 vcc, 0, {v(self.V_FV0)}", f"s_cmp_eq_u64 vcc, 0\ns_cselect_b32 {s(S_UN)}, 0, {HUGE}",
                f"v_cmp_eq_u32 vcc, 0, {v(V_FV)}",
                f"s_cmp_lt_u32 {s(self.S_N0)}, 64\ns_cselect_b32 {s(S_UN)}, {s(S_UN)}, {HUGE}",
                f"s_cmp_eq_u64 vcc, 0\ns_cselect_b32 {s(T)}, 1, {s(S_UN)}",
                f"s_cmp_lt_u32 {s(self.S_N1)}, 64\ns_cselect_b32 {s(T)}, {s(T)}, {s(S_UN)}",
                f"s_sub_u32 {s(T + 1)}, {s(self.S_N0)}, {s(self.S_N1)}",
                f"s_or_b32 {s(T + 1)}, {s(T + 1)}, {s(S_UN)}",
                f"s_cmp_lt_u32 {s(T + 1)}, {c.LAG + c.qld}\ns_cselect_b32 {s(S_UN)}, 0, {s(T)}",
                f"v_mov_b32 {v(self.V_RA + 1)}, {s(S_UN)}"]

    def put(self):
        return f"ds_write_b32 {v(self.V_PW)}, {v(self.V_RA + 1)}"

    def take(self):
        return [f"s_and_b32 {s(S_GO)}, {s(S_NGO)}, {HUGE}", f"s_and_b32 {s(S_UL)}, {s(S_NGO)}, 1\ns_cselect_b32 {s(S_US)}, {s(self.S_N1)}, {s(self.S_N0)}"]

    def count(self):
        return [f"s_mov_b32 {s(S_NL)}, {s(S_UL)}", f"s_mov_b32 {s(S_NS)}, {s(S_US)}", f"s_add_u32 {s(self.S_N1)}, {s(self.S_N1)}, {s(S_UL)}",
                f"s_or_b32 {s(T)}, {s(S_GO)}, {s(S_UL)}", f"s_cmp_eq_u32 {s(T)}, 0\ns_addc_u32 {s(self.S_N0)}, {s(self.S_N0)}, 0"]

    def while_loading(self):
        if not self.cfg.cso:
            return None
        A = self.A
        ones, dst = self.V_FR, (self.V_ACC if self.swap else self.V_CS)
        for i in range(4):
            A(f"v_mov_b32 {v(ones + i)}, 0x3f803f80")

        def f(js):
            for j in js:
                for k in (2 * j, 2 * j + 1):
                    for tl in range(self.NT):
                        c = "0" if k == 0 else v(dst + 16 * tl, 16)
                        w = self.wtxt(tl, k)
                        x, y = (v(ones, 4), w) if self.swap else (w, v(ones, 4))
                        A(f"{MF} {v(dst + 16 * tl, 16)}, {x}, {y}, {c}")
        return f

    def csum(self, dst):
        if not self.cfg.cso:
            QKV3.csum(self, dst)

    def dma(self, rl, rs, ldsreg):
        if not self.cfg.ns0:
            return QKV3.dma(self, rl, rs, ldsreg)
        A = self.A
        A(f"s_lshl_b32 {s(T)}, {s(rl)}, 6")
        A(f"s_add_u32 {s(T)}, {s(T)}, {s(rs)}")
        A(f"s_mul_i32 {s(T)}, {s(T)}, {XSEGS}")
        A(f"s_add_u32 {s(T)}, {s(T)}, {XIN}")
        A(f"s_cmp_eq_u32 {s(rl)}, 0")
        A(f"s_cselect_b32 {s(T + 7)}, {HUGE}, {s(T)}")
        A(f"s_mul_i32 {s(T + 1)}, {s(S_WAVE)}, 10240")
        A(f"s_add_u32 {s(T)}, {s(T)}, {s(T + 1)}")
        A(f"s_add_u32 {s(T + 1)}, {s(T + 1)}, {s(ldsreg)}")
        self.lin_dma(T, T + 1, 10)
        self.stats_dma(T + 7, ldsreg)

    def pack_store(self, x, pk, soff, off, vaddr):
        QKV3.pack_store(self, x, x[0], soff, off, vaddr)

    def body(self, b, nb):
        if b == 0:
            self.A(f"s_branch {self.name}_COLD0")
            self.main(0)
            self.main(1)
        self.side(b)

    def main(self, b):
        A, cfg, st = self.A, self.cfg, self.st
        nm, NT, R, D = self.name, self.NT, self.R, self.D
        NS = 2 * self.nk
        A.label_nf(f"{nm}_B{b}")
        L = Lds(A)
        L.q = [("F", k) for k in range(D)]
        V = Vm(A)
        self.aset = b
        seq, rdt = [], []
        kbar = (NS - D) * NT
        for k in range(NS):
            for tl in range(NT):
                c = "0" if k == 0 else v(self.acc(tl), 16)
                fr = v(self.V_FR + (k % R) * 4, 4)
                w = self.wtxt(tl, k)
                x, y = (fr, w) if self.swap else (w, fr)
                need = [("F", k + 1)] if (tl == 0 and k % 2 == 0) else []
                seq.append((f"{MF} {v(self.acc(tl), 16)}, {x}, {y}, {c}", need))
            kk = k + D
            rdt.append(Task(k * NT, [(("F", kk), self.rd(kk % NS, b if kk < NS else 1 - b))]))

        def wrap(ls, tag="o"):
            out = []
            for x in ls:
                for y in (groups(x.split("\n")) if "exec" not in x else [x]):
                    if (cfg.xq & 1 and y.startswith("buffer_store")) or (cfg.xq & 2 and y.endswith(" lds")) or (cfg.xq & 4 and tag == "st" and y.startswith("v_")) \
                            or (cfg.xq & 8 and tag == "mid" and not y.startswith("s_")):
                        continue
                    if y.startswith("buffer_"):
                        out.append((cfg.vmc, lambda y=y: V.op(tag, y)))
                    elif y.startswith("ds_"):
                        out.append(("x", y))
                    else:
                        out.append(y)
            return out
        dc = Capture()
        self.decode(dc)
        tdma = Task(cfg.qd0, wrap(groups(self.dma_lines(True))))
        tdma.vstep = self.kdstep
        tcnt = Task(10, wrap([x.replace(s(T), s(T + 5)) for x in self.count()]) + dc.l)
        tsm = Task(int(self.ksmp * NS * NT), wrap(self.smp()))
        tsm.after = tcnt

        def ts(k):
            if cfg.qts:
                A(f"s_memtime {s(16 + 2 * k, 2)}")

        def f1():
            ts(0)
            A(f"s_waitcnt vmcnt({len(V.q)})")
            ts(1)
            flag_put(A, S_FA1)
            A(f"s_mov_b32 {s(S_FA1)}, {HUGE}")
            V.q.append("f")
        self.aset = 1 - b
        te = Task(3, wrap(self.epi_lines(True), "st"))
        tst = []
        for n, it in enumerate(te.items):
            if isinstance(it, tuple):
                t = Task(10 ** 6, [it])
                t.at = cfg.qs0 + cfg.qss * len(tst)
                tst.append(t)
                te.items[n] = (0, lambda t=t: setattr(t, "rel", t.at))
        self.aset = b
        tpre = Task(0, wrap(lines(self, self.pre_mfma), "mid"), step=1)

        def wx():
            assert not tpre.items
            L.wait("x")
        tm = Task(0, [(4, wx)] + wrap(lines(self, self.mid), "mid") + wrap(lines(self, self.save_item), "mid"))
        tm.after = te

        def f2():
            assert not te.items
            ts(2)
            V.wait("st")
            ts(3)
            flag_put(A, S_FA2)
            A(f"s_mov_b32 {s(S_FA2)}, {HUGE}")
            V.q.append("f")
        tf2 = Task(cfg.qf2, [(28, f2)])
        tf2.after = tst[-1] if tst else te
        kw = kbar - cfg.qkw

        def wp():
            assert not tdma.items and not tsm.items
            ts(4)
            V.wait("o")
            ts(5)

        def putw():
            A(self.put())
            L.q.append("pw")
        tdec = Task(kw, [(4, wp)] + wrap(self.dec()) + [(9, putw)])

        def bar():
            assert not tdec.items and not tm.items, (len(tdec.items), len(tm.items))
            L.wait("pw")
            ts(6)
            A("s_barrier")
            ts(7)
            L.op("dw", f"ds_read_b32 {v(self.V_RA + 1)}, {v(self.V_RA)}")

        def rdw():
            L.wait("dw")
            A(f"v_readfirstlane_b32 {s(S_NGO)}, {v(self.V_RA + 1)}")
        fin = [f"s_cmp_lt_u32 {s(S_I)}, 2\ns_cselect_b32 {s(self.S_CND)}, 1, 0",
               f"s_cmp_ge_u32 {s(self.S_N0)}, {64 if cfg.qe0 else 99}\ns_cselect_b32 {s(self.S_CND)}, 1, {s(self.S_CND)}", f"s_or_b32 {s(self.S_CND)}, {s(self.S_CND)}, {s(S_GO)}",
               f"s_mov_b32 {s(S_EGO)}, 0", f"s_add_u32 {s(S_I)}, {s(S_I)}, 1", f"s_sub_u32 {s(S_BUF)}, {self.bufsz}, {s(S_BUF)}",
               f"s_mov_b32 {s(S_L)}, {s(S_NL)}", f"s_mov_b32 {s(S_S)}, {s(S_NS)}"]
        tfin = Task(kbar, fin)
        trd = Task(kbar + 4, [(8, rdw)] + self.take() + [f"s_cmp_lg_u32 {s(self.S_CND)}, 0"])
        trd.after = tfin
        sched(A, L, seq, rdt + [Task(self.kf1, [(28, f1)]), tdec, tf2, tpre] + tst + [tdma, tsm, tcnt, te, tm, tfin, trd], pre={kbar: bar}, budget=24, nvalu=5)
        if cfg.timing == 2:
            if cfg.qts:
                A("s_waitcnt lgkmcnt(0)")
                A("s_sub_u32 s17, s16, s86")
                A("s_add_u32 s87, s87, s17")
                A("s_sub_u32 s17, s18, s16")
                A("s_add_u32 s88, s88, s17")
                A("s_sub_u32 s17, s22, s20")
                A("s_add_u32 s88, s88, s17")
                A("s_sub_u32 s17, s26, s24")
                A("s_add_u32 s89, s89, s17")
                A("s_sub_u32 s17, s30, s28")
                A("s_add_u32 s92, s92, s17")
                A("s_sub_u32 s17, s20, s18")
                A("s_add_u32 s93, s93, s17")
            st(3)
            A(f"s_cmp_lg_u32 {s(self.S_CND)}, 0")
        if b == 0:
            A.nf(f"s_cbranch_scc1 {nm}_S0")
        else:
            A.nf(f"s_cbranch_scc0 {nm}_B0")
            A.nf(f"s_branch {nm}_S1")

    def side(self, b):
        A, cfg, st = self.A, self.cfg, self.st
        nm, D = self.name, self.D
        o = 1 - b
        A.label(f"{nm}_S{b}")
        ntail = A.newlabel("nt")
        A(f"s_mov_b32 {s(S_DEF)}, 0")
        A(f"s_cmp_lt_u32 {s(self.S_CND)}, 2")
        A(f"s_cbranch_scc1 {ntail}")
        A(f"s_mov_b32 {s(S_DEF)}, 2")
        A(f"s_cmp_lg_u32 {s(S_GO)}, 0")
        A(f"s_cbranch_scc1 {ntail}")
        A(f"s_mov_b32 {s(S_DEF)}, 1")
        for x in self.dma_lines(False):
            A(x)
        A.label(ntail)
        A("s_nop 4")
        self.aset = b
        self.emit_epi()
        A(f"s_mov_b32 {s(S_FA1)}, {s(S_FA2)}")
        A(f"s_mov_b32 {s(S_FA2)}, {HUGE}")
        A(f"s_mov_b32 {s(S_EGO)}, {HUGE}")
        st(4)
        A(f"s_cmp_eq_u32 {s(S_DEF)}, 0")
        A(f"s_cbranch_scc1 {nm}_B{o}")
        A(f"s_cmp_eq_u32 {s(S_DEF)}, 1")
        A(f"s_cbranch_scc1 {nm}_CD{o}")
        A("s_waitcnt vmcnt(0)")
        flag_put(A, S_FA1)
        A(f"s_mov_b32 {s(S_FA1)}, {HUGE}")
        st(5)
        A(f"s_cmp_eq_u32 {s(S_I)}, 128")
        A(f"s_cbranch_scc1 {nm}_END")
        A(f"s_branch {nm}_COLD{o}")
        A.label(f"{nm}_COLD{b}")
        lab, top = A.newlabel("cp"), A.newlabel("ct")
        A(f"s_cmp_lg_u32 {s(S_WAVE)}, 0")
        A(f"s_cbranch_scc1 {lab}")
        A.label(top)
        for x in self.smp():
            A(x)
        A("s_waitcnt vmcnt(0)")
        for x in self.dec():
            A(x)
        A(f"s_cmp_lt_u32 {s(S_UN)}, 2")
        A(f"s_cbranch_scc1 {top}x")
        A(f"s_sleep {self.psleep}")
        A(f"s_sub_u32 {s(S_SPIN)}, {s(S_SPIN)}, 1")
        A("s_cbranch_scc1 ABORT")
        A(f"s_branch {top}")
        A.label(top + "x")
        A(f"ds_write_b32 {v(self.V_RA)}, {v(self.V_RA + 1)} offset:4")
        A("s_waitcnt lgkmcnt(0)")
        A.label(lab)
        A("s_barrier")
        A(f"ds_read_b32 {v(self.V_RA + 1)}, {v(self.V_RA)} offset:4")
        A("s_waitcnt lgkmcnt(0)")
        A(f"v_readfirstlane_b32 {s(S_NGO)}, {v(self.V_RA + 1)}")
        A(f"s_and_b32 {s(S_NGO)}, {s(S_NGO)}, 1")
        for x in self.take():
            A(x)
        st(6)
        for x in self.dma_lines(False):
            A(x)
        A.label(f"{nm}_CD{b}")
        A(f"s_mov_b32 {s(S_L)}, {s(S_UL)}")
        A(f"s_mov_b32 {s(S_S)}, {s(S_US)}")
        for x in self.count():
            A(x)
        self.decode(A)
        for x in self.smp():
            A(x)
        A("s_waitcnt vmcnt(0)")
        flag_put(A, S_FA1)
        A(f"s_mov_b32 {s(S_FA1)}, {HUGE}")
        for x in self.dec():
            A(x)
        A(self.put())
        A("s_waitcnt lgkmcnt(0)")
        A("s_barrier")
        A(f"ds_read_b32 {v(self.V_RA + 1)}, {v(self.V_RA)}")
        for k in range(D):
            A(self.rd(k, b))
        A(f"s_waitcnt lgkmcnt({D})")
        A(f"v_readfirstlane_b32 {s(S_NGO)}, {v(self.V_RA + 1)}")
        for x in self.take():
            A(x)
        st(7)
        A(f"s_branch {nm}_B{b}")


class B3(G3):
    kchk, kdstep, ksm2 = 12, 2, 30
    local_in = False
    N1 = 6

    def item(self, i_reg, rl, rs):
        c = self.cfg
        d = c.dlt + c.dl1 + (c.dl2 if self.name != "W1" else 0) + (c.dl3 if self.name == "W3" else 0)
        item_of(self.A, i_reg, rl, rs, c.LAG + d, 0, T)

    def tune(self, cfg):
        self.local_out = bool(cfg.bloc)
        self.local_in = bool(cfg.bloc)
        self.kchk = cfg.bf1
        self.ksm2 = cfg.bsm
        self.psleep = cfg.bps
        self.early_sample = bool(cfg.bea & 2)

    def post_barrier(self):
        A = self.A
        A(f"v_lshl_add_u32 {v(self.V_RA)}, {v(V_LANE)}, 2, {v(self.V_RA)}")
        A(f"v_mov_b32 {v(self.V_RA + 1)}, 0")
        A(f"ds_write_b32 {v(self.V_RA)}, {v(self.V_RA + 1)}")
        A(f"s_mov_b32 {s(S_EGO)}, {self.cfg.spin * 8}")
        A(f"v_and_b32 {v(self.V_TA)}, 15, {v(V_LANE)}")
        A(f"v_lshlrev_b32 {v(self.V_TA)}, 7, {v(self.V_TA)}")
        if self.name == "W2":
            A(f"s_mul_i32 {s(T)}, {s(S_IDX)}, {256 - 2048}")
            A(f"s_add_u32 {s(T)}, {s(T)}, 40960")
            A(f"v_and_b32 {v(V_T)}, 128, {v(self.V_TA)}")
            A(f"v_add_u32 {v(V_T)}, {s(T)}, {v(V_T)}")
            A(f"v_cmp_lt_u32 vcc, 15, {v(V_LANE)}")
            A(f"v_cndmask_b32 {v(self.V_TA)}, {v(self.V_TA)}, {v(V_T)}, vcc")
        if self.cfg.ring:
            self.ring_setup()
        A("s_waitcnt lgkmcnt(0)")
        A("s_barrier")

    def ready(self):
        if self.local_in:
            return []
        return [f"s_add_u32 {s(T + 5)}, {s(S_U)}, 1", f"s_or_b32 {s(T + 5)}, {s(T + 5)}, {s(S_GO)}", f"v_mov_b32 {v(self.V_RA + 1)}, {s(T + 5)}",
                f"ds_max_i32 {v(self.V_RA)}, {v(self.V_RA + 1)}"]

    def check(self):
        if self.cfg.ring:
            return [f"v_cmp_eq_u32 vcc, 0, {v(V_FV)}", f"s_and_b64 vcc, vcc, {s(S_BM, 2)}\ns_cselect_b32 {s(S_GO)}, {HUGE}, 0",
                    f"s_cmp_lt_u32 {s(S_U)}, 128\ns_cselect_b32 {s(S_GO)}, {s(S_GO)}, {HUGE}"]
        return [f"v_cmp_eq_u32 vcc, 0, {v(V_FV)}", f"s_cmp_eq_u64 vcc, 0\ns_cselect_b32 {s(S_GO)}, 0, {HUGE}",
                f"s_cmp_lt_u32 {s(S_U)}, 128\ns_cselect_b32 {s(S_GO)}, {s(S_GO)}, {HUGE}"]

    def block(self):
        A = self.A
        if not self.cfg.ring:
            return flag_block(A, S_UF)
        top, ok = A.newlabel("fb"), A.newlabel("ok")
        A.label(top)
        A(f"buffer_load_dword {v(V_FV)}, {v(V_FO)}, {WS}, {s(S_UF)} offen sc1")
        A("s_waitcnt vmcnt(0)")
        A(f"v_cmp_eq_u32 vcc, 0, {v(V_FV)}")
        A(f"s_and_b64 vcc, vcc, {s(S_BM, 2)}")
        A(f"s_cbranch_scc0 {ok}")
        if self.psleep:
            A(f"s_sleep {self.psleep}")
        A(f"s_sub_u32 {s(S_SPIN)}, {s(S_SPIN)}, 1")
        A("s_cbranch_scc1 ABORT")
        A(f"s_branch {top}")
        A.label(ok)

    def ring_setup(self):
        A = self.A
        kin, nin, kbp, nbp, dist = self.bp
        lo = min(flag_row(kin), flag_row(kbp) - dist * 512)
        A(f"v_min_u32 {v(V_T)}, {nin + nbp - 1}, {v(V_LANE)}")
        A(f"v_lshlrev_b32 {v(V_T)}, 2, {v(V_T)}")
        A(f"v_add_u32 {v(V_FO)}, {flag_row(kin) - lo}, {v(V_T)}")
        A(f"v_add_u32 {v(V_T + 1)}, {flag_row(kbp) - dist * 512 - lo - 4 * nin}, {v(V_T)}")
        A(f"v_cmp_gt_u32 {s(S_IM, 2)}, {nin}, {v(V_LANE)}")
        A(f"v_cndmask_b32 {v(V_FO)}, {v(V_T + 1)}, {v(V_FO)}, {s(S_IM, 2)}")
        for l in range(2):
            for sl in range(self.nslot):
                A(f"s_mov_b32 {s(S_L)}, {l}")
                A(f"s_mov_b32 {s(S_S)}, {sl}")
                self.touch()
        A("s_waitcnt vmcnt(0)")

    def ring_soff(self, dst, rl, rs):
        A = self.A
        kin, nin, kbp, nbp, dist = self.bp
        row_of(A, dst, rl, rs, min(flag_row(kin), flag_row(kbp) - dist * 512))
        A(f"s_cmp_lt_u32 {s(rs)}, {dist}")
        A(f"s_cselect_b64 {s(S_BM, 2)}, {s(S_IM, 2)}, -1")

    def slot_base(self, dst, rl, rs, n, per, size, base):
        A = self.A
        A(f"s_mul_i32 {s(dst)}, {s(rl)}, {per}")
        A(f"s_and_b32 {s(dst + 1)}, {s(rs)}, {n - 1}")
        A(f"s_add_u32 {s(dst)}, {s(dst)}, {s(dst + 1)}")
        A(f"s_mul_i32 {s(dst)}, {s(dst)}, {size}")
        A(f"s_add_u32 {s(dst)}, {s(dst)}, {base}")

    def kmap(self, k):
        jj = k >> 1
        return 2 * (self.nk // 4 * (jj & 3) + (jj >> 2)) + (k & 1)

    def rd(self, k, b):
        q = self.kmap(k)
        return f"ds_read_b128 {v(self.V_FR + (k % self.R) * 4, 4)}, {v(self.V_IA + 2 * b + (q & 1))} offset:{(q >> 1) * 2048}"

    def split_epi(self):
        import re
        sc, rest = [], []
        for x in self.epi_lines(False):
            for k in range(1, 5):
                x = re.sub(rf"\bs{T + k}\b", f"s{69 + k}", x)
            (sc if x.startswith("s_") and "exec" not in x else rest).append(x)
        return sc, rest

    def body(self, b, nb):
        A, cfg, st = self.A, self.cfg, self.st
        nm, NT, R, D = self.name, self.NT, self.R, self.D
        NS = 2 * self.nk
        S_VL, S_VS, S_VF, S_VM = 40, 41, 42, 80
        smp = f"buffer_load_dword {v(V_FV)}, {v(V_FO)}, {WS}, {s(S_UF)} offen sc1"
        ea = self.early_sample
        N1 = self.N1

        def decode2(A):
            import re
            c = Capture()
            self.decode(c)
            A(f"s_add_u32 {s(T + 2)}, {s(S_U)}, 1")
            A(f"s_min_u32 {s(T + 2)}, {s(T + 2)}, 127")
            for x in c.l[1:]:
                for p, q in ((S_UL, S_VL), (S_US, S_VS), (S_UF, S_VF)):
                    x = re.sub(rf"\bs{p}\b", f"s{q}", x)
                A(x.replace(f"s_cselect_b64 {s(S_BM, 2)}", f"s_cselect_b64 {s(S_VM, 2)}"))

        def advance(A=A, sm=True):
            A(f"s_mov_b32 {s(S_UF)}, {s(S_VF)}")
            if ea and sm:
                A(smp)
            A(f"s_mov_b32 {s(S_NL)}, {s(S_UL)}")
            A(f"s_mov_b32 {s(S_NS)}, {s(S_US)}")
            A(f"s_add_u32 {s(S_U)}, {s(S_U)}, 1")
            A(f"s_mov_b32 {s(S_UL)}, {s(S_VL)}")
            A(f"s_mov_b32 {s(S_US)}, {s(S_VS)}")
            A(f"s_mov_b64 {s(S_BM, 2)}, {s(S_VM, 2)}")

        def dma_ordered():
            L_ = self.dma_lines(True)
            k0 = next(n for n, x in enumerate(L_) if "m0" in x or x.startswith(f"s_lshl_b32 {s(T + 2)}, {s(S_WAVE)}"))
            k1 = next(n for n, x in enumerate(L_) if x.startswith(f"s_mul_i32 {s(T + 1)}, {s(S_WAVE)}, "))
            if k0 > k1:
                return L_
            import re
            st_ = [re.sub(rf"\bs{T}\b", f"s{T + 7}", x) for x in L_[k0:k1]]
            return L_[:k0] + [f"s_mov_b32 {s(T + 7)}, {s(T)}"] + L_[k1:] + st_
        DM = dma_ordered()
        nd = sum(1 for x in DM if x.startswith("buffer_"))
        self.swap_bufs()
        decode2(A)
        A.label(f"{nm}_COLD")
        A(f"s_mov_b32 {s(S_GO)}, 0")
        if self.local_in:
            self.block()
        else:
            oth, done = A.newlabel("wo"), A.newlabel("wd")
            A(f"s_cmp_lg_u32 {s(S_WAVE)}, 0")
            A(f"s_cbranch_scc1 {oth}")
            self.block()
            A.label(f"{nm}_COLD2")
            for x in self.ready():
                A(x)
            A(f"s_branch {done}")
            A.label(oth)
            A(f"ds_read_b32 {v(self.V_RA + 1)}, {v(self.V_RA)}")
            A("s_waitcnt lgkmcnt(0)")
            A(f"v_cmp_ge_u32 vcc, {s(S_U)}, {v(self.V_RA + 1)}")
            A(f"s_cbranch_vccz {done}")
            A(f"s_sleep 1")
            A(f"s_sub_u32 {s(S_EGO)}, {s(S_EGO)}, 1")
            A("s_cbranch_scc1 ABORT")
            A(f"s_branch {oth}")
            A.label(done)
        if self.local_in:
            A.label(f"{nm}_COLD2")
        st(6)
        n = 0
        cs = ea and cfg.cs
        if cs:
            A(f"buffer_load_dword {v(V_FV)}, {v(V_FO)}, {WS}, {s(S_VF)} offen sc1")
        for x in DM:
            A(x)
            if x.startswith("buffer_"):
                n += 1
                if n == N1:
                    A(f"s_waitcnt vmcnt({N1 + (1 if cs else 0) if not self.local_in else N1 - 1})")
                    flag_put(A, S_FA1, self.local_out)
                    A(f"s_mov_b32 {s(S_FA1)}, {HUGE}")
        advance(A, not cs)
        self.swap_bufs()
        A(f"s_mov_b32 {s(S_L)}, {s(S_NL)}")
        A(f"s_mov_b32 {s(S_S)}, {s(S_NS)}")
        if ea and not cs:
            A(f"s_mov_b32 {s(S_GO)}, {HUGE}")
        A(f"s_waitcnt vmcnt({nd - N1 + 1 + (1 if ea and not cs else 0)})")
        if cs:
            for x in self.check():
                A(x)
        A(f"s_branch {nm}_GO")
        A.label(f"{nm}_NEXT")
        self.swap_bufs()
        A(f"s_mov_b32 {s(S_L)}, {s(S_NL)}")
        A(f"s_mov_b32 {s(S_S)}, {s(S_NS)}")
        A(f"s_waitcnt vmcnt({self.nstores})")
        if ea:
            for x in self.check():
                A(x)
        A.label(f"{nm}_GO")
        st(7)
        A("s_barrier")
        L = Lds(A)
        for k in range(D):
            L.op(("F", k), self.rd(k, 0))
        if not ea:
            A(smp)
        st(0)
        seq, rdt = [], []
        for k in range(NS):
            c = "0" if k == 0 else v(self.acc(0), 16)
            fr = v(self.V_FR + (k % R) * 4, 4)
            need = [("F", k) if k < 2 else ("F", k + 1)] if (k % 2 == 0 or k < 2) else []
            seq.append((f"{MF} {v(self.acc(0), 16)}, {self.wtxt(0, self.kmap(k))}, {fr}, {c}", need))
            if k + D < NS:
                rdt.append(Task(k, [(("F", k + D), self.rd(k + D, 0))]))
        nvm = [0 if ea else 1]
        kb2 = 4 * N1 - D

        def vm(x):
            def f():
                A(x)
                nvm[0] += 1
            return (cfg.vmc, f)

        def wrap(ls):
            out = []
            for x in groups([y for z in ls for y in z.split("\n")]):
                out.append(vm(x) if x.startswith("buffer_") else ("x", x) if x.startswith("ds_") else x)
            return out
        tearly = Task(0, wrap(lines(self, self.early)))
        tpre = Task(kb2, wrap(lines(self, self.pre_mfma)), step=1)
        nearly = sum(1 for i in tearly.items if isinstance(i, tuple)) + nvm[0]

        def f1():
            assert not tearly.items
            A(f"s_waitcnt vmcnt({nvm[0] - (0 if ea else 1)})")
            flag_put(A, S_FA1, self.local_out)
            A(f"s_mov_b32 {s(S_FA1)}, {HUGE}")
            nvm[0] += 1

        def bar2():
            assert not tf1.items and self.kchk < kb2
            A("s_barrier")
        d2 = Capture()
        decode2(d2)
        tf1 = Task(self.kchk, [(28, f1)])

        def ld_():
            nvm[0] += self.landed()
        tld = Task(kb2 + 2, [(28 if self.name == "WO" and cfg.oring else 0, ld_)])
        if ea:
            tdma = Task(0, wrap(self.ready()) + wrap(DM) + wrap(d2.l))
            tdma.after = tearly
        else:
            tearly.items += wrap(d2.l)
            tdma = Task(self.kchk, self.check() + wrap(self.ready()) + wrap(DM))
            tdma.after = tf1
        tdma.vstep = self.kdstep

        def wx():
            assert not tpre.items
            L.wait("x")
        tmid = Task(kb2 + 9, [(4, wx)] + wrap(lines(self, self.mid)))
        tmid.after = tpre
        esc, erest = self.split_epi()

        at2 = [0]

        def smp2():
            A(smp)
            nvm[0] += 1
            at2[0] = nvm[0]
        tsm = Task(self.ksm2, [(cfg.vmc + 1, smp2)])
        sched(A, L, seq, rdt + [tpre, tearly, tsm, tf1, tld, tdma, tmid, Task(0, esc)], pre={kb2: bar2}, budget=24, nvalu=5)
        st(3)
        ep, nr, sec = A.newlabel("ep"), A.newlabel("nr"), A.newlabel("sec")

        def epi(extra=()):
            extra = list(extra)
            nv = next(n for n, x in enumerate(erest) if x.startswith("buffer_store"))
            every = max(1, (nv - 4) // max(1, len(extra)))
            run = []
            for n, x in enumerate(erest + [""]):
                if x.startswith("buffer_store"):
                    while extra:
                        for y in extra.pop(0):
                            A(y)
                if self.local_out and x.startswith("buffer_store"):
                    run.append(x.replace(" sc1", ""))
                    continue
                if run:
                    lstore(A, run)
                    run = []
                if extra and n % every == 0:
                    for y in extra.pop(0):
                        A(y)
                if x:
                    A(x)
        self.late(nvm[0] - nearly)
        A(f"s_cmp_eq_u32 {s(S_GO)}, 0")
        A.nf(f"s_cbranch_scc0 {sec}")
        if cfg.timing == 2:
            A("s_add_u32 s88, s88, 128")
        advance()
        A("s_nop 2")
        A.label_nf(ep)
        st(2)
        epi()
        A(f"s_mov_b32 {s(S_FA1)}, {s(S_FA2)}")
        st(4)
        A(f"s_cmp_eq_u32 {s(S_GO)}, 0")
        A(f"s_cbranch_scc1 {nm}_NEXT")
        A(f"s_waitcnt vmcnt({self.nstores})")
        for x in self.check():
            A(x)
        A(f"s_cmp_eq_u32 {s(S_GO)}, 0")
        A(f"s_cbranch_scc1 {nm}_COLD2")
        A("s_waitcnt vmcnt(0)")
        flag_put(A, S_FA1, self.local_out)
        A(f"s_mov_b32 {s(S_FA1)}, {HUGE}")
        st(5)
        A(f"s_cmp_lt_u32 {s(S_U)}, 128")
        A(f"s_cbranch_scc1 {nm}_COLD")
        A(f"s_branch {nm}_END")
        A.label_nf(sec)
        A(f"s_waitcnt vmcnt({nvm[0] - at2[0]})")
        for x in self.check():
            A(x)
        A(f"s_cmp_lg_u32 {s(S_GO)}, 0")
        A.nf(f"s_cbranch_scc1 {nr}")
        if cfg.timing == 2:
            A("s_add_u32 s88, s88, 128000")
        st(2)
        grp, cur_ = [], []
        for x in self.ready() + DM:
            cur_.append(x)
            if x.startswith("buffer_"):
                grp.append(cur_)
                cur_ = []
        c_ = Capture()
        advance(c_)
        epi(grp + [c_.l])
        A(f"s_mov_b32 {s(S_FA1)}, {s(S_FA2)}")
        st(4)
        A(f"s_branch {nm}_NEXT")
        A.label_nf(nr)
        A(smp)
        A.nf(f"s_branch {ep}")

    def late(self, n): pass
    def landed(self): return 0

    V_TA = 72

    def touch(self):
        A = self.A
        self.out_base()
        A(f"buffer_load_dword {v(self.V_TA + 1)}, {v(self.V_TA)}, {WS}, {s(T + 2)} offen sc1")


class W1_3(B3, W1_32):
    bp = (F_R1, 32, F_X1, 20, NH - 1)
    nslot = NH

    def __init__(self, A, cfg, nwg):
        W1_32.__init__(self, A, cfg, nwg)
        self.tune(cfg)
        self.local_in = False
        self.psleep = cfg.wgp - 1
        self.early_sample = bool(cfg.bea & 1)
        if self.early_sample:
            self.ksm2 = cfg.bsmx
            self.kdstep = cfg.w1d
        else:
            self.kchk, self.kdstep, self.ksm2 = cfg.bf1x, 1, 26

    def init_stores(self):
        if not self.cfg.ring:
            return W1_32.init_stores(self)
        A = self.A
        for i in range(4):
            A(f"v_mov_b32 {v(self.V_PK + i)}, 0")
        A(f"s_lshl_b32 {s(T)}, {s(S_IDX)}, 11")
        for l in range(2):
            A(f"s_add_u32 {s(T + 1)}, {s(T)}, {HB + (l * (NH + 1) + NH) * XSEG}")
            for tt in range(2):
                A(f"buffer_store_dwordx4 {v(self.V_PK, 4)}, {v(V_L16)}, {WS}, {s(T + 1)} offen offset:{tt * 1024} sc1")

    def flag_soff(self, dst, rl, rs):
        return self.ring_soff(dst, rl, rs) if self.cfg.ring else W1_32.flag_soff(self, dst, rl, rs)

    def post_weights(self):
        W1_32.post_weights(self)
        if self.cfg.sl:
            A = self.A
            A(f"v_bfe_u32 {v(V_T)}, {v(V_LANE)}, 2, 3")
            A(f"v_mul_u32_u24 {v(V_T)}, 96, {v(V_T)}")
            A(f"v_add_u32 {v(self.V_SA0)}, {v(self.V_SA0)}, {v(V_T)}")

    def early(self):
        if not self.cfg.xmt:
            return
        A = self.A
        A(f"s_lshl_b32 {s(T)}, {s(S_L)}, 6")
        A(f"s_add_u32 {s(T)}, {s(T)}, {s(S_S)}")
        A(f"s_mul_i32 {s(T)}, {s(T)}, {XSEG}")
        A(f"s_lshl_b32 {s(T + 1)}, {s(S_IDX)}, 11")
        A(f"s_add_u32 {s(T)}, {s(T)}, {s(T + 1)}")
        A(f"s_add_u32 {s(T)}, {s(T)}, {XM}")
        A(f"buffer_load_dword {v(self.V_TA + 1)}, {v(self.V_TA)}, {WS}, {s(T)} offen sc1")

    def out_base(self):
        if not self.cfg.ring:
            return W1_32.out_base(self)
        self.slot_base(T + 2, S_L, S_S, NH, NH + 1, XSEG, HB)
        self.A(f"s_lshl_b32 {s(T + 3)}, {s(S_IDX)}, 11")
        self.A(f"s_add_u32 {s(T + 2)}, {s(T + 2)}, {s(T + 3)}")


class W3_3(B3, W3_32):
    bp = (F_X1, 20, F_D4, 40, NG)
    nslot = NG

    def __init__(self, A, cfg, nwg):
        W3_32.__init__(self, A, cfg, nwg)
        self.tune(cfg)

    def setup(self):
        W3_32.setup(self)
        if self.cfg.lin:
            self.A(f"v_mov_b32 {v(self.V_OA)}, {v(V_L16)}")
            self.A(f"v_add_u32 {v(self.V_OA + 1)}, 1024, {v(V_L16)}")

    def flag_soff(self, dst, rl, rs):
        return self.ring_soff(dst, rl, rs) if self.cfg.ring else W3_32.flag_soff(self, dst, rl, rs)

    def dma(self, rl, rs, ldsreg):
        if not self.cfg.ring:
            return W3_32.dma(self, rl, rs, ldsreg)
        A = self.A
        self.slot_base(T, rl, rs, NX, NX, XSEGS, X1B)
        self.stats_dma(T, ldsreg)
        A(f"s_mul_i32 {s(T + 1)}, {s(S_WAVE)}, 10240")
        A(f"s_add_u32 {s(T)}, {s(T)}, {s(T + 1)}")
        A(f"s_add_u32 {s(T + 1)}, {s(T + 1)}, {s(ldsreg)}")
        self.lin_dma(T, T + 1, 10)

    def out_base(self):
        if not self.cfg.ring:
            return W3_32.out_base(self)
        self.slot_base(T + 2, S_L, S_S, NG, NG, GSEG, GB)
        self.A(f"s_lshl_b32 {s(T + 3)}, {s(S_IDX)}, 11")
        self.A(f"s_add_u32 {s(T + 2)}, {s(T + 2)}, {s(T + 3)}")


class W2_3(B3, W2_32):
    bp = (F_H, 20, F_D4, 40, NX)
    nslot = NX
    V_SB, V_IO, V_IC = 74, 76, 78
    S_DL = S_K

    def __init__(self, A, cfg, nwg):
        W2_32.__init__(self, A, cfg, nwg)
        self.tune(cfg)

    def setup(self):
        W2_32.setup(self)
        if not self.cfg.ring:
            return
        A = self.A
        for tt in range(2):
            A(f"v_subrev_u32 {v(V_T)}, {XSEG}, {v(self.V_SH + tt)}")
            A(f"v_cmp_gt_u32 vcc, {XSEG}, {v(V_T)}")
            A(f"v_cndmask_b32 {v(self.V_IC + tt)}, 0, 1, vcc")
            A(f"v_xor_b32 {v(self.V_IO + tt)}, 1, {v(self.V_IC + tt)}")
            A(f"v_and_b32 {v(self.V_SB + tt)}, 2047, {v(self.V_SH + tt)}")
        A(f"s_and_b32 {s(self.S_DL)}, {s(S_WAVE)}, 1")
        A(f"s_lshl_b32 {s(self.S_DL)}, {s(self.S_DL)}, 1")
        A(f"s_sub_u32 {s(self.S_DL)}, {s(self.S_DL)}, 1")

    def flag_soff(self, dst, rl, rs):
        if not self.cfg.ring:
            return W2_32.flag_soff(self, dst, rl, rs)
        A = self.A
        A(f"s_add_u32 {s(T)}, {s(rs)}, 1")
        A(f"s_min_u32 {s(T)}, {s(T)}, 63")
        self.ring_soff(dst, rl, T)

    def dma(self, rl, rs, ldsreg):
        if not self.cfg.ring:
            return W2_32.dma(self, rl, rs, ldsreg)
        A = self.A
        A(f"s_add_u32 {s(T + 1)}, {s(rs)}, {s(self.S_DL)}")
        A(f"s_and_b32 {s(T + 2)}, {s(T + 1)}, {NH - 1}")
        A(f"s_cmp_lt_u32 {s(T + 1)}, 64")
        A(f"s_cselect_b32 {s(T + 2)}, {s(T + 2)}, {NH}")
        A(f"s_mul_i32 {s(T + 2)}, {s(T + 2)}, {XSEG}")
        A(f"s_and_b32 {s(T + 1)}, {s(rs)}, {NH - 1}")
        A(f"s_mul_i32 {s(T + 1)}, {s(T + 1)}, {XSEG}")
        for tt in range(2):
            A(f"v_mad_u32_u24 {v(self.V_SH + tt)}, {v(self.V_IO + tt)}, {s(T + 2)}, {v(self.V_SB + tt)}")
            A(f"v_mad_u32_u24 {v(self.V_SH + tt)}, {v(self.V_IC + tt)}, {s(T + 1)}, {v(self.V_SH + tt)}")
        A(f"s_mov_b32 {s(T)}, {s(rl)}")
        A(f"s_mul_i32 {s(T)}, {s(T)}, {(NH + 1) * XSEG}")
        A(f"s_mul_i32 {s(T + 1)}, {s(S_WAVE)}, 10240")
        A(f"s_add_u32 {s(T)}, {s(T)}, {s(T + 1)}")
        A(f"s_add_u32 {s(T)}, {s(T)}, {HB}")
        A(f"s_add_u32 {s(T + 1)}, {s(T + 1)}, {s(ldsreg)}")
        for jl in range(5):
            for tt in range(2):
                A(f"s_add_u32 m0, {s(T + 1)}, {(jl * 2 + tt) * 1024}")
                if tt == 0:
                    A(f"s_add_u32 {s(T + 3)}, {s(T)}, {jl * 2048}")
                A(f"buffer_load_dwordx4 {v(self.V_SH + tt)}, {WS}, {s(T + 3)} offen sc1 lds")

    def mid(self): pass

    def seg_base(self):
        A = self.A
        if self.cfg.ring:
            return self.slot_base(T + 2, S_L, S_S, NX, NX, XSEGS, X1B)
        A(f"s_lshl_b32 {s(T + 2)}, {s(S_L)}, 6")
        A(f"s_add_u32 {s(T + 2)}, {s(T + 2)}, {s(S_S)}")
        A(f"s_mul_i32 {s(T + 2)}, {s(T + 2)}, {XSEGS}")
        A(f"s_add_u32 {s(T + 2)}, {s(T + 2)}, {X1B}")

    def out_base(self):
        self.seg_base()
        self.A(f"s_lshl_b32 {s(T + 3)}, {s(S_IDX)}, 11")
        self.A(f"s_add_u32 {s(T + 2)}, {s(T + 2)}, {s(T + 3)}")

    def epi_lines(self, guarded):
        L = B3.epi_lines(self, guarded)
        return lines(self, self.seg_base) + L[4:]

    def late(self, n):
        self.A(f"s_waitcnt vmcnt({n})")
        W2_32.mid(self)


class WO5(B3, Gemm32):
    name = "WO"
    nk = 24
    bufsz = 49152
    nstores = 2
    N1 = 8
    S_KG, S_OUT, S_FW, S_PD = S_K, S_K + 1, 75, 74
    V_PK = 112

    def __init__(self, A, cfg, nwg):
        Gemm32.__init__(self, A, cfg, nwg)
        self.local_out, self.local_in = False, bool(cfg.oloc)
        self.early_sample = True
        self.kchk, self.ksm2, self.psleep, self.kdstep = cfg.wf1, cfg.wsm, cfg.bps, 2

    def item(self, i_reg, rl, rs):
        item_of(self.A, i_reg, rl, rs, self.cfg.LAG + self.cfg.dlt, 0, T)

    def setup(self):
        A = self.A
        for k in range(4):
            A(f"v_add_u32 {v(self.V_IA + k)}, {(k & 1) * 1024 + (k >> 1) * self.bufsz}, {v(V_L16)}")
        A(f"s_mul_i32 {s(self.S_KG)}, {s(S_ROLE)}, 52429")
        A(f"s_lshr_b32 {s(self.S_KG)}, {s(self.S_KG)}, 18")
        A(f"s_mul_i32 {s(T)}, {s(self.S_KG)}, 20")
        A(f"s_sub_u32 {s(T)}, {s(S_IDX)}, {s(T)}")
        A(f"s_lshl2_add_u32 {s(T + 1)}, {s(self.S_KG)}, {s(S_WAVE)}")
        A(f"s_lshl_b32 {s(self.S_PD)}, {s(T + 1)}, 5")
        A(f"s_and_b32 {s(T + 2)}, {s(T)}, -4")
        A(f"s_add_u32 {s(self.S_PD)}, {s(self.S_PD)}, {s(T + 2)}")
        A(f"s_add_u32 {s(self.S_PD)}, {s(self.S_PD)}, {FOD}")
        A(f"s_lshr_b32 {s(T + 2)}, {s(T + 1)}, 3")
        A(f"s_mul_i32 {s(T + 2)}, {s(T + 2)}, 24")
        A(f"s_add_u32 {s(T + 1)}, {s(T + 1)}, {s(T + 2)}")
        A(f"s_lshl_b32 {s(T + 1)}, {s(T + 1)}, 2")
        A(f"v_mov_b32 {v(V_FO)}, {s(T + 1)}")
        A(f"v_bfe_u32 {v(V_T)}, {v(V_LANE)}, 2, 3")
        A(f"v_mul_u32_u24 {v(self.V_OA)}, 5120, {v(V_T)}")
        A(f"v_and_b32 {v(V_T)}, 3, {v(V_LANE)}")
        A(f"v_lshl_add_u32 {v(self.V_OA)}, {v(V_T)}, 4, {v(self.V_OA)}")
        A(f"v_lshrrev_b32 {v(V_T)}, 5, {v(V_LANE)}")
        A(f"v_lshl_add_u32 {v(self.V_OA)}, {v(V_T)}, 6, {v(self.V_OA)}")
        A(f"s_mul_i32 {s(S_C0)}, {s(self.S_KG)}, {768 * 1280}")
        A(f"s_lshl_b32 {s(T + 1)}, {s(T)}, 6")
        A(f"s_add_u32 {s(S_C0)}, {s(S_C0)}, {s(T + 1)}")
        A(f"s_mul_i32 {s(self.S_OUT)}, {s(self.S_KG)}, 40960")
        A(f"s_lshl_b32 {s(T)}, {s(T)}, 8")
        A(f"s_add_u32 {s(self.S_OUT)}, {s(self.S_OUT)}, {s(T)}")
        A(f"s_add_u32 {s(self.S_OUT)}, {s(self.S_OUT)}, {WOP}")
        A(f"s_lshl_b32 {s(self.S_FW)}, {s(S_IDX)}, 2")
        A(f"s_add_u32 {s(self.S_FW)}, {s(self.S_FW)}, {FWOP2}")

    def weights(self, WL):
        A = self.A
        WL.add(lambda: make_srd(A, SRD_W, P_WO, 6144 * 1280), S_C0, 1280, 2, 24, self.wreg, "perm")

    def ring_setup(self):
        self.A(f"s_mov_b64 {s(S_BM, 2)}, -1")
        self.A(f"s_mov_b64 s[80:81], -1")

    def flag_soff(self, dst, rl, rs):
        row_of(self.A, dst, rl, rs, flag_row(F_O))

    def dma(self, rl, rs, ldsreg):
        A = self.A
        if self.cfg.oring:
            A(f"s_and_b32 {s(T)}, {s(rs)}, 3")
            A(f"s_lshl2_add_u32 {s(T)}, {s(rl)}, {s(T)}")
            A(f"s_mul_i32 {s(T)}, {s(T)}, {QKV_SEG}")
        else:
            A(f"s_mul_i32 {s(T)}, {s(rs)}, {QKV_SEG}")
        A(f"s_mul_i32 {s(T + 1)}, {s(self.S_KG)}, 49152")
        A(f"s_add_u32 {s(T)}, {s(T)}, {s(T + 1)}")
        A(f"s_mul_i32 {s(T + 1)}, {s(S_WAVE)}, 12288")
        A(f"s_add_u32 {s(T)}, {s(T)}, {s(T + 1)}")
        A(f"s_add_u32 {s(T)}, {s(T)}, {OX}")
        A(f"s_add_u32 {s(T + 1)}, {s(T + 1)}, {s(ldsreg)}")
        self.lin_dma(T, T + 1, 12)

    def landed(self):
        if not self.cfg.oring:
            return 0
        A = self.A
        A(f"s_lshl_b32 {s(T + 4)}, {s(S_L)}, 10")
        A(f"s_add_u32 {s(T + 4)}, {s(T + 4)}, {s(self.S_PD)}")
        A(f"s_add_u32 {s(T + 5)}, {s(S_S)}, 1")
        A(f"v_mov_b32 {v(self.V_TA + 1)}, {s(T + 5)}")
        A("s_mov_b64 exec, 1")
        loc(A, self.local_in, [f"buffer_store_dword {v(self.V_TA + 1)}, {v(V_L16)}, {WS}, {s(T + 4)} offen"])
        A("s_mov_b64 exec, -1")
        return 1

    def epilogue(self):
        A = self.A
        A(f"s_mul_i32 {s(T + 2)}, {s(S_S)}, {WOP_SEG}")
        A(f"s_add_u32 {s(T + 2)}, {s(T + 2)}, {s(self.S_OUT)}")
        A(f"s_lshl_b32 {s(T + 1)}, {s(S_L)}, 6")
        A(f"s_add_u32 {s(T + 1)}, {s(T + 1)}, {s(S_S)}")
        A(f"s_mul_i32 {s(T + 1)}, {s(T + 1)}, 640")
        A(f"s_add_u32 {s(S_FADDR)}, {s(T + 1)}, {s(self.S_FW)}")
        for i in range(8):
            A(f"v_cvt_pk_bf16_f32 {v(self.V_PK + i)}, {v(self.acc(0) + 2 * i)}, {v(self.acc(0) + 2 * i + 1)}")
        for k in range(2):
            A(f"buffer_store_dwordx4 {v(self.V_PK + 4 * k, 4)}, {v(self.V_OA)}, {WS}, {s(T + 2)} offen offset:{k * 128} sc1")


def gen_r3(A, cfg, nwg):
    V_XA, V_XB, V_XD, V_BA, V_LWA, V_LRA, V_FW = 16, 17, 18, 19, 20, 21, 24
    V_ST = 28
    V_P, V_PB, V_X, V_XX = 36, 68, 76, 80
    V_A, V_B, V_U = 82, 92, 100
    V_PM, V_PY, V_LR = 112, 124, 136
    S_LAY, S_PW, S_XW, S_XS, S_LO, S_HI, S_O1, S_O2 = range(S_K, S_K + 8)
    lane_reduce, sums, norm, _ = row_helpers(A)
    A.label("ROLE_R1")
    A(f"s_lshr_b32 {s(S_LAY)}, {s(S_ROLE)}, 3")
    A(f"s_and_b32 {s(S_ROLE)}, {s(S_ROLE)}, 7")
    base_setup(A)
    dq, g_, c_ = V_T, V_T + 1, V_T + 2
    A(f"v_lshrrev_b32 {v(dq)}, 4, {v(V_LANE)}")
    A(f"v_bfe_u32 {v(g_)}, {v(V_LANE)}, 2, 2")
    A(f"v_and_b32 {v(c_)}, 3, {v(V_LANE)}")
    A(f"v_add_u32 {v(V_T + 3)}, {s(S_ROLE)}, {v(g_)}")
    A(f"v_and_b32 {v(V_T + 3)}, 3, {v(V_T + 3)}")
    A(f"v_lshlrev_b32 {v(V_XB)}, 6, {v(V_T + 3)}")
    A(f"v_lshl_add_u32 {v(V_XB)}, {v(c_)}, 4, {v(V_XB)}")
    A(f"s_lshl_b32 {s(T)}, {s(S_ROLE)}, 8")
    A(f"s_lshl_b32 {s(T + 1)}, {s(S_WAVE)}, 13")
    A(f"s_add_u32 {s(T + 1)}, {s(T + 1)}, {s(T)}")
    A(f"v_lshl_add_u32 {v(V_XA)}, {v(dq)}, 11, {v(V_XB)}")
    A(f"v_add_u32 {v(V_XA)}, {s(T + 1)}, {v(V_XA)}")
    A(f"s_lshl_b32 {s(T + 1)}, {s(S_WAVE)}, 11")
    A(f"s_add_u32 {s(T + 1)}, {s(T + 1)}, {s(T)}")
    A(f"s_add_u32 {s(T + 1)}, {s(T + 1)}, 32768")
    A(f"v_add_u32 {v(V_XB)}, {s(T + 1)}, {v(V_XB)}")
    A(f"v_lshl_add_u32 {v(V_XD)}, {v(dq)}, 2, {v(V_XB)}")
    A(f"v_mul_u32_u24 {v(V_BA)}, 40960, {v(dq)}")
    A(f"v_and_b32 {v(V_T + 3)}, 0xff, {v(V_L16)}")
    A(f"v_add_u32 {v(V_BA)}, {v(V_BA)}, {v(V_T + 3)}")
    A(f"s_mul_i32 {s(T)}, {s(S_WAVE)}, 768")
    A(f"s_sub_u32 {s(T)}, 4096, {s(T)}")
    A(f"v_add_u32 {v(V_BA)}, {s(T)}, {v(V_BA)}")
    A(f"s_mul_i32 {s(S_PW)}, {s(S_ROLE)}, 5120")
    A(f"s_lshl_b32 {s(T)}, {s(S_WAVE)}, 10")
    A(f"s_add_u32 {s(S_PW)}, {s(S_PW)}, {s(T)}")
    A(f"s_add_u32 {s(S_PW)}, {s(S_PW)}, {WOP}")
    A(f"s_cmp_eq_u32 {s(S_LAY)}, 0")
    A(f"s_mov_b32 {s(S_XW)}, {XIN + 64 * XSEGS}")
    A(f"s_cselect_b32 {s(S_XW)}, {X0R}, {s(S_XW)}")
    A(f"s_mov_b32 {s(S_XS)}, {XSEGS}")
    A(f"s_cselect_b32 {s(S_XS)}, {XSEG}, {s(S_XS)}")
    A(f"s_mov_b32 {s(S_LO)}, 0x3f80")
    A(f"s_mov_b32 {s(S_HI)}, 0x3f800000")
    A(f"v_lshlrev_b32 {v(V_LRA)}, 5, {v(c_)}")
    A(f"s_lshl_b32 {s(T)}, {s(S_WAVE)}, 3")
    A(f"v_add_u32 {v(V_LWA)}, {s(T)}, {v(V_LRA)}")
    A(f"v_min_u32 {v(V_FO)}, 39, {v(V_LANE)}")
    A(f"v_lshlrev_b32 {v(V_FO)}, 4, {v(V_FO)}")
    init_barrier_arrive(A, V_T)
    numa_probe(A, cfg, S_LAY)
    init_barrier_wait(A, V_T, nwg, cfg)
    st = Stamper(A, cfg, 84, 10)
    A(f"s_mov_b32 s83, {s(S_GID)}")
    st.init()
    A(f"s_mov_b32 {s(S_L)}, {s(S_LAY)}")
    A(f"s_mov_b32 {s(S_S)}, 0")
    A(f"s_mul_i32 {s(S_UF)}, {s(S_LAY)}, {64 * 640}")
    A(f"s_add_u32 {s(S_UF)}, {s(S_UF)}, {FWOP2}")
    A.label("R1_LOOP")
    A(f"s_mul_i32 {s(T + 6)}, {s(S_S)}, {WOP_SEG}")
    A(f"s_add_u32 {s(T + 6)}, {s(T + 6)}, {s(S_PW)}")
    A(f"s_mul_i32 {s(T + 5)}, {s(S_S)}, {s(S_XS)}")
    A(f"s_add_u32 {s(T + 5)}, {s(T + 5)}, {s(S_XW)}")
    A(f"s_lshl_b32 {s(T)}, {s(S_L)}, 6")
    A(f"s_add_u32 {s(T)}, {s(T)}, {s(S_S)}")
    A(f"s_mul_i32 {s(S_O1)}, {s(T)}, {XSEG}")
    A(f"s_add_u32 {s(S_O1)}, {s(S_O1)}, {XM}")
    A(f"s_mul_i32 {s(S_O2)}, {s(T)}, {XSEGS}")
    A(f"s_add_u32 {s(S_O2)}, {s(S_O2)}, {YB}")
    flag_addr(A, S_FADDR, flag_row(F_R1))
    lab, top = A.newlabel("rp"), A.newlabel("rt")
    A(f"s_cmp_lg_u32 {s(S_WAVE)}, 0")
    A(f"s_cbranch_scc1 {lab}")
    A.label(top)
    A(f"buffer_load_dwordx4 {v(V_FW, 4)}, {v(V_FO)}, {WS}, {s(S_UF)} offen sc1")
    A("s_waitcnt vmcnt(0)")
    A(f"v_min3_u32 {v(V_FW)}, {v(V_FW)}, {v(V_FW + 1)}, {v(V_FW + 2)}")
    A(f"v_min_u32 {v(V_FW)}, {v(V_FW)}, {v(V_FW + 3)}")
    A(f"v_cmp_eq_u32 vcc, 0, {v(V_FW)}")
    poll_tail(A, top, sleep=cfg.wgp - 1)
    A.label(lab)
    A("s_barrier")
    st(9)
    V = Vm(A)
    for m in range(2):
        A(f"s_add_u32 {s(T + 3)}, {s(T + 6)}, {m * 4 * 40960}")
        V.op(("B", m), f"buffer_load_dwordx4 {v(V_PB + 4 * m, 4)}, {v(V_BA)}, {WS}, {s(T + 3)} offen sc1")
    V.op("x", f"buffer_load_dwordx4 {v(V_X, 4)}, {v(V_XA)}, {WS}, {s(T + 5)} offen sc1")
    V.op("x", f"buffer_load_dword {v(V_XX)}, {v(V_XD)}, {WS}, {s(T + 5)} offen sc1")
    for kg in range(8):
        A(f"s_add_u32 {s(T + 3)}, {s(T + 6)}, {kg * 40960}")
        V.op(("P", kg), f"buffer_load_dwordx4 {v(V_P + 4 * kg, 4)}, {v(V_L16)}, {WS}, {s(T + 3)} offen sc1")

    def accum(dst, src):
        for i in range(4):
            A(f"v_dot2c_f32_bf16 {v(dst + 2 * i)}, {s(S_LO)}, {v(src + i)}")
            A(f"v_dot2c_f32_bf16 {v(dst + 2 * i + 1)}, {s(S_HI)}, {v(src + i)}")
    V.wait(("B", 0))
    unpack8(A, V_B, V_PB)
    V.wait(("B", 1))
    accum(V_B, V_PB + 4)
    for i in range(4):
        A(f"v_permlane32_swap_b32 {v(V_B + i)}, {v(V_B + 4 + i)}")
    for i in range(4):
        A(f"v_add_f32 {v(V_B + i)}, {v(V_B + i)}, {v(V_B + 4 + i)}")
    for i in range(2):
        A(f"v_permlane16_swap_b32 {v(V_B + i)}, {v(V_B + 2 + i)}")
    for i in range(2):
        A(f"v_add_f32 {v(V_A + 8 + i)}, {v(V_B + i)}, {v(V_B + 2 + i)}")
    V.wait("x")
    unpack8(A, V_U, V_X)
    A(f"v_lshlrev_b32 {v(V_U + 8)}, 16, {v(V_XX)}")
    A(f"v_and_b32 {v(V_U + 9)}, 0xffff0000, {v(V_XX)}")
    V.wait(("P", 0))
    unpack8(A, V_A, V_P)
    for kg in range(1, 8):
        V.wait(("P", kg))
        accum(V_A, V_P + 4 * kg)
    st(4)
    X = [V_A + i for i in range(10)]
    for i in range(0, 10, 2):
        if cfg.arn:
            rnd2(A, V_T + (i & 2), X[i], X[i + 1])
    for i in range(0, 10, 2):
        A(f"v_pk_add_f32 {v(X[i], 2)}, {v(X[i], 2)}, {v(V_U + i, 2)}")
    for i in range(0, 10, 2):
        rnd2(A, V_PM + i // 2, X[i], X[i + 1])
    sums(X, V_ST)
    lane_reduce(V_ST)
    A(f"ds_write_b64 {v(V_LWA)}, {v(V_ST, 2)}")

    def out(b, soff):
        A(f"buffer_store_dwordx4 {v(b, 4)}, {v(V_XA)}, {WS}, {s(soff)} offen sc1")
        A(f"v_mov_b32 {v(b + 5)}, {v(b + 4)}")
        A(f"v_permlane16_swap_b32 {v(b + 4)}, {v(b + 5)}")
        A(f"v_permlane32_swap_b32 {v(b + 4)}, {v(b + 6)}")
        A(f"v_permlane32_swap_b32 {v(b + 5)}, {v(b + 7)}")
        A("s_mov_b64 exec, 0xffff")
        A(f"buffer_store_dwordx4 {v(b + 4, 4)}, {v(V_XB)}, {WS}, {s(soff)} offen sc1")
        A("s_mov_b64 exec, -1")
    A("s_waitcnt lgkmcnt(0)")
    A("s_barrier")
    A(f"ds_read_b128 {v(V_LR, 4)}, {v(V_LRA)}")
    A(f"ds_read_b128 {v(V_LR + 4, 4)}, {v(V_LRA)} offset:16")
    out(V_PM, S_O1)
    A("s_waitcnt lgkmcnt(0)")
    A(f"v_pk_add_f32 {v(V_LR, 2)}, {v(V_LR, 2)}, {v(V_LR + 2, 2)}")
    A(f"v_pk_add_f32 {v(V_LR + 4, 2)}, {v(V_LR + 4, 2)}, {v(V_LR + 6, 2)}")
    A(f"v_pk_add_f32 {v(V_ST, 2)}, {v(V_LR, 2)}, {v(V_LR + 4, 2)}")
    finish_stats(A, V_ST, V_ST + 1, V_T, keep=V_ST + 4)
    for i in range(0, 10, 2):
        A(f"v_pk_add_f32 {v(X[i], 2)}, {v(X[i], 2)}, {v(V_ST, 2)} op_sel_hi:[1,0] neg_lo:[0,1] neg_hi:[0,1]")
    for i in range(0, 10, 2):
        rnd2(A, V_T + (i & 2), X[i], X[i + 1])
    for i in range(0, 10, 2):
        A(f"v_pk_mul_f32 {v(X[i], 2)}, {v(X[i], 2)}, {v(V_ST, 2)} op_sel:[0,1] op_sel_hi:[1,1]")
    for i in range(0, 10, 2):
        A(f"v_cvt_pk_bf16_f32 {v(V_PY + i // 2)}, {v(X[i])}, {v(X[i + 1])}")
    out(V_PY, S_O2)
    lz = A.newlabel("zs")
    A(f"s_cmp_lg_u32 {s(S_WAVE)}, 3")
    A(f"s_cbranch_scc1 {lz}")
    A(f"v_sub_f32 {v(V_ST + 4)}, {v(V_ST + 4)}, {v(V_ST)}")
    A(f"v_mul_f32 {v(V_ST + 5)}, {v(V_ST + 5)}, {v(V_ST + 1)}")
    A(f"v_mul_f32 {v(V_ST + 4)}, {v(V_ST + 4)}, {v(V_ST + 1)}")
    A(f"v_mul_f32 {v(V_ST + 5)}, {v(V_ST + 5)}, {v(V_ST + 1)}")
    finish_stats(A, V_ST + 4, V_ST + 5, V_T, scaled=True)
    A(f"s_lshl_b32 {s(T)}, {s(S_ROLE)}, {7 if cfg.sl else 5}")
    A(f"s_add_u32 {s(T + 3)}, {s(S_O2)}, {s(T)}")
    A(f"s_add_u32 {s(T + 3)}, {s(T + 3)}, 40960")
    A(f"v_lshlrev_b32 {v(V_T)}, 3, {v(V_LANE)}")
    A(f"s_mov_b64 exec, {0xffff if cfg.sl else 15}")
    A(f"buffer_store_dwordx2 {v(V_ST + 4, 2)}, {v(V_T)}, {WS}, {s(T + 3)} offen sc1")
    A("s_mov_b64 exec, -1")
    A.label(lz)
    st(7)
    A(f"s_add_u32 {s(S_S)}, {s(S_S)}, 1")
    A(f"s_add_u32 {s(S_UF)}, {s(S_UF)}, 640")
    A("s_waitcnt vmcnt(0)")
    flag_put(A, S_FADDR)
    st(8)
    A(f"s_cmp_lt_u32 {s(S_S)}, 64")
    A("s_cbranch_scc1 R1_LOOP")
    st.dump(83, T, V_T)
    A("s_endpgm")


class WO_3(G3, WO32):
    def __init__(self, A, cfg, nwg):
        WO32.__init__(self, A, cfg, nwg)
        self.kd0, self.kdstep, self.kf1, self.ksmp, self.psleep = 0, 2, 24, 0.6, cfg.wgp - 1


class Vm:
    def __init__(self, A, q=()):
        self.A, self.q = A, list(q)

    def op(self, tag, text):
        self.A(text)
        self.q.append(tag)

    def wait(self, tag):
        if tag not in self.q:
            return
        i = len(self.q) - 1 - self.q[::-1].index(tag)
        self.A(f"s_waitcnt vmcnt({len(self.q) - 1 - i})")
        self.q = self.q[i + 1:]


def gen_ks(A, cfg, nwg, wo):
    nm = "WO" if wo else "W4"
    V_IN, V_ACC, V_RD, V_XX, V_XU, V_PK = 16, 112, 144, 176, 184, 200
    V_SAD, V_OA, V_LW, V_LR, V_CA = 204, 205, 206, 207, 208
    S_J, S_TT, S_CH, S_INW, S_CB, S_NB, S_OUT, S_FW = range(S_K, S_K + 8)
    SRD_O = 76
    assert cfg.ring
    local_in = bool(cfg.oloc if wo else cfg.bloc)
    A.label("ROLE_" + nm)
    base_setup(A)
    for k in range(2):
        chunk_addr(A, V_CA + k, k, False)
    if wo:
        S_KG, S_CG = T + 4, T + 5
        A(f"s_mul_i32 {s(S_KG)}, {s(S_ROLE)}, 6554")
        A(f"s_lshr_b32 {s(S_KG)}, {s(S_KG)}, 16")
        A(f"s_mul_i32 {s(T)}, {s(S_KG)}, 10")
        A(f"s_sub_u32 {s(S_CG)}, {s(S_ROLE)}, {s(T)}")
        A(f"v_min_u32 {v(V_FO)}, 1, {v(V_LANE)}")
        A(f"s_lshl_b32 {s(T)}, {s(S_KG)}, 4")
        A(f"s_add_u32 {s(T)}, {s(T)}, {s(S_WAVE)}")
        A(f"s_lshl_b32 {s(T)}, {s(T)}, 1")
    else:
        S_CG = S_ROLE
        A(f"v_min_u32 {v(V_FO)}, 11, {v(V_LANE)}")
        A(f"s_mul_i32 {s(T)}, {s(S_WAVE)}, 12")
    A(f"v_add_u32 {v(V_FO)}, {s(T)}, {v(V_FO)}")
    A(f"v_lshlrev_b32 {v(V_FO)}, 2, {v(V_FO)}")
    A(f"s_and_b32 {s(T)}, {s(S_WAVE)}, 1")
    A(f"s_lshl_b32 {s(S_J)}, {s(S_CG)}, 1")
    A(f"s_add_u32 {s(S_J)}, {s(S_J)}, {s(T)}")
    A(f"s_lshr_b32 {s(S_TT)}, {s(S_WAVE)}, 1")
    A(f"s_mul_i32 {s(S_INW)}, {s(S_WAVE)}, 24576")
    A(f"s_mul_i32 {s(S_C0)}, {s(S_WAVE)}, {384 * 1280}")
    A(f"s_lshl_b32 {s(T + 1)}, {s(S_CG)}, 7")
    A(f"s_add_u32 {s(S_C0)}, {s(S_C0)}, {s(T + 1)}")
    if wo:
        A(f"s_mul_i32 {s(T + 1)}, {s(S_KG)}, {1536 * 1280}")
        A(f"s_add_u32 {s(S_C0)}, {s(S_C0)}, {s(T + 1)}")
        A(f"s_mul_i32 {s(T + 1)}, {s(S_KG)}, 98304")
        A(f"s_add_u32 {s(S_INW)}, {s(S_INW)}, {s(T + 1)}")
        A(f"s_add_u32 {s(S_INW)}, {s(S_INW)}, {OX}")
        A(f"v_bfe_u32 {v(V_T)}, {v(V_LANE)}, 2, 2")
        A(f"v_mul_u32_u24 {v(V_OA)}, 10240, {v(V_T)}")
        A(f"v_and_b32 {v(V_T)}, 3, {v(V_LANE)}")
        A(f"v_lshl_add_u32 {v(V_OA)}, {v(V_T)}, 4, {v(V_OA)}")
        A(f"v_lshrrev_b32 {v(V_T)}, 4, {v(V_LANE)}")
        A(f"v_lshl_add_u32 {v(V_OA)}, {v(V_T)}, 6, {v(V_OA)}")
        A(f"s_mul_i32 {s(S_OUT)}, {s(S_KG)}, 81920")
        A(f"s_mul_i32 {s(T + 1)}, {s(S_TT)}, 40960")
        A(f"s_add_u32 {s(S_OUT)}, {s(S_OUT)}, {s(T + 1)}")
        A(f"s_lshl_b32 {s(T + 1)}, {s(S_J)}, 9")
        A(f"s_add_u32 {s(S_OUT)}, {s(S_OUT)}, {s(T + 1)}")
        A(f"s_add_u32 {s(S_OUT)}, {s(S_OUT)}, {WOP}")
        A(f"s_lshl1_add_u32 {s(S_FW)}, {s(S_ROLE)}, {s(T)}")
        A(f"s_lshl_b32 {s(S_FW)}, {s(S_FW)}, 2")
        A(f"s_mul_i32 {s(T + 1)}, {s(S_TT)}, 320")
        A(f"s_add_u32 {s(S_FW)}, {s(S_FW)}, {s(T + 1)}")
        A(f"s_add_u32 {s(S_FW)}, {s(S_FW)}, {FWOP2}")
    else:
        A(f"s_add_u32 {s(S_INW)}, {s(S_INW)}, {GB}")
        A(f"v_and_b32 {v(V_T)}, 15, {v(V_LANE)}")
        A(f"v_lshlrev_b32 {v(V_SAD)}, 3, {v(V_T)}")
        A(f"s_lshl_b32 {s(T)}, {s(S_TT)}, 4")
        A(f"v_add_u32 {v(V_T)}, {s(T)}, {v(V_T)}")
        A(f"v_mul_u32_u24 {v(V_OA)}, 1280, {v(V_T)}")
        if cfg.o4:
            A(f"v_bfe_u32 {v(V_T)}, {v(V_LANE)}, 4, 1")
            A(f"v_lshl_add_u32 {v(V_OA)}, {v(V_T)}, 5, {v(V_OA)}")
            A(f"v_lshrrev_b32 {v(V_T)}, 5, {v(V_LANE)}")
            A(f"v_lshl_add_u32 {v(V_OA)}, {v(V_T)}, 4, {v(V_OA)}")
        else:
            A(f"v_lshrrev_b32 {v(V_T)}, 4, {v(V_LANE)}")
            A(f"v_lshl_add_u32 {v(V_OA)}, {v(V_T)}, 3, {v(V_OA)}")
        A(f"s_lshl_b32 {s(T)}, {s(S_J)}, 6")
        A(f"v_add_u32 {v(V_OA)}, {s(T)}, {v(V_OA)}")
        make_srd(A, SRD_O, P_OUT, 2048 * 1280)
        A(f"s_lshl_b32 {s(S_CH)}, {s(S_J)}, 1")
        A(f"s_add_u32 {s(S_CH)}, {s(S_CH)}, {s(S_TT)}")
        A(f"s_lshl_b32 {s(S_CH)}, {s(S_CH)}, 10")
    A(f"v_bfe_u32 {v(V_T)}, {v(V_LANE)}, 4, 1")
    A(f"v_lshlrev_b32 {v(V_LW)}, 14, {v(V_T)}")
    A(f"v_lshrrev_b32 {v(V_T)}, 5, {v(V_LANE)}")
    A(f"v_lshl_add_u32 {v(V_LW)}, {v(V_T)}, 8, {v(V_LW)}")
    A(f"v_and_b32 {v(V_T)}, 15, {v(V_LANE)}")
    A(f"v_lshl_add_u32 {v(V_LW)}, {v(V_T)}, 4, {v(V_LW)}")
    A(f"s_lshl_b32 {s(T)}, {s(S_WAVE)}, 11")
    A(f"v_add_u32 {v(V_LW)}, {s(T)}, {v(V_LW)}")
    A(f"s_lshl_b32 {s(T)}, {s(S_WAVE)}, 13")
    A(f"v_add_u32 {v(V_LR)}, {s(T)}, {v(V_L16)}")
    mark_ring(A, cfg, 22)
    init_barrier_arrive(A, V_T)
    if cfg.lw:
        wait_first(A, cfg, nwg, 22)
    WL = WLoader(A, V_T, T + 3)
    WL.add(lambda: make_srd(A, SRD_W, P_WO if wo else P_W4, (6144 if wo else 1536) * 1280), S_C0, 1280, 4, 12,
           lambda tl, j, u: ("a", ((tl * 12 + j) * 2 + u) * 4), "perm")
    WL.emit(V_LANE)
    A("s_barrier")
    if not cfg.lw:
        init_barrier_wait(A, V_T, nwg, cfg)
    st = Stamper(A, cfg, 84, 8)
    A(f"s_mov_b32 s83, {s(S_GID)}")

    def decode(A):
        A(f"s_min_u32 {s(T + 2)}, {s(S_U)}, 127")
        item_of(A, T + 2, S_UL, S_US, cfg.LAG + cfg.dlt + (0 if wo else cfg.dl1 + cfg.dl2 + cfg.dl3 + cfg.dl4), 0, T)
        row_of(A, S_UF, S_UL, S_US, flag_row(F_O if wo else F_G))
        if wo:
            A(f"s_mul_i32 {s(S_NB)}, {s(S_US)}, {QKV_SEG}")
        else:
            if cfg.ring:
                A(f"s_and_b32 {s(T)}, {s(S_US)}, {NG - 1}")
                A(f"s_lshl2_add_u32 {s(T)}, {s(S_UL)}, {s(T)}")
            else:
                A(f"s_lshl_b32 {s(T)}, {s(S_UL)}, 6")
                A(f"s_add_u32 {s(T)}, {s(T)}, {s(S_US)}")
            A(f"s_mul_i32 {s(S_NB)}, {s(T)}, {GSEG}")
        A(f"s_add_u32 {s(S_NB)}, {s(S_NB)}, {s(S_INW)}")

    def ld(k, base, first=False):
        r = []
        if k % 4 == 0 or first:
            r.append(f"s_add_u32 {s(T + 3)}, {s(base)}, {(k // 4) * 4096}")
        if cfg.lin:
            r.append(f"buffer_load_dwordx4 {v(V_IN + 4 * k, 4)}, {v(V_L16)}, {WS}, {s(T + 3)} offen offset:{(k & 3) * 1024} sc1")
        else:
            r.append(f"buffer_load_dwordx4 {v(V_IN + 4 * k, 4)}, {v(V_CA + (k & 1))}, {WS}, {s(T + 3)} offen offset:{((k >> 1) & 1) * 2048} sc1")
        return r
    smp = f"buffer_load_dword {v(V_FV)}, {v(V_FO)}, {WS}, {s(S_UF)} offen sc1"
    check = [f"v_cmp_eq_u32 vcc, 0, {v(V_FV)}", f"s_cmp_eq_u64 vcc, 0\ns_cselect_b32 {s(S_GO)}, 0, {HUGE}",
             f"s_cmp_lt_u32 {s(S_U)}, 128\ns_cselect_b32 {s(S_GO)}, {s(S_GO)}, {HUGE}"]
    AC, AW = cfg.kac, cfg.kah
    S_NG, E = T + 7, T + 4
    S_XMA = 43
    S_O1, S_O2, S_O3 = 40, 41, 42
    SK = 4

    def wr(tl):
        return [f"ds_write_b128 {v(V_LW)}, {v(V_ACC + 16 * tl + 8 * k + 4 * pc, 4)} offset:{tl * 8192 + pc * 1024 + k * 512}" for k in range(2) for pc in range(2)]

    S_VL, S_VS, S_VF, S_VB = 28, 29, 30, 31
    import re

    def decode2(A):
        c = Capture()
        decode(c)
        A(f"s_add_u32 {s(T + 2)}, {s(S_U)}, 1")
        A(f"s_min_u32 {s(T + 2)}, {s(T + 2)}, 127")
        for x in c.l[1:]:
            for p, q in ((S_UL, S_VL), (S_US, S_VS), (S_UF, S_VF), (S_NB, S_VB)):
                x = re.sub(rf"\bs{p}\b", f"s{q}", x)
            A(x)

    def shift():
        A(f"s_mov_b32 {s(S_L)}, {s(S_UL)}")
        A(f"s_mov_b32 {s(S_S)}, {s(S_US)}")
        A(f"s_mov_b32 {s(S_CB)}, {s(S_NB)}")
        A(f"s_add_u32 {s(S_U)}, {s(S_U)}, 1")
        A(f"s_mov_b64 {s(S_UL + 1, 2)}, {s(S_VL + 1, 2)}" if False else f"s_mov_b32 {s(S_UL)}, {s(S_VL)}")
        A(f"s_mov_b32 {s(S_US)}, {s(S_VS)}")
        A(f"s_mov_b32 {s(S_UF)}, {s(S_VF)}")
        A(f"s_mov_b32 {s(S_NB)}, {s(S_VB)}")

    sq = [(k, tl) for k in range(24 - SK) for tl in range(2)] + [(k, tl) for tl in range(2) for k in range(24 - SK, 24)]

    if cfg.w5 and not wo:
        assert cfg.o4
        S_O4, S_P1, S_P2, S_P3, S_P4 = 27, 20, 21, 22, 23
        V_P2 = 210
        X = [V_RD + i for i in range(8)]

        def cnt(x):
            if cfg.timing == 2:
                A(f"s_add_u32 s94, s94, {x}")

        def stats(A, pk):
            unpack8(A, V_RD, V_PK)
            t = V_T
            if pk:
                A(f"v_pk_add_f32 {v(t, 2)}, {v(X[0], 2)}, {v(X[2], 2)}")
                A(f"v_pk_mul_f32 {v(t + 2, 2)}, {v(X[0], 2)}, {v(X[0], 2)}")
                for i in range(2, 8, 2):
                    if i >= 4:
                        A(f"v_pk_add_f32 {v(t, 2)}, {v(t, 2)}, {v(X[i], 2)}")
                    A(f"v_pk_fma_f32 {v(t + 2, 2)}, {v(X[i], 2)}, {v(X[i], 2)}, {v(t + 2, 2)}")
            else:
                for k in range(2):
                    A(f"v_add_f32 {v(t + k)}, {v(X[k])}, {v(X[2 + k])}")
                    A(f"v_mul_f32 {v(t + 2 + k)}, {v(X[k])}, {v(X[k])}")
                for i in range(2, 8):
                    if i >= 4:
                        A(f"v_add_f32 {v(t + (i & 1))}, {v(t + (i & 1))}, {v(X[i])}")
                    A(f"v_fmac_f32 {v(t + 2 + (i & 1))}, {v(X[i])}, {v(X[i])}")
            A(f"v_add_f32 {v(t)}, {v(t)}, {v(t + 1)}")
            A(f"v_add_f32 {v(t + 1)}, {v(t + 2)}, {v(t + 3)}")
            A(f"v_permlane32_swap_b32 {v(t)}, {v(t + 1)}")
            A(f"v_add_f32 {v(t)}, {v(t)}, {v(t + 1)}")
            A(f"v_mov_b32 {v(t + 1)}, {v(t)}")
            A(f"v_permlane16_swap_b32 {v(t)}, {v(t + 1)}")
            A(f"v_add_f32 {v(t)}, {v(t)}, {v(t + 1)}")
            A(f"v_mov_b32 {v(t + 1)}, {v(t)}")
            A(f"v_permlane32_swap_b32 {v(t)}, {v(t + 1)}")

        def add8(A, pk, d, s_):
            for i in range(0, 8, 2 if pk else 1):
                A(f"v_pk_add_f32 {v(d + i, 2)}, {v(d + i, 2)}, {v(s_ + i, 2)}" if pk else f"v_add_f32 {v(d + i)}, {v(d + i)}, {v(s_ + i)}")

        def resid(A, pk):
            add8(A, pk, V_RD, V_RD + 16)
            for u in range(2):
                for i in range(0, 8, 2):
                    rnd2(A, V_T + (i & 2), X[i], X[i + 1])
                add8(A, pk, V_RD, V_XU + 8 * u)
            for i in range(0, 8, 2):
                A(f"v_cvt_pk_bf16_f32 {v(V_PK + i // 2)}, {v(X[i])}, {v(X[i + 1])}")

        def body(AH, kind):
            L = Lds(A)
            V = Vm(A, [("I", k) for k in range(AH)])
            seq, pre = [], {}

            def vm(tag, x):
                return (cfg.vmc, lambda: V.op(tag, x))
            for n, (k, tl) in enumerate(sq):
                if tl == 0:
                    pre[n] = (lambda k=k: V.wait(("I", k)))
                c = "0" if k == 0 else v(V_ACC + 16 * tl, 16)
                seq.append((f"{MF} {v(V_ACC + 16 * tl, 16)}, {a((tl * 24 + k) * 4, 4)}, {v(V_IN + 4 * k, 4)}, {c}", []))
            dec = Capture()
            decode2(dec)
            tdec = Task(0 if kind == "C" else 28, groups(dec.l))
            tcur = Task(0, [])
            for kk in range(AH, 24):
                ls = ld(kk, S_CB, kk == AH)
                tcur.items += ls[:-1] + [vm(("I", kk), ls[-1])]
            tcur.vstep = 2

            def nxt(off):
                t = Task(0, [])
                for kk in range(AH):
                    ls = ld(kk, S_NB)

                    def nx(kk=kk, x=ls[-1]):
                        assert GAP[0] + off >= sq.index((kk, 1)) and not tcur.items
                        V.op(("N", kk), x)
                    t.items += ls[:-1] + [(cfg.vmc, nx)]
                t.vstep = 2
                t.after = tcur
                return t

            def f1():
                V.wait(("I", AH))
                flag_put(A, S_FA1)
                V.q.append("f")
                A(f"s_mov_b32 {s(S_FA1)}, {HUGE}")
            tm = Task(0, [f"s_lshl_b32 {s(E)}, {s(S_L)}, 6", f"s_add_u32 {s(E)}, {s(E)}, {s(S_S)}",
                          f"s_and_b32 {s(E + 1)}, {s(S_S)}, {NX - 1}", f"s_lshl3_add_u32 {s(E + 1)}, {s(S_L)}, {s(E + 1)}",
                          f"s_mul_i32 {s(E + 1)}, {s(E + 1)}, {XSEGS}", f"s_add_u32 {s(E + 1)}, {s(E + 1)}, {s(S_CH)}", f"s_add_u32 {s(E + 1)}, {s(E + 1)}, {X1B}",
                          vm("X", f"buffer_load_dwordx4 {v(V_XX, 4)}, {v(V_L16)}, {WS}, {s(E + 1)} offen sc1"),
                          f"s_mul_i32 {s(S_XMA)}, {s(E)}, {XSEG}", f"s_add_u32 {s(S_XMA)}, {s(S_XMA)}, {s(S_CH)}", f"s_add_u32 {s(S_XMA)}, {s(S_XMA)}, {XM}"])
            tm2 = Task(0 if kind == "C" else 26, [
                f"v_xor_b32 {v(V_LW)}, 0x8000, {v(V_LW)}", f"v_xor_b32 {v(V_LR)}, 0x8000, {v(V_LR)}",
                f"s_lshl_b32 {s(S_FA2)}, {s(E)}, 9", f"s_lshl2_add_u32 {s(S_FA2)}, {s(S_IDX)}, {s(S_FA2)}",
                f"s_add_u32 {s(S_O3)}, {s(S_FA2)}, {flag_row(F_XIN, 1)}", f"s_add_u32 {s(S_FA2)}, {s(S_FA2)}, {flag_row(F_D4)}",
                f"s_mul_i32 {s(S_O2)}, {s(S_S)}, {XSEGS}", f"s_add_u32 {s(S_O2)}, {s(S_O2)}, {XIN + 64 * XSEGS}",
                f"s_lshl_b32 {s(E + 1)}, {s(S_L)}, 31", f"s_or_b32 {s(S_O2)}, {s(S_O2)}, {s(E + 1)}", f"s_or_b32 {s(S_O3)}, {s(S_O3)}, {s(E + 1)}",
                f"s_add_u32 {s(S_O1)}, {s(S_O2)}, {s(S_CH)}", f"s_lshr_b32 {s(E)}, {s(S_CH)}, 3", f"s_add_u32 {s(S_O2)}, {s(S_O2)}, {s(E)}",
                f"s_add_u32 {s(S_O2)}, {s(S_O2)}, 40960",
                f"s_mul_i32 {s(S_O4)}, {s(S_S)}, {32 * 1280}", f"s_xor_b32 {s(E + 1)}, {s(E + 1)}, {HUGE}", f"s_or_b32 {s(S_O4)}, {s(S_O4)}, {s(E + 1)}"])
            tm2.after = tm

            def xm():
                assert not tm.items
                V.op("XM", f"buffer_load_dwordx4 {v(V_XX + 4, 4)}, {v(V_P16)}, {WS}, {s(S_XMA)} offen sc1")
            tcur.items.append((cfg.vmc + 1, xm))
            tep = Task(0, [])
            if kind != "C":
                c1, c2, c3, c4 = Capture(), Capture(), Capture(), Capture()
                add8(c1, False, V_RD, V_RD + 8)
                add8(c2, False, V_RD + 16, V_RD + 24)
                resid(c3, False)
                stats(c4, False)
                L.q = ["r"] * 4 + ["r2"] * 4

                def sst():
                    A("s_mov_b64 exec, 0xffff")
                    V.op("pst", f"buffer_store_dwordx2 {v(V_T, 2)}, {v(V_SAD)}, {WS}, {s(S_P2)} offen sc1")
                    A("s_mov_b64 exec, -1")
                tep = Task(1, [(4, lambda: L.wait("r"))] + c1.l + [(4, lambda: L.wait("r2"))] + c2.l + c3.l
                           + [vm("pst", f"buffer_store_dwordx4 {v(V_PK, 4)}, {v(V_P16)}, {WS}, {s(S_P1)} offen sc1")] + c4.l + [(16, sst)]
                           + [f"v_permlane16_swap_b32 {v(V_PK)}, {v(V_PK + 2)}", f"v_permlane16_swap_b32 {v(V_PK + 1)}, {v(V_PK + 3)}",
                              vm("out", f"buffer_store_dwordx4 {v(V_PK, 4)}, {v(V_OA)}, {s(SRD_O, 4)}, {s(S_P4)} offen")])

            def tail(off):
                cu = Capture()
                unpack8(cu, V_XU, V_XX)
                t1 = Task(37 - off, [(4, lambda: V.wait("X"))] + cu.l)
                t1.after = tep

                def d4():
                    assert ("I", 23) not in V.q and "X" not in V.q and not tm2.items
                    flag_put(A, S_FA2, local_in)
                    V.q.append("f")
                return [t1, Task(44 - off, [(28, d4)]), Task(45 - off, [("w", x) for x in wr(0)])]

            def close(ks=(), dist=0):
                ex = [ld(k, S_NB, k == ks[0]) for k in ks]

                def one():
                    if ex:
                        for x in ex[0][:-1]:
                            A(x)
                        V.op("t", ex.pop(0)[-1])
                V.wait("XM")
                unpack8(A, V_XU + 8, V_XX + 4)
                for n, x in enumerate(wr(1)):
                    A(x)
                    one()
                if kind != "C":
                    V.wait("pst")
                    flag_put(A, S_P3)
                    V.q.append("f")
                A("s_waitcnt lgkmcnt(0)")
                A("s_barrier")
                st(3)
                for i in range(8):
                    A(f"ds_read_b128 {v(V_RD + 4 * i, 4)}, {v(V_LR)} offset:{i * 1024}")
                while ex:
                    one()

            def to_w(ks):
                V.op("A", f"buffer_load_dword {v(V_FV)}, {v(V_FO)}, {WS}, {s(S_VF)} offen sc1")
                close(ks)
                V.wait("A")
                A(f"s_branch {nm}_W")

            def second():
                close()
                V.wait("S2")
                for x in check:
                    A(x)
                A(f"s_cmp_eq_u32 {s(S_GO)}, 0")
                A.nf(f"s_cbranch_scc1 {nm}_E2")
                A.nf(f"s_branch {nm}_E0")
            if kind == "W1":
                sched(A, L, seq, [tcur, nxt(0), tm, tep, tm2, tdec] + tail(0), pre=pre, budget=24, nvalu=5)
                st(1)
                cnt(128)
                to_w(())
            elif kind == "W0":
                sched(A, L, seq, [tcur, Task(cfg.ks3, [vm("S2", smp)]), tm, tep, tm2, tdec] + tail(0), pre=pre, budget=24, nvalu=5)
                st(2)
                cnt(128000)
                second()
            else:
                kc = 2 * (24 - AH)
                tsm = Task(kc - 3 - cfg.ksl, [vm("S", smp)])
                tchk = Task(kc - 3, [(4, lambda: V.wait("S"))] + check + [f"s_cmp_eq_u32 {s(S_GO)}, 0"])
                sched(A, L, seq[:kc], [tcur, Task(cfg.kkc, [(24, f1)]), tsm, tm, tm2, tdec, tchk], pre=pre, budget=24, nvalu=5)
                no = A.newlabel("no")
                A.nf(f"s_cbranch_scc0 {no}")
                pre2 = {n - kc: f for n, f in pre.items() if n >= kc}
                q0 = list(V.q)
                sched(A, L, seq[kc:], [nxt(kc)] + tail(kc), pre=pre2, budget=24, nvalu=5)
                st(0)
                to_w(list(range(AC, AW)))
                A.label_nf(no)
                V.q = q0
                L.q = []
                sched(A, L, seq[kc:], [Task(max(0, cfg.ks3 - kc), [vm("S2", smp)])] + tail(kc), pre=pre2, budget=24, nvalu=5)
                st(0)
                second()

        def epilogue(sx, ks):
            A.label_nf(f"{nm}_{sx}")
            ex = [ld(k, S_NB, k == ks[0]) for k in ks]
            c = Capture()
            c("s_waitcnt lgkmcnt(4)")
            add8(c, True, V_RD, V_RD + 8)
            c("s_waitcnt lgkmcnt(0)")
            add8(c, True, V_RD + 16, V_RD + 24)
            resid(c, True)
            every = max(1, len(c.l) // max(1, len(ex)))
            for n, x in enumerate(c.l):
                if ex and n % every == 0:
                    for y in ex.pop(0):
                        A(y)
                A(x)
            assert not ex
            l1, l2 = A.newlabel("w4o"), A.newlabel("w4n")
            A(f"s_cmp_lg_u32 {s(S_L)}, 0")
            A(f"s_cbranch_scc1 {l1}")
            A(f"buffer_store_dwordx4 {v(V_PK, 4)}, {v(V_P16)}, {WS}, {s(S_O1)} offen sc1")
            stats(A, True)
            A("s_mov_b64 exec, 0xffff")
            A(f"buffer_store_dwordx2 {v(V_T, 2)}, {v(V_SAD)}, {WS}, {s(S_O2)} offen sc1")
            A("s_mov_b64 exec, -1")
            A(f"s_branch {l2}")
            A.label(l1)
            A(f"v_permlane16_swap_b32 {v(V_PK)}, {v(V_PK + 2)}")
            A(f"v_permlane16_swap_b32 {v(V_PK + 1)}, {v(V_PK + 3)}")
            A(f"buffer_store_dwordx4 {v(V_PK, 4)}, {v(V_OA)}, {s(SRD_O, 4)}, {s(S_O4)} offen")
            A.label(l2)
            A(f"s_mov_b32 {s(S_FA1)}, {s(S_O3)}")
            st(4)

        A(f"s_mov_b32 {s(S_U)}, 0")
        A(f"s_mov_b32 {s(S_FA1)}, {HUGE}")
        decode(A)
        decode2(A)
        st.init()
        A.label(nm + "_COLD")
        A(smp)
        A("s_waitcnt vmcnt(1)")
        flag_put(A, S_FA1)
        A(f"s_mov_b32 {s(S_FA1)}, {HUGE}")
        st(5)
        A(f"s_cmp_ge_u32 {s(S_U)}, 128")
        A(f"s_cbranch_scc1 {nm}_END")
        A("s_waitcnt vmcnt(1)")
        A(f"v_cmp_eq_u32 vcc, 0, {v(V_FV)}")
        A(f"s_cbranch_vccz {nm}_RDY")
        sv = cfg.fsl
        cfg.fsl = cfg.bps if local_in else cfg.wgp - 1
        flag_block(A, S_UF)
        cfg.fsl = sv
        A.label(nm + "_RDY")
        st(6)
        for k in range(AC):
            for x in ld(k, S_NB):
                A(x)
            if cfg.ksp and k < AC - 1:
                A(f"s_nop {cfg.ksp - 1}")
        A.label(nm + "_C")
        shift()
        body(AC, "C")
        epilogue("E2", list(range(AC)))
        A(f"s_branch {nm}_C")
        epilogue("E0", [])
        A(f"s_branch {nm}_COLD")
        A.label(nm + "_W")
        for d, s_ in ((S_P1, S_O1), (S_P2, S_O2), (S_P3, S_O3), (S_P4, S_O4)):
            A(f"s_mov_b32 {s(d)}, {s(s_)}")
        shift()
        for x in check:
            A(x)
        st(4)
        A(f"s_cmp_lg_u32 {s(S_GO)}, 0")
        A(f"s_cbranch_scc1 {nm}_W0")
        body(AW, "W1")
        A.label(nm + "_W0")
        body(AW, "W0")
        A.label(nm + "_END")
    else:
        XMW = {}

        def note(V, sx, extra=0):
            if "XM" in V.q:
                n = len(V.q) - 1 - V.q.index("XM") + extra
                assert sx not in XMW or XMW[sx] <= n, (sx, n, XMW)
                XMW.setdefault(sx, n)

        def cnt(x):
            if cfg.timing == 2:
                A(f"s_add_u32 s94, s94, {x}")

        def body(AH, kind):
            L = Lds(A)
            V = Vm(A, [("I", k) for k in range(AH)] + (["st", "st"] if kind != "C" else []))
            seq, pre = [], {}

            def vm(tag, x):
                return (cfg.vmc, lambda: V.op(tag, x))
            for n, (k, tl) in enumerate(sq):
                if tl == 0:
                    pre[n] = (lambda k=k: V.wait(("I", k)))
                c = "0" if k == 0 else v(V_ACC + 16 * tl, 16)
                seq.append((f"{MF} {v(V_ACC + 16 * tl, 16)}, {a((tl * 24 + k) * 4, 4)}, {v(V_IN + 4 * k, 4)}, {c}", []))
            dec = Capture()
            decode2(dec)
            tdec = Task(0, groups(dec.l))
            tcur = Task(0, [])
            for kk in range(AH, 24):
                ls = ld(kk, S_CB, kk == AH)
                tcur.items += ls[:-1] + [vm(("I", kk), ls[-1])]
            tcur.vstep = 2

            def nxt(off):
                t = Task(0, [])
                for kk in range(AH):
                    ls = ld(kk, S_NB)

                    def nx(kk=kk, x=ls[-1]):
                        assert GAP[0] + off >= sq.index((kk, 1)) and not tcur.items
                        V.op(("N", kk), x)
                    t.items += ls[:-1] + [(cfg.vmc, nx)]
                t.vstep = 2
                t.after = tcur
                return t

            def f1():
                V.wait(("I", AH) if kind == "C" else "st")
                flag_put(A, S_FA1)
                V.q.append("f")
                A(f"s_mov_b32 {s(S_FA1)}, {HUGE}")
            misc = [f"v_xor_b32 {v(V_LW)}, 0x8000, {v(V_LW)}", f"v_xor_b32 {v(V_LR)}, 0x8000, {v(V_LR)}"]
            if wo:
                misc += [f"s_mul_i32 {s(S_O1)}, {s(S_S)}, {WOP_SEG}", f"s_add_u32 {s(S_O1)}, {s(S_O1)}, {s(S_OUT)}",
                         f"s_lshl_b32 {s(E + 1)}, {s(S_L)}, 6", f"s_add_u32 {s(E + 1)}, {s(E + 1)}, {s(S_S)}", f"s_mul_i32 {s(E + 1)}, {s(E + 1)}, 640",
                         f"s_add_u32 {s(S_O3)}, {s(E + 1)}, {s(S_FW)}"]
            else:
                misc += [f"s_lshl_b32 {s(E)}, {s(S_L)}, 6", f"s_add_u32 {s(E)}, {s(E)}, {s(S_S)}",
                         f"s_and_b32 {s(E + 1)}, {s(S_S)}, {NX - 1}", f"s_lshl3_add_u32 {s(E + 1)}, {s(S_L)}, {s(E + 1)}",
                         f"s_mul_i32 {s(E + 1)}, {s(E + 1)}, {XSEGS}", f"s_add_u32 {s(E + 1)}, {s(E + 1)}, {s(S_CH)}", f"s_add_u32 {s(E + 1)}, {s(E + 1)}, {X1B}",
                         vm("X", f"buffer_load_dwordx4 {v(V_XX, 4)}, {v(V_L16)}, {WS}, {s(E + 1)} offen sc1"),
                         f"s_mul_i32 {s(E + 1)}, {s(E)}, {XSEG}", f"s_add_u32 {s(E + 1)}, {s(E + 1)}, {s(S_CH)}", f"s_add_u32 {s(E + 1)}, {s(E + 1)}, {XM}",
                         f"s_mov_b32 {s(S_XMA)}, {s(E + 1)}" if cfg.xml else vm("X", f"buffer_load_dwordx4 {v(V_XX + 4, 4)}, {v(V_P16)}, {WS}, {s(E + 1)} offen sc1"),
                         f"s_lshl_b32 {s(S_FA2)}, {s(E)}, 9", f"s_lshl2_add_u32 {s(S_FA2)}, {s(S_IDX)}, {s(S_FA2)}",
                         f"s_add_u32 {s(S_O3)}, {s(S_FA2)}, {flag_row(F_XIN, 1)}", f"s_add_u32 {s(S_FA2)}, {s(S_FA2)}, {flag_row(F_D4)}",
                         f"s_mul_i32 {s(S_O2)}, {s(S_S)}, {XSEGS}", f"s_add_u32 {s(S_O2)}, {s(S_O2)}, {XIN + 64 * XSEGS}",
                         f"s_add_u32 {s(S_O1)}, {s(S_O2)}, {s(S_CH)}", f"s_lshr_b32 {s(E)}, {s(S_CH)}, 3", f"s_add_u32 {s(S_O2)}, {s(S_O2)}, {s(E)}",
                         f"s_add_u32 {s(S_O2)}, {s(S_O2)}, 40960",
                         f"s_mul_i32 {s(E)}, {s(S_S)}, {32 * 1280}", f"s_cmp_lg_u32 {s(S_L)}, 0\ns_cselect_b32 {s(S_O1)}, {s(E)}, {s(S_O1)}\ns_cselect_b32 {s(S_O3)}, {HUGE}, {s(S_O3)}"]
            tm = Task(0, misc)
            if cfg.xml and not wo:
                def xm():
                    assert not tm.items
                    V.op("XM", f"buffer_load_dwordx4 {v(V_XX + 4, 4)}, {v(V_P16)}, {WS}, {s(S_XMA)} offen sc1")
                tcur.items.append((cfg.vmc + 1, xm))
            tf = Task(max(cfg.kkf, 2 * (24 - AH)) if kind != "C" else cfg.kkc, [(24, f1)])

            def tail(off):
                r = []
                if not wo:
                    cu = Capture()
                    unpack8(cu, V_XU, V_XX)
                    if not cfg.xml:
                        unpack8(cu, V_XU + 8, V_XX + 4)
                    r.append(Task(37 - off, [(4, lambda: V.wait("X"))] + cu.l))

                    def d4():
                        assert ("I", 23) not in V.q
                        flag_put(A, S_FA2, local_in)
                        V.q.append("f")
                    r.append(Task(44 - off, [(28, d4)]))
                r.append(Task(45 - off, [("w", x) for x in wr(0)]))
                return r

            def second():
                V.wait("S2")
                assert "XM" not in V.q
                for x in check:
                    A(x)
                A(f"s_cmp_eq_u32 {s(S_GO)}, 0")
                A.nf(f"s_cbranch_scc1 {nm}_E2")
                A.nf(f"s_branch {nm}_E0")
            if kind == "W1":
                sched(A, L, seq, [tcur, tf, nxt(0), tm, tdec] + tail(0), pre=pre, budget=24, nvalu=5)
                st(1)
                cnt(128)
                A(f"buffer_load_dword {v(V_FV)}, {v(V_FO)}, {WS}, {s(S_VF)} offen sc1")
                A("s_nop 5")
                note(V, "E0", 1)
                A.nf(f"s_branch {nm}_E0")
            elif kind == "W0":
                sched(A, L, seq, [tcur, tf, Task(cfg.ks2, [vm("S2", smp)]), tm, tdec] + tail(0), pre=pre, budget=24, nvalu=5)
                st(2)
                cnt(128000)
                second()
            else:
                kc = 2 * (24 - AH)
                tsm = Task(kc - 3 - cfg.ksl, [vm("S", smp)])
                tchk = Task(kc - 3, [(4, lambda: V.wait("S"))] + check + [f"s_cmp_eq_u32 {s(S_GO)}, 0"])
                sched(A, L, seq[:kc], [tcur, tf, tsm, tm, tdec, tchk], pre=pre, budget=24, nvalu=5)
                no = A.newlabel("no")
                A.nf(f"s_cbranch_scc0 {no}")
                pre2 = {n - kc: f for n, f in pre.items() if n >= kc}
                q0 = list(V.q)
                sched(A, L, seq[kc:], [nxt(kc)] + tail(kc), pre=pre2, budget=24, nvalu=5)
                st(0)
                A(f"buffer_load_dword {v(V_FV)}, {v(V_FO)}, {WS}, {s(S_VF)} offen sc1")
                A("s_nop 5")
                note(V, "E1", 1)
                A.nf(f"s_branch {nm}_E1")
                A.label_nf(no)
                V.q = q0
                L.q = []
                sched(A, L, seq[kc:], [Task(max(0, cfg.ks2 - kc), [vm("S2", smp)])] + tail(kc), pre=pre2, budget=24, nvalu=5)
                st(0)
                second()

        def epilogue(sx, ks):
            A.label_nf(f"{nm}_{sx}")
            ex = [ld(k, S_NB, k == ks[0]) for k in ks]

            def one(n=1):
                for _ in range(n):
                    if ex:
                        for x in ex.pop(0):
                            A(x)
            if ex:
                one()
                A("s_nop 2")
            else:
                A("s_nop 4")
            for n, x in enumerate(wr(1)):
                A(x)
                if n & 1:
                    one()
            A("s_waitcnt lgkmcnt(0)")
            A("s_barrier")
            st(3)
            for i in range(8):
                A(f"ds_read_b128 {v(V_RD + 4 * i, 4)}, {v(V_LR)} offset:{i * 1024}")
            if cfg.xml and not wo:
                A(f"s_waitcnt vmcnt({XMW[sx] + len(ks) - len(ex)})")
                unpack8(A, V_XU + 8, V_XX + 4)
            one(3 if not wo else 4)
            A("s_waitcnt lgkmcnt(4)")
            for i in range(0, 8, 2):
                A(f"v_pk_add_f32 {v(V_RD + i, 2)}, {v(V_RD + i, 2)}, {v(V_RD + 8 + i, 2)}")
            A("s_waitcnt lgkmcnt(0)")
            for i in range(0, 8, 2):
                A(f"v_pk_add_f32 {v(V_RD + 16 + i, 2)}, {v(V_RD + 16 + i, 2)}, {v(V_RD + 24 + i, 2)}")
            one()
            for i in range(0, 8, 2):
                A(f"v_pk_add_f32 {v(V_RD + i, 2)}, {v(V_RD + i, 2)}, {v(V_RD + 16 + i, 2)}")
            if wo:
                one(24)
                for k in range(2):
                    A(f"buffer_store_dwordx4 {v(V_RD + 4 * k, 4)}, {v(V_OA)}, {WS}, {s(S_O1)} offen offset:{k * 256} sc1")
            else:
                X = [V_RD + i for i in range(8)]
                for i in range(0, 8, 2):
                    rnd2(A, V_T, X[i], X[i + 1])
                one()
                for i in range(0, 8, 2):
                    A(f"v_pk_add_f32 {v(X[i], 2)}, {v(X[i], 2)}, {v(V_XU + i, 2)}")
                for i in range(0, 8, 2):
                    rnd2(A, V_T, X[i], X[i + 1])
                one()
                for i in range(0, 8, 2):
                    A(f"v_pk_add_f32 {v(X[i], 2)}, {v(X[i], 2)}, {v(V_XU + 8 + i, 2)}")
                for i in range(0, 8, 2):
                    A(f"v_cvt_pk_bf16_f32 {v(V_PK + i // 2)}, {v(X[i])}, {v(X[i + 1])}")
                one(24)
                l1, l2 = A.newlabel("w4o"), A.newlabel("w4n")
                A(f"s_cmp_lg_u32 {s(S_L)}, 0")
                A(f"s_cbranch_scc1 {l1}")
                A(f"buffer_store_dwordx4 {v(V_PK, 4)}, {v(V_P16)}, {WS}, {s(S_O1)} offen sc1")
                unpack8(A, V_RD, V_PK)
                t = V_T
                A(f"v_pk_add_f32 {v(t, 2)}, {v(X[0], 2)}, {v(X[2], 2)}")
                A(f"v_pk_mul_f32 {v(t + 2, 2)}, {v(X[0], 2)}, {v(X[0], 2)}")
                for i in range(2, 8, 2):
                    if i >= 4:
                        A(f"v_pk_add_f32 {v(t, 2)}, {v(t, 2)}, {v(X[i], 2)}")
                    A(f"v_pk_fma_f32 {v(t + 2, 2)}, {v(X[i], 2)}, {v(X[i], 2)}, {v(t + 2, 2)}")
                A(f"v_add_f32 {v(t)}, {v(t)}, {v(t + 1)}")
                A(f"v_add_f32 {v(t + 1)}, {v(t + 2)}, {v(t + 3)}")
                A(f"v_permlane32_swap_b32 {v(t)}, {v(t + 1)}")
                A(f"v_add_f32 {v(t)}, {v(t)}, {v(t + 1)}")
                A(f"v_mov_b32 {v(t + 1)}, {v(t)}")
                A(f"v_permlane16_swap_b32 {v(t)}, {v(t + 1)}")
                A(f"v_add_f32 {v(t)}, {v(t)}, {v(t + 1)}")
                A(f"v_mov_b32 {v(t + 1)}, {v(t)}")
                A(f"v_permlane32_swap_b32 {v(t)}, {v(t + 1)}")
                A("s_mov_b64 exec, 0xffff")
                A(f"buffer_store_dwordx2 {v(t, 2)}, {v(V_SAD)}, {WS}, {s(S_O2)} offen sc1")
                A("s_mov_b64 exec, -1")
                A(f"s_branch {l2}")
                A.label(l1)
                if cfg.deg:
                    m = (0xffff << cfg.deg) & 0xffff
                    h_ = 1 << (cfg.deg - 1)
                    for i in range(4):
                        A(f"v_and_b32 {v(V_PK + i)}, {m * 0x10001}, {v(V_PK + i)}")
                        if cfg.deg > 1:
                            A(f"v_or_b32 {v(V_PK + i)}, {h_ * 0x10001}, {v(V_PK + i)}")
                if cfg.o4:
                    A(f"v_permlane16_swap_b32 {v(V_PK)}, {v(V_PK + 2)}")
                    A(f"v_permlane16_swap_b32 {v(V_PK + 1)}, {v(V_PK + 3)}")
                    A(f"buffer_store_dwordx4 {v(V_PK, 4)}, {v(V_OA)}, {s(SRD_O, 4)}, {s(S_O1)} offen")
                    A("s_mov_b64 exec, 1")
                    A(f"buffer_store_dword {v(V_ONE)}, {v(V_L16)}, {WS}, {s(S_O3)} offen")
                    A("s_mov_b64 exec, -1")
                else:
                    A(f"buffer_store_dwordx2 {v(V_PK, 2)}, {v(V_OA)}, {s(SRD_O, 4)}, {s(S_O1)} offen")
                    A(f"buffer_store_dwordx2 {v(V_PK + 2, 2)}, {v(V_OA)}, {s(SRD_O, 4)}, {s(S_O1)} offen offset:32")
                A.label(l2)
            A(f"s_mov_b32 {s(S_FA1)}, {s(S_O3)}")
            st(4)

        A(f"s_mov_b32 {s(S_U)}, 0")
        A(f"s_mov_b32 {s(S_FA1)}, {HUGE}")
        decode(A)
        decode2(A)
        st.init()
        A.label(nm + "_COLD")
        A(smp)
        A("s_waitcnt vmcnt(1)")
        flag_put(A, S_FA1)
        A(f"s_mov_b32 {s(S_FA1)}, {HUGE}")
        st(5)
        A(f"s_cmp_ge_u32 {s(S_U)}, 128")
        A(f"s_cbranch_scc1 {nm}_END")
        A("s_waitcnt vmcnt(1)")
        A(f"v_cmp_eq_u32 vcc, 0, {v(V_FV)}")
        A(f"s_cbranch_vccz {nm}_RDY")
        sv = cfg.fsl
        cfg.fsl = cfg.bps if local_in else cfg.wgp - 1
        flag_block(A, S_UF)
        cfg.fsl = sv
        A.label(nm + "_RDY")
        st(6)
        for k in range(AC):
            for x in ld(k, S_NB):
                A(x)
            if cfg.ksp and k < AC - 1:
                A(f"s_nop {cfg.ksp - 1}")
        A.label(nm + "_C")
        shift()
        body(AC, "C")
        XMW["E2"] = 40
        XMW["E0"] = AW + 2
        epilogue("E2", list(range(AC)))
        A(f"s_branch {nm}_C")
        epilogue("E1", list(range(AC, AW)))
        A(f"s_waitcnt vmcnt({AW - AC + 2})")
        A(f"s_branch {nm}_W")
        epilogue("E0", [])
        A(f"s_cmp_lg_u32 {s(S_GO)}, 0")
        A(f"s_cbranch_scc1 {nm}_COLD")
        A("s_waitcnt vmcnt(2)")
        A.label(nm + "_W")
        shift()
        for x in check:
            A(x)
        A(f"s_cmp_lg_u32 {s(S_GO)}, 0")
        A(f"s_cbranch_scc1 {nm}_W0")
        body(AW, "W1")
        A.label(nm + "_W0")
        body(AW, "W0")
        A.label(nm + "_END")
    st.dump(83, T, V_T)
    if cfg.timing == 6 and not wo:
        A("s_memrealtime s[98:99]")
        A("s_waitcnt lgkmcnt(0)")
        A("s_sub_u32 s98, s98, s96")
        A(f"v_mov_b32 {v(V_T)}, s98")
        A(f"v_mov_b32 {v(V_T + 1)}, 28")
        A("s_mov_b64 exec, 1")
        A(f"buffer_store_dword {v(V_T)}, {v(V_T + 1)}, {s(SRD_DBG, 4)}, 0 offen")
    A("s_endpgm")
```

```python
import os
from common import *
from chain import gen_chain
import stations as ST
import stations32 as S32
import chain2 as C2M
import stations3 as S3


def gen_idle(A, cfg, nwg, name):
    A.label("ROLE_" + name)
    if cfg.vr and cfg.mode == "chain":
        A(f"s_sub_u32 {s(S_ROLE)}, {s(S_ROLEG)}, 96")
        A(f"s_cmp_ge_u32 {s(S_ROLE)}, 16")
        A("s_cbranch_scc1 NOPROBE")
        A("s_mov_b32 s80, 0")
        ST.base_setup(A)
        ST.numa_probe(A, cfg, 80)
        A.label("NOPROBE")
    init_barrier_arrive(A, 12)
    init_barrier_wait(A, 12, nwg, cfg)
    A("s_endpgm")


PLACE = [
    [("CHAIN", 24), ("W4", 8)],
    [("CHAIN", 24), ("W4", 2), ("W1", 5), ("W3", 1)],
    [("CHAIN", 24), ("W3", 8)],
    [("CHAIN", 24), ("W3", 3), ("W2", 5)],
    [("WO", 10), ("ATT", 4), ("R1", 2), ("QKVQ", 11), ("QKVV", 5)],
    [("WO", 10), ("ATT", 4), ("R1", 2), ("QKVQ", 11), ("QKVV", 5)],
    [("WO", 5), ("ATT", 4), ("R1", 2), ("QKVQ", 13), ("QKVV", 7), ("SPARE", 1)],
    [("WO", 5), ("ATT", 4), ("R1", 2), ("QKVQ", 13), ("QKVV", 7), ("SPARE", 1)],
]
PLACES = {
    28: [
        [("CW", 8), ("CV", 8), ("CS", 16)],
        [("CW", 8), ("CV", 8), ("CS", 16)],
        [("W1", 5), ("W2", 5), ("W3", 12), ("W4", 10)],
        [("QKVQ", 10), ("QKVV", 10), ("R1", 12)],
        [("QKVV", 7), ("QKVQ", 6), ("ATT", 8), ("WO", 10), ("R1", 1)],
        [("QKVV", 7), ("QKVQ", 6), ("ATT", 8), ("WO", 10), ("R1", 1)],
        [("QKVQ", 13), ("ATT", 8), ("WO", 10), ("R1", 1)],
        [("QKVQ", 13), ("ATT", 8), ("WO", 10), ("R1", 1)],
    ],
    29: [
        [("CW", 8), ("CV", 8), ("CS", 16)],
        [("CW", 8), ("CV", 8), ("CS", 16)],
        [("W1", 5), ("W2", 5), ("W3", 12), ("W4", 10)],
        [("QKVQ", 12), ("QKVV", 10), ("R1", 10)],
        [("QKVV", 7), ("QKVQ", 6), ("ATT", 8), ("WO", 10), ("R1", 1)],
        [("QKVV", 7), ("QKVQ", 6), ("ATT", 8), ("WO", 10), ("R1", 1)],
        [("QKVQ", 12), ("ATT", 8), ("WO", 10), ("R1", 2)],
        [("QKVQ", 12), ("ATT", 8), ("WO", 10), ("R1", 2)],
    ],
    30: [
        [("CW", 8), ("CV", 8), ("CS", 16)],
        [("CW", 8), ("CV", 8), ("CS", 16)],
        [("W1", 5), ("W2", 5), ("W3", 12), ("W4", 10)],
        [("QKVQ", 14), ("QKVV", 8), ("R1", 10)],
        [("QKVV", 4), ("QKVQ", 9), ("ATT", 8), ("WO", 10), ("R1", 1)],
        [("QKVV", 4), ("QKVQ", 9), ("ATT", 8), ("WO", 10), ("R1", 1)],
        [("QKVV", 4), ("QKVQ", 9), ("ATT", 8), ("WO", 10), ("R1", 1)],
        [("QKVV", 4), ("QKVQ", 7), ("ATT", 8), ("WO", 10), ("R1", 3)],
    ],
    26: [
        [("CW", 8), ("CV", 8), ("CS", 16)],
        [("CW", 8), ("CV", 8), ("CS", 16)],
        [("W1", 5), ("W2", 5), ("W3", 12), ("W4", 10)],
        [("QKVQ", 12), ("QKVV", 8), ("R1", 12)],
        [("QKVV", 4), ("QKVQ", 9), ("ATT", 8), ("WO", 10), ("R1", 1)],
        [("QKVV", 4), ("QKVQ", 9), ("ATT", 8), ("WO", 10), ("R1", 1)],
        [("QKVV", 4), ("QKVQ", 9), ("ATT", 8), ("WO", 10), ("R1", 1)],
        [("QKVV", 4), ("QKVQ", 9), ("ATT", 8), ("WO", 10), ("R1", 1)],
    ],
    27: [
        [("CW", 8), ("CV", 8), ("CS", 16)],
        [("CW", 8), ("CV", 8), ("CS", 16)],
        [("W1", 5), ("W2", 5), ("W3", 12), ("W4", 10)],
        [("QKVQ", 10), ("QKVV", 8), ("R1", 14)],
        [("QKVV", 5), ("QKVQ", 8), ("ATT", 8), ("WO", 10), ("R1", 1)],
        [("QKVV", 7), ("QKVQ", 6), ("ATT", 8), ("WO", 10), ("R1", 1)],
        [("QKVV", 2), ("QKVQ", 12), ("ATT", 8), ("WO", 10)],
        [("QKVV", 2), ("QKVQ", 12), ("ATT", 8), ("WO", 10)],
    ],
    24: [
        [("CW", 8), ("CV", 8), ("CS", 16)],
        [("CW", 8), ("CV", 8), ("CS", 16)],
        [("W1", 5), ("W2", 5), ("W3", 12), ("W4", 10)],
        [("QKVQ", 8), ("QKVV", 8), ("R1", 16)],
        [("QKVV", 4), ("QKVQ", 10), ("ATT", 8), ("WO", 10)],
        [("QKVV", 4), ("QKVQ", 10), ("ATT", 8), ("WO", 10)],
        [("QKVV", 4), ("QKVQ", 10), ("ATT", 8), ("WO", 10)],
        [("QKVV", 4), ("QKVQ", 10), ("ATT", 8), ("WO", 10)],
    ],
    25: [
        [("CS", 16), ("CV", 8), ("CW", 8)],
        [("CS", 16), ("CV", 8), ("CW", 8)],
        [("W1", 5), ("W2", 5), ("W3", 12), ("W4", 10)],
        [("QKVQ", 8), ("QKVV", 8), ("R1", 16)],
        [("QKVV", 4), ("QKVQ", 10), ("ATT", 8), ("WO", 10)],
        [("QKVV", 4), ("QKVQ", 10), ("ATT", 8), ("WO", 10)],
        [("QKVV", 4), ("QKVQ", 10), ("ATT", 8), ("WO", 10)],
        [("QKVV", 4), ("QKVQ", 10), ("ATT", 8), ("WO", 10)],
    ],
    23: [
        [("CS", 16), ("CV", 8), ("CW", 8)],
        [("CS", 16), ("CV", 8), ("CW", 8)],
        [("W4", 10), ("W1", 5), ("W3", 12), ("W2", 5)],
        [("QKVQ", 12), ("QKVV", 8), ("R1", 12)],
        [("WO", 10), ("ATT", 8), ("QKVQ", 9), ("QKVV", 4), ("R1", 1)],
        [("WO", 10), ("ATT", 8), ("QKVQ", 9), ("QKVV", 4), ("R1", 1)],
        [("WO", 10), ("ATT", 8), ("QKVQ", 9), ("QKVV", 4), ("R1", 1)],
        [("WO", 10), ("ATT", 8), ("QKVQ", 9), ("QKVV", 4), ("R1", 1)],
    ],
    22: [
        [("CS", 16), ("CV", 8), ("CW", 8)],
        [("CS", 16), ("CV", 8), ("CW", 8)],
        [("W4", 10), ("W1", 5), ("W3", 12), ("W2", 5)],
        [("QKVQ", 8), ("QKVV", 8), ("R1", 16)],
        [("WO", 10), ("ATT", 8), ("QKVQ", 10), ("QKVV", 4)],
        [("WO", 10), ("ATT", 8), ("QKVQ", 10), ("QKVV", 4)],
        [("WO", 10), ("ATT", 8), ("QKVQ", 10), ("QKVV", 4)],
        [("WO", 10), ("ATT", 8), ("QKVQ", 10), ("QKVV", 4)],
    ],
    21: [
        [("CS", 16), ("CV", 8), ("CW", 8)],
        [("CS", 16), ("CV", 8), ("CW", 8)],
        [("W4", 10), ("W1", 5), ("W3", 12), ("W2", 5)],
        [("QKVQ", 12), ("QKVV", 4), ("ATT", 8), ("R1", 4), ("SPARE", 4)],
        [("WO", 10), ("ATT", 6), ("R1", 3), ("QKVQ", 8), ("QKVV", 4), ("SPARE", 1)],
        [("WO", 10), ("ATT", 6), ("R1", 3), ("QKVQ", 8), ("QKVV", 4), ("SPARE", 1)],
        [("WO", 5), ("ATT", 6), ("R1", 3), ("QKVQ", 10), ("QKVV", 6), ("SPARE", 2)],
        [("WO", 5), ("ATT", 6), ("R1", 3), ("QKVQ", 10), ("QKVV", 6), ("SPARE", 2)],
    ],
    20: [
        [("CS", 16), ("CV", 8), ("CW", 8)],
        [("CS", 16), ("CV", 8), ("CW", 8)],
        [("W4", 10), ("W1", 5), ("W3", 12), ("W2", 5)],
        [("QKVQ", 16), ("SPARE", 16)],
        [("WO", 10), ("ATT", 4), ("R1", 2), ("QKVQ", 7), ("QKVV", 5), ("SPARE", 4)],
        [("WO", 10), ("ATT", 4), ("R1", 2), ("QKVQ", 7), ("QKVV", 5), ("SPARE", 4)],
        [("WO", 5), ("ATT", 4), ("R1", 2), ("QKVQ", 9), ("QKVV", 7), ("SPARE", 5)],
        [("WO", 5), ("ATT", 4), ("R1", 2), ("QKVQ", 9), ("QKVV", 7), ("SPARE", 5)],
    ],
    16: [
        [("CHAIN", 24), ("W4", 8)],
        [("CHAIN", 24), ("W4", 2), ("W1", 5), ("W3", 1)],
        [("CHAIN", 24), ("QKVV", 8)],
        [("CHAIN", 24), ("QKVV", 8)],
        [("WO", 10), ("ATT", 4), ("R1", 2), ("QKVQ", 10), ("QKVV", 2), ("W3", 4)],
        [("WO", 10), ("ATT", 4), ("R1", 2), ("QKVQ", 10), ("QKVV", 2), ("W3", 4)],
        [("WO", 5), ("ATT", 4), ("R1", 2), ("QKVQ", 14), ("QKVV", 2), ("W3", 3), ("SPARE", 2)],
        [("WO", 5), ("ATT", 4), ("R1", 2), ("QKVQ", 14), ("QKVV", 2), ("W2", 5)],
    ],
    17: [
        [("CHAIN", 24), ("W4", 8)],
        [("CHAIN", 24), ("W4", 2), ("W1", 5), ("W3", 1)],
        [("CHAIN", 24), ("QKVQ", 8)],
        [("CHAIN", 24), ("QKVQ", 8)],
        [("WO", 8), ("ATT", 4), ("R1", 2), ("QKVQ", 8), ("QKVV", 6), ("W3", 4)],
        [("WO", 7), ("ATT", 4), ("R1", 2), ("QKVQ", 8), ("QKVV", 6), ("W3", 4), ("SPARE", 1)],
        [("WO", 8), ("ATT", 4), ("R1", 2), ("QKVQ", 8), ("QKVV", 6), ("W3", 3), ("SPARE", 1)],
        [("WO", 7), ("ATT", 4), ("R1", 2), ("QKVQ", 8), ("QKVV", 6), ("W2", 5)],
    ],
    18: [
        [("CHAIN", 24), ("W4", 8)],
        [("CHAIN", 24), ("W4", 2), ("WO", 5), ("W3", 1)],
        [("CHAIN", 24), ("QKVQ", 8)],
        [("CHAIN", 24), ("QKVQ", 8)],
        [("WO", 10), ("ATT", 4), ("R1", 2), ("QKVQ", 7), ("QKVV", 5), ("W3", 4)],
        [("WO", 5), ("ATT", 4), ("R1", 2), ("QKVQ", 7), ("QKVV", 5), ("W3", 4), ("W1", 5)],
        [("WO", 5), ("ATT", 4), ("R1", 2), ("QKVQ", 9), ("QKVV", 7), ("W3", 3), ("SPARE", 2)],
        [("WO", 5), ("ATT", 4), ("R1", 2), ("QKVQ", 9), ("QKVV", 7), ("W2", 5)],
    ],
    13: [
        [("CHAIN", 24), ("QKVQ", 8)],
        [("CHAIN", 24), ("QKVQ", 8)],
        [("CHAIN", 24), ("QKVQ", 8)],
        [("CHAIN", 24), ("QKVQ", 8)],
        [("WO", 10), ("ATT", 4), ("R1", 2), ("QKVQ", 3), ("QKVV", 5), ("W3", 3), ("W4", 3), ("W1", 2)],
        [("WO", 10), ("ATT", 4), ("R1", 2), ("QKVQ", 3), ("QKVV", 5), ("W3", 3), ("W4", 3), ("W1", 2)],
        [("WO", 5), ("ATT", 4), ("R1", 2), ("QKVQ", 5), ("QKVV", 7), ("W3", 3), ("W4", 2), ("W1", 1), ("W2", 2), ("SPARE", 1)],
        [("WO", 5), ("ATT", 4), ("R1", 2), ("QKVQ", 5), ("QKVV", 7), ("W3", 3), ("W4", 2), ("W2", 3), ("SPARE", 1)],
    ],
    14: [
        [("CHAIN", 24), ("W4", 5), ("QKVV", 3)],
        [("CHAIN", 24), ("W4", 5), ("QKVV", 3)],
        [("CHAIN", 24), ("QKVV", 8)],
        [("CHAIN", 24), ("QKVV", 8)],
        [("WO", 10), ("ATT", 4), ("R1", 2), ("QKVQ", 11), ("W1", 5)],
        [("WO", 10), ("ATT", 4), ("R1", 2), ("QKVQ", 11), ("W2", 5)],
        [("WO", 5), ("ATT", 4), ("R1", 2), ("QKVQ", 13), ("QKVV", 1), ("W3", 6), ("SPARE", 1)],
        [("WO", 5), ("ATT", 4), ("R1", 2), ("QKVQ", 13), ("QKVV", 1), ("W3", 6), ("SPARE", 1)],
    ],
    15: [
        [("CHAIN", 24), ("W4", 8)],
        [("CHAIN", 24), ("W4", 2), ("QKVQ", 6)],
        [("CHAIN", 24), ("QKVQ", 8)],
        [("CHAIN", 24), ("QKVQ", 8)],
        [("WO", 8), ("ATT", 4), ("R1", 2), ("QKVQ", 7), ("QKVV", 6), ("W1", 5)],
        [("WO", 7), ("ATT", 4), ("R1", 2), ("QKVQ", 7), ("QKVV", 6), ("W3", 6)],
        [("WO", 8), ("ATT", 4), ("R1", 2), ("QKVQ", 6), ("QKVV", 6), ("W2", 5), ("SPARE", 1)],
        [("WO", 7), ("ATT", 4), ("R1", 2), ("QKVQ", 6), ("QKVV", 6), ("W3", 6), ("SPARE", 1)],
    ],
    10: [
        [("CHAIN", 24), ("W4", 8)],
        [("CHAIN", 24), ("W4", 2), ("W1", 5), ("W3", 1)],
        [("CHAIN", 24), ("QKVQ", 8)],
        [("CHAIN", 24), ("QKVQ", 8)],
        [("WO", 10), ("ATT", 4), ("R1", 2), ("QKVQ", 7), ("QKVV", 5), ("W3", 4)],
        [("WO", 10), ("ATT", 4), ("R1", 2), ("QKVQ", 7), ("QKVV", 5), ("W3", 4)],
        [("WO", 5), ("ATT", 4), ("R1", 2), ("QKVQ", 9), ("QKVV", 7), ("W3", 3), ("SPARE", 2)],
        [("WO", 5), ("ATT", 4), ("R1", 2), ("QKVQ", 9), ("QKVV", 7), ("W2", 5)],
    ],
    11: [
        [("CHAIN", 24), ("W4", 6), ("QKVV", 2)],
        [("CHAIN", 24), ("W4", 4), ("W1", 2), ("QKVV", 2)],
        [("CHAIN", 24), ("W3", 6), ("QKVV", 2)],
        [("CHAIN", 24), ("W3", 1), ("W2", 5), ("QKVV", 2)],
        [("WO", 10), ("ATT", 4), ("R1", 2), ("QKVQ", 11), ("QKVV", 3), ("W3", 2)],
        [("WO", 10), ("ATT", 4), ("R1", 2), ("QKVQ", 11), ("QKVV", 3), ("W3", 2)],
        [("WO", 5), ("ATT", 4), ("R1", 2), ("QKVQ", 13), ("QKVV", 5), ("W1", 3)],
        [("WO", 5), ("ATT", 4), ("R1", 2), ("QKVQ", 13), ("QKVV", 5), ("W3", 1), ("SPARE", 2)],
    ],
    12: [
        [("CHAIN", 24), ("W4", 8)],
        [("CHAIN", 24), ("W4", 2), ("W1", 5), ("W3", 1)],
        [("CHAIN", 24), ("W3", 8)],
        [("CHAIN", 24), ("W3", 3), ("W2", 5)],
        [("WO", 8), ("ATT", 4), ("R1", 2), ("QKVQ", 12), ("QKVV", 6)],
        [("WO", 7), ("ATT", 4), ("R1", 2), ("QKVQ", 12), ("QKVV", 6), ("SPARE", 1)],
        [("WO", 8), ("ATT", 4), ("R1", 2), ("QKVQ", 12), ("QKVV", 6)],
        [("WO", 7), ("ATT", 4), ("R1", 2), ("QKVQ", 12), ("QKVV", 6), ("SPARE", 1)],
    ],
    9: [
        [("CHAIN", 24), ("W4", 8)],
        [("CHAIN", 24), ("W4", 2), ("W1", 5), ("PROBE", 1)],
        [("CHAIN", 24), ("W3", 8)],
        [("CHAIN", 24), ("W3", 3), ("W2", 5)],
        [("WO", 10), ("ATT", 4), ("R1", 2), ("QKVQ", 11), ("QKVV", 5)],
        [("WO", 10), ("ATT", 4), ("R1", 2), ("QKVQ", 11), ("QKVV", 5)],
        [("WO", 5), ("ATT", 4), ("R1", 2), ("QKVQ", 13), ("QKVV", 7), ("W3", 1)],
        [("WO", 5), ("ATT", 4), ("R1", 2), ("QKVQ", 13), ("QKVV", 7), ("SPARE", 1)],
    ],
    6: [
        [("CHAIN", 24), ("W1", 5), ("W3", 3)],
        [("CHAIN", 24), ("W2", 5), ("W3", 3)],
        [("CHAIN", 24), ("W3", 6), ("SPARE", 2)],
        [("CHAIN", 24), ("R1", 8)],
        [("WO", 10), ("ATT", 4), ("W4", 2), ("QKVQ", 11), ("QKVV", 5)],
        [("WO", 10), ("ATT", 4), ("W4", 2), ("QKVQ", 11), ("QKVV", 5)],
        [("WO", 5), ("ATT", 4), ("W4", 3), ("QKVQ", 13), ("QKVV", 7)],
        [("WO", 5), ("ATT", 4), ("W4", 3), ("QKVQ", 13), ("QKVV", 7)],
    ],
    7: [
        [("CHAIN", 24), ("W1", 5), ("W4", 3)],
        [("CHAIN", 24), ("W2", 5), ("W4", 3)],
        [("CHAIN", 24), ("W3", 4), ("W4", 2), ("SPARE", 2)],
        [("CHAIN", 24), ("W3", 6), ("W4", 2)],
        [("WO", 10), ("ATT", 4), ("R1", 2), ("QKVQ", 11), ("QKVV", 5)],
        [("WO", 10), ("ATT", 4), ("R1", 2), ("QKVQ", 11), ("QKVV", 5)],
        [("WO", 5), ("ATT", 4), ("R1", 2), ("QKVQ", 13), ("QKVV", 7), ("W3", 1)],
        [("WO", 5), ("ATT", 4), ("R1", 2), ("QKVQ", 13), ("QKVV", 7), ("W3", 1)],
    ],
    8: [
        [("CHAIN", 24), ("ATT", 4), ("R1", 2), ("W1", 2)],
        [("CHAIN", 24), ("ATT", 4), ("R1", 2), ("W1", 2)],
        [("CHAIN", 24), ("ATT", 4), ("R1", 2), ("W1", 1), ("SPARE", 1)],
        [("CHAIN", 24), ("ATT", 4), ("R1", 2), ("W2", 1), ("SPARE", 1)],
        [("WO", 10), ("W4", 3), ("W3", 3), ("QKVQ", 11), ("QKVV", 5)],
        [("WO", 10), ("W4", 3), ("W3", 3), ("QKVQ", 11), ("QKVV", 5)],
        [("WO", 5), ("W4", 2), ("W3", 3), ("W2", 2), ("QKVQ", 13), ("QKVV", 7)],
        [("WO", 5), ("W4", 2), ("W3", 3), ("W2", 2), ("QKVQ", 13), ("QKVV", 7)],
    ],
    3: [
        [("CHAIN", 24), ("R1", 8)],
        [("CHAIN", 24), ("W1", 5), ("SPARE", 2), ("W3", 1)],
        [("CHAIN", 24), ("W2", 5), ("W3", 3)],
        [("CHAIN", 24), ("W3", 8)],
        [("WO", 10), ("ATT", 4), ("QKVQ", 12), ("QKVV", 6)],
        [("WO", 10), ("ATT", 4), ("QKVQ", 12), ("QKVV", 6)],
        [("WO", 5), ("ATT", 4), ("QKVQ", 7), ("QKVV", 6), ("W4", 10)],
        [("WO", 5), ("ATT", 4), ("QKVQ", 17), ("QKVV", 6)],
    ],
    4: [
        [("CHAIN", 24), ("ATT", 8)],
        [("CHAIN", 24), ("ATT", 8)],
        [("CHAIN", 24), ("R1", 8)],
        [("CHAIN", 24), ("W1", 5), ("SPARE", 2), ("W3", 1)],
        [("WO", 10), ("W2", 5), ("QKVQ", 11), ("QKVV", 6)],
        [("WO", 10), ("W3", 5), ("QKVQ", 11), ("QKVV", 6)],
        [("WO", 5), ("QKVQ", 11), ("QKVV", 6), ("W4", 10)],
        [("WO", 5), ("W3", 6), ("QKVQ", 15), ("QKVV", 6)],
    ],
    5: [
        [("CHAIN", 24), ("W4", 5), ("W1", 3)],
        [("CHAIN", 24), ("W4", 5), ("W1", 2), ("SPARE", 1)],
        [("CHAIN", 24), ("W3", 6), ("W2", 2)],
        [("CHAIN", 24), ("W3", 4), ("W2", 3), ("SPARE", 1)],
        [("WO", 10), ("ATT", 4), ("R1", 2), ("QKVQ", 11), ("QKVV", 5)],
        [("WO", 10), ("ATT", 4), ("R1", 2), ("QKVQ", 11), ("QKVV", 5)],
        [("WO", 5), ("ATT", 4), ("R1", 2), ("QKVQ", 13), ("QKVV", 7), ("W3", 1)],
        [("WO", 5), ("ATT", 4), ("R1", 2), ("QKVQ", 13), ("QKVV", 7), ("W3", 1)],
    ],
    1: [
        [("CHAIN", 24), ("W1", 5), ("QKVQ", 3)],
        [("CHAIN", 24), ("W2", 5), ("QKVQ", 3)],
        [("CHAIN", 24), ("W3", 6), ("SPARE", 1), ("QKVQ", 1)],
        [("CHAIN", 24), ("W3", 6), ("SPARE", 1), ("QKVQ", 1)],
        [("WO", 10), ("ATT", 4), ("R1", 2), ("QKVQ", 10), ("QKVV", 6)],
        [("WO", 10), ("ATT", 4), ("R1", 2), ("QKVQ", 10), ("QKVV", 6)],
        [("WO", 5), ("ATT", 4), ("R1", 2), ("QKVQ", 5), ("QKVV", 6), ("W4", 10)],
        [("WO", 5), ("ATT", 4), ("R1", 2), ("QKVQ", 15), ("QKVV", 6)],
    ],
    2: [
        [("CHAIN", 24), ("QKVQ", 8)],
        [("CHAIN", 24), ("QKVQ", 8)],
        [("CHAIN", 24), ("QKVQ", 7), ("SPARE", 1)],
        [("CHAIN", 24), ("QKVQ", 7), ("SPARE", 1)],
        [("WO", 10), ("ATT", 4), ("R1", 2), ("W1", 5), ("W2", 5), ("QKVV", 6)],
        [("WO", 10), ("ATT", 4), ("R1", 2), ("QKVQ", 10), ("QKVV", 6)],
        [("WO", 5), ("ATT", 4), ("R1", 2), ("QKVQ", 5), ("QKVV", 6), ("W4", 10)],
        [("WO", 5), ("ATT", 4), ("R1", 2), ("QKVQ", 3), ("QKVV", 6), ("W3", 12)],
    ],
}
ROLE_BITS = ["CHAIN", "QKVQ", "QKVV", "ATT", "WO", "R1", "W1", "W2", "W3", "W4"]


DOC = """; ---------------------------------------------------------------------------------------------
; ---------------------------------------------------------------------------------------------
"""


def gen_probe(A, cfg, nwg):
    A.label("ROLE_PROBE")
    lab = A.newlabel("pb")
    A(f"s_cmp_lg_u32 {s(S_WAVE)}, 0")
    A(f"s_cbranch_scc1 {lab}")
    A("s_mov_b64 exec, 1")
    A("v_mov_b32 v12, 0")
    A("s_mov_b32 s50, -1")
    A("s_mov_b32 s51, -1")
    A("s_mov_b32 s52, 0")
    A.label("PROBE_LOOP")
    A("s_and_b32 s53, s52, 7")
    A("s_lshl_b32 s53, s53, 14")
    A(f"s_add_u32 s53, s53, {XP + 0x140000}")
    for par in range(2):
        if par:
            A("s_add_u32 s53, s53, 0x2000")
        A("s_memtime s[54:55]")
        A("s_waitcnt lgkmcnt(0)")
        A(f"buffer_store_dword v12, v12, {s(SRD_WS, 4)}, s53 offen sc1")
        A("s_waitcnt vmcnt(0)")
        A(f"buffer_load_dword v13, v12, {s(SRD_WS, 4)}, s53 offen sc1")
        A("s_waitcnt vmcnt(0)")
        A("s_memtime s[56:57]")
        A("s_waitcnt lgkmcnt(0)")
        A("s_sub_u32 s58, s56, s54")
        A(f"s_min_u32 s{50 + par}, s{50 + par}, s58")
    A("s_add_u32 s52, s52, 1")
    A(f"s_cmp_lt_u32 s52, {cfg.nprobe}")
    A("s_cbranch_scc1 PROBE_LOOP")
    A("s_cmp_lt_u32 s51, s50")
    A("s_cselect_b32 s52, 0x2000, 0")
    A("v_mov_b32 v13, s52")
    A("v_mov_b32 v12, 12")
    A(f"buffer_store_dword v13, v12, {s(SRD_DBG, 4)}, 0 offen sc1")
    if cfg.timing:
        A("v_mov_b32 v13, s50")
        A(f"buffer_store_dword v13, v12, {s(SRD_DBG, 4)}, 0 offen offset:56 sc1")
        A("v_mov_b32 v13, s51")
        A(f"buffer_store_dword v13, v12, {s(SRD_DBG, 4)}, 0 offen offset:60 sc1")
    A("s_mov_b64 exec, -1")
    A.label(lab)
    init_barrier_arrive(A, 12)
    init_barrier_wait(A, 12, nwg, cfg)
    A("s_endpgm")


def gen(cfg):
    A = Asm()
    nwg = 256
    CFG[0] = cfg
    ST.TSFLAG[0] = cfg.timing == 4
    assert not cfg.xt or (cfg.LAG + 2 <= 16 and cfg.LAG + cfg.dlt + 2 <= 16 and cfg.kl and cfg.a3 and cfg.w3 and cfg.nb)
    if cfg.mode == "chain":
        cfg.off = 0x3fe
    active = [r for i, r in enumerate(ROLE_BITS) if not (cfg.off >> i) & 1]
    if cfg.c2:
        active = [r for r in active if r != "CHAIN"] + (["CS", "CV", "CW"] if "CHAIN" in active else [])
    if cfg.near and not cfg.vote:
        cfg.place = 9
        active.append("PROBE")
    K = NAME + "_kernel"
    head = open(os.path.join(os.path.dirname(os.path.abspath(__file__)), "..", NAME + ".s.ref")).read().split("\n")
    hdr = [l for l in head if l.startswith(";") and "@launch" not in l and "Override" not in l and "grid=ceil" not in l]
    out = "\n".join(hdr) + f"\n; @launch grid=({nwg},1,1) block=(256,1,1) lds=163840\n"
    out += '.amdgcn_target "amdgcn-amd-amdhsa--gfx950"\n.text\n'
    out += DOC
    out += f".globl {K}\n.p2align 8\n.type {K},@function\n{K}:\n"
    A(f"s_cmp_ge_u32 s2, {nwg}")
    A("s_cbranch_scc1 EXIT")
    A(f"s_load_dwordx16 {s(16, 16)}, s[0:1], 0")
    A(f"s_load_dwordx8 {s(32, 8)}, s[0:1], 64")
    A(f"s_load_dwordx4 {s(40, 4)}, s[0:1], 96")
    A(f"s_load_dwordx2 {s(44, 2)}, s[0:1], 112")
    A("v_lshrrev_b32 v1, 6, v0")
    A("v_and_b32 v0, 63, v0")
    A(f"v_readfirstlane_b32 {s(S_WAVE)}, v1")
    A(f"s_mov_b32 {s(S_SPIN)}, {cfg.spin}")
    A(f"s_mov_b32 {s(S_MODE)}, 0")
    if cfg.timing == 6:
        A("s_memrealtime s[96:97]")
    A("s_getreg_b32 s4, hwreg(HW_REG_XCC_ID)")
    A("s_and_b32 s4, s4, 7")
    A("s_waitcnt lgkmcnt(0)")
    make_srd(A, SRD_WS, P_WS, WS_BYTES)
    make_srd(A, SRD_DBG, P_DBG, 256)
    A("v_lshlrev_b32 v1, 4, v0")
    for i in range(4):
        A(f"v_mov_b32 v{4 + i}, 0")
    A("s_lshl_b32 s5, s2, 2")
    A(f"s_add_u32 s5, s5, {s(S_WAVE)}")
    A("s_lshl_b32 s5, s5, 10")
    if cfg.mode != "chain":
        A(f"buffer_store_dwordx4 v[4:7], v1, {s(SRD_WS, 4)}, s5 offen sc1")
    if cfg.near and cfg.vote and not cfg.vr:
        A("s_cmp_ge_u32 s4, 4")
        A("s_cbranch_scc1 VOTE_DONE")
        A(f"s_cmp_lg_u32 {s(S_WAVE)}, 1")
        A("s_cbranch_scc1 VOTE_DONE")
        if cfg.vote > 1:
            A(f"s_and_b32 s52, s2, {(cfg.vote - 1) << 3}")
            A("s_cbranch_scc1 VOTE_DONE")
        A("s_mov_b64 exec, 1")
        A("v_mov_b32 v12, 0")
        A("s_and_b32 s53, s2, 63")
        A("s_lshl_b32 s53, s53, 7")
        A("s_lshr_b32 s52, s2, 6")
        A("s_mul_i32 s52, s52, 3")
        A(f"s_add_u32 s52, s52, {s(S_WAVE)}")
        A("s_lshl_b32 s52, s52, 14")
        A("s_add_u32 s53, s53, s52")
        A(f"s_add_u32 s53, s53, {XP + 0x140000}")
        A("s_add_u32 s59, s53, 0x2000")
        A(f"buffer_store_dword v12, v12, {s(SRD_WS, 4)}, s53 offen sc1")
        A(f"buffer_store_dword v12, v12, {s(SRD_WS, 4)}, s59 offen sc1")
        A("s_waitcnt vmcnt(0)")
        for par in range(2):
            A("s_memtime s[54:55]")
            A("s_waitcnt lgkmcnt(0)")
            A(f"buffer_load_dword v13, v12, {s(SRD_WS, 4)}, s{59 if par else 53} offen sc1")
            A("s_waitcnt vmcnt(0)")
            A("s_memtime s[56:57]")
            A("s_waitcnt lgkmcnt(0)")
            A(f"s_sub_u32 s{50 + par}, s56, s54")
        A("s_cmp_lt_u32 s51, s50")
        A("s_cselect_b32 s52, 1, -1")
        A("v_mov_b32 v13, s52")
        A("v_mov_b32 v12, 192")
        A(f"buffer_atomic_add v13, v12, {s(SRD_DBG, 4)}, 0 offen sc1")
        A("s_mov_b64 exec, -1")
        A.label("VOTE_DONE")
    A("v_mov_b32 v2, 0")
    A(f"s_cmp_lg_u32 {s(S_WAVE)}, 0")
    A("s_cbranch_scc1 TK_DONE")
    A("s_mov_b64 exec, 1")
    A("v_mov_b32 v1, 1")
    A("s_lshl_b32 s5, s4, 2")
    A("v_mov_b32 v3, s5")
    A(f"buffer_atomic_add v1, v3, {s(SRD_DBG, 4)}, 0 offen offset:32 sc0 sc1")
    A("s_waitcnt vmcnt(0)")
    A("v_readfirstlane_b32 s5, v1")
    A("s_lshl_b32 s6, s4, 5")
    A("s_add_u32 s6, s6, s5")
    A("s_cmp_lt_u32 s5, 32")
    A("s_cselect_b32 s6, s6, 999")
    A("v_mov_b32 v1, s6")
    A("ds_write_b32 v2, v1")
    A("s_mov_b64 exec, -1")
    A("s_waitcnt lgkmcnt(0)")
    A.label("TK_DONE")
    A("s_barrier")
    A("ds_read_b32 v1, v2")
    A("s_waitcnt lgkmcnt(0)")
    A(f"v_readfirstlane_b32 {s(S_ROLEG)}, v1")
    A("s_barrier")
    if cfg.timing == 4:
        A("s_memrealtime s[98:99]")
        A("s_waitcnt lgkmcnt(0)")
        A("v_mov_b32 v1, s98")
        A("v_mov_b32 v2, 24")
        A(f"s_cmp_lg_u32 {s(S_ROLEG)}, 0")
        A("s_cbranch_scc1 DISPATCH")
        A(f"buffer_store_dword v1, v2, {s(SRD_DBG, 4)}, 0 offen")
    if cfg.c2:
        A("s_branch DISPATCH")
        C2M.gen_sv(A, cfg, nwg)
        C2M.gen_cw(A, cfg, nwg)
    A.label("DISPATCH")
    if cfg.timing:
        A(f"s_mov_b32 {s(S_GID)}, {s(S_ROLEG)}")
    pos = 0
    cnt = {}
    for xcd in PLACES.get(cfg.place, PLACE):
        assert sum(n for _, n in xcd) == 32
        for name, n in xcd:
            b = cnt.get(name, 0)
            cnt[name] = b + n
            A(f"s_sub_u32 {s(S_ROLE)}, {s(S_ROLEG)}, {pos - b}")
            A(f"s_cmp_lt_u32 {s(S_ROLEG)}, {pos + n}")
            A(f"s_cbranch_scc1 ROLE_{name if name in active else 'SPARE'}")
            pos += n
    assert cnt == dict(CHAIN=96, QKVQ=48, QKVV=24, ATT=16, WO=30, R1=8, W1=5, W2=5, W3=12, W4=10, SPARE=2) or cfg.near, cnt
    A("s_branch ROLE_SPARE")
    A.label("EXIT")
    A("s_endpgm")
    A.label("ABORT")
    A("s_mov_b64 exec, 1")
    A("v_mov_b32 v1, s2")
    A("v_add_u32 v1, 0x10000, v1")
    A("v_mov_b32 v2, 8")
    A(f"buffer_store_dword v1, v2, {s(SRD_DBG, 4)}, 0 offen")
    A("s_endpgm")
    gen_idle(A, cfg, nwg, "SPARE")
    gens = dict(CHAIN=lambda: gen_chain(A, cfg, nwg), QKVQ=lambda: S32.QKV32(A, cfg, nwg, False).gen(), QKVV=lambda: S32.QKV32(A, cfg, nwg, True).gen(),
                ATT=lambda: ST.gen_att(A, cfg, nwg), WO=lambda: S32.WO32(A, cfg, nwg).gen(), R1=lambda: ST.gen_r1(A, cfg, nwg),
                W1=lambda: S32.W1_32(A, cfg, nwg).gen(), W2=lambda: S32.W2_32(A, cfg, nwg).gen(), W3=lambda: S32.W3_32(A, cfg, nwg).gen(),
                W4=lambda: ST.gen_w4(A, cfg, nwg), PROBE=lambda: gen_probe(A, cfg, nwg),
                CS=lambda: None, CV=lambda: None, CW=lambda: None)
    if not cfg.s32:
        gens.update(QKVQ=lambda: ST.QKV(A, cfg, nwg, False).gen(), QKVV=lambda: ST.QKV(A, cfg, nwg, True).gen(), WO=lambda: ST.WO(A, cfg, nwg).gen(),
                    W1=lambda: ST.W1(A, cfg, nwg).gen(), W2=lambda: ST.W2(A, cfg, nwg).gen(), W3=lambda: ST.W3(A, cfg, nwg).gen())
    if cfg.g3 & 1:
        gens.update(QKVQ=lambda: S3.QKV3(A, cfg, nwg, False).gen(), QKVV=lambda: S3.QKV3(A, cfg, nwg, True).gen())
    if cfg.g3 & 32:
        gens.update(QKVQ=lambda: S3.QKV4(A, cfg, nwg, False).gen(), QKVV=lambda: S3.QKV4(A, cfg, nwg, True).gen())
    if cfg.g3 & 2:
        gens.update(W1=lambda: S3.W1_3(A, cfg, nwg).gen(), W2=lambda: S3.W2_3(A, cfg, nwg).gen(), W3=lambda: S3.W3_3(A, cfg, nwg).gen())
    if cfg.g3 & 4:
        gens.update(WO=lambda: S3.WO_3(A, cfg, nwg).gen())
    if cfg.g3 & 8:
        gens.update(W4=lambda: S3.gen_ks(A, cfg, nwg, False))
    if cfg.g3 & 16:
        gens.update(WO=lambda: S3.gen_ks(A, cfg, nwg, True))
    if cfg.g3 & 64:
        gens.update(WO=lambda: S3.WO5(A, cfg, nwg).gen(), R1=lambda: S3.gen_r3(A, cfg, nwg))
    for r in active:
        gens[r]()
    out += A.render()
    out += f""".section .rodata,"a"
.p2align 6
.amdhsa_kernel {K}
  .amdhsa_next_free_vgpr 512
  .amdhsa_next_free_sgpr 102
  .amdhsa_accum_offset 256
  .amdhsa_group_segment_fixed_size 0
  .amdhsa_kernarg_size 120
  .amdhsa_user_sgpr_count 2
  .amdhsa_user_sgpr_kernarg_segment_ptr 1
  .amdhsa_system_sgpr_workgroup_id_x 1
.end_amdhsa_kernel
"""
    return out, A.count()


if __name__ == "__main__":
    mode = sys.argv[1] if len(sys.argv) > 1 else "full"
    outp = sys.argv[2] if len(sys.argv) > 2 else "/code/" + NAME + ".s"
    kw = {}
    for arg in sys.argv[3:]:
        k, val = arg.split("=")
        kw[k] = int(val)
    if mode == "chain":
        kw.setdefault("timing", 1)
        cfg = Cfg(mode="chain", lstride=2 * QKV_SZ, **kw)
    else:
        cfg = Cfg(mode=mode, **kw)
    txt, n = gen(cfg)
    open(outp, "w").write(txt)
    print("instructions:", n, "bytes:", len(txt))
```
